```python
import torch

def _softmax(x, axis=-1):
    return torch.softmax(x, dim=axis)
def _gelu(x):
    return torch.nn.functional.gelu(x, approximate="tanh")
def _silu(x):
    return torch.nn.functional.silu(x)
def _sigmoid(x):
    return torch.sigmoid(x)
def _layernorm(x, axis=-1, eps=1e-5):
    m = x.mean(dim=axis, keepdim=True)
    v = x.var(dim=axis, keepdim=True, unbiased=False)
    return (x - m) / torch.sqrt(v + eps)
def _scatter_add(tgt, idx, src, axis=0):
    return tgt.clone().index_add_(axis, idx, src)
def _segment_sum(src, seg, n):
    out = torch.zeros((n,) + src.shape[1:], dtype=src.dtype)
    return out.index_add_(0, seg, src)
def _pad(x, pw):
    flat = tuple(v for pair in reversed(pw) for v in pair)
    return torch.nn.functional.pad(x, flat)

kernel_name = 'parallel_sum__spectral_fnet__geglu_ffn__prompt'

def setup_inputs():

    _w = (lambda a: (lambda t: t.to(torch.bfloat16) if t.is_floating_point() else t)(torch.as_tensor(a)))
    def _A_setup():
        B, S, D = 1, 2048, 576
        ns = torch.arange(S)[:, None] * torch.arange(S)[None, :]
        nd = torch.arange(D)[:, None] * torch.arange(D)[None, :]
        Ws_re = torch.cos(-2.0 * torch.pi * ns / S).to(float)
        Ws_im = torch.sin(-2.0 * torch.pi * ns / S).to(float)
        Wd_re = torch.cos(-2.0 * torch.pi * nd / D).to(float)
        Wd_im = torch.sin(-2.0 * torch.pi * nd / D).to(float)
        return {
            "x": _w((lambda *s: torch.randn(*s, dtype=torch.bfloat16) * 0.05)(B, S, D)),
            "dft_seq_re": _w(Ws_re),
            "dft_seq_im": _w(Ws_im),
            "dft_hid_re": _w(Wd_re),
            "dft_hid_im": _w(Wd_im),
        }
    _A_in = _A_setup()

    def _B_setup():
        B, S, D, F = 1, 2048, 576, 4608
        return {
            "x": _w((lambda *s: torch.randn(*s, dtype=torch.bfloat16) * 0.05)(B, S, D)),
            "w_gate": _w((lambda *s: torch.randn(*s, dtype=torch.bfloat16) * 0.2)(D, F)),
            "w_up": _w((lambda *s: torch.randn(*s, dtype=torch.bfloat16) * 0.2)(D, F)),
            "w_down": _w((lambda *s: torch.randn(*s, dtype=torch.bfloat16) * 0.2)(F, D)),
        }
    _B_in = _B_setup()

    return {
        "A_x": _A_in["x"],
        "A_dft_seq_re": _A_in["dft_seq_re"],
        "A_dft_seq_im": _A_in["dft_seq_im"],
        "A_dft_hid_re": _A_in["dft_hid_re"],
        "A_dft_hid_im": _A_in["dft_hid_im"],
        "B_x": _B_in["x"],
        "B_w_gate": _B_in["w_gate"],
        "B_w_up": _B_in["w_up"],
        "B_w_down": _B_in["w_down"],
    }

def reference(A_x, A_dft_seq_re, A_dft_seq_im, A_dft_hid_re, A_dft_hid_im, B_x, B_w_gate, B_w_up, B_w_down):
    def _A_ref(x, dft_seq_re, dft_seq_im, dft_hid_re, dft_hid_im):
        a = torch.einsum("bsd,ed->bse", x, dft_hid_re)
        b = torch.einsum("bsd,ed->bse", x, dft_hid_im)
        y = torch.einsum("ts,bse->bte", dft_seq_re, a) - torch.einsum("ts,bse->bte", dft_seq_im, b)
        return y

    def _B_ref(x, w_gate, w_up, w_down):
        return (_gelu(x @ w_gate) * (x @ w_up)) @ w_down

    x = A_x
    xn = _layernorm(x, axis=-1)
    return x + _A_ref(xn, A_dft_seq_re, A_dft_seq_im, A_dft_hid_re, A_dft_hid_im) + _B_ref(xn, B_w_gate, B_w_up, B_w_down)
```

```python
class I:
    __slots__ = ("t", "k", "tag", "cost")
    def __init__(self, t, k="o", tag=None):
        self.t = t; self.k = k; self.tag = tag
    def __repr__(self): return f"I({self.t!r},{self.k},{self.tag})"

def o(t): return I(t, "o")
def vm(t, tag=None): return I(t, "vm", tag)
def ds(t, tag=None): return I(t, "ds", tag)
def wvm(tag): return I("", "wvm", tag)
def wlg(tag): return I("", "wlg", tag)
def wboth(vtag, ltag): return I("", "wb", (vtag, ltag))
def raw(t): return I(t, "raw")
def reset(): return I("", "reset")

def _match(tag, want):
    if isinstance(want, (list, set, tuple)) and not (isinstance(want, tuple) and isinstance(tag, tuple) and len(want) and not isinstance(want[0], tuple) ):
        return tag in want
    return tag == want

def finalize(instrs):
    out = []
    vml = []
    dsl = []
    vm_done = 0
    ds_done = 0
    def need(lst, done, want, mx):
        idx = -1
        wants = want if isinstance(want, (list, set)) else [want]
        for i in range(len(lst) - 1, -1, -1):
            if lst[i] in wants:
                idx = i; break
        if idx < 0:
            raise Exception(f"wait on unknown tag {want}")
        if idx < done:
            return None, done
        n = len(lst) - 1 - idx
        if n > mx:
            n = mx
        return n, len(lst) - n
    for ins in instrs:
        if ins.k == "vm":
            vml.append(ins.tag); out.append("    " + ins.t)
        elif ins.k == "ds":
            dsl.append(ins.tag); out.append("    " + ins.t)
        elif ins.k == "wvm":
            n, vm_done = need(vml, vm_done, ins.tag, 63)
            if n is not None: out.append(f"    s_waitcnt vmcnt({n})")
        elif ins.k == "wlg":
            n, ds_done = need(dsl, ds_done, ins.tag, 15)
            if n is not None: out.append(f"    s_waitcnt lgkmcnt({n})")
        elif ins.k == "wb":
            n1, vm_done = need(vml, vm_done, ins.tag[0], 63)
            n2, ds_done = need(dsl, ds_done, ins.tag[1], 15)
            s = []
            if n1 is not None: s.append(f"vmcnt({n1})")
            if n2 is not None: s.append(f"lgkmcnt({n2})")
            if s: out.append("    s_waitcnt " + " ".join(s))
        elif ins.k == "reset":
            vm_done = len(vml); ds_done = len(dsl)
        elif ins.k == "raw":
            out.append(ins.t)
        else:
            out.append("    " + ins.t)
    return out

def vr(b, n=1):
    return f"v{b}" if n == 1 else f"v[{b}:{b+n-1}]"
def ar(b, n=1):
    return f"a{b}" if n == 1 else f"a[{b}:{b+n-1}]"
def sr(b, n=1):
    return f"s{b}" if n == 1 else f"s[{b}:{b+n-1}]"

def spread(slots, instrs, start, end):
    n = len(instrs); m = end - start
    for i, ins in enumerate(instrs):
        s = start + (i * m) // n
        slots[s]["post"].append(ins)

def kernel_footer(name, vgpr=512, sgpr=102, accum=256):
    return f"""
.section .rodata,"a"
.p2align 6
.amdhsa_kernel {name}
  .amdhsa_next_free_vgpr {vgpr}
  .amdhsa_next_free_sgpr {sgpr}
  .amdhsa_accum_offset {accum}
  .amdhsa_group_segment_fixed_size 0
  .amdhsa_kernarg_size 96
  .amdhsa_user_sgpr_count 2
  .amdhsa_user_sgpr_kernarg_segment_ptr 1
  .amdhsa_system_sgpr_workgroup_id_x 1
.end_amdhsa_kernel
.text
"""
```

```python
from fw import *
import re

def cls_cost(ins):
    if ins.k in ("wvm", "wlg", "wb"): return 0, 1
    if ins.k == "reset": return 0, 0
    t = ins.t
    op = t.split()[0]
    if op == "s_barrier": return 0, 3
    if op.startswith("s_"): return 0, 1
    if op.startswith("buffer_store") or op.startswith("global_store"): return 1, 5
    if op.startswith("ds_write"): return 1, 2
    if op.startswith("ds_") or op.startswith("buffer_") or op.startswith("global_"): return 1, 1
    if op in ("v_exp_f32", "v_rcp_f32", "v_sqrt_f32", "v_rsq_f32", "v_log_f32"): return 2, 2
    return 2, 1

class Slots:
    def __init__(self, n, budget=6):
        self.n = n
        self.items = [[] for _ in range(n)]
        self.used = [0]*n
        self.budget = [budget]*n
        self.seq = 0
    def put(self, s, ins):
        if not isinstance(ins, list): ins = [ins]
        for i in ins:
            self.items[s].append(i)
            self.used[s] += cls_cost(i)[1]
    def free(self, s): return self.budget[s] - self.used[s]
    def stream(self, ins, start, end, group=None):
        end = min(end, self.n)
        costs = [cls_cost(i)[1] for i in ins]
        total = sum(costs)
        avail = [max(0, self.free(s)) for s in range(start, end)]
        A = sum(avail)
        extra = 0
        if total > A:
            extra = -(-(total - A) // (end - start))
            avail = [a + extra for a in avail]; A = sum(avail)
        cumav = [0]
        for a in avail: cumav.append(cumav[-1] + a)
        left = {}
        def room(s):
            if s not in left: left[s] = max(0, self.free(s)) + extra
            return left[s]
        cum = 0.0; s = start; lastcls = -1
        for i, c in zip(ins, costs):
            cl = cls_cost(i)[0]
            target = (cum + c*0.5) * A / total
            t = start
            while t < end - 1 and cumav[t - start + 1] < target: t += 1
            if t > s: s = t; lastcls = -1
            while True:
                ok_room = room(s) >= c or (c > 4 and room(s) >= 3) or s >= min(end + 6, self.n) - 1
                ok_cls = cl >= lastcls
                if ok_room and ok_cls: break
                if s >= self.n - 1: raise Exception("stream ran off the end")
                s += 1; lastcls = -1
            self.items[s].append(i); self.used[s] += c; left[s] = room(s) - c
            lastcls = cl; cum += c
        return s
    def emit(self, s):
        it = self.items[s]
        return sorted(it, key=lambda i: cls_cost(i)[0])

REG = re.compile(r"\b([vas])\[(\d+):(\d+)\]|\b([vas])(\d+)\b")
def regs(txt):
    out = []
    for m in REG.finditer(txt):
        if m.group(1): out += [(m.group(1), k) for k in range(int(m.group(2)), int(m.group(3)) + 1)]
        else: out.append((m.group(4), int(m.group(5))))
    return out

def hazard_check(lines):
    TR = ("v_exp_f32", "v_rcp_f32", "v_sqrt_f32", "v_rsq_f32", "v_log_f32")
    last_mfma = {}
    last_valu = {}
    last_trans = {}
    last_m0 = -10; last_vcc = -10; last_sg = {}
    st = 0; errs = []
    mf_srcc = {}
    for ln in lines:
        t = ln.strip()
        if not t or t.endswith(":") or t.startswith(".") or t.startswith(";"): continue
        op = t.split()[0]
        args = t[len(op):]
        parts = [p.strip() for p in args.split(",")]
        if op == "s_nop":
            st += int(parts[0], 0) + 1; continue
        isv = op.startswith("v_") and not op.startswith("v_mfma")
        if op.startswith("v_mfma"):
            d = regs(parts[0]); srcs = regs(parts[1]) + regs(parts[2]); c = regs(parts[3]) if len(parts) > 3 else []
            for r in srcs + c:
                if r in last_valu and st - last_valu[r] - 1 < 2: errs.append(f"VALU->MFMA {r}: {t}")
            for r in srcs:
                if r in last_mfma and st - last_mfma[r][0] - 1 < last_mfma[r][1]: errs.append(f"MFMA D->MFMA AB {r}: {t}")
            small = "16x16x32" in op
            for r in c:
                if r in last_mfma and c != last_mfma[r][2] and st - last_mfma[r][0] - 1 < last_mfma[r][1] - 2: errs.append(f"MFMA D->MFMA C overlap {r}: {t}")
            for r in d: last_mfma[r] = (st, 8 if small else 12, d)
            for r in c: mf_srcc[r] = (st, 3 if small else 7)
        else:
            rs = regs(args)
            if isv or op.startswith("ds_") or op.startswith("buffer_") or op.startswith("global_"):
                for r in rs:
                    if r[0] in "va" and r in last_mfma and st - last_mfma[r][0] - 1 < last_mfma[r][1]:
                        errs.append(f"MFMA D->VALU/mem {r} dist {st-last_mfma[r][0]-1}: {t}")
            if isv:
                if op.startswith("v_cmp") or op.startswith("v_readfirstlane") or op.startswith("v_readlane"):
                    dst = []
                elif op == "v_permlane32_swap_b32" or op == "v_permlane16_swap_b32":
                    dst = regs(parts[0]) + regs(parts[1])
                else: dst = regs(parts[0])
                src = [r for p in parts[1:] for r in regs(p)]
                if op in ("v_fmac_f32", "v_dot2c_f32_bf16") or op.startswith("v_permlane"): src += regs(parts[0])
                for r in src:
                    if r in last_trans and op not in TR and st - last_trans[r] - 1 < 1: errs.append(f"trans->use {r}: {t}")
                    if op.startswith("v_permlane") and r in last_valu and st - last_valu[r] - 1 < 2: errs.append(f"VALU->permlane {r}: {t}")
                    if (op.startswith("v_readfirstlane") or op.startswith("v_readlane")) and r in last_valu and st - last_valu[r] - 1 < 1: errs.append(f"VALU->readlane {r}: {t}")
                    if r[0] == "s" and r in last_sg and st - last_sg[r] - 1 < 2: errs.append(f"VALU sgpr->VALU read {r}: {t}")
                if ("vcc" in args) and op.startswith("v_cndmask") and st - last_vcc - 1 < 2: errs.append(f"vcc->cndmask: {t}")
                for r in dst:
                    if r in mf_srcc and st - mf_srcc[r][0] - 1 < mf_srcc[r][1] and not (r in last_mfma and last_mfma[r][0] == mf_srcc[r][0]): errs.append(f"MFMA srcC WAR {r}: {t}")
                    last_valu[r] = st
                    if op in TR: last_trans[r] = st
                    elif r in last_trans: del last_trans[r]
                if op.startswith("v_cmp"):
                    if parts[0] == "vcc": last_vcc = st
                    else:
                        for r in regs(parts[0]): last_sg[r] = st
                if op.startswith("v_readfirstlane") or op.startswith("v_readlane"):
                    for r in regs(parts[0]): last_sg[r] = st
            if op.startswith("buffer_") or op.startswith("global_"):
                if " lds" in t and st - last_m0 - 1 < 1: errs.append(f"m0->lds dma: {t}")
                for r in rs:
                    if r[0] == "s" and r in last_sg and st - last_sg[r] - 1 < 5: errs.append(f"VALU sgpr->VMEM {r}: {t}")
            if op.startswith("s_") and parts and parts[0] == "m0": last_m0 = st
        st += 1
    return errs
```

```python
from fw import *
from sched import *
import math, struct

S, D, F = 2048, 576, 4608
SLOT = 36864
SPARE = 4*SLOT
PART_BYTES = S * D * 2
WS_PART = 0
WS_HX = 20 << 20
WS_ZF = 40 << 20
ZF_STRIDE = 65 * 1024
WS_YH = 42 << 20
YP = 320 * 4
WS_FLAG = 46 << 20
WS_STAMP = 48 << 20
OOB = 0x40000000
C0 = -2.0 * math.sqrt(2.0 / math.pi) * math.log2(math.e)
C1 = C0 * 0.044715
def f2u(f): return struct.unpack("<I", struct.pack("<f", f))[0]

V_L16 = 1
V_RA, V_RB = 2, 6
V_DM = 10
V_C0, V_C1 = 14, 15
GA = [[16, 32], [48, 64]]
UA = [[80, 96], [112, 128]]
HF = 144
TMP = 216
V_X = 240
V_R8 = 248
V_PF = 250
V_ONE0 = 251
V_STAMP = 255
RX = 80
AX = 0
AF = 144
NAF = 8
AZ = 176
SR_CS, SR_SS, SR_HZ, SR_X, SR_WG, SR_WU, SR_WD, SR_WS, SR_OUT = 4, 8, 12, 40, 44, 48, 52, 56, 60
S_W, S_MT, S_J = 64, 65, 66
S_LX, S_L9 = 67, 68
S_UB = 69
S_WD = 74
S_PB = 75
T0, T1, T2, T3, T4, T5, T6, T7 = 76, 77, 78, 79, 80, 81, 82, 83
S_N0 = 84
S_N1 = 16
S_CU = 25
S_Q0 = 30
S_Q8 = 31
S_HB = 32
S_LID = 33
S_ST0, S_ST1 = 34, 35
S_CNT = 93
S_A, S_B, S_C = 94, 95, 96

def srd(dst, ptr, nbytes):
    return [o(f"s_mov_b32 s{dst}, s{ptr}"), o(f"s_and_b32 s{dst+1}, s{ptr+1}, 0xffff"),
            o(f"s_mov_b32 s{dst+2}, {nbytes}"), o(f"s_mov_b32 s{dst+3}, 0x00020000")]

class Gen:
    def __init__(self, diag=False, opts=None):
        self.diag = diag; self.opts = opts or {}; self.nst = 0; self.names = []
    def stamp(self, name):
        if not self.diag: return []
        i = self.nst; self.nst += 1; self.names.append(name)
        return [o("s_memtime s[98:99]"), o("s_waitcnt lgkmcnt(0)"), o(f"v_writelane_b32 v{V_STAMP}, s98, {i}")]

    def prologue(self):
        L = []
        if self.diag: L += [o(f"v_mov_b32 v{V_STAMP}, 0")]
        L += self.stamp("start")
        L += [o("s_load_dwordx16 s[16:31], s[0:1], 0"), o("s_load_dwordx8 s[32:39], s[0:1], 64"),
              o("s_cmp_ge_u32 s2, 256"), o("s_cbranch_scc1 L_end")]
        L += [o("v_lshrrev_b32 v2, 6, v0"), o("v_and_b32 v0, 63, v0"), o("s_nop 0"),
              o(f"v_readfirstlane_b32 s{S_W}, v2"),
              o(f"s_and_b32 s{S_J}, s2, 3"), o(f"s_lshl_b32 s{S_J}, s{S_J}, 2"),
              o(f"s_bfe_u32 s{T0}, s2, 0x20003"), o(f"s_or_b32 s{S_J}, s{S_J}, s{T0}"),
              o(f"s_bfe_u32 s{S_MT}, s2, 0x10002"), o(f"s_lshl_b32 s{S_MT}, s{S_MT}, 3"),
              o(f"s_lshr_b32 s{T0}, s2, 5"), o(f"s_or_b32 s{S_MT}, s{S_MT}, s{T0}"),
              o(f"s_mul_i32 s{S_LX}, s{S_W}, {SLOT}"), o(f"s_mul_i32 s{S_L9}, s{S_W}, 9216"),
              o(f"v_lshlrev_b32 v{V_L16}, 4, v0")]
        L += [o("v_lshrrev_b32 v2, 3, v0"), o("v_and_b32 v3, 7, v0"), o("v_lshrrev_b32 v4, 1, v2"),
              o("v_xor_b32 v3, v3, v4"), o("v_lshlrev_b32 v3, 4, v3"), o("v_xor_b32 v4, 64, v3"),
              o(f"s_lshl_b32 s{T0}, s{S_MT}, 6"), o(f"s_lshl_b32 s{T1}, s{S_W}, 4"), o(f"s_add_u32 s{T0}, s{T0}, s{T1}"),
              o(f"v_add_u32 v5, s{T0}, v2"), o("v_add_u32 v6, 8, v5"),
              o("v_sub_u32 v7, 2048, v5"), o("v_sub_u32 v8, 2048, v6"),
              o("v_cmp_eq_u32 vcc, 0, v5"), o("v_mov_b32 v9, 1024"), o("s_nop 0"),
              o("v_cndmask_b32 v7, v7, v9, vcc"),
              o(f"s_movk_i32 s{T1}, 1152"),
              o(f"v_mad_u32_u24 v240, v5, s{T1}, v3"), o(f"v_mad_u32_u24 v241, v6, s{T1}, v4"),
              o(f"v_mad_u32_u24 v242, v7, s{T1}, v3"), o(f"v_mad_u32_u24 v243, v8, s{T1}, v4")]
        L += [o("s_waitcnt lgkmcnt(0)")]
        L += self.stamp("kernarg")
        L += srd(SR_X, 16, S*D*2)
        for kap in range(9):
            for rho in range(4):
                L += [o(f"s_add_u32 m0, s{S_LX}, {(4*kap+rho)*1024 - 128*kap}"), o("s_nop 0"),
                      vm(f"buffer_load_dwordx4 v{240+rho}, s[{SR_X}:{SR_X+3}], 0 offen offset:{128*kap} lds", ("x", kap))]
        L += srd(SR_WG, 28, D*F*2) + srd(SR_WU, 30, D*F*2) + srd(SR_WD, 32, F*D*2) + srd(SR_WS, 38, 256 << 20) + srd(SR_OUT, 34, S*D*2)
        L += srd(SR_CS, 18, S*S*2) + srd(SR_SS, 20, S*S*2)
        L += [o(f"s_lshl_b32 s{T0}, s{S_W}, 6"), o(f"v_add_u32 v2, s{T0}, v0"), o("v_cmp_eq_u32 vcc, 0, v2"),
              o(f"v_mov_b32 v3, {OOB:#x}"), o("v_mov_b32 v4, 0"), o(f"v_cndmask_b32 v{V_ONE0}, v3, v4, vcc")]
        L += [o(f"s_lshl_b32 s{S_LID}, s{S_MT}, 4"), o(f"s_add_u32 s{S_LID}, s{S_LID}, s{S_J}"),
              o(f"s_lshl_b32 s{T0}, s{S_LID}, 7"), o(f"s_add_u32 s{T0}, s{T0}, {WS_FLAG}"),
              vm(f"buffer_store_dword v4, v{V_ONE0}, s[{SR_WS}:{SR_WS+3}], s{T0} offen sc1", "flinit")]
        L += [o(f"s_and_b32 s{T2}, s{S_J}, 1"), o(f"s_mul_i32 s{T0}, s{S_J}, 288"), o(f"s_mul_i32 s{T1}, s{T2}, 224"),
              o(f"s_add_u32 s{T1}, s{T0}, s{T1}"),
              o(f"s_cmp_eq_u32 s{T2}, 0"), o(f"s_cselect_b32 s{T3}, 64, -64"), o(f"s_cselect_b32 s{T4}, 256, 0"),
              o(f"s_add_u32 s{T4}, s{T4}, s{T0}")]
        for u in range(4):
            L += [o(f"s_mul_i32 s{T5}, s{T3}, {u}"), o(f"s_add_u32 s{T5}, s{T5}, s{T1}"),
                  o(f"s_lshl_b32 s{S_UB+u}, s{T5}, 1"),
                  o(f"s_mul_i32 s{S_N0+2*u}, s{T5}, 1152"), o(f"s_add_u32 s{S_N0+2*u+1}, s{S_N0+2*u}, {32*1152}")]
        L += [o(f"s_lshl_b32 s{S_UB+4}, s{T4}, 1"), o(f"s_mul_i32 s{S_N0+8}, s{T4}, 1152")]
        L += [o(f"s_mul_i32 s{T5}, s{S_W}, {72*9216}")]
        for u in range(4): L += [o(f"s_add_u32 s{S_UB+u}, s{S_UB+u}, s{T5}")]
        L += [o(f"s_lshl_b32 s{T5}, s{T5}, 1"), o(f"s_add_u32 s{S_UB+4}, s{S_UB+4}, s{T5}")]
        L += [o(f"s_lshr_b32 s{T0}, s{S_J}, 1"), o(f"s_mul_i32 s{S_PB}, s{T0}, {PART_BYTES}"),
              o(f"s_lshl_b32 s{T0}, s{S_MT}, 2"), o(f"s_add_u32 s{T0}, s{T0}, s{S_W}"),
              o(f"s_mul_i32 s{T0}, s{T0}, {18*2048}"), o(f"s_add_u32 s{S_PB}, s{S_PB}, s{T0}"),
              o(f"s_lshl_b32 s{T0}, s{S_LID}, 2"), o(f"s_add_u32 s{T0}, s{T0}, s{S_W}"),
              o(f"s_mul_i32 s{S_HB}, s{T0}, {18*1024}"), o(f"s_add_u32 s{S_HB}, s{S_HB}, {WS_HX}")]
        L += [o("v_lshrrev_b32 v2, 3, v0"), o("v_and_b32 v3, 7, v0"),
              o("v_bfe_u32 v4, v0, 4, 1"), o("v_lshlrev_b32 v4, 2, v4"), o("v_xor_b32 v3, v3, v4"), o("v_lshlrev_b32 v3, 4, v3"),
              o(f"s_movk_i32 s{T5}, 9216"), o(f"v_mad_u32_u24 v{V_DM}, v2, s{T5}, v3")]
        for t in range(1, 4): L += [o(f"v_add_u32 v{V_DM+t}, {t*(8*9216-1024)}, v{V_DM}")]
        L += [o(f"v_mov_b32 v{V_C0}, {f2u(C0):#x}"), o(f"v_mov_b32 v{V_C1}, {f2u(C1):#x}")]
        L += [o("v_and_b32 v2, 31, v0"), o("v_bfe_u32 v3, v0, 1, 3"), o("v_lshrrev_b32 v4, 5, v0"), o("v_xor_b32 v3, v3, v4"),
              o("v_lshlrev_b32 v3, 4, v3"), o("v_lshlrev_b32 v2, 7, v2"), o("v_add_u32 v2, v2, v3"),
              o(f"v_add_u32 v244, s{S_LX}, v2"),
              o("v_xor_b32 v245, 32, v244"), o("v_xor_b32 v246, 64, v244"), o("v_xor_b32 v247, 96, v244")]
        L += [o("v_lshrrev_b32 v2, 5, v0"), o("v_lshlrev_b32 v2, 10, v2"),
              o("v_bfe_u32 v3, v0, 2, 2"), o("v_lshlrev_b32 v3, 7, v3"), o("v_add_u32 v2, v2, v3"),
              o("v_bfe_u32 v3, v0, 3, 1"), o("v_lshlrev_b32 v3, 6, v3"), o("v_add_u32 v2, v2, v3"),
              o("v_bfe_u32 v3, v0, 4, 1"), o("v_lshlrev_b32 v3, 5, v3"), o("v_add_u32 v2, v2, v3"),
              o("v_and_b32 v3, 3, v0"), o("v_lshlrev_b32 v3, 3, v3"), o(f"v_add_u32 v{V_RA}, v2, v3")]
        for s in range(1, 4): L += [o(f"v_add_u32 v{V_RA+s}, {s*SLOT}, v{V_RA}")]
        for s in range(4): L += [o(f"v_xor_b32 v{V_RB+s}, 64, v{V_RA+s}")]
        return L

    def ln_stats(self):
        L = []
        SA = 16
        for i in range(8): L += [o(f"v_mov_b32 v{SA+i}, 0")]
        L += [o(f"s_mov_b32 s{T5}, 0x3f803f80")]
        def reads(kap):
            return [wvm(("x", kap))] + [ds(f"ds_read_b128 v[{RX+4*ks}:{RX+4*ks+3}], v{244+(ks&3)} offset:{(ks//4)*4096}", ("xr", ks)) for ks in range(4*kap, 4*kap+4)]
        L += reads(0)
        for kap in range(9):
            if kap + 1 < 9: L += reads(kap + 1)
            for ks in range(4*kap, 4*kap + 4):
                L += [wlg(("xr", ks))]
                for i in range(4):
                    r = RX + 4*ks + i
                    L += [o(f"v_dot2_f32_bf16 v{SA+i}, v{r}, s{T5}, v{SA+i}"),
                          o(f"v_dot2_f32_bf16 v{SA+4+i}, v{r}, v{r}, v{SA+4+i}")]
        return L

    def ln_finish(self):
        L = []
        SA = 16
        L += [o("s_nop 4"),
              o(f"v_add_f32 v{SA}, v{SA}, v{SA+1}"), o(f"v_add_f32 v{SA+2}, v{SA+2}, v{SA+3}"),
              o(f"v_add_f32 v{SA+4}, v{SA+4}, v{SA+5}"), o(f"v_add_f32 v{SA+6}, v{SA+6}, v{SA+7}"),
              o(f"v_add_f32 v24, v{SA}, v{SA+2}"), o(f"v_add_f32 v26, v{SA+4}, v{SA+6}"),
              o("v_mov_b32 v25, v24"), o("v_mov_b32 v27, v26"), o("s_nop 1"),
              o("v_permlane32_swap_b32 v24, v25"), o("v_permlane32_swap_b32 v26, v27"), o("s_nop 1"),
              o("v_add_f32 v24, v24, v25"), o("v_add_f32 v26, v26, v27"),
              o(f"s_mov_b32 s{T5}, {f2u(1.0/576):#x}"),
              o(f"v_mul_f32 v24, s{T5}, v24"), o(f"v_mul_f32 v26, s{T5}, v26"),
              o("v_fma_f32 v26, -v24, v24, v26"), o("v_max_f32 v26, 0, v26"),
              o("v_cvt_pk_bf16_f32 v24, v24, v26"),
              o("v_and_b32 v26, 0xffff0000, v24"), o("v_lshlrev_b32 v24, 16, v24"),
              o(f"v_add_f32 v26, {f2u(1e-5):#x}, v26"),
              o("v_cvt_pk_bf16_f32 v26, v26, v26"), o("v_lshlrev_b32 v26, 16, v26"),
              o("v_sqrt_f32 v26, v26"), o("s_nop 0"),
              o("v_cvt_pk_bf16_f32 v26, v26, v26"), o("v_lshlrev_b32 v26, 16, v26"),
              o("v_rcp_f32 v26, v26"), o("s_nop 0"),
              o("v_mul_f32 v25, v24, v26"),
              o(f"s_mov_b32 s{T5}, 0xffff0000")]
        mimic = self.opts.get("mimic", 0)
        for ks in range(36):
            for i in range(4):
                r = RX + 4*ks + i
                t0, t1 = 28 + 2*(i & 1), 29 + 2*(i & 1)
                if mimic:
                    L += [o(f"v_lshlrev_b32 v{t0}, 16, v{r}"), o(f"v_and_b32 v{t1}, s{T5}, v{r}"),
                          o(f"v_sub_f32 v{t0}, v{t0}, v24"), o(f"v_sub_f32 v{t1}, v{t1}, v24"),
                          o(f"v_cvt_pk_bf16_f32 v{t0}, v{t0}, v{t1}"),
                          o(f"v_and_b32 v{t1}, s{T5}, v{t0}"), o(f"v_lshlrev_b32 v{t0}, 16, v{t0}"),
                          o(f"v_mul_f32 v{t0}, v{t0}, v26"), o(f"v_mul_f32 v{t1}, v{t1}, v26")]
                else:
                    L += [o(f"v_lshlrev_b32 v{t0}, 16, v{r}"), o(f"v_and_b32 v{t1}, s{T5}, v{r}"),
                          o(f"v_fma_f32 v{t0}, v{t0}, v26, -v25"), o(f"v_fma_f32 v{t1}, v{t1}, v26, -v25")]
                L += [o(f"v_cvt_pk_bf16_f32 v{t0}, v{t0}, v{t1}"),
                      o(f"v_accvgpr_write_b32 a{AX+4*ks+i}, v{t0}")]
        return L

    def h_dma(self, zreg, slot, tag):
        L = [o(f"s_cmp_lt_u32 s{zreg}, 9"),
             o(f"s_cselect_b32 s{SR_HZ}, s22, s24"), o(f"s_cselect_b32 s{SR_HZ+1}, s23, s25"),
             o(f"s_cselect_b32 s{T0}, 0, 9"),
             o(f"s_and_b32 s{SR_HZ+1}, s{SR_HZ+1}, 0xffff"), o(f"s_mov_b32 s{SR_HZ+2}, {D*D*2}"), o(f"s_mov_b32 s{SR_HZ+3}, 0x00020000"),
             o(f"s_sub_u32 s{T0}, s{zreg}, s{T0}"), o(f"s_lshl_b32 s{T0}, s{T0}, 5"),
             o(f"s_lshl_b32 s{T1}, s{S_W}, 3"), o(f"s_add_u32 s{T0}, s{T0}, s{T1}"),
             o("v_lshrrev_b32 v240, 3, v0"), o("v_and_b32 v241, 7, v0"), o("v_lshrrev_b32 v242, 1, v240"), o("v_xor_b32 v241, v241, v242"),
             o(f"s_and_b32 s{T1}, s{S_W}, 1"), o(f"s_lshl_b32 s{T1}, s{T1}, 2"), o(f"v_xor_b32 v241, s{T1}, v241"),
             o("v_lshlrev_b32 v241, 4, v241"),
             o(f"v_add_u32 v240, s{T0}, v240"), o(f"s_movk_i32 s{T1}, 1152"), o(f"v_mad_u32_u24 v240, v240, s{T1}, v241"),
             o(f"s_lshl_b32 s{T1}, s{S_W}, 10"), o(f"s_add_u32 s{T1}, s{T1}, {slot*SLOT}")]
        for kap in range(9):
            L += [o(f"s_add_u32 m0, s{T1}, {4*kap*1024 - 128*kap}"), o("s_nop 0"),
                  vm(f"buffer_load_dwordx4 v240, s[{SR_HZ}:{SR_HZ+3}], 0 offen offset:{128*kap} lds", tag)]
        return L

    def h_compute(self, zreg, slot, sfx):
        L = []
        L += [o("v_and_b32 v240, 31, v0"), o("v_bfe_u32 v241, v0, 1, 3"), o("v_lshrrev_b32 v242, 5, v0"), o("v_xor_b32 v241, v241, v242"),
              o("v_lshlrev_b32 v241, 4, v241"), o("v_lshlrev_b32 v240, 7, v240"), o("v_add_u32 v240, v240, v241"),
              o(f"v_add_u32 v244, {slot*SLOT}, v240"),
              o("v_xor_b32 v245, 32, v244"), o("v_xor_b32 v246, 64, v244"), o("v_xor_b32 v247, 96, v244")]
        for ks in range(36):
            L += [ds(f"ds_read_b128 v[{RX+4*ks}:{RX+4*ks+3}], v{244+(ks&3)} offset:{(ks//4)*4096}", ("wr"+sfx, ks))]
            if ks >= 6:
                k = ks - 6
                L += [wlg(("wr"+sfx, k)), o(f"v_mfma_f32_32x32x16_bf16 v[16:31], a[{AX+4*k}:{AX+4*k+3}], v[{RX+4*k}:{RX+4*k+3}], " + ("0" if k == 0 else "v[16:31]"))]
        for k in range(30, 36):
            L += [wlg(("wr"+sfx, k)), o(f"v_mfma_f32_32x32x16_bf16 v[16:31], a[{AX+4*k}:{AX+4*k+3}], v[{RX+4*k}:{RX+4*k+3}], v[16:31]")]
        L += [o("v_mov_b32 v32, 1.0"),
              o(f"s_cmp_lt_u32 s{zreg}, 9"), o(f"s_cbranch_scc1 L_h_sg{sfx}"),
              o("v_mov_b32 v32, -1.0"),
              o(f"s_cmp_eq_u32 s{zreg}, 9"), o(f"s_cbranch_scc0 L_h_sg{sfx}"),
              o("v_and_b32 v35, 31, v0"), o("v_cmp_eq_u32 vcc, 0, v35"), o("v_mov_b32 v36, 1.0"), o("s_nop 0"),
              o("v_cndmask_b32 v32, v32, v36, vcc"),
              raw(f"L_h_sg{sfx}:"),
              o("v_mov_b32 v33, v32"),
              o(f"s_or_b32 s{T0}, s{S_MT}, s{S_W}"), o(f"s_cmp_eq_u32 s{T0}, 0"), o(f"s_cbranch_scc0 L_h_f0{sfx}"),
              o("v_cmp_gt_u32 vcc, 32, v0"), o("v_mov_b32 v36, 0"), o("s_nop 0"), o("v_cndmask_b32 v33, v33, v36, vcc"),
              raw(f"L_h_f0{sfx}:"), o("s_nop 7"), o("s_nop 7")]
        for r in range(8):
            L += [o(f"v_fma_f32 v{40+r}, v{16+r+8}, v{33 if r == 0 else 32}, v{16+r}")]
        for i in range(4):
            L += [o(f"v_cvt_pk_bf16_f32 v{48+i}, v{40+2*i}, v{41+2*i}")]
        L += [o("s_nop 1"), o("v_permlane32_swap_b32 v48, v50"), o("v_permlane32_swap_b32 v49, v51"),
              o(f"s_mul_i32 s{T0}, s{zreg}, {ZF_STRIDE}"), o(f"s_lshl_b32 s{T1}, s{S_MT}, 2"), o(f"s_add_u32 s{T1}, s{T1}, s{S_W}"),
              o(f"s_lshl_b32 s{T1}, s{T1}, 10"), o(f"s_add_u32 s{T1}, s{T1}, s{T0}"), o(f"s_add_u32 s{T1}, s{T1}, {WS_ZF}"),
              vm(f"buffer_store_dwordx4 v[48:51], v{V_L16}, s[{SR_WS}:{SR_WS+3}], s{T1} offen sc1", "zst")]
        L += [o("v_mov_b32 v53, 0"), o("v_mov_b32 v54, 0"), o("v_mov_b32 v55, 0"),
              o("v_cvt_pk_bf16_f32 v52, v24, v53"),
              o("v_cmp_gt_u32 vcc, 32, v0"), o(f"v_mov_b32 v56, {OOB:#x}"), o("s_nop 0"), o("v_cndmask_b32 v52, v53, v52, vcc"),
              o(f"s_or_b32 s{T2}, s{S_MT}, s{S_W}"), o(f"s_cmp_le_u32 s{zreg}, 9"), o(f"s_cselect_b32 s{T3}, 0, 1"),
              o(f"s_or_b32 s{T2}, s{T2}, s{T3}"), o(f"s_cmp_eq_u32 s{T2}, 0"),
              o(f"s_cselect_b32 s{T3}, 0, {OOB:#x}"), o(f"v_add_u32 v56, s{T3}, v{V_L16}"),
              o(f"s_add_u32 s{T0}, s{T0}, {WS_ZF + 64*1024}"),
              vm(f"buffer_store_dwordx4 v[52:55], v56, s[{SR_WS}:{SR_WS+3}], s{T0} offen sc1", "zst")]
        return L

    def h_special(self, zreg, slot, sfx):
        return [o(f"s_cmp_eq_u32 s{zreg}, 9"), o(f"s_cbranch_scc0 L_h_nosp{sfx}"), o(f"s_cmp_eq_u32 s{S_W}, 0"), o(f"s_cbranch_scc0 L_h_nosp{sfx}"),
                o("v_mov_b32 v16, 0xbf803f80"), o("v_mov_b32 v17, v16"), o("v_mov_b32 v18, v16"), o("v_mov_b32 v19, v16"),
                o("v_lshrrev_b32 v240, 3, v0"), o("v_lshlrev_b32 v240, 12, v240"), o("v_and_b32 v241, 7, v0"), o("v_lshlrev_b32 v241, 4, v241"),
                o("v_add_u32 v240, v240, v241"), o(f"v_add_u32 v240, {slot*SLOT}, v240"), o(f"v_add_u32 v241, {slot*SLOT}, v241"),
                o("ds_write_b128 v240, v[16:19]"), o("ds_write_b128 v241, v[16:19] offset:32768"),
                o("s_waitcnt lgkmcnt(0)"), raw(f"L_h_nosp{sfx}:")]

    def dma_p1(self, sig, slot):
        groups = []
        if sig < 16:
            u, mat, kh = sig // 4, (sig // 2) % 2, sig % 2
            rs = SR_WG if mat == 0 else SR_WU
            for grp, ts in enumerate([[0,1,2,3],[0,1,2,3],[0]]):
                g = [o(f"s_add_u32 m0, s{S_L9}, {slot*SLOT + grp*4096}"),
                     o(f"s_add_u32 s{T0}, s{S_UB+u}, {(kh*288 + grp*32)*9216}")]
                for t in ts:
                    groups.append(g + [vm(f"buffer_load_dwordx4 v{V_DM+t}, s[{rs}:{rs+3}], s{T0} offen offset:{t*1024} lds", ("st", sig))])
                    g = []
        else:
            rs = SR_WG if sig == 16 else SR_WU
            for grp, ts in enumerate([[0,1,2,3],[0,1,2,3],[0]]):
                g = []
                if sig == 16 and grp == 0:
                    g += [o("v_lshrrev_b32 v240, 2, v0"), o("v_and_b32 v241, 3, v0"), o("v_lshlrev_b32 v241, 4, v241"),
                          o(f"s_movk_i32 s{T5}, 9216"), o(f"v_mad_u32_u24 v{V_DM}, v240, s{T5}, v241")]
                    for t in range(1, 4): g += [o(f"v_add_u32 v{V_DM+t}, {t*(16*9216-1024)}, v{V_DM}")]
                    groups.append(g); g = []
                g += [o(f"s_add_u32 m0, s{S_L9}, {slot*SLOT + grp*4096}"),
                      o(f"s_add_u32 s{T0}, s{S_UB+4}, {grp*64*9216}")]
                for t in ts:
                    groups.append(g + [vm(f"buffer_load_dwordx4 v{V_DM+t}, s[{rs}:{rs+3}], s{T0} offen offset:{t*1024} lds", ("st", sig))])
                    g = []
        return groups

    def dma_p2(self, st, slot, first128, first64):
        u, who = st
        groups = []
        if u < 4:
            tbl = S_N0 if who == "own" else S_N1
            for ip in range(9):
                g = []
                if first128 and ip == 0:
                    groups.append([o("v_lshrrev_b32 v240, 3, v0"), o("v_and_b32 v241, 7, v0"),
                          o("v_bfe_u32 v242, v0, 4, 1"), o("v_lshlrev_b32 v242, 2, v242"), o("v_xor_b32 v241, v241, v242"),
                          o("v_lshlrev_b32 v241, 4, v241"),
                          o(f"s_movk_i32 s{T5}, 1152"), o(f"v_mad_u32_u24 v{V_DM}, v240, s{T5}, v241"),
                          o(f"s_mul_i32 s{S_WD}, s{S_W}, {8*1152}"), o(f"v_add_u32 v{V_DM}, s{S_WD}, v{V_DM}"),
                          o(f"s_lshl_b32 s{S_WD}, s{S_W}, 10")])
                g += [o(f"s_add_u32 m0, s{S_WD}, {slot*SLOT + ip*4096}"),
                      o(f"s_add_u32 s{T0}, s{tbl+ip}, s{S_CU+u}"),
                      vm(f"buffer_load_dwordx4 v{V_DM}, s[{SR_WD}:{SR_WD+3}], s{T0} offen lds", ("s2", st))]
                groups.append(g)
        else:
            for ip in range(9):
                g = []
                if ip == 0:
                    groups.append([o("v_lshrrev_b32 v240, 2, v0"), o("v_and_b32 v241, 3, v0"), o("v_lshlrev_b32 v241, 4, v241"),
                          o(f"s_movk_i32 s{T5}, 1152"), o(f"v_mad_u32_u24 v{V_DM+1}, v240, s{T5}, v241")])
                ca, cb = 2*ip, 2*ip + 1
                ra = (S_N0 + ca) if ca < 9 else (S_N1 + ca - 9)
                rb = (S_N0 + cb) if cb < 9 else (S_N1 + cb - 9)
                g += [o(f"s_cmp_lt_u32 s{S_W}, 2"), o(f"s_cselect_b32 s{T0}, s{ra}, s{rb}"),
                      o(f"s_add_u32 s{T0}, s{T0}, s{S_CU+4}"), o(f"s_add_u32 s{T0}, s{T0}, s{S_A}"),
                      o(f"s_add_u32 m0, s{S_WD}, {slot*SLOT + ip*4096}")]
                groups.append(g)
                groups.append([vm(f"buffer_load_dwordx4 v{V_DM+1}, s[{SR_WD}:{SR_WD+3}], s{T0} offen lds", ("s2", st))])
        return groups

    def geglu(self, c, toff=0):
        if c < 8: g, u = GA[(c//2) % 2][c % 2], UA[(c//2) % 2][c % 2]
        else: g, u = GA[0][0], UA[0][0]
        L = []
        for p in range(8):
            r0, r1 = 2*p, 2*p + 1
            b = TMP + 4*(p % 2) + toff
            xa, xb, ya, yb = b, b+1, b+2, b+3
            L += [o(f"v_mul_f32 v{xa}, v{g+r0}, v{g+r0}"), o(f"v_mul_f32 v{xb}, v{g+r1}, v{g+r1}"),
                  o(f"v_fma_f32 v{xa}, v{xa}, v{V_C1}, v{V_C0}"), o(f"v_fma_f32 v{xb}, v{xb}, v{V_C1}, v{V_C0}"),
                  o(f"v_mul_f32 v{xa}, v{g+r0}, v{xa}"), o(f"v_mul_f32 v{xb}, v{g+r1}, v{xb}"),
                  o(f"v_exp_f32 v{xa}, v{xa}"), o(f"v_exp_f32 v{xb}, v{xb}"),
                  o(f"v_mul_f32 v{ya}, v{g+r0}, v{u+r0}"), o(f"v_mul_f32 v{yb}, v{g+r1}, v{u+r1}"),
                  o(f"v_add_f32 v{xa}, 1.0, v{xa}"), o(f"v_add_f32 v{xb}, 1.0, v{xb}"),
                  o(f"v_rcp_f32 v{xa}, v{xa}"), o(f"v_rcp_f32 v{xb}, v{xb}"),
                  o(f"v_mul_f32 v{ya}, v{ya}, v{xa}"), o(f"v_mul_f32 v{yb}, v{yb}, v{xb}"),
                  o(f"v_cvt_pk_bf16_f32 v{HF + 8*c + p}, v{ya}, v{yb}")]
        return L
    def hstore(self, c):
        st = S_ST0 + (c % 2)
        return [o(f"s_add_u32 s{st}, s{S_HB}, {2*c*1024}"),
                vm(f"buffer_store_dwordx4 v[{HF+8*c}:{HF+8*c+3}], v{V_L16}, s[{SR_WS}:{SR_WS+3}], s{st} offen sc1", "hst"),
                vm(f"buffer_store_dwordx4 v[{HF+8*c+4}:{HF+8*c+7}], v{V_L16}, s[{SR_WS}:{SR_WS+3}], s{st} offen offset:1024 sc1", "hst")]

    def paced(self, M, DIST, setup):
        N = len(M)
        sl = Slots(N)
        head = []
        first_use = {}; last_use = {}
        for g, m in enumerate(M):
            first_use.setdefault(m["st"], g); last_use[m["st"]] = g
        def put(t, ins):
            if t < 0: head.extend(ins if isinstance(ins, list) else [ins])
            else: sl.put(t, ins)
        done = set()
        for g, m in enumerate(M):
            t = g - DIST
            if m["st"] not in done:
                done.add(m["st"])
                put(t, m.get("pre", []))
            put(t, [ds(r, ("af", self.pid, g)) for r in m["reads"]])
        head.append(wlg(("af", self.pid, min(1, N-1))))
        for g in range(1, N - 1, 2):
            put(g, [wlg(("af", self.pid, min(g + 2, N - 1)))])
        setup(sl, head, first_use, last_use)
        L = list(head)
        for g, m in enumerate(M):
            L += m.get("before", [])
            c = "0" if m["first"] else m["acc"]
            L.append(o(f"v_mfma_f32_32x32x16_bf16 {m['acc']}, {m['A']}, {m['B']}, {c}"))
            L += sl.emit(g)
        over = [(g, sl.used[g]) for g in range(N) if sl.used[g] > 6]
        if self.opts.get("verbose"): print(f"paced {self.pid}: N={N} slots over budget: {len(over)} max {max(sl.used)} avg {sum(sl.used)/N:.2f}")
        self.pid += 1
        return L

    def phase1(self):
        DIST = self.opts.get("dist", 7)
        M = []
        def rd(base, off, off2, g):
            a = AF + 4*(g % NAF)
            return [f"ds_read_b64_tr_b16 a[{a}:{a+1}], v{base} offset:{off}", f"ds_read_b64_tr_b16 a[{a+2}:{a+3}], v{base} offset:{off+off2}"]
        for u in range(4):
            for mat in range(2):
                for kh in range(2):
                    sig = 4*u + 2*mat + kh
                    for half in range(2):
                        acc = (GA if mat == 0 else UA)[u % 2][half]
                        for kk in range(18):
                            ks = kh*18 + kk; g = len(M); a = AF + 4*(g % NAF)
                            M.append(dict(acc=f"v[{acc}:{acc+15}]", first=(ks == 0), st=sig, A=f"a[{a}:{a+3}]", B=f"a[{AX+4*ks}:{AX+4*ks+3}]",
                                          reads=rd((V_RA if half == 0 else V_RB) + sig % 4, kk*2048, 512, g)))
        for mat in range(2):
            acc = (GA if mat == 0 else UA)[0][0]
            for ks in range(36):
                g = len(M); a = AF + 4*(g % NAF)
                M.append(dict(acc=f"v[{acc}:{acc+15}]", first=(ks == 0), st=16+mat, A=f"a[{a}:{a+3}]", B=f"a[{AX+4*ks}:{AX+4*ks+3}]",
                              reads=rd(V_R8 + mat, ks*1024, 256, g)))
        seen = set()
        for m in M:
            if m["st"] not in seen:
                seen.add(m["st"])
                sig = m["st"]
                tags = [("st", sig)]
                if sig == 3: tags += ["zst", "flinit"]
                m["pre"] = [wvm(tags), o("s_barrier")]
                if sig == 3:
                    m["pre"] += [vm(f"buffer_atomic_add v{V_X+7}, v{V_ONE0}, s[{SR_HZ}:{SR_HZ+3}], 0 offen sc1", "zpub")]
        self.stamp_at(M, {0: "p1", 144: "u1", 288: "u2", 432: "u3", 576: "u4"})
        def setup(sl, head, fu, lu):
            bars = sorted(fu[s] - DIST for s in fu)
            for b in bars:
                if b >= 0: sl.budget[b] = 4
            for mat in range(2):
                slot = (16 + mat) % 4
                ins = [o("v_lshrrev_b32 v242, 5, v0"), o("v_lshlrev_b32 v242, 9, v242"),
                       o("v_bfe_u32 v243, v0, 2, 2"), o("v_lshlrev_b32 v243, 6, v243"), o("v_add_u32 v242, v242, v243"),
                       o("v_bfe_u32 v243, v0, 4, 1"), o("v_lshlrev_b32 v243, 5, v243"), o("v_add_u32 v242, v242, v243"),
                       o("v_and_b32 v243, 3, v0"), o("v_lshlrev_b32 v243, 3, v243"), o("v_add_u32 v242, v242, v243"),
                       o(f"v_add_u32 v{V_R8+mat}, {slot*SLOT}, v242")]
                sl.stream(ins, 20 + 20*mat, 36 + 20*mat)
            for sig in range(2, 18):
                grps = self.dma_p1(sig, sig % 4)
                if sig == 2: start = 0
                elif sig == 3: start = fu[1] - DIST + 1
                else: start = min(b for b in bars if b >= lu[sig - 4]) + 1
                s = start
                for grp in grps:
                    sl.put(s, grp); s += 3
            for u in range(3):
                sl.stream(self.geglu(2*u) + self.hstore(2*u) + self.geglu(2*u+1) + self.hstore(2*u+1), 144*(u+1) + 1, 144*(u+2) - 1)
            sl.stream(self.geglu(6) + self.hstore(6), 576 + 1, 648)
        L = self.paced(M, DIST, setup)
        return L

    def stamp_at(self, M, d):
        for g, name in d.items():
            if self.diag: M[g].setdefault("before", []).extend(self.stamp(name))

    def s_stage(self):
        L = []
        L += [o(f"s_lshr_b32 s{T0}, s{S_J}, 3"), o(f"s_lshl_b32 s{S_A}, s{S_MT}, 1"), o(f"s_add_u32 s{S_A}, s{S_A}, s{T0}"),
              o(f"s_and_b32 s{S_B}, s{S_J}, 7")]
        L += [o("v_lshrrev_b32 v240, 3, v0"), o("v_and_b32 v241, 7, v0"), o("v_lshrrev_b32 v242, 1, v240"), o("v_xor_b32 v241, v241, v242"),
              o("v_lshlrev_b32 v241, 4, v241"), o("v_xor_b32 v242, 64, v241"),
              o(f"s_lshl_b32 s{T0}, s{S_A}, 5"), o(f"v_add_u32 v240, s{T0}, v240"), o("v_lshlrev_b32 v240, 12, v240"),
              o(f"s_lshl_b32 s{T0}, s{S_W}, 9"), o(f"v_add_u32 v240, s{T0}, v240"),
              o("v_add_u32 v244, v240, v241"), o("v_add_u32 v245, v240, v242"), o("v_add_u32 v245, 32768, v245"),
              o("v_add_u32 v246, 65536, v244"), o("v_add_u32 v247, 65536, v245")]
        for kap in range(5):
            for rho in range(4):
                L += [o(f"s_add_u32 m0, s{S_LX}, {(4*kap+rho)*1024 - 128*kap}"), o("s_nop 0"),
                      vm(f"buffer_load_dwordx4 v{244+rho}, s[{SR_CS}:{SR_CS+3}], 0 offen offset:{128*kap} lds", "cs")]
        for kap in range(4):
            for rho in range(4):
                L += [o(f"s_add_u32 m0, s{S_LX}, {20480 + (4*kap+rho)*1024 - 128*kap}"), o("s_nop 0"),
                      vm(f"buffer_load_dwordx4 v{244+rho}, s[{SR_SS}:{SR_SS+3}], 0 offen offset:{128*kap} lds", "cs")]
        L += [o(f"s_mov_b32 s{S_CNT}, 0"), raw("L_zpoll:"),
              o("v_mov_b32 v240, 0"),
              o(f"buffer_load_dword v241, v240, s[{SR_HZ}:{SR_HZ+3}], 0 offen sc1"),
              o("s_waitcnt vmcnt(0)"), o("v_readfirstlane_b32 s%d, v241" % T0),
              o(f"s_add_u32 s{S_CNT}, s{S_CNT}, 1"), o(f"s_cmp_ge_u32 s{T0}, 256"), o("s_cbranch_scc1 L_zok"),
              o(f"s_cmp_gt_u32 s{S_CNT}, 0x40000"), o("s_cbranch_scc1 L_zok"), o("s_sleep 2"), o("s_branch L_zpoll"),
              raw("L_zok:"), reset()]
        L += [o("v_and_b32 v240, 15, v0"), o("v_lshrrev_b32 v241, 4, v0"),
              o("v_and_b32 v242, 1, v241"), o("v_lshlrev_b32 v242, 9, v242"),
              o("v_lshrrev_b32 v243, 1, v241"), o("v_lshlrev_b32 v243, 10, v243"), o("v_add_u32 v242, v242, v243"),
              o(f"s_mul_i32 s{T0}, s{S_B}, 36"), o(f"s_mov_b32 s{T1}, {ZF_STRIDE}"), o(f"v_mov_b32 v243, {OOB:#x}")]
        for ss in range(3):
            ep, pa, qa = 2 + 0, 16 + ss, 20 + ss
            L += [o(f"v_add_u32 v244, {16*ss}, v240"),
                  o(f"v_add_u32 v245, s{T0}, v244"),
                  o(f"v_lshlrev_b32 v{24+ss}, 2, v245"),
                  o("v_lshrrev_b32 v246, 5, v245"), o(f"v_mul_lo_u32 v246, v246, s{T1}"),
                  o("v_and_b32 v247, 31, v245"), o("v_lshlrev_b32 v247, 4, v247"), o("v_add_u32 v246, v246, v247"),
                  o("v_add_u32 v246, v246, v242"),
                  o("v_cmp_gt_u32 vcc, 36, v244"), o("v_cmp_eq_u32 s[82:83], 288, v245") if False else o(f"s_movk_i32 s{T2}, 288"),
                  o(f"v_cmp_eq_u32 s[82:83], s{T2}, v245"), o("s_nop 0"), o("s_or_b64 vcc, vcc, s[82:83]"), o("s_nop 1"),
                  o(f"v_cndmask_b32 v{pa}, v243, v246, vcc"),
                  o(f"v_cndmask_b32 v{24+ss}, v243, v{24+ss}, vcc"),
                  o(f"v_add_u32 v246, {9*ZF_STRIDE}, v246"),
                  o("v_cmp_gt_u32 vcc, 36, v244"), o("v_cmp_ne_u32 s[82:83], 0, v245"), o("s_nop 0"), o("s_and_b64 vcc, vcc, s[82:83]"), o("s_nop 1"),
                  o(f"v_cndmask_b32 v{qa}, v243, v246, vcc")]
        def pz(ss, k): return 4*(ss*9 + k)
        def qz(ss, k):
            i = ss*8 + k
            return 108 + 4*i if i < 9 else 176 + 4*(i - 9)
        L += [o(f"s_lshl_b32 s{T0}, s{S_W}, 14"), o(f"s_add_u32 s{T0}, s{T0}, {WS_ZF}")]
        for k in range(9):
            L += [o(f"s_add_u32 s{T1}, s{T0}, {k*2048}")]
            for ss in range(3):
                if k < 8:
                    L += [vm(f"buffer_load_dwordx4 a[{pz(ss,k)}:{pz(ss,k)+3}], v{16+ss}, s[{SR_WS}:{SR_WS+3}], s{T1} offen sc1", "z"),
                          vm(f"buffer_load_dwordx4 a[{qz(ss,k)}:{qz(ss,k)+3}], v{20+ss}, s[{SR_WS}:{SR_WS+3}], s{T1} offen sc1", "z")]
                else:
                    L += [o(f"s_cmp_eq_u32 s{S_W}, 3"), o(f"s_cselect_b32 s{T2}, 32, 0"),
                          o(f"v_cmp_gt_u32 vcc, s{T2}, v0"), o("s_nop 1"), o(f"v_cndmask_b32 v244, v243, v{16+ss}, vcc"),
                          vm(f"buffer_load_dwordx4 a[{pz(ss,k)}:{pz(ss,k)+3}], v244, s[{SR_WS}:{SR_WS+3}], s{T1} offen sc1", "z")]
        L += [o("v_and_b32 v240, 15, v0"), o("v_lshrrev_b32 v241, 4, v0"),
              o("v_bfe_u32 v242, v0, 1, 3"), o("v_xor_b32 v242, v242, v241"), o("v_lshlrev_b32 v242, 4, v242"),
              o("v_lshlrev_b32 v240, 7, v240"), o("v_add_u32 v240, v240, v242"), o(f"v_add_u32 v28, s{S_LX}, v240"),
              o("v_xor_b32 v29, 64, v28"),
              o("v_add_u32 v30, 2048, v28"), o("v_add_u32 v31, 2048, v29")]
        L += [o("s_waitcnt vmcnt(0)"), reset()]
        def accP(tt, ss): return 104 + 4*(tt*3 + ss)
        def accQ(tt, ss):
            i = tt*3 + ss
            return 128 + 4*i if i < 4 else 232 + 4*(i - 4)
        for tt in range(2):
            for k in range(9):
                r = 32 + 4*(tt*9 + k)
                kk = k if k < 8 else 8
                L += [ds(f"ds_read_b128 v[{r}:{r+3}], v{28 + 2*tt + (k & 1)} offset:{(k>>1)*4096}", "ca")]
        L += [o("s_waitcnt lgkmcnt(0)"), reset()]
        for k in range(9):
            for tt in range(2):
                for ss in range(3):
                    r = 32 + 4*(tt*9 + k); a = accP(tt, ss)
                    L += [o(f"v_mfma_f32_16x16x32_bf16 v[{a}:{a+3}], v[{r}:{r+3}], a[{pz(ss,k)}:{pz(ss,k)+3}], " + ("0" if k == 0 else f"v[{a}:{a+3}]"))]
        L += [o(f"s_cmp_eq_u32 s{S_A}, 0"), o("s_cbranch_scc0 L_s_n1024"),
              o("v_mov_b32 v240, 0xbf803f80"), o("v_mov_b32 v241, v240"), o("v_mov_b32 v242, v240"), o("v_mov_b32 v243, v240"), o("s_nop 1")]
        for k in range(9):
            for ss in range(3):
                a = 216 + 4*ss
                L += [o(f"v_mfma_f32_16x16x32_bf16 v[{a}:{a+3}], v[240:243], a[{pz(ss,k)}:{pz(ss,k)+3}], " + ("0" if k == 0 else f"v[{a}:{a+3}]"))]
        L += [raw("L_s_n1024:")]
        for tt in range(2):
            for k in range(8):
                r = 32 + 4*(tt*9 + k)
                L += [ds(f"ds_read_b128 v[{r}:{r+3}], v{28 + 2*tt + (k & 1)} offset:{20480 + (k>>1)*4096}", "sa")]
        L += [o("s_waitcnt lgkmcnt(0)"), reset()]
        for k in range(8):
            for tt in range(2):
                for ss in range(3):
                    r = 32 + 4*(tt*9 + k); a = accQ(tt, ss)
                    L += [o(f"v_mfma_f32_16x16x32_bf16 v[{a}:{a+3}], v[{r}:{r+3}], a[{qz(ss,k)}:{qz(ss,k)+3}], " + ("0" if k == 0 else f"v[{a}:{a+3}]"))]
        L += [o("s_nop 7"), o("s_nop 1")]
        L += [o("v_lshlrev_b32 v240, 2, v0"), o(f"v_add_u32 v241, s{S_LX}, v240")]
        for tt in range(2):
            for ss in range(3):
                for r in range(4):
                    i = (tt*3 + ss)*4 + r
                    L += [o(f"ds_write_b32 v241, v{accP(tt,ss)+r} offset:{i*256}"), o(f"ds_write_b32 v241, v{accQ(tt,ss)+r} offset:{(24+i)*256}")]
        for ss in range(3):
            L += [o(f"ds_write_b32 v241, v{216+4*ss} offset:{(48+ss)*256}")]
        L += [o("s_waitcnt lgkmcnt(0)"), o("s_barrier")]
        L += [o(f"s_lshr_b32 s{T0}, s{S_W}, 1"), o(f"s_mul_i32 s{T0}, s{T0}, {12*256}"),
              o(f"s_and_b32 s{T1}, s{S_W}, 1"), o(f"s_lshl_b32 s{T1}, s{T1}, 9"), o(f"s_add_u32 s{T0}, s{T0}, s{T1}"),
              o(f"v_add_u32 v242, s{T0}, v240"), o(f"v_add_u32 v243, {2*SLOT}, v242"),
              o(f"v_add_u32 v244, {2*SLOT}, v240")]
        dst = 32
        for ss in range(3):
            for rr in range(2):
                for pq in range(2):
                    for ww in range(4):
                        base = 242 if ww < 2 else 243
                        off = (ww % 2)*SLOT + (pq*24 + ss*4 + rr)*256
                        L += [o(f"ds_read_b32 v{dst}, v{base} offset:{off}")]; dst += 1
        for ss in range(3):
            for ww in range(4):
                base = 240 if ww < 2 else 244
                L += [o(f"ds_read_b32 v{dst}, v{base} offset:{(ww % 2)*SLOT + (48+ss)*256}")]; dst += 1
        L += [o("s_waitcnt lgkmcnt(0)")]
        for e in range(6):
            for pq in range(2):
                b = 32 + (e*2 + pq)*4
                L += [o(f"v_add_f32 v{b}, v{b}, v{b+1}"), o(f"v_add_f32 v{b+2}, v{b+2}, v{b+3}"), o(f"v_add_f32 v{b}, v{b}, v{b+2}")]
        for ss in range(3):
            b = 80 + ss*4
            L += [o(f"v_add_f32 v{b}, v{b}, v{b+1}"), o(f"v_add_f32 v{b+2}, v{b+2}, v{b+3}"), o(f"v_add_f32 v{b}, v{b}, v{b+2}")]
        L += [o("v_lshrrev_b32 v240, 4, v0"), o("v_lshlrev_b32 v240, 2, v240"),
              o(f"s_lshl_b32 s{T0}, s{S_A}, 5"), o(f"s_lshr_b32 s{T1}, s{S_W}, 1"), o(f"s_lshl_b32 s{T1}, s{T1}, 4"), o(f"s_add_u32 s{T0}, s{T0}, s{T1}"),
              o(f"s_and_b32 s{T1}, s{S_W}, 1"), o(f"s_lshl_b32 s{T1}, s{T1}, 1"), o(f"s_add_u32 s{T0}, s{T0}, s{T1}"),
              o(f"v_add_u32 v240, s{T0}, v240"),
              o(f"s_movk_i32 s{T1}, {YP}"), o(f"s_mov_b32 s{T2}, {WS_YH}"), o(f"v_mov_b32 v243, {OOB:#x}")]
        for rr in range(2):
            L += [o(f"v_add_u32 v241, {rr}, v240"), o(f"v_mul_lo_u32 v244, v241, s{T1}"),
                  o("v_sub_u32 v242, 2048, v241"), o(f"v_mul_lo_u32 v245, v242, s{T1}"),
                  o("v_cmp_eq_u32 vcc, 0, v241"), o("s_nop 1"), o("v_cndmask_b32 v245, v245, v243, vcc")]
            for ss in range(3):
                e = ss*2 + rr; P = 32 + (e*2)*4; Q = 32 + (e*2+1)*4
                L += [o(f"v_sub_f32 v246, v{P}, v{Q}"), o(f"v_add_u32 v247, v244, v{24+ss}"),
                      vm(f"buffer_store_dword v246, v247, s[{SR_WS}:{SR_WS+3}], s{T2} offen sc1", "yst"),
                      o(f"v_add_f32 v246, v{P}, v{Q}"), o(f"v_add_u32 v247, v245, v{24+ss}"),
                      vm(f"buffer_store_dword v246, v247, s[{SR_WS}:{SR_WS+3}], s{T2} offen sc1", "yst")]
        L += [o(f"s_or_b32 s{T0}, s{S_A}, s{S_W}"), o(f"s_cmp_eq_u32 s{T0}, 0"), o(f"s_cselect_b32 s{T0}, 16, 0"),
              o(f"v_cmp_gt_u32 vcc, s{T0}, v0"), o(f"v_mov_b32 v244, {1024*YP}"), o("s_nop 0"), o("v_cndmask_b32 v244, v243, v244, vcc")]
        for ss in range(3):
            L += [o(f"v_add_u32 v247, v244, v{24+ss}"),
                  vm(f"buffer_store_dword v{80+4*ss}, v247, s[{SR_WS}:{SR_WS+3}], s{T2} offen sc1", "yst")]
        return L

    def phase2_setup(self):
        L = []
        L += [o(f"s_xor_b32 s{T6}, s{S_J}, 1"),
              o(f"s_and_b32 s{T2}, s{T6}, 1"), o(f"s_mul_i32 s{T0}, s{T6}, 288"), o(f"s_mul_i32 s{T1}, s{T2}, 224"),
              o(f"s_add_u32 s{T1}, s{T0}, s{T1}"),
              o(f"s_cmp_eq_u32 s{T2}, 0"), o(f"s_cselect_b32 s{T3}, 64, -64"), o(f"s_cselect_b32 s{T4}, 256, 0"),
              o(f"s_add_u32 s{T4}, s{T4}, s{T0}")]
        for u in range(4):
            L += [o(f"s_mul_i32 s{T5}, s{T3}, {u}"), o(f"s_add_u32 s{T5}, s{T5}, s{T1}"),
                  o(f"s_mul_i32 s{S_N1+2*u}, s{T5}, 1152"), o(f"s_add_u32 s{S_N1+2*u+1}, s{S_N1+2*u}, {32*1152}")]
        L += [o(f"s_mul_i32 s{S_N1+8}, s{T4}, 1152")]
        L += [o(f"s_and_b32 s{T2}, s{S_J}, 1"), o(f"s_mul_i32 s{T0}, s{T2}, 640")]
        for u in range(4): L += [o(f"s_add_u32 s{S_CU+u}, s{T0}, {128*u}")]
        L += [o(f"s_cmp_eq_u32 s{T2}, 0"), o(f"s_cselect_b32 s{S_CU+4}, 0, 64"),
              o(f"s_cselect_b32 s{S_Q0}, 0, 10"), o(f"s_cselect_b32 s{S_Q8}, 8, 9"),
              o(f"s_lshl_b32 s{S_Q0}, s{S_Q0}, 11"), o(f"s_add_u32 s{S_Q0}, s{S_Q0}, s{S_PB}"),
              o(f"s_lshl_b32 s{S_Q8}, s{S_Q8}, 11"), o(f"s_add_u32 s{S_Q8}, s{S_Q8}, s{S_PB}"),
              o(f"s_add_u32 s{S_CU+4}, s{S_CU+4}, 512"),
              o(f"s_and_b32 s{S_A}, s{S_W}, 1"), o(f"s_mul_i32 s{S_A}, s{S_A}, {16*1152}")]
        return L

    def phase2(self, slot_order):
        DIST = self.opts.get("dist", 7)
        stages = [(0, "own"), (1, "own"), (0, "par"), (1, "par"), (2, "own"), (2, "par"), (3, "own"), (3, "par"), (4, "both")]
        slot_of = {st: slot_order[i] for i, st in enumerate(stages)}
        ACC = {0: [32, 96], 1: [48, 112], 2: [64, 128], 3: [16, 80], 4: [32]}
        M = []; tile_last = {}
        def B_own(k): return f"v[{HF+4*k}:{HF+4*k+3}]"
        def B_par(k): return f"a[{4*k}:{4*k+3}]"
        for st in stages:
            u, who = st; slot = slot_of[st]
            if u < 4:
                for half in range(2):
                    acc = ACC[u][half]
                    for k in range(18):
                        g = len(M); a = AF + 4*(g % NAF); base = (V_RA if half == 0 else V_RB) + slot
                        M.append(dict(acc=f"v[{acc}:{acc+15}]", first=(who == "own" and k == 0), st=st, A=f"a[{a}:{a+3}]",
                                      B=(B_own(k) if who == "own" else B_par(k)),
                                      reads=[f"ds_read_b64_tr_b16 a[{a}:{a+1}], v{base} offset:{k*2048}", f"ds_read_b64_tr_b16 a[{a+2}:{a+3}], v{base} offset:{k*2048+1024}"]))
                        tile_last[(u, half)] = g
            else:
                acc = ACC[4][0]
                for k in range(36):
                    g = len(M); a = AF + 4*(g % NAF)
                    M.append(dict(acc=f"v[{acc}:{acc+15}]", first=(k == 0), st=st, A=f"a[{a}:{a+3}]",
                                  B=(B_own(k) if k < 18 else B_par(k - 18)),
                                  reads=[f"ds_read_b64_tr_b16 a[{a}:{a+1}], v{V_R8} offset:{k*1024}", f"ds_read_b64_tr_b16 a[{a+2}:{a+3}], v{V_R8} offset:{k*1024+512}"]))
                    tile_last[(4, 0)] = g
        seen = set()
        for m in M:
            if m["st"] not in seen:
                seen.add(m["st"])
                m["pre"] = [wvm(("s2", m["st"])), o("s_barrier")]
        gpar = min(g for g, m in enumerate(M) if m["st"] == (0, "par"))
        self.stamp_at(M, {0: "p2", 72: "p2b", 144: "p2c", 216: "p2d", 288: "p2e"})
        pre_dma = []
        pre_dma_groups = self.dma_p2(stages[0], slot_of[stages[0]], True, False) + self.dma_p2(stages[1], slot_of[stages[1]], False, False)
        for g in pre_dma_groups: pre_dma += g
        def setup(sl, head, fu, lu):
            bars = sorted(fu[s] - DIST for s in fu)
            for b in bars:
                if b >= 0: sl.budget[b] = 4
            sl.put(gpar - 2, [wvm("hp")])
            s4 = slot_of[(4, "both")]
            ins = [o("v_lshrrev_b32 v242, 5, v0"), o("v_lshlrev_b32 v242, 8, v242"),
                   o("v_bfe_u32 v243, v0, 2, 2"), o("v_lshlrev_b32 v243, 6, v243"), o("v_add_u32 v242, v242, v243"),
                   o("v_bfe_u32 v243, v0, 4, 1"), o("v_lshlrev_b32 v243, 5, v243"), o("v_add_u32 v242, v242, v243"),
                   o("v_and_b32 v243, 3, v0"), o("v_lshlrev_b32 v243, 3, v243"), o("v_add_u32 v242, v242, v243"),
                   o(f"v_add_u32 v{V_R8}, {s4*SLOT}, v242")]
            sl.stream(ins, 150, 170)
            for i in range(2, 9):
                st = stages[i]; slot = slot_of[st]
                prev = [j for j in range(i) if slot_of[stages[j]] == slot]
                if prev:
                    start = min(b for b in bars if b >= lu[stages[prev[-1]]]) + 1
                else:
                    start = 0 if i == 2 else max(0, fu[stages[1]] - DIST + 1)
                grps = self.dma_p2(st, slot, False, False)
                s = start
                step = 3 if len(grps) <= 10 else 2
                for grp in grps:
                    sl.put(s, grp); s += step if len(grps) <= 10 else (1 if (grp and cls_cost(grp[0])[0] == 0) else 2)
            N = len(M)
            for (u, half), tl in sorted(tile_last.items(), key=lambda x: x[1]):
                acc = ACC[u][half]
                par = (2*u + half) % 2
                t = TMP + 8*par
                st = S_ST0 + par
                ins = [o(f"v_cvt_pk_bf16_f32 v{t+i}, v{acc+2*i}, v{acc+2*i+1}") for i in range(8)]
                if u < 4: ins += [o(f"s_add_u32 s{st}, s{S_Q0}, {(2*u+half)*2048}")]
                else: ins += [o(f"s_mov_b32 s{st}, s{S_Q8}")]
                ins += [vm(f"buffer_store_dwordx4 v[{t}:{t+3}], v{V_L16}, s[{SR_WS}:{SR_WS+3}], s{st} offen sc1", "pst"),
                        vm(f"buffer_store_dwordx4 v[{t+4}:{t+7}], v{V_L16}, s[{SR_WS}:{SR_WS+3}], s{st} offen offset:1024 sc1", "pst")]
                s0 = tl + 4
                if s0 + 10 <= N: sl.stream(ins, s0, s0 + 10)
                else: self.tail2 = [o("s_nop 15")] + ins
        L = self.paced(M, DIST, setup)
        return pre_dma, L + self.tail2

    def reduce(self):
        L = []
        L += [o("s_waitcnt vmcnt(0)"), reset(), o("s_barrier"),
              o(f"s_lshl_b32 s{T0}, s{S_LID}, 7"), o(f"s_add_u32 s{T0}, s{T0}, {WS_FLAG}"), o("v_mov_b32 v240, 2"),
              vm(f"buffer_store_dword v240, v{V_ONE0}, s[{SR_WS}:{SR_WS+3}], s{T0} offen sc1", "fl2")]
        L += self.stamp("pub2")
        L += [o(f"s_lshl_b32 s{T0}, s{S_MT}, 11"), o(f"s_add_u32 s{T0}, s{T0}, {WS_FLAG}"),
              o("v_lshlrev_b32 v240, 7, v0"), o("v_cmp_gt_u32 vcc, 16, v0"), o(f"v_mov_b32 v241, {OOB:#x}"), o("s_nop 0"),
              o("v_cndmask_b32 v240, v241, v240, vcc"), o(f"s_mov_b32 s{S_CNT}, 0"),
              raw("L_ppoll:"),
              o(f"buffer_load_dword v241, v240, s[{SR_WS}:{SR_WS+3}], s{T0} offen sc1"),
              o("s_waitcnt vmcnt(0)"),
              o("v_cmp_eq_u32 vcc, 2, v241"), o(f"s_add_u32 s{S_CNT}, s{S_CNT}, 1"),
              o("s_and_b32 s82, vcc_lo, 0xffff"), o("s_cmp_eq_u32 s82, 0xffff"), o("s_cbranch_scc1 L_pok"),
              o(f"s_cmp_gt_u32 s{S_CNT}, 0x40000"), o("s_cbranch_scc1 L_pok"), o("s_sleep 1"), o("s_branch L_ppoll"),
              raw("L_pok:"), reset()]
        L += self.stamp("pok")
        for it in range(3):
            b = 16 + 64*it
            if it < 2: L += [o(f"s_mul_i32 s{T0}, s{S_J}, 9"), o(f"s_add_u32 s{T0}, s{T0}, s{S_W}"), o(f"s_add_u32 s{T0}, s{T0}, {4*it}")]
            else: L += [o(f"s_mul_i32 s{T0}, s{S_J}, 9"), o(f"s_add_u32 s{T0}, s{T0}, 8")]
            L += [o(f"s_mul_hi_u32 s{T1}, s{T0}, {(2**32+35)//36}"),
                  o(f"s_mul_i32 s{T2}, s{T1}, 36"), o(f"s_sub_u32 s{T2}, s{T0}, s{T2}"),
                  o(f"s_and_b32 s{T3}, s{T2}, 1"), o(f"s_lshr_b32 s{T2}, s{T2}, 1"),
                  o(f"s_lshl_b32 s{T4}, s{S_MT}, 2"), o(f"s_add_u32 s{T4}, s{T4}, s{T1}"),
                  o(f"s_mul_i32 s{T5}, s{T4}, 18"), o(f"s_add_u32 s{T5}, s{T5}, s{T2}"), o(f"s_lshl_b32 s{T5}, s{T5}, 1"),
                  o(f"s_add_u32 s{T5}, s{T5}, s{T3}"), o(f"s_lshl_b32 s{T5}, s{T5}, 10")]
            if it == 2:
                L += [o(f"s_cmp_eq_u32 s{S_W}, 0"), o(f"s_cselect_b32 s{T6}, 0, {OOB:#x}")]
            else:
                L += [o(f"s_mov_b32 s{T6}, 0")]
            L += [o(f"v_add_u32 v{b+60}, s{T6}, v{V_L16}")]
            for p in range(8):
                L += [o(f"s_add_u32 s{T7}, s{T5}, {p*PART_BYTES}"),
                      vm(f"buffer_load_dwordx4 v[{b+4*p}:{b+4*p+3}], v{b+60}, s[{SR_WS}:{SR_WS+3}], s{T7} offen sc1", ("rp", it))]
            L += [o("v_and_b32 v240, 15, v0"), o(f"s_lshl_b32 s{T7}, s{T4}, 4"), o(f"v_add_u32 v240, s{T7}, v240"),
                  o("v_sub_u32 v241, 2048, v240"), o("v_cmp_eq_u32 vcc, 0, v240"), o("v_mov_b32 v242, 1024"), o("v_mov_b32 v244, 0"),
                  o("v_cndmask_b32 v243, v241, v242, vcc"),
                  o("v_cndmask_b32 v241, v241, v244, vcc"),
                  o("v_cndmask_b32 v242, v240, v242, vcc"),
                  o("v_and_b32 v244, 16, v0"), o("v_cmp_eq_u32 vcc, 0, v244"), o("s_nop 1"),
                  o("v_cndmask_b32 v240, v243, v240, vcc"),
                  o("v_cndmask_b32 v242, v242, v241, vcc"),
                  o(f"s_movk_i32 s{T7}, 1152"), o(f"v_mul_lo_u32 v241, v240, s{T7}"),
                  o(f"s_lshl_b32 s{T7}, s{T2}, 6"), o(f"s_lshl_b32 s{T0}, s{T3}, 5"), o(f"s_add_u32 s{T7}, s{T7}, s{T0}"),
                  o(f"s_add_u32 s{T7}, s{T7}, s{T6}"),
                  o(f"v_add_u32 v241, s{T7}, v241"),
                  o("v_lshrrev_b32 v243, 5, v0"),
                  o("v_lshlrev_b32 v244, 3, v243"), o(f"v_add_u32 v244, v241, v244"),
                  o("v_lshlrev_b32 v245, 4, v243"), o(f"v_add_u32 v{b+61}, v241, v245"),
                  vm(f"buffer_load_dwordx2 v[{b+32}:{b+33}], v244, s[{SR_X}:{SR_X+3}], 0 offen", ("rp", it)),
                  vm(f"buffer_load_dwordx2 v[{b+34}:{b+35}], v244, s[{SR_X}:{SR_X+3}], 0 offen offset:16", ("rp", it))]
            L += [o(f"s_lshl_b32 s{T7}, s{T2}, 7"), o(f"s_lshl_b32 s{T0}, s{T3}, 6"), o(f"s_add_u32 s{T7}, s{T7}, s{T0}"),
                  o(f"s_movk_i32 s{T0}, {YP}"),
                  o(f"s_cmp_lt_u32 s{T2}, 9"), o(f"s_cselect_b32 s{S_A+0}, 1, 0") if False else o(f"s_cselect_b32 s{97}, 0, 1"),
                  o(f"s_cbranch_scc0 L_rm{it}"),
                  o(f"v_mul_lo_u32 v244, v240, s{T0}"), o("v_lshlrev_b32 v245, 4, v243"), o("v_add_u32 v244, v244, v245"),
                  o(f"v_add_u32 v244, s{T7}, v244"), o(f"v_add_u32 v245, 32, v244"),
                  o(f"s_branch L_rj{it}"), raw(f"L_rm{it}:"),
                  o(f"v_mul_lo_u32 v244, v242, s{T0}"), o("v_lshlrev_b32 v245, 4, v243"), o("v_sub_u32 v244, v244, v245"),
                  o(f"s_sub_u32 s{T7}, {573*4}, s{T7}"), o(f"v_add_u32 v244, s{T7}, v244"), o(f"v_subrev_u32 v245, 32, v244"),
                  raw(f"L_rj{it}:"),
                  o(f"s_mov_b32 s{100+0 if False else 30+it}, s97"),
                  o(f"v_add_u32 v244, s{T6}, v244"), o(f"v_add_u32 v245, s{T6}, v245"), o(f"s_mov_b32 s{T7}, {WS_YH}"),
                  vm(f"buffer_load_dwordx4 v[{b+36}:{b+39}], v244, s[{SR_WS}:{SR_WS+3}], s{T7} offen sc1", ("rp", it)),
                  vm(f"buffer_load_dwordx4 v[{b+40}:{b+43}], v245, s[{SR_WS}:{SR_WS+3}], s{T7} offen sc1", ("rp", it))]
        for it in range(3):
            b = 16 + 64*it
            L += [wvm(("rp", it))]
            L += [o(f"s_cmp_eq_u32 s{30+it}, 0"), o(f"s_cbranch_scc1 L_rv{it}"),
                  o(f"v_swap_b32 v{b+36}, v{b+39}"), o(f"v_swap_b32 v{b+37}, v{b+38}"),
                  o(f"v_swap_b32 v{b+40}, v{b+43}"), o(f"v_swap_b32 v{b+41}, v{b+42}"), raw(f"L_rv{it}:")]
            acc = b + 44
            L += [o(f"s_mov_b32 s{T0}, 0xffff0000")]
            for i in range(4):
                L += [o(f"v_lshlrev_b32 v{acc+2*i}, 16, v{b+32+i}"), o(f"v_and_b32 v{acc+2*i+1}, s{T0}, v{b+32+i}")]
            for i in range(8):
                L += [o(f"v_add_f32 v{acc+i}, v{acc+i}, v{b+36+i}")]
            for p in range(8):
                for i in range(4):
                    r = b + 4*p + i
                    L += [o(f"v_lshlrev_b32 v{b+52}, 16, v{r}"), o(f"v_and_b32 v{b+53}, s{T0}, v{r}"),
                          o(f"v_add_f32 v{acc+2*i}, v{acc+2*i}, v{b+52}"), o(f"v_add_f32 v{acc+2*i+1}, v{acc+2*i+1}, v{b+53}")]
            for i in range(4):
                L += [o(f"v_cvt_pk_bf16_f32 v{b+56+i}, v{acc+2*i}, v{acc+2*i+1}")]
            L += [o("s_nop 1"), o(f"v_permlane32_swap_b32 v{b+56}, v{b+58}"), o(f"v_permlane32_swap_b32 v{b+57}, v{b+59}"),
                  vm(f"buffer_store_dwordx4 v[{b+56}:{b+59}], v{b+61}, s[{SR_OUT}:{SR_OUT+3}], 0 offen", "out")]
        return L

    def kernel(self, name):
        self.pid = 0; self.tail2 = []
        L = [raw(f".globl {name}"), raw(".p2align 8"), raw(f".type {name},@function"), raw(f"{name}:")]
        L += self.prologue()
        L += self.ln_stats()
        L += self.stamp("stats")
        L += [o("s_barrier")]
        L += [o(f"s_mov_b32 s{S_A}, s{S_J}"), o(f"s_add_u32 s{S_B}, s{S_J}, 16")]
        L += self.h_dma(S_A, 2, "wz1")
        L += [o(f"s_cmp_lt_u32 s{S_J}, 2"), o("s_cbranch_scc0 L_noz2a")]
        z2 = self.h_dma(S_B, 3, "wz2")
        L += [I(i.t, "o") if i.k == "vm" else i for i in z2]
        L += [raw("L_noz2a:")]
        for sig in range(2):
            for grp in self.dma_p1(sig, sig): L += grp
        L += self.ln_finish()
        L += self.stamp("ln")
        L += [o("s_waitcnt vmcnt(18)"), reset()]
        L += self.h_special(S_A, 2, "a")
        L += [o("s_barrier")]
        L += self.h_compute(S_A, 2, "a")
        L += [o(f"s_cmp_lt_u32 s{S_J}, 2"), o("s_cbranch_scc0 L_noz2b")]
        z2 = self.h_compute(S_B, 3, "b")
        L += [I(i.t, "o") if i.k == "vm" else i for i in z2]
        L += [o("s_waitcnt vmcnt(0)"), raw("L_noz2b:")]
        L += [o("s_waitcnt vmcnt(0)"), reset()]
        L += self.stamp("H")
        L += srd(SR_HZ, 36, 256) + [o(f"v_mov_b32 v{V_X+7}, 1")]
        L += [I("s_nop 0", "vm", ("st", 0)), I("s_nop 0", "vm", ("st", 1)), I("s_nop 0", "vm", "zst"), I("s_nop 0", "vm", "flinit"), reset()]
        L += self.phase1()
        L += [o("s_nop 15")]
        L += self.geglu(7) + self.hstore(7) + self.geglu(8) + self.hstore(8)
        L += self.stamp("tail")
        L += [o("s_waitcnt vmcnt(0)"), reset(), o("s_barrier"),
              o(f"s_lshl_b32 s{T0}, s{S_LID}, 7"), o(f"s_add_u32 s{T0}, s{T0}, {WS_FLAG}"), o("v_mov_b32 v240, 1"),
              vm(f"buffer_store_dword v240, v{V_ONE0}, s[{SR_WS}:{SR_WS+3}], s{T0} offen sc1", "fl1")]
        L += self.stamp("pub1")
        L += self.s_stage()
        L += self.stamp("S")
        L += [o("s_waitcnt lgkmcnt(0)"), o("s_barrier")]
        L += self.phase2_setup()
        pre_dma, body = self.phase2([0, 1, 2, 3, 0, 1, 2, 3, 0])
        L += pre_dma
        L += [o("v_lshrrev_b32 v240, 5, v0"), o("v_lshlrev_b32 v240, 9, v240")]
        for s in range(4): L += [o(f"v_sub_u32 v{V_RA+s}, v{V_RA+s}, v240"), o(f"v_sub_u32 v{V_RB+s}, v{V_RB+s}, v240")]
        L += [o(f"s_xor_b32 s{T0}, s{S_LID}, 1"), o(f"s_lshl_b32 s{T1}, s{T0}, 7"), o(f"s_add_u32 s{T1}, s{T1}, {WS_FLAG}"),
              o("v_mov_b32 v240, 0"), o(f"s_mov_b32 s{S_CNT}, 0"),
              raw("L_hpoll:"),
              o(f"buffer_load_dword v241, v240, s[{SR_WS}:{SR_WS+3}], s{T1} offen sc1"),
              o("s_waitcnt vmcnt(0)"), o(f"v_readfirstlane_b32 s{T2}, v241"),
              o(f"s_add_u32 s{S_CNT}, s{S_CNT}, 1"), o(f"s_cmp_ge_u32 s{T2}, 1"), o("s_cbranch_scc1 L_hok"),
              o(f"s_cmp_gt_u32 s{S_CNT}, 0x40000"), o("s_cbranch_scc1 L_hok"), o("s_sleep 1"), o("s_branch L_hpoll"),
              raw("L_hok:"), reset(),
              o(f"s_lshl_b32 s{T0}, s{T0}, 2"), o(f"s_add_u32 s{T0}, s{T0}, s{S_W}"), o(f"s_mul_i32 s{T0}, s{T0}, {18*1024}"),
              o(f"s_add_u32 s{T0}, s{T0}, {WS_HX}")]
        L += [I("s_nop 0", "vm", ("s2", (0, "own"))), I("s_nop 0", "vm", ("s2", (1, "own"))), reset()]
        for k in range(18):
            L += [o(f"s_add_u32 s{T1}, s{T0}, {k*1024}"),
                  vm(f"buffer_load_dwordx4 a[{4*k}:{4*k+3}], v{V_L16}, s[{SR_WS}:{SR_WS+3}], s{T1} offen sc1", "hp")]
        L += body
        L += self.stamp("p2end")
        L += self.reduce()
        L += self.stamp("end")
        if self.diag:
            L += [o("s_waitcnt vmcnt(0)"),
                  o(f"s_lshl_b32 s{T0}, s2, 2"), o(f"s_add_u32 s{T0}, s{T0}, s{S_W}"), o(f"s_lshl_b32 s{T0}, s{T0}, 8"),
                  o(f"s_add_u32 s{T0}, s{T0}, {WS_STAMP}"), o("v_lshlrev_b32 v240, 2, v0"),
                  o(f"buffer_store_dword v{V_STAMP}, v240, s[{SR_WS}:{SR_WS+3}], s{T0} offen")]
        L += [raw("L_end:"), o("s_endpgm")]
        return finalize(L)

NAME = "parallel_sum__spectral_fnet__geglu_ffn__prompt_kernel"
def build(diag=False, opts=None):
    hdr = open("parallel_sum__spectral_fnet__geglu_ffn__prompt.s.ref").read().split("\n")
    top = [l for l in hdr if l.startswith(";") and "@launch" not in l and "Override" not in l and "grid=ceil" not in l]
    g = Gen(diag, opts)
    lines = g.kernel(NAME)
    errs = hazard_check(lines)
    for e in errs[:30]: print("HAZARD:", e)
    txt = "\n".join(top) + "\n"
    txt += "; @launch grid=(256,1,1) block=(256,1,1) lds=163840\n"
    txt += '.amdgcn_target "amdgcn-amd-amdhsa--gfx950"\n.text\n'
    txt += "\n".join(lines) + "\n" + kernel_footer(NAME)
    return txt, g.names

if __name__ == "__main__":
    import sys, json
    opts = {}
    for a in sys.argv[2:]:
        if "=" in a:
            k, v = a.split("="); opts[k] = int(v)
    txt, names = build("diag" in sys.argv, opts)
    open(sys.argv[1], "w").write(txt)
    json.dump(names, open(sys.argv[1] + ".names", "w"))
```

```python
from fw import *
import re

class G(list):
    pass

def cls_cost(ins):
    if isinstance(ins, G):
        cs = [cls_cost(i) for i in ins]
        assert len(set(c[0] for c in cs)) == 1, [i.t for i in ins]
        return cs[0][0], sum(c[1] for c in cs)
    if hasattr(ins, "cost"): return 1, ins.cost
    if ins.k in ("wvm", "wlg", "wb"): return 0, 1
    if ins.k == "reset": return 0, 0
    t = ins.t
    op = t.split()[0]
    if op == "s_barrier": return 0, 3
    if op.startswith("s_"): return 0, 1
    if op.startswith("buffer_store") or op.startswith("global_store"): return 1, 5
    if op.startswith("ds_write"): return 1, 2
    if op.startswith("ds_") or op.startswith("buffer_") or op.startswith("global_"): return 1, 1
    if op in ("v_exp_f32", "v_rcp_f32", "v_sqrt_f32", "v_rsq_f32", "v_log_f32"): return 2, 2
    return 2, 1

class Slots:
    def __init__(self, n, budget=6):
        self.n = n
        self.items = [[] for _ in range(n)]
        self.used = [0]*n
        self.budget = [budget]*n
        self.seq = 0
    def put(self, s, ins):
        if not isinstance(ins, list): ins = [ins]
        for i in ins:
            if isinstance(i, G): self.items[s].extend(i)
            else: self.items[s].append(i)
            self.used[s] += cls_cost(i)[1]
    def free(self, s): return self.budget[s] - self.used[s]
    def stream(self, ins, start, end, spill=6):
        end = min(end, self.n)
        costs = [cls_cost(i)[1] for i in ins]
        total = sum(costs)
        avail = [max(0, self.free(s)) for s in range(start, end)]
        A = sum(avail)
        extra = 0
        if total > A:
            extra = -(-(total - A) // (end - start))
            avail = [a + extra for a in avail]; A = sum(avail)
        cumav = [0]
        for a in avail: cumav.append(cumav[-1] + a)
        left = {}
        def room(s):
            if s not in left: left[s] = max(0, self.free(s)) + extra
            return left[s]
        cum = 0.0; s = start; lastcls = -1
        for i, c in zip(ins, costs):
            cl = cls_cost(i)[0]
            target = (cum + c*0.5) * A / total
            t = start
            while t < end - 1 and cumav[t - start + 1] < target: t += 1
            if t > s: s = t; lastcls = -1
            while True:
                ok_room = room(s) >= c or (c > 3 and room(s) >= 3) or s >= min(end + spill, self.n) - 1
                ok_cls = cl >= lastcls
                if ok_room and ok_cls: break
                if s >= self.n - 1: raise Exception("stream ran off the end")
                s += 1; lastcls = -1
            if isinstance(i, G): self.items[s].extend(i)
            else: self.items[s].append(i)
            self.used[s] += c; left[s] = room(s) - c
            lastcls = cl; cum += c
        return s
    def emit(self, s):
        it = self.items[s]
        return sorted(it, key=lambda i: cls_cost(i)[0])

REG = re.compile(r"\b([vas])\[(\d+):(\d+)\]|\b([vas])(\d+)\b")
def regs(txt):
    out = []
    for m in REG.finditer(txt):
        if m.group(1): out += [(m.group(1), k) for k in range(int(m.group(2)), int(m.group(3)) + 1)]
        else: out.append((m.group(4), int(m.group(5))))
    return out

def hazard_check(lines):
    TR = ("v_exp_f32", "v_rcp_f32", "v_sqrt_f32", "v_rsq_f32", "v_log_f32")
    last_mfma = {}
    last_valu = {}
    last_trans = {}
    last_m0 = -10; last_vcc = -10; last_sg = {}
    st = 0; errs = []
    mf_srcc = {}
    flat_lines = []
    for ln in lines: flat_lines += ln.split("\n")
    for ln in flat_lines:
        t = ln.strip()
        if not t or t.endswith(":") or t.startswith(".") or t.startswith(";"): continue
        op = t.split()[0]
        args = t[len(op):]
        parts = [p.strip() for p in args.split(",")]
        if op == "s_nop":
            st += int(parts[0], 0) + 1; continue
        isv = op.startswith("v_") and not op.startswith("v_mfma")
        if op.startswith("v_mfma"):
            d = regs(parts[0]); srcs = regs(parts[1]) + regs(parts[2]); c = regs(parts[3]) if len(parts) > 3 else []
            for r in srcs + c:
                if r in last_valu and st - last_valu[r] - 1 < 2: errs.append(f"VALU->MFMA {r}: {t}")
            for r in srcs:
                if r in last_mfma and st - last_mfma[r][0] - 1 < last_mfma[r][1]: errs.append(f"MFMA D->MFMA AB {r}: {t}")
            small = "16x16x32" in op
            for r in c:
                if r in last_mfma and c != last_mfma[r][2] and st - last_mfma[r][0] - 1 < last_mfma[r][1] - 2: errs.append(f"MFMA D->MFMA C overlap {r}: {t}")
            for r in d: last_mfma[r] = (st, 8 if small else 12, d)
            for r in c: mf_srcc[r] = (st, 3 if small else 7)
        else:
            rs = regs(args)
            if isv or op.startswith("ds_") or op.startswith("buffer_") or op.startswith("global_"):
                for r in rs:
                    if r[0] in "va" and r in last_mfma and st - last_mfma[r][0] - 1 < last_mfma[r][1]:
                        errs.append(f"MFMA D->VALU/mem {r} dist {st-last_mfma[r][0]-1}: {t}")
            if isv:
                if op.startswith("v_cmp") or op.startswith("v_readfirstlane") or op.startswith("v_readlane"):
                    dst = []
                elif op == "v_permlane32_swap_b32" or op == "v_permlane16_swap_b32":
                    dst = regs(parts[0]) + regs(parts[1])
                else: dst = regs(parts[0])
                src = [r for p in parts[1:] for r in regs(p)]
                if op in ("v_fmac_f32", "v_dot2c_f32_bf16") or op.startswith("v_permlane"): src += regs(parts[0])
                for r in src:
                    if r in last_trans and op not in TR and st - last_trans[r] - 1 < 1: errs.append(f"trans->use {r}: {t}")
                    if op.startswith("v_permlane") and r in last_valu and st - last_valu[r] - 1 < 2: errs.append(f"VALU->permlane {r}: {t}")
                    if (op.startswith("v_readfirstlane") or op.startswith("v_readlane")) and r in last_valu and st - last_valu[r] - 1 < 1: errs.append(f"VALU->readlane {r}: {t}")
                    if r[0] == "s" and r in last_sg and st - last_sg[r] - 1 < 2: errs.append(f"VALU sgpr->VALU read {r}: {t}")
                if ("vcc" in args) and op.startswith("v_cndmask") and st - last_vcc - 1 < 2: errs.append(f"vcc->cndmask: {t}")
                for r in dst:
                    if r in mf_srcc and st - mf_srcc[r][0] - 1 < mf_srcc[r][1] and not (r in last_mfma and last_mfma[r][0] == mf_srcc[r][0]): errs.append(f"MFMA srcC WAR {r}: {t}")
                    last_valu[r] = st
                    if op in TR: last_trans[r] = st
                    elif r in last_trans: del last_trans[r]
                if op.startswith("v_cmp"):
                    if parts[0] == "vcc": last_vcc = st
                    else:
                        for r in regs(parts[0]): last_sg[r] = st
                if op.startswith("v_readfirstlane") or op.startswith("v_readlane"):
                    for r in regs(parts[0]): last_sg[r] = st
            if op.startswith("buffer_") or op.startswith("global_"):
                if " lds" in t and st - last_m0 - 1 < 1: errs.append(f"m0->lds dma: {t}")
                for r in rs:
                    if r[0] == "s" and r in last_sg and st - last_sg[r] - 1 < 5: errs.append(f"VALU sgpr->VMEM {r}: {t}")
            if op.startswith("s_") and parts and parts[0] == "m0": last_m0 = st
        st += 1
    return errs

def flat(ins):
    out = []
    for i in ins:
        if isinstance(i, G): out.extend(i)
        else: out.append(i)
    return out
```

```python
from fw import *
from sched import *
import math, struct

S, D, F = 2048, 576, 4608
SLOT = 36864
SPARE = 4*SLOT
PART_BYTES = S * D * 2
WS_PART = 0
WS_HX = 20 << 20
WS_ZF = 40 << 20
ZF_STRIDE = 66 * 1024
WS_YH = 42 << 20
YP = 320 * 4
WS_FLAG = 46 << 20
WS_STAMP = 48 << 20
OOB = 0x40000000
C0 = -2.0 * math.sqrt(2.0 / math.pi) * math.log2(math.e)
C1 = C0 * 0.044715
def f2u(f): return struct.unpack("<I", struct.pack("<f", f))[0]

V_L16 = 1
V_RA, V_RB = 2, 6
V_DM = 10
V_C0, V_C1 = 14, 15
GA = [[16, 32], [48, 64]]
UA = [[80, 96], [112, 128]]
HF = 144
TMP = 216
V_HACC = 232
V_XA = 248
V_R8 = 248
V_PF = 252
V_ONE0 = 253
V_D2 = 254
V_STAMP = 255
RX = 80
V_PERM = 224
V_NEGMU = 64
V_ONE = 231
V_SD = 232
V_SA = 236
V_SX = 240
V_ZP = 241
V_ZQ = 244
V_YC = [247, 250, 251]
V_LB = 232
AX = 0
AF = 144
NAF = 8
AZ = 176
SR_CS, SR_SS, SR_HZ, SR_X, SR_WG, SR_WU, SR_WD, SR_WS, SR_OUT = 4, 8, 12, 40, 44, 48, 52, 56, 60
S_W, S_MT, S_J = 64, 65, 66
S_LX, S_L9 = 67, 68
S_UB = 69
S_WD = 74
S_PB = 75
T0, T1, T2, T3, T4, T5, T6, T7 = 76, 77, 78, 79, 80, 81, 82, 83
S_N0 = 84
S_N1 = 16
S_CU = 25
S_Q0, S_Q8 = 30, 31
S_HB = 32
S_LID = 33
S_ST0, S_ST1 = 34, 35
S_CNT = 93
S_A, S_B, S_C = 94, 95, 96
S_TAU, S_ZB = 38, 39
S_PF = 97
S_XC = 0
S_QU = [30, 36, 37]
S_QN = 39
S_TO = 32
S_GA = 28
S_FL = 1
S_MODE = 2
S_D0 = 3

def srd(dst, ptr, nbytes):
    return [o(f"s_mov_b32 s{dst}, s{ptr}"), o(f"s_and_b32 s{dst+1}, s{ptr+1}, 0xffff"),
            o(f"s_mov_b32 s{dst+2}, {nbytes}"), o(f"s_mov_b32 s{dst+3}, 0x00020000")]
def mf32(acc, A, B, C): return o(f"v_mfma_f32_32x32x16_bf16 {acc}, {A}, {B}, {C}")
def mf16(acc, A, B, C): return o(f"v_mfma_f32_16x16x32_bf16 {acc}, {A}, {B}, {C}")

class DS2(I):
    pass

class Gen:
    def dload(self, texts, tag, pair=False):
        out = self.dstore(texts, tag, pair)
        if hasattr(out[0], "cost"): out[0].cost = 3 + len(texts)
        return out
    def dstore(self, texts, tag, pair=False):
        self.lab = getattr(self, "lab", 0) + 1
        n = self.lab
        if self.opts.get("forcemode") == 1 or not self.opts.get("local", 1) or (self.opts.get("cfg", 0) == 0 and not pair):
            return [vm(t + " sc1", tag) for t in texts]
        body = f"s_bitcmp1_b32 s{S_MODE}, 0\n    s_cbranch_scc1 L_dl{n}\n"
        body += "".join(f"    {t} sc1\n" for t in texts)
        body += f"    s_branch L_dj{n}\nL_dl{n}:\n"
        body += "".join(f"    {t}\n" for t in texts)
        body += f"L_dj{n}:"
        out = [I("buffer_store_multi " + body, "vm", tag)]
        out[0].t = body
        out[0].cost = 3 + 5*len(texts)
        for _ in texts[1:]:
            x = I("; (counted above)", "vm", tag); x.cost = 0; out.append(x)
        return out
    def __init__(self, diag=False, opts=None):
        self.diag = diag; self.opts = opts or {}; self.nst = 0; self.names = []; self.pid = 0
    def stamp(self, name):
        if not self.diag: return []
        i = self.nst; self.nst += 1; self.names.append(name)
        return [o("s_memtime s[98:99]"), o("s_memrealtime s[100:101]"), o("s_waitcnt lgkmcnt(0)"),
                o(f"v_writelane_b32 v{V_STAMP}, s98, {i}"), o(f"v_writelane_b32 v{V_STAMP}, s100, {i+32}")]

    def paced(self, M, frags, setup, dist):
        N = len(M)
        sl = Slots(N)
        for g, m in enumerate(M):
            if m["op"] == 16: sl.budget[g] = 3
        head = []
        pid = self.pid; self.pid += 1
        def put(t, ins):
            if t < 0: head.extend(ins if isinstance(ins, list) else [ins])
            else: sl.put(t, ins)
        issue = {}
        for f, fr in enumerate(frags):
            t = fr["use"] - fr.get("dist", dist)
            issue[f] = t
            put(t, fr.get("pre", []))
            put(t, [ds(r, ("af", pid, f)) for r in fr["reads"]])
        waited = -1
        n0 = M[0]["need"]
        if n0 >= 0:
            tgt = max(n0, M[1]["need"])
            head.append(wlg(("af", pid, tgt))); waited = tgt
        for g in range(N - 1):
            nx = M[g+1]["need"]
            if nx > waited:
                tgt = nx
                if g + 2 < N and M[g+2]["need"] > nx and issue[M[g+2]["need"]] <= g - 3 and M[g+1]["op"] == 32: tgt = M[g+2]["need"]
                put(g, [wlg(("af", pid, tgt))]); waited = tgt
        setup(sl, head)
        L = list(head)
        for g, m in enumerate(M):
            L += m.get("before", [])
            c = "0" if m["first"] else m.get("C", m["acc"])
            if m.get("C") and m["first"]: c = m["C"]
            L.append((mf32 if m["op"] == 32 else mf16)(m["acc"], m["A"], m["B"], c))
            L += sl.emit(g)
        if self.opts.get("verbose"):
            over = [(g, sl.used[g], sl.budget[g]) for g in range(N) if sl.used[g] > sl.budget[g]]
            print(f"paced {pid}: N={N} over budget: {len(over)} total excess {sum(u-b for _,u,b in over)} avg used {sum(sl.used)/N:.2f}")
            if self.opts.get("verbose") > 1:
                for a in range(0, N, 36):
                    ex = sum(max(0, sl.used[g]-sl.budget[g]) for g in range(a, min(a+36, N)))
                    print(a, "used", sum(sl.used[a:a+36]), "budget", sum(sl.budget[a:a+36]), "excess", ex)
        return L

    def prologue(self):
        L = []
        if self.diag: L += [o(f"v_mov_b32 v{V_STAMP}, 0")]
        L += self.stamp("start")
        L += [o("s_load_dwordx16 s[16:31], s[0:1], 0"), o("s_load_dwordx8 s[32:39], s[0:1], 64"),
              o("s_cmp_ge_u32 s2, 256"), o("s_cbranch_scc1 L_end")]
        L += [o("v_lshrrev_b32 v2, 6, v0"), o("v_and_b32 v0, 63, v0"), o("s_nop 0"),
              o(f"v_readfirstlane_b32 s{S_W}, v2"),
              ] + self.idmap() + [
              o(f"s_mul_i32 s{S_LX}, s{S_W}, {SLOT}"), o(f"s_mul_i32 s{S_L9}, s{S_W}, 9216"),
              o(f"v_lshlrev_b32 v{V_L16}, 4, v0")]
        L += [o("v_lshrrev_b32 v2, 3, v0"), o("v_and_b32 v3, 7, v0"), o("v_lshrrev_b32 v4, 1, v2"),
              o("v_xor_b32 v3, v3, v4"), o("v_lshlrev_b32 v3, 4, v3"), o("v_xor_b32 v4, 64, v3"),
              o(f"s_lshl_b32 s{T0}, s{S_MT}, 6"), o(f"s_lshl_b32 s{T1}, s{S_W}, 4"), o(f"s_add_u32 s{T0}, s{T0}, s{T1}"),
              o(f"v_add_u32 v5, s{T0}, v2"), o("v_add_u32 v6, 8, v5"),
              o("v_sub_u32 v7, 2048, v5"), o("v_sub_u32 v8, 2048, v6"),
              o("v_cmp_eq_u32 vcc, 0, v5"), o("v_mov_b32 v9, 1024"), o("s_nop 0"),
              o("v_cndmask_b32 v7, v7, v9, vcc"),
              o(f"s_movk_i32 s{T1}, 1152"),
              o(f"v_mad_u32_u24 v240, v5, s{T1}, v3"), o(f"v_mad_u32_u24 v241, v6, s{T1}, v4"),
              o(f"v_mad_u32_u24 v242, v7, s{T1}, v3"), o(f"v_mad_u32_u24 v243, v8, s{T1}, v4")]
        if self.opts.get("xpf", 1):
            nsh = 16 if self.opts.get("cfg", 0) == 1 else 4
            per = 1152 // nsh // 4
            assert per <= 64 or True
            jj = f"s{S_J}"
            L += [o(f"s_and_b32 s{T0}, s{S_J}, {nsh-1}"), o(f"s_lshl_b32 s{T0}, s{T0}, 2"), o(f"s_add_u32 s{T0}, s{T0}, s{S_W}"), o(f"s_mul_i32 s{T0}, s{T0}, {per}"),
                  o(f"v_add_u32 v9, s{T0}, v0"),
                  o(f"s_mul_i32 s{T0}, s{S_MT}, {64*1152}"),
                  o(f"s_sub_u32 s{T1}, {(2048-63)*1152 - 576*128}, s{T0}"),
                  o("v_lshlrev_b32 v8, 7, v9"), o(f"v_add_u32 v7, s{T1}, v8"), o(f"v_add_u32 v8, s{T0}, v8"),
                  o("v_cmp_gt_u32 vcc, 0x240, v9"), o("s_nop 1"), o("v_cndmask_b32 v9, v7, v8, vcc"),
                  o(f"v_cmp_gt_u32 vcc, {min(per,64)}, v0"), o(f"v_mov_b32 v8, {OOB:#x}"), o("s_nop 0"), o("v_cndmask_b32 v9, v8, v9, vcc")]
        L += [o("s_waitcnt lgkmcnt(0)")]
        L += self.stamp("kernarg")
        L += srd(SR_X, 16, S*D*2)
        if self.opts.get("xpf", 1):
            L += [vm(f"buffer_load_dword v{V_PF}, v9, s[{SR_X}:{SR_X+3}], 0 offen", "pf")]
        for kap in range(9):
            for rho in range(4):
                L += [o(f"s_add_u32 m0, s{S_LX}, {(4*kap+rho)*1024 - 128*kap}"), o("s_nop 0") if rho == 0 else o("s_nop 0"),
                      vm(f"buffer_load_dwordx4 v{240+rho}, s[{SR_X}:{SR_X+3}], 0 offen offset:{128*kap} lds", ("x", kap))]
        L += srd(SR_WG, 28, D*F*2) + srd(SR_WU, 30, D*F*2) + srd(SR_WD, 32, F*D*2) + srd(SR_WS, 38, 256 << 20) + srd(SR_OUT, 34, S*D*2)
        L += srd(SR_CS, 18, S*S*2) + srd(SR_SS, 20, S*S*2)
        L += [o(f"s_lshl_b32 s{T0}, s{S_W}, 6"), o(f"v_add_u32 v2, s{T0}, v0"), o("v_cmp_eq_u32 vcc, 0, v2"),
              o(f"v_mov_b32 v3, {OOB:#x}"), o("v_mov_b32 v4, 0"), o(f"v_cndmask_b32 v{V_ONE0}, v3, v4, vcc")]
        L += [o(f"s_lshl_b32 s{S_LID}, s{S_MT}, 4"), o(f"s_add_u32 s{S_LID}, s{S_LID}, s{S_J}"),
              o(f"s_lshl_b32 s{T0}, s{S_LID}, 7"), o(f"s_add_u32 s{T0}, s{T0}, {WS_FLAG}"),
              vm(f"buffer_store_dword v4, v{V_ONE0}, s[{SR_WS}:{SR_WS+3}], s{T0} offen sc1", "flinit")]
        L += [o(f"s_getreg_b32 s{T0}, hwreg(HW_REG_XCC_ID, 0, 4)"), o(f"s_add_u32 s{T0}, s{T0}, 1"),
              o(f"s_and_b32 s{T1}, s{S_LID}, 7"), o(f"s_lshl_b32 s{T1}, s{T1}, 2"), o(f"s_lshl_b32 s{T0}, s{T0}, s{T1}"),
              o(f"s_lshr_b32 s{T1}, s{S_LID}, 3"), o(f"s_lshl_b32 s{T1}, s{T1}, 2")]
        L += srd(SR_HZ, 36, 256)
        L += [o(f"v_mov_b32 v2, s{T0}"), vm(f"buffer_atomic_or v2, v{V_ONE0}, s[{SR_HZ}:{SR_HZ+3}], s{T1} offen sc1", "xccpub")]
        L += [o(f"s_and_b32 s{T2}, s{S_J}, 1"), o(f"s_mul_i32 s{T0}, s{S_J}, 288"), o(f"s_mul_i32 s{T1}, s{T2}, 224"),
              o(f"s_add_u32 s{T1}, s{T0}, s{T1}"),
              o(f"s_cmp_eq_u32 s{T2}, 0"), o(f"s_cselect_b32 s{T3}, 64, -64"), o(f"s_cselect_b32 s{T4}, 256, 0"),
              o(f"s_add_u32 s{T4}, s{T4}, s{T0}")]
        for u in range(4):
            L += [o(f"s_mul_i32 s{T5}, s{T3}, {u}"), o(f"s_add_u32 s{T5}, s{T5}, s{T1}"),
                  o(f"s_lshl_b32 s{S_UB+u}, s{T5}, 1"),
                  o(f"s_mul_i32 s{S_N0+2*u}, s{T5}, 1152"), o(f"s_add_u32 s{S_N0+2*u+1}, s{S_N0+2*u}, {32*1152}")]
        L += [o(f"s_lshl_b32 s{S_UB+4}, s{T4}, 1"), o(f"s_mul_i32 s{S_N0+8}, s{T4}, 1152")]
        L += self.h_srd(S_J)
        if self.opts.get("pf", 1):
            L += [o(f"s_and_b32 s{T0}, s{S_MT}, 7"), o(f"s_mul_i32 s{T0}, s{T0}, 36"), o(f"s_mul_i32 s{T1}, s{S_W}, 9"), o(f"s_add_u32 s{T0}, s{T0}, s{T1}"),
                  o(f"v_add_u32 v2, s{T0}, v0"), o(f"v_mov_b32 v4, {OOB:#x}"),
                  o(f"s_mov_b32 s{T1}, {(2**32+8)//9}"), o(f"v_mul_hi_u32 v5, v2, s{T1}"), o("v_mul_u32_u24 v6, 9, v5"), o("v_sub_u32 v6, v2, v6"),
                  o(f"v_add_u32 v5, s{T7}, v5"), o(f"s_movk_i32 s{T1}, 1152"), o(f"v_mul_lo_u32 v5, v5, s{T1}"), o("v_lshlrev_b32 v6, 7, v6"), o("v_add_u32 v5, v5, v6"),
                  o(f"s_movk_i32 s{T1}, 9216"), o(f"v_mul_lo_u32 v3, v2, s{T1}"),
                  o("v_cmp_gt_u32 vcc, 9, v0"), o("s_nop 1"), o("v_cndmask_b32 v3, v4, v3, vcc"), o("v_cndmask_b32 v5, v4, v5, vcc"),
                  vm(f"buffer_load_dword v{V_PF}, v5, s[{SR_HZ}:{SR_HZ+3}], 0 offen", "pf")]
            L += [o(f"s_cmp_lt_u32 s{S_J}, 2"), o("s_cbranch_scc0 L_nopf2"),
                  o(f"s_sub_u32 s{T0}, {7*32*1152}, 0"), o(f"s_mul_i32 s{T1}, s{S_J}, {32*1152}"), o(f"s_add_u32 s{T0}, s{T0}, s{T1}"),
                  o(f"s_mul_i32 s{T1}, s{T7}, 1152"), o(f"s_sub_u32 s{T0}, s{T0}, s{T1}"),
                  o(f"v_add_u32 v6, s{T0}, v5"), o("v_cmp_gt_u32 vcc, 9, v0"), o("s_and_saveexec_b64 s[82:83], vcc"),
                  o(f"global_load_dword v{V_PF}, v6, s[24:25]"),
                  o("s_mov_b64 exec, s[82:83]"), raw("L_nopf2:")]
            for sig in range(self.opts.get("npf", 6)):
                u, mat, kh = sig // 4, (sig // 2) % 2, sig % 2
                rs = SR_WG if mat == 0 else SR_WU
                L += [o(f"s_add_u32 s{T6}, s{S_UB+u}, {kh*288*9216}"),
                      vm(f"buffer_load_dword v{V_PF}, v3, s[{rs}:{rs+3}], s{T6} offen", "pf")]
            L += [o("s_getpc_b64 s[82:83]"), raw("L_pc:"),
                  o(f"s_lshr_b32 s{T0}, s2, 3"), o(f"s_lshl_b32 s{T0}, s{T0}, 2"), o(f"s_add_u32 s{T0}, s{T0}, s{S_W}"),
                  o(f"s_lshl_b32 s{T0}, s{T0}, 9"),
                  o("v_and_b32 v2, 3, v0"), o("v_lshlrev_b32 v2, 7, v2"), o(f"v_add_u32 v2, s{T0}, v2"),
                  vm(f"global_load_dword v{V_PF}, v2, s[82:83]", "pf")]
        L += [o(f"s_mul_i32 s{T5}, s{S_W}, {72*9216}")]
        for u in range(4): L += [o(f"s_add_u32 s{S_UB+u}, s{S_UB+u}, s{T5}")]
        L += [o(f"s_lshl_b32 s{T5}, s{T5}, 1"), o(f"s_add_u32 s{S_UB+4}, s{S_UB+4}, s{T5}")]
        L += [o(f"s_lshr_b32 s{T0}, s{S_J}, 1"), o(f"s_mul_i32 s{S_PB}, s{T0}, {PART_BYTES}"),
              o(f"s_lshl_b32 s{T0}, s{S_MT}, 2"), o(f"s_add_u32 s{T0}, s{T0}, s{S_W}"),
              o(f"s_mul_i32 s{T0}, s{T0}, {18*2048}"), o(f"s_add_u32 s{S_PB}, s{S_PB}, s{T0}"),
              o(f"s_lshl_b32 s{T0}, s{S_LID}, 2"), o(f"s_add_u32 s{T0}, s{T0}, s{S_W}"),
              o(f"s_mul_i32 s{S_HB}, s{T0}, {18*1024}"), o(f"s_add_u32 s{S_HB}, s{S_HB}, {WS_HX}")]
        L += [o("v_lshrrev_b32 v2, 3, v0"), o("v_and_b32 v3, 7, v0"),
              o("v_bfe_u32 v4, v0, 4, 1"), o("v_lshlrev_b32 v4, 2, v4"), o("v_xor_b32 v3, v3, v4"), o("v_lshlrev_b32 v3, 4, v3"),
              o(f"s_movk_i32 s{T5}, 9216"), o(f"v_mad_u32_u24 v{V_DM}, v2, s{T5}, v3")]
        for t in range(1, 4): L += [o(f"v_add_u32 v{V_DM+t}, {t*(8*9216-1024)}, v{V_DM}")]
        L += [o("v_and_b32 v2, 31, v0"), o("v_bfe_u32 v3, v0, 1, 3"), o("v_lshrrev_b32 v4, 5, v0"), o("v_xor_b32 v3, v3, v4"),
              o("v_lshlrev_b32 v3, 4, v3"), o("v_lshlrev_b32 v2, 7, v2"), o("v_add_u32 v2, v2, v3"),
              o(f"v_add_u32 v{V_XA}, s{S_LX}, v2"),
              o(f"v_xor_b32 v{V_XA+1}, 32, v{V_XA}"), o(f"v_xor_b32 v{V_XA+2}, 64, v{V_XA}"), o(f"v_xor_b32 v{V_XA+3}, 96, v{V_XA}")]
        L += [o("v_and_b32 v2, 15, v0"),
              o("v_and_b32 v3, 3, v2"), o("v_bfe_u32 v4, v2, 2, 1"), o("v_bfe_u32 v5, v2, 3, 1"),
              o("v_lshlrev_b32 v4, 3, v4"), o("v_lshlrev_b32 v5, 2, v5"), o("v_or_b32 v3, v3, v4"), o("v_or_b32 v3, v3, v5"),
              o("v_lshrrev_b32 v4, 3, v3"),
              o("v_lshrrev_b32 v5, 5, v0"),
              o("v_cmp_eq_u32 vcc, v4, v5"),
              o("v_and_b32 v6, 1, v3"), o("v_lshlrev_b32 v6, 4, v6"), o("v_mov_b32 v7, 0x3f80"), o("v_lshlrev_b32 v7, v6, v7"),
              o("v_mov_b32 v8, 0"), o("v_cndmask_b32 v7, v8, v7, vcc"),
              o("v_bfe_u32 v6, v3, 1, 2"),
              o("v_bfe_u32 v9, v0, 4, 1")]
        for d in range(4):
            L += [o(f"v_cmp_eq_u32 vcc, {d}, v6"), o("s_nop 1"), o(f"v_cndmask_b32 v{V_PERM+d}, v8, v7, vcc")]
        L += [o("v_cmp_eq_u32 vcc, 1, v9"), o("s_nop 1")]
        for d in range(4):
            L += [o(f"v_cndmask_b32 v{V_PERM+4+d}, v8, v{V_PERM+d}, vcc")]
        for d in range(4):
            L += [o(f"v_cndmask_b32 v{V_PERM+d}, v{V_PERM+d}, v8, vcc")]
        return L

    def tr_bases(self):
        L = []
        L += [o("v_lshrrev_b32 v16, 5, v0"), o("v_lshlrev_b32 v16, 10, v16"),
              o("v_bfe_u32 v17, v0, 2, 2"), o("v_lshlrev_b32 v17, 7, v17"), o("v_add_u32 v16, v16, v17"),
              o("v_bfe_u32 v17, v0, 3, 1"), o("v_lshlrev_b32 v17, 6, v17"), o("v_add_u32 v16, v16, v17"),
              o("v_bfe_u32 v17, v0, 4, 1"), o("v_lshlrev_b32 v17, 5, v17"), o("v_add_u32 v16, v16, v17"),
              o("v_and_b32 v17, 3, v0"), o("v_lshlrev_b32 v17, 3, v17"), o(f"v_add_u32 v{V_RA}, v16, v17")]
        for s in range(1, 4): L += [o(f"v_add_u32 v{V_RA+s}, {s*SLOT}, v{V_RA}")]
        for s in range(4): L += [o(f"v_xor_b32 v{V_RB+s}, 64, v{V_RA+s}")]
        return L

    def idmap(self):
        cfg = self.opts.get("cfg", 0)
        if cfg == 0:
            return [o(f"s_and_b32 s{S_J}, s2, 3"), o(f"s_lshl_b32 s{S_J}, s{S_J}, 2"),
              o(f"s_bfe_u32 s{T0}, s2, 0x20003"), o(f"s_or_b32 s{S_J}, s{S_J}, s{T0}"),
              o(f"s_bfe_u32 s{S_MT}, s2, 0x10002"), o(f"s_lshl_b32 s{S_MT}, s{S_MT}, 3"),
              o(f"s_lshr_b32 s{T0}, s2, 5"), o(f"s_or_b32 s{S_MT}, s{S_MT}, s{T0}")]
        if cfg == 1:
            return [o(f"s_and_b32 s{S_MT}, s2, 7"), o(f"s_lshl_b32 s{S_MT}, s{S_MT}, 1"), o(f"s_bfe_u32 s{T0}, s2, 0x10003"),
                    o(f"s_or_b32 s{S_MT}, s{S_MT}, s{T0}"), o(f"s_lshr_b32 s{S_J}, s2, 4")]
        if cfg == 2:
            return [o(f"s_and_b32 s{S_J}, s2, 1"), o(f"s_lshl_b32 s{S_J}, s{S_J}, 3"),
              o(f"s_bfe_u32 s{T0}, s2, 0x30003"), o(f"s_or_b32 s{S_J}, s{S_J}, s{T0}"),
              o(f"s_bfe_u32 s{S_MT}, s2, 0x20001"), o(f"s_lshl_b32 s{S_MT}, s{S_MT}, 2"),
              o(f"s_lshr_b32 s{T0}, s2, 6"), o(f"s_or_b32 s{S_MT}, s{S_MT}, s{T0}")]

    def h_srd(self, zreg):
        return [o(f"s_cmp_lt_u32 s{zreg}, 9"),
                o(f"s_cselect_b32 s{SR_HZ}, s22, s24"), o(f"s_cselect_b32 s{SR_HZ+1}, s23, s25"), o(f"s_cselect_b32 s{T7}, 0, 9"),
                o(f"s_and_b32 s{SR_HZ+1}, s{SR_HZ+1}, 0xffff"), o(f"s_mov_b32 s{SR_HZ+2}, {D*D*2}"), o(f"s_mov_b32 s{SR_HZ+3}, 0x00020000"),
                o(f"s_sub_u32 s{T7}, s{zreg}, s{T7}"), o(f"s_lshl_b32 s{T7}, s{T7}, 5")]

    def h_dma(self, zreg, slot, tag):
        L = self.h_srd(zreg)
        L += [o(f"s_lshl_b32 s{T1}, s{S_W}, 3"), o(f"s_add_u32 s{T0}, s{T7}, s{T1}"),
             o("v_lshrrev_b32 v240, 3, v0"), o("v_and_b32 v241, 7, v0"), o("v_lshrrev_b32 v242, 1, v240"), o("v_xor_b32 v241, v241, v242"),
             o(f"s_and_b32 s{T1}, s{S_W}, 1"), o(f"s_lshl_b32 s{T1}, s{T1}, 2"), o(f"v_xor_b32 v241, s{T1}, v241"),
             o("v_lshlrev_b32 v241, 4, v241"),
             o(f"v_add_u32 v240, s{T0}, v240"), o(f"s_movk_i32 s{T1}, 1152"), o(f"v_mad_u32_u24 v240, v240, s{T1}, v241"),
             o(f"s_lshl_b32 s{T1}, s{S_W}, 10"), o(f"s_add_u32 s{T1}, s{T1}, {slot*SLOT}")]
        for kap in range(9):
            L += [o(f"s_add_u32 m0, s{T1}, {4*kap*1024 - 128*kap}"), o("s_nop 0"),
                  vm(f"buffer_load_dwordx4 v240, s[{SR_HZ}:{SR_HZ+3}], 0 offen offset:{128*kap} lds", tag)]
        return L

    def h_special(self, zreg, slot, sfx):
        return [o(f"s_cmp_eq_u32 s{zreg}, 9"), o(f"s_cbranch_scc0 L_h_nosp{sfx}"), o(f"s_cmp_eq_u32 s{S_W}, 0"), o(f"s_cbranch_scc0 L_h_nosp{sfx}"),
                o("v_mov_b32 v16, 0xbf803f80"), o("v_mov_b32 v17, v16"), o("v_mov_b32 v18, v16"), o("v_mov_b32 v19, v16"),
                o("v_lshrrev_b32 v240, 3, v0"), o("v_lshlrev_b32 v240, 12, v240"), o("v_and_b32 v241, 7, v0"), o("v_lshlrev_b32 v241, 4, v241"),
                o("v_add_u32 v240, v240, v241"), o(f"v_add_u32 v240, {slot*SLOT}, v240"), o(f"v_add_u32 v241, {slot*SLOT}, v241"),
                o("ds_write_b128 v240, v[16:19]"), o("ds_write_b128 v241, v[16:19] offset:32768"),
                o("s_waitcnt lgkmcnt(0)"), raw(f"L_h_nosp{sfx}:")]

    def ln_stats(self):
        L = []
        SA = 16
        for i in range(8): L += [o(f"v_mov_b32 v{SA+i}, 0")]
        L += [o(f"s_mov_b32 s{T5}, 0x3f803f80")]
        def reads(kap):
            return [wvm(("x", kap))] + [ds(f"ds_read_b128 v[{RX+4*ks}:{RX+4*ks+3}], v{V_XA+(ks&3)} offset:{(ks//4)*4096}", ("xr", ks)) for ks in range(4*kap, 4*kap+4)]
        L += reads(0)
        for kap in range(9):
            if kap + 1 < 9: L += reads(kap + 1)
            for ks in range(4*kap, 4*kap + 4):
                L += [wlg(("xr", ks))]
                for i in range(4):
                    r = RX + 4*ks + i
                    L += [o(f"v_dot2_f32_bf16 v{SA+i}, v{r}, s{T5}, v{SA+i}"),
                          o(f"v_dot2_f32_bf16 v{SA+4+i}, v{r}, v{r}, v{SA+4+i}")]
        return L

    def ln_finish(self):
        SA = 16
        L = [o("s_nop 2"),
             o(f"v_add_f32 v{SA}, v{SA}, v{SA+1}"), o(f"v_add_f32 v{SA+2}, v{SA+2}, v{SA+3}"),
             o(f"v_add_f32 v{SA+4}, v{SA+4}, v{SA+5}"), o(f"v_add_f32 v{SA+6}, v{SA+6}, v{SA+7}"),
             o(f"v_add_f32 v24, v{SA}, v{SA+2}"), o(f"v_add_f32 v26, v{SA+4}, v{SA+6}"),
             o("v_mov_b32 v25, v24"), o("v_mov_b32 v27, v26"), o("s_nop 1"),
             o("v_permlane32_swap_b32 v24, v25"), o("v_permlane32_swap_b32 v26, v27"), o("s_nop 1"),
             o("v_add_f32 v24, v24, v25"), o("v_add_f32 v26, v26, v27"),
             o(f"s_mov_b32 s{T5}, {f2u(1.0/576):#x}"),
             o(f"v_mul_f32 v24, s{T5}, v24"), o(f"v_mul_f32 v26, s{T5}, v26"),
             o("v_fma_f32 v26, -v24, v24, v26"), o("v_max_f32 v26, 0, v26"),
             o("v_cvt_pk_bf16_f32 v24, v24, v26"),
             o("v_and_b32 v26, 0xffff0000, v24"), o("v_lshlrev_b32 v24, 16, v24"),
             o(f"v_xor_b32 v{V_NEGMU}, 0x80000000, v24")]
        for i in range(1, 16): L += [o(f"v_mov_b32 v{V_NEGMU+i}, v{V_NEGMU}")]
        L += [o(f"v_add_f32 v26, {f2u(1e-5):#x}, v26"),
              o("v_cvt_pk_bf16_f32 v26, v26, v26"), o("v_lshlrev_b32 v26, 16, v26"),
              o("v_sqrt_f32 v26, v26"), o("s_nop 0"),
              o("v_cvt_pk_bf16_f32 v26, v26, v26"), o("v_lshlrev_b32 v26, 16, v26"),
              o("v_rcp_f32 v27, v26"), o(f"v_mul_f32 v{V_D2}, v26, v26"),
              o(f"v_mul_f32 v{V_C0}, {f2u(C0):#x}, v27"), o("v_mul_f32 v28, v27, v27"), o("v_mul_f32 v28, v28, v27"),
              o(f"v_mul_f32 v{V_C1}, {f2u(C1):#x}, v28"),
              o("v_and_b32 v28, 31, v0"), o("v_lshlrev_b32 v28, 2, v28"), o(f"s_lshl_b32 s{T0}, s{S_W}, 12"), o(f"s_add_u32 s{T0}, s{T0}, {SPARE}"),
              o(f"v_add_u32 v28, s{T0}, v28"), ds("ds_write_b32 v28, v27", "rtab")]
        return L

    def seg_norm_h(self):
        M = []; frags = []
        def UBf(i):
            if i == 0: return 16
            if i % 2 == 0: return RX + 8*(i - 2)
            return (32, 48, 16)[((i - 1)//2) % 3]
        def nextuser(i):
            for k in range(i + 1, 18):
                if UBf(k) == UBf(i): return k
            return None
        posU = {}; posH = {}
        def U(i):
            b = UBf(i)
            M.append(dict(op=32, acc=f"v[{b}:{b+15}]", first=True, C=f"v[{V_NEGMU}:{V_NEGMU+15}]", A=f"v[{V_PERM}:{V_PERM+3}]", B=f"v[{RX+8*i}:{RX+8*i+3}]", need=-1))
            M.append(dict(op=32, acc=f"v[{b}:{b+15}]", first=False, A=f"v[{V_PERM+4}:{V_PERM+7}]", B=f"v[{RX+8*i+4}:{RX+8*i+7}]", need=-1))
            posU[i] = len(M) - 2
        def H(ks):
            f = len(frags); a = AF + 4*(f % NAF)
            frags.append(dict(reads=[f"ds_read_b128 a[{a}:{a+3}], v{V_XA+(ks&3)} offset:{(ks//4)*4096}"], use=len(M)))
            M.append(dict(op=32, acc=f"v[{V_HACC}:{V_HACC+15}]", first=(ks == 0), A=f"a[{AX+4*ks}:{AX+4*ks+3}]", B=f"a[{a}:{a+3}]", need=f))
            posH[ks] = len(M) - 1
        LAG = 5
        for i in range(18):
            U(i)
            if i >= LAG: H(2*(i-LAG)); H(2*(i-LAG)+1)
        for i in range(18 - LAG, 18): H(2*i); H(2*i+1)
        last = -1
        for m in M:
            if m["need"] < 0: m["need"] = last
            else: last = m["need"]
        def setup(sl, head):
            sl.put(2, [o('s_nop 4')]); sl.put(3, [o('s_nop 4')])
            for i in range(18):
                b = UBf(i)
                ins = []
                for q in range(8):
                    t = 2 + 2*(i % 4) + (q % 2)
                    ins += [o(f"v_cvt_pk_bf16_f32 v{t}, v{b+2*q}, v{b+2*q+1}"), o(f"v_accvgpr_write_b32 a{AX+8*i+q}, v{t}")]
                start = posU[i] + 1 + 3
                end = min(posH[2*i] - 1, start + 11)
                if nextuser(i) is not None: end = min(end, posU[nextuser(i)])
                e = sl.stream(ins, start, end, spill=0)
                assert e < posH[2*i] - 0, (i, e, posH[2*i])
        return self.paced(M, frags, setup, 6)

    def h_epilogue(self, zreg, acc, rr, tb):
        L = []
        sg, f0 = tb + 8, tb + 9
        L += [G([o(f"s_cmp_lt_u32 s{zreg}, 9"), o(f"s_cselect_b32 s{S_ST0}, 1.0, -1.0")]), o(f"v_mov_b32 v{sg}, s{S_ST0}"),
              G([o(f"s_cmp_eq_u32 s{zreg}, 9"), o(f"s_cselect_b32 s{S_ST0}, 0, 99")]),
              G([o(f"v_and_b32 v{f0}, 31, v0"), o(f"v_cmp_eq_u32 vcc, s{S_ST0}, v{f0}"), o(f"v_mov_b32 v{tb+10}, 1.0"), o("v_nop"),
                 o(f"v_cndmask_b32 v{sg}, v{sg}, v{tb+10}, vcc")]),
              G([o(f"s_or_b32 s{S_ST0}, s{S_MT}, s{S_W}"), o(f"s_cmp_eq_u32 s{S_ST0}, 0"), o(f"s_cselect_b32 s{S_ST0}, 32, 0")]),
              G([o(f"v_cmp_gt_u32 vcc, s{S_ST0}, v0"), o(f"v_mov_b32 v{tb+10}, 0"), o("v_nop"),
                 o(f"v_cndmask_b32 v{f0}, v{sg}, v{tb+10}, vcc")])]
        L += [o(f"v_mul_f32 v{tb+11}, v{acc+8}, v{rr+8}")]
        for r in range(8):
            L += [o(f"v_mul_f32 v{rr+8+r}, v{rr+8+r}, v{f0 if r == 0 else sg}"),
                  o(f"v_mul_f32 v{tb+r}, v{acc+r}, v{rr+r}"),
                  o(f"v_fma_f32 v{tb+r}, v{acc+8+r}, v{rr+8+r}, v{tb+r}")]
        for i in range(4):
            L += [o(f"v_cvt_pk_bf16_f32 v{tb+12+i}, v{tb+2*i}, v{tb+2*i+1}")]
        L += [G([o("v_nop"), o("v_nop"), o(f"v_permlane32_swap_b32 v{tb+12}, v{tb+14}"), o(f"v_permlane32_swap_b32 v{tb+13}, v{tb+15}")]),
              G([o(f"s_mul_i32 s{S_ST0}, s{zreg}, {ZF_STRIDE}"), o(f"s_lshl_b32 s{S_ST1}, s{S_MT}, 2"), o(f"s_add_u32 s{S_ST1}, s{S_ST1}, s{S_W}")]),
              G([o(f"s_lshl_b32 s{S_ST1}, s{S_ST1}, 10"), o(f"s_add_u32 s{S_ST1}, s{S_ST1}, s{S_ST0}"), o(f"s_add_u32 s{S_ST1}, s{S_ST1}, {WS_ZF}")]),
              vm(f"buffer_store_dwordx4 v[{tb+12}:{tb+15}], v{V_L16}, s[{SR_WS}:{SR_WS+3}], s{S_ST1} offen sc1", "zst"),
              o(f"v_mov_b32 v{tb+1}, 0"), o(f"v_mov_b32 v{tb+2}, 0"), o(f"v_mov_b32 v{tb+3}, 0"),
              o(f"v_cvt_pk_bf16_f32 v{tb}, v{tb+11}, v{tb+1}"),
              G([o("v_cmp_gt_u32 vcc, 32, v0"), o("v_nop"), o("v_nop"), o(f"v_cndmask_b32 v{tb}, v{tb+1}, v{tb}, vcc")]),
              G([o(f"s_or_b32 s{S_ST1}, s{S_MT}, s{S_W}"), o(f"s_cmp_le_u32 s{zreg}, 9"), o(f"s_cselect_b32 s{S_C}, 0, 1")]),
              G([o(f"s_or_b32 s{S_ST1}, s{S_ST1}, s{S_C}"), o(f"s_cmp_eq_u32 s{S_ST1}, 0"), o(f"s_cselect_b32 s{S_C}, 0, {OOB:#x}")]),
              o(f"v_add_u32 v{tb+4}, s{S_C}, v{V_L16}"),
              o(f"s_add_u32 s{S_ST0}, s{S_ST0}, {WS_ZF + 64*1024}"),
              vm(f"buffer_store_dwordx4 v[{tb}:{tb+3}], v{tb+4}, s[{SR_WS}:{SR_WS+3}], s{S_ST0} offen sc1", "zst"),
              G([o(f"v_mov_b32 v{tb+12}, 0"), o(f"v_mov_b32 v{tb+13}, 0"), o(f"v_mov_b32 v{tb+14}, 0"), o(f"v_mov_b32 v{tb+15}, 0")]),
              vm(f"buffer_store_dwordx4 v[{tb+12}:{tb+15}], v{tb+4}, s[{SR_WS}:{SR_WS+3}], s{S_ST0} offen offset:1024 sc1", "zst")]
        return L

    def rr_reads(self, rr, tmp, n=1):
        return [o(f"v_lshrrev_b32 v{tmp}, 5, v0"), o(f"v_lshlrev_b32 v{tmp}, 4, v{tmp}"), o(f"s_lshl_b32 s{S_C}, s{S_W}, 12"),
                o(f"s_add_u32 s{S_C}, s{S_C}, {SPARE}"), o(f"v_add_u32 v{tmp}, s{S_C}, v{tmp}")] + \
               [ds(f"ds_read_b128 v[{rr+4*q}:{rr+4*q+3}], v{tmp} offset:{32*q}", ("rr", n)) for q in range(4)] + [wlg(("rr", n))]

    def h2_block(self):
        L = [o(f"s_cmp_lt_u32 s{S_J}, 2"), o("s_cbranch_scc0 L_noz2b")]
        B = [o(f"v_add_u32 v{64+i}, {SLOT}, v{V_XA+i}") for i in range(4)]
        def rd(ks):
            a_ = AF + 4*(ks % NAF)
            return o(f"ds_read_b128 a[{a_}:{a_+3}], v{64+(ks&3)} offset:{(ks//4)*4096}")
        for ks in range(6): B += [rd(ks)]
        for k in range(36):
            a_ = AF + 4*(k % NAF)
            n_out = min(5, 35 - k)
            B += [o(f"s_waitcnt lgkmcnt({n_out})"), mf32("v[128:143]", f"a[{AX+4*k}:{AX+4*k+3}]", f"a[{a_}:{a_+3}]", "0" if k == 0 else "v[128:143]")]
            if k + 6 < 36: B += [rd(k + 6)]
        B += [raw("L_noz2b:"),
              o(f"s_cmp_lt_u32 s{S_J}, 2"), o(f"s_cselect_b32 s{S_B}, s{S_B}, 0x4000")]
        return L + B

    def dma_p1(self, sig, slot, tA=226, tB=227):
        groups = []
        if sig < 16:
            u, mat, kh = sig // 4, (sig // 2) % 2, sig % 2
            rs = SR_WG if mat == 0 else SR_WU
            for grp, ts in enumerate([[0,1,2,3],[0,1,2,3],[0]]):
                g = [o(f"s_add_u32 m0, s{S_L9}, {slot*SLOT + grp*4096}"),
                     o(f"s_add_u32 s{S_D0}, s{S_UB+u}, {(kh*288 + grp*32)*9216}")]
                for t in ts:
                    groups.append(g + [vm(f"buffer_load_dwordx4 v{V_DM+t}, s[{rs}:{rs+3}], s{S_D0} offen offset:{t*1024} lds", ("st", sig))])
                    g = []
        else:
            rs = SR_WG if sig == 16 else SR_WU
            for grp, ts in enumerate([[0,1,2,3],[0,1,2,3],[0]]):
                g = []
                if sig == 16 and grp == 0:
                    groups.append([o(f"v_lshrrev_b32 v{tA}, 2, v0"), o(f"v_and_b32 v{tB}, 3, v0"), o(f"v_lshlrev_b32 v{tB}, 4, v{tB}")])
                    groups.append([o(f"v_mul_u32_u24 v{tA}, 9216, v{tA}"), o(f"v_add_u32 v{V_DM}, v{tA}, v{tB}")] +
                                  [o(f"v_add_u32 v{V_DM+t}, {t*(16*9216-1024)}, v{V_DM}") for t in range(1, 4)])
                g += [o(f"s_add_u32 m0, s{S_L9}, {slot*SLOT + grp*4096}"),
                      o(f"s_add_u32 s{S_D0}, s{S_UB+4}, {grp*64*9216}")]
                for t in ts:
                    groups.append(g + [vm(f"buffer_load_dwordx4 v{V_DM+t}, s[{rs}:{rs+3}], s{S_D0} offen offset:{t*1024} lds", ("st", sig))])
                    g = []
        return groups

    def dma_cs(self, mat, piece, slot, tag, nop=False):
        rs = SR_CS if mat == 0 else SR_SS
        groups = []
        for l in range(2):
            line = 2*piece + l
            for rho in range(4):
                groups.append([o(f"s_add_u32 m0, s{S_A}, {slot*SLOT + (4*l+rho)*1024 - 128*line}")] + ([o("s_nop 0")] if nop else []) + [
                               vm(f"buffer_load_dwordx4 v{V_SD+rho}, s[{rs}:{rs+3}], 0 offen offset:{128*line} lds", tag)])
        return groups
    def dma_cx(self, tag):
        groups = []
        for rho in range(4):
            groups.append([o(f"s_add_u32 m0, s{S_B}, {SPARE + rho*1024 - 512}"),
                           vm(f"buffer_load_dwordx4 v{V_SD+rho}, s[{SR_CS}:{SR_CS+3}], 0 offen offset:512 lds", tag)])
        return groups

    def dma_p2(self, st, slot, first128, tA, tB, tC):
        u, who = st
        groups = []
        if u < 4:
            tbl = S_N0 if who == "own" else S_N1
            if first128:
                groups.append([o(f"v_lshrrev_b32 v{tA}, 3, v0"), o(f"v_and_b32 v{tB}, 7, v0"), o(f"v_bfe_u32 v{tC}, v0, 4, 1")])
                groups.append([o(f"v_lshlrev_b32 v{tC}, 2, v{tC}"), o(f"v_xor_b32 v{tB}, v{tB}, v{tC}"), o(f"v_lshlrev_b32 v{tB}, 4, v{tB}")])
                groups.append([o(f"s_mul_i32 s{S_WD}, s{S_W}, {8*1152}")])
                groups.append([o(f"v_mul_u32_u24 v{tA}, 1152, v{tA}"), o(f"v_add_u32 v{V_DM}, v{tA}, v{tB}"), o(f"v_add_u32 v{V_DM}, s{S_WD}, v{V_DM}")])
                groups.append([o(f"s_lshl_b32 s{S_WD}, s{S_W}, 10")])
            for ip in range(9):
                groups.append([o(f"s_add_u32 m0, s{S_WD}, {slot*SLOT + ip*4096}"),
                               o(f"s_add_u32 s{S_D0}, s{tbl+ip}, s{S_CU+u}"),
                               vm(f"buffer_load_dwordx4 v{V_DM}, s[{SR_WD}:{SR_WD+3}], s{S_D0} offen lds", ("s2", st))])
        else:
            groups.append([o(f"v_lshrrev_b32 v{tA}, 2, v0"), o(f"v_and_b32 v{tB}, 3, v0"), o(f"v_lshlrev_b32 v{tB}, 4, v{tB}")])
            groups.append([o(f"v_mul_u32_u24 v{tA}, 1152, v{tA}"), o(f"v_add_u32 v{V_DM+1}, v{tA}, v{tB}")])
            for ip in range(9):
                ca, cb = 2*ip, 2*ip + 1
                ra = (S_N0 + ca) if ca < 9 else (S_N1 + ca - 9)
                rb = (S_N0 + cb) if cb < 9 else (S_N1 + cb - 9)
                groups.append([o(f"s_cmp_lt_u32 s{S_W}, 2"), o(f"s_cselect_b32 s{S_D0}, s{ra}, s{rb}"),
                               o(f"s_add_u32 s{S_D0}, s{S_D0}, s{S_CU+4}"), o(f"s_add_u32 s{S_D0}, s{S_D0}, s{S_C}"),
                               o(f"s_add_u32 m0, s{S_WD}, {slot*SLOT + ip*4096}")])
                groups.append([vm(f"buffer_load_dwordx4 v{V_DM+1}, s[{SR_WD}:{SR_WD+3}], s{S_D0} offen lds", ("s2", st))])
        return groups

    def geglu(self, c, toff=0):
        if c < 8: g, u = GA[(c//2) % 2][c % 2], UA[(c//2) % 2][c % 2]
        else: g, u = GA[0][0], UA[0][0]
        L = []
        for p in range(8):
            r0, r1 = 2*p, 2*p + 1
            b = TMP + 4*(p % 2) + toff
            xa, xb, ya, yb = b, b+1, b+2, b+3
            L += [o(f"v_mul_f32 v{xa}, v{g+r0}, v{g+r0}"), o(f"v_mul_f32 v{xb}, v{g+r1}, v{g+r1}"),
                  o(f"v_fma_f32 v{xa}, v{xa}, v{V_C1}, v{V_C0}"), o(f"v_fma_f32 v{xb}, v{xb}, v{V_C1}, v{V_C0}"),
                  o(f"v_mul_f32 v{xa}, v{g+r0}, v{xa}"), o(f"v_mul_f32 v{xb}, v{g+r1}, v{xb}"),
                  o(f"v_exp_f32 v{xa}, v{xa}"), o(f"v_exp_f32 v{xb}, v{xb}"),
                  o(f"v_mul_f32 v{ya}, v{g+r0}, v{u+r0}"), o(f"v_mul_f32 v{yb}, v{g+r1}, v{u+r1}"),
                  o(f"v_fma_f32 v{xa}, v{xa}, v{V_D2}, v{V_D2}"), o(f"v_fma_f32 v{xb}, v{xb}, v{V_D2}, v{V_D2}"),
                  o(f"v_rcp_f32 v{xa}, v{xa}"), o(f"v_rcp_f32 v{xb}, v{xb}"),
                  o(f"v_mul_f32 v{ya}, v{ya}, v{xa}"), o(f"v_mul_f32 v{yb}, v{yb}, v{xb}"),
                  o(f"v_cvt_pk_bf16_f32 v{HF + 8*c + p}, v{ya}, v{yb}")]
        return L
    def hstore(self, c):
        st = S_ST0 + (c % 2)
        return [o(f"s_add_u32 s{st}, s{S_HB}, {2*c*1024}")] + self.dstore(
                [f"buffer_store_dwordx4 v[{HF+8*c}:{HF+8*c+3}], v{V_L16}, s[{SR_WS}:{SR_WS+3}], s{st} offen",
                 f"buffer_store_dwordx4 v[{HF+8*c+4}:{HF+8*c+7}], v{V_L16}, s[{SR_WS}:{SR_WS+3}], s{st} offen offset:1024"], "hst", True)

    def s_setup(self):
        a, b, c, d = V_SX, V_YC[0], V_YC[1], V_YC[2]
        L = []
        L += [G([o(f"s_lshr_b32 s{S_TAU}, s{S_J}, 3"), o(f"s_lshl_b32 s{S_A}, s{S_MT}, 1"), o(f"s_add_u32 s{S_TAU}, s{S_TAU}, s{S_A}")]),
              G([o(f"s_lshl_b32 s{S_A}, s{S_W}, 13"), o(f"s_lshl_b32 s{S_B}, s{S_W}, 12"),
                 o(f"s_lshl_b32 s{S_ZB}, s{S_W}, 14")]), o(f"s_add_u32 s{S_ZB}, s{S_ZB}, {WS_ZF}")]
        L += [o(f"v_lshrrev_b32 v{a}, 3, v0"), o(f"v_and_b32 v{b}, 7, v0"), o(f"v_lshrrev_b32 v{c}, 1, v{a}"), o(f"v_xor_b32 v{b}, v{b}, v{c}"),
              o(f"v_lshlrev_b32 v{b}, 4, v{b}"), o(f"v_xor_b32 v{c}, 64, v{b}"),
              o(f"s_lshl_b32 s{S_C}, s{S_TAU}, 5"), o(f"v_add_u32 v{a}, s{S_C}, v{a}"), o(f"v_lshlrev_b32 v{a}, 12, v{a}"),
              o(f"s_lshl_b32 s{S_C}, s{S_W}, 9"), o(f"v_add_u32 v{a}, s{S_C}, v{a}"),
              o(f"v_add_u32 v{V_SD}, v{a}, v{b}"), o(f"v_add_u32 v{V_SD+1}, v{a}, v{c}"), o(f"v_add_u32 v{V_SD+1}, 32768, v{V_SD+1}"),
              o(f"v_add_u32 v{V_SD+2}, 65536, v{V_SD}"), o(f"v_add_u32 v{V_SD+3}, 65536, v{V_SD+1}")]
        return L
    def s_setup2(self):
        a, b, c, d = V_SX, V_YC[0], V_YC[1], V_YC[2]
        L = []
        L += [o(f"v_and_b32 v{a}, 15, v0"), o(f"v_lshrrev_b32 v{b}, 4, v0"), o(f"v_bfe_u32 v{c}, v0, 1, 3"), o(f"v_xor_b32 v{c}, v{c}, v{b}"),
              o(f"v_lshlrev_b32 v{c}, 4, v{c}"), o(f"v_lshlrev_b32 v{a}, 7, v{a}"), o(f"v_add_u32 v{a}, v{a}, v{c}"),
              o(f"v_add_u32 v{V_SA}, s{S_A}, v{a}"), o(f"v_xor_b32 v{V_SA+1}, 64, v{V_SA}"),
              o(f"v_add_u32 v{V_SA+2}, {2*SLOT}, v{V_SA}"), o(f"v_add_u32 v{V_SA+3}, {2*SLOT}, v{V_SA+1}"),
              o(f"v_add_u32 v{a}, s{S_B}, v{a}"), o(f"v_add_u32 v{V_SX}, {SPARE}, v{a}")]
        return L
    def s_setup3(self, t0, t1, t2, t3):
        L = []
        L += [o(f"v_and_b32 v{t0}, 15, v0"), o(f"v_lshrrev_b32 v{t1}, 4, v0"),
              o(f"v_and_b32 v{t2}, 1, v{t1}"), o(f"v_lshlrev_b32 v{t2}, 9, v{t2}"),
              o(f"v_lshrrev_b32 v{t1}, 1, v{t1}"), o(f"v_lshlrev_b32 v{t1}, 10, v{t1}"), o(f"v_add_u32 v{t2}, v{t2}, v{t1}"),
              G([o(f"s_and_b32 s{S_C}, s{S_J}, 7"), o(f"s_mul_i32 s{S_C}, s{S_C}, 36")]),
              o(f"v_add_u32 v{t0}, s{S_C}, v{t0}")]
        for ss in range(3):
            pa, qa, yc = V_ZP + ss, V_ZQ + ss, V_YC[ss]
            L += [o(f"v_lshrrev_b32 v{t1}, 5, v{t0}"), o(f"v_mul_u32_u24 v{t1}, {ZF_STRIDE}, v{t1}"),
                  o(f"v_and_b32 v{t3}, 31, v{t0}"), o(f"v_lshlrev_b32 v{t3}, 4, v{t3}"), o(f"v_add_u32 v{t1}, v{t1}, v{t3}"),
                  o(f"v_add_u32 v{t1}, v{t1}, v{t2}"),
                  o(f"v_subrev_u32 v{t3}, s{S_C}, v{t0}"),
                  o(f"v_lshlrev_b32 v{yc}, 2, v{t0}"), o(f"v_mov_b32 v{qa}, {OOB:#x}"), o(f"v_mov_b32 v{pa}, {OOB:#x}"),
                  G([o(f"v_cmp_gt_u32 vcc, 36, v{t3}"), o("v_nop"), o("v_nop"), o(f"v_cndmask_b32 v{pa}, v{pa}, v{t1}, vcc")]),
                  o(f"v_add_u32 v{t3}, {9*ZF_STRIDE}, v{t1}"),
                  G([o(f"v_cndmask_b32 v{qa}, v{qa}, v{t3}, vcc")]),
                  G([o(f"v_cmp_eq_u32 vcc, 0x120, v{t0}"), o("v_nop"), o("v_nop"), o(f"v_cndmask_b32 v{pa}, v{pa}, v{t1}, vcc")]),
                  G([o(f"v_mov_b32 v{t3}, {OOB:#x}"), o(f"v_cmp_eq_u32 vcc, 0, v{t0}"), o("v_nop"), o("v_nop"), o(f"v_cndmask_b32 v{qa}, v{qa}, v{t3}, vcc")]),
                  G([o(f"v_cmp_eq_u32 vcc, v{t3}, v{pa}"), o("v_nop"), o("v_nop"), o(f"v_cndmask_b32 v{yc}, v{yc}, v{t3}, vcc")]),
                  o(f"v_add_u32 v{t0}, 16, v{t0}")]
        return L

    def phase2_setup(self):
        L = []
        L += [G([o(f"s_xor_b32 s{T6}, s{S_J}, 1"), o(f"s_and_b32 s{T2}, s{T6}, 1"), o(f"s_mul_i32 s{T0}, s{T6}, 288")]),
              G([o(f"s_mul_i32 s{T1}, s{T2}, 224"), o(f"s_add_u32 s{T1}, s{T0}, s{T1}")]),
              G([o(f"s_cmp_eq_u32 s{T2}, 0"), o(f"s_cselect_b32 s{T3}, 64, -64"), o(f"s_cselect_b32 s{T4}, 256, 0")]),
              o(f"s_add_u32 s{T4}, s{T4}, s{T0}")]
        for u in range(4):
            L += [G([o(f"s_mul_i32 s{T5}, s{T3}, {u}"), o(f"s_add_u32 s{T5}, s{T5}, s{T1}")]),
                  G([o(f"s_mul_i32 s{S_N1+2*u}, s{T5}, 1152"), o(f"s_add_u32 s{S_N1+2*u+1}, s{S_N1+2*u}, {32*1152}")])]
        L += [o(f"s_mul_i32 s{S_N1+8}, s{T4}, 1152")]
        L += [G([o(f"s_and_b32 s{T2}, s{S_J}, 1"), o(f"s_mul_i32 s{T0}, s{T2}, 640"), o(f"s_lshr_b32 s{T1}, s{S_J}, 2")])]
        for k in range(4):
            L += [G([o(f"s_add_u32 s{T3}, s{T1}, {(k+1) % 4 if k < 3 else 0}"), o(f"s_and_b32 s{T3}, s{T3}, 3"), o(f"s_lshl_b32 s{T3}, s{T3}, 7")]),
                  o(f"s_add_u32 s{S_CU+k}, s{T0}, s{T3}")]
        L += [G([o(f"s_cmp_eq_u32 s{T2}, 0"), o(f"s_cselect_b32 s{S_CU+4}, 0, 64")]), o(f"s_add_u32 s{S_CU+4}, s{S_CU+4}, 512")]
        return L

    def p2q_setup(self):
        L = [G([o(f"s_and_b32 s{T2}, s{S_J}, 1"), o(f"s_mul_i32 s{T3}, s{T2}, 10"), o(f"s_lshr_b32 s{T4}, s{S_J}, 2")])]
        for k, dst in enumerate(S_QU):
            L += [G([o(f"s_add_u32 s{T5}, s{T4}, {k+1}"), o(f"s_and_b32 s{T5}, s{T5}, 3"), o(f"s_lshl_b32 s{T5}, s{T5}, 1")]),
                  G([o(f"s_add_u32 s{T5}, s{T5}, s{T3}"), o(f"s_lshl_b32 s{T5}, s{T5}, 11"), o(f"s_add_u32 s{dst}, s{T5}, s{S_PB}")])]
        L += [G([o(f"s_lshl_b32 s{T5}, s{T4}, 1"), o(f"s_add_u32 s{T5}, s{T5}, s{T3}"), o(f"s_bfe_u32 s{T4}, s{S_J}, 0x10001")]),
              G([o(f"s_add_u32 s{S_TO}, s{T5}, s{T4}"), o(f"s_xor_b32 s{T4}, s{T4}, 1"), o(f"s_add_u32 s{T5}, s{T5}, s{T4}")]),
              G([o(f"s_lshl_b32 s{T5}, s{T5}, 11"), o(f"s_add_u32 s{S_QN}, s{T5}, s{S_PB}")]),
              G([o(f"s_add_u32 s{T5}, s{T2}, 8"), o(f"s_lshl_b32 s{T5}, s{T5}, 11"), o(f"s_add_u32 s{S_Q8}, s{T5}, s{S_PB}")])]
        return L

    def main(self):
        DIST = self.opts.get("dist", 7)
        M = []; frags = []
        fu = {}; lu = {}
        def addfrag(reads_fn, use, dist=None, stage=None):
            f = len(frags); a = AF + 4*(f % NAF)
            fr = dict(reads=reads_fn(a), use=use)
            if dist: fr["dist"] = dist
            frags.append(fr)
            if stage is not None and stage not in fu:
                fu[stage] = use; fr["stage_first"] = stage
            return f, a
        def tr(base, off, off2): return lambda a: [f"ds_read_b64_tr_b16 a[{a}:{a+1}], v{base} offset:{off}", f"ds_read_b64_tr_b16 a[{a+2}:{a+3}], v{base} offset:{off+off2}"]
        for u in range(4):
            for mat in range(2):
                for kh in range(2):
                    sig = 4*u + 2*mat + kh
                    for half in range(2):
                        acc = (GA if mat == 0 else UA)[u % 2][half]
                        for kk in range(18):
                            ks = kh*18 + kk; g = len(M)
                            f, a = addfrag(tr((V_RA if half == 0 else V_RB) + sig % 4, kk*2048, 512), g, stage=("st", sig))
                            M.append(dict(op=32, acc=f"v[{acc}:{acc+15}]", first=(ks == 0), A=f"a[{a}:{a+3}]", B=f"a[{AX+4*ks}:{AX+4*ks+3}]", need=f))
                            lu[("st", sig)] = g
        for mat in range(2):
            acc = (GA if mat == 0 else UA)[0][0]
            for ks in range(36):
                g = len(M)
                f, a = addfrag(tr(V_R8 + mat, ks*1024, 256), g, stage=("st", 16+mat))
                M.append(dict(op=32, acc=f"v[{acc}:{acc+15}]", first=(ks == 0), A=f"a[{a}:{a+3}]", B=f"a[{AX+4*ks}:{AX+4*ks+3}]", need=f))
                lu[("st", 16+mat)] = g
        S0 = len(M)
        def accP(tt, ss):
            i = tt*3 + ss
            return 48 + 4*i if i < 4 else 112 + 4*(i - 4)
        def accQ(tt, ss):
            i = tt*3 + ss
            return 64 + 4*i if i < 4 else 128 + 4*(i - 4)
        def zP(ss, k):
            i = k*3 + ss
            if i < 20: return f"a[{AZ+4*i}:{AZ+4*i+3}]"
            i -= 20
            r = 32 + 4*i if i < 4 else 96 + 4*(i - 4)
            return f"v[{r}:{r+3}]"
        def zQ(ss, k):
            i = k*3 + ss
            return f"a[{4*i}:{4*i+3}]"
        self.zP, self.zQ, self.accP, self.accQ = zP, zQ, accP, accQ
        for k in range(9):
            for tt in range(2):
                g = len(M)
                if k < 8:
                    line = k >> 1; piece = line >> 1; l = line & 1
                    base = V_SA + 2 + (k & 1); off = piece*SLOT + l*4096 + tt*2048
                    st = ("C", piece)
                else:
                    base = V_SX; off = tt*2048; st = ("CX", 0)
                f, a = addfrag(lambda a, base=base, off=off: [f"ds_read_b128 a[{a}:{a+3}], v{base} offset:{off}"], g, dist=8, stage=st)
                for ss in range(3):
                    ac = accP(tt, ss)
                    M.append(dict(op=16, acc=f"v[{ac}:{ac+3}]", first=(k == 0), A=f"a[{a}:{a+3}]", B=zP(ss, k), need=f))
                    lu[st] = len(M) - 1
        SP_END = len(M)
        for k in range(8):
            for tt in range(2):
                g = len(M)
                line = k >> 1; piece = line >> 1; l = line & 1
                base = V_SA + (k & 1); off = piece*SLOT + l*4096 + tt*2048
                st = ("S", piece)
                f, a = addfrag(lambda a, base=base, off=off: [f"ds_read_b128 a[{a}:{a+3}], v{base} offset:{off}"], g, dist=8, stage=st)
                for ss in range(3):
                    ac = accQ(tt, ss)
                    M.append(dict(op=16, acc=f"v[{ac}:{ac+3}]", first=(k == 0), A=f"a[{a}:{a+3}]", B=zQ(ss, k), need=f))
                    lu[st] = len(M) - 1
        P2_0 = len(M)
        stages = [(0, "own"), (1, "own"), (2, "own"), (0, "par"), (1, "par"), (2, "par"), (4, "both"), (3, "own"), (3, "par")]
        slot_order = [2, 0, 3, 2, 1, 0, 3, 2, 1]
        slot_of = {st: slot_order[i] for i, st in enumerate(stages)}
        ACC = {0: [32, 96], 1: [16, 80], 2: [48, 112], 3: [64, 128], 4: [32]}
        tile_last = {}
        def p2run(st, half, base, nk=18):
            u, who = st
            acc = ACC[u][half]
            for k in range(18):
                g = len(M)
                f, a = addfrag(tr(base, k*2048, 1024), g, stage=("s2", st))
                M.append(dict(op=32, acc=f"v[{acc}:{acc+15}]", first=(who == "own" and k == 0), A=f"a[{a}:{a+3}]",
                              B=(f"v[{HF+4*k}:{HF+4*k+3}]" if who == "own" else f"a[{AZ+4*k}:{AZ+4*k+3}]"), need=f))
                tile_last[(u, half)] = g; lu[("s2", st)] = g
        for st in stages[:7]:
            u, who = st; slot = slot_of[st]
            if u < 4:
                for half in range(2): p2run(st, half, (V_RA if half == 0 else V_RB) + slot)
            else:
                acc = ACC[4][0]
                for k in range(36):
                    g = len(M)
                    f, a = addfrag(tr(V_R8, k*1024, 512), g, stage=("s2", st))
                    M.append(dict(op=32, acc=f"v[{acc}:{acc+15}]", first=(k == 0), A=f"a[{a}:{a+3}]",
                                  B=(f"v[{HF+4*k}:{HF+4*k+3}]" if k < 18 else f"a[{AZ+4*(k-18)}:{AZ+4*(k-18)+3}]"), need=f))
                    tile_last[(4, 0)] = g; lu[("s2", st)] = g
        p2run((3, "own"), 0, V_LB); p2run((3, "par"), 0, V_LB + 1); p2run((3, "own"), 1, V_LB + 2); p2run((3, "par"), 1, V_LB + 3)
        N = len(M)
        last_use = {}
        for g, m in enumerate(M): last_use[m["need"]] = g
        for f, fr in enumerate(frags):
            d = fr.get("dist", DIST)
            t = fr["use"] - d
            if f >= NAF and t < last_use[f - NAF]: fr["dist"] = fr["use"] - last_use[f - NAF]
        for fr in frags:
            st = fr.get("stage_first")
            if st is None: continue
            if st[0] in ("st", "s2"):
                tags = [st]
                if st == ("st", 3): tags += ["zst", "flinit"]
                if st == ("st", 17): tags += ["hst"]
                if st == ("s2", (3, "own")): tags += [("pst", 0), ("pst", 1), "yst"]
                if st == ("s2", (3, "par")): tags += [("pst", 2)]
                fr["pre"] = [wvm(tags), o("s_barrier")]
                if st in (("s2", (3, "own")), ("s2", (3, "par"))):
                    fr["pre"] += [vm(f"buffer_store_dword v240, v{V_ONE0}, s[{SR_WS}:{SR_WS+3}], s{S_FL} offen sc1", "flp")]
                if st == ("st", 17):
                    fr["pre"] += [vm(f"buffer_store_dword v{V_ONE}, v{V_ONE0}, s[{SR_WS}:{SR_WS+3}], s{S_FL} offen sc1", "fl1")]
                if st == ("st", 3):
                    fr["pre"] += [vm(f"buffer_atomic_add v{V_ONE}, v{V_ONE0}, s[{SR_HZ}:{SR_HZ+3}], 0 offen offset:128 sc1", "zpub")]
            else:
                fr["pre"] = [wvm(("cs", st))]
        stamps = {0: "p1", 144: "u1", 288: "u2", 432: "u3", 576: "u4", S0: "S0", SP_END: "SP", P2_0: "p2", P2_0+18: "a18", P2_0+36: "a36", P2_0+44: "a44", P2_0+54: "a54", P2_0+72: "a72", P2_0+90: "a90", P2_0 + 108: "p2b", P2_0+144: "b36", P2_0 + 216: "p2c"}
        for g, name in stamps.items():
            if self.diag: M[g].setdefault("before", []).extend(self.stamp(name))
        self.tail2 = []

        def setup(sl, head):
            rbar = {st: fu[st] - DIST for st in fu if st[0] in ("st", "s2")}
            for b in rbar.values():
                if b >= 0: sl.budget[b] = 4
            def fbar(t):
                sl.put(t, [o("s_barrier")])
            busy = {"end": -1}
            def place(groups, start, step=1):
                s = max(start, busy["end"] + 1)
                for grp in groups:
                    sl.put(s, grp); busy["end"] = s; s += step
                return s
            sl.put(2, [o(f"v_mov_b32 v{V_ONE}, 1")])
            eh = sl.stream(self.rr_reads(48, 112) + self.h_epilogue(S_A, V_HACC, 48, 64), 12, 46)
            eh = sl.stream(self.rr_reads(48, 112, 2) + self.h_epilogue(S_B, 128, 48, 64), eh + 1, eh + 34)
            assert eh < 92, eh
            for mat in range(2):
                slot = (16 + mat) % 4
                ins = [o("v_lshrrev_b32 v224, 5, v0"), o("v_lshlrev_b32 v224, 9, v224"),
                       o("v_bfe_u32 v225, v0, 2, 2"), o("v_lshlrev_b32 v225, 6, v225"), o("v_add_u32 v224, v224, v225"),
                       o("v_bfe_u32 v225, v0, 4, 1"), o("v_lshlrev_b32 v225, 5, v225"), o("v_add_u32 v224, v224, v225"),
                       o("v_and_b32 v225, 3, v0"), o("v_lshlrev_b32 v225, 3, v225"), o("v_add_u32 v224, v224, v225"),
                       o(f"v_add_u32 v{V_R8+mat}, {slot*SLOT}, v224")]
                sl.stream(ins, 70 + 20*mat, 88 + 20*mat)
            dma_end = {}
            for sig in range(2, 18):
                grps = self.dma_p1(sig, sig % 4)
                if sig == 2: start = 0
                elif sig == 3: start = 9*self.opts.get('dstep', 2)
                else:
                    t = lu[("st", sig - 4)]; fbar(t); start = t + 1
                dma_end[sig] = place(grps, start, self.opts.get("dstep", 2))
            self.paced_prefetch(sl, dma_end)
            self.mode_check(sl, M)
            sl.put(590, [G([o(f"s_lshl_b32 s{S_FL}, s{S_LID}, 7"), o(f"s_add_u32 s{S_FL}, s{S_FL}, {WS_FLAG}")])])
            sl.put(592, [o(f"v_mov_b32 v{V_ONE}, 1")])
            e0 = sl.stream(self.geglu(0), 145, 211)
            sl.stream(self.hstore(0) + self.geglu(1) + self.hstore(1), max(e0 + 1, 212), 287)
            for u in range(1, 3):
                sl.stream(self.geglu(2*u) + self.hstore(2*u) + self.geglu(2*u+1) + self.hstore(2*u+1), 144*(u+1) + 1, 144*(u+2) - 1)
            es = sl.stream(self.s_setup(), eh + 1, eh + 11)
            es = sl.stream(self.s_setup2(), es + 1, es + 10)
            assert es < 118, es
            sl.stream(self.s_setup3(224, 225, 226, 227), max(es + 1, 112), 143)
            ep = sl.stream(self.phase2_setup(), 66, 100)
            assert ep < 110
            t = lu[("st", 14)]; fbar(t); place(self.dma_cs(0, 0, 2, ("cs", ("C", 0))), t + 1, 2)
            t = lu[("st", 15)]; fbar(t); e = place(self.dma_cs(0, 1, 3, ("cs", ("C", 1))), t + 1, 2)
            place(self.dma_cx(("cs", ("CX", 0))), e, 2)
            t = lu[("st", 16)]; fbar(t); place(self.dma_cs(1, 0, 0, ("cs", ("S", 0))), t + 1, 2)
            t = lu[("st", 17)]; fbar(t); place(self.dma_cs(1, 1, 1, ("cs", ("S", 1)), True), t + 1, 1)
            self.main_rest(sl, M, fu, lu, stages, slot_of, ACC, tile_last, S0, SP_END, P2_0, N, fbar, place)
        L = self.paced(M, frags, setup, DIST)
        return L + self.tail2

    def mode_check(self, sl, M):
        if not self.opts.get("local", 1): return
        t = 0
        ld = f"buffer_load_dwordx2 v[222:223], off, s[{SR_HZ}:{SR_HZ+3}], s{T5} sc1"
        ld = f"buffer_load_dwordx2 v[230:231], off, s[{SR_HZ}:{SR_HZ+3}], s{S_XC} sc1"
        if self.opts.get("cfg", 0) == 0:
            ld = f"buffer_load_dword v230, off, s[{SR_HZ}:{SR_HZ+3}], s{S_XC} sc1"
            sl.put(140, [G([o(f"s_lshr_b32 s{S_XC}, s{S_LID}, 3"), o(f"s_lshl_b32 s{S_XC}, s{S_XC}, 2")])])
        else:
            sl.put(140, [G([o(f"s_lshl_b32 s{S_XC}, s{S_MT}, 3")])])
        sl.put(143, [vm(ld, "xcc")])
        sl.put(205, [wvm("xcc")])
        sl.put(206, [o(f"v_readfirstlane_b32 s{T6}, v230"), o(f"v_readfirstlane_b32 s{T7}, v231")])
        def nz(r, tmp):
            return [o(f"s_lshr_b32 s{tmp}, s{r}, 1"), o(f"s_or_b32 s{tmp}, s{tmp}, s{r}"), o(f"s_lshr_b32 s{T3}, s{tmp}, 2"), o(f"s_or_b32 s{tmp}, s{tmp}, s{T3}"),
                    o(f"s_and_b32 s{tmp}, s{tmp}, 0x11111111")]
        chk = nz(T6, T1) + nz(T7, T2) + [o(f"s_and_b32 s{T1}, s{T1}, s{T2}"), o(f"s_cmp_eq_u32 s{T1}, 0x11111111")]
        if self.opts.get("cfg", 0) == 0:
            ld = f"buffer_load_dword v230, off, s[{SR_HZ}:{SR_HZ+3}], s{S_XC} sc1"
            ext = [o(f"s_and_b32 s{T1}, s{S_LID}, 6"), o(f"s_lshl_b32 s{T1}, s{T1}, 2"), o(f"s_lshr_b32 s{T2}, s{T6}, s{T1}"),
                   o(f"s_and_b32 s{T3}, s{T2}, 15"), o(f"s_bfe_u32 s{T2}, s{T2}, 0x40004"),
                   o(f"s_min_u32 s{T1}, s{T2}, s{T3}"), o(f"s_cmp_ge_u32 s{T1}, 1")]
            blk = ext + [o("s_cbranch_scc1 L_xc_ok")] + self.spin("L_xc", [o(ld)], [o(f"v_readfirstlane_b32 s{T6}, v230"), o("s_nop 3")] + ext)
            blk += [o(f"s_cmp_eq_u32 s{T2}, s{T3}"), o(f"s_cselect_b32 s{S_MODE}, 1, 0")]
            if self.opts.get("forceglobal"): blk += [o(f"s_mov_b32 s{S_MODE}, 0")]
            M[209].setdefault("before", []).extend(blk)
            return
        blk = chk + [o("s_cbranch_scc1 L_xc_ok")] + self.spin("L_xc", [o(ld)],
              [o(f"v_readfirstlane_b32 s{T6}, v230"), o(f"v_readfirstlane_b32 s{T7}, v231"), o("s_nop 3")] + chk)
        blk += [o(f"s_and_b32 s{T1}, s{T6}, 15"), o(f"s_mul_i32 s{T1}, s{T1}, 0x11111111"),
                o(f"s_cmp_eq_u32 s{T1}, s{T6}"), o(f"s_cselect_b32 s{S_MODE}, 1, 0"),
                o(f"s_cmp_eq_u32 s{T1}, s{T7}"), o(f"s_cselect_b32 s{S_MODE}, s{S_MODE}, 0")]
        if self.opts.get("forceglobal"): blk += [o(f"s_mov_b32 s{S_MODE}, 0")]
        M[209].setdefault("before", []).extend(blk)

    def paced_prefetch(self, sl, dma_end):
        if not self.opts.get("ppf", 1): return
        Dd, Cc, t = 228, 229, 227
        setup = [G([o(f"s_lshl_b32 s{S_PF}, s{S_LID}, 2"), o(f"s_add_u32 s{S_PF}, s{S_PF}, s{S_W}"), o(f"s_mul_i32 s{S_PF}, s{S_PF}, 41")]),
                 o(f"v_add_u32 v{Dd}, s{S_PF}, v0"), o(f"v_lshlrev_b32 v{Dd}, 7, v{Dd}"), o(f"v_mov_b32 v{t}, {OOB:#x}"),
                 G([o("v_cmp_gt_u32 vcc, 41, v0"), o("v_nop"), o("v_nop"), o(f"v_cndmask_b32 v{Dd}, v{t}, v{Dd}, vcc")]),
                 G([o(f"s_and_b32 s{S_PF}, s{S_J}, 7"), o(f"s_lshl_b32 s{S_PF}, s{S_PF}, 2"), o(f"s_add_u32 s{S_PF}, s{S_PF}, s{S_W}")]),
                 G([o(f"s_lshl_b32 s{S_C}, s{S_TAU}, 5"), o(f"s_add_u32 s{S_PF}, s{S_PF}, s{S_C}"), o(f"s_lshl_b32 s{S_PF}, s{S_PF}, 12")]),
                 o(f"v_lshlrev_b32 v{Cc}, 7, v0"), o(f"v_add_u32 v{Cc}, s{S_PF}, v{Cc}"),
                 G([o("v_cmp_gt_u32 vcc, 17, v0"), o("v_nop"), o("v_nop"), o(f"v_cndmask_b32 v{Cc}, v{t}, v{Cc}, vcc")])]
        e = sl.stream(setup, 146, 176)
        s = dma_end[self.opts.get("pfw", 9)]
        assert s > e + 6
        if self.opts.get("bulk", 1) != 2: sl.put(s, [vm(f"buffer_load_dword v{V_PF}, v{Dd}, s[{SR_WD}:{SR_WD+3}], 0 offen", "pf")])
        s = dma_end[self.opts.get("pfc", 11)]
        sl.put(s, [vm(f"buffer_load_dword v{V_PF}, v{Cc}, s[{SR_CS}:{SR_CS+3}], 0 offen", "pf")])
        sl.put(s + 1, [vm(f"buffer_load_dword v{V_PF}, v{Cc}, s[{SR_SS}:{SR_SS+3}], 0 offen", "pf")])

    def owner_addr(self):
        sQ = S_TO
        t0, t1, t2, t3 = 244, 245, 246, 247
        L = [G([o(f"s_lshl_b32 s{T4}, s{S_MT}, 2"), o(f"s_add_u32 s{T4}, s{T4}, s{S_W}")]),
             G([o(f"s_mul_i32 s{T5}, s{T4}, 18"), o(f"s_add_u32 s{T5}, s{T5}, s{sQ}"), o(f"s_lshl_b32 s{T5}, s{T5}, 11")]),
             o(f"s_lshr_b32 s{T3}, s{S_J}, 1")]
        for i, d in enumerate((2, 3, 4, 5, 6, 7, 1)):
            L += [G([o(f"s_xor_b32 s{16+i}, s{T3}, {d}"), o(f"s_mul_i32 s{16+i}, s{16+i}, {PART_BYTES}"), o(f"s_add_u32 s{16+i}, s{16+i}, s{T5}")])]
        L += [o(f"s_lshl_b32 s{T5}, s{T4}, 4"), o(f"v_and_b32 v{t0}, 15, v0"), o(f"v_add_u32 v{t0}, s{T5}, v{t0}"),
              o(f"v_sub_u32 v{t1}, 2048, v{t0}"), o(f"v_mov_b32 v{t2}, 1024"), o(f"v_mov_b32 v{t3}, 0"),
              G([o(f"v_cmp_eq_u32 vcc, 0, v{t0}"), o("v_nop"), o("v_nop"), o(f"v_cndmask_b32 v237, v{t1}, v{t2}, vcc"),
                 o(f"v_cndmask_b32 v{t1}, v{t1}, v{t3}, vcc"), o(f"v_cndmask_b32 v{t2}, v{t0}, v{t2}, vcc")]),
              o(f"v_and_b32 v{t3}, 16, v0"),
              G([o(f"v_cmp_eq_u32 vcc, 0, v{t3}"), o("v_nop"), o("v_nop"), o(f"v_cndmask_b32 v{t0}, v237, v{t0}, vcc"), o(f"v_cndmask_b32 v{t1}, v{t2}, v{t1}, vcc")]),
              o(f"s_lshl_b32 s{T5}, s{sQ}, 6"),
              o(f"v_mul_u32_u24 v{t2}, 1152, v{t0}"), o(f"v_add_u32 v{t2}, s{T5}, v{t2}"),
              o(f"v_lshrrev_b32 v{t3}, 5, v0"), o(f"v_lshlrev_b32 v238, 4, v{t3}"), o(f"v_add_u32 v238, v{t2}, v238"),
              o(f"v_lshlrev_b32 v237, 3, v{t3}"), o(f"v_add_u32 v237, v{t2}, v237"),
              G([o(f"s_lshl_b32 s{T5}, s{sQ}, 7"), o(f"s_cmp_lt_u32 s{sQ}, 9"), o(f"s_cselect_b32 s24, 0, 1")]),
              G([o(f"s_sub_u32 s{T4}, {2292 - 96}, s{T5}"), o(f"s_cmp_lt_u32 s{sQ}, 9"), o(f"s_cselect_b32 s{T5}, s{T5}, s{T4}"), o(f"s_cselect_b32 s{T4}, 1, -1")]),
              G([o(f"v_mov_b32 v{t2}, s24"), o(f"v_cmp_eq_u32 vcc, 1, v{t2}"), o("v_nop"), o("v_nop"), o(f"v_cndmask_b32 v{t0}, v{t0}, v{t1}, vcc")]),
              o(f"v_mul_u32_u24 v{t0}, {YP}, v{t0}"), o(f"v_add_u32 v{t0}, s{T5}, v{t0}"),
              o(f"v_lshlrev_b32 v{t3}, 4, v{t3}"), o(f"v_mul_lo_u32 v{t3}, v{t3}, s{T4}"), o(f"v_add_u32 v{t0}, v{t0}, v{t3}"),
              o(f"v_add_u32 v239, {WS_YH}, v{t0}")]
        return L

    def pipe_reduce(self, sl, M, fu, lu, P2_0, N):
        self.items_cfg()
        sl.put(P2_0 + 236, [o("v_mov_b32 v240, 3")]); sl.put(P2_0 + 256, [o("v_mov_b32 v240, 4")])
        ep = sl.stream(self.p2q_setup(), P2_0 + 102, P2_0 + 124)
        assert ep < P2_0 + 132
        s_own, s_par = 2, 1
        lb = [G([o(f"s_bfe_u32 s{T5}, s{S_J}, 0x10001"), o(f"s_lshl_b32 s{T5}, s{T5}, 6"), o(f"s_xor_b32 s{T4}, s{T5}, 64")]),
              o(f"v_xor_b32 v{V_LB}, s{T4}, v{V_RA+s_own}"), o(f"v_xor_b32 v{V_LB+1}, s{T4}, v{V_RA+s_par}"),
              o(f"v_xor_b32 v{V_LB+2}, s{T5}, v{V_RA+s_own}"), o(f"v_xor_b32 v{V_LB+3}, s{T5}, v{V_RA+s_par}")]
        sl.stream(lb, P2_0 + 190, P2_0 + 200)
        e = sl.stream(self.owner_addr(), P2_0 + 204, P2_0 + 250)
        e = sl.stream([G([o(f"s_and_b32 s{T6}, s{S_J}, 1"), o(f"s_lshl_b32 s{T6}, s{T6}, 7"), o(f"s_lshl_b32 s{T7}, s{S_MT}, 11")]),
                       G([o(f"s_add_u32 s{T6}, s{T6}, s{T7}"), o(f"s_add_u32 s{T6}, s{T6}, {WS_FLAG}")]),
                       o("v_lshlrev_b32 v242, 8, v0"), o(f"v_mov_b32 v241, {OOB:#x}"),
                       G([o("v_cmp_gt_u32 vcc, 8, v0"), o("v_nop"), o("v_nop"), o("v_cndmask_b32 v242, v241, v242, vcc")])], e + 1, e + 8)
        for i in range(4): sl.put(e + 2 + i, [vm(f"buffer_load_dwordx2 v[{24+2*i}:{25+2*i}], v237, s[{SR_X}:{SR_X+3}], 0 offen offset:{16*i}", "ox")])
        tpoll = max(e + 7, P2_0 + self.opts.get("tpa", 284))
        ld, chk = self.group_poll("L_gA", 4, 241, 242)
        sl.put(tpoll, [vm(ld, "gpA")])
        sl.put(tpoll + 9, [wvm("gpA")])
        M[tpoll + 11].setdefault("before", []).extend(chk + [o("s_cbranch_scc1 L_gA_ok")] + self.spin("L_gA", [o(ld)], chk))
        lds = []
        for i in range(6):
            lds += [vm(f"buffer_load_dwordx4 v[{80+8*i}:{83+8*i}], v{V_L16}, s[{SR_WS}:{SR_WS+3}], s{16+i} offen sc1", "op"),
                    vm(f"buffer_load_dwordx4 v[{84+8*i}:{87+8*i}], v{V_L16}, s[{SR_WS}:{SR_WS+3}], s{16+i} offen offset:1024 sc1", "op")]
        lds += [vm(f"buffer_load_dwordx4 v[{48+4*i}:{51+4*i}], v239, s[{SR_WS}:{SR_WS+3}], 0 offen offset:{32*i} sc1", "op") for i in range(4)]
        s = tpoll + 11
        self.late_loads = []
        stp = self.opts.get("ostep", 2)
        for l in lds:
            if s < N - 1: sl.put(s, [l]); s += stp
            else: self.late_loads.append(l)
        print("owner loads: in loop until", s, "late:", len(self.late_loads), "N", N)

    def spin(self, label, load, cond_ok, regs_note=""):
        return [o(f"s_mov_b32 s{S_CNT}, 0"), raw(f"{label}:")] + load + [o("s_waitcnt vmcnt(0)")] + cond_ok + \
               [o(f"s_cbranch_scc1 {label}_ok"), o(f"s_add_u32 s{S_CNT}, s{S_CNT}, 1"), o(f"s_cmp_gt_u32 s{S_CNT}, 0x40000"), o(f"s_cbranch_scc1 {label}_ok"),
                o("s_sleep 1"), o(f"s_branch {label}"), raw(f"{label}_ok:")]

    def main_rest(self, sl, M, fu, lu, stages, slot_of, ACC, tile_last, S0, SP_END, P2_0, N, fbar, place):
        zP, zQ, accP, accQ = self.zP, self.zQ, self.accP, self.accQ
        DIST = self.opts.get("dist", 7)
        e6 = sl.stream(self.geglu(6) + self.hstore(6), 577, 634)
        assert e6 < S0 - 2, e6
        e7 = sl.stream(self.geglu(7) + self.hstore(7), e6 + 1, S0 + 46)
        assert e7 < SP_END - 1, e7
        sl.stream(self.geglu(8, 8) + self.hstore(8), S0 + 4, S0 + 85)
        sl.put(467, [vm(f"buffer_load_dword v230, off, s[{SR_HZ}:{SR_HZ+3}], 0 offset:128 sc1", "zpoll")])
        sl.put(574, [wvm("zpoll")])
        sl.put(575, [o(f"v_readfirstlane_b32 s{T0}, v230")])
        M[578].setdefault("before", []).extend(
            [o(f"s_cmp_ge_u32 s{T0}, 256"), o("s_cbranch_scc1 L_zp_ok")] +
            self.spin("L_zp", [o(f"buffer_load_dword v{V_PF}, off, s[{SR_HZ}:{SR_HZ+3}], 0 offset:128 sc1")],
                      [o(f"v_readfirstlane_b32 s{T0}, v{V_PF}"), o("s_nop 3"), o(f"s_cmp_ge_u32 s{T0}, 256")]))
        ins = []
        for k in range(9):
            if k < 8: ins += [o(f"s_add_u32 s{S_C}, s{S_ZB}, {k*2048}")]
            else: ins += [G([o(f"s_cmp_eq_u32 s{S_W}, 3"), o(f"s_cselect_b32 s{S_C}, 0, {OOB:#x}"), o(f"s_add_u32 s{S_C}, s{S_C}, s{S_ZB}")]),
                          o(f"s_add_u32 s{S_C}, s{S_C}, {8*2048}")]
            for ss in range(3):
                ins += [vm(f"buffer_load_dwordx4 {zP(ss,k)}, v{V_ZP+ss}, s[{SR_WS}:{SR_WS+3}], s{S_C} offen sc1", ("zp", k))]
        sl.stream(ins, 579, 640)
        for k in range(9):
            g = S0 + 6*k
            sl.put(g - 1, [wvm(("zp", k))])
        ins = []
        for k in range(8):
            ins += [o(f"s_add_u32 s{S_C}, s{S_ZB}, {k*2048}")]
            for ss in range(3):
                ins += [vm(f"buffer_load_dwordx4 {zQ(ss,k)}, v{V_ZQ+ss}, s[{SR_WS}:{SR_WS+3}], s{S_C} offen sc1", ("zq", k))]
        sl.stream(ins, S0, SP_END + 20)
        for k in range(8):
            g = SP_END + 6*k
            sl.put(g - 1, [wvm(("zq", k))])
        blk = [o(f"s_cmp_eq_u32 s{S_TAU}, 0"), o("s_cbranch_scc0 L_s_n1024"),
               o("v_mov_b32 v232, 0xbf803f80"), o("v_mov_b32 v233, v232"), o("v_mov_b32 v234, v232"), o("v_mov_b32 v235, v232"), o("s_nop 1")]
        for k in range(9):
            for ss in range(3):
                a = (32, 36, 40)[ss] if False else None
        A1024 = [120, 124, 136]
        for k in range(9):
            for ss in range(3):
                a = A1024[ss]
                blk += [mf16(f"v[{a}:{a+3}]", "v[232:235]", zP(ss, k), "0" if k == 0 else f"v[{a}:{a+3}]")]
        blk += [raw("L_s_n1024:")]
        M[SP_END].setdefault("before", []).extend(blk)
        tA, tB, tC = 236, 237, 238
        t = lu[("C", 0)]; fbar(t)
        e = place(self.dma_p2(stages[0], slot_of[stages[0]], True, 12, 13, V_PF), t + 1, 1)
        ins = [o(f"v_lshrrev_b32 v{V_PF}, 5, v0"), o(f"v_lshlrev_b32 v{V_PF}, 9, v{V_PF}")]
        for s in range(4): ins += [o(f"v_sub_u32 v{V_RA+s}, v{V_RA+s}, v{V_PF}"), o(f"v_sub_u32 v{V_RB+s}, v{V_RB+s}, v{V_PF}")]
        sl.stream(ins, e + 1, e + 14)
        t = lu[("C", 1)] + 6; fbar(t)
        assert t >= lu[("CX", 0)]
        place(self.dma_p2(stages[2], slot_of[stages[2]], False, 0, 0, 0), t + 1, 1)
        t = lu[("S", 0)]; fbar(t); place(self.dma_p2(stages[1], slot_of[stages[1]], False, 0, 0, 0), t + 1, 1)
        t = lu[("S", 1)]
        sl.put(t, [wvm("hst"), o("s_barrier")])
        sl.put(t + 1, [o(f"v_mov_b32 v{V_PF}, 2")])
        sl.put(t + 2, [vm(f"buffer_store_dword v{V_PF}, v{V_ONE0}, s[{SR_WS}:{SR_WS+3}], s{S_FL} offen sc1", "fl2h")])
        pass
        a0 = P2_0 + 3
        t0r, t1r = 240, 241
        SC = SLOT
        W3D = SPARE - SLOT - 3*12288
        N1A = SPARE + 12288
        wr = [G([o(f"s_mul_i32 s{S_C}, s{S_W}, 12288"), o(f"s_add_u32 s{S_C}, s{S_C}, {SC}")]),
              G([o(f"s_cmp_eq_u32 s{S_W}, 3"), o(f"s_cselect_b32 s{S_ST1}, {W3D}, 0"), o(f"s_add_u32 s{S_C}, s{S_C}, s{S_ST1}")]),
              o(f"v_lshrrev_b32 v{t0r}, 4, v0"), o(f"v_mul_u32_u24 v{t0r}, 768, v{t0r}"), o(f"v_and_b32 v{t1r}, 15, v0"), o(f"v_lshlrev_b32 v{t1r}, 2, v{t1r}"),
              o(f"v_add_u32 v{t0r}, v{t0r}, v{t1r}"), o(f"v_add_u32 v{t0r}, s{S_C}, v{t0r}")]
        for pq, accf in ((0, accP), (1, accQ)):
            for tt in range(2):
                for ss in range(3):
                    for r in range(4):
                        wr += [ds(f"ds_write_b32 v{t0r}, v{accf(tt,ss)+r} offset:{pq*6144 + (16*tt + r)*192 + ss*64}", "sred_w")]
        e = sl.stream(wr, a0, a0 + 30)
        wr2 = [G([o(f"s_mul_i32 s{S_C}, s{S_W}, 768"), o(f"s_add_u32 s{S_C}, s{S_C}, {N1A}")]), o(f"v_lshlrev_b32 v{t1r}, 2, v0"), o(f"v_add_u32 v{t1r}, s{S_C}, v{t1r}")]
        for ss in range(3): wr2 += [ds(f"ds_write_b32 v{t1r}, v{A1024[ss]} offset:{ss*256}", "sred_w")]
        e = sl.stream(wr2, e + 1, e + 6)
        b1 = e + 1
        sl.put(b1, [wlg("sred_w"), o("s_barrier")])
        R0, R1 = 128, 64
        R0, R1 = 112, 48
        A0, A1, YD0, YM0, YD1, YM1 = 232, 233, 234, 235, 236, 237
        ad = [G([o(f"s_lshl_b32 s{T3}, s{S_W}, 3"), o(f"s_lshl_b32 s{T4}, s{S_TAU}, 5"), o(f"s_add_u32 s{T4}, s{T4}, s{T3}")]),
              G([o(f"s_mul_i32 s{T3}, s{T3}, 192"), o(f"s_add_u32 s{T3}, s{T3}, {SC}"), o(f"s_and_b32 s{T5}, s{S_J}, 7")]),
              o(f"s_mul_i32 s{T5}, s{T5}, 144"),
              o(f"v_lshrrev_b32 v238, 3, v0"), o(f"v_and_b32 v239, 7, v0"),
              o(f"v_mul_u32_u24 v{A0}, 192, v238"), o(f"v_lshlrev_b32 v239, 4, v239"), o(f"v_add_u32 v{A0}, v{A0}, v239"), o(f"v_add_u32 v{A0}, s{T3}, v{A0}"),
              o(f"v_add_u32 v238, s{T4}, v238"),
              o(f"v_add_u32 v239, s{T5}, v239"),
              o(f"v_mul_u32_u24 v{YD0}, {YP}, v238"), o(f"v_add_u32 v{YD0}, v{YD0}, v239"),
              o(f"v_sub_u32 v{YM0}, 2048, v238"), o(f"v_mul_u32_u24 v{YM0}, {YP}, v{YM0}"), o(f"v_add_u32 v{YM0}, v{YM0}, v239"),
              G([o(f"v_cmp_eq_u32 vcc, 0, v238"), o(f"v_mov_b32 v238, {OOB:#x}"), o("v_nop"), o(f"v_cndmask_b32 v{YM0}, v{YM0}, v238, vcc")]),
              o(f"v_and_b32 v238, 7, v0"), o(f"v_lshrrev_b32 v239, 3, v0"), o(f"v_add_u32 v239, 8, v239"), o(f"v_min_u32 v239, 9, v239"),
              o(f"v_mul_u32_u24 v{A1}, 192, v238"), o(f"v_lshlrev_b32 v239, 4, v239"), o(f"v_add_u32 v{A1}, v{A1}, v239"), o(f"v_add_u32 v{A1}, s{T3}, v{A1}"),
              o(f"v_add_u32 v238, s{T4}, v238"), o(f"v_add_u32 v239, s{T5}, v239"),
              o(f"v_mul_u32_u24 v{YD1}, {YP}, v238"), o(f"v_add_u32 v{YD1}, v{YD1}, v239"),
              o(f"v_sub_u32 v{YM1}, 2048, v238"), o(f"v_mul_u32_u24 v{YM1}, {YP}, v{YM1}"), o(f"v_add_u32 v{YM1}, v{YM1}, v239"),
              G([o(f"v_cmp_eq_u32 vcc, 0, v238"), o(f"v_mov_b32 v238, {OOB:#x}"), o("v_nop"), o(f"v_cndmask_b32 v{YM1}, v{YM1}, v238, vcc")]),
              G([o(f"s_cmp_eq_u32 s{T5}, {7*144}"), o(f"s_cselect_b32 s{T5}, 16, 8")]),
              G([o(f"v_cmp_gt_u32 vcc, s{T5}, v0"), o("v_nop"), o("v_nop"), o(f"v_cndmask_b32 v{YD1}, v238, v{YD1}, vcc"), o(f"v_cndmask_b32 v{YM1}, v238, v{YM1}, vcc")]),
              o(f"s_mov_b32 s{T4}, {WS_YH}"),
              o(f"v_lshlrev_b32 v238, 2, v0"), o(f"v_add_u32 v238, {N1A}, v238"),
              o(f"v_add_u32 v243, {W3D + 3*12288}, v{A0}"), o(f"v_add_u32 v244, {W3D + 3*12288}, v{A1}")]
        e = sl.stream(ad, a0 + 2, b1)
        assert e <= b1 + 6
        def rds(R, A, tag):
            A3 = 243 if A == A0 else 244
            return [ds(f"ds_read_b128 v[{R + 16*pq + 4*ww}:{R + 16*pq + 4*ww + 3}], v{A if ww < 3 else A3} offset:{(ww*12288 if ww < 3 else 0) + pq*6144}", tag) for pq in range(2) for ww in range(4)]
        N1 = 216
        n1r = [ds(f"ds_read_b32 v{N1+4*ss+ww}, v238 offset:{ww*768 + ss*256}", "sred_n") for ss in range(3) for ww in range(4)]
        e = sl.stream(rds(R0, A0, "sr0") + rds(R1, A1, "sr1") + n1r, max(e, b1) + 1, max(e, b1) + 12)
        b2 = e + 3
        sl.put(b2, [wlg("sred_n"), o("s_barrier")])
        self.b2 = b2
        def fin(R, YD, YM):
            out = []
            for pq in range(2):
                b_ = R + 16*pq
                for k in range(4):
                    out += [o(f"v_add_f32 v{b_+k}, v{b_+k}, v{b_+4+k}"), o(f"v_add_f32 v{b_+8+k}, v{b_+8+k}, v{b_+12+k}"), o(f"v_add_f32 v{b_+k}, v{b_+k}, v{b_+8+k}")]
            for k in range(4):
                out += [o(f"v_sub_f32 v{R+4+k}, v{R+k}, v{R+16+k}"), o(f"v_add_f32 v{R+8+k}, v{R+k}, v{R+16+k}")]
            out += [vm(f"buffer_store_dwordx4 v[{R+4}:{R+7}], v{YD}, s[{SR_WS}:{SR_WS+3}], s{T4} offen sc1", "yst"),
                    vm(f"buffer_store_dwordx4 v[{R+8}:{R+11}], v{YM}, s[{SR_WS}:{SR_WS+3}], s{T4} offen sc1", "yst")]
            return out
        n1 = []
        for ss in range(3):
            b_ = N1 + 4*ss
            n1 += [o(f"v_add_f32 v{b_}, v{b_}, v{b_+1}"), o(f"v_add_f32 v{b_+2}, v{b_+2}, v{b_+3}"), o(f"v_add_f32 v{b_}, v{b_}, v{b_+2}")]
        n1 += [G([o(f"s_or_b32 s{T3}, s{S_TAU}, s{S_W}"), o(f"s_cmp_eq_u32 s{T3}, 0"), o(f"s_cselect_b32 s{T3}, 16, 0")]),
               G([o(f"v_cmp_gt_u32 vcc, s{T3}, v0"), o(f"v_mov_b32 v238, {1024*YP}"), o(f"v_mov_b32 v239, {OOB:#x}"), o(f"v_cndmask_b32 v238, v239, v238, vcc")])]
        for ss in range(3):
            n1 += [o(f"v_add_u32 v{N1+4*ss+1}, v238, v{V_YC[ss]}")]
        n1 += [vm(f"buffer_store_dword v{N1+4*ss}, v{N1+4*ss+1}, s[{SR_WS}:{SR_WS+3}], s{T4} offen sc1", "yst") for ss in range(3)]
        e = sl.stream(fin(R1, YD1, YM1) + fin(R0, YD0, YM0), b2 + 1, P2_0 + 66, spill=3)
        assert e < P2_0 + 72, e
        e = sl.stream(n1, e + 1, e + 16)
        assert e < P2_0 + 100, e
        gpar = fu[("s2", (0, "par"))]
        PF2 = 231
        sl.put(660, [G([o(f"s_xor_b32 s{T0}, s{S_LID}, 1"), o(f"s_lshl_b32 s{T1}, s{T0}, 7"), o(f"s_add_u32 s{T1}, s{T1}, {WS_FLAG}")])])
        sl.put(661, [G([o(f"s_lshl_b32 s{T0}, s{T0}, 2"), o(f"s_add_u32 s{T0}, s{T0}, s{S_W}"), o(f"s_mul_i32 s{T0}, s{T0}, {18*1024}")]), o(f"s_add_u32 s{T0}, s{T0}, {WS_HX}")])
        pl = f"buffer_load_dword v242, off, s[{SR_WS}:{SR_WS+3}], s{T1} sc1"
        sl.put(662, [vm(pl, "hpoll1")])
        sl.put(SP_END - 3, [wvm("hpoll1")])
        sl.put(SP_END - 2, [o(f"v_readfirstlane_b32 s{T2}, v242")])
        M[SP_END + 1].setdefault("before", []).extend(
            [o(f"s_cmp_ge_u32 s{T2}, 1"), o("s_cbranch_scc1 L_hq_ok")] +
            self.spin("L_hq", [o(pl)], [o(f"v_readfirstlane_b32 s{T2}, v242"), o("s_nop 3"), o(f"s_cmp_ge_u32 s{T2}, 1")]))
        def hload(k, n, t, tag):
            sl.put(t, [o(f"s_add_u32 s{T6}, s{T0}, {k*1024}")])
            sl.put(t + 1, self.dload([f"buffer_load_dwordx4 a[{AZ+4*(k+q)}:{AZ+4*(k+q)+3}], v{V_L16}, s[{SR_WS}:{SR_WS+3}], s{T6} offen offset:{q*1024}" for q in range(n)], tag, True))
        for i in range(6):
            hload(2*i, 2, SP_END + 3 + 7*i, ("hp", i))
        tp = P2_0 + 40
        sl.put(tp - 13, [vm(pl, "hpoll2")])
        sl.put(tp - 2, [wvm("hpoll2")])
        sl.put(tp - 1, [o(f"v_readfirstlane_b32 s{T2}, v242")])
        M[tp + 2].setdefault("before", []).extend(
            [o(f"s_cmp_ge_u32 s{T2}, 2"), o("s_cbranch_scc1 L_hp_ok")] +
            self.spin("L_hp", [o(pl)], [o(f"v_readfirstlane_b32 s{T2}, v242"), o("s_nop 3"), o(f"s_cmp_ge_u32 s{T2}, 2")]))
        for i in range(3):
            hload(12 + 2*i, 2, tp + 4 + 8*i, ("hp", 6 + i))
        sl.put(gpar - 2, [wvm(("hp", 5))])
        for i in range(3):
            sl.put(gpar + 12 + 2*i - 2, [wvm(("hp", 6 + i))])
        for i in range(3, 9):
            st = stages[i]; slot = slot_of[st]
            prev = [j for j in range(i) if slot_of[stages[j]] == slot]
            if prev:
                t = lu[("s2", stages[prev[-1]])]; fbar(t); start = t + 1
            else:
                start = b2 + 1
            grps = self.dma_p2(st, slot, False, 250, 251, 0)
            if st[0] == 4:
                grps = [[o(f"s_and_b32 s{S_C}, s{S_W}, 1"), o(f"s_mul_i32 s{S_C}, s{S_C}, {16*1152}")]] + grps
                place(grps, start, 1)
            else:
                place(grps, start, 2)
        s4 = slot_of[(4, "both")]
        ins = [o("v_lshrrev_b32 v250, 5, v0"), o("v_lshlrev_b32 v250, 8, v250"),
               o("v_bfe_u32 v251, v0, 2, 2"), o("v_lshlrev_b32 v251, 6, v251"), o("v_add_u32 v250, v250, v251"),
               o("v_bfe_u32 v251, v0, 4, 1"), o("v_lshlrev_b32 v251, 5, v251"), o("v_add_u32 v250, v250, v251"),
               o("v_and_b32 v251, 3, v0"), o("v_lshlrev_b32 v251, 3, v251"), o("v_add_u32 v250, v250, v251"),
               o(f"v_add_u32 v{V_R8}, {s4*SLOT}, v250")]
        sl.stream(ins, P2_0 + 150, P2_0 + 175)
        self.pipe_reduce(sl, M, fu, lu, P2_0, N)
        for (u, half), tl in sorted(tile_last.items(), key=lambda x: x[1]):
            acc = ACC[u][half]
            par = half
            t = TMP + 8*par
            st = S_ST0 + par
            ins = [o(f"v_cvt_pk_bf16_f32 v{t+i}, v{acc+2*i}, v{acc+2*i+1}") for i in range(8)]
            if u == 3 and half == 1: continue
            if u < 3: ins += [o(f"s_add_u32 s{st}, s{S_QU[u]}, {half*2048}")]
            elif u == 3: ins += [o(f"s_mov_b32 s{st}, s{S_QN}")]
            else: ins += [o(f"s_mov_b32 s{st}, s{S_Q8}")]
            ins += self.dstore([f"buffer_store_dwordx4 v[{t}:{t+3}], v{V_L16}, s[{SR_WS}:{SR_WS+3}], s{st} offen",
                                f"buffer_store_dwordx4 v[{t+4}:{t+7}], v{V_L16}, s[{SR_WS}:{SR_WS+3}], s{st} offen offset:1024"], ("pst", u))
            s0 = tl + 4
            if s0 + 10 <= N: sl.stream(ins, s0, s0 + 10)
            else: self.tail2 = [o("s_nop 15")] + ins

    def item_setup(self, kind, R, srd=None, split=False):
        t0, t1, t2, t3 = R["t"]
        sQ, sH, sB, sT = T2, T3, T4, T5
        L = []
        LD = []
        SW = SR_WS if srd is None else srd
        if kind == "A":
            L += [G([o(f"s_lshl_b32 s{sT}, s{S_J}, 2"), o(f"s_add_u32 s{sT}, s{sT}, s{S_W}"), o(f"s_lshr_b32 s{sQ}, s{sT}, 3")]),
                  G([o(f"s_cmp_lt_u32 s{sQ}, 4"), o(f"s_cselect_b32 s{sH}, 0, 6"), o(f"s_add_u32 s{sQ}, s{sQ}, s{sH}")])]
        elif kind in "BC":
            lo, hi = (4, 12) if kind == "B" else (6, 14)
            L += [G([o(f"s_lshl_b32 s{sT}, s{S_J}, 1"), o(f"s_lshr_b32 s{sH}, s{S_W}, 1"), o(f"s_add_u32 s{sT}, s{sT}, s{sH}")]),
                  G([o(f"s_lshr_b32 s{sQ}, s{sT}, 3"), o(f"s_cmp_lt_u32 s{sQ}, 2"), o(f"s_cselect_b32 s{sH}, {lo}, {hi}")]),
                  o(f"s_add_u32 s{sQ}, s{sQ}, s{sH}")]
        else:
            L += [G([o(f"s_lshr_b32 s{sT}, s{S_J}, 1"), o(f"s_and_b32 s{sQ}, s{S_J}, 1"), o(f"s_add_u32 s{sQ}, s{sQ}, 8")])]
        L += [G([o(f"s_and_b32 s{sH}, s{sT}, 1"), o(f"s_bfe_u32 s{sB}, s{sT}, 0x20001"), o(f"s_lshl_b32 s{sT}, s{S_MT}, 2")]),
              o(f"s_add_u32 s{sB}, s{sB}, s{sT}"),
              G([o(f"s_mul_i32 s{sT}, s{sB}, 18"), o(f"s_add_u32 s{sT}, s{sT}, s{sQ}"), o(f"s_lshl_b32 s{sT}, s{sT}, 1")]),
              G([o(f"s_add_u32 s{sT}, s{sT}, s{sH}"), o(f"s_lshl_b32 s{sT}, s{sT}, 10")])]
        so = R["so"]
        for p in range(8): L += [o(f"s_add_u32 s{so+p}, s{sT}, {p*PART_BYTES}")]
        if kind == "A":
            L += [o(f"v_mov_b32 v{t3}, 0")]
        elif kind in "BC":
            L += [o(f"s_and_b32 s{sT}, s{S_W}, 1"), o(f"v_bfe_u32 v{t0}, v0, 4, 1"), o(f"v_mov_b32 v{t1}, {OOB:#x}"), o(f"v_mov_b32 v{t3}, 0"),
                  G([o(f"v_cmp_eq_u32 vcc, s{sT}, v{t0}"), o("v_nop"), o("v_nop"), o(f"v_cndmask_b32 v{t3}, v{t1}, v{t3}, vcc")])]
        else:
            L += [o(f"v_bfe_u32 v{t0}, v0, 3, 2"), o(f"v_mov_b32 v{t1}, {OOB:#x}"), o(f"v_mov_b32 v{t3}, 0"),
                  G([o(f"v_cmp_eq_u32 vcc, s{S_W}, v{t0}"), o("v_nop"), o("v_nop"), o(f"v_cndmask_b32 v{t3}, v{t1}, v{t3}, vcc")])]
        PV = R["PV"]
        L += [o(f"v_add_u32 v{PV}, v{t3}, v{V_L16}")]
        pk, pb = R["P"]
        ldp = [vm(f"buffer_load_dwordx4 {pk}[{pb+4*p}:{pb+4*p+3}], v{PV}, s[{SW}:{SW+3}], s{so+p} offen sc1", ("it", kind)) for p in range(8)]
        if split: LD += ldp
        else: L += ldp
        X, Y, OA = R["X"], R["Y"], R["OA"]
        L += [o(f"s_lshl_b32 s{sT}, s{sB}, 4"), o(f"v_and_b32 v{t0}, 15, v0"), o(f"v_add_u32 v{t0}, s{sT}, v{t0}"),
              o(f"v_sub_u32 v{t1}, 2048, v{t0}"), o(f"v_mov_b32 v{t2}, 1024"), o(f"v_mov_b32 v{OA}, 0"),
              G([o(f"v_cmp_eq_u32 vcc, 0, v{t0}"), o("v_nop"), o("v_nop"), o(f"v_cndmask_b32 v{X}, v{t1}, v{t2}, vcc"),
                 o(f"v_cndmask_b32 v{t1}, v{t1}, v{OA}, vcc"), o(f"v_cndmask_b32 v{t2}, v{t0}, v{t2}, vcc")]),
              o(f"v_and_b32 v{OA}, 16, v0"),
              G([o(f"v_cmp_eq_u32 vcc, 0, v{OA}"), o("v_nop"), o("v_nop"), o(f"v_cndmask_b32 v{t0}, v{X}, v{t0}, vcc"), o(f"v_cndmask_b32 v{t1}, v{t2}, v{t1}, vcc")]),
              G([o(f"s_lshl_b32 s{sT}, s{sQ}, 6"), o(f"s_lshl_b32 s{sB}, s{sH}, 5"), o(f"s_add_u32 s{sT}, s{sT}, s{sB}")]),
              o(f"v_mul_u32_u24 v{t2}, 1152, v{t0}"), o(f"v_add_u32 v{t2}, s{sT}, v{t2}"), o(f"v_add_u32 v{t2}, v{t2}, v{t3}"),
              o(f"v_lshrrev_b32 v{X}, 5, v0"), o(f"v_lshlrev_b32 v{OA}, 4, v{X}"), o(f"v_add_u32 v{OA}, v{t2}, v{OA}"),
              o(f"v_lshlrev_b32 v{X}, 3, v{X}"), o(f"v_add_u32 v{t2}, v{t2}, v{X}"),
              vm(f"buffer_load_dwordx2 v[{X}:{X+1}], v{t2}, s[{SR_X}:{SR_X+3}], 0 offen", ("it", kind)),
              vm(f"buffer_load_dwordx2 v[{X+2}:{X+3}], v{t2}, s[{SR_X}:{SR_X+3}], 0 offen offset:16", ("it", kind)),
              G([o(f"s_lshl_b32 s{sT}, s{sT}, 1"), o(f"s_cmp_lt_u32 s{sQ}, 9"), o(f"s_cselect_b32 s{R['rev']}, 0, 1")]),
              G([o(f"s_sub_u32 s{sB}, 2292, s{sT}"), o(f"s_cmp_lt_u32 s{sQ}, 9"), o(f"s_cselect_b32 s{sT}, s{sT}, s{sB}"), o(f"s_cselect_b32 s{sB}, 1, -1")]),
              G([o(f"v_cmp_eq_u32 vcc, 1, v{PV}") if False else o(f"v_mov_b32 v{t2}, s{R['rev']}"), o(f"v_cmp_eq_u32 vcc, 1, v{t2}"), o("v_nop"), o("v_nop"),
                 o(f"v_cndmask_b32 v{t0}, v{t0}, v{t1}, vcc")]),
              o(f"v_mul_u32_u24 v{t0}, {YP}, v{t0}"), o(f"v_add_u32 v{t0}, s{sT}, v{t0}"), o(f"v_add_u32 v{t0}, v{t0}, v{t3}"),
              o(f"v_lshrrev_b32 v{t1}, 5, v0"), o(f"v_lshlrev_b32 v{t1}, 4, v{t1}"), o(f"v_mul_lo_u32 v{t1}, v{t1}, s{sB}"),
              o(f"v_add_u32 v{t0}, v{t0}, v{t1}"),
              o(f"s_lshl_b32 s{sB}, s{sB}, 5"), o(f"v_add_u32 v{t1}, s{sB}, v{t0}"), o(f"v_add_u32 v{t0}, {WS_YH}, v{t0}"), o(f"v_add_u32 v{t1}, {WS_YH}, v{t1}")]
        ldy = [vm(f"buffer_load_dwordx4 v[{Y}:{Y+3}], v{t0}, s[{SW}:{SW+3}], 0 offen sc1", ("it", kind)),
               vm(f"buffer_load_dwordx4 v[{Y+4}:{Y+7}], v{t1}, s[{SW}:{SW+3}], 0 offen sc1", ("it", kind))]
        if split:
            LD += ldy
            return L, LD
        return L + ldy

    def item_finish(self, kind, R):
        X, Y, OA = R["X"], R["Y"], R["OA"]
        t0, t1, t2, t3 = R["t"]
        pk, pb = R["P"]
        L = [wvm(("it", kind)),
             o(f"s_cmp_eq_u32 s{R['rev']}, 0"), o(f"s_cbranch_scc1 L_rv{kind}"),
             o(f"v_swap_b32 v{Y}, v{Y+3}"), o(f"v_swap_b32 v{Y+1}, v{Y+2}"), o(f"v_swap_b32 v{Y+4}, v{Y+7}"), o(f"v_swap_b32 v{Y+5}, v{Y+6}"),
             raw(f"L_rv{kind}:"),
             o(f"s_mov_b32 s{T0}, 0x3f80"), o(f"s_mov_b32 s{T1}, 0x3f800000")]
        for i in range(4):
            L += [o(f"v_dot2_f32_bf16 v{Y+2*i}, v{X+i}, s{T0}, v{Y+2*i}"), o(f"v_dot2_f32_bf16 v{Y+2*i+1}, v{X+i}, s{T1}, v{Y+2*i+1}")]
        for p in range(8):
            for i in range(4):
                r = pb + 4*p + i
                if pk == "a":
                    L += [o(f"v_accvgpr_read_b32 v{t0 + (i & 1)}, a{r}")]
                    src = t0 + (i & 1)
                else: src = r
                L += [o(f"v_dot2_f32_bf16 v{Y+2*i}, v{src}, s{T0}, v{Y+2*i}"), o(f"v_dot2_f32_bf16 v{Y+2*i+1}, v{src}, s{T1}, v{Y+2*i+1}")]
        L += [o("s_nop 2")]
        for i in range(4):
            L += [o(f"v_cvt_pk_bf16_f32 v{X+i}, v{Y+2*i}, v{Y+2*i+1}")]
        L += [o("s_nop 1"), o(f"v_permlane32_swap_b32 v{X}, v{X+2}"), o(f"v_permlane32_swap_b32 v{X+1}, v{X+3}"),
              vm(f"buffer_store_dwordx4 v[{X}:{X+3}], v{OA}, s[{SR_OUT}:{SR_OUT+3}], 0 offen", "out")]
        return L

    def group_poll(self, label, val, vdst, voff):
        ld = f"buffer_load_dword v{vdst}, v{voff}, s[{SR_WS}:{SR_WS+3}], s{T6} offen sc1"
        chk = [o(f"v_cmp_le_u32 vcc, {val}, v{vdst}"), o("s_nop 0"), o(f"s_and_b32 s{T7}, vcc_lo, 0xff"), o(f"s_cmp_eq_u32 s{T7}, 0xff")]
        return ld, chk

    def items_cfg(self):
        self.RA = dict(P=("v", 80), X=112, Y=116, OA=124, PV=125, t=[126, 127, 16, 17], rev=24, so=16)
        self.RB = dict(P=("a", 0), X=18, Y=22, OA=30, PV=31, t=[48, 49, 50, 51], rev=25, so=16)
        self.RC = dict(P=("v", 176), X=208, Y=212, OA=220, PV=221, t=[222, 223, 224, 225], rev=26, so=16)
        self.RD = dict(P=("v", 128), X=160, Y=164, OA=172, PV=173, t=[174, 175, 226, 227], rev=27, so=84)

    def tail(self):
        L = list(self.late_loads)
        O = 128
        L += [wvm([("pst", 3), ("pst", 4)]), o("s_barrier"), o("v_mov_b32 v240, 5"),
              vm(f"buffer_store_dword v240, v{V_ONE0}, s[{SR_WS}:{SR_WS+3}], s{S_FL} offen sc1", "fl5")]
        ld, chk = self.group_poll("L_f5", 5, 241, 242)
        L += [vm(ld, "fp5")]
        L += self.stamp("pub")
        RD = dict(P=("v", 176), X=208, Y=212, OA=220, PV=221, t=[222, 223, 224, 225], rev=26, so=84)
        Ad, Ld = self.item_setup("D", RD, split=True)
        xl = [i for i in Ad if getattr(i, "k", None) == "vm"]
        L += flat(Ad)
        L += [wvm("op"), wvm("ox"), o(f"s_mov_b32 s{T0}, 0x3f80"), o(f"s_mov_b32 s{T1}, 0x3f800000"),
              o("s_cmp_eq_u32 s24, 0"), o("s_cbranch_scc1 L_oyd")]
        for g_ in range(4):
            for k in range(4): L += [o(f"v_add_f32 v{O+4*g_+k}, v{O+4*g_+k}, v{48 + 4*(3-g_) + 3 - k}")]
        L += [o("s_branch L_oyj"), raw("L_oyd:")]
        for r in range(16): L += [o(f"v_add_f32 v{O+r}, v{O+r}, v{48+r}")]
        L += [raw("L_oyj:")]
        for i in range(8):
            L += [o(f"v_dot2_f32_bf16 v{O+2*i}, v{24+i}, s{T0}, v{O+2*i}"), o(f"v_dot2_f32_bf16 v{O+2*i+1}, v{24+i}, s{T1}, v{O+2*i+1}")]
        for p in range(6):
            for i in range(8):
                L += [o(f"v_dot2_f32_bf16 v{O+2*i}, v{80+8*p+i}, s{T0}, v{O+2*i}"), o(f"v_dot2_f32_bf16 v{O+2*i+1}, v{80+8*p+i}, s{T1}, v{O+2*i+1}")]
        L += self.stamp("early")
        L += [wvm("fp5")] + chk + [o("s_cbranch_scc1 L_f5_ok")] + self.spin("L_f5", [o(ld)], chk) + [reset()]
        L += self.stamp("pok")
        L += [vm(f"buffer_load_dwordx4 v[16:19], v{V_L16}, s[{SR_WS}:{SR_WS+3}], s22 offen sc1", "sib"),
              vm(f"buffer_load_dwordx4 v[20:23], v{V_L16}, s[{SR_WS}:{SR_WS+3}], s22 offen offset:1024 sc1", "sib")]
        L += Ld
        L += [wvm("sib")]
        for i in range(8):
            L += [o(f"v_dot2_f32_bf16 v{O+2*i}, v{16+i}, s{T0}, v{O+2*i}"), o(f"v_dot2_f32_bf16 v{O+2*i+1}, v{16+i}, s{T1}, v{O+2*i+1}")]
        L += [o("s_nop 2")]
        for i in range(8): L += [o(f"v_cvt_pk_bf16_f32 v{24+i}, v{O+2*i}, v{O+2*i+1}")]
        L += [o("s_nop 1"), o("v_permlane32_swap_b32 v24, v26"), o("v_permlane32_swap_b32 v25, v27"),
              o("v_permlane32_swap_b32 v28, v30"), o("v_permlane32_swap_b32 v29, v31"),
              vm(f"buffer_store_dwordx4 v[24:27], v238, s[{SR_OUT}:{SR_OUT+3}], 0 offen", "out"),
              vm(f"buffer_store_dwordx4 v[28:31], v238, s[{SR_OUT}:{SR_OUT+3}], 0 offen offset:32", "out")]
        L += self.stamp("ownfin")
        L += self.item_finish("D", RD)
        return L

    def kernel(self, name):
        L = [raw(f".globl {name}"), raw(".p2align 8"), raw(f".type {name},@function"), raw(f"{name}:")]
        L += self.prologue()
        L += self.ln_stats()
        L += self.stamp("stats")
        L += [o("s_barrier")]
        L += [o(f"s_mov_b32 s{S_A}, s{S_J}"), o(f"s_add_u32 s{S_B}, s{S_J}, 16")]
        L += self.h_dma(S_A, 2, "wz1")
        L += [o(f"s_cmp_lt_u32 s{S_J}, 2"), o("s_cbranch_scc0 L_noz2a")]
        L += [I(i.t, "o") if i.k == "vm" else i for i in self.h_dma(S_B, 3, "wz2")]
        L += [raw("L_noz2a:")]
        for sig in range(2):
            for grp in self.dma_p1(sig, sig): L += grp
        if self.opts.get("bulk", 1):
            L += [o(f"s_lshl_b32 s{T0}, s{S_LID}, 2"), o(f"s_add_u32 s{T0}, s{T0}, s{S_W}"), o(f"s_mul_i32 s{T0}, s{T0}, 41"),
                  o(f"v_add_u32 v240, s{T0}, v0"), o("v_lshlrev_b32 v240, 7, v240"), o("v_cmp_gt_u32 vcc, 41, v0"), o(f"v_mov_b32 v241, {OOB:#x}"), o("s_nop 0"),
                  o("v_cndmask_b32 v240, v241, v240, vcc")]
            for rs in ((SR_WG, SR_WU) if self.opts.get("bulk", 1) == 1 else (SR_WG, SR_WU, SR_WD)):
                L += [vm(f"buffer_load_dword v{V_PF}, v240, s[{rs}:{rs+3}], 0 offen", "pf")]
        L += self.ln_finish()
        L += [o(f"v_subrev_u32 v{V_XA+i}, s{S_LX}, v{V_XA+i}") for i in range(4)]
        L += [o(f"v_add_u32 v{V_XA+i}, {2*SLOT}, v{V_XA+i}") for i in range(4)]
        L += self.stamp("lnfin")
        nb = {0: 0, 1: 2, 2: 3}[self.opts.get("bulk", 1)]
        L += [o(f"s_waitcnt vmcnt({18 + nb})")]
        L += self.h_special(S_A, 2, "a")
        L += [o("s_waitcnt lgkmcnt(0)"), o("s_barrier")]
        L += self.seg_norm_h()
        L += self.stamp("normH")
        L += self.h2_block()
        L += self.tr_bases()
        L += srd(SR_HZ, 36, 256)
        L += self.main()
        L += self.stamp("p2end")
        L += self.tail()
        L += self.stamp("end")
        if self.diag:
            L += [o("s_waitcnt vmcnt(0)"),
                  o(f"s_lshl_b32 s{T0}, s{S_LID}, 2"), o(f"s_add_u32 s{T0}, s{T0}, s{S_W}"), o(f"s_lshl_b32 s{T0}, s{T0}, 8"),
                  o(f"s_add_u32 s{T0}, s{T0}, {WS_STAMP}"), o("v_lshlrev_b32 v240, 2, v0"),
                  o(f"buffer_store_dword v{V_STAMP}, v240, s[{SR_WS}:{SR_WS+3}], s{T0} offen")]
        L += [raw("L_end:"), o("s_endpgm")]
        return finalize(flat(L))

NAME = "parallel_sum__spectral_fnet__geglu_ffn__prompt_kernel"
def build(diag=False, opts=None):
    hdr = open("parallel_sum__spectral_fnet__geglu_ffn__prompt.s.ref").read().split("\n")
    top = [l for l in hdr if l.startswith(";") and "@launch" not in l and "Override" not in l and "grid=ceil" not in l]
    g = Gen(diag, opts)
    lines = g.kernel(NAME)
    errs = hazard_check(lines)
    for e in errs[:30]: print("HAZARD:", e)
    txt = "\n".join(top) + "\n"
    txt += "; @launch grid=(256,1,1) block=(256,1,1) lds=163840\n"
    txt += '.amdgcn_target "amdgcn-amd-amdhsa--gfx950"\n.text\n'
    txt += "\n".join(lines) + "\n" + kernel_footer(NAME)
    return txt, g.names

if __name__ == "__main__":
    import sys, json
    opts = {}
    for a in sys.argv[2:]:
        if "=" in a:
            k, v = a.split("="); opts[k] = int(v)
    txt, names = build("diag" in sys.argv, opts)
    open(sys.argv[1], "w").write(txt)
    json.dump(names, open(sys.argv[1] + ".names", "w"))
```

```python
from fw import *
from sched import *
import math, struct

S, D, F = 2048, 576, 4608
SLOT = 36864
SPARE = 4*SLOT
PART_BYTES = S * D * 2
WS_PART = 0
WS_HX = 20 << 20
WS_ZF = 40 << 20
ZF_STRIDE = 66 * 1024
WS_YH = 42 << 20
YP = 320 * 4
WS_FLAG = 46 << 20
WS_STAMP = 48 << 20
OOB = 0x40000000
C0 = -2.0 * math.sqrt(2.0 / math.pi) * math.log2(math.e)
C1 = C0 * 0.044715
def f2u(f): return struct.unpack("<I", struct.pack("<f", f))[0]

V_L16 = 1
V_RA, V_RB = 2, 6
V_DM = 10
V_C0, V_C1 = 14, 15
GA = [[16, 32], [48, 64]]
UA = [[80, 96], [112, 128]]
HF = 144
TMP = 216
V_HACC = 232
V_XA = 248
V_R8 = 248
V_PF = 252
V_ONE0 = 253
V_D2 = 254
V_STAMP = 255
RX = 80
V_PERM = 224
V_NEGMU = 64
V_ONE = 231
V_SD = 232
V_SA = 236
V_SX = 240
V_ZP = 241
V_ZQ = 244
V_YC = [247, 250, 251]
V_LB = 232
AX = 0
AF = 144
NAF = 8
AZ = 176
SR_CS, SR_SS, SR_HZ, SR_X, SR_WG, SR_WU, SR_WD, SR_WS, SR_OUT = 4, 8, 12, 40, 44, 48, 52, 56, 60
S_W, S_MT, S_J = 64, 65, 66
S_LX, S_L9 = 67, 68
S_UB = 69
S_WD = 74
S_PB = 75
T0, T1, T2, T3, T4, T5, T6, T7 = 76, 77, 78, 79, 80, 81, 82, 83
S_N0 = 84
S_N1 = 16
S_CU = 25
S_Q0, S_Q8 = 30, 31
S_HB = 32
S_LID = 33
S_ST0, S_ST1 = 34, 35
S_CNT = 93
S_A, S_B, S_C = 94, 95, 96
S_TAU, S_ZB = 38, 39
S_PF = 97
S_XC = 0
S_QU = [30, 36, 37]
S_QN = 39
S_TO = 32
S_GA = 28
S_FL = 1
S_MODE = 2
S_D0 = 3

def srd(dst, ptr, nbytes):
    return [o(f"s_mov_b32 s{dst}, s{ptr}"), o(f"s_and_b32 s{dst+1}, s{ptr+1}, 0xffff"),
            o(f"s_mov_b32 s{dst+2}, {nbytes}"), o(f"s_mov_b32 s{dst+3}, 0x00020000")]
def mf32(acc, A, B, C): return o(f"v_mfma_f32_32x32x16_bf16 {acc}, {A}, {B}, {C}")
def mf16(acc, A, B, C): return o(f"v_mfma_f32_16x16x32_bf16 {acc}, {A}, {B}, {C}")

class DS2(I):
    pass

class Gen:
    def dload(self, texts, tag, pair=False):
        out = self.dstore(texts, tag, pair)
        if hasattr(out[0], "cost"): out[0].cost = 3 + len(texts)
        return out
    def dstore(self, texts, tag, pair=False):
        self.lab = getattr(self, "lab", 0) + 1
        n = self.lab
        if self.opts.get("forcemode") == 1 or not self.opts.get("local", 1) or (self.opts.get("cfg", 0) == 0 and not pair):
            return [vm(t + " sc1", tag) for t in texts]
        body = f"s_bitcmp1_b32 s{S_MODE}, 0\n    s_cbranch_scc1 L_dl{n}\n"
        body += "".join(f"    {t} sc1\n" for t in texts)
        body += f"    s_branch L_dj{n}\nL_dl{n}:\n"
        body += "".join(f"    {t}\n" for t in texts)
        body += f"L_dj{n}:"
        out = [I("buffer_store_multi " + body, "vm", tag)]
        out[0].t = body
        out[0].cost = 3 + 5*len(texts)
        for _ in texts[1:]:
            x = I("; (counted above)", "vm", tag); x.cost = 0; out.append(x)
        return out
    def __init__(self, diag=False, opts=None):
        self.osfx = ' sc1' if (opts or {}).get('osc1') else ''
        self.diag = diag; self.opts = opts or {}; self.nst = 0; self.names = []; self.pid = 0
    def stamp(self, name):
        if not self.diag: return []
        i = self.nst; self.nst += 1; self.names.append(name)
        return [o("s_memtime s[98:99]"), o("s_memrealtime s[100:101]"), o("s_waitcnt lgkmcnt(0)"),
                o(f"v_writelane_b32 v{V_STAMP}, s98, {i}"), o(f"v_writelane_b32 v{V_STAMP}, s100, {i+32}")]

    def paced(self, M, frags, setup, dist):
        N = len(M)
        sl = Slots(N)
        for g, m in enumerate(M):
            if m["op"] == 16: sl.budget[g] = 3
        head = []
        pid = self.pid; self.pid += 1
        def put(t, ins):
            if t < 0: head.extend(ins if isinstance(ins, list) else [ins])
            else: sl.put(t, ins)
        issue = {}
        for f, fr in enumerate(frags):
            t = fr["use"] - fr.get("dist", dist)
            issue[f] = t
            put(t, fr.get("pre", []))
            put(t, [ds(r, ("af", pid, f)) for r in fr["reads"]])
        waited = -1
        n0 = M[0]["need"]
        if n0 >= 0:
            tgt = max(n0, M[1]["need"])
            head.append(wlg(("af", pid, tgt))); waited = tgt
        for g in range(N - 1):
            nx = M[g+1]["need"]
            if nx > waited:
                tgt = nx
                if g + 2 < N and M[g+2]["need"] > nx and issue[M[g+2]["need"]] <= g - 3 and M[g+1]["op"] == 32: tgt = M[g+2]["need"]
                put(g, [wlg(("af", pid, tgt))]); waited = tgt
        setup(sl, head)
        L = list(head)
        for g, m in enumerate(M):
            L += m.get("before", [])
            c = "0" if m["first"] else m.get("C", m["acc"])
            if m.get("C") and m["first"]: c = m["C"]
            L.append((mf32 if m["op"] == 32 else mf16)(m["acc"], m["A"], m["B"], c))
            L += sl.emit(g)
        if self.opts.get("verbose"):
            over = [(g, sl.used[g], sl.budget[g]) for g in range(N) if sl.used[g] > sl.budget[g]]
            print(f"paced {pid}: N={N} over budget: {len(over)} total excess {sum(u-b for _,u,b in over)} avg used {sum(sl.used)/N:.2f}")
            if self.opts.get("verbose") > 1:
                for a in range(0, N, 36):
                    ex = sum(max(0, sl.used[g]-sl.budget[g]) for g in range(a, min(a+36, N)))
                    print(a, "used", sum(sl.used[a:a+36]), "budget", sum(sl.budget[a:a+36]), "excess", ex)
        return L

    def prologue(self):
        L = []
        if self.diag: L += [o(f"v_mov_b32 v{V_STAMP}, 0")]
        L += self.stamp("start")
        L += [o("s_load_dwordx16 s[16:31], s[0:1], 0"), o("s_load_dwordx8 s[32:39], s[0:1], 64"),
              o("s_cmp_ge_u32 s2, 256"), o("s_cbranch_scc1 L_end")]
        L += [o("v_lshrrev_b32 v2, 6, v0"), o("v_and_b32 v0, 63, v0"), o("s_nop 0"),
              o(f"v_readfirstlane_b32 s{S_W}, v2"),
              ] + self.idmap() + [
              o(f"s_mul_i32 s{S_LX}, s{S_W}, {SLOT}"), o(f"s_mul_i32 s{S_L9}, s{S_W}, 9216"),
              o(f"v_lshlrev_b32 v{V_L16}, 4, v0")]
        L += [o("v_lshrrev_b32 v2, 3, v0"), o("v_and_b32 v3, 7, v0"), o("v_lshrrev_b32 v4, 1, v2"),
              o("v_xor_b32 v3, v3, v4"), o("v_lshlrev_b32 v3, 4, v3"), o("v_xor_b32 v4, 64, v3"),
              o(f"s_lshl_b32 s{T0}, s{S_MT}, 6"), o(f"s_lshl_b32 s{T1}, s{S_W}, 4"), o(f"s_add_u32 s{T0}, s{T0}, s{T1}"),
              o(f"v_add_u32 v5, s{T0}, v2"), o("v_add_u32 v6, 8, v5"),
              o("v_sub_u32 v7, 2048, v5"), o("v_sub_u32 v8, 2048, v6"),
              o("v_cmp_eq_u32 vcc, 0, v5"), o("v_mov_b32 v9, 1024"), o("s_nop 0"),
              o("v_cndmask_b32 v7, v7, v9, vcc"),
              o(f"s_movk_i32 s{T1}, 1152"),
              o(f"v_mad_u32_u24 v240, v5, s{T1}, v3"), o(f"v_mad_u32_u24 v241, v6, s{T1}, v4"),
              o(f"v_mad_u32_u24 v242, v7, s{T1}, v3"), o(f"v_mad_u32_u24 v243, v8, s{T1}, v4")]
        if self.opts.get("xpf", 1):
            nsh = 16 if self.opts.get("cfg", 0) == 1 else 4
            per = 1152 // nsh // 4
            assert per <= 64 or True
            jj = f"s{S_J}"
            L += [o(f"s_and_b32 s{T0}, s{S_J}, {nsh-1}"), o(f"s_lshl_b32 s{T0}, s{T0}, 2"), o(f"s_add_u32 s{T0}, s{T0}, s{S_W}"), o(f"s_mul_i32 s{T0}, s{T0}, {per}"),
                  o(f"v_add_u32 v9, s{T0}, v0"),
                  o(f"s_mul_i32 s{T0}, s{S_MT}, {64*1152}"),
                  o(f"s_sub_u32 s{T1}, {(2048-63)*1152 - 576*128}, s{T0}"),
                  o("v_lshlrev_b32 v8, 7, v9"), o(f"v_add_u32 v7, s{T1}, v8"), o(f"v_add_u32 v8, s{T0}, v8"),
                  o("v_cmp_gt_u32 vcc, 0x240, v9"), o("s_nop 1"), o("v_cndmask_b32 v9, v7, v8, vcc"),
                  o(f"v_cmp_gt_u32 vcc, {min(per,64)}, v0"), o(f"v_mov_b32 v8, {OOB:#x}"), o("s_nop 0"), o("v_cndmask_b32 v9, v8, v9, vcc")]
        L += [o("s_waitcnt lgkmcnt(0)")]
        L += self.stamp("kernarg")
        L += srd(SR_X, 16, S*D*2)
        if self.opts.get("xpf", 1):
            L += [vm(f"buffer_load_dword v{V_PF}, v9, s[{SR_X}:{SR_X+3}], 0 offen", "pf")]
        for kap in range(9):
            for rho in range(4):
                L += [o(f"s_add_u32 m0, s{S_LX}, {(4*kap+rho)*1024 - 128*kap}"), o("s_nop 0") if rho == 0 else o("s_nop 0"),
                      vm(f"buffer_load_dwordx4 v{240+rho}, s[{SR_X}:{SR_X+3}], 0 offen offset:{128*kap} lds", ("x", kap))]
        L += srd(SR_WG, 28, D*F*2) + srd(SR_WU, 30, D*F*2) + srd(SR_WD, 32, F*D*2) + srd(SR_WS, 38, 256 << 20) + srd(SR_OUT, 34, S*D*2)
        L += srd(SR_CS, 18, S*S*2) + srd(SR_SS, 20, S*S*2)
        L += [o(f"s_lshl_b32 s{T0}, s{S_W}, 6"), o(f"v_add_u32 v2, s{T0}, v0"), o("v_cmp_eq_u32 vcc, 0, v2"),
              o(f"v_mov_b32 v3, {OOB:#x}"), o("v_mov_b32 v4, 0"), o(f"v_cndmask_b32 v{V_ONE0}, v3, v4, vcc")]
        L += [o(f"s_lshl_b32 s{S_LID}, s{S_MT}, 4"), o(f"s_add_u32 s{S_LID}, s{S_LID}, s{S_J}"),
              o(f"s_lshl_b32 s{T0}, s{S_LID}, 7"), o(f"s_add_u32 s{T0}, s{T0}, {WS_FLAG}"),
              vm(f"buffer_store_dword v4, v{V_ONE0}, s[{SR_WS}:{SR_WS+3}], s{T0} offen sc1", "flinit")]
        L += [o(f"s_getreg_b32 s{T0}, hwreg(HW_REG_XCC_ID, 0, 4)"), o(f"s_add_u32 s{T0}, s{T0}, 1"),
              o(f"s_and_b32 s{T1}, s{S_LID}, 7"), o(f"s_lshl_b32 s{T1}, s{T1}, 2"), o(f"s_lshl_b32 s{T0}, s{T0}, s{T1}"),
              o(f"s_lshr_b32 s{T1}, s{S_LID}, 3"), o(f"s_lshl_b32 s{T1}, s{T1}, 2")]
        L += srd(SR_HZ, 36, 256)
        L += [o(f"v_mov_b32 v2, s{T0}"), vm(f"buffer_atomic_or v2, v{V_ONE0}, s[{SR_HZ}:{SR_HZ+3}], s{T1} offen sc1", "xccpub")]
        L += [o(f"s_and_b32 s{T2}, s{S_J}, 1"), o(f"s_mul_i32 s{T0}, s{S_J}, 288"), o(f"s_mul_i32 s{T1}, s{T2}, 224"),
              o(f"s_add_u32 s{T1}, s{T0}, s{T1}"),
              o(f"s_cmp_eq_u32 s{T2}, 0"), o(f"s_cselect_b32 s{T3}, 64, -64"), o(f"s_cselect_b32 s{T4}, 256, 0"),
              o(f"s_add_u32 s{T4}, s{T4}, s{T0}")]
        for u in range(4):
            L += [o(f"s_mul_i32 s{T5}, s{T3}, {u}"), o(f"s_add_u32 s{T5}, s{T5}, s{T1}"),
                  o(f"s_lshl_b32 s{S_UB+u}, s{T5}, 1"),
                  o(f"s_mul_i32 s{S_N0+2*u}, s{T5}, 1152"), o(f"s_add_u32 s{S_N0+2*u+1}, s{S_N0+2*u}, {32*1152}")]
        L += [o(f"s_lshl_b32 s{S_UB+4}, s{T4}, 1"), o(f"s_mul_i32 s{S_N0+8}, s{T4}, 1152")]
        L += self.h_srd(S_J)
        if self.opts.get("pf", 1):
            L += [o(f"s_and_b32 s{T0}, s{S_MT}, 7"), o(f"s_mul_i32 s{T0}, s{T0}, 36"), o(f"s_mul_i32 s{T1}, s{S_W}, 9"), o(f"s_add_u32 s{T0}, s{T0}, s{T1}"),
                  o(f"v_add_u32 v2, s{T0}, v0"), o(f"v_mov_b32 v4, {OOB:#x}"),
                  o(f"s_mov_b32 s{T1}, {(2**32+8)//9}"), o(f"v_mul_hi_u32 v5, v2, s{T1}"), o("v_mul_u32_u24 v6, 9, v5"), o("v_sub_u32 v6, v2, v6"),
                  o(f"v_add_u32 v5, s{T7}, v5"), o(f"s_movk_i32 s{T1}, 1152"), o(f"v_mul_lo_u32 v5, v5, s{T1}"), o("v_lshlrev_b32 v6, 7, v6"), o("v_add_u32 v5, v5, v6"),
                  o(f"s_movk_i32 s{T1}, 9216"), o(f"v_mul_lo_u32 v3, v2, s{T1}"),
                  o("v_cmp_gt_u32 vcc, 9, v0"), o("s_nop 1"), o("v_cndmask_b32 v3, v4, v3, vcc"), o("v_cndmask_b32 v5, v4, v5, vcc"),
                  vm(f"buffer_load_dword v{V_PF}, v5, s[{SR_HZ}:{SR_HZ+3}], 0 offen", "pf")]
            L += [o(f"s_cmp_lt_u32 s{S_J}, 2"), o("s_cbranch_scc0 L_nopf2"),
                  o(f"s_sub_u32 s{T0}, {7*32*1152}, 0"), o(f"s_mul_i32 s{T1}, s{S_J}, {32*1152}"), o(f"s_add_u32 s{T0}, s{T0}, s{T1}"),
                  o(f"s_mul_i32 s{T1}, s{T7}, 1152"), o(f"s_sub_u32 s{T0}, s{T0}, s{T1}"),
                  o(f"v_add_u32 v6, s{T0}, v5"), o("v_cmp_gt_u32 vcc, 9, v0"), o("s_and_saveexec_b64 s[82:83], vcc"),
                  o(f"global_load_dword v{V_PF}, v6, s[24:25]"),
                  o("s_mov_b64 exec, s[82:83]"), raw("L_nopf2:")]
            for sig in range(self.opts.get("npf", 6)):
                u, mat, kh = sig // 4, (sig // 2) % 2, sig % 2
                rs = SR_WG if mat == 0 else SR_WU
                L += [o(f"s_add_u32 s{T6}, s{S_UB+u}, {kh*288*9216}"),
                      vm(f"buffer_load_dword v{V_PF}, v3, s[{rs}:{rs+3}], s{T6} offen", "pf")]
            L += [o("s_getpc_b64 s[82:83]"), raw("L_pc:"),
                  o(f"s_lshr_b32 s{T0}, s2, 3"), o(f"s_lshl_b32 s{T0}, s{T0}, 2"), o(f"s_add_u32 s{T0}, s{T0}, s{S_W}"),
                  o(f"s_lshl_b32 s{T0}, s{T0}, 9"),
                  o("v_and_b32 v2, 3, v0"), o("v_lshlrev_b32 v2, 7, v2"), o(f"v_add_u32 v2, s{T0}, v2"),
                  vm(f"global_load_dword v{V_PF}, v2, s[82:83]", "pf")]
        L += [o(f"s_mul_i32 s{T5}, s{S_W}, {72*9216}")]
        for u in range(4): L += [o(f"s_add_u32 s{S_UB+u}, s{S_UB+u}, s{T5}")]
        L += [o(f"s_lshl_b32 s{T5}, s{T5}, 1"), o(f"s_add_u32 s{S_UB+4}, s{S_UB+4}, s{T5}")]
        L += [o(f"s_lshr_b32 s{T0}, s{S_J}, 1"), o(f"s_mul_i32 s{S_PB}, s{T0}, {PART_BYTES}"),
              o(f"s_lshl_b32 s{T0}, s{S_MT}, 2"), o(f"s_add_u32 s{T0}, s{T0}, s{S_W}"),
              o(f"s_mul_i32 s{T0}, s{T0}, {18*2048}"), o(f"s_add_u32 s{S_PB}, s{S_PB}, s{T0}"),
              o(f"s_lshl_b32 s{T0}, s{S_LID}, 2"), o(f"s_add_u32 s{T0}, s{T0}, s{S_W}"),
              o(f"s_mul_i32 s{S_HB}, s{T0}, {18*1024}"), o(f"s_add_u32 s{S_HB}, s{S_HB}, {WS_HX}")]
        L += [o("v_lshrrev_b32 v2, 3, v0"), o("v_and_b32 v3, 7, v0"),
              o("v_bfe_u32 v4, v0, 4, 1"), o("v_lshlrev_b32 v4, 2, v4"), o("v_xor_b32 v3, v3, v4"), o("v_lshlrev_b32 v3, 4, v3"),
              o(f"s_movk_i32 s{T5}, 9216"), o(f"v_mad_u32_u24 v{V_DM}, v2, s{T5}, v3")]
        for t in range(1, 4): L += [o(f"v_add_u32 v{V_DM+t}, {t*(8*9216-1024)}, v{V_DM}")]
        L += [o("v_and_b32 v2, 31, v0"), o("v_bfe_u32 v3, v0, 1, 3"), o("v_lshrrev_b32 v4, 5, v0"), o("v_xor_b32 v3, v3, v4"),
              o("v_lshlrev_b32 v3, 4, v3"), o("v_lshlrev_b32 v2, 7, v2"), o("v_add_u32 v2, v2, v3"),
              o(f"v_add_u32 v{V_XA}, s{S_LX}, v2"),
              o(f"v_xor_b32 v{V_XA+1}, 32, v{V_XA}"), o(f"v_xor_b32 v{V_XA+2}, 64, v{V_XA}"), o(f"v_xor_b32 v{V_XA+3}, 96, v{V_XA}")]
        L += [o("v_and_b32 v2, 15, v0"),
              o("v_and_b32 v3, 3, v2"), o("v_bfe_u32 v4, v2, 2, 1"), o("v_bfe_u32 v5, v2, 3, 1"),
              o("v_lshlrev_b32 v4, 3, v4"), o("v_lshlrev_b32 v5, 2, v5"), o("v_or_b32 v3, v3, v4"), o("v_or_b32 v3, v3, v5"),
              o("v_lshrrev_b32 v4, 3, v3"),
              o("v_lshrrev_b32 v5, 5, v0"),
              o("v_cmp_eq_u32 vcc, v4, v5"),
              o("v_and_b32 v6, 1, v3"), o("v_lshlrev_b32 v6, 4, v6"), o("v_mov_b32 v7, 0x3f80"), o("v_lshlrev_b32 v7, v6, v7"),
              o("v_mov_b32 v8, 0"), o("v_cndmask_b32 v7, v8, v7, vcc"),
              o("v_bfe_u32 v6, v3, 1, 2"),
              o("v_bfe_u32 v9, v0, 4, 1")]
        for d in range(4):
            L += [o(f"v_cmp_eq_u32 vcc, {d}, v6"), o("s_nop 1"), o(f"v_cndmask_b32 v{V_PERM+d}, v8, v7, vcc")]
        L += [o("v_cmp_eq_u32 vcc, 1, v9"), o("s_nop 1")]
        for d in range(4):
            L += [o(f"v_cndmask_b32 v{V_PERM+4+d}, v8, v{V_PERM+d}, vcc")]
        for d in range(4):
            L += [o(f"v_cndmask_b32 v{V_PERM+d}, v{V_PERM+d}, v8, vcc")]
        return L

    def tr_bases(self):
        L = []
        L += [o("v_lshrrev_b32 v16, 5, v0"), o("v_lshlrev_b32 v16, 10, v16"),
              o("v_bfe_u32 v17, v0, 2, 2"), o("v_lshlrev_b32 v17, 7, v17"), o("v_add_u32 v16, v16, v17"),
              o("v_bfe_u32 v17, v0, 3, 1"), o("v_lshlrev_b32 v17, 6, v17"), o("v_add_u32 v16, v16, v17"),
              o("v_bfe_u32 v17, v0, 4, 1"), o("v_lshlrev_b32 v17, 5, v17"), o("v_add_u32 v16, v16, v17"),
              o("v_and_b32 v17, 3, v0"), o("v_lshlrev_b32 v17, 3, v17"), o(f"v_add_u32 v{V_RA}, v16, v17")]
        for s in range(1, 4): L += [o(f"v_add_u32 v{V_RA+s}, {s*SLOT}, v{V_RA}")]
        for s in range(4): L += [o(f"v_xor_b32 v{V_RB+s}, 64, v{V_RA+s}")]
        return L

    def idmap(self):
        cfg = self.opts.get("cfg", 0)
        if cfg == 0:
            return [o(f"s_and_b32 s{S_J}, s2, 3"), o(f"s_lshl_b32 s{S_J}, s{S_J}, 2"),
              o(f"s_bfe_u32 s{T0}, s2, 0x20003"), o(f"s_or_b32 s{S_J}, s{S_J}, s{T0}"),
              o(f"s_bfe_u32 s{S_MT}, s2, 0x10002"), o(f"s_lshl_b32 s{S_MT}, s{S_MT}, 3"),
              o(f"s_lshr_b32 s{T0}, s2, 5"), o(f"s_or_b32 s{S_MT}, s{S_MT}, s{T0}")]
        if cfg == 1:
            return [o(f"s_and_b32 s{S_MT}, s2, 7"), o(f"s_lshl_b32 s{S_MT}, s{S_MT}, 1"), o(f"s_bfe_u32 s{T0}, s2, 0x10003"),
                    o(f"s_or_b32 s{S_MT}, s{S_MT}, s{T0}"), o(f"s_lshr_b32 s{S_J}, s2, 4")]
        if cfg == 2:
            return [o(f"s_and_b32 s{S_J}, s2, 1"), o(f"s_lshl_b32 s{S_J}, s{S_J}, 3"),
              o(f"s_bfe_u32 s{T0}, s2, 0x30003"), o(f"s_or_b32 s{S_J}, s{S_J}, s{T0}"),
              o(f"s_bfe_u32 s{S_MT}, s2, 0x20001"), o(f"s_lshl_b32 s{S_MT}, s{S_MT}, 2"),
              o(f"s_lshr_b32 s{T0}, s2, 6"), o(f"s_or_b32 s{S_MT}, s{S_MT}, s{T0}")]

    def h_srd(self, zreg):
        return [o(f"s_cmp_lt_u32 s{zreg}, 9"),
                o(f"s_cselect_b32 s{SR_HZ}, s22, s24"), o(f"s_cselect_b32 s{SR_HZ+1}, s23, s25"), o(f"s_cselect_b32 s{T7}, 0, 9"),
                o(f"s_and_b32 s{SR_HZ+1}, s{SR_HZ+1}, 0xffff"), o(f"s_mov_b32 s{SR_HZ+2}, {D*D*2}"), o(f"s_mov_b32 s{SR_HZ+3}, 0x00020000"),
                o(f"s_sub_u32 s{T7}, s{zreg}, s{T7}"), o(f"s_lshl_b32 s{T7}, s{T7}, 5")]

    def h_dma(self, zreg, slot, tag):
        L = self.h_srd(zreg)
        L += [o(f"s_lshl_b32 s{T1}, s{S_W}, 3"), o(f"s_add_u32 s{T0}, s{T7}, s{T1}"),
             o("v_lshrrev_b32 v240, 3, v0"), o("v_and_b32 v241, 7, v0"), o("v_lshrrev_b32 v242, 1, v240"), o("v_xor_b32 v241, v241, v242"),
             o(f"s_and_b32 s{T1}, s{S_W}, 1"), o(f"s_lshl_b32 s{T1}, s{T1}, 2"), o(f"v_xor_b32 v241, s{T1}, v241"),
             o("v_lshlrev_b32 v241, 4, v241"),
             o(f"v_add_u32 v240, s{T0}, v240"), o(f"s_movk_i32 s{T1}, 1152"), o(f"v_mad_u32_u24 v240, v240, s{T1}, v241"),
             o(f"s_lshl_b32 s{T1}, s{S_W}, 10"), o(f"s_add_u32 s{T1}, s{T1}, {slot*SLOT}")]
        for kap in range(9):
            L += [o(f"s_add_u32 m0, s{T1}, {4*kap*1024 - 128*kap}"), o("s_nop 0"),
                  vm(f"buffer_load_dwordx4 v240, s[{SR_HZ}:{SR_HZ+3}], 0 offen offset:{128*kap} lds", tag)]
        return L

    def h_special(self, zreg, slot, sfx):
        return [o(f"s_cmp_eq_u32 s{zreg}, 9"), o(f"s_cbranch_scc0 L_h_nosp{sfx}"), o(f"s_cmp_eq_u32 s{S_W}, 0"), o(f"s_cbranch_scc0 L_h_nosp{sfx}"),
                o("v_mov_b32 v16, 0xbf803f80"), o("v_mov_b32 v17, v16"), o("v_mov_b32 v18, v16"), o("v_mov_b32 v19, v16"),
                o("v_lshrrev_b32 v240, 3, v0"), o("v_lshlrev_b32 v240, 12, v240"), o("v_and_b32 v241, 7, v0"), o("v_lshlrev_b32 v241, 4, v241"),
                o("v_add_u32 v240, v240, v241"), o(f"v_add_u32 v240, {slot*SLOT}, v240"), o(f"v_add_u32 v241, {slot*SLOT}, v241"),
                o("ds_write_b128 v240, v[16:19]"), o("ds_write_b128 v241, v[16:19] offset:32768"),
                o("s_waitcnt lgkmcnt(0)"), raw(f"L_h_nosp{sfx}:")]

    def ln_stats(self):
        L = []
        SA = 16
        for i in range(8): L += [o(f"v_mov_b32 v{SA+i}, 0")]
        L += [o(f"s_mov_b32 s{T5}, 0x3f803f80")]
        def reads(kap):
            return [wvm(("x", kap))] + [ds(f"ds_read_b128 v[{RX+4*ks}:{RX+4*ks+3}], v{V_XA+(ks&3)} offset:{(ks//4)*4096}", ("xr", ks)) for ks in range(4*kap, 4*kap+4)]
        L += reads(0)
        for kap in range(9):
            if kap + 1 < 9: L += reads(kap + 1)
            for ks in range(4*kap, 4*kap + 4):
                L += [wlg(("xr", ks))]
                for i in range(4):
                    r = RX + 4*ks + i
                    L += [o(f"v_dot2_f32_bf16 v{SA+i}, v{r}, s{T5}, v{SA+i}"),
                          o(f"v_dot2_f32_bf16 v{SA+4+i}, v{r}, v{r}, v{SA+4+i}")]
        return L

    def ln_finish(self):
        SA = 16
        L = [o("s_nop 2"),
             o(f"v_add_f32 v{SA}, v{SA}, v{SA+1}"), o(f"v_add_f32 v{SA+2}, v{SA+2}, v{SA+3}"),
             o(f"v_add_f32 v{SA+4}, v{SA+4}, v{SA+5}"), o(f"v_add_f32 v{SA+6}, v{SA+6}, v{SA+7}"),
             o(f"v_add_f32 v24, v{SA}, v{SA+2}"), o(f"v_add_f32 v26, v{SA+4}, v{SA+6}"),
             o("v_mov_b32 v25, v24"), o("v_mov_b32 v27, v26"), o("s_nop 1"),
             o("v_permlane32_swap_b32 v24, v25"), o("v_permlane32_swap_b32 v26, v27"), o("s_nop 1"),
             o("v_add_f32 v24, v24, v25"), o("v_add_f32 v26, v26, v27"),
             o(f"s_mov_b32 s{T5}, {f2u(1.0/576):#x}"),
             o(f"v_mul_f32 v24, s{T5}, v24"), o(f"v_mul_f32 v26, s{T5}, v26"),
             o("v_fma_f32 v26, -v24, v24, v26"), o("v_max_f32 v26, 0, v26"),
             o("v_cvt_pk_bf16_f32 v24, v24, v26"),
             o("v_and_b32 v26, 0xffff0000, v24"), o("v_lshlrev_b32 v24, 16, v24"),
             o(f"v_xor_b32 v{V_NEGMU}, 0x80000000, v24")]
        for i in range(1, 16): L += [o(f"v_mov_b32 v{V_NEGMU+i}, v{V_NEGMU}")]
        L += [o(f"v_add_f32 v26, {f2u(1e-5):#x}, v26"),
              o("v_cvt_pk_bf16_f32 v26, v26, v26"), o("v_lshlrev_b32 v26, 16, v26"),
              o("v_sqrt_f32 v26, v26"), o("s_nop 0"),
              o("v_cvt_pk_bf16_f32 v26, v26, v26"), o("v_lshlrev_b32 v26, 16, v26"),
              o("v_rcp_f32 v27, v26"), o(f"v_mul_f32 v{V_D2}, v26, v26"),
              o(f"v_mul_f32 v{V_C0}, {f2u(C0):#x}, v27"), o("v_mul_f32 v28, v27, v27"), o("v_mul_f32 v28, v28, v27"),
              o(f"v_mul_f32 v{V_C1}, {f2u(C1):#x}, v28"),
              o("v_and_b32 v28, 31, v0"), o("v_lshlrev_b32 v28, 2, v28"), o(f"s_lshl_b32 s{T0}, s{S_W}, 12"), o(f"s_add_u32 s{T0}, s{T0}, {SPARE}"),
              o(f"v_add_u32 v28, s{T0}, v28"), ds("ds_write_b32 v28, v27", "rtab")]
        return L

    def seg_norm_h(self):
        M = []; frags = []
        def UBf(i):
            if i == 0: return 16
            if i % 2 == 0: return RX + 8*(i - 2)
            return (32, 48, 16)[((i - 1)//2) % 3]
        def nextuser(i):
            for k in range(i + 1, 18):
                if UBf(k) == UBf(i): return k
            return None
        posU = {}; posH = {}
        def U(i):
            b = UBf(i)
            M.append(dict(op=32, acc=f"v[{b}:{b+15}]", first=True, C=f"v[{V_NEGMU}:{V_NEGMU+15}]", A=f"v[{V_PERM}:{V_PERM+3}]", B=f"v[{RX+8*i}:{RX+8*i+3}]", need=-1))
            M.append(dict(op=32, acc=f"v[{b}:{b+15}]", first=False, A=f"v[{V_PERM+4}:{V_PERM+7}]", B=f"v[{RX+8*i+4}:{RX+8*i+7}]", need=-1))
            posU[i] = len(M) - 2
        def H(ks):
            f = len(frags); a = AF + 4*(f % NAF)
            frags.append(dict(reads=[f"ds_read_b128 a[{a}:{a+3}], v{V_XA+(ks&3)} offset:{(ks//4)*4096}"], use=len(M)))
            M.append(dict(op=32, acc=f"v[{V_HACC}:{V_HACC+15}]", first=(ks == 0), A=f"a[{AX+4*ks}:{AX+4*ks+3}]", B=f"a[{a}:{a+3}]", need=f))
            posH[ks] = len(M) - 1
        LAG = 5
        for i in range(18):
            U(i)
            if i >= LAG: H(2*(i-LAG)); H(2*(i-LAG)+1)
        for i in range(18 - LAG, 18): H(2*i); H(2*i+1)
        last = -1
        for m in M:
            if m["need"] < 0: m["need"] = last
            else: last = m["need"]
        def setup(sl, head):
            sl.put(2, [o('s_nop 4')]); sl.put(3, [o('s_nop 4')])
            for i in range(18):
                b = UBf(i)
                ins = []
                for q in range(8):
                    t = 2 + 2*(i % 4) + (q % 2)
                    ins += [o(f"v_cvt_pk_bf16_f32 v{t}, v{b+2*q}, v{b+2*q+1}"), o(f"v_accvgpr_write_b32 a{AX+8*i+q}, v{t}")]
                start = posU[i] + 1 + 3
                end = min(posH[2*i] - 1, start + 11)
                if nextuser(i) is not None: end = min(end, posU[nextuser(i)])
                e = sl.stream(ins, start, end, spill=0)
                assert e < posH[2*i] - 0, (i, e, posH[2*i])
        return self.paced(M, frags, setup, 6)

    def h_epilogue(self, zreg, acc, rr, tb):
        L = []
        sg, f0 = tb + 8, tb + 9
        L += [G([o(f"s_cmp_lt_u32 s{zreg}, 9"), o(f"s_cselect_b32 s{S_ST0}, 1.0, -1.0")]), o(f"v_mov_b32 v{sg}, s{S_ST0}"),
              G([o(f"s_cmp_eq_u32 s{zreg}, 9"), o(f"s_cselect_b32 s{S_ST0}, 0, 99")]),
              G([o(f"v_and_b32 v{f0}, 31, v0"), o(f"v_cmp_eq_u32 vcc, s{S_ST0}, v{f0}"), o(f"v_mov_b32 v{tb+10}, 1.0"), o("v_nop"),
                 o(f"v_cndmask_b32 v{sg}, v{sg}, v{tb+10}, vcc")]),
              G([o(f"s_or_b32 s{S_ST0}, s{S_MT}, s{S_W}"), o(f"s_cmp_eq_u32 s{S_ST0}, 0"), o(f"s_cselect_b32 s{S_ST0}, 32, 0")]),
              G([o(f"v_cmp_gt_u32 vcc, s{S_ST0}, v0"), o(f"v_mov_b32 v{tb+10}, 0"), o("v_nop"),
                 o(f"v_cndmask_b32 v{f0}, v{sg}, v{tb+10}, vcc")])]
        L += [o(f"v_mul_f32 v{tb+11}, v{acc+8}, v{rr+8}")]
        for r in range(8):
            L += [o(f"v_mul_f32 v{rr+8+r}, v{rr+8+r}, v{f0 if r == 0 else sg}"),
                  o(f"v_mul_f32 v{tb+r}, v{acc+r}, v{rr+r}"),
                  o(f"v_fma_f32 v{tb+r}, v{acc+8+r}, v{rr+8+r}, v{tb+r}")]
        for i in range(4):
            L += [o(f"v_cvt_pk_bf16_f32 v{tb+12+i}, v{tb+2*i}, v{tb+2*i+1}")]
        L += [G([o("v_nop"), o("v_nop"), o(f"v_permlane32_swap_b32 v{tb+12}, v{tb+14}"), o(f"v_permlane32_swap_b32 v{tb+13}, v{tb+15}")]),
              G([o(f"s_mul_i32 s{S_ST0}, s{zreg}, {ZF_STRIDE}"), o(f"s_lshl_b32 s{S_ST1}, s{S_MT}, 2"), o(f"s_add_u32 s{S_ST1}, s{S_ST1}, s{S_W}")]),
              G([o(f"s_lshl_b32 s{S_ST1}, s{S_ST1}, 10"), o(f"s_add_u32 s{S_ST1}, s{S_ST1}, s{S_ST0}"), o(f"s_add_u32 s{S_ST1}, s{S_ST1}, {WS_ZF}")]),
              vm(f"buffer_store_dwordx4 v[{tb+12}:{tb+15}], v{V_L16}, s[{SR_WS}:{SR_WS+3}], s{S_ST1} offen sc1", "zst"),
              o(f"v_mov_b32 v{tb+1}, 0"), o(f"v_mov_b32 v{tb+2}, 0"), o(f"v_mov_b32 v{tb+3}, 0"),
              o(f"v_cvt_pk_bf16_f32 v{tb}, v{tb+11}, v{tb+1}"),
              G([o("v_cmp_gt_u32 vcc, 32, v0"), o("v_nop"), o("v_nop"), o(f"v_cndmask_b32 v{tb}, v{tb+1}, v{tb}, vcc")]),
              G([o(f"s_or_b32 s{S_ST1}, s{S_MT}, s{S_W}"), o(f"s_cmp_le_u32 s{zreg}, 9"), o(f"s_cselect_b32 s{S_C}, 0, 1")]),
              G([o(f"s_or_b32 s{S_ST1}, s{S_ST1}, s{S_C}"), o(f"s_cmp_eq_u32 s{S_ST1}, 0"), o(f"s_cselect_b32 s{S_C}, 0, {OOB:#x}")]),
              o(f"v_add_u32 v{tb+4}, s{S_C}, v{V_L16}"),
              o(f"s_add_u32 s{S_ST0}, s{S_ST0}, {WS_ZF + 64*1024}"),
              vm(f"buffer_store_dwordx4 v[{tb}:{tb+3}], v{tb+4}, s[{SR_WS}:{SR_WS+3}], s{S_ST0} offen sc1", "zst"),
              G([o(f"v_mov_b32 v{tb+12}, 0"), o(f"v_mov_b32 v{tb+13}, 0"), o(f"v_mov_b32 v{tb+14}, 0"), o(f"v_mov_b32 v{tb+15}, 0")]),
              vm(f"buffer_store_dwordx4 v[{tb+12}:{tb+15}], v{tb+4}, s[{SR_WS}:{SR_WS+3}], s{S_ST0} offen offset:1024 sc1", "zst")]
        return L

    def rr_reads(self, rr, tmp, n=1):
        return [o(f"v_lshrrev_b32 v{tmp}, 5, v0"), o(f"v_lshlrev_b32 v{tmp}, 4, v{tmp}"), o(f"s_lshl_b32 s{S_C}, s{S_W}, 12"),
                o(f"s_add_u32 s{S_C}, s{S_C}, {SPARE}"), o(f"v_add_u32 v{tmp}, s{S_C}, v{tmp}")] + \
               [ds(f"ds_read_b128 v[{rr+4*q}:{rr+4*q+3}], v{tmp} offset:{32*q}", ("rr", n)) for q in range(4)] + [wlg(("rr", n))]

    def h2_block(self):
        L = [o(f"s_cmp_lt_u32 s{S_J}, 2"), o("s_cbranch_scc0 L_noz2b")]
        B = [o(f"v_add_u32 v{64+i}, {SLOT}, v{V_XA+i}") for i in range(4)]
        def rd(ks):
            a_ = AF + 4*(ks % NAF)
            return o(f"ds_read_b128 a[{a_}:{a_+3}], v{64+(ks&3)} offset:{(ks//4)*4096}")
        for ks in range(6): B += [rd(ks)]
        for k in range(36):
            a_ = AF + 4*(k % NAF)
            n_out = min(5, 35 - k)
            B += [o(f"s_waitcnt lgkmcnt({n_out})"), mf32("v[128:143]", f"a[{AX+4*k}:{AX+4*k+3}]", f"a[{a_}:{a_+3}]", "0" if k == 0 else "v[128:143]")]
            if k + 6 < 36: B += [rd(k + 6)]
        B += [raw("L_noz2b:"),
              o(f"s_cmp_lt_u32 s{S_J}, 2"), o(f"s_cselect_b32 s{S_B}, s{S_B}, 0x4000")]
        return L + B

    def dma_p1(self, sig, slot, tA=226, tB=227):
        groups = []
        if sig < 16:
            u, mat, kh = sig // 4, (sig // 2) % 2, sig % 2
            rs = SR_WG if mat == 0 else SR_WU
            for grp, ts in enumerate([[0,1,2,3],[0,1,2,3],[0]]):
                g = [o(f"s_add_u32 m0, s{S_L9}, {slot*SLOT + grp*4096}"),
                     o(f"s_add_u32 s{S_D0}, s{S_UB+u}, {(kh*288 + grp*32)*9216}")]
                for t in ts:
                    groups.append(g + [vm(f"buffer_load_dwordx4 v{V_DM+t}, s[{rs}:{rs+3}], s{S_D0} offen offset:{t*1024} lds", ("st", sig))])
                    g = []
        else:
            rs = SR_WG if sig == 16 else SR_WU
            for grp, ts in enumerate([[0,1,2,3],[0,1,2,3],[0]]):
                g = []
                if sig == 16 and grp == 0:
                    groups.append([o(f"v_lshrrev_b32 v{tA}, 2, v0"), o(f"v_and_b32 v{tB}, 3, v0"), o(f"v_lshlrev_b32 v{tB}, 4, v{tB}")])
                    groups.append([o(f"v_mul_u32_u24 v{tA}, 9216, v{tA}"), o(f"v_add_u32 v{V_DM}, v{tA}, v{tB}")] +
                                  [o(f"v_add_u32 v{V_DM+t}, {t*(16*9216-1024)}, v{V_DM}") for t in range(1, 4)])
                g += [o(f"s_add_u32 m0, s{S_L9}, {slot*SLOT + grp*4096}"),
                      o(f"s_add_u32 s{S_D0}, s{S_UB+4}, {grp*64*9216}")]
                for t in ts:
                    groups.append(g + [vm(f"buffer_load_dwordx4 v{V_DM+t}, s[{rs}:{rs+3}], s{S_D0} offen offset:{t*1024} lds", ("st", sig))])
                    g = []
        return groups

    def dma_cs(self, mat, piece, slot, tag, nop=False):
        rs = SR_CS if mat == 0 else SR_SS
        groups = []
        for l in range(2):
            line = 2*piece + l
            for rho in range(4):
                groups.append([o(f"s_add_u32 m0, s{S_A}, {slot*SLOT + (4*l+rho)*1024 - 128*line}")] + ([o("s_nop 0")] if nop else []) + [
                               vm(f"buffer_load_dwordx4 v{V_SD+rho}, s[{rs}:{rs+3}], 0 offen offset:{128*line} lds", tag)])
        return groups
    def dma_cx(self, tag):
        groups = []
        for rho in range(4):
            groups.append([o(f"s_add_u32 m0, s{S_B}, {SPARE + rho*1024 - 512}"),
                           vm(f"buffer_load_dwordx4 v{V_SD+rho}, s[{SR_CS}:{SR_CS+3}], 0 offen offset:512 lds", tag)])
        return groups

    def dma_p2(self, st, slot, first128, tA, tB, tC):
        u, who = st
        groups = []
        if u < 4:
            tbl = S_N0 if who == "own" else S_N1
            if first128:
                groups.append([o(f"v_lshrrev_b32 v{tA}, 3, v0"), o(f"v_and_b32 v{tB}, 7, v0"), o(f"v_bfe_u32 v{tC}, v0, 4, 1")])
                groups.append([o(f"v_lshlrev_b32 v{tC}, 2, v{tC}"), o(f"v_xor_b32 v{tB}, v{tB}, v{tC}"), o(f"v_lshlrev_b32 v{tB}, 4, v{tB}")])
                groups.append([o(f"s_mul_i32 s{S_WD}, s{S_W}, {8*1152}")])
                groups.append([o(f"v_mul_u32_u24 v{tA}, 1152, v{tA}"), o(f"v_add_u32 v{V_DM}, v{tA}, v{tB}"), o(f"v_add_u32 v{V_DM}, s{S_WD}, v{V_DM}")])
                groups.append([o(f"s_lshl_b32 s{S_WD}, s{S_W}, 10")])
            for ip in range(9):
                groups.append([o(f"s_add_u32 m0, s{S_WD}, {slot*SLOT + ip*4096}"),
                               o(f"s_add_u32 s{S_D0}, s{tbl+ip}, s{S_CU+u}"),
                               vm(f"buffer_load_dwordx4 v{V_DM}, s[{SR_WD}:{SR_WD+3}], s{S_D0} offen lds", ("s2", st))])
        else:
            groups.append([o(f"v_lshrrev_b32 v{tA}, 2, v0"), o(f"v_and_b32 v{tB}, 3, v0"), o(f"v_lshlrev_b32 v{tB}, 4, v{tB}")])
            groups.append([o(f"v_mul_u32_u24 v{tA}, 1152, v{tA}"), o(f"v_add_u32 v{V_DM+1}, v{tA}, v{tB}")])
            for ip in range(9):
                ca, cb = 2*ip, 2*ip + 1
                ra = (S_N0 + ca) if ca < 9 else (S_N1 + ca - 9)
                rb = (S_N0 + cb) if cb < 9 else (S_N1 + cb - 9)
                groups.append([o(f"s_cmp_lt_u32 s{S_W}, 2"), o(f"s_cselect_b32 s{S_D0}, s{ra}, s{rb}"),
                               o(f"s_add_u32 s{S_D0}, s{S_D0}, s{S_CU+4}"), o(f"s_add_u32 s{S_D0}, s{S_D0}, s{S_C}"),
                               o(f"s_add_u32 m0, s{S_WD}, {slot*SLOT + ip*4096}")])
                groups.append([vm(f"buffer_load_dwordx4 v{V_DM+1}, s[{SR_WD}:{SR_WD+3}], s{S_D0} offen lds", ("s2", st))])
        return groups

    def geglu(self, c, toff=0):
        if c < 8: g, u = GA[(c//2) % 2][c % 2], UA[(c//2) % 2][c % 2]
        else: g, u = GA[0][0], UA[0][0]
        L = []
        for p in range(8):
            r0, r1 = 2*p, 2*p + 1
            b = TMP + 4*(p % 2) + toff
            xa, xb, ya, yb = b, b+1, b+2, b+3
            L += [o(f"v_mul_f32 v{xa}, v{g+r0}, v{g+r0}"), o(f"v_mul_f32 v{xb}, v{g+r1}, v{g+r1}"),
                  o(f"v_fma_f32 v{xa}, v{xa}, v{V_C1}, v{V_C0}"), o(f"v_fma_f32 v{xb}, v{xb}, v{V_C1}, v{V_C0}"),
                  o(f"v_mul_f32 v{xa}, v{g+r0}, v{xa}"), o(f"v_mul_f32 v{xb}, v{g+r1}, v{xb}"),
                  o(f"v_exp_f32 v{xa}, v{xa}"), o(f"v_exp_f32 v{xb}, v{xb}"),
                  o(f"v_mul_f32 v{ya}, v{g+r0}, v{u+r0}"), o(f"v_mul_f32 v{yb}, v{g+r1}, v{u+r1}"),
                  o(f"v_fma_f32 v{xa}, v{xa}, v{V_D2}, v{V_D2}"), o(f"v_fma_f32 v{xb}, v{xb}, v{V_D2}, v{V_D2}"),
                  o(f"v_rcp_f32 v{xa}, v{xa}"), o(f"v_rcp_f32 v{xb}, v{xb}"),
                  o(f"v_mul_f32 v{ya}, v{ya}, v{xa}"), o(f"v_mul_f32 v{yb}, v{yb}, v{xb}"),
                  o(f"v_cvt_pk_bf16_f32 v{HF + 8*c + p}, v{ya}, v{yb}")]
        return L
    def hstore(self, c):
        st = S_ST0 + (c % 2)
        return [o(f"s_add_u32 s{st}, s{S_HB}, {2*c*1024}")] + self.dstore(
                [f"buffer_store_dwordx4 v[{HF+8*c}:{HF+8*c+3}], v{V_L16}, s[{SR_WS}:{SR_WS+3}], s{st} offen",
                 f"buffer_store_dwordx4 v[{HF+8*c+4}:{HF+8*c+7}], v{V_L16}, s[{SR_WS}:{SR_WS+3}], s{st} offen offset:1024"], "hst", True)

    def s_setup(self):
        a, b, c, d = V_SX, V_YC[0], V_YC[1], V_YC[2]
        L = []
        L += [G([o(f"s_lshr_b32 s{S_TAU}, s{S_J}, 3"), o(f"s_lshl_b32 s{S_A}, s{S_MT}, 1"), o(f"s_add_u32 s{S_TAU}, s{S_TAU}, s{S_A}")]),
              G([o(f"s_lshl_b32 s{S_A}, s{S_W}, 13"), o(f"s_lshl_b32 s{S_B}, s{S_W}, 12"),
                 o(f"s_lshl_b32 s{S_ZB}, s{S_W}, 14")]), o(f"s_add_u32 s{S_ZB}, s{S_ZB}, {WS_ZF}")]
        L += [o(f"v_lshrrev_b32 v{a}, 3, v0"), o(f"v_and_b32 v{b}, 7, v0"), o(f"v_lshrrev_b32 v{c}, 1, v{a}"), o(f"v_xor_b32 v{b}, v{b}, v{c}"),
              o(f"v_lshlrev_b32 v{b}, 4, v{b}"), o(f"v_xor_b32 v{c}, 64, v{b}"),
              o(f"s_lshl_b32 s{S_C}, s{S_TAU}, 5"), o(f"v_add_u32 v{a}, s{S_C}, v{a}"), o(f"v_lshlrev_b32 v{a}, 12, v{a}"),
              o(f"s_lshl_b32 s{S_C}, s{S_W}, 9"), o(f"v_add_u32 v{a}, s{S_C}, v{a}"),
              o(f"v_add_u32 v{V_SD}, v{a}, v{b}"), o(f"v_add_u32 v{V_SD+1}, v{a}, v{c}"), o(f"v_add_u32 v{V_SD+1}, 32768, v{V_SD+1}"),
              o(f"v_add_u32 v{V_SD+2}, 65536, v{V_SD}"), o(f"v_add_u32 v{V_SD+3}, 65536, v{V_SD+1}")]
        return L
    def s_setup2(self):
        a, b, c, d = V_SX, V_YC[0], V_YC[1], V_YC[2]
        L = []
        L += [o(f"v_and_b32 v{a}, 15, v0"), o(f"v_lshrrev_b32 v{b}, 4, v0"), o(f"v_bfe_u32 v{c}, v0, 1, 3"), o(f"v_xor_b32 v{c}, v{c}, v{b}"),
              o(f"v_lshlrev_b32 v{c}, 4, v{c}"), o(f"v_lshlrev_b32 v{a}, 7, v{a}"), o(f"v_add_u32 v{a}, v{a}, v{c}"),
              o(f"v_add_u32 v{V_SA}, s{S_A}, v{a}"), o(f"v_xor_b32 v{V_SA+1}, 64, v{V_SA}"),
              o(f"v_add_u32 v{V_SA+2}, {2*SLOT}, v{V_SA}"), o(f"v_add_u32 v{V_SA+3}, {2*SLOT}, v{V_SA+1}"),
              o(f"v_add_u32 v{a}, s{S_B}, v{a}"), o(f"v_add_u32 v{V_SX}, {SPARE}, v{a}")]
        return L
    def s_setup3(self, t0, t1, t2, t3):
        L = []
        L += [o(f"v_and_b32 v{t0}, 15, v0"), o(f"v_lshrrev_b32 v{t1}, 4, v0"),
              o(f"v_and_b32 v{t2}, 1, v{t1}"), o(f"v_lshlrev_b32 v{t2}, 9, v{t2}"),
              o(f"v_lshrrev_b32 v{t1}, 1, v{t1}"), o(f"v_lshlrev_b32 v{t1}, 10, v{t1}"), o(f"v_add_u32 v{t2}, v{t2}, v{t1}"),
              G([o(f"s_and_b32 s{S_C}, s{S_J}, 7"), o(f"s_mul_i32 s{S_C}, s{S_C}, 36")]),
              o(f"v_add_u32 v{t0}, s{S_C}, v{t0}")]
        for ss in range(3):
            pa, qa, yc = V_ZP + ss, V_ZQ + ss, V_YC[ss]
            L += [o(f"v_lshrrev_b32 v{t1}, 5, v{t0}"), o(f"v_mul_u32_u24 v{t1}, {ZF_STRIDE}, v{t1}"),
                  o(f"v_and_b32 v{t3}, 31, v{t0}"), o(f"v_lshlrev_b32 v{t3}, 4, v{t3}"), o(f"v_add_u32 v{t1}, v{t1}, v{t3}"),
                  o(f"v_add_u32 v{t1}, v{t1}, v{t2}"),
                  o(f"v_subrev_u32 v{t3}, s{S_C}, v{t0}"),
                  o(f"v_lshlrev_b32 v{yc}, 2, v{t0}"), o(f"v_mov_b32 v{qa}, {OOB:#x}"), o(f"v_mov_b32 v{pa}, {OOB:#x}"),
                  G([o(f"v_cmp_gt_u32 vcc, 36, v{t3}"), o("v_nop"), o("v_nop"), o(f"v_cndmask_b32 v{pa}, v{pa}, v{t1}, vcc")]),
                  o(f"v_add_u32 v{t3}, {9*ZF_STRIDE}, v{t1}"),
                  G([o(f"v_cndmask_b32 v{qa}, v{qa}, v{t3}, vcc")]),
                  G([o(f"v_cmp_eq_u32 vcc, 0x120, v{t0}"), o("v_nop"), o("v_nop"), o(f"v_cndmask_b32 v{pa}, v{pa}, v{t1}, vcc")]),
                  G([o(f"v_mov_b32 v{t3}, {OOB:#x}"), o(f"v_cmp_eq_u32 vcc, 0, v{t0}"), o("v_nop"), o("v_nop"), o(f"v_cndmask_b32 v{qa}, v{qa}, v{t3}, vcc")]),
                  G([o(f"v_cmp_eq_u32 vcc, v{t3}, v{pa}"), o("v_nop"), o("v_nop"), o(f"v_cndmask_b32 v{yc}, v{yc}, v{t3}, vcc")]),
                  o(f"v_add_u32 v{t0}, 16, v{t0}")]
        return L

    def phase2_setup(self):
        L = []
        L += [G([o(f"s_xor_b32 s{T6}, s{S_J}, 1"), o(f"s_and_b32 s{T2}, s{T6}, 1"), o(f"s_mul_i32 s{T0}, s{T6}, 288")]),
              G([o(f"s_mul_i32 s{T1}, s{T2}, 224"), o(f"s_add_u32 s{T1}, s{T0}, s{T1}")]),
              G([o(f"s_cmp_eq_u32 s{T2}, 0"), o(f"s_cselect_b32 s{T3}, 64, -64"), o(f"s_cselect_b32 s{T4}, 256, 0")]),
              o(f"s_add_u32 s{T4}, s{T4}, s{T0}")]
        for u in range(4):
            L += [G([o(f"s_mul_i32 s{T5}, s{T3}, {u}"), o(f"s_add_u32 s{T5}, s{T5}, s{T1}")]),
                  G([o(f"s_mul_i32 s{S_N1+2*u}, s{T5}, 1152"), o(f"s_add_u32 s{S_N1+2*u+1}, s{S_N1+2*u}, {32*1152}")])]
        L += [o(f"s_mul_i32 s{S_N1+8}, s{T4}, 1152")]
        L += [G([o(f"s_and_b32 s{T2}, s{S_J}, 1"), o(f"s_mul_i32 s{T0}, s{T2}, 640"), o(f"s_lshr_b32 s{T1}, s{S_J}, 2")])]
        for k in range(4):
            L += [G([o(f"s_add_u32 s{T3}, s{T1}, {(k+1) % 4 if k < 3 else 0}"), o(f"s_and_b32 s{T3}, s{T3}, 3"), o(f"s_lshl_b32 s{T3}, s{T3}, 7")]),
                  o(f"s_add_u32 s{S_CU+k}, s{T0}, s{T3}")]
        L += [G([o(f"s_cmp_eq_u32 s{T2}, 0"), o(f"s_cselect_b32 s{S_CU+4}, 0, 64")]), o(f"s_add_u32 s{S_CU+4}, s{S_CU+4}, 512")]
        return L

    def p2q_setup(self):
        L = [G([o(f"s_and_b32 s{T2}, s{S_J}, 1"), o(f"s_mul_i32 s{T3}, s{T2}, 10"), o(f"s_lshr_b32 s{T4}, s{S_J}, 2")])]
        for k, dst in enumerate(S_QU):
            L += [G([o(f"s_add_u32 s{T5}, s{T4}, {k+1}"), o(f"s_and_b32 s{T5}, s{T5}, 3"), o(f"s_lshl_b32 s{T5}, s{T5}, 1")]),
                  G([o(f"s_add_u32 s{T5}, s{T5}, s{T3}"), o(f"s_lshl_b32 s{T5}, s{T5}, 11"), o(f"s_add_u32 s{dst}, s{T5}, s{S_PB}")])]
        L += [G([o(f"s_lshl_b32 s{T5}, s{T4}, 1"), o(f"s_add_u32 s{T5}, s{T5}, s{T3}"), o(f"s_bfe_u32 s{T4}, s{S_J}, 0x10001")]),
              G([o(f"s_add_u32 s{S_TO}, s{T5}, s{T4}"), o(f"s_xor_b32 s{T4}, s{T4}, 1"), o(f"s_add_u32 s{T5}, s{T5}, s{T4}")]),
              G([o(f"s_lshl_b32 s{T5}, s{T5}, 11"), o(f"s_add_u32 s{S_QN}, s{T5}, s{S_PB}")]),
              G([o(f"s_add_u32 s{T5}, s{T2}, 8"), o(f"s_lshl_b32 s{T5}, s{T5}, 11"), o(f"s_add_u32 s{S_Q8}, s{T5}, s{S_PB}")])]
        return L

    def main(self):
        DIST = self.opts.get("dist", 7)
        M = []; frags = []
        fu = {}; lu = {}
        def addfrag(reads_fn, use, dist=None, stage=None):
            f = len(frags); a = AF + 4*(f % NAF)
            fr = dict(reads=reads_fn(a), use=use)
            if dist: fr["dist"] = dist
            frags.append(fr)
            if stage is not None and stage not in fu:
                fu[stage] = use; fr["stage_first"] = stage
            return f, a
        def tr(base, off, off2): return lambda a: [f"ds_read_b64_tr_b16 a[{a}:{a+1}], v{base} offset:{off}", f"ds_read_b64_tr_b16 a[{a+2}:{a+3}], v{base} offset:{off+off2}"]
        for u in range(4):
            for mat in range(2):
                for kh in range(2):
                    sig = 4*u + 2*mat + kh
                    for half in range(2):
                        acc = (GA if mat == 0 else UA)[u % 2][half]
                        for kk in range(18):
                            ks = kh*18 + kk; g = len(M)
                            f, a = addfrag(tr((V_RA if half == 0 else V_RB) + sig % 4, kk*2048, 512), g, stage=("st", sig))
                            M.append(dict(op=32, acc=f"v[{acc}:{acc+15}]", first=(ks == 0), A=f"a[{a}:{a+3}]", B=f"a[{AX+4*ks}:{AX+4*ks+3}]", need=f))
                            lu[("st", sig)] = g
        for mat in range(2):
            acc = (GA if mat == 0 else UA)[0][0]
            for ks in range(36):
                g = len(M)
                f, a = addfrag(tr(V_R8 + mat, ks*1024, 256), g, stage=("st", 16+mat))
                M.append(dict(op=32, acc=f"v[{acc}:{acc+15}]", first=(ks == 0), A=f"a[{a}:{a+3}]", B=f"a[{AX+4*ks}:{AX+4*ks+3}]", need=f))
                lu[("st", 16+mat)] = g
        S0 = len(M)
        def accP(tt, ss):
            i = tt*3 + ss
            return 48 + 4*i if i < 4 else 112 + 4*(i - 4)
        def accQ(tt, ss):
            i = tt*3 + ss
            return 64 + 4*i if i < 4 else 128 + 4*(i - 4)
        def zP(ss, k):
            i = k*3 + ss
            if i < 20: return f"a[{AZ+4*i}:{AZ+4*i+3}]"
            i -= 20
            r = 32 + 4*i if i < 4 else 96 + 4*(i - 4)
            return f"v[{r}:{r+3}]"
        def zQ(ss, k):
            i = k*3 + ss
            return f"a[{4*i}:{4*i+3}]"
        self.zP, self.zQ, self.accP, self.accQ = zP, zQ, accP, accQ
        for k in range(9):
            for tt in range(2):
                g = len(M)
                if k < 8:
                    line = k >> 1; piece = line >> 1; l = line & 1
                    base = V_SA + 2 + (k & 1); off = piece*SLOT + l*4096 + tt*2048
                    st = ("C", piece)
                else:
                    base = V_SX; off = tt*2048; st = ("CX", 0)
                f, a = addfrag(lambda a, base=base, off=off: [f"ds_read_b128 a[{a}:{a+3}], v{base} offset:{off}"], g, dist=8, stage=st)
                for ss in range(3):
                    ac = accP(tt, ss)
                    M.append(dict(op=16, acc=f"v[{ac}:{ac+3}]", first=(k == 0), A=f"a[{a}:{a+3}]", B=zP(ss, k), need=f))
                    lu[st] = len(M) - 1
        SP_END = len(M)
        for k in range(8):
            for tt in range(2):
                g = len(M)
                line = k >> 1; piece = line >> 1; l = line & 1
                base = V_SA + (k & 1); off = piece*SLOT + l*4096 + tt*2048
                st = ("S", piece)
                f, a = addfrag(lambda a, base=base, off=off: [f"ds_read_b128 a[{a}:{a+3}], v{base} offset:{off}"], g, dist=8, stage=st)
                for ss in range(3):
                    ac = accQ(tt, ss)
                    M.append(dict(op=16, acc=f"v[{ac}:{ac+3}]", first=(k == 0), A=f"a[{a}:{a+3}]", B=zQ(ss, k), need=f))
                    lu[st] = len(M) - 1
        P2_0 = len(M)
        stages = [(0, "own"), (1, "own"), (2, "own"), (0, "par"), (1, "par"), (2, "par"), (4, "both"), (3, "own"), (3, "par")]
        slot_order = [2, 0, 3, 2, 1, 0, 3, 2, 1]
        slot_of = {st: slot_order[i] for i, st in enumerate(stages)}
        ACC = {0: [32, 96], 1: [16, 80], 2: [48, 112], 3: [64, 128], 4: [32]}
        tile_last = {}
        def p2run(st, half, base, nk=18):
            u, who = st
            acc = ACC[u][half]
            for k in range(18):
                g = len(M)
                f, a = addfrag(tr(base, k*2048, 1024), g, stage=("s2", st))
                M.append(dict(op=32, acc=f"v[{acc}:{acc+15}]", first=(who == "own" and k == 0), A=f"a[{a}:{a+3}]",
                              B=(f"v[{HF+4*k}:{HF+4*k+3}]" if who == "own" else f"a[{AZ+4*k}:{AZ+4*k+3}]"), need=f))
                tile_last[(u, half)] = g; lu[("s2", st)] = g
        for st in stages[:7]:
            u, who = st; slot = slot_of[st]
            if u < 4:
                for half in range(2): p2run(st, half, (V_RA if half == 0 else V_RB) + slot)
            else:
                acc = ACC[4][0]
                for k in range(36):
                    g = len(M)
                    f, a = addfrag(tr(V_R8, k*1024, 512), g, stage=("s2", st))
                    M.append(dict(op=32, acc=f"v[{acc}:{acc+15}]", first=(k == 0), A=f"a[{a}:{a+3}]",
                                  B=(f"v[{HF+4*k}:{HF+4*k+3}]" if k < 18 else f"a[{AZ+4*(k-18)}:{AZ+4*(k-18)+3}]"), need=f))
                    tile_last[(4, 0)] = g; lu[("s2", st)] = g
        p2run((3, "own"), 0, V_LB); p2run((3, "par"), 0, V_LB + 1); p2run((3, "own"), 1, V_LB + 2); p2run((3, "par"), 1, V_LB + 3)
        N = len(M)
        last_use = {}
        for g, m in enumerate(M): last_use[m["need"]] = g
        for f, fr in enumerate(frags):
            d = fr.get("dist", DIST)
            t = fr["use"] - d
            if f >= NAF and t < last_use[f - NAF]: fr["dist"] = fr["use"] - last_use[f - NAF]
        for fr in frags:
            st = fr.get("stage_first")
            if st is None: continue
            if st[0] in ("st", "s2"):
                tags = [st]
                if st == ("st", 3): tags += ["zst", "flinit"]
                if st == ("st", 17): tags += ["hst"]
                if st == ("s2", (3, "own")): tags += [("pst", 0), ("pst", 1), "yst"]
                if st == ("s2", (3, "par")): tags += [("pst", 2)]
                fr["pre"] = [wvm(tags), o("s_barrier")]
                if st in (("s2", (3, "own")), ("s2", (3, "par"))):
                    fr["pre"] += [vm(f"buffer_store_dword v240, v{V_ONE0}, s[{SR_WS}:{SR_WS+3}], s{S_FL} offen sc1", "flp")]
                if st == ("st", 17):
                    fr["pre"] += [vm(f"buffer_store_dword v{V_ONE}, v{V_ONE0}, s[{SR_WS}:{SR_WS+3}], s{S_FL} offen sc1", "fl1")]
                if st == ("st", 3):
                    fr["pre"] += [vm(f"buffer_atomic_add v{V_ONE}, v{V_ONE0}, s[{SR_HZ}:{SR_HZ+3}], 0 offen offset:128 sc1", "zpub")]
            else:
                fr["pre"] = [wvm(("cs", st))]
        stamps = {0: "p1", 144: "u1", 288: "u2", 432: "u3", 576: "u4", S0: "S0", SP_END: "SP", P2_0: "p2", P2_0+18: "a18", P2_0+36: "a36", P2_0+44: "a44", P2_0+54: "a54", P2_0+72: "a72", P2_0+90: "a90", P2_0 + 108: "p2b", P2_0+144: "b36", P2_0 + 216: "p2c"}
        for g, name in stamps.items():
            if self.diag: M[g].setdefault("before", []).extend(self.stamp(name))
        self.tail2 = []

        def setup(sl, head):
            rbar = {st: fu[st] - DIST for st in fu if st[0] in ("st", "s2")}
            for b in rbar.values():
                if b >= 0: sl.budget[b] = 4
            def fbar(t):
                sl.put(t, [o("s_barrier")])
            busy = {"end": -1}
            def place(groups, start, step=1):
                s = max(start, busy["end"] + 1)
                for grp in groups:
                    sl.put(s, grp); busy["end"] = s; s += step
                return s
            sl.put(2, [o(f"v_mov_b32 v{V_ONE}, 1")])
            eh = sl.stream(self.rr_reads(48, 112) + self.h_epilogue(S_A, V_HACC, 48, 64), 12, 46)
            eh = sl.stream(self.rr_reads(48, 112, 2) + self.h_epilogue(S_B, 128, 48, 64), eh + 1, eh + 34)
            assert eh < 92, eh
            for mat in range(2):
                slot = (16 + mat) % 4
                ins = [o("v_lshrrev_b32 v224, 5, v0"), o("v_lshlrev_b32 v224, 9, v224"),
                       o("v_bfe_u32 v225, v0, 2, 2"), o("v_lshlrev_b32 v225, 6, v225"), o("v_add_u32 v224, v224, v225"),
                       o("v_bfe_u32 v225, v0, 4, 1"), o("v_lshlrev_b32 v225, 5, v225"), o("v_add_u32 v224, v224, v225"),
                       o("v_and_b32 v225, 3, v0"), o("v_lshlrev_b32 v225, 3, v225"), o("v_add_u32 v224, v224, v225"),
                       o(f"v_add_u32 v{V_R8+mat}, {slot*SLOT}, v224")]
                sl.stream(ins, 70 + 20*mat, 88 + 20*mat)
            dma_end = {}
            for sig in range(2, 18):
                grps = self.dma_p1(sig, sig % 4)
                if sig == 2: start = 0
                elif sig == 3: start = 9*self.opts.get('dstep', 2)
                else:
                    t = lu[("st", sig - 4)]; fbar(t); start = t + 1
                dma_end[sig] = place(grps, start, self.opts.get("dstep", 2))
            self.paced_prefetch(sl, dma_end)
            self.mode_check(sl, M)
            sl.put(590, [G([o(f"s_lshl_b32 s{S_FL}, s{S_LID}, 7"), o(f"s_add_u32 s{S_FL}, s{S_FL}, {WS_FLAG}")])])
            sl.put(592, [o(f"v_mov_b32 v{V_ONE}, 1")])
            e0 = sl.stream(self.geglu(0), 145, 211)
            sl.stream(self.hstore(0) + self.geglu(1) + self.hstore(1), max(e0 + 1, 212), 287)
            for u in range(1, 3):
                sl.stream(self.geglu(2*u) + self.hstore(2*u) + self.geglu(2*u+1) + self.hstore(2*u+1), 144*(u+1) + 1, 144*(u+2) - 1)
            es = sl.stream(self.s_setup(), eh + 1, eh + 11)
            es = sl.stream(self.s_setup2(), es + 1, es + 10)
            assert es < 118, es
            sl.stream(self.s_setup3(224, 225, 226, 227), max(es + 1, 112), 143)
            ep = sl.stream(self.phase2_setup(), 66, 100)
            assert ep < 110
            t = lu[("st", 14)]; fbar(t); place(self.dma_cs(0, 0, 2, ("cs", ("C", 0))), t + 1, 2)
            t = lu[("st", 15)]; fbar(t); e = place(self.dma_cs(0, 1, 3, ("cs", ("C", 1))), t + 1, 2)
            place(self.dma_cx(("cs", ("CX", 0))), e, 2)
            t = lu[("st", 16)]; fbar(t); place(self.dma_cs(1, 0, 0, ("cs", ("S", 0))), t + 1, 2)
            t = lu[("st", 17)]; fbar(t); place(self.dma_cs(1, 1, 1, ("cs", ("S", 1)), True), t + 1, 1)
            self.main_rest(sl, M, fu, lu, stages, slot_of, ACC, tile_last, S0, SP_END, P2_0, N, fbar, place)
        L = self.paced(M, frags, setup, DIST)
        return L + self.tail2

    def mode_check(self, sl, M):
        if not self.opts.get("local", 1): return
        t = 0
        ld = f"buffer_load_dwordx2 v[222:223], off, s[{SR_HZ}:{SR_HZ+3}], s{T5} sc1"
        ld = f"buffer_load_dwordx2 v[230:231], off, s[{SR_HZ}:{SR_HZ+3}], s{S_XC} sc1"
        if self.opts.get("cfg", 0) == 0:
            ld = f"buffer_load_dword v230, off, s[{SR_HZ}:{SR_HZ+3}], s{S_XC} sc1"
            sl.put(140, [G([o(f"s_lshr_b32 s{S_XC}, s{S_LID}, 3"), o(f"s_lshl_b32 s{S_XC}, s{S_XC}, 2")])])
        else:
            sl.put(140, [G([o(f"s_lshl_b32 s{S_XC}, s{S_MT}, 3")])])
        sl.put(143, [vm(ld, "xcc")])
        sl.put(205, [wvm("xcc")])
        sl.put(206, [o(f"v_readfirstlane_b32 s{T6}, v230"), o(f"v_readfirstlane_b32 s{T7}, v231")])
        def nz(r, tmp):
            return [o(f"s_lshr_b32 s{tmp}, s{r}, 1"), o(f"s_or_b32 s{tmp}, s{tmp}, s{r}"), o(f"s_lshr_b32 s{T3}, s{tmp}, 2"), o(f"s_or_b32 s{tmp}, s{tmp}, s{T3}"),
                    o(f"s_and_b32 s{tmp}, s{tmp}, 0x11111111")]
        chk = nz(T6, T1) + nz(T7, T2) + [o(f"s_and_b32 s{T1}, s{T1}, s{T2}"), o(f"s_cmp_eq_u32 s{T1}, 0x11111111")]
        if self.opts.get("cfg", 0) == 0:
            ld = f"buffer_load_dword v230, off, s[{SR_HZ}:{SR_HZ+3}], s{S_XC} sc1"
            ext = [o(f"s_and_b32 s{T1}, s{S_LID}, 6"), o(f"s_lshl_b32 s{T1}, s{T1}, 2"), o(f"s_lshr_b32 s{T2}, s{T6}, s{T1}"),
                   o(f"s_and_b32 s{T3}, s{T2}, 15"), o(f"s_bfe_u32 s{T2}, s{T2}, 0x40004"),
                   o(f"s_min_u32 s{T1}, s{T2}, s{T3}"), o(f"s_cmp_ge_u32 s{T1}, 1")]
            blk = ext + [o("s_cbranch_scc1 L_xc_ok")] + self.spin("L_xc", [o(ld)], [o(f"v_readfirstlane_b32 s{T6}, v230"), o("s_nop 3")] + ext)
            blk += [o(f"s_cmp_eq_u32 s{T2}, s{T3}"), o(f"s_cselect_b32 s{S_MODE}, 1, 0")]
            if self.opts.get("forceglobal"): blk += [o(f"s_mov_b32 s{S_MODE}, 0")]
            M[209].setdefault("before", []).extend(blk)
            return
        blk = chk + [o("s_cbranch_scc1 L_xc_ok")] + self.spin("L_xc", [o(ld)],
              [o(f"v_readfirstlane_b32 s{T6}, v230"), o(f"v_readfirstlane_b32 s{T7}, v231"), o("s_nop 3")] + chk)
        blk += [o(f"s_and_b32 s{T1}, s{T6}, 15"), o(f"s_mul_i32 s{T1}, s{T1}, 0x11111111"),
                o(f"s_cmp_eq_u32 s{T1}, s{T6}"), o(f"s_cselect_b32 s{S_MODE}, 1, 0"),
                o(f"s_cmp_eq_u32 s{T1}, s{T7}"), o(f"s_cselect_b32 s{S_MODE}, s{S_MODE}, 0")]
        if self.opts.get("forceglobal"): blk += [o(f"s_mov_b32 s{S_MODE}, 0")]
        M[209].setdefault("before", []).extend(blk)

    def paced_prefetch(self, sl, dma_end):
        if not self.opts.get("ppf", 1): return
        Dd, Cc, t = 228, 229, 227
        setup = [G([o(f"s_lshl_b32 s{S_PF}, s{S_LID}, 2"), o(f"s_add_u32 s{S_PF}, s{S_PF}, s{S_W}"), o(f"s_mul_i32 s{S_PF}, s{S_PF}, 41")]),
                 o(f"v_add_u32 v{Dd}, s{S_PF}, v0"), o(f"v_lshlrev_b32 v{Dd}, 7, v{Dd}"), o(f"v_mov_b32 v{t}, {OOB:#x}"),
                 G([o("v_cmp_gt_u32 vcc, 41, v0"), o("v_nop"), o("v_nop"), o(f"v_cndmask_b32 v{Dd}, v{t}, v{Dd}, vcc")]),
                 G([o(f"s_and_b32 s{S_PF}, s{S_J}, 7"), o(f"s_lshl_b32 s{S_PF}, s{S_PF}, 2"), o(f"s_add_u32 s{S_PF}, s{S_PF}, s{S_W}")]),
                 G([o(f"s_lshl_b32 s{S_C}, s{S_TAU}, 5"), o(f"s_add_u32 s{S_PF}, s{S_PF}, s{S_C}"), o(f"s_lshl_b32 s{S_PF}, s{S_PF}, 12")]),
                 o(f"v_lshlrev_b32 v{Cc}, 7, v0"), o(f"v_add_u32 v{Cc}, s{S_PF}, v{Cc}"),
                 G([o("v_cmp_gt_u32 vcc, 17, v0"), o("v_nop"), o("v_nop"), o(f"v_cndmask_b32 v{Cc}, v{t}, v{Cc}, vcc")])]
        e = sl.stream(setup, 146, 176)
        s = dma_end[self.opts.get("pfw", 9)]
        assert s > e + 6
        if self.opts.get("bulk", 1) != 2: sl.put(s, [vm(f"buffer_load_dword v{V_PF}, v{Dd}, s[{SR_WD}:{SR_WD+3}], 0 offen", "pf")])
        s = dma_end[self.opts.get("pfc", 11)]
        sl.put(s, [vm(f"buffer_load_dword v{V_PF}, v{Cc}, s[{SR_CS}:{SR_CS+3}], 0 offen", "pf")])
        sl.put(s + 1, [vm(f"buffer_load_dword v{V_PF}, v{Cc}, s[{SR_SS}:{SR_SS+3}], 0 offen", "pf")])

    def owner_addr(self):
        sQ = S_TO
        t0, t1, t2, t3 = 244, 245, 246, 247
        L = [G([o(f"s_lshl_b32 s{T4}, s{S_MT}, 2"), o(f"s_add_u32 s{T4}, s{T4}, s{S_W}")]),
             G([o(f"s_mul_i32 s{T5}, s{T4}, 18"), o(f"s_add_u32 s{T5}, s{T5}, s{sQ}"), o(f"s_lshl_b32 s{T5}, s{T5}, 11")]),
             o(f"s_lshr_b32 s{T3}, s{S_J}, 1")]
        for i, d in enumerate((2, 3, 4, 5, 6, 7, 1)):
            L += [G([o(f"s_xor_b32 s{16+i}, s{T3}, {d}"), o(f"s_mul_i32 s{16+i}, s{16+i}, {PART_BYTES}"), o(f"s_add_u32 s{16+i}, s{16+i}, s{T5}")])]
        L += [o(f"s_lshl_b32 s{T5}, s{T4}, 4"), o(f"v_and_b32 v{t0}, 15, v0"), o(f"v_add_u32 v{t0}, s{T5}, v{t0}"),
              o(f"v_sub_u32 v{t1}, 2048, v{t0}"), o(f"v_mov_b32 v{t2}, 1024"), o(f"v_mov_b32 v{t3}, 0"),
              G([o(f"v_cmp_eq_u32 vcc, 0, v{t0}"), o("v_nop"), o("v_nop"), o(f"v_cndmask_b32 v237, v{t1}, v{t2}, vcc"),
                 o(f"v_cndmask_b32 v{t1}, v{t1}, v{t3}, vcc"), o(f"v_cndmask_b32 v{t2}, v{t0}, v{t2}, vcc")]),
              o(f"v_and_b32 v{t3}, 16, v0"),
              G([o(f"v_cmp_eq_u32 vcc, 0, v{t3}"), o("v_nop"), o("v_nop"), o(f"v_cndmask_b32 v{t0}, v237, v{t0}, vcc"), o(f"v_cndmask_b32 v{t1}, v{t2}, v{t1}, vcc")]),
              o(f"s_lshl_b32 s{T5}, s{sQ}, 6"),
              o(f"v_mul_u32_u24 v{t2}, 1152, v{t0}"), o(f"v_add_u32 v{t2}, s{T5}, v{t2}"),
              o(f"v_lshrrev_b32 v{t3}, 5, v0"), o(f"v_lshlrev_b32 v238, 4, v{t3}"), o(f"v_add_u32 v238, v{t2}, v238"),
              o(f"v_lshlrev_b32 v237, 3, v{t3}"), o(f"v_add_u32 v237, v{t2}, v237"),
              G([o(f"s_lshl_b32 s{T5}, s{sQ}, 7"), o(f"s_cmp_lt_u32 s{sQ}, 9"), o(f"s_cselect_b32 s24, 0, 1")]),
              G([o(f"s_sub_u32 s{T4}, {2292 - 96}, s{T5}"), o(f"s_cmp_lt_u32 s{sQ}, 9"), o(f"s_cselect_b32 s{T5}, s{T5}, s{T4}"), o(f"s_cselect_b32 s{T4}, 1, -1")]),
              G([o(f"v_mov_b32 v{t2}, s24"), o(f"v_cmp_eq_u32 vcc, 1, v{t2}"), o("v_nop"), o("v_nop"), o(f"v_cndmask_b32 v{t0}, v{t0}, v{t1}, vcc")]),
              o(f"v_mul_u32_u24 v{t0}, {YP}, v{t0}"), o(f"v_add_u32 v{t0}, s{T5}, v{t0}"),
              o(f"v_lshlrev_b32 v{t3}, 4, v{t3}"), o(f"v_mul_lo_u32 v{t3}, v{t3}, s{T4}"), o(f"v_add_u32 v{t0}, v{t0}, v{t3}"),
              o(f"v_add_u32 v239, {WS_YH}, v{t0}")]
        return L

    def pipe_reduce(self, sl, M, fu, lu, P2_0, N):
        self.items_cfg()
        sl.put(P2_0 + 236, [o("v_mov_b32 v240, 3")]); sl.put(P2_0 + 256, [o("v_mov_b32 v240, 4")])
        ep = sl.stream(self.p2q_setup(), P2_0 + 102, P2_0 + 124)
        assert ep < P2_0 + 132
        s_own, s_par = 2, 1
        lb = [G([o(f"s_bfe_u32 s{T5}, s{S_J}, 0x10001"), o(f"s_lshl_b32 s{T5}, s{T5}, 6"), o(f"s_xor_b32 s{T4}, s{T5}, 64")]),
              o(f"v_xor_b32 v{V_LB}, s{T4}, v{V_RA+s_own}"), o(f"v_xor_b32 v{V_LB+1}, s{T4}, v{V_RA+s_par}"),
              o(f"v_xor_b32 v{V_LB+2}, s{T5}, v{V_RA+s_own}"), o(f"v_xor_b32 v{V_LB+3}, s{T5}, v{V_RA+s_par}")]
        sl.stream(lb, P2_0 + 190, P2_0 + 200)
        e = sl.stream(self.owner_addr(), P2_0 + 204, P2_0 + 250)
        e = sl.stream([G([o(f"s_and_b32 s{T6}, s{S_J}, 1"), o(f"s_lshl_b32 s{T6}, s{T6}, 7"), o(f"s_lshl_b32 s{T7}, s{S_MT}, 11")]),
                       G([o(f"s_add_u32 s{T6}, s{T6}, s{T7}"), o(f"s_add_u32 s{T6}, s{T6}, {WS_FLAG}")]),
                       o("v_lshlrev_b32 v242, 8, v0"), o(f"v_mov_b32 v241, {OOB:#x}"),
                       G([o("v_cmp_gt_u32 vcc, 8, v0"), o("v_nop"), o("v_nop"), o("v_cndmask_b32 v242, v241, v242, vcc")])], e + 1, e + 8)
        for i in range(4): sl.put(e + 2 + i, [vm(f"buffer_load_dwordx2 v[{24+2*i}:{25+2*i}], v237, s[{SR_X}:{SR_X+3}], 0 offen offset:{16*i}", "ox")])
        tpoll = max(e + 7, P2_0 + self.opts.get("tpa", 284))
        ld, chk = self.group_poll("L_gA", 4, 241, 242)
        sl.put(tpoll, [vm(ld, "gpA")])
        sl.put(tpoll + 9, [wvm("gpA")])
        M[tpoll + 11].setdefault("before", []).extend(chk + [o("s_cbranch_scc1 L_gA_ok")] + self.spin("L_gA", [o(ld)], chk))
        lds = []
        for i in range(6):
            lds += [vm(f"buffer_load_dwordx4 v[{80+8*i}:{83+8*i}], v{V_L16}, s[{SR_WS}:{SR_WS+3}], s{16+i} offen sc1", "op"),
                    vm(f"buffer_load_dwordx4 v[{84+8*i}:{87+8*i}], v{V_L16}, s[{SR_WS}:{SR_WS+3}], s{16+i} offen offset:1024 sc1", "op")]
        lds += [vm(f"buffer_load_dwordx4 v[{48+4*i}:{51+4*i}], v239, s[{SR_WS}:{SR_WS+3}], 0 offen offset:{32*i} sc1", "op") for i in range(4)]
        s = tpoll + 11
        self.late_loads = []
        stp = self.opts.get("ostep", 2)
        for l in lds:
            if s < N - 1: sl.put(s, [l]); s += stp
            else: self.late_loads.append(l)
        print("owner loads: in loop until", s, "late:", len(self.late_loads), "N", N)

    def spin(self, label, load, cond_ok, regs_note=""):
        return [o(f"s_mov_b32 s{S_CNT}, 0"), raw(f"{label}:")] + load + [o("s_waitcnt vmcnt(0)")] + cond_ok + \
               [o(f"s_cbranch_scc1 {label}_ok"), o(f"s_add_u32 s{S_CNT}, s{S_CNT}, 1"), o(f"s_cmp_gt_u32 s{S_CNT}, 0x40000"), o(f"s_cbranch_scc1 {label}_ok"),
                o("s_sleep 1"), o(f"s_branch {label}"), raw(f"{label}_ok:")]

    def main_rest(self, sl, M, fu, lu, stages, slot_of, ACC, tile_last, S0, SP_END, P2_0, N, fbar, place):
        zP, zQ, accP, accQ = self.zP, self.zQ, self.accP, self.accQ
        DIST = self.opts.get("dist", 7)
        e6 = sl.stream(self.geglu(6) + self.hstore(6), 577, 634)
        assert e6 < S0 - 2, e6
        e7 = sl.stream(self.geglu(7) + self.hstore(7), e6 + 1, S0 + 46)
        assert e7 < SP_END - 1, e7
        sl.stream(self.geglu(8, 8) + self.hstore(8), S0 + 4, S0 + 85)
        sl.put(467, [vm(f"buffer_load_dword v230, off, s[{SR_HZ}:{SR_HZ+3}], 0 offset:128 sc1", "zpoll")])
        sl.put(574, [wvm("zpoll")])
        sl.put(575, [o(f"v_readfirstlane_b32 s{T0}, v230")])
        M[578].setdefault("before", []).extend(
            [o(f"s_cmp_ge_u32 s{T0}, 256"), o("s_cbranch_scc1 L_zp_ok")] +
            self.spin("L_zp", [o(f"buffer_load_dword v{V_PF}, off, s[{SR_HZ}:{SR_HZ+3}], 0 offset:128 sc1")],
                      [o(f"v_readfirstlane_b32 s{T0}, v{V_PF}"), o("s_nop 3"), o(f"s_cmp_ge_u32 s{T0}, 256")]))
        ins = []
        for k in range(9):
            if k < 8: ins += [o(f"s_add_u32 s{S_C}, s{S_ZB}, {k*2048}")]
            else: ins += [G([o(f"s_cmp_eq_u32 s{S_W}, 3"), o(f"s_cselect_b32 s{S_C}, 0, {OOB:#x}"), o(f"s_add_u32 s{S_C}, s{S_C}, s{S_ZB}")]),
                          o(f"s_add_u32 s{S_C}, s{S_C}, {8*2048}")]
            for ss in range(3):
                ins += [vm(f"buffer_load_dwordx4 {zP(ss,k)}, v{V_ZP+ss}, s[{SR_WS}:{SR_WS+3}], s{S_C} offen sc1", ("zp", k))]
        sl.stream(ins, 579, 640)
        for k in range(9):
            g = S0 + 6*k
            sl.put(g - 1, [wvm(("zp", k))])
        ins = []
        for k in range(8):
            ins += [o(f"s_add_u32 s{S_C}, s{S_ZB}, {k*2048}")]
            for ss in range(3):
                ins += [vm(f"buffer_load_dwordx4 {zQ(ss,k)}, v{V_ZQ+ss}, s[{SR_WS}:{SR_WS+3}], s{S_C} offen sc1", ("zq", k))]
        sl.stream(ins, S0, SP_END + 20)
        for k in range(8):
            g = SP_END + 6*k
            sl.put(g - 1, [wvm(("zq", k))])
        blk = [o(f"s_cmp_eq_u32 s{S_TAU}, 0"), o("s_cbranch_scc0 L_s_n1024"),
               o("v_mov_b32 v232, 0xbf803f80"), o("v_mov_b32 v233, v232"), o("v_mov_b32 v234, v232"), o("v_mov_b32 v235, v232"), o("s_nop 1")]
        for k in range(9):
            for ss in range(3):
                a = (32, 36, 40)[ss] if False else None
        A1024 = [120, 124, 136]
        for k in range(9):
            for ss in range(3):
                a = A1024[ss]
                blk += [mf16(f"v[{a}:{a+3}]", "v[232:235]", zP(ss, k), "0" if k == 0 else f"v[{a}:{a+3}]")]
        blk += [raw("L_s_n1024:")]
        M[SP_END].setdefault("before", []).extend(blk)
        tA, tB, tC = 236, 237, 238
        t = lu[("C", 0)]; fbar(t)
        e = place(self.dma_p2(stages[0], slot_of[stages[0]], True, 12, 13, V_PF), t + 1, 1)
        ins = [o(f"v_lshrrev_b32 v{V_PF}, 5, v0"), o(f"v_lshlrev_b32 v{V_PF}, 9, v{V_PF}")]
        for s in range(4): ins += [o(f"v_sub_u32 v{V_RA+s}, v{V_RA+s}, v{V_PF}"), o(f"v_sub_u32 v{V_RB+s}, v{V_RB+s}, v{V_PF}")]
        sl.stream(ins, e + 1, e + 14)
        t = lu[("C", 1)] + 6; fbar(t)
        assert t >= lu[("CX", 0)]
        place(self.dma_p2(stages[2], slot_of[stages[2]], False, 0, 0, 0), t + 1, 1)
        t = lu[("S", 0)]; fbar(t); place(self.dma_p2(stages[1], slot_of[stages[1]], False, 0, 0, 0), t + 1, 1)
        t = lu[("S", 1)]
        sl.put(t, [wvm("hst"), o("s_barrier")])
        sl.put(t + 1, [o(f"v_mov_b32 v{V_PF}, 2")])
        sl.put(t + 2, [vm(f"buffer_store_dword v{V_PF}, v{V_ONE0}, s[{SR_WS}:{SR_WS+3}], s{S_FL} offen sc1", "fl2h")])
        pass
        a0 = P2_0 + 3
        t0r, t1r = 240, 241
        SC = SLOT
        W3D = SPARE - SLOT - 3*12288
        N1A = SPARE + 12288
        wr = [G([o(f"s_mul_i32 s{S_C}, s{S_W}, 12288"), o(f"s_add_u32 s{S_C}, s{S_C}, {SC}")]),
              G([o(f"s_cmp_eq_u32 s{S_W}, 3"), o(f"s_cselect_b32 s{S_ST1}, {W3D}, 0"), o(f"s_add_u32 s{S_C}, s{S_C}, s{S_ST1}")]),
              o(f"v_lshrrev_b32 v{t0r}, 4, v0"), o(f"v_mul_u32_u24 v{t0r}, 768, v{t0r}"), o(f"v_and_b32 v{t1r}, 15, v0"), o(f"v_lshlrev_b32 v{t1r}, 2, v{t1r}"),
              o(f"v_add_u32 v{t0r}, v{t0r}, v{t1r}"), o(f"v_add_u32 v{t0r}, s{S_C}, v{t0r}")]
        for pq, accf in ((0, accP), (1, accQ)):
            for tt in range(2):
                for ss in range(3):
                    for r in range(4):
                        wr += [ds(f"ds_write_b32 v{t0r}, v{accf(tt,ss)+r} offset:{pq*6144 + (16*tt + r)*192 + ss*64}", "sred_w")]
        e = sl.stream(wr, a0, a0 + 30)
        wr2 = [G([o(f"s_mul_i32 s{S_C}, s{S_W}, 768"), o(f"s_add_u32 s{S_C}, s{S_C}, {N1A}")]), o(f"v_lshlrev_b32 v{t1r}, 2, v0"), o(f"v_add_u32 v{t1r}, s{S_C}, v{t1r}")]
        for ss in range(3): wr2 += [ds(f"ds_write_b32 v{t1r}, v{A1024[ss]} offset:{ss*256}", "sred_w")]
        e = sl.stream(wr2, e + 1, e + 6)
        b1 = e + 1
        sl.put(b1, [wlg("sred_w"), o("s_barrier")])
        R0, R1 = 128, 64
        R0, R1 = 112, 48
        A0, A1, YD0, YM0, YD1, YM1 = 232, 233, 234, 235, 236, 237
        ad = [G([o(f"s_lshl_b32 s{T3}, s{S_W}, 3"), o(f"s_lshl_b32 s{T4}, s{S_TAU}, 5"), o(f"s_add_u32 s{T4}, s{T4}, s{T3}")]),
              G([o(f"s_mul_i32 s{T3}, s{T3}, 192"), o(f"s_add_u32 s{T3}, s{T3}, {SC}"), o(f"s_and_b32 s{T5}, s{S_J}, 7")]),
              o(f"s_mul_i32 s{T5}, s{T5}, 144"),
              o(f"v_lshrrev_b32 v238, 3, v0"), o(f"v_and_b32 v239, 7, v0"),
              o(f"v_mul_u32_u24 v{A0}, 192, v238"), o(f"v_lshlrev_b32 v239, 4, v239"), o(f"v_add_u32 v{A0}, v{A0}, v239"), o(f"v_add_u32 v{A0}, s{T3}, v{A0}"),
              o(f"v_add_u32 v238, s{T4}, v238"),
              o(f"v_add_u32 v239, s{T5}, v239"),
              o(f"v_mul_u32_u24 v{YD0}, {YP}, v238"), o(f"v_add_u32 v{YD0}, v{YD0}, v239"),
              o(f"v_sub_u32 v{YM0}, 2048, v238"), o(f"v_mul_u32_u24 v{YM0}, {YP}, v{YM0}"), o(f"v_add_u32 v{YM0}, v{YM0}, v239"),
              G([o(f"v_cmp_eq_u32 vcc, 0, v238"), o(f"v_mov_b32 v238, {OOB:#x}"), o("v_nop"), o(f"v_cndmask_b32 v{YM0}, v{YM0}, v238, vcc")]),
              o(f"v_and_b32 v238, 7, v0"), o(f"v_lshrrev_b32 v239, 3, v0"), o(f"v_add_u32 v239, 8, v239"), o(f"v_min_u32 v239, 9, v239"),
              o(f"v_mul_u32_u24 v{A1}, 192, v238"), o(f"v_lshlrev_b32 v239, 4, v239"), o(f"v_add_u32 v{A1}, v{A1}, v239"), o(f"v_add_u32 v{A1}, s{T3}, v{A1}"),
              o(f"v_add_u32 v238, s{T4}, v238"), o(f"v_add_u32 v239, s{T5}, v239"),
              o(f"v_mul_u32_u24 v{YD1}, {YP}, v238"), o(f"v_add_u32 v{YD1}, v{YD1}, v239"),
              o(f"v_sub_u32 v{YM1}, 2048, v238"), o(f"v_mul_u32_u24 v{YM1}, {YP}, v{YM1}"), o(f"v_add_u32 v{YM1}, v{YM1}, v239"),
              G([o(f"v_cmp_eq_u32 vcc, 0, v238"), o(f"v_mov_b32 v238, {OOB:#x}"), o("v_nop"), o(f"v_cndmask_b32 v{YM1}, v{YM1}, v238, vcc")]),
              G([o(f"s_cmp_eq_u32 s{T5}, {7*144}"), o(f"s_cselect_b32 s{T5}, 16, 8")]),
              G([o(f"v_cmp_gt_u32 vcc, s{T5}, v0"), o("v_nop"), o("v_nop"), o(f"v_cndmask_b32 v{YD1}, v238, v{YD1}, vcc"), o(f"v_cndmask_b32 v{YM1}, v238, v{YM1}, vcc")]),
              o(f"s_mov_b32 s{T4}, {WS_YH}"),
              o(f"v_lshlrev_b32 v238, 2, v0"), o(f"v_add_u32 v238, {N1A}, v238"),
              o(f"v_add_u32 v243, {W3D + 3*12288}, v{A0}"), o(f"v_add_u32 v244, {W3D + 3*12288}, v{A1}")]
        e = sl.stream(ad, a0 + 2, b1)
        assert e <= b1 + 6
        def rds(R, A, tag):
            A3 = 243 if A == A0 else 244
            return [ds(f"ds_read_b128 v[{R + 16*pq + 4*ww}:{R + 16*pq + 4*ww + 3}], v{A if ww < 3 else A3} offset:{(ww*12288 if ww < 3 else 0) + pq*6144}", tag) for pq in range(2) for ww in range(4)]
        N1 = 216
        n1r = [ds(f"ds_read_b32 v{N1+4*ss+ww}, v238 offset:{ww*768 + ss*256}", "sred_n") for ss in range(3) for ww in range(4)]
        e = sl.stream(rds(R0, A0, "sr0") + rds(R1, A1, "sr1") + n1r, max(e, b1) + 1, max(e, b1) + 12)
        b2 = e + 3
        sl.put(b2, [wlg("sred_n"), o("s_barrier")])
        self.b2 = b2
        def fin(R, YD, YM):
            out = []
            for pq in range(2):
                b_ = R + 16*pq
                for k in range(4):
                    out += [o(f"v_add_f32 v{b_+k}, v{b_+k}, v{b_+4+k}"), o(f"v_add_f32 v{b_+8+k}, v{b_+8+k}, v{b_+12+k}"), o(f"v_add_f32 v{b_+k}, v{b_+k}, v{b_+8+k}")]
            for k in range(4):
                out += [o(f"v_sub_f32 v{R+4+k}, v{R+k}, v{R+16+k}"), o(f"v_add_f32 v{R+8+k}, v{R+k}, v{R+16+k}")]
            out += [vm(f"buffer_store_dwordx4 v[{R+4}:{R+7}], v{YD}, s[{SR_WS}:{SR_WS+3}], s{T4} offen sc1", "yst"),
                    vm(f"buffer_store_dwordx4 v[{R+8}:{R+11}], v{YM}, s[{SR_WS}:{SR_WS+3}], s{T4} offen sc1", "yst")]
            return out
        n1 = []
        for ss in range(3):
            b_ = N1 + 4*ss
            n1 += [o(f"v_add_f32 v{b_}, v{b_}, v{b_+1}"), o(f"v_add_f32 v{b_+2}, v{b_+2}, v{b_+3}"), o(f"v_add_f32 v{b_}, v{b_}, v{b_+2}")]
        n1 += [G([o(f"s_or_b32 s{T3}, s{S_TAU}, s{S_W}"), o(f"s_cmp_eq_u32 s{T3}, 0"), o(f"s_cselect_b32 s{T3}, 16, 0")]),
               G([o(f"v_cmp_gt_u32 vcc, s{T3}, v0"), o(f"v_mov_b32 v238, {1024*YP}"), o(f"v_mov_b32 v239, {OOB:#x}"), o(f"v_cndmask_b32 v238, v239, v238, vcc")])]
        for ss in range(3):
            n1 += [o(f"v_add_u32 v{N1+4*ss+1}, v238, v{V_YC[ss]}")]
        n1 += [vm(f"buffer_store_dword v{N1+4*ss}, v{N1+4*ss+1}, s[{SR_WS}:{SR_WS+3}], s{T4} offen sc1", "yst") for ss in range(3)]
        e = sl.stream(fin(R1, YD1, YM1) + fin(R0, YD0, YM0), b2 + 1, P2_0 + 66, spill=3)
        assert e < P2_0 + 72, e
        e = sl.stream(n1, e + 1, e + 16)
        assert e < P2_0 + 100, e
        gpar = fu[("s2", (0, "par"))]
        PF2 = 231
        sl.put(660, [G([o(f"s_xor_b32 s{T0}, s{S_LID}, 1"), o(f"s_lshl_b32 s{T1}, s{T0}, 7"), o(f"s_add_u32 s{T1}, s{T1}, {WS_FLAG}")])])
        sl.put(661, [G([o(f"s_lshl_b32 s{T0}, s{T0}, 2"), o(f"s_add_u32 s{T0}, s{T0}, s{S_W}"), o(f"s_mul_i32 s{T0}, s{T0}, {18*1024}")]), o(f"s_add_u32 s{T0}, s{T0}, {WS_HX}")])
        pl = f"buffer_load_dword v242, off, s[{SR_WS}:{SR_WS+3}], s{T1} sc1"
        sl.put(662, [vm(pl, "hpoll1")])
        sl.put(SP_END - 3, [wvm("hpoll1")])
        sl.put(SP_END - 2, [o(f"v_readfirstlane_b32 s{T2}, v242")])
        M[SP_END + 1].setdefault("before", []).extend(
            [o(f"s_cmp_ge_u32 s{T2}, 1"), o("s_cbranch_scc1 L_hq_ok")] +
            self.spin("L_hq", [o(pl)], [o(f"v_readfirstlane_b32 s{T2}, v242"), o("s_nop 3"), o(f"s_cmp_ge_u32 s{T2}, 1")]))
        def hload(k, n, t, tag):
            sl.put(t, [o(f"s_add_u32 s{T6}, s{T0}, {k*1024}")])
            sl.put(t + 1, self.dload([f"buffer_load_dwordx4 a[{AZ+4*(k+q)}:{AZ+4*(k+q)+3}], v{V_L16}, s[{SR_WS}:{SR_WS+3}], s{T6} offen offset:{q*1024}" for q in range(n)], tag, True))
        for i in range(6):
            hload(2*i, 2, SP_END + 3 + 7*i, ("hp", i))
        tp = P2_0 + 40
        sl.put(tp - 13, [vm(pl, "hpoll2")])
        sl.put(tp - 2, [wvm("hpoll2")])
        sl.put(tp - 1, [o(f"v_readfirstlane_b32 s{T2}, v242")])
        M[tp + 2].setdefault("before", []).extend(
            [o(f"s_cmp_ge_u32 s{T2}, 2"), o("s_cbranch_scc1 L_hp_ok")] +
            self.spin("L_hp", [o(pl)], [o(f"v_readfirstlane_b32 s{T2}, v242"), o("s_nop 3"), o(f"s_cmp_ge_u32 s{T2}, 2")]))
        for i in range(3):
            hload(12 + 2*i, 2, tp + 4 + 8*i, ("hp", 6 + i))
        sl.put(gpar - 2, [wvm(("hp", 5))])
        for i in range(3):
            sl.put(gpar + 12 + 2*i - 2, [wvm(("hp", 6 + i))])
        for i in range(3, 9):
            st = stages[i]; slot = slot_of[st]
            prev = [j for j in range(i) if slot_of[stages[j]] == slot]
            if prev:
                t = lu[("s2", stages[prev[-1]])]; fbar(t); start = t + 1
            else:
                start = b2 + 1
            grps = self.dma_p2(st, slot, False, 250, 251, 0)
            if st[0] == 4:
                grps = [[o(f"s_and_b32 s{S_C}, s{S_W}, 1"), o(f"s_mul_i32 s{S_C}, s{S_C}, {16*1152}")]] + grps
                place(grps, start, 1)
            else:
                place(grps, start, 2)
        s4 = slot_of[(4, "both")]
        ins = [o("v_lshrrev_b32 v250, 5, v0"), o("v_lshlrev_b32 v250, 8, v250"),
               o("v_bfe_u32 v251, v0, 2, 2"), o("v_lshlrev_b32 v251, 6, v251"), o("v_add_u32 v250, v250, v251"),
               o("v_bfe_u32 v251, v0, 4, 1"), o("v_lshlrev_b32 v251, 5, v251"), o("v_add_u32 v250, v250, v251"),
               o("v_and_b32 v251, 3, v0"), o("v_lshlrev_b32 v251, 3, v251"), o("v_add_u32 v250, v250, v251"),
               o(f"v_add_u32 v{V_R8}, {s4*SLOT}, v250")]
        sl.stream(ins, P2_0 + 150, P2_0 + 175)
        self.pipe_reduce(sl, M, fu, lu, P2_0, N)
        for (u, half), tl in sorted(tile_last.items(), key=lambda x: x[1]):
            acc = ACC[u][half]
            par = half
            t = TMP + 8*par
            st = S_ST0 + par
            ins = [o(f"v_cvt_pk_bf16_f32 v{t+i}, v{acc+2*i}, v{acc+2*i+1}") for i in range(8)]
            if u == 3 and half == 1: continue
            if u < 3: ins += [o(f"s_add_u32 s{st}, s{S_QU[u]}, {half*2048}")]
            elif u == 3: ins += [o(f"s_mov_b32 s{st}, s{S_QN}")]
            else: ins += [o(f"s_mov_b32 s{st}, s{S_Q8}")]
            ins += self.dstore([f"buffer_store_dwordx4 v[{t}:{t+3}], v{V_L16}, s[{SR_WS}:{SR_WS+3}], s{st} offen",
                                f"buffer_store_dwordx4 v[{t+4}:{t+7}], v{V_L16}, s[{SR_WS}:{SR_WS+3}], s{st} offen offset:1024"], ("pst", u))
            s0 = tl + 4
            if s0 + 10 <= N: sl.stream(ins, s0, s0 + 10)
            else: self.tail2 = [o("s_nop 15")] + ins

    def item_setup(self, kind, R, srd=None, split=False):
        t0, t1, t2, t3 = R["t"]
        sQ, sH, sB, sT = T2, T3, T4, T5
        L = []
        LD = []
        SW = SR_WS if srd is None else srd
        if kind == "A":
            L += [G([o(f"s_lshl_b32 s{sT}, s{S_J}, 2"), o(f"s_add_u32 s{sT}, s{sT}, s{S_W}"), o(f"s_lshr_b32 s{sQ}, s{sT}, 3")]),
                  G([o(f"s_cmp_lt_u32 s{sQ}, 4"), o(f"s_cselect_b32 s{sH}, 0, 6"), o(f"s_add_u32 s{sQ}, s{sQ}, s{sH}")])]
        elif kind in "BC":
            lo, hi = (4, 12) if kind == "B" else (6, 14)
            L += [G([o(f"s_lshl_b32 s{sT}, s{S_J}, 1"), o(f"s_lshr_b32 s{sH}, s{S_W}, 1"), o(f"s_add_u32 s{sT}, s{sT}, s{sH}")]),
                  G([o(f"s_lshr_b32 s{sQ}, s{sT}, 3"), o(f"s_cmp_lt_u32 s{sQ}, 2"), o(f"s_cselect_b32 s{sH}, {lo}, {hi}")]),
                  o(f"s_add_u32 s{sQ}, s{sQ}, s{sH}")]
        else:
            L += [G([o(f"s_lshr_b32 s{sT}, s{S_J}, 1"), o(f"s_and_b32 s{sQ}, s{S_J}, 1"), o(f"s_add_u32 s{sQ}, s{sQ}, 8")])]
        L += [G([o(f"s_and_b32 s{sH}, s{sT}, 1"), o(f"s_bfe_u32 s{sB}, s{sT}, 0x20001"), o(f"s_lshl_b32 s{sT}, s{S_MT}, 2")]),
              o(f"s_add_u32 s{sB}, s{sB}, s{sT}"),
              G([o(f"s_mul_i32 s{sT}, s{sB}, 18"), o(f"s_add_u32 s{sT}, s{sT}, s{sQ}"), o(f"s_lshl_b32 s{sT}, s{sT}, 1")]),
              G([o(f"s_add_u32 s{sT}, s{sT}, s{sH}"), o(f"s_lshl_b32 s{sT}, s{sT}, 10")])]
        so = R["so"]
        for p in range(8): L += [o(f"s_add_u32 s{so+p}, s{sT}, {p*PART_BYTES}")]
        if kind == "A":
            L += [o(f"v_mov_b32 v{t3}, 0")]
        elif kind in "BC":
            L += [o(f"s_and_b32 s{sT}, s{S_W}, 1"), o(f"v_bfe_u32 v{t0}, v0, 4, 1"), o(f"v_mov_b32 v{t1}, {OOB:#x}"), o(f"v_mov_b32 v{t3}, 0"),
                  G([o(f"v_cmp_eq_u32 vcc, s{sT}, v{t0}"), o("v_nop"), o("v_nop"), o(f"v_cndmask_b32 v{t3}, v{t1}, v{t3}, vcc")])]
        else:
            L += [o(f"v_bfe_u32 v{t0}, v0, 3, 2"), o(f"v_mov_b32 v{t1}, {OOB:#x}"), o(f"v_mov_b32 v{t3}, 0"),
                  G([o(f"v_cmp_eq_u32 vcc, s{S_W}, v{t0}"), o("v_nop"), o("v_nop"), o(f"v_cndmask_b32 v{t3}, v{t1}, v{t3}, vcc")])]
        PV = R["PV"]
        L += [o(f"v_add_u32 v{PV}, v{t3}, v{V_L16}")]
        pk, pb = R["P"]
        ldp = [vm(f"buffer_load_dwordx4 {pk}[{pb+4*p}:{pb+4*p+3}], v{PV}, s[{SW}:{SW+3}], s{so+p} offen sc1", ("it", kind)) for p in range(8)]
        if split: LD += ldp
        else: L += ldp
        X, Y, OA = R["X"], R["Y"], R["OA"]
        L += [o(f"s_lshl_b32 s{sT}, s{sB}, 4"), o(f"v_and_b32 v{t0}, 15, v0"), o(f"v_add_u32 v{t0}, s{sT}, v{t0}"),
              o(f"v_sub_u32 v{t1}, 2048, v{t0}"), o(f"v_mov_b32 v{t2}, 1024"), o(f"v_mov_b32 v{OA}, 0"),
              G([o(f"v_cmp_eq_u32 vcc, 0, v{t0}"), o("v_nop"), o("v_nop"), o(f"v_cndmask_b32 v{X}, v{t1}, v{t2}, vcc"),
                 o(f"v_cndmask_b32 v{t1}, v{t1}, v{OA}, vcc"), o(f"v_cndmask_b32 v{t2}, v{t0}, v{t2}, vcc")]),
              o(f"v_and_b32 v{OA}, 16, v0"),
              G([o(f"v_cmp_eq_u32 vcc, 0, v{OA}"), o("v_nop"), o("v_nop"), o(f"v_cndmask_b32 v{t0}, v{X}, v{t0}, vcc"), o(f"v_cndmask_b32 v{t1}, v{t2}, v{t1}, vcc")]),
              G([o(f"s_lshl_b32 s{sT}, s{sQ}, 6"), o(f"s_lshl_b32 s{sB}, s{sH}, 5"), o(f"s_add_u32 s{sT}, s{sT}, s{sB}")]),
              o(f"v_mul_u32_u24 v{t2}, 1152, v{t0}"), o(f"v_add_u32 v{t2}, s{sT}, v{t2}"), o(f"v_add_u32 v{t2}, v{t2}, v{t3}"),
              o(f"v_lshrrev_b32 v{X}, 5, v0"), o(f"v_lshlrev_b32 v{OA}, 4, v{X}"), o(f"v_add_u32 v{OA}, v{t2}, v{OA}"),
              o(f"v_lshlrev_b32 v{X}, 3, v{X}"), o(f"v_add_u32 v{t2}, v{t2}, v{X}"),
              vm(f"buffer_load_dwordx2 v[{X}:{X+1}], v{t2}, s[{SR_X}:{SR_X+3}], 0 offen", ("it", kind)),
              vm(f"buffer_load_dwordx2 v[{X+2}:{X+3}], v{t2}, s[{SR_X}:{SR_X+3}], 0 offen offset:16", ("it", kind)),
              G([o(f"s_lshl_b32 s{sT}, s{sT}, 1"), o(f"s_cmp_lt_u32 s{sQ}, 9"), o(f"s_cselect_b32 s{R['rev']}, 0, 1")]),
              G([o(f"s_sub_u32 s{sB}, 2292, s{sT}"), o(f"s_cmp_lt_u32 s{sQ}, 9"), o(f"s_cselect_b32 s{sT}, s{sT}, s{sB}"), o(f"s_cselect_b32 s{sB}, 1, -1")]),
              G([o(f"v_cmp_eq_u32 vcc, 1, v{PV}") if False else o(f"v_mov_b32 v{t2}, s{R['rev']}"), o(f"v_cmp_eq_u32 vcc, 1, v{t2}"), o("v_nop"), o("v_nop"),
                 o(f"v_cndmask_b32 v{t0}, v{t0}, v{t1}, vcc")]),
              o(f"v_mul_u32_u24 v{t0}, {YP}, v{t0}"), o(f"v_add_u32 v{t0}, s{sT}, v{t0}"), o(f"v_add_u32 v{t0}, v{t0}, v{t3}"),
              o(f"v_lshrrev_b32 v{t1}, 5, v0"), o(f"v_lshlrev_b32 v{t1}, 4, v{t1}"), o(f"v_mul_lo_u32 v{t1}, v{t1}, s{sB}"),
              o(f"v_add_u32 v{t0}, v{t0}, v{t1}"),
              o(f"s_lshl_b32 s{sB}, s{sB}, 5"), o(f"v_add_u32 v{t1}, s{sB}, v{t0}"), o(f"v_add_u32 v{t0}, {WS_YH}, v{t0}"), o(f"v_add_u32 v{t1}, {WS_YH}, v{t1}")]
        ldy = [vm(f"buffer_load_dwordx4 v[{Y}:{Y+3}], v{t0}, s[{SW}:{SW+3}], 0 offen sc1", ("it", kind)),
               vm(f"buffer_load_dwordx4 v[{Y+4}:{Y+7}], v{t1}, s[{SW}:{SW+3}], 0 offen sc1", ("it", kind))]
        if split:
            LD += ldy
            return L, LD
        return L + ldy

    def item_finish(self, kind, R):
        X, Y, OA = R["X"], R["Y"], R["OA"]
        t0, t1, t2, t3 = R["t"]
        pk, pb = R["P"]
        L = [wvm(("it", kind)),
             o(f"s_cmp_eq_u32 s{R['rev']}, 0"), o(f"s_cbranch_scc1 L_rv{kind}"),
             o(f"v_swap_b32 v{Y}, v{Y+3}"), o(f"v_swap_b32 v{Y+1}, v{Y+2}"), o(f"v_swap_b32 v{Y+4}, v{Y+7}"), o(f"v_swap_b32 v{Y+5}, v{Y+6}"),
             raw(f"L_rv{kind}:"),
             o(f"s_mov_b32 s{T0}, 0x3f80"), o(f"s_mov_b32 s{T1}, 0x3f800000")]
        for i in range(4):
            L += [o(f"v_dot2_f32_bf16 v{Y+2*i}, v{X+i}, s{T0}, v{Y+2*i}"), o(f"v_dot2_f32_bf16 v{Y+2*i+1}, v{X+i}, s{T1}, v{Y+2*i+1}")]
        for p in range(8):
            for i in range(4):
                r = pb + 4*p + i
                if pk == "a":
                    L += [o(f"v_accvgpr_read_b32 v{t0 + (i & 1)}, a{r}")]
                    src = t0 + (i & 1)
                else: src = r
                L += [o(f"v_dot2_f32_bf16 v{Y+2*i}, v{src}, s{T0}, v{Y+2*i}"), o(f"v_dot2_f32_bf16 v{Y+2*i+1}, v{src}, s{T1}, v{Y+2*i+1}")]
        L += [o("s_nop 2")]
        for i in range(4):
            L += [o(f"v_cvt_pk_bf16_f32 v{X+i}, v{Y+2*i}, v{Y+2*i+1}")]
        L += [o("s_nop 1"), o(f"v_permlane32_swap_b32 v{X}, v{X+2}"), o(f"v_permlane32_swap_b32 v{X+1}, v{X+3}"),
              vm(f"buffer_store_dwordx4 v[{X}:{X+3}], v{OA}, s[{SR_OUT}:{SR_OUT+3}], 0 offen{self.osfx}", "out")]
        return L

    def group_poll(self, label, val, vdst, voff):
        ld = f"buffer_load_dword v{vdst}, v{voff}, s[{SR_WS}:{SR_WS+3}], s{T6} offen sc1"
        chk = [o(f"v_cmp_le_u32 vcc, {val}, v{vdst}"), o("s_nop 0"), o(f"s_and_b32 s{T7}, vcc_lo, 0xff"), o(f"s_cmp_eq_u32 s{T7}, 0xff")]
        return ld, chk

    def items_cfg(self):
        self.RA = dict(P=("v", 80), X=112, Y=116, OA=124, PV=125, t=[126, 127, 16, 17], rev=24, so=16)
        self.RB = dict(P=("a", 0), X=18, Y=22, OA=30, PV=31, t=[48, 49, 50, 51], rev=25, so=16)
        self.RC = dict(P=("v", 176), X=208, Y=212, OA=220, PV=221, t=[222, 223, 224, 225], rev=26, so=16)
        self.RD = dict(P=("v", 128), X=160, Y=164, OA=172, PV=173, t=[174, 175, 226, 227], rev=27, so=84)

    def tail(self):
        L = list(self.late_loads)
        O = 128
        L += [wvm([("pst", 3), ("pst", 4)]), o("s_barrier"), o("v_mov_b32 v240, 5"),
              vm(f"buffer_store_dword v240, v{V_ONE0}, s[{SR_WS}:{SR_WS+3}], s{S_FL} offen sc1", "fl5")]
        ld, chk = self.group_poll("L_f5", 5, 241, 242)
        L += [vm(ld, "fp5")]
        L += self.stamp("pub")
        RD = dict(P=("v", 176), X=208, Y=212, OA=220, PV=221, t=[222, 223, 224, 225], rev=26, so=84)
        Ad, Ld = self.item_setup("D", RD, split=True)
        xl = [i for i in Ad if getattr(i, "k", None) == "vm"]
        L += flat(Ad)
        L += [wvm("op"), wvm("ox"), o(f"s_mov_b32 s{T0}, 0x3f80"), o(f"s_mov_b32 s{T1}, 0x3f800000"),
              o("s_cmp_eq_u32 s24, 0"), o("s_cbranch_scc1 L_oyd")]
        for g_ in range(4):
            for k in range(4): L += [o(f"v_add_f32 v{O+4*g_+k}, v{O+4*g_+k}, v{48 + 4*(3-g_) + 3 - k}")]
        L += [o("s_branch L_oyj"), raw("L_oyd:")]
        for r in range(16): L += [o(f"v_add_f32 v{O+r}, v{O+r}, v{48+r}")]
        L += [raw("L_oyj:")]
        for i in range(8):
            L += [o(f"v_dot2_f32_bf16 v{O+2*i}, v{24+i}, s{T0}, v{O+2*i}"), o(f"v_dot2_f32_bf16 v{O+2*i+1}, v{24+i}, s{T1}, v{O+2*i+1}")]
        for p in range(6):
            for i in range(8):
                L += [o(f"v_dot2_f32_bf16 v{O+2*i}, v{80+8*p+i}, s{T0}, v{O+2*i}"), o(f"v_dot2_f32_bf16 v{O+2*i+1}, v{80+8*p+i}, s{T1}, v{O+2*i+1}")]
        L += self.stamp("early")
        L += [wvm("fp5")] + chk + [o("s_cbranch_scc1 L_f5_ok")] + self.spin("L_f5", [o(ld)], chk) + [reset()]
        L += self.stamp("pok")
        L += [vm(f"buffer_load_dwordx4 v[16:19], v{V_L16}, s[{SR_WS}:{SR_WS+3}], s22 offen sc1", "sib"),
              vm(f"buffer_load_dwordx4 v[20:23], v{V_L16}, s[{SR_WS}:{SR_WS+3}], s22 offen offset:1024 sc1", "sib")]
        L += Ld
        L += [wvm("sib")]
        for i in range(8):
            L += [o(f"v_dot2_f32_bf16 v{O+2*i}, v{16+i}, s{T0}, v{O+2*i}"), o(f"v_dot2_f32_bf16 v{O+2*i+1}, v{16+i}, s{T1}, v{O+2*i+1}")]
        L += [o("s_nop 2")]
        for i in range(8): L += [o(f"v_cvt_pk_bf16_f32 v{24+i}, v{O+2*i}, v{O+2*i+1}")]
        L += [o("s_nop 1"), o("v_permlane32_swap_b32 v24, v26"), o("v_permlane32_swap_b32 v25, v27"),
              o("v_permlane32_swap_b32 v28, v30"), o("v_permlane32_swap_b32 v29, v31"),
              vm(f"buffer_store_dwordx4 v[24:27], v238, s[{SR_OUT}:{SR_OUT+3}], 0 offen{self.osfx}", "out"),
              vm(f"buffer_store_dwordx4 v[28:31], v238, s[{SR_OUT}:{SR_OUT+3}], 0 offen offset:32{self.osfx}", "out")]
        L += self.stamp("ownfin")
        L += self.item_finish("D", RD)
        return L

    def kernel(self, name):
        L = [raw(f".globl {name}"), raw(".p2align 8"), raw(f".type {name},@function"), raw(f"{name}:")]
        L += self.prologue()
        L += self.ln_stats()
        L += self.stamp("stats")
        L += [o("s_barrier")]
        L += [o(f"s_mov_b32 s{S_A}, s{S_J}"), o(f"s_add_u32 s{S_B}, s{S_J}, 16")]
        L += self.h_dma(S_A, 2, "wz1")
        L += [o(f"s_cmp_lt_u32 s{S_J}, 2"), o("s_cbranch_scc0 L_noz2a")]
        L += [I(i.t, "o") if i.k == "vm" else i for i in self.h_dma(S_B, 3, "wz2")]
        L += [raw("L_noz2a:")]
        for sig in range(2):
            for grp in self.dma_p1(sig, sig): L += grp
        if self.opts.get("bulk", 1):
            L += [o(f"s_lshl_b32 s{T0}, s{S_LID}, 2"), o(f"s_add_u32 s{T0}, s{T0}, s{S_W}"), o(f"s_mul_i32 s{T0}, s{T0}, 41"),
                  o(f"v_add_u32 v240, s{T0}, v0"), o("v_lshlrev_b32 v240, 7, v240"), o("v_cmp_gt_u32 vcc, 41, v0"), o(f"v_mov_b32 v241, {OOB:#x}"), o("s_nop 0"),
                  o("v_cndmask_b32 v240, v241, v240, vcc")]
            for rs in ((SR_WG, SR_WU) if self.opts.get("bulk", 1) == 1 else (SR_WG, SR_WU, SR_WD)):
                L += [vm(f"buffer_load_dword v{V_PF}, v240, s[{rs}:{rs+3}], 0 offen", "pf")]
        L += self.ln_finish()
        L += [o(f"v_subrev_u32 v{V_XA+i}, s{S_LX}, v{V_XA+i}") for i in range(4)]
        L += [o(f"v_add_u32 v{V_XA+i}, {2*SLOT}, v{V_XA+i}") for i in range(4)]
        L += self.stamp("lnfin")
        nb = {0: 0, 1: 2, 2: 3}[self.opts.get("bulk", 1)]
        L += [o(f"s_waitcnt vmcnt({18 + nb})")]
        L += self.h_special(S_A, 2, "a")
        L += [o("s_waitcnt lgkmcnt(0)"), o("s_barrier")]
        L += self.seg_norm_h()
        L += self.stamp("normH")
        L += self.h2_block()
        L += self.tr_bases()
        L += srd(SR_HZ, 36, 256)
        L += self.main()
        L += self.stamp("p2end")
        L += self.tail()
        L += self.stamp("end")
        if self.diag:
            L += [o("s_waitcnt vmcnt(0)"),
                  o(f"s_lshl_b32 s{T0}, s{S_LID}, 2"), o(f"s_add_u32 s{T0}, s{T0}, s{S_W}"), o(f"s_lshl_b32 s{T0}, s{T0}, 8"),
                  o(f"s_add_u32 s{T0}, s{T0}, {WS_STAMP}"), o("v_lshlrev_b32 v240, 2, v0"),
                  o(f"buffer_store_dword v{V_STAMP}, v240, s[{SR_WS}:{SR_WS+3}], s{T0} offen")]
        L += [raw("L_end:"), o("s_endpgm")]
        return finalize(flat(L))

NAME = "parallel_sum__spectral_fnet__geglu_ffn__prompt_kernel"
def build(diag=False, opts=None):
    hdr = open("parallel_sum__spectral_fnet__geglu_ffn__prompt.s.ref").read().split("\n")
    top = [l for l in hdr if l.startswith(";") and "@launch" not in l and "Override" not in l and "grid=ceil" not in l]
    g = Gen(diag, opts)
    lines = g.kernel(NAME)
    errs = hazard_check(lines)
    for e in errs[:30]: print("HAZARD:", e)
    txt = "\n".join(top) + "\n"
    txt += "; @launch grid=(256,1,1) block=(256,1,1) lds=163840\n"
    txt += '.amdgcn_target "amdgcn-amd-amdhsa--gfx950"\n.text\n'
    txt += "\n".join(lines) + "\n" + kernel_footer(NAME)
    return txt, g.names

if __name__ == "__main__":
    import sys, json
    opts = {}
    for a in sys.argv[2:]:
        if "=" in a:
            k, v = a.split("="); opts[k] = int(v)
    txt, names = build("diag" in sys.argv, opts)
    open(sys.argv[1], "w").write(txt)
    json.dump(names, open(sys.argv[1] + ".names", "w"))
```

```python
class I:
    __slots__ = ("t", "k", "tag", "cost")
    def __init__(self, t, k="o", tag=None):
        self.t = t; self.k = k; self.tag = tag
    def __repr__(self): return f"I({self.t!r},{self.k},{self.tag})"

def o(t): return I(t, "o")
def vm(t, tag=None): return I(t, "vm", tag)
def ds(t, tag=None): return I(t, "ds", tag)
def wvm(tag): return I("", "wvm", tag)
def wlg(tag): return I("", "wlg", tag)
def wvmf(tag): return I("", "wvmf", tag)
def wboth(vtag, ltag): return I("", "wb", (vtag, ltag))
def raw(t): return I(t, "raw")
def reset(): return I("", "reset")

def _match(tag, want):
    if isinstance(want, (list, set, tuple)) and not (isinstance(want, tuple) and isinstance(tag, tuple) and len(want) and not isinstance(want[0], tuple) ):
        return tag in want
    return tag == want

def finalize(instrs):
    out = []
    vml = []
    dsl = []
    vm_done = 0
    ds_done = 0
    def need(lst, done, want, mx):
        idx = -1
        wants = want if isinstance(want, (list, set)) else [want]
        for i in range(len(lst) - 1, -1, -1):
            if lst[i] in wants:
                idx = i; break
        if idx < 0:
            raise Exception(f"wait on unknown tag {want}")
        if idx < done:
            return None, done
        n = len(lst) - 1 - idx
        if n > mx:
            n = mx
        return n, len(lst) - n
    for ins in instrs:
        if ins.k == "vm":
            vml.append(ins.tag); out.append("    " + ins.t)
        elif ins.k == "ds":
            dsl.append(ins.tag); out.append("    " + ins.t)
        elif ins.k == "wvm":
            n, vm_done = need(vml, vm_done, ins.tag, 63)
            if n is not None: out.append(f"    s_waitcnt vmcnt({n})")
        elif ins.k == "wvmf":
            n, _ = need(vml, 0, ins.tag, 63)
            out.append(f"    s_waitcnt vmcnt({n})")
        elif ins.k == "wlg":
            n, ds_done = need(dsl, ds_done, ins.tag, 15)
            if n is not None: out.append(f"    s_waitcnt lgkmcnt({n})")
        elif ins.k == "wb":
            n1, vm_done = need(vml, vm_done, ins.tag[0], 63)
            n2, ds_done = need(dsl, ds_done, ins.tag[1], 15)
            s = []
            if n1 is not None: s.append(f"vmcnt({n1})")
            if n2 is not None: s.append(f"lgkmcnt({n2})")
            if s: out.append("    s_waitcnt " + " ".join(s))
        elif ins.k == "reset":
            vm_done = len(vml); ds_done = len(dsl)
        elif ins.k == "raw":
            out.append(ins.t)
        else:
            out.append("    " + ins.t)
    return out

def vr(b, n=1):
    return f"v{b}" if n == 1 else f"v[{b}:{b+n-1}]"
def ar(b, n=1):
    return f"a{b}" if n == 1 else f"a[{b}:{b+n-1}]"
def sr(b, n=1):
    return f"s{b}" if n == 1 else f"s[{b}:{b+n-1}]"

def spread(slots, instrs, start, end):
    n = len(instrs); m = end - start
    for i, ins in enumerate(instrs):
        s = start + (i * m) // n
        slots[s]["post"].append(ins)

def kernel_footer(name, vgpr=512, sgpr=102, accum=256):
    return f"""
.section .rodata,"a"
.p2align 6
.amdhsa_kernel {name}
  .amdhsa_next_free_vgpr {vgpr}
  .amdhsa_next_free_sgpr {sgpr}
  .amdhsa_accum_offset {accum}
  .amdhsa_group_segment_fixed_size 0
  .amdhsa_kernarg_size 96
  .amdhsa_user_sgpr_count 2
  .amdhsa_user_sgpr_kernarg_segment_ptr 1
  .amdhsa_system_sgpr_workgroup_id_x 1
.end_amdhsa_kernel
.text
"""
```

```python
from fw import *
from sched import *
import math, struct

S, D, F = 2048, 576, 4608
SLOT = 36864
SPARE = 4*SLOT
PART_BYTES = S * D * 2
WS_PART = 0
WS_HX = 20 << 20
WS_ZF = 40 << 20
ZF_STRIDE = 66 * 1024
WS_YH = 42 << 20
YP = 320 * 4
WS_FLAG = 46 << 20
WS_STAMP = 48 << 20
OOB = 0x40000000
C0 = -2.0 * math.sqrt(2.0 / math.pi) * math.log2(math.e)
C1 = C0 * 0.044715
def f2u(f): return struct.unpack("<I", struct.pack("<f", f))[0]

V_L16 = 1
V_RA, V_RB = 2, 6
V_DM = 10
V_C0, V_C1 = 14, 15
GA = [[16, 32], [48, 64]]
UA = [[80, 96], [112, 128]]
HF = 144
TMP = 216
V_HACC = 232
V_XA = 248
V_R8 = 248
V_PF = 252
V_ONE0 = 253
V_D2 = 254
V_STAMP = 255
RX = 80
V_PERM = 224
V_NEGMU = 64
V_ONE = 231
V_SD = 232
V_SA = 236
V_SX = 240
V_ZP = 241
V_ZQ = 244
V_YC = [247, 250, 251]
V_LB = 232
AX = 0
AF = 144
NAF = 8
AZ = 176
SR_CS, SR_SS, SR_HZ, SR_X, SR_WG, SR_WU, SR_WD, SR_WS, SR_OUT = 4, 8, 12, 40, 44, 48, 52, 56, 60
S_W, S_MT, S_J = 64, 65, 66
S_LX, S_L9 = 67, 68
S_UB = 69
S_WD = 74
S_PB = 75
T0, T1, T2, T3, T4, T5, T6, T7 = 76, 77, 78, 79, 80, 81, 82, 83
S_N0 = 84
S_N1 = 16
S_CU = 25
S_Q0, S_Q8 = 30, 31
S_HB = 32
S_LID = 33
S_ST0, S_ST1 = 34, 35
S_CNT = 93
S_A, S_B, S_C = 94, 95, 96
S_TAU, S_ZB = 38, 39
S_PF = 97
S_XC = 0
S_QU = [30, 36, 37]
S_QN = 39
S_TO = 32
S_GA = 28
S_FL = 1
S_MODE = 2
S_D0 = 3

def srd(dst, ptr, nbytes):
    return [o(f"s_mov_b32 s{dst}, s{ptr}"), o(f"s_and_b32 s{dst+1}, s{ptr+1}, 0xffff"),
            o(f"s_mov_b32 s{dst+2}, {nbytes}"), o(f"s_mov_b32 s{dst+3}, 0x00020000")]
def mf32(acc, A, B, C): return o(f"v_mfma_f32_32x32x16_bf16 {acc}, {A}, {B}, {C}")
def mf16(acc, A, B, C): return o(f"v_mfma_f32_16x16x32_bf16 {acc}, {A}, {B}, {C}")

class DS2(I):
    pass

class Gen:
    def dload(self, texts, tag, pair=False):
        out = self.dstore(texts, tag, pair)
        if hasattr(out[0], "cost"): out[0].cost = 3 + len(texts)
        return out
    def dstore(self, texts, tag, pair=False):
        self.lab = getattr(self, "lab", 0) + 1
        n = self.lab
        if self.opts.get("forcemode") == 1 or not self.opts.get("local", 0) or (self.opts.get("cfg", 0) == 0 and not pair):
            return [vm(t + " sc1", tag) for t in texts]
        body = f"s_bitcmp1_b32 s{S_MODE}, 0\n    s_cbranch_scc1 L_dl{n}\n"
        body += "".join(f"    {t} sc1\n" for t in texts)
        body += f"    s_branch L_dj{n}\nL_dl{n}:\n"
        body += "".join(f"    {t}\n" for t in texts)
        body += f"L_dj{n}:"
        out = [I("buffer_store_multi " + body, "vm", tag)]
        out[0].t = body
        out[0].cost = 3 + 5*len(texts)
        for _ in texts[1:]:
            x = I("; (counted above)", "vm", tag); x.cost = 0; out.append(x)
        return out
    def __init__(self, diag=False, opts=None):
        self.osfx = ' sc1' if (opts or {}).get('osc1') else ''
        self.diag = diag; self.opts = opts or {}; self.nst = 0; self.names = []; self.pid = 0
    def stamp(self, name):
        if not self.diag: return []
        i = self.nst; self.nst += 1; self.names.append(name)
        return [o("s_memtime s[98:99]"), o("s_memrealtime s[100:101]"), o("s_waitcnt lgkmcnt(0)"),
                o(f"v_writelane_b32 v{V_STAMP}, s98, {i}"), o(f"v_writelane_b32 v{V_STAMP}, s100, {i+32}")]

    def paced(self, M, frags, setup, dist):
        N = len(M)
        sl = Slots(N)
        for g, m in enumerate(M):
            if m["op"] == 16: sl.budget[g] = 3
        head = []
        pid = self.pid; self.pid += 1
        def put(t, ins):
            if t < 0: head.extend(ins if isinstance(ins, list) else [ins])
            else: sl.put(t, ins)
        issue = {}
        for f, fr in enumerate(frags):
            t = fr["use"] - fr.get("dist", dist)
            issue[f] = t
            put(t, fr.get("pre", []))
            put(t, [ds(r, ("af", pid, f)) for r in fr["reads"]])
        waited = -1
        n0 = M[0]["need"]
        if n0 >= 0:
            tgt = max(n0, M[1]["need"])
            head.append(wlg(("af", pid, tgt))); waited = tgt
        for g in range(N - 1):
            nx = M[g+1]["need"]
            if nx > waited:
                tgt = nx
                if g + 2 < N and M[g+2]["need"] > nx and issue[M[g+2]["need"]] <= g - 3 and M[g+1]["op"] == 32: tgt = M[g+2]["need"]
                put(g, [wlg(("af", pid, tgt))]); waited = tgt
        setup(sl, head)
        L = list(head)
        for g, m in enumerate(M):
            L += m.get("before", [])
            c = "0" if m["first"] else m.get("C", m["acc"])
            if m.get("C") and m["first"]: c = m["C"]
            L.append((mf32 if m["op"] == 32 else mf16)(m["acc"], m["A"], m["B"], c))
            L += sl.emit(g)
        if self.opts.get("verbose"):
            over = [(g, sl.used[g], sl.budget[g]) for g in range(N) if sl.used[g] > sl.budget[g]]
            print(f"paced {pid}: N={N} over budget: {len(over)} total excess {sum(u-b for _,u,b in over)} avg used {sum(sl.used)/N:.2f}")
            if self.opts.get("verbose") > 1:
                for a in range(0, N, 36):
                    ex = sum(max(0, sl.used[g]-sl.budget[g]) for g in range(a, min(a+36, N)))
                    print(a, "used", sum(sl.used[a:a+36]), "budget", sum(sl.budget[a:a+36]), "excess", ex)
        return L

    def prologue(self):
        L = []
        if self.diag: L += [o(f"v_mov_b32 v{V_STAMP}, 0")]
        L += self.stamp("start")
        L += [o("s_load_dwordx16 s[16:31], s[0:1], 0"), o("s_load_dwordx8 s[32:39], s[0:1], 64"),
              o("s_cmp_ge_u32 s2, 256"), o("s_cbranch_scc1 L_end")]
        L += [o("v_lshrrev_b32 v2, 6, v0"), o("v_and_b32 v0, 63, v0"), o("s_nop 0"),
              o(f"v_readfirstlane_b32 s{S_W}, v2"),
              ] + self.idmap() + [
              o(f"s_mul_i32 s{S_LX}, s{S_W}, {SLOT}"), o(f"s_mul_i32 s{S_L9}, s{S_W}, 9216"),
              o(f"v_lshlrev_b32 v{V_L16}, 4, v0")]
        L += [o("v_lshrrev_b32 v2, 3, v0"), o("v_and_b32 v3, 7, v0"), o("v_lshrrev_b32 v4, 1, v2"),
              o("v_xor_b32 v3, v3, v4"), o("v_lshlrev_b32 v3, 4, v3"), o("v_xor_b32 v4, 64, v3"),
              o(f"s_lshl_b32 s{T0}, s{S_MT}, 6"), o(f"s_lshl_b32 s{T1}, s{S_W}, 4"), o(f"s_add_u32 s{T0}, s{T0}, s{T1}"),
              o(f"v_add_u32 v5, s{T0}, v2"), o("v_add_u32 v6, 8, v5"),
              o("v_sub_u32 v7, 2048, v5"), o("v_sub_u32 v8, 2048, v6"),
              o("v_cmp_eq_u32 vcc, 0, v5"), o("v_mov_b32 v9, 1024"), o("s_nop 0"),
              o("v_cndmask_b32 v7, v7, v9, vcc"),
              o(f"s_movk_i32 s{T1}, 1152"),
              o(f"v_mad_u32_u24 v240, v5, s{T1}, v3"), o(f"v_mad_u32_u24 v241, v6, s{T1}, v4"),
              o(f"v_mad_u32_u24 v242, v7, s{T1}, v3"), o(f"v_mad_u32_u24 v243, v8, s{T1}, v4")]
        if self.opts.get("xpf", 1) == 2:
            L += [o(f"s_lshl_b32 s{T0}, s{S_MT}, 4"), o(f"s_add_u32 s{T0}, s{T0}, s{S_J}"), o(f"s_lshl_b32 s{T0}, s{T0}, 2"), o(f"s_add_u32 s{T0}, s{T0}, s{S_W}"),
                  o(f"s_mul_i32 s{T0}, s{T0}, 18"), o(f"v_add_u32 v9, s{T0}, v0"), o("v_lshlrev_b32 v9, 7, v9"),
                  o("v_cmp_gt_u32 vcc, 18, v0"), o(f"v_mov_b32 v8, {OOB:#x}"), o("s_nop 0"), o("v_cndmask_b32 v9, v8, v9, vcc")]
        elif self.opts.get("xpf", 1):
            nsh = 16 if self.opts.get("cfg", 0) == 1 else 4
            per = 1152 // nsh // 4
            assert per <= 64 or True
            jj = f"s{S_J}"
            L += [o(f"s_and_b32 s{T0}, s{S_J}, {nsh-1}"), o(f"s_lshl_b32 s{T0}, s{T0}, 2"), o(f"s_add_u32 s{T0}, s{T0}, s{S_W}"), o(f"s_mul_i32 s{T0}, s{T0}, {per}"),
                  o(f"v_add_u32 v9, s{T0}, v0"),
                  o(f"s_mul_i32 s{T0}, s{S_MT}, {64*1152}"),
                  o(f"s_sub_u32 s{T1}, {(2048-63)*1152 - 576*128}, s{T0}"),
                  o("v_lshlrev_b32 v8, 7, v9"), o(f"v_add_u32 v7, s{T1}, v8"), o(f"v_add_u32 v8, s{T0}, v8"),
                  o("v_cmp_gt_u32 vcc, 0x240, v9"), o("s_nop 1"), o("v_cndmask_b32 v9, v7, v8, vcc"),
                  o(f"v_cmp_gt_u32 vcc, {min(per,64)}, v0"), o(f"v_mov_b32 v8, {OOB:#x}"), o("s_nop 0"), o("v_cndmask_b32 v9, v8, v9, vcc")]
        L += [o("s_waitcnt lgkmcnt(0)")]
        L += self.stamp("kernarg")
        L += srd(SR_X, 16, S*D*2)
        if self.opts.get("xpf", 1):
            L += [vm(f"buffer_load_dword v{V_PF}, v9, s[{SR_X}:{SR_X+3}], 0 offen", "pf")]
        HEAD = L
        P = []
        P += srd(SR_WG, 28, D*F*2) + srd(SR_WU, 30, D*F*2) + srd(SR_WD, 32, F*D*2) + srd(SR_WS, 38, 256 << 20) + srd(SR_OUT, 34, S*D*2)
        P += srd(SR_CS, 18, S*S*2) + srd(SR_SS, 20, S*S*2)
        P += [o(f"s_lshl_b32 s{T0}, s{S_W}, 6"), o(f"v_add_u32 v2, s{T0}, v0"), o("v_cmp_eq_u32 vcc, 0, v2"),
              o(f"v_mov_b32 v3, {OOB:#x}"), o("v_mov_b32 v4, 0"), o(f"v_cndmask_b32 v{V_ONE0}, v3, v4, vcc")]
        P += [o(f"s_lshl_b32 s{S_LID}, s{S_MT}, 4"), o(f"s_add_u32 s{S_LID}, s{S_LID}, s{S_J}")]
        P += [o(f"s_and_b32 s{T2}, s{S_J}, 1"), o(f"s_mul_i32 s{T0}, s{S_J}, 288"), o(f"s_mul_i32 s{T1}, s{T2}, 224"),
              o(f"s_add_u32 s{T1}, s{T0}, s{T1}"),
              G([o(f"s_cmp_eq_u32 s{T2}, 0"), o(f"s_cselect_b32 s{T3}, 64, -64"), o(f"s_cselect_b32 s{T4}, 256, 0")]),
              o(f"s_add_u32 s{T4}, s{T4}, s{T0}")]
        for u in range(4):
            P += [o(f"s_mul_i32 s{T5}, s{T3}, {u}"), o(f"s_add_u32 s{T5}, s{T5}, s{T1}"),
                  o(f"s_lshl_b32 s{S_UB+u}, s{T5}, 1"),
                  o(f"s_mul_i32 s{S_N0+2*u}, s{T5}, 1152"), o(f"s_add_u32 s{S_N0+2*u+1}, s{S_N0+2*u}, {32*1152}")]
        P += [o(f"s_lshl_b32 s{S_UB+4}, s{T4}, 1"), o(f"s_mul_i32 s{S_N0+8}, s{T4}, 1152")]
        P += [o(f"s_mov_b32 s{S_A}, s{S_UB}")]
        P += [o(f"s_mul_i32 s{T5}, s{S_W}, {72*9216}")]
        for u in range(4): P += [o(f"s_add_u32 s{S_UB+u}, s{S_UB+u}, s{T5}")]
        P += [o(f"s_lshl_b32 s{T5}, s{T5}, 1"), o(f"s_add_u32 s{S_UB+4}, s{S_UB+4}, s{T5}")]
        P += [o(f"s_lshr_b32 s{T0}, s{S_J}, 1"), o(f"s_mul_i32 s{S_PB}, s{T0}, {PART_BYTES}"),
              o(f"s_lshl_b32 s{T0}, s{S_MT}, 2"), o(f"s_add_u32 s{T0}, s{T0}, s{S_W}"),
              o(f"s_mul_i32 s{T0}, s{T0}, {18*2048}"), o(f"s_add_u32 s{S_PB}, s{S_PB}, s{T0}"),
              o(f"s_lshl_b32 s{T0}, s{S_LID}, 2"), o(f"s_add_u32 s{T0}, s{T0}, s{S_W}"),
              o(f"s_mul_i32 s{S_HB}, s{T0}, {18*1024}"), o(f"s_add_u32 s{S_HB}, s{S_HB}, {WS_HX}")]
        P += [o("v_lshrrev_b32 v2, 3, v0"), o("v_and_b32 v3, 7, v0"),
              o("v_bfe_u32 v4, v0, 4, 1"), o("v_lshlrev_b32 v4, 2, v4"), o("v_xor_b32 v3, v3, v4"), o("v_lshlrev_b32 v3, 4, v3"),
              o(f"v_mul_u32_u24 v2, 9216, v2"), o(f"v_add_u32 v{V_DM}, v2, v3")]
        for t in range(1, 4): P += [o(f"v_add_u32 v{V_DM+t}, {t*(8*9216-1024)}, v{V_DM}")]
        P += [o("v_and_b32 v2, 31, v0"), o("v_bfe_u32 v3, v0, 1, 3"), o("v_lshrrev_b32 v4, 5, v0"), o("v_xor_b32 v3, v3, v4"),
              o("v_lshlrev_b32 v3, 4, v3"), o("v_lshlrev_b32 v2, 7, v2"), o("v_add_u32 v2, v2, v3"),
              o(f"v_add_u32 v{V_XA}, s{S_LX}, v2"),
              o(f"v_xor_b32 v{V_XA+1}, 32, v{V_XA}"), o(f"v_xor_b32 v{V_XA+2}, 64, v{V_XA}"), o(f"v_xor_b32 v{V_XA+3}, 96, v{V_XA}")]
        P += [o("v_and_b32 v2, 15, v0"),
              o("v_and_b32 v3, 3, v2"), o("v_bfe_u32 v4, v2, 2, 1"), o("v_bfe_u32 v5, v2, 3, 1"),
              o("v_lshlrev_b32 v4, 3, v4"), o("v_lshlrev_b32 v5, 2, v5"), o("v_or_b32 v3, v3, v4"), o("v_or_b32 v3, v3, v5"),
              o("v_lshrrev_b32 v4, 3, v3"), o("v_lshrrev_b32 v5, 5, v0"),
              o("v_and_b32 v6, 1, v3"), o("v_lshlrev_b32 v6, 4, v6"), o("v_mov_b32 v7, 0x3f80"), o("v_lshlrev_b32 v7, v6, v7"), o("v_mov_b32 v8, 0"),
              G([o("v_cmp_eq_u32 vcc, v4, v5"), o("v_nop"), o("v_nop"), o("v_cndmask_b32 v7, v8, v7, vcc")]),
              o("v_bfe_u32 v6, v3, 1, 2"), o("v_bfe_u32 v9, v0, 4, 1")]
        for d in range(4):
            P += [G([o(f"v_cmp_eq_u32 vcc, {d}, v6"), o("v_nop"), o("v_nop"), o(f"v_cndmask_b32 v{V_PERM+d}, v8, v7, vcc")])]
        P += [G([o("v_cmp_eq_u32 vcc, 1, v9"), o("v_nop"), o("v_nop")] + [o(f"v_cndmask_b32 v{V_PERM+4+d}, v8, v{V_PERM+d}, vcc") for d in range(4)] +
                [o(f"v_cndmask_b32 v{V_PERM+d}, v{V_PERM+d}, v8, vcc") for d in range(4)])]
        L = []
        L += [o("v_mov_b32 v4, 0"), o(f"s_lshl_b32 s{T0}, s{S_LID}, 7"), o(f"s_add_u32 s{T0}, s{T0}, {WS_FLAG}"),
              vm(f"buffer_store_dword v4, v{V_ONE0}, s[{SR_WS}:{SR_WS+3}], s{T0} offen sc1", "flinit")]
        L += self.h_srd(S_J)
        if self.opts.get("pf", 1):
            L += [o(f"s_and_b32 s{T0}, s{S_MT}, 7"), o(f"s_mul_i32 s{T0}, s{T0}, 36"), o(f"s_mul_i32 s{T1}, s{S_W}, 9"), o(f"s_add_u32 s{T0}, s{T0}, s{T1}"),
                  o(f"v_add_u32 v2, s{T0}, v0"), o(f"v_mov_b32 v4, {OOB:#x}"),
                  o(f"s_mov_b32 s{T1}, {(2**32+8)//9}"), o(f"v_mul_hi_u32 v5, v2, s{T1}"), o("v_mul_u32_u24 v6, 9, v5"), o("v_sub_u32 v6, v2, v6"),
                  o(f"v_add_u32 v5, s{T7}, v5"), o(f"v_mul_u32_u24 v5, 1152, v5"), o("v_lshlrev_b32 v6, 7, v6"), o("v_add_u32 v5, v5, v6"),
                  o(f"v_mul_u32_u24 v3, 9216, v2"),
                  o("v_cmp_gt_u32 vcc, 9, v0"), o("s_nop 1"), o("v_cndmask_b32 v3, v4, v3, vcc"), o("v_cndmask_b32 v5, v4, v5, vcc"),
                  vm(f"buffer_load_dword v{V_PF}, v5, s[{SR_HZ}:{SR_HZ+3}], 0 offen", "pf")]
            L += [o(f"s_cmp_lt_u32 s{S_J}, 2"), o("s_cbranch_scc0 L_nopf2"),
                  o(f"s_mov_b32 s{T0}, {7*32*1152}"),
                  o(f"v_add_u32 v6, s{T0}, v5"), o("v_cmp_gt_u32 vcc, 9, v0"), o("s_and_saveexec_b64 s[82:83], vcc"),
                  o(f"global_load_dword v{V_PF}, v6, s[24:25]"),
                  o("s_mov_b64 exec, s[82:83]"), raw("L_nopf2:")]
            for sig in range(self.opts.get("npf", 4)):
                mat, kh = (sig // 2) % 2, sig % 2
                assert sig < 4
                rs = SR_WG if mat == 0 else SR_WU
                L += [o(f"s_add_u32 s{T6}, s{S_A}, {kh*288*9216}"),
                      vm(f"buffer_load_dword v{V_PF}, v3, s[{rs}:{rs+3}], s{T6} offen", "pf")]
            L += [o("s_getpc_b64 s[82:83]"), raw("L_pc:"),
                  o(f"s_lshr_b32 s{T0}, s2, 3"), o(f"s_lshl_b32 s{T0}, s{T0}, 2"), o(f"s_add_u32 s{T0}, s{T0}, s{S_W}"),
                  o(f"s_lshl_b32 s{T0}, s{T0}, 9"),
                  o("v_and_b32 v2, 3, v0"), o("v_lshlrev_b32 v2, 7, v2"), o(f"v_add_u32 v2, s{T0}, v2"),
                  vm(f"global_load_dword v{V_PF}, v2, s[82:83]", "pf")]
        post = L
        for n, i in enumerate(P):
            if not isinstance(i, G) and i.t.startswith("v_cmp_eq_u32 vcc, 0, v2"):
                P[n:n+4] = [G(P[n:n+4])]
                break
        out = HEAD
        flatx = []
        for kap in range(9):
            xl = self.x_line(kap)
            flatx += [xl[3*r:3*r+3] for r in range(4)]
        npre = len(P); pi = 0
        first = self.opts.get("xfree", 10)
        for n, g in enumerate(flatx):
            out += g
            if n >= first:
                take = -(-(npre - pi) // (36 - n))
                for it in P[pi:pi + take]: out += (list(it) if isinstance(it, G) else [it])
                pi += take
        out += self.stamp("xiss")
        L = out + post
        return L

    def tr_bases(self):
        L = []
        L += [o("v_lshrrev_b32 v16, 5, v0"), o("v_lshlrev_b32 v16, 10, v16"),
              o("v_bfe_u32 v17, v0, 2, 2"), o("v_lshlrev_b32 v17, 7, v17"), o("v_add_u32 v16, v16, v17"),
              o("v_bfe_u32 v17, v0, 3, 1"), o("v_lshlrev_b32 v17, 6, v17"), o("v_add_u32 v16, v16, v17"),
              o("v_bfe_u32 v17, v0, 4, 1"), o("v_lshlrev_b32 v17, 5, v17"), o("v_add_u32 v16, v16, v17"),
              o("v_and_b32 v17, 3, v0"), o("v_lshlrev_b32 v17, 3, v17"), o(f"v_add_u32 v{V_RA}, v16, v17")]
        for s in range(1, 4): L += [o(f"v_add_u32 v{V_RA+s}, {s*SLOT}, v{V_RA}")]
        for s in range(4): L += [o(f"v_xor_b32 v{V_RB+s}, 64, v{V_RA+s}")]
        return L

    def idmap(self):
        cfg = self.opts.get("cfg", 0)
        if cfg == 0:
            return [o(f"s_and_b32 s{S_J}, s2, 3"), o(f"s_lshl_b32 s{S_J}, s{S_J}, 2"),
              o(f"s_bfe_u32 s{T0}, s2, 0x20003"), o(f"s_or_b32 s{S_J}, s{S_J}, s{T0}"),
              o(f"s_bfe_u32 s{S_MT}, s2, 0x10002"), o(f"s_lshl_b32 s{S_MT}, s{S_MT}, 3"),
              o(f"s_lshr_b32 s{T0}, s2, 5"), o(f"s_or_b32 s{S_MT}, s{S_MT}, s{T0}")]
        if cfg == 1:
            return [o(f"s_and_b32 s{S_MT}, s2, 7"), o(f"s_lshl_b32 s{S_MT}, s{S_MT}, 1"), o(f"s_bfe_u32 s{T0}, s2, 0x10003"),
                    o(f"s_or_b32 s{S_MT}, s{S_MT}, s{T0}"), o(f"s_lshr_b32 s{S_J}, s2, 4")]
        if cfg == 2:
            return [o(f"s_and_b32 s{S_J}, s2, 1"), o(f"s_lshl_b32 s{S_J}, s{S_J}, 3"),
              o(f"s_bfe_u32 s{T0}, s2, 0x30003"), o(f"s_or_b32 s{S_J}, s{S_J}, s{T0}"),
              o(f"s_bfe_u32 s{S_MT}, s2, 0x20001"), o(f"s_lshl_b32 s{S_MT}, s{S_MT}, 2"),
              o(f"s_lshr_b32 s{T0}, s2, 6"), o(f"s_or_b32 s{S_MT}, s{S_MT}, s{T0}")]

    def h_srd(self, zreg):
        return [o(f"s_cmp_lt_u32 s{zreg}, 9"),
                o(f"s_cselect_b32 s{SR_HZ}, s22, s24"), o(f"s_cselect_b32 s{SR_HZ+1}, s23, s25"), o(f"s_cselect_b32 s{T7}, 0, 9"),
                o(f"s_and_b32 s{SR_HZ+1}, s{SR_HZ+1}, 0xffff"), o(f"s_mov_b32 s{SR_HZ+2}, {D*D*2}"), o(f"s_mov_b32 s{SR_HZ+3}, 0x00020000"),
                o(f"s_sub_u32 s{T7}, s{zreg}, s{T7}"), o(f"s_lshl_b32 s{T7}, s{T7}, 5")]

    def h_dma(self, zreg, slot, tag):
        L = self.h_srd(zreg)
        L += [o(f"s_lshl_b32 s{T1}, s{S_W}, 3"), o(f"s_add_u32 s{T0}, s{T7}, s{T1}"),
             o("v_lshrrev_b32 v240, 3, v0"), o("v_and_b32 v241, 7, v0"), o("v_lshrrev_b32 v242, 1, v240"), o("v_xor_b32 v241, v241, v242"),
             o(f"s_and_b32 s{T1}, s{S_W}, 1"), o(f"s_lshl_b32 s{T1}, s{T1}, 2"), o(f"v_xor_b32 v241, s{T1}, v241"),
             o("v_lshlrev_b32 v241, 4, v241"),
             o(f"v_add_u32 v240, s{T0}, v240"), o(f"s_movk_i32 s{T1}, 1152"), o(f"v_mad_u32_u24 v240, v240, s{T1}, v241"),
             o(f"s_lshl_b32 s{T1}, s{S_W}, 10"), o(f"s_add_u32 s{T1}, s{T1}, {slot*SLOT}")]
        for kap in range(9):
            L += [o(f"s_add_u32 m0, s{T1}, {4*kap*1024 - 128*kap}"), o("s_nop 0"),
                  vm(f"buffer_load_dwordx4 v240, s[{SR_HZ}:{SR_HZ+3}], 0 offen offset:{128*kap} lds", tag)]
        return L

    def h_special(self, zreg, slot, sfx):
        return [o(f"s_cmp_eq_u32 s{zreg}, 9"), o(f"s_cbranch_scc0 L_h_nosp{sfx}"), o(f"s_cmp_eq_u32 s{S_W}, 0"), o(f"s_cbranch_scc0 L_h_nosp{sfx}"),
                o("v_mov_b32 v16, 0xbf803f80"), o("v_mov_b32 v17, v16"), o("v_mov_b32 v18, v16"), o("v_mov_b32 v19, v16"),
                o("v_lshrrev_b32 v240, 3, v0"), o("v_lshlrev_b32 v240, 12, v240"), o("v_and_b32 v241, 7, v0"), o("v_lshlrev_b32 v241, 4, v241"),
                o("v_add_u32 v240, v240, v241"), o(f"v_add_u32 v240, {slot*SLOT}, v240"), o(f"v_add_u32 v241, {slot*SLOT}, v241"),
                o("ds_write_b128 v240, v[16:19]"), o("ds_write_b128 v241, v[16:19] offset:32768"),
                o("s_waitcnt lgkmcnt(0)"), raw(f"L_h_nosp{sfx}:")]

    def x_line(self, kap):
        L = []
        for rho in range(4):
            L += [o(f"s_add_u32 m0, s{S_LX}, {(4*kap+rho)*1024 - 128*kap}"), o("s_nop 0"),
                  vm(f"buffer_load_dwordx4 v{240+rho}, s[{SR_X}:{SR_X+3}], 0 offen offset:{128*kap} lds", ("x", kap))]
        return L
    def x_dma_variants(self):
        L = []
        for kap in range(self.opts.get("xpre", 3)): L += self.x_line(kap)
        return L
    def x_dma_variants_old(self):
        if not self.opts.get("rot", 0):
            L = []
            for kap in range(9):
                for rho in range(4):
                    L += [o(f"s_add_u32 m0, s{S_LX}, {(4*kap+rho)*1024 - 128*kap}"), o("s_nop 0"),
                          vm(f"buffer_load_dwordx4 v{240+rho}, s[{SR_X}:{SR_X+3}], 0 offen offset:{128*kap} lds", ("x", kap))]
            return L
        L = [o(f"s_and_b32 s{T0}, s{S_J}, 3")]
        for v in range(1, 4): L += [o(f"s_cmp_eq_u32 s{T0}, {v}"), o(f"s_cbranch_scc1 L_xd{v}")]
        for v in range(4):
            if v: L += [raw(f"L_xd{v}:")]
            for pos in range(9):
                kap = (self.K0[v] + pos) % 9
                for rho in range(4):
                    t = f"buffer_load_dwordx4 v{240+rho}, s[{SR_X}:{SR_X+3}], 0 offen offset:{128*kap} lds"
                    L += [o(f"s_add_u32 m0, s{S_LX}, {(4*kap+rho)*1024 - 128*kap}"), o("s_nop 0"),
                          (vm(t, ("x", pos)) if v == 3 else o(t))]
            if v < 3: L += [o("s_branch L_xdj")]
        L += [raw("L_xdj:")]
        return L
    K0 = [0, 2, 4, 7]

    def ln_stats(self):
        L = []
        SA = 16
        for i in range(8): L += [o(f"v_mov_b32 v{SA+i}, 0")]
        L += [o(f"s_mov_b32 s{T5}, 0x3f803f80")]
        def reads(kap):
            return [wvm(("x", kap))] + [ds(f"ds_read_b128 v[{RX+4*ks}:{RX+4*ks+3}], v{V_XA+(ks&3)} offset:{(ks//4)*4096}", ("xr", ks)) for ks in range(4*kap, 4*kap+4)]
        L += reads(0)
        for kap in range(9):
            if kap + 1 < 9: L += reads(kap + 1)
            L += self.stats_line(kap)
        return L
    def stats_line(self, kap):
        L = []
        SA = 16
        for ks in range(4*kap, 4*kap + 4):
            L += [wlg(("xr", ks))]
            for i in range(4):
                r = RX + 4*ks + i
                L += [o(f"v_dot2_f32_bf16 v{SA+i}, v{r}, s{T5}, v{SA+i}"),
                      o(f"v_dot2_f32_bf16 v{SA+4+i}, v{r}, v{r}, v{SA+4+i}")]
        return L

    def ln_stats_v(self, v, tracked, order):
        L = []
        SA = 16
        for i in range(8): L += [o(f"v_mov_b32 v{SA+i}, 0")]
        L += [o(f"s_mov_b32 s{T5}, 0x3f803f80")]
        def reads(pos):
            kap = order[pos]
            w = [wvmf(("x", pos))]
            return w + [o(f"ds_read_b128 v[{RX+4*ks}:{RX+4*ks+3}], v{V_XA+(ks&3)} offset:{(ks//4)*4096}") for ks in range(4*kap, 4*kap+4)]
        L += reads(0)
        L += self.stamp("x0")
        for pos in range(9):
            if pos == 4: L += self.stamp("x4")
            if pos + 1 < 9: L += reads(pos + 1)
            kap = order[pos]
            for n, ks in enumerate(range(4*kap, 4*kap + 4)):
                left = (3 - n) + (4 if pos + 1 < 9 else 0)
                L += [o(f"s_waitcnt lgkmcnt({left})")]
                for i in range(4):
                    r = RX + 4*ks + i
                    L += [o(f"v_dot2_f32_bf16 v{SA+i}, v{r}, s{T5}, v{SA+i}"),
                          o(f"v_dot2_f32_bf16 v{SA+4+i}, v{r}, v{r}, v{SA+4+i}")]
        return L

    def ln_stats_old(self):
        L = []
        SA = 16
        for i in range(8): L += [o(f"v_mov_b32 v{SA+i}, 0")]
        L += [o(f"s_mov_b32 s{T5}, 0x3f803f80")]
        def reads(kap):
            return [wvm(("x", kap))] + [ds(f"ds_read_b128 v[{RX+4*ks}:{RX+4*ks+3}], v{V_XA+(ks&3)} offset:{(ks//4)*4096}", ("xr", ks)) for ks in range(4*kap, 4*kap+4)]
        L += reads(0)
        for kap in range(9):
            if kap + 1 < 9: L += reads(kap + 1)
            for ks in range(4*kap, 4*kap + 4):
                L += [wlg(("xr", ks))]
                for i in range(4):
                    r = RX + 4*ks + i
                    L += [o(f"v_dot2_f32_bf16 v{SA+i}, v{r}, s{T5}, v{SA+i}"),
                          o(f"v_dot2_f32_bf16 v{SA+4+i}, v{r}, v{r}, v{SA+4+i}")]
        return L

    def ln_finish(self):
        SA = 16
        L = [o("s_nop 2"),
             o(f"v_add_f32 v{SA}, v{SA}, v{SA+1}"), o(f"v_add_f32 v{SA+2}, v{SA+2}, v{SA+3}"),
             o(f"v_add_f32 v{SA+4}, v{SA+4}, v{SA+5}"), o(f"v_add_f32 v{SA+6}, v{SA+6}, v{SA+7}"),
             o(f"v_add_f32 v24, v{SA}, v{SA+2}"), o(f"v_add_f32 v26, v{SA+4}, v{SA+6}"),
             o("v_mov_b32 v25, v24"), o("v_mov_b32 v27, v26"), o("s_nop 1"),
             o("v_permlane32_swap_b32 v24, v25"), o("v_permlane32_swap_b32 v26, v27"), o("s_nop 1"),
             o("v_add_f32 v24, v24, v25"), o("v_add_f32 v26, v26, v27"),
             o(f"s_mov_b32 s{T5}, {f2u(1.0/576):#x}"),
             o(f"v_mul_f32 v24, s{T5}, v24"), o(f"v_mul_f32 v26, s{T5}, v26"),
             o("v_fma_f32 v26, -v24, v24, v26"), o("v_max_f32 v26, 0, v26"),
             o("v_cvt_pk_bf16_f32 v24, v24, v26"),
             o("v_and_b32 v26, 0xffff0000, v24"), o("v_lshlrev_b32 v24, 16, v24"),
             o(f"v_xor_b32 v{V_NEGMU}, 0x80000000, v24")]
        for i in range(1, 16): L += [o(f"v_mov_b32 v{V_NEGMU+i}, v{V_NEGMU}")]
        L += [o(f"v_add_f32 v26, {f2u(1e-5):#x}, v26"),
              o("v_cvt_pk_bf16_f32 v26, v26, v26"), o("v_lshlrev_b32 v26, 16, v26"),
              o("v_sqrt_f32 v26, v26"), o("s_nop 0"),
              o("v_cvt_pk_bf16_f32 v26, v26, v26"), o("v_lshlrev_b32 v26, 16, v26"),
              o("v_rcp_f32 v27, v26"), o(f"v_mul_f32 v{V_D2}, v26, v26"),
              o(f"v_mul_f32 v{V_C0}, {f2u(C0):#x}, v27"), o("v_mul_f32 v28, v27, v27"), o("v_mul_f32 v28, v28, v27"),
              o(f"v_mul_f32 v{V_C1}, {f2u(C1):#x}, v28"),
              o("v_and_b32 v28, 31, v0"), o("v_lshlrev_b32 v28, 2, v28"), o(f"s_lshl_b32 s{T0}, s{S_W}, 12"), o(f"s_add_u32 s{T0}, s{T0}, {SPARE}"),
              o(f"v_add_u32 v28, s{T0}, v28"), ds("ds_write_b32 v28, v27", "rtab")]
        return L

    def seg_norm_h(self):
        M = []; frags = []
        def UBf(i):
            if i == 0: return 16
            if i % 2 == 0: return RX + 8*(i - 2)
            return (32, 48, 16)[((i - 1)//2) % 3]
        def nextuser(i):
            for k in range(i + 1, 18):
                if UBf(k) == UBf(i): return k
            return None
        posU = {}; posH = {}
        def U(i):
            b = UBf(i)
            M.append(dict(op=32, acc=f"v[{b}:{b+15}]", first=True, C=f"v[{V_NEGMU}:{V_NEGMU+15}]", A=f"v[{V_PERM}:{V_PERM+3}]", B=f"v[{RX+8*i}:{RX+8*i+3}]", need=-1))
            M.append(dict(op=32, acc=f"v[{b}:{b+15}]", first=False, A=f"v[{V_PERM+4}:{V_PERM+7}]", B=f"v[{RX+8*i+4}:{RX+8*i+7}]", need=-1))
            posU[i] = len(M) - 2
        def H(ks):
            f = len(frags); a = AF + 4*(f % NAF)
            frags.append(dict(reads=[f"ds_read_b128 a[{a}:{a+3}], v{V_XA+(ks&3)} offset:{(ks//4)*4096}"], use=len(M)))
            M.append(dict(op=32, acc=f"v[{V_HACC}:{V_HACC+15}]", first=(ks == 0), A=f"a[{AX+4*ks}:{AX+4*ks+3}]", B=f"a[{a}:{a+3}]", need=f))
            posH[ks] = len(M) - 1
        LAG = 5
        for i in range(18):
            U(i)
            if i >= LAG: H(2*(i-LAG)); H(2*(i-LAG)+1)
        for i in range(18 - LAG, 18): H(2*i); H(2*i+1)
        last = -1
        for m in M:
            if m["need"] < 0: m["need"] = last
            else: last = m["need"]
        g0 = frags[0]["use"] - 6
        M[g0].setdefault("before", []).extend([wvm("wz1")] + self.h_special(S_A, 2, "a") + [o("s_waitcnt lgkmcnt(0)"), o("s_barrier")])
        def setup(sl, head):
            sl.put(2, [o('s_nop 4')]); sl.put(3, [o('s_nop 4')])
            for i in range(18):
                b = UBf(i)
                ins = []
                for q in range(8):
                    t = 2 + 2*(i % 4) + (q % 2)
                    ins += [o(f"v_cvt_pk_bf16_f32 v{t}, v{b+2*q}, v{b+2*q+1}"), o(f"v_accvgpr_write_b32 a{AX+8*i+q}, v{t}")]
                start = posU[i] + 1 + 3
                end = min(posH[2*i] - 1, start + 11)
                if nextuser(i) is not None: end = min(end, posU[nextuser(i)])
                e = sl.stream(ins, start, end, spill=0)
                assert e < posH[2*i] - 0, (i, e, posH[2*i])
        return self.paced(M, frags, setup, 6)

    def h_epilogue(self, zreg, acc, rr, tb):
        L = []
        sg, f0 = tb + 8, tb + 9
        L += [G([o(f"s_cmp_lt_u32 s{zreg}, 9"), o(f"s_cselect_b32 s{S_ST0}, 1.0, -1.0")]), o(f"v_mov_b32 v{sg}, s{S_ST0}"),
              G([o(f"s_cmp_eq_u32 s{zreg}, 9"), o(f"s_cselect_b32 s{S_ST0}, 0, 99")]),
              G([o(f"v_and_b32 v{f0}, 31, v0"), o(f"v_cmp_eq_u32 vcc, s{S_ST0}, v{f0}"), o(f"v_mov_b32 v{tb+10}, 1.0"), o("v_nop"),
                 o(f"v_cndmask_b32 v{sg}, v{sg}, v{tb+10}, vcc")]),
              G([o(f"s_or_b32 s{S_ST0}, s{S_MT}, s{S_W}"), o(f"s_cmp_eq_u32 s{S_ST0}, 0"), o(f"s_cselect_b32 s{S_ST0}, 32, 0")]),
              G([o(f"v_cmp_gt_u32 vcc, s{S_ST0}, v0"), o(f"v_mov_b32 v{tb+10}, 0"), o("v_nop"),
                 o(f"v_cndmask_b32 v{f0}, v{sg}, v{tb+10}, vcc")])]
        L += [o(f"v_mul_f32 v{tb+11}, v{acc+8}, v{rr+8}")]
        for r in range(8):
            L += [o(f"v_mul_f32 v{rr+8+r}, v{rr+8+r}, v{f0 if r == 0 else sg}"),
                  o(f"v_mul_f32 v{tb+r}, v{acc+r}, v{rr+r}"),
                  o(f"v_fma_f32 v{tb+r}, v{acc+8+r}, v{rr+8+r}, v{tb+r}")]
        for i in range(4):
            L += [o(f"v_cvt_pk_bf16_f32 v{tb+12+i}, v{tb+2*i}, v{tb+2*i+1}")]
        L += [G([o("v_nop"), o("v_nop"), o(f"v_permlane32_swap_b32 v{tb+12}, v{tb+14}"), o(f"v_permlane32_swap_b32 v{tb+13}, v{tb+15}")]),
              G([o(f"s_mul_i32 s{S_ST0}, s{zreg}, {ZF_STRIDE}"), o(f"s_lshl_b32 s{S_ST1}, s{S_MT}, 2"), o(f"s_add_u32 s{S_ST1}, s{S_ST1}, s{S_W}")]),
              G([o(f"s_lshl_b32 s{S_ST1}, s{S_ST1}, 10"), o(f"s_add_u32 s{S_ST1}, s{S_ST1}, s{S_ST0}"), o(f"s_add_u32 s{S_ST1}, s{S_ST1}, {WS_ZF}")]),
              vm(f"buffer_store_dwordx4 v[{tb+12}:{tb+15}], v{V_L16}, s[{SR_WS}:{SR_WS+3}], s{S_ST1} offen sc1", "zst"),
              o(f"v_mov_b32 v{tb+1}, 0"), o(f"v_mov_b32 v{tb+2}, 0"), o(f"v_mov_b32 v{tb+3}, 0"),
              o(f"v_cvt_pk_bf16_f32 v{tb}, v{tb+11}, v{tb+1}"),
              G([o("v_cmp_gt_u32 vcc, 32, v0"), o("v_nop"), o("v_nop"), o(f"v_cndmask_b32 v{tb}, v{tb+1}, v{tb}, vcc")]),
              G([o(f"s_or_b32 s{S_ST1}, s{S_MT}, s{S_W}"), o(f"s_cmp_le_u32 s{zreg}, 9"), o(f"s_cselect_b32 s{S_C}, 0, 1")]),
              G([o(f"s_or_b32 s{S_ST1}, s{S_ST1}, s{S_C}"), o(f"s_cmp_eq_u32 s{S_ST1}, 0"), o(f"s_cselect_b32 s{S_C}, 0, {OOB:#x}")]),
              o(f"v_add_u32 v{tb+4}, s{S_C}, v{V_L16}"),
              o(f"s_add_u32 s{S_ST0}, s{S_ST0}, {WS_ZF + 64*1024}"),
              vm(f"buffer_store_dwordx4 v[{tb}:{tb+3}], v{tb+4}, s[{SR_WS}:{SR_WS+3}], s{S_ST0} offen sc1", "zst"),
              G([o(f"v_mov_b32 v{tb+12}, 0"), o(f"v_mov_b32 v{tb+13}, 0"), o(f"v_mov_b32 v{tb+14}, 0"), o(f"v_mov_b32 v{tb+15}, 0")]),
              vm(f"buffer_store_dwordx4 v[{tb+12}:{tb+15}], v{tb+4}, s[{SR_WS}:{SR_WS+3}], s{S_ST0} offen offset:1024 sc1", "zst")]
        return L

    def rr_reads(self, rr, tmp, n=1):
        return [o(f"v_lshrrev_b32 v{tmp}, 5, v0"), o(f"v_lshlrev_b32 v{tmp}, 4, v{tmp}"), o(f"s_lshl_b32 s{S_C}, s{S_W}, 12"),
                o(f"s_add_u32 s{S_C}, s{S_C}, {SPARE}"), o(f"v_add_u32 v{tmp}, s{S_C}, v{tmp}")] + \
               [ds(f"ds_read_b128 v[{rr+4*q}:{rr+4*q+3}], v{tmp} offset:{32*q}", ("rr", n)) for q in range(4)] + [wlg(("rr", n))]

    def h2_block(self):
        L = [o(f"s_cmp_lt_u32 s{S_J}, 2"), o("s_cbranch_scc0 L_noz2b")]
        B = [o(f"v_add_u32 v{64+i}, {SLOT}, v{V_XA+i}") for i in range(4)]
        B += [o(f"s_waitcnt vmcnt({20})"), o("s_barrier")]
        def rd(ks):
            a_ = AF + 4*(ks % NAF)
            return o(f"ds_read_b128 a[{a_}:{a_+3}], v{64+(ks&3)} offset:{(ks//4)*4096}")
        for ks in range(6): B += [rd(ks)]
        for k in range(36):
            a_ = AF + 4*(k % NAF)
            n_out = min(5, 35 - k)
            B += [o(f"s_waitcnt lgkmcnt({n_out})"), mf32("v[128:143]", f"a[{AX+4*k}:{AX+4*k+3}]", f"a[{a_}:{a_+3}]", "0" if k == 0 else "v[128:143]")]
            if k + 6 < 36: B += [rd(k + 6)]
        B += [raw("L_noz2b:"),
              o(f"s_cmp_lt_u32 s{S_J}, 2"), o(f"s_cselect_b32 s{S_B}, s{S_B}, 0x4000")]
        return L + B

    def dma_p1(self, sig, slot, tA=226, tB=227):
        groups = []
        if sig < 16:
            u, mat, kh = sig // 4, (sig // 2) % 2, sig % 2
            rs = SR_WG if mat == 0 else SR_WU
            for grp, ts in enumerate([[0,1,2,3],[0,1,2,3],[0]]):
                g = [o(f"s_add_u32 m0, s{S_L9}, {slot*SLOT + grp*4096}"),
                     o(f"s_add_u32 s{S_D0}, s{S_UB+u}, {(kh*288 + grp*32)*9216}")]
                for t in ts:
                    groups.append(g + [vm(f"buffer_load_dwordx4 v{V_DM+t}, s[{rs}:{rs+3}], s{S_D0} offen offset:{t*1024} lds", ("st", sig))])
                    g = []
        else:
            rs = SR_WG if sig == 16 else SR_WU
            for grp, ts in enumerate([[0,1,2,3],[0,1,2,3],[0]]):
                g = []
                if sig == 16 and grp == 0:
                    groups.append([o(f"v_lshrrev_b32 v{tA}, 2, v0"), o(f"v_and_b32 v{tB}, 3, v0"), o(f"v_lshlrev_b32 v{tB}, 4, v{tB}")])
                    groups.append([o(f"v_mul_u32_u24 v{tA}, 9216, v{tA}"), o(f"v_add_u32 v{V_DM}, v{tA}, v{tB}")] +
                                  [o(f"v_add_u32 v{V_DM+t}, {t*(16*9216-1024)}, v{V_DM}") for t in range(1, 4)])
                g += [o(f"s_add_u32 m0, s{S_L9}, {slot*SLOT + grp*4096}"),
                      o(f"s_add_u32 s{S_D0}, s{S_UB+4}, {grp*64*9216}")]
                for t in ts:
                    groups.append(g + [vm(f"buffer_load_dwordx4 v{V_DM+t}, s[{rs}:{rs+3}], s{S_D0} offen offset:{t*1024} lds", ("st", sig))])
                    g = []
        return groups

    def dma_cs(self, mat, piece, slot, tag, nop=False):
        rs = SR_CS if mat == 0 else SR_SS
        groups = []
        for l in range(2):
            line = 2*piece + l
            for rho in range(4):
                groups.append([o(f"s_add_u32 m0, s{S_A}, {slot*SLOT + (4*l+rho)*1024 - 128*line}")] + ([o("s_nop 0")] if nop else []) + [
                               vm(f"buffer_load_dwordx4 v{V_SD+rho}, s[{rs}:{rs+3}], 0 offen offset:{128*line} lds", tag)])
        return groups
    def dma_cx(self, tag):
        groups = []
        for rho in range(4):
            groups.append([o(f"s_add_u32 m0, s{S_B}, {SPARE + rho*1024 - 512}"),
                           vm(f"buffer_load_dwordx4 v{V_SD+rho}, s[{SR_CS}:{SR_CS+3}], 0 offen offset:512 lds", tag)])
        return groups

    def dma_p2(self, st, slot, first128, tA, tB, tC):
        u, who = st
        groups = []
        if u < 4:
            tbl = S_N0 if who == "own" else S_N1
            if first128:
                groups.append([o(f"v_lshrrev_b32 v{tA}, 3, v0"), o(f"v_and_b32 v{tB}, 7, v0"), o(f"v_bfe_u32 v{tC}, v0, 4, 1")])
                groups.append([o(f"v_lshlrev_b32 v{tC}, 2, v{tC}"), o(f"v_xor_b32 v{tB}, v{tB}, v{tC}"), o(f"v_lshlrev_b32 v{tB}, 4, v{tB}")])
                groups.append([o(f"s_mul_i32 s{S_WD}, s{S_W}, {8*1152}")])
                groups.append([o(f"v_mul_u32_u24 v{tA}, 1152, v{tA}"), o(f"v_add_u32 v{V_DM}, v{tA}, v{tB}"), o(f"v_add_u32 v{V_DM}, s{S_WD}, v{V_DM}")])
                groups.append([o(f"s_lshl_b32 s{S_WD}, s{S_W}, 10")])
            for ip in range(9):
                groups.append([o(f"s_add_u32 m0, s{S_WD}, {slot*SLOT + ip*4096}"),
                               o(f"s_add_u32 s{S_D0}, s{tbl+ip}, s{S_CU+u}"),
                               vm(f"buffer_load_dwordx4 v{V_DM}, s[{SR_WD}:{SR_WD+3}], s{S_D0} offen lds", ("s2", st))])
        else:
            groups.append([o(f"v_lshrrev_b32 v{tA}, 2, v0"), o(f"v_and_b32 v{tB}, 3, v0"), o(f"v_lshlrev_b32 v{tB}, 4, v{tB}")])
            groups.append([o(f"v_mul_u32_u24 v{tA}, 1152, v{tA}"), o(f"v_add_u32 v{V_DM+1}, v{tA}, v{tB}")])
            for ip in range(9):
                ca, cb = 2*ip, 2*ip + 1
                ra = (S_N0 + ca) if ca < 9 else (S_N1 + ca - 9)
                rb = (S_N0 + cb) if cb < 9 else (S_N1 + cb - 9)
                groups.append([o(f"s_cmp_lt_u32 s{S_W}, 2"), o(f"s_cselect_b32 s{S_D0}, s{ra}, s{rb}"),
                               o(f"s_add_u32 s{S_D0}, s{S_D0}, s{S_CU+4}"), o(f"s_add_u32 s{S_D0}, s{S_D0}, s{S_C}"),
                               o(f"s_add_u32 m0, s{S_WD}, {slot*SLOT + ip*4096}")])
                groups.append([vm(f"buffer_load_dwordx4 v{V_DM+1}, s[{SR_WD}:{SR_WD+3}], s{S_D0} offen lds", ("s2", st))])
        return groups

    def geglu(self, c, toff=0):
        if c < 8: g, u = GA[(c//2) % 2][c % 2], UA[(c//2) % 2][c % 2]
        else: g, u = GA[0][0], UA[0][0]
        L = []
        for p in range(8):
            r0, r1 = 2*p, 2*p + 1
            b = TMP + 4*(p % 2) + toff
            xa, xb, ya, yb = b, b+1, b+2, b+3
            L += [o(f"v_mul_f32 v{xa}, v{g+r0}, v{g+r0}"), o(f"v_mul_f32 v{xb}, v{g+r1}, v{g+r1}"),
                  o(f"v_fma_f32 v{xa}, v{xa}, v{V_C1}, v{V_C0}"), o(f"v_fma_f32 v{xb}, v{xb}, v{V_C1}, v{V_C0}"),
                  o(f"v_mul_f32 v{xa}, v{g+r0}, v{xa}"), o(f"v_mul_f32 v{xb}, v{g+r1}, v{xb}"),
                  o(f"v_exp_f32 v{xa}, v{xa}"), o(f"v_exp_f32 v{xb}, v{xb}"),
                  o(f"v_mul_f32 v{ya}, v{g+r0}, v{u+r0}"), o(f"v_mul_f32 v{yb}, v{g+r1}, v{u+r1}"),
                  o(f"v_fma_f32 v{xa}, v{xa}, v{V_D2}, v{V_D2}"), o(f"v_fma_f32 v{xb}, v{xb}, v{V_D2}, v{V_D2}"),
                  o(f"v_rcp_f32 v{xa}, v{xa}"), o(f"v_rcp_f32 v{xb}, v{xb}"),
                  o(f"v_mul_f32 v{ya}, v{ya}, v{xa}"), o(f"v_mul_f32 v{yb}, v{yb}, v{xb}"),
                  o(f"v_cvt_pk_bf16_f32 v{HF + 8*c + p}, v{ya}, v{yb}")]
        return L
    def hstore(self, c):
        st = S_ST0 + (c % 2)
        return [o(f"s_add_u32 s{st}, s{S_HB}, {2*c*1024}")] + self.dstore(
                [f"buffer_store_dwordx4 v[{HF+8*c}:{HF+8*c+3}], v{V_L16}, s[{SR_WS}:{SR_WS+3}], s{st} offen",
                 f"buffer_store_dwordx4 v[{HF+8*c+4}:{HF+8*c+7}], v{V_L16}, s[{SR_WS}:{SR_WS+3}], s{st} offen offset:1024"], "hst", True)

    def s_setup(self):
        a, b, c, d = V_SX, V_YC[0], V_YC[1], V_YC[2]
        L = []
        L += [G([o(f"s_lshr_b32 s{S_TAU}, s{S_J}, 3"), o(f"s_lshl_b32 s{S_A}, s{S_MT}, 1"), o(f"s_add_u32 s{S_TAU}, s{S_TAU}, s{S_A}")]),
              G([o(f"s_lshl_b32 s{S_A}, s{S_W}, 13"), o(f"s_lshl_b32 s{S_B}, s{S_W}, 12"),
                 o(f"s_lshl_b32 s{S_ZB}, s{S_W}, 14")]), o(f"s_add_u32 s{S_ZB}, s{S_ZB}, {WS_ZF}")]
        L += [o(f"v_lshrrev_b32 v{a}, 3, v0"), o(f"v_and_b32 v{b}, 7, v0"), o(f"v_lshrrev_b32 v{c}, 1, v{a}"), o(f"v_xor_b32 v{b}, v{b}, v{c}"),
              o(f"v_lshlrev_b32 v{b}, 4, v{b}"), o(f"v_xor_b32 v{c}, 64, v{b}"),
              o(f"s_lshl_b32 s{S_C}, s{S_TAU}, 5"), o(f"v_add_u32 v{a}, s{S_C}, v{a}"), o(f"v_lshlrev_b32 v{a}, 12, v{a}"),
              o(f"s_lshl_b32 s{S_C}, s{S_W}, 9"), o(f"v_add_u32 v{a}, s{S_C}, v{a}"),
              o(f"v_add_u32 v{V_SD}, v{a}, v{b}"), o(f"v_add_u32 v{V_SD+1}, v{a}, v{c}"), o(f"v_add_u32 v{V_SD+1}, 32768, v{V_SD+1}"),
              o(f"v_add_u32 v{V_SD+2}, 65536, v{V_SD}"), o(f"v_add_u32 v{V_SD+3}, 65536, v{V_SD+1}")]
        return L
    def s_setup2(self):
        a, b, c, d = V_SX, V_YC[0], V_YC[1], V_YC[2]
        L = []
        L += [o(f"v_and_b32 v{a}, 15, v0"), o(f"v_lshrrev_b32 v{b}, 4, v0"), o(f"v_bfe_u32 v{c}, v0, 1, 3"), o(f"v_xor_b32 v{c}, v{c}, v{b}"),
              o(f"v_lshlrev_b32 v{c}, 4, v{c}"), o(f"v_lshlrev_b32 v{a}, 7, v{a}"), o(f"v_add_u32 v{a}, v{a}, v{c}"),
              o(f"v_add_u32 v{V_SA}, s{S_A}, v{a}"), o(f"v_xor_b32 v{V_SA+1}, 64, v{V_SA}"),
              o(f"v_add_u32 v{V_SA+2}, {2*SLOT}, v{V_SA}"), o(f"v_add_u32 v{V_SA+3}, {2*SLOT}, v{V_SA+1}"),
              o(f"v_add_u32 v{a}, s{S_B}, v{a}"), o(f"v_add_u32 v{V_SX}, {SPARE}, v{a}")]
        return L
    def s_setup3(self, t0, t1, t2, t3):
        L = []
        L += [o(f"v_and_b32 v{t0}, 15, v0"), o(f"v_lshrrev_b32 v{t1}, 4, v0"),
              o(f"v_and_b32 v{t2}, 1, v{t1}"), o(f"v_lshlrev_b32 v{t2}, 9, v{t2}"),
              o(f"v_lshrrev_b32 v{t1}, 1, v{t1}"), o(f"v_lshlrev_b32 v{t1}, 10, v{t1}"), o(f"v_add_u32 v{t2}, v{t2}, v{t1}"),
              G([o(f"s_and_b32 s{S_C}, s{S_J}, 7"), o(f"s_mul_i32 s{S_C}, s{S_C}, 36")]),
              o(f"v_add_u32 v{t0}, s{S_C}, v{t0}")]
        for ss in range(3):
            pa, qa, yc = V_ZP + ss, V_ZQ + ss, V_YC[ss]
            L += [o(f"v_lshrrev_b32 v{t1}, 5, v{t0}"), o(f"v_mul_u32_u24 v{t1}, {ZF_STRIDE}, v{t1}"),
                  o(f"v_and_b32 v{t3}, 31, v{t0}"), o(f"v_lshlrev_b32 v{t3}, 4, v{t3}"), o(f"v_add_u32 v{t1}, v{t1}, v{t3}"),
                  o(f"v_add_u32 v{t1}, v{t1}, v{t2}"),
                  o(f"v_subrev_u32 v{t3}, s{S_C}, v{t0}"),
                  o(f"v_lshlrev_b32 v{yc}, 2, v{t0}"), o(f"v_mov_b32 v{qa}, {OOB:#x}"), o(f"v_mov_b32 v{pa}, {OOB:#x}"),
                  G([o(f"v_cmp_gt_u32 vcc, 36, v{t3}"), o("v_nop"), o("v_nop"), o(f"v_cndmask_b32 v{pa}, v{pa}, v{t1}, vcc")]),
                  o(f"v_add_u32 v{t3}, {9*ZF_STRIDE}, v{t1}"),
                  G([o(f"v_cndmask_b32 v{qa}, v{qa}, v{t3}, vcc")]),
                  G([o(f"v_cmp_eq_u32 vcc, 0x120, v{t0}"), o("v_nop"), o("v_nop"), o(f"v_cndmask_b32 v{pa}, v{pa}, v{t1}, vcc")]),
                  G([o(f"v_mov_b32 v{t3}, {OOB:#x}"), o(f"v_cmp_eq_u32 vcc, 0, v{t0}"), o("v_nop"), o("v_nop"), o(f"v_cndmask_b32 v{qa}, v{qa}, v{t3}, vcc")]),
                  G([o(f"v_cmp_eq_u32 vcc, v{t3}, v{pa}"), o("v_nop"), o("v_nop"), o(f"v_cndmask_b32 v{yc}, v{yc}, v{t3}, vcc")]),
                  o(f"v_add_u32 v{t0}, 16, v{t0}")]
        return L

    def phase2_setup(self):
        L = []
        L += [G([o(f"s_xor_b32 s{T6}, s{S_J}, 1"), o(f"s_and_b32 s{T2}, s{T6}, 1"), o(f"s_mul_i32 s{T0}, s{T6}, 288")]),
              G([o(f"s_mul_i32 s{T1}, s{T2}, 224"), o(f"s_add_u32 s{T1}, s{T0}, s{T1}")]),
              G([o(f"s_cmp_eq_u32 s{T2}, 0"), o(f"s_cselect_b32 s{T3}, 64, -64"), o(f"s_cselect_b32 s{T4}, 256, 0")]),
              o(f"s_add_u32 s{T4}, s{T4}, s{T0}")]
        for u in range(4):
            L += [G([o(f"s_mul_i32 s{T5}, s{T3}, {u}"), o(f"s_add_u32 s{T5}, s{T5}, s{T1}")]),
                  G([o(f"s_mul_i32 s{S_N1+2*u}, s{T5}, 1152"), o(f"s_add_u32 s{S_N1+2*u+1}, s{S_N1+2*u}, {32*1152}")])]
        L += [o(f"s_mul_i32 s{S_N1+8}, s{T4}, 1152")]
        L += [G([o(f"s_and_b32 s{T2}, s{S_J}, 1"), o(f"s_mul_i32 s{T0}, s{T2}, 640"), o(f"s_lshr_b32 s{T1}, s{S_J}, 2")])]
        for k in range(4):
            L += [G([o(f"s_add_u32 s{T3}, s{T1}, {(k+1) % 4 if k < 3 else 0}"), o(f"s_and_b32 s{T3}, s{T3}, 3"), o(f"s_lshl_b32 s{T3}, s{T3}, 7")]),
                  o(f"s_add_u32 s{S_CU+k}, s{T0}, s{T3}")]
        L += [G([o(f"s_cmp_eq_u32 s{T2}, 0"), o(f"s_cselect_b32 s{S_CU+4}, 0, 64")]), o(f"s_add_u32 s{S_CU+4}, s{S_CU+4}, 512")]
        return L

    def p2q_setup(self):
        L = [G([o(f"s_and_b32 s{T2}, s{S_J}, 1"), o(f"s_mul_i32 s{T3}, s{T2}, 10"), o(f"s_lshr_b32 s{T4}, s{S_J}, 2")])]
        for k, dst in enumerate(S_QU):
            L += [G([o(f"s_add_u32 s{T5}, s{T4}, {k+1}"), o(f"s_and_b32 s{T5}, s{T5}, 3"), o(f"s_lshl_b32 s{T5}, s{T5}, 1")]),
                  G([o(f"s_add_u32 s{T5}, s{T5}, s{T3}"), o(f"s_lshl_b32 s{T5}, s{T5}, 11"), o(f"s_add_u32 s{dst}, s{T5}, s{S_PB}")])]
        L += [G([o(f"s_lshl_b32 s{T5}, s{T4}, 1"), o(f"s_add_u32 s{T5}, s{T5}, s{T3}"), o(f"s_bfe_u32 s{T4}, s{S_J}, 0x10001")]),
              G([o(f"s_add_u32 s{S_TO}, s{T5}, s{T4}"), o(f"s_xor_b32 s{T4}, s{T4}, 1"), o(f"s_add_u32 s{T5}, s{T5}, s{T4}")]),
              G([o(f"s_lshl_b32 s{T5}, s{T5}, 11"), o(f"s_add_u32 s{S_QN}, s{T5}, s{S_PB}")]),
              G([o(f"s_add_u32 s{T5}, s{T2}, 8"), o(f"s_lshl_b32 s{T5}, s{T5}, 11"), o(f"s_add_u32 s{S_Q8}, s{T5}, s{S_PB}")])]
        return L

    def main(self):
        DIST = self.opts.get("dist", 7)
        M = []; frags = []
        fu = {}; lu = {}
        def addfrag(reads_fn, use, dist=None, stage=None):
            f = len(frags); a = AF + 4*(f % NAF)
            fr = dict(reads=reads_fn(a), use=use)
            if dist: fr["dist"] = dist
            frags.append(fr)
            if stage is not None and stage not in fu:
                fu[stage] = use; fr["stage_first"] = stage
            return f, a
        def tr(base, off, off2): return lambda a: [f"ds_read_b64_tr_b16 a[{a}:{a+1}], v{base} offset:{off}", f"ds_read_b64_tr_b16 a[{a+2}:{a+3}], v{base} offset:{off+off2}"]
        for u in range(4):
            for mat in range(2):
                for kh in range(2):
                    sig = 4*u + 2*mat + kh
                    for half in range(2):
                        acc = (GA if mat == 0 else UA)[u % 2][half]
                        for kk in range(18):
                            ks = kh*18 + kk; g = len(M)
                            f, a = addfrag(tr((V_RA if half == 0 else V_RB) + sig % 4, kk*2048, 512), g, stage=("st", sig))
                            M.append(dict(op=32, acc=f"v[{acc}:{acc+15}]", first=(ks == 0), A=f"a[{a}:{a+3}]", B=f"a[{AX+4*ks}:{AX+4*ks+3}]", need=f))
                            lu[("st", sig)] = g
        for mat in range(2):
            acc = (GA if mat == 0 else UA)[0][0]
            for ks in range(36):
                g = len(M)
                f, a = addfrag(tr(V_R8 + mat, ks*1024, 256), g, stage=("st", 16+mat))
                M.append(dict(op=32, acc=f"v[{acc}:{acc+15}]", first=(ks == 0), A=f"a[{a}:{a+3}]", B=f"a[{AX+4*ks}:{AX+4*ks+3}]", need=f))
                lu[("st", 16+mat)] = g
        S0 = len(M)
        def accP(tt, ss):
            i = tt*3 + ss
            return 48 + 4*i if i < 4 else 112 + 4*(i - 4)
        def accQ(tt, ss):
            i = tt*3 + ss
            return 64 + 4*i if i < 4 else 128 + 4*(i - 4)
        def zP(ss, k):
            i = k*3 + ss
            if i < 20: return f"a[{AZ+4*i}:{AZ+4*i+3}]"
            i -= 20
            r = 32 + 4*i if i < 4 else 96 + 4*(i - 4)
            return f"v[{r}:{r+3}]"
        def zQ(ss, k):
            i = k*3 + ss
            return f"a[{4*i}:{4*i+3}]"
        self.zP, self.zQ, self.accP, self.accQ = zP, zQ, accP, accQ
        for k in range(9):
            for tt in range(2):
                g = len(M)
                if k < 8:
                    line = k >> 1; piece = line >> 1; l = line & 1
                    base = V_SA + 2 + (k & 1); off = piece*SLOT + l*4096 + tt*2048
                    st = ("C", piece)
                else:
                    base = V_SX; off = tt*2048; st = ("CX", 0)
                f, a = addfrag(lambda a, base=base, off=off: [f"ds_read_b128 a[{a}:{a+3}], v{base} offset:{off}"], g, dist=8, stage=st)
                for ss in range(3):
                    ac = accP(tt, ss)
                    M.append(dict(op=16, acc=f"v[{ac}:{ac+3}]", first=(k == 0), A=f"a[{a}:{a+3}]", B=zP(ss, k), need=f))
                    lu[st] = len(M) - 1
        SP_END = len(M)
        for k in range(8):
            for tt in range(2):
                g = len(M)
                line = k >> 1; piece = line >> 1; l = line & 1
                base = V_SA + (k & 1); off = piece*SLOT + l*4096 + tt*2048
                st = ("S", piece)
                f, a = addfrag(lambda a, base=base, off=off: [f"ds_read_b128 a[{a}:{a+3}], v{base} offset:{off}"], g, dist=8, stage=st)
                for ss in range(3):
                    ac = accQ(tt, ss)
                    M.append(dict(op=16, acc=f"v[{ac}:{ac+3}]", first=(k == 0), A=f"a[{a}:{a+3}]", B=zQ(ss, k), need=f))
                    lu[st] = len(M) - 1
        P2_0 = len(M)
        stages = [(0, "own"), (1, "own"), (2, "own"), (0, "par"), (1, "par"), (2, "par"), (4, "both"), (3, "own"), (3, "par")]
        slot_order = [2, 0, 3, 2, 1, 0, 3, 2, 1]
        slot_of = {st: slot_order[i] for i, st in enumerate(stages)}
        ACC = {0: [32, 96], 1: [16, 80], 2: [48, 112], 3: [64, 128], 4: [32]}
        tile_last = {}
        def p2run(st, half, base, nk=18):
            u, who = st
            acc = ACC[u][half]
            for k in range(18):
                g = len(M)
                f, a = addfrag(tr(base, k*2048, 1024), g, stage=("s2", st))
                M.append(dict(op=32, acc=f"v[{acc}:{acc+15}]", first=(who == "own" and k == 0), A=f"a[{a}:{a+3}]",
                              B=(f"v[{HF+4*k}:{HF+4*k+3}]" if who == "own" else f"a[{AZ+4*k}:{AZ+4*k+3}]"), need=f))
                tile_last[(u, half)] = g; lu[("s2", st)] = g
        for st in stages[:7]:
            u, who = st; slot = slot_of[st]
            if u < 4:
                for half in range(2): p2run(st, half, (V_RA if half == 0 else V_RB) + slot)
            else:
                acc = ACC[4][0]
                for k in range(36):
                    g = len(M)
                    f, a = addfrag(tr(V_R8, k*1024, 512), g, stage=("s2", st))
                    M.append(dict(op=32, acc=f"v[{acc}:{acc+15}]", first=(k == 0), A=f"a[{a}:{a+3}]",
                                  B=(f"v[{HF+4*k}:{HF+4*k+3}]" if k < 18 else f"a[{AZ+4*(k-18)}:{AZ+4*(k-18)+3}]"), need=f))
                    tile_last[(4, 0)] = g; lu[("s2", st)] = g
        p2run((3, "own"), 0, V_LB); p2run((3, "par"), 0, V_LB + 1); p2run((3, "own"), 1, V_LB + 2); p2run((3, "par"), 1, V_LB + 3)
        N = len(M)
        last_use = {}
        for g, m in enumerate(M): last_use[m["need"]] = g
        for f, fr in enumerate(frags):
            d = fr.get("dist", DIST)
            t = fr["use"] - d
            if f >= NAF and t < last_use[f - NAF]: fr["dist"] = fr["use"] - last_use[f - NAF]
        for fr in frags:
            st = fr.get("stage_first")
            if st is None: continue
            if st[0] in ("st", "s2"):
                tags = [st]
                if st == ("st", 3): tags += ["zst", "flinit"]
                if st == ("st", 17): tags += ["hst"]
                fr["pre"] = [wvm(tags), o("s_barrier")]
                if st == ("st", 17):
                    fr["pre"] += [vm(f"buffer_store_dword v{V_ONE}, v{V_ONE0}, s[{SR_WS}:{SR_WS+3}], s{S_FL} offen sc1", "fl1")]
                if st == ("st", 3):
                    fr["pre"] += [vm(f"buffer_atomic_add v{V_ONE}, v{V_ONE0}, s[{SR_HZ}:{SR_HZ+3}], 0 offen offset:128 sc1", "zpub")]
            else:
                fr["pre"] = [wvm(("cs", st))]
        stamps = {0: "p1", 144: "u1", 288: "u2", 432: "u3", 576: "u4", S0: "S0", SP_END: "SP", P2_0: "p2", P2_0+18: "a18", P2_0+36: "a36", P2_0+44: "a44", P2_0+54: "a54", P2_0+72: "a72", P2_0+90: "a90", P2_0 + 108: "p2b", P2_0+144: "b36", P2_0 + 216: "p2c"}
        for g, name in stamps.items():
            if self.diag: M[g].setdefault("before", []).extend(self.stamp(name))
        self.tail2 = []

        def setup(sl, head):
            rbar = {st: fu[st] - DIST for st in fu if st[0] in ("st", "s2")}
            for b in rbar.values():
                if b >= 0: sl.budget[b] = 4
            def fbar(t):
                sl.put(t, [o("s_barrier")])
            busy = {"end": -1}
            def place(groups, start, step=1):
                s = max(start, busy["end"] + 1)
                for grp in groups:
                    sl.put(s, grp); busy["end"] = s; s += step
                return s
            sl.put(2, [o(f"v_mov_b32 v{V_ONE}, 1")])
            eh = sl.stream(self.rr_reads(48, 112) + self.h_epilogue(S_A, V_HACC, 48, 64), 12, 46)
            eh = sl.stream(self.rr_reads(48, 112, 2) + self.h_epilogue(S_B, 128, 48, 64), eh + 1, eh + 34)
            assert eh < 92, eh
            for mat in range(2):
                slot = (16 + mat) % 4
                ins = [o("v_lshrrev_b32 v224, 5, v0"), o("v_lshlrev_b32 v224, 9, v224"),
                       o("v_bfe_u32 v225, v0, 2, 2"), o("v_lshlrev_b32 v225, 6, v225"), o("v_add_u32 v224, v224, v225"),
                       o("v_bfe_u32 v225, v0, 4, 1"), o("v_lshlrev_b32 v225, 5, v225"), o("v_add_u32 v224, v224, v225"),
                       o("v_and_b32 v225, 3, v0"), o("v_lshlrev_b32 v225, 3, v225"), o("v_add_u32 v224, v224, v225"),
                       o(f"v_add_u32 v{V_R8+mat}, {slot*SLOT}, v224")]
                sl.stream(ins, 70 + 20*mat, 88 + 20*mat)
            dma_end = {}
            for sig in range(2, 18):
                grps = self.dma_p1(sig, sig % 4)
                if sig == 2: start = 0
                elif sig == 3: start = 9*self.opts.get('dstep', 2)
                else:
                    t = lu[("st", sig - 4)]; fbar(t); start = t + 1
                dma_end[sig] = place(grps, start, self.opts.get("dstep", 2))
            self.paced_prefetch(sl, dma_end)
            self.mode_check(sl, M)
            sl.put(590, [G([o(f"s_lshl_b32 s{S_FL}, s{S_LID}, 7"), o(f"s_add_u32 s{S_FL}, s{S_FL}, {WS_FLAG}")])])
            sl.put(592, [o(f"v_mov_b32 v{V_ONE}, 1")])
            e0 = sl.stream(self.geglu(0), 145, 211)
            sl.stream(self.hstore(0) + self.geglu(1) + self.hstore(1), max(e0 + 1, 212), 287)
            for u in range(1, 3):
                sl.stream(self.geglu(2*u) + self.hstore(2*u) + self.geglu(2*u+1) + self.hstore(2*u+1), 144*(u+1) + 1, 144*(u+2) - 1)
            es = sl.stream(self.s_setup(), eh + 1, eh + 11)
            es = sl.stream(self.s_setup2(), es + 1, es + 10)
            assert es < 118, es
            sl.stream(self.s_setup3(224, 225, 226, 227), max(es + 1, 112), 143)
            ep = sl.stream(self.phase2_setup(), 66, 100)
            assert ep < 110
            t = lu[("st", 14)]; fbar(t); place(self.dma_cs(0, 0, 2, ("cs", ("C", 0))), t + 1, 2)
            t = lu[("st", 15)]; fbar(t); e = place(self.dma_cs(0, 1, 3, ("cs", ("C", 1))), t + 1, 2)
            place(self.dma_cx(("cs", ("CX", 0))), e, 2)
            t = lu[("st", 16)]; fbar(t); place(self.dma_cs(1, 0, 0, ("cs", ("S", 0))), t + 1, 2)
            t = lu[("st", 17)]; fbar(t); place(self.dma_cs(1, 1, 1, ("cs", ("S", 1)), True), t + 1, 1)
            self.main_rest(sl, M, fu, lu, stages, slot_of, ACC, tile_last, S0, SP_END, P2_0, N, fbar, place)
        L = self.paced(M, frags, setup, DIST)
        return L + self.tail2

    def mode_check(self, sl, M):
        if not self.opts.get("local", 0): return
        t = 0
        ld = f"buffer_load_dwordx2 v[222:223], off, s[{SR_HZ}:{SR_HZ+3}], s{T5} sc1"
        ld = f"buffer_load_dwordx2 v[230:231], off, s[{SR_HZ}:{SR_HZ+3}], s{S_XC} sc1"
        if self.opts.get("cfg", 0) == 0:
            ld = f"buffer_load_dword v230, off, s[{SR_HZ}:{SR_HZ+3}], s{S_XC} sc1"
            sl.put(140, [G([o(f"s_lshr_b32 s{S_XC}, s{S_LID}, 3"), o(f"s_lshl_b32 s{S_XC}, s{S_XC}, 2")])])
        else:
            sl.put(140, [G([o(f"s_lshl_b32 s{S_XC}, s{S_MT}, 3")])])
        sl.put(143, [vm(ld, "xcc")])
        sl.put(205, [wvm("xcc")])
        sl.put(206, [o(f"v_readfirstlane_b32 s{T6}, v230"), o(f"v_readfirstlane_b32 s{T7}, v231")])
        def nz(r, tmp):
            return [o(f"s_lshr_b32 s{tmp}, s{r}, 1"), o(f"s_or_b32 s{tmp}, s{tmp}, s{r}"), o(f"s_lshr_b32 s{T3}, s{tmp}, 2"), o(f"s_or_b32 s{tmp}, s{tmp}, s{T3}"),
                    o(f"s_and_b32 s{tmp}, s{tmp}, 0x11111111")]
        chk = nz(T6, T1) + nz(T7, T2) + [o(f"s_and_b32 s{T1}, s{T1}, s{T2}"), o(f"s_cmp_eq_u32 s{T1}, 0x11111111")]
        if self.opts.get("cfg", 0) == 0:
            ld = f"buffer_load_dword v230, off, s[{SR_HZ}:{SR_HZ+3}], s{S_XC} sc1"
            ext = [o(f"s_and_b32 s{T1}, s{S_LID}, 6"), o(f"s_lshl_b32 s{T1}, s{T1}, 2"), o(f"s_lshr_b32 s{T2}, s{T6}, s{T1}"),
                   o(f"s_and_b32 s{T3}, s{T2}, 15"), o(f"s_bfe_u32 s{T2}, s{T2}, 0x40004"),
                   o(f"s_min_u32 s{T1}, s{T2}, s{T3}"), o(f"s_cmp_ge_u32 s{T1}, 1")]
            blk = ext + [o("s_cbranch_scc1 L_xc_ok")] + self.spin("L_xc", [o(ld)], [o(f"v_readfirstlane_b32 s{T6}, v230"), o("s_nop 3")] + ext)
            blk += [o(f"s_cmp_eq_u32 s{T2}, s{T3}"), o(f"s_cselect_b32 s{S_MODE}, 1, 0")]
            if self.opts.get("forceglobal"): blk += [o(f"s_mov_b32 s{S_MODE}, 0")]
            M[209].setdefault("before", []).extend(blk)
            return
        blk = chk + [o("s_cbranch_scc1 L_xc_ok")] + self.spin("L_xc", [o(ld)],
              [o(f"v_readfirstlane_b32 s{T6}, v230"), o(f"v_readfirstlane_b32 s{T7}, v231"), o("s_nop 3")] + chk)
        blk += [o(f"s_and_b32 s{T1}, s{T6}, 15"), o(f"s_mul_i32 s{T1}, s{T1}, 0x11111111"),
                o(f"s_cmp_eq_u32 s{T1}, s{T6}"), o(f"s_cselect_b32 s{S_MODE}, 1, 0"),
                o(f"s_cmp_eq_u32 s{T1}, s{T7}"), o(f"s_cselect_b32 s{S_MODE}, s{S_MODE}, 0")]
        if self.opts.get("forceglobal"): blk += [o(f"s_mov_b32 s{S_MODE}, 0")]
        M[209].setdefault("before", []).extend(blk)

    def bulk(self, sl, t):
        bk = [G([o(f"s_lshl_b32 s{S_PF}, s{S_LID}, 2"), o(f"s_add_u32 s{S_PF}, s{S_PF}, s{S_W}"), o(f"s_mul_i32 s{S_PF}, s{S_PF}, 41")]),
              o(f"v_add_u32 v{V_PF}, s{S_PF}, v0"), o(f"v_lshlrev_b32 v{V_PF}, 7, v{V_PF}"),
              G([o("v_cmp_gt_u32 vcc, 41, v0"), o("v_nop"), o("v_nop"), o(f"v_cndmask_b32 v{V_PF}, v{V_ONE0}, v{V_PF}, vcc")])]
        e = sl.stream(bk, t, t + 5, spill=2)
        sl.put(e + 1, [vm(f"buffer_load_dword v{V_PF}, v{V_PF}, s[{SR_WG}:{SR_WG+3}], 0 offen", "pf")])
        sl.put(e + 2, [vm(f"buffer_load_dword v{V_PF}, v{V_PF}, s[{SR_WU}:{SR_WU+3}], 0 offen", "pf")])
        return e + 2

    def paced_prefetch(self, sl, dma_end):
        if self.opts.get("bulkat", 0) == 1:
            bk = [G([o(f"s_lshl_b32 s{S_PF}, s{S_LID}, 2"), o(f"s_add_u32 s{S_PF}, s{S_PF}, s{S_W}"), o(f"s_mul_i32 s{S_PF}, s{S_PF}, 41")]),
                  o(f"v_add_u32 v230, s{S_PF}, v0"), o(f"v_lshlrev_b32 v230, 7, v230"),
                  G([o("v_cmp_gt_u32 vcc, 41, v0"), o("v_nop"), o("v_nop"), o(f"v_cndmask_b32 v230, v{V_ONE0}, v230, vcc")])]
            e = sl.stream(bk, 0, 8, spill=2)
            assert e < 12
            s = dma_end[self.opts.get("bulkst", 3)]
            sl.put(s, [vm(f"buffer_load_dword v{V_PF}, v230, s[{SR_WG}:{SR_WG+3}], 0 offen", "pf")])
            sl.put(s + 1, [vm(f"buffer_load_dword v{V_PF}, v230, s[{SR_WU}:{SR_WU+3}], 0 offen", "pf")])
        if not self.opts.get("ppf", 1): return
        Dd, Cc, t = 228, 229, 227
        setup = [G([o(f"s_lshl_b32 s{S_PF}, s{S_LID}, 2"), o(f"s_add_u32 s{S_PF}, s{S_PF}, s{S_W}"), o(f"s_mul_i32 s{S_PF}, s{S_PF}, 41")]),
                 o(f"v_add_u32 v{Dd}, s{S_PF}, v0"), o(f"v_lshlrev_b32 v{Dd}, 7, v{Dd}"), o(f"v_mov_b32 v{t}, {OOB:#x}"),
                 G([o("v_cmp_gt_u32 vcc, 41, v0"), o("v_nop"), o("v_nop"), o(f"v_cndmask_b32 v{Dd}, v{t}, v{Dd}, vcc")]),
                 G([o(f"s_and_b32 s{S_PF}, s{S_J}, 7"), o(f"s_lshl_b32 s{S_PF}, s{S_PF}, 2"), o(f"s_add_u32 s{S_PF}, s{S_PF}, s{S_W}")]),
                 G([o(f"s_lshl_b32 s{S_C}, s{S_TAU}, 5"), o(f"s_add_u32 s{S_PF}, s{S_PF}, s{S_C}"), o(f"s_lshl_b32 s{S_PF}, s{S_PF}, 12")]),
                 o(f"v_lshlrev_b32 v{Cc}, 7, v0"), o(f"v_add_u32 v{Cc}, s{S_PF}, v{Cc}"),
                 G([o("v_cmp_gt_u32 vcc, 17, v0"), o("v_nop"), o("v_nop"), o(f"v_cndmask_b32 v{Cc}, v{t}, v{Cc}, vcc")])]
        e = sl.stream(setup, 146, 176)
        s = dma_end[self.opts.get("pfw", 9)]
        assert s > e + 6
        if self.opts.get("bulk", 1) != 2: sl.put(s, [vm(f"buffer_load_dword v{V_PF}, v{Dd}, s[{SR_WD}:{SR_WD+3}], 0 offen", "pf")])
        s = dma_end[self.opts.get("pfc", 11)]
        sl.put(s, [vm(f"buffer_load_dword v{V_PF}, v{Cc}, s[{SR_CS}:{SR_CS+3}], 0 offen", "pf")])
        sl.put(s + 1, [vm(f"buffer_load_dword v{V_PF}, v{Cc}, s[{SR_SS}:{SR_SS+3}], 0 offen", "pf")])

    def owner_addr(self):
        sQ = S_TO
        t0, t1, t2, t3 = 244, 245, 246, 247
        L = [G([o(f"s_lshl_b32 s{T4}, s{S_MT}, 2"), o(f"s_add_u32 s{T4}, s{T4}, s{S_W}")]),
             G([o(f"s_mul_i32 s{T5}, s{T4}, 18"), o(f"s_add_u32 s{T5}, s{T5}, s{sQ}"), o(f"s_lshl_b32 s{T5}, s{T5}, 11")]),
             o(f"s_lshr_b32 s{T3}, s{S_J}, 1")]
        for i, d in enumerate((2, 3, 4, 5, 6, 7, 1)):
            L += [G([o(f"s_xor_b32 s{16+i}, s{T3}, {d}"), o(f"s_mul_i32 s{16+i}, s{16+i}, {PART_BYTES}"), o(f"s_add_u32 s{16+i}, s{16+i}, s{T5}")])]
        L += [o(f"s_lshl_b32 s{T5}, s{T4}, 4"), o(f"v_and_b32 v{t0}, 15, v0"), o(f"v_add_u32 v{t0}, s{T5}, v{t0}"),
              o(f"v_sub_u32 v{t1}, 2048, v{t0}"), o(f"v_mov_b32 v{t2}, 1024"), o(f"v_mov_b32 v{t3}, 0"),
              G([o(f"v_cmp_eq_u32 vcc, 0, v{t0}"), o("v_nop"), o("v_nop"), o(f"v_cndmask_b32 v237, v{t1}, v{t2}, vcc"),
                 o(f"v_cndmask_b32 v{t1}, v{t1}, v{t3}, vcc"), o(f"v_cndmask_b32 v{t2}, v{t0}, v{t2}, vcc")]),
              o(f"v_and_b32 v{t3}, 16, v0"),
              G([o(f"v_cmp_eq_u32 vcc, 0, v{t3}"), o("v_nop"), o("v_nop"), o(f"v_cndmask_b32 v{t0}, v237, v{t0}, vcc"), o(f"v_cndmask_b32 v{t1}, v{t2}, v{t1}, vcc")]),
              o(f"s_lshl_b32 s{T5}, s{sQ}, 6"),
              o(f"v_mul_u32_u24 v{t2}, 1152, v{t0}"), o(f"v_add_u32 v{t2}, s{T5}, v{t2}"),
              o(f"v_lshrrev_b32 v{t3}, 5, v0"), o(f"v_lshlrev_b32 v238, 4, v{t3}"), o(f"v_add_u32 v238, v{t2}, v238"),
              o(f"v_lshlrev_b32 v237, 3, v{t3}"), o(f"v_add_u32 v237, v{t2}, v237"),
              G([o(f"s_lshl_b32 s{T5}, s{sQ}, 7"), o(f"s_cmp_lt_u32 s{sQ}, 9"), o(f"s_cselect_b32 s24, 0, 1")]),
              G([o(f"s_sub_u32 s{T4}, {2292 - 96}, s{T5}"), o(f"s_cmp_lt_u32 s{sQ}, 9"), o(f"s_cselect_b32 s{T5}, s{T5}, s{T4}"), o(f"s_cselect_b32 s{T4}, 1, -1")]),
              G([o(f"v_mov_b32 v{t2}, s24"), o(f"v_cmp_eq_u32 vcc, 1, v{t2}"), o("v_nop"), o("v_nop"), o(f"v_cndmask_b32 v{t0}, v{t0}, v{t1}, vcc")]),
              o(f"v_mul_u32_u24 v{t0}, {YP}, v{t0}"), o(f"v_add_u32 v{t0}, s{T5}, v{t0}"),
              o(f"v_lshlrev_b32 v{t3}, 4, v{t3}"), o(f"v_mul_lo_u32 v{t3}, v{t3}, s{T4}"), o(f"v_add_u32 v{t0}, v{t0}, v{t3}"),
              o(f"v_add_u32 v239, {WS_YH}, v{t0}")]
        return L

    def pipe_reduce(self, sl, M, fu, lu, P2_0, N):
        self.items_cfg()
        t4 = P2_0 + self.opts.get("t4", 254)
        sl.put(t4 - 3, [o("v_mov_b32 v240, 4")])
        sl.put(t4, [wvm([("pst", 0), ("pst", 1), ("pst", 2), "yst"]), o("s_barrier")])
        sl.put(t4 + 1, [vm(f"buffer_store_dword v240, v{V_ONE0}, s[{SR_WS}:{SR_WS+3}], s{S_FL} offen sc1", "fl4")])
        ep = sl.stream(self.p2q_setup(), P2_0 + 102, P2_0 + 124)
        assert ep < P2_0 + 132
        s_own, s_par = 2, 1
        lb = [G([o(f"s_bfe_u32 s{T5}, s{S_J}, 0x10001"), o(f"s_lshl_b32 s{T5}, s{T5}, 6"), o(f"s_xor_b32 s{T4}, s{T5}, 64")]),
              o(f"v_xor_b32 v{V_LB}, s{T4}, v{V_RA+s_own}"), o(f"v_xor_b32 v{V_LB+1}, s{T4}, v{V_RA+s_par}"),
              o(f"v_xor_b32 v{V_LB+2}, s{T5}, v{V_RA+s_own}"), o(f"v_xor_b32 v{V_LB+3}, s{T5}, v{V_RA+s_par}")]
        sl.stream(lb, P2_0 + 190, P2_0 + 200)
        e = sl.stream(self.owner_addr(), P2_0 + 204, P2_0 + 250)
        e = sl.stream([G([o(f"s_and_b32 s{T6}, s{S_J}, 1"), o(f"s_lshl_b32 s{T6}, s{T6}, 7"), o(f"s_lshl_b32 s{T7}, s{S_MT}, 11")]),
                       G([o(f"s_add_u32 s{T6}, s{T6}, s{T7}"), o(f"s_add_u32 s{T6}, s{T6}, {WS_FLAG}")]),
                       o("v_lshlrev_b32 v242, 8, v0"), o(f"v_mov_b32 v241, {OOB:#x}"),
                       G([o("v_cmp_gt_u32 vcc, 8, v0"), o("v_nop"), o("v_nop"), o("v_cndmask_b32 v242, v241, v242, vcc")])], e + 1, e + 8)
        for i in range(4): sl.put(e + 2 + i, [vm(f"buffer_load_dwordx2 v[{24+2*i}:{25+2*i}], v237, s[{SR_X}:{SR_X+3}], 0 offen offset:{16*i}", "ox")])
        tpoll = max(e + 7, P2_0 + self.opts.get("tpa", 284))
        ld, chk = self.group_poll("L_gA", 4, 241, 242)
        sl.put(tpoll, [vm(ld, "gpA")])
        sl.put(tpoll + 9, [wvm("gpA")])
        M[tpoll + 11].setdefault("before", []).extend(chk + [o("s_cbranch_scc1 L_gA_ok")] + self.spin("L_gA", [o(ld)], chk))
        lds = []
        for i in range(6):
            lds += [vm(f"buffer_load_dwordx4 v[{80+8*i}:{83+8*i}], v{V_L16}, s[{SR_WS}:{SR_WS+3}], s{16+i} offen sc1", "op"),
                    vm(f"buffer_load_dwordx4 v[{84+8*i}:{87+8*i}], v{V_L16}, s[{SR_WS}:{SR_WS+3}], s{16+i} offen offset:1024 sc1", "op")]
        lds += [vm(f"buffer_load_dwordx4 v[{48+4*i}:{51+4*i}], v239, s[{SR_WS}:{SR_WS+3}], 0 offen offset:{32*i} sc1", "op") for i in range(4)]
        s = tpoll + 11
        self.late_loads = []
        stp = self.opts.get("ostep", 2)
        for l in lds:
            if s < N - 1: sl.put(s, [l]); s += stp
            else: self.late_loads.append(l)
        print("owner loads: in loop until", s, "late:", len(self.late_loads), "N", N)
        t5 = N - self.opts.get("t5", 10)
        sl.put(t5 - 3, [o("v_mov_b32 v240, 5")])
        sl.put(t5, [wvm([("pst", 3), ("pst", 4)]), o("s_barrier")])
        sl.put(t5 + 1, [vm(f"buffer_store_dword v240, v{V_ONE0}, s[{SR_WS}:{SR_WS+3}], s{S_FL} offen sc1", "fl5")])
        self.RDx = dict(P=("v", 176), X=208, Y=212, OA=220, PV=221, t=[222, 223, 224, 225], rev=26, so=84)
        Ad, Ld = self.item_setup("D", self.RDx, split=True)
        self.D_ld = Ld
        eD = sl.stream(Ad, N - 17, N - 1, spill=0)
        print("D addr until", eD)

    def spin(self, label, load, cond_ok, regs_note=""):
        return [o(f"s_mov_b32 s{S_CNT}, 0"), raw(f"{label}:")] + load + [o("s_waitcnt vmcnt(0)")] + cond_ok + \
               [o(f"s_cbranch_scc1 {label}_ok"), o(f"s_add_u32 s{S_CNT}, s{S_CNT}, 1"), o(f"s_cmp_gt_u32 s{S_CNT}, 0x40000"), o(f"s_cbranch_scc1 {label}_ok"),
                o("s_sleep 1"), o(f"s_branch {label}"), raw(f"{label}_ok:")]

    def main_rest(self, sl, M, fu, lu, stages, slot_of, ACC, tile_last, S0, SP_END, P2_0, N, fbar, place):
        zP, zQ, accP, accQ = self.zP, self.zQ, self.accP, self.accQ
        DIST = self.opts.get("dist", 7)
        e6 = sl.stream(self.geglu(6) + self.hstore(6), 577, 634)
        assert e6 < S0 - 2, e6
        e7 = sl.stream(self.geglu(7) + self.hstore(7), e6 + 1, S0 + 46)
        assert e7 < SP_END - 1, e7
        sl.stream(self.geglu(8, 8) + self.hstore(8), S0 + 4, S0 + 85)
        sl.put(467, [vm(f"buffer_load_dword v230, off, s[{SR_HZ}:{SR_HZ+3}], 0 offset:128 sc1", "zpoll")])
        sl.put(574, [wvm("zpoll")])
        sl.put(575, [o(f"v_readfirstlane_b32 s{T0}, v230")])
        M[578].setdefault("before", []).extend(
            [o(f"s_cmp_ge_u32 s{T0}, 256"), o("s_cbranch_scc1 L_zp_ok")] +
            self.spin("L_zp", [o(f"buffer_load_dword v{V_PF}, off, s[{SR_HZ}:{SR_HZ+3}], 0 offset:128 sc1")],
                      [o(f"v_readfirstlane_b32 s{T0}, v{V_PF}"), o("s_nop 3"), o(f"s_cmp_ge_u32 s{T0}, 256")]))
        ins = []
        for k in range(9):
            if k < 8: ins += [o(f"s_add_u32 s{S_C}, s{S_ZB}, {k*2048}")]
            else: ins += [G([o(f"s_cmp_eq_u32 s{S_W}, 3"), o(f"s_cselect_b32 s{S_C}, 0, {OOB:#x}"), o(f"s_add_u32 s{S_C}, s{S_C}, s{S_ZB}")]),
                          o(f"s_add_u32 s{S_C}, s{S_C}, {8*2048}")]
            for ss in range(3):
                ins += [vm(f"buffer_load_dwordx4 {zP(ss,k)}, v{V_ZP+ss}, s[{SR_WS}:{SR_WS+3}], s{S_C} offen sc1", ("zp", k))]
        sl.stream(ins, 579, 640)
        for k in range(9):
            g = S0 + 6*k
            sl.put(g - 1, [wvm(("zp", k))])
        ins = []
        for k in range(8):
            ins += [o(f"s_add_u32 s{S_C}, s{S_ZB}, {k*2048}")]
            for ss in range(3):
                ins += [vm(f"buffer_load_dwordx4 {zQ(ss,k)}, v{V_ZQ+ss}, s[{SR_WS}:{SR_WS+3}], s{S_C} offen sc1", ("zq", k))]
        sl.stream(ins, S0, SP_END + 20)
        for k in range(8):
            g = SP_END + 6*k
            sl.put(g - 1, [wvm(("zq", k))])
        blk = [o(f"s_cmp_eq_u32 s{S_TAU}, 0"), o("s_cbranch_scc0 L_s_n1024"),
               o("v_mov_b32 v232, 0xbf803f80"), o("v_mov_b32 v233, v232"), o("v_mov_b32 v234, v232"), o("v_mov_b32 v235, v232"), o("s_nop 1")]
        for k in range(9):
            for ss in range(3):
                a = (32, 36, 40)[ss] if False else None
        A1024 = [120, 124, 136]
        for k in range(9):
            for ss in range(3):
                a = A1024[ss]
                blk += [mf16(f"v[{a}:{a+3}]", "v[232:235]", zP(ss, k), "0" if k == 0 else f"v[{a}:{a+3}]")]
        blk += [raw("L_s_n1024:")]
        M[SP_END].setdefault("before", []).extend(blk)
        tA, tB, tC = 236, 237, 238
        t = lu[("C", 0)]; fbar(t)
        e = place(self.dma_p2(stages[0], slot_of[stages[0]], True, 12, 13, V_PF), t + 1, 1)
        ins = [o(f"v_lshrrev_b32 v{V_PF}, 5, v0"), o(f"v_lshlrev_b32 v{V_PF}, 9, v{V_PF}")]
        for s in range(4): ins += [o(f"v_sub_u32 v{V_RA+s}, v{V_RA+s}, v{V_PF}"), o(f"v_sub_u32 v{V_RB+s}, v{V_RB+s}, v{V_PF}")]
        sl.stream(ins, e + 1, e + 14)
        t = lu[("C", 1)] + 6; fbar(t)
        assert t >= lu[("CX", 0)]
        place(self.dma_p2(stages[2], slot_of[stages[2]], False, 0, 0, 0), t + 1, 1)
        t = lu[("S", 0)]; fbar(t); place(self.dma_p2(stages[1], slot_of[stages[1]], False, 0, 0, 0), t + 1, 1)
        t = lu[("S", 1)]
        sl.put(t, [wvm("hst"), o("s_barrier")])
        sl.put(t + 1, [o(f"v_mov_b32 v{V_PF}, 2")])
        sl.put(t + 2, [vm(f"buffer_store_dword v{V_PF}, v{V_ONE0}, s[{SR_WS}:{SR_WS+3}], s{S_FL} offen sc1", "fl2h")])
        pass
        a0 = P2_0 + 3
        t0r, t1r = 240, 241
        SC = SLOT
        W3D = SPARE - SLOT - 3*12288
        N1A = SPARE + 12288
        wr = [G([o(f"s_mul_i32 s{S_C}, s{S_W}, 12288"), o(f"s_add_u32 s{S_C}, s{S_C}, {SC}")]),
              G([o(f"s_cmp_eq_u32 s{S_W}, 3"), o(f"s_cselect_b32 s{S_ST1}, {W3D}, 0"), o(f"s_add_u32 s{S_C}, s{S_C}, s{S_ST1}")]),
              o(f"v_lshrrev_b32 v{t0r}, 4, v0"), o(f"v_mul_u32_u24 v{t0r}, 768, v{t0r}"), o(f"v_and_b32 v{t1r}, 15, v0"), o(f"v_lshlrev_b32 v{t1r}, 2, v{t1r}"),
              o(f"v_add_u32 v{t0r}, v{t0r}, v{t1r}"), o(f"v_add_u32 v{t0r}, s{S_C}, v{t0r}")]
        for pq, accf in ((0, accP), (1, accQ)):
            for tt in range(2):
                for ss in range(3):
                    for r in range(4):
                        wr += [ds(f"ds_write_b32 v{t0r}, v{accf(tt,ss)+r} offset:{pq*6144 + (16*tt + r)*192 + ss*64}", "sred_w")]
        e = sl.stream(wr, a0, a0 + 30)
        wr2 = [G([o(f"s_mul_i32 s{S_C}, s{S_W}, 768"), o(f"s_add_u32 s{S_C}, s{S_C}, {N1A}")]), o(f"v_lshlrev_b32 v{t1r}, 2, v0"), o(f"v_add_u32 v{t1r}, s{S_C}, v{t1r}")]
        for ss in range(3): wr2 += [ds(f"ds_write_b32 v{t1r}, v{A1024[ss]} offset:{ss*256}", "sred_w")]
        e = sl.stream(wr2, e + 1, e + 6)
        b1 = e + 1
        sl.put(b1, [wlg("sred_w"), o("s_barrier")])
        R0, R1 = 128, 64
        R0, R1 = 112, 48
        A0, A1, YD0, YM0, YD1, YM1 = 232, 233, 234, 235, 236, 237
        ad = [G([o(f"s_lshl_b32 s{T3}, s{S_W}, 3"), o(f"s_lshl_b32 s{T4}, s{S_TAU}, 5"), o(f"s_add_u32 s{T4}, s{T4}, s{T3}")]),
              G([o(f"s_mul_i32 s{T3}, s{T3}, 192"), o(f"s_add_u32 s{T3}, s{T3}, {SC}"), o(f"s_and_b32 s{T5}, s{S_J}, 7")]),
              o(f"s_mul_i32 s{T5}, s{T5}, 144"),
              o(f"v_lshrrev_b32 v238, 3, v0"), o(f"v_and_b32 v239, 7, v0"),
              o(f"v_mul_u32_u24 v{A0}, 192, v238"), o(f"v_lshlrev_b32 v239, 4, v239"), o(f"v_add_u32 v{A0}, v{A0}, v239"), o(f"v_add_u32 v{A0}, s{T3}, v{A0}"),
              o(f"v_add_u32 v238, s{T4}, v238"),
              o(f"v_add_u32 v239, s{T5}, v239"),
              o(f"v_mul_u32_u24 v{YD0}, {YP}, v238"), o(f"v_add_u32 v{YD0}, v{YD0}, v239"),
              o(f"v_sub_u32 v{YM0}, 2048, v238"), o(f"v_mul_u32_u24 v{YM0}, {YP}, v{YM0}"), o(f"v_add_u32 v{YM0}, v{YM0}, v239"),
              G([o(f"v_cmp_eq_u32 vcc, 0, v238"), o(f"v_mov_b32 v238, {OOB:#x}"), o("v_nop"), o(f"v_cndmask_b32 v{YM0}, v{YM0}, v238, vcc")]),
              o(f"v_and_b32 v238, 7, v0"), o(f"v_lshrrev_b32 v239, 3, v0"), o(f"v_add_u32 v239, 8, v239"), o(f"v_min_u32 v239, 9, v239"),
              o(f"v_mul_u32_u24 v{A1}, 192, v238"), o(f"v_lshlrev_b32 v239, 4, v239"), o(f"v_add_u32 v{A1}, v{A1}, v239"), o(f"v_add_u32 v{A1}, s{T3}, v{A1}"),
              o(f"v_add_u32 v238, s{T4}, v238"), o(f"v_add_u32 v239, s{T5}, v239"),
              o(f"v_mul_u32_u24 v{YD1}, {YP}, v238"), o(f"v_add_u32 v{YD1}, v{YD1}, v239"),
              o(f"v_sub_u32 v{YM1}, 2048, v238"), o(f"v_mul_u32_u24 v{YM1}, {YP}, v{YM1}"), o(f"v_add_u32 v{YM1}, v{YM1}, v239"),
              G([o(f"v_cmp_eq_u32 vcc, 0, v238"), o(f"v_mov_b32 v238, {OOB:#x}"), o("v_nop"), o(f"v_cndmask_b32 v{YM1}, v{YM1}, v238, vcc")]),
              G([o(f"s_cmp_eq_u32 s{T5}, {7*144}"), o(f"s_cselect_b32 s{T5}, 16, 8")]),
              G([o(f"v_cmp_gt_u32 vcc, s{T5}, v0"), o("v_nop"), o("v_nop"), o(f"v_cndmask_b32 v{YD1}, v238, v{YD1}, vcc"), o(f"v_cndmask_b32 v{YM1}, v238, v{YM1}, vcc")]),
              o(f"s_mov_b32 s{T4}, {WS_YH}"),
              o(f"v_lshlrev_b32 v238, 2, v0"), o(f"v_add_u32 v238, {N1A}, v238"),
              o(f"v_add_u32 v243, {W3D + 3*12288}, v{A0}"), o(f"v_add_u32 v244, {W3D + 3*12288}, v{A1}")]
        e = sl.stream(ad, a0 + 2, b1)
        assert e <= b1 + 6
        def rds(R, A, tag):
            A3 = 243 if A == A0 else 244
            return [ds(f"ds_read_b128 v[{R + 16*pq + 4*ww}:{R + 16*pq + 4*ww + 3}], v{A if ww < 3 else A3} offset:{(ww*12288 if ww < 3 else 0) + pq*6144}", tag) for pq in range(2) for ww in range(4)]
        N1 = 216
        n1r = [ds(f"ds_read_b32 v{N1+4*ss+ww}, v238 offset:{ww*768 + ss*256}", "sred_n") for ss in range(3) for ww in range(4)]
        e = sl.stream(rds(R0, A0, "sr0") + rds(R1, A1, "sr1") + n1r, max(e, b1) + 1, max(e, b1) + 12)
        b2 = e + 3
        sl.put(b2, [wlg("sred_n"), o("s_barrier")])
        self.b2 = b2
        def fin(R, YD, YM):
            out = []
            for pq in range(2):
                b_ = R + 16*pq
                for k in range(4):
                    out += [o(f"v_add_f32 v{b_+k}, v{b_+k}, v{b_+4+k}"), o(f"v_add_f32 v{b_+8+k}, v{b_+8+k}, v{b_+12+k}"), o(f"v_add_f32 v{b_+k}, v{b_+k}, v{b_+8+k}")]
            for k in range(4):
                out += [o(f"v_sub_f32 v{R+4+k}, v{R+k}, v{R+16+k}"), o(f"v_add_f32 v{R+8+k}, v{R+k}, v{R+16+k}")]
            out += [vm(f"buffer_store_dwordx4 v[{R+4}:{R+7}], v{YD}, s[{SR_WS}:{SR_WS+3}], s{T4} offen sc1", "yst"),
                    vm(f"buffer_store_dwordx4 v[{R+8}:{R+11}], v{YM}, s[{SR_WS}:{SR_WS+3}], s{T4} offen sc1", "yst")]
            return out
        n1 = []
        for ss in range(3):
            b_ = N1 + 4*ss
            n1 += [o(f"v_add_f32 v{b_}, v{b_}, v{b_+1}"), o(f"v_add_f32 v{b_+2}, v{b_+2}, v{b_+3}"), o(f"v_add_f32 v{b_}, v{b_}, v{b_+2}")]
        n1 += [G([o(f"s_or_b32 s{T3}, s{S_TAU}, s{S_W}"), o(f"s_cmp_eq_u32 s{T3}, 0"), o(f"s_cselect_b32 s{T3}, 16, 0")]),
               G([o(f"v_cmp_gt_u32 vcc, s{T3}, v0"), o(f"v_mov_b32 v238, {1024*YP}"), o(f"v_mov_b32 v239, {OOB:#x}"), o(f"v_cndmask_b32 v238, v239, v238, vcc")])]
        for ss in range(3):
            n1 += [o(f"v_add_u32 v{N1+4*ss+1}, v238, v{V_YC[ss]}")]
        n1 += [vm(f"buffer_store_dword v{N1+4*ss}, v{N1+4*ss+1}, s[{SR_WS}:{SR_WS+3}], s{T4} offen sc1", "yst") for ss in range(3)]
        e = sl.stream(fin(R1, YD1, YM1) + fin(R0, YD0, YM0), b2 + 1, P2_0 + 66, spill=3)
        assert e < P2_0 + 72, e
        e = sl.stream(n1, e + 1, e + 16)
        assert e < P2_0 + 100, e
        gpar = fu[("s2", (0, "par"))]
        PF2 = 231
        sl.put(660, [G([o(f"s_xor_b32 s{T0}, s{S_LID}, 1"), o(f"s_lshl_b32 s{T1}, s{T0}, 7"), o(f"s_add_u32 s{T1}, s{T1}, {WS_FLAG}")])])
        sl.put(661, [G([o(f"s_lshl_b32 s{T0}, s{T0}, 2"), o(f"s_add_u32 s{T0}, s{T0}, s{S_W}"), o(f"s_mul_i32 s{T0}, s{T0}, {18*1024}")]), o(f"s_add_u32 s{T0}, s{T0}, {WS_HX}")])
        pl = f"buffer_load_dword v242, off, s[{SR_WS}:{SR_WS+3}], s{T1} sc1"
        sl.put(662, [vm(pl, "hpoll1")])
        sl.put(SP_END - 3, [wvm("hpoll1")])
        sl.put(SP_END - 2, [o(f"v_readfirstlane_b32 s{T2}, v242")])
        M[SP_END + 1].setdefault("before", []).extend(
            [o(f"s_cmp_ge_u32 s{T2}, 1"), o("s_cbranch_scc1 L_hq_ok")] +
            self.spin("L_hq", [o(pl)], [o(f"v_readfirstlane_b32 s{T2}, v242"), o("s_nop 3"), o(f"s_cmp_ge_u32 s{T2}, 1")]))
        def hload(k, n, t, tag):
            sl.put(t, [o(f"s_add_u32 s{T6}, s{T0}, {k*1024}")])
            sl.put(t + 1, self.dload([f"buffer_load_dwordx4 a[{AZ+4*(k+q)}:{AZ+4*(k+q)+3}], v{V_L16}, s[{SR_WS}:{SR_WS+3}], s{T6} offen offset:{q*1024}" for q in range(n)], tag, True))
        for i in range(6):
            hload(2*i, 2, SP_END + 3 + 7*i, ("hp", i))
        tp = P2_0 + 40
        sl.put(tp - 13, [vm(pl, "hpoll2")])
        sl.put(tp - 2, [wvm("hpoll2")])
        sl.put(tp - 1, [o(f"v_readfirstlane_b32 s{T2}, v242")])
        M[tp + 2].setdefault("before", []).extend(
            [o(f"s_cmp_ge_u32 s{T2}, 2"), o("s_cbranch_scc1 L_hp_ok")] +
            self.spin("L_hp", [o(pl)], [o(f"v_readfirstlane_b32 s{T2}, v242"), o("s_nop 3"), o(f"s_cmp_ge_u32 s{T2}, 2")]))
        for i in range(3):
            hload(12 + 2*i, 2, tp + 4 + 8*i, ("hp", 6 + i))
        sl.put(gpar - 2, [wvm(("hp", 5))])
        for i in range(3):
            sl.put(gpar + 12 + 2*i - 2, [wvm(("hp", 6 + i))])
        for i in range(3, 9):
            st = stages[i]; slot = slot_of[st]
            prev = [j for j in range(i) if slot_of[stages[j]] == slot]
            if prev:
                t = lu[("s2", stages[prev[-1]])]; fbar(t); start = t + 1
            else:
                start = b2 + 1
            grps = self.dma_p2(st, slot, False, 250, 251, 0)
            if st[0] == 4:
                grps = [[o(f"s_and_b32 s{S_C}, s{S_W}, 1"), o(f"s_mul_i32 s{S_C}, s{S_C}, {16*1152}")]] + grps
                place(grps, start, 1)
            else:
                place(grps, start, 2)
        s4 = slot_of[(4, "both")]
        ins = [o("v_lshrrev_b32 v250, 5, v0"), o("v_lshlrev_b32 v250, 8, v250"),
               o("v_bfe_u32 v251, v0, 2, 2"), o("v_lshlrev_b32 v251, 6, v251"), o("v_add_u32 v250, v250, v251"),
               o("v_bfe_u32 v251, v0, 4, 1"), o("v_lshlrev_b32 v251, 5, v251"), o("v_add_u32 v250, v250, v251"),
               o("v_and_b32 v251, 3, v0"), o("v_lshlrev_b32 v251, 3, v251"), o("v_add_u32 v250, v250, v251"),
               o(f"v_add_u32 v{V_R8}, {s4*SLOT}, v250")]
        sl.stream(ins, P2_0 + 150, P2_0 + 175)
        self.pipe_reduce(sl, M, fu, lu, P2_0, N)
        for (u, half), tl in sorted(tile_last.items(), key=lambda x: x[1]):
            acc = ACC[u][half]
            par = half
            t = TMP + 8*par
            st = S_ST0 + par
            ins = [o(f"v_cvt_pk_bf16_f32 v{t+i}, v{acc+2*i}, v{acc+2*i+1}") for i in range(8)]
            if u == 3 and half == 1: continue
            if u < 3: ins += [o(f"s_add_u32 s{st}, s{S_QU[u]}, {half*2048}")]
            elif u == 3: ins += [o(f"s_mov_b32 s{st}, s{S_QN}")]
            else: ins += [o(f"s_mov_b32 s{st}, s{S_Q8}")]
            ins += self.dstore([f"buffer_store_dwordx4 v[{t}:{t+3}], v{V_L16}, s[{SR_WS}:{SR_WS+3}], s{st} offen",
                                f"buffer_store_dwordx4 v[{t+4}:{t+7}], v{V_L16}, s[{SR_WS}:{SR_WS+3}], s{st} offen offset:1024"], ("pst", u))
            s0 = tl + 4
            if s0 + 10 <= N: sl.stream(ins, s0, s0 + 10)
            else: self.tail2 = [o("s_nop 15")] + ins

    def item_setup(self, kind, R, srd=None, split=False):
        t0, t1, t2, t3 = R["t"]
        sQ, sH, sB, sT = T2, T3, T4, T5
        L = []
        LD = []
        SW = SR_WS if srd is None else srd
        if kind == "A":
            L += [G([o(f"s_lshl_b32 s{sT}, s{S_J}, 2"), o(f"s_add_u32 s{sT}, s{sT}, s{S_W}"), o(f"s_lshr_b32 s{sQ}, s{sT}, 3")]),
                  G([o(f"s_cmp_lt_u32 s{sQ}, 4"), o(f"s_cselect_b32 s{sH}, 0, 6"), o(f"s_add_u32 s{sQ}, s{sQ}, s{sH}")])]
        elif kind in "BC":
            lo, hi = (4, 12) if kind == "B" else (6, 14)
            L += [G([o(f"s_lshl_b32 s{sT}, s{S_J}, 1"), o(f"s_lshr_b32 s{sH}, s{S_W}, 1"), o(f"s_add_u32 s{sT}, s{sT}, s{sH}")]),
                  G([o(f"s_lshr_b32 s{sQ}, s{sT}, 3"), o(f"s_cmp_lt_u32 s{sQ}, 2"), o(f"s_cselect_b32 s{sH}, {lo}, {hi}")]),
                  o(f"s_add_u32 s{sQ}, s{sQ}, s{sH}")]
        else:
            L += [G([o(f"s_lshr_b32 s{sT}, s{S_J}, 1"), o(f"s_and_b32 s{sQ}, s{S_J}, 1"), o(f"s_add_u32 s{sQ}, s{sQ}, 8")])]
        L += [G([o(f"s_and_b32 s{sH}, s{sT}, 1"), o(f"s_bfe_u32 s{sB}, s{sT}, 0x20001"), o(f"s_lshl_b32 s{sT}, s{S_MT}, 2")]),
              o(f"s_add_u32 s{sB}, s{sB}, s{sT}"),
              G([o(f"s_mul_i32 s{sT}, s{sB}, 18"), o(f"s_add_u32 s{sT}, s{sT}, s{sQ}"), o(f"s_lshl_b32 s{sT}, s{sT}, 1")]),
              G([o(f"s_add_u32 s{sT}, s{sT}, s{sH}"), o(f"s_lshl_b32 s{sT}, s{sT}, 10")])]
        so = R["so"]
        for p in range(8): L += [o(f"s_add_u32 s{so+p}, s{sT}, {p*PART_BYTES}")]
        if kind == "A":
            L += [o(f"v_mov_b32 v{t3}, 0")]
        elif kind in "BC":
            L += [o(f"s_and_b32 s{sT}, s{S_W}, 1"), o(f"v_bfe_u32 v{t0}, v0, 4, 1"), o(f"v_mov_b32 v{t1}, {OOB:#x}"), o(f"v_mov_b32 v{t3}, 0"),
                  G([o(f"v_cmp_eq_u32 vcc, s{sT}, v{t0}"), o("v_nop"), o("v_nop"), o(f"v_cndmask_b32 v{t3}, v{t1}, v{t3}, vcc")])]
        else:
            L += [o(f"v_bfe_u32 v{t0}, v0, 3, 2"), o(f"v_mov_b32 v{t1}, {OOB:#x}"), o(f"v_mov_b32 v{t3}, 0"),
                  G([o(f"v_cmp_eq_u32 vcc, s{S_W}, v{t0}"), o("v_nop"), o("v_nop"), o(f"v_cndmask_b32 v{t3}, v{t1}, v{t3}, vcc")])]
        PV = R["PV"]
        L += [o(f"v_add_u32 v{PV}, v{t3}, v{V_L16}")]
        pk, pb = R["P"]
        ldp = [vm(f"buffer_load_dwordx4 {pk}[{pb+4*p}:{pb+4*p+3}], v{PV}, s[{SW}:{SW+3}], s{so+p} offen sc1", ("it", kind)) for p in range(8)]
        if split: LD += ldp
        else: L += ldp
        X, Y, OA = R["X"], R["Y"], R["OA"]
        L += [o(f"s_lshl_b32 s{sT}, s{sB}, 4"), o(f"v_and_b32 v{t0}, 15, v0"), o(f"v_add_u32 v{t0}, s{sT}, v{t0}"),
              o(f"v_sub_u32 v{t1}, 2048, v{t0}"), o(f"v_mov_b32 v{t2}, 1024"), o(f"v_mov_b32 v{OA}, 0"),
              G([o(f"v_cmp_eq_u32 vcc, 0, v{t0}"), o("v_nop"), o("v_nop"), o(f"v_cndmask_b32 v{X}, v{t1}, v{t2}, vcc"),
                 o(f"v_cndmask_b32 v{t1}, v{t1}, v{OA}, vcc"), o(f"v_cndmask_b32 v{t2}, v{t0}, v{t2}, vcc")]),
              o(f"v_and_b32 v{OA}, 16, v0"),
              G([o(f"v_cmp_eq_u32 vcc, 0, v{OA}"), o("v_nop"), o("v_nop"), o(f"v_cndmask_b32 v{t0}, v{X}, v{t0}, vcc"), o(f"v_cndmask_b32 v{t1}, v{t2}, v{t1}, vcc")]),
              G([o(f"s_lshl_b32 s{sT}, s{sQ}, 6"), o(f"s_lshl_b32 s{sB}, s{sH}, 5"), o(f"s_add_u32 s{sT}, s{sT}, s{sB}")]),
              o(f"v_mul_u32_u24 v{t2}, 1152, v{t0}"), o(f"v_add_u32 v{t2}, s{sT}, v{t2}"), o(f"v_add_u32 v{t2}, v{t2}, v{t3}"),
              o(f"v_lshrrev_b32 v{X}, 5, v0"), o(f"v_lshlrev_b32 v{OA}, 4, v{X}"), o(f"v_add_u32 v{OA}, v{t2}, v{OA}"),
              o(f"v_lshlrev_b32 v{X}, 3, v{X}"), o(f"v_add_u32 v{t2}, v{t2}, v{X}"),
              vm(f"buffer_load_dwordx2 v[{X}:{X+1}], v{t2}, s[{SR_X}:{SR_X+3}], 0 offen", ("it", kind)),
              vm(f"buffer_load_dwordx2 v[{X+2}:{X+3}], v{t2}, s[{SR_X}:{SR_X+3}], 0 offen offset:16", ("it", kind)),
              G([o(f"s_lshl_b32 s{sT}, s{sT}, 1"), o(f"s_cmp_lt_u32 s{sQ}, 9"), o(f"s_cselect_b32 s{R['rev']}, 0, 1")]),
              G([o(f"s_sub_u32 s{sB}, 2292, s{sT}"), o(f"s_cmp_lt_u32 s{sQ}, 9"), o(f"s_cselect_b32 s{sT}, s{sT}, s{sB}"), o(f"s_cselect_b32 s{sB}, 1, -1")]),
              G([o(f"v_cmp_eq_u32 vcc, 1, v{PV}") if False else o(f"v_mov_b32 v{t2}, s{R['rev']}"), o(f"v_cmp_eq_u32 vcc, 1, v{t2}"), o("v_nop"), o("v_nop"),
                 o(f"v_cndmask_b32 v{t0}, v{t0}, v{t1}, vcc")]),
              o(f"v_mul_u32_u24 v{t0}, {YP}, v{t0}"), o(f"v_add_u32 v{t0}, s{sT}, v{t0}"), o(f"v_add_u32 v{t0}, v{t0}, v{t3}"),
              o(f"v_lshrrev_b32 v{t1}, 5, v0"), o(f"v_lshlrev_b32 v{t1}, 4, v{t1}"), o(f"v_mul_lo_u32 v{t1}, v{t1}, s{sB}"),
              o(f"v_add_u32 v{t0}, v{t0}, v{t1}"),
              o(f"s_lshl_b32 s{sB}, s{sB}, 5"), o(f"v_add_u32 v{t1}, s{sB}, v{t0}"), o(f"v_add_u32 v{t0}, {WS_YH}, v{t0}"), o(f"v_add_u32 v{t1}, {WS_YH}, v{t1}")]
        ldy = [vm(f"buffer_load_dwordx4 v[{Y}:{Y+3}], v{t0}, s[{SW}:{SW+3}], 0 offen sc1", ("it", kind)),
               vm(f"buffer_load_dwordx4 v[{Y+4}:{Y+7}], v{t1}, s[{SW}:{SW+3}], 0 offen sc1", ("it", kind))]
        if split:
            LD += ldy
            return L, LD
        return L + ldy

    def item_finish(self, kind, R):
        X, Y, OA = R["X"], R["Y"], R["OA"]
        t0, t1, t2, t3 = R["t"]
        pk, pb = R["P"]
        L = [wvm(("it", kind)),
             o(f"s_cmp_eq_u32 s{R['rev']}, 0"), o(f"s_cbranch_scc1 L_rv{kind}"),
             o(f"v_swap_b32 v{Y}, v{Y+3}"), o(f"v_swap_b32 v{Y+1}, v{Y+2}"), o(f"v_swap_b32 v{Y+4}, v{Y+7}"), o(f"v_swap_b32 v{Y+5}, v{Y+6}"),
             raw(f"L_rv{kind}:"),
             o(f"s_mov_b32 s{T0}, 0x3f80"), o(f"s_mov_b32 s{T1}, 0x3f800000")]
        for i in range(4):
            L += [o(f"v_dot2_f32_bf16 v{Y+2*i}, v{X+i}, s{T0}, v{Y+2*i}"), o(f"v_dot2_f32_bf16 v{Y+2*i+1}, v{X+i}, s{T1}, v{Y+2*i+1}")]
        for p in range(8):
            for i in range(4):
                r = pb + 4*p + i
                if pk == "a":
                    L += [o(f"v_accvgpr_read_b32 v{t0 + (i & 1)}, a{r}")]
                    src = t0 + (i & 1)
                else: src = r
                L += [o(f"v_dot2_f32_bf16 v{Y+2*i}, v{src}, s{T0}, v{Y+2*i}"), o(f"v_dot2_f32_bf16 v{Y+2*i+1}, v{src}, s{T1}, v{Y+2*i+1}")]
        L += [o("s_nop 2")]
        for i in range(4):
            L += [o(f"v_cvt_pk_bf16_f32 v{X+i}, v{Y+2*i}, v{Y+2*i+1}")]
        L += [o("s_nop 1"), o(f"v_permlane32_swap_b32 v{X}, v{X+2}"), o(f"v_permlane32_swap_b32 v{X+1}, v{X+3}"),
              vm(f"buffer_store_dwordx4 v[{X}:{X+3}], v{OA}, s[{SR_OUT}:{SR_OUT+3}], 0 offen{self.osfx}", "out")]
        return L

    def group_poll(self, label, val, vdst, voff):
        ld = f"buffer_load_dword v{vdst}, v{voff}, s[{SR_WS}:{SR_WS+3}], s{T6} offen sc1"
        chk = [o(f"v_cmp_le_u32 vcc, {val}, v{vdst}"), o("s_nop 0"), o(f"s_and_b32 s{T7}, vcc_lo, 0xff"), o(f"s_cmp_eq_u32 s{T7}, 0xff")]
        return ld, chk

    def items_cfg(self):
        self.RA = dict(P=("v", 80), X=112, Y=116, OA=124, PV=125, t=[126, 127, 16, 17], rev=24, so=16)
        self.RB = dict(P=("a", 0), X=18, Y=22, OA=30, PV=31, t=[48, 49, 50, 51], rev=25, so=16)
        self.RC = dict(P=("v", 176), X=208, Y=212, OA=220, PV=221, t=[222, 223, 224, 225], rev=26, so=16)
        self.RD = dict(P=("v", 128), X=160, Y=164, OA=172, PV=173, t=[174, 175, 226, 227], rev=27, so=84)

    def tail(self):
        L = list(self.late_loads)
        O = 128
        ld, chk = self.group_poll("L_f5", 5, 241, 242)
        L += [vm(ld, "fp5")]
        L += self.stamp("pub")
        RD = self.RDx; Ld = self.D_ld
        L += [wvm("op"), wvm("ox"), o(f"s_mov_b32 s{T0}, 0x3f80"), o(f"s_mov_b32 s{T1}, 0x3f800000"),
              o("s_cmp_eq_u32 s24, 0"), o("s_cbranch_scc1 L_oyd")]
        for g_ in range(4):
            for k in range(4): L += [o(f"v_add_f32 v{O+4*g_+k}, v{O+4*g_+k}, v{48 + 4*(3-g_) + 3 - k}")]
        L += [o("s_branch L_oyj"), raw("L_oyd:")]
        for r in range(16): L += [o(f"v_add_f32 v{O+r}, v{O+r}, v{48+r}")]
        L += [raw("L_oyj:")]
        for i in range(8):
            L += [o(f"v_dot2_f32_bf16 v{O+2*i}, v{24+i}, s{T0}, v{O+2*i}"), o(f"v_dot2_f32_bf16 v{O+2*i+1}, v{24+i}, s{T1}, v{O+2*i+1}")]
        for p in range(6):
            for i in range(8):
                L += [o(f"v_dot2_f32_bf16 v{O+2*i}, v{80+8*p+i}, s{T0}, v{O+2*i}"), o(f"v_dot2_f32_bf16 v{O+2*i+1}, v{80+8*p+i}, s{T1}, v{O+2*i+1}")]
        L += self.stamp("early")
        L += [wvm("fp5")] + chk + [o("s_cbranch_scc1 L_f5_ok")] + self.spin("L_f5", [o(ld)], chk) + [reset()]
        L += self.stamp("pok")
        L += [vm(f"buffer_load_dwordx4 v[16:19], v{V_L16}, s[{SR_WS}:{SR_WS+3}], s22 offen sc1", "sib"),
              vm(f"buffer_load_dwordx4 v[20:23], v{V_L16}, s[{SR_WS}:{SR_WS+3}], s22 offen offset:1024 sc1", "sib")]
        L += Ld
        L += [wvm("sib")]
        for i in range(8):
            L += [o(f"v_dot2_f32_bf16 v{O+2*i}, v{16+i}, s{T0}, v{O+2*i}"), o(f"v_dot2_f32_bf16 v{O+2*i+1}, v{16+i}, s{T1}, v{O+2*i+1}")]
        L += [o("s_nop 2")]
        for i in range(8): L += [o(f"v_cvt_pk_bf16_f32 v{24+i}, v{O+2*i}, v{O+2*i+1}")]
        L += [o("s_nop 1"), o("v_permlane32_swap_b32 v24, v26"), o("v_permlane32_swap_b32 v25, v27"),
              o("v_permlane32_swap_b32 v28, v30"), o("v_permlane32_swap_b32 v29, v31"),
              vm(f"buffer_store_dwordx4 v[24:27], v238, s[{SR_OUT}:{SR_OUT+3}], 0 offen{self.osfx}", "out"),
              vm(f"buffer_store_dwordx4 v[28:31], v238, s[{SR_OUT}:{SR_OUT+3}], 0 offen offset:32{self.osfx}", "out")]
        L += self.stamp("ownfin")
        L += self.item_finish("D", RD)
        return L

    def kernel(self, name):
        L = [raw(f".globl {name}"), raw(".p2align 8"), raw(f".type {name},@function"), raw(f"{name}:")]
        L += self.prologue()
        L += self.stamp("proend")
        L += self.ln_stats()
        L += self.stamp("stats")
        L += [o("s_barrier")]
        L += [o(f"s_mov_b32 s{S_A}, s{S_J}"), o(f"s_add_u32 s{S_B}, s{S_J}, 16")]
        L += self.h_dma(S_A, 2, "wz1")
        L += [o(f"s_cmp_lt_u32 s{S_J}, 2"), o("s_cbranch_scc0 L_noz2a")]
        L += [I(i.t, "o") if i.k == "vm" else i for i in self.h_dma(S_B, 3, "wz2")]
        L += [raw("L_noz2a:")]
        hd = []
        for sig in range(2):
            for grp in self.dma_p1(sig, sig): hd.append(grp)
        hd.append([o(f"s_lshl_b32 s{S_PF}, s{S_LID}, 2"), o(f"s_add_u32 s{S_PF}, s{S_PF}, s{S_W}"), o(f"s_mul_i32 s{S_PF}, s{S_PF}, 41"),
                   o(f"v_add_u32 v240, s{S_PF}, v0"), o("v_lshlrev_b32 v240, 7, v240"), o("v_cmp_gt_u32 vcc, 41, v0"), o("s_nop 1"),
                   o(f"v_cndmask_b32 v240, v{V_ONE0}, v240, vcc"),
                   vm(f"buffer_load_dword v{V_PF}, v240, s[{SR_WG}:{SR_WG+3}], 0 offen", "pf"),
                   vm(f"buffer_load_dword v{V_PF}, v240, s[{SR_WU}:{SR_WU+3}], 0 offen", "pf")])
        lf = self.ln_finish()
        per = -(-len(lf) // 18)
        k = 0
        for n, grp in enumerate(hd):
            L += grp
            if n < 18: L += lf[k:k + per]; k += per
        L += lf[k:]
        L += [o(f"v_subrev_u32 v{V_XA+i}, s{S_LX}, v{V_XA+i}") for i in range(4)]
        L += [o(f"v_add_u32 v{V_XA+i}, {2*SLOT}, v{V_XA+i}") for i in range(4)]
        L += self.stamp("lnfin")
        L += self.seg_norm_h()
        L += self.stamp("normH")
        L += self.h2_block()
        L += self.tr_bases()
        L += srd(SR_HZ, 36, 256)
        L += self.main()
        L += self.stamp("p2end")
        L += self.tail()
        L += self.stamp("end")
        if self.diag:
            L += [o("s_waitcnt vmcnt(0)"),
                  o(f"s_lshl_b32 s{T0}, s{S_LID}, 2"), o(f"s_add_u32 s{T0}, s{T0}, s{S_W}"), o(f"s_lshl_b32 s{T0}, s{T0}, 8"),
                  o(f"s_add_u32 s{T0}, s{T0}, {WS_STAMP}"), o("v_lshlrev_b32 v240, 2, v0"),
                  o(f"buffer_store_dword v{V_STAMP}, v240, s[{SR_WS}:{SR_WS+3}], s{T0} offen")]
        L += [raw("L_end:"), o("s_endpgm")]
        return finalize(flat(L))

NAME = "parallel_sum__spectral_fnet__geglu_ffn__prompt_kernel"
def build(diag=False, opts=None):
    hdr = open("parallel_sum__spectral_fnet__geglu_ffn__prompt.s.ref").read().split("\n")
    top = [l for l in hdr if l.startswith(";") and "@launch" not in l and "Override" not in l and "grid=ceil" not in l]
    g = Gen(diag, opts)
    lines = g.kernel(NAME)
    errs = hazard_check(lines)
    for e in errs[:30]: print("HAZARD:", e)
    txt = "\n".join(top) + "\n"
    txt += "; @launch grid=(256,1,1) block=(256,1,1) lds=163840\n"
    txt += '.amdgcn_target "amdgcn-amd-amdhsa--gfx950"\n.text\n'
    txt += "\n".join(lines) + "\n" + kernel_footer(NAME)
    return txt, g.names

if __name__ == "__main__":
    import sys, json
    opts = {}
    for a in sys.argv[2:]:
        if "=" in a:
            k, v = a.split("="); opts[k] = int(v)
    txt, names = build("diag" in sys.argv, opts)
    open(sys.argv[1], "w").write(txt)
    json.dump(names, open(sys.argv[1] + ".names", "w"))
```

```python
from fw import *
from sched import *
import math, struct

S, D, F = 2048, 576, 4608
SLOT = 36864
SPARE = 4*SLOT
PART_BYTES = S * D * 2
WS_PART = 0
WS_HX = 20 << 20
WS_ZF = 40 << 20
ZF_STRIDE = 66 * 1024
WS_YH = 42 << 20
YP = 320 * 4
WS_FLAG = 46 << 20
WS_STAMP = 48 << 20
OOB = 0x40000000
C0 = -2.0 * math.sqrt(2.0 / math.pi) * math.log2(math.e)
C1 = C0 * 0.044715
def f2u(f): return struct.unpack("<I", struct.pack("<f", f))[0]

V_L16 = 1
V_RA, V_RB = 2, 6
V_DM = 10
V_C0, V_C1 = 14, 15
GA = [[16, 32], [48, 64]]
UA = [[80, 96], [112, 128]]
HF = 144
TMP = 216
V_HACC = 232
V_XA = 248
V_R8 = 248
V_PF = 252
V_ONE0 = 253
V_D2 = 254
V_STAMP = 255
RX = 80
V_PERM = 224
V_NEGMU = 64
V_ONE = 231
V_SD = 232
V_SA = 236
V_SX = 240
V_ZP = 241
V_ZQ = 244
V_YC = [247, 250, 251]
V_LB = 232
AX = 0
AF = 144
NAF = 8
AZ = 176
SR_CS, SR_SS, SR_HZ, SR_X, SR_WG, SR_WU, SR_WD, SR_WS, SR_OUT = 4, 8, 12, 40, 44, 48, 52, 56, 60
S_W, S_MT, S_J = 64, 65, 66
S_LX, S_L9 = 67, 68
S_UB = 69
S_WD = 74
S_PB = 75
T0, T1, T2, T3, T4, T5, T6, T7 = 76, 77, 78, 79, 80, 81, 82, 83
S_N0 = 84
S_N1 = 16
S_CU = 25
S_Q0, S_Q8 = 30, 31
S_HB = 32
S_LID = 33
S_ST0, S_ST1 = 34, 35
S_CNT = 93
S_A, S_B, S_C = 94, 95, 96
S_TAU, S_ZB = 38, 39
S_PF = 97
S_XC = 0
S_QU = [30, 36, 37]
S_QN = 39
S_TO = 32
S_GA = 28
S_FL = 1
S_MODE = 2
S_D0 = 3

def srd(dst, ptr, nbytes):
    return [o(f"s_mov_b32 s{dst}, s{ptr}"), o(f"s_and_b32 s{dst+1}, s{ptr+1}, 0xffff"),
            o(f"s_mov_b32 s{dst+2}, {nbytes}"), o(f"s_mov_b32 s{dst+3}, 0x00020000")]
def mf32(acc, A, B, C): return o(f"v_mfma_f32_32x32x16_bf16 {acc}, {A}, {B}, {C}")
def mf16(acc, A, B, C): return o(f"v_mfma_f32_16x16x32_bf16 {acc}, {A}, {B}, {C}")

class DS2(I):
    pass

class Gen:
    def dload(self, texts, tag, pair=False):
        out = self.dstore(texts, tag, pair)
        if hasattr(out[0], "cost"): out[0].cost = 3 + len(texts)
        return out
    def dstore(self, texts, tag, pair=False):
        self.lab = getattr(self, "lab", 0) + 1
        n = self.lab
        if self.opts.get("forcemode") == 1 or not self.opts.get("local", 0) or (self.opts.get("cfg", 0) == 0 and not pair):
            return [vm(t + " sc1", tag) for t in texts]
        body = f"s_bitcmp1_b32 s{S_MODE}, 0\n    s_cbranch_scc1 L_dl{n}\n"
        body += "".join(f"    {t} sc1\n" for t in texts)
        body += f"    s_branch L_dj{n}\nL_dl{n}:\n"
        body += "".join(f"    {t}\n" for t in texts)
        body += f"L_dj{n}:"
        out = [I("buffer_store_multi " + body, "vm", tag)]
        out[0].t = body
        out[0].cost = 3 + 5*len(texts)
        for _ in texts[1:]:
            x = I("; (counted above)", "vm", tag); x.cost = 0; out.append(x)
        return out
    def __init__(self, diag=False, opts=None):
        self.osfx = ' sc1' if (opts or {}).get('osc1') else ''
        self.diag = diag; self.opts = opts or {}; self.nst = 0; self.names = []; self.pid = 0
    def stamp(self, name):
        if not self.diag: return []
        i = self.nst; self.nst += 1; self.names.append(name)
        return [o("s_memtime s[98:99]"), o("s_memrealtime s[100:101]"), o("s_waitcnt lgkmcnt(0)"),
                o(f"v_writelane_b32 v{V_STAMP}, s98, {i}"), o(f"v_writelane_b32 v{V_STAMP}, s100, {i+32}")]

    def paced(self, M, frags, setup, dist):
        N = len(M)
        sl = Slots(N)
        for g, m in enumerate(M):
            if m["op"] == 16: sl.budget[g] = 3
        head = []
        pid = self.pid; self.pid += 1
        def put(t, ins):
            if t < 0: head.extend(ins if isinstance(ins, list) else [ins])
            else: sl.put(t, ins)
        issue = {}
        for f, fr in enumerate(frags):
            t = fr["use"] - fr.get("dist", dist)
            issue[f] = t
            put(t, fr.get("pre", []))
            put(t, [ds(r, ("af", pid, f)) for r in fr["reads"]])
        waited = -1
        n0 = M[0]["need"]
        if n0 >= 0:
            tgt = max(n0, M[1]["need"])
            head.append(wlg(("af", pid, tgt))); waited = tgt
        for g in range(N - 1):
            nx = M[g+1]["need"]
            if nx > waited:
                tgt = nx
                if g + 2 < N and M[g+2]["need"] > nx and issue[M[g+2]["need"]] <= g - 3 and M[g+1]["op"] == 32: tgt = M[g+2]["need"]
                put(g, [wlg(("af", pid, tgt))]); waited = tgt
        setup(sl, head)
        L = list(head)
        for g, m in enumerate(M):
            L += m.get("before", [])
            c = "0" if m["first"] else m.get("C", m["acc"])
            if m.get("C") and m["first"]: c = m["C"]
            L.append((mf32 if m["op"] == 32 else mf16)(m["acc"], m["A"], m["B"], c))
            L += sl.emit(g)
        if self.opts.get("verbose"):
            over = [(g, sl.used[g], sl.budget[g]) for g in range(N) if sl.used[g] > sl.budget[g]]
            print(f"paced {pid}: N={N} over budget: {len(over)} total excess {sum(u-b for _,u,b in over)} avg used {sum(sl.used)/N:.2f}")
            if self.opts.get("verbose") > 1:
                for a in range(0, N, 36):
                    ex = sum(max(0, sl.used[g]-sl.budget[g]) for g in range(a, min(a+36, N)))
                    print(a, "used", sum(sl.used[a:a+36]), "budget", sum(sl.budget[a:a+36]), "excess", ex)
        return L

    def prologue(self):
        L = []
        if self.diag: L += [o(f"v_mov_b32 v{V_STAMP}, 0")]
        L += self.stamp("start")
        L += [o("s_load_dwordx16 s[16:31], s[0:1], 0"), o("s_load_dwordx8 s[32:39], s[0:1], 64"),
              o("s_cmp_ge_u32 s2, 256"), o("s_cbranch_scc1 L_end")]
        L += [o("v_lshrrev_b32 v2, 6, v0"), o("v_and_b32 v0, 63, v0"), o("s_nop 0"),
              o(f"v_readfirstlane_b32 s{S_W}, v2"),
              ] + self.idmap() + [
              o(f"s_mul_i32 s{S_LX}, s{S_W}, {SLOT}"), o(f"s_mul_i32 s{S_L9}, s{S_W}, 9216"),
              o(f"v_lshlrev_b32 v{V_L16}, 4, v0")]
        L += [o("v_lshrrev_b32 v2, 3, v0"), o("v_and_b32 v3, 7, v0"), o("v_lshrrev_b32 v4, 1, v2"),
              o("v_xor_b32 v3, v3, v4"), o("v_lshlrev_b32 v3, 4, v3"), o("v_xor_b32 v4, 64, v3"),
              o(f"s_lshl_b32 s{T0}, s{S_MT}, 6"), o(f"s_lshl_b32 s{T1}, s{S_W}, 4"), o(f"s_add_u32 s{T0}, s{T0}, s{T1}"),
              o(f"v_add_u32 v5, s{T0}, v2"), o("v_add_u32 v6, 8, v5"),
              o("v_sub_u32 v7, 2048, v5"), o("v_sub_u32 v8, 2048, v6"),
              o("v_cmp_eq_u32 vcc, 0, v5"), o("v_mov_b32 v9, 1024"), o("s_nop 0"),
              o("v_cndmask_b32 v7, v7, v9, vcc"),
              o(f"s_movk_i32 s{T1}, 1152"),
              o(f"v_mad_u32_u24 v240, v5, s{T1}, v3"), o(f"v_mad_u32_u24 v241, v6, s{T1}, v4"),
              o(f"v_mad_u32_u24 v242, v7, s{T1}, v3"), o(f"v_mad_u32_u24 v243, v8, s{T1}, v4")]
        if self.opts.get("xpf", 1) == 2:
            L += [o(f"s_lshl_b32 s{T0}, s{S_MT}, 4"), o(f"s_add_u32 s{T0}, s{T0}, s{S_J}"), o(f"s_lshl_b32 s{T0}, s{T0}, 2"), o(f"s_add_u32 s{T0}, s{T0}, s{S_W}"),
                  o(f"s_mul_i32 s{T0}, s{T0}, 18"), o(f"v_add_u32 v9, s{T0}, v0"), o("v_lshlrev_b32 v9, 7, v9"),
                  o("v_cmp_gt_u32 vcc, 18, v0"), o(f"v_mov_b32 v8, {OOB:#x}"), o("s_nop 0"), o("v_cndmask_b32 v9, v8, v9, vcc")]
        elif self.opts.get("xpf", 1):
            nsh = 16 if self.opts.get("cfg", 0) == 1 else 4
            per = 1152 // nsh // 4
            assert per <= 64 or True
            jj = f"s{S_J}"
            L += [o(f"s_and_b32 s{T0}, s{S_J}, {nsh-1}"), o(f"s_lshl_b32 s{T0}, s{T0}, 2"), o(f"s_add_u32 s{T0}, s{T0}, s{S_W}"), o(f"s_mul_i32 s{T0}, s{T0}, {per}"),
                  o(f"v_add_u32 v9, s{T0}, v0"),
                  o(f"s_mul_i32 s{T0}, s{S_MT}, {64*1152}"),
                  o(f"s_sub_u32 s{T1}, {(2048-63)*1152 - 576*128}, s{T0}"),
                  o("v_lshlrev_b32 v8, 7, v9"), o(f"v_add_u32 v7, s{T1}, v8"), o(f"v_add_u32 v8, s{T0}, v8"),
                  o("v_cmp_gt_u32 vcc, 0x240, v9"), o("s_nop 1"), o("v_cndmask_b32 v9, v7, v8, vcc"),
                  o(f"v_cmp_gt_u32 vcc, {min(per,64)}, v0"), o(f"v_mov_b32 v8, {OOB:#x}"), o("s_nop 0"), o("v_cndmask_b32 v9, v8, v9, vcc")]
        L += [o("s_waitcnt lgkmcnt(0)")]
        L += self.stamp("kernarg")
        L += srd(SR_X, 16, S*D*2)
        if self.opts.get("xpf", 1):
            L += [vm(f"buffer_load_dword v{V_PF}, v9, s[{SR_X}:{SR_X+3}], 0 offen", "pf")]
        HEAD = L
        P = []
        P += srd(SR_WG, 28, D*F*2) + srd(SR_WU, 30, D*F*2) + srd(SR_WD, 32, F*D*2) + srd(SR_WS, 38, 256 << 20) + srd(SR_OUT, 34, S*D*2)
        P += srd(SR_CS, 18, S*S*2) + srd(SR_SS, 20, S*S*2)
        P += [o(f"s_lshl_b32 s{T0}, s{S_W}, 6"), o(f"v_add_u32 v2, s{T0}, v0"), o("v_cmp_eq_u32 vcc, 0, v2"),
              o(f"v_mov_b32 v3, {OOB:#x}"), o("v_mov_b32 v4, 0"), o(f"v_cndmask_b32 v{V_ONE0}, v3, v4, vcc")]
        P += [o(f"s_lshl_b32 s{S_LID}, s{S_MT}, 4"), o(f"s_add_u32 s{S_LID}, s{S_LID}, s{S_J}")]
        P += [o(f"s_and_b32 s{T2}, s{S_J}, 1"), o(f"s_mul_i32 s{T0}, s{S_J}, 288"), o(f"s_mul_i32 s{T1}, s{T2}, 224"),
              o(f"s_add_u32 s{T1}, s{T0}, s{T1}"),
              G([o(f"s_cmp_eq_u32 s{T2}, 0"), o(f"s_cselect_b32 s{T3}, 64, -64"), o(f"s_cselect_b32 s{T4}, 256, 0")]),
              o(f"s_add_u32 s{T4}, s{T4}, s{T0}")]
        for u in range(4):
            P += [o(f"s_mul_i32 s{T5}, s{T3}, {u}"), o(f"s_add_u32 s{T5}, s{T5}, s{T1}"),
                  o(f"s_lshl_b32 s{S_UB+u}, s{T5}, 1"),
                  o(f"s_mul_i32 s{S_N0+2*u}, s{T5}, 1152"), o(f"s_add_u32 s{S_N0+2*u+1}, s{S_N0+2*u}, {32*1152}")]
        P += [o(f"s_lshl_b32 s{S_UB+4}, s{T4}, 1"), o(f"s_mul_i32 s{S_N0+8}, s{T4}, 1152")]
        P += [o(f"s_mov_b32 s{S_A}, s{S_UB}")]
        P += [o(f"s_mul_i32 s{T5}, s{S_W}, {72*9216}")]
        for u in range(4): P += [o(f"s_add_u32 s{S_UB+u}, s{S_UB+u}, s{T5}")]
        P += [o(f"s_lshl_b32 s{T5}, s{T5}, 1"), o(f"s_add_u32 s{S_UB+4}, s{S_UB+4}, s{T5}")]
        P += [o(f"s_lshr_b32 s{T0}, s{S_J}, 1"), o(f"s_mul_i32 s{S_PB}, s{T0}, {PART_BYTES}"),
              o(f"s_lshl_b32 s{T0}, s{S_MT}, 2"), o(f"s_add_u32 s{T0}, s{T0}, s{S_W}"),
              o(f"s_mul_i32 s{T0}, s{T0}, {18*2048}"), o(f"s_add_u32 s{S_PB}, s{S_PB}, s{T0}"),
              o(f"s_lshl_b32 s{T0}, s{S_LID}, 2"), o(f"s_add_u32 s{T0}, s{T0}, s{S_W}"),
              o(f"s_mul_i32 s{S_HB}, s{T0}, {18*1024}"), o(f"s_add_u32 s{S_HB}, s{S_HB}, {WS_HX}")]
        P += [o("v_lshrrev_b32 v2, 3, v0"), o("v_and_b32 v3, 7, v0"),
              o("v_bfe_u32 v4, v0, 4, 1"), o("v_lshlrev_b32 v4, 2, v4"), o("v_xor_b32 v3, v3, v4"), o("v_lshlrev_b32 v3, 4, v3"),
              o(f"v_mul_u32_u24 v2, 9216, v2"), o(f"v_add_u32 v{V_DM}, v2, v3")]
        for t in range(1, 4): P += [o(f"v_add_u32 v{V_DM+t}, {t*(8*9216-1024)}, v{V_DM}")]
        P += [o("v_and_b32 v2, 31, v0"), o("v_bfe_u32 v3, v0, 1, 3"), o("v_lshrrev_b32 v4, 5, v0"), o("v_xor_b32 v3, v3, v4"),
              o("v_lshlrev_b32 v3, 4, v3"), o("v_lshlrev_b32 v2, 7, v2"), o("v_add_u32 v2, v2, v3"),
              o(f"v_add_u32 v{V_XA}, s{S_LX}, v2"),
              o(f"v_xor_b32 v{V_XA+1}, 32, v{V_XA}"), o(f"v_xor_b32 v{V_XA+2}, 64, v{V_XA}"), o(f"v_xor_b32 v{V_XA+3}, 96, v{V_XA}")]
        P += [o("v_and_b32 v2, 15, v0"),
              o("v_and_b32 v3, 3, v2"), o("v_bfe_u32 v4, v2, 2, 1"), o("v_bfe_u32 v5, v2, 3, 1"),
              o("v_lshlrev_b32 v4, 3, v4"), o("v_lshlrev_b32 v5, 2, v5"), o("v_or_b32 v3, v3, v4"), o("v_or_b32 v3, v3, v5"),
              o("v_lshrrev_b32 v4, 3, v3"), o("v_lshrrev_b32 v5, 5, v0"),
              o("v_and_b32 v6, 1, v3"), o("v_lshlrev_b32 v6, 4, v6"), o("v_mov_b32 v7, 0x3f80"), o("v_lshlrev_b32 v7, v6, v7"), o("v_mov_b32 v8, 0"),
              G([o("v_cmp_eq_u32 vcc, v4, v5"), o("v_nop"), o("v_nop"), o("v_cndmask_b32 v7, v8, v7, vcc")]),
              o("v_bfe_u32 v6, v3, 1, 2"), o("v_bfe_u32 v9, v0, 4, 1")]
        for d in range(4):
            P += [G([o(f"v_cmp_eq_u32 vcc, {d}, v6"), o("v_nop"), o("v_nop"), o(f"v_cndmask_b32 v{V_PERM+d}, v8, v7, vcc")])]
        P += [G([o("v_cmp_eq_u32 vcc, 1, v9"), o("v_nop"), o("v_nop")] + [o(f"v_cndmask_b32 v{V_PERM+4+d}, v8, v{V_PERM+d}, vcc") for d in range(4)] +
                [o(f"v_cndmask_b32 v{V_PERM+d}, v{V_PERM+d}, v8, vcc") for d in range(4)])]
        L = []
        L += [o("v_mov_b32 v4, 0"), o(f"s_lshl_b32 s{T0}, s{S_LID}, 7"), o(f"s_add_u32 s{T0}, s{T0}, {WS_FLAG}"),
              vm(f"buffer_store_dword v4, v{V_ONE0}, s[{SR_WS}:{SR_WS+3}], s{T0} offen sc1", "flinit")]
        L += self.h_srd(S_J)
        if self.opts.get("pf", 1):
            L += [o(f"s_and_b32 s{T0}, s{S_MT}, 7"), o(f"s_mul_i32 s{T0}, s{T0}, 36"), o(f"s_mul_i32 s{T1}, s{S_W}, 9"), o(f"s_add_u32 s{T0}, s{T0}, s{T1}"),
                  o(f"v_add_u32 v2, s{T0}, v0"), o(f"v_mov_b32 v4, {OOB:#x}"),
                  o(f"s_mov_b32 s{T1}, {(2**32+8)//9}"), o(f"v_mul_hi_u32 v5, v2, s{T1}"), o("v_mul_u32_u24 v6, 9, v5"), o("v_sub_u32 v6, v2, v6"),
                  o(f"v_add_u32 v5, s{T7}, v5"), o(f"v_mul_u32_u24 v5, 1152, v5"), o("v_lshlrev_b32 v6, 7, v6"), o("v_add_u32 v5, v5, v6"),
                  o(f"v_mul_u32_u24 v3, 9216, v2"),
                  o("v_cmp_gt_u32 vcc, 9, v0"), o("s_nop 1"), o("v_cndmask_b32 v3, v4, v3, vcc"), o("v_cndmask_b32 v5, v4, v5, vcc"),
                  vm(f"buffer_load_dword v{V_PF}, v5, s[{SR_HZ}:{SR_HZ+3}], 0 offen", "pf")]
            L += [o(f"s_cmp_lt_u32 s{S_J}, 2"), o("s_cbranch_scc0 L_nopf2"),
                  o(f"s_mov_b32 s{T0}, {7*32*1152}"),
                  o(f"v_add_u32 v6, s{T0}, v5"), o("v_cmp_gt_u32 vcc, 9, v0"), o("s_and_saveexec_b64 s[82:83], vcc"),
                  o(f"global_load_dword v{V_PF}, v6, s[24:25]"),
                  o("s_mov_b64 exec, s[82:83]"), raw("L_nopf2:")]
            for sig in range(self.opts.get("npf", 4)):
                mat, kh = (sig // 2) % 2, sig % 2
                assert sig < 4
                rs = SR_WG if mat == 0 else SR_WU
                L += [o(f"s_add_u32 s{T6}, s{S_A}, {kh*288*9216}"),
                      vm(f"buffer_load_dword v{V_PF}, v3, s[{rs}:{rs+3}], s{T6} offen", "pf")]
            L += [o("s_getpc_b64 s[82:83]"), raw("L_pc:"),
                  o(f"s_lshr_b32 s{T0}, s2, 3"), o(f"s_lshl_b32 s{T0}, s{T0}, 2"), o(f"s_add_u32 s{T0}, s{T0}, s{S_W}"),
                  o(f"s_lshl_b32 s{T0}, s{T0}, 9"),
                  o("v_and_b32 v2, 3, v0"), o("v_lshlrev_b32 v2, 7, v2"), o(f"v_add_u32 v2, s{T0}, v2"),
                  vm(f"global_load_dword v{V_PF}, v2, s[82:83]", "pf")]
        post = L
        for n, i in enumerate(P):
            if not isinstance(i, G) and i.t.startswith("v_cmp_eq_u32 vcc, 0, v2"):
                P[n:n+4] = [G(P[n:n+4])]
                break
        out = HEAD
        flatx = []
        for kap in range(9):
            xl = self.x_line(kap)
            flatx += [xl[3*r:3*r+3] for r in range(4)]
        npre = len(P); pi = 0
        first = self.opts.get("xfree", 10)
        for n, g in enumerate(flatx):
            out += g
            if n >= first:
                take = -(-(npre - pi) // (36 - n))
                for it in P[pi:pi + take]: out += (list(it) if isinstance(it, G) else [it])
                pi += take
        out += self.stamp("xiss")
        L = out + post
        return L

    def tr_bases(self):
        L = []
        L += [o("v_lshrrev_b32 v16, 5, v0"), o("v_lshlrev_b32 v16, 10, v16"),
              o("v_bfe_u32 v17, v0, 2, 2"), o("v_lshlrev_b32 v17, 7, v17"), o("v_add_u32 v16, v16, v17"),
              o("v_bfe_u32 v17, v0, 3, 1"), o("v_lshlrev_b32 v17, 6, v17"), o("v_add_u32 v16, v16, v17"),
              o("v_bfe_u32 v17, v0, 4, 1"), o("v_lshlrev_b32 v17, 5, v17"), o("v_add_u32 v16, v16, v17"),
              o("v_and_b32 v17, 3, v0"), o("v_lshlrev_b32 v17, 3, v17"), o(f"v_add_u32 v{V_RA}, v16, v17")]
        for s in range(1, 4): L += [o(f"v_add_u32 v{V_RA+s}, {s*SLOT}, v{V_RA}")]
        for s in range(4): L += [o(f"v_xor_b32 v{V_RB+s}, 64, v{V_RA+s}")]
        return L

    def idmap(self):
        cfg = self.opts.get("cfg", 0)
        if cfg == 0:
            return [o(f"s_and_b32 s{S_J}, s2, 3"), o(f"s_lshl_b32 s{S_J}, s{S_J}, 2"),
              o(f"s_bfe_u32 s{T0}, s2, 0x20003"), o(f"s_or_b32 s{S_J}, s{S_J}, s{T0}"),
              o(f"s_bfe_u32 s{S_MT}, s2, 0x10002"), o(f"s_lshl_b32 s{S_MT}, s{S_MT}, 3"),
              o(f"s_lshr_b32 s{T0}, s2, 5"), o(f"s_or_b32 s{S_MT}, s{S_MT}, s{T0}")]
        if cfg == 1:
            return [o(f"s_and_b32 s{S_MT}, s2, 7"), o(f"s_lshl_b32 s{S_MT}, s{S_MT}, 1"), o(f"s_bfe_u32 s{T0}, s2, 0x10003"),
                    o(f"s_or_b32 s{S_MT}, s{S_MT}, s{T0}"), o(f"s_lshr_b32 s{S_J}, s2, 4")]
        if cfg == 2:
            return [o(f"s_and_b32 s{S_J}, s2, 1"), o(f"s_lshl_b32 s{S_J}, s{S_J}, 3"),
              o(f"s_bfe_u32 s{T0}, s2, 0x30003"), o(f"s_or_b32 s{S_J}, s{S_J}, s{T0}"),
              o(f"s_bfe_u32 s{S_MT}, s2, 0x20001"), o(f"s_lshl_b32 s{S_MT}, s{S_MT}, 2"),
              o(f"s_lshr_b32 s{T0}, s2, 6"), o(f"s_or_b32 s{S_MT}, s{S_MT}, s{T0}")]

    def h_srd(self, zreg):
        return [o(f"s_cmp_lt_u32 s{zreg}, 9"),
                o(f"s_cselect_b32 s{SR_HZ}, s22, s24"), o(f"s_cselect_b32 s{SR_HZ+1}, s23, s25"), o(f"s_cselect_b32 s{T7}, 0, 9"),
                o(f"s_and_b32 s{SR_HZ+1}, s{SR_HZ+1}, 0xffff"), o(f"s_mov_b32 s{SR_HZ+2}, {D*D*2}"), o(f"s_mov_b32 s{SR_HZ+3}, 0x00020000"),
                o(f"s_sub_u32 s{T7}, s{zreg}, s{T7}"), o(f"s_lshl_b32 s{T7}, s{T7}, 5")]

    def h_dma(self, zreg, slot, tag):
        L = self.h_srd(zreg)
        L += [o(f"s_lshl_b32 s{T1}, s{S_W}, 3"), o(f"s_add_u32 s{T0}, s{T7}, s{T1}"),
             o("v_lshrrev_b32 v240, 3, v0"), o("v_and_b32 v241, 7, v0"), o("v_lshrrev_b32 v242, 1, v240"), o("v_xor_b32 v241, v241, v242"),
             o(f"s_and_b32 s{T1}, s{S_W}, 1"), o(f"s_lshl_b32 s{T1}, s{T1}, 2"), o(f"v_xor_b32 v241, s{T1}, v241"),
             o("v_lshlrev_b32 v241, 4, v241"),
             o(f"v_add_u32 v240, s{T0}, v240"), o(f"s_movk_i32 s{T1}, 1152"), o(f"v_mad_u32_u24 v240, v240, s{T1}, v241"),
             o(f"s_lshl_b32 s{T1}, s{S_W}, 10"), o(f"s_add_u32 s{T1}, s{T1}, {slot*SLOT}")]
        for kap in range(9):
            L += [o(f"s_add_u32 m0, s{T1}, {4*kap*1024 - 128*kap}"), o("s_nop 0"),
                  vm(f"buffer_load_dwordx4 v240, s[{SR_HZ}:{SR_HZ+3}], 0 offen offset:{128*kap} lds", tag)]
        return L

    def h_special(self, zreg, slot, sfx):
        return [o(f"s_cmp_eq_u32 s{zreg}, 9"), o(f"s_cbranch_scc0 L_h_nosp{sfx}"), o(f"s_cmp_eq_u32 s{S_W}, 0"), o(f"s_cbranch_scc0 L_h_nosp{sfx}"),
                o("v_mov_b32 v16, 0xbf803f80"), o("v_mov_b32 v17, v16"), o("v_mov_b32 v18, v16"), o("v_mov_b32 v19, v16"),
                o("v_lshrrev_b32 v240, 3, v0"), o("v_lshlrev_b32 v240, 12, v240"), o("v_and_b32 v241, 7, v0"), o("v_lshlrev_b32 v241, 4, v241"),
                o("v_add_u32 v240, v240, v241"), o(f"v_add_u32 v240, {slot*SLOT}, v240"), o(f"v_add_u32 v241, {slot*SLOT}, v241"),
                o("ds_write_b128 v240, v[16:19]"), o("ds_write_b128 v241, v[16:19] offset:32768"),
                o("s_waitcnt lgkmcnt(0)"), raw(f"L_h_nosp{sfx}:")]

    def x_line(self, kap):
        L = []
        for rho in range(4):
            L += [o(f"s_add_u32 m0, s{S_LX}, {(4*kap+rho)*1024 - 128*kap}"), o("s_nop 0"),
                  vm(f"buffer_load_dwordx4 v{240+rho}, s[{SR_X}:{SR_X+3}], 0 offen offset:{128*kap} lds", ("x", kap))]
        return L
    def x_dma_variants(self):
        L = []
        for kap in range(self.opts.get("xpre", 3)): L += self.x_line(kap)
        return L
    def x_dma_variants_old(self):
        if not self.opts.get("rot", 0):
            L = []
            for kap in range(9):
                for rho in range(4):
                    L += [o(f"s_add_u32 m0, s{S_LX}, {(4*kap+rho)*1024 - 128*kap}"), o("s_nop 0"),
                          vm(f"buffer_load_dwordx4 v{240+rho}, s[{SR_X}:{SR_X+3}], 0 offen offset:{128*kap} lds", ("x", kap))]
            return L
        L = [o(f"s_and_b32 s{T0}, s{S_J}, 3")]
        for v in range(1, 4): L += [o(f"s_cmp_eq_u32 s{T0}, {v}"), o(f"s_cbranch_scc1 L_xd{v}")]
        for v in range(4):
            if v: L += [raw(f"L_xd{v}:")]
            for pos in range(9):
                kap = (self.K0[v] + pos) % 9
                for rho in range(4):
                    t = f"buffer_load_dwordx4 v{240+rho}, s[{SR_X}:{SR_X+3}], 0 offen offset:{128*kap} lds"
                    L += [o(f"s_add_u32 m0, s{S_LX}, {(4*kap+rho)*1024 - 128*kap}"), o("s_nop 0"),
                          (vm(t, ("x", pos)) if v == 3 else o(t))]
            if v < 3: L += [o("s_branch L_xdj")]
        L += [raw("L_xdj:")]
        return L
    K0 = [0, 2, 4, 7]

    def ln_stats(self):
        L = []
        SA = 16
        for i in range(8): L += [o(f"v_mov_b32 v{SA+i}, 0")]
        L += [o(f"s_mov_b32 s{T5}, 0x3f803f80")]
        def reads(kap):
            return [wvm(("x", kap))] + [ds(f"ds_read_b128 v[{RX+4*ks}:{RX+4*ks+3}], v{V_XA+(ks&3)} offset:{(ks//4)*4096}", ("xr", ks)) for ks in range(4*kap, 4*kap+4)]
        L += reads(0)
        for kap in range(9):
            if kap + 1 < 9: L += reads(kap + 1)
            L += self.stats_line(kap)
        return L
    def stats_line(self, kap):
        L = []
        SA = 16
        for ks in range(4*kap, 4*kap + 4):
            L += [wlg(("xr", ks))]
            for i in range(4):
                r = RX + 4*ks + i
                L += [o(f"v_dot2_f32_bf16 v{SA+i}, v{r}, s{T5}, v{SA+i}"),
                      o(f"v_dot2_f32_bf16 v{SA+4+i}, v{r}, v{r}, v{SA+4+i}")]
        return L

    def ln_stats_v(self, v, tracked, order):
        L = []
        SA = 16
        for i in range(8): L += [o(f"v_mov_b32 v{SA+i}, 0")]
        L += [o(f"s_mov_b32 s{T5}, 0x3f803f80")]
        def reads(pos):
            kap = order[pos]
            w = [wvmf(("x", pos))]
            return w + [o(f"ds_read_b128 v[{RX+4*ks}:{RX+4*ks+3}], v{V_XA+(ks&3)} offset:{(ks//4)*4096}") for ks in range(4*kap, 4*kap+4)]
        L += reads(0)
        L += self.stamp("x0")
        for pos in range(9):
            if pos == 4: L += self.stamp("x4")
            if pos + 1 < 9: L += reads(pos + 1)
            kap = order[pos]
            for n, ks in enumerate(range(4*kap, 4*kap + 4)):
                left = (3 - n) + (4 if pos + 1 < 9 else 0)
                L += [o(f"s_waitcnt lgkmcnt({left})")]
                for i in range(4):
                    r = RX + 4*ks + i
                    L += [o(f"v_dot2_f32_bf16 v{SA+i}, v{r}, s{T5}, v{SA+i}"),
                          o(f"v_dot2_f32_bf16 v{SA+4+i}, v{r}, v{r}, v{SA+4+i}")]
        return L

    def ln_stats_old(self):
        L = []
        SA = 16
        for i in range(8): L += [o(f"v_mov_b32 v{SA+i}, 0")]
        L += [o(f"s_mov_b32 s{T5}, 0x3f803f80")]
        def reads(kap):
            return [wvm(("x", kap))] + [ds(f"ds_read_b128 v[{RX+4*ks}:{RX+4*ks+3}], v{V_XA+(ks&3)} offset:{(ks//4)*4096}", ("xr", ks)) for ks in range(4*kap, 4*kap+4)]
        L += reads(0)
        for kap in range(9):
            if kap + 1 < 9: L += reads(kap + 1)
            for ks in range(4*kap, 4*kap + 4):
                L += [wlg(("xr", ks))]
                for i in range(4):
                    r = RX + 4*ks + i
                    L += [o(f"v_dot2_f32_bf16 v{SA+i}, v{r}, s{T5}, v{SA+i}"),
                          o(f"v_dot2_f32_bf16 v{SA+4+i}, v{r}, v{r}, v{SA+4+i}")]
        return L

    def ln_finish(self):
        SA = 16
        L = [o("s_nop 2"),
             o(f"v_add_f32 v{SA}, v{SA}, v{SA+1}"), o(f"v_add_f32 v{SA+2}, v{SA+2}, v{SA+3}"),
             o(f"v_add_f32 v{SA+4}, v{SA+4}, v{SA+5}"), o(f"v_add_f32 v{SA+6}, v{SA+6}, v{SA+7}"),
             o(f"v_add_f32 v24, v{SA}, v{SA+2}"), o(f"v_add_f32 v26, v{SA+4}, v{SA+6}"),
             o("v_mov_b32 v25, v24"), o("v_mov_b32 v27, v26"), o("s_nop 1"),
             o("v_permlane32_swap_b32 v24, v25"), o("v_permlane32_swap_b32 v26, v27"), o("s_nop 1"),
             o("v_add_f32 v24, v24, v25"), o("v_add_f32 v26, v26, v27"),
             o(f"s_mov_b32 s{T5}, {f2u(1.0/576):#x}"),
             o(f"v_mul_f32 v24, s{T5}, v24"), o(f"v_mul_f32 v26, s{T5}, v26"),
             o("v_fma_f32 v26, -v24, v24, v26"), o("v_max_f32 v26, 0, v26"),
             o("v_cvt_pk_bf16_f32 v24, v24, v26"),
             o("v_and_b32 v26, 0xffff0000, v24"), o("v_lshlrev_b32 v24, 16, v24"),
             o(f"v_xor_b32 v{V_NEGMU}, 0x80000000, v24")]
        for i in range(1, 16): L += [o(f"v_mov_b32 v{V_NEGMU+i}, v{V_NEGMU}")]
        L += [o(f"v_add_f32 v26, {f2u(1e-5):#x}, v26"),
              o("v_cvt_pk_bf16_f32 v26, v26, v26"), o("v_lshlrev_b32 v26, 16, v26"),
              o("v_sqrt_f32 v26, v26"), o("s_nop 0"),
              o("v_cvt_pk_bf16_f32 v26, v26, v26"), o("v_lshlrev_b32 v26, 16, v26"),
              o("v_rcp_f32 v27, v26"), o(f"v_mul_f32 v{V_D2}, v26, v26"),
              o(f"v_mul_f32 v{V_C0}, {f2u(C0):#x}, v27"), o("v_mul_f32 v28, v27, v27"), o("v_mul_f32 v28, v28, v27"),
              o(f"v_mul_f32 v{V_C1}, {f2u(C1):#x}, v28"),
              o("v_and_b32 v28, 31, v0"), o("v_lshlrev_b32 v28, 2, v28"), o(f"s_lshl_b32 s{T0}, s{S_W}, 12"), o(f"s_add_u32 s{T0}, s{T0}, {SPARE}"),
              o(f"v_add_u32 v28, s{T0}, v28"), ds("ds_write_b32 v28, v27", "rtab")]
        return L

    def seg_norm_h(self):
        M = []; frags = []
        def UBf(i):
            if i == 0: return 16
            if i % 2 == 0: return RX + 8*(i - 2)
            return (32, 48, 16)[((i - 1)//2) % 3]
        def nextuser(i):
            for k in range(i + 1, 18):
                if UBf(k) == UBf(i): return k
            return None
        posU = {}; posH = {}
        def U(i):
            b = UBf(i)
            M.append(dict(op=32, acc=f"v[{b}:{b+15}]", first=True, C=f"v[{V_NEGMU}:{V_NEGMU+15}]", A=f"v[{V_PERM}:{V_PERM+3}]", B=f"v[{RX+8*i}:{RX+8*i+3}]", need=-1))
            M.append(dict(op=32, acc=f"v[{b}:{b+15}]", first=False, A=f"v[{V_PERM+4}:{V_PERM+7}]", B=f"v[{RX+8*i+4}:{RX+8*i+7}]", need=-1))
            posU[i] = len(M) - 2
        def H(ks):
            f = len(frags); a = AF + 4*(f % NAF)
            frags.append(dict(reads=[f"ds_read_b128 a[{a}:{a+3}], v{V_XA+(ks&3)} offset:{(ks//4)*4096}"], use=len(M)))
            M.append(dict(op=32, acc=f"v[{V_HACC}:{V_HACC+15}]", first=(ks == 0), A=f"a[{AX+4*ks}:{AX+4*ks+3}]", B=f"a[{a}:{a+3}]", need=f))
            posH[ks] = len(M) - 1
        LAG = 5
        for i in range(18):
            U(i)
            if i >= LAG: H(2*(i-LAG)); H(2*(i-LAG)+1)
        for i in range(18 - LAG, 18): H(2*i); H(2*i+1)
        last = -1
        for m in M:
            if m["need"] < 0: m["need"] = last
            else: last = m["need"]
        g0 = frags[0]["use"] - 6
        M[g0].setdefault("before", []).extend([wvm("wz1")] + self.h_special(S_A, 2, "a") + [o("s_waitcnt lgkmcnt(0)"), o("s_barrier")])
        def setup(sl, head):
            sl.put(2, [o('s_nop 4')]); sl.put(3, [o('s_nop 4')])
            for i in range(18):
                b = UBf(i)
                ins = []
                for q in range(8):
                    t = 2 + 2*(i % 4) + (q % 2)
                    ins += [o(f"v_cvt_pk_bf16_f32 v{t}, v{b+2*q}, v{b+2*q+1}"), o(f"v_accvgpr_write_b32 a{AX+8*i+q}, v{t}")]
                start = posU[i] + 1 + 3
                end = min(posH[2*i] - 1, start + 11)
                if nextuser(i) is not None: end = min(end, posU[nextuser(i)])
                e = sl.stream(ins, start, end, spill=0)
                assert e < posH[2*i] - 0, (i, e, posH[2*i])
        return self.paced(M, frags, setup, 6)

    def h_epilogue(self, zreg, acc, rr, tb):
        L = []
        sg, f0 = tb + 8, tb + 9
        L += [G([o(f"s_cmp_lt_u32 s{zreg}, 9"), o(f"s_cselect_b32 s{S_ST0}, 1.0, -1.0")]), o(f"v_mov_b32 v{sg}, s{S_ST0}"),
              G([o(f"s_cmp_eq_u32 s{zreg}, 9"), o(f"s_cselect_b32 s{S_ST0}, 0, 99")]),
              G([o(f"v_and_b32 v{f0}, 31, v0"), o(f"v_cmp_eq_u32 vcc, s{S_ST0}, v{f0}"), o(f"v_mov_b32 v{tb+10}, 1.0"), o("v_nop"),
                 o(f"v_cndmask_b32 v{sg}, v{sg}, v{tb+10}, vcc")]),
              G([o(f"s_or_b32 s{S_ST0}, s{S_MT}, s{S_W}"), o(f"s_cmp_eq_u32 s{S_ST0}, 0"), o(f"s_cselect_b32 s{S_ST0}, 32, 0")]),
              G([o(f"v_cmp_gt_u32 vcc, s{S_ST0}, v0"), o(f"v_mov_b32 v{tb+10}, 0"), o("v_nop"),
                 o(f"v_cndmask_b32 v{f0}, v{sg}, v{tb+10}, vcc")])]
        L += [o(f"v_mul_f32 v{tb+11}, v{acc+8}, v{rr+8}")]
        for r in range(8):
            L += [o(f"v_mul_f32 v{rr+8+r}, v{rr+8+r}, v{f0 if r == 0 else sg}"),
                  o(f"v_mul_f32 v{tb+r}, v{acc+r}, v{rr+r}"),
                  o(f"v_fma_f32 v{tb+r}, v{acc+8+r}, v{rr+8+r}, v{tb+r}")]
        for i in range(4):
            L += [o(f"v_cvt_pk_bf16_f32 v{tb+12+i}, v{tb+2*i}, v{tb+2*i+1}")]
        L += [G([o("v_nop"), o("v_nop"), o(f"v_permlane32_swap_b32 v{tb+12}, v{tb+14}"), o(f"v_permlane32_swap_b32 v{tb+13}, v{tb+15}")]),
              G([o(f"s_mul_i32 s{S_ST0}, s{zreg}, {ZF_STRIDE}"), o(f"s_lshl_b32 s{S_ST1}, s{S_MT}, 2"), o(f"s_add_u32 s{S_ST1}, s{S_ST1}, s{S_W}")]),
              G([o(f"s_lshl_b32 s{S_ST1}, s{S_ST1}, 10"), o(f"s_add_u32 s{S_ST1}, s{S_ST1}, s{S_ST0}"), o(f"s_add_u32 s{S_ST1}, s{S_ST1}, {WS_ZF}")]),
              vm(f"buffer_store_dwordx4 v[{tb+12}:{tb+15}], v{V_L16}, s[{SR_WS}:{SR_WS+3}], s{S_ST1} offen sc1", "zst"),
              o(f"v_mov_b32 v{tb+1}, 0"), o(f"v_mov_b32 v{tb+2}, 0"), o(f"v_mov_b32 v{tb+3}, 0"),
              o(f"v_cvt_pk_bf16_f32 v{tb}, v{tb+11}, v{tb+1}"),
              G([o("v_cmp_gt_u32 vcc, 32, v0"), o("v_nop"), o("v_nop"), o(f"v_cndmask_b32 v{tb}, v{tb+1}, v{tb}, vcc")]),
              G([o(f"s_or_b32 s{S_ST1}, s{S_MT}, s{S_W}"), o(f"s_cmp_le_u32 s{zreg}, 9"), o(f"s_cselect_b32 s{S_C}, 0, 1")]),
              G([o(f"s_or_b32 s{S_ST1}, s{S_ST1}, s{S_C}"), o(f"s_cmp_eq_u32 s{S_ST1}, 0"), o(f"s_cselect_b32 s{S_C}, 0, {OOB:#x}")]),
              o(f"v_add_u32 v{tb+4}, s{S_C}, v{V_L16}"),
              o(f"s_add_u32 s{S_ST0}, s{S_ST0}, {WS_ZF + 64*1024}"),
              vm(f"buffer_store_dwordx4 v[{tb}:{tb+3}], v{tb+4}, s[{SR_WS}:{SR_WS+3}], s{S_ST0} offen sc1", "zst"),
              G([o(f"v_mov_b32 v{tb+12}, 0"), o(f"v_mov_b32 v{tb+13}, 0"), o(f"v_mov_b32 v{tb+14}, 0"), o(f"v_mov_b32 v{tb+15}, 0")]),
              vm(f"buffer_store_dwordx4 v[{tb+12}:{tb+15}], v{tb+4}, s[{SR_WS}:{SR_WS+3}], s{S_ST0} offen offset:1024 sc1", "zst")]
        return L

    def rr_reads(self, rr, tmp, n=1):
        return [o(f"v_lshrrev_b32 v{tmp}, 5, v0"), o(f"v_lshlrev_b32 v{tmp}, 4, v{tmp}"), o(f"s_lshl_b32 s{S_C}, s{S_W}, 12"),
                o(f"s_add_u32 s{S_C}, s{S_C}, {SPARE}"), o(f"v_add_u32 v{tmp}, s{S_C}, v{tmp}")] + \
               [ds(f"ds_read_b128 v[{rr+4*q}:{rr+4*q+3}], v{tmp} offset:{32*q}", ("rr", n)) for q in range(4)] + [wlg(("rr", n))]

    def h2_block(self):
        L = [o(f"s_cmp_lt_u32 s{S_J}, 2"), o("s_cbranch_scc0 L_noz2b")]
        B = [o(f"v_add_u32 v{64+i}, {SLOT}, v{V_XA+i}") for i in range(4)]
        B += [o(f"s_waitcnt vmcnt({20})"), o("s_barrier")]
        def rd(ks):
            a_ = AF + 4*(ks % NAF)
            return o(f"ds_read_b128 a[{a_}:{a_+3}], v{64+(ks&3)} offset:{(ks//4)*4096}")
        for ks in range(6): B += [rd(ks)]
        for k in range(36):
            a_ = AF + 4*(k % NAF)
            n_out = min(5, 35 - k)
            B += [o(f"s_waitcnt lgkmcnt({n_out})"), mf32("v[128:143]", f"a[{AX+4*k}:{AX+4*k+3}]", f"a[{a_}:{a_+3}]", "0" if k == 0 else "v[128:143]")]
            if k + 6 < 36: B += [rd(k + 6)]
        B += [raw("L_noz2b:"),
              o(f"s_cmp_lt_u32 s{S_J}, 2"), o(f"s_cselect_b32 s{S_B}, s{S_B}, 0x4000")]
        return L + B

    def dma_p1(self, sig, slot, tA=226, tB=227):
        groups = []
        if sig < 16:
            u, mat, kh = sig // 4, (sig // 2) % 2, sig % 2
            rs = SR_WG if mat == 0 else SR_WU
            for grp, ts in enumerate([[0,1,2,3],[0,1,2,3],[0]]):
                g = [o(f"s_add_u32 m0, s{S_L9}, {slot*SLOT + grp*4096}"),
                     o(f"s_add_u32 s{S_D0}, s{S_UB+u}, {(kh*288 + grp*32)*9216}")]
                for t in ts:
                    groups.append(g + [vm(f"buffer_load_dwordx4 v{V_DM+t}, s[{rs}:{rs+3}], s{S_D0} offen offset:{t*1024} lds", ("st", sig))])
                    g = []
        else:
            rs = SR_WG if sig == 16 else SR_WU
            for grp, ts in enumerate([[0,1,2,3],[0,1,2,3],[0]]):
                g = []
                if sig == 16 and grp == 0:
                    groups.append([o(f"v_lshrrev_b32 v{tA}, 2, v0"), o(f"v_and_b32 v{tB}, 3, v0"), o(f"v_lshlrev_b32 v{tB}, 4, v{tB}")])
                    groups.append([o(f"v_mul_u32_u24 v{tA}, 9216, v{tA}"), o(f"v_add_u32 v{V_DM}, v{tA}, v{tB}")] +
                                  [o(f"v_add_u32 v{V_DM+t}, {t*(16*9216-1024)}, v{V_DM}") for t in range(1, 4)])
                g += [o(f"s_add_u32 m0, s{S_L9}, {slot*SLOT + grp*4096}"),
                      o(f"s_add_u32 s{S_D0}, s{S_UB+4}, {grp*64*9216}")]
                for t in ts:
                    groups.append(g + [vm(f"buffer_load_dwordx4 v{V_DM+t}, s[{rs}:{rs+3}], s{S_D0} offen offset:{t*1024} lds", ("st", sig))])
                    g = []
        return groups

    def dma_cs(self, mat, piece, slot, tag, nop=False):
        rs = SR_CS if mat == 0 else SR_SS
        groups = []
        for l in range(2):
            line = 2*piece + l
            for rho in range(4):
                groups.append([o(f"s_add_u32 m0, s{S_A}, {slot*SLOT + (4*l+rho)*1024 - 128*line}")] + ([o("s_nop 0")] if nop else []) + [
                               vm(f"buffer_load_dwordx4 v{V_SD+rho}, s[{rs}:{rs+3}], 0 offen offset:{128*line} lds", tag)])
        return groups
    def dma_cx(self, tag):
        groups = []
        for rho in range(4):
            groups.append([o(f"s_add_u32 m0, s{S_B}, {SPARE + rho*1024 - 512}"),
                           vm(f"buffer_load_dwordx4 v{V_SD+rho}, s[{SR_CS}:{SR_CS+3}], 0 offen offset:512 lds", tag)])
        return groups

    def dma_p2(self, st, slot, first128, tA, tB, tC):
        u, who = st
        groups = []
        if u < 4:
            tbl = S_N0 if who == "own" else S_N1
            if first128:
                groups.append([o(f"v_lshrrev_b32 v{tA}, 3, v0"), o(f"v_and_b32 v{tB}, 7, v0"), o(f"v_bfe_u32 v{tC}, v0, 4, 1")])
                groups.append([o(f"v_lshlrev_b32 v{tC}, 2, v{tC}"), o(f"v_xor_b32 v{tB}, v{tB}, v{tC}"), o(f"v_lshlrev_b32 v{tB}, 4, v{tB}")])
                groups.append([o(f"s_mul_i32 s{S_WD}, s{S_W}, {8*1152}")])
                groups.append([o(f"v_mul_u32_u24 v{tA}, 1152, v{tA}"), o(f"v_add_u32 v{V_DM}, v{tA}, v{tB}"), o(f"v_add_u32 v{V_DM}, s{S_WD}, v{V_DM}")])
                groups.append([o(f"s_lshl_b32 s{S_WD}, s{S_W}, 10")])
            for ip in range(9):
                groups.append([o(f"s_add_u32 m0, s{S_WD}, {slot*SLOT + ip*4096}"),
                               o(f"s_add_u32 s{S_D0}, s{tbl+ip}, s{S_CU+u}"),
                               vm(f"buffer_load_dwordx4 v{V_DM}, s[{SR_WD}:{SR_WD+3}], s{S_D0} offen lds", ("s2", st))])
        else:
            groups.append([o(f"v_lshrrev_b32 v{tA}, 2, v0"), o(f"v_and_b32 v{tB}, 3, v0"), o(f"v_lshlrev_b32 v{tB}, 4, v{tB}")])
            groups.append([o(f"v_mul_u32_u24 v{tA}, 1152, v{tA}"), o(f"v_add_u32 v{V_DM+1}, v{tA}, v{tB}")])
            for ip in range(9):
                ca, cb = 2*ip, 2*ip + 1
                ra = (S_N0 + ca) if ca < 9 else (S_N1 + ca - 9)
                rb = (S_N0 + cb) if cb < 9 else (S_N1 + cb - 9)
                groups.append([o(f"s_cmp_lt_u32 s{S_W}, 2"), o(f"s_cselect_b32 s{S_D0}, s{ra}, s{rb}"),
                               o(f"s_add_u32 s{S_D0}, s{S_D0}, s{S_CU+4}"), o(f"s_add_u32 s{S_D0}, s{S_D0}, s{S_C}"),
                               o(f"s_add_u32 m0, s{S_WD}, {slot*SLOT + ip*4096}")])
                groups.append([vm(f"buffer_load_dwordx4 v{V_DM+1}, s[{SR_WD}:{SR_WD+3}], s{S_D0} offen lds", ("s2", st))])
        return groups

    def geglu(self, c, toff=0):
        if c < 8: g, u = GA[(c//2) % 2][c % 2], UA[(c//2) % 2][c % 2]
        else: g, u = GA[0][0], UA[0][0]
        L = []
        for p in range(8):
            r0, r1 = 2*p, 2*p + 1
            b = TMP + 4*(p % 2) + toff
            xa, xb, ya, yb = b, b+1, b+2, b+3
            L += [o(f"v_mul_f32 v{xa}, v{g+r0}, v{g+r0}"), o(f"v_mul_f32 v{xb}, v{g+r1}, v{g+r1}"),
                  o(f"v_fma_f32 v{xa}, v{xa}, v{V_C1}, v{V_C0}"), o(f"v_fma_f32 v{xb}, v{xb}, v{V_C1}, v{V_C0}"),
                  o(f"v_mul_f32 v{xa}, v{g+r0}, v{xa}"), o(f"v_mul_f32 v{xb}, v{g+r1}, v{xb}"),
                  o(f"v_exp_f32 v{xa}, v{xa}"), o(f"v_exp_f32 v{xb}, v{xb}"),
                  o(f"v_mul_f32 v{ya}, v{g+r0}, v{u+r0}"), o(f"v_mul_f32 v{yb}, v{g+r1}, v{u+r1}"),
                  o(f"v_fma_f32 v{xa}, v{xa}, v{V_D2}, v{V_D2}"), o(f"v_fma_f32 v{xb}, v{xb}, v{V_D2}, v{V_D2}"),
                  o(f"v_rcp_f32 v{xa}, v{xa}"), o(f"v_rcp_f32 v{xb}, v{xb}"),
                  o(f"v_mul_f32 v{ya}, v{ya}, v{xa}"), o(f"v_mul_f32 v{yb}, v{yb}, v{xb}"),
                  o(f"v_cvt_pk_bf16_f32 v{HF + 8*c + p}, v{ya}, v{yb}")]
        return L
    def hstore(self, c):
        st = S_ST0 + (c % 2)
        return [o(f"s_add_u32 s{st}, s{S_HB}, {2*c*1024}")] + self.dstore(
                [f"buffer_store_dwordx4 v[{HF+8*c}:{HF+8*c+3}], v{V_L16}, s[{SR_WS}:{SR_WS+3}], s{st} offen",
                 f"buffer_store_dwordx4 v[{HF+8*c+4}:{HF+8*c+7}], v{V_L16}, s[{SR_WS}:{SR_WS+3}], s{st} offen offset:1024"], "hst", True)

    def s_setup(self):
        a, b, c, d = V_SX, V_YC[0], V_YC[1], V_YC[2]
        L = []
        L += [G([o(f"s_lshr_b32 s{S_TAU}, s{S_J}, 3"), o(f"s_lshl_b32 s{S_A}, s{S_MT}, 1"), o(f"s_add_u32 s{S_TAU}, s{S_TAU}, s{S_A}")]),
              G([o(f"s_lshl_b32 s{S_A}, s{S_W}, 13"), o(f"s_lshl_b32 s{S_B}, s{S_W}, 12"),
                 o(f"s_lshl_b32 s{S_ZB}, s{S_W}, 14")]), o(f"s_add_u32 s{S_ZB}, s{S_ZB}, {WS_ZF}")]
        L += [o(f"v_lshrrev_b32 v{a}, 3, v0"), o(f"v_and_b32 v{b}, 7, v0"), o(f"v_lshrrev_b32 v{c}, 1, v{a}"), o(f"v_xor_b32 v{b}, v{b}, v{c}"),
              o(f"v_lshlrev_b32 v{b}, 4, v{b}"), o(f"v_xor_b32 v{c}, 64, v{b}"),
              o(f"s_lshl_b32 s{S_C}, s{S_TAU}, 5"), o(f"v_add_u32 v{a}, s{S_C}, v{a}"), o(f"v_lshlrev_b32 v{a}, 12, v{a}"),
              o(f"s_lshl_b32 s{S_C}, s{S_W}, 9"), o(f"v_add_u32 v{a}, s{S_C}, v{a}"),
              o(f"v_add_u32 v{V_SD}, v{a}, v{b}"), o(f"v_add_u32 v{V_SD+1}, v{a}, v{c}"), o(f"v_add_u32 v{V_SD+1}, 32768, v{V_SD+1}"),
              o(f"v_add_u32 v{V_SD+2}, 65536, v{V_SD}"), o(f"v_add_u32 v{V_SD+3}, 65536, v{V_SD+1}")]
        return L
    def s_setup2(self):
        a, b, c, d = V_SX, V_YC[0], V_YC[1], V_YC[2]
        L = []
        L += [o(f"v_and_b32 v{a}, 15, v0"), o(f"v_lshrrev_b32 v{b}, 4, v0"), o(f"v_bfe_u32 v{c}, v0, 1, 3"), o(f"v_xor_b32 v{c}, v{c}, v{b}"),
              o(f"v_lshlrev_b32 v{c}, 4, v{c}"), o(f"v_lshlrev_b32 v{a}, 7, v{a}"), o(f"v_add_u32 v{a}, v{a}, v{c}"),
              o(f"v_add_u32 v{V_SA}, s{S_A}, v{a}"), o(f"v_xor_b32 v{V_SA+1}, 64, v{V_SA}"),
              o(f"v_add_u32 v{V_SA+2}, {2*SLOT}, v{V_SA}"), o(f"v_add_u32 v{V_SA+3}, {2*SLOT}, v{V_SA+1}"),
              o(f"v_add_u32 v{a}, s{S_B}, v{a}"), o(f"v_add_u32 v{V_SX}, {SPARE}, v{a}")]
        return L
    def s_setup3(self, t0, t1, t2, t3):
        L = []
        L += [o(f"v_and_b32 v{t0}, 15, v0"), o(f"v_lshrrev_b32 v{t1}, 4, v0"),
              o(f"v_and_b32 v{t2}, 1, v{t1}"), o(f"v_lshlrev_b32 v{t2}, 9, v{t2}"),
              o(f"v_lshrrev_b32 v{t1}, 1, v{t1}"), o(f"v_lshlrev_b32 v{t1}, 10, v{t1}"), o(f"v_add_u32 v{t2}, v{t2}, v{t1}"),
              G([o(f"s_and_b32 s{S_C}, s{S_J}, 7"), o(f"s_mul_i32 s{S_C}, s{S_C}, 36")]),
              o(f"v_add_u32 v{t0}, s{S_C}, v{t0}")]
        for ss in range(3):
            pa, qa, yc = V_ZP + ss, V_ZQ + ss, V_YC[ss]
            L += [o(f"v_lshrrev_b32 v{t1}, 5, v{t0}"), o(f"v_mul_u32_u24 v{t1}, {ZF_STRIDE}, v{t1}"),
                  o(f"v_and_b32 v{t3}, 31, v{t0}"), o(f"v_lshlrev_b32 v{t3}, 4, v{t3}"), o(f"v_add_u32 v{t1}, v{t1}, v{t3}"),
                  o(f"v_add_u32 v{t1}, v{t1}, v{t2}"),
                  o(f"v_subrev_u32 v{t3}, s{S_C}, v{t0}"),
                  o(f"v_lshlrev_b32 v{yc}, 2, v{t0}"), o(f"v_mov_b32 v{qa}, {OOB:#x}"), o(f"v_mov_b32 v{pa}, {OOB:#x}"),
                  G([o(f"v_cmp_gt_u32 vcc, 36, v{t3}"), o("v_nop"), o("v_nop"), o(f"v_cndmask_b32 v{pa}, v{pa}, v{t1}, vcc")]),
                  o(f"v_add_u32 v{t3}, {9*ZF_STRIDE}, v{t1}"),
                  G([o(f"v_cndmask_b32 v{qa}, v{qa}, v{t3}, vcc")]),
                  G([o(f"v_cmp_eq_u32 vcc, 0x120, v{t0}"), o("v_nop"), o("v_nop"), o(f"v_cndmask_b32 v{pa}, v{pa}, v{t1}, vcc")]),
                  G([o(f"v_mov_b32 v{t3}, {OOB:#x}"), o(f"v_cmp_eq_u32 vcc, 0, v{t0}"), o("v_nop"), o("v_nop"), o(f"v_cndmask_b32 v{qa}, v{qa}, v{t3}, vcc")]),
                  G([o(f"v_cmp_eq_u32 vcc, v{t3}, v{pa}"), o("v_nop"), o("v_nop"), o(f"v_cndmask_b32 v{yc}, v{yc}, v{t3}, vcc")]),
                  o(f"v_add_u32 v{t0}, 16, v{t0}")]
        return L

    def phase2_setup(self):
        L = []
        L += [G([o(f"s_xor_b32 s{T6}, s{S_J}, 1"), o(f"s_and_b32 s{T2}, s{T6}, 1"), o(f"s_mul_i32 s{T0}, s{T6}, 288")]),
              G([o(f"s_mul_i32 s{T1}, s{T2}, 224"), o(f"s_add_u32 s{T1}, s{T0}, s{T1}")]),
              G([o(f"s_cmp_eq_u32 s{T2}, 0"), o(f"s_cselect_b32 s{T3}, 64, -64"), o(f"s_cselect_b32 s{T4}, 256, 0")]),
              o(f"s_add_u32 s{T4}, s{T4}, s{T0}")]
        for u in range(4):
            L += [G([o(f"s_mul_i32 s{T5}, s{T3}, {u}"), o(f"s_add_u32 s{T5}, s{T5}, s{T1}")]),
                  G([o(f"s_mul_i32 s{S_N1+2*u}, s{T5}, 1152"), o(f"s_add_u32 s{S_N1+2*u+1}, s{S_N1+2*u}, {32*1152}")])]
        L += [o(f"s_mul_i32 s{S_N1+8}, s{T4}, 1152")]
        L += [G([o(f"s_and_b32 s{T2}, s{S_J}, 1"), o(f"s_mul_i32 s{T0}, s{T2}, 640"), o(f"s_lshr_b32 s{T1}, s{S_J}, 2")])]
        for k in range(4):
            L += [G([o(f"s_add_u32 s{T3}, s{T1}, {(k+1) % 4 if k < 3 else 0}"), o(f"s_and_b32 s{T3}, s{T3}, 3"), o(f"s_lshl_b32 s{T3}, s{T3}, 7")]),
                  o(f"s_add_u32 s{S_CU+k}, s{T0}, s{T3}")]
        L += [G([o(f"s_cmp_eq_u32 s{T2}, 0"), o(f"s_cselect_b32 s{S_CU+4}, 0, 64")]), o(f"s_add_u32 s{S_CU+4}, s{S_CU+4}, 512")]
        return L

    def p2q_setup(self):
        L = [G([o(f"s_and_b32 s{T2}, s{S_J}, 1"), o(f"s_mul_i32 s{T3}, s{T2}, 10"), o(f"s_lshr_b32 s{T4}, s{S_J}, 2")])]
        for k, dst in enumerate(S_QU):
            L += [G([o(f"s_add_u32 s{T5}, s{T4}, {k+1}"), o(f"s_and_b32 s{T5}, s{T5}, 3"), o(f"s_lshl_b32 s{T5}, s{T5}, 1")]),
                  G([o(f"s_add_u32 s{T5}, s{T5}, s{T3}"), o(f"s_lshl_b32 s{T5}, s{T5}, 11"), o(f"s_add_u32 s{dst}, s{T5}, s{S_PB}")])]
        L += [G([o(f"s_lshl_b32 s{T5}, s{T4}, 1"), o(f"s_add_u32 s{T5}, s{T5}, s{T3}"), o(f"s_bfe_u32 s{T4}, s{S_J}, 0x10001")]),
              G([o(f"s_add_u32 s{S_TO}, s{T5}, s{T4}"), o(f"s_xor_b32 s{T4}, s{T4}, 1"), o(f"s_add_u32 s{T5}, s{T5}, s{T4}")]),
              G([o(f"s_lshl_b32 s{T5}, s{T5}, 11"), o(f"s_add_u32 s{S_QN}, s{T5}, s{S_PB}")]),
              G([o(f"s_add_u32 s{T5}, s{T2}, 8"), o(f"s_lshl_b32 s{T5}, s{T5}, 11"), o(f"s_add_u32 s{S_Q8}, s{T5}, s{S_PB}")])]
        return L

    def main(self):
        DIST = self.opts.get("dist", 7)
        M = []; frags = []
        fu = {}; lu = {}
        def addfrag(reads_fn, use, dist=None, stage=None):
            f = len(frags); a = AF + 4*(f % NAF)
            fr = dict(reads=reads_fn(a), use=use)
            if dist: fr["dist"] = dist
            frags.append(fr)
            if stage is not None and stage not in fu:
                fu[stage] = use; fr["stage_first"] = stage
            return f, a
        def tr(base, off, off2): return lambda a: [f"ds_read_b64_tr_b16 a[{a}:{a+1}], v{base} offset:{off}", f"ds_read_b64_tr_b16 a[{a+2}:{a+3}], v{base} offset:{off+off2}"]
        for u in range(4):
            for mat in range(2):
                for kh in range(2):
                    sig = 4*u + 2*mat + kh
                    for half in range(2):
                        acc = (GA if mat == 0 else UA)[u % 2][half]
                        for kk in range(18):
                            ks = kh*18 + kk; g = len(M)
                            f, a = addfrag(tr((V_RA if half == 0 else V_RB) + sig % 4, kk*2048, 512), g, stage=("st", sig))
                            M.append(dict(op=32, acc=f"v[{acc}:{acc+15}]", first=(ks == 0), A=f"a[{a}:{a+3}]", B=f"a[{AX+4*ks}:{AX+4*ks+3}]", need=f))
                            lu[("st", sig)] = g
        for mat in range(2):
            acc = (GA if mat == 0 else UA)[0][0]
            for ks in range(36):
                g = len(M)
                f, a = addfrag(tr(V_R8 + mat, ks*1024, 256), g, stage=("st", 16+mat))
                M.append(dict(op=32, acc=f"v[{acc}:{acc+15}]", first=(ks == 0), A=f"a[{a}:{a+3}]", B=f"a[{AX+4*ks}:{AX+4*ks+3}]", need=f))
                lu[("st", 16+mat)] = g
        S0 = len(M)
        def accP(tt, ss):
            i = tt*3 + ss
            return 48 + 4*i if i < 4 else 112 + 4*(i - 4)
        def accQ(tt, ss):
            i = tt*3 + ss
            return 64 + 4*i if i < 4 else 128 + 4*(i - 4)
        def zP(ss, k):
            i = k*3 + ss
            if i < 20: return f"a[{AZ+4*i}:{AZ+4*i+3}]"
            i -= 20
            r = 32 + 4*i if i < 4 else 96 + 4*(i - 4)
            return f"v[{r}:{r+3}]"
        def zQ(ss, k):
            i = k*3 + ss
            return f"a[{4*i}:{4*i+3}]"
        self.zP, self.zQ, self.accP, self.accQ = zP, zQ, accP, accQ
        for k in range(9):
            for tt in range(2):
                g = len(M)
                if k < 8:
                    line = k >> 1; piece = line >> 1; l = line & 1
                    base = V_SA + 2 + (k & 1); off = piece*SLOT + l*4096 + tt*2048
                    st = ("C", piece)
                else:
                    base = V_SX; off = tt*2048; st = ("CX", 0)
                f, a = addfrag(lambda a, base=base, off=off: [f"ds_read_b128 a[{a}:{a+3}], v{base} offset:{off}"], g, dist=8, stage=st)
                for ss in range(3):
                    ac = accP(tt, ss)
                    M.append(dict(op=16, acc=f"v[{ac}:{ac+3}]", first=(k == 0), A=f"a[{a}:{a+3}]", B=zP(ss, k), need=f))
                    lu[st] = len(M) - 1
        SP_END = len(M)
        for k in range(8):
            for tt in range(2):
                g = len(M)
                line = k >> 1; piece = line >> 1; l = line & 1
                base = V_SA + (k & 1); off = piece*SLOT + l*4096 + tt*2048
                st = ("S", piece)
                f, a = addfrag(lambda a, base=base, off=off: [f"ds_read_b128 a[{a}:{a+3}], v{base} offset:{off}"], g, dist=8, stage=st)
                for ss in range(3):
                    ac = accQ(tt, ss)
                    M.append(dict(op=16, acc=f"v[{ac}:{ac+3}]", first=(k == 0), A=f"a[{a}:{a+3}]", B=zQ(ss, k), need=f))
                    lu[st] = len(M) - 1
        P2_0 = len(M)
        stages = [(0, "own"), (1, "own"), (2, "own"), (0, "par"), (1, "par"), (2, "par"), (4, "both"), (3, "own"), (3, "par")]
        slot_order = [2, 0, 3, 2, 1, 0, 3, 2, 1]
        slot_of = {st: slot_order[i] for i, st in enumerate(stages)}
        ACC = {0: [32, 96], 1: [16, 80], 2: [48, 112], 3: [64, 128], 4: [32]}
        tile_last = {}
        def p2run(st, half, base, nk=18):
            u, who = st
            acc = ACC[u][half]
            for k in range(18):
                g = len(M)
                f, a = addfrag(tr(base, k*2048, 1024), g, stage=("s2", st))
                M.append(dict(op=32, acc=f"v[{acc}:{acc+15}]", first=(who == "own" and k == 0), A=f"a[{a}:{a+3}]",
                              B=(f"v[{HF+4*k}:{HF+4*k+3}]" if who == "own" else f"a[{AZ+4*k}:{AZ+4*k+3}]"), need=f))
                tile_last[(u, half)] = g; lu[("s2", st)] = g
        for st in stages[:7]:
            u, who = st; slot = slot_of[st]
            if u < 4:
                for half in range(2): p2run(st, half, (V_RA if half == 0 else V_RB) + slot)
            else:
                acc = ACC[4][0]
                for k in range(36):
                    g = len(M)
                    f, a = addfrag(tr(V_R8, k*1024, 512), g, stage=("s2", st))
                    M.append(dict(op=32, acc=f"v[{acc}:{acc+15}]", first=(k == 0), A=f"a[{a}:{a+3}]",
                                  B=(f"v[{HF+4*k}:{HF+4*k+3}]" if k < 18 else f"a[{AZ+4*(k-18)}:{AZ+4*(k-18)+3}]"), need=f))
                    tile_last[(4, 0)] = g; lu[("s2", st)] = g
        p2run((3, "own"), 0, V_LB); p2run((3, "par"), 0, V_LB + 1); p2run((3, "own"), 1, V_LB + 2); p2run((3, "par"), 1, V_LB + 3)
        N = len(M)
        last_use = {}
        for g, m in enumerate(M): last_use[m["need"]] = g
        for f, fr in enumerate(frags):
            d = fr.get("dist", DIST)
            t = fr["use"] - d
            if f >= NAF and t < last_use[f - NAF]: fr["dist"] = fr["use"] - last_use[f - NAF]
        for fr in frags:
            st = fr.get("stage_first")
            if st is None: continue
            if st[0] in ("st", "s2"):
                tags = [st]
                if st == ("st", 3): tags += ["zst", "flinit"]
                if st == ("st", 17): tags += ["hst"]
                fr["pre"] = [wvm(tags), o("s_barrier")]
                if st == ("st", 17):
                    fr["pre"] += [vm(f"buffer_store_dword v{V_ONE}, v{V_ONE0}, s[{SR_WS}:{SR_WS+3}], s{S_FL} offen sc1", "fl1")]
                if st == ("st", 3):
                    fr["pre"] += [vm(f"buffer_atomic_add v{V_ONE}, v{V_ONE0}, s[{SR_HZ}:{SR_HZ+3}], 0 offen offset:128 sc1", "zpub")]
            else:
                fr["pre"] = [wvm(("cs", st))]
        stamps = {0: "p1", 144: "u1", 288: "u2", 432: "u3", 576: "u4", S0: "S0", SP_END: "SP", P2_0: "p2", P2_0 + 108: "p2b", P2_0 + 216: "p2c"}
        if self.opts.get("fine"):
            stamps = {0: "p1", 432: "u3", 576: "u4", 594: "s594", 612: "s612", 630: "s630", S0: "S0", 660: "s660", 672: "s672", 684: "s684", SP_END: "SP", 714: "s714", 726: "s726", 738: "s738", P2_0: "p2", P2_0 + 36: "a36", P2_0+72: "a72", P2_0 + 108: "p2b", P2_0 + 216: "p2c"}
        for g, name in stamps.items():
            if self.diag: M[g].setdefault("before", []).extend(self.stamp(name))
        self.tail2 = []

        def setup(sl, head):
            rbar = {st: fu[st] - DIST for st in fu if st[0] in ("st", "s2")}
            for b in rbar.values():
                if b >= 0: sl.budget[b] = 4
            def fbar(t):
                sl.put(t, [o("s_barrier")])
            busy = {"end": -1}
            def place(groups, start, step=1):
                s = max(start, busy["end"] + 1)
                for grp in groups:
                    sl.put(s, grp); busy["end"] = s; s += step
                return s
            sl.put(2, [o(f"v_mov_b32 v{V_ONE}, 1")])
            eh = sl.stream(self.rr_reads(48, 112) + self.h_epilogue(S_A, V_HACC, 48, 64), 12, 46)
            eh = sl.stream(self.rr_reads(48, 112, 2) + self.h_epilogue(S_B, 128, 48, 64), eh + 1, eh + 34)
            assert eh < 92, eh
            for mat in range(2):
                slot = (16 + mat) % 4
                ins = [o("v_lshrrev_b32 v224, 5, v0"), o("v_lshlrev_b32 v224, 9, v224"),
                       o("v_bfe_u32 v225, v0, 2, 2"), o("v_lshlrev_b32 v225, 6, v225"), o("v_add_u32 v224, v224, v225"),
                       o("v_bfe_u32 v225, v0, 4, 1"), o("v_lshlrev_b32 v225, 5, v225"), o("v_add_u32 v224, v224, v225"),
                       o("v_and_b32 v225, 3, v0"), o("v_lshlrev_b32 v225, 3, v225"), o("v_add_u32 v224, v224, v225"),
                       o(f"v_add_u32 v{V_R8+mat}, {slot*SLOT}, v224")]
                sl.stream(ins, 70 + 20*mat, 88 + 20*mat)
            dma_end = {}
            for sig in range(2, 18):
                grps = self.dma_p1(sig, sig % 4)
                if sig == 2: start = 0
                elif sig == 3: start = 9*self.opts.get('dstep', 2)
                elif self.opts.get("fb", 1):
                    t = lu[("st", sig - 4)]; fbar(t); start = t + 1
                else:
                    start = min(b for b in rbar.values() if b >= lu[("st", sig - 4)]) + 1
                dma_end[sig] = place(grps, start, self.opts.get("dstep", 2))
            self.paced_prefetch(sl, dma_end)
            self.mode_check(sl, M)
            sl.put(590, [G([o(f"s_lshl_b32 s{S_FL}, s{S_LID}, 7"), o(f"s_add_u32 s{S_FL}, s{S_FL}, {WS_FLAG}")])])
            sl.put(592, [o(f"v_mov_b32 v{V_ONE}, 1")])
            e0 = sl.stream(self.geglu(0), 145, 211)
            sl.stream(self.hstore(0) + self.geglu(1) + self.hstore(1), max(e0 + 1, 212), 287)
            for u in range(1, 3):
                sl.stream(self.geglu(2*u) + self.hstore(2*u) + self.geglu(2*u+1) + self.hstore(2*u+1), 144*(u+1) + 1, 144*(u+2) - 1)
            es = sl.stream(self.s_setup(), eh + 1, eh + 11)
            es = sl.stream(self.s_setup2(), es + 1, es + 10)
            assert es < 118, es
            sl.stream(self.s_setup3(224, 225, 226, 227), max(es + 1, 112), 143)
            ep = sl.stream(self.phase2_setup(), 66, 100)
            assert ep < 110
            t = lu[("st", 14)]; fbar(t); place(self.dma_cs(0, 0, 2, ("cs", ("C", 0))), t + 1, 2)
            t = lu[("st", 15)]; fbar(t); e = place(self.dma_cs(0, 1, 3, ("cs", ("C", 1))), t + 1, 2)
            place(self.dma_cx(("cs", ("CX", 0))), e, 2)
            t = lu[("st", 16)]; fbar(t); place(self.dma_cs(1, 0, 0, ("cs", ("S", 0))), t + 1, 2)
            t = lu[("st", 17)]; fbar(t); place(self.dma_cs(1, 1, 1, ("cs", ("S", 1)), True), t + 1, 1)
            self.main_rest(sl, M, fu, lu, stages, slot_of, ACC, tile_last, S0, SP_END, P2_0, N, fbar, place)
        L = self.paced(M, frags, setup, DIST)
        return L + self.tail2

    def mode_check(self, sl, M):
        if not self.opts.get("local", 0): return
        t = 0
        ld = f"buffer_load_dwordx2 v[222:223], off, s[{SR_HZ}:{SR_HZ+3}], s{T5} sc1"
        ld = f"buffer_load_dwordx2 v[230:231], off, s[{SR_HZ}:{SR_HZ+3}], s{S_XC} sc1"
        if self.opts.get("cfg", 0) == 0:
            ld = f"buffer_load_dword v230, off, s[{SR_HZ}:{SR_HZ+3}], s{S_XC} sc1"
            sl.put(140, [G([o(f"s_lshr_b32 s{S_XC}, s{S_LID}, 3"), o(f"s_lshl_b32 s{S_XC}, s{S_XC}, 2")])])
        else:
            sl.put(140, [G([o(f"s_lshl_b32 s{S_XC}, s{S_MT}, 3")])])
        sl.put(143, [vm(ld, "xcc")])
        sl.put(205, [wvm("xcc")])
        sl.put(206, [o(f"v_readfirstlane_b32 s{T6}, v230"), o(f"v_readfirstlane_b32 s{T7}, v231")])
        def nz(r, tmp):
            return [o(f"s_lshr_b32 s{tmp}, s{r}, 1"), o(f"s_or_b32 s{tmp}, s{tmp}, s{r}"), o(f"s_lshr_b32 s{T3}, s{tmp}, 2"), o(f"s_or_b32 s{tmp}, s{tmp}, s{T3}"),
                    o(f"s_and_b32 s{tmp}, s{tmp}, 0x11111111")]
        chk = nz(T6, T1) + nz(T7, T2) + [o(f"s_and_b32 s{T1}, s{T1}, s{T2}"), o(f"s_cmp_eq_u32 s{T1}, 0x11111111")]
        if self.opts.get("cfg", 0) == 0:
            ld = f"buffer_load_dword v230, off, s[{SR_HZ}:{SR_HZ+3}], s{S_XC} sc1"
            ext = [o(f"s_and_b32 s{T1}, s{S_LID}, 6"), o(f"s_lshl_b32 s{T1}, s{T1}, 2"), o(f"s_lshr_b32 s{T2}, s{T6}, s{T1}"),
                   o(f"s_and_b32 s{T3}, s{T2}, 15"), o(f"s_bfe_u32 s{T2}, s{T2}, 0x40004"),
                   o(f"s_min_u32 s{T1}, s{T2}, s{T3}"), o(f"s_cmp_ge_u32 s{T1}, 1")]
            blk = ext + [o("s_cbranch_scc1 L_xc_ok")] + self.spin("L_xc", [o(ld)], [o(f"v_readfirstlane_b32 s{T6}, v230"), o("s_nop 3")] + ext)
            blk += [o(f"s_cmp_eq_u32 s{T2}, s{T3}"), o(f"s_cselect_b32 s{S_MODE}, 1, 0")]
            if self.opts.get("forceglobal"): blk += [o(f"s_mov_b32 s{S_MODE}, 0")]
            M[209].setdefault("before", []).extend(blk)
            return
        blk = chk + [o("s_cbranch_scc1 L_xc_ok")] + self.spin("L_xc", [o(ld)],
              [o(f"v_readfirstlane_b32 s{T6}, v230"), o(f"v_readfirstlane_b32 s{T7}, v231"), o("s_nop 3")] + chk)
        blk += [o(f"s_and_b32 s{T1}, s{T6}, 15"), o(f"s_mul_i32 s{T1}, s{T1}, 0x11111111"),
                o(f"s_cmp_eq_u32 s{T1}, s{T6}"), o(f"s_cselect_b32 s{S_MODE}, 1, 0"),
                o(f"s_cmp_eq_u32 s{T1}, s{T7}"), o(f"s_cselect_b32 s{S_MODE}, s{S_MODE}, 0")]
        if self.opts.get("forceglobal"): blk += [o(f"s_mov_b32 s{S_MODE}, 0")]
        M[209].setdefault("before", []).extend(blk)

    def bulk(self, sl, t):
        bk = [G([o(f"s_lshl_b32 s{S_PF}, s{S_LID}, 2"), o(f"s_add_u32 s{S_PF}, s{S_PF}, s{S_W}"), o(f"s_mul_i32 s{S_PF}, s{S_PF}, 41")]),
              o(f"v_add_u32 v{V_PF}, s{S_PF}, v0"), o(f"v_lshlrev_b32 v{V_PF}, 7, v{V_PF}"),
              G([o("v_cmp_gt_u32 vcc, 41, v0"), o("v_nop"), o("v_nop"), o(f"v_cndmask_b32 v{V_PF}, v{V_ONE0}, v{V_PF}, vcc")])]
        e = sl.stream(bk, t, t + 5, spill=2)
        sl.put(e + 1, [vm(f"buffer_load_dword v{V_PF}, v{V_PF}, s[{SR_WG}:{SR_WG+3}], 0 offen", "pf")])
        sl.put(e + 2, [vm(f"buffer_load_dword v{V_PF}, v{V_PF}, s[{SR_WU}:{SR_WU+3}], 0 offen", "pf")])
        return e + 2

    def paced_prefetch(self, sl, dma_end):
        if self.opts.get("bulkat", 0) == 1:
            bk = [G([o(f"s_lshl_b32 s{S_PF}, s{S_LID}, 2"), o(f"s_add_u32 s{S_PF}, s{S_PF}, s{S_W}"), o(f"s_mul_i32 s{S_PF}, s{S_PF}, 41")]),
                  o(f"v_add_u32 v230, s{S_PF}, v0"), o(f"v_lshlrev_b32 v230, 7, v230"),
                  G([o("v_cmp_gt_u32 vcc, 41, v0"), o("v_nop"), o("v_nop"), o(f"v_cndmask_b32 v230, v{V_ONE0}, v230, vcc")])]
            e = sl.stream(bk, 0, 8, spill=2)
            assert e < 12
            s = dma_end[self.opts.get("bulkst", 3)]
            sl.put(s, [vm(f"buffer_load_dword v{V_PF}, v230, s[{SR_WG}:{SR_WG+3}], 0 offen", "pf")])
            sl.put(s + 1, [vm(f"buffer_load_dword v{V_PF}, v230, s[{SR_WU}:{SR_WU+3}], 0 offen", "pf")])
        if not self.opts.get("ppf", 1): return
        Dd, Cc, t = 228, 229, 227
        setup = [G([o(f"s_lshl_b32 s{S_PF}, s{S_LID}, 2"), o(f"s_add_u32 s{S_PF}, s{S_PF}, s{S_W}"), o(f"s_mul_i32 s{S_PF}, s{S_PF}, 41")]),
                 o(f"v_add_u32 v{Dd}, s{S_PF}, v0"), o(f"v_lshlrev_b32 v{Dd}, 7, v{Dd}"), o(f"v_mov_b32 v{t}, {OOB:#x}"),
                 G([o("v_cmp_gt_u32 vcc, 41, v0"), o("v_nop"), o("v_nop"), o(f"v_cndmask_b32 v{Dd}, v{t}, v{Dd}, vcc")]),
                 G([o(f"s_and_b32 s{S_PF}, s{S_J}, 7"), o(f"s_lshl_b32 s{S_PF}, s{S_PF}, 2"), o(f"s_add_u32 s{S_PF}, s{S_PF}, s{S_W}")]),
                 G([o(f"s_lshl_b32 s{S_C}, s{S_TAU}, 5"), o(f"s_add_u32 s{S_PF}, s{S_PF}, s{S_C}"), o(f"s_lshl_b32 s{S_PF}, s{S_PF}, 12")]),
                 o(f"v_lshlrev_b32 v{Cc}, 7, v0"), o(f"v_add_u32 v{Cc}, s{S_PF}, v{Cc}"),
                 G([o("v_cmp_gt_u32 vcc, 17, v0"), o("v_nop"), o("v_nop"), o(f"v_cndmask_b32 v{Cc}, v{t}, v{Cc}, vcc")])]
        e = sl.stream(setup, 146, 176)
        s = dma_end[self.opts.get("pfw", 9)]
        assert s > e + 6
        if self.opts.get("bulk", 1) != 2: sl.put(s, [vm(f"buffer_load_dword v{V_PF}, v{Dd}, s[{SR_WD}:{SR_WD+3}], 0 offen", "pf")])
        s = dma_end[self.opts.get("pfc", 11)]
        sl.put(s, [vm(f"buffer_load_dword v{V_PF}, v{Cc}, s[{SR_CS}:{SR_CS+3}], 0 offen", "pf")])
        sl.put(s + 1, [vm(f"buffer_load_dword v{V_PF}, v{Cc}, s[{SR_SS}:{SR_SS+3}], 0 offen", "pf")])

    def owner_addr(self):
        sQ = S_TO
        t0, t1, t2, t3 = 244, 245, 246, 247
        L = [G([o(f"s_lshl_b32 s{T4}, s{S_MT}, 2"), o(f"s_add_u32 s{T4}, s{T4}, s{S_W}")]),
             G([o(f"s_mul_i32 s{T5}, s{T4}, 18"), o(f"s_add_u32 s{T5}, s{T5}, s{sQ}"), o(f"s_lshl_b32 s{T5}, s{T5}, 11")]),
             o(f"s_lshr_b32 s{T3}, s{S_J}, 1")]
        for i, d in enumerate((2, 3, 4, 5, 6, 7, 1)):
            L += [G([o(f"s_xor_b32 s{16+i}, s{T3}, {d}"), o(f"s_mul_i32 s{16+i}, s{16+i}, {PART_BYTES}"), o(f"s_add_u32 s{16+i}, s{16+i}, s{T5}")])]
        L += [o(f"s_lshl_b32 s{T5}, s{T4}, 4"), o(f"v_and_b32 v{t0}, 15, v0"), o(f"v_add_u32 v{t0}, s{T5}, v{t0}"),
              o(f"v_sub_u32 v{t1}, 2048, v{t0}"), o(f"v_mov_b32 v{t2}, 1024"), o(f"v_mov_b32 v{t3}, 0"),
              G([o(f"v_cmp_eq_u32 vcc, 0, v{t0}"), o("v_nop"), o("v_nop"), o(f"v_cndmask_b32 v237, v{t1}, v{t2}, vcc"),
                 o(f"v_cndmask_b32 v{t1}, v{t1}, v{t3}, vcc"), o(f"v_cndmask_b32 v{t2}, v{t0}, v{t2}, vcc")]),
              o(f"v_and_b32 v{t3}, 16, v0"),
              G([o(f"v_cmp_eq_u32 vcc, 0, v{t3}"), o("v_nop"), o("v_nop"), o(f"v_cndmask_b32 v{t0}, v237, v{t0}, vcc"), o(f"v_cndmask_b32 v{t1}, v{t2}, v{t1}, vcc")]),
              o(f"s_lshl_b32 s{T5}, s{sQ}, 6"),
              o(f"v_mul_u32_u24 v{t2}, 1152, v{t0}"), o(f"v_add_u32 v{t2}, s{T5}, v{t2}"),
              o(f"v_lshrrev_b32 v{t3}, 5, v0"), o(f"v_lshlrev_b32 v238, 4, v{t3}"), o(f"v_add_u32 v238, v{t2}, v238"),
              o(f"v_lshlrev_b32 v237, 3, v{t3}"), o(f"v_add_u32 v237, v{t2}, v237"),
              G([o(f"s_lshl_b32 s{T5}, s{sQ}, 7"), o(f"s_cmp_lt_u32 s{sQ}, 9"), o(f"s_cselect_b32 s24, 0, 1")]),
              G([o(f"s_sub_u32 s{T4}, {2292 - 96}, s{T5}"), o(f"s_cmp_lt_u32 s{sQ}, 9"), o(f"s_cselect_b32 s{T5}, s{T5}, s{T4}"), o(f"s_cselect_b32 s{T4}, 1, -1")]),
              G([o(f"v_mov_b32 v{t2}, s24"), o(f"v_cmp_eq_u32 vcc, 1, v{t2}"), o("v_nop"), o("v_nop"), o(f"v_cndmask_b32 v{t0}, v{t0}, v{t1}, vcc")]),
              o(f"v_mul_u32_u24 v{t0}, {YP}, v{t0}"), o(f"v_add_u32 v{t0}, s{T5}, v{t0}"),
              o(f"v_lshlrev_b32 v{t3}, 4, v{t3}"), o(f"v_mul_lo_u32 v{t3}, v{t3}, s{T4}"), o(f"v_add_u32 v{t0}, v{t0}, v{t3}"),
              o(f"v_add_u32 v239, {WS_YH}, v{t0}")]
        return L

    def pipe_reduce(self, sl, M, fu, lu, P2_0, N):
        self.items_cfg()
        t4 = P2_0 + self.opts.get("t4", 254)
        sl.put(t4 - 3, [o("v_mov_b32 v240, 4")])
        sl.put(t4, [wvm([("pst", 0), ("pst", 1), ("pst", 2), "yst"]), o("s_barrier")])
        sl.put(t4 + 1, [vm(f"buffer_store_dword v240, v{V_ONE0}, s[{SR_WS}:{SR_WS+3}], s{S_FL} offen sc1", "fl4")])
        ep = sl.stream(self.p2q_setup(), P2_0 + 102, P2_0 + 124)
        assert ep < P2_0 + 132
        s_own, s_par = 2, 1
        lb = [G([o(f"s_bfe_u32 s{T5}, s{S_J}, 0x10001"), o(f"s_lshl_b32 s{T5}, s{T5}, 6"), o(f"s_xor_b32 s{T4}, s{T5}, 64")]),
              o(f"v_xor_b32 v{V_LB}, s{T4}, v{V_RA+s_own}"), o(f"v_xor_b32 v{V_LB+1}, s{T4}, v{V_RA+s_par}"),
              o(f"v_xor_b32 v{V_LB+2}, s{T5}, v{V_RA+s_own}"), o(f"v_xor_b32 v{V_LB+3}, s{T5}, v{V_RA+s_par}")]
        sl.stream(lb, P2_0 + 190, P2_0 + 200)
        e = sl.stream(self.owner_addr(), P2_0 + 204, P2_0 + 250)
        e = sl.stream([G([o(f"s_and_b32 s{T6}, s{S_J}, 1"), o(f"s_lshl_b32 s{T6}, s{T6}, 7"), o(f"s_lshl_b32 s{T7}, s{S_MT}, 11")]),
                       G([o(f"s_add_u32 s{T6}, s{T6}, s{T7}"), o(f"s_add_u32 s{T6}, s{T6}, {WS_FLAG}")]),
                       o("v_lshlrev_b32 v242, 8, v0"), o(f"v_mov_b32 v241, {OOB:#x}"),
                       G([o("v_cmp_gt_u32 vcc, 8, v0"), o("v_nop"), o("v_nop"), o("v_cndmask_b32 v242, v241, v242, vcc")])], e + 1, e + 8)
        for i in range(4): sl.put(e + 2 + i, [vm(f"buffer_load_dwordx2 v[{24+2*i}:{25+2*i}], v237, s[{SR_X}:{SR_X+3}], 0 offen offset:{16*i}", "ox")])
        tpoll = max(e + 7, P2_0 + self.opts.get("tpa", 284))
        ld, chk = self.group_poll("L_gA", 4, 241, 242)
        sl.put(tpoll, [vm(ld, "gpA")])
        sl.put(tpoll + 9, [wvm("gpA")])
        M[tpoll + 11].setdefault("before", []).extend(chk + [o("s_cbranch_scc1 L_gA_ok")] + self.spin("L_gA", [o(ld)], chk))
        lds = []
        for i in range(6):
            lds += [vm(f"buffer_load_dwordx4 v[{80+8*i}:{83+8*i}], v{V_L16}, s[{SR_WS}:{SR_WS+3}], s{16+i} offen sc1", "op"),
                    vm(f"buffer_load_dwordx4 v[{84+8*i}:{87+8*i}], v{V_L16}, s[{SR_WS}:{SR_WS+3}], s{16+i} offen offset:1024 sc1", "op")]
        lds += [vm(f"buffer_load_dwordx4 v[{48+4*i}:{51+4*i}], v239, s[{SR_WS}:{SR_WS+3}], 0 offen offset:{32*i} sc1", "op") for i in range(4)]
        s = tpoll + 11
        self.late_loads = []
        stp = self.opts.get("ostep", 2)
        for l in lds:
            if s < N - 1: sl.put(s, [l]); s += stp
            else: self.late_loads.append(l)
        print("owner loads: in loop until", s, "late:", len(self.late_loads), "N", N)
        t5 = N - self.opts.get("t5", 10)
        sl.put(t5 - 3, [o("v_mov_b32 v240, 5")])
        sl.put(t5, [wvm([("pst", 3), ("pst", 4)]), o("s_barrier")])
        sl.put(t5 + 1, [vm(f"buffer_store_dword v240, v{V_ONE0}, s[{SR_WS}:{SR_WS+3}], s{S_FL} offen sc1", "fl5")])
        self.RDx = dict(P=("v", 176), X=208, Y=212, OA=220, PV=221, t=[222, 223, 224, 225], rev=26, so=84)
        Ad, Ld = self.item_setup("D", self.RDx, split=True)
        self.D_ld = Ld
        eD = sl.stream(Ad, N - 17, N - 1, spill=0)
        print("D addr until", eD)

    def spin(self, label, load, cond_ok, regs_note=""):
        return [o(f"s_mov_b32 s{S_CNT}, 0"), raw(f"{label}:")] + load + [o("s_waitcnt vmcnt(0)")] + cond_ok + \
               [o(f"s_cbranch_scc1 {label}_ok"), o(f"s_add_u32 s{S_CNT}, s{S_CNT}, 1"), o(f"s_cmp_gt_u32 s{S_CNT}, 0x40000"), o(f"s_cbranch_scc1 {label}_ok"),
                o("s_sleep 1"), o(f"s_branch {label}"), raw(f"{label}_ok:")]

    def main_rest(self, sl, M, fu, lu, stages, slot_of, ACC, tile_last, S0, SP_END, P2_0, N, fbar, place):
        zP, zQ, accP, accQ = self.zP, self.zQ, self.accP, self.accQ
        DIST = self.opts.get("dist", 7)
        e6 = sl.stream(self.geglu(6) + self.hstore(6), 577, 634)
        assert e6 < S0 - 2, e6
        e7 = sl.stream(self.geglu(7) + self.hstore(7), e6 + 1, S0 + 46)
        assert e7 < SP_END - 1, e7
        sl.stream(self.geglu(8, 8) + self.hstore(8), S0 + 4, S0 + 85)
        sl.put(467, [vm(f"buffer_load_dword v230, off, s[{SR_HZ}:{SR_HZ+3}], 0 offset:128 sc1", "zpoll")])
        sl.put(574, [wvm("zpoll")])
        sl.put(575, [o(f"v_readfirstlane_b32 s{T0}, v230")])
        M[578].setdefault("before", []).extend(
            [o(f"s_cmp_ge_u32 s{T0}, 256"), o("s_cbranch_scc1 L_zp_ok")] +
            self.spin("L_zp", [o(f"buffer_load_dword v{V_PF}, off, s[{SR_HZ}:{SR_HZ+3}], 0 offset:128 sc1")],
                      [o(f"v_readfirstlane_b32 s{T0}, v{V_PF}"), o("s_nop 3"), o(f"s_cmp_ge_u32 s{T0}, 256")]))
        ins = []
        for k in range(9):
            if k < 8: ins += [o(f"s_add_u32 s{S_C}, s{S_ZB}, {k*2048}")]
            else: ins += [G([o(f"s_cmp_eq_u32 s{S_W}, 3"), o(f"s_cselect_b32 s{S_C}, 0, {OOB:#x}"), o(f"s_add_u32 s{S_C}, s{S_C}, s{S_ZB}")]),
                          o(f"s_add_u32 s{S_C}, s{S_C}, {8*2048}")]
            for ss in range(3):
                ins += [vm(f"buffer_load_dwordx4 {zP(ss,k)}, v{V_ZP+ss}, s[{SR_WS}:{SR_WS+3}], s{S_C} offen sc1", ("zp", k))]
        sl.stream(ins, 579, 640)
        for k in range(9):
            g = S0 + 6*k
            sl.put(g - 1, [wvm(("zp", k))])
        ins = []
        for k in range(8):
            ins += [o(f"s_add_u32 s{S_C}, s{S_ZB}, {k*2048}")]
            for ss in range(3):
                ins += [vm(f"buffer_load_dwordx4 {zQ(ss,k)}, v{V_ZQ+ss}, s[{SR_WS}:{SR_WS+3}], s{S_C} offen sc1", ("zq", k))]
        sl.stream(ins, S0, SP_END + 20)
        for k in range(8):
            g = SP_END + 6*k
            sl.put(g - 1, [wvm(("zq", k))])
        blk = [o(f"s_cmp_eq_u32 s{S_TAU}, 0"), o("s_cbranch_scc0 L_s_n1024"),
               o("v_mov_b32 v232, 0xbf803f80"), o("v_mov_b32 v233, v232"), o("v_mov_b32 v234, v232"), o("v_mov_b32 v235, v232"), o("s_nop 1")]
        for k in range(9):
            for ss in range(3):
                a = (32, 36, 40)[ss] if False else None
        A1024 = [120, 124, 136]
        for k in range(9):
            for ss in range(3):
                a = A1024[ss]
                blk += [mf16(f"v[{a}:{a+3}]", "v[232:235]", zP(ss, k), "0" if k == 0 else f"v[{a}:{a+3}]")]
        blk += [raw("L_s_n1024:")]
        M[SP_END].setdefault("before", []).extend(blk)
        tA, tB, tC = 236, 237, 238
        t = lu[("C", 0)]; fbar(t)
        e = place(self.dma_p2(stages[0], slot_of[stages[0]], True, 12, 13, V_PF), t + 1, 1)
        ins = [o(f"v_lshrrev_b32 v{V_PF}, 5, v0"), o(f"v_lshlrev_b32 v{V_PF}, 9, v{V_PF}")]
        for s in range(4): ins += [o(f"v_sub_u32 v{V_RA+s}, v{V_RA+s}, v{V_PF}"), o(f"v_sub_u32 v{V_RB+s}, v{V_RB+s}, v{V_PF}")]
        sl.stream(ins, e + 1, e + 14)
        t = lu[("C", 1)] + 6; fbar(t)
        assert t >= lu[("CX", 0)]
        place(self.dma_p2(stages[2], slot_of[stages[2]], False, 0, 0, 0), t + 1, 1)
        t = lu[("S", 0)]; fbar(t); place(self.dma_p2(stages[1], slot_of[stages[1]], False, 0, 0, 0), t + 1, 1)
        t = lu[("S", 1)]
        sl.put(t, [wvm("hst"), o("s_barrier")])
        sl.put(t + 1, [o(f"v_mov_b32 v{V_PF}, 2")])
        sl.put(t + 2, [vm(f"buffer_store_dword v{V_PF}, v{V_ONE0}, s[{SR_WS}:{SR_WS+3}], s{S_FL} offen sc1", "fl2h")])
        pass
        a0 = P2_0 + 3
        t0r, t1r = 240, 241
        SC = SLOT
        W3D = SPARE - SLOT - 3*12288
        N1A = SPARE + 12288
        wr = [G([o(f"s_mul_i32 s{S_C}, s{S_W}, 12288"), o(f"s_add_u32 s{S_C}, s{S_C}, {SC}")]),
              G([o(f"s_cmp_eq_u32 s{S_W}, 3"), o(f"s_cselect_b32 s{S_ST1}, {W3D}, 0"), o(f"s_add_u32 s{S_C}, s{S_C}, s{S_ST1}")]),
              o(f"v_lshrrev_b32 v{t0r}, 4, v0"), o(f"v_mul_u32_u24 v{t0r}, 768, v{t0r}"), o(f"v_and_b32 v{t1r}, 15, v0"), o(f"v_lshlrev_b32 v{t1r}, 2, v{t1r}"),
              o(f"v_add_u32 v{t0r}, v{t0r}, v{t1r}"), o(f"v_add_u32 v{t0r}, s{S_C}, v{t0r}")]
        for pq, accf in ((0, accP), (1, accQ)):
            for tt in range(2):
                for ss in range(3):
                    for r in range(4):
                        wr += [ds(f"ds_write_b32 v{t0r}, v{accf(tt,ss)+r} offset:{pq*6144 + (16*tt + r)*192 + ss*64}", "sred_w")]
        e = sl.stream(wr, a0, a0 + 30)
        wr2 = [G([o(f"s_mul_i32 s{S_C}, s{S_W}, 768"), o(f"s_add_u32 s{S_C}, s{S_C}, {N1A}")]), o(f"v_lshlrev_b32 v{t1r}, 2, v0"), o(f"v_add_u32 v{t1r}, s{S_C}, v{t1r}")]
        for ss in range(3): wr2 += [ds(f"ds_write_b32 v{t1r}, v{A1024[ss]} offset:{ss*256}", "sred_w")]
        e = sl.stream(wr2, e + 1, e + 6)
        b1 = e + 1
        sl.put(b1, [wlg("sred_w"), o("s_barrier")])
        R0, R1 = 128, 64
        R0, R1 = 112, 48
        A0, A1, YD0, YM0, YD1, YM1 = 232, 233, 234, 235, 236, 237
        ad = [G([o(f"s_lshl_b32 s{T3}, s{S_W}, 3"), o(f"s_lshl_b32 s{T4}, s{S_TAU}, 5"), o(f"s_add_u32 s{T4}, s{T4}, s{T3}")]),
              G([o(f"s_mul_i32 s{T3}, s{T3}, 192"), o(f"s_add_u32 s{T3}, s{T3}, {SC}"), o(f"s_and_b32 s{T5}, s{S_J}, 7")]),
              o(f"s_mul_i32 s{T5}, s{T5}, 144"),
              o(f"v_lshrrev_b32 v238, 3, v0"), o(f"v_and_b32 v239, 7, v0"),
              o(f"v_mul_u32_u24 v{A0}, 192, v238"), o(f"v_lshlrev_b32 v239, 4, v239"), o(f"v_add_u32 v{A0}, v{A0}, v239"), o(f"v_add_u32 v{A0}, s{T3}, v{A0}"),
              o(f"v_add_u32 v238, s{T4}, v238"),
              o(f"v_add_u32 v239, s{T5}, v239"),
              o(f"v_mul_u32_u24 v{YD0}, {YP}, v238"), o(f"v_add_u32 v{YD0}, v{YD0}, v239"),
              o(f"v_sub_u32 v{YM0}, 2048, v238"), o(f"v_mul_u32_u24 v{YM0}, {YP}, v{YM0}"), o(f"v_add_u32 v{YM0}, v{YM0}, v239"),
              G([o(f"v_cmp_eq_u32 vcc, 0, v238"), o(f"v_mov_b32 v238, {OOB:#x}"), o("v_nop"), o(f"v_cndmask_b32 v{YM0}, v{YM0}, v238, vcc")]),
              o(f"v_and_b32 v238, 7, v0"), o(f"v_lshrrev_b32 v239, 3, v0"), o(f"v_add_u32 v239, 8, v239"), o(f"v_min_u32 v239, 9, v239"),
              o(f"v_mul_u32_u24 v{A1}, 192, v238"), o(f"v_lshlrev_b32 v239, 4, v239"), o(f"v_add_u32 v{A1}, v{A1}, v239"), o(f"v_add_u32 v{A1}, s{T3}, v{A1}"),
              o(f"v_add_u32 v238, s{T4}, v238"), o(f"v_add_u32 v239, s{T5}, v239"),
              o(f"v_mul_u32_u24 v{YD1}, {YP}, v238"), o(f"v_add_u32 v{YD1}, v{YD1}, v239"),
              o(f"v_sub_u32 v{YM1}, 2048, v238"), o(f"v_mul_u32_u24 v{YM1}, {YP}, v{YM1}"), o(f"v_add_u32 v{YM1}, v{YM1}, v239"),
              G([o(f"v_cmp_eq_u32 vcc, 0, v238"), o(f"v_mov_b32 v238, {OOB:#x}"), o("v_nop"), o(f"v_cndmask_b32 v{YM1}, v{YM1}, v238, vcc")]),
              G([o(f"s_cmp_eq_u32 s{T5}, {7*144}"), o(f"s_cselect_b32 s{T5}, 16, 8")]),
              G([o(f"v_cmp_gt_u32 vcc, s{T5}, v0"), o("v_nop"), o("v_nop"), o(f"v_cndmask_b32 v{YD1}, v238, v{YD1}, vcc"), o(f"v_cndmask_b32 v{YM1}, v238, v{YM1}, vcc")]),
              o(f"s_mov_b32 s{T4}, {WS_YH}"),
              o(f"v_lshlrev_b32 v238, 2, v0"), o(f"v_add_u32 v238, {N1A}, v238"),
              o(f"v_add_u32 v243, {W3D + 3*12288}, v{A0}"), o(f"v_add_u32 v244, {W3D + 3*12288}, v{A1}")]
        e = sl.stream(ad, a0 + 2, b1)
        assert e <= b1 + 6
        def rds(R, A, tag):
            A3 = 243 if A == A0 else 244
            return [ds(f"ds_read_b128 v[{R + 16*pq + 4*ww}:{R + 16*pq + 4*ww + 3}], v{A if ww < 3 else A3} offset:{(ww*12288 if ww < 3 else 0) + pq*6144}", tag) for pq in range(2) for ww in range(4)]
        N1 = 216
        n1r = [ds(f"ds_read_b32 v{N1+4*ss+ww}, v238 offset:{ww*768 + ss*256}", "sred_n") for ss in range(3) for ww in range(4)]
        e = sl.stream(rds(R0, A0, "sr0") + rds(R1, A1, "sr1") + n1r, max(e, b1) + 1, max(e, b1) + 12)
        b2 = e + 3
        sl.put(b2, [wlg("sred_n"), o("s_barrier")])
        self.b2 = b2
        def fin(R, YD, YM):
            out = []
            for pq in range(2):
                b_ = R + 16*pq
                for k in range(4):
                    out += [o(f"v_add_f32 v{b_+k}, v{b_+k}, v{b_+4+k}"), o(f"v_add_f32 v{b_+8+k}, v{b_+8+k}, v{b_+12+k}"), o(f"v_add_f32 v{b_+k}, v{b_+k}, v{b_+8+k}")]
            for k in range(4):
                out += [o(f"v_sub_f32 v{R+4+k}, v{R+k}, v{R+16+k}"), o(f"v_add_f32 v{R+8+k}, v{R+k}, v{R+16+k}")]
            out += [vm(f"buffer_store_dwordx4 v[{R+4}:{R+7}], v{YD}, s[{SR_WS}:{SR_WS+3}], s{T4} offen sc1", "yst"),
                    vm(f"buffer_store_dwordx4 v[{R+8}:{R+11}], v{YM}, s[{SR_WS}:{SR_WS+3}], s{T4} offen sc1", "yst")]
            return out
        n1 = []
        for ss in range(3):
            b_ = N1 + 4*ss
            n1 += [o(f"v_add_f32 v{b_}, v{b_}, v{b_+1}"), o(f"v_add_f32 v{b_+2}, v{b_+2}, v{b_+3}"), o(f"v_add_f32 v{b_}, v{b_}, v{b_+2}")]
        n1 += [G([o(f"s_or_b32 s{T3}, s{S_TAU}, s{S_W}"), o(f"s_cmp_eq_u32 s{T3}, 0"), o(f"s_cselect_b32 s{T3}, 16, 0")]),
               G([o(f"v_cmp_gt_u32 vcc, s{T3}, v0"), o(f"v_mov_b32 v238, {1024*YP}"), o(f"v_mov_b32 v239, {OOB:#x}"), o(f"v_cndmask_b32 v238, v239, v238, vcc")])]
        for ss in range(3):
            n1 += [o(f"v_add_u32 v{N1+4*ss+1}, v238, v{V_YC[ss]}")]
        n1 += [vm(f"buffer_store_dword v{N1+4*ss}, v{N1+4*ss+1}, s[{SR_WS}:{SR_WS+3}], s{T4} offen sc1", "yst") for ss in range(3)]
        e = sl.stream(fin(R1, YD1, YM1) + fin(R0, YD0, YM0), b2 + 1, P2_0 + 66, spill=3)
        assert e < P2_0 + 72, e
        e = sl.stream(n1, e + 1, e + 16)
        assert e < P2_0 + 100, e
        gpar = fu[("s2", (0, "par"))]
        PF2 = 231
        sl.put(660, [G([o(f"s_xor_b32 s{T0}, s{S_LID}, 1"), o(f"s_lshl_b32 s{T1}, s{T0}, 7"), o(f"s_add_u32 s{T1}, s{T1}, {WS_FLAG}")])])
        sl.put(661, [G([o(f"s_lshl_b32 s{T0}, s{T0}, 2"), o(f"s_add_u32 s{T0}, s{T0}, s{S_W}"), o(f"s_mul_i32 s{T0}, s{T0}, {18*1024}")]), o(f"s_add_u32 s{T0}, s{T0}, {WS_HX}")])
        pl = f"buffer_load_dword v242, off, s[{SR_WS}:{SR_WS+3}], s{T1} sc1"
        h1 = self.opts.get("h1", P2_0 - 12)
        sl.put(h1, [vm(pl, "hpoll1")])
        sl.put(h1 + 12, [wvm("hpoll1")])
        sl.put(h1 + 13, [o(f"v_readfirstlane_b32 s{T2}, v242")])
        M[h1 + 16].setdefault("before", []).extend(
            [o(f"s_cmp_ge_u32 s{T2}, 1"), o("s_cbranch_scc1 L_hq_ok")] +
            self.spin("L_hq", [o(pl)], [o(f"v_readfirstlane_b32 s{T2}, v242"), o("s_nop 3"), o(f"s_cmp_ge_u32 s{T2}, 1")]))
        def hload(k, n, t, tag):
            sl.put(t, [o(f"s_add_u32 s{T6}, s{T0}, {k*1024}")])
            sl.put(t + 1, self.dload([f"buffer_load_dwordx4 a[{AZ+4*(k+q)}:{AZ+4*(k+q)+3}], v{V_L16}, s[{SR_WS}:{SR_WS+3}], s{T6} offen offset:{q*1024}" for q in range(n)], tag, True))
        for i in range(6):
            hload(2*i, 2, h1 + 17 + 9*i, ("hp", i))
        tp = P2_0 + self.opts.get("tp2", 74)
        assert tp - 13 > h1 + 17 + 9*5 + 1
        sl.put(tp - 13, [vm(pl, "hpoll2")])
        sl.put(tp - 2, [wvm("hpoll2")])
        sl.put(tp - 1, [o(f"v_readfirstlane_b32 s{T2}, v242")])
        M[tp + 2].setdefault("before", []).extend(
            [o(f"s_cmp_ge_u32 s{T2}, 2"), o("s_cbranch_scc1 L_hp_ok")] +
            self.spin("L_hp", [o(pl)], [o(f"v_readfirstlane_b32 s{T2}, v242"), o("s_nop 3"), o(f"s_cmp_ge_u32 s{T2}, 2")]))
        for i in range(3):
            hload(12 + 2*i, 2, tp + 4 + 6*i, ("hp", 6 + i))
        sl.put(gpar - 2, [wvm(("hp", 5))])
        for i in range(3):
            sl.put(gpar + 12 + 2*i - 2, [wvm(("hp", 6 + i))])
        for i in range(3, 9):
            st = stages[i]; slot = slot_of[st]
            prev = [j for j in range(i) if slot_of[stages[j]] == slot]
            if prev:
                t = lu[("s2", stages[prev[-1]])]; fbar(t); start = t + 1
            else:
                start = b2 + 1
            grps = self.dma_p2(st, slot, False, 250, 251, 0)
            if st[0] == 4:
                grps = [[o(f"s_and_b32 s{S_C}, s{S_W}, 1"), o(f"s_mul_i32 s{S_C}, s{S_C}, {16*1152}")]] + grps
                place(grps, start, 1)
            else:
                place(grps, start, 2)
        s4 = slot_of[(4, "both")]
        ins = [o("v_lshrrev_b32 v250, 5, v0"), o("v_lshlrev_b32 v250, 8, v250"),
               o("v_bfe_u32 v251, v0, 2, 2"), o("v_lshlrev_b32 v251, 6, v251"), o("v_add_u32 v250, v250, v251"),
               o("v_bfe_u32 v251, v0, 4, 1"), o("v_lshlrev_b32 v251, 5, v251"), o("v_add_u32 v250, v250, v251"),
               o("v_and_b32 v251, 3, v0"), o("v_lshlrev_b32 v251, 3, v251"), o("v_add_u32 v250, v250, v251"),
               o(f"v_add_u32 v{V_R8}, {s4*SLOT}, v250")]
        sl.stream(ins, P2_0 + 150, P2_0 + 175)
        self.pipe_reduce(sl, M, fu, lu, P2_0, N)
        for (u, half), tl in sorted(tile_last.items(), key=lambda x: x[1]):
            acc = ACC[u][half]
            par = half
            t = TMP + 8*par
            st = S_ST0 + par
            ins = [o(f"v_cvt_pk_bf16_f32 v{t+i}, v{acc+2*i}, v{acc+2*i+1}") for i in range(8)]
            if u == 3 and half == 1: continue
            if u < 3: ins += [o(f"s_add_u32 s{st}, s{S_QU[u]}, {half*2048}")]
            elif u == 3: ins += [o(f"s_mov_b32 s{st}, s{S_QN}")]
            else: ins += [o(f"s_mov_b32 s{st}, s{S_Q8}")]
            ins += self.dstore([f"buffer_store_dwordx4 v[{t}:{t+3}], v{V_L16}, s[{SR_WS}:{SR_WS+3}], s{st} offen",
                                f"buffer_store_dwordx4 v[{t+4}:{t+7}], v{V_L16}, s[{SR_WS}:{SR_WS+3}], s{st} offen offset:1024"], ("pst", u))
            s0 = tl + 4
            if s0 + 10 <= N: sl.stream(ins, s0, s0 + 10)
            else: self.tail2 = [o("s_nop 15")] + ins

    def item_setup(self, kind, R, srd=None, split=False):
        t0, t1, t2, t3 = R["t"]
        sQ, sH, sB, sT = T2, T3, T4, T5
        L = []
        LD = []
        SW = SR_WS if srd is None else srd
        if kind == "A":
            L += [G([o(f"s_lshl_b32 s{sT}, s{S_J}, 2"), o(f"s_add_u32 s{sT}, s{sT}, s{S_W}"), o(f"s_lshr_b32 s{sQ}, s{sT}, 3")]),
                  G([o(f"s_cmp_lt_u32 s{sQ}, 4"), o(f"s_cselect_b32 s{sH}, 0, 6"), o(f"s_add_u32 s{sQ}, s{sQ}, s{sH}")])]
        elif kind in "BC":
            lo, hi = (4, 12) if kind == "B" else (6, 14)
            L += [G([o(f"s_lshl_b32 s{sT}, s{S_J}, 1"), o(f"s_lshr_b32 s{sH}, s{S_W}, 1"), o(f"s_add_u32 s{sT}, s{sT}, s{sH}")]),
                  G([o(f"s_lshr_b32 s{sQ}, s{sT}, 3"), o(f"s_cmp_lt_u32 s{sQ}, 2"), o(f"s_cselect_b32 s{sH}, {lo}, {hi}")]),
                  o(f"s_add_u32 s{sQ}, s{sQ}, s{sH}")]
        else:
            L += [G([o(f"s_lshr_b32 s{sT}, s{S_J}, 1"), o(f"s_and_b32 s{sQ}, s{S_J}, 1"), o(f"s_add_u32 s{sQ}, s{sQ}, 8")])]
        L += [G([o(f"s_and_b32 s{sH}, s{sT}, 1"), o(f"s_bfe_u32 s{sB}, s{sT}, 0x20001"), o(f"s_lshl_b32 s{sT}, s{S_MT}, 2")]),
              o(f"s_add_u32 s{sB}, s{sB}, s{sT}"),
              G([o(f"s_mul_i32 s{sT}, s{sB}, 18"), o(f"s_add_u32 s{sT}, s{sT}, s{sQ}"), o(f"s_lshl_b32 s{sT}, s{sT}, 1")]),
              G([o(f"s_add_u32 s{sT}, s{sT}, s{sH}"), o(f"s_lshl_b32 s{sT}, s{sT}, 10")])]
        so = R["so"]
        for p in range(8): L += [o(f"s_add_u32 s{so+p}, s{sT}, {p*PART_BYTES}")]
        if kind == "A":
            L += [o(f"v_mov_b32 v{t3}, 0")]
        elif kind in "BC":
            L += [o(f"s_and_b32 s{sT}, s{S_W}, 1"), o(f"v_bfe_u32 v{t0}, v0, 4, 1"), o(f"v_mov_b32 v{t1}, {OOB:#x}"), o(f"v_mov_b32 v{t3}, 0"),
                  G([o(f"v_cmp_eq_u32 vcc, s{sT}, v{t0}"), o("v_nop"), o("v_nop"), o(f"v_cndmask_b32 v{t3}, v{t1}, v{t3}, vcc")])]
        else:
            L += [o(f"v_bfe_u32 v{t0}, v0, 3, 2"), o(f"v_mov_b32 v{t1}, {OOB:#x}"), o(f"v_mov_b32 v{t3}, 0"),
                  G([o(f"v_cmp_eq_u32 vcc, s{S_W}, v{t0}"), o("v_nop"), o("v_nop"), o(f"v_cndmask_b32 v{t3}, v{t1}, v{t3}, vcc")])]
        PV = R["PV"]
        L += [o(f"v_add_u32 v{PV}, v{t3}, v{V_L16}")]
        pk, pb = R["P"]
        ldp = [vm(f"buffer_load_dwordx4 {pk}[{pb+4*p}:{pb+4*p+3}], v{PV}, s[{SW}:{SW+3}], s{so+p} offen sc1", ("it", kind)) for p in range(8)]
        if split: LD += ldp
        else: L += ldp
        X, Y, OA = R["X"], R["Y"], R["OA"]
        L += [o(f"s_lshl_b32 s{sT}, s{sB}, 4"), o(f"v_and_b32 v{t0}, 15, v0"), o(f"v_add_u32 v{t0}, s{sT}, v{t0}"),
              o(f"v_sub_u32 v{t1}, 2048, v{t0}"), o(f"v_mov_b32 v{t2}, 1024"), o(f"v_mov_b32 v{OA}, 0"),
              G([o(f"v_cmp_eq_u32 vcc, 0, v{t0}"), o("v_nop"), o("v_nop"), o(f"v_cndmask_b32 v{X}, v{t1}, v{t2}, vcc"),
                 o(f"v_cndmask_b32 v{t1}, v{t1}, v{OA}, vcc"), o(f"v_cndmask_b32 v{t2}, v{t0}, v{t2}, vcc")]),
              o(f"v_and_b32 v{OA}, 16, v0"),
              G([o(f"v_cmp_eq_u32 vcc, 0, v{OA}"), o("v_nop"), o("v_nop"), o(f"v_cndmask_b32 v{t0}, v{X}, v{t0}, vcc"), o(f"v_cndmask_b32 v{t1}, v{t2}, v{t1}, vcc")]),
              G([o(f"s_lshl_b32 s{sT}, s{sQ}, 6"), o(f"s_lshl_b32 s{sB}, s{sH}, 5"), o(f"s_add_u32 s{sT}, s{sT}, s{sB}")]),
              o(f"v_mul_u32_u24 v{t2}, 1152, v{t0}"), o(f"v_add_u32 v{t2}, s{sT}, v{t2}"), o(f"v_add_u32 v{t2}, v{t2}, v{t3}"),
              o(f"v_lshrrev_b32 v{X}, 5, v0"), o(f"v_lshlrev_b32 v{OA}, 4, v{X}"), o(f"v_add_u32 v{OA}, v{t2}, v{OA}"),
              o(f"v_lshlrev_b32 v{X}, 3, v{X}"), o(f"v_add_u32 v{t2}, v{t2}, v{X}"),
              vm(f"buffer_load_dwordx2 v[{X}:{X+1}], v{t2}, s[{SR_X}:{SR_X+3}], 0 offen", ("it", kind)),
              vm(f"buffer_load_dwordx2 v[{X+2}:{X+3}], v{t2}, s[{SR_X}:{SR_X+3}], 0 offen offset:16", ("it", kind)),
              G([o(f"s_lshl_b32 s{sT}, s{sT}, 1"), o(f"s_cmp_lt_u32 s{sQ}, 9"), o(f"s_cselect_b32 s{R['rev']}, 0, 1")]),
              G([o(f"s_sub_u32 s{sB}, 2292, s{sT}"), o(f"s_cmp_lt_u32 s{sQ}, 9"), o(f"s_cselect_b32 s{sT}, s{sT}, s{sB}"), o(f"s_cselect_b32 s{sB}, 1, -1")]),
              G([o(f"v_cmp_eq_u32 vcc, 1, v{PV}") if False else o(f"v_mov_b32 v{t2}, s{R['rev']}"), o(f"v_cmp_eq_u32 vcc, 1, v{t2}"), o("v_nop"), o("v_nop"),
                 o(f"v_cndmask_b32 v{t0}, v{t0}, v{t1}, vcc")]),
              o(f"v_mul_u32_u24 v{t0}, {YP}, v{t0}"), o(f"v_add_u32 v{t0}, s{sT}, v{t0}"), o(f"v_add_u32 v{t0}, v{t0}, v{t3}"),
              o(f"v_lshrrev_b32 v{t1}, 5, v0"), o(f"v_lshlrev_b32 v{t1}, 4, v{t1}"), o(f"v_mul_lo_u32 v{t1}, v{t1}, s{sB}"),
              o(f"v_add_u32 v{t0}, v{t0}, v{t1}"),
              o(f"s_lshl_b32 s{sB}, s{sB}, 5"), o(f"v_add_u32 v{t1}, s{sB}, v{t0}"), o(f"v_add_u32 v{t0}, {WS_YH}, v{t0}"), o(f"v_add_u32 v{t1}, {WS_YH}, v{t1}")]
        ldy = [vm(f"buffer_load_dwordx4 v[{Y}:{Y+3}], v{t0}, s[{SW}:{SW+3}], 0 offen sc1", ("it", kind)),
               vm(f"buffer_load_dwordx4 v[{Y+4}:{Y+7}], v{t1}, s[{SW}:{SW+3}], 0 offen sc1", ("it", kind))]
        if split:
            LD += ldy
            return L, LD
        return L + ldy

    def item_finish(self, kind, R):
        X, Y, OA = R["X"], R["Y"], R["OA"]
        t0, t1, t2, t3 = R["t"]
        pk, pb = R["P"]
        L = [wvm(("it", kind)),
             o(f"s_cmp_eq_u32 s{R['rev']}, 0"), o(f"s_cbranch_scc1 L_rv{kind}"),
             o(f"v_swap_b32 v{Y}, v{Y+3}"), o(f"v_swap_b32 v{Y+1}, v{Y+2}"), o(f"v_swap_b32 v{Y+4}, v{Y+7}"), o(f"v_swap_b32 v{Y+5}, v{Y+6}"),
             raw(f"L_rv{kind}:"),
             o(f"s_mov_b32 s{T0}, 0x3f80"), o(f"s_mov_b32 s{T1}, 0x3f800000")]
        for i in range(4):
            L += [o(f"v_dot2_f32_bf16 v{Y+2*i}, v{X+i}, s{T0}, v{Y+2*i}"), o(f"v_dot2_f32_bf16 v{Y+2*i+1}, v{X+i}, s{T1}, v{Y+2*i+1}")]
        for p in range(8):
            for i in range(4):
                r = pb + 4*p + i
                if pk == "a":
                    L += [o(f"v_accvgpr_read_b32 v{t0 + (i & 1)}, a{r}")]
                    src = t0 + (i & 1)
                else: src = r
                L += [o(f"v_dot2_f32_bf16 v{Y+2*i}, v{src}, s{T0}, v{Y+2*i}"), o(f"v_dot2_f32_bf16 v{Y+2*i+1}, v{src}, s{T1}, v{Y+2*i+1}")]
        L += [o("s_nop 2")]
        for i in range(4):
            L += [o(f"v_cvt_pk_bf16_f32 v{X+i}, v{Y+2*i}, v{Y+2*i+1}")]
        L += [o("s_nop 1"), o(f"v_permlane32_swap_b32 v{X}, v{X+2}"), o(f"v_permlane32_swap_b32 v{X+1}, v{X+3}"),
              vm(f"buffer_store_dwordx4 v[{X}:{X+3}], v{OA}, s[{SR_OUT}:{SR_OUT+3}], 0 offen{self.osfx}", "out")]
        return L

    def group_poll(self, label, val, vdst, voff):
        ld = f"buffer_load_dword v{vdst}, v{voff}, s[{SR_WS}:{SR_WS+3}], s{T6} offen sc1"
        chk = [o(f"v_cmp_le_u32 vcc, {val}, v{vdst}"), o("s_nop 0"), o(f"s_and_b32 s{T7}, vcc_lo, 0xff"), o(f"s_cmp_eq_u32 s{T7}, 0xff")]
        return ld, chk

    def items_cfg(self):
        self.RA = dict(P=("v", 80), X=112, Y=116, OA=124, PV=125, t=[126, 127, 16, 17], rev=24, so=16)
        self.RB = dict(P=("a", 0), X=18, Y=22, OA=30, PV=31, t=[48, 49, 50, 51], rev=25, so=16)
        self.RC = dict(P=("v", 176), X=208, Y=212, OA=220, PV=221, t=[222, 223, 224, 225], rev=26, so=16)
        self.RD = dict(P=("v", 128), X=160, Y=164, OA=172, PV=173, t=[174, 175, 226, 227], rev=27, so=84)

    def tail(self):
        L = list(self.late_loads)
        O = 128
        ld, chk = self.group_poll("L_f5", 5, 241, 242)
        L += [vm(ld, "fp5")]
        L += self.stamp("pub")
        RD = self.RDx; Ld = self.D_ld
        L += [wvm("op"), wvm("ox"), o(f"s_mov_b32 s{T0}, 0x3f80"), o(f"s_mov_b32 s{T1}, 0x3f800000"),
              o("s_cmp_eq_u32 s24, 0"), o("s_cbranch_scc1 L_oyd")]
        for g_ in range(4):
            for k in range(4): L += [o(f"v_add_f32 v{O+4*g_+k}, v{O+4*g_+k}, v{48 + 4*(3-g_) + 3 - k}")]
        L += [o("s_branch L_oyj"), raw("L_oyd:")]
        for r in range(16): L += [o(f"v_add_f32 v{O+r}, v{O+r}, v{48+r}")]
        L += [raw("L_oyj:")]
        for i in range(8):
            L += [o(f"v_dot2_f32_bf16 v{O+2*i}, v{24+i}, s{T0}, v{O+2*i}"), o(f"v_dot2_f32_bf16 v{O+2*i+1}, v{24+i}, s{T1}, v{O+2*i+1}")]
        for p in range(6):
            for i in range(8):
                L += [o(f"v_dot2_f32_bf16 v{O+2*i}, v{80+8*p+i}, s{T0}, v{O+2*i}"), o(f"v_dot2_f32_bf16 v{O+2*i+1}, v{80+8*p+i}, s{T1}, v{O+2*i+1}")]
        L += self.stamp("early")
        L += [wvm("fp5")] + chk + [o("s_cbranch_scc1 L_f5_ok")] + self.spin("L_f5", [o(ld)], chk) + [reset()]
        L += self.stamp("pok")
        L += [vm(f"buffer_load_dwordx4 v[16:19], v{V_L16}, s[{SR_WS}:{SR_WS+3}], s22 offen sc1", "sib"),
              vm(f"buffer_load_dwordx4 v[20:23], v{V_L16}, s[{SR_WS}:{SR_WS+3}], s22 offen offset:1024 sc1", "sib")]
        L += Ld
        L += [wvm("sib")]
        for i in range(8):
            L += [o(f"v_dot2_f32_bf16 v{O+2*i}, v{16+i}, s{T0}, v{O+2*i}"), o(f"v_dot2_f32_bf16 v{O+2*i+1}, v{16+i}, s{T1}, v{O+2*i+1}")]
        L += [o("s_nop 2")]
        for i in range(8): L += [o(f"v_cvt_pk_bf16_f32 v{24+i}, v{O+2*i}, v{O+2*i+1}")]
        L += [o("s_nop 1"), o("v_permlane32_swap_b32 v24, v26"), o("v_permlane32_swap_b32 v25, v27"),
              o("v_permlane32_swap_b32 v28, v30"), o("v_permlane32_swap_b32 v29, v31"),
              vm(f"buffer_store_dwordx4 v[24:27], v238, s[{SR_OUT}:{SR_OUT+3}], 0 offen{self.osfx}", "out"),
              vm(f"buffer_store_dwordx4 v[28:31], v238, s[{SR_OUT}:{SR_OUT+3}], 0 offen offset:32{self.osfx}", "out")]
        L += self.stamp("ownfin")
        L += self.item_finish("D", RD)
        return L

    def kernel(self, name):
        L = [raw(f".globl {name}"), raw(".p2align 8"), raw(f".type {name},@function"), raw(f"{name}:")]
        L += self.prologue()
        L += self.stamp("proend")
        L += self.ln_stats()
        L += self.stamp("stats")
        L += [o("s_barrier")]
        L += [o(f"s_mov_b32 s{S_A}, s{S_J}"), o(f"s_add_u32 s{S_B}, s{S_J}, 16")]
        L += self.h_dma(S_A, 2, "wz1")
        L += [o(f"s_cmp_lt_u32 s{S_J}, 2"), o("s_cbranch_scc0 L_noz2a")]
        L += [I(i.t, "o") if i.k == "vm" else i for i in self.h_dma(S_B, 3, "wz2")]
        L += [raw("L_noz2a:")]
        hd = []
        for sig in range(2):
            for grp in self.dma_p1(sig, sig): hd.append(grp)
        hd.append([o(f"s_lshl_b32 s{S_PF}, s{S_LID}, 2"), o(f"s_add_u32 s{S_PF}, s{S_PF}, s{S_W}"), o(f"s_mul_i32 s{S_PF}, s{S_PF}, 41"),
                   o(f"v_add_u32 v240, s{S_PF}, v0"), o("v_lshlrev_b32 v240, 7, v240"), o("v_cmp_gt_u32 vcc, 41, v0"), o("s_nop 1"),
                   o(f"v_cndmask_b32 v240, v{V_ONE0}, v240, vcc"),
                   vm(f"buffer_load_dword v{V_PF}, v240, s[{SR_WG}:{SR_WG+3}], 0 offen", "pf"),
                   vm(f"buffer_load_dword v{V_PF}, v240, s[{SR_WU}:{SR_WU+3}], 0 offen", "pf")])
        lf = self.ln_finish()
        per = -(-len(lf) // 18)
        k = 0
        for n, grp in enumerate(hd):
            L += grp
            if n < 18: L += lf[k:k + per]; k += per
        L += lf[k:]
        L += [o(f"v_subrev_u32 v{V_XA+i}, s{S_LX}, v{V_XA+i}") for i in range(4)]
        L += [o(f"v_add_u32 v{V_XA+i}, {2*SLOT}, v{V_XA+i}") for i in range(4)]
        L += self.stamp("lnfin")
        L += self.seg_norm_h()
        L += self.stamp("normH")
        L += self.h2_block()
        L += self.tr_bases()
        L += srd(SR_HZ, 36, 256)
        L += self.main()
        L += self.stamp("p2end")
        L += self.tail()
        L += self.stamp("end")
        if self.diag:
            L += [o("s_waitcnt vmcnt(0)"),
                  o(f"s_lshl_b32 s{T0}, s{S_LID}, 2"), o(f"s_add_u32 s{T0}, s{T0}, s{S_W}"), o(f"s_lshl_b32 s{T0}, s{T0}, 8"),
                  o(f"s_add_u32 s{T0}, s{T0}, {WS_STAMP}"), o("v_lshlrev_b32 v240, 2, v0"),
                  o(f"buffer_store_dword v{V_STAMP}, v240, s[{SR_WS}:{SR_WS+3}], s{T0} offen")]
        L += [raw("L_end:"), o("s_endpgm")]
        return finalize(flat(L))

NAME = "parallel_sum__spectral_fnet__geglu_ffn__prompt_kernel"
def build(diag=False, opts=None):
    hdr = open("parallel_sum__spectral_fnet__geglu_ffn__prompt.s.ref").read().split("\n")
    top = [l for l in hdr if l.startswith(";") and "@launch" not in l and "Override" not in l and "grid=ceil" not in l]
    g = Gen(diag, opts)
    lines = g.kernel(NAME)
    errs = hazard_check(lines)
    for e in errs[:30]: print("HAZARD:", e)
    txt = "\n".join(top) + "\n"
    txt += "; @launch grid=(256,1,1) block=(256,1,1) lds=163840\n"
    txt += '.amdgcn_target "amdgcn-amd-amdhsa--gfx950"\n.text\n'
    txt += "\n".join(lines) + "\n" + kernel_footer(NAME)
    return txt, g.names

if __name__ == "__main__":
    import sys, json
    opts = {}
    for a in sys.argv[2:]:
        if "=" in a:
            k, v = a.split("="); opts[k] = int(v)
    txt, names = build("diag" in sys.argv, opts)
    open(sys.argv[1], "w").write(txt)
    json.dump(names, open(sys.argv[1] + ".names", "w"))
```

```python
from fw import *
from sched import *
import math, struct

S, D, F = 2048, 576, 4608
SLOT = 36864
SPARE = 4*SLOT
PART_BYTES = S * D * 2
WS_PART = 0
WS_HX = 20 << 20
WS_ZF = 40 << 20
ZF_STRIDE = 66 * 1024
WS_YH = 42 << 20
YP = 320 * 4
WS_FLAG = 46 << 20
WS_STAMP = 48 << 20
OOB = 0x40000000
C0 = -2.0 * math.sqrt(2.0 / math.pi) * math.log2(math.e)
C1 = C0 * 0.044715
def f2u(f): return struct.unpack("<I", struct.pack("<f", f))[0]

V_L16 = 1
V_RA, V_RB = 2, 6
V_DM = 10
V_C0, V_C1 = 14, 15
GA = [[16, 32], [48, 64]]
UA = [[80, 96], [112, 128]]
HF = 144
TMP = 216
V_HACC = 232
V_XA = 248
V_R8 = 248
V_PF = 252
V_ONE0 = 253
V_D2 = 254
V_STAMP = 255
RX = 80
V_PERM = 224
V_NEGMU = 64
V_ONE = 231
V_SD = 232
V_SA = 236
V_SX = 240
V_ZP = 241
V_ZQ = 244
V_YC = [247, 250, 251]
V_LB = 232
AX = 0
AF = 144
NAF = 8
AZ = 176
SR_CS, SR_SS, SR_HZ, SR_X, SR_WG, SR_WU, SR_WD, SR_WS, SR_OUT = 4, 8, 12, 40, 44, 48, 52, 56, 60
S_W, S_MT, S_J = 64, 65, 66
S_LX, S_L9 = 67, 68
S_UB = 69
S_WD = 74
S_PB = 75
T0, T1, T2, T3, T4, T5, T6, T7 = 76, 77, 78, 79, 80, 81, 82, 83
S_N0 = 84
S_N1 = 16
S_CU = 25
S_Q0, S_Q8 = 30, 31
S_HB = 32
S_LID = 33
S_ST0, S_ST1 = 34, 35
S_CNT = 93
S_A, S_B, S_C = 94, 95, 96
S_TAU, S_ZB = 38, 39
S_PF = 97
S_XC = 0
S_QU = [30, 36, 37]
S_QN = 39
S_TO = 32
S_GA = 28
S_FL = 1
S_MODE = 2
S_D0 = 3

def srd(dst, ptr, nbytes):
    return [o(f"s_mov_b32 s{dst}, s{ptr}"), o(f"s_and_b32 s{dst+1}, s{ptr+1}, 0xffff"),
            o(f"s_mov_b32 s{dst+2}, {nbytes}"), o(f"s_mov_b32 s{dst+3}, 0x00020000")]
def mf32(acc, A, B, C): return o(f"v_mfma_f32_32x32x16_bf16 {acc}, {A}, {B}, {C}")
def mf16(acc, A, B, C): return o(f"v_mfma_f32_16x16x32_bf16 {acc}, {A}, {B}, {C}")

class DS2(I):
    pass

class Gen:
    def dload(self, texts, tag, pair=False):
        out = self.dstore(texts, tag, pair)
        if hasattr(out[0], "cost"): out[0].cost = 3 + len(texts)
        return out
    def dstore(self, texts, tag, pair=False):
        self.lab = getattr(self, "lab", 0) + 1
        n = self.lab
        if self.opts.get("forcemode") == 1 or not self.opts.get("local", 0) or (self.opts.get("cfg", 0) == 0 and not pair):
            return [vm(t + " sc1", tag) for t in texts]
        body = f"s_bitcmp1_b32 s{S_MODE}, 0\n    s_cbranch_scc1 L_dl{n}\n"
        body += "".join(f"    {t} sc1\n" for t in texts)
        body += f"    s_branch L_dj{n}\nL_dl{n}:\n"
        body += "".join(f"    {t}\n" for t in texts)
        body += f"L_dj{n}:"
        out = [I("buffer_store_multi " + body, "vm", tag)]
        out[0].t = body
        out[0].cost = 3 + 5*len(texts)
        for _ in texts[1:]:
            x = I("; (counted above)", "vm", tag); x.cost = 0; out.append(x)
        return out
    def __init__(self, diag=False, opts=None):
        self.osfx = ' sc1' if (opts or {}).get('osc1') else ''
        self.diag = diag; self.opts = opts or {}; self.nst = 0; self.names = []; self.pid = 0
    def stamp(self, name):
        if not self.diag: return []
        i = self.nst; self.nst += 1; self.names.append(name)
        return [o("s_memtime s[98:99]"), o("s_memrealtime s[100:101]"), o("s_waitcnt lgkmcnt(0)"),
                o(f"v_writelane_b32 v{V_STAMP}, s98, {i}"), o(f"v_writelane_b32 v{V_STAMP}, s100, {i+32}")]

    def paced(self, M, frags, setup, dist):
        N = len(M)
        sl = Slots(N)
        for g, m in enumerate(M):
            if m["op"] == 16: sl.budget[g] = 3
        head = []
        pid = self.pid; self.pid += 1
        def put(t, ins):
            if t < 0: head.extend(ins if isinstance(ins, list) else [ins])
            else: sl.put(t, ins)
        issue = {}
        for f, fr in enumerate(frags):
            t = fr["use"] - fr.get("dist", dist)
            issue[f] = t
            put(t, fr.get("pre", []))
            put(t, [ds(r, ("af", pid, f)) for r in fr["reads"]])
        waited = -1
        n0 = M[0]["need"]
        if n0 >= 0:
            tgt = max(n0, M[1]["need"])
            head.append(wlg(("af", pid, tgt))); waited = tgt
        for g in range(N - 1):
            nx = M[g+1]["need"]
            if nx > waited:
                tgt = nx
                if g + 2 < N and M[g+2]["need"] > nx and issue[M[g+2]["need"]] <= g - 3 and M[g+1]["op"] == 32: tgt = M[g+2]["need"]
                put(g, [wlg(("af", pid, tgt))]); waited = tgt
        setup(sl, head)
        L = list(head)
        for g, m in enumerate(M):
            L += m.get("before", [])
            c = "0" if m["first"] else m.get("C", m["acc"])
            if m.get("C") and m["first"]: c = m["C"]
            L.append((mf32 if m["op"] == 32 else mf16)(m["acc"], m["A"], m["B"], c))
            L += sl.emit(g)
        if self.opts.get("verbose"):
            over = [(g, sl.used[g], sl.budget[g]) for g in range(N) if sl.used[g] > sl.budget[g]]
            print(f"paced {pid}: N={N} over budget: {len(over)} total excess {sum(u-b for _,u,b in over)} avg used {sum(sl.used)/N:.2f}")
            if self.opts.get("verbose") > 1:
                for a in range(0, N, 36):
                    ex = sum(max(0, sl.used[g]-sl.budget[g]) for g in range(a, min(a+36, N)))
                    print(a, "used", sum(sl.used[a:a+36]), "budget", sum(sl.budget[a:a+36]), "excess", ex)
        return L

    def prologue(self):
        L = []
        if self.diag: L += [o(f"v_mov_b32 v{V_STAMP}, 0")]
        L += self.stamp("start")
        L += [o("s_load_dwordx16 s[16:31], s[0:1], 0"), o("s_load_dwordx8 s[32:39], s[0:1], 64"),
              o("s_cmp_ge_u32 s2, 256"), o("s_cbranch_scc1 L_end")]
        L += [o("v_lshrrev_b32 v2, 6, v0"), o("v_and_b32 v0, 63, v0"), o("s_nop 0"),
              o(f"v_readfirstlane_b32 s{S_W}, v2"),
              ] + self.idmap() + [
              o(f"s_mul_i32 s{S_LX}, s{S_W}, {SLOT}"), o(f"s_mul_i32 s{S_L9}, s{S_W}, 9216"),
              o(f"v_lshlrev_b32 v{V_L16}, 4, v0")]
        if self.opts.get("cpf", 1):
            L += [o("s_getpc_b64 s[82:83]"), raw("L_pc:"),
                  o(f"s_lshr_b32 s{T0}, s2, 3"), o(f"s_lshl_b32 s{T0}, s{T0}, 2"), o(f"s_add_u32 s{T0}, s{T0}, s{S_W}"),
                  o(f"s_lshl_b32 s{T0}, s{T0}, 9"),
                  o("v_and_b32 v2, 3, v0"), o("v_lshlrev_b32 v2, 7, v2"), o(f"v_add_u32 v2, s{T0}, v2"),
                  o("v_cmp_gt_u32 vcc, 4, v0"), o("s_and_saveexec_b64 s[80:81], vcc"),
                  vm(f"global_load_dword v{V_PF}, v2, s[82:83]", "pf"), o("s_mov_b64 exec, s[80:81]")]
        L += [o("v_lshrrev_b32 v2, 3, v0"), o("v_and_b32 v3, 7, v0"), o("v_lshrrev_b32 v4, 1, v2"),
              o("v_xor_b32 v3, v3, v4"), o("v_lshlrev_b32 v3, 4, v3"), o("v_xor_b32 v4, 64, v3"),
              o(f"s_lshl_b32 s{T0}, s{S_MT}, 6"), o(f"s_lshl_b32 s{T1}, s{S_W}, 4"), o(f"s_add_u32 s{T0}, s{T0}, s{T1}"),
              o(f"v_add_u32 v5, s{T0}, v2"), o("v_add_u32 v6, 8, v5"),
              o("v_sub_u32 v7, 2048, v5"), o("v_sub_u32 v8, 2048, v6"),
              o("v_cmp_eq_u32 vcc, 0, v5"), o("v_mov_b32 v9, 1024"), o("s_nop 0"),
              o("v_cndmask_b32 v7, v7, v9, vcc"),
              o(f"s_movk_i32 s{T1}, 1152"),
              o(f"v_mad_u32_u24 v240, v5, s{T1}, v3"), o(f"v_mad_u32_u24 v241, v6, s{T1}, v4"),
              o(f"v_mad_u32_u24 v242, v7, s{T1}, v3"), o(f"v_mad_u32_u24 v243, v8, s{T1}, v4")]
        if self.opts.get("xpf", 1) == 2:
            L += [o(f"s_lshl_b32 s{T0}, s{S_MT}, 4"), o(f"s_add_u32 s{T0}, s{T0}, s{S_J}"), o(f"s_lshl_b32 s{T0}, s{T0}, 2"), o(f"s_add_u32 s{T0}, s{T0}, s{S_W}"),
                  o(f"s_mul_i32 s{T0}, s{T0}, 18"), o(f"v_add_u32 v9, s{T0}, v0"), o("v_lshlrev_b32 v9, 7, v9"),
                  o("v_cmp_gt_u32 vcc, 18, v0"), o(f"v_mov_b32 v8, {OOB:#x}"), o("s_nop 0"), o("v_cndmask_b32 v9, v8, v9, vcc")]
        elif self.opts.get("xpf", 1):
            nsh = 16 if self.opts.get("cfg", 0) == 1 else 4
            per = 1152 // nsh // 4
            assert per <= 64 or True
            jj = f"s{S_J}"
            L += [o(f"s_and_b32 s{T0}, s{S_J}, {nsh-1}"), o(f"s_lshl_b32 s{T0}, s{T0}, 2"), o(f"s_add_u32 s{T0}, s{T0}, s{S_W}"), o(f"s_mul_i32 s{T0}, s{T0}, {per}"),
                  o(f"v_add_u32 v9, s{T0}, v0"),
                  o(f"s_mul_i32 s{T0}, s{S_MT}, {64*1152}"),
                  o(f"s_sub_u32 s{T1}, {(2048-63)*1152 - 576*128}, s{T0}"),
                  o("v_lshlrev_b32 v8, 7, v9"), o(f"v_add_u32 v7, s{T1}, v8"), o(f"v_add_u32 v8, s{T0}, v8"),
                  o("v_cmp_gt_u32 vcc, 0x240, v9"), o("s_nop 1"), o("v_cndmask_b32 v9, v7, v8, vcc"),
                  o(f"v_cmp_gt_u32 vcc, {min(per,64)}, v0"), o(f"v_mov_b32 v8, {OOB:#x}"), o("s_nop 0"), o("v_cndmask_b32 v9, v8, v9, vcc")]
        L += [o("s_waitcnt lgkmcnt(0)")]
        L += self.stamp("kernarg")
        L += srd(SR_X, 16, S*D*2)
        if self.opts.get("xpf", 1):
            L += [vm(f"buffer_load_dword v{V_PF}, v9, s[{SR_X}:{SR_X+3}], 0 offen", "pf")]
        HEAD = L
        P = []
        P += srd(SR_WG, 28, D*F*2) + srd(SR_WU, 30, D*F*2) + srd(SR_WD, 32, F*D*2) + srd(SR_WS, 38, 256 << 20) + srd(SR_OUT, 34, S*D*2)
        P += srd(SR_CS, 18, S*S*2) + srd(SR_SS, 20, S*S*2)
        P += [o(f"s_lshl_b32 s{T0}, s{S_W}, 6"), o(f"v_add_u32 v2, s{T0}, v0"), o("v_cmp_eq_u32 vcc, 0, v2"),
              o(f"v_mov_b32 v3, {OOB:#x}"), o("v_mov_b32 v4, 0"), o(f"v_cndmask_b32 v{V_ONE0}, v3, v4, vcc")]
        P += [o(f"s_lshl_b32 s{S_LID}, s{S_MT}, 4"), o(f"s_add_u32 s{S_LID}, s{S_LID}, s{S_J}")]
        P += [o(f"s_and_b32 s{T2}, s{S_J}, 1"), o(f"s_mul_i32 s{T0}, s{S_J}, 288"), o(f"s_mul_i32 s{T1}, s{T2}, 224"),
              o(f"s_add_u32 s{T1}, s{T0}, s{T1}"),
              G([o(f"s_cmp_eq_u32 s{T2}, 0"), o(f"s_cselect_b32 s{T3}, 64, -64"), o(f"s_cselect_b32 s{T4}, 256, 0")]),
              o(f"s_add_u32 s{T4}, s{T4}, s{T0}")]
        for u in range(4):
            P += [o(f"s_mul_i32 s{T5}, s{T3}, {u}"), o(f"s_add_u32 s{T5}, s{T5}, s{T1}"),
                  o(f"s_lshl_b32 s{S_UB+u}, s{T5}, 1"),
                  o(f"s_mul_i32 s{S_N0+2*u}, s{T5}, 1152"), o(f"s_add_u32 s{S_N0+2*u+1}, s{S_N0+2*u}, {32*1152}")]
        P += [o(f"s_lshl_b32 s{S_UB+4}, s{T4}, 1"), o(f"s_mul_i32 s{S_N0+8}, s{T4}, 1152")]
        P += [o(f"s_mov_b32 s{S_A}, s{S_UB}")]
        P += [o(f"s_mul_i32 s{T5}, s{S_W}, {72*9216}")]
        for u in range(4): P += [o(f"s_add_u32 s{S_UB+u}, s{S_UB+u}, s{T5}")]
        P += [o(f"s_lshl_b32 s{T5}, s{T5}, 1"), o(f"s_add_u32 s{S_UB+4}, s{S_UB+4}, s{T5}")]
        P += [o(f"s_lshr_b32 s{T0}, s{S_J}, 1"), o(f"s_mul_i32 s{S_PB}, s{T0}, {PART_BYTES}"),
              o(f"s_lshl_b32 s{T0}, s{S_MT}, 2"), o(f"s_add_u32 s{T0}, s{T0}, s{S_W}"),
              o(f"s_mul_i32 s{T0}, s{T0}, {18*2048}"), o(f"s_add_u32 s{S_PB}, s{S_PB}, s{T0}"),
              o(f"s_lshl_b32 s{T0}, s{S_LID}, 2"), o(f"s_add_u32 s{T0}, s{T0}, s{S_W}"),
              o(f"s_mul_i32 s{S_HB}, s{T0}, {18*1024}"), o(f"s_add_u32 s{S_HB}, s{S_HB}, {WS_HX}")]
        P += [o("v_lshrrev_b32 v2, 3, v0"), o("v_and_b32 v3, 7, v0"),
              o("v_bfe_u32 v4, v0, 4, 1"), o("v_lshlrev_b32 v4, 2, v4"), o("v_xor_b32 v3, v3, v4"), o("v_lshlrev_b32 v3, 4, v3"),
              o(f"v_mul_u32_u24 v2, 9216, v2"), o(f"v_add_u32 v{V_DM}, v2, v3")]
        for t in range(1, 4): P += [o(f"v_add_u32 v{V_DM+t}, {t*(8*9216-1024)}, v{V_DM}")]
        P += [o("v_and_b32 v2, 31, v0"), o("v_bfe_u32 v3, v0, 1, 3"), o("v_lshrrev_b32 v4, 5, v0"), o("v_xor_b32 v3, v3, v4"),
              o("v_lshlrev_b32 v3, 4, v3"), o("v_lshlrev_b32 v2, 7, v2"), o("v_add_u32 v2, v2, v3"),
              o(f"v_add_u32 v{V_XA}, s{S_LX}, v2"),
              o(f"v_xor_b32 v{V_XA+1}, 32, v{V_XA}"), o(f"v_xor_b32 v{V_XA+2}, 64, v{V_XA}"), o(f"v_xor_b32 v{V_XA+3}, 96, v{V_XA}")]
        P += [o("v_and_b32 v2, 15, v0"),
              o("v_and_b32 v3, 3, v2"), o("v_bfe_u32 v4, v2, 2, 1"), o("v_bfe_u32 v5, v2, 3, 1"),
              o("v_lshlrev_b32 v4, 3, v4"), o("v_lshlrev_b32 v5, 2, v5"), o("v_or_b32 v3, v3, v4"), o("v_or_b32 v3, v3, v5"),
              o("v_lshrrev_b32 v4, 3, v3"), o("v_lshrrev_b32 v5, 5, v0"),
              o("v_and_b32 v6, 1, v3"), o("v_lshlrev_b32 v6, 4, v6"), o("v_mov_b32 v7, 0x3f80"), o("v_lshlrev_b32 v7, v6, v7"), o("v_mov_b32 v8, 0"),
              G([o("v_cmp_eq_u32 vcc, v4, v5"), o("v_nop"), o("v_nop"), o("v_cndmask_b32 v7, v8, v7, vcc")]),
              o("v_bfe_u32 v6, v3, 1, 2"), o("v_bfe_u32 v9, v0, 4, 1")]
        for d in range(4):
            P += [G([o(f"v_cmp_eq_u32 vcc, {d}, v6"), o("v_nop"), o("v_nop"), o(f"v_cndmask_b32 v{V_PERM+d}, v8, v7, vcc")])]
        P += [G([o("v_cmp_eq_u32 vcc, 1, v9"), o("v_nop"), o("v_nop")] + [o(f"v_cndmask_b32 v{V_PERM+4+d}, v8, v{V_PERM+d}, vcc") for d in range(4)] +
                [o(f"v_cndmask_b32 v{V_PERM+d}, v{V_PERM+d}, v8, vcc") for d in range(4)])]
        L = []
        L += [o("v_mov_b32 v4, 0"), o(f"s_lshl_b32 s{T0}, s{S_LID}, 7"), o(f"s_add_u32 s{T0}, s{T0}, {WS_FLAG}"),
              vm(f"buffer_store_dword v4, v{V_ONE0}, s[{SR_WS}:{SR_WS+3}], s{T0} offen sc1", "flinit")]
        L += self.h_srd(S_J)
        if self.opts.get("pf", 1):
            L += [o(f"s_and_b32 s{T0}, s{S_MT}, 7"), o(f"s_mul_i32 s{T0}, s{T0}, 36"), o(f"s_mul_i32 s{T1}, s{S_W}, 9"), o(f"s_add_u32 s{T0}, s{T0}, s{T1}"),
                  o(f"v_add_u32 v2, s{T0}, v0"), o(f"v_mov_b32 v4, {OOB:#x}"),
                  o(f"s_mov_b32 s{T1}, {(2**32+8)//9}"), o(f"v_mul_hi_u32 v5, v2, s{T1}"), o("v_mul_u32_u24 v6, 9, v5"), o("v_sub_u32 v6, v2, v6"),
                  o(f"v_add_u32 v5, s{T7}, v5"), o(f"v_mul_u32_u24 v5, 1152, v5"), o("v_lshlrev_b32 v6, 7, v6"), o("v_add_u32 v5, v5, v6"),
                  o(f"v_mul_u32_u24 v3, 9216, v2"),
                  o("v_cmp_gt_u32 vcc, 9, v0"), o("s_nop 1"), o("v_cndmask_b32 v3, v4, v3, vcc"), o("v_cndmask_b32 v5, v4, v5, vcc"),
                  vm(f"buffer_load_dword v{V_PF}, v5, s[{SR_HZ}:{SR_HZ+3}], 0 offen", "pf")]
            L += [o(f"s_cmp_lt_u32 s{S_J}, 2"), o("s_cbranch_scc0 L_nopf2"),
                  o(f"s_mov_b32 s{T0}, {7*32*1152}"),
                  o(f"v_add_u32 v6, s{T0}, v5"), o("v_cmp_gt_u32 vcc, 9, v0"), o("s_and_saveexec_b64 s[82:83], vcc"),
                  o(f"global_load_dword v{V_PF}, v6, s[24:25]"),
                  o("s_mov_b64 exec, s[82:83]"), raw("L_nopf2:")]
            for sig in range(self.opts.get("npf", 4)):
                mat, kh = (sig // 2) % 2, sig % 2
                assert sig < 4
                rs = SR_WG if mat == 0 else SR_WU
                L += [o(f"s_add_u32 s{T6}, s{S_A}, {kh*288*9216}"),
                      vm(f"buffer_load_dword v{V_PF}, v3, s[{rs}:{rs+3}], s{T6} offen", "pf")]
        post = L
        for n, i in enumerate(P):
            if not isinstance(i, G) and i.t.startswith("v_cmp_eq_u32 vcc, 0, v2"):
                P[n:n+4] = [G(P[n:n+4])]
                break
        out = HEAD
        flatx = []
        for kap in range(9):
            xl = self.x_line(kap)
            flatx += [xl[3*r:3*r+3] for r in range(4)]
        npre = len(P); pi = 0
        first = self.opts.get("xfree", 10)
        for n, g in enumerate(flatx):
            out += g
            if n >= first:
                take = -(-(npre - pi) // (36 - n))
                for it in P[pi:pi + take]: out += (list(it) if isinstance(it, G) else [it])
                pi += take
        out += self.stamp("xiss")
        L = out + post
        return L

    def tr_bases(self):
        L = []
        L += [o("v_lshrrev_b32 v16, 5, v0"), o("v_lshlrev_b32 v16, 10, v16"),
              o("v_bfe_u32 v17, v0, 2, 2"), o("v_lshlrev_b32 v17, 7, v17"), o("v_add_u32 v16, v16, v17"),
              o("v_bfe_u32 v17, v0, 3, 1"), o("v_lshlrev_b32 v17, 6, v17"), o("v_add_u32 v16, v16, v17"),
              o("v_bfe_u32 v17, v0, 4, 1"), o("v_lshlrev_b32 v17, 5, v17"), o("v_add_u32 v16, v16, v17"),
              o("v_and_b32 v17, 3, v0"), o("v_lshlrev_b32 v17, 3, v17"), o(f"v_add_u32 v{V_RA}, v16, v17")]
        for s in range(1, 4): L += [o(f"v_add_u32 v{V_RA+s}, {s*SLOT}, v{V_RA}")]
        for s in range(4): L += [o(f"v_xor_b32 v{V_RB+s}, 64, v{V_RA+s}")]
        return L

    def idmap(self):
        cfg = self.opts.get("cfg", 0)
        if cfg == 0:
            return [o(f"s_and_b32 s{S_J}, s2, 3"), o(f"s_lshl_b32 s{S_J}, s{S_J}, 2"),
              o(f"s_bfe_u32 s{T0}, s2, 0x20003"), o(f"s_or_b32 s{S_J}, s{S_J}, s{T0}"),
              o(f"s_bfe_u32 s{S_MT}, s2, 0x10002"), o(f"s_lshl_b32 s{S_MT}, s{S_MT}, 3"),
              o(f"s_lshr_b32 s{T0}, s2, 5"), o(f"s_or_b32 s{S_MT}, s{S_MT}, s{T0}")]
        if cfg == 1:
            return [o(f"s_and_b32 s{S_MT}, s2, 7"), o(f"s_lshl_b32 s{S_MT}, s{S_MT}, 1"), o(f"s_bfe_u32 s{T0}, s2, 0x10003"),
                    o(f"s_or_b32 s{S_MT}, s{S_MT}, s{T0}"), o(f"s_lshr_b32 s{S_J}, s2, 4")]
        if cfg == 2:
            return [o(f"s_and_b32 s{S_J}, s2, 1"), o(f"s_lshl_b32 s{S_J}, s{S_J}, 3"),
              o(f"s_bfe_u32 s{T0}, s2, 0x30003"), o(f"s_or_b32 s{S_J}, s{S_J}, s{T0}"),
              o(f"s_bfe_u32 s{S_MT}, s2, 0x20001"), o(f"s_lshl_b32 s{S_MT}, s{S_MT}, 2"),
              o(f"s_lshr_b32 s{T0}, s2, 6"), o(f"s_or_b32 s{S_MT}, s{S_MT}, s{T0}")]

    def h_srd(self, zreg):
        return [o(f"s_cmp_lt_u32 s{zreg}, 9"),
                o(f"s_cselect_b32 s{SR_HZ}, s22, s24"), o(f"s_cselect_b32 s{SR_HZ+1}, s23, s25"), o(f"s_cselect_b32 s{T7}, 0, 9"),
                o(f"s_and_b32 s{SR_HZ+1}, s{SR_HZ+1}, 0xffff"), o(f"s_mov_b32 s{SR_HZ+2}, {D*D*2}"), o(f"s_mov_b32 s{SR_HZ+3}, 0x00020000"),
                o(f"s_sub_u32 s{T7}, s{zreg}, s{T7}"), o(f"s_lshl_b32 s{T7}, s{T7}, 5")]

    def h_dma(self, zreg, slot, tag):
        L = self.h_srd(zreg)
        L += [o(f"s_lshl_b32 s{T1}, s{S_W}, 3"), o(f"s_add_u32 s{T0}, s{T7}, s{T1}"),
             o("v_lshrrev_b32 v240, 3, v0"), o("v_and_b32 v241, 7, v0"), o("v_lshrrev_b32 v242, 1, v240"), o("v_xor_b32 v241, v241, v242"),
             o(f"s_and_b32 s{T1}, s{S_W}, 1"), o(f"s_lshl_b32 s{T1}, s{T1}, 2"), o(f"v_xor_b32 v241, s{T1}, v241"),
             o("v_lshlrev_b32 v241, 4, v241"),
             o(f"v_add_u32 v240, s{T0}, v240"), o(f"s_movk_i32 s{T1}, 1152"), o(f"v_mad_u32_u24 v240, v240, s{T1}, v241"),
             o(f"s_lshl_b32 s{T1}, s{S_W}, 10"), o(f"s_add_u32 s{T1}, s{T1}, {slot*SLOT}")]
        for kap in range(9):
            L += [o(f"s_add_u32 m0, s{T1}, {4*kap*1024 - 128*kap}"), o("s_nop 0"),
                  vm(f"buffer_load_dwordx4 v240, s[{SR_HZ}:{SR_HZ+3}], 0 offen offset:{128*kap} lds", tag)]
        return L

    def h_special(self, zreg, slot, sfx):
        return [o(f"s_cmp_eq_u32 s{zreg}, 9"), o(f"s_cbranch_scc0 L_h_nosp{sfx}"), o(f"s_cmp_eq_u32 s{S_W}, 0"), o(f"s_cbranch_scc0 L_h_nosp{sfx}"),
                o("v_mov_b32 v16, 0xbf803f80"), o("v_mov_b32 v17, v16"), o("v_mov_b32 v18, v16"), o("v_mov_b32 v19, v16"),
                o("v_lshrrev_b32 v240, 3, v0"), o("v_lshlrev_b32 v240, 12, v240"), o("v_and_b32 v241, 7, v0"), o("v_lshlrev_b32 v241, 4, v241"),
                o("v_add_u32 v240, v240, v241"), o(f"v_add_u32 v240, {slot*SLOT}, v240"), o(f"v_add_u32 v241, {slot*SLOT}, v241"),
                o("ds_write_b128 v240, v[16:19]"), o("ds_write_b128 v241, v[16:19] offset:32768"),
                o("s_waitcnt lgkmcnt(0)"), raw(f"L_h_nosp{sfx}:")]

    def x_line(self, kap):
        L = []
        for rho in range(4):
            L += [o(f"s_add_u32 m0, s{S_LX}, {(4*kap+rho)*1024 - 128*kap}"), o("s_nop 0"),
                  vm(f"buffer_load_dwordx4 v{240+rho}, s[{SR_X}:{SR_X+3}], 0 offen offset:{128*kap} lds", ("x", kap))]
        return L
    def x_dma_variants(self):
        L = []
        for kap in range(self.opts.get("xpre", 3)): L += self.x_line(kap)
        return L
    def x_dma_variants_old(self):
        if not self.opts.get("rot", 0):
            L = []
            for kap in range(9):
                for rho in range(4):
                    L += [o(f"s_add_u32 m0, s{S_LX}, {(4*kap+rho)*1024 - 128*kap}"), o("s_nop 0"),
                          vm(f"buffer_load_dwordx4 v{240+rho}, s[{SR_X}:{SR_X+3}], 0 offen offset:{128*kap} lds", ("x", kap))]
            return L
        L = [o(f"s_and_b32 s{T0}, s{S_J}, 3")]
        for v in range(1, 4): L += [o(f"s_cmp_eq_u32 s{T0}, {v}"), o(f"s_cbranch_scc1 L_xd{v}")]
        for v in range(4):
            if v: L += [raw(f"L_xd{v}:")]
            for pos in range(9):
                kap = (self.K0[v] + pos) % 9
                for rho in range(4):
                    t = f"buffer_load_dwordx4 v{240+rho}, s[{SR_X}:{SR_X+3}], 0 offen offset:{128*kap} lds"
                    L += [o(f"s_add_u32 m0, s{S_LX}, {(4*kap+rho)*1024 - 128*kap}"), o("s_nop 0"),
                          (vm(t, ("x", pos)) if v == 3 else o(t))]
            if v < 3: L += [o("s_branch L_xdj")]
        L += [raw("L_xdj:")]
        return L
    K0 = [0, 2, 4, 7]

    def ln_stats(self):
        L = []
        SA = 16
        for i in range(8): L += [o(f"v_mov_b32 v{SA+i}, 0")]
        L += [o(f"s_mov_b32 s{T5}, 0x3f803f80")]
        def reads(kap):
            return [wvm(("x", kap))] + [ds(f"ds_read_b128 v[{RX+4*ks}:{RX+4*ks+3}], v{V_XA+(ks&3)} offset:{(ks//4)*4096}", ("xr", ks)) for ks in range(4*kap, 4*kap+4)]
        L += reads(0)
        for kap in range(9):
            if kap + 1 < 9: L += reads(kap + 1)
            L += self.stats_line(kap)
        return L
    def stats_line(self, kap):
        L = []
        SA = 16
        for ks in range(4*kap, 4*kap + 4):
            L += [wlg(("xr", ks))]
            for i in range(4):
                r = RX + 4*ks + i
                L += [o(f"v_dot2_f32_bf16 v{SA+i}, v{r}, s{T5}, v{SA+i}"),
                      o(f"v_dot2_f32_bf16 v{SA+4+i}, v{r}, v{r}, v{SA+4+i}")]
        return L

    def ln_stats_v(self, v, tracked, order):
        L = []
        SA = 16
        for i in range(8): L += [o(f"v_mov_b32 v{SA+i}, 0")]
        L += [o(f"s_mov_b32 s{T5}, 0x3f803f80")]
        def reads(pos):
            kap = order[pos]
            w = [wvmf(("x", pos))]
            return w + [o(f"ds_read_b128 v[{RX+4*ks}:{RX+4*ks+3}], v{V_XA+(ks&3)} offset:{(ks//4)*4096}") for ks in range(4*kap, 4*kap+4)]
        L += reads(0)
        L += self.stamp("x0")
        for pos in range(9):
            if pos == 4: L += self.stamp("x4")
            if pos + 1 < 9: L += reads(pos + 1)
            kap = order[pos]
            for n, ks in enumerate(range(4*kap, 4*kap + 4)):
                left = (3 - n) + (4 if pos + 1 < 9 else 0)
                L += [o(f"s_waitcnt lgkmcnt({left})")]
                for i in range(4):
                    r = RX + 4*ks + i
                    L += [o(f"v_dot2_f32_bf16 v{SA+i}, v{r}, s{T5}, v{SA+i}"),
                          o(f"v_dot2_f32_bf16 v{SA+4+i}, v{r}, v{r}, v{SA+4+i}")]
        return L

    def ln_stats_old(self):
        L = []
        SA = 16
        for i in range(8): L += [o(f"v_mov_b32 v{SA+i}, 0")]
        L += [o(f"s_mov_b32 s{T5}, 0x3f803f80")]
        def reads(kap):
            return [wvm(("x", kap))] + [ds(f"ds_read_b128 v[{RX+4*ks}:{RX+4*ks+3}], v{V_XA+(ks&3)} offset:{(ks//4)*4096}", ("xr", ks)) for ks in range(4*kap, 4*kap+4)]
        L += reads(0)
        for kap in range(9):
            if kap + 1 < 9: L += reads(kap + 1)
            for ks in range(4*kap, 4*kap + 4):
                L += [wlg(("xr", ks))]
                for i in range(4):
                    r = RX + 4*ks + i
                    L += [o(f"v_dot2_f32_bf16 v{SA+i}, v{r}, s{T5}, v{SA+i}"),
                          o(f"v_dot2_f32_bf16 v{SA+4+i}, v{r}, v{r}, v{SA+4+i}")]
        return L

    def ln_finish(self):
        SA = 16
        L = [o("s_nop 2"),
             o(f"v_add_f32 v{SA}, v{SA}, v{SA+1}"), o(f"v_add_f32 v{SA+2}, v{SA+2}, v{SA+3}"),
             o(f"v_add_f32 v{SA+4}, v{SA+4}, v{SA+5}"), o(f"v_add_f32 v{SA+6}, v{SA+6}, v{SA+7}"),
             o(f"v_add_f32 v24, v{SA}, v{SA+2}"), o(f"v_add_f32 v26, v{SA+4}, v{SA+6}"),
             o("v_mov_b32 v25, v24"), o("v_mov_b32 v27, v26"), o("s_nop 1"),
             o("v_permlane32_swap_b32 v24, v25"), o("v_permlane32_swap_b32 v26, v27"), o("s_nop 1"),
             o("v_add_f32 v24, v24, v25"), o("v_add_f32 v26, v26, v27"),
             o(f"s_mov_b32 s{T5}, {f2u(1.0/576):#x}"),
             o(f"v_mul_f32 v24, s{T5}, v24"), o(f"v_mul_f32 v26, s{T5}, v26"),
             o("v_fma_f32 v26, -v24, v24, v26"), o("v_max_f32 v26, 0, v26"),
             o("v_cvt_pk_bf16_f32 v24, v24, v26"),
             o("v_and_b32 v26, 0xffff0000, v24"), o("v_lshlrev_b32 v24, 16, v24"),
             o(f"v_xor_b32 v{V_NEGMU}, 0x80000000, v24")]
        for i in range(1, 16): L += [o(f"v_mov_b32 v{V_NEGMU+i}, v{V_NEGMU}")]
        L += [o(f"v_add_f32 v26, {f2u(1e-5):#x}, v26"),
              o("v_cvt_pk_bf16_f32 v26, v26, v26"), o("v_lshlrev_b32 v26, 16, v26"),
              o("v_sqrt_f32 v26, v26"), o("s_nop 0"),
              o("v_cvt_pk_bf16_f32 v26, v26, v26"), o("v_lshlrev_b32 v26, 16, v26"),
              o("v_rcp_f32 v27, v26"), o(f"v_mul_f32 v{V_D2}, v26, v26"),
              o(f"v_mul_f32 v{V_C0}, {f2u(C0):#x}, v27"), o("v_mul_f32 v28, v27, v27"), o("v_mul_f32 v28, v28, v27"),
              o(f"v_mul_f32 v{V_C1}, {f2u(C1):#x}, v28"),
              o("v_and_b32 v28, 31, v0"), o("v_lshlrev_b32 v28, 2, v28"), o(f"s_lshl_b32 s{T0}, s{S_W}, 12"), o(f"s_add_u32 s{T0}, s{T0}, {SPARE}"),
              o(f"v_add_u32 v28, s{T0}, v28"), ds("ds_write_b32 v28, v27", "rtab")]
        return L

    def seg_norm_h(self):
        M = []; frags = []
        def UBf(i):
            if i == 0: return 16
            if i % 2 == 0: return RX + 8*(i - 2)
            return (32, 48, 16)[((i - 1)//2) % 3]
        def nextuser(i):
            for k in range(i + 1, 18):
                if UBf(k) == UBf(i): return k
            return None
        posU = {}; posH = {}
        def U(i):
            b = UBf(i)
            M.append(dict(op=32, acc=f"v[{b}:{b+15}]", first=True, C=f"v[{V_NEGMU}:{V_NEGMU+15}]", A=f"v[{V_PERM}:{V_PERM+3}]", B=f"v[{RX+8*i}:{RX+8*i+3}]", need=-1))
            M.append(dict(op=32, acc=f"v[{b}:{b+15}]", first=False, A=f"v[{V_PERM+4}:{V_PERM+7}]", B=f"v[{RX+8*i+4}:{RX+8*i+7}]", need=-1))
            posU[i] = len(M) - 2
        def H(ks):
            f = len(frags); a = AF + 4*(f % NAF)
            frags.append(dict(reads=[f"ds_read_b128 a[{a}:{a+3}], v{V_XA+(ks&3)} offset:{(ks//4)*4096}"], use=len(M)))
            M.append(dict(op=32, acc=f"v[{V_HACC}:{V_HACC+15}]", first=(ks == 0), A=f"a[{AX+4*ks}:{AX+4*ks+3}]", B=f"a[{a}:{a+3}]", need=f))
            posH[ks] = len(M) - 1
        LAG = 5
        for i in range(18):
            U(i)
            if i >= LAG: H(2*(i-LAG)); H(2*(i-LAG)+1)
        for i in range(18 - LAG, 18): H(2*i); H(2*i+1)
        last = -1
        for m in M:
            if m["need"] < 0: m["need"] = last
            else: last = m["need"]
        g0 = frags[0]["use"] - 6
        M[g0].setdefault("before", []).extend([wvm("wz1")] + self.h_special(S_A, 2, "a") + [o("s_waitcnt lgkmcnt(0)"), o("s_barrier")])
        def setup(sl, head):
            sl.put(2, [o('s_nop 4')]); sl.put(3, [o('s_nop 4')])
            for i in range(18):
                b = UBf(i)
                ins = []
                for q in range(8):
                    t = 2 + 2*(i % 4) + (q % 2)
                    ins += [o(f"v_cvt_pk_bf16_f32 v{t}, v{b+2*q}, v{b+2*q+1}"), o(f"v_accvgpr_write_b32 a{AX+8*i+q}, v{t}")]
                start = posU[i] + 1 + 3
                end = min(posH[2*i] - 1, start + 11)
                if nextuser(i) is not None: end = min(end, posU[nextuser(i)])
                e = sl.stream(ins, start, end, spill=0)
                assert e < posH[2*i] - 0, (i, e, posH[2*i])
        return self.paced(M, frags, setup, 6)

    def h_epilogue(self, zreg, acc, rr, tb):
        L = []
        sg, f0 = tb + 8, tb + 9
        L += [G([o(f"s_cmp_lt_u32 s{zreg}, 9"), o(f"s_cselect_b32 s{S_ST0}, 1.0, -1.0")]), o(f"v_mov_b32 v{sg}, s{S_ST0}"),
              G([o(f"s_cmp_eq_u32 s{zreg}, 9"), o(f"s_cselect_b32 s{S_ST0}, 0, 99")]),
              G([o(f"v_and_b32 v{f0}, 31, v0"), o(f"v_cmp_eq_u32 vcc, s{S_ST0}, v{f0}"), o(f"v_mov_b32 v{tb+10}, 1.0"), o("v_nop"),
                 o(f"v_cndmask_b32 v{sg}, v{sg}, v{tb+10}, vcc")]),
              G([o(f"s_or_b32 s{S_ST0}, s{S_MT}, s{S_W}"), o(f"s_cmp_eq_u32 s{S_ST0}, 0"), o(f"s_cselect_b32 s{S_ST0}, 32, 0")]),
              G([o(f"v_cmp_gt_u32 vcc, s{S_ST0}, v0"), o(f"v_mov_b32 v{tb+10}, 0"), o("v_nop"),
                 o(f"v_cndmask_b32 v{f0}, v{sg}, v{tb+10}, vcc")])]
        L += [o(f"v_mul_f32 v{tb+11}, v{acc+8}, v{rr+8}")]
        for r in range(8):
            L += [o(f"v_mul_f32 v{rr+8+r}, v{rr+8+r}, v{f0 if r == 0 else sg}"),
                  o(f"v_mul_f32 v{tb+r}, v{acc+r}, v{rr+r}"),
                  o(f"v_fma_f32 v{tb+r}, v{acc+8+r}, v{rr+8+r}, v{tb+r}")]
        for i in range(4):
            L += [o(f"v_cvt_pk_bf16_f32 v{tb+12+i}, v{tb+2*i}, v{tb+2*i+1}")]
        L += [G([o("v_nop"), o("v_nop"), o(f"v_permlane32_swap_b32 v{tb+12}, v{tb+14}"), o(f"v_permlane32_swap_b32 v{tb+13}, v{tb+15}")]),
              G([o(f"s_mul_i32 s{S_ST0}, s{zreg}, {ZF_STRIDE}"), o(f"s_lshl_b32 s{S_ST1}, s{S_MT}, 2"), o(f"s_add_u32 s{S_ST1}, s{S_ST1}, s{S_W}")]),
              G([o(f"s_lshl_b32 s{S_ST1}, s{S_ST1}, 10"), o(f"s_add_u32 s{S_ST1}, s{S_ST1}, s{S_ST0}"), o(f"s_add_u32 s{S_ST1}, s{S_ST1}, {WS_ZF}")]),
              vm(f"buffer_store_dwordx4 v[{tb+12}:{tb+15}], v{V_L16}, s[{SR_WS}:{SR_WS+3}], s{S_ST1} offen sc1", "zst"),
              o(f"v_mov_b32 v{tb+1}, 0"), o(f"v_mov_b32 v{tb+2}, 0"), o(f"v_mov_b32 v{tb+3}, 0"),
              o(f"v_cvt_pk_bf16_f32 v{tb}, v{tb+11}, v{tb+1}"),
              G([o("v_cmp_gt_u32 vcc, 32, v0"), o("v_nop"), o("v_nop"), o(f"v_cndmask_b32 v{tb}, v{tb+1}, v{tb}, vcc")]),
              G([o(f"s_or_b32 s{S_ST1}, s{S_MT}, s{S_W}"), o(f"s_cmp_le_u32 s{zreg}, 9"), o(f"s_cselect_b32 s{S_C}, 0, 1")]),
              G([o(f"s_or_b32 s{S_ST1}, s{S_ST1}, s{S_C}"), o(f"s_cmp_eq_u32 s{S_ST1}, 0"), o(f"s_cselect_b32 s{S_C}, 0, {OOB:#x}")]),
              o(f"v_add_u32 v{tb+4}, s{S_C}, v{V_L16}"),
              o(f"s_add_u32 s{S_ST0}, s{S_ST0}, {WS_ZF + 64*1024}"),
              vm(f"buffer_store_dwordx4 v[{tb}:{tb+3}], v{tb+4}, s[{SR_WS}:{SR_WS+3}], s{S_ST0} offen sc1", "zst"),
              G([o(f"v_mov_b32 v{tb+12}, 0"), o(f"v_mov_b32 v{tb+13}, 0"), o(f"v_mov_b32 v{tb+14}, 0"), o(f"v_mov_b32 v{tb+15}, 0")]),
              vm(f"buffer_store_dwordx4 v[{tb+12}:{tb+15}], v{tb+4}, s[{SR_WS}:{SR_WS+3}], s{S_ST0} offen offset:1024 sc1", "zst")]
        return L

    def rr_reads(self, rr, tmp, n=1):
        return [o(f"v_lshrrev_b32 v{tmp}, 5, v0"), o(f"v_lshlrev_b32 v{tmp}, 4, v{tmp}"), o(f"s_lshl_b32 s{S_C}, s{S_W}, 12"),
                o(f"s_add_u32 s{S_C}, s{S_C}, {SPARE}"), o(f"v_add_u32 v{tmp}, s{S_C}, v{tmp}")] + \
               [ds(f"ds_read_b128 v[{rr+4*q}:{rr+4*q+3}], v{tmp} offset:{32*q}", ("rr", n)) for q in range(4)] + [wlg(("rr", n))]

    def h2_block(self):
        L = [o(f"s_cmp_lt_u32 s{S_J}, 2"), o("s_cbranch_scc0 L_noz2b")]
        B = [o(f"v_add_u32 v{64+i}, {SLOT}, v{V_XA+i}") for i in range(4)]
        B += [o(f"s_waitcnt vmcnt({20})"), o("s_barrier")]
        def rd(ks):
            a_ = AF + 4*(ks % NAF)
            return o(f"ds_read_b128 a[{a_}:{a_+3}], v{64+(ks&3)} offset:{(ks//4)*4096}")
        for ks in range(6): B += [rd(ks)]
        for k in range(36):
            a_ = AF + 4*(k % NAF)
            n_out = min(5, 35 - k)
            B += [o(f"s_waitcnt lgkmcnt({n_out})"), mf32("v[128:143]", f"a[{AX+4*k}:{AX+4*k+3}]", f"a[{a_}:{a_+3}]", "0" if k == 0 else "v[128:143]")]
            if k + 6 < 36: B += [rd(k + 6)]
        B += [raw("L_noz2b:"),
              o(f"s_cmp_lt_u32 s{S_J}, 2"), o(f"s_cselect_b32 s{S_B}, s{S_B}, 0x4000")]
        return L + B

    def dma_p1(self, sig, slot, tA=226, tB=227):
        groups = []
        if sig < 16:
            u, mat, kh = sig // 4, (sig // 2) % 2, sig % 2
            rs = SR_WG if mat == 0 else SR_WU
            for grp, ts in enumerate([[0,1,2,3],[0,1,2,3],[0]]):
                g = [o(f"s_add_u32 m0, s{S_L9}, {slot*SLOT + grp*4096}"),
                     o(f"s_add_u32 s{S_D0}, s{S_UB+u}, {(kh*288 + grp*32)*9216}")]
                for t in ts:
                    groups.append(g + [vm(f"buffer_load_dwordx4 v{V_DM+t}, s[{rs}:{rs+3}], s{S_D0} offen offset:{t*1024} lds", ("st", sig))])
                    g = []
        else:
            rs = SR_WG if sig == 16 else SR_WU
            for grp, ts in enumerate([[0,1,2,3],[0,1,2,3],[0]]):
                g = []
                if sig == 16 and grp == 0:
                    groups.append([o(f"v_lshrrev_b32 v{tA}, 2, v0"), o(f"v_and_b32 v{tB}, 3, v0"), o(f"v_lshlrev_b32 v{tB}, 4, v{tB}")])
                    groups.append([o(f"v_mul_u32_u24 v{tA}, 9216, v{tA}"), o(f"v_add_u32 v{V_DM}, v{tA}, v{tB}")] +
                                  [o(f"v_add_u32 v{V_DM+t}, {t*(16*9216-1024)}, v{V_DM}") for t in range(1, 4)])
                g += [o(f"s_add_u32 m0, s{S_L9}, {slot*SLOT + grp*4096}"),
                      o(f"s_add_u32 s{S_D0}, s{S_UB+4}, {grp*64*9216}")]
                for t in ts:
                    groups.append(g + [vm(f"buffer_load_dwordx4 v{V_DM+t}, s[{rs}:{rs+3}], s{S_D0} offen offset:{t*1024} lds", ("st", sig))])
                    g = []
        return groups

    def dma_cs(self, mat, piece, slot, tag, nop=False):
        rs = SR_CS if mat == 0 else SR_SS
        groups = []
        for l in range(2):
            line = 2*piece + l
            for rho in range(4):
                groups.append([o(f"s_add_u32 m0, s{S_A}, {slot*SLOT + (4*l+rho)*1024 - 128*line}")] + ([o("s_nop 0")] if nop else []) + [
                               vm(f"buffer_load_dwordx4 v{V_SD+rho}, s[{rs}:{rs+3}], 0 offen offset:{128*line} lds", tag)])
        return groups
    def dma_cx(self, tag):
        groups = []
        for rho in range(4):
            groups.append([o(f"s_add_u32 m0, s{S_B}, {SPARE + rho*1024 - 512}"),
                           vm(f"buffer_load_dwordx4 v{V_SD+rho}, s[{SR_CS}:{SR_CS+3}], 0 offen offset:512 lds", tag)])
        return groups

    def dma_p2(self, st, slot, first128, tA, tB, tC):
        u, who = st
        groups = []
        if u < 4:
            tbl = S_N0 if who == "own" else S_N1
            if first128:
                groups.append([o(f"v_lshrrev_b32 v{tA}, 3, v0"), o(f"v_and_b32 v{tB}, 7, v0"), o(f"v_bfe_u32 v{tC}, v0, 4, 1")])
                groups.append([o(f"v_lshlrev_b32 v{tC}, 2, v{tC}"), o(f"v_xor_b32 v{tB}, v{tB}, v{tC}"), o(f"v_lshlrev_b32 v{tB}, 4, v{tB}")])
                groups.append([o(f"s_mul_i32 s{S_WD}, s{S_W}, {8*1152}")])
                groups.append([o(f"v_mul_u32_u24 v{tA}, 1152, v{tA}"), o(f"v_add_u32 v{V_DM}, v{tA}, v{tB}"), o(f"v_add_u32 v{V_DM}, s{S_WD}, v{V_DM}")])
                groups.append([o(f"s_lshl_b32 s{S_WD}, s{S_W}, 10")])
            for ip in range(9):
                groups.append([o(f"s_add_u32 m0, s{S_WD}, {slot*SLOT + ip*4096}"),
                               o(f"s_add_u32 s{S_D0}, s{tbl+ip}, s{S_CU+u}"),
                               vm(f"buffer_load_dwordx4 v{V_DM}, s[{SR_WD}:{SR_WD+3}], s{S_D0} offen lds", ("s2", st))])
        else:
            groups.append([o(f"v_lshrrev_b32 v{tA}, 2, v0"), o(f"v_and_b32 v{tB}, 3, v0"), o(f"v_lshlrev_b32 v{tB}, 4, v{tB}")])
            groups.append([o(f"v_mul_u32_u24 v{tA}, 1152, v{tA}"), o(f"v_add_u32 v{V_DM+1}, v{tA}, v{tB}")])
            for ip in range(9):
                ca, cb = 2*ip, 2*ip + 1
                ra = (S_N0 + ca) if ca < 9 else (S_N1 + ca - 9)
                rb = (S_N0 + cb) if cb < 9 else (S_N1 + cb - 9)
                groups.append([o(f"s_cmp_lt_u32 s{S_W}, 2"), o(f"s_cselect_b32 s{S_D0}, s{ra}, s{rb}"),
                               o(f"s_add_u32 s{S_D0}, s{S_D0}, s{S_CU+4}"), o(f"s_add_u32 s{S_D0}, s{S_D0}, s{S_C}"),
                               o(f"s_add_u32 m0, s{S_WD}, {slot*SLOT + ip*4096}")])
                groups.append([vm(f"buffer_load_dwordx4 v{V_DM+1}, s[{SR_WD}:{SR_WD+3}], s{S_D0} offen lds", ("s2", st))])
        return groups

    def geglu(self, c, toff=0):
        if c < 8: g, u = GA[(c//2) % 2][c % 2], UA[(c//2) % 2][c % 2]
        else: g, u = GA[0][0], UA[0][0]
        L = []
        for p in range(8):
            r0, r1 = 2*p, 2*p + 1
            b = TMP + 4*(p % 2) + toff
            xa, xb, ya, yb = b, b+1, b+2, b+3
            L += [o(f"v_mul_f32 v{xa}, v{g+r0}, v{g+r0}"), o(f"v_mul_f32 v{xb}, v{g+r1}, v{g+r1}"),
                  o(f"v_fma_f32 v{xa}, v{xa}, v{V_C1}, v{V_C0}"), o(f"v_fma_f32 v{xb}, v{xb}, v{V_C1}, v{V_C0}"),
                  o(f"v_mul_f32 v{xa}, v{g+r0}, v{xa}"), o(f"v_mul_f32 v{xb}, v{g+r1}, v{xb}"),
                  o(f"v_exp_f32 v{xa}, v{xa}"), o(f"v_exp_f32 v{xb}, v{xb}"),
                  o(f"v_mul_f32 v{ya}, v{g+r0}, v{u+r0}"), o(f"v_mul_f32 v{yb}, v{g+r1}, v{u+r1}"),
                  o(f"v_fma_f32 v{xa}, v{xa}, v{V_D2}, v{V_D2}"), o(f"v_fma_f32 v{xb}, v{xb}, v{V_D2}, v{V_D2}"),
                  o(f"v_rcp_f32 v{xa}, v{xa}"), o(f"v_rcp_f32 v{xb}, v{xb}"),
                  o(f"v_mul_f32 v{ya}, v{ya}, v{xa}"), o(f"v_mul_f32 v{yb}, v{yb}, v{xb}"),
                  o(f"v_cvt_pk_bf16_f32 v{HF + 8*c + p}, v{ya}, v{yb}")]
        return L
    def geglu_sig(self, c, toff=0):
        g = GA[(c//2) % 2][c % 2] if c < 8 else GA[0][0]
        L = []
        for p in range(8):
            r0, r1 = 2*p, 2*p + 1
            b = TMP + 2*(p % 2) + toff
            xa, xb = b, b + 1
            L += [o(f"v_mul_f32 v{xa}, v{g+r0}, v{g+r0}"), o(f"v_mul_f32 v{xb}, v{g+r1}, v{g+r1}"),
                  o(f"v_fma_f32 v{xa}, v{xa}, v{V_C1}, v{V_C0}"), o(f"v_fma_f32 v{xb}, v{xb}, v{V_C1}, v{V_C0}"),
                  o(f"v_mul_f32 v{xa}, v{g+r0}, v{xa}"), o(f"v_mul_f32 v{xb}, v{g+r1}, v{xb}"),
                  o(f"v_exp_f32 v{xa}, v{xa}"), o(f"v_exp_f32 v{xb}, v{xb}"), o("v_nop") if False else None,
                  o(f"v_fma_f32 v{xa}, v{xa}, v{V_D2}, v{V_D2}"), o(f"v_fma_f32 v{xb}, v{xb}, v{V_D2}, v{V_D2}"),
                  o(f"v_rcp_f32 v{xa}, v{xa}"), o(f"v_rcp_f32 v{xb}, v{xb}"),
                  o(f"v_mul_f32 v{g+r0}, v{g+r0}, v{xa}"), o(f"v_mul_f32 v{g+r1}, v{g+r1}, v{xb}")]
        return [i for i in L if i is not None]
    def geglu_fin(self, c, toff=0):
        if c < 8: g, u = GA[(c//2) % 2][c % 2], UA[(c//2) % 2][c % 2]
        else: g, u = GA[0][0], UA[0][0]
        L = []
        for p in range(8):
            r0, r1 = 2*p, 2*p + 1
            L += [o(f"v_mul_f32 v{g+r0}, v{g+r0}, v{u+r0}"), o(f"v_mul_f32 v{g+r1}, v{g+r1}, v{u+r1}"),
                  o(f"v_cvt_pk_bf16_f32 v{HF + 8*c + p}, v{g+r0}, v{g+r1}")]
        return L
    def hstore(self, c):
        st = S_ST0 + (c % 2)
        return [o(f"s_add_u32 s{st}, s{S_HB}, {2*c*1024}")] + self.dstore(
                [f"buffer_store_dwordx4 v[{HF+8*c}:{HF+8*c+3}], v{V_L16}, s[{SR_WS}:{SR_WS+3}], s{st} offen",
                 f"buffer_store_dwordx4 v[{HF+8*c+4}:{HF+8*c+7}], v{V_L16}, s[{SR_WS}:{SR_WS+3}], s{st} offen offset:1024"], "hst", True)

    def s_setup(self):
        a, b, c, d = V_SX, V_YC[0], V_YC[1], V_YC[2]
        L = []
        L += [G([o(f"s_lshr_b32 s{S_TAU}, s{S_J}, 3"), o(f"s_lshl_b32 s{S_A}, s{S_MT}, 1"), o(f"s_add_u32 s{S_TAU}, s{S_TAU}, s{S_A}")]),
              G([o(f"s_lshl_b32 s{S_A}, s{S_W}, 13"), o(f"s_lshl_b32 s{S_B}, s{S_W}, 12"),
                 o(f"s_lshl_b32 s{S_ZB}, s{S_W}, 14")]), o(f"s_add_u32 s{S_ZB}, s{S_ZB}, {WS_ZF}")]
        L += [o(f"v_lshrrev_b32 v{a}, 3, v0"), o(f"v_and_b32 v{b}, 7, v0"), o(f"v_lshrrev_b32 v{c}, 1, v{a}"), o(f"v_xor_b32 v{b}, v{b}, v{c}"),
              o(f"v_lshlrev_b32 v{b}, 4, v{b}"), o(f"v_xor_b32 v{c}, 64, v{b}"),
              o(f"s_lshl_b32 s{S_C}, s{S_TAU}, 5"), o(f"v_add_u32 v{a}, s{S_C}, v{a}"), o(f"v_lshlrev_b32 v{a}, 12, v{a}"),
              o(f"s_lshl_b32 s{S_C}, s{S_W}, 9"), o(f"v_add_u32 v{a}, s{S_C}, v{a}"),
              o(f"v_add_u32 v{V_SD}, v{a}, v{b}"), o(f"v_add_u32 v{V_SD+1}, v{a}, v{c}"), o(f"v_add_u32 v{V_SD+1}, 32768, v{V_SD+1}"),
              o(f"v_add_u32 v{V_SD+2}, 65536, v{V_SD}"), o(f"v_add_u32 v{V_SD+3}, 65536, v{V_SD+1}")]
        return L
    def s_setup2(self):
        a, b, c, d = V_SX, V_YC[0], V_YC[1], V_YC[2]
        L = []
        L += [o(f"v_and_b32 v{a}, 15, v0"), o(f"v_lshrrev_b32 v{b}, 4, v0"), o(f"v_bfe_u32 v{c}, v0, 1, 3"), o(f"v_xor_b32 v{c}, v{c}, v{b}"),
              o(f"v_lshlrev_b32 v{c}, 4, v{c}"), o(f"v_lshlrev_b32 v{a}, 7, v{a}"), o(f"v_add_u32 v{a}, v{a}, v{c}"),
              o(f"v_add_u32 v{V_SA}, s{S_A}, v{a}"), o(f"v_xor_b32 v{V_SA+1}, 64, v{V_SA}"),
              o(f"v_add_u32 v{V_SA+2}, {2*SLOT}, v{V_SA}"), o(f"v_add_u32 v{V_SA+3}, {2*SLOT}, v{V_SA+1}"),
              o(f"v_add_u32 v{a}, s{S_B}, v{a}"), o(f"v_add_u32 v{V_SX}, {SPARE}, v{a}")]
        return L
    def s_setup3(self, t0, t1, t2, t3):
        L = []
        L += [o(f"v_and_b32 v{t0}, 15, v0"), o(f"v_lshrrev_b32 v{t1}, 4, v0"),
              o(f"v_and_b32 v{t2}, 1, v{t1}"), o(f"v_lshlrev_b32 v{t2}, 9, v{t2}"),
              o(f"v_lshrrev_b32 v{t1}, 1, v{t1}"), o(f"v_lshlrev_b32 v{t1}, 10, v{t1}"), o(f"v_add_u32 v{t2}, v{t2}, v{t1}"),
              G([o(f"s_and_b32 s{S_C}, s{S_J}, 7"), o(f"s_mul_i32 s{S_C}, s{S_C}, 36")]),
              o(f"v_add_u32 v{t0}, s{S_C}, v{t0}")]
        for ss in range(3):
            pa, qa, yc = V_ZP + ss, V_ZQ + ss, V_YC[ss]
            L += [o(f"v_lshrrev_b32 v{t1}, 5, v{t0}"), o(f"v_mul_u32_u24 v{t1}, {ZF_STRIDE}, v{t1}"),
                  o(f"v_and_b32 v{t3}, 31, v{t0}"), o(f"v_lshlrev_b32 v{t3}, 4, v{t3}"), o(f"v_add_u32 v{t1}, v{t1}, v{t3}"),
                  o(f"v_add_u32 v{t1}, v{t1}, v{t2}"),
                  o(f"v_subrev_u32 v{t3}, s{S_C}, v{t0}"),
                  o(f"v_lshlrev_b32 v{yc}, 2, v{t0}"), o(f"v_mov_b32 v{qa}, {OOB:#x}"), o(f"v_mov_b32 v{pa}, {OOB:#x}"),
                  G([o(f"v_cmp_gt_u32 vcc, 36, v{t3}"), o("v_nop"), o("v_nop"), o(f"v_cndmask_b32 v{pa}, v{pa}, v{t1}, vcc")]),
                  o(f"v_add_u32 v{t3}, {9*ZF_STRIDE}, v{t1}"),
                  G([o(f"v_cndmask_b32 v{qa}, v{qa}, v{t3}, vcc")]),
                  G([o(f"v_cmp_eq_u32 vcc, 0x120, v{t0}"), o("v_nop"), o("v_nop"), o(f"v_cndmask_b32 v{pa}, v{pa}, v{t1}, vcc")]),
                  G([o(f"v_mov_b32 v{t3}, {OOB:#x}"), o(f"v_cmp_eq_u32 vcc, 0, v{t0}"), o("v_nop"), o("v_nop"), o(f"v_cndmask_b32 v{qa}, v{qa}, v{t3}, vcc")]),
                  G([o(f"v_cmp_eq_u32 vcc, v{t3}, v{pa}"), o("v_nop"), o("v_nop"), o(f"v_cndmask_b32 v{yc}, v{yc}, v{t3}, vcc")]),
                  o(f"v_add_u32 v{t0}, 16, v{t0}")]
        return L

    def phase2_setup(self):
        L = []
        L += [G([o(f"s_xor_b32 s{T6}, s{S_J}, 1"), o(f"s_and_b32 s{T2}, s{T6}, 1"), o(f"s_mul_i32 s{T0}, s{T6}, 288")]),
              G([o(f"s_mul_i32 s{T1}, s{T2}, 224"), o(f"s_add_u32 s{T1}, s{T0}, s{T1}")]),
              G([o(f"s_cmp_eq_u32 s{T2}, 0"), o(f"s_cselect_b32 s{T3}, 64, -64"), o(f"s_cselect_b32 s{T4}, 256, 0")]),
              o(f"s_add_u32 s{T4}, s{T4}, s{T0}")]
        for u in range(4):
            L += [G([o(f"s_mul_i32 s{T5}, s{T3}, {u}"), o(f"s_add_u32 s{T5}, s{T5}, s{T1}")]),
                  G([o(f"s_mul_i32 s{S_N1+2*u}, s{T5}, 1152"), o(f"s_add_u32 s{S_N1+2*u+1}, s{S_N1+2*u}, {32*1152}")])]
        L += [o(f"s_mul_i32 s{S_N1+8}, s{T4}, 1152")]
        L += [G([o(f"s_and_b32 s{T2}, s{S_J}, 1"), o(f"s_mul_i32 s{T0}, s{T2}, 640"), o(f"s_lshr_b32 s{T1}, s{S_J}, 2")])]
        for k in range(4):
            L += [G([o(f"s_add_u32 s{T3}, s{T1}, {(k+1) % 4 if k < 3 else 0}"), o(f"s_and_b32 s{T3}, s{T3}, 3"), o(f"s_lshl_b32 s{T3}, s{T3}, 7")]),
                  o(f"s_add_u32 s{S_CU+k}, s{T0}, s{T3}")]
        L += [G([o(f"s_cmp_eq_u32 s{T2}, 0"), o(f"s_cselect_b32 s{S_CU+4}, 0, 64")]), o(f"s_add_u32 s{S_CU+4}, s{S_CU+4}, 512")]
        return L

    def p2q_setup(self):
        L = [G([o(f"s_and_b32 s{T2}, s{S_J}, 1"), o(f"s_mul_i32 s{T3}, s{T2}, 10"), o(f"s_lshr_b32 s{T4}, s{S_J}, 2")])]
        for k, dst in enumerate(S_QU):
            L += [G([o(f"s_add_u32 s{T5}, s{T4}, {k+1}"), o(f"s_and_b32 s{T5}, s{T5}, 3"), o(f"s_lshl_b32 s{T5}, s{T5}, 1")]),
                  G([o(f"s_add_u32 s{T5}, s{T5}, s{T3}"), o(f"s_lshl_b32 s{T5}, s{T5}, 11"), o(f"s_add_u32 s{dst}, s{T5}, s{S_PB}")])]
        L += [G([o(f"s_lshl_b32 s{T5}, s{T4}, 1"), o(f"s_add_u32 s{T5}, s{T5}, s{T3}"), o(f"s_bfe_u32 s{T4}, s{S_J}, 0x10001")]),
              G([o(f"s_add_u32 s{S_TO}, s{T5}, s{T4}"), o(f"s_xor_b32 s{T4}, s{T4}, 1"), o(f"s_add_u32 s{T5}, s{T5}, s{T4}")]),
              G([o(f"s_lshl_b32 s{T5}, s{T5}, 11"), o(f"s_add_u32 s{S_QN}, s{T5}, s{S_PB}")]),
              G([o(f"s_add_u32 s{T5}, s{T2}, 8"), o(f"s_lshl_b32 s{T5}, s{T5}, 11"), o(f"s_add_u32 s{S_Q8}, s{T5}, s{S_PB}")])]
        return L

    def main(self):
        DIST = self.opts.get("dist", 7)
        M = []; frags = []
        fu = {}; lu = {}
        def addfrag(reads_fn, use, dist=None, stage=None):
            f = len(frags); a = AF + 4*(f % NAF)
            fr = dict(reads=reads_fn(a), use=use)
            if dist: fr["dist"] = dist
            frags.append(fr)
            if stage is not None and stage not in fu:
                fu[stage] = use; fr["stage_first"] = stage
            return f, a
        def tr(base, off, off2): return lambda a: [f"ds_read_b64_tr_b16 a[{a}:{a+1}], v{base} offset:{off}", f"ds_read_b64_tr_b16 a[{a+2}:{a+3}], v{base} offset:{off+off2}"]
        for u in range(4):
            for mat in range(2):
                for kh in range(2):
                    sig = 4*u + 2*mat + kh
                    for half in range(2):
                        acc = (GA if mat == 0 else UA)[u % 2][half]
                        for kk in range(18):
                            ks = kh*18 + kk; g = len(M)
                            f, a = addfrag(tr((V_RA if half == 0 else V_RB) + sig % 4, kk*2048, 512), g, stage=("st", sig))
                            M.append(dict(op=32, acc=f"v[{acc}:{acc+15}]", first=(ks == 0), A=f"a[{a}:{a+3}]", B=f"a[{AX+4*ks}:{AX+4*ks+3}]", need=f))
                            lu[("st", sig)] = g
        for mat in range(2):
            acc = (GA if mat == 0 else UA)[0][0]
            for ks in range(36):
                g = len(M)
                f, a = addfrag(tr(V_R8 + mat, ks*1024, 256), g, stage=("st", 16+mat))
                M.append(dict(op=32, acc=f"v[{acc}:{acc+15}]", first=(ks == 0), A=f"a[{a}:{a+3}]", B=f"a[{AX+4*ks}:{AX+4*ks+3}]", need=f))
                lu[("st", 16+mat)] = g
        S0 = len(M)
        def accP(tt, ss):
            i = tt*3 + ss
            return 48 + 4*i if i < 4 else 112 + 4*(i - 4)
        def accQ(tt, ss):
            i = tt*3 + ss
            return 64 + 4*i if i < 4 else 128 + 4*(i - 4)
        def zP(ss, k):
            i = k*3 + ss
            if i < 20: return f"a[{AZ+4*i}:{AZ+4*i+3}]"
            i -= 20
            r = 32 + 4*i if i < 4 else 96 + 4*(i - 4)
            return f"v[{r}:{r+3}]"
        def zQ(ss, k):
            i = k*3 + ss
            return f"a[{4*i}:{4*i+3}]"
        self.zP, self.zQ, self.accP, self.accQ = zP, zQ, accP, accQ
        for k in range(9):
            for tt in range(2):
                g = len(M)
                if k < 8:
                    line = k >> 1; piece = line >> 1; l = line & 1
                    base = V_SA + 2 + (k & 1); off = piece*SLOT + l*4096 + tt*2048
                    st = ("C", piece)
                else:
                    base = V_SX; off = tt*2048; st = ("CX", 0)
                f, a = addfrag(lambda a, base=base, off=off: [f"ds_read_b128 a[{a}:{a+3}], v{base} offset:{off}"], g, dist=8, stage=st)
                for ss in range(3):
                    ac = accP(tt, ss)
                    M.append(dict(op=16, acc=f"v[{ac}:{ac+3}]", first=(k == 0), A=f"a[{a}:{a+3}]", B=zP(ss, k), need=f))
                    lu[st] = len(M) - 1
        SP_END = len(M)
        for k in range(8):
            for tt in range(2):
                g = len(M)
                line = k >> 1; piece = line >> 1; l = line & 1
                base = V_SA + (k & 1); off = piece*SLOT + l*4096 + tt*2048
                st = ("S", piece)
                f, a = addfrag(lambda a, base=base, off=off: [f"ds_read_b128 a[{a}:{a+3}], v{base} offset:{off}"], g, dist=8, stage=st)
                for ss in range(3):
                    ac = accQ(tt, ss)
                    M.append(dict(op=16, acc=f"v[{ac}:{ac+3}]", first=(k == 0), A=f"a[{a}:{a+3}]", B=zQ(ss, k), need=f))
                    lu[st] = len(M) - 1
        P2_0 = len(M)
        stages = [(0, "own"), (1, "own"), (2, "own"), (0, "par"), (1, "par"), (2, "par"), (4, "both"), (3, "own"), (3, "par")]
        slot_order = [2, 0, 3, 2, 1, 0, 3, 2, 1]
        slot_of = {st: slot_order[i] for i, st in enumerate(stages)}
        ACC = {0: [32, 96], 1: [16, 80], 2: [48, 112], 3: [64, 128], 4: [32]}
        tile_last = {}
        def p2run(st, half, base, nk=18):
            u, who = st
            acc = ACC[u][half]
            for k in range(18):
                g = len(M)
                f, a = addfrag(tr(base, k*2048, 1024), g, stage=("s2", st))
                M.append(dict(op=32, acc=f"v[{acc}:{acc+15}]", first=(who == "own" and k == 0), A=f"a[{a}:{a+3}]",
                              B=(f"v[{HF+4*k}:{HF+4*k+3}]" if who == "own" else f"a[{AZ+4*k}:{AZ+4*k+3}]"), need=f))
                tile_last[(u, half)] = g; lu[("s2", st)] = g
        for st in stages[:7]:
            u, who = st; slot = slot_of[st]
            if u < 4:
                for half in range(2): p2run(st, half, (V_RA if half == 0 else V_RB) + slot)
            else:
                acc = ACC[4][0]
                for k in range(36):
                    g = len(M)
                    f, a = addfrag(tr(V_R8, k*1024, 512), g, stage=("s2", st))
                    M.append(dict(op=32, acc=f"v[{acc}:{acc+15}]", first=(k == 0), A=f"a[{a}:{a+3}]",
                                  B=(f"v[{HF+4*k}:{HF+4*k+3}]" if k < 18 else f"a[{AZ+4*(k-18)}:{AZ+4*(k-18)+3}]"), need=f))
                    tile_last[(4, 0)] = g; lu[("s2", st)] = g
        p2run((3, "own"), 0, V_LB); p2run((3, "par"), 0, V_LB + 1); p2run((3, "own"), 1, V_LB + 2); p2run((3, "par"), 1, V_LB + 3)
        N = len(M)
        last_use = {}
        for g, m in enumerate(M): last_use[m["need"]] = g
        for f, fr in enumerate(frags):
            d = fr.get("dist", DIST)
            t = fr["use"] - d
            if f >= NAF and t < last_use[f - NAF]: fr["dist"] = fr["use"] - last_use[f - NAF]
        for fr in frags:
            st = fr.get("stage_first")
            if st is None: continue
            if st[0] in ("st", "s2"):
                tags = [st]
                if st == ("st", 3): tags += ["zst", "flinit"]
                if st == ("st", 17): tags += ["hst"]
                fr["pre"] = [wvm(tags), o("s_barrier")]
                if st == ("st", 17):
                    fr["pre"] += [vm(f"buffer_store_dword v{V_ONE}, v{V_ONE0}, s[{SR_WS}:{SR_WS+3}], s{S_FL} offen sc1", "fl1")]
                if st == ("st", 3):
                    fr["pre"] += [vm(f"buffer_atomic_add v{V_ONE}, v{V_ONE0}, s[{SR_HZ}:{SR_HZ+3}], 0 offen offset:128 sc1", "zpub")]
            else:
                fr["pre"] = [wvm(("cs", st))]
        stamps = {0: "p1", 144: "u1", 288: "u2", 432: "u3", 576: "u4", S0: "S0", SP_END: "SP", P2_0: "p2", P2_0 + 108: "p2b", P2_0 + 216: "p2c"}
        if self.opts.get("fine"):
            stamps = {0: "p1", 432: "u3", 576: "u4", 594: "s594", 612: "s612", 630: "s630", S0: "S0", 660: "s660", 672: "s672", 684: "s684", SP_END: "SP", 714: "s714", 726: "s726", 738: "s738", P2_0: "p2", P2_0 + 36: "a36", P2_0+72: "a72", P2_0 + 108: "p2b", P2_0 + 216: "p2c"}
        for g, name in stamps.items():
            if self.diag: M[g].setdefault("before", []).extend(self.stamp(name))
        self.tail2 = []

        def setup(sl, head):
            rbar = {st: fu[st] - DIST for st in fu if st[0] in ("st", "s2")}
            for b in rbar.values():
                if b >= 0: sl.budget[b] = 4
            def fbar(t):
                sl.put(t, [o("s_barrier")])
            busy = {"end": -1}
            def place(groups, start, step=1):
                s = max(start, busy["end"] + 1)
                for grp in groups:
                    sl.put(s, grp); busy["end"] = s; s += step
                return s
            sl.put(2, [o(f"v_mov_b32 v{V_ONE}, 1")])
            eh = sl.stream(self.rr_reads(48, 112) + self.h_epilogue(S_A, V_HACC, 48, 64), 12, 46)
            eh = sl.stream(self.rr_reads(48, 112, 2) + self.h_epilogue(S_B, 128, 48, 64), eh + 1, eh + 34)
            assert eh < 92, eh
            for mat in range(2):
                slot = (16 + mat) % 4
                ins = [o("v_lshrrev_b32 v224, 5, v0"), o("v_lshlrev_b32 v224, 9, v224"),
                       o("v_bfe_u32 v225, v0, 2, 2"), o("v_lshlrev_b32 v225, 6, v225"), o("v_add_u32 v224, v224, v225"),
                       o("v_bfe_u32 v225, v0, 4, 1"), o("v_lshlrev_b32 v225, 5, v225"), o("v_add_u32 v224, v224, v225"),
                       o("v_and_b32 v225, 3, v0"), o("v_lshlrev_b32 v225, 3, v225"), o("v_add_u32 v224, v224, v225"),
                       o(f"v_add_u32 v{V_R8+mat}, {slot*SLOT}, v224")]
                sl.stream(ins, 70 + 20*mat, 88 + 20*mat)
            dma_end = {}
            for sig in range(2, 18):
                grps = self.dma_p1(sig, sig % 4)
                if sig == 2: start = 0
                elif sig == 3: start = 9*self.opts.get('dstep', 2)
                elif self.opts.get("fb", 1):
                    t = lu[("st", sig - 4)]; fbar(t); start = t + 1
                else:
                    start = min(b for b in rbar.values() if b >= lu[("st", sig - 4)]) + 1
                dma_end[sig] = place(grps, start, self.opts.get("dstep", 2))
            self.paced_prefetch(sl, dma_end)
            self.mode_check(sl, M)
            sl.put(590, [G([o(f"s_lshl_b32 s{S_FL}, s{S_LID}, 7"), o(f"s_add_u32 s{S_FL}, s{S_FL}, {WS_FLAG}")])])
            sl.put(592, [o(f"v_mov_b32 v{V_ONE}, 1")])
            e0 = sl.stream(self.geglu(0), 145, 211)
            sl.stream(self.hstore(0) + self.geglu(1) + self.hstore(1), max(e0 + 1, 212), 287)
            for u in range(1, 3):
                sl.stream(self.geglu(2*u) + self.hstore(2*u) + self.geglu(2*u+1) + self.hstore(2*u+1), 144*(u+1) + 1, 144*(u+2) - 1)
            es = sl.stream(self.s_setup(), eh + 1, eh + 11)
            es = sl.stream(self.s_setup2(), es + 1, es + 10)
            assert es < 118, es
            sl.stream(self.s_setup3(224, 225, 226, 227), max(es + 1, 112), 143)
            ep = sl.stream(self.phase2_setup(), 66, 100)
            assert ep < 110
            t = lu[("st", 14)]; fbar(t); place(self.dma_cs(0, 0, 2, ("cs", ("C", 0))), t + 1, 2)
            t = lu[("st", 15)]; fbar(t); e = place(self.dma_cs(0, 1, 3, ("cs", ("C", 1))), t + 1, 2)
            place(self.dma_cx(("cs", ("CX", 0))), e, 2)
            t = lu[("st", 16)]; fbar(t); place(self.dma_cs(1, 0, 0, ("cs", ("S", 0))), t + 1, 2)
            t = lu[("st", 17)]; fbar(t); place(self.dma_cs(1, 1, 1, ("cs", ("S", 1)), True), t + 1, 1)
            self.main_rest(sl, M, fu, lu, stages, slot_of, ACC, tile_last, S0, SP_END, P2_0, N, fbar, place)
        L = self.paced(M, frags, setup, DIST)
        return L + self.tail2

    def mode_check(self, sl, M):
        if not self.opts.get("local", 0): return
        t = 0
        ld = f"buffer_load_dwordx2 v[222:223], off, s[{SR_HZ}:{SR_HZ+3}], s{T5} sc1"
        ld = f"buffer_load_dwordx2 v[230:231], off, s[{SR_HZ}:{SR_HZ+3}], s{S_XC} sc1"
        if self.opts.get("cfg", 0) == 0:
            ld = f"buffer_load_dword v230, off, s[{SR_HZ}:{SR_HZ+3}], s{S_XC} sc1"
            sl.put(140, [G([o(f"s_lshr_b32 s{S_XC}, s{S_LID}, 3"), o(f"s_lshl_b32 s{S_XC}, s{S_XC}, 2")])])
        else:
            sl.put(140, [G([o(f"s_lshl_b32 s{S_XC}, s{S_MT}, 3")])])
        sl.put(143, [vm(ld, "xcc")])
        sl.put(205, [wvm("xcc")])
        sl.put(206, [o(f"v_readfirstlane_b32 s{T6}, v230"), o(f"v_readfirstlane_b32 s{T7}, v231")])
        def nz(r, tmp):
            return [o(f"s_lshr_b32 s{tmp}, s{r}, 1"), o(f"s_or_b32 s{tmp}, s{tmp}, s{r}"), o(f"s_lshr_b32 s{T3}, s{tmp}, 2"), o(f"s_or_b32 s{tmp}, s{tmp}, s{T3}"),
                    o(f"s_and_b32 s{tmp}, s{tmp}, 0x11111111")]
        chk = nz(T6, T1) + nz(T7, T2) + [o(f"s_and_b32 s{T1}, s{T1}, s{T2}"), o(f"s_cmp_eq_u32 s{T1}, 0x11111111")]
        if self.opts.get("cfg", 0) == 0:
            ld = f"buffer_load_dword v230, off, s[{SR_HZ}:{SR_HZ+3}], s{S_XC} sc1"
            ext = [o(f"s_and_b32 s{T1}, s{S_LID}, 6"), o(f"s_lshl_b32 s{T1}, s{T1}, 2"), o(f"s_lshr_b32 s{T2}, s{T6}, s{T1}"),
                   o(f"s_and_b32 s{T3}, s{T2}, 15"), o(f"s_bfe_u32 s{T2}, s{T2}, 0x40004"),
                   o(f"s_min_u32 s{T1}, s{T2}, s{T3}"), o(f"s_cmp_ge_u32 s{T1}, 1")]
            blk = ext + [o("s_cbranch_scc1 L_xc_ok")] + self.spin("L_xc", [o(ld)], [o(f"v_readfirstlane_b32 s{T6}, v230"), o("s_nop 3")] + ext)
            blk += [o(f"s_cmp_eq_u32 s{T2}, s{T3}"), o(f"s_cselect_b32 s{S_MODE}, 1, 0")]
            if self.opts.get("forceglobal"): blk += [o(f"s_mov_b32 s{S_MODE}, 0")]
            M[209].setdefault("before", []).extend(blk)
            return
        blk = chk + [o("s_cbranch_scc1 L_xc_ok")] + self.spin("L_xc", [o(ld)],
              [o(f"v_readfirstlane_b32 s{T6}, v230"), o(f"v_readfirstlane_b32 s{T7}, v231"), o("s_nop 3")] + chk)
        blk += [o(f"s_and_b32 s{T1}, s{T6}, 15"), o(f"s_mul_i32 s{T1}, s{T1}, 0x11111111"),
                o(f"s_cmp_eq_u32 s{T1}, s{T6}"), o(f"s_cselect_b32 s{S_MODE}, 1, 0"),
                o(f"s_cmp_eq_u32 s{T1}, s{T7}"), o(f"s_cselect_b32 s{S_MODE}, s{S_MODE}, 0")]
        if self.opts.get("forceglobal"): blk += [o(f"s_mov_b32 s{S_MODE}, 0")]
        M[209].setdefault("before", []).extend(blk)

    def bulk(self, sl, t):
        bk = [G([o(f"s_lshl_b32 s{S_PF}, s{S_LID}, 2"), o(f"s_add_u32 s{S_PF}, s{S_PF}, s{S_W}"), o(f"s_mul_i32 s{S_PF}, s{S_PF}, 41")]),
              o(f"v_add_u32 v{V_PF}, s{S_PF}, v0"), o(f"v_lshlrev_b32 v{V_PF}, 7, v{V_PF}"),
              G([o("v_cmp_gt_u32 vcc, 41, v0"), o("v_nop"), o("v_nop"), o(f"v_cndmask_b32 v{V_PF}, v{V_ONE0}, v{V_PF}, vcc")])]
        e = sl.stream(bk, t, t + 5, spill=2)
        sl.put(e + 1, [vm(f"buffer_load_dword v{V_PF}, v{V_PF}, s[{SR_WG}:{SR_WG+3}], 0 offen", "pf")])
        sl.put(e + 2, [vm(f"buffer_load_dword v{V_PF}, v{V_PF}, s[{SR_WU}:{SR_WU+3}], 0 offen", "pf")])
        return e + 2

    def paced_prefetch(self, sl, dma_end):
        if self.opts.get("bulkat", 0) == 1:
            bk = [G([o(f"s_lshl_b32 s{S_PF}, s{S_LID}, 2"), o(f"s_add_u32 s{S_PF}, s{S_PF}, s{S_W}"), o(f"s_mul_i32 s{S_PF}, s{S_PF}, 41")]),
                  o(f"v_add_u32 v230, s{S_PF}, v0"), o(f"v_lshlrev_b32 v230, 7, v230"),
                  G([o("v_cmp_gt_u32 vcc, 41, v0"), o("v_nop"), o("v_nop"), o(f"v_cndmask_b32 v230, v{V_ONE0}, v230, vcc")])]
            e = sl.stream(bk, 0, 8, spill=2)
            assert e < 12
            s = dma_end[self.opts.get("bulkst", 3)]
            sl.put(s, [vm(f"buffer_load_dword v{V_PF}, v230, s[{SR_WG}:{SR_WG+3}], 0 offen", "pf")])
            sl.put(s + 1, [vm(f"buffer_load_dword v{V_PF}, v230, s[{SR_WU}:{SR_WU+3}], 0 offen", "pf")])
        if not self.opts.get("ppf", 1): return
        Dd, Cc, t = 228, 229, 227
        setup = [G([o(f"s_lshl_b32 s{S_PF}, s{S_LID}, 2"), o(f"s_add_u32 s{S_PF}, s{S_PF}, s{S_W}"), o(f"s_mul_i32 s{S_PF}, s{S_PF}, 41")]),
                 o(f"v_add_u32 v{Dd}, s{S_PF}, v0"), o(f"v_lshlrev_b32 v{Dd}, 7, v{Dd}"), o(f"v_mov_b32 v{t}, {OOB:#x}"),
                 G([o("v_cmp_gt_u32 vcc, 41, v0"), o("v_nop"), o("v_nop"), o(f"v_cndmask_b32 v{Dd}, v{t}, v{Dd}, vcc")]),
                 G([o(f"s_and_b32 s{S_PF}, s{S_J}, 7"), o(f"s_lshl_b32 s{S_PF}, s{S_PF}, 2"), o(f"s_add_u32 s{S_PF}, s{S_PF}, s{S_W}")]),
                 G([o(f"s_lshl_b32 s{S_C}, s{S_TAU}, 5"), o(f"s_add_u32 s{S_PF}, s{S_PF}, s{S_C}"), o(f"s_lshl_b32 s{S_PF}, s{S_PF}, 12")]),
                 o(f"v_lshlrev_b32 v{Cc}, 7, v0"), o(f"v_add_u32 v{Cc}, s{S_PF}, v{Cc}"),
                 G([o("v_cmp_gt_u32 vcc, 17, v0"), o("v_nop"), o("v_nop"), o(f"v_cndmask_b32 v{Cc}, v{t}, v{Cc}, vcc")])]
        e = sl.stream(setup, 146, 176)
        s = dma_end[self.opts.get("pfw", 9)]
        assert s > e + 6
        if self.opts.get("bulk", 1) != 2: sl.put(s, [vm(f"buffer_load_dword v{V_PF}, v{Dd}, s[{SR_WD}:{SR_WD+3}], 0 offen", "pf")])
        s = dma_end[self.opts.get("pfc", 11)]
        sl.put(s, [vm(f"buffer_load_dword v{V_PF}, v{Cc}, s[{SR_CS}:{SR_CS+3}], 0 offen", "pf")])
        sl.put(s + 1, [vm(f"buffer_load_dword v{V_PF}, v{Cc}, s[{SR_SS}:{SR_SS+3}], 0 offen", "pf")])

    def owner_addr(self):
        sQ = S_TO
        t0, t1, t2, t3 = 244, 245, 246, 247
        L = [G([o(f"s_lshl_b32 s{T4}, s{S_MT}, 2"), o(f"s_add_u32 s{T4}, s{T4}, s{S_W}")]),
             G([o(f"s_mul_i32 s{T5}, s{T4}, 18"), o(f"s_add_u32 s{T5}, s{T5}, s{sQ}"), o(f"s_lshl_b32 s{T5}, s{T5}, 11")]),
             o(f"s_lshr_b32 s{T3}, s{S_J}, 1")]
        for i, d in enumerate((2, 3, 4, 5, 6, 7, 1)):
            L += [G([o(f"s_xor_b32 s{16+i}, s{T3}, {d}"), o(f"s_mul_i32 s{16+i}, s{16+i}, {PART_BYTES}"), o(f"s_add_u32 s{16+i}, s{16+i}, s{T5}")])]
        L += [o(f"s_lshl_b32 s{T5}, s{T4}, 4"), o(f"v_and_b32 v{t0}, 15, v0"), o(f"v_add_u32 v{t0}, s{T5}, v{t0}"),
              o(f"v_sub_u32 v{t1}, 2048, v{t0}"), o(f"v_mov_b32 v{t2}, 1024"), o(f"v_mov_b32 v{t3}, 0"),
              G([o(f"v_cmp_eq_u32 vcc, 0, v{t0}"), o("v_nop"), o("v_nop"), o(f"v_cndmask_b32 v237, v{t1}, v{t2}, vcc"),
                 o(f"v_cndmask_b32 v{t1}, v{t1}, v{t3}, vcc"), o(f"v_cndmask_b32 v{t2}, v{t0}, v{t2}, vcc")]),
              o(f"v_and_b32 v{t3}, 16, v0"),
              G([o(f"v_cmp_eq_u32 vcc, 0, v{t3}"), o("v_nop"), o("v_nop"), o(f"v_cndmask_b32 v{t0}, v237, v{t0}, vcc"), o(f"v_cndmask_b32 v{t1}, v{t2}, v{t1}, vcc")]),
              o(f"s_lshl_b32 s{T5}, s{sQ}, 6"),
              o(f"v_mul_u32_u24 v{t2}, 1152, v{t0}"), o(f"v_add_u32 v{t2}, s{T5}, v{t2}"),
              o(f"v_lshrrev_b32 v{t3}, 5, v0"), o(f"v_lshlrev_b32 v238, 4, v{t3}"), o(f"v_add_u32 v238, v{t2}, v238"),
              o(f"v_lshlrev_b32 v237, 3, v{t3}"), o(f"v_add_u32 v237, v{t2}, v237"),
              G([o(f"s_lshl_b32 s{T5}, s{sQ}, 7"), o(f"s_cmp_lt_u32 s{sQ}, 9"), o(f"s_cselect_b32 s24, 0, 1")]),
              G([o(f"s_sub_u32 s{T4}, {2292 - 96}, s{T5}"), o(f"s_cmp_lt_u32 s{sQ}, 9"), o(f"s_cselect_b32 s{T5}, s{T5}, s{T4}"), o(f"s_cselect_b32 s{T4}, 1, -1")]),
              G([o(f"v_mov_b32 v{t2}, s24"), o(f"v_cmp_eq_u32 vcc, 1, v{t2}"), o("v_nop"), o("v_nop"), o(f"v_cndmask_b32 v{t0}, v{t0}, v{t1}, vcc")]),
              o(f"v_mul_u32_u24 v{t0}, {YP}, v{t0}"), o(f"v_add_u32 v{t0}, s{T5}, v{t0}"),
              o(f"v_lshlrev_b32 v{t3}, 4, v{t3}"), o(f"v_mul_lo_u32 v{t3}, v{t3}, s{T4}"), o(f"v_add_u32 v{t0}, v{t0}, v{t3}"),
              o(f"v_add_u32 v239, {WS_YH}, v{t0}")]
        return L

    def pipe_reduce(self, sl, M, fu, lu, P2_0, N):
        self.items_cfg()
        t4 = P2_0 + self.opts.get("t4", 254)
        sl.put(t4 - 3, [o("v_mov_b32 v240, 4")])
        sl.put(t4, [wvm([("pst", 0), ("pst", 1), ("pst", 2), "yst"]), o("s_barrier")])
        sl.put(t4 + 1, [vm(f"buffer_store_dword v240, v{V_ONE0}, s[{SR_WS}:{SR_WS+3}], s{S_FL} offen sc1", "fl4")])
        ep = sl.stream(self.p2q_setup(), P2_0 + 102, P2_0 + 124)
        assert ep < P2_0 + 132
        s_own, s_par = 2, 1
        lb = [G([o(f"s_bfe_u32 s{T5}, s{S_J}, 0x10001"), o(f"s_lshl_b32 s{T5}, s{T5}, 6"), o(f"s_xor_b32 s{T4}, s{T5}, 64")]),
              o(f"v_xor_b32 v{V_LB}, s{T4}, v{V_RA+s_own}"), o(f"v_xor_b32 v{V_LB+1}, s{T4}, v{V_RA+s_par}"),
              o(f"v_xor_b32 v{V_LB+2}, s{T5}, v{V_RA+s_own}"), o(f"v_xor_b32 v{V_LB+3}, s{T5}, v{V_RA+s_par}")]
        sl.stream(lb, P2_0 + 190, P2_0 + 200)
        e = sl.stream(self.owner_addr(), P2_0 + 204, P2_0 + 250)
        e = sl.stream([G([o(f"s_and_b32 s{T6}, s{S_J}, 1"), o(f"s_lshl_b32 s{T6}, s{T6}, 7"), o(f"s_lshl_b32 s{T7}, s{S_MT}, 11")]),
                       G([o(f"s_add_u32 s{T6}, s{T6}, s{T7}"), o(f"s_add_u32 s{T6}, s{T6}, {WS_FLAG}")]),
                       o("v_lshlrev_b32 v242, 8, v0"), o(f"v_mov_b32 v241, {OOB:#x}"),
                       G([o("v_cmp_gt_u32 vcc, 8, v0"), o("v_nop"), o("v_nop"), o("v_cndmask_b32 v242, v241, v242, vcc")])], e + 1, e + 8)
        for i in range(4): sl.put(e + 2 + i, [vm(f"buffer_load_dwordx2 v[{24+2*i}:{25+2*i}], v237, s[{SR_X}:{SR_X+3}], 0 offen offset:{16*i}", "ox")])
        tpoll = max(e + 7, P2_0 + self.opts.get("tpa", 284))
        ld, chk = self.group_poll("L_gA", 4, 241, 242)
        sl.put(tpoll, [vm(ld, "gpA")])
        sl.put(tpoll + 9, [wvm("gpA")])
        M[tpoll + 11].setdefault("before", []).extend(chk + [o("s_cbranch_scc1 L_gA_ok")] + self.spin("L_gA", [o(ld)], chk))
        lds = []
        for i in range(6):
            lds += [vm(f"buffer_load_dwordx4 v[{80+8*i}:{83+8*i}], v{V_L16}, s[{SR_WS}:{SR_WS+3}], s{16+i} offen sc1", "op"),
                    vm(f"buffer_load_dwordx4 v[{84+8*i}:{87+8*i}], v{V_L16}, s[{SR_WS}:{SR_WS+3}], s{16+i} offen offset:1024 sc1", "op")]
        lds += [vm(f"buffer_load_dwordx4 v[{48+4*i}:{51+4*i}], v239, s[{SR_WS}:{SR_WS+3}], 0 offen offset:{32*i} sc1", "op") for i in range(4)]
        s = tpoll + 11
        self.late_loads = []
        stp = self.opts.get("ostep", 2)
        for l in lds:
            if s < N - 1: sl.put(s, [l]); s += stp
            else: self.late_loads.append(l)
        print("owner loads: in loop until", s, "late:", len(self.late_loads), "N", N)
        t5 = N - self.opts.get("t5", 10)
        sl.put(t5 - 3, [o("v_mov_b32 v240, 5")])
        sl.put(t5, [wvm([("pst", 3), ("pst", 4)]), o("s_barrier")])
        sl.put(t5 + 1, [vm(f"buffer_store_dword v240, v{V_ONE0}, s[{SR_WS}:{SR_WS+3}], s{S_FL} offen sc1", "fl5")])
        self.RDx = dict(P=("v", 176), X=208, Y=212, OA=220, PV=221, t=[222, 223, 224, 225], rev=26, so=84)
        Ad, Ld = self.item_setup("D", self.RDx, split=True)
        self.D_ld = Ld
        eD = sl.stream(Ad, N - 17, N - 1, spill=0)
        print("D addr until", eD)

    def spin(self, label, load, cond_ok, regs_note=""):
        return [o(f"s_mov_b32 s{S_CNT}, 0"), raw(f"{label}:")] + load + [o("s_waitcnt vmcnt(0)")] + cond_ok + \
               [o(f"s_cbranch_scc1 {label}_ok"), o(f"s_add_u32 s{S_CNT}, s{S_CNT}, 1"), o(f"s_cmp_gt_u32 s{S_CNT}, 0x40000"), o(f"s_cbranch_scc1 {label}_ok"),
                o("s_sleep 1"), o(f"s_branch {label}"), raw(f"{label}_ok:")]

    def main_rest(self, sl, M, fu, lu, stages, slot_of, ACC, tile_last, S0, SP_END, P2_0, N, fbar, place):
        zP, zQ, accP, accQ = self.zP, self.zQ, self.accP, self.accQ
        DIST = self.opts.get("dist", 7)
        if self.opts.get("esig", 1):
            e = sl.stream(self.geglu_sig(6, 8), 490, 535)
            e = sl.stream(self.geglu_sig(7, 8), max(e + 1, 508), 578)
            e6 = sl.stream(self.geglu_fin(6) + self.hstore(6), max(e + 1, 579), 596)
            e7 = sl.stream(self.geglu_fin(7) + self.hstore(7), e6 + 1, 614)
            assert e7 < S0 - 2, e7
            e8 = sl.stream(self.geglu_sig(8, 8), max(e7 + 1, 616), S0 + 2)
            e8 = sl.stream(self.geglu_fin(8) + self.hstore(8), max(e8 + 1, S0 + 4), S0 + 16)
            self.e8 = e8
        else:
            e6 = sl.stream(self.geglu(6) + self.hstore(6), 577, 634)
            assert e6 < S0 - 2, e6
            e7 = sl.stream(self.geglu(7) + self.hstore(7), e6 + 1, S0 + 46)
            assert e7 < SP_END - 1, e7
        if not self.opts.get("esig", 1): sl.stream(self.geglu(8, 8) + self.hstore(8), S0 + 4, S0 + 85)
        sl.put(467, [vm(f"buffer_load_dword v230, off, s[{SR_HZ}:{SR_HZ+3}], 0 offset:128 sc1", "zpoll")])
        sl.put(574, [wvm("zpoll")])
        sl.put(575, [o(f"v_readfirstlane_b32 s{T0}, v230")])
        M[578].setdefault("before", []).extend(
            [o(f"s_cmp_ge_u32 s{T0}, 256"), o("s_cbranch_scc1 L_zp_ok")] +
            self.spin("L_zp", [o(f"buffer_load_dword v{V_PF}, off, s[{SR_HZ}:{SR_HZ+3}], 0 offset:128 sc1")],
                      [o(f"v_readfirstlane_b32 s{T0}, v{V_PF}"), o("s_nop 3"), o(f"s_cmp_ge_u32 s{T0}, 256")]))
        ins = []
        for k in range(9):
            if k < 8: ins += [o(f"s_add_u32 s{S_C}, s{S_ZB}, {k*2048}")]
            else: ins += [G([o(f"s_cmp_eq_u32 s{S_W}, 3"), o(f"s_cselect_b32 s{S_C}, 0, {OOB:#x}"), o(f"s_add_u32 s{S_C}, s{S_C}, s{S_ZB}")]),
                          o(f"s_add_u32 s{S_C}, s{S_C}, {8*2048}")]
            for ss in range(3):
                ins += [vm(f"buffer_load_dwordx4 {zP(ss,k)}, v{V_ZP+ss}, s[{SR_WS}:{SR_WS+3}], s{S_C} offen sc1", ("zp", k))]
        sl.stream(ins, 579, 640)
        for k in range(9):
            g = S0 + 6*k
            sl.put(g - 1, [wvm(("zp", k))])
        ins = []
        for k in range(8):
            ins += [o(f"s_add_u32 s{S_C}, s{S_ZB}, {k*2048}")]
            for ss in range(3):
                ins += [vm(f"buffer_load_dwordx4 {zQ(ss,k)}, v{V_ZQ+ss}, s[{SR_WS}:{SR_WS+3}], s{S_C} offen sc1", ("zq", k))]
        sl.stream(ins, S0, SP_END + 20)
        for k in range(8):
            g = SP_END + 6*k
            sl.put(g - 1, [wvm(("zq", k))])
        blk = [o(f"s_cmp_eq_u32 s{S_TAU}, 0"), o("s_cbranch_scc0 L_s_n1024"),
               o("v_mov_b32 v232, 0xbf803f80"), o("v_mov_b32 v233, v232"), o("v_mov_b32 v234, v232"), o("v_mov_b32 v235, v232"), o("s_nop 1")]
        for k in range(9):
            for ss in range(3):
                a = (32, 36, 40)[ss] if False else None
        A1024 = [120, 124, 136]
        for k in range(9):
            for ss in range(3):
                a = A1024[ss]
                blk += [mf16(f"v[{a}:{a+3}]", "v[232:235]", zP(ss, k), "0" if k == 0 else f"v[{a}:{a+3}]")]
        blk += [raw("L_s_n1024:")]
        M[SP_END].setdefault("before", []).extend(blk)
        tA, tB, tC = 236, 237, 238
        t = lu[("C", 0)]; fbar(t)
        e = place(self.dma_p2(stages[0], slot_of[stages[0]], True, 12, 13, V_PF), t + 1, 1)
        ins = [o(f"v_lshrrev_b32 v{V_PF}, 5, v0"), o(f"v_lshlrev_b32 v{V_PF}, 9, v{V_PF}")]
        for s in range(4): ins += [o(f"v_sub_u32 v{V_RA+s}, v{V_RA+s}, v{V_PF}"), o(f"v_sub_u32 v{V_RB+s}, v{V_RB+s}, v{V_PF}")]
        sl.stream(ins, e + 1, e + 14)
        t = lu[("C", 1)] + 6; fbar(t)
        assert t >= lu[("CX", 0)]
        place(self.dma_p2(stages[2], slot_of[stages[2]], False, 0, 0, 0), t + 1, 1)
        t = lu[("S", 0)]
        if self.opts.get("esig", 1):
            sl.put(t, [wvm("hst"), o("s_barrier")])
            sl.put(t + 1, [o(f"v_mov_b32 v{V_PF}, 2")])
            sl.put(t + 2, [vm(f"buffer_store_dword v{V_PF}, v{V_ONE0}, s[{SR_WS}:{SR_WS+3}], s{S_FL} offen sc1", "fl2h")])
            place(self.dma_p2(stages[1], slot_of[stages[1]], False, 0, 0, 0), t + 3, 1)
            fbar(lu[("S", 1)])
        else:
            fbar(t); place(self.dma_p2(stages[1], slot_of[stages[1]], False, 0, 0, 0), t + 1, 1)
            t = lu[("S", 1)]
            sl.put(t, [wvm("hst"), o("s_barrier")])
            sl.put(t + 1, [o(f"v_mov_b32 v{V_PF}, 2")])
            sl.put(t + 2, [vm(f"buffer_store_dword v{V_PF}, v{V_ONE0}, s[{SR_WS}:{SR_WS+3}], s{S_FL} offen sc1", "fl2h")])
        a0 = P2_0 + 3
        t0r, t1r = 240, 241
        SC = SLOT
        W3D = SPARE - SLOT - 3*12288
        N1A = SPARE + 12288
        wr = [G([o(f"s_mul_i32 s{S_C}, s{S_W}, 12288"), o(f"s_add_u32 s{S_C}, s{S_C}, {SC}")]),
              G([o(f"s_cmp_eq_u32 s{S_W}, 3"), o(f"s_cselect_b32 s{S_ST1}, {W3D}, 0"), o(f"s_add_u32 s{S_C}, s{S_C}, s{S_ST1}")]),
              o(f"v_lshrrev_b32 v{t0r}, 4, v0"), o(f"v_mul_u32_u24 v{t0r}, 768, v{t0r}"), o(f"v_and_b32 v{t1r}, 15, v0"), o(f"v_lshlrev_b32 v{t1r}, 2, v{t1r}"),
              o(f"v_add_u32 v{t0r}, v{t0r}, v{t1r}"), o(f"v_add_u32 v{t0r}, s{S_C}, v{t0r}")]
        for pq, accf in ((0, accP), (1, accQ)):
            for tt in range(2):
                for ss in range(3):
                    for r in range(4):
                        wr += [ds(f"ds_write_b32 v{t0r}, v{accf(tt,ss)+r} offset:{pq*6144 + (16*tt + r)*192 + ss*64}", "sred_w")]
        e = sl.stream(wr, a0, a0 + 30)
        wr2 = [G([o(f"s_mul_i32 s{S_C}, s{S_W}, 768"), o(f"s_add_u32 s{S_C}, s{S_C}, {N1A}")]), o(f"v_lshlrev_b32 v{t1r}, 2, v0"), o(f"v_add_u32 v{t1r}, s{S_C}, v{t1r}")]
        for ss in range(3): wr2 += [ds(f"ds_write_b32 v{t1r}, v{A1024[ss]} offset:{ss*256}", "sred_w")]
        e = sl.stream(wr2, e + 1, e + 6)
        b1 = e + 1
        sl.put(b1, [wlg("sred_w"), o("s_barrier")])
        R0, R1 = 128, 64
        R0, R1 = 112, 48
        A0, A1, YD0, YM0, YD1, YM1 = 232, 233, 234, 235, 236, 237
        ad = [G([o(f"s_lshl_b32 s{T3}, s{S_W}, 3"), o(f"s_lshl_b32 s{T4}, s{S_TAU}, 5"), o(f"s_add_u32 s{T4}, s{T4}, s{T3}")]),
              G([o(f"s_mul_i32 s{T3}, s{T3}, 192"), o(f"s_add_u32 s{T3}, s{T3}, {SC}"), o(f"s_and_b32 s{T5}, s{S_J}, 7")]),
              o(f"s_mul_i32 s{T5}, s{T5}, 144"),
              o(f"v_lshrrev_b32 v238, 3, v0"), o(f"v_and_b32 v239, 7, v0"),
              o(f"v_mul_u32_u24 v{A0}, 192, v238"), o(f"v_lshlrev_b32 v239, 4, v239"), o(f"v_add_u32 v{A0}, v{A0}, v239"), o(f"v_add_u32 v{A0}, s{T3}, v{A0}"),
              o(f"v_add_u32 v238, s{T4}, v238"),
              o(f"v_add_u32 v239, s{T5}, v239"),
              o(f"v_mul_u32_u24 v{YD0}, {YP}, v238"), o(f"v_add_u32 v{YD0}, v{YD0}, v239"),
              o(f"v_sub_u32 v{YM0}, 2048, v238"), o(f"v_mul_u32_u24 v{YM0}, {YP}, v{YM0}"), o(f"v_add_u32 v{YM0}, v{YM0}, v239"),
              G([o(f"v_cmp_eq_u32 vcc, 0, v238"), o(f"v_mov_b32 v238, {OOB:#x}"), o("v_nop"), o(f"v_cndmask_b32 v{YM0}, v{YM0}, v238, vcc")]),
              o(f"v_and_b32 v238, 7, v0"), o(f"v_lshrrev_b32 v239, 3, v0"), o(f"v_add_u32 v239, 8, v239"), o(f"v_min_u32 v239, 9, v239"),
              o(f"v_mul_u32_u24 v{A1}, 192, v238"), o(f"v_lshlrev_b32 v239, 4, v239"), o(f"v_add_u32 v{A1}, v{A1}, v239"), o(f"v_add_u32 v{A1}, s{T3}, v{A1}"),
              o(f"v_add_u32 v238, s{T4}, v238"), o(f"v_add_u32 v239, s{T5}, v239"),
              o(f"v_mul_u32_u24 v{YD1}, {YP}, v238"), o(f"v_add_u32 v{YD1}, v{YD1}, v239"),
              o(f"v_sub_u32 v{YM1}, 2048, v238"), o(f"v_mul_u32_u24 v{YM1}, {YP}, v{YM1}"), o(f"v_add_u32 v{YM1}, v{YM1}, v239"),
              G([o(f"v_cmp_eq_u32 vcc, 0, v238"), o(f"v_mov_b32 v238, {OOB:#x}"), o("v_nop"), o(f"v_cndmask_b32 v{YM1}, v{YM1}, v238, vcc")]),
              G([o(f"s_cmp_eq_u32 s{T5}, {7*144}"), o(f"s_cselect_b32 s{T5}, 16, 8")]),
              G([o(f"v_cmp_gt_u32 vcc, s{T5}, v0"), o("v_nop"), o("v_nop"), o(f"v_cndmask_b32 v{YD1}, v238, v{YD1}, vcc"), o(f"v_cndmask_b32 v{YM1}, v238, v{YM1}, vcc")]),
              o(f"s_mov_b32 s{T4}, {WS_YH}"),
              o(f"v_lshlrev_b32 v238, 2, v0"), o(f"v_add_u32 v238, {N1A}, v238"),
              o(f"v_add_u32 v243, {W3D + 3*12288}, v{A0}"), o(f"v_add_u32 v244, {W3D + 3*12288}, v{A1}")]
        e = sl.stream(ad, a0 + 2, b1)
        assert e <= b1 + 6
        def rds(R, A, tag):
            A3 = 243 if A == A0 else 244
            return [ds(f"ds_read_b128 v[{R + 16*pq + 4*ww}:{R + 16*pq + 4*ww + 3}], v{A if ww < 3 else A3} offset:{(ww*12288 if ww < 3 else 0) + pq*6144}", tag) for pq in range(2) for ww in range(4)]
        N1 = 216
        n1r = [ds(f"ds_read_b32 v{N1+4*ss+ww}, v238 offset:{ww*768 + ss*256}", "sred_n") for ss in range(3) for ww in range(4)]
        e = sl.stream(rds(R0, A0, "sr0") + rds(R1, A1, "sr1") + n1r, max(e, b1) + 1, max(e, b1) + 12)
        b2 = e + 3
        sl.put(b2, [wlg("sred_n"), o("s_barrier")])
        self.b2 = b2
        def fin(R, YD, YM):
            out = []
            for pq in range(2):
                b_ = R + 16*pq
                for k in range(4):
                    out += [o(f"v_add_f32 v{b_+k}, v{b_+k}, v{b_+4+k}"), o(f"v_add_f32 v{b_+8+k}, v{b_+8+k}, v{b_+12+k}"), o(f"v_add_f32 v{b_+k}, v{b_+k}, v{b_+8+k}")]
            for k in range(4):
                out += [o(f"v_sub_f32 v{R+4+k}, v{R+k}, v{R+16+k}"), o(f"v_add_f32 v{R+8+k}, v{R+k}, v{R+16+k}")]
            out += [vm(f"buffer_store_dwordx4 v[{R+4}:{R+7}], v{YD}, s[{SR_WS}:{SR_WS+3}], s{T4} offen sc1", "yst"),
                    vm(f"buffer_store_dwordx4 v[{R+8}:{R+11}], v{YM}, s[{SR_WS}:{SR_WS+3}], s{T4} offen sc1", "yst")]
            return out
        n1 = []
        for ss in range(3):
            b_ = N1 + 4*ss
            n1 += [o(f"v_add_f32 v{b_}, v{b_}, v{b_+1}"), o(f"v_add_f32 v{b_+2}, v{b_+2}, v{b_+3}"), o(f"v_add_f32 v{b_}, v{b_}, v{b_+2}")]
        n1 += [G([o(f"s_or_b32 s{T3}, s{S_TAU}, s{S_W}"), o(f"s_cmp_eq_u32 s{T3}, 0"), o(f"s_cselect_b32 s{T3}, 16, 0")]),
               G([o(f"v_cmp_gt_u32 vcc, s{T3}, v0"), o(f"v_mov_b32 v238, {1024*YP}"), o(f"v_mov_b32 v239, {OOB:#x}"), o(f"v_cndmask_b32 v238, v239, v238, vcc")])]
        for ss in range(3):
            n1 += [o(f"v_add_u32 v{N1+4*ss+1}, v238, v{V_YC[ss]}")]
        n1 += [vm(f"buffer_store_dword v{N1+4*ss}, v{N1+4*ss+1}, s[{SR_WS}:{SR_WS+3}], s{T4} offen sc1", "yst") for ss in range(3)]
        e = sl.stream(fin(R1, YD1, YM1) + fin(R0, YD0, YM0), b2 + 1, P2_0 + 66, spill=3)
        assert e < P2_0 + 72, e
        e = sl.stream(n1, e + 1, e + 16)
        assert e < P2_0 + 100, e
        gpar = fu[("s2", (0, "par"))]
        PF2 = 231
        sl.put(660, [G([o(f"s_xor_b32 s{T0}, s{S_LID}, 1"), o(f"s_lshl_b32 s{T1}, s{T0}, 7"), o(f"s_add_u32 s{T1}, s{T1}, {WS_FLAG}")])])
        sl.put(661, [G([o(f"s_lshl_b32 s{T0}, s{T0}, 2"), o(f"s_add_u32 s{T0}, s{T0}, s{S_W}"), o(f"s_mul_i32 s{T0}, s{T0}, {18*1024}")]), o(f"s_add_u32 s{T0}, s{T0}, {WS_HX}")])
        pl = f"buffer_load_dword v242, off, s[{SR_WS}:{SR_WS+3}], s{T1} sc1"
        h1 = self.opts.get("h1", P2_0 - 12)
        sl.put(h1, [vm(pl, "hpoll1")])
        sl.put(h1 + 12, [wvm("hpoll1")])
        sl.put(h1 + 13, [o(f"v_readfirstlane_b32 s{T2}, v242")])
        M[h1 + 16].setdefault("before", []).extend(
            [o(f"s_cmp_ge_u32 s{T2}, 1"), o("s_cbranch_scc1 L_hq_ok")] +
            self.spin("L_hq", [o(pl)], [o(f"v_readfirstlane_b32 s{T2}, v242"), o("s_nop 3"), o(f"s_cmp_ge_u32 s{T2}, 1")]))
        def hload(k, n, t, tag):
            sl.put(t, [o(f"s_add_u32 s{T6}, s{T0}, {k*1024}")])
            sl.put(t + 1, self.dload([f"buffer_load_dwordx4 a[{AZ+4*(k+q)}:{AZ+4*(k+q)+3}], v{V_L16}, s[{SR_WS}:{SR_WS+3}], s{T6} offen offset:{q*1024}" for q in range(n)], tag, True))
        for i in range(6):
            hload(2*i, 2, h1 + 17 + 9*i, ("hp", i))
        tp = P2_0 + self.opts.get("tp2", 74)
        assert tp - 13 > h1 + 17 + 9*5 + 1
        sl.put(tp - 13, [vm(pl, "hpoll2")])
        sl.put(tp - 2, [wvm("hpoll2")])
        sl.put(tp - 1, [o(f"v_readfirstlane_b32 s{T2}, v242")])
        M[tp + 2].setdefault("before", []).extend(
            [o(f"s_cmp_ge_u32 s{T2}, 2"), o("s_cbranch_scc1 L_hp_ok")] +
            self.spin("L_hp", [o(pl)], [o(f"v_readfirstlane_b32 s{T2}, v242"), o("s_nop 3"), o(f"s_cmp_ge_u32 s{T2}, 2")]))
        for i in range(3):
            hload(12 + 2*i, 2, tp + 4 + 6*i, ("hp", 6 + i))
        sl.put(gpar - 2, [wvm(("hp", 5))])
        for i in range(3):
            sl.put(gpar + 12 + 2*i - 2, [wvm(("hp", 6 + i))])
        for i in range(3, 9):
            st = stages[i]; slot = slot_of[st]
            prev = [j for j in range(i) if slot_of[stages[j]] == slot]
            if prev:
                t = lu[("s2", stages[prev[-1]])]; fbar(t); start = t + 1
            else:
                start = b2 + 1
            grps = self.dma_p2(st, slot, False, 250, 251, 0)
            if st[0] == 4:
                grps = [[o(f"s_and_b32 s{S_C}, s{S_W}, 1"), o(f"s_mul_i32 s{S_C}, s{S_C}, {16*1152}")]] + grps
                place(grps, start, 1)
            else:
                place(grps, start, 2)
        s4 = slot_of[(4, "both")]
        ins = [o("v_lshrrev_b32 v250, 5, v0"), o("v_lshlrev_b32 v250, 8, v250"),
               o("v_bfe_u32 v251, v0, 2, 2"), o("v_lshlrev_b32 v251, 6, v251"), o("v_add_u32 v250, v250, v251"),
               o("v_bfe_u32 v251, v0, 4, 1"), o("v_lshlrev_b32 v251, 5, v251"), o("v_add_u32 v250, v250, v251"),
               o("v_and_b32 v251, 3, v0"), o("v_lshlrev_b32 v251, 3, v251"), o("v_add_u32 v250, v250, v251"),
               o(f"v_add_u32 v{V_R8}, {s4*SLOT}, v250")]
        sl.stream(ins, P2_0 + 150, P2_0 + 175)
        self.pipe_reduce(sl, M, fu, lu, P2_0, N)
        for (u, half), tl in sorted(tile_last.items(), key=lambda x: x[1]):
            acc = ACC[u][half]
            par = half
            t = TMP + 8*par
            st = S_ST0 + par
            ins = [o(f"v_cvt_pk_bf16_f32 v{t+i}, v{acc+2*i}, v{acc+2*i+1}") for i in range(8)]
            if u == 3 and half == 1: continue
            if u < 3: ins += [o(f"s_add_u32 s{st}, s{S_QU[u]}, {half*2048}")]
            elif u == 3: ins += [o(f"s_mov_b32 s{st}, s{S_QN}")]
            else: ins += [o(f"s_mov_b32 s{st}, s{S_Q8}")]
            ins += self.dstore([f"buffer_store_dwordx4 v[{t}:{t+3}], v{V_L16}, s[{SR_WS}:{SR_WS+3}], s{st} offen",
                                f"buffer_store_dwordx4 v[{t+4}:{t+7}], v{V_L16}, s[{SR_WS}:{SR_WS+3}], s{st} offen offset:1024"], ("pst", u))
            s0 = tl + 4
            if s0 + 10 <= N: sl.stream(ins, s0, s0 + 10)
            else: self.tail2 = [o("s_nop 15")] + ins

    def item_setup(self, kind, R, srd=None, split=False):
        t0, t1, t2, t3 = R["t"]
        sQ, sH, sB, sT = T2, T3, T4, T5
        L = []
        LD = []
        SW = SR_WS if srd is None else srd
        if kind == "A":
            L += [G([o(f"s_lshl_b32 s{sT}, s{S_J}, 2"), o(f"s_add_u32 s{sT}, s{sT}, s{S_W}"), o(f"s_lshr_b32 s{sQ}, s{sT}, 3")]),
                  G([o(f"s_cmp_lt_u32 s{sQ}, 4"), o(f"s_cselect_b32 s{sH}, 0, 6"), o(f"s_add_u32 s{sQ}, s{sQ}, s{sH}")])]
        elif kind in "BC":
            lo, hi = (4, 12) if kind == "B" else (6, 14)
            L += [G([o(f"s_lshl_b32 s{sT}, s{S_J}, 1"), o(f"s_lshr_b32 s{sH}, s{S_W}, 1"), o(f"s_add_u32 s{sT}, s{sT}, s{sH}")]),
                  G([o(f"s_lshr_b32 s{sQ}, s{sT}, 3"), o(f"s_cmp_lt_u32 s{sQ}, 2"), o(f"s_cselect_b32 s{sH}, {lo}, {hi}")]),
                  o(f"s_add_u32 s{sQ}, s{sQ}, s{sH}")]
        else:
            L += [G([o(f"s_lshr_b32 s{sT}, s{S_J}, 1"), o(f"s_and_b32 s{sQ}, s{S_J}, 1"), o(f"s_add_u32 s{sQ}, s{sQ}, 8")])]
        L += [G([o(f"s_and_b32 s{sH}, s{sT}, 1"), o(f"s_bfe_u32 s{sB}, s{sT}, 0x20001"), o(f"s_lshl_b32 s{sT}, s{S_MT}, 2")]),
              o(f"s_add_u32 s{sB}, s{sB}, s{sT}"),
              G([o(f"s_mul_i32 s{sT}, s{sB}, 18"), o(f"s_add_u32 s{sT}, s{sT}, s{sQ}"), o(f"s_lshl_b32 s{sT}, s{sT}, 1")]),
              G([o(f"s_add_u32 s{sT}, s{sT}, s{sH}"), o(f"s_lshl_b32 s{sT}, s{sT}, 10")])]
        so = R["so"]
        for p in range(8): L += [o(f"s_add_u32 s{so+p}, s{sT}, {p*PART_BYTES}")]
        if kind == "A":
            L += [o(f"v_mov_b32 v{t3}, 0")]
        elif kind in "BC":
            L += [o(f"s_and_b32 s{sT}, s{S_W}, 1"), o(f"v_bfe_u32 v{t0}, v0, 4, 1"), o(f"v_mov_b32 v{t1}, {OOB:#x}"), o(f"v_mov_b32 v{t3}, 0"),
                  G([o(f"v_cmp_eq_u32 vcc, s{sT}, v{t0}"), o("v_nop"), o("v_nop"), o(f"v_cndmask_b32 v{t3}, v{t1}, v{t3}, vcc")])]
        else:
            L += [o(f"v_bfe_u32 v{t0}, v0, 3, 2"), o(f"v_mov_b32 v{t1}, {OOB:#x}"), o(f"v_mov_b32 v{t3}, 0"),
                  G([o(f"v_cmp_eq_u32 vcc, s{S_W}, v{t0}"), o("v_nop"), o("v_nop"), o(f"v_cndmask_b32 v{t3}, v{t1}, v{t3}, vcc")])]
        PV = R["PV"]
        L += [o(f"v_add_u32 v{PV}, v{t3}, v{V_L16}")]
        pk, pb = R["P"]
        ldp = [vm(f"buffer_load_dwordx4 {pk}[{pb+4*p}:{pb+4*p+3}], v{PV}, s[{SW}:{SW+3}], s{so+p} offen sc1", ("it", kind)) for p in range(8)]
        if split: LD += ldp
        else: L += ldp
        X, Y, OA = R["X"], R["Y"], R["OA"]
        L += [o(f"s_lshl_b32 s{sT}, s{sB}, 4"), o(f"v_and_b32 v{t0}, 15, v0"), o(f"v_add_u32 v{t0}, s{sT}, v{t0}"),
              o(f"v_sub_u32 v{t1}, 2048, v{t0}"), o(f"v_mov_b32 v{t2}, 1024"), o(f"v_mov_b32 v{OA}, 0"),
              G([o(f"v_cmp_eq_u32 vcc, 0, v{t0}"), o("v_nop"), o("v_nop"), o(f"v_cndmask_b32 v{X}, v{t1}, v{t2}, vcc"),
                 o(f"v_cndmask_b32 v{t1}, v{t1}, v{OA}, vcc"), o(f"v_cndmask_b32 v{t2}, v{t0}, v{t2}, vcc")]),
              o(f"v_and_b32 v{OA}, 16, v0"),
              G([o(f"v_cmp_eq_u32 vcc, 0, v{OA}"), o("v_nop"), o("v_nop"), o(f"v_cndmask_b32 v{t0}, v{X}, v{t0}, vcc"), o(f"v_cndmask_b32 v{t1}, v{t2}, v{t1}, vcc")]),
              G([o(f"s_lshl_b32 s{sT}, s{sQ}, 6"), o(f"s_lshl_b32 s{sB}, s{sH}, 5"), o(f"s_add_u32 s{sT}, s{sT}, s{sB}")]),
              o(f"v_mul_u32_u24 v{t2}, 1152, v{t0}"), o(f"v_add_u32 v{t2}, s{sT}, v{t2}"), o(f"v_add_u32 v{t2}, v{t2}, v{t3}"),
              o(f"v_lshrrev_b32 v{X}, 5, v0"), o(f"v_lshlrev_b32 v{OA}, 4, v{X}"), o(f"v_add_u32 v{OA}, v{t2}, v{OA}"),
              o(f"v_lshlrev_b32 v{X}, 3, v{X}"), o(f"v_add_u32 v{t2}, v{t2}, v{X}"),
              vm(f"buffer_load_dwordx2 v[{X}:{X+1}], v{t2}, s[{SR_X}:{SR_X+3}], 0 offen", ("it", kind)),
              vm(f"buffer_load_dwordx2 v[{X+2}:{X+3}], v{t2}, s[{SR_X}:{SR_X+3}], 0 offen offset:16", ("it", kind)),
              G([o(f"s_lshl_b32 s{sT}, s{sT}, 1"), o(f"s_cmp_lt_u32 s{sQ}, 9"), o(f"s_cselect_b32 s{R['rev']}, 0, 1")]),
              G([o(f"s_sub_u32 s{sB}, 2292, s{sT}"), o(f"s_cmp_lt_u32 s{sQ}, 9"), o(f"s_cselect_b32 s{sT}, s{sT}, s{sB}"), o(f"s_cselect_b32 s{sB}, 1, -1")]),
              G([o(f"v_cmp_eq_u32 vcc, 1, v{PV}") if False else o(f"v_mov_b32 v{t2}, s{R['rev']}"), o(f"v_cmp_eq_u32 vcc, 1, v{t2}"), o("v_nop"), o("v_nop"),
                 o(f"v_cndmask_b32 v{t0}, v{t0}, v{t1}, vcc")]),
              o(f"v_mul_u32_u24 v{t0}, {YP}, v{t0}"), o(f"v_add_u32 v{t0}, s{sT}, v{t0}"), o(f"v_add_u32 v{t0}, v{t0}, v{t3}"),
              o(f"v_lshrrev_b32 v{t1}, 5, v0"), o(f"v_lshlrev_b32 v{t1}, 4, v{t1}"), o(f"v_mul_lo_u32 v{t1}, v{t1}, s{sB}"),
              o(f"v_add_u32 v{t0}, v{t0}, v{t1}"),
              o(f"s_lshl_b32 s{sB}, s{sB}, 5"), o(f"v_add_u32 v{t1}, s{sB}, v{t0}"), o(f"v_add_u32 v{t0}, {WS_YH}, v{t0}"), o(f"v_add_u32 v{t1}, {WS_YH}, v{t1}")]
        ldy = [vm(f"buffer_load_dwordx4 v[{Y}:{Y+3}], v{t0}, s[{SW}:{SW+3}], 0 offen sc1", ("it", kind)),
               vm(f"buffer_load_dwordx4 v[{Y+4}:{Y+7}], v{t1}, s[{SW}:{SW+3}], 0 offen sc1", ("it", kind))]
        if split:
            LD += ldy
            return L, LD
        return L + ldy

    def item_finish(self, kind, R):
        X, Y, OA = R["X"], R["Y"], R["OA"]
        t0, t1, t2, t3 = R["t"]
        pk, pb = R["P"]
        L = [wvm(("it", kind)),
             o(f"s_cmp_eq_u32 s{R['rev']}, 0"), o(f"s_cbranch_scc1 L_rv{kind}"),
             o(f"v_swap_b32 v{Y}, v{Y+3}"), o(f"v_swap_b32 v{Y+1}, v{Y+2}"), o(f"v_swap_b32 v{Y+4}, v{Y+7}"), o(f"v_swap_b32 v{Y+5}, v{Y+6}"),
             raw(f"L_rv{kind}:"),
             o(f"s_mov_b32 s{T0}, 0x3f80"), o(f"s_mov_b32 s{T1}, 0x3f800000")]
        for i in range(4):
            L += [o(f"v_dot2_f32_bf16 v{Y+2*i}, v{X+i}, s{T0}, v{Y+2*i}"), o(f"v_dot2_f32_bf16 v{Y+2*i+1}, v{X+i}, s{T1}, v{Y+2*i+1}")]
        for p in range(8):
            for i in range(4):
                r = pb + 4*p + i
                if pk == "a":
                    L += [o(f"v_accvgpr_read_b32 v{t0 + (i & 1)}, a{r}")]
                    src = t0 + (i & 1)
                else: src = r
                L += [o(f"v_dot2_f32_bf16 v{Y+2*i}, v{src}, s{T0}, v{Y+2*i}"), o(f"v_dot2_f32_bf16 v{Y+2*i+1}, v{src}, s{T1}, v{Y+2*i+1}")]
        L += [o("s_nop 2")]
        for i in range(4):
            L += [o(f"v_cvt_pk_bf16_f32 v{X+i}, v{Y+2*i}, v{Y+2*i+1}")]
        L += [o("s_nop 1"), o(f"v_permlane32_swap_b32 v{X}, v{X+2}"), o(f"v_permlane32_swap_b32 v{X+1}, v{X+3}"),
              vm(f"buffer_store_dwordx4 v[{X}:{X+3}], v{OA}, s[{SR_OUT}:{SR_OUT+3}], 0 offen{self.osfx}", "out")]
        return L

    def group_poll(self, label, val, vdst, voff):
        ld = f"buffer_load_dword v{vdst}, v{voff}, s[{SR_WS}:{SR_WS+3}], s{T6} offen sc1"
        chk = [o(f"v_cmp_le_u32 vcc, {val}, v{vdst}"), o("s_nop 0"), o(f"s_and_b32 s{T7}, vcc_lo, 0xff"), o(f"s_cmp_eq_u32 s{T7}, 0xff")]
        return ld, chk

    def items_cfg(self):
        self.RA = dict(P=("v", 80), X=112, Y=116, OA=124, PV=125, t=[126, 127, 16, 17], rev=24, so=16)
        self.RB = dict(P=("a", 0), X=18, Y=22, OA=30, PV=31, t=[48, 49, 50, 51], rev=25, so=16)
        self.RC = dict(P=("v", 176), X=208, Y=212, OA=220, PV=221, t=[222, 223, 224, 225], rev=26, so=16)
        self.RD = dict(P=("v", 128), X=160, Y=164, OA=172, PV=173, t=[174, 175, 226, 227], rev=27, so=84)

    def tail(self):
        L = list(self.late_loads)
        O = 128
        ld, chk = self.group_poll("L_f5", 5, 241, 242)
        L += [vm(ld, "fp5")]
        L += self.stamp("pub")
        RD = self.RDx; Ld = self.D_ld
        L += [wvm("op"), wvm("ox"), o(f"s_mov_b32 s{T0}, 0x3f80"), o(f"s_mov_b32 s{T1}, 0x3f800000"),
              o("s_cmp_eq_u32 s24, 0"), o("s_cbranch_scc1 L_oyd")]
        for g_ in range(4):
            for k in range(4): L += [o(f"v_add_f32 v{O+4*g_+k}, v{O+4*g_+k}, v{48 + 4*(3-g_) + 3 - k}")]
        L += [o("s_branch L_oyj"), raw("L_oyd:")]
        for r in range(16): L += [o(f"v_add_f32 v{O+r}, v{O+r}, v{48+r}")]
        L += [raw("L_oyj:")]
        for i in range(8):
            L += [o(f"v_dot2_f32_bf16 v{O+2*i}, v{24+i}, s{T0}, v{O+2*i}"), o(f"v_dot2_f32_bf16 v{O+2*i+1}, v{24+i}, s{T1}, v{O+2*i+1}")]
        for p in range(6):
            for i in range(8):
                L += [o(f"v_dot2_f32_bf16 v{O+2*i}, v{80+8*p+i}, s{T0}, v{O+2*i}"), o(f"v_dot2_f32_bf16 v{O+2*i+1}, v{80+8*p+i}, s{T1}, v{O+2*i+1}")]
        L += self.stamp("early")
        L += [wvm("fp5")] + chk + [o("s_cbranch_scc1 L_f5_ok")] + self.spin("L_f5", [o(ld)], chk) + [reset()]
        L += self.stamp("pok")
        L += [vm(f"buffer_load_dwordx4 v[16:19], v{V_L16}, s[{SR_WS}:{SR_WS+3}], s22 offen sc1", "sib"),
              vm(f"buffer_load_dwordx4 v[20:23], v{V_L16}, s[{SR_WS}:{SR_WS+3}], s22 offen offset:1024 sc1", "sib")]
        L += Ld
        L += [wvm("sib")]
        for i in range(8):
            L += [o(f"v_dot2_f32_bf16 v{O+2*i}, v{16+i}, s{T0}, v{O+2*i}"), o(f"v_dot2_f32_bf16 v{O+2*i+1}, v{16+i}, s{T1}, v{O+2*i+1}")]
        L += [o("s_nop 2")]
        for i in range(8): L += [o(f"v_cvt_pk_bf16_f32 v{24+i}, v{O+2*i}, v{O+2*i+1}")]
        L += [o("s_nop 1"), o("v_permlane32_swap_b32 v24, v26"), o("v_permlane32_swap_b32 v25, v27"),
              o("v_permlane32_swap_b32 v28, v30"), o("v_permlane32_swap_b32 v29, v31"),
              vm(f"buffer_store_dwordx4 v[24:27], v238, s[{SR_OUT}:{SR_OUT+3}], 0 offen{self.osfx}", "out"),
              vm(f"buffer_store_dwordx4 v[28:31], v238, s[{SR_OUT}:{SR_OUT+3}], 0 offen offset:32{self.osfx}", "out")]
        L += self.stamp("ownfin")
        L += self.item_finish("D", RD)
        return L

    def kernel(self, name):
        L = [raw(f".globl {name}"), raw(".p2align 8"), raw(f".type {name},@function"), raw(f"{name}:")]
        L += self.prologue()
        L += self.stamp("proend")
        L += self.ln_stats()
        L += self.stamp("stats")
        L += [o("s_barrier")]
        L += [o(f"s_mov_b32 s{S_A}, s{S_J}"), o(f"s_add_u32 s{S_B}, s{S_J}, 16")]
        L += self.h_dma(S_A, 2, "wz1")
        L += [o(f"s_cmp_lt_u32 s{S_J}, 2"), o("s_cbranch_scc0 L_noz2a")]
        L += [I(i.t, "o") if i.k == "vm" else i for i in self.h_dma(S_B, 3, "wz2")]
        L += [raw("L_noz2a:")]
        hd = []
        for sig in range(2):
            for grp in self.dma_p1(sig, sig): hd.append(grp)
        hd.append([o(f"s_lshl_b32 s{S_PF}, s{S_LID}, 2"), o(f"s_add_u32 s{S_PF}, s{S_PF}, s{S_W}"), o(f"s_mul_i32 s{S_PF}, s{S_PF}, 41"),
                   o(f"v_add_u32 v240, s{S_PF}, v0"), o("v_lshlrev_b32 v240, 7, v240"), o("v_cmp_gt_u32 vcc, 41, v0"), o("s_nop 1"),
                   o(f"v_cndmask_b32 v240, v{V_ONE0}, v240, vcc"),
                   vm(f"buffer_load_dword v{V_PF}, v240, s[{SR_WG}:{SR_WG+3}], 0 offen", "pf"),
                   vm(f"buffer_load_dword v{V_PF}, v240, s[{SR_WU}:{SR_WU+3}], 0 offen", "pf")])
        lf = self.ln_finish()
        per = -(-len(lf) // 18)
        k = 0
        for n, grp in enumerate(hd):
            L += grp
            if n < 18: L += lf[k:k + per]; k += per
        L += lf[k:]
        L += [o(f"v_subrev_u32 v{V_XA+i}, s{S_LX}, v{V_XA+i}") for i in range(4)]
        L += [o(f"v_add_u32 v{V_XA+i}, {2*SLOT}, v{V_XA+i}") for i in range(4)]
        L += self.stamp("lnfin")
        L += self.seg_norm_h()
        L += self.stamp("normH")
        L += self.h2_block()
        L += self.tr_bases()
        L += srd(SR_HZ, 36, 256)
        L += self.main()
        L += self.stamp("p2end")
        L += self.tail()
        L += self.stamp("end")
        if self.diag:
            L += [o("s_waitcnt vmcnt(0)"),
                  o(f"s_lshl_b32 s{T0}, s{S_LID}, 2"), o(f"s_add_u32 s{T0}, s{T0}, s{S_W}"), o(f"s_lshl_b32 s{T0}, s{T0}, 8"),
                  o(f"s_add_u32 s{T0}, s{T0}, {WS_STAMP}"), o("v_lshlrev_b32 v240, 2, v0"),
                  o(f"buffer_store_dword v{V_STAMP}, v240, s[{SR_WS}:{SR_WS+3}], s{T0} offen")]
        L += [raw("L_end:"), o("s_endpgm")]
        return finalize(flat(L))

NAME = "parallel_sum__spectral_fnet__geglu_ffn__prompt_kernel"
def build(diag=False, opts=None):
    hdr = open("parallel_sum__spectral_fnet__geglu_ffn__prompt.s.ref").read().split("\n")
    top = [l for l in hdr if l.startswith(";") and "@launch" not in l and "Override" not in l and "grid=ceil" not in l]
    g = Gen(diag, opts)
    lines = g.kernel(NAME)
    errs = hazard_check(lines)
    for e in errs[:30]: print("HAZARD:", e)
    txt = "\n".join(top) + "\n"
    txt += "; @launch grid=(256,1,1) block=(256,1,1) lds=163840\n"
    txt += '.amdgcn_target "amdgcn-amd-amdhsa--gfx950"\n.text\n'
    txt += "\n".join(lines) + "\n" + kernel_footer(NAME)
    return txt, g.names

if __name__ == "__main__":
    import sys, json
    opts = {}
    for a in sys.argv[2:]:
        if "=" in a:
            k, v = a.split("="); opts[k] = int(v)
    txt, names = build("diag" in sys.argv, opts)
    open(sys.argv[1], "w").write(txt)
    json.dump(names, open(sys.argv[1] + ".names", "w"))
```

```python
from fw import *
from sched import *
import math, struct

S, D, F = 2048, 576, 4608
SLOT = 36864
SPARE = 4*SLOT
PART_BYTES = S * D * 2
WS_PART = 0
WS_HX = 20 << 20
WS_ZF = 40 << 20
ZF_STRIDE = 66 * 1024
WS_YH = 42 << 20
YP = 320 * 4
WS_FLAG = 46 << 20
WS_STAMP = 48 << 20
OOB = 0x40000000
C0 = -2.0 * math.sqrt(2.0 / math.pi) * math.log2(math.e)
C1 = C0 * 0.044715
def f2u(f): return struct.unpack("<I", struct.pack("<f", f))[0]

V_L16 = 1
V_RA, V_RB = 2, 6
V_DM = 10
V_C0, V_C1 = 14, 15
GA = [[16, 32], [48, 64]]
UA = [[80, 96], [112, 128]]
HF = 144
TMP = 216
V_HACC = 232
V_XA = 248
V_R8 = 248
V_PF = 252
V_ONE0 = 253
V_D2 = 254
V_STAMP = 255
RX = 80
V_PERM = 224
V_NEGMU = 64
V_ONE = 231
V_SD = 232
V_SA = 236
V_SX = 240
V_ZP = 241
V_ZQ = 244
V_YC = [247, 250, 251]
V_LB = 232
AX = 0
AF = 144
NAF = 8
AZ = 176
SR_CS, SR_SS, SR_HZ, SR_X, SR_WG, SR_WU, SR_WD, SR_WS, SR_OUT = 4, 8, 12, 40, 44, 48, 52, 56, 60
S_W, S_MT, S_J = 64, 65, 66
S_LX, S_L9 = 67, 68
S_UB = 69
S_WD = 74
S_PB = 75
T0, T1, T2, T3, T4, T5, T6, T7 = 76, 77, 78, 79, 80, 81, 82, 83
S_N0 = 84
S_N1 = 16
S_CU = 25
S_Q0, S_Q8 = 30, 31
S_HB = 32
S_LID = 33
S_ST0, S_ST1 = 34, 35
S_CNT = 93
S_A, S_B, S_C = 94, 95, 96
S_TAU, S_ZB = 38, 39
S_PF = 97
S_XC = 0
S_QU = [30, 36, 37]
S_QN = 39
S_TO = 32
S_GA = 28
S_FL = 1
S_MODE = 2
S_D0 = 3

def srd(dst, ptr, nbytes):
    return [o(f"s_mov_b32 s{dst}, s{ptr}"), o(f"s_and_b32 s{dst+1}, s{ptr+1}, 0xffff"),
            o(f"s_mov_b32 s{dst+2}, {nbytes}"), o(f"s_mov_b32 s{dst+3}, 0x00020000")]
def mf32(acc, A, B, C): return o(f"v_mfma_f32_32x32x16_bf16 {acc}, {A}, {B}, {C}")
def mf16(acc, A, B, C): return o(f"v_mfma_f32_16x16x32_bf16 {acc}, {A}, {B}, {C}")

class DS2(I):
    pass

class Gen:
    def dload(self, texts, tag, pair=False):
        out = self.dstore(texts, tag, pair)
        if hasattr(out[0], "cost"): out[0].cost = 3 + len(texts)
        return out
    def dstore(self, texts, tag, pair=False):
        self.lab = getattr(self, "lab", 0) + 1
        n = self.lab
        if self.opts.get("forcemode") == 1 or not self.opts.get("local", 0) or (self.opts.get("cfg", 0) == 0 and not pair):
            return [vm(t + " sc1", tag) for t in texts]
        body = f"s_bitcmp1_b32 s{S_MODE}, 0\n    s_cbranch_scc1 L_dl{n}\n"
        body += "".join(f"    {t} sc1\n" for t in texts)
        body += f"    s_branch L_dj{n}\nL_dl{n}:\n"
        body += "".join(f"    {t}\n" for t in texts)
        body += f"L_dj{n}:"
        out = [I("buffer_store_multi " + body, "vm", tag)]
        out[0].t = body
        out[0].cost = 3 + 5*len(texts)
        for _ in texts[1:]:
            x = I("; (counted above)", "vm", tag); x.cost = 0; out.append(x)
        return out
    def __init__(self, diag=False, opts=None):
        self.osfx = ' sc1' if (opts or {}).get('osc1') else ''
        self.diag = diag; self.opts = opts or {}; self.nst = 0; self.names = []; self.pid = 0
    def stamp(self, name):
        if not self.diag: return []
        i = self.nst; self.nst += 1; self.names.append(name)
        return [o("s_memtime s[98:99]"), o("s_memrealtime s[100:101]"), o("s_waitcnt lgkmcnt(0)"),
                o(f"v_writelane_b32 v{V_STAMP}, s98, {i}"), o(f"v_writelane_b32 v{V_STAMP}, s100, {i+32}")]

    def paced(self, M, frags, setup, dist):
        N = len(M)
        sl = Slots(N)
        for g, m in enumerate(M):
            if m["op"] == 16: sl.budget[g] = 3
        head = []
        pid = self.pid; self.pid += 1
        def put(t, ins):
            if t < 0: head.extend(ins if isinstance(ins, list) else [ins])
            else: sl.put(t, ins)
        issue = {}
        for f, fr in enumerate(frags):
            t = fr["use"] - fr.get("dist", dist)
            issue[f] = t
            put(t, fr.get("pre", []))
            put(t, [ds(r, ("af", pid, f)) for r in fr["reads"]])
        waited = -1
        n0 = M[0]["need"]
        if n0 >= 0:
            tgt = max(n0, M[1]["need"])
            head.append(wlg(("af", pid, tgt))); waited = tgt
        for g in range(N - 1):
            nx = M[g+1]["need"]
            if nx > waited:
                tgt = nx
                if g + 2 < N and M[g+2]["need"] > nx and issue[M[g+2]["need"]] <= g - 3 and M[g+1]["op"] == 32: tgt = M[g+2]["need"]
                put(g, [wlg(("af", pid, tgt))]); waited = tgt
        setup(sl, head)
        L = list(head)
        for g, m in enumerate(M):
            L += m.get("before", [])
            c = "0" if m["first"] else m.get("C", m["acc"])
            if m.get("C") and m["first"]: c = m["C"]
            L.append((mf32 if m["op"] == 32 else mf16)(m["acc"], m["A"], m["B"], c))
            L += sl.emit(g)
        if self.opts.get("verbose"):
            over = [(g, sl.used[g], sl.budget[g]) for g in range(N) if sl.used[g] > sl.budget[g]]
            print(f"paced {pid}: N={N} over budget: {len(over)} total excess {sum(u-b for _,u,b in over)} avg used {sum(sl.used)/N:.2f}")
            if self.opts.get("verbose") > 1:
                for a in range(0, N, 36):
                    ex = sum(max(0, sl.used[g]-sl.budget[g]) for g in range(a, min(a+36, N)))
                    print(a, "used", sum(sl.used[a:a+36]), "budget", sum(sl.budget[a:a+36]), "excess", ex)
        return L

    def prologue(self):
        L = []
        if self.diag: L += [o(f"v_mov_b32 v{V_STAMP}, 0")]
        L += self.stamp("start")
        L += [o("s_load_dwordx16 s[16:31], s[0:1], 0"), o("s_load_dwordx8 s[32:39], s[0:1], 64"),
              o("s_cmp_ge_u32 s2, 256"), o("s_cbranch_scc1 L_end")]
        L += [o("v_lshrrev_b32 v2, 6, v0"), o("v_and_b32 v0, 63, v0"), o("s_nop 0"),
              o(f"v_readfirstlane_b32 s{S_W}, v2"),
              ] + self.idmap() + [
              o(f"s_mul_i32 s{S_LX}, s{S_W}, {SLOT}"), o(f"s_mul_i32 s{S_L9}, s{S_W}, 9216"),
              o(f"v_lshlrev_b32 v{V_L16}, 4, v0")]
        if self.opts.get("cpf", 1):
            L += [o("s_getpc_b64 s[82:83]"), raw("L_pc:"),
                  o(f"s_lshr_b32 s{T0}, s2, 3"), o(f"s_lshl_b32 s{T0}, s{T0}, 2"), o(f"s_add_u32 s{T0}, s{T0}, s{S_W}"),
                  o(f"s_lshl_b32 s{T0}, s{T0}, 9"),
                  o("v_and_b32 v2, 3, v0"), o("v_lshlrev_b32 v2, 7, v2"), o(f"v_add_u32 v2, s{T0}, v2"),
                  o("v_cmp_gt_u32 vcc, 4, v0"), o("s_and_saveexec_b64 s[80:81], vcc"),
                  vm(f"global_load_dword v{V_PF}, v2, s[82:83]", "pf"), o("s_mov_b64 exec, s[80:81]")]
        L += [o("v_lshrrev_b32 v2, 3, v0"), o("v_and_b32 v3, 7, v0"), o("v_lshrrev_b32 v4, 1, v2"),
              o("v_xor_b32 v3, v3, v4"), o("v_lshlrev_b32 v3, 4, v3"), o("v_xor_b32 v4, 64, v3"),
              o(f"s_lshl_b32 s{T0}, s{S_MT}, 6"), o(f"s_lshl_b32 s{T1}, s{S_W}, 4"), o(f"s_add_u32 s{T0}, s{T0}, s{T1}"),
              o(f"v_add_u32 v5, s{T0}, v2"), o("v_add_u32 v6, 8, v5"),
              o("v_sub_u32 v7, 2048, v5"), o("v_sub_u32 v8, 2048, v6"),
              o("v_cmp_eq_u32 vcc, 0, v5"), o("v_mov_b32 v9, 1024"), o("s_nop 0"),
              o("v_cndmask_b32 v7, v7, v9, vcc"),
              o(f"s_movk_i32 s{T1}, 1152"),
              o(f"v_mad_u32_u24 v240, v5, s{T1}, v3"), o(f"v_mad_u32_u24 v241, v6, s{T1}, v4"),
              o(f"v_mad_u32_u24 v242, v7, s{T1}, v3"), o(f"v_mad_u32_u24 v243, v8, s{T1}, v4")]
        if self.opts.get("xpf", 1) == 2:
            L += [o(f"s_lshl_b32 s{T0}, s{S_MT}, 4"), o(f"s_add_u32 s{T0}, s{T0}, s{S_J}"), o(f"s_lshl_b32 s{T0}, s{T0}, 2"), o(f"s_add_u32 s{T0}, s{T0}, s{S_W}"),
                  o(f"s_mul_i32 s{T0}, s{T0}, 18"), o(f"v_add_u32 v9, s{T0}, v0"), o("v_lshlrev_b32 v9, 7, v9"),
                  o("v_cmp_gt_u32 vcc, 18, v0"), o(f"v_mov_b32 v8, {OOB:#x}"), o("s_nop 0"), o("v_cndmask_b32 v9, v8, v9, vcc")]
        elif self.opts.get("xpf", 1):
            nsh = 16 if self.opts.get("cfg", 0) == 1 else 4
            per = 1152 // nsh // 4
            assert per <= 64 or True
            jj = f"s{S_J}"
            L += [o(f"s_and_b32 s{T0}, s{S_J}, {nsh-1}"), o(f"s_lshl_b32 s{T0}, s{T0}, 2"), o(f"s_add_u32 s{T0}, s{T0}, s{S_W}"), o(f"s_mul_i32 s{T0}, s{T0}, {per}"),
                  o(f"v_add_u32 v9, s{T0}, v0"),
                  o(f"s_mul_i32 s{T0}, s{S_MT}, {64*1152}"),
                  o(f"s_sub_u32 s{T1}, {(2048-63)*1152 - 576*128}, s{T0}"),
                  o("v_lshlrev_b32 v8, 7, v9"), o(f"v_add_u32 v7, s{T1}, v8"), o(f"v_add_u32 v8, s{T0}, v8"),
                  o("v_cmp_gt_u32 vcc, 0x240, v9"), o("s_nop 1"), o("v_cndmask_b32 v9, v7, v8, vcc"),
                  o(f"v_cmp_gt_u32 vcc, {min(per,64)}, v0"), o(f"v_mov_b32 v8, {OOB:#x}"), o("s_nop 0"), o("v_cndmask_b32 v9, v8, v9, vcc")]
        L += [o("s_waitcnt lgkmcnt(0)")]
        L += self.stamp("kernarg")
        L += srd(SR_X, 16, S*D*2)
        if self.opts.get("xpf", 1):
            L += [vm(f"buffer_load_dword v{V_PF}, v9, s[{SR_X}:{SR_X+3}], 0 offen", "pf")]
        HEAD = L
        P = []
        P += srd(SR_WG, 28, D*F*2) + srd(SR_WU, 30, D*F*2) + srd(SR_WD, 32, F*D*2) + srd(SR_WS, 38, 256 << 20) + srd(SR_OUT, 34, S*D*2)
        P += srd(SR_CS, 18, S*S*2) + srd(SR_SS, 20, S*S*2)
        P += [o(f"s_lshl_b32 s{T0}, s{S_W}, 6"), o(f"v_add_u32 v2, s{T0}, v0"), o("v_cmp_eq_u32 vcc, 0, v2"),
              o(f"v_mov_b32 v3, {OOB:#x}"), o("v_mov_b32 v4, 0"), o(f"v_cndmask_b32 v{V_ONE0}, v3, v4, vcc")]
        P += [o(f"s_lshl_b32 s{S_LID}, s{S_MT}, 4"), o(f"s_add_u32 s{S_LID}, s{S_LID}, s{S_J}")]
        P += [o(f"s_and_b32 s{T2}, s{S_J}, 1"), o(f"s_mul_i32 s{T0}, s{S_J}, 288"), o(f"s_mul_i32 s{T1}, s{T2}, 224"),
              o(f"s_add_u32 s{T1}, s{T0}, s{T1}"),
              G([o(f"s_cmp_eq_u32 s{T2}, 0"), o(f"s_cselect_b32 s{T3}, 64, -64"), o(f"s_cselect_b32 s{T4}, 256, 0")]),
              o(f"s_add_u32 s{T4}, s{T4}, s{T0}")]
        for u in range(4):
            P += [o(f"s_mul_i32 s{T5}, s{T3}, {u}"), o(f"s_add_u32 s{T5}, s{T5}, s{T1}"),
                  o(f"s_lshl_b32 s{S_UB+u}, s{T5}, 1"),
                  o(f"s_mul_i32 s{S_N0+2*u}, s{T5}, 1152"), o(f"s_add_u32 s{S_N0+2*u+1}, s{S_N0+2*u}, {32*1152}")]
        P += [o(f"s_lshl_b32 s{S_UB+4}, s{T4}, 1"), o(f"s_mul_i32 s{S_N0+8}, s{T4}, 1152")]
        P += [o(f"s_mov_b32 s{S_A}, s{S_UB}")]
        P += [o(f"s_mul_i32 s{T5}, s{S_W}, {72*9216}")]
        for u in range(4): P += [o(f"s_add_u32 s{S_UB+u}, s{S_UB+u}, s{T5}")]
        P += [o(f"s_lshl_b32 s{T5}, s{T5}, 1"), o(f"s_add_u32 s{S_UB+4}, s{S_UB+4}, s{T5}")]
        P += [o(f"s_lshr_b32 s{T0}, s{S_J}, 1"), o(f"s_mul_i32 s{S_PB}, s{T0}, {PART_BYTES}"),
              o(f"s_lshl_b32 s{T0}, s{S_MT}, 2"), o(f"s_add_u32 s{T0}, s{T0}, s{S_W}"),
              o(f"s_mul_i32 s{T0}, s{T0}, {18*2048}"), o(f"s_add_u32 s{S_PB}, s{S_PB}, s{T0}"),
              o(f"s_lshl_b32 s{T0}, s{S_LID}, 2"), o(f"s_add_u32 s{T0}, s{T0}, s{S_W}"),
              o(f"s_mul_i32 s{S_HB}, s{T0}, {18*1024}"), o(f"s_add_u32 s{S_HB}, s{S_HB}, {WS_HX}")]
        P += [o("v_lshrrev_b32 v2, 3, v0"), o("v_and_b32 v3, 7, v0"),
              o("v_bfe_u32 v4, v0, 4, 1"), o("v_lshlrev_b32 v4, 2, v4"), o("v_xor_b32 v3, v3, v4"), o("v_lshlrev_b32 v3, 4, v3"),
              o(f"v_mul_u32_u24 v2, 9216, v2"), o(f"v_add_u32 v{V_DM}, v2, v3")]
        for t in range(1, 4): P += [o(f"v_add_u32 v{V_DM+t}, {t*(8*9216-1024)}, v{V_DM}")]
        P += [o("v_and_b32 v2, 31, v0"), o("v_bfe_u32 v3, v0, 1, 3"), o("v_lshrrev_b32 v4, 5, v0"), o("v_xor_b32 v3, v3, v4"),
              o("v_lshlrev_b32 v3, 4, v3"), o("v_lshlrev_b32 v2, 7, v2"), o("v_add_u32 v2, v2, v3"),
              o(f"v_add_u32 v{V_XA}, s{S_LX}, v2"),
              o(f"v_xor_b32 v{V_XA+1}, 32, v{V_XA}"), o(f"v_xor_b32 v{V_XA+2}, 64, v{V_XA}"), o(f"v_xor_b32 v{V_XA+3}, 96, v{V_XA}")]
        P += [o("v_and_b32 v2, 15, v0"),
              o("v_and_b32 v3, 3, v2"), o("v_bfe_u32 v4, v2, 2, 1"), o("v_bfe_u32 v5, v2, 3, 1"),
              o("v_lshlrev_b32 v4, 3, v4"), o("v_lshlrev_b32 v5, 2, v5"), o("v_or_b32 v3, v3, v4"), o("v_or_b32 v3, v3, v5"),
              o("v_lshrrev_b32 v4, 3, v3"), o("v_lshrrev_b32 v5, 5, v0"),
              o("v_and_b32 v6, 1, v3"), o("v_lshlrev_b32 v6, 4, v6"), o("v_mov_b32 v7, 0x3f80"), o("v_lshlrev_b32 v7, v6, v7"), o("v_mov_b32 v8, 0"),
              G([o("v_cmp_eq_u32 vcc, v4, v5"), o("v_nop"), o("v_nop"), o("v_cndmask_b32 v7, v8, v7, vcc")]),
              o("v_bfe_u32 v6, v3, 1, 2"), o("v_bfe_u32 v9, v0, 4, 1")]
        for d in range(4):
            P += [G([o(f"v_cmp_eq_u32 vcc, {d}, v6"), o("v_nop"), o("v_nop"), o(f"v_cndmask_b32 v{V_PERM+d}, v8, v7, vcc")])]
        P += [G([o("v_cmp_eq_u32 vcc, 1, v9"), o("v_nop"), o("v_nop")] + [o(f"v_cndmask_b32 v{V_PERM+4+d}, v8, v{V_PERM+d}, vcc") for d in range(4)] +
                [o(f"v_cndmask_b32 v{V_PERM+d}, v{V_PERM+d}, v8, vcc") for d in range(4)])]
        L = []
        L += [o("v_mov_b32 v4, 0"), o(f"s_lshl_b32 s{T0}, s{S_LID}, 7"), o(f"s_add_u32 s{T0}, s{T0}, {WS_FLAG}"),
              vm(f"buffer_store_dword v4, v{V_ONE0}, s[{SR_WS}:{SR_WS+3}], s{T0} offen sc1", "flinit")]
        L += self.h_srd(S_J)
        if self.opts.get("pf", 1):
            L += [o(f"s_and_b32 s{T0}, s{S_MT}, 7"), o(f"s_mul_i32 s{T0}, s{T0}, 36"), o(f"s_mul_i32 s{T1}, s{S_W}, 9"), o(f"s_add_u32 s{T0}, s{T0}, s{T1}"),
                  o(f"v_add_u32 v2, s{T0}, v0"), o(f"v_mov_b32 v4, {OOB:#x}"),
                  o(f"s_mov_b32 s{T1}, {(2**32+8)//9}"), o(f"v_mul_hi_u32 v5, v2, s{T1}"), o("v_mul_u32_u24 v6, 9, v5"), o("v_sub_u32 v6, v2, v6"),
                  o(f"v_add_u32 v5, s{T7}, v5"), o(f"v_mul_u32_u24 v5, 1152, v5"), o("v_lshlrev_b32 v6, 7, v6"), o("v_add_u32 v5, v5, v6"),
                  o(f"v_mul_u32_u24 v3, 9216, v2"),
                  o("v_cmp_gt_u32 vcc, 9, v0"), o("s_nop 1"), o("v_cndmask_b32 v3, v4, v3, vcc"), o("v_cndmask_b32 v5, v4, v5, vcc"),
                  vm(f"buffer_load_dword v{V_PF}, v5, s[{SR_HZ}:{SR_HZ+3}], 0 offen", "pf")]
            L += [o(f"s_cmp_lt_u32 s{S_J}, 2"), o("s_cbranch_scc0 L_nopf2"),
                  o(f"s_mov_b32 s{T0}, {7*32*1152}"),
                  o(f"v_add_u32 v6, s{T0}, v5"), o("v_cmp_gt_u32 vcc, 9, v0"), o("s_and_saveexec_b64 s[82:83], vcc"),
                  o(f"global_load_dword v{V_PF}, v6, s[24:25]"),
                  o("s_mov_b64 exec, s[82:83]"), raw("L_nopf2:")]
            for sig in range(self.opts.get("npf", 4)):
                mat, kh = (sig // 2) % 2, sig % 2
                assert sig < 4
                rs = SR_WG if mat == 0 else SR_WU
                L += [o(f"s_add_u32 s{T6}, s{S_A}, {kh*288*9216}"),
                      vm(f"buffer_load_dword v{V_PF}, v3, s[{rs}:{rs+3}], s{T6} offen", "pf")]
        if self.opts.get("tlb", 0):
            st = self.opts.get("tlb", 0)
            n = (48 << 20) >> st
            L += [o(f"v_lshlrev_b32 v2, {st}, v0"), o(f"v_mov_b32 v4, {OOB:#x}")]
            for k in range(-(-n // 64)):
                L += [o(f"s_mov_b32 s{T0}, {k*64 << st}"), vm(f"buffer_load_dword v{V_PF}, v2, s[{SR_WS}:{SR_WS+3}], s{T0} offen", "pf")]
            L += [o("v_lshlrev_b32 v2, 16, v0"), vm(f"buffer_load_dword v{V_PF}, v2, s[{SR_OUT}:{SR_OUT+3}], 0 offen", "pf")]
        post = L
        for n, i in enumerate(P):
            if not isinstance(i, G) and i.t.startswith("v_cmp_eq_u32 vcc, 0, v2"):
                P[n:n+4] = [G(P[n:n+4])]
                break
        out = HEAD
        flatx = []
        for kap in range(9):
            xl = self.x_line(kap)
            flatx += [xl[3*r:3*r+3] for r in range(4)]
        npre = len(P); pi = 0
        first = self.opts.get("xfree", 10)
        for n, g in enumerate(flatx):
            out += g
            if n >= first:
                take = -(-(npre - pi) // (36 - n))
                for it in P[pi:pi + take]: out += (list(it) if isinstance(it, G) else [it])
                pi += take
        out += self.stamp("xiss")
        L = out + post
        return L

    def tr_bases(self):
        L = []
        L += [o("v_lshrrev_b32 v16, 5, v0"), o("v_lshlrev_b32 v16, 10, v16"),
              o("v_bfe_u32 v17, v0, 2, 2"), o("v_lshlrev_b32 v17, 7, v17"), o("v_add_u32 v16, v16, v17"),
              o("v_bfe_u32 v17, v0, 3, 1"), o("v_lshlrev_b32 v17, 6, v17"), o("v_add_u32 v16, v16, v17"),
              o("v_bfe_u32 v17, v0, 4, 1"), o("v_lshlrev_b32 v17, 5, v17"), o("v_add_u32 v16, v16, v17"),
              o("v_and_b32 v17, 3, v0"), o("v_lshlrev_b32 v17, 3, v17"), o(f"v_add_u32 v{V_RA}, v16, v17")]
        for s in range(1, 4): L += [o(f"v_add_u32 v{V_RA+s}, {s*SLOT}, v{V_RA}")]
        for s in range(4): L += [o(f"v_xor_b32 v{V_RB+s}, 64, v{V_RA+s}")]
        return L

    def idmap(self):
        cfg = self.opts.get("cfg", 0)
        if cfg == 0:
            return [o(f"s_and_b32 s{S_J}, s2, 3"), o(f"s_lshl_b32 s{S_J}, s{S_J}, 2"),
              o(f"s_bfe_u32 s{T0}, s2, 0x20003"), o(f"s_or_b32 s{S_J}, s{S_J}, s{T0}"),
              o(f"s_bfe_u32 s{S_MT}, s2, 0x10002"), o(f"s_lshl_b32 s{S_MT}, s{S_MT}, 3"),
              o(f"s_lshr_b32 s{T0}, s2, 5"), o(f"s_or_b32 s{S_MT}, s{S_MT}, s{T0}")]
        if cfg == 1:
            return [o(f"s_and_b32 s{S_MT}, s2, 7"), o(f"s_lshl_b32 s{S_MT}, s{S_MT}, 1"), o(f"s_bfe_u32 s{T0}, s2, 0x10003"),
                    o(f"s_or_b32 s{S_MT}, s{S_MT}, s{T0}"), o(f"s_lshr_b32 s{S_J}, s2, 4")]
        if cfg == 2:
            return [o(f"s_and_b32 s{S_J}, s2, 1"), o(f"s_lshl_b32 s{S_J}, s{S_J}, 3"),
              o(f"s_bfe_u32 s{T0}, s2, 0x30003"), o(f"s_or_b32 s{S_J}, s{S_J}, s{T0}"),
              o(f"s_bfe_u32 s{S_MT}, s2, 0x20001"), o(f"s_lshl_b32 s{S_MT}, s{S_MT}, 2"),
              o(f"s_lshr_b32 s{T0}, s2, 6"), o(f"s_or_b32 s{S_MT}, s{S_MT}, s{T0}")]

    def h_srd(self, zreg):
        return [o(f"s_cmp_lt_u32 s{zreg}, 9"),
                o(f"s_cselect_b32 s{SR_HZ}, s22, s24"), o(f"s_cselect_b32 s{SR_HZ+1}, s23, s25"), o(f"s_cselect_b32 s{T7}, 0, 9"),
                o(f"s_and_b32 s{SR_HZ+1}, s{SR_HZ+1}, 0xffff"), o(f"s_mov_b32 s{SR_HZ+2}, {D*D*2}"), o(f"s_mov_b32 s{SR_HZ+3}, 0x00020000"),
                o(f"s_sub_u32 s{T7}, s{zreg}, s{T7}"), o(f"s_lshl_b32 s{T7}, s{T7}, 5")]

    def h_dma(self, zreg, slot, tag):
        L = self.h_srd(zreg)
        L += [o(f"s_lshl_b32 s{T1}, s{S_W}, 3"), o(f"s_add_u32 s{T0}, s{T7}, s{T1}"),
             o("v_lshrrev_b32 v240, 3, v0"), o("v_and_b32 v241, 7, v0"), o("v_lshrrev_b32 v242, 1, v240"), o("v_xor_b32 v241, v241, v242"),
             o(f"s_and_b32 s{T1}, s{S_W}, 1"), o(f"s_lshl_b32 s{T1}, s{T1}, 2"), o(f"v_xor_b32 v241, s{T1}, v241"),
             o("v_lshlrev_b32 v241, 4, v241"),
             o(f"v_add_u32 v240, s{T0}, v240"), o(f"s_movk_i32 s{T1}, 1152"), o(f"v_mad_u32_u24 v240, v240, s{T1}, v241"),
             o(f"s_lshl_b32 s{T1}, s{S_W}, 10"), o(f"s_add_u32 s{T1}, s{T1}, {slot*SLOT}")]
        for kap in range(9):
            L += [o(f"s_add_u32 m0, s{T1}, {4*kap*1024 - 128*kap}"), o("s_nop 0"),
                  vm(f"buffer_load_dwordx4 v240, s[{SR_HZ}:{SR_HZ+3}], 0 offen offset:{128*kap} lds", tag)]
        return L

    def h_special(self, zreg, slot, sfx):
        return [o(f"s_cmp_eq_u32 s{zreg}, 9"), o(f"s_cbranch_scc0 L_h_nosp{sfx}"), o(f"s_cmp_eq_u32 s{S_W}, 0"), o(f"s_cbranch_scc0 L_h_nosp{sfx}"),
                o("v_mov_b32 v16, 0xbf803f80"), o("v_mov_b32 v17, v16"), o("v_mov_b32 v18, v16"), o("v_mov_b32 v19, v16"),
                o("v_lshrrev_b32 v240, 3, v0"), o("v_lshlrev_b32 v240, 12, v240"), o("v_and_b32 v241, 7, v0"), o("v_lshlrev_b32 v241, 4, v241"),
                o("v_add_u32 v240, v240, v241"), o(f"v_add_u32 v240, {slot*SLOT}, v240"), o(f"v_add_u32 v241, {slot*SLOT}, v241"),
                o("ds_write_b128 v240, v[16:19]"), o("ds_write_b128 v241, v[16:19] offset:32768"),
                o("s_waitcnt lgkmcnt(0)"), raw(f"L_h_nosp{sfx}:")]

    def x_line(self, kap):
        L = []
        for rho in range(4):
            L += [o(f"s_add_u32 m0, s{S_LX}, {(4*kap+rho)*1024 - 128*kap}"), o("s_nop 0"),
                  vm(f"buffer_load_dwordx4 v{240+rho}, s[{SR_X}:{SR_X+3}], 0 offen offset:{128*kap} lds", ("x", kap))]
        return L
    def x_dma_variants(self):
        L = []
        for kap in range(self.opts.get("xpre", 3)): L += self.x_line(kap)
        return L
    def x_dma_variants_old(self):
        if not self.opts.get("rot", 0):
            L = []
            for kap in range(9):
                for rho in range(4):
                    L += [o(f"s_add_u32 m0, s{S_LX}, {(4*kap+rho)*1024 - 128*kap}"), o("s_nop 0"),
                          vm(f"buffer_load_dwordx4 v{240+rho}, s[{SR_X}:{SR_X+3}], 0 offen offset:{128*kap} lds", ("x", kap))]
            return L
        L = [o(f"s_and_b32 s{T0}, s{S_J}, 3")]
        for v in range(1, 4): L += [o(f"s_cmp_eq_u32 s{T0}, {v}"), o(f"s_cbranch_scc1 L_xd{v}")]
        for v in range(4):
            if v: L += [raw(f"L_xd{v}:")]
            for pos in range(9):
                kap = (self.K0[v] + pos) % 9
                for rho in range(4):
                    t = f"buffer_load_dwordx4 v{240+rho}, s[{SR_X}:{SR_X+3}], 0 offen offset:{128*kap} lds"
                    L += [o(f"s_add_u32 m0, s{S_LX}, {(4*kap+rho)*1024 - 128*kap}"), o("s_nop 0"),
                          (vm(t, ("x", pos)) if v == 3 else o(t))]
            if v < 3: L += [o("s_branch L_xdj")]
        L += [raw("L_xdj:")]
        return L
    K0 = [0, 2, 4, 7]

    def ln_stats(self):
        L = []
        SA = 16
        for i in range(8): L += [o(f"v_mov_b32 v{SA+i}, 0")]
        L += [o(f"s_mov_b32 s{T5}, 0x3f803f80")]
        def reads(kap):
            return [wvm(("x", kap))] + [ds(f"ds_read_b128 v[{RX+4*ks}:{RX+4*ks+3}], v{V_XA+(ks&3)} offset:{(ks//4)*4096}", ("xr", ks)) for ks in range(4*kap, 4*kap+4)]
        L += reads(0)
        for kap in range(9):
            if kap + 1 < 9: L += reads(kap + 1)
            L += self.stats_line(kap)
        return L
    def stats_line(self, kap):
        L = []
        SA = 16
        for ks in range(4*kap, 4*kap + 4):
            L += [wlg(("xr", ks))]
            for i in range(4):
                r = RX + 4*ks + i
                L += [o(f"v_dot2_f32_bf16 v{SA+i}, v{r}, s{T5}, v{SA+i}"),
                      o(f"v_dot2_f32_bf16 v{SA+4+i}, v{r}, v{r}, v{SA+4+i}")]
        return L

    def ln_stats_v(self, v, tracked, order):
        L = []
        SA = 16
        for i in range(8): L += [o(f"v_mov_b32 v{SA+i}, 0")]
        L += [o(f"s_mov_b32 s{T5}, 0x3f803f80")]
        def reads(pos):
            kap = order[pos]
            w = [wvmf(("x", pos))]
            return w + [o(f"ds_read_b128 v[{RX+4*ks}:{RX+4*ks+3}], v{V_XA+(ks&3)} offset:{(ks//4)*4096}") for ks in range(4*kap, 4*kap+4)]
        L += reads(0)
        L += self.stamp("x0")
        for pos in range(9):
            if pos == 4: L += self.stamp("x4")
            if pos + 1 < 9: L += reads(pos + 1)
            kap = order[pos]
            for n, ks in enumerate(range(4*kap, 4*kap + 4)):
                left = (3 - n) + (4 if pos + 1 < 9 else 0)
                L += [o(f"s_waitcnt lgkmcnt({left})")]
                for i in range(4):
                    r = RX + 4*ks + i
                    L += [o(f"v_dot2_f32_bf16 v{SA+i}, v{r}, s{T5}, v{SA+i}"),
                          o(f"v_dot2_f32_bf16 v{SA+4+i}, v{r}, v{r}, v{SA+4+i}")]
        return L

    def ln_stats_old(self):
        L = []
        SA = 16
        for i in range(8): L += [o(f"v_mov_b32 v{SA+i}, 0")]
        L += [o(f"s_mov_b32 s{T5}, 0x3f803f80")]
        def reads(kap):
            return [wvm(("x", kap))] + [ds(f"ds_read_b128 v[{RX+4*ks}:{RX+4*ks+3}], v{V_XA+(ks&3)} offset:{(ks//4)*4096}", ("xr", ks)) for ks in range(4*kap, 4*kap+4)]
        L += reads(0)
        for kap in range(9):
            if kap + 1 < 9: L += reads(kap + 1)
            for ks in range(4*kap, 4*kap + 4):
                L += [wlg(("xr", ks))]
                for i in range(4):
                    r = RX + 4*ks + i
                    L += [o(f"v_dot2_f32_bf16 v{SA+i}, v{r}, s{T5}, v{SA+i}"),
                          o(f"v_dot2_f32_bf16 v{SA+4+i}, v{r}, v{r}, v{SA+4+i}")]
        return L

    def ln_finish(self):
        SA = 16
        L = [o("s_nop 2"),
             o(f"v_add_f32 v{SA}, v{SA}, v{SA+1}"), o(f"v_add_f32 v{SA+2}, v{SA+2}, v{SA+3}"),
             o(f"v_add_f32 v{SA+4}, v{SA+4}, v{SA+5}"), o(f"v_add_f32 v{SA+6}, v{SA+6}, v{SA+7}"),
             o(f"v_add_f32 v24, v{SA}, v{SA+2}"), o(f"v_add_f32 v26, v{SA+4}, v{SA+6}"),
             o("v_mov_b32 v25, v24"), o("v_mov_b32 v27, v26"), o("s_nop 1"),
             o("v_permlane32_swap_b32 v24, v25"), o("v_permlane32_swap_b32 v26, v27"), o("s_nop 1"),
             o("v_add_f32 v24, v24, v25"), o("v_add_f32 v26, v26, v27"),
             o(f"s_mov_b32 s{T5}, {f2u(1.0/576):#x}"),
             o(f"v_mul_f32 v24, s{T5}, v24"), o(f"v_mul_f32 v26, s{T5}, v26"),
             o("v_fma_f32 v26, -v24, v24, v26"), o("v_max_f32 v26, 0, v26"),
             o("v_cvt_pk_bf16_f32 v24, v24, v26"),
             o("v_and_b32 v26, 0xffff0000, v24"), o("v_lshlrev_b32 v24, 16, v24"),
             o(f"v_xor_b32 v{V_NEGMU}, 0x80000000, v24")]
        for i in range(1, 16): L += [o(f"v_mov_b32 v{V_NEGMU+i}, v{V_NEGMU}")]
        L += [o(f"v_add_f32 v26, {f2u(1e-5):#x}, v26"),
              o("v_cvt_pk_bf16_f32 v26, v26, v26"), o("v_lshlrev_b32 v26, 16, v26"),
              o("v_sqrt_f32 v26, v26"), o("s_nop 0"),
              o("v_cvt_pk_bf16_f32 v26, v26, v26"), o("v_lshlrev_b32 v26, 16, v26"),
              o("v_rcp_f32 v27, v26"), o(f"v_mul_f32 v{V_D2}, v26, v26"),
              o(f"v_mul_f32 v{V_C0}, {f2u(C0):#x}, v27"), o("v_mul_f32 v28, v27, v27"), o("v_mul_f32 v28, v28, v27"),
              o(f"v_mul_f32 v{V_C1}, {f2u(C1):#x}, v28"),
              o("v_and_b32 v28, 31, v0"), o("v_lshlrev_b32 v28, 2, v28"), o(f"s_lshl_b32 s{T0}, s{S_W}, 12"), o(f"s_add_u32 s{T0}, s{T0}, {SPARE}"),
              o(f"v_add_u32 v28, s{T0}, v28"), ds("ds_write_b32 v28, v27", "rtab")]
        return L

    def seg_norm_h(self):
        M = []; frags = []
        def UBf(i):
            if i == 0: return 16
            if i % 2 == 0: return RX + 8*(i - 2)
            return (32, 48, 16)[((i - 1)//2) % 3]
        def nextuser(i):
            for k in range(i + 1, 18):
                if UBf(k) == UBf(i): return k
            return None
        posU = {}; posH = {}
        def U(i):
            b = UBf(i)
            M.append(dict(op=32, acc=f"v[{b}:{b+15}]", first=True, C=f"v[{V_NEGMU}:{V_NEGMU+15}]", A=f"v[{V_PERM}:{V_PERM+3}]", B=f"v[{RX+8*i}:{RX+8*i+3}]", need=-1))
            M.append(dict(op=32, acc=f"v[{b}:{b+15}]", first=False, A=f"v[{V_PERM+4}:{V_PERM+7}]", B=f"v[{RX+8*i+4}:{RX+8*i+7}]", need=-1))
            posU[i] = len(M) - 2
        def H(ks):
            f = len(frags); a = AF + 4*(f % NAF)
            frags.append(dict(reads=[f"ds_read_b128 a[{a}:{a+3}], v{V_XA+(ks&3)} offset:{(ks//4)*4096}"], use=len(M)))
            M.append(dict(op=32, acc=f"v[{V_HACC}:{V_HACC+15}]", first=(ks == 0), A=f"a[{AX+4*ks}:{AX+4*ks+3}]", B=f"a[{a}:{a+3}]", need=f))
            posH[ks] = len(M) - 1
        LAG = 5
        for i in range(18):
            U(i)
            if i >= LAG: H(2*(i-LAG)); H(2*(i-LAG)+1)
        for i in range(18 - LAG, 18): H(2*i); H(2*i+1)
        last = -1
        for m in M:
            if m["need"] < 0: m["need"] = last
            else: last = m["need"]
        g0 = frags[0]["use"] - 6
        M[g0].setdefault("before", []).extend([wvm("wz1")] + self.h_special(S_A, 2, "a") + [o("s_waitcnt lgkmcnt(0)"), o("s_barrier")])
        def setup(sl, head):
            sl.put(2, [o('s_nop 4')]); sl.put(3, [o('s_nop 4')])
            for i in range(18):
                b = UBf(i)
                ins = []
                for q in range(8):
                    t = 2 + 2*(i % 4) + (q % 2)
                    ins += [o(f"v_cvt_pk_bf16_f32 v{t}, v{b+2*q}, v{b+2*q+1}"), o(f"v_accvgpr_write_b32 a{AX+8*i+q}, v{t}")]
                start = posU[i] + 1 + 3
                end = min(posH[2*i] - 1, start + 11)
                if nextuser(i) is not None: end = min(end, posU[nextuser(i)])
                e = sl.stream(ins, start, end, spill=0)
                assert e < posH[2*i] - 0, (i, e, posH[2*i])
        return self.paced(M, frags, setup, 6)

    def h_epilogue(self, zreg, acc, rr, tb):
        L = []
        sg, f0 = tb + 8, tb + 9
        L += [G([o(f"s_cmp_lt_u32 s{zreg}, 9"), o(f"s_cselect_b32 s{S_ST0}, 1.0, -1.0")]), o(f"v_mov_b32 v{sg}, s{S_ST0}"),
              G([o(f"s_cmp_eq_u32 s{zreg}, 9"), o(f"s_cselect_b32 s{S_ST0}, 0, 99")]),
              G([o(f"v_and_b32 v{f0}, 31, v0"), o(f"v_cmp_eq_u32 vcc, s{S_ST0}, v{f0}"), o(f"v_mov_b32 v{tb+10}, 1.0"), o("v_nop"),
                 o(f"v_cndmask_b32 v{sg}, v{sg}, v{tb+10}, vcc")]),
              G([o(f"s_or_b32 s{S_ST0}, s{S_MT}, s{S_W}"), o(f"s_cmp_eq_u32 s{S_ST0}, 0"), o(f"s_cselect_b32 s{S_ST0}, 32, 0")]),
              G([o(f"v_cmp_gt_u32 vcc, s{S_ST0}, v0"), o(f"v_mov_b32 v{tb+10}, 0"), o("v_nop"),
                 o(f"v_cndmask_b32 v{f0}, v{sg}, v{tb+10}, vcc")])]
        L += [o(f"v_mul_f32 v{tb+11}, v{acc+8}, v{rr+8}")]
        for r in range(8):
            L += [o(f"v_mul_f32 v{rr+8+r}, v{rr+8+r}, v{f0 if r == 0 else sg}"),
                  o(f"v_mul_f32 v{tb+r}, v{acc+r}, v{rr+r}"),
                  o(f"v_fma_f32 v{tb+r}, v{acc+8+r}, v{rr+8+r}, v{tb+r}")]
        for i in range(4):
            L += [o(f"v_cvt_pk_bf16_f32 v{tb+12+i}, v{tb+2*i}, v{tb+2*i+1}")]
        L += [G([o("v_nop"), o("v_nop"), o(f"v_permlane32_swap_b32 v{tb+12}, v{tb+14}"), o(f"v_permlane32_swap_b32 v{tb+13}, v{tb+15}")]),
              G([o(f"s_mul_i32 s{S_ST0}, s{zreg}, {ZF_STRIDE}"), o(f"s_lshl_b32 s{S_ST1}, s{S_MT}, 2"), o(f"s_add_u32 s{S_ST1}, s{S_ST1}, s{S_W}")]),
              G([o(f"s_lshl_b32 s{S_ST1}, s{S_ST1}, 10"), o(f"s_add_u32 s{S_ST1}, s{S_ST1}, s{S_ST0}"), o(f"s_add_u32 s{S_ST1}, s{S_ST1}, {WS_ZF}")]),
              vm(f"buffer_store_dwordx4 v[{tb+12}:{tb+15}], v{V_L16}, s[{SR_WS}:{SR_WS+3}], s{S_ST1} offen sc1", "zst"),
              o(f"v_mov_b32 v{tb+1}, 0"), o(f"v_mov_b32 v{tb+2}, 0"), o(f"v_mov_b32 v{tb+3}, 0"),
              o(f"v_cvt_pk_bf16_f32 v{tb}, v{tb+11}, v{tb+1}"),
              G([o("v_cmp_gt_u32 vcc, 32, v0"), o("v_nop"), o("v_nop"), o(f"v_cndmask_b32 v{tb}, v{tb+1}, v{tb}, vcc")]),
              G([o(f"s_or_b32 s{S_ST1}, s{S_MT}, s{S_W}"), o(f"s_cmp_le_u32 s{zreg}, 9"), o(f"s_cselect_b32 s{S_C}, 0, 1")]),
              G([o(f"s_or_b32 s{S_ST1}, s{S_ST1}, s{S_C}"), o(f"s_cmp_eq_u32 s{S_ST1}, 0"), o(f"s_cselect_b32 s{S_C}, 0, {OOB:#x}")]),
              o(f"v_add_u32 v{tb+4}, s{S_C}, v{V_L16}"),
              o(f"s_add_u32 s{S_ST0}, s{S_ST0}, {WS_ZF + 64*1024}"),
              vm(f"buffer_store_dwordx4 v[{tb}:{tb+3}], v{tb+4}, s[{SR_WS}:{SR_WS+3}], s{S_ST0} offen sc1", "zst"),
              G([o(f"v_mov_b32 v{tb+12}, 0"), o(f"v_mov_b32 v{tb+13}, 0"), o(f"v_mov_b32 v{tb+14}, 0"), o(f"v_mov_b32 v{tb+15}, 0")]),
              vm(f"buffer_store_dwordx4 v[{tb+12}:{tb+15}], v{tb+4}, s[{SR_WS}:{SR_WS+3}], s{S_ST0} offen offset:1024 sc1", "zst")]
        return L

    def rr_reads(self, rr, tmp, n=1):
        return [o(f"v_lshrrev_b32 v{tmp}, 5, v0"), o(f"v_lshlrev_b32 v{tmp}, 4, v{tmp}"), o(f"s_lshl_b32 s{S_C}, s{S_W}, 12"),
                o(f"s_add_u32 s{S_C}, s{S_C}, {SPARE}"), o(f"v_add_u32 v{tmp}, s{S_C}, v{tmp}")] + \
               [ds(f"ds_read_b128 v[{rr+4*q}:{rr+4*q+3}], v{tmp} offset:{32*q}", ("rr", n)) for q in range(4)] + [wlg(("rr", n))]

    def h2_block(self):
        L = [o(f"s_cmp_lt_u32 s{S_J}, 2"), o("s_cbranch_scc0 L_noz2b")]
        B = [o(f"v_add_u32 v{64+i}, {SLOT}, v{V_XA+i}") for i in range(4)]
        B += [o(f"s_waitcnt vmcnt({20})"), o("s_barrier")]
        def rd(ks):
            a_ = AF + 4*(ks % NAF)
            return o(f"ds_read_b128 a[{a_}:{a_+3}], v{64+(ks&3)} offset:{(ks//4)*4096}")
        for ks in range(6): B += [rd(ks)]
        for k in range(36):
            a_ = AF + 4*(k % NAF)
            n_out = min(5, 35 - k)
            B += [o(f"s_waitcnt lgkmcnt({n_out})"), mf32("v[128:143]", f"a[{AX+4*k}:{AX+4*k+3}]", f"a[{a_}:{a_+3}]", "0" if k == 0 else "v[128:143]")]
            if k + 6 < 36: B += [rd(k + 6)]
        B += [raw("L_noz2b:"),
              o(f"s_cmp_lt_u32 s{S_J}, 2"), o(f"s_cselect_b32 s{S_B}, s{S_B}, 0x4000")]
        return L + B

    def dma_p1(self, sig, slot, tA=226, tB=227):
        groups = []
        if sig < 16:
            u, mat, kh = sig // 4, (sig // 2) % 2, sig % 2
            rs = SR_WG if mat == 0 else SR_WU
            for grp, ts in enumerate([[0,1,2,3],[0,1,2,3],[0]]):
                g = [o(f"s_add_u32 m0, s{S_L9}, {slot*SLOT + grp*4096}"),
                     o(f"s_add_u32 s{S_D0}, s{S_UB+u}, {(kh*288 + grp*32)*9216}")]
                for t in ts:
                    groups.append(g + [vm(f"buffer_load_dwordx4 v{V_DM+t}, s[{rs}:{rs+3}], s{S_D0} offen offset:{t*1024} lds", ("st", sig))])
                    g = []
        else:
            rs = SR_WG if sig == 16 else SR_WU
            for grp, ts in enumerate([[0,1,2,3],[0,1,2,3],[0]]):
                g = []
                if sig == 16 and grp == 0:
                    groups.append([o(f"v_lshrrev_b32 v{tA}, 2, v0"), o(f"v_and_b32 v{tB}, 3, v0"), o(f"v_lshlrev_b32 v{tB}, 4, v{tB}")])
                    groups.append([o(f"v_mul_u32_u24 v{tA}, 9216, v{tA}"), o(f"v_add_u32 v{V_DM}, v{tA}, v{tB}")] +
                                  [o(f"v_add_u32 v{V_DM+t}, {t*(16*9216-1024)}, v{V_DM}") for t in range(1, 4)])
                g += [o(f"s_add_u32 m0, s{S_L9}, {slot*SLOT + grp*4096}"),
                      o(f"s_add_u32 s{S_D0}, s{S_UB+4}, {grp*64*9216}")]
                for t in ts:
                    groups.append(g + [vm(f"buffer_load_dwordx4 v{V_DM+t}, s[{rs}:{rs+3}], s{S_D0} offen offset:{t*1024} lds", ("st", sig))])
                    g = []
        return groups

    def dma_cs(self, mat, piece, slot, tag, nop=False):
        rs = SR_CS if mat == 0 else SR_SS
        groups = []
        for l in range(2):
            line = 2*piece + l
            for rho in range(4):
                groups.append([o(f"s_add_u32 m0, s{S_A}, {slot*SLOT + (4*l+rho)*1024 - 128*line}")] + ([o("s_nop 0")] if nop else []) + [
                               vm(f"buffer_load_dwordx4 v{V_SD+rho}, s[{rs}:{rs+3}], 0 offen offset:{128*line} lds", tag)])
        return groups
    def dma_cx(self, tag):
        groups = []
        for rho in range(4):
            groups.append([o(f"s_add_u32 m0, s{S_B}, {SPARE + rho*1024 - 512}"),
                           vm(f"buffer_load_dwordx4 v{V_SD+rho}, s[{SR_CS}:{SR_CS+3}], 0 offen offset:512 lds", tag)])
        return groups

    def dma_p2(self, st, slot, first128, tA, tB, tC):
        u, who = st
        groups = []
        if u < 4:
            tbl = S_N0 if who == "own" else S_N1
            if first128:
                groups.append([o(f"v_lshrrev_b32 v{tA}, 3, v0"), o(f"v_and_b32 v{tB}, 7, v0"), o(f"v_bfe_u32 v{tC}, v0, 4, 1")])
                groups.append([o(f"v_lshlrev_b32 v{tC}, 2, v{tC}"), o(f"v_xor_b32 v{tB}, v{tB}, v{tC}"), o(f"v_lshlrev_b32 v{tB}, 4, v{tB}")])
                groups.append([o(f"s_mul_i32 s{S_WD}, s{S_W}, {8*1152}")])
                groups.append([o(f"v_mul_u32_u24 v{tA}, 1152, v{tA}"), o(f"v_add_u32 v{V_DM}, v{tA}, v{tB}"), o(f"v_add_u32 v{V_DM}, s{S_WD}, v{V_DM}")])
                groups.append([o(f"s_lshl_b32 s{S_WD}, s{S_W}, 10")])
            for ip in range(9):
                groups.append([o(f"s_add_u32 m0, s{S_WD}, {slot*SLOT + ip*4096}"),
                               o(f"s_add_u32 s{S_D0}, s{tbl+ip}, s{S_CU+u}"),
                               vm(f"buffer_load_dwordx4 v{V_DM}, s[{SR_WD}:{SR_WD+3}], s{S_D0} offen lds", ("s2", st))])
        else:
            groups.append([o(f"v_lshrrev_b32 v{tA}, 2, v0"), o(f"v_and_b32 v{tB}, 3, v0"), o(f"v_lshlrev_b32 v{tB}, 4, v{tB}")])
            groups.append([o(f"v_mul_u32_u24 v{tA}, 1152, v{tA}"), o(f"v_add_u32 v{V_DM+1}, v{tA}, v{tB}")])
            for ip in range(9):
                ca, cb = 2*ip, 2*ip + 1
                ra = (S_N0 + ca) if ca < 9 else (S_N1 + ca - 9)
                rb = (S_N0 + cb) if cb < 9 else (S_N1 + cb - 9)
                groups.append([o(f"s_cmp_lt_u32 s{S_W}, 2"), o(f"s_cselect_b32 s{S_D0}, s{ra}, s{rb}"),
                               o(f"s_add_u32 s{S_D0}, s{S_D0}, s{S_CU+4}"), o(f"s_add_u32 s{S_D0}, s{S_D0}, s{S_C}"),
                               o(f"s_add_u32 m0, s{S_WD}, {slot*SLOT + ip*4096}")])
                groups.append([vm(f"buffer_load_dwordx4 v{V_DM+1}, s[{SR_WD}:{SR_WD+3}], s{S_D0} offen lds", ("s2", st))])
        return groups

    def geglu(self, c, toff=0):
        if c < 8: g, u = GA[(c//2) % 2][c % 2], UA[(c//2) % 2][c % 2]
        else: g, u = GA[0][0], UA[0][0]
        L = []
        for p in range(8):
            r0, r1 = 2*p, 2*p + 1
            b = TMP + 4*(p % 2) + toff
            xa, xb, ya, yb = b, b+1, b+2, b+3
            L += [o(f"v_mul_f32 v{xa}, v{g+r0}, v{g+r0}"), o(f"v_mul_f32 v{xb}, v{g+r1}, v{g+r1}"),
                  o(f"v_fma_f32 v{xa}, v{xa}, v{V_C1}, v{V_C0}"), o(f"v_fma_f32 v{xb}, v{xb}, v{V_C1}, v{V_C0}"),
                  o(f"v_mul_f32 v{xa}, v{g+r0}, v{xa}"), o(f"v_mul_f32 v{xb}, v{g+r1}, v{xb}"),
                  o(f"v_exp_f32 v{xa}, v{xa}"), o(f"v_exp_f32 v{xb}, v{xb}"),
                  o(f"v_mul_f32 v{ya}, v{g+r0}, v{u+r0}"), o(f"v_mul_f32 v{yb}, v{g+r1}, v{u+r1}"),
                  o(f"v_fma_f32 v{xa}, v{xa}, v{V_D2}, v{V_D2}"), o(f"v_fma_f32 v{xb}, v{xb}, v{V_D2}, v{V_D2}"),
                  o(f"v_rcp_f32 v{xa}, v{xa}"), o(f"v_rcp_f32 v{xb}, v{xb}"),
                  o(f"v_mul_f32 v{ya}, v{ya}, v{xa}"), o(f"v_mul_f32 v{yb}, v{yb}, v{xb}"),
                  o(f"v_cvt_pk_bf16_f32 v{HF + 8*c + p}, v{ya}, v{yb}")]
        return L
    def geglu_sig(self, c, toff=0):
        g = GA[(c//2) % 2][c % 2] if c < 8 else GA[0][0]
        L = []
        for p in range(8):
            r0, r1 = 2*p, 2*p + 1
            b = TMP + 2*(p % 2) + toff
            xa, xb = b, b + 1
            L += [o(f"v_mul_f32 v{xa}, v{g+r0}, v{g+r0}"), o(f"v_mul_f32 v{xb}, v{g+r1}, v{g+r1}"),
                  o(f"v_fma_f32 v{xa}, v{xa}, v{V_C1}, v{V_C0}"), o(f"v_fma_f32 v{xb}, v{xb}, v{V_C1}, v{V_C0}"),
                  o(f"v_mul_f32 v{xa}, v{g+r0}, v{xa}"), o(f"v_mul_f32 v{xb}, v{g+r1}, v{xb}"),
                  o(f"v_exp_f32 v{xa}, v{xa}"), o(f"v_exp_f32 v{xb}, v{xb}"), o("v_nop") if False else None,
                  o(f"v_fma_f32 v{xa}, v{xa}, v{V_D2}, v{V_D2}"), o(f"v_fma_f32 v{xb}, v{xb}, v{V_D2}, v{V_D2}"),
                  o(f"v_rcp_f32 v{xa}, v{xa}"), o(f"v_rcp_f32 v{xb}, v{xb}"),
                  o(f"v_mul_f32 v{g+r0}, v{g+r0}, v{xa}"), o(f"v_mul_f32 v{g+r1}, v{g+r1}, v{xb}")]
        return [i for i in L if i is not None]
    def geglu_fin(self, c, toff=0):
        if c < 8: g, u = GA[(c//2) % 2][c % 2], UA[(c//2) % 2][c % 2]
        else: g, u = GA[0][0], UA[0][0]
        L = []
        for p in range(8):
            r0, r1 = 2*p, 2*p + 1
            L += [o(f"v_mul_f32 v{g+r0}, v{g+r0}, v{u+r0}"), o(f"v_mul_f32 v{g+r1}, v{g+r1}, v{u+r1}"),
                  o(f"v_cvt_pk_bf16_f32 v{HF + 8*c + p}, v{g+r0}, v{g+r1}")]
        return L
    def hstore(self, c):
        st = S_ST0 + (c % 2)
        return [o(f"s_add_u32 s{st}, s{S_HB}, {2*c*1024}")] + self.dstore(
                [f"buffer_store_dwordx4 v[{HF+8*c}:{HF+8*c+3}], v{V_L16}, s[{SR_WS}:{SR_WS+3}], s{st} offen",
                 f"buffer_store_dwordx4 v[{HF+8*c+4}:{HF+8*c+7}], v{V_L16}, s[{SR_WS}:{SR_WS+3}], s{st} offen offset:1024"], "hst", True)

    def s_setup(self):
        a, b, c, d = V_SX, V_YC[0], V_YC[1], V_YC[2]
        L = []
        L += [G([o(f"s_lshr_b32 s{S_TAU}, s{S_J}, 3"), o(f"s_lshl_b32 s{S_A}, s{S_MT}, 1"), o(f"s_add_u32 s{S_TAU}, s{S_TAU}, s{S_A}")]),
              G([o(f"s_lshl_b32 s{S_A}, s{S_W}, 13"), o(f"s_lshl_b32 s{S_B}, s{S_W}, 12"),
                 o(f"s_lshl_b32 s{S_ZB}, s{S_W}, 14")]), o(f"s_add_u32 s{S_ZB}, s{S_ZB}, {WS_ZF}")]
        L += [o(f"v_lshrrev_b32 v{a}, 3, v0"), o(f"v_and_b32 v{b}, 7, v0"), o(f"v_lshrrev_b32 v{c}, 1, v{a}"), o(f"v_xor_b32 v{b}, v{b}, v{c}"),
              o(f"v_lshlrev_b32 v{b}, 4, v{b}"), o(f"v_xor_b32 v{c}, 64, v{b}"),
              o(f"s_lshl_b32 s{S_C}, s{S_TAU}, 5"), o(f"v_add_u32 v{a}, s{S_C}, v{a}"), o(f"v_lshlrev_b32 v{a}, 12, v{a}"),
              o(f"s_lshl_b32 s{S_C}, s{S_W}, 9"), o(f"v_add_u32 v{a}, s{S_C}, v{a}"),
              o(f"v_add_u32 v{V_SD}, v{a}, v{b}"), o(f"v_add_u32 v{V_SD+1}, v{a}, v{c}"), o(f"v_add_u32 v{V_SD+1}, 32768, v{V_SD+1}"),
              o(f"v_add_u32 v{V_SD+2}, 65536, v{V_SD}"), o(f"v_add_u32 v{V_SD+3}, 65536, v{V_SD+1}")]
        return L
    def s_setup2(self):
        a, b, c, d = V_SX, V_YC[0], V_YC[1], V_YC[2]
        L = []
        L += [o(f"v_and_b32 v{a}, 15, v0"), o(f"v_lshrrev_b32 v{b}, 4, v0"), o(f"v_bfe_u32 v{c}, v0, 1, 3"), o(f"v_xor_b32 v{c}, v{c}, v{b}"),
              o(f"v_lshlrev_b32 v{c}, 4, v{c}"), o(f"v_lshlrev_b32 v{a}, 7, v{a}"), o(f"v_add_u32 v{a}, v{a}, v{c}"),
              o(f"v_add_u32 v{V_SA}, s{S_A}, v{a}"), o(f"v_xor_b32 v{V_SA+1}, 64, v{V_SA}"),
              o(f"v_add_u32 v{V_SA+2}, {2*SLOT}, v{V_SA}"), o(f"v_add_u32 v{V_SA+3}, {2*SLOT}, v{V_SA+1}"),
              o(f"v_add_u32 v{a}, s{S_B}, v{a}"), o(f"v_add_u32 v{V_SX}, {SPARE}, v{a}")]
        return L
    def s_setup3(self, t0, t1, t2, t3):
        L = []
        L += [o(f"v_and_b32 v{t0}, 15, v0"), o(f"v_lshrrev_b32 v{t1}, 4, v0"),
              o(f"v_and_b32 v{t2}, 1, v{t1}"), o(f"v_lshlrev_b32 v{t2}, 9, v{t2}"),
              o(f"v_lshrrev_b32 v{t1}, 1, v{t1}"), o(f"v_lshlrev_b32 v{t1}, 10, v{t1}"), o(f"v_add_u32 v{t2}, v{t2}, v{t1}"),
              G([o(f"s_and_b32 s{S_C}, s{S_J}, 7"), o(f"s_mul_i32 s{S_C}, s{S_C}, 36")]),
              o(f"v_add_u32 v{t0}, s{S_C}, v{t0}")]
        for ss in range(3):
            pa, qa, yc = V_ZP + ss, V_ZQ + ss, V_YC[ss]
            L += [o(f"v_lshrrev_b32 v{t1}, 5, v{t0}"), o(f"v_mul_u32_u24 v{t1}, {ZF_STRIDE}, v{t1}"),
                  o(f"v_and_b32 v{t3}, 31, v{t0}"), o(f"v_lshlrev_b32 v{t3}, 4, v{t3}"), o(f"v_add_u32 v{t1}, v{t1}, v{t3}"),
                  o(f"v_add_u32 v{t1}, v{t1}, v{t2}"),
                  o(f"v_subrev_u32 v{t3}, s{S_C}, v{t0}"),
                  o(f"v_lshlrev_b32 v{yc}, 2, v{t0}"), o(f"v_mov_b32 v{qa}, {OOB:#x}"), o(f"v_mov_b32 v{pa}, {OOB:#x}"),
                  G([o(f"v_cmp_gt_u32 vcc, 36, v{t3}"), o("v_nop"), o("v_nop"), o(f"v_cndmask_b32 v{pa}, v{pa}, v{t1}, vcc")]),
                  o(f"v_add_u32 v{t3}, {9*ZF_STRIDE}, v{t1}"),
                  G([o(f"v_cndmask_b32 v{qa}, v{qa}, v{t3}, vcc")]),
                  G([o(f"v_cmp_eq_u32 vcc, 0x120, v{t0}"), o("v_nop"), o("v_nop"), o(f"v_cndmask_b32 v{pa}, v{pa}, v{t1}, vcc")]),
                  G([o(f"v_mov_b32 v{t3}, {OOB:#x}"), o(f"v_cmp_eq_u32 vcc, 0, v{t0}"), o("v_nop"), o("v_nop"), o(f"v_cndmask_b32 v{qa}, v{qa}, v{t3}, vcc")]),
                  G([o(f"v_cmp_eq_u32 vcc, v{t3}, v{pa}"), o("v_nop"), o("v_nop"), o(f"v_cndmask_b32 v{yc}, v{yc}, v{t3}, vcc")]),
                  o(f"v_add_u32 v{t0}, 16, v{t0}")]
        return L

    def phase2_setup(self):
        L = []
        L += [G([o(f"s_xor_b32 s{T6}, s{S_J}, 1"), o(f"s_and_b32 s{T2}, s{T6}, 1"), o(f"s_mul_i32 s{T0}, s{T6}, 288")]),
              G([o(f"s_mul_i32 s{T1}, s{T2}, 224"), o(f"s_add_u32 s{T1}, s{T0}, s{T1}")]),
              G([o(f"s_cmp_eq_u32 s{T2}, 0"), o(f"s_cselect_b32 s{T3}, 64, -64"), o(f"s_cselect_b32 s{T4}, 256, 0")]),
              o(f"s_add_u32 s{T4}, s{T4}, s{T0}")]
        for u in range(4):
            L += [G([o(f"s_mul_i32 s{T5}, s{T3}, {u}"), o(f"s_add_u32 s{T5}, s{T5}, s{T1}")]),
                  G([o(f"s_mul_i32 s{S_N1+2*u}, s{T5}, 1152"), o(f"s_add_u32 s{S_N1+2*u+1}, s{S_N1+2*u}, {32*1152}")])]
        L += [o(f"s_mul_i32 s{S_N1+8}, s{T4}, 1152")]
        L += [G([o(f"s_and_b32 s{T2}, s{S_J}, 1"), o(f"s_mul_i32 s{T0}, s{T2}, 640"), o(f"s_lshr_b32 s{T1}, s{S_J}, 2")])]
        for k in range(4):
            L += [G([o(f"s_add_u32 s{T3}, s{T1}, {(k+1) % 4 if k < 3 else 0}"), o(f"s_and_b32 s{T3}, s{T3}, 3"), o(f"s_lshl_b32 s{T3}, s{T3}, 7")]),
                  o(f"s_add_u32 s{S_CU+k}, s{T0}, s{T3}")]
        L += [G([o(f"s_cmp_eq_u32 s{T2}, 0"), o(f"s_cselect_b32 s{S_CU+4}, 0, 64")]), o(f"s_add_u32 s{S_CU+4}, s{S_CU+4}, 512")]
        return L

    def p2q_setup(self):
        L = [G([o(f"s_and_b32 s{T2}, s{S_J}, 1"), o(f"s_mul_i32 s{T3}, s{T2}, 10"), o(f"s_lshr_b32 s{T4}, s{S_J}, 2")])]
        for k, dst in enumerate(S_QU):
            L += [G([o(f"s_add_u32 s{T5}, s{T4}, {k+1}"), o(f"s_and_b32 s{T5}, s{T5}, 3"), o(f"s_lshl_b32 s{T5}, s{T5}, 1")]),
                  G([o(f"s_add_u32 s{T5}, s{T5}, s{T3}"), o(f"s_lshl_b32 s{T5}, s{T5}, 11"), o(f"s_add_u32 s{dst}, s{T5}, s{S_PB}")])]
        L += [G([o(f"s_lshl_b32 s{T5}, s{T4}, 1"), o(f"s_add_u32 s{T5}, s{T5}, s{T3}"), o(f"s_bfe_u32 s{T4}, s{S_J}, 0x10001")]),
              G([o(f"s_add_u32 s{S_TO}, s{T5}, s{T4}"), o(f"s_xor_b32 s{T4}, s{T4}, 1"), o(f"s_add_u32 s{T5}, s{T5}, s{T4}")]),
              G([o(f"s_lshl_b32 s{T5}, s{T5}, 11"), o(f"s_add_u32 s{S_QN}, s{T5}, s{S_PB}")]),
              G([o(f"s_add_u32 s{T5}, s{T2}, 8"), o(f"s_lshl_b32 s{T5}, s{T5}, 11"), o(f"s_add_u32 s{S_Q8}, s{T5}, s{S_PB}")])]
        return L

    def main(self):
        DIST = self.opts.get("dist", 7)
        M = []; frags = []
        fu = {}; lu = {}
        def addfrag(reads_fn, use, dist=None, stage=None):
            f = len(frags); a = AF + 4*(f % NAF)
            fr = dict(reads=reads_fn(a), use=use)
            if dist: fr["dist"] = dist
            frags.append(fr)
            if stage is not None and stage not in fu:
                fu[stage] = use; fr["stage_first"] = stage
            return f, a
        def tr(base, off, off2): return lambda a: [f"ds_read_b64_tr_b16 a[{a}:{a+1}], v{base} offset:{off}", f"ds_read_b64_tr_b16 a[{a+2}:{a+3}], v{base} offset:{off+off2}"]
        for u in range(4):
            for mat in range(2):
                for kh in range(2):
                    sig = 4*u + 2*mat + kh
                    for half in range(2):
                        acc = (GA if mat == 0 else UA)[u % 2][half]
                        for kk in range(18):
                            ks = kh*18 + kk; g = len(M)
                            f, a = addfrag(tr((V_RA if half == 0 else V_RB) + sig % 4, kk*2048, 512), g, stage=("st", sig))
                            M.append(dict(op=32, acc=f"v[{acc}:{acc+15}]", first=(ks == 0), A=f"a[{a}:{a+3}]", B=f"a[{AX+4*ks}:{AX+4*ks+3}]", need=f))
                            lu[("st", sig)] = g
        for mat in range(2):
            acc = (GA if mat == 0 else UA)[0][0]
            for ks in range(36):
                g = len(M)
                f, a = addfrag(tr(V_R8 + mat, ks*1024, 256), g, stage=("st", 16+mat))
                M.append(dict(op=32, acc=f"v[{acc}:{acc+15}]", first=(ks == 0), A=f"a[{a}:{a+3}]", B=f"a[{AX+4*ks}:{AX+4*ks+3}]", need=f))
                lu[("st", 16+mat)] = g
        S0 = len(M)
        def accP(tt, ss):
            i = tt*3 + ss
            return 48 + 4*i if i < 4 else 112 + 4*(i - 4)
        def accQ(tt, ss):
            i = tt*3 + ss
            return 64 + 4*i if i < 4 else 128 + 4*(i - 4)
        def zP(ss, k):
            i = k*3 + ss
            if i < 20: return f"a[{AZ+4*i}:{AZ+4*i+3}]"
            i -= 20
            r = 32 + 4*i if i < 4 else 96 + 4*(i - 4)
            return f"v[{r}:{r+3}]"
        def zQ(ss, k):
            i = k*3 + ss
            return f"a[{4*i}:{4*i+3}]"
        self.zP, self.zQ, self.accP, self.accQ = zP, zQ, accP, accQ
        for k in range(9):
            for tt in range(2):
                g = len(M)
                if k < 8:
                    line = k >> 1; piece = line >> 1; l = line & 1
                    base = V_SA + 2 + (k & 1); off = piece*SLOT + l*4096 + tt*2048
                    st = ("C", piece)
                else:
                    base = V_SX; off = tt*2048; st = ("CX", 0)
                f, a = addfrag(lambda a, base=base, off=off: [f"ds_read_b128 a[{a}:{a+3}], v{base} offset:{off}"], g, dist=8, stage=st)
                for ss in range(3):
                    ac = accP(tt, ss)
                    M.append(dict(op=16, acc=f"v[{ac}:{ac+3}]", first=(k == 0), A=f"a[{a}:{a+3}]", B=zP(ss, k), need=f))
                    lu[st] = len(M) - 1
        SP_END = len(M)
        for k in range(8):
            for tt in range(2):
                g = len(M)
                line = k >> 1; piece = line >> 1; l = line & 1
                base = V_SA + (k & 1); off = piece*SLOT + l*4096 + tt*2048
                st = ("S", piece)
                f, a = addfrag(lambda a, base=base, off=off: [f"ds_read_b128 a[{a}:{a+3}], v{base} offset:{off}"], g, dist=8, stage=st)
                for ss in range(3):
                    ac = accQ(tt, ss)
                    M.append(dict(op=16, acc=f"v[{ac}:{ac+3}]", first=(k == 0), A=f"a[{a}:{a+3}]", B=zQ(ss, k), need=f))
                    lu[st] = len(M) - 1
        P2_0 = len(M)
        stages = [(0, "own"), (1, "own"), (2, "own"), (0, "par"), (1, "par"), (2, "par"), (4, "both"), (3, "own"), (3, "par")]
        slot_order = [2, 0, 3, 2, 1, 0, 3, 2, 1]
        slot_of = {st: slot_order[i] for i, st in enumerate(stages)}
        ACC = {0: [32, 96], 1: [16, 80], 2: [48, 112], 3: [64, 128], 4: [32]}
        tile_last = {}
        def p2run(st, half, base, nk=18):
            u, who = st
            acc = ACC[u][half]
            for k in range(18):
                g = len(M)
                f, a = addfrag(tr(base, k*2048, 1024), g, stage=("s2", st))
                M.append(dict(op=32, acc=f"v[{acc}:{acc+15}]", first=(who == "own" and k == 0), A=f"a[{a}:{a+3}]",
                              B=(f"v[{HF+4*k}:{HF+4*k+3}]" if who == "own" else f"a[{AZ+4*k}:{AZ+4*k+3}]"), need=f))
                tile_last[(u, half)] = g; lu[("s2", st)] = g
        for st in stages[:7]:
            u, who = st; slot = slot_of[st]
            if u < 4:
                for half in range(2): p2run(st, half, (V_RA if half == 0 else V_RB) + slot)
            else:
                acc = ACC[4][0]
                for k in range(36):
                    g = len(M)
                    f, a = addfrag(tr(V_R8, k*1024, 512), g, stage=("s2", st))
                    M.append(dict(op=32, acc=f"v[{acc}:{acc+15}]", first=(k == 0), A=f"a[{a}:{a+3}]",
                                  B=(f"v[{HF+4*k}:{HF+4*k+3}]" if k < 18 else f"a[{AZ+4*(k-18)}:{AZ+4*(k-18)+3}]"), need=f))
                    tile_last[(4, 0)] = g; lu[("s2", st)] = g
        p2run((3, "own"), 0, V_LB); p2run((3, "par"), 0, V_LB + 1); p2run((3, "own"), 1, V_LB + 2); p2run((3, "par"), 1, V_LB + 3)
        N = len(M)
        last_use = {}
        for g, m in enumerate(M): last_use[m["need"]] = g
        for f, fr in enumerate(frags):
            d = fr.get("dist", DIST)
            t = fr["use"] - d
            if f >= NAF and t < last_use[f - NAF]: fr["dist"] = fr["use"] - last_use[f - NAF]
        for fr in frags:
            st = fr.get("stage_first")
            if st is None: continue
            if st[0] in ("st", "s2"):
                tags = [st]
                if st == ("st", 3): tags += ["zst", "flinit"]
                if st == ("st", 17): tags += ["hst"]
                fr["pre"] = [wvm(tags), o("s_barrier")]
                if st == ("st", 17):
                    fr["pre"] += [vm(f"buffer_store_dword v{V_ONE}, v{V_ONE0}, s[{SR_WS}:{SR_WS+3}], s{S_FL} offen sc1", "fl1")]
                if st == ("st", 3):
                    fr["pre"] += [vm(f"buffer_atomic_add v{V_ONE}, v{V_ONE0}, s[{SR_HZ}:{SR_HZ+3}], 0 offen offset:128 sc1", "zpub")]
            else:
                fr["pre"] = [wvm(("cs", st))]
        stamps = {0: "p1", 144: "u1", 288: "u2", 432: "u3", 576: "u4", S0: "S0", SP_END: "SP", P2_0: "p2", P2_0 + 108: "p2b", P2_0 + 216: "p2c"}
        if self.opts.get("fine"):
            stamps = {0: "p1", 432: "u3", 576: "u4", 594: "s594", 612: "s612", 630: "s630", S0: "S0", 660: "s660", 672: "s672", 684: "s684", SP_END: "SP", 714: "s714", 726: "s726", 738: "s738", P2_0: "p2", P2_0 + 36: "a36", P2_0+72: "a72", P2_0 + 108: "p2b", P2_0 + 216: "p2c"}
        for g, name in stamps.items():
            if self.diag: M[g].setdefault("before", []).extend(self.stamp(name))
        self.tail2 = []

        def setup(sl, head):
            rbar = {st: fu[st] - DIST for st in fu if st[0] in ("st", "s2")}
            for b in rbar.values():
                if b >= 0: sl.budget[b] = 4
            def fbar(t):
                sl.put(t, [o("s_barrier")])
            busy = {"end": -1}
            def place(groups, start, step=1):
                s = max(start, busy["end"] + 1)
                for grp in groups:
                    sl.put(s, grp); busy["end"] = s; s += step
                return s
            sl.put(2, [o(f"v_mov_b32 v{V_ONE}, 1")])
            eh = sl.stream(self.rr_reads(48, 112) + self.h_epilogue(S_A, V_HACC, 48, 64), 12, 46)
            eh = sl.stream(self.rr_reads(48, 112, 2) + self.h_epilogue(S_B, 128, 48, 64), eh + 1, eh + 34)
            assert eh < 92, eh
            for mat in range(2):
                slot = (16 + mat) % 4
                ins = [o("v_lshrrev_b32 v224, 5, v0"), o("v_lshlrev_b32 v224, 9, v224"),
                       o("v_bfe_u32 v225, v0, 2, 2"), o("v_lshlrev_b32 v225, 6, v225"), o("v_add_u32 v224, v224, v225"),
                       o("v_bfe_u32 v225, v0, 4, 1"), o("v_lshlrev_b32 v225, 5, v225"), o("v_add_u32 v224, v224, v225"),
                       o("v_and_b32 v225, 3, v0"), o("v_lshlrev_b32 v225, 3, v225"), o("v_add_u32 v224, v224, v225"),
                       o(f"v_add_u32 v{V_R8+mat}, {slot*SLOT}, v224")]
                sl.stream(ins, 70 + 20*mat, 88 + 20*mat)
            dma_end = {}
            for sig in range(2, 18):
                grps = self.dma_p1(sig, sig % 4)
                if sig == 2: start = 0
                elif sig == 3: start = 9*self.opts.get('dstep', 2)
                elif self.opts.get("fb", 1):
                    t = lu[("st", sig - 4)]; fbar(t); start = t + 1
                else:
                    start = min(b for b in rbar.values() if b >= lu[("st", sig - 4)]) + 1
                dma_end[sig] = place(grps, start, self.opts.get("dstep", 2))
            self.paced_prefetch(sl, dma_end)
            self.mode_check(sl, M)
            sl.put(590, [G([o(f"s_lshl_b32 s{S_FL}, s{S_LID}, 7"), o(f"s_add_u32 s{S_FL}, s{S_FL}, {WS_FLAG}")])])
            sl.put(592, [o(f"v_mov_b32 v{V_ONE}, 1")])
            e0 = sl.stream(self.geglu(0), 145, 211)
            sl.stream(self.hstore(0) + self.geglu(1) + self.hstore(1), max(e0 + 1, 212), 287)
            for u in range(1, 3):
                sl.stream(self.geglu(2*u) + self.hstore(2*u) + self.geglu(2*u+1) + self.hstore(2*u+1), 144*(u+1) + 1, 144*(u+2) - 1)
            es = sl.stream(self.s_setup(), eh + 1, eh + 11)
            es = sl.stream(self.s_setup2(), es + 1, es + 10)
            assert es < 118, es
            sl.stream(self.s_setup3(224, 225, 226, 227), max(es + 1, 112), 143)
            ep = sl.stream(self.phase2_setup(), 66, 100)
            assert ep < 110
            t = lu[("st", 14)]; fbar(t); place(self.dma_cs(0, 0, 2, ("cs", ("C", 0))), t + 1, 2)
            t = lu[("st", 15)]; fbar(t); e = place(self.dma_cs(0, 1, 3, ("cs", ("C", 1))), t + 1, 2)
            place(self.dma_cx(("cs", ("CX", 0))), e, 2)
            t = lu[("st", 16)]; fbar(t); place(self.dma_cs(1, 0, 0, ("cs", ("S", 0))), t + 1, 2)
            t = lu[("st", 17)]; fbar(t); place(self.dma_cs(1, 1, 1, ("cs", ("S", 1)), True), t + 1, 1)
            self.main_rest(sl, M, fu, lu, stages, slot_of, ACC, tile_last, S0, SP_END, P2_0, N, fbar, place)
        L = self.paced(M, frags, setup, DIST)
        return L + self.tail2

    def mode_check(self, sl, M):
        if not self.opts.get("local", 0): return
        t = 0
        ld = f"buffer_load_dwordx2 v[222:223], off, s[{SR_HZ}:{SR_HZ+3}], s{T5} sc1"
        ld = f"buffer_load_dwordx2 v[230:231], off, s[{SR_HZ}:{SR_HZ+3}], s{S_XC} sc1"
        if self.opts.get("cfg", 0) == 0:
            ld = f"buffer_load_dword v230, off, s[{SR_HZ}:{SR_HZ+3}], s{S_XC} sc1"
            sl.put(140, [G([o(f"s_lshr_b32 s{S_XC}, s{S_LID}, 3"), o(f"s_lshl_b32 s{S_XC}, s{S_XC}, 2")])])
        else:
            sl.put(140, [G([o(f"s_lshl_b32 s{S_XC}, s{S_MT}, 3")])])
        sl.put(143, [vm(ld, "xcc")])
        sl.put(205, [wvm("xcc")])
        sl.put(206, [o(f"v_readfirstlane_b32 s{T6}, v230"), o(f"v_readfirstlane_b32 s{T7}, v231")])
        def nz(r, tmp):
            return [o(f"s_lshr_b32 s{tmp}, s{r}, 1"), o(f"s_or_b32 s{tmp}, s{tmp}, s{r}"), o(f"s_lshr_b32 s{T3}, s{tmp}, 2"), o(f"s_or_b32 s{tmp}, s{tmp}, s{T3}"),
                    o(f"s_and_b32 s{tmp}, s{tmp}, 0x11111111")]
        chk = nz(T6, T1) + nz(T7, T2) + [o(f"s_and_b32 s{T1}, s{T1}, s{T2}"), o(f"s_cmp_eq_u32 s{T1}, 0x11111111")]
        if self.opts.get("cfg", 0) == 0:
            ld = f"buffer_load_dword v230, off, s[{SR_HZ}:{SR_HZ+3}], s{S_XC} sc1"
            ext = [o(f"s_and_b32 s{T1}, s{S_LID}, 6"), o(f"s_lshl_b32 s{T1}, s{T1}, 2"), o(f"s_lshr_b32 s{T2}, s{T6}, s{T1}"),
                   o(f"s_and_b32 s{T3}, s{T2}, 15"), o(f"s_bfe_u32 s{T2}, s{T2}, 0x40004"),
                   o(f"s_min_u32 s{T1}, s{T2}, s{T3}"), o(f"s_cmp_ge_u32 s{T1}, 1")]
            blk = ext + [o("s_cbranch_scc1 L_xc_ok")] + self.spin("L_xc", [o(ld)], [o(f"v_readfirstlane_b32 s{T6}, v230"), o("s_nop 3")] + ext)
            blk += [o(f"s_cmp_eq_u32 s{T2}, s{T3}"), o(f"s_cselect_b32 s{S_MODE}, 1, 0")]
            if self.opts.get("forceglobal"): blk += [o(f"s_mov_b32 s{S_MODE}, 0")]
            M[209].setdefault("before", []).extend(blk)
            return
        blk = chk + [o("s_cbranch_scc1 L_xc_ok")] + self.spin("L_xc", [o(ld)],
              [o(f"v_readfirstlane_b32 s{T6}, v230"), o(f"v_readfirstlane_b32 s{T7}, v231"), o("s_nop 3")] + chk)
        blk += [o(f"s_and_b32 s{T1}, s{T6}, 15"), o(f"s_mul_i32 s{T1}, s{T1}, 0x11111111"),
                o(f"s_cmp_eq_u32 s{T1}, s{T6}"), o(f"s_cselect_b32 s{S_MODE}, 1, 0"),
                o(f"s_cmp_eq_u32 s{T1}, s{T7}"), o(f"s_cselect_b32 s{S_MODE}, s{S_MODE}, 0")]
        if self.opts.get("forceglobal"): blk += [o(f"s_mov_b32 s{S_MODE}, 0")]
        M[209].setdefault("before", []).extend(blk)

    def bulk(self, sl, t):
        bk = [G([o(f"s_lshl_b32 s{S_PF}, s{S_LID}, 2"), o(f"s_add_u32 s{S_PF}, s{S_PF}, s{S_W}"), o(f"s_mul_i32 s{S_PF}, s{S_PF}, 41")]),
              o(f"v_add_u32 v{V_PF}, s{S_PF}, v0"), o(f"v_lshlrev_b32 v{V_PF}, 7, v{V_PF}"),
              G([o("v_cmp_gt_u32 vcc, 41, v0"), o("v_nop"), o("v_nop"), o(f"v_cndmask_b32 v{V_PF}, v{V_ONE0}, v{V_PF}, vcc")])]
        e = sl.stream(bk, t, t + 5, spill=2)
        sl.put(e + 1, [vm(f"buffer_load_dword v{V_PF}, v{V_PF}, s[{SR_WG}:{SR_WG+3}], 0 offen", "pf")])
        sl.put(e + 2, [vm(f"buffer_load_dword v{V_PF}, v{V_PF}, s[{SR_WU}:{SR_WU+3}], 0 offen", "pf")])
        return e + 2

    def paced_prefetch(self, sl, dma_end):
        if self.opts.get("bulkat", 0) == 1:
            bk = [G([o(f"s_lshl_b32 s{S_PF}, s{S_LID}, 2"), o(f"s_add_u32 s{S_PF}, s{S_PF}, s{S_W}"), o(f"s_mul_i32 s{S_PF}, s{S_PF}, 41")]),
                  o(f"v_add_u32 v230, s{S_PF}, v0"), o(f"v_lshlrev_b32 v230, 7, v230"),
                  G([o("v_cmp_gt_u32 vcc, 41, v0"), o("v_nop"), o("v_nop"), o(f"v_cndmask_b32 v230, v{V_ONE0}, v230, vcc")])]
            e = sl.stream(bk, 0, 8, spill=2)
            assert e < 12
            s = dma_end[self.opts.get("bulkst", 3)]
            sl.put(s, [vm(f"buffer_load_dword v{V_PF}, v230, s[{SR_WG}:{SR_WG+3}], 0 offen", "pf")])
            sl.put(s + 1, [vm(f"buffer_load_dword v{V_PF}, v230, s[{SR_WU}:{SR_WU+3}], 0 offen", "pf")])
        if not self.opts.get("ppf", 1): return
        Dd, Cc, t = 228, 229, 227
        setup = [G([o(f"s_lshl_b32 s{S_PF}, s{S_LID}, 2"), o(f"s_add_u32 s{S_PF}, s{S_PF}, s{S_W}"), o(f"s_mul_i32 s{S_PF}, s{S_PF}, 41")]),
                 o(f"v_add_u32 v{Dd}, s{S_PF}, v0"), o(f"v_lshlrev_b32 v{Dd}, 7, v{Dd}"), o(f"v_mov_b32 v{t}, {OOB:#x}"),
                 G([o("v_cmp_gt_u32 vcc, 41, v0"), o("v_nop"), o("v_nop"), o(f"v_cndmask_b32 v{Dd}, v{t}, v{Dd}, vcc")]),
                 G([o(f"s_and_b32 s{S_PF}, s{S_J}, 7"), o(f"s_lshl_b32 s{S_PF}, s{S_PF}, 2"), o(f"s_add_u32 s{S_PF}, s{S_PF}, s{S_W}")]),
                 G([o(f"s_lshl_b32 s{S_C}, s{S_TAU}, 5"), o(f"s_add_u32 s{S_PF}, s{S_PF}, s{S_C}"), o(f"s_lshl_b32 s{S_PF}, s{S_PF}, 12")]),
                 o(f"v_lshlrev_b32 v{Cc}, 7, v0"), o(f"v_add_u32 v{Cc}, s{S_PF}, v{Cc}"),
                 G([o("v_cmp_gt_u32 vcc, 17, v0"), o("v_nop"), o("v_nop"), o(f"v_cndmask_b32 v{Cc}, v{t}, v{Cc}, vcc")])]
        e = sl.stream(setup, 146, 176)
        s = dma_end[self.opts.get("pfw", 9)]
        assert s > e + 6
        if self.opts.get("bulk", 1) != 2: sl.put(s, [vm(f"buffer_load_dword v{V_PF}, v{Dd}, s[{SR_WD}:{SR_WD+3}], 0 offen", "pf")])
        s = dma_end[self.opts.get("pfc", 11)]
        sl.put(s, [vm(f"buffer_load_dword v{V_PF}, v{Cc}, s[{SR_CS}:{SR_CS+3}], 0 offen", "pf")])
        sl.put(s + 1, [vm(f"buffer_load_dword v{V_PF}, v{Cc}, s[{SR_SS}:{SR_SS+3}], 0 offen", "pf")])

    def owner_addr(self):
        sQ = S_TO
        t0, t1, t2, t3 = 244, 245, 246, 247
        L = [G([o(f"s_lshl_b32 s{T4}, s{S_MT}, 2"), o(f"s_add_u32 s{T4}, s{T4}, s{S_W}")]),
             G([o(f"s_mul_i32 s{T5}, s{T4}, 18"), o(f"s_add_u32 s{T5}, s{T5}, s{sQ}"), o(f"s_lshl_b32 s{T5}, s{T5}, 11")]),
             o(f"s_lshr_b32 s{T3}, s{S_J}, 1")]
        for i, d in enumerate((2, 3, 4, 5, 6, 7, 1)):
            L += [G([o(f"s_xor_b32 s{16+i}, s{T3}, {d}"), o(f"s_mul_i32 s{16+i}, s{16+i}, {PART_BYTES}"), o(f"s_add_u32 s{16+i}, s{16+i}, s{T5}")])]
        L += [o(f"s_lshl_b32 s{T5}, s{T4}, 4"), o(f"v_and_b32 v{t0}, 15, v0"), o(f"v_add_u32 v{t0}, s{T5}, v{t0}"),
              o(f"v_sub_u32 v{t1}, 2048, v{t0}"), o(f"v_mov_b32 v{t2}, 1024"), o(f"v_mov_b32 v{t3}, 0"),
              G([o(f"v_cmp_eq_u32 vcc, 0, v{t0}"), o("v_nop"), o("v_nop"), o(f"v_cndmask_b32 v237, v{t1}, v{t2}, vcc"),
                 o(f"v_cndmask_b32 v{t1}, v{t1}, v{t3}, vcc"), o(f"v_cndmask_b32 v{t2}, v{t0}, v{t2}, vcc")]),
              o(f"v_and_b32 v{t3}, 16, v0"),
              G([o(f"v_cmp_eq_u32 vcc, 0, v{t3}"), o("v_nop"), o("v_nop"), o(f"v_cndmask_b32 v{t0}, v237, v{t0}, vcc"), o(f"v_cndmask_b32 v{t1}, v{t2}, v{t1}, vcc")]),
              o(f"s_lshl_b32 s{T5}, s{sQ}, 6"),
              o(f"v_mul_u32_u24 v{t2}, 1152, v{t0}"), o(f"v_add_u32 v{t2}, s{T5}, v{t2}"),
              o(f"v_lshrrev_b32 v{t3}, 5, v0"), o(f"v_lshlrev_b32 v238, 4, v{t3}"), o(f"v_add_u32 v238, v{t2}, v238"),
              o(f"v_lshlrev_b32 v237, 3, v{t3}"), o(f"v_add_u32 v237, v{t2}, v237"),
              G([o(f"s_lshl_b32 s{T5}, s{sQ}, 7"), o(f"s_cmp_lt_u32 s{sQ}, 9"), o(f"s_cselect_b32 s24, 0, 1")]),
              G([o(f"s_sub_u32 s{T4}, {2292 - 96}, s{T5}"), o(f"s_cmp_lt_u32 s{sQ}, 9"), o(f"s_cselect_b32 s{T5}, s{T5}, s{T4}"), o(f"s_cselect_b32 s{T4}, 1, -1")]),
              G([o(f"v_mov_b32 v{t2}, s24"), o(f"v_cmp_eq_u32 vcc, 1, v{t2}"), o("v_nop"), o("v_nop"), o(f"v_cndmask_b32 v{t0}, v{t0}, v{t1}, vcc")]),
              o(f"v_mul_u32_u24 v{t0}, {YP}, v{t0}"), o(f"v_add_u32 v{t0}, s{T5}, v{t0}"),
              o(f"v_lshlrev_b32 v{t3}, 4, v{t3}"), o(f"v_mul_lo_u32 v{t3}, v{t3}, s{T4}"), o(f"v_add_u32 v{t0}, v{t0}, v{t3}"),
              o(f"v_add_u32 v239, {WS_YH}, v{t0}")]
        return L

    def pipe_reduce(self, sl, M, fu, lu, P2_0, N):
        self.items_cfg()
        t4 = P2_0 + self.opts.get("t4", 254)
        sl.put(t4 - 3, [o("v_mov_b32 v240, 4")])
        sl.put(t4, [wvm([("pst", 0), ("pst", 1), ("pst", 2), "yst"]), o("s_barrier")])
        sl.put(t4 + 1, [vm(f"buffer_store_dword v240, v{V_ONE0}, s[{SR_WS}:{SR_WS+3}], s{S_FL} offen sc1", "fl4")])
        ep = sl.stream(self.p2q_setup(), P2_0 + 102, P2_0 + 124)
        assert ep < P2_0 + 132
        s_own, s_par = 2, 1
        lb = [G([o(f"s_bfe_u32 s{T5}, s{S_J}, 0x10001"), o(f"s_lshl_b32 s{T5}, s{T5}, 6"), o(f"s_xor_b32 s{T4}, s{T5}, 64")]),
              o(f"v_xor_b32 v{V_LB}, s{T4}, v{V_RA+s_own}"), o(f"v_xor_b32 v{V_LB+1}, s{T4}, v{V_RA+s_par}"),
              o(f"v_xor_b32 v{V_LB+2}, s{T5}, v{V_RA+s_own}"), o(f"v_xor_b32 v{V_LB+3}, s{T5}, v{V_RA+s_par}")]
        sl.stream(lb, P2_0 + 190, P2_0 + 200)
        e = sl.stream(self.owner_addr(), P2_0 + 204, P2_0 + 250)
        e = sl.stream([G([o(f"s_and_b32 s{T6}, s{S_J}, 1"), o(f"s_lshl_b32 s{T6}, s{T6}, 7"), o(f"s_lshl_b32 s{T7}, s{S_MT}, 11")]),
                       G([o(f"s_add_u32 s{T6}, s{T6}, s{T7}"), o(f"s_add_u32 s{T6}, s{T6}, {WS_FLAG}")]),
                       o("v_lshlrev_b32 v242, 8, v0"), o(f"v_mov_b32 v241, {OOB:#x}"),
                       G([o("v_cmp_gt_u32 vcc, 8, v0"), o("v_nop"), o("v_nop"), o("v_cndmask_b32 v242, v241, v242, vcc")])], e + 1, e + 8)
        for i in range(4): sl.put(e + 2 + i, [vm(f"buffer_load_dwordx2 v[{24+2*i}:{25+2*i}], v237, s[{SR_X}:{SR_X+3}], 0 offen offset:{16*i}", "ox")])
        tpoll = max(e + 7, P2_0 + self.opts.get("tpa", 284))
        ld, chk = self.group_poll("L_gA", 4, 241, 242)
        sl.put(tpoll, [vm(ld, "gpA")])
        sl.put(tpoll + 9, [wvm("gpA")])
        M[tpoll + 11].setdefault("before", []).extend(chk + [o("s_cbranch_scc1 L_gA_ok")] + self.spin("L_gA", [o(ld)], chk))
        lds = []
        for i in range(6):
            lds += [vm(f"buffer_load_dwordx4 v[{80+8*i}:{83+8*i}], v{V_L16}, s[{SR_WS}:{SR_WS+3}], s{16+i} offen sc1", "op"),
                    vm(f"buffer_load_dwordx4 v[{84+8*i}:{87+8*i}], v{V_L16}, s[{SR_WS}:{SR_WS+3}], s{16+i} offen offset:1024 sc1", "op")]
        lds += [vm(f"buffer_load_dwordx4 v[{48+4*i}:{51+4*i}], v239, s[{SR_WS}:{SR_WS+3}], 0 offen offset:{32*i} sc1", "op") for i in range(4)]
        s = tpoll + 11
        self.late_loads = []
        stp = self.opts.get("ostep", 2)
        for l in lds:
            if s < N - 1: sl.put(s, [l]); s += stp
            else: self.late_loads.append(l)
        print("owner loads: in loop until", s, "late:", len(self.late_loads), "N", N)
        t5 = N - self.opts.get("t5", 10)
        sl.put(t5 - 3, [o("v_mov_b32 v240, 5")])
        sl.put(t5, [wvm([("pst", 3), ("pst", 4)]), o("s_barrier")])
        sl.put(t5 + 1, [vm(f"buffer_store_dword v240, v{V_ONE0}, s[{SR_WS}:{SR_WS+3}], s{S_FL} offen sc1", "fl5")])
        self.RDx = dict(P=("v", 176), X=208, Y=212, OA=220, PV=221, t=[222, 223, 224, 225], rev=26, so=84)
        Ad, Ld = self.item_setup("D", self.RDx, split=True)
        self.D_ld = Ld
        eD = sl.stream(Ad, N - 17, N - 1, spill=0)
        print("D addr until", eD)

    def spin(self, label, load, cond_ok, regs_note=""):
        return [o(f"s_mov_b32 s{S_CNT}, 0"), raw(f"{label}:")] + load + [o("s_waitcnt vmcnt(0)")] + cond_ok + \
               [o(f"s_cbranch_scc1 {label}_ok"), o(f"s_add_u32 s{S_CNT}, s{S_CNT}, 1"), o(f"s_cmp_gt_u32 s{S_CNT}, 0x40000"), o(f"s_cbranch_scc1 {label}_ok"),
                o("s_sleep 1"), o(f"s_branch {label}"), raw(f"{label}_ok:")]

    def main_rest(self, sl, M, fu, lu, stages, slot_of, ACC, tile_last, S0, SP_END, P2_0, N, fbar, place):
        zP, zQ, accP, accQ = self.zP, self.zQ, self.accP, self.accQ
        DIST = self.opts.get("dist", 7)
        if self.opts.get("esig", 1):
            e = sl.stream(self.geglu_sig(6, 8), 490, 535)
            e = sl.stream(self.geglu_sig(7, 8), max(e + 1, 508), 578)
            e6 = sl.stream(self.geglu_fin(6) + self.hstore(6), max(e + 1, 579), 596)
            e7 = sl.stream(self.geglu_fin(7) + self.hstore(7), e6 + 1, 614)
            assert e7 < S0 - 2, e7
            e8 = sl.stream(self.geglu_sig(8, 8), max(e7 + 1, 616), S0 + 2)
            e8 = sl.stream(self.geglu_fin(8) + self.hstore(8), max(e8 + 1, S0 + 4), S0 + 16)
            self.e8 = e8
        else:
            e6 = sl.stream(self.geglu(6) + self.hstore(6), 577, 634)
            assert e6 < S0 - 2, e6
            e7 = sl.stream(self.geglu(7) + self.hstore(7), e6 + 1, S0 + 46)
            assert e7 < SP_END - 1, e7
        if not self.opts.get("esig", 1): sl.stream(self.geglu(8, 8) + self.hstore(8), S0 + 4, S0 + 85)
        sl.put(467, [vm(f"buffer_load_dword v230, off, s[{SR_HZ}:{SR_HZ+3}], 0 offset:128 sc1", "zpoll")])
        sl.put(574, [wvm("zpoll")])
        sl.put(575, [o(f"v_readfirstlane_b32 s{T0}, v230")])
        M[578].setdefault("before", []).extend(
            [o(f"s_cmp_ge_u32 s{T0}, 256"), o("s_cbranch_scc1 L_zp_ok")] +
            self.spin("L_zp", [o(f"buffer_load_dword v{V_PF}, off, s[{SR_HZ}:{SR_HZ+3}], 0 offset:128 sc1")],
                      [o(f"v_readfirstlane_b32 s{T0}, v{V_PF}"), o("s_nop 3"), o(f"s_cmp_ge_u32 s{T0}, 256")]))
        ins = []
        for k in range(9):
            if k < 8: ins += [o(f"s_add_u32 s{S_C}, s{S_ZB}, {k*2048}")]
            else: ins += [G([o(f"s_cmp_eq_u32 s{S_W}, 3"), o(f"s_cselect_b32 s{S_C}, 0, {OOB:#x}"), o(f"s_add_u32 s{S_C}, s{S_C}, s{S_ZB}")]),
                          o(f"s_add_u32 s{S_C}, s{S_C}, {8*2048}")]
            for ss in range(3):
                ins += [vm(f"buffer_load_dwordx4 {zP(ss,k)}, v{V_ZP+ss}, s[{SR_WS}:{SR_WS+3}], s{S_C} offen sc1", ("zp", k))]
        sl.stream(ins, 579, 640)
        for k in range(9):
            g = S0 + 6*k
            sl.put(g - 1, [wvm(("zp", k))])
        ins = []
        for k in range(8):
            ins += [o(f"s_add_u32 s{S_C}, s{S_ZB}, {k*2048}")]
            for ss in range(3):
                ins += [vm(f"buffer_load_dwordx4 {zQ(ss,k)}, v{V_ZQ+ss}, s[{SR_WS}:{SR_WS+3}], s{S_C} offen sc1", ("zq", k))]
        sl.stream(ins, S0, SP_END + 20)
        for k in range(8):
            g = SP_END + 6*k
            sl.put(g - 1, [wvm(("zq", k))])
        blk = [o(f"s_cmp_eq_u32 s{S_TAU}, 0"), o("s_cbranch_scc0 L_s_n1024"),
               o("v_mov_b32 v232, 0xbf803f80"), o("v_mov_b32 v233, v232"), o("v_mov_b32 v234, v232"), o("v_mov_b32 v235, v232"), o("s_nop 1")]
        for k in range(9):
            for ss in range(3):
                a = (32, 36, 40)[ss] if False else None
        A1024 = [120, 124, 136]
        for k in range(9):
            for ss in range(3):
                a = A1024[ss]
                blk += [mf16(f"v[{a}:{a+3}]", "v[232:235]", zP(ss, k), "0" if k == 0 else f"v[{a}:{a+3}]")]
        blk += [raw("L_s_n1024:")]
        M[SP_END].setdefault("before", []).extend(blk)
        tA, tB, tC = 236, 237, 238
        t = lu[("C", 0)]; fbar(t)
        e = place(self.dma_p2(stages[0], slot_of[stages[0]], True, 12, 13, V_PF), t + 1, 1)
        ins = [o(f"v_lshrrev_b32 v{V_PF}, 5, v0"), o(f"v_lshlrev_b32 v{V_PF}, 9, v{V_PF}")]
        for s in range(4): ins += [o(f"v_sub_u32 v{V_RA+s}, v{V_RA+s}, v{V_PF}"), o(f"v_sub_u32 v{V_RB+s}, v{V_RB+s}, v{V_PF}")]
        sl.stream(ins, e + 1, e + 14)
        t = lu[("C", 1)] + 6; fbar(t)
        assert t >= lu[("CX", 0)]
        place(self.dma_p2(stages[2], slot_of[stages[2]], False, 0, 0, 0), t + 1, 1)
        t = lu[("S", 0)]
        if self.opts.get("esig", 1):
            sl.put(t, [wvm("hst"), o("s_barrier")])
            sl.put(t + 1, [o(f"v_mov_b32 v{V_PF}, 2")])
            sl.put(t + 2, [vm(f"buffer_store_dword v{V_PF}, v{V_ONE0}, s[{SR_WS}:{SR_WS+3}], s{S_FL} offen sc1", "fl2h")])
            place(self.dma_p2(stages[1], slot_of[stages[1]], False, 0, 0, 0), t + 3, 1)
            fbar(lu[("S", 1)])
        else:
            fbar(t); place(self.dma_p2(stages[1], slot_of[stages[1]], False, 0, 0, 0), t + 1, 1)
            t = lu[("S", 1)]
            sl.put(t, [wvm("hst"), o("s_barrier")])
            sl.put(t + 1, [o(f"v_mov_b32 v{V_PF}, 2")])
            sl.put(t + 2, [vm(f"buffer_store_dword v{V_PF}, v{V_ONE0}, s[{SR_WS}:{SR_WS+3}], s{S_FL} offen sc1", "fl2h")])
        a0 = P2_0 + 3
        t0r, t1r = 240, 241
        SC = SLOT
        W3D = SPARE - SLOT - 3*12288
        N1A = SPARE + 12288
        wr = [G([o(f"s_mul_i32 s{S_C}, s{S_W}, 12288"), o(f"s_add_u32 s{S_C}, s{S_C}, {SC}")]),
              G([o(f"s_cmp_eq_u32 s{S_W}, 3"), o(f"s_cselect_b32 s{S_ST1}, {W3D}, 0"), o(f"s_add_u32 s{S_C}, s{S_C}, s{S_ST1}")]),
              o(f"v_lshrrev_b32 v{t0r}, 4, v0"), o(f"v_mul_u32_u24 v{t0r}, 768, v{t0r}"), o(f"v_and_b32 v{t1r}, 15, v0"), o(f"v_lshlrev_b32 v{t1r}, 2, v{t1r}"),
              o(f"v_add_u32 v{t0r}, v{t0r}, v{t1r}"), o(f"v_add_u32 v{t0r}, s{S_C}, v{t0r}")]
        for pq, accf in ((0, accP), (1, accQ)):
            for tt in range(2):
                for ss in range(3):
                    for r in range(4):
                        wr += [ds(f"ds_write_b32 v{t0r}, v{accf(tt,ss)+r} offset:{pq*6144 + (16*tt + r)*192 + ss*64}", "sred_w")]
        e = sl.stream(wr, a0, a0 + 30)
        wr2 = [G([o(f"s_mul_i32 s{S_C}, s{S_W}, 768"), o(f"s_add_u32 s{S_C}, s{S_C}, {N1A}")]), o(f"v_lshlrev_b32 v{t1r}, 2, v0"), o(f"v_add_u32 v{t1r}, s{S_C}, v{t1r}")]
        for ss in range(3): wr2 += [ds(f"ds_write_b32 v{t1r}, v{A1024[ss]} offset:{ss*256}", "sred_w")]
        e = sl.stream(wr2, e + 1, e + 6)
        b1 = e + 1
        sl.put(b1, [wlg("sred_w"), o("s_barrier")])
        R0, R1 = 128, 64
        R0, R1 = 112, 48
        A0, A1, YD0, YM0, YD1, YM1 = 232, 233, 234, 235, 236, 237
        ad = [G([o(f"s_lshl_b32 s{T3}, s{S_W}, 3"), o(f"s_lshl_b32 s{T4}, s{S_TAU}, 5"), o(f"s_add_u32 s{T4}, s{T4}, s{T3}")]),
              G([o(f"s_mul_i32 s{T3}, s{T3}, 192"), o(f"s_add_u32 s{T3}, s{T3}, {SC}"), o(f"s_and_b32 s{T5}, s{S_J}, 7")]),
              o(f"s_mul_i32 s{T5}, s{T5}, 144"),
              o(f"v_lshrrev_b32 v238, 3, v0"), o(f"v_and_b32 v239, 7, v0"),
              o(f"v_mul_u32_u24 v{A0}, 192, v238"), o(f"v_lshlrev_b32 v239, 4, v239"), o(f"v_add_u32 v{A0}, v{A0}, v239"), o(f"v_add_u32 v{A0}, s{T3}, v{A0}"),
              o(f"v_add_u32 v238, s{T4}, v238"),
              o(f"v_add_u32 v239, s{T5}, v239"),
              o(f"v_mul_u32_u24 v{YD0}, {YP}, v238"), o(f"v_add_u32 v{YD0}, v{YD0}, v239"),
              o(f"v_sub_u32 v{YM0}, 2048, v238"), o(f"v_mul_u32_u24 v{YM0}, {YP}, v{YM0}"), o(f"v_add_u32 v{YM0}, v{YM0}, v239"),
              G([o(f"v_cmp_eq_u32 vcc, 0, v238"), o(f"v_mov_b32 v238, {OOB:#x}"), o("v_nop"), o(f"v_cndmask_b32 v{YM0}, v{YM0}, v238, vcc")]),
              o(f"v_and_b32 v238, 7, v0"), o(f"v_lshrrev_b32 v239, 3, v0"), o(f"v_add_u32 v239, 8, v239"), o(f"v_min_u32 v239, 9, v239"),
              o(f"v_mul_u32_u24 v{A1}, 192, v238"), o(f"v_lshlrev_b32 v239, 4, v239"), o(f"v_add_u32 v{A1}, v{A1}, v239"), o(f"v_add_u32 v{A1}, s{T3}, v{A1}"),
              o(f"v_add_u32 v238, s{T4}, v238"), o(f"v_add_u32 v239, s{T5}, v239"),
              o(f"v_mul_u32_u24 v{YD1}, {YP}, v238"), o(f"v_add_u32 v{YD1}, v{YD1}, v239"),
              o(f"v_sub_u32 v{YM1}, 2048, v238"), o(f"v_mul_u32_u24 v{YM1}, {YP}, v{YM1}"), o(f"v_add_u32 v{YM1}, v{YM1}, v239"),
              G([o(f"v_cmp_eq_u32 vcc, 0, v238"), o(f"v_mov_b32 v238, {OOB:#x}"), o("v_nop"), o(f"v_cndmask_b32 v{YM1}, v{YM1}, v238, vcc")]),
              G([o(f"s_cmp_eq_u32 s{T5}, {7*144}"), o(f"s_cselect_b32 s{T5}, 16, 8")]),
              G([o(f"v_cmp_gt_u32 vcc, s{T5}, v0"), o("v_nop"), o("v_nop"), o(f"v_cndmask_b32 v{YD1}, v238, v{YD1}, vcc"), o(f"v_cndmask_b32 v{YM1}, v238, v{YM1}, vcc")]),
              o(f"s_mov_b32 s{T4}, {WS_YH}"),
              o(f"v_lshlrev_b32 v238, 2, v0"), o(f"v_add_u32 v238, {N1A}, v238"),
              o(f"v_add_u32 v243, {W3D + 3*12288}, v{A0}"), o(f"v_add_u32 v244, {W3D + 3*12288}, v{A1}")]
        e = sl.stream(ad, a0 + 2, b1)
        assert e <= b1 + 6
        def rds(R, A, tag):
            A3 = 243 if A == A0 else 244
            return [ds(f"ds_read_b128 v[{R + 16*pq + 4*ww}:{R + 16*pq + 4*ww + 3}], v{A if ww < 3 else A3} offset:{(ww*12288 if ww < 3 else 0) + pq*6144}", tag) for pq in range(2) for ww in range(4)]
        N1 = 216
        n1r = [ds(f"ds_read_b32 v{N1+4*ss+ww}, v238 offset:{ww*768 + ss*256}", "sred_n") for ss in range(3) for ww in range(4)]
        e = sl.stream(rds(R0, A0, "sr0") + rds(R1, A1, "sr1") + n1r, max(e, b1) + 1, max(e, b1) + 12)
        b2 = e + 3
        sl.put(b2, [wlg("sred_n"), o("s_barrier")])
        self.b2 = b2
        def fin(R, YD, YM):
            out = []
            for pq in range(2):
                b_ = R + 16*pq
                for k in range(4):
                    out += [o(f"v_add_f32 v{b_+k}, v{b_+k}, v{b_+4+k}"), o(f"v_add_f32 v{b_+8+k}, v{b_+8+k}, v{b_+12+k}"), o(f"v_add_f32 v{b_+k}, v{b_+k}, v{b_+8+k}")]
            for k in range(4):
                out += [o(f"v_sub_f32 v{R+4+k}, v{R+k}, v{R+16+k}"), o(f"v_add_f32 v{R+8+k}, v{R+k}, v{R+16+k}")]
            out += [vm(f"buffer_store_dwordx4 v[{R+4}:{R+7}], v{YD}, s[{SR_WS}:{SR_WS+3}], s{T4} offen sc1", "yst"),
                    vm(f"buffer_store_dwordx4 v[{R+8}:{R+11}], v{YM}, s[{SR_WS}:{SR_WS+3}], s{T4} offen sc1", "yst")]
            return out
        n1 = []
        for ss in range(3):
            b_ = N1 + 4*ss
            n1 += [o(f"v_add_f32 v{b_}, v{b_}, v{b_+1}"), o(f"v_add_f32 v{b_+2}, v{b_+2}, v{b_+3}"), o(f"v_add_f32 v{b_}, v{b_}, v{b_+2}")]
        n1 += [G([o(f"s_or_b32 s{T3}, s{S_TAU}, s{S_W}"), o(f"s_cmp_eq_u32 s{T3}, 0"), o(f"s_cselect_b32 s{T3}, 16, 0")]),
               G([o(f"v_cmp_gt_u32 vcc, s{T3}, v0"), o(f"v_mov_b32 v238, {1024*YP}"), o(f"v_mov_b32 v239, {OOB:#x}"), o(f"v_cndmask_b32 v238, v239, v238, vcc")])]
        for ss in range(3):
            n1 += [o(f"v_add_u32 v{N1+4*ss+1}, v238, v{V_YC[ss]}")]
        n1 += [vm(f"buffer_store_dword v{N1+4*ss}, v{N1+4*ss+1}, s[{SR_WS}:{SR_WS+3}], s{T4} offen sc1", "yst") for ss in range(3)]
        e = sl.stream(fin(R1, YD1, YM1) + fin(R0, YD0, YM0), b2 + 1, P2_0 + 66, spill=3)
        assert e < P2_0 + 72, e
        e = sl.stream(n1, e + 1, e + 16)
        assert e < P2_0 + 100, e
        gpar = fu[("s2", (0, "par"))]
        PF2 = 231
        sl.put(660, [G([o(f"s_xor_b32 s{T0}, s{S_LID}, 1"), o(f"s_lshl_b32 s{T1}, s{T0}, 7"), o(f"s_add_u32 s{T1}, s{T1}, {WS_FLAG}")])])
        sl.put(661, [G([o(f"s_lshl_b32 s{T0}, s{T0}, 2"), o(f"s_add_u32 s{T0}, s{T0}, s{S_W}"), o(f"s_mul_i32 s{T0}, s{T0}, {18*1024}")]), o(f"s_add_u32 s{T0}, s{T0}, {WS_HX}")])
        pl = f"buffer_load_dword v242, off, s[{SR_WS}:{SR_WS+3}], s{T1} sc1"
        h1 = self.opts.get("h1", P2_0 - 12)
        sl.put(h1, [vm(pl, "hpoll1")])
        sl.put(h1 + 12, [wvm("hpoll1")])
        sl.put(h1 + 13, [o(f"v_readfirstlane_b32 s{T2}, v242")])
        M[h1 + 16].setdefault("before", []).extend(
            [o(f"s_cmp_ge_u32 s{T2}, 1"), o("s_cbranch_scc1 L_hq_ok")] +
            self.spin("L_hq", [o(pl)], [o(f"v_readfirstlane_b32 s{T2}, v242"), o("s_nop 3"), o(f"s_cmp_ge_u32 s{T2}, 1")]))
        def hload(k, n, t, tag):
            sl.put(t, [o(f"s_add_u32 s{T6}, s{T0}, {k*1024}")])
            sl.put(t + 1, self.dload([f"buffer_load_dwordx4 a[{AZ+4*(k+q)}:{AZ+4*(k+q)+3}], v{V_L16}, s[{SR_WS}:{SR_WS+3}], s{T6} offen offset:{q*1024}" for q in range(n)], tag, True))
        for i in range(6):
            hload(2*i, 2, h1 + 17 + 9*i, ("hp", i))
        tp = P2_0 + self.opts.get("tp2", 74)
        assert tp - 13 > h1 + 17 + 9*5 + 1
        sl.put(tp - 13, [vm(pl, "hpoll2")])
        sl.put(tp - 2, [wvm("hpoll2")])
        sl.put(tp - 1, [o(f"v_readfirstlane_b32 s{T2}, v242")])
        M[tp + 2].setdefault("before", []).extend(
            [o(f"s_cmp_ge_u32 s{T2}, 2"), o("s_cbranch_scc1 L_hp_ok")] +
            self.spin("L_hp", [o(pl)], [o(f"v_readfirstlane_b32 s{T2}, v242"), o("s_nop 3"), o(f"s_cmp_ge_u32 s{T2}, 2")]))
        for i in range(3):
            hload(12 + 2*i, 2, tp + 4 + 6*i, ("hp", 6 + i))
        sl.put(gpar - 2, [wvm(("hp", 5))])
        for i in range(3):
            sl.put(gpar + 12 + 2*i - 2, [wvm(("hp", 6 + i))])
        for i in range(3, 9):
            st = stages[i]; slot = slot_of[st]
            prev = [j for j in range(i) if slot_of[stages[j]] == slot]
            if prev:
                t = lu[("s2", stages[prev[-1]])]; fbar(t); start = t + 1
            else:
                start = b2 + 1
            grps = self.dma_p2(st, slot, False, 250, 251, 0)
            if st[0] == 4:
                grps = [[o(f"s_and_b32 s{S_C}, s{S_W}, 1"), o(f"s_mul_i32 s{S_C}, s{S_C}, {16*1152}")]] + grps
                place(grps, start, 1)
            else:
                place(grps, start, 2)
        s4 = slot_of[(4, "both")]
        ins = [o("v_lshrrev_b32 v250, 5, v0"), o("v_lshlrev_b32 v250, 8, v250"),
               o("v_bfe_u32 v251, v0, 2, 2"), o("v_lshlrev_b32 v251, 6, v251"), o("v_add_u32 v250, v250, v251"),
               o("v_bfe_u32 v251, v0, 4, 1"), o("v_lshlrev_b32 v251, 5, v251"), o("v_add_u32 v250, v250, v251"),
               o("v_and_b32 v251, 3, v0"), o("v_lshlrev_b32 v251, 3, v251"), o("v_add_u32 v250, v250, v251"),
               o(f"v_add_u32 v{V_R8}, {s4*SLOT}, v250")]
        sl.stream(ins, P2_0 + 150, P2_0 + 175)
        self.pipe_reduce(sl, M, fu, lu, P2_0, N)
        for (u, half), tl in sorted(tile_last.items(), key=lambda x: x[1]):
            acc = ACC[u][half]
            par = half
            t = TMP + 8*par
            st = S_ST0 + par
            ins = [o(f"v_cvt_pk_bf16_f32 v{t+i}, v{acc+2*i}, v{acc+2*i+1}") for i in range(8)]
            if u == 3 and half == 1: continue
            if u < 3: ins += [o(f"s_add_u32 s{st}, s{S_QU[u]}, {half*2048}")]
            elif u == 3: ins += [o(f"s_mov_b32 s{st}, s{S_QN}")]
            else: ins += [o(f"s_mov_b32 s{st}, s{S_Q8}")]
            ins += self.dstore([f"buffer_store_dwordx4 v[{t}:{t+3}], v{V_L16}, s[{SR_WS}:{SR_WS+3}], s{st} offen",
                                f"buffer_store_dwordx4 v[{t+4}:{t+7}], v{V_L16}, s[{SR_WS}:{SR_WS+3}], s{st} offen offset:1024"], ("pst", u))
            s0 = tl + 4
            if s0 + 10 <= N: sl.stream(ins, s0, s0 + 10)
            else: self.tail2 = [o("s_nop 15")] + ins

    def item_setup(self, kind, R, srd=None, split=False):
        t0, t1, t2, t3 = R["t"]
        sQ, sH, sB, sT = T2, T3, T4, T5
        L = []
        LD = []
        SW = SR_WS if srd is None else srd
        if kind == "A":
            L += [G([o(f"s_lshl_b32 s{sT}, s{S_J}, 2"), o(f"s_add_u32 s{sT}, s{sT}, s{S_W}"), o(f"s_lshr_b32 s{sQ}, s{sT}, 3")]),
                  G([o(f"s_cmp_lt_u32 s{sQ}, 4"), o(f"s_cselect_b32 s{sH}, 0, 6"), o(f"s_add_u32 s{sQ}, s{sQ}, s{sH}")])]
        elif kind in "BC":
            lo, hi = (4, 12) if kind == "B" else (6, 14)
            L += [G([o(f"s_lshl_b32 s{sT}, s{S_J}, 1"), o(f"s_lshr_b32 s{sH}, s{S_W}, 1"), o(f"s_add_u32 s{sT}, s{sT}, s{sH}")]),
                  G([o(f"s_lshr_b32 s{sQ}, s{sT}, 3"), o(f"s_cmp_lt_u32 s{sQ}, 2"), o(f"s_cselect_b32 s{sH}, {lo}, {hi}")]),
                  o(f"s_add_u32 s{sQ}, s{sQ}, s{sH}")]
        else:
            L += [G([o(f"s_lshr_b32 s{sT}, s{S_J}, 1"), o(f"s_and_b32 s{sQ}, s{S_J}, 1"), o(f"s_add_u32 s{sQ}, s{sQ}, 8")])]
        L += [G([o(f"s_and_b32 s{sH}, s{sT}, 1"), o(f"s_bfe_u32 s{sB}, s{sT}, 0x20001"), o(f"s_lshl_b32 s{sT}, s{S_MT}, 2")]),
              o(f"s_add_u32 s{sB}, s{sB}, s{sT}"),
              G([o(f"s_mul_i32 s{sT}, s{sB}, 18"), o(f"s_add_u32 s{sT}, s{sT}, s{sQ}"), o(f"s_lshl_b32 s{sT}, s{sT}, 1")]),
              G([o(f"s_add_u32 s{sT}, s{sT}, s{sH}"), o(f"s_lshl_b32 s{sT}, s{sT}, 10")])]
        so = R["so"]
        for p in range(8): L += [o(f"s_add_u32 s{so+p}, s{sT}, {p*PART_BYTES}")]
        if kind == "A":
            L += [o(f"v_mov_b32 v{t3}, 0")]
        elif kind in "BC":
            L += [o(f"s_and_b32 s{sT}, s{S_W}, 1"), o(f"v_bfe_u32 v{t0}, v0, 4, 1"), o(f"v_mov_b32 v{t1}, {OOB:#x}"), o(f"v_mov_b32 v{t3}, 0"),
                  G([o(f"v_cmp_eq_u32 vcc, s{sT}, v{t0}"), o("v_nop"), o("v_nop"), o(f"v_cndmask_b32 v{t3}, v{t1}, v{t3}, vcc")])]
        else:
            L += [o(f"v_bfe_u32 v{t0}, v0, 3, 2"), o(f"v_mov_b32 v{t1}, {OOB:#x}"), o(f"v_mov_b32 v{t3}, 0"),
                  G([o(f"v_cmp_eq_u32 vcc, s{S_W}, v{t0}"), o("v_nop"), o("v_nop"), o(f"v_cndmask_b32 v{t3}, v{t1}, v{t3}, vcc")])]
        PV = R["PV"]
        L += [o(f"v_add_u32 v{PV}, v{t3}, v{V_L16}")]
        pk, pb = R["P"]
        ldp = [vm(f"buffer_load_dwordx4 {pk}[{pb+4*p}:{pb+4*p+3}], v{PV}, s[{SW}:{SW+3}], s{so+p} offen sc1", ("it", kind)) for p in range(8)]
        if split: LD += ldp
        else: L += ldp
        X, Y, OA = R["X"], R["Y"], R["OA"]
        L += [o(f"s_lshl_b32 s{sT}, s{sB}, 4"), o(f"v_and_b32 v{t0}, 15, v0"), o(f"v_add_u32 v{t0}, s{sT}, v{t0}"),
              o(f"v_sub_u32 v{t1}, 2048, v{t0}"), o(f"v_mov_b32 v{t2}, 1024"), o(f"v_mov_b32 v{OA}, 0"),
              G([o(f"v_cmp_eq_u32 vcc, 0, v{t0}"), o("v_nop"), o("v_nop"), o(f"v_cndmask_b32 v{X}, v{t1}, v{t2}, vcc"),
                 o(f"v_cndmask_b32 v{t1}, v{t1}, v{OA}, vcc"), o(f"v_cndmask_b32 v{t2}, v{t0}, v{t2}, vcc")]),
              o(f"v_and_b32 v{OA}, 16, v0"),
              G([o(f"v_cmp_eq_u32 vcc, 0, v{OA}"), o("v_nop"), o("v_nop"), o(f"v_cndmask_b32 v{t0}, v{X}, v{t0}, vcc"), o(f"v_cndmask_b32 v{t1}, v{t2}, v{t1}, vcc")]),
              G([o(f"s_lshl_b32 s{sT}, s{sQ}, 6"), o(f"s_lshl_b32 s{sB}, s{sH}, 5"), o(f"s_add_u32 s{sT}, s{sT}, s{sB}")]),
              o(f"v_mul_u32_u24 v{t2}, 1152, v{t0}"), o(f"v_add_u32 v{t2}, s{sT}, v{t2}"), o(f"v_add_u32 v{t2}, v{t2}, v{t3}"),
              o(f"v_lshrrev_b32 v{X}, 5, v0"), o(f"v_lshlrev_b32 v{OA}, 4, v{X}"), o(f"v_add_u32 v{OA}, v{t2}, v{OA}"),
              o(f"v_lshlrev_b32 v{X}, 3, v{X}"), o(f"v_add_u32 v{t2}, v{t2}, v{X}"),
              vm(f"buffer_load_dwordx2 v[{X}:{X+1}], v{t2}, s[{SR_X}:{SR_X+3}], 0 offen", ("it", kind)),
              vm(f"buffer_load_dwordx2 v[{X+2}:{X+3}], v{t2}, s[{SR_X}:{SR_X+3}], 0 offen offset:16", ("it", kind)),
              G([o(f"s_lshl_b32 s{sT}, s{sT}, 1"), o(f"s_cmp_lt_u32 s{sQ}, 9"), o(f"s_cselect_b32 s{R['rev']}, 0, 1")]),
              G([o(f"s_sub_u32 s{sB}, 2292, s{sT}"), o(f"s_cmp_lt_u32 s{sQ}, 9"), o(f"s_cselect_b32 s{sT}, s{sT}, s{sB}"), o(f"s_cselect_b32 s{sB}, 1, -1")]),
              G([o(f"v_cmp_eq_u32 vcc, 1, v{PV}") if False else o(f"v_mov_b32 v{t2}, s{R['rev']}"), o(f"v_cmp_eq_u32 vcc, 1, v{t2}"), o("v_nop"), o("v_nop"),
                 o(f"v_cndmask_b32 v{t0}, v{t0}, v{t1}, vcc")]),
              o(f"v_mul_u32_u24 v{t0}, {YP}, v{t0}"), o(f"v_add_u32 v{t0}, s{sT}, v{t0}"), o(f"v_add_u32 v{t0}, v{t0}, v{t3}"),
              o(f"v_lshrrev_b32 v{t1}, 5, v0"), o(f"v_lshlrev_b32 v{t1}, 4, v{t1}"), o(f"v_mul_lo_u32 v{t1}, v{t1}, s{sB}"),
              o(f"v_add_u32 v{t0}, v{t0}, v{t1}"),
              o(f"s_lshl_b32 s{sB}, s{sB}, 5"), o(f"v_add_u32 v{t1}, s{sB}, v{t0}"), o(f"v_add_u32 v{t0}, {WS_YH}, v{t0}"), o(f"v_add_u32 v{t1}, {WS_YH}, v{t1}")]
        ldy = [vm(f"buffer_load_dwordx4 v[{Y}:{Y+3}], v{t0}, s[{SW}:{SW+3}], 0 offen sc1", ("it", kind)),
               vm(f"buffer_load_dwordx4 v[{Y+4}:{Y+7}], v{t1}, s[{SW}:{SW+3}], 0 offen sc1", ("it", kind))]
        if split:
            LD += ldy
            return L, LD
        return L + ldy

    def item_finish(self, kind, R):
        X, Y, OA = R["X"], R["Y"], R["OA"]
        t0, t1, t2, t3 = R["t"]
        pk, pb = R["P"]
        L = [wvm(("it", kind)),
             o(f"s_cmp_eq_u32 s{R['rev']}, 0"), o(f"s_cbranch_scc1 L_rv{kind}"),
             o(f"v_swap_b32 v{Y}, v{Y+3}"), o(f"v_swap_b32 v{Y+1}, v{Y+2}"), o(f"v_swap_b32 v{Y+4}, v{Y+7}"), o(f"v_swap_b32 v{Y+5}, v{Y+6}"),
             raw(f"L_rv{kind}:"),
             o(f"s_mov_b32 s{T0}, 0x3f80"), o(f"s_mov_b32 s{T1}, 0x3f800000")]
        for i in range(4):
            L += [o(f"v_dot2_f32_bf16 v{Y+2*i}, v{X+i}, s{T0}, v{Y+2*i}"), o(f"v_dot2_f32_bf16 v{Y+2*i+1}, v{X+i}, s{T1}, v{Y+2*i+1}")]
        for p in range(8):
            for i in range(4):
                r = pb + 4*p + i
                if pk == "a":
                    L += [o(f"v_accvgpr_read_b32 v{t0 + (i & 1)}, a{r}")]
                    src = t0 + (i & 1)
                else: src = r
                L += [o(f"v_dot2_f32_bf16 v{Y+2*i}, v{src}, s{T0}, v{Y+2*i}"), o(f"v_dot2_f32_bf16 v{Y+2*i+1}, v{src}, s{T1}, v{Y+2*i+1}")]
        L += [o("s_nop 2")]
        for i in range(4):
            L += [o(f"v_cvt_pk_bf16_f32 v{X+i}, v{Y+2*i}, v{Y+2*i+1}")]
        L += [o("s_nop 1"), o(f"v_permlane32_swap_b32 v{X}, v{X+2}"), o(f"v_permlane32_swap_b32 v{X+1}, v{X+3}"),
              vm(f"buffer_store_dwordx4 v[{X}:{X+3}], v{OA}, s[{SR_OUT}:{SR_OUT+3}], 0 offen{self.osfx}", "out")]
        return L

    def group_poll(self, label, val, vdst, voff):
        ld = f"buffer_load_dword v{vdst}, v{voff}, s[{SR_WS}:{SR_WS+3}], s{T6} offen sc1"
        chk = [o(f"v_cmp_le_u32 vcc, {val}, v{vdst}"), o("s_nop 0"), o(f"s_and_b32 s{T7}, vcc_lo, 0xff"), o(f"s_cmp_eq_u32 s{T7}, 0xff")]
        return ld, chk

    def items_cfg(self):
        self.RA = dict(P=("v", 80), X=112, Y=116, OA=124, PV=125, t=[126, 127, 16, 17], rev=24, so=16)
        self.RB = dict(P=("a", 0), X=18, Y=22, OA=30, PV=31, t=[48, 49, 50, 51], rev=25, so=16)
        self.RC = dict(P=("v", 176), X=208, Y=212, OA=220, PV=221, t=[222, 223, 224, 225], rev=26, so=16)
        self.RD = dict(P=("v", 128), X=160, Y=164, OA=172, PV=173, t=[174, 175, 226, 227], rev=27, so=84)

    def tail(self):
        L = list(self.late_loads)
        O = 128
        ld, chk = self.group_poll("L_f5", 5, 241, 242)
        L += [vm(ld, "fp5")]
        L += self.stamp("pub")
        RD = self.RDx; Ld = self.D_ld
        L += [wvm("op"), wvm("ox"), o(f"s_mov_b32 s{T0}, 0x3f80"), o(f"s_mov_b32 s{T1}, 0x3f800000"),
              o("s_cmp_eq_u32 s24, 0"), o("s_cbranch_scc1 L_oyd")]
        for g_ in range(4):
            for k in range(4): L += [o(f"v_add_f32 v{O+4*g_+k}, v{O+4*g_+k}, v{48 + 4*(3-g_) + 3 - k}")]
        L += [o("s_branch L_oyj"), raw("L_oyd:")]
        for r in range(16): L += [o(f"v_add_f32 v{O+r}, v{O+r}, v{48+r}")]
        L += [raw("L_oyj:")]
        for i in range(8):
            L += [o(f"v_dot2_f32_bf16 v{O+2*i}, v{24+i}, s{T0}, v{O+2*i}"), o(f"v_dot2_f32_bf16 v{O+2*i+1}, v{24+i}, s{T1}, v{O+2*i+1}")]
        for p in range(6):
            for i in range(8):
                L += [o(f"v_dot2_f32_bf16 v{O+2*i}, v{80+8*p+i}, s{T0}, v{O+2*i}"), o(f"v_dot2_f32_bf16 v{O+2*i+1}, v{80+8*p+i}, s{T1}, v{O+2*i+1}")]
        L += self.stamp("early")
        L += [wvm("fp5")] + chk + [o("s_cbranch_scc1 L_f5_ok")] + self.spin("L_f5", [o(ld)], chk) + [reset()]
        L += self.stamp("pok")
        L += [vm(f"buffer_load_dwordx4 v[16:19], v{V_L16}, s[{SR_WS}:{SR_WS+3}], s22 offen sc1", "sib"),
              vm(f"buffer_load_dwordx4 v[20:23], v{V_L16}, s[{SR_WS}:{SR_WS+3}], s22 offen offset:1024 sc1", "sib")]
        L += Ld
        L += [wvm("sib")]
        for i in range(8):
            L += [o(f"v_dot2_f32_bf16 v{O+2*i}, v{16+i}, s{T0}, v{O+2*i}"), o(f"v_dot2_f32_bf16 v{O+2*i+1}, v{16+i}, s{T1}, v{O+2*i+1}")]
        L += [o("s_nop 2")]
        for i in range(8): L += [o(f"v_cvt_pk_bf16_f32 v{24+i}, v{O+2*i}, v{O+2*i+1}")]
        L += [o("s_nop 1"), o("v_permlane32_swap_b32 v24, v26"), o("v_permlane32_swap_b32 v25, v27"),
              o("v_permlane32_swap_b32 v28, v30"), o("v_permlane32_swap_b32 v29, v31"),
              vm(f"buffer_store_dwordx4 v[24:27], v238, s[{SR_OUT}:{SR_OUT+3}], 0 offen{self.osfx}", "out"),
              vm(f"buffer_store_dwordx4 v[28:31], v238, s[{SR_OUT}:{SR_OUT+3}], 0 offen offset:32{self.osfx}", "out")]
        L += self.stamp("ownfin")
        L += self.item_finish("D", RD)
        return L

    def kernel(self, name):
        L = [raw(f".globl {name}"), raw(".p2align 8"), raw(f".type {name},@function"), raw(f"{name}:")]
        L += self.prologue()
        L += self.stamp("proend")
        L += self.ln_stats()
        L += self.stamp("stats")
        L += [o("s_barrier")]
        L += [o(f"s_mov_b32 s{S_A}, s{S_J}"), o(f"s_add_u32 s{S_B}, s{S_J}, 16")]
        L += self.h_dma(S_A, 2, "wz1")
        L += [o(f"s_cmp_lt_u32 s{S_J}, 2"), o("s_cbranch_scc0 L_noz2a")]
        L += [I(i.t, "o") if i.k == "vm" else i for i in self.h_dma(S_B, 3, "wz2")]
        L += [raw("L_noz2a:")]
        hd = []
        for sig in range(2):
            for grp in self.dma_p1(sig, sig): hd.append(grp)
        hd.append([o(f"s_lshl_b32 s{S_PF}, s{S_LID}, 2"), o(f"s_add_u32 s{S_PF}, s{S_PF}, s{S_W}"), o(f"s_mul_i32 s{S_PF}, s{S_PF}, 41"),
                   o(f"v_add_u32 v240, s{S_PF}, v0"), o("v_lshlrev_b32 v240, 7, v240"), o("v_cmp_gt_u32 vcc, 41, v0"), o("s_nop 1"),
                   o(f"v_cndmask_b32 v240, v{V_ONE0}, v240, vcc"),
                   vm(f"buffer_load_dword v{V_PF}, v240, s[{SR_WG}:{SR_WG+3}], 0 offen", "pf"),
                   vm(f"buffer_load_dword v{V_PF}, v240, s[{SR_WU}:{SR_WU+3}], 0 offen", "pf")])
        lf = self.ln_finish()
        per = -(-len(lf) // 18)
        k = 0
        for n, grp in enumerate(hd):
            L += grp
            if n < 18: L += lf[k:k + per]; k += per
        L += lf[k:]
        L += [o(f"v_subrev_u32 v{V_XA+i}, s{S_LX}, v{V_XA+i}") for i in range(4)]
        L += [o(f"v_add_u32 v{V_XA+i}, {2*SLOT}, v{V_XA+i}") for i in range(4)]
        L += self.stamp("lnfin")
        L += self.seg_norm_h()
        L += self.stamp("normH")
        L += self.h2_block()
        L += self.tr_bases()
        L += srd(SR_HZ, 36, 256)
        L += self.main()
        L += self.stamp("p2end")
        L += self.tail()
        L += self.stamp("end")
        if self.diag:
            L += [o("s_waitcnt vmcnt(0)"),
                  o(f"s_lshl_b32 s{T0}, s{S_LID}, 2"), o(f"s_add_u32 s{T0}, s{T0}, s{S_W}"), o(f"s_lshl_b32 s{T0}, s{T0}, 8"),
                  o(f"s_add_u32 s{T0}, s{T0}, {WS_STAMP}"), o("v_lshlrev_b32 v240, 2, v0"),
                  o(f"buffer_store_dword v{V_STAMP}, v240, s[{SR_WS}:{SR_WS+3}], s{T0} offen")]
        L += [raw("L_end:"), o("s_endpgm")]
        return finalize(flat(L))

NAME = "parallel_sum__spectral_fnet__geglu_ffn__prompt_kernel"
def build(diag=False, opts=None):
    hdr = open("parallel_sum__spectral_fnet__geglu_ffn__prompt.s.ref").read().split("\n")
    top = [l for l in hdr if l.startswith(";") and "@launch" not in l and "Override" not in l and "grid=ceil" not in l]
    g = Gen(diag, opts)
    lines = g.kernel(NAME)
    errs = hazard_check(lines)
    for e in errs[:30]: print("HAZARD:", e)
    txt = "\n".join(top) + "\n"
    txt += "; @launch grid=(256,1,1) block=(256,1,1) lds=163840\n"
    txt += '.amdgcn_target "amdgcn-amd-amdhsa--gfx950"\n.text\n'
    txt += "\n".join(lines) + "\n" + kernel_footer(NAME)
    return txt, g.names

if __name__ == "__main__":
    import sys, json
    opts = {}
    for a in sys.argv[2:]:
        if "=" in a:
            k, v = a.split("="); opts[k] = int(v)
    txt, names = build("diag" in sys.argv, opts)
    open(sys.argv[1], "w").write(txt)
    json.dump(names, open(sys.argv[1] + ".names", "w"))
```

```python
from fw import *
from sched import *
import math, struct

S, D, F = 2048, 576, 4608
SLOT = 36864
SPARE = 4*SLOT
PART_BYTES = S * D * 2
WS_PART = 0
WS_HX = 20 << 20
WS_ZF = 40 << 20
ZF_STRIDE = 66 * 1024
WS_YH = 42 << 20
YP = 320 * 4
WS_FLAG = 46 << 20
WS_STAMP = 48 << 20
OOB = 0x40000000
C0 = -2.0 * math.sqrt(2.0 / math.pi) * math.log2(math.e)
C1 = C0 * 0.044715
def f2u(f): return struct.unpack("<I", struct.pack("<f", f))[0]

V_L16 = 1
V_RA, V_RB = 2, 6
V_DM = 10
V_C0, V_C1 = 14, 15
GA = [[16, 32], [48, 64]]
UA = [[80, 96], [112, 128]]
HF = 144
TMP = 216
V_HACC = 232
V_XA = 248
V_R8 = 248
V_PF = 252
V_ONE0 = 253
V_D2 = 254
V_STAMP = 255
RX = 80
V_PERM = 224
V_NEGMU = 64
V_ONE = 231
V_SD = 232
V_SA = 236
V_SX = 240
V_ZP = 241
V_ZQ = 244
V_YC = [247, 250, 251]
V_LB = 232
AX = 0
AF = 144
NAF = 8
AZ = 176
SR_CS, SR_SS, SR_HZ, SR_X, SR_WG, SR_WU, SR_WD, SR_WS, SR_OUT = 4, 8, 12, 40, 44, 48, 52, 56, 60
S_W, S_MT, S_J = 64, 65, 66
S_LX, S_L9 = 67, 68
S_UB = 69
S_WD = 74
S_PB = 75
T0, T1, T2, T3, T4, T5, T6, T7 = 76, 77, 78, 79, 80, 81, 82, 83
S_N0 = 84
S_N1 = 16
S_CU = 25
S_Q0, S_Q8 = 30, 31
S_HB = 32
S_LID = 33
S_ST0, S_ST1 = 34, 35
S_CNT = 93
S_A, S_B, S_C = 94, 95, 96
S_TAU, S_ZB = 38, 39
S_PF = 97
S_XC = 0
S_QU = [30, 36, 37]
S_QN = 39
S_TO = 32
S_GA = 28
S_FL = 1
S_MODE = 2
S_D0 = 3

def srd(dst, ptr, nbytes):
    return [o(f"s_mov_b32 s{dst}, s{ptr}"), o(f"s_and_b32 s{dst+1}, s{ptr+1}, 0xffff"),
            o(f"s_mov_b32 s{dst+2}, {nbytes}"), o(f"s_mov_b32 s{dst+3}, 0x00020000")]
def mf32(acc, A, B, C): return o(f"v_mfma_f32_32x32x16_bf16 {acc}, {A}, {B}, {C}")
def mf16(acc, A, B, C): return o(f"v_mfma_f32_16x16x32_bf16 {acc}, {A}, {B}, {C}")

class DS2(I):
    pass

class Gen:
    def dload(self, texts, tag, pair=False):
        out = self.dstore(texts, tag, pair)
        if hasattr(out[0], "cost"): out[0].cost = 3 + len(texts)
        return out
    def dstore(self, texts, tag, pair=False):
        self.lab = getattr(self, "lab", 0) + 1
        n = self.lab
        if self.opts.get("forcemode") == 1 or not self.opts.get("local", 0) or (self.opts.get("cfg", 0) == 0 and not pair):
            return [vm(t + " sc1", tag) for t in texts]
        body = f"s_bitcmp1_b32 s{S_MODE}, 0\n    s_cbranch_scc1 L_dl{n}\n"
        body += "".join(f"    {t} sc1\n" for t in texts)
        body += f"    s_branch L_dj{n}\nL_dl{n}:\n"
        body += "".join(f"    {t}\n" for t in texts)
        body += f"L_dj{n}:"
        out = [I("buffer_store_multi " + body, "vm", tag)]
        out[0].t = body
        out[0].cost = 3 + 5*len(texts)
        for _ in texts[1:]:
            x = I("; (counted above)", "vm", tag); x.cost = 0; out.append(x)
        return out
    def __init__(self, diag=False, opts=None):
        self.hd_regs = []
        self.osfx = ' sc1' if (opts or {}).get('osc1') else ''
        self.diag = diag; self.opts = opts or {}; self.nst = 0; self.names = []; self.pid = 0
    def stamp(self, name):
        if not self.diag: return []
        if self.opts.get("hdiag") == 2 and name in ("kernarg", "xiss", "proend", "lnfin", "pub", "early", "pok", "ownfin"): return []
        i = self.nst; self.nst += 1; self.names.append(name)
        return [o("s_memtime s[98:99]"), o("s_memrealtime s[100:101]"), o("s_waitcnt lgkmcnt(0)"),
                o(f"v_writelane_b32 v{V_STAMP}, s98, {i}"), o(f"v_writelane_b32 v{V_STAMP}, s100, {i+32}")]

    def paced(self, M, frags, setup, dist):
        N = len(M)
        sl = Slots(N)
        for g, m in enumerate(M):
            if m["op"] == 16: sl.budget[g] = 3
        head = []
        pid = self.pid; self.pid += 1
        def put(t, ins):
            if t < 0: head.extend(ins if isinstance(ins, list) else [ins])
            else: sl.put(t, ins)
        issue = {}
        for f, fr in enumerate(frags):
            t = fr["use"] - fr.get("dist", dist)
            issue[f] = t
            put(t, fr.get("pre", []))
            put(t, [ds(r, ("af", pid, f)) for r in fr["reads"]])
        waited = -1
        n0 = M[0]["need"]
        if n0 >= 0:
            tgt = max(n0, M[1]["need"])
            head.append(wlg(("af", pid, tgt))); waited = tgt
        for g in range(N - 1):
            nx = M[g+1]["need"]
            if nx > waited:
                tgt = nx
                if g + 2 < N and M[g+2]["need"] > nx and issue[M[g+2]["need"]] <= g - 3 and M[g+1]["op"] == 32: tgt = M[g+2]["need"]
                put(g, [wlg(("af", pid, tgt))]); waited = tgt
        setup(sl, head)
        L = list(head)
        for g, m in enumerate(M):
            L += m.get("before", [])
            c = "0" if m["first"] else m.get("C", m["acc"])
            if m.get("C") and m["first"]: c = m["C"]
            L.append((mf32 if m["op"] == 32 else mf16)(m["acc"], m["A"], m["B"], c))
            L += sl.emit(g)
        if self.opts.get("verbose"):
            over = [(g, sl.used[g], sl.budget[g]) for g in range(N) if sl.used[g] > sl.budget[g]]
            print(f"paced {pid}: N={N} over budget: {len(over)} total excess {sum(u-b for _,u,b in over)} avg used {sum(sl.used)/N:.2f}")
            if self.opts.get("verbose") > 1:
                for a in range(0, N, 36):
                    ex = sum(max(0, sl.used[g]-sl.budget[g]) for g in range(a, min(a+36, N)))
                    print(a, "used", sum(sl.used[a:a+36]), "budget", sum(sl.budget[a:a+36]), "excess", ex)
        return L

    def prologue(self):
        L = []
        if self.opts.get("hdiag"): L += [o("s_memrealtime s[98:99]")]
        if self.diag: L += [o(f"v_mov_b32 v{V_STAMP}, 0")]
        L += self.stamp("start")
        L += [o("s_load_dwordx16 s[16:31], s[0:1], 0"), o("s_load_dwordx8 s[32:39], s[0:1], 64"),
              o("s_cmp_ge_u32 s2, 256"), o("s_cbranch_scc1 L_end")]
        L += [o("v_lshrrev_b32 v2, 6, v0"), o("v_and_b32 v0, 63, v0"), o("s_nop 0"),
              o(f"v_readfirstlane_b32 s{S_W}, v2"),
              ] + self.idmap() + [
              o(f"s_mul_i32 s{S_LX}, s{S_W}, {SLOT}"), o(f"s_mul_i32 s{S_L9}, s{S_W}, 9216"),
              o(f"v_lshlrev_b32 v{V_L16}, 4, v0")]
        if self.opts.get("cpf", 1):
            L += [o("s_getpc_b64 s[82:83]"), raw("L_pc:"),
                  o(f"s_lshr_b32 s{T0}, s2, 3"), o(f"s_lshl_b32 s{T0}, s{T0}, 2"), o(f"s_add_u32 s{T0}, s{T0}, s{S_W}"),
                  o(f"s_lshl_b32 s{T0}, s{T0}, 9"),
                  o("v_and_b32 v2, 3, v0"), o("v_lshlrev_b32 v2, 7, v2"), o(f"v_add_u32 v2, s{T0}, v2"),
                  o("v_cmp_gt_u32 vcc, 4, v0"), o("s_and_saveexec_b64 s[80:81], vcc"),
                  vm(f"global_load_dword v{V_PF}, v2, s[82:83]", "pf"), o("s_mov_b64 exec, s[80:81]")]
        L += [o("v_lshrrev_b32 v2, 3, v0"), o("v_and_b32 v3, 7, v0"), o("v_lshrrev_b32 v4, 1, v2"),
              o("v_xor_b32 v3, v3, v4"), o("v_lshlrev_b32 v3, 4, v3"), o("v_xor_b32 v4, 64, v3"),
              o(f"s_lshl_b32 s{T0}, s{S_MT}, 6"), o(f"s_lshl_b32 s{T1}, s{S_W}, 4"), o(f"s_add_u32 s{T0}, s{T0}, s{T1}"),
              o(f"v_add_u32 v5, s{T0}, v2"), o("v_add_u32 v6, 8, v5"),
              o("v_sub_u32 v7, 2048, v5"), o("v_sub_u32 v8, 2048, v6"),
              o("v_cmp_eq_u32 vcc, 0, v5"), o("v_mov_b32 v9, 1024"), o("s_nop 0"),
              o("v_cndmask_b32 v7, v7, v9, vcc"),
              o(f"s_movk_i32 s{T1}, 1152"),
              o(f"v_mad_u32_u24 v240, v5, s{T1}, v3"), o(f"v_mad_u32_u24 v241, v6, s{T1}, v4"),
              o(f"v_mad_u32_u24 v242, v7, s{T1}, v3"), o(f"v_mad_u32_u24 v243, v8, s{T1}, v4")]
        if self.opts.get("xpf", 1) == 2:
            L += [o(f"s_lshl_b32 s{T0}, s{S_MT}, 4"), o(f"s_add_u32 s{T0}, s{T0}, s{S_J}"), o(f"s_lshl_b32 s{T0}, s{T0}, 2"), o(f"s_add_u32 s{T0}, s{T0}, s{S_W}"),
                  o(f"s_mul_i32 s{T0}, s{T0}, 18"), o(f"v_add_u32 v9, s{T0}, v0"), o("v_lshlrev_b32 v9, 7, v9"),
                  o("v_cmp_gt_u32 vcc, 18, v0"), o(f"v_mov_b32 v8, {OOB:#x}"), o("s_nop 0"), o("v_cndmask_b32 v9, v8, v9, vcc")]
        elif self.opts.get("xpf", 1):
            nsh = 16 if self.opts.get("cfg", 0) == 1 else 4
            per = 1152 // nsh // 4
            assert per <= 64 or True
            jj = f"s{S_J}"
            L += [o(f"s_and_b32 s{T0}, s{S_J}, {nsh-1}"), o(f"s_lshl_b32 s{T0}, s{T0}, 2"), o(f"s_add_u32 s{T0}, s{T0}, s{S_W}"), o(f"s_mul_i32 s{T0}, s{T0}, {per}"),
                  o(f"v_add_u32 v9, s{T0}, v0"),
                  o(f"s_mul_i32 s{T0}, s{S_MT}, {64*1152}"),
                  o(f"s_sub_u32 s{T1}, {(2048-63)*1152 - 576*128}, s{T0}"),
                  o("v_lshlrev_b32 v8, 7, v9"), o(f"v_add_u32 v7, s{T1}, v8"), o(f"v_add_u32 v8, s{T0}, v8"),
                  o("v_cmp_gt_u32 vcc, 0x240, v9"), o("s_nop 1"), o("v_cndmask_b32 v9, v7, v8, vcc"),
                  o(f"v_cmp_gt_u32 vcc, {min(per,64)}, v0"), o(f"v_mov_b32 v8, {OOB:#x}"), o("s_nop 0"), o("v_cndmask_b32 v9, v8, v9, vcc")]
        L += [o("s_waitcnt lgkmcnt(0)")]
        L += self.stamp("kernarg")
        L += srd(SR_X, 16, S*D*2)
        if self.opts.get("xpf", 1):
            L += [vm(f"buffer_load_dword v{V_PF}, v9, s[{SR_X}:{SR_X+3}], 0 offen", "pf")]
        HEAD = L
        P = []
        P += srd(SR_WG, 28, D*F*2) + srd(SR_WU, 30, D*F*2) + srd(SR_WD, 32, F*D*2) + srd(SR_WS, 38, 256 << 20) + srd(SR_OUT, 34, S*D*2)
        P += srd(SR_CS, 18, S*S*2) + srd(SR_SS, 20, S*S*2)
        P += [o(f"s_lshl_b32 s{T0}, s{S_W}, 6"), o(f"v_add_u32 v2, s{T0}, v0"), o("v_cmp_eq_u32 vcc, 0, v2"),
              o(f"v_mov_b32 v3, {OOB:#x}"), o("v_mov_b32 v4, 0"), o(f"v_cndmask_b32 v{V_ONE0}, v3, v4, vcc")]
        P += [o(f"s_lshl_b32 s{S_LID}, s{S_MT}, 4"), o(f"s_add_u32 s{S_LID}, s{S_LID}, s{S_J}")]
        P += [o(f"s_and_b32 s{T2}, s{S_J}, 1"), o(f"s_mul_i32 s{T0}, s{S_J}, 288"), o(f"s_mul_i32 s{T1}, s{T2}, 224"),
              o(f"s_add_u32 s{T1}, s{T0}, s{T1}"),
              G([o(f"s_cmp_eq_u32 s{T2}, 0"), o(f"s_cselect_b32 s{T3}, 64, -64"), o(f"s_cselect_b32 s{T4}, 256, 0")]),
              o(f"s_add_u32 s{T4}, s{T4}, s{T0}")]
        for u in range(4):
            P += [o(f"s_mul_i32 s{T5}, s{T3}, {u}"), o(f"s_add_u32 s{T5}, s{T5}, s{T1}"),
                  o(f"s_lshl_b32 s{S_UB+u}, s{T5}, 1"),
                  o(f"s_mul_i32 s{S_N0+2*u}, s{T5}, 1152"), o(f"s_add_u32 s{S_N0+2*u+1}, s{S_N0+2*u}, {32*1152}")]
        P += [o(f"s_lshl_b32 s{S_UB+4}, s{T4}, 1"), o(f"s_mul_i32 s{S_N0+8}, s{T4}, 1152")]
        P += [o(f"s_mov_b32 s{S_A}, s{S_UB}")]
        P += [o(f"s_mul_i32 s{T5}, s{S_W}, {72*9216}")]
        for u in range(4): P += [o(f"s_add_u32 s{S_UB+u}, s{S_UB+u}, s{T5}")]
        P += [o(f"s_lshl_b32 s{T5}, s{T5}, 1"), o(f"s_add_u32 s{S_UB+4}, s{S_UB+4}, s{T5}")]
        P += [o(f"s_lshr_b32 s{T0}, s{S_J}, 1"), o(f"s_mul_i32 s{S_PB}, s{T0}, {PART_BYTES}"),
              o(f"s_lshl_b32 s{T0}, s{S_MT}, 2"), o(f"s_add_u32 s{T0}, s{T0}, s{S_W}"),
              o(f"s_mul_i32 s{T0}, s{T0}, {18*2048}"), o(f"s_add_u32 s{S_PB}, s{S_PB}, s{T0}"),
              o(f"s_lshl_b32 s{T0}, s{S_LID}, 2"), o(f"s_add_u32 s{T0}, s{T0}, s{S_W}"),
              o(f"s_mul_i32 s{S_HB}, s{T0}, {18*1024}"), o(f"s_add_u32 s{S_HB}, s{S_HB}, {WS_HX}")]
        P += [o("v_lshrrev_b32 v2, 3, v0"), o("v_and_b32 v3, 7, v0"),
              o("v_bfe_u32 v4, v0, 4, 1"), o("v_lshlrev_b32 v4, 2, v4"), o("v_xor_b32 v3, v3, v4"), o("v_lshlrev_b32 v3, 4, v3"),
              o(f"v_mul_u32_u24 v2, 9216, v2"), o(f"v_add_u32 v{V_DM}, v2, v3")]
        for t in range(1, 4): P += [o(f"v_add_u32 v{V_DM+t}, {t*(8*9216-1024)}, v{V_DM}")]
        P += [o("v_and_b32 v2, 31, v0"), o("v_bfe_u32 v3, v0, 1, 3"), o("v_lshrrev_b32 v4, 5, v0"), o("v_xor_b32 v3, v3, v4"),
              o("v_lshlrev_b32 v3, 4, v3"), o("v_lshlrev_b32 v2, 7, v2"), o("v_add_u32 v2, v2, v3"),
              o(f"v_add_u32 v{V_XA}, s{S_LX}, v2"),
              o(f"v_xor_b32 v{V_XA+1}, 32, v{V_XA}"), o(f"v_xor_b32 v{V_XA+2}, 64, v{V_XA}"), o(f"v_xor_b32 v{V_XA+3}, 96, v{V_XA}")]
        P += [o("v_and_b32 v2, 15, v0"),
              o("v_and_b32 v3, 3, v2"), o("v_bfe_u32 v4, v2, 2, 1"), o("v_bfe_u32 v5, v2, 3, 1"),
              o("v_lshlrev_b32 v4, 3, v4"), o("v_lshlrev_b32 v5, 2, v5"), o("v_or_b32 v3, v3, v4"), o("v_or_b32 v3, v3, v5"),
              o("v_lshrrev_b32 v4, 3, v3"), o("v_lshrrev_b32 v5, 5, v0"),
              o("v_and_b32 v6, 1, v3"), o("v_lshlrev_b32 v6, 4, v6"), o("v_mov_b32 v7, 0x3f80"), o("v_lshlrev_b32 v7, v6, v7"), o("v_mov_b32 v8, 0"),
              G([o("v_cmp_eq_u32 vcc, v4, v5"), o("v_nop"), o("v_nop"), o("v_cndmask_b32 v7, v8, v7, vcc")]),
              o("v_bfe_u32 v6, v3, 1, 2"), o("v_bfe_u32 v9, v0, 4, 1")]
        for d in range(4):
            P += [G([o(f"v_cmp_eq_u32 vcc, {d}, v6"), o("v_nop"), o("v_nop"), o(f"v_cndmask_b32 v{V_PERM+d}, v8, v7, vcc")])]
        P += [G([o("v_cmp_eq_u32 vcc, 1, v9"), o("v_nop"), o("v_nop")] + [o(f"v_cndmask_b32 v{V_PERM+4+d}, v8, v{V_PERM+d}, vcc") for d in range(4)] +
                [o(f"v_cndmask_b32 v{V_PERM+d}, v{V_PERM+d}, v8, vcc") for d in range(4)])]
        L = []
        L += [o("v_mov_b32 v4, 0"), o(f"s_lshl_b32 s{T0}, s{S_LID}, 7"), o(f"s_add_u32 s{T0}, s{T0}, {WS_FLAG}"),
              vm(f"buffer_store_dword v4, v{V_ONE0}, s[{SR_WS}:{SR_WS+3}], s{T0} offen sc1", "flinit")]
        L += self.h_srd(S_J)
        if self.opts.get("pf", 1):
            L += [o(f"s_and_b32 s{T0}, s{S_MT}, 7"), o(f"s_mul_i32 s{T0}, s{T0}, 36"), o(f"s_mul_i32 s{T1}, s{S_W}, 9"), o(f"s_add_u32 s{T0}, s{T0}, s{T1}"),
                  o(f"v_add_u32 v2, s{T0}, v0"), o(f"v_mov_b32 v4, {OOB:#x}"),
                  o(f"s_mov_b32 s{T1}, {(2**32+8)//9}"), o(f"v_mul_hi_u32 v5, v2, s{T1}"), o("v_mul_u32_u24 v6, 9, v5"), o("v_sub_u32 v6, v2, v6"),
                  o(f"v_add_u32 v5, s{T7}, v5"), o(f"v_mul_u32_u24 v5, 1152, v5"), o("v_lshlrev_b32 v6, 7, v6"), o("v_add_u32 v5, v5, v6"),
                  o(f"v_mul_u32_u24 v3, 9216, v2"),
                  o("v_cmp_gt_u32 vcc, 9, v0"), o("s_nop 1"), o("v_cndmask_b32 v3, v4, v3, vcc"), o("v_cndmask_b32 v5, v4, v5, vcc"),
                  vm(f"buffer_load_dword v{V_PF}, v5, s[{SR_HZ}:{SR_HZ+3}], 0 offen", "pf")]
            L += [o(f"s_cmp_lt_u32 s{S_J}, 2"), o("s_cbranch_scc0 L_nopf2"),
                  o(f"s_mov_b32 s{T0}, {7*32*1152}"),
                  o(f"v_add_u32 v6, s{T0}, v5"), o("v_cmp_gt_u32 vcc, 9, v0"), o("s_and_saveexec_b64 s[82:83], vcc"),
                  o(f"global_load_dword v{V_PF}, v6, s[24:25]"),
                  o("s_mov_b64 exec, s[82:83]"), raw("L_nopf2:")]
            for sig in range(self.opts.get("npf", 4)):
                mat, kh = (sig // 2) % 2, sig % 2
                assert sig < 4
                rs = SR_WG if mat == 0 else SR_WU
                L += [o(f"s_add_u32 s{T6}, s{S_A}, {kh*288*9216}"),
                      vm(f"buffer_load_dword v{V_PF}, v3, s[{rs}:{rs+3}], s{T6} offen", "pf")]
        if self.opts.get("tlb", 0):
            st = self.opts.get("tlb", 0)
            n = (48 << 20) >> st
            L += [o(f"v_lshlrev_b32 v2, {st}, v0"), o(f"v_mov_b32 v4, {OOB:#x}")]
            for k in range(-(-n // 64)):
                L += [o(f"s_mov_b32 s{T0}, {k*64 << st}"), vm(f"buffer_load_dword v{V_PF}, v2, s[{SR_WS}:{SR_WS+3}], s{T0} offen", "pf")]
            L += [o("v_lshlrev_b32 v2, 16, v0"), vm(f"buffer_load_dword v{V_PF}, v2, s[{SR_OUT}:{SR_OUT+3}], 0 offen", "pf")]
        if self.opts.get('bearly'):
            L += [o(f"s_lshl_b32 s{S_PF}, s{S_LID}, 2"), o(f"s_add_u32 s{S_PF}, s{S_PF}, s{S_W}"), o(f"s_mul_i32 s{S_PF}, s{S_PF}, 41"),
                   o(f"v_add_u32 v2, s{S_PF}, v0"), o("v_lshlrev_b32 v2, 7, v2"), o("v_cmp_gt_u32 vcc, 41, v0"), o("s_nop 1"),
                   o(f"v_cndmask_b32 v2, v{V_ONE0}, v2, vcc"),
                   vm(f"buffer_load_dword v{V_PF}, v2, s[{SR_WG}:{SR_WG+3}], 0 offen", "pf"),
                   vm(f"buffer_load_dword v{V_PF}, v2, s[{SR_WU}:{SR_WU+3}], 0 offen", "pf")]
        post = L
        for n, i in enumerate(P):
            if not isinstance(i, G) and i.t.startswith("v_cmp_eq_u32 vcc, 0, v2"):
                P[n:n+4] = [G(P[n:n+4])]
                break
        out = HEAD
        flatx = []
        for kap in range(9):
            xl = self.x_line(kap)
            flatx += [xl[3*r:3*r+3] for r in range(4)]
        npre = len(P); pi = 0
        first = self.opts.get("xfree", 10)
        for n, g in enumerate(flatx):
            out += g
            if n >= first:
                take = -(-(npre - pi) // (36 - n))
                for it in P[pi:pi + take]: out += (list(it) if isinstance(it, G) else [it])
                pi += take
        out += self.stamp("xiss")
        L = out + post
        return L

    def tr_bases(self):
        L = []
        L += [o("v_lshrrev_b32 v16, 5, v0"), o("v_lshlrev_b32 v16, 10, v16"),
              o("v_bfe_u32 v17, v0, 2, 2"), o("v_lshlrev_b32 v17, 7, v17"), o("v_add_u32 v16, v16, v17"),
              o("v_bfe_u32 v17, v0, 3, 1"), o("v_lshlrev_b32 v17, 6, v17"), o("v_add_u32 v16, v16, v17"),
              o("v_bfe_u32 v17, v0, 4, 1"), o("v_lshlrev_b32 v17, 5, v17"), o("v_add_u32 v16, v16, v17"),
              o("v_and_b32 v17, 3, v0"), o("v_lshlrev_b32 v17, 3, v17"), o(f"v_add_u32 v{V_RA}, v16, v17")]
        for s in range(1, 4): L += [o(f"v_add_u32 v{V_RA+s}, {s*SLOT}, v{V_RA}")]
        for s in range(4): L += [o(f"v_xor_b32 v{V_RB+s}, 64, v{V_RA+s}")]
        return L

    def idmap(self):
        cfg = self.opts.get("cfg", 0)
        if cfg == 0:
            return [o(f"s_and_b32 s{S_J}, s2, 3"), o(f"s_lshl_b32 s{S_J}, s{S_J}, 2"),
              o(f"s_bfe_u32 s{T0}, s2, 0x20003"), o(f"s_or_b32 s{S_J}, s{S_J}, s{T0}"),
              o(f"s_bfe_u32 s{S_MT}, s2, 0x10002"), o(f"s_lshl_b32 s{S_MT}, s{S_MT}, 3"),
              o(f"s_lshr_b32 s{T0}, s2, 5"), o(f"s_or_b32 s{S_MT}, s{S_MT}, s{T0}")]
        if cfg == 1:
            return [o(f"s_and_b32 s{S_MT}, s2, 7"), o(f"s_lshl_b32 s{S_MT}, s{S_MT}, 1"), o(f"s_bfe_u32 s{T0}, s2, 0x10003"),
                    o(f"s_or_b32 s{S_MT}, s{S_MT}, s{T0}"), o(f"s_lshr_b32 s{S_J}, s2, 4")]
        if cfg == 2:
            return [o(f"s_and_b32 s{S_J}, s2, 1"), o(f"s_lshl_b32 s{S_J}, s{S_J}, 3"),
              o(f"s_bfe_u32 s{T0}, s2, 0x30003"), o(f"s_or_b32 s{S_J}, s{S_J}, s{T0}"),
              o(f"s_bfe_u32 s{S_MT}, s2, 0x20001"), o(f"s_lshl_b32 s{S_MT}, s{S_MT}, 2"),
              o(f"s_lshr_b32 s{T0}, s2, 6"), o(f"s_or_b32 s{S_MT}, s{S_MT}, s{T0}")]

    def h_srd(self, zreg):
        return [o(f"s_cmp_lt_u32 s{zreg}, 9"),
                o(f"s_cselect_b32 s{SR_HZ}, s22, s24"), o(f"s_cselect_b32 s{SR_HZ+1}, s23, s25"), o(f"s_cselect_b32 s{T7}, 0, 9"),
                o(f"s_and_b32 s{SR_HZ+1}, s{SR_HZ+1}, 0xffff"), o(f"s_mov_b32 s{SR_HZ+2}, {D*D*2}"), o(f"s_mov_b32 s{SR_HZ+3}, 0x00020000"),
                o(f"s_sub_u32 s{T7}, s{zreg}, s{T7}"), o(f"s_lshl_b32 s{T7}, s{T7}, 5")]

    def h_dma(self, zreg, slot, tag):
        L = self.h_srd(zreg)
        L += [o(f"s_lshl_b32 s{T1}, s{S_W}, 3"), o(f"s_add_u32 s{T0}, s{T7}, s{T1}"),
             o("v_lshrrev_b32 v240, 3, v0"), o("v_and_b32 v241, 7, v0"), o("v_lshrrev_b32 v242, 1, v240"), o("v_xor_b32 v241, v241, v242"),
             o(f"s_and_b32 s{T1}, s{S_W}, 1"), o(f"s_lshl_b32 s{T1}, s{T1}, 2"), o(f"v_xor_b32 v241, s{T1}, v241"),
             o("v_lshlrev_b32 v241, 4, v241"),
             o(f"v_add_u32 v240, s{T0}, v240"), o(f"s_movk_i32 s{T1}, 1152"), o(f"v_mad_u32_u24 v240, v240, s{T1}, v241"),
             o(f"s_lshl_b32 s{T1}, s{S_W}, 10"), o(f"s_add_u32 s{T1}, s{T1}, {slot*SLOT}")]
        for kap in range(9):
            L += [o(f"s_add_u32 m0, s{T1}, {4*kap*1024 - 128*kap}"), o("s_nop 0"),
                  vm(f"buffer_load_dwordx4 v240, s[{SR_HZ}:{SR_HZ+3}], 0 offen offset:{128*kap} lds", tag)]
        return L

    def h_special(self, zreg, slot, sfx):
        return [o(f"s_cmp_eq_u32 s{zreg}, 9"), o(f"s_cbranch_scc0 L_h_nosp{sfx}"), o(f"s_cmp_eq_u32 s{S_W}, 0"), o(f"s_cbranch_scc0 L_h_nosp{sfx}"),
                o("v_mov_b32 v16, 0xbf803f80"), o("v_mov_b32 v17, v16"), o("v_mov_b32 v18, v16"), o("v_mov_b32 v19, v16"),
                o("v_lshrrev_b32 v240, 3, v0"), o("v_lshlrev_b32 v240, 12, v240"), o("v_and_b32 v241, 7, v0"), o("v_lshlrev_b32 v241, 4, v241"),
                o("v_add_u32 v240, v240, v241"), o(f"v_add_u32 v240, {slot*SLOT}, v240"), o(f"v_add_u32 v241, {slot*SLOT}, v241"),
                o("ds_write_b128 v240, v[16:19]"), o("ds_write_b128 v241, v[16:19] offset:32768"),
                o("s_waitcnt lgkmcnt(0)"), raw(f"L_h_nosp{sfx}:")]

    def x_line(self, kap):
        L = []
        for rho in range(4):
            L += [o(f"s_add_u32 m0, s{S_LX}, {(4*kap+rho)*1024 - 128*kap}"), o("s_nop 0"),
                  vm(f"buffer_load_dwordx4 v{240+rho}, s[{SR_X}:{SR_X+3}], 0 offen offset:{128*kap} lds", ("x", kap))]
        return L
    def x_dma_variants(self):
        L = []
        for kap in range(self.opts.get("xpre", 3)): L += self.x_line(kap)
        return L
    def x_dma_variants_old(self):
        if not self.opts.get("rot", 0):
            L = []
            for kap in range(9):
                for rho in range(4):
                    L += [o(f"s_add_u32 m0, s{S_LX}, {(4*kap+rho)*1024 - 128*kap}"), o("s_nop 0"),
                          vm(f"buffer_load_dwordx4 v{240+rho}, s[{SR_X}:{SR_X+3}], 0 offen offset:{128*kap} lds", ("x", kap))]
            return L
        L = [o(f"s_and_b32 s{T0}, s{S_J}, 3")]
        for v in range(1, 4): L += [o(f"s_cmp_eq_u32 s{T0}, {v}"), o(f"s_cbranch_scc1 L_xd{v}")]
        for v in range(4):
            if v: L += [raw(f"L_xd{v}:")]
            for pos in range(9):
                kap = (self.K0[v] + pos) % 9
                for rho in range(4):
                    t = f"buffer_load_dwordx4 v{240+rho}, s[{SR_X}:{SR_X+3}], 0 offen offset:{128*kap} lds"
                    L += [o(f"s_add_u32 m0, s{S_LX}, {(4*kap+rho)*1024 - 128*kap}"), o("s_nop 0"),
                          (vm(t, ("x", pos)) if v == 3 else o(t))]
            if v < 3: L += [o("s_branch L_xdj")]
        L += [raw("L_xdj:")]
        return L
    K0 = [0, 2, 4, 7]

    def ln_stats(self):
        L = []
        SA = 16
        for i in range(8): L += [o(f"v_mov_b32 v{SA+i}, 0")]
        L += [o(f"s_mov_b32 s{T5}, 0x3f803f80")]
        def reads(kap):
            return [wvm(("x", kap))] + [ds(f"ds_read_b128 v[{RX+4*ks}:{RX+4*ks+3}], v{V_XA+(ks&3)} offset:{(ks//4)*4096}", ("xr", ks)) for ks in range(4*kap, 4*kap+4)]
        L += reads(0)
        for kap in range(9):
            if kap + 1 < 9: L += reads(kap + 1)
            L += self.stats_line(kap)
        return L
    def stats_line(self, kap):
        L = []
        SA = 16
        for ks in range(4*kap, 4*kap + 4):
            L += [wlg(("xr", ks))]
            for i in range(4):
                r = RX + 4*ks + i
                L += [o(f"v_dot2_f32_bf16 v{SA+i}, v{r}, s{T5}, v{SA+i}"),
                      o(f"v_dot2_f32_bf16 v{SA+4+i}, v{r}, v{r}, v{SA+4+i}")]
        return L

    def ln_stats_v(self, v, tracked, order):
        L = []
        SA = 16
        for i in range(8): L += [o(f"v_mov_b32 v{SA+i}, 0")]
        L += [o(f"s_mov_b32 s{T5}, 0x3f803f80")]
        def reads(pos):
            kap = order[pos]
            w = [wvmf(("x", pos))]
            return w + [o(f"ds_read_b128 v[{RX+4*ks}:{RX+4*ks+3}], v{V_XA+(ks&3)} offset:{(ks//4)*4096}") for ks in range(4*kap, 4*kap+4)]
        L += reads(0)
        L += self.stamp("x0")
        for pos in range(9):
            if pos == 4: L += self.stamp("x4")
            if pos + 1 < 9: L += reads(pos + 1)
            kap = order[pos]
            for n, ks in enumerate(range(4*kap, 4*kap + 4)):
                left = (3 - n) + (4 if pos + 1 < 9 else 0)
                L += [o(f"s_waitcnt lgkmcnt({left})")]
                for i in range(4):
                    r = RX + 4*ks + i
                    L += [o(f"v_dot2_f32_bf16 v{SA+i}, v{r}, s{T5}, v{SA+i}"),
                          o(f"v_dot2_f32_bf16 v{SA+4+i}, v{r}, v{r}, v{SA+4+i}")]
        return L

    def ln_stats_old(self):
        L = []
        SA = 16
        for i in range(8): L += [o(f"v_mov_b32 v{SA+i}, 0")]
        L += [o(f"s_mov_b32 s{T5}, 0x3f803f80")]
        def reads(kap):
            return [wvm(("x", kap))] + [ds(f"ds_read_b128 v[{RX+4*ks}:{RX+4*ks+3}], v{V_XA+(ks&3)} offset:{(ks//4)*4096}", ("xr", ks)) for ks in range(4*kap, 4*kap+4)]
        L += reads(0)
        for kap in range(9):
            if kap + 1 < 9: L += reads(kap + 1)
            for ks in range(4*kap, 4*kap + 4):
                L += [wlg(("xr", ks))]
                for i in range(4):
                    r = RX + 4*ks + i
                    L += [o(f"v_dot2_f32_bf16 v{SA+i}, v{r}, s{T5}, v{SA+i}"),
                          o(f"v_dot2_f32_bf16 v{SA+4+i}, v{r}, v{r}, v{SA+4+i}")]
        return L

    def ln_finish(self):
        SA = 16
        L = [o("s_nop 2"),
             o(f"v_add_f32 v{SA}, v{SA}, v{SA+1}"), o(f"v_add_f32 v{SA+2}, v{SA+2}, v{SA+3}"),
             o(f"v_add_f32 v{SA+4}, v{SA+4}, v{SA+5}"), o(f"v_add_f32 v{SA+6}, v{SA+6}, v{SA+7}"),
             o(f"v_add_f32 v24, v{SA}, v{SA+2}"), o(f"v_add_f32 v26, v{SA+4}, v{SA+6}"),
             o("v_mov_b32 v25, v24"), o("v_mov_b32 v27, v26"), o("s_nop 1"),
             o("v_permlane32_swap_b32 v24, v25"), o("v_permlane32_swap_b32 v26, v27"), o("s_nop 1"),
             o("v_add_f32 v24, v24, v25"), o("v_add_f32 v26, v26, v27"),
             o(f"s_mov_b32 s{T5}, {f2u(1.0/576):#x}"),
             o(f"v_mul_f32 v24, s{T5}, v24"), o(f"v_mul_f32 v26, s{T5}, v26"),
             o("v_fma_f32 v26, -v24, v24, v26"), o("v_max_f32 v26, 0, v26"),
             o("v_cvt_pk_bf16_f32 v24, v24, v26"),
             o("v_and_b32 v26, 0xffff0000, v24"), o("v_lshlrev_b32 v24, 16, v24"),
             o(f"v_xor_b32 v{V_NEGMU}, 0x80000000, v24")]
        for i in range(1, 16): L += [o(f"v_mov_b32 v{V_NEGMU+i}, v{V_NEGMU}")]
        L += [o(f"v_add_f32 v26, {f2u(1e-5):#x}, v26"),
              o("v_cvt_pk_bf16_f32 v26, v26, v26"), o("v_lshlrev_b32 v26, 16, v26"),
              o("v_sqrt_f32 v26, v26"), o("s_nop 0"),
              o("v_cvt_pk_bf16_f32 v26, v26, v26"), o("v_lshlrev_b32 v26, 16, v26"),
              o("v_rcp_f32 v27, v26"), o(f"v_mul_f32 v{V_D2}, v26, v26"),
              o(f"v_mul_f32 v{V_C0}, {f2u(C0):#x}, v27"), o("v_mul_f32 v28, v27, v27"), o("v_mul_f32 v28, v28, v27"),
              o(f"v_mul_f32 v{V_C1}, {f2u(C1):#x}, v28"),
              o("v_and_b32 v28, 31, v0"), o("v_lshlrev_b32 v28, 2, v28"), o(f"s_lshl_b32 s{T0}, s{S_W}, 12"), o(f"s_add_u32 s{T0}, s{T0}, {SPARE}"),
              o(f"v_add_u32 v28, s{T0}, v28"), ds("ds_write_b32 v28, v27", "rtab")]
        return L

    def seg_norm_h(self):
        M = []; frags = []
        def UBf(i):
            if i == 0: return 16
            if i % 2 == 0: return RX + 8*(i - 2)
            return (32, 48, 16)[((i - 1)//2) % 3]
        def nextuser(i):
            for k in range(i + 1, 18):
                if UBf(k) == UBf(i): return k
            return None
        posU = {}; posH = {}
        def U(i):
            b = UBf(i)
            M.append(dict(op=32, acc=f"v[{b}:{b+15}]", first=True, C=f"v[{V_NEGMU}:{V_NEGMU+15}]", A=f"v[{V_PERM}:{V_PERM+3}]", B=f"v[{RX+8*i}:{RX+8*i+3}]", need=-1))
            M.append(dict(op=32, acc=f"v[{b}:{b+15}]", first=False, A=f"v[{V_PERM+4}:{V_PERM+7}]", B=f"v[{RX+8*i+4}:{RX+8*i+7}]", need=-1))
            posU[i] = len(M) - 2
        def H(ks):
            f = len(frags); a = AF + 4*(f % NAF)
            frags.append(dict(reads=[f"ds_read_b128 a[{a}:{a+3}], v{V_XA+(ks&3)} offset:{(ks//4)*4096}"], use=len(M)))
            M.append(dict(op=32, acc=f"v[{V_HACC}:{V_HACC+15}]", first=(ks == 0), A=f"a[{AX+4*ks}:{AX+4*ks+3}]", B=f"a[{a}:{a+3}]", need=f))
            posH[ks] = len(M) - 1
        LAG = 5
        for i in range(18):
            U(i)
            if i >= LAG: H(2*(i-LAG)); H(2*(i-LAG)+1)
        for i in range(18 - LAG, 18): H(2*i); H(2*i+1)
        last = -1
        for m in M:
            if m["need"] < 0: m["need"] = last
            else: last = m["need"]
        g0 = frags[0]["use"] - 6
        M[g0].setdefault("before", []).extend([wvm("wz1")] + self.h_special(S_A, 2, "a") + [o("s_waitcnt lgkmcnt(0)"), o("s_barrier")])
        def setup(sl, head):
            sl.put(2, [o('s_nop 4')]); sl.put(3, [o('s_nop 4')])
            for i in range(18):
                b = UBf(i)
                ins = []
                for q in range(8):
                    t = 2 + 2*(i % 4) + (q % 2)
                    ins += [o(f"v_cvt_pk_bf16_f32 v{t}, v{b+2*q}, v{b+2*q+1}"), o(f"v_accvgpr_write_b32 a{AX+8*i+q}, v{t}")]
                start = posU[i] + 1 + 3
                end = min(posH[2*i] - 1, start + 11)
                if nextuser(i) is not None: end = min(end, posU[nextuser(i)])
                e = sl.stream(ins, start, end, spill=0)
                assert e < posH[2*i] - 0, (i, e, posH[2*i])
        return self.paced(M, frags, setup, 6)

    def h_epilogue(self, zreg, acc, rr, tb):
        L = []
        sg, f0 = tb + 8, tb + 9
        L += [G([o(f"s_cmp_lt_u32 s{zreg}, 9"), o(f"s_cselect_b32 s{S_ST0}, 1.0, -1.0")]), o(f"v_mov_b32 v{sg}, s{S_ST0}"),
              G([o(f"s_cmp_eq_u32 s{zreg}, 9"), o(f"s_cselect_b32 s{S_ST0}, 0, 99")]),
              G([o(f"v_and_b32 v{f0}, 31, v0"), o(f"v_cmp_eq_u32 vcc, s{S_ST0}, v{f0}"), o(f"v_mov_b32 v{tb+10}, 1.0"), o("v_nop"),
                 o(f"v_cndmask_b32 v{sg}, v{sg}, v{tb+10}, vcc")]),
              G([o(f"s_or_b32 s{S_ST0}, s{S_MT}, s{S_W}"), o(f"s_cmp_eq_u32 s{S_ST0}, 0"), o(f"s_cselect_b32 s{S_ST0}, 32, 0")]),
              G([o(f"v_cmp_gt_u32 vcc, s{S_ST0}, v0"), o(f"v_mov_b32 v{tb+10}, 0"), o("v_nop"),
                 o(f"v_cndmask_b32 v{f0}, v{sg}, v{tb+10}, vcc")])]
        L += [o(f"v_mul_f32 v{tb+11}, v{acc+8}, v{rr+8}")]
        for r in range(8):
            L += [o(f"v_mul_f32 v{rr+8+r}, v{rr+8+r}, v{f0 if r == 0 else sg}"),
                  o(f"v_mul_f32 v{tb+r}, v{acc+r}, v{rr+r}"),
                  o(f"v_fma_f32 v{tb+r}, v{acc+8+r}, v{rr+8+r}, v{tb+r}")]
        for i in range(4):
            L += [o(f"v_cvt_pk_bf16_f32 v{tb+12+i}, v{tb+2*i}, v{tb+2*i+1}")]
        L += [G([o("v_nop"), o("v_nop"), o(f"v_permlane32_swap_b32 v{tb+12}, v{tb+14}"), o(f"v_permlane32_swap_b32 v{tb+13}, v{tb+15}")]),
              G([o(f"s_mul_i32 s{S_ST0}, s{zreg}, {ZF_STRIDE}"), o(f"s_lshl_b32 s{S_ST1}, s{S_MT}, 2"), o(f"s_add_u32 s{S_ST1}, s{S_ST1}, s{S_W}")]),
              G([o(f"s_lshl_b32 s{S_ST1}, s{S_ST1}, 10"), o(f"s_add_u32 s{S_ST1}, s{S_ST1}, s{S_ST0}"), o(f"s_add_u32 s{S_ST1}, s{S_ST1}, {WS_ZF}")]),
              vm(f"buffer_store_dwordx4 v[{tb+12}:{tb+15}], v{V_L16}, s[{SR_WS}:{SR_WS+3}], s{S_ST1} offen sc1", "zst"),
              o(f"v_mov_b32 v{tb+1}, 0"), o(f"v_mov_b32 v{tb+2}, 0"), o(f"v_mov_b32 v{tb+3}, 0"),
              o(f"v_cvt_pk_bf16_f32 v{tb}, v{tb+11}, v{tb+1}"),
              G([o("v_cmp_gt_u32 vcc, 32, v0"), o("v_nop"), o("v_nop"), o(f"v_cndmask_b32 v{tb}, v{tb+1}, v{tb}, vcc")]),
              G([o(f"s_or_b32 s{S_ST1}, s{S_MT}, s{S_W}"), o(f"s_cmp_le_u32 s{zreg}, 9"), o(f"s_cselect_b32 s{S_C}, 0, 1")]),
              G([o(f"s_or_b32 s{S_ST1}, s{S_ST1}, s{S_C}"), o(f"s_cmp_eq_u32 s{S_ST1}, 0"), o(f"s_cselect_b32 s{S_C}, 0, {OOB:#x}")]),
              o(f"v_add_u32 v{tb+4}, s{S_C}, v{V_L16}"),
              o(f"s_add_u32 s{S_ST0}, s{S_ST0}, {WS_ZF + 64*1024}"),
              vm(f"buffer_store_dwordx4 v[{tb}:{tb+3}], v{tb+4}, s[{SR_WS}:{SR_WS+3}], s{S_ST0} offen sc1", "zst"),
              G([o(f"v_mov_b32 v{tb+12}, 0"), o(f"v_mov_b32 v{tb+13}, 0"), o(f"v_mov_b32 v{tb+14}, 0"), o(f"v_mov_b32 v{tb+15}, 0")]),
              vm(f"buffer_store_dwordx4 v[{tb+12}:{tb+15}], v{tb+4}, s[{SR_WS}:{SR_WS+3}], s{S_ST0} offen offset:1024 sc1", "zst")]
        return L

    def rr_reads(self, rr, tmp, n=1):
        return [o(f"v_lshrrev_b32 v{tmp}, 5, v0"), o(f"v_lshlrev_b32 v{tmp}, 4, v{tmp}"), o(f"s_lshl_b32 s{S_C}, s{S_W}, 12"),
                o(f"s_add_u32 s{S_C}, s{S_C}, {SPARE}"), o(f"v_add_u32 v{tmp}, s{S_C}, v{tmp}")] + \
               [ds(f"ds_read_b128 v[{rr+4*q}:{rr+4*q+3}], v{tmp} offset:{32*q}", ("rr", n)) for q in range(4)] + [wlg(("rr", n))]

    def h2_block(self):
        L = [o(f"s_cmp_lt_u32 s{S_J}, 2"), o("s_cbranch_scc0 L_noz2b")]
        B = [o(f"v_add_u32 v{64+i}, {SLOT}, v{V_XA+i}") for i in range(4)]
        B += [o(f"s_waitcnt vmcnt({18 if self.opts.get('bearly') else 20})"), o("s_barrier")]
        def rd(ks):
            a_ = AF + 4*(ks % NAF)
            return o(f"ds_read_b128 a[{a_}:{a_+3}], v{64+(ks&3)} offset:{(ks//4)*4096}")
        for ks in range(6): B += [rd(ks)]
        for k in range(36):
            a_ = AF + 4*(k % NAF)
            n_out = min(5, 35 - k)
            B += [o(f"s_waitcnt lgkmcnt({n_out})"), mf32("v[128:143]", f"a[{AX+4*k}:{AX+4*k+3}]", f"a[{a_}:{a_+3}]", "0" if k == 0 else "v[128:143]")]
            if k + 6 < 36: B += [rd(k + 6)]
        B += [raw("L_noz2b:"),
              o(f"s_cmp_lt_u32 s{S_J}, 2"), o(f"s_cselect_b32 s{S_B}, s{S_B}, 0x4000")]
        return L + B

    def dma_p1(self, sig, slot, tA=226, tB=227):
        groups = []
        if sig < 16:
            u, mat, kh = sig // 4, (sig // 2) % 2, sig % 2
            rs = SR_WG if mat == 0 else SR_WU
            for grp, ts in enumerate([[0,1,2,3],[0,1,2,3],[0]]):
                g = [o(f"s_add_u32 m0, s{S_L9}, {slot*SLOT + grp*4096}"),
                     o(f"s_add_u32 s{S_D0}, s{S_UB+u}, {(kh*288 + grp*32)*9216}")]
                for t in ts:
                    groups.append(g + [vm(f"buffer_load_dwordx4 v{V_DM+t}, s[{rs}:{rs+3}], s{S_D0} offen offset:{t*1024} lds", ("st", sig))])
                    g = []
        else:
            rs = SR_WG if sig == 16 else SR_WU
            for grp, ts in enumerate([[0,1,2,3],[0,1,2,3],[0]]):
                g = []
                if sig == 16 and grp == 0:
                    groups.append([o(f"v_lshrrev_b32 v{tA}, 2, v0"), o(f"v_and_b32 v{tB}, 3, v0"), o(f"v_lshlrev_b32 v{tB}, 4, v{tB}")])
                    groups.append([o(f"v_mul_u32_u24 v{tA}, 9216, v{tA}"), o(f"v_add_u32 v{V_DM}, v{tA}, v{tB}")] +
                                  [o(f"v_add_u32 v{V_DM+t}, {t*(16*9216-1024)}, v{V_DM}") for t in range(1, 4)])
                g += [o(f"s_add_u32 m0, s{S_L9}, {slot*SLOT + grp*4096}"),
                      o(f"s_add_u32 s{S_D0}, s{S_UB+4}, {grp*64*9216}")]
                for t in ts:
                    groups.append(g + [vm(f"buffer_load_dwordx4 v{V_DM+t}, s[{rs}:{rs+3}], s{S_D0} offen offset:{t*1024} lds", ("st", sig))])
                    g = []
        return groups

    def dma_cs(self, mat, piece, slot, tag, nop=False):
        rs = SR_CS if mat == 0 else SR_SS
        groups = []
        for l in range(2):
            line = 2*piece + l
            for rho in range(4):
                groups.append([o(f"s_add_u32 m0, s{S_A}, {slot*SLOT + (4*l+rho)*1024 - 128*line}")] + ([o("s_nop 0")] if nop else []) + [
                               vm(f"buffer_load_dwordx4 v{V_SD+rho}, s[{rs}:{rs+3}], 0 offen offset:{128*line} lds", tag)])
        return groups
    def dma_cx(self, tag):
        groups = []
        for rho in range(4):
            groups.append([o(f"s_add_u32 m0, s{S_B}, {SPARE + rho*1024 - 512}"),
                           vm(f"buffer_load_dwordx4 v{V_SD+rho}, s[{SR_CS}:{SR_CS+3}], 0 offen offset:512 lds", tag)])
        return groups

    def dma_p2(self, st, slot, first128, tA, tB, tC):
        u, who = st
        groups = []
        if u < 4:
            tbl = S_N0 if who == "own" else S_N1
            if first128:
                groups.append([o(f"v_lshrrev_b32 v{tA}, 3, v0"), o(f"v_and_b32 v{tB}, 7, v0"), o(f"v_bfe_u32 v{tC}, v0, 4, 1")])
                groups.append([o(f"v_lshlrev_b32 v{tC}, 2, v{tC}"), o(f"v_xor_b32 v{tB}, v{tB}, v{tC}"), o(f"v_lshlrev_b32 v{tB}, 4, v{tB}")])
                groups.append([o(f"s_mul_i32 s{S_WD}, s{S_W}, {8*1152}")])
                groups.append([o(f"v_mul_u32_u24 v{tA}, 1152, v{tA}"), o(f"v_add_u32 v{V_DM}, v{tA}, v{tB}"), o(f"v_add_u32 v{V_DM}, s{S_WD}, v{V_DM}")])
                groups.append([o(f"s_lshl_b32 s{S_WD}, s{S_W}, 10")])
            for ip in range(9):
                groups.append([o(f"s_add_u32 m0, s{S_WD}, {slot*SLOT + ip*4096}"),
                               o(f"s_add_u32 s{S_D0}, s{tbl+ip}, s{S_CU+u}"),
                               vm(f"buffer_load_dwordx4 v{V_DM}, s[{SR_WD}:{SR_WD+3}], s{S_D0} offen lds", ("s2", st))])
        else:
            groups.append([o(f"v_lshrrev_b32 v{tA}, 2, v0"), o(f"v_and_b32 v{tB}, 3, v0"), o(f"v_lshlrev_b32 v{tB}, 4, v{tB}")])
            groups.append([o(f"v_mul_u32_u24 v{tA}, 1152, v{tA}"), o(f"v_add_u32 v{V_DM+1}, v{tA}, v{tB}")])
            for ip in range(9):
                ca, cb = 2*ip, 2*ip + 1
                ra = (S_N0 + ca) if ca < 9 else (S_N1 + ca - 9)
                rb = (S_N0 + cb) if cb < 9 else (S_N1 + cb - 9)
                groups.append([o(f"s_cmp_lt_u32 s{S_W}, 2"), o(f"s_cselect_b32 s{S_D0}, s{ra}, s{rb}"),
                               o(f"s_add_u32 s{S_D0}, s{S_D0}, s{S_CU+4}"), o(f"s_add_u32 s{S_D0}, s{S_D0}, s{S_C}"),
                               o(f"s_add_u32 m0, s{S_WD}, {slot*SLOT + ip*4096}")])
                groups.append([vm(f"buffer_load_dwordx4 v{V_DM+1}, s[{SR_WD}:{SR_WD+3}], s{S_D0} offen lds", ("s2", st))])
        return groups

    def geglu(self, c, toff=0):
        if c < 8: g, u = GA[(c//2) % 2][c % 2], UA[(c//2) % 2][c % 2]
        else: g, u = GA[0][0], UA[0][0]
        L = []
        for p in range(8):
            r0, r1 = 2*p, 2*p + 1
            b = TMP + 4*(p % 2) + toff
            xa, xb, ya, yb = b, b+1, b+2, b+3
            L += [o(f"v_mul_f32 v{xa}, v{g+r0}, v{g+r0}"), o(f"v_mul_f32 v{xb}, v{g+r1}, v{g+r1}"),
                  o(f"v_fma_f32 v{xa}, v{xa}, v{V_C1}, v{V_C0}"), o(f"v_fma_f32 v{xb}, v{xb}, v{V_C1}, v{V_C0}"),
                  o(f"v_mul_f32 v{xa}, v{g+r0}, v{xa}"), o(f"v_mul_f32 v{xb}, v{g+r1}, v{xb}"),
                  o(f"v_exp_f32 v{xa}, v{xa}"), o(f"v_exp_f32 v{xb}, v{xb}"),
                  o(f"v_mul_f32 v{ya}, v{g+r0}, v{u+r0}"), o(f"v_mul_f32 v{yb}, v{g+r1}, v{u+r1}"),
                  o(f"v_fma_f32 v{xa}, v{xa}, v{V_D2}, v{V_D2}"), o(f"v_fma_f32 v{xb}, v{xb}, v{V_D2}, v{V_D2}"),
                  o(f"v_rcp_f32 v{xa}, v{xa}"), o(f"v_rcp_f32 v{xb}, v{xb}"),
                  o(f"v_mul_f32 v{ya}, v{ya}, v{xa}"), o(f"v_mul_f32 v{yb}, v{yb}, v{xb}"),
                  o(f"v_cvt_pk_bf16_f32 v{HF + 8*c + p}, v{ya}, v{yb}")]
        return L
    def geglu_sig(self, c, toff=0):
        g = GA[(c//2) % 2][c % 2] if c < 8 else GA[0][0]
        L = []
        for p in range(8):
            r0, r1 = 2*p, 2*p + 1
            b = TMP + 2*(p % 2) + toff
            xa, xb = b, b + 1
            L += [o(f"v_mul_f32 v{xa}, v{g+r0}, v{g+r0}"), o(f"v_mul_f32 v{xb}, v{g+r1}, v{g+r1}"),
                  o(f"v_fma_f32 v{xa}, v{xa}, v{V_C1}, v{V_C0}"), o(f"v_fma_f32 v{xb}, v{xb}, v{V_C1}, v{V_C0}"),
                  o(f"v_mul_f32 v{xa}, v{g+r0}, v{xa}"), o(f"v_mul_f32 v{xb}, v{g+r1}, v{xb}"),
                  o(f"v_exp_f32 v{xa}, v{xa}"), o(f"v_exp_f32 v{xb}, v{xb}"), o("v_nop") if False else None,
                  o(f"v_fma_f32 v{xa}, v{xa}, v{V_D2}, v{V_D2}"), o(f"v_fma_f32 v{xb}, v{xb}, v{V_D2}, v{V_D2}"),
                  o(f"v_rcp_f32 v{xa}, v{xa}"), o(f"v_rcp_f32 v{xb}, v{xb}"),
                  o(f"v_mul_f32 v{g+r0}, v{g+r0}, v{xa}"), o(f"v_mul_f32 v{g+r1}, v{g+r1}, v{xb}")]
        return [i for i in L if i is not None]
    def geglu_fin(self, c, toff=0):
        if c < 8: g, u = GA[(c//2) % 2][c % 2], UA[(c//2) % 2][c % 2]
        else: g, u = GA[0][0], UA[0][0]
        L = []
        for p in range(8):
            r0, r1 = 2*p, 2*p + 1
            L += [o(f"v_mul_f32 v{g+r0}, v{g+r0}, v{u+r0}"), o(f"v_mul_f32 v{g+r1}, v{g+r1}, v{u+r1}"),
                  o(f"v_cvt_pk_bf16_f32 v{HF + 8*c + p}, v{g+r0}, v{g+r1}")]
        return L
    def hstore(self, c):
        st = S_ST0 + (c % 2)
        return [o(f"s_add_u32 s{st}, s{S_HB}, {2*c*1024}")] + self.dstore(
                [f"buffer_store_dwordx4 v[{HF+8*c}:{HF+8*c+3}], v{V_L16}, s[{SR_WS}:{SR_WS+3}], s{st} offen",
                 f"buffer_store_dwordx4 v[{HF+8*c+4}:{HF+8*c+7}], v{V_L16}, s[{SR_WS}:{SR_WS+3}], s{st} offen offset:1024"], "hst", True)

    def s_setup(self):
        a, b, c, d = V_SX, V_YC[0], V_YC[1], V_YC[2]
        L = []
        L += [G([o(f"s_lshr_b32 s{S_TAU}, s{S_J}, 3"), o(f"s_lshl_b32 s{S_A}, s{S_MT}, 1"), o(f"s_add_u32 s{S_TAU}, s{S_TAU}, s{S_A}")]),
              G([o(f"s_lshl_b32 s{S_A}, s{S_W}, 13"), o(f"s_lshl_b32 s{S_B}, s{S_W}, 12"),
                 o(f"s_lshl_b32 s{S_ZB}, s{S_W}, 14")]), o(f"s_add_u32 s{S_ZB}, s{S_ZB}, {WS_ZF}")]
        L += [o(f"v_lshrrev_b32 v{a}, 3, v0"), o(f"v_and_b32 v{b}, 7, v0"), o(f"v_lshrrev_b32 v{c}, 1, v{a}"), o(f"v_xor_b32 v{b}, v{b}, v{c}"),
              o(f"v_lshlrev_b32 v{b}, 4, v{b}"), o(f"v_xor_b32 v{c}, 64, v{b}"),
              o(f"s_lshl_b32 s{S_C}, s{S_TAU}, 5"), o(f"v_add_u32 v{a}, s{S_C}, v{a}"), o(f"v_lshlrev_b32 v{a}, 12, v{a}"),
              o(f"s_lshl_b32 s{S_C}, s{S_W}, 9"), o(f"v_add_u32 v{a}, s{S_C}, v{a}"),
              o(f"v_add_u32 v{V_SD}, v{a}, v{b}"), o(f"v_add_u32 v{V_SD+1}, v{a}, v{c}"), o(f"v_add_u32 v{V_SD+1}, 32768, v{V_SD+1}"),
              o(f"v_add_u32 v{V_SD+2}, 65536, v{V_SD}"), o(f"v_add_u32 v{V_SD+3}, 65536, v{V_SD+1}")]
        return L
    def s_setup2(self):
        a, b, c, d = V_SX, V_YC[0], V_YC[1], V_YC[2]
        L = []
        L += [o(f"v_and_b32 v{a}, 15, v0"), o(f"v_lshrrev_b32 v{b}, 4, v0"), o(f"v_bfe_u32 v{c}, v0, 1, 3"), o(f"v_xor_b32 v{c}, v{c}, v{b}"),
              o(f"v_lshlrev_b32 v{c}, 4, v{c}"), o(f"v_lshlrev_b32 v{a}, 7, v{a}"), o(f"v_add_u32 v{a}, v{a}, v{c}"),
              o(f"v_add_u32 v{V_SA}, s{S_A}, v{a}"), o(f"v_xor_b32 v{V_SA+1}, 64, v{V_SA}"),
              o(f"v_add_u32 v{V_SA+2}, {2*SLOT}, v{V_SA}"), o(f"v_add_u32 v{V_SA+3}, {2*SLOT}, v{V_SA+1}"),
              o(f"v_add_u32 v{a}, s{S_B}, v{a}"), o(f"v_add_u32 v{V_SX}, {SPARE}, v{a}")]
        return L
    def s_setup3(self, t0, t1, t2, t3):
        L = []
        L += [o(f"v_and_b32 v{t0}, 15, v0"), o(f"v_lshrrev_b32 v{t1}, 4, v0"),
              o(f"v_and_b32 v{t2}, 1, v{t1}"), o(f"v_lshlrev_b32 v{t2}, 9, v{t2}"),
              o(f"v_lshrrev_b32 v{t1}, 1, v{t1}"), o(f"v_lshlrev_b32 v{t1}, 10, v{t1}"), o(f"v_add_u32 v{t2}, v{t2}, v{t1}"),
              G([o(f"s_and_b32 s{S_C}, s{S_J}, 7"), o(f"s_mul_i32 s{S_C}, s{S_C}, 36")]),
              o(f"v_add_u32 v{t0}, s{S_C}, v{t0}")]
        for ss in range(3):
            pa, qa, yc = V_ZP + ss, V_ZQ + ss, V_YC[ss]
            L += [o(f"v_lshrrev_b32 v{t1}, 5, v{t0}"), o(f"v_mul_u32_u24 v{t1}, {ZF_STRIDE}, v{t1}"),
                  o(f"v_and_b32 v{t3}, 31, v{t0}"), o(f"v_lshlrev_b32 v{t3}, 4, v{t3}"), o(f"v_add_u32 v{t1}, v{t1}, v{t3}"),
                  o(f"v_add_u32 v{t1}, v{t1}, v{t2}"),
                  o(f"v_subrev_u32 v{t3}, s{S_C}, v{t0}"),
                  o(f"v_lshlrev_b32 v{yc}, 2, v{t0}"), o(f"v_mov_b32 v{qa}, {OOB:#x}"), o(f"v_mov_b32 v{pa}, {OOB:#x}"),
                  G([o(f"v_cmp_gt_u32 vcc, 36, v{t3}"), o("v_nop"), o("v_nop"), o(f"v_cndmask_b32 v{pa}, v{pa}, v{t1}, vcc")]),
                  o(f"v_add_u32 v{t3}, {9*ZF_STRIDE}, v{t1}"),
                  G([o(f"v_cndmask_b32 v{qa}, v{qa}, v{t3}, vcc")]),
                  G([o(f"v_cmp_eq_u32 vcc, 0x120, v{t0}"), o("v_nop"), o("v_nop"), o(f"v_cndmask_b32 v{pa}, v{pa}, v{t1}, vcc")]),
                  G([o(f"v_mov_b32 v{t3}, {OOB:#x}"), o(f"v_cmp_eq_u32 vcc, 0, v{t0}"), o("v_nop"), o("v_nop"), o(f"v_cndmask_b32 v{qa}, v{qa}, v{t3}, vcc")]),
                  G([o(f"v_cmp_eq_u32 vcc, v{t3}, v{pa}"), o("v_nop"), o("v_nop"), o(f"v_cndmask_b32 v{yc}, v{yc}, v{t3}, vcc")]),
                  o(f"v_add_u32 v{t0}, 16, v{t0}")]
        return L

    def phase2_setup(self):
        L = []
        L += [G([o(f"s_xor_b32 s{T6}, s{S_J}, 1"), o(f"s_and_b32 s{T2}, s{T6}, 1"), o(f"s_mul_i32 s{T0}, s{T6}, 288")]),
              G([o(f"s_mul_i32 s{T1}, s{T2}, 224"), o(f"s_add_u32 s{T1}, s{T0}, s{T1}")]),
              G([o(f"s_cmp_eq_u32 s{T2}, 0"), o(f"s_cselect_b32 s{T3}, 64, -64"), o(f"s_cselect_b32 s{T4}, 256, 0")]),
              o(f"s_add_u32 s{T4}, s{T4}, s{T0}")]
        for u in range(4):
            L += [G([o(f"s_mul_i32 s{T5}, s{T3}, {u}"), o(f"s_add_u32 s{T5}, s{T5}, s{T1}")]),
                  G([o(f"s_mul_i32 s{S_N1+2*u}, s{T5}, 1152"), o(f"s_add_u32 s{S_N1+2*u+1}, s{S_N1+2*u}, {32*1152}")])]
        L += [o(f"s_mul_i32 s{S_N1+8}, s{T4}, 1152")]
        L += [G([o(f"s_and_b32 s{T2}, s{S_J}, 1"), o(f"s_mul_i32 s{T0}, s{T2}, 640"), o(f"s_lshr_b32 s{T1}, s{S_J}, 2")])]
        for k in range(4):
            L += [G([o(f"s_add_u32 s{T3}, s{T1}, {(k+1) % 4 if k < 3 else 0}"), o(f"s_and_b32 s{T3}, s{T3}, 3"), o(f"s_lshl_b32 s{T3}, s{T3}, 7")]),
                  o(f"s_add_u32 s{S_CU+k}, s{T0}, s{T3}")]
        L += [G([o(f"s_cmp_eq_u32 s{T2}, 0"), o(f"s_cselect_b32 s{S_CU+4}, 0, 64")]), o(f"s_add_u32 s{S_CU+4}, s{S_CU+4}, 512")]
        return L

    def p2q_setup(self):
        L = [G([o(f"s_and_b32 s{T2}, s{S_J}, 1"), o(f"s_mul_i32 s{T3}, s{T2}, 10"), o(f"s_lshr_b32 s{T4}, s{S_J}, 2")])]
        for k, dst in enumerate(S_QU):
            L += [G([o(f"s_add_u32 s{T5}, s{T4}, {k+1}"), o(f"s_and_b32 s{T5}, s{T5}, 3"), o(f"s_lshl_b32 s{T5}, s{T5}, 1")]),
                  G([o(f"s_add_u32 s{T5}, s{T5}, s{T3}"), o(f"s_lshl_b32 s{T5}, s{T5}, 11"), o(f"s_add_u32 s{dst}, s{T5}, s{S_PB}")])]
        L += [G([o(f"s_lshl_b32 s{T5}, s{T4}, 1"), o(f"s_add_u32 s{T5}, s{T5}, s{T3}"), o(f"s_bfe_u32 s{T4}, s{S_J}, 0x10001")]),
              G([o(f"s_add_u32 s{S_TO}, s{T5}, s{T4}"), o(f"s_xor_b32 s{T4}, s{T4}, 1"), o(f"s_add_u32 s{T5}, s{T5}, s{T4}")]),
              G([o(f"s_lshl_b32 s{T5}, s{T5}, 11"), o(f"s_add_u32 s{S_QN}, s{T5}, s{S_PB}")]),
              G([o(f"s_add_u32 s{T5}, s{T2}, 8"), o(f"s_lshl_b32 s{T5}, s{T5}, 11"), o(f"s_add_u32 s{S_Q8}, s{T5}, s{S_PB}")])]
        return L

    def main(self):
        DIST = self.opts.get("dist", 7)
        M = []; frags = []
        fu = {}; lu = {}
        def addfrag(reads_fn, use, dist=None, stage=None):
            f = len(frags); a = AF + 4*(f % NAF)
            fr = dict(reads=reads_fn(a), use=use)
            if dist: fr["dist"] = dist
            frags.append(fr)
            if stage is not None and stage not in fu:
                fu[stage] = use; fr["stage_first"] = stage
            return f, a
        def tr(base, off, off2): return lambda a: [f"ds_read_b64_tr_b16 a[{a}:{a+1}], v{base} offset:{off}", f"ds_read_b64_tr_b16 a[{a+2}:{a+3}], v{base} offset:{off+off2}"]
        for u in range(4):
            for mat in range(2):
                for kh in range(2):
                    sig = 4*u + 2*mat + kh
                    for half in range(2):
                        acc = (GA if mat == 0 else UA)[u % 2][half]
                        for kk in range(18):
                            ks = kh*18 + kk; g = len(M)
                            f, a = addfrag(tr((V_RA if half == 0 else V_RB) + sig % 4, kk*2048, 512), g, stage=("st", sig))
                            M.append(dict(op=32, acc=f"v[{acc}:{acc+15}]", first=(ks == 0), A=f"a[{a}:{a+3}]", B=f"a[{AX+4*ks}:{AX+4*ks+3}]", need=f))
                            lu[("st", sig)] = g
        for mat in range(2):
            acc = (GA if mat == 0 else UA)[0][0]
            for ks in range(36):
                g = len(M)
                f, a = addfrag(tr(V_R8 + mat, ks*1024, 256), g, stage=("st", 16+mat))
                M.append(dict(op=32, acc=f"v[{acc}:{acc+15}]", first=(ks == 0), A=f"a[{a}:{a+3}]", B=f"a[{AX+4*ks}:{AX+4*ks+3}]", need=f))
                lu[("st", 16+mat)] = g
        S0 = len(M)
        def accP(tt, ss):
            i = tt*3 + ss
            return 48 + 4*i if i < 4 else 112 + 4*(i - 4)
        def accQ(tt, ss):
            i = tt*3 + ss
            return 64 + 4*i if i < 4 else 128 + 4*(i - 4)
        def zP(ss, k):
            i = k*3 + ss
            if i < 20: return f"a[{AZ+4*i}:{AZ+4*i+3}]"
            i -= 20
            r = 32 + 4*i if i < 4 else 96 + 4*(i - 4)
            return f"v[{r}:{r+3}]"
        def zQ(ss, k):
            i = k*3 + ss
            return f"a[{4*i}:{4*i+3}]"
        self.zP, self.zQ, self.accP, self.accQ = zP, zQ, accP, accQ
        for k in range(9):
            for tt in range(2):
                g = len(M)
                if k < 8:
                    line = k >> 1; piece = line >> 1; l = line & 1
                    base = V_SA + 2 + (k & 1); off = piece*SLOT + l*4096 + tt*2048
                    st = ("C", piece)
                else:
                    base = V_SX; off = tt*2048; st = ("CX", 0)
                f, a = addfrag(lambda a, base=base, off=off: [f"ds_read_b128 a[{a}:{a+3}], v{base} offset:{off}"], g, dist=8, stage=st)
                for ss in range(3):
                    ac = accP(tt, ss)
                    M.append(dict(op=16, acc=f"v[{ac}:{ac+3}]", first=(k == 0), A=f"a[{a}:{a+3}]", B=zP(ss, k), need=f))
                    lu[st] = len(M) - 1
        SP_END = len(M)
        for k in range(8):
            for tt in range(2):
                g = len(M)
                line = k >> 1; piece = line >> 1; l = line & 1
                base = V_SA + (k & 1); off = piece*SLOT + l*4096 + tt*2048
                st = ("S", piece)
                f, a = addfrag(lambda a, base=base, off=off: [f"ds_read_b128 a[{a}:{a+3}], v{base} offset:{off}"], g, dist=8, stage=st)
                for ss in range(3):
                    ac = accQ(tt, ss)
                    M.append(dict(op=16, acc=f"v[{ac}:{ac+3}]", first=(k == 0), A=f"a[{a}:{a+3}]", B=zQ(ss, k), need=f))
                    lu[st] = len(M) - 1
        P2_0 = len(M)
        stages = [(0, "own"), (1, "own"), (2, "own"), (0, "par"), (1, "par"), (2, "par"), (4, "both"), (3, "own"), (3, "par")]
        slot_order = [2, 0, 3, 2, 1, 0, 3, 2, 1]
        slot_of = {st: slot_order[i] for i, st in enumerate(stages)}
        ACC = {0: [32, 96], 1: [16, 80], 2: [48, 112], 3: [64, 128], 4: [32]}
        tile_last = {}
        def p2run(st, half, base, nk=18):
            u, who = st
            acc = ACC[u][half]
            for k in range(18):
                g = len(M)
                f, a = addfrag(tr(base, k*2048, 1024), g, stage=("s2", st))
                M.append(dict(op=32, acc=f"v[{acc}:{acc+15}]", first=(who == "own" and k == 0), A=f"a[{a}:{a+3}]",
                              B=(f"v[{HF+4*k}:{HF+4*k+3}]" if who == "own" else f"a[{AZ+4*k}:{AZ+4*k+3}]"), need=f))
                tile_last[(u, half)] = g; lu[("s2", st)] = g
        for st in stages[:7]:
            u, who = st; slot = slot_of[st]
            if u < 4:
                for half in range(2): p2run(st, half, (V_RA if half == 0 else V_RB) + slot)
            else:
                acc = ACC[4][0]
                for k in range(36):
                    g = len(M)
                    f, a = addfrag(tr(V_R8, k*1024, 512), g, stage=("s2", st))
                    M.append(dict(op=32, acc=f"v[{acc}:{acc+15}]", first=(k == 0), A=f"a[{a}:{a+3}]",
                                  B=(f"v[{HF+4*k}:{HF+4*k+3}]" if k < 18 else f"a[{AZ+4*(k-18)}:{AZ+4*(k-18)+3}]"), need=f))
                    tile_last[(4, 0)] = g; lu[("s2", st)] = g
        p2run((3, "own"), 0, V_LB); p2run((3, "par"), 0, V_LB + 1); p2run((3, "own"), 1, V_LB + 2); p2run((3, "par"), 1, V_LB + 3)
        N = len(M)
        last_use = {}
        for g, m in enumerate(M): last_use[m["need"]] = g
        for f, fr in enumerate(frags):
            d = fr.get("dist", DIST)
            t = fr["use"] - d
            if f >= NAF and t < last_use[f - NAF]: fr["dist"] = fr["use"] - last_use[f - NAF]
        for fr in frags:
            st = fr.get("stage_first")
            if st is None: continue
            if st[0] in ("st", "s2"):
                tags = [st]
                if st == ("st", 3): tags += ["zst", "flinit"]
                if st == ("st", 17): tags += ["hst"]
                fr["pre"] = [wvm(tags), o("s_barrier")]
                if st == ("st", 17):
                    fr["pre"] += [vm(f"buffer_store_dword v{V_ONE}, v{V_ONE0}, s[{SR_WS}:{SR_WS+3}], s{S_FL} offen sc1", "fl1")]
                if st == ("st", 3):
                    fr["pre"] += [vm(f"buffer_atomic_add v{V_ONE}, v{V_ONE0}, s[{SR_HZ}:{SR_HZ+3}], 0 offen offset:128 sc1", "zpub")]
            else:
                fr["pre"] = [wvm(("cs", st))]
        stamps = {0: "p1", 144: "u1", 288: "u2", 432: "u3", 576: "u4", S0: "S0", SP_END: "SP", P2_0: "p2", P2_0 + 108: "p2b", P2_0 + 216: "p2c"}
        if self.opts.get("hdiag") == 2:
            stamps = {0: "p1", 144: "u1", 288: "u2", 432: "u3", 576: "u4", S0: "S0", P2_0: "p2", P2_0 + 108: "p2b", P2_0 + 216: "p2c"}
        if self.opts.get("fine"):
            stamps = {0: "p1", 432: "u3", 576: "u4", 594: "s594", 612: "s612", 630: "s630", S0: "S0", 660: "s660", 672: "s672", 684: "s684", SP_END: "SP", 714: "s714", 726: "s726", 738: "s738", P2_0: "p2", P2_0 + 36: "a36", P2_0+72: "a72", P2_0 + 108: "p2b", P2_0 + 216: "p2c"}
        for g, name in stamps.items():
            if self.diag: M[g].setdefault("before", []).extend(self.stamp(name))
        self.tail2 = []

        def setup(sl, head):
            rbar = {st: fu[st] - DIST for st in fu if st[0] in ("st", "s2")}
            for b in rbar.values():
                if b >= 0: sl.budget[b] = 4
            def fbar(t):
                sl.put(t, [o("s_barrier")])
            busy = {"end": -1}
            def place(groups, start, step=1):
                s = max(start, busy["end"] + 1)
                for grp in groups:
                    sl.put(s, grp); busy["end"] = s; s += step
                return s
            sl.put(2, [o(f"v_mov_b32 v{V_ONE}, 1")])
            eh = sl.stream(self.rr_reads(48, 112) + self.h_epilogue(S_A, V_HACC, 48, 64), 12, 46)
            eh = sl.stream(self.rr_reads(48, 112, 2) + self.h_epilogue(S_B, 128, 48, 64), eh + 1, eh + 34)
            assert eh < 92, eh
            for mat in range(2):
                slot = (16 + mat) % 4
                ins = [o("v_lshrrev_b32 v224, 5, v0"), o("v_lshlrev_b32 v224, 9, v224"),
                       o("v_bfe_u32 v225, v0, 2, 2"), o("v_lshlrev_b32 v225, 6, v225"), o("v_add_u32 v224, v224, v225"),
                       o("v_bfe_u32 v225, v0, 4, 1"), o("v_lshlrev_b32 v225, 5, v225"), o("v_add_u32 v224, v224, v225"),
                       o("v_and_b32 v225, 3, v0"), o("v_lshlrev_b32 v225, 3, v225"), o("v_add_u32 v224, v224, v225"),
                       o(f"v_add_u32 v{V_R8+mat}, {slot*SLOT}, v224")]
                sl.stream(ins, 70 + 20*mat, 88 + 20*mat)
            dma_end = {}
            for sig in range(2, 18):
                grps = self.dma_p1(sig, sig % 4)
                if sig == 2: start = 0
                elif sig == 3: start = 9*self.opts.get('dstep', 2)
                elif self.opts.get("fb", 1):
                    t = lu[("st", sig - 4)]; fbar(t); start = t + 1
                else:
                    start = min(b for b in rbar.values() if b >= lu[("st", sig - 4)]) + 1
                dma_end[sig] = place(grps, start, self.opts.get("dstep", 2))
            self.paced_prefetch(sl, dma_end)
            self.mode_check(sl, M)
            sl.put(590, [G([o(f"s_lshl_b32 s{S_FL}, s{S_LID}, 7"), o(f"s_add_u32 s{S_FL}, s{S_FL}, {WS_FLAG}")])])
            sl.put(592, [o(f"v_mov_b32 v{V_ONE}, 1")])
            e0 = sl.stream(self.geglu(0), 145, 211)
            sl.stream(self.hstore(0) + self.geglu(1) + self.hstore(1), max(e0 + 1, 212), 287)
            for u in range(1, 3):
                sl.stream(self.geglu(2*u) + self.hstore(2*u) + self.geglu(2*u+1) + self.hstore(2*u+1), 144*(u+1) + 1, 144*(u+2) - 1)
            es = sl.stream(self.s_setup(), eh + 1, eh + 11)
            es = sl.stream(self.s_setup2(), es + 1, es + 10)
            assert es < 118, es
            sl.stream(self.s_setup3(224, 225, 226, 227), max(es + 1, 112), 143)
            ep = sl.stream(self.phase2_setup(), 66, 100)
            assert ep < 110
            t = lu[("st", 14)]; fbar(t); place(self.dma_cs(0, 0, 2, ("cs", ("C", 0))), t + 1, 2)
            t = lu[("st", 15)]; fbar(t); e = place(self.dma_cs(0, 1, 3, ("cs", ("C", 1))), t + 1, 2)
            place(self.dma_cx(("cs", ("CX", 0))), e, 2)
            t = lu[("st", 16)]; fbar(t); place(self.dma_cs(1, 0, 0, ("cs", ("S", 0))), t + 1, 2)
            t = lu[("st", 17)]; fbar(t); place(self.dma_cs(1, 1, 1, ("cs", ("S", 1)), True), t + 1, 1)
            self.main_rest(sl, M, fu, lu, stages, slot_of, ACC, tile_last, S0, SP_END, P2_0, N, fbar, place)
        L = self.paced(M, frags, setup, DIST)
        return L + self.tail2

    def mode_check(self, sl, M):
        if not self.opts.get("local", 0): return
        t = 0
        ld = f"buffer_load_dwordx2 v[222:223], off, s[{SR_HZ}:{SR_HZ+3}], s{T5} sc1"
        ld = f"buffer_load_dwordx2 v[230:231], off, s[{SR_HZ}:{SR_HZ+3}], s{S_XC} sc1"
        if self.opts.get("cfg", 0) == 0:
            ld = f"buffer_load_dword v230, off, s[{SR_HZ}:{SR_HZ+3}], s{S_XC} sc1"
            sl.put(140, [G([o(f"s_lshr_b32 s{S_XC}, s{S_LID}, 3"), o(f"s_lshl_b32 s{S_XC}, s{S_XC}, 2")])])
        else:
            sl.put(140, [G([o(f"s_lshl_b32 s{S_XC}, s{S_MT}, 3")])])
        sl.put(143, [vm(ld, "xcc")])
        sl.put(205, [wvm("xcc")])
        sl.put(206, [o(f"v_readfirstlane_b32 s{T6}, v230"), o(f"v_readfirstlane_b32 s{T7}, v231")])
        def nz(r, tmp):
            return [o(f"s_lshr_b32 s{tmp}, s{r}, 1"), o(f"s_or_b32 s{tmp}, s{tmp}, s{r}"), o(f"s_lshr_b32 s{T3}, s{tmp}, 2"), o(f"s_or_b32 s{tmp}, s{tmp}, s{T3}"),
                    o(f"s_and_b32 s{tmp}, s{tmp}, 0x11111111")]
        chk = nz(T6, T1) + nz(T7, T2) + [o(f"s_and_b32 s{T1}, s{T1}, s{T2}"), o(f"s_cmp_eq_u32 s{T1}, 0x11111111")]
        if self.opts.get("cfg", 0) == 0:
            ld = f"buffer_load_dword v230, off, s[{SR_HZ}:{SR_HZ+3}], s{S_XC} sc1"
            ext = [o(f"s_and_b32 s{T1}, s{S_LID}, 6"), o(f"s_lshl_b32 s{T1}, s{T1}, 2"), o(f"s_lshr_b32 s{T2}, s{T6}, s{T1}"),
                   o(f"s_and_b32 s{T3}, s{T2}, 15"), o(f"s_bfe_u32 s{T2}, s{T2}, 0x40004"),
                   o(f"s_min_u32 s{T1}, s{T2}, s{T3}"), o(f"s_cmp_ge_u32 s{T1}, 1")]
            blk = ext + [o("s_cbranch_scc1 L_xc_ok")] + self.spin("L_xc", [o(ld)], [o(f"v_readfirstlane_b32 s{T6}, v230"), o("s_nop 3")] + ext)
            blk += [o(f"s_cmp_eq_u32 s{T2}, s{T3}"), o(f"s_cselect_b32 s{S_MODE}, 1, 0")]
            if self.opts.get("forceglobal"): blk += [o(f"s_mov_b32 s{S_MODE}, 0")]
            M[209].setdefault("before", []).extend(blk)
            return
        blk = chk + [o("s_cbranch_scc1 L_xc_ok")] + self.spin("L_xc", [o(ld)],
              [o(f"v_readfirstlane_b32 s{T6}, v230"), o(f"v_readfirstlane_b32 s{T7}, v231"), o("s_nop 3")] + chk)
        blk += [o(f"s_and_b32 s{T1}, s{T6}, 15"), o(f"s_mul_i32 s{T1}, s{T1}, 0x11111111"),
                o(f"s_cmp_eq_u32 s{T1}, s{T6}"), o(f"s_cselect_b32 s{S_MODE}, 1, 0"),
                o(f"s_cmp_eq_u32 s{T1}, s{T7}"), o(f"s_cselect_b32 s{S_MODE}, s{S_MODE}, 0")]
        if self.opts.get("forceglobal"): blk += [o(f"s_mov_b32 s{S_MODE}, 0")]
        M[209].setdefault("before", []).extend(blk)

    def bulk(self, sl, t):
        bk = [G([o(f"s_lshl_b32 s{S_PF}, s{S_LID}, 2"), o(f"s_add_u32 s{S_PF}, s{S_PF}, s{S_W}"), o(f"s_mul_i32 s{S_PF}, s{S_PF}, 41")]),
              o(f"v_add_u32 v{V_PF}, s{S_PF}, v0"), o(f"v_lshlrev_b32 v{V_PF}, 7, v{V_PF}"),
              G([o("v_cmp_gt_u32 vcc, 41, v0"), o("v_nop"), o("v_nop"), o(f"v_cndmask_b32 v{V_PF}, v{V_ONE0}, v{V_PF}, vcc")])]
        e = sl.stream(bk, t, t + 5, spill=2)
        sl.put(e + 1, [vm(f"buffer_load_dword v{V_PF}, v{V_PF}, s[{SR_WG}:{SR_WG+3}], 0 offen", "pf")])
        sl.put(e + 2, [vm(f"buffer_load_dword v{V_PF}, v{V_PF}, s[{SR_WU}:{SR_WU+3}], 0 offen", "pf")])
        return e + 2

    def paced_prefetch(self, sl, dma_end):
        if self.opts.get("bulkat", 0) == 1:
            bk = [G([o(f"s_lshl_b32 s{S_PF}, s{S_LID}, 2"), o(f"s_add_u32 s{S_PF}, s{S_PF}, s{S_W}"), o(f"s_mul_i32 s{S_PF}, s{S_PF}, 41")]),
                  o(f"v_add_u32 v230, s{S_PF}, v0"), o(f"v_lshlrev_b32 v230, 7, v230"),
                  G([o("v_cmp_gt_u32 vcc, 41, v0"), o("v_nop"), o("v_nop"), o(f"v_cndmask_b32 v230, v{V_ONE0}, v230, vcc")])]
            e = sl.stream(bk, 0, 8, spill=2)
            assert e < 12
            s = dma_end[self.opts.get("bulkst", 3)]
            sl.put(s, [vm(f"buffer_load_dword v{V_PF}, v230, s[{SR_WG}:{SR_WG+3}], 0 offen", "pf")])
            sl.put(s + 1, [vm(f"buffer_load_dword v{V_PF}, v230, s[{SR_WU}:{SR_WU+3}], 0 offen", "pf")])
        if not self.opts.get("ppf", 1): return
        Dd, Cc, t = 228, 229, 227
        setup = [G([o(f"s_lshl_b32 s{S_PF}, s{S_LID}, 2"), o(f"s_add_u32 s{S_PF}, s{S_PF}, s{S_W}"), o(f"s_mul_i32 s{S_PF}, s{S_PF}, 41")]),
                 o(f"v_add_u32 v{Dd}, s{S_PF}, v0"), o(f"v_lshlrev_b32 v{Dd}, 7, v{Dd}"), o(f"v_mov_b32 v{t}, {OOB:#x}"),
                 G([o("v_cmp_gt_u32 vcc, 41, v0"), o("v_nop"), o("v_nop"), o(f"v_cndmask_b32 v{Dd}, v{t}, v{Dd}, vcc")]),
                 G([o(f"s_and_b32 s{S_PF}, s{S_J}, 7"), o(f"s_lshl_b32 s{S_PF}, s{S_PF}, 2"), o(f"s_add_u32 s{S_PF}, s{S_PF}, s{S_W}")]),
                 G([o(f"s_lshl_b32 s{S_C}, s{S_TAU}, 5"), o(f"s_add_u32 s{S_PF}, s{S_PF}, s{S_C}"), o(f"s_lshl_b32 s{S_PF}, s{S_PF}, 12")]),
                 o(f"v_lshlrev_b32 v{Cc}, 7, v0"), o(f"v_add_u32 v{Cc}, s{S_PF}, v{Cc}"),
                 G([o("v_cmp_gt_u32 vcc, 17, v0"), o("v_nop"), o("v_nop"), o(f"v_cndmask_b32 v{Cc}, v{t}, v{Cc}, vcc")])]
        e = sl.stream(setup, 146, 176)
        s = dma_end[self.opts.get("pfw", 9)]
        assert s > e + 6
        if self.opts.get("bulk", 1) != 2: sl.put(s, [vm(f"buffer_load_dword v{V_PF}, v{Dd}, s[{SR_WD}:{SR_WD+3}], 0 offen", "pf")])
        s = dma_end[self.opts.get("pfc", 11)]
        sl.put(s, [vm(f"buffer_load_dword v{V_PF}, v{Cc}, s[{SR_CS}:{SR_CS+3}], 0 offen", "pf")])
        sl.put(s + 1, [vm(f"buffer_load_dword v{V_PF}, v{Cc}, s[{SR_SS}:{SR_SS+3}], 0 offen", "pf")])

    def owner_addr(self):
        sQ = S_TO
        t0, t1, t2, t3 = 244, 245, 246, 247
        L = [G([o(f"s_lshl_b32 s{T4}, s{S_MT}, 2"), o(f"s_add_u32 s{T4}, s{T4}, s{S_W}")]),
             G([o(f"s_mul_i32 s{T5}, s{T4}, 18"), o(f"s_add_u32 s{T5}, s{T5}, s{sQ}"), o(f"s_lshl_b32 s{T5}, s{T5}, 11")]),
             o(f"s_lshr_b32 s{T3}, s{S_J}, 1")]
        for i, d in enumerate((2, 3, 4, 5, 6, 7, 1)):
            L += [G([o(f"s_xor_b32 s{16+i}, s{T3}, {d}"), o(f"s_mul_i32 s{16+i}, s{16+i}, {PART_BYTES}"), o(f"s_add_u32 s{16+i}, s{16+i}, s{T5}")])]
        L += [o(f"s_lshl_b32 s{T5}, s{T4}, 4"), o(f"v_and_b32 v{t0}, 15, v0"), o(f"v_add_u32 v{t0}, s{T5}, v{t0}"),
              o(f"v_sub_u32 v{t1}, 2048, v{t0}"), o(f"v_mov_b32 v{t2}, 1024"), o(f"v_mov_b32 v{t3}, 0"),
              G([o(f"v_cmp_eq_u32 vcc, 0, v{t0}"), o("v_nop"), o("v_nop"), o(f"v_cndmask_b32 v237, v{t1}, v{t2}, vcc"),
                 o(f"v_cndmask_b32 v{t1}, v{t1}, v{t3}, vcc"), o(f"v_cndmask_b32 v{t2}, v{t0}, v{t2}, vcc")]),
              o(f"v_and_b32 v{t3}, 16, v0"),
              G([o(f"v_cmp_eq_u32 vcc, 0, v{t3}"), o("v_nop"), o("v_nop"), o(f"v_cndmask_b32 v{t0}, v237, v{t0}, vcc"), o(f"v_cndmask_b32 v{t1}, v{t2}, v{t1}, vcc")]),
              o(f"s_lshl_b32 s{T5}, s{sQ}, 6"),
              o(f"v_mul_u32_u24 v{t2}, 1152, v{t0}"), o(f"v_add_u32 v{t2}, s{T5}, v{t2}"),
              o(f"v_lshrrev_b32 v{t3}, 5, v0"), o(f"v_lshlrev_b32 v238, 4, v{t3}"), o(f"v_add_u32 v238, v{t2}, v238"),
              o(f"v_lshlrev_b32 v237, 3, v{t3}"), o(f"v_add_u32 v237, v{t2}, v237"),
              G([o(f"s_lshl_b32 s{T5}, s{sQ}, 7"), o(f"s_cmp_lt_u32 s{sQ}, 9"), o(f"s_cselect_b32 s24, 0, 1")]),
              G([o(f"s_sub_u32 s{T4}, {2292 - 96}, s{T5}"), o(f"s_cmp_lt_u32 s{sQ}, 9"), o(f"s_cselect_b32 s{T5}, s{T5}, s{T4}"), o(f"s_cselect_b32 s{T4}, 1, -1")]),
              G([o(f"v_mov_b32 v{t2}, s24"), o(f"v_cmp_eq_u32 vcc, 1, v{t2}"), o("v_nop"), o("v_nop"), o(f"v_cndmask_b32 v{t0}, v{t0}, v{t1}, vcc")]),
              o(f"v_mul_u32_u24 v{t0}, {YP}, v{t0}"), o(f"v_add_u32 v{t0}, s{T5}, v{t0}"),
              o(f"v_lshlrev_b32 v{t3}, 4, v{t3}"), o(f"v_mul_lo_u32 v{t3}, v{t3}, s{T4}"), o(f"v_add_u32 v{t0}, v{t0}, v{t3}"),
              o(f"v_add_u32 v239, {WS_YH}, v{t0}")]
        return L

    def pipe_reduce(self, sl, M, fu, lu, P2_0, N):
        self.items_cfg()
        t4 = P2_0 + self.opts.get("t4", 254)
        sl.put(t4 - 3, [o("v_mov_b32 v240, 4")])
        sl.put(t4, [wvm([("pst", 0), ("pst", 1), ("pst", 2), "yst"]), o("s_barrier")])
        sl.put(t4 + 1, [vm(f"buffer_store_dword v240, v{V_ONE0}, s[{SR_WS}:{SR_WS+3}], s{S_FL} offen sc1", "fl4")])
        ep = sl.stream(self.p2q_setup(), P2_0 + 102, P2_0 + 124)
        assert ep < P2_0 + 132
        s_own, s_par = 2, 1
        lb = [G([o(f"s_bfe_u32 s{T5}, s{S_J}, 0x10001"), o(f"s_lshl_b32 s{T5}, s{T5}, 6"), o(f"s_xor_b32 s{T4}, s{T5}, 64")]),
              o(f"v_xor_b32 v{V_LB}, s{T4}, v{V_RA+s_own}"), o(f"v_xor_b32 v{V_LB+1}, s{T4}, v{V_RA+s_par}"),
              o(f"v_xor_b32 v{V_LB+2}, s{T5}, v{V_RA+s_own}"), o(f"v_xor_b32 v{V_LB+3}, s{T5}, v{V_RA+s_par}")]
        sl.stream(lb, P2_0 + 190, P2_0 + 200)
        e = sl.stream(self.owner_addr(), P2_0 + 204, P2_0 + 250)
        e = sl.stream([G([o(f"s_and_b32 s{T6}, s{S_J}, 1"), o(f"s_lshl_b32 s{T6}, s{T6}, 7"), o(f"s_lshl_b32 s{T7}, s{S_MT}, 11")]),
                       G([o(f"s_add_u32 s{T6}, s{T6}, s{T7}"), o(f"s_add_u32 s{T6}, s{T6}, {WS_FLAG}")]),
                       o("v_lshlrev_b32 v242, 8, v0"), o(f"v_mov_b32 v241, {OOB:#x}"),
                       G([o("v_cmp_gt_u32 vcc, 8, v0"), o("v_nop"), o("v_nop"), o("v_cndmask_b32 v242, v241, v242, vcc")])], e + 1, e + 8)
        for i in range(4): sl.put(e + 2 + i, [vm(f"buffer_load_dwordx2 v[{24+2*i}:{25+2*i}], v237, s[{SR_X}:{SR_X+3}], 0 offen offset:{16*i}", "ox")])
        tpoll = max(e + 7, P2_0 + self.opts.get("tpa", 284))
        ld, chk = self.group_poll("L_gA", 4, 241, 242)
        sl.put(tpoll, [vm(ld, "gpA")])
        sl.put(tpoll + 9, [wvm("gpA")])
        M[tpoll + 11].setdefault("before", []).extend(chk + [o("s_cbranch_scc1 L_gA_ok")] + self.spin("L_gA", [o(ld)], chk))
        lds = []
        for i in range(6):
            lds += [vm(f"buffer_load_dwordx4 v[{80+8*i}:{83+8*i}], v{V_L16}, s[{SR_WS}:{SR_WS+3}], s{16+i} offen sc1", "op"),
                    vm(f"buffer_load_dwordx4 v[{84+8*i}:{87+8*i}], v{V_L16}, s[{SR_WS}:{SR_WS+3}], s{16+i} offen offset:1024 sc1", "op")]
        lds += [vm(f"buffer_load_dwordx4 v[{48+4*i}:{51+4*i}], v239, s[{SR_WS}:{SR_WS+3}], 0 offen offset:{32*i} sc1", "op") for i in range(4)]
        s = tpoll + 11
        self.late_loads = []
        stp = self.opts.get("ostep", 2)
        for l in lds:
            if s < N - 1: sl.put(s, [l]); s += stp
            else: self.late_loads.append(l)
        print("owner loads: in loop until", s, "late:", len(self.late_loads), "N", N)
        t5 = N - self.opts.get("t5", 10)
        sl.put(t5 - 3, [o("v_mov_b32 v240, 5")])
        sl.put(t5, [wvm([("pst", 3), ("pst", 4)]), o("s_barrier")])
        sl.put(t5 + 1, [vm(f"buffer_store_dword v240, v{V_ONE0}, s[{SR_WS}:{SR_WS+3}], s{S_FL} offen sc1", "fl5")])
        self.RDx = dict(P=("v", 176), X=208, Y=212, OA=220, PV=221, t=[222, 223, 224, 225], rev=26, so=84)
        Ad, Ld = self.item_setup("D", self.RDx, split=True)
        self.D_ld = Ld
        eD = sl.stream(Ad, N - 17, N - 1, spill=0)
        print("D addr until", eD)

    def spin(self, label, load, cond_ok, regs_note=""):
        return [o(f"s_mov_b32 s{S_CNT}, 0"), raw(f"{label}:")] + load + [o("s_waitcnt vmcnt(0)")] + cond_ok + \
               [o(f"s_cbranch_scc1 {label}_ok"), o(f"s_add_u32 s{S_CNT}, s{S_CNT}, 1"), o(f"s_cmp_gt_u32 s{S_CNT}, 0x40000"), o(f"s_cbranch_scc1 {label}_ok"),
                o("s_sleep 1"), o(f"s_branch {label}"), raw(f"{label}_ok:")]

    def main_rest(self, sl, M, fu, lu, stages, slot_of, ACC, tile_last, S0, SP_END, P2_0, N, fbar, place):
        zP, zQ, accP, accQ = self.zP, self.zQ, self.accP, self.accQ
        DIST = self.opts.get("dist", 7)
        if self.opts.get("esig", 1):
            e = sl.stream(self.geglu_sig(6, 8), 490, 535)
            e = sl.stream(self.geglu_sig(7, 8), max(e + 1, 508), 578)
            e6 = sl.stream(self.geglu_fin(6) + self.hstore(6), max(e + 1, 579), 596)
            e7 = sl.stream(self.geglu_fin(7) + self.hstore(7), e6 + 1, 614)
            assert e7 < S0 - 2, e7
            e8 = sl.stream(self.geglu_sig(8, 8), max(e7 + 1, 616), S0 + 2)
            e8 = sl.stream(self.geglu_fin(8) + self.hstore(8), max(e8 + 1, S0 + 4), S0 + 16)
            self.e8 = e8
        else:
            e6 = sl.stream(self.geglu(6) + self.hstore(6), 577, 634)
            assert e6 < S0 - 2, e6
            e7 = sl.stream(self.geglu(7) + self.hstore(7), e6 + 1, S0 + 46)
            assert e7 < SP_END - 1, e7
        if not self.opts.get("esig", 1): sl.stream(self.geglu(8, 8) + self.hstore(8), S0 + 4, S0 + 85)
        sl.put(467, [vm(f"buffer_load_dword v230, off, s[{SR_HZ}:{SR_HZ+3}], 0 offset:128 sc1", "zpoll")])
        sl.put(574, [wvm("zpoll")])
        sl.put(575, [o(f"v_readfirstlane_b32 s{T0}, v230")])
        M[578].setdefault("before", []).extend(
            [o(f"s_cmp_ge_u32 s{T0}, 256"), o("s_cbranch_scc1 L_zp_ok")] +
            self.spin("L_zp", [o(f"buffer_load_dword v{V_PF}, off, s[{SR_HZ}:{SR_HZ+3}], 0 offset:128 sc1")],
                      [o(f"v_readfirstlane_b32 s{T0}, v{V_PF}"), o("s_nop 3"), o(f"s_cmp_ge_u32 s{T0}, 256")]))
        ins = []
        for k in range(9):
            if k < 8: ins += [o(f"s_add_u32 s{S_C}, s{S_ZB}, {k*2048}")]
            else: ins += [G([o(f"s_cmp_eq_u32 s{S_W}, 3"), o(f"s_cselect_b32 s{S_C}, 0, {OOB:#x}"), o(f"s_add_u32 s{S_C}, s{S_C}, s{S_ZB}")]),
                          o(f"s_add_u32 s{S_C}, s{S_C}, {8*2048}")]
            for ss in range(3):
                ins += [vm(f"buffer_load_dwordx4 {zP(ss,k)}, v{V_ZP+ss}, s[{SR_WS}:{SR_WS+3}], s{S_C} offen sc1", ("zp", k))]
        sl.stream(ins, 579, 640)
        for k in range(9):
            g = S0 + 6*k
            sl.put(g - 1, [wvm(("zp", k))])
        ins = []
        for k in range(8):
            ins += [o(f"s_add_u32 s{S_C}, s{S_ZB}, {k*2048}")]
            for ss in range(3):
                ins += [vm(f"buffer_load_dwordx4 {zQ(ss,k)}, v{V_ZQ+ss}, s[{SR_WS}:{SR_WS+3}], s{S_C} offen sc1", ("zq", k))]
        sl.stream(ins, S0, SP_END + 20)
        for k in range(8):
            g = SP_END + 6*k
            sl.put(g - 1, [wvm(("zq", k))])
        blk = [o(f"s_cmp_eq_u32 s{S_TAU}, 0"), o("s_cbranch_scc0 L_s_n1024"),
               o("v_mov_b32 v232, 0xbf803f80"), o("v_mov_b32 v233, v232"), o("v_mov_b32 v234, v232"), o("v_mov_b32 v235, v232"), o("s_nop 1")]
        for k in range(9):
            for ss in range(3):
                a = (32, 36, 40)[ss] if False else None
        A1024 = [120, 124, 136]
        for k in range(9):
            for ss in range(3):
                a = A1024[ss]
                blk += [mf16(f"v[{a}:{a+3}]", "v[232:235]", zP(ss, k), "0" if k == 0 else f"v[{a}:{a+3}]")]
        blk += [raw("L_s_n1024:")]
        M[SP_END].setdefault("before", []).extend(blk)
        tA, tB, tC = 236, 237, 238
        t = lu[("C", 0)]; fbar(t)
        e = place(self.dma_p2(stages[0], slot_of[stages[0]], True, 12, 13, V_PF), t + 1, 1)
        ins = [o(f"v_lshrrev_b32 v{V_PF}, 5, v0"), o(f"v_lshlrev_b32 v{V_PF}, 9, v{V_PF}")]
        for s in range(4): ins += [o(f"v_sub_u32 v{V_RA+s}, v{V_RA+s}, v{V_PF}"), o(f"v_sub_u32 v{V_RB+s}, v{V_RB+s}, v{V_PF}")]
        sl.stream(ins, e + 1, e + 14)
        t = lu[("C", 1)] + 6; fbar(t)
        assert t >= lu[("CX", 0)]
        place(self.dma_p2(stages[2], slot_of[stages[2]], False, 0, 0, 0), t + 1, 1)
        t = lu[("S", 0)]
        if self.opts.get("esig", 1):
            sl.put(t, [wvm("hst"), o("s_barrier")])
            sl.put(t + 1, [o(f"v_mov_b32 v{V_PF}, 2")])
            sl.put(t + 2, [vm(f"buffer_store_dword v{V_PF}, v{V_ONE0}, s[{SR_WS}:{SR_WS+3}], s{S_FL} offen sc1", "fl2h")])
            place(self.dma_p2(stages[1], slot_of[stages[1]], False, 0, 0, 0), t + 3, 1)
            fbar(lu[("S", 1)])
        else:
            fbar(t); place(self.dma_p2(stages[1], slot_of[stages[1]], False, 0, 0, 0), t + 1, 1)
            t = lu[("S", 1)]
            sl.put(t, [wvm("hst"), o("s_barrier")])
            sl.put(t + 1, [o(f"v_mov_b32 v{V_PF}, 2")])
            sl.put(t + 2, [vm(f"buffer_store_dword v{V_PF}, v{V_ONE0}, s[{SR_WS}:{SR_WS+3}], s{S_FL} offen sc1", "fl2h")])
        a0 = P2_0 + 3
        t0r, t1r = 240, 241
        SC = SLOT
        W3D = SPARE - SLOT - 3*12288
        N1A = SPARE + 12288
        wr = [G([o(f"s_mul_i32 s{S_C}, s{S_W}, 12288"), o(f"s_add_u32 s{S_C}, s{S_C}, {SC}")]),
              G([o(f"s_cmp_eq_u32 s{S_W}, 3"), o(f"s_cselect_b32 s{S_ST1}, {W3D}, 0"), o(f"s_add_u32 s{S_C}, s{S_C}, s{S_ST1}")]),
              o(f"v_lshrrev_b32 v{t0r}, 4, v0"), o(f"v_mul_u32_u24 v{t0r}, 768, v{t0r}"), o(f"v_and_b32 v{t1r}, 15, v0"), o(f"v_lshlrev_b32 v{t1r}, 2, v{t1r}"),
              o(f"v_add_u32 v{t0r}, v{t0r}, v{t1r}"), o(f"v_add_u32 v{t0r}, s{S_C}, v{t0r}")]
        for pq, accf in ((0, accP), (1, accQ)):
            for tt in range(2):
                for ss in range(3):
                    for r in range(4):
                        wr += [ds(f"ds_write_b32 v{t0r}, v{accf(tt,ss)+r} offset:{pq*6144 + (16*tt + r)*192 + ss*64}", "sred_w")]
        e = sl.stream(wr, a0, a0 + 30)
        wr2 = [G([o(f"s_mul_i32 s{S_C}, s{S_W}, 768"), o(f"s_add_u32 s{S_C}, s{S_C}, {N1A}")]), o(f"v_lshlrev_b32 v{t1r}, 2, v0"), o(f"v_add_u32 v{t1r}, s{S_C}, v{t1r}")]
        for ss in range(3): wr2 += [ds(f"ds_write_b32 v{t1r}, v{A1024[ss]} offset:{ss*256}", "sred_w")]
        e = sl.stream(wr2, e + 1, e + 6)
        b1 = e + 1
        sl.put(b1, [wlg("sred_w"), o("s_barrier")])
        R0, R1 = 128, 64
        R0, R1 = 112, 48
        A0, A1, YD0, YM0, YD1, YM1 = 232, 233, 234, 235, 236, 237
        ad = [G([o(f"s_lshl_b32 s{T3}, s{S_W}, 3"), o(f"s_lshl_b32 s{T4}, s{S_TAU}, 5"), o(f"s_add_u32 s{T4}, s{T4}, s{T3}")]),
              G([o(f"s_mul_i32 s{T3}, s{T3}, 192"), o(f"s_add_u32 s{T3}, s{T3}, {SC}"), o(f"s_and_b32 s{T5}, s{S_J}, 7")]),
              o(f"s_mul_i32 s{T5}, s{T5}, 144"),
              o(f"v_lshrrev_b32 v238, 3, v0"), o(f"v_and_b32 v239, 7, v0"),
              o(f"v_mul_u32_u24 v{A0}, 192, v238"), o(f"v_lshlrev_b32 v239, 4, v239"), o(f"v_add_u32 v{A0}, v{A0}, v239"), o(f"v_add_u32 v{A0}, s{T3}, v{A0}"),
              o(f"v_add_u32 v238, s{T4}, v238"),
              o(f"v_add_u32 v239, s{T5}, v239"),
              o(f"v_mul_u32_u24 v{YD0}, {YP}, v238"), o(f"v_add_u32 v{YD0}, v{YD0}, v239"),
              o(f"v_sub_u32 v{YM0}, 2048, v238"), o(f"v_mul_u32_u24 v{YM0}, {YP}, v{YM0}"), o(f"v_add_u32 v{YM0}, v{YM0}, v239"),
              G([o(f"v_cmp_eq_u32 vcc, 0, v238"), o(f"v_mov_b32 v238, {OOB:#x}"), o("v_nop"), o(f"v_cndmask_b32 v{YM0}, v{YM0}, v238, vcc")]),
              o(f"v_and_b32 v238, 7, v0"), o(f"v_lshrrev_b32 v239, 3, v0"), o(f"v_add_u32 v239, 8, v239"), o(f"v_min_u32 v239, 9, v239"),
              o(f"v_mul_u32_u24 v{A1}, 192, v238"), o(f"v_lshlrev_b32 v239, 4, v239"), o(f"v_add_u32 v{A1}, v{A1}, v239"), o(f"v_add_u32 v{A1}, s{T3}, v{A1}"),
              o(f"v_add_u32 v238, s{T4}, v238"), o(f"v_add_u32 v239, s{T5}, v239"),
              o(f"v_mul_u32_u24 v{YD1}, {YP}, v238"), o(f"v_add_u32 v{YD1}, v{YD1}, v239"),
              o(f"v_sub_u32 v{YM1}, 2048, v238"), o(f"v_mul_u32_u24 v{YM1}, {YP}, v{YM1}"), o(f"v_add_u32 v{YM1}, v{YM1}, v239"),
              G([o(f"v_cmp_eq_u32 vcc, 0, v238"), o(f"v_mov_b32 v238, {OOB:#x}"), o("v_nop"), o(f"v_cndmask_b32 v{YM1}, v{YM1}, v238, vcc")]),
              G([o(f"s_cmp_eq_u32 s{T5}, {7*144}"), o(f"s_cselect_b32 s{T5}, 16, 8")]),
              G([o(f"v_cmp_gt_u32 vcc, s{T5}, v0"), o("v_nop"), o("v_nop"), o(f"v_cndmask_b32 v{YD1}, v238, v{YD1}, vcc"), o(f"v_cndmask_b32 v{YM1}, v238, v{YM1}, vcc")]),
              o(f"s_mov_b32 s{T4}, {WS_YH}"),
              o(f"v_lshlrev_b32 v238, 2, v0"), o(f"v_add_u32 v238, {N1A}, v238"),
              o(f"v_add_u32 v243, {W3D + 3*12288}, v{A0}"), o(f"v_add_u32 v244, {W3D + 3*12288}, v{A1}")]
        e = sl.stream(ad, a0 + 2, b1)
        assert e <= b1 + 6
        def rds(R, A, tag):
            A3 = 243 if A == A0 else 244
            return [ds(f"ds_read_b128 v[{R + 16*pq + 4*ww}:{R + 16*pq + 4*ww + 3}], v{A if ww < 3 else A3} offset:{(ww*12288 if ww < 3 else 0) + pq*6144}", tag) for pq in range(2) for ww in range(4)]
        N1 = 216
        n1r = [ds(f"ds_read_b32 v{N1+4*ss+ww}, v238 offset:{ww*768 + ss*256}", "sred_n") for ss in range(3) for ww in range(4)]
        e = sl.stream(rds(R0, A0, "sr0") + rds(R1, A1, "sr1") + n1r, max(e, b1) + 1, max(e, b1) + 12)
        b2 = e + 3
        sl.put(b2, [wlg("sred_n"), o("s_barrier")])
        self.b2 = b2
        def fin(R, YD, YM):
            out = []
            for pq in range(2):
                b_ = R + 16*pq
                for k in range(4):
                    out += [o(f"v_add_f32 v{b_+k}, v{b_+k}, v{b_+4+k}"), o(f"v_add_f32 v{b_+8+k}, v{b_+8+k}, v{b_+12+k}"), o(f"v_add_f32 v{b_+k}, v{b_+k}, v{b_+8+k}")]
            for k in range(4):
                out += [o(f"v_sub_f32 v{R+4+k}, v{R+k}, v{R+16+k}"), o(f"v_add_f32 v{R+8+k}, v{R+k}, v{R+16+k}")]
            out += [vm(f"buffer_store_dwordx4 v[{R+4}:{R+7}], v{YD}, s[{SR_WS}:{SR_WS+3}], s{T4} offen sc1", "yst"),
                    vm(f"buffer_store_dwordx4 v[{R+8}:{R+11}], v{YM}, s[{SR_WS}:{SR_WS+3}], s{T4} offen sc1", "yst")]
            return out
        n1 = []
        for ss in range(3):
            b_ = N1 + 4*ss
            n1 += [o(f"v_add_f32 v{b_}, v{b_}, v{b_+1}"), o(f"v_add_f32 v{b_+2}, v{b_+2}, v{b_+3}"), o(f"v_add_f32 v{b_}, v{b_}, v{b_+2}")]
        n1 += [G([o(f"s_or_b32 s{T3}, s{S_TAU}, s{S_W}"), o(f"s_cmp_eq_u32 s{T3}, 0"), o(f"s_cselect_b32 s{T3}, 16, 0")]),
               G([o(f"v_cmp_gt_u32 vcc, s{T3}, v0"), o(f"v_mov_b32 v238, {1024*YP}"), o(f"v_mov_b32 v239, {OOB:#x}"), o(f"v_cndmask_b32 v238, v239, v238, vcc")])]
        for ss in range(3):
            n1 += [o(f"v_add_u32 v{N1+4*ss+1}, v238, v{V_YC[ss]}")]
        n1 += [vm(f"buffer_store_dword v{N1+4*ss}, v{N1+4*ss+1}, s[{SR_WS}:{SR_WS+3}], s{T4} offen sc1", "yst") for ss in range(3)]
        e = sl.stream(fin(R1, YD1, YM1) + fin(R0, YD0, YM0), b2 + 1, P2_0 + 66, spill=3)
        assert e < P2_0 + 72, e
        e = sl.stream(n1, e + 1, e + 16)
        assert e < P2_0 + 100, e
        gpar = fu[("s2", (0, "par"))]
        PF2 = 231
        sl.put(660, [G([o(f"s_xor_b32 s{T0}, s{S_LID}, 1"), o(f"s_lshl_b32 s{T1}, s{T0}, 7"), o(f"s_add_u32 s{T1}, s{T1}, {WS_FLAG}")])])
        sl.put(661, [G([o(f"s_lshl_b32 s{T0}, s{T0}, 2"), o(f"s_add_u32 s{T0}, s{T0}, s{S_W}"), o(f"s_mul_i32 s{T0}, s{T0}, {18*1024}")]), o(f"s_add_u32 s{T0}, s{T0}, {WS_HX}")])
        pl = f"buffer_load_dword v242, off, s[{SR_WS}:{SR_WS+3}], s{T1} sc1"
        h1 = self.opts.get("h1", P2_0 - 12)
        sl.put(h1, [vm(pl, "hpoll1")])
        sl.put(h1 + 12, [wvm("hpoll1")])
        sl.put(h1 + 13, [o(f"v_readfirstlane_b32 s{T2}, v242")])
        M[h1 + 16].setdefault("before", []).extend(
            [o(f"s_cmp_ge_u32 s{T2}, 1"), o("s_cbranch_scc1 L_hq_ok")] +
            self.spin("L_hq", [o(pl)], [o(f"v_readfirstlane_b32 s{T2}, v242"), o("s_nop 3"), o(f"s_cmp_ge_u32 s{T2}, 1")]))
        def hload(k, n, t, tag):
            sl.put(t, [o(f"s_add_u32 s{T6}, s{T0}, {k*1024}")])
            sl.put(t + 1, self.dload([f"buffer_load_dwordx4 a[{AZ+4*(k+q)}:{AZ+4*(k+q)+3}], v{V_L16}, s[{SR_WS}:{SR_WS+3}], s{T6} offen offset:{q*1024}" for q in range(n)], tag, True))
        for i in range(6):
            hload(2*i, 2, h1 + 17 + 9*i, ("hp", i))
        tp = P2_0 + self.opts.get("tp2", 74)
        assert tp - 13 > h1 + 17 + 9*5 + 1
        sl.put(tp - 13, [vm(pl, "hpoll2")])
        sl.put(tp - 2, [wvm("hpoll2")])
        sl.put(tp - 1, [o(f"v_readfirstlane_b32 s{T2}, v242")])
        M[tp + 2].setdefault("before", []).extend(
            [o(f"s_cmp_ge_u32 s{T2}, 2"), o("s_cbranch_scc1 L_hp_ok")] +
            self.spin("L_hp", [o(pl)], [o(f"v_readfirstlane_b32 s{T2}, v242"), o("s_nop 3"), o(f"s_cmp_ge_u32 s{T2}, 2")]))
        for i in range(3):
            hload(12 + 2*i, 2, tp + 4 + 6*i, ("hp", 6 + i))
        sl.put(gpar - 2, [wvm(("hp", 5))])
        for i in range(3):
            sl.put(gpar + 12 + 2*i - 2, [wvm(("hp", 6 + i))])
        for i in range(3, 9):
            st = stages[i]; slot = slot_of[st]
            prev = [j for j in range(i) if slot_of[stages[j]] == slot]
            if prev:
                t = lu[("s2", stages[prev[-1]])]; fbar(t); start = t + 1
            else:
                start = b2 + 1
            grps = self.dma_p2(st, slot, False, 250, 251, 0)
            if st[0] == 4:
                grps = [[o(f"s_and_b32 s{S_C}, s{S_W}, 1"), o(f"s_mul_i32 s{S_C}, s{S_C}, {16*1152}")]] + grps
                place(grps, start, 1)
            else:
                place(grps, start, 2)
        s4 = slot_of[(4, "both")]
        ins = [o("v_lshrrev_b32 v250, 5, v0"), o("v_lshlrev_b32 v250, 8, v250"),
               o("v_bfe_u32 v251, v0, 2, 2"), o("v_lshlrev_b32 v251, 6, v251"), o("v_add_u32 v250, v250, v251"),
               o("v_bfe_u32 v251, v0, 4, 1"), o("v_lshlrev_b32 v251, 5, v251"), o("v_add_u32 v250, v250, v251"),
               o("v_and_b32 v251, 3, v0"), o("v_lshlrev_b32 v251, 3, v251"), o("v_add_u32 v250, v250, v251"),
               o(f"v_add_u32 v{V_R8}, {s4*SLOT}, v250")]
        sl.stream(ins, P2_0 + 150, P2_0 + 175)
        self.pipe_reduce(sl, M, fu, lu, P2_0, N)
        for (u, half), tl in sorted(tile_last.items(), key=lambda x: x[1]):
            acc = ACC[u][half]
            par = half
            t = TMP + 8*par
            st = S_ST0 + par
            ins = [o(f"v_cvt_pk_bf16_f32 v{t+i}, v{acc+2*i}, v{acc+2*i+1}") for i in range(8)]
            if u == 3 and half == 1: continue
            if u < 3: ins += [o(f"s_add_u32 s{st}, s{S_QU[u]}, {half*2048}")]
            elif u == 3: ins += [o(f"s_mov_b32 s{st}, s{S_QN}")]
            else: ins += [o(f"s_mov_b32 s{st}, s{S_Q8}")]
            ins += self.dstore([f"buffer_store_dwordx4 v[{t}:{t+3}], v{V_L16}, s[{SR_WS}:{SR_WS+3}], s{st} offen",
                                f"buffer_store_dwordx4 v[{t+4}:{t+7}], v{V_L16}, s[{SR_WS}:{SR_WS+3}], s{st} offen offset:1024"], ("pst", u))
            s0 = tl + 4
            if s0 + 10 <= N: sl.stream(ins, s0, s0 + 10)
            else: self.tail2 = [o("s_nop 15")] + ins

    def item_setup(self, kind, R, srd=None, split=False):
        t0, t1, t2, t3 = R["t"]
        sQ, sH, sB, sT = T2, T3, T4, T5
        L = []
        LD = []
        SW = SR_WS if srd is None else srd
        if kind == "A":
            L += [G([o(f"s_lshl_b32 s{sT}, s{S_J}, 2"), o(f"s_add_u32 s{sT}, s{sT}, s{S_W}"), o(f"s_lshr_b32 s{sQ}, s{sT}, 3")]),
                  G([o(f"s_cmp_lt_u32 s{sQ}, 4"), o(f"s_cselect_b32 s{sH}, 0, 6"), o(f"s_add_u32 s{sQ}, s{sQ}, s{sH}")])]
        elif kind in "BC":
            lo, hi = (4, 12) if kind == "B" else (6, 14)
            L += [G([o(f"s_lshl_b32 s{sT}, s{S_J}, 1"), o(f"s_lshr_b32 s{sH}, s{S_W}, 1"), o(f"s_add_u32 s{sT}, s{sT}, s{sH}")]),
                  G([o(f"s_lshr_b32 s{sQ}, s{sT}, 3"), o(f"s_cmp_lt_u32 s{sQ}, 2"), o(f"s_cselect_b32 s{sH}, {lo}, {hi}")]),
                  o(f"s_add_u32 s{sQ}, s{sQ}, s{sH}")]
        else:
            L += [G([o(f"s_lshr_b32 s{sT}, s{S_J}, 1"), o(f"s_and_b32 s{sQ}, s{S_J}, 1"), o(f"s_add_u32 s{sQ}, s{sQ}, 8")])]
        L += [G([o(f"s_and_b32 s{sH}, s{sT}, 1"), o(f"s_bfe_u32 s{sB}, s{sT}, 0x20001"), o(f"s_lshl_b32 s{sT}, s{S_MT}, 2")]),
              o(f"s_add_u32 s{sB}, s{sB}, s{sT}"),
              G([o(f"s_mul_i32 s{sT}, s{sB}, 18"), o(f"s_add_u32 s{sT}, s{sT}, s{sQ}"), o(f"s_lshl_b32 s{sT}, s{sT}, 1")]),
              G([o(f"s_add_u32 s{sT}, s{sT}, s{sH}"), o(f"s_lshl_b32 s{sT}, s{sT}, 10")])]
        so = R["so"]
        for p in range(8): L += [o(f"s_add_u32 s{so+p}, s{sT}, {p*PART_BYTES}")]
        if kind == "A":
            L += [o(f"v_mov_b32 v{t3}, 0")]
        elif kind in "BC":
            L += [o(f"s_and_b32 s{sT}, s{S_W}, 1"), o(f"v_bfe_u32 v{t0}, v0, 4, 1"), o(f"v_mov_b32 v{t1}, {OOB:#x}"), o(f"v_mov_b32 v{t3}, 0"),
                  G([o(f"v_cmp_eq_u32 vcc, s{sT}, v{t0}"), o("v_nop"), o("v_nop"), o(f"v_cndmask_b32 v{t3}, v{t1}, v{t3}, vcc")])]
        else:
            L += [o(f"v_bfe_u32 v{t0}, v0, 3, 2"), o(f"v_mov_b32 v{t1}, {OOB:#x}"), o(f"v_mov_b32 v{t3}, 0"),
                  G([o(f"v_cmp_eq_u32 vcc, s{S_W}, v{t0}"), o("v_nop"), o("v_nop"), o(f"v_cndmask_b32 v{t3}, v{t1}, v{t3}, vcc")])]
        PV = R["PV"]
        L += [o(f"v_add_u32 v{PV}, v{t3}, v{V_L16}")]
        pk, pb = R["P"]
        ldp = [vm(f"buffer_load_dwordx4 {pk}[{pb+4*p}:{pb+4*p+3}], v{PV}, s[{SW}:{SW+3}], s{so+p} offen sc1", ("it", kind)) for p in range(8)]
        if split: LD += ldp
        else: L += ldp
        X, Y, OA = R["X"], R["Y"], R["OA"]
        L += [o(f"s_lshl_b32 s{sT}, s{sB}, 4"), o(f"v_and_b32 v{t0}, 15, v0"), o(f"v_add_u32 v{t0}, s{sT}, v{t0}"),
              o(f"v_sub_u32 v{t1}, 2048, v{t0}"), o(f"v_mov_b32 v{t2}, 1024"), o(f"v_mov_b32 v{OA}, 0"),
              G([o(f"v_cmp_eq_u32 vcc, 0, v{t0}"), o("v_nop"), o("v_nop"), o(f"v_cndmask_b32 v{X}, v{t1}, v{t2}, vcc"),
                 o(f"v_cndmask_b32 v{t1}, v{t1}, v{OA}, vcc"), o(f"v_cndmask_b32 v{t2}, v{t0}, v{t2}, vcc")]),
              o(f"v_and_b32 v{OA}, 16, v0"),
              G([o(f"v_cmp_eq_u32 vcc, 0, v{OA}"), o("v_nop"), o("v_nop"), o(f"v_cndmask_b32 v{t0}, v{X}, v{t0}, vcc"), o(f"v_cndmask_b32 v{t1}, v{t2}, v{t1}, vcc")]),
              G([o(f"s_lshl_b32 s{sT}, s{sQ}, 6"), o(f"s_lshl_b32 s{sB}, s{sH}, 5"), o(f"s_add_u32 s{sT}, s{sT}, s{sB}")]),
              o(f"v_mul_u32_u24 v{t2}, 1152, v{t0}"), o(f"v_add_u32 v{t2}, s{sT}, v{t2}"), o(f"v_add_u32 v{t2}, v{t2}, v{t3}"),
              o(f"v_lshrrev_b32 v{X}, 5, v0"), o(f"v_lshlrev_b32 v{OA}, 4, v{X}"), o(f"v_add_u32 v{OA}, v{t2}, v{OA}"),
              o(f"v_lshlrev_b32 v{X}, 3, v{X}"), o(f"v_add_u32 v{t2}, v{t2}, v{X}"),
              vm(f"buffer_load_dwordx2 v[{X}:{X+1}], v{t2}, s[{SR_X}:{SR_X+3}], 0 offen", ("it", kind)),
              vm(f"buffer_load_dwordx2 v[{X+2}:{X+3}], v{t2}, s[{SR_X}:{SR_X+3}], 0 offen offset:16", ("it", kind)),
              G([o(f"s_lshl_b32 s{sT}, s{sT}, 1"), o(f"s_cmp_lt_u32 s{sQ}, 9"), o(f"s_cselect_b32 s{R['rev']}, 0, 1")]),
              G([o(f"s_sub_u32 s{sB}, 2292, s{sT}"), o(f"s_cmp_lt_u32 s{sQ}, 9"), o(f"s_cselect_b32 s{sT}, s{sT}, s{sB}"), o(f"s_cselect_b32 s{sB}, 1, -1")]),
              G([o(f"v_cmp_eq_u32 vcc, 1, v{PV}") if False else o(f"v_mov_b32 v{t2}, s{R['rev']}"), o(f"v_cmp_eq_u32 vcc, 1, v{t2}"), o("v_nop"), o("v_nop"),
                 o(f"v_cndmask_b32 v{t0}, v{t0}, v{t1}, vcc")]),
              o(f"v_mul_u32_u24 v{t0}, {YP}, v{t0}"), o(f"v_add_u32 v{t0}, s{sT}, v{t0}"), o(f"v_add_u32 v{t0}, v{t0}, v{t3}"),
              o(f"v_lshrrev_b32 v{t1}, 5, v0"), o(f"v_lshlrev_b32 v{t1}, 4, v{t1}"), o(f"v_mul_lo_u32 v{t1}, v{t1}, s{sB}"),
              o(f"v_add_u32 v{t0}, v{t0}, v{t1}"),
              o(f"s_lshl_b32 s{sB}, s{sB}, 5"), o(f"v_add_u32 v{t1}, s{sB}, v{t0}"), o(f"v_add_u32 v{t0}, {WS_YH}, v{t0}"), o(f"v_add_u32 v{t1}, {WS_YH}, v{t1}")]
        ldy = [vm(f"buffer_load_dwordx4 v[{Y}:{Y+3}], v{t0}, s[{SW}:{SW+3}], 0 offen sc1", ("it", kind)),
               vm(f"buffer_load_dwordx4 v[{Y+4}:{Y+7}], v{t1}, s[{SW}:{SW+3}], 0 offen sc1", ("it", kind))]
        if split:
            LD += ldy
            return L, LD
        return L + ldy

    def item_finish(self, kind, R):
        X, Y, OA = R["X"], R["Y"], R["OA"]
        t0, t1, t2, t3 = R["t"]
        pk, pb = R["P"]
        L = [wvm(("it", kind)),
             o(f"s_cmp_eq_u32 s{R['rev']}, 0"), o(f"s_cbranch_scc1 L_rv{kind}"),
             o(f"v_swap_b32 v{Y}, v{Y+3}"), o(f"v_swap_b32 v{Y+1}, v{Y+2}"), o(f"v_swap_b32 v{Y+4}, v{Y+7}"), o(f"v_swap_b32 v{Y+5}, v{Y+6}"),
             raw(f"L_rv{kind}:"),
             o(f"s_mov_b32 s{T0}, 0x3f80"), o(f"s_mov_b32 s{T1}, 0x3f800000")]
        for i in range(4):
            L += [o(f"v_dot2_f32_bf16 v{Y+2*i}, v{X+i}, s{T0}, v{Y+2*i}"), o(f"v_dot2_f32_bf16 v{Y+2*i+1}, v{X+i}, s{T1}, v{Y+2*i+1}")]
        for p in range(8):
            for i in range(4):
                r = pb + 4*p + i
                if pk == "a":
                    L += [o(f"v_accvgpr_read_b32 v{t0 + (i & 1)}, a{r}")]
                    src = t0 + (i & 1)
                else: src = r
                L += [o(f"v_dot2_f32_bf16 v{Y+2*i}, v{src}, s{T0}, v{Y+2*i}"), o(f"v_dot2_f32_bf16 v{Y+2*i+1}, v{src}, s{T1}, v{Y+2*i+1}")]
        L += [o("s_nop 2")]
        for i in range(4):
            L += [o(f"v_cvt_pk_bf16_f32 v{X+i}, v{Y+2*i}, v{Y+2*i+1}")]
        L += [o("s_nop 1"), o(f"v_permlane32_swap_b32 v{X}, v{X+2}"), o(f"v_permlane32_swap_b32 v{X+1}, v{X+3}"),
              vm(f"buffer_store_dwordx4 v[{X}:{X+3}], v{OA}, s[{SR_OUT}:{SR_OUT+3}], 0 offen{self.osfx}", "out")]
        return L

    def group_poll(self, label, val, vdst, voff):
        ld = f"buffer_load_dword v{vdst}, v{voff}, s[{SR_WS}:{SR_WS+3}], s{T6} offen sc1"
        chk = [o(f"v_cmp_le_u32 vcc, {val}, v{vdst}"), o("s_nop 0"), o(f"s_and_b32 s{T7}, vcc_lo, 0xff"), o(f"s_cmp_eq_u32 s{T7}, 0xff")]
        return ld, chk

    def items_cfg(self):
        self.RA = dict(P=("v", 80), X=112, Y=116, OA=124, PV=125, t=[126, 127, 16, 17], rev=24, so=16)
        self.RB = dict(P=("a", 0), X=18, Y=22, OA=30, PV=31, t=[48, 49, 50, 51], rev=25, so=16)
        self.RC = dict(P=("v", 176), X=208, Y=212, OA=220, PV=221, t=[222, 223, 224, 225], rev=26, so=16)
        self.RD = dict(P=("v", 128), X=160, Y=164, OA=172, PV=173, t=[174, 175, 226, 227], rev=27, so=84)

    def tail(self):
        L = list(self.late_loads)
        O = 128
        ld, chk = self.group_poll("L_f5", 5, 241, 242)
        L += [vm(ld, "fp5")]
        L += self.stamp("pub")
        RD = self.RDx; Ld = self.D_ld
        L += [wvm("op"), wvm("ox"), o(f"s_mov_b32 s{T0}, 0x3f80"), o(f"s_mov_b32 s{T1}, 0x3f800000"),
              o("s_cmp_eq_u32 s24, 0"), o("s_cbranch_scc1 L_oyd")]
        for g_ in range(4):
            for k in range(4): L += [o(f"v_add_f32 v{O+4*g_+k}, v{O+4*g_+k}, v{48 + 4*(3-g_) + 3 - k}")]
        L += [o("s_branch L_oyj"), raw("L_oyd:")]
        for r in range(16): L += [o(f"v_add_f32 v{O+r}, v{O+r}, v{48+r}")]
        L += [raw("L_oyj:")]
        for i in range(8):
            L += [o(f"v_dot2_f32_bf16 v{O+2*i}, v{24+i}, s{T0}, v{O+2*i}"), o(f"v_dot2_f32_bf16 v{O+2*i+1}, v{24+i}, s{T1}, v{O+2*i+1}")]
        for p in range(6):
            for i in range(8):
                L += [o(f"v_dot2_f32_bf16 v{O+2*i}, v{80+8*p+i}, s{T0}, v{O+2*i}"), o(f"v_dot2_f32_bf16 v{O+2*i+1}, v{80+8*p+i}, s{T1}, v{O+2*i+1}")]
        L += self.stamp("early")
        L += [wvm("fp5")] + chk + [o("s_cbranch_scc1 L_f5_ok")] + self.spin("L_f5", [o(ld)], chk) + [reset()]
        L += self.stamp("pok")
        L += [vm(f"buffer_load_dwordx4 v[16:19], v{V_L16}, s[{SR_WS}:{SR_WS+3}], s22 offen sc1", "sib"),
              vm(f"buffer_load_dwordx4 v[20:23], v{V_L16}, s[{SR_WS}:{SR_WS+3}], s22 offen offset:1024 sc1", "sib")]
        L += Ld
        L += [wvm("sib")]
        for i in range(8):
            L += [o(f"v_dot2_f32_bf16 v{O+2*i}, v{16+i}, s{T0}, v{O+2*i}"), o(f"v_dot2_f32_bf16 v{O+2*i+1}, v{16+i}, s{T1}, v{O+2*i+1}")]
        L += [o("s_nop 2")]
        for i in range(8): L += [o(f"v_cvt_pk_bf16_f32 v{24+i}, v{O+2*i}, v{O+2*i+1}")]
        L += [o("s_nop 1"), o("v_permlane32_swap_b32 v24, v26"), o("v_permlane32_swap_b32 v25, v27"),
              o("v_permlane32_swap_b32 v28, v30"), o("v_permlane32_swap_b32 v29, v31"),
              vm(f"buffer_store_dwordx4 v[24:27], v238, s[{SR_OUT}:{SR_OUT+3}], 0 offen{self.osfx}", "out"),
              vm(f"buffer_store_dwordx4 v[28:31], v238, s[{SR_OUT}:{SR_OUT+3}], 0 offen offset:32{self.osfx}", "out")]
        L += self.stamp("ownfin")
        L += self.item_finish("D", RD)
        return L

    def kernel(self, name):
        L = [raw(f".globl {name}"), raw(".p2align 8"), raw(f".type {name},@function"), raw(f"{name}:")]
        L += self.prologue()
        L += self.stamp("proend")
        L += self.ln_stats()
        L += self.stamp("stats")
        L += [o("s_barrier")]
        L += [o(f"s_mov_b32 s{S_A}, s{S_J}"), o(f"s_add_u32 s{S_B}, s{S_J}, 16")]
        L += self.h_dma(S_A, 2, "wz1")
        L += [o(f"s_cmp_lt_u32 s{S_J}, 2"), o("s_cbranch_scc0 L_noz2a")]
        L += [I(i.t, "o") if i.k == "vm" else i for i in self.h_dma(S_B, 3, "wz2")]
        L += [raw("L_noz2a:")]
        hd = []
        for sig in range(2):
            for grp in self.dma_p1(sig, sig): hd.append(grp)
        if not self.opts.get('bearly'): hd.append([o(f"s_lshl_b32 s{S_PF}, s{S_LID}, 2"), o(f"s_add_u32 s{S_PF}, s{S_PF}, s{S_W}"), o(f"s_mul_i32 s{S_PF}, s{S_PF}, 41"),
                   o(f"v_add_u32 v240, s{S_PF}, v0"), o("v_lshlrev_b32 v240, 7, v240"), o("v_cmp_gt_u32 vcc, 41, v0"), o("s_nop 1"),
                   o(f"v_cndmask_b32 v240, v{V_ONE0}, v240, vcc"),
                   vm(f"buffer_load_dword v{V_PF}, v240, s[{SR_WG}:{SR_WG+3}], 0 offen", "pf"),
                   vm(f"buffer_load_dword v{V_PF}, v240, s[{SR_WU}:{SR_WU+3}], 0 offen", "pf")])
        lf = self.ln_finish()
        per = -(-len(lf) // 18)
        k = 0
        for n, grp in enumerate(hd):
            L += grp
            if n < 18: L += lf[k:k + per]; k += per
        L += lf[k:]
        L += [o(f"v_subrev_u32 v{V_XA+i}, s{S_LX}, v{V_XA+i}") for i in range(4)]
        L += [o(f"v_add_u32 v{V_XA+i}, {2*SLOT}, v{V_XA+i}") for i in range(4)]
        L += self.stamp("lnfin")
        L += self.seg_norm_h()
        L += self.stamp("normH")
        L += self.h2_block()
        L += self.tr_bases()
        L += srd(SR_HZ, 36, 256)
        L += self.main()
        L += self.stamp("p2end")
        L += self.tail()
        L += self.stamp("end")
        if self.diag:
            L += [o("s_waitcnt vmcnt(0)"),
                  o(f"s_lshl_b32 s{T0}, s{S_LID}, 2"), o(f"s_add_u32 s{T0}, s{T0}, s{S_W}"), o(f"s_lshl_b32 s{T0}, s{T0}, 8"),
                  o(f"s_add_u32 s{T0}, s{T0}, {WS_STAMP}"), o("v_lshlrev_b32 v240, 2, v0"),
                  o(f"buffer_store_dword v{V_STAMP}, v240, s[{SR_WS}:{SR_WS+3}], s{T0} offen")]
        if self.opts.get("hdiag") == 2:
            L += [o("s_waitcnt vmcnt(0)"), o(f"v_readlane_b32 s98, v{V_STAMP}, 32"), o("s_nop 3"),
                  o(f"v_subrev_u32 v240, s98, v{V_STAMP}"),
                  o("v_subrev_u32 v241, 32, v0"), o("v_lshlrev_b32 v241, 2, v241"),
                  o("v_cmp_le_u32 vcc, 32, v0"), o(f"v_mov_b32 v242, {OOB:#x}"), o("s_nop 0"), o("v_cndmask_b32 v241, v242, v241, vcc"),
                  o("v_cmp_gt_u32 vcc, 48, v0"), o("s_nop 1"), o("v_cndmask_b32 v241, v242, v241, vcc"),
                  o(f"s_cmp_eq_u32 s{S_W}, 0"), o("s_cbranch_scc0 L_end"),
                  o(f"buffer_atomic_u{'min' if self.opts.get('hmin') else 'max'} v240, v241, s[{SR_HZ}:{SR_HZ+3}], 0 offen sc1")]
        elif self.opts.get("hdiag"):
            L += [o("s_waitcnt vmcnt(0)"), o("s_memrealtime s[100:101]"), o("s_waitcnt lgkmcnt(0)"),
                  o("s_sub_u32 s97, s100, s98"), o("s_not_b32 s98, s98"),
                  o("v_mov_b32 v240, s100"), o("v_mov_b32 v241, s98"), o("v_mov_b32 v242, s97"),
                  o(f"buffer_atomic_umax v240, v{V_ONE0}, s[{SR_HZ}:{SR_HZ+3}], 0 offen sc1"),
                  o(f"buffer_atomic_umax v241, v{V_ONE0}, s[{SR_HZ}:{SR_HZ+3}], 0 offen offset:4 sc1"),
                  o(f"buffer_atomic_umax v242, v{V_ONE0}, s[{SR_HZ}:{SR_HZ+3}], 0 offen offset:8 sc1")]
            for i, r in enumerate(self.hd_regs):
                pass
        L += [raw("L_end:"), o("s_endpgm")]
        return finalize(flat(L))

NAME = "parallel_sum__spectral_fnet__geglu_ffn__prompt_kernel"
def build(diag=False, opts=None):
    hdr = open("parallel_sum__spectral_fnet__geglu_ffn__prompt.s.ref").read().split("\n")
    top = [l for l in hdr if l.startswith(";") and "@launch" not in l and "Override" not in l and "grid=ceil" not in l]
    g = Gen(diag, opts)
    lines = g.kernel(NAME)
    errs = hazard_check(lines)
    for e in errs[:30]: print("HAZARD:", e)
    txt = "\n".join(top) + "\n"
    txt += "; @launch grid=(256,1,1) block=(256,1,1) lds=163840\n"
    txt += '.amdgcn_target "amdgcn-amd-amdhsa--gfx950"\n.text\n'
    txt += "\n".join(lines) + "\n" + kernel_footer(NAME)
    return txt, g.names

if __name__ == "__main__":
    import sys, json
    opts = {}
    for a in sys.argv[2:]:
        if "=" in a:
            k, v = a.split("="); opts[k] = int(v)
    txt, names = build("diag" in sys.argv, opts)
    open(sys.argv[1], "w").write(txt)
    json.dump(names, open(sys.argv[1] + ".names", "w"))
```

```python
from fw import *
from sched import *
import math, struct

S, D, F = 2048, 576, 4608
SLOT = 36864
SPARE = 4*SLOT
PART_BYTES = S * D * 2
WS_PART = 0
WS_HX = 20 << 20
WS_ZF = 40 << 20
ZF_STRIDE = 66 * 1024
WS_YH = 42 << 20
YP = 320 * 4
WS_FLAG = 46 << 20
WS_STAMP = 48 << 20
OOB = 0x40000000
C0 = -2.0 * math.sqrt(2.0 / math.pi) * math.log2(math.e)
C1 = C0 * 0.044715
def f2u(f): return struct.unpack("<I", struct.pack("<f", f))[0]

V_L16 = 1
V_RA, V_RB = 2, 6
V_DM = 10
V_C0, V_C1 = 14, 15
GA = [[16, 32], [48, 64]]
UA = [[80, 96], [112, 128]]
HF = 144
TMP = 216
V_HACC = 232
V_XA = 248
V_R8 = 248
V_PF = 252
V_ONE0 = 253
V_D2 = 254
V_STAMP = 255
RX = 80
V_PERM = 224
V_NEGMU = 64
V_ONE = 231
V_SD = 232
V_SA = 236
V_SX = 240
V_ZP = 241
V_ZQ = 244
V_YC = [247, 250, 251]
V_LB = 232
AX = 0
AF = 144
NAF = 8
AZ = 176
SR_CS, SR_SS, SR_HZ, SR_X, SR_WG, SR_WU, SR_WD, SR_WS, SR_OUT = 4, 8, 12, 40, 44, 48, 52, 56, 60
S_W, S_MT, S_J = 64, 65, 66
S_LX, S_L9 = 67, 68
S_UB = 69
S_WD = 74
S_PB = 75
T0, T1, T2, T3, T4, T5, T6, T7 = 76, 77, 78, 79, 80, 81, 82, 83
S_N0 = 84
S_N1 = 16
S_CU = 25
S_Q0, S_Q8 = 30, 31
S_HB = 32
S_LID = 33
S_ST0, S_ST1 = 34, 35
S_CNT = 93
S_A, S_B, S_C = 94, 95, 96
S_TAU, S_ZB = 38, 39
S_PF = 97
S_XC = 0
S_QU = [30, 36, 37]
S_QN = 39
S_TO = 32
S_GA = 28
S_FL = 1
S_MODE = 2
S_D0 = 3

def srd(dst, ptr, nbytes):
    return [o(f"s_mov_b32 s{dst}, s{ptr}"), o(f"s_and_b32 s{dst+1}, s{ptr+1}, 0xffff"),
            o(f"s_mov_b32 s{dst+2}, {nbytes}"), o(f"s_mov_b32 s{dst+3}, 0x00020000")]
def mf32(acc, A, B, C): return o(f"v_mfma_f32_32x32x16_bf16 {acc}, {A}, {B}, {C}")
def mf16(acc, A, B, C): return o(f"v_mfma_f32_16x16x32_bf16 {acc}, {A}, {B}, {C}")

class DS2(I):
    pass

class Gen:
    def dload(self, texts, tag, pair=False):
        out = self.dstore(texts, tag, pair)
        if hasattr(out[0], "cost"): out[0].cost = 3 + len(texts)
        return out
    def dstore(self, texts, tag, pair=False):
        self.lab = getattr(self, "lab", 0) + 1
        n = self.lab
        if self.opts.get("forcemode") == 1 or not self.opts.get("local", 0) or (self.opts.get("cfg", 0) == 0 and not pair):
            return [vm(t + " sc1", tag) for t in texts]
        body = f"s_bitcmp1_b32 s{S_MODE}, 0\n    s_cbranch_scc1 L_dl{n}\n"
        body += "".join(f"    {t} sc1\n" for t in texts)
        body += f"    s_branch L_dj{n}\nL_dl{n}:\n"
        body += "".join(f"    {t}\n" for t in texts)
        body += f"L_dj{n}:"
        out = [I("buffer_store_multi " + body, "vm", tag)]
        out[0].t = body
        out[0].cost = 3 + 5*len(texts)
        for _ in texts[1:]:
            x = I("; (counted above)", "vm", tag); x.cost = 0; out.append(x)
        return out
    def __init__(self, diag=False, opts=None):
        self.hd_regs = []
        self.osfx = ' sc1' if (opts or {}).get('osc1') else ''
        self.diag = diag; self.opts = opts or {}; self.nst = 0; self.names = []; self.pid = 0
    def stamp(self, name):
        if not self.diag: return []
        if self.opts.get("hdiag") == 2 and name in ("kernarg", "xiss", "proend", "lnfin", "pub", "early", "pok", "ownfin"): return []
        i = self.nst; self.nst += 1; self.names.append(name)
        return [o("s_memtime s[98:99]"), o("s_memrealtime s[100:101]"), o("s_waitcnt lgkmcnt(0)"),
                o(f"v_writelane_b32 v{V_STAMP}, s98, {i}"), o(f"v_writelane_b32 v{V_STAMP}, s100, {i+32}")]

    def paced(self, M, frags, setup, dist):
        N = len(M)
        sl = Slots(N)
        for g, m in enumerate(M):
            if m["op"] == 16: sl.budget[g] = 3
        head = []
        pid = self.pid; self.pid += 1
        def put(t, ins):
            if t < 0: head.extend(ins if isinstance(ins, list) else [ins])
            else: sl.put(t, ins)
        issue = {}
        for f, fr in enumerate(frags):
            t = fr["use"] - fr.get("dist", dist)
            issue[f] = t
            put(t, fr.get("pre", []))
            put(t, [ds(r, ("af", pid, f)) for r in fr["reads"]])
        waited = -1
        n0 = M[0]["need"]
        if n0 >= 0:
            tgt = max(n0, M[1]["need"])
            head.append(wlg(("af", pid, tgt))); waited = tgt
        for g in range(N - 1):
            nx = M[g+1]["need"]
            if nx > waited:
                tgt = nx
                if g + 2 < N and M[g+2]["need"] > nx and issue[M[g+2]["need"]] <= g - 3 and M[g+1]["op"] == 32: tgt = M[g+2]["need"]
                put(g, [wlg(("af", pid, tgt))]); waited = tgt
        setup(sl, head)
        L = list(head)
        for g, m in enumerate(M):
            L += m.get("before", [])
            c = "0" if m["first"] else m.get("C", m["acc"])
            if m.get("C") and m["first"]: c = m["C"]
            L.append((mf32 if m["op"] == 32 else mf16)(m["acc"], m["A"], m["B"], c))
            L += sl.emit(g)
        if self.opts.get("verbose"):
            over = [(g, sl.used[g], sl.budget[g]) for g in range(N) if sl.used[g] > sl.budget[g]]
            print(f"paced {pid}: N={N} over budget: {len(over)} total excess {sum(u-b for _,u,b in over)} avg used {sum(sl.used)/N:.2f}")
            if self.opts.get("verbose") > 1:
                for a in range(0, N, 36):
                    ex = sum(max(0, sl.used[g]-sl.budget[g]) for g in range(a, min(a+36, N)))
                    print(a, "used", sum(sl.used[a:a+36]), "budget", sum(sl.budget[a:a+36]), "excess", ex)
        return L

    def prologue(self):
        L = []
        if self.opts.get("hdiag"): L += [o("s_memrealtime s[98:99]")]
        if self.diag: L += [o(f"v_mov_b32 v{V_STAMP}, 0")]
        L += self.stamp("start")
        L += [o("s_load_dwordx16 s[16:31], s[0:1], 0"), o("s_load_dwordx8 s[32:39], s[0:1], 64"),
              o("s_cmp_ge_u32 s2, 256"), o("s_cbranch_scc1 L_end")]
        L += [o("v_lshrrev_b32 v2, 6, v0"), o("v_and_b32 v0, 63, v0"), o("s_nop 0"),
              o(f"v_readfirstlane_b32 s{S_W}, v2"),
              ] + self.idmap() + [
              o(f"s_mul_i32 s{S_LX}, s{S_W}, {SLOT}"), o(f"s_mul_i32 s{S_L9}, s{S_W}, 9216"),
              o(f"v_lshlrev_b32 v{V_L16}, 4, v0")]
        if self.opts.get("cpf", 1):
            L += [o("s_getpc_b64 s[82:83]"), raw("L_pc:"),
                  o(f"s_lshr_b32 s{T0}, s2, 3"), o(f"s_lshl_b32 s{T0}, s{T0}, 2"), o(f"s_add_u32 s{T0}, s{T0}, s{S_W}"),
                  o(f"s_lshl_b32 s{T0}, s{T0}, 9"),
                  o("v_and_b32 v2, 3, v0"), o("v_lshlrev_b32 v2, 7, v2"), o(f"v_add_u32 v2, s{T0}, v2"),
                  o("v_cmp_gt_u32 vcc, 4, v0"), o("s_and_saveexec_b64 s[80:81], vcc"),
                  vm(f"global_load_dword v{V_PF}, v2, s[82:83]", "pf"), o("s_mov_b64 exec, s[80:81]")]
        L += [o("v_lshrrev_b32 v2, 3, v0"), o("v_and_b32 v3, 7, v0"), o("v_lshrrev_b32 v4, 1, v2"),
              o("v_xor_b32 v3, v3, v4"), o("v_lshlrev_b32 v3, 4, v3"), o("v_xor_b32 v4, 64, v3"),
              o(f"s_lshl_b32 s{T0}, s{S_MT}, 6"), o(f"s_lshl_b32 s{T1}, s{S_W}, 4"), o(f"s_add_u32 s{T0}, s{T0}, s{T1}"),
              o(f"v_add_u32 v5, s{T0}, v2"), o("v_add_u32 v6, 8, v5"),
              o("v_sub_u32 v7, 2048, v5"), o("v_sub_u32 v8, 2048, v6"),
              o("v_cmp_eq_u32 vcc, 0, v5"), o("v_mov_b32 v9, 1024"), o("s_nop 0"),
              o("v_cndmask_b32 v7, v7, v9, vcc"),
              o(f"s_movk_i32 s{T1}, 1152"),
              o(f"v_mad_u32_u24 v240, v5, s{T1}, v3"), o(f"v_mad_u32_u24 v241, v6, s{T1}, v4"),
              o(f"v_mad_u32_u24 v242, v7, s{T1}, v3"), o(f"v_mad_u32_u24 v243, v8, s{T1}, v4")]
        if self.opts.get("xpf", 1) == 2:
            L += [o(f"s_lshl_b32 s{T0}, s{S_MT}, 4"), o(f"s_add_u32 s{T0}, s{T0}, s{S_J}"), o(f"s_lshl_b32 s{T0}, s{T0}, 2"), o(f"s_add_u32 s{T0}, s{T0}, s{S_W}"),
                  o(f"s_mul_i32 s{T0}, s{T0}, 18"), o(f"v_add_u32 v9, s{T0}, v0"), o("v_lshlrev_b32 v9, 7, v9"),
                  o("v_cmp_gt_u32 vcc, 18, v0"), o(f"v_mov_b32 v8, {OOB:#x}"), o("s_nop 0"), o("v_cndmask_b32 v9, v8, v9, vcc")]
        elif self.opts.get("xpf", 1):
            nsh = 16 if self.opts.get("cfg", 0) == 1 else 4
            per = 1152 // nsh // 4
            assert per <= 64 or True
            jj = f"s{S_J}"
            L += [o(f"s_and_b32 s{T0}, s{S_J}, {nsh-1}"), o(f"s_lshl_b32 s{T0}, s{T0}, 2"), o(f"s_add_u32 s{T0}, s{T0}, s{S_W}"), o(f"s_mul_i32 s{T0}, s{T0}, {per}"),
                  o(f"v_add_u32 v9, s{T0}, v0"),
                  o(f"s_mul_i32 s{T0}, s{S_MT}, {64*1152}"),
                  o(f"s_sub_u32 s{T1}, {(2048-63)*1152 - 576*128}, s{T0}"),
                  o("v_lshlrev_b32 v8, 7, v9"), o(f"v_add_u32 v7, s{T1}, v8"), o(f"v_add_u32 v8, s{T0}, v8"),
                  o("v_cmp_gt_u32 vcc, 0x240, v9"), o("s_nop 1"), o("v_cndmask_b32 v9, v7, v8, vcc"),
                  o(f"v_cmp_gt_u32 vcc, {min(per,64)}, v0"), o(f"v_mov_b32 v8, {OOB:#x}"), o("s_nop 0"), o("v_cndmask_b32 v9, v8, v9, vcc")]
        L += [o("s_waitcnt lgkmcnt(0)")]
        L += self.stamp("kernarg")
        L += srd(SR_X, 16, S*D*2)
        if self.opts.get("xpf", 1):
            L += [vm(f"buffer_load_dword v{V_PF}, v9, s[{SR_X}:{SR_X+3}], 0 offen", "pf")]
        HEAD = L
        P = []
        P += srd(SR_WG, 28, D*F*2) + srd(SR_WU, 30, D*F*2) + srd(SR_WD, 32, F*D*2) + srd(SR_WS, 38, 256 << 20) + srd(SR_OUT, 34, S*D*2)
        P += srd(SR_CS, 18, S*S*2) + srd(SR_SS, 20, S*S*2)
        P += [o(f"s_lshl_b32 s{T0}, s{S_W}, 6"), o(f"v_add_u32 v2, s{T0}, v0"), o("v_cmp_eq_u32 vcc, 0, v2"),
              o(f"v_mov_b32 v3, {OOB:#x}"), o("v_mov_b32 v4, 0"), o(f"v_cndmask_b32 v{V_ONE0}, v3, v4, vcc")]
        P += [o(f"s_lshl_b32 s{S_LID}, s{S_MT}, 4"), o(f"s_add_u32 s{S_LID}, s{S_LID}, s{S_J}")]
        P += [o(f"s_and_b32 s{T2}, s{S_J}, 1"), o(f"s_mul_i32 s{T0}, s{S_J}, 288"), o(f"s_mul_i32 s{T1}, s{T2}, 224"),
              o(f"s_add_u32 s{T1}, s{T0}, s{T1}"),
              G([o(f"s_cmp_eq_u32 s{T2}, 0"), o(f"s_cselect_b32 s{T3}, 64, -64"), o(f"s_cselect_b32 s{T4}, 256, 0")]),
              o(f"s_add_u32 s{T4}, s{T4}, s{T0}")]
        for u in range(4):
            P += [o(f"s_mul_i32 s{T5}, s{T3}, {u}"), o(f"s_add_u32 s{T5}, s{T5}, s{T1}"),
                  o(f"s_lshl_b32 s{S_UB+u}, s{T5}, 1"),
                  o(f"s_mul_i32 s{S_N0+2*u}, s{T5}, 1152"), o(f"s_add_u32 s{S_N0+2*u+1}, s{S_N0+2*u}, {32*1152}")]
        P += [o(f"s_lshl_b32 s{S_UB+4}, s{T4}, 1"), o(f"s_mul_i32 s{S_N0+8}, s{T4}, 1152")]
        P += [o(f"s_mov_b32 s{S_A}, s{S_UB}")]
        P += [o(f"s_mul_i32 s{T5}, s{S_W}, {72*9216}")]
        for u in range(4): P += [o(f"s_add_u32 s{S_UB+u}, s{S_UB+u}, s{T5}")]
        P += [o(f"s_lshl_b32 s{T5}, s{T5}, 1"), o(f"s_add_u32 s{S_UB+4}, s{S_UB+4}, s{T5}")]
        P += [o(f"s_lshr_b32 s{T0}, s{S_J}, 1"), o(f"s_mul_i32 s{S_PB}, s{T0}, {PART_BYTES}"),
              o(f"s_lshl_b32 s{T0}, s{S_MT}, 2"), o(f"s_add_u32 s{T0}, s{T0}, s{S_W}"),
              o(f"s_mul_i32 s{T0}, s{T0}, {18*2048}"), o(f"s_add_u32 s{S_PB}, s{S_PB}, s{T0}"),
              o(f"s_lshl_b32 s{T0}, s{S_LID}, 2"), o(f"s_add_u32 s{T0}, s{T0}, s{S_W}"),
              o(f"s_mul_i32 s{S_HB}, s{T0}, {18*1024}"), o(f"s_add_u32 s{S_HB}, s{S_HB}, {WS_HX}")]
        P += [o("v_lshrrev_b32 v2, 3, v0"), o("v_and_b32 v3, 7, v0"),
              o("v_bfe_u32 v4, v0, 4, 1"), o("v_lshlrev_b32 v4, 2, v4"), o("v_xor_b32 v3, v3, v4"), o("v_lshlrev_b32 v3, 4, v3"),
              o(f"v_mul_u32_u24 v2, 9216, v2"), o(f"v_add_u32 v{V_DM}, v2, v3")]
        for t in range(1, 4): P += [o(f"v_add_u32 v{V_DM+t}, {t*(8*9216-1024)}, v{V_DM}")]
        P += [o("v_and_b32 v2, 31, v0"), o("v_bfe_u32 v3, v0, 1, 3"), o("v_lshrrev_b32 v4, 5, v0"), o("v_xor_b32 v3, v3, v4"),
              o("v_lshlrev_b32 v3, 4, v3"), o("v_lshlrev_b32 v2, 7, v2"), o("v_add_u32 v2, v2, v3"),
              o(f"v_add_u32 v{V_XA}, s{S_LX}, v2"),
              o(f"v_xor_b32 v{V_XA+1}, 32, v{V_XA}"), o(f"v_xor_b32 v{V_XA+2}, 64, v{V_XA}"), o(f"v_xor_b32 v{V_XA+3}, 96, v{V_XA}")]
        P += [o("v_and_b32 v2, 15, v0"),
              o("v_and_b32 v3, 3, v2"), o("v_bfe_u32 v4, v2, 2, 1"), o("v_bfe_u32 v5, v2, 3, 1"),
              o("v_lshlrev_b32 v4, 3, v4"), o("v_lshlrev_b32 v5, 2, v5"), o("v_or_b32 v3, v3, v4"), o("v_or_b32 v3, v3, v5"),
              o("v_lshrrev_b32 v4, 3, v3"), o("v_lshrrev_b32 v5, 5, v0"),
              o("v_and_b32 v6, 1, v3"), o("v_lshlrev_b32 v6, 4, v6"), o("v_mov_b32 v7, 0x3f80"), o("v_lshlrev_b32 v7, v6, v7"), o("v_mov_b32 v8, 0"),
              G([o("v_cmp_eq_u32 vcc, v4, v5"), o("v_nop"), o("v_nop"), o("v_cndmask_b32 v7, v8, v7, vcc")]),
              o("v_bfe_u32 v6, v3, 1, 2"), o("v_bfe_u32 v9, v0, 4, 1")]
        for d in range(4):
            P += [G([o(f"v_cmp_eq_u32 vcc, {d}, v6"), o("v_nop"), o("v_nop"), o(f"v_cndmask_b32 v{V_PERM+d}, v8, v7, vcc")])]
        P += [G([o("v_cmp_eq_u32 vcc, 1, v9"), o("v_nop"), o("v_nop")] + [o(f"v_cndmask_b32 v{V_PERM+4+d}, v8, v{V_PERM+d}, vcc") for d in range(4)] +
                [o(f"v_cndmask_b32 v{V_PERM+d}, v{V_PERM+d}, v8, vcc") for d in range(4)])]
        L = []
        L += [o("v_mov_b32 v4, 0"), o(f"s_lshl_b32 s{T0}, s{S_LID}, 7"), o(f"s_add_u32 s{T0}, s{T0}, {WS_FLAG}"),
              vm(f"buffer_store_dword v4, v{V_ONE0}, s[{SR_WS}:{SR_WS+3}], s{T0} offen sc1", "flinit")]
        L += self.h_srd(S_J)
        if self.opts.get("pf", 1):
            L += [o(f"s_and_b32 s{T0}, s{S_MT}, 7"), o(f"s_mul_i32 s{T0}, s{T0}, 36"), o(f"s_mul_i32 s{T1}, s{S_W}, 9"), o(f"s_add_u32 s{T0}, s{T0}, s{T1}"),
                  o(f"v_add_u32 v2, s{T0}, v0"), o(f"v_mov_b32 v4, {OOB:#x}"),
                  o(f"s_mov_b32 s{T1}, {(2**32+8)//9}"), o(f"v_mul_hi_u32 v5, v2, s{T1}"), o("v_mul_u32_u24 v6, 9, v5"), o("v_sub_u32 v6, v2, v6"),
                  o(f"v_add_u32 v5, s{T7}, v5"), o(f"v_mul_u32_u24 v5, 1152, v5"), o("v_lshlrev_b32 v6, 7, v6"), o("v_add_u32 v5, v5, v6"),
                  o(f"v_mul_u32_u24 v3, 9216, v2"),
                  o("v_cmp_gt_u32 vcc, 9, v0"), o("s_nop 1"), o("v_cndmask_b32 v3, v4, v3, vcc"), o("v_cndmask_b32 v5, v4, v5, vcc"),
                  vm(f"buffer_load_dword v{V_PF}, v5, s[{SR_HZ}:{SR_HZ+3}], 0 offen", "pf")]
            L += [o(f"s_cmp_lt_u32 s{S_J}, 2"), o("s_cbranch_scc0 L_nopf2"),
                  o(f"s_mov_b32 s{T0}, {7*32*1152}"),
                  o(f"v_add_u32 v6, s{T0}, v5"), o("v_cmp_gt_u32 vcc, 9, v0"), o("s_and_saveexec_b64 s[82:83], vcc"),
                  o(f"global_load_dword v{V_PF}, v6, s[24:25]"),
                  o("s_mov_b64 exec, s[82:83]"), raw("L_nopf2:")]
            for sig in range(self.opts.get("npf", 4)):
                mat, kh = (sig // 2) % 2, sig % 2
                assert sig < 4
                rs = SR_WG if mat == 0 else SR_WU
                L += [o(f"s_add_u32 s{T6}, s{S_A}, {kh*288*9216}"),
                      vm(f"buffer_load_dword v{V_PF}, v3, s[{rs}:{rs+3}], s{T6} offen", "pf")]
        if self.opts.get("tlb", 0):
            st = self.opts.get("tlb", 0)
            n = (48 << 20) >> st
            L += [o(f"v_lshlrev_b32 v2, {st}, v0"), o(f"v_mov_b32 v4, {OOB:#x}")]
            for k in range(-(-n // 64)):
                L += [o(f"s_mov_b32 s{T0}, {k*64 << st}"), vm(f"buffer_load_dword v{V_PF}, v2, s[{SR_WS}:{SR_WS+3}], s{T0} offen", "pf")]
            L += [o("v_lshlrev_b32 v2, 16, v0"), vm(f"buffer_load_dword v{V_PF}, v2, s[{SR_OUT}:{SR_OUT+3}], 0 offen", "pf")]
        if self.opts.get('bearly'):
            L += [o(f"s_lshl_b32 s{S_PF}, s{S_LID}, 2"), o(f"s_add_u32 s{S_PF}, s{S_PF}, s{S_W}"), o(f"s_mul_i32 s{S_PF}, s{S_PF}, 41"),
                   o(f"v_add_u32 v2, s{S_PF}, v0"), o("v_lshlrev_b32 v2, 7, v2"), o("v_cmp_gt_u32 vcc, 41, v0"), o("s_nop 1"),
                   o(f"v_cndmask_b32 v2, v{V_ONE0}, v2, vcc"),
                   vm(f"buffer_load_dword v{V_PF}, v2, s[{SR_WG}:{SR_WG+3}], 0 offen", "pf"),
                   vm(f"buffer_load_dword v{V_PF}, v2, s[{SR_WU}:{SR_WU+3}], 0 offen", "pf")]
        post = L
        for n, i in enumerate(P):
            if not isinstance(i, G) and i.t.startswith("v_cmp_eq_u32 vcc, 0, v2"):
                P[n:n+4] = [G(P[n:n+4])]
                break
        out = HEAD
        flatx = []
        for kap in range(9):
            xl = self.x_line(kap)
            flatx += [xl[3*r:3*r+3] for r in range(4)]
        npre = len(P); pi = 0
        first = self.opts.get("xfree", 10)
        for n, g in enumerate(flatx):
            out += g
            if n >= first:
                take = -(-(npre - pi) // (36 - n))
                for it in P[pi:pi + take]: out += (list(it) if isinstance(it, G) else [it])
                pi += take
        out += self.stamp("xiss")
        L = out + post
        return L

    def tr_bases(self):
        L = []
        L += [o("v_lshrrev_b32 v16, 5, v0"), o("v_lshlrev_b32 v16, 10, v16"),
              o("v_bfe_u32 v17, v0, 2, 2"), o("v_lshlrev_b32 v17, 7, v17"), o("v_add_u32 v16, v16, v17"),
              o("v_bfe_u32 v17, v0, 3, 1"), o("v_lshlrev_b32 v17, 6, v17"), o("v_add_u32 v16, v16, v17"),
              o("v_bfe_u32 v17, v0, 4, 1"), o("v_lshlrev_b32 v17, 5, v17"), o("v_add_u32 v16, v16, v17"),
              o("v_and_b32 v17, 3, v0"), o("v_lshlrev_b32 v17, 3, v17"), o(f"v_add_u32 v{V_RA}, v16, v17")]
        for s in range(1, 4): L += [o(f"v_add_u32 v{V_RA+s}, {s*SLOT}, v{V_RA}")]
        for s in range(4): L += [o(f"v_xor_b32 v{V_RB+s}, 64, v{V_RA+s}")]
        return L

    def idmap(self):
        cfg = self.opts.get("cfg", 0)
        if cfg == 0:
            return [o(f"s_and_b32 s{S_J}, s2, 3"), o(f"s_lshl_b32 s{S_J}, s{S_J}, 2"),
              o(f"s_bfe_u32 s{T0}, s2, 0x20003"), o(f"s_or_b32 s{S_J}, s{S_J}, s{T0}"),
              o(f"s_bfe_u32 s{S_MT}, s2, 0x10002"), o(f"s_lshl_b32 s{S_MT}, s{S_MT}, 3"),
              o(f"s_lshr_b32 s{T0}, s2, 5"), o(f"s_or_b32 s{S_MT}, s{S_MT}, s{T0}")]
        if cfg == 1:
            return [o(f"s_and_b32 s{S_MT}, s2, 7"), o(f"s_lshl_b32 s{S_MT}, s{S_MT}, 1"), o(f"s_bfe_u32 s{T0}, s2, 0x10003"),
                    o(f"s_or_b32 s{S_MT}, s{S_MT}, s{T0}"), o(f"s_lshr_b32 s{S_J}, s2, 4")]
        if cfg == 3:
            return [o(f"s_and_b32 s{S_J}, s2, 7"), o(f"s_lshl_b32 s{S_J}, s{S_J}, 1"), o(f"s_bfe_u32 s{T0}, s2, 0x10003"),
                    o(f"s_or_b32 s{S_J}, s{S_J}, s{T0}"), o(f"s_lshr_b32 s{S_MT}, s2, 4")]
        if cfg == 2:
            return [o(f"s_and_b32 s{S_J}, s2, 1"), o(f"s_lshl_b32 s{S_J}, s{S_J}, 3"),
              o(f"s_bfe_u32 s{T0}, s2, 0x30003"), o(f"s_or_b32 s{S_J}, s{S_J}, s{T0}"),
              o(f"s_bfe_u32 s{S_MT}, s2, 0x20001"), o(f"s_lshl_b32 s{S_MT}, s{S_MT}, 2"),
              o(f"s_lshr_b32 s{T0}, s2, 6"), o(f"s_or_b32 s{S_MT}, s{S_MT}, s{T0}")]

    def h_srd(self, zreg):
        return [o(f"s_cmp_lt_u32 s{zreg}, 9"),
                o(f"s_cselect_b32 s{SR_HZ}, s22, s24"), o(f"s_cselect_b32 s{SR_HZ+1}, s23, s25"), o(f"s_cselect_b32 s{T7}, 0, 9"),
                o(f"s_and_b32 s{SR_HZ+1}, s{SR_HZ+1}, 0xffff"), o(f"s_mov_b32 s{SR_HZ+2}, {D*D*2}"), o(f"s_mov_b32 s{SR_HZ+3}, 0x00020000"),
                o(f"s_sub_u32 s{T7}, s{zreg}, s{T7}"), o(f"s_lshl_b32 s{T7}, s{T7}, 5")]

    def h_dma(self, zreg, slot, tag):
        L = self.h_srd(zreg)
        L += [o(f"s_lshl_b32 s{T1}, s{S_W}, 3"), o(f"s_add_u32 s{T0}, s{T7}, s{T1}"),
             o("v_lshrrev_b32 v240, 3, v0"), o("v_and_b32 v241, 7, v0"), o("v_lshrrev_b32 v242, 1, v240"), o("v_xor_b32 v241, v241, v242"),
             o(f"s_and_b32 s{T1}, s{S_W}, 1"), o(f"s_lshl_b32 s{T1}, s{T1}, 2"), o(f"v_xor_b32 v241, s{T1}, v241"),
             o("v_lshlrev_b32 v241, 4, v241"),
             o(f"v_add_u32 v240, s{T0}, v240"), o(f"s_movk_i32 s{T1}, 1152"), o(f"v_mad_u32_u24 v240, v240, s{T1}, v241"),
             o(f"s_lshl_b32 s{T1}, s{S_W}, 10"), o(f"s_add_u32 s{T1}, s{T1}, {slot*SLOT}")]
        for kap in range(9):
            L += [o(f"s_add_u32 m0, s{T1}, {4*kap*1024 - 128*kap}"), o("s_nop 0"),
                  vm(f"buffer_load_dwordx4 v240, s[{SR_HZ}:{SR_HZ+3}], 0 offen offset:{128*kap} lds", tag)]
        return L

    def h_special(self, zreg, slot, sfx):
        return [o(f"s_cmp_eq_u32 s{zreg}, 9"), o(f"s_cbranch_scc0 L_h_nosp{sfx}"), o(f"s_cmp_eq_u32 s{S_W}, 0"), o(f"s_cbranch_scc0 L_h_nosp{sfx}"),
                o("v_mov_b32 v16, 0xbf803f80"), o("v_mov_b32 v17, v16"), o("v_mov_b32 v18, v16"), o("v_mov_b32 v19, v16"),
                o("v_lshrrev_b32 v240, 3, v0"), o("v_lshlrev_b32 v240, 12, v240"), o("v_and_b32 v241, 7, v0"), o("v_lshlrev_b32 v241, 4, v241"),
                o("v_add_u32 v240, v240, v241"), o(f"v_add_u32 v240, {slot*SLOT}, v240"), o(f"v_add_u32 v241, {slot*SLOT}, v241"),
                o("ds_write_b128 v240, v[16:19]"), o("ds_write_b128 v241, v[16:19] offset:32768"),
                o("s_waitcnt lgkmcnt(0)"), raw(f"L_h_nosp{sfx}:")]

    def x_line(self, kap):
        L = []
        for rho in range(4):
            L += [o(f"s_add_u32 m0, s{S_LX}, {(4*kap+rho)*1024 - 128*kap}"), o("s_nop 0"),
                  vm(f"buffer_load_dwordx4 v{240+rho}, s[{SR_X}:{SR_X+3}], 0 offen offset:{128*kap} lds", ("x", kap))]
        return L
    def x_dma_variants(self):
        L = []
        for kap in range(self.opts.get("xpre", 3)): L += self.x_line(kap)
        return L
    def x_dma_variants_old(self):
        if not self.opts.get("rot", 0):
            L = []
            for kap in range(9):
                for rho in range(4):
                    L += [o(f"s_add_u32 m0, s{S_LX}, {(4*kap+rho)*1024 - 128*kap}"), o("s_nop 0"),
                          vm(f"buffer_load_dwordx4 v{240+rho}, s[{SR_X}:{SR_X+3}], 0 offen offset:{128*kap} lds", ("x", kap))]
            return L
        L = [o(f"s_and_b32 s{T0}, s{S_J}, 3")]
        for v in range(1, 4): L += [o(f"s_cmp_eq_u32 s{T0}, {v}"), o(f"s_cbranch_scc1 L_xd{v}")]
        for v in range(4):
            if v: L += [raw(f"L_xd{v}:")]
            for pos in range(9):
                kap = (self.K0[v] + pos) % 9
                for rho in range(4):
                    t = f"buffer_load_dwordx4 v{240+rho}, s[{SR_X}:{SR_X+3}], 0 offen offset:{128*kap} lds"
                    L += [o(f"s_add_u32 m0, s{S_LX}, {(4*kap+rho)*1024 - 128*kap}"), o("s_nop 0"),
                          (vm(t, ("x", pos)) if v == 3 else o(t))]
            if v < 3: L += [o("s_branch L_xdj")]
        L += [raw("L_xdj:")]
        return L
    K0 = [0, 2, 4, 7]

    def ln_stats(self):
        L = []
        SA = 16
        for i in range(8): L += [o(f"v_mov_b32 v{SA+i}, 0")]
        L += [o(f"s_mov_b32 s{T5}, 0x3f803f80")]
        def reads(kap):
            return [wvm(("x", kap))] + [ds(f"ds_read_b128 v[{RX+4*ks}:{RX+4*ks+3}], v{V_XA+(ks&3)} offset:{(ks//4)*4096}", ("xr", ks)) for ks in range(4*kap, 4*kap+4)]
        L += reads(0)
        for kap in range(9):
            if kap + 1 < 9: L += reads(kap + 1)
            L += self.stats_line(kap)
        return L
    def stats_line(self, kap):
        L = []
        SA = 16
        for ks in range(4*kap, 4*kap + 4):
            L += [wlg(("xr", ks))]
            for i in range(4):
                r = RX + 4*ks + i
                L += [o(f"v_dot2_f32_bf16 v{SA+i}, v{r}, s{T5}, v{SA+i}"),
                      o(f"v_dot2_f32_bf16 v{SA+4+i}, v{r}, v{r}, v{SA+4+i}")]
        return L

    def ln_stats_v(self, v, tracked, order):
        L = []
        SA = 16
        for i in range(8): L += [o(f"v_mov_b32 v{SA+i}, 0")]
        L += [o(f"s_mov_b32 s{T5}, 0x3f803f80")]
        def reads(pos):
            kap = order[pos]
            w = [wvmf(("x", pos))]
            return w + [o(f"ds_read_b128 v[{RX+4*ks}:{RX+4*ks+3}], v{V_XA+(ks&3)} offset:{(ks//4)*4096}") for ks in range(4*kap, 4*kap+4)]
        L += reads(0)
        L += self.stamp("x0")
        for pos in range(9):
            if pos == 4: L += self.stamp("x4")
            if pos + 1 < 9: L += reads(pos + 1)
            kap = order[pos]
            for n, ks in enumerate(range(4*kap, 4*kap + 4)):
                left = (3 - n) + (4 if pos + 1 < 9 else 0)
                L += [o(f"s_waitcnt lgkmcnt({left})")]
                for i in range(4):
                    r = RX + 4*ks + i
                    L += [o(f"v_dot2_f32_bf16 v{SA+i}, v{r}, s{T5}, v{SA+i}"),
                          o(f"v_dot2_f32_bf16 v{SA+4+i}, v{r}, v{r}, v{SA+4+i}")]
        return L

    def ln_stats_old(self):
        L = []
        SA = 16
        for i in range(8): L += [o(f"v_mov_b32 v{SA+i}, 0")]
        L += [o(f"s_mov_b32 s{T5}, 0x3f803f80")]
        def reads(kap):
            return [wvm(("x", kap))] + [ds(f"ds_read_b128 v[{RX+4*ks}:{RX+4*ks+3}], v{V_XA+(ks&3)} offset:{(ks//4)*4096}", ("xr", ks)) for ks in range(4*kap, 4*kap+4)]
        L += reads(0)
        for kap in range(9):
            if kap + 1 < 9: L += reads(kap + 1)
            for ks in range(4*kap, 4*kap + 4):
                L += [wlg(("xr", ks))]
                for i in range(4):
                    r = RX + 4*ks + i
                    L += [o(f"v_dot2_f32_bf16 v{SA+i}, v{r}, s{T5}, v{SA+i}"),
                          o(f"v_dot2_f32_bf16 v{SA+4+i}, v{r}, v{r}, v{SA+4+i}")]
        return L

    def ln_finish(self):
        SA = 16
        L = [o("s_nop 2"),
             o(f"v_add_f32 v{SA}, v{SA}, v{SA+1}"), o(f"v_add_f32 v{SA+2}, v{SA+2}, v{SA+3}"),
             o(f"v_add_f32 v{SA+4}, v{SA+4}, v{SA+5}"), o(f"v_add_f32 v{SA+6}, v{SA+6}, v{SA+7}"),
             o(f"v_add_f32 v24, v{SA}, v{SA+2}"), o(f"v_add_f32 v26, v{SA+4}, v{SA+6}"),
             o("v_mov_b32 v25, v24"), o("v_mov_b32 v27, v26"), o("s_nop 1"),
             o("v_permlane32_swap_b32 v24, v25"), o("v_permlane32_swap_b32 v26, v27"), o("s_nop 1"),
             o("v_add_f32 v24, v24, v25"), o("v_add_f32 v26, v26, v27"),
             o(f"s_mov_b32 s{T5}, {f2u(1.0/576):#x}"),
             o(f"v_mul_f32 v24, s{T5}, v24"), o(f"v_mul_f32 v26, s{T5}, v26"),
             o("v_fma_f32 v26, -v24, v24, v26"), o("v_max_f32 v26, 0, v26"),
             o("v_cvt_pk_bf16_f32 v24, v24, v26"),
             o("v_and_b32 v26, 0xffff0000, v24"), o("v_lshlrev_b32 v24, 16, v24"),
             o(f"v_xor_b32 v{V_NEGMU}, 0x80000000, v24")]
        for i in range(1, 16): L += [o(f"v_mov_b32 v{V_NEGMU+i}, v{V_NEGMU}")]
        L += [o(f"v_add_f32 v26, {f2u(1e-5):#x}, v26"),
              o("v_cvt_pk_bf16_f32 v26, v26, v26"), o("v_lshlrev_b32 v26, 16, v26"),
              o("v_sqrt_f32 v26, v26"), o("s_nop 0"),
              o("v_cvt_pk_bf16_f32 v26, v26, v26"), o("v_lshlrev_b32 v26, 16, v26"),
              o("v_rcp_f32 v27, v26"), o(f"v_mul_f32 v{V_D2}, v26, v26"),
              o(f"v_mul_f32 v{V_C0}, {f2u(C0):#x}, v27"), o("v_mul_f32 v28, v27, v27"), o("v_mul_f32 v28, v28, v27"),
              o(f"v_mul_f32 v{V_C1}, {f2u(C1):#x}, v28"),
              o("v_and_b32 v28, 31, v0"), o("v_lshlrev_b32 v28, 2, v28"), o(f"s_lshl_b32 s{T0}, s{S_W}, 12"), o(f"s_add_u32 s{T0}, s{T0}, {SPARE}"),
              o(f"v_add_u32 v28, s{T0}, v28"), ds("ds_write_b32 v28, v27", "rtab")]
        return L

    def seg_norm_h(self):
        M = []; frags = []
        def UBf(i):
            if i == 0: return 16
            if i % 2 == 0: return RX + 8*(i - 2)
            return (32, 48, 16)[((i - 1)//2) % 3]
        def nextuser(i):
            for k in range(i + 1, 18):
                if UBf(k) == UBf(i): return k
            return None
        posU = {}; posH = {}
        def U(i):
            b = UBf(i)
            M.append(dict(op=32, acc=f"v[{b}:{b+15}]", first=True, C=f"v[{V_NEGMU}:{V_NEGMU+15}]", A=f"v[{V_PERM}:{V_PERM+3}]", B=f"v[{RX+8*i}:{RX+8*i+3}]", need=-1))
            M.append(dict(op=32, acc=f"v[{b}:{b+15}]", first=False, A=f"v[{V_PERM+4}:{V_PERM+7}]", B=f"v[{RX+8*i+4}:{RX+8*i+7}]", need=-1))
            posU[i] = len(M) - 2
        def H(ks):
            f = len(frags); a = AF + 4*(f % NAF)
            frags.append(dict(reads=[f"ds_read_b128 a[{a}:{a+3}], v{V_XA+(ks&3)} offset:{(ks//4)*4096}"], use=len(M)))
            M.append(dict(op=32, acc=f"v[{V_HACC}:{V_HACC+15}]", first=(ks == 0), A=f"a[{AX+4*ks}:{AX+4*ks+3}]", B=f"a[{a}:{a+3}]", need=f))
            posH[ks] = len(M) - 1
        LAG = 5
        for i in range(18):
            U(i)
            if i >= LAG: H(2*(i-LAG)); H(2*(i-LAG)+1)
        for i in range(18 - LAG, 18): H(2*i); H(2*i+1)
        last = -1
        for m in M:
            if m["need"] < 0: m["need"] = last
            else: last = m["need"]
        g0 = frags[0]["use"] - 6
        M[g0].setdefault("before", []).extend([wvm("wz1")] + self.h_special(S_A, 2, "a") + [o("s_waitcnt lgkmcnt(0)"), o("s_barrier")])
        def setup(sl, head):
            sl.put(2, [o('s_nop 4')]); sl.put(3, [o('s_nop 4')])
            for i in range(18):
                b = UBf(i)
                ins = []
                for q in range(8):
                    t = 2 + 2*(i % 4) + (q % 2)
                    ins += [o(f"v_cvt_pk_bf16_f32 v{t}, v{b+2*q}, v{b+2*q+1}"), o(f"v_accvgpr_write_b32 a{AX+8*i+q}, v{t}")]
                start = posU[i] + 1 + 3
                end = min(posH[2*i] - 1, start + 11)
                if nextuser(i) is not None: end = min(end, posU[nextuser(i)])
                e = sl.stream(ins, start, end, spill=0)
                assert e < posH[2*i] - 0, (i, e, posH[2*i])
        return self.paced(M, frags, setup, 6)

    def h_epilogue(self, zreg, acc, rr, tb):
        L = []
        sg, f0 = tb + 8, tb + 9
        L += [G([o(f"s_cmp_lt_u32 s{zreg}, 9"), o(f"s_cselect_b32 s{S_ST0}, 1.0, -1.0")]), o(f"v_mov_b32 v{sg}, s{S_ST0}"),
              G([o(f"s_cmp_eq_u32 s{zreg}, 9"), o(f"s_cselect_b32 s{S_ST0}, 0, 99")]),
              G([o(f"v_and_b32 v{f0}, 31, v0"), o(f"v_cmp_eq_u32 vcc, s{S_ST0}, v{f0}"), o(f"v_mov_b32 v{tb+10}, 1.0"), o("v_nop"),
                 o(f"v_cndmask_b32 v{sg}, v{sg}, v{tb+10}, vcc")]),
              G([o(f"s_or_b32 s{S_ST0}, s{S_MT}, s{S_W}"), o(f"s_cmp_eq_u32 s{S_ST0}, 0"), o(f"s_cselect_b32 s{S_ST0}, 32, 0")]),
              G([o(f"v_cmp_gt_u32 vcc, s{S_ST0}, v0"), o(f"v_mov_b32 v{tb+10}, 0"), o("v_nop"),
                 o(f"v_cndmask_b32 v{f0}, v{sg}, v{tb+10}, vcc")])]
        L += [o(f"v_mul_f32 v{tb+11}, v{acc+8}, v{rr+8}")]
        for r in range(8):
            L += [o(f"v_mul_f32 v{rr+8+r}, v{rr+8+r}, v{f0 if r == 0 else sg}"),
                  o(f"v_mul_f32 v{tb+r}, v{acc+r}, v{rr+r}"),
                  o(f"v_fma_f32 v{tb+r}, v{acc+8+r}, v{rr+8+r}, v{tb+r}")]
        for i in range(4):
            L += [o(f"v_cvt_pk_bf16_f32 v{tb+12+i}, v{tb+2*i}, v{tb+2*i+1}")]
        L += [G([o("v_nop"), o("v_nop"), o(f"v_permlane32_swap_b32 v{tb+12}, v{tb+14}"), o(f"v_permlane32_swap_b32 v{tb+13}, v{tb+15}")]),
              G([o(f"s_mul_i32 s{S_ST0}, s{zreg}, {ZF_STRIDE}"), o(f"s_lshl_b32 s{S_ST1}, s{S_MT}, 2"), o(f"s_add_u32 s{S_ST1}, s{S_ST1}, s{S_W}")]),
              G([o(f"s_lshl_b32 s{S_ST1}, s{S_ST1}, 10"), o(f"s_add_u32 s{S_ST1}, s{S_ST1}, s{S_ST0}"), o(f"s_add_u32 s{S_ST1}, s{S_ST1}, {WS_ZF}")]),
              vm(f"buffer_store_dwordx4 v[{tb+12}:{tb+15}], v{V_L16}, s[{SR_WS}:{SR_WS+3}], s{S_ST1} offen sc1", "zst"),
              o(f"v_mov_b32 v{tb+1}, 0"), o(f"v_mov_b32 v{tb+2}, 0"), o(f"v_mov_b32 v{tb+3}, 0"),
              o(f"v_cvt_pk_bf16_f32 v{tb}, v{tb+11}, v{tb+1}"),
              G([o("v_cmp_gt_u32 vcc, 32, v0"), o("v_nop"), o("v_nop"), o(f"v_cndmask_b32 v{tb}, v{tb+1}, v{tb}, vcc")]),
              G([o(f"s_or_b32 s{S_ST1}, s{S_MT}, s{S_W}"), o(f"s_cmp_le_u32 s{zreg}, 9"), o(f"s_cselect_b32 s{S_C}, 0, 1")]),
              G([o(f"s_or_b32 s{S_ST1}, s{S_ST1}, s{S_C}"), o(f"s_cmp_eq_u32 s{S_ST1}, 0"), o(f"s_cselect_b32 s{S_C}, 0, {OOB:#x}")]),
              o(f"v_add_u32 v{tb+4}, s{S_C}, v{V_L16}"),
              o(f"s_add_u32 s{S_ST0}, s{S_ST0}, {WS_ZF + 64*1024}"),
              vm(f"buffer_store_dwordx4 v[{tb}:{tb+3}], v{tb+4}, s[{SR_WS}:{SR_WS+3}], s{S_ST0} offen sc1", "zst"),
              G([o(f"v_mov_b32 v{tb+12}, 0"), o(f"v_mov_b32 v{tb+13}, 0"), o(f"v_mov_b32 v{tb+14}, 0"), o(f"v_mov_b32 v{tb+15}, 0")]),
              vm(f"buffer_store_dwordx4 v[{tb+12}:{tb+15}], v{tb+4}, s[{SR_WS}:{SR_WS+3}], s{S_ST0} offen offset:1024 sc1", "zst")]
        return L

    def rr_reads(self, rr, tmp, n=1):
        return [o(f"v_lshrrev_b32 v{tmp}, 5, v0"), o(f"v_lshlrev_b32 v{tmp}, 4, v{tmp}"), o(f"s_lshl_b32 s{S_C}, s{S_W}, 12"),
                o(f"s_add_u32 s{S_C}, s{S_C}, {SPARE}"), o(f"v_add_u32 v{tmp}, s{S_C}, v{tmp}")] + \
               [ds(f"ds_read_b128 v[{rr+4*q}:{rr+4*q+3}], v{tmp} offset:{32*q}", ("rr", n)) for q in range(4)] + [wlg(("rr", n))]

    def h2_block(self):
        L = [o(f"s_cmp_lt_u32 s{S_J}, 2"), o("s_cbranch_scc0 L_noz2b")]
        B = [o(f"v_add_u32 v{64+i}, {SLOT}, v{V_XA+i}") for i in range(4)]
        B += [o(f"s_waitcnt vmcnt({18 if self.opts.get('bearly') else 20})"), o("s_barrier")]
        def rd(ks):
            a_ = AF + 4*(ks % NAF)
            return o(f"ds_read_b128 a[{a_}:{a_+3}], v{64+(ks&3)} offset:{(ks//4)*4096}")
        for ks in range(6): B += [rd(ks)]
        for k in range(36):
            a_ = AF + 4*(k % NAF)
            n_out = min(5, 35 - k)
            B += [o(f"s_waitcnt lgkmcnt({n_out})"), mf32("v[128:143]", f"a[{AX+4*k}:{AX+4*k+3}]", f"a[{a_}:{a_+3}]", "0" if k == 0 else "v[128:143]")]
            if k + 6 < 36: B += [rd(k + 6)]
        B += [raw("L_noz2b:"),
              o(f"s_cmp_lt_u32 s{S_J}, 2"), o(f"s_cselect_b32 s{S_B}, s{S_B}, 0x4000")]
        return L + B

    def dma_p1(self, sig, slot, tA=226, tB=227):
        groups = []
        if sig < 16:
            u, mat, kh = sig // 4, (sig // 2) % 2, sig % 2
            rs = SR_WG if mat == 0 else SR_WU
            for grp, ts in enumerate([[0,1,2,3],[0,1,2,3],[0]]):
                g = [o(f"s_add_u32 m0, s{S_L9}, {slot*SLOT + grp*4096}"),
                     o(f"s_add_u32 s{S_D0}, s{S_UB+u}, {(kh*288 + grp*32)*9216}")]
                for t in ts:
                    groups.append(g + [vm(f"buffer_load_dwordx4 v{V_DM+t}, s[{rs}:{rs+3}], s{S_D0} offen offset:{t*1024} lds", ("st", sig))])
                    g = []
        else:
            rs = SR_WG if sig == 16 else SR_WU
            for grp, ts in enumerate([[0,1,2,3],[0,1,2,3],[0]]):
                g = []
                if sig == 16 and grp == 0:
                    groups.append([o(f"v_lshrrev_b32 v{tA}, 2, v0"), o(f"v_and_b32 v{tB}, 3, v0"), o(f"v_lshlrev_b32 v{tB}, 4, v{tB}")])
                    groups.append([o(f"v_mul_u32_u24 v{tA}, 9216, v{tA}"), o(f"v_add_u32 v{V_DM}, v{tA}, v{tB}")] +
                                  [o(f"v_add_u32 v{V_DM+t}, {t*(16*9216-1024)}, v{V_DM}") for t in range(1, 4)])
                g += [o(f"s_add_u32 m0, s{S_L9}, {slot*SLOT + grp*4096}"),
                      o(f"s_add_u32 s{S_D0}, s{S_UB+4}, {grp*64*9216}")]
                for t in ts:
                    groups.append(g + [vm(f"buffer_load_dwordx4 v{V_DM+t}, s[{rs}:{rs+3}], s{S_D0} offen offset:{t*1024} lds", ("st", sig))])
                    g = []
        return groups

    def dma_cs(self, mat, piece, slot, tag, nop=False):
        rs = SR_CS if mat == 0 else SR_SS
        groups = []
        for l in range(2):
            line = 2*piece + l
            for rho in range(4):
                groups.append([o(f"s_add_u32 m0, s{S_A}, {slot*SLOT + (4*l+rho)*1024 - 128*line}")] + ([o("s_nop 0")] if nop else []) + [
                               vm(f"buffer_load_dwordx4 v{V_SD+rho}, s[{rs}:{rs+3}], 0 offen offset:{128*line} lds", tag)])
        return groups
    def dma_cx(self, tag):
        groups = []
        for rho in range(4):
            groups.append([o(f"s_add_u32 m0, s{S_B}, {SPARE + rho*1024 - 512}"),
                           vm(f"buffer_load_dwordx4 v{V_SD+rho}, s[{SR_CS}:{SR_CS+3}], 0 offen offset:512 lds", tag)])
        return groups

    def dma_p2(self, st, slot, first128, tA, tB, tC):
        u, who = st
        groups = []
        if u < 4:
            tbl = S_N0 if who == "own" else S_N1
            if first128:
                groups.append([o(f"v_lshrrev_b32 v{tA}, 3, v0"), o(f"v_and_b32 v{tB}, 7, v0"), o(f"v_bfe_u32 v{tC}, v0, 4, 1")])
                groups.append([o(f"v_lshlrev_b32 v{tC}, 2, v{tC}"), o(f"v_xor_b32 v{tB}, v{tB}, v{tC}"), o(f"v_lshlrev_b32 v{tB}, 4, v{tB}")])
                groups.append([o(f"s_mul_i32 s{S_WD}, s{S_W}, {8*1152}")])
                groups.append([o(f"v_mul_u32_u24 v{tA}, 1152, v{tA}"), o(f"v_add_u32 v{V_DM}, v{tA}, v{tB}"), o(f"v_add_u32 v{V_DM}, s{S_WD}, v{V_DM}")])
                groups.append([o(f"s_lshl_b32 s{S_WD}, s{S_W}, 10")])
            for ip in range(9):
                groups.append([o(f"s_add_u32 m0, s{S_WD}, {slot*SLOT + ip*4096}"),
                               o(f"s_add_u32 s{S_D0}, s{tbl+ip}, s{S_CU+u}"),
                               vm(f"buffer_load_dwordx4 v{V_DM}, s[{SR_WD}:{SR_WD+3}], s{S_D0} offen lds", ("s2", st))])
        else:
            groups.append([o(f"v_lshrrev_b32 v{tA}, 2, v0"), o(f"v_and_b32 v{tB}, 3, v0"), o(f"v_lshlrev_b32 v{tB}, 4, v{tB}")])
            groups.append([o(f"v_mul_u32_u24 v{tA}, 1152, v{tA}"), o(f"v_add_u32 v{V_DM+1}, v{tA}, v{tB}")])
            for ip in range(9):
                ca, cb = 2*ip, 2*ip + 1
                ra = (S_N0 + ca) if ca < 9 else (S_N1 + ca - 9)
                rb = (S_N0 + cb) if cb < 9 else (S_N1 + cb - 9)
                groups.append([o(f"s_cmp_lt_u32 s{S_W}, 2"), o(f"s_cselect_b32 s{S_D0}, s{ra}, s{rb}"),
                               o(f"s_add_u32 s{S_D0}, s{S_D0}, s{S_CU+4}"), o(f"s_add_u32 s{S_D0}, s{S_D0}, s{S_C}"),
                               o(f"s_add_u32 m0, s{S_WD}, {slot*SLOT + ip*4096}")])
                groups.append([vm(f"buffer_load_dwordx4 v{V_DM+1}, s[{SR_WD}:{SR_WD+3}], s{S_D0} offen lds", ("s2", st))])
        return groups

    def geglu(self, c, toff=0):
        if c < 8: g, u = GA[(c//2) % 2][c % 2], UA[(c//2) % 2][c % 2]
        else: g, u = GA[0][0], UA[0][0]
        L = []
        for p in range(8):
            r0, r1 = 2*p, 2*p + 1
            b = TMP + 4*(p % 2) + toff
            xa, xb, ya, yb = b, b+1, b+2, b+3
            L += [o(f"v_mul_f32 v{xa}, v{g+r0}, v{g+r0}"), o(f"v_mul_f32 v{xb}, v{g+r1}, v{g+r1}"),
                  o(f"v_fma_f32 v{xa}, v{xa}, v{V_C1}, v{V_C0}"), o(f"v_fma_f32 v{xb}, v{xb}, v{V_C1}, v{V_C0}"),
                  o(f"v_mul_f32 v{xa}, v{g+r0}, v{xa}"), o(f"v_mul_f32 v{xb}, v{g+r1}, v{xb}"),
                  o(f"v_exp_f32 v{xa}, v{xa}"), o(f"v_exp_f32 v{xb}, v{xb}"),
                  o(f"v_mul_f32 v{ya}, v{g+r0}, v{u+r0}"), o(f"v_mul_f32 v{yb}, v{g+r1}, v{u+r1}"),
                  o(f"v_fma_f32 v{xa}, v{xa}, v{V_D2}, v{V_D2}"), o(f"v_fma_f32 v{xb}, v{xb}, v{V_D2}, v{V_D2}"),
                  o(f"v_rcp_f32 v{xa}, v{xa}"), o(f"v_rcp_f32 v{xb}, v{xb}"),
                  o(f"v_mul_f32 v{ya}, v{ya}, v{xa}"), o(f"v_mul_f32 v{yb}, v{yb}, v{xb}"),
                  o(f"v_cvt_pk_bf16_f32 v{HF + 8*c + p}, v{ya}, v{yb}")]
        return L
    def geglu_sig(self, c, toff=0):
        g = GA[(c//2) % 2][c % 2] if c < 8 else GA[0][0]
        L = []
        for p in range(8):
            r0, r1 = 2*p, 2*p + 1
            b = TMP + 2*(p % 2) + toff
            xa, xb = b, b + 1
            L += [o(f"v_mul_f32 v{xa}, v{g+r0}, v{g+r0}"), o(f"v_mul_f32 v{xb}, v{g+r1}, v{g+r1}"),
                  o(f"v_fma_f32 v{xa}, v{xa}, v{V_C1}, v{V_C0}"), o(f"v_fma_f32 v{xb}, v{xb}, v{V_C1}, v{V_C0}"),
                  o(f"v_mul_f32 v{xa}, v{g+r0}, v{xa}"), o(f"v_mul_f32 v{xb}, v{g+r1}, v{xb}"),
                  o(f"v_exp_f32 v{xa}, v{xa}"), o(f"v_exp_f32 v{xb}, v{xb}"), o("v_nop") if False else None,
                  o(f"v_fma_f32 v{xa}, v{xa}, v{V_D2}, v{V_D2}"), o(f"v_fma_f32 v{xb}, v{xb}, v{V_D2}, v{V_D2}"),
                  o(f"v_rcp_f32 v{xa}, v{xa}"), o(f"v_rcp_f32 v{xb}, v{xb}"),
                  o(f"v_mul_f32 v{g+r0}, v{g+r0}, v{xa}"), o(f"v_mul_f32 v{g+r1}, v{g+r1}, v{xb}")]
        return [i for i in L if i is not None]
    def geglu_fin(self, c, toff=0):
        if c < 8: g, u = GA[(c//2) % 2][c % 2], UA[(c//2) % 2][c % 2]
        else: g, u = GA[0][0], UA[0][0]
        L = []
        for p in range(8):
            r0, r1 = 2*p, 2*p + 1
            L += [o(f"v_mul_f32 v{g+r0}, v{g+r0}, v{u+r0}"), o(f"v_mul_f32 v{g+r1}, v{g+r1}, v{u+r1}"),
                  o(f"v_cvt_pk_bf16_f32 v{HF + 8*c + p}, v{g+r0}, v{g+r1}")]
        return L
    def hstore(self, c):
        st = S_ST0 + (c % 2)
        return [o(f"s_add_u32 s{st}, s{S_HB}, {2*c*1024}")] + self.dstore(
                [f"buffer_store_dwordx4 v[{HF+8*c}:{HF+8*c+3}], v{V_L16}, s[{SR_WS}:{SR_WS+3}], s{st} offen",
                 f"buffer_store_dwordx4 v[{HF+8*c+4}:{HF+8*c+7}], v{V_L16}, s[{SR_WS}:{SR_WS+3}], s{st} offen offset:1024"], "hst", True)

    def s_setup(self):
        a, b, c, d = V_SX, V_YC[0], V_YC[1], V_YC[2]
        L = []
        L += [G([o(f"s_lshr_b32 s{S_TAU}, s{S_J}, 3"), o(f"s_lshl_b32 s{S_A}, s{S_MT}, 1"), o(f"s_add_u32 s{S_TAU}, s{S_TAU}, s{S_A}")]),
              G([o(f"s_lshl_b32 s{S_A}, s{S_W}, 13"), o(f"s_lshl_b32 s{S_B}, s{S_W}, 12"),
                 o(f"s_lshl_b32 s{S_ZB}, s{S_W}, 14")]), o(f"s_add_u32 s{S_ZB}, s{S_ZB}, {WS_ZF}")]
        L += [o(f"v_lshrrev_b32 v{a}, 3, v0"), o(f"v_and_b32 v{b}, 7, v0"), o(f"v_lshrrev_b32 v{c}, 1, v{a}"), o(f"v_xor_b32 v{b}, v{b}, v{c}"),
              o(f"v_lshlrev_b32 v{b}, 4, v{b}"), o(f"v_xor_b32 v{c}, 64, v{b}"),
              o(f"s_lshl_b32 s{S_C}, s{S_TAU}, 5"), o(f"v_add_u32 v{a}, s{S_C}, v{a}"), o(f"v_lshlrev_b32 v{a}, 12, v{a}"),
              o(f"s_lshl_b32 s{S_C}, s{S_W}, 9"), o(f"v_add_u32 v{a}, s{S_C}, v{a}"),
              o(f"v_add_u32 v{V_SD}, v{a}, v{b}"), o(f"v_add_u32 v{V_SD+1}, v{a}, v{c}"), o(f"v_add_u32 v{V_SD+1}, 32768, v{V_SD+1}"),
              o(f"v_add_u32 v{V_SD+2}, 65536, v{V_SD}"), o(f"v_add_u32 v{V_SD+3}, 65536, v{V_SD+1}")]
        return L
    def s_setup2(self):
        a, b, c, d = V_SX, V_YC[0], V_YC[1], V_YC[2]
        L = []
        L += [o(f"v_and_b32 v{a}, 15, v0"), o(f"v_lshrrev_b32 v{b}, 4, v0"), o(f"v_bfe_u32 v{c}, v0, 1, 3"), o(f"v_xor_b32 v{c}, v{c}, v{b}"),
              o(f"v_lshlrev_b32 v{c}, 4, v{c}"), o(f"v_lshlrev_b32 v{a}, 7, v{a}"), o(f"v_add_u32 v{a}, v{a}, v{c}"),
              o(f"v_add_u32 v{V_SA}, s{S_A}, v{a}"), o(f"v_xor_b32 v{V_SA+1}, 64, v{V_SA}"),
              o(f"v_add_u32 v{V_SA+2}, {2*SLOT}, v{V_SA}"), o(f"v_add_u32 v{V_SA+3}, {2*SLOT}, v{V_SA+1}"),
              o(f"v_add_u32 v{a}, s{S_B}, v{a}"), o(f"v_add_u32 v{V_SX}, {SPARE}, v{a}")]
        return L
    def s_setup3(self, t0, t1, t2, t3):
        L = []
        L += [o(f"v_and_b32 v{t0}, 15, v0"), o(f"v_lshrrev_b32 v{t1}, 4, v0"),
              o(f"v_and_b32 v{t2}, 1, v{t1}"), o(f"v_lshlrev_b32 v{t2}, 9, v{t2}"),
              o(f"v_lshrrev_b32 v{t1}, 1, v{t1}"), o(f"v_lshlrev_b32 v{t1}, 10, v{t1}"), o(f"v_add_u32 v{t2}, v{t2}, v{t1}"),
              G([o(f"s_and_b32 s{S_C}, s{S_J}, 7"), o(f"s_mul_i32 s{S_C}, s{S_C}, 36")]),
              o(f"v_add_u32 v{t0}, s{S_C}, v{t0}")]
        for ss in range(3):
            pa, qa, yc = V_ZP + ss, V_ZQ + ss, V_YC[ss]
            L += [o(f"v_lshrrev_b32 v{t1}, 5, v{t0}"), o(f"v_mul_u32_u24 v{t1}, {ZF_STRIDE}, v{t1}"),
                  o(f"v_and_b32 v{t3}, 31, v{t0}"), o(f"v_lshlrev_b32 v{t3}, 4, v{t3}"), o(f"v_add_u32 v{t1}, v{t1}, v{t3}"),
                  o(f"v_add_u32 v{t1}, v{t1}, v{t2}"),
                  o(f"v_subrev_u32 v{t3}, s{S_C}, v{t0}"),
                  o(f"v_lshlrev_b32 v{yc}, 2, v{t0}"), o(f"v_mov_b32 v{qa}, {OOB:#x}"), o(f"v_mov_b32 v{pa}, {OOB:#x}"),
                  G([o(f"v_cmp_gt_u32 vcc, 36, v{t3}"), o("v_nop"), o("v_nop"), o(f"v_cndmask_b32 v{pa}, v{pa}, v{t1}, vcc")]),
                  o(f"v_add_u32 v{t3}, {9*ZF_STRIDE}, v{t1}"),
                  G([o(f"v_cndmask_b32 v{qa}, v{qa}, v{t3}, vcc")]),
                  G([o(f"v_cmp_eq_u32 vcc, 0x120, v{t0}"), o("v_nop"), o("v_nop"), o(f"v_cndmask_b32 v{pa}, v{pa}, v{t1}, vcc")]),
                  G([o(f"v_mov_b32 v{t3}, {OOB:#x}"), o(f"v_cmp_eq_u32 vcc, 0, v{t0}"), o("v_nop"), o("v_nop"), o(f"v_cndmask_b32 v{qa}, v{qa}, v{t3}, vcc")]),
                  G([o(f"v_cmp_eq_u32 vcc, v{t3}, v{pa}"), o("v_nop"), o("v_nop"), o(f"v_cndmask_b32 v{yc}, v{yc}, v{t3}, vcc")]),
                  o(f"v_add_u32 v{t0}, 16, v{t0}")]
        return L

    def phase2_setup(self):
        L = []
        L += [G([o(f"s_xor_b32 s{T6}, s{S_J}, 1"), o(f"s_and_b32 s{T2}, s{T6}, 1"), o(f"s_mul_i32 s{T0}, s{T6}, 288")]),
              G([o(f"s_mul_i32 s{T1}, s{T2}, 224"), o(f"s_add_u32 s{T1}, s{T0}, s{T1}")]),
              G([o(f"s_cmp_eq_u32 s{T2}, 0"), o(f"s_cselect_b32 s{T3}, 64, -64"), o(f"s_cselect_b32 s{T4}, 256, 0")]),
              o(f"s_add_u32 s{T4}, s{T4}, s{T0}")]
        for u in range(4):
            L += [G([o(f"s_mul_i32 s{T5}, s{T3}, {u}"), o(f"s_add_u32 s{T5}, s{T5}, s{T1}")]),
                  G([o(f"s_mul_i32 s{S_N1+2*u}, s{T5}, 1152"), o(f"s_add_u32 s{S_N1+2*u+1}, s{S_N1+2*u}, {32*1152}")])]
        L += [o(f"s_mul_i32 s{S_N1+8}, s{T4}, 1152")]
        L += [G([o(f"s_and_b32 s{T2}, s{S_J}, 1"), o(f"s_mul_i32 s{T0}, s{T2}, 640"), o(f"s_lshr_b32 s{T1}, s{S_J}, 2")])]
        for k in range(4):
            L += [G([o(f"s_add_u32 s{T3}, s{T1}, {(k+1) % 4 if k < 3 else 0}"), o(f"s_and_b32 s{T3}, s{T3}, 3"), o(f"s_lshl_b32 s{T3}, s{T3}, 7")]),
                  o(f"s_add_u32 s{S_CU+k}, s{T0}, s{T3}")]
        L += [G([o(f"s_cmp_eq_u32 s{T2}, 0"), o(f"s_cselect_b32 s{S_CU+4}, 0, 64")]), o(f"s_add_u32 s{S_CU+4}, s{S_CU+4}, 512")]
        return L

    def p2q_setup(self):
        L = [G([o(f"s_and_b32 s{T2}, s{S_J}, 1"), o(f"s_mul_i32 s{T3}, s{T2}, 10"), o(f"s_lshr_b32 s{T4}, s{S_J}, 2")])]
        for k, dst in enumerate(S_QU):
            L += [G([o(f"s_add_u32 s{T5}, s{T4}, {k+1}"), o(f"s_and_b32 s{T5}, s{T5}, 3"), o(f"s_lshl_b32 s{T5}, s{T5}, 1")]),
                  G([o(f"s_add_u32 s{T5}, s{T5}, s{T3}"), o(f"s_lshl_b32 s{T5}, s{T5}, 11"), o(f"s_add_u32 s{dst}, s{T5}, s{S_PB}")])]
        L += [G([o(f"s_lshl_b32 s{T5}, s{T4}, 1"), o(f"s_add_u32 s{T5}, s{T5}, s{T3}"), o(f"s_bfe_u32 s{T4}, s{S_J}, 0x10001")]),
              G([o(f"s_add_u32 s{S_TO}, s{T5}, s{T4}"), o(f"s_xor_b32 s{T4}, s{T4}, 1"), o(f"s_add_u32 s{T5}, s{T5}, s{T4}")]),
              G([o(f"s_lshl_b32 s{T5}, s{T5}, 11"), o(f"s_add_u32 s{S_QN}, s{T5}, s{S_PB}")]),
              G([o(f"s_add_u32 s{T5}, s{T2}, 8"), o(f"s_lshl_b32 s{T5}, s{T5}, 11"), o(f"s_add_u32 s{S_Q8}, s{T5}, s{S_PB}")])]
        return L

    def main(self):
        DIST = self.opts.get("dist", 7)
        M = []; frags = []
        fu = {}; lu = {}
        def addfrag(reads_fn, use, dist=None, stage=None):
            f = len(frags); a = AF + 4*(f % NAF)
            fr = dict(reads=reads_fn(a), use=use)
            if dist: fr["dist"] = dist
            frags.append(fr)
            if stage is not None and stage not in fu:
                fu[stage] = use; fr["stage_first"] = stage
            return f, a
        def tr(base, off, off2): return lambda a: [f"ds_read_b64_tr_b16 a[{a}:{a+1}], v{base} offset:{off}", f"ds_read_b64_tr_b16 a[{a+2}:{a+3}], v{base} offset:{off+off2}"]
        for u in range(4):
            for mat in range(2):
                for kh in range(2):
                    sig = 4*u + 2*mat + kh
                    for half in range(2):
                        acc = (GA if mat == 0 else UA)[u % 2][half]
                        for kk in range(18):
                            ks = kh*18 + kk; g = len(M)
                            f, a = addfrag(tr((V_RA if half == 0 else V_RB) + sig % 4, kk*2048, 512), g, stage=("st", sig))
                            M.append(dict(op=32, acc=f"v[{acc}:{acc+15}]", first=(ks == 0), A=f"a[{a}:{a+3}]", B=f"a[{AX+4*ks}:{AX+4*ks+3}]", need=f))
                            lu[("st", sig)] = g
        for mat in range(2):
            acc = (GA if mat == 0 else UA)[0][0]
            for ks in range(36):
                g = len(M)
                f, a = addfrag(tr(V_R8 + mat, ks*1024, 256), g, stage=("st", 16+mat))
                M.append(dict(op=32, acc=f"v[{acc}:{acc+15}]", first=(ks == 0), A=f"a[{a}:{a+3}]", B=f"a[{AX+4*ks}:{AX+4*ks+3}]", need=f))
                lu[("st", 16+mat)] = g
        S0 = len(M)
        def accP(tt, ss):
            i = tt*3 + ss
            return 48 + 4*i if i < 4 else 112 + 4*(i - 4)
        def accQ(tt, ss):
            i = tt*3 + ss
            return 64 + 4*i if i < 4 else 128 + 4*(i - 4)
        def zP(ss, k):
            i = k*3 + ss
            if i < 20: return f"a[{AZ+4*i}:{AZ+4*i+3}]"
            i -= 20
            r = 32 + 4*i if i < 4 else 96 + 4*(i - 4)
            return f"v[{r}:{r+3}]"
        def zQ(ss, k):
            i = k*3 + ss
            return f"a[{4*i}:{4*i+3}]"
        self.zP, self.zQ, self.accP, self.accQ = zP, zQ, accP, accQ
        for k in range(9):
            for tt in range(2):
                g = len(M)
                if k < 8:
                    line = k >> 1; piece = line >> 1; l = line & 1
                    base = V_SA + 2 + (k & 1); off = piece*SLOT + l*4096 + tt*2048
                    st = ("C", piece)
                else:
                    base = V_SX; off = tt*2048; st = ("CX", 0)
                f, a = addfrag(lambda a, base=base, off=off: [f"ds_read_b128 a[{a}:{a+3}], v{base} offset:{off}"], g, dist=8, stage=st)
                for ss in range(3):
                    ac = accP(tt, ss)
                    M.append(dict(op=16, acc=f"v[{ac}:{ac+3}]", first=(k == 0), A=f"a[{a}:{a+3}]", B=zP(ss, k), need=f))
                    lu[st] = len(M) - 1
        SP_END = len(M)
        for k in range(8):
            for tt in range(2):
                g = len(M)
                line = k >> 1; piece = line >> 1; l = line & 1
                base = V_SA + (k & 1); off = piece*SLOT + l*4096 + tt*2048
                st = ("S", piece)
                f, a = addfrag(lambda a, base=base, off=off: [f"ds_read_b128 a[{a}:{a+3}], v{base} offset:{off}"], g, dist=8, stage=st)
                for ss in range(3):
                    ac = accQ(tt, ss)
                    M.append(dict(op=16, acc=f"v[{ac}:{ac+3}]", first=(k == 0), A=f"a[{a}:{a+3}]", B=zQ(ss, k), need=f))
                    lu[st] = len(M) - 1
        P2_0 = len(M)
        stages = [(0, "own"), (1, "own"), (2, "own"), (0, "par"), (1, "par"), (2, "par"), (4, "both"), (3, "own"), (3, "par")]
        slot_order = [2, 0, 3, 2, 1, 0, 3, 2, 1]
        slot_of = {st: slot_order[i] for i, st in enumerate(stages)}
        ACC = {0: [32, 96], 1: [16, 80], 2: [48, 112], 3: [64, 128], 4: [32]}
        tile_last = {}
        def p2run(st, half, base, ks=None):
            u, who = st
            acc = ACC[u][half]
            for k in (ks or range(18)):
                g = len(M)
                f, a = addfrag(tr(base, k*2048, 1024), g, stage=("s2", st))
                M.append(dict(op=32, acc=f"v[{acc}:{acc+15}]", first=(who == "own" and k == 0), A=f"a[{a}:{a+3}]",
                              B=(f"v[{HF+4*k}:{HF+4*k+3}]" if who == "own" else f"a[{AZ+4*k}:{AZ+4*k+3}]"), need=f))
                tile_last[(u, half)] = g; lu[("s2", st)] = g
        for st in stages[:7]:
            u, who = st; slot = slot_of[st]
            if u < 4 and who == "par" and u in (0, 1) and self.opts.get("klate", 1):
                for rng in (range(12), range(12, 18)):
                    for half in range(2): p2run(st, half, (V_RA if half == 0 else V_RB) + slot, rng)
            elif u < 4:
                for half in range(2): p2run(st, half, (V_RA if half == 0 else V_RB) + slot)
            else:
                acc = ACC[4][0]
                for k in range(36):
                    g = len(M)
                    f, a = addfrag(tr(V_R8, k*1024, 512), g, stage=("s2", st))
                    M.append(dict(op=32, acc=f"v[{acc}:{acc+15}]", first=(k == 0), A=f"a[{a}:{a+3}]",
                                  B=(f"v[{HF+4*k}:{HF+4*k+3}]" if k < 18 else f"a[{AZ+4*(k-18)}:{AZ+4*(k-18)+3}]"), need=f))
                    tile_last[(4, 0)] = g; lu[("s2", st)] = g
        p2run((3, "own"), 0, V_LB); p2run((3, "par"), 0, V_LB + 1); p2run((3, "own"), 1, V_LB + 2); p2run((3, "par"), 1, V_LB + 3)
        N = len(M)
        last_use = {}
        for g, m in enumerate(M): last_use[m["need"]] = g
        for f, fr in enumerate(frags):
            d = fr.get("dist", DIST)
            t = fr["use"] - d
            if f >= NAF and t < last_use[f - NAF]: fr["dist"] = fr["use"] - last_use[f - NAF]
        for fr in frags:
            st = fr.get("stage_first")
            if st is None: continue
            if st[0] in ("st", "s2"):
                tags = [st]
                if st == ("st", 3): tags += ["zst", "flinit"]
                if st == ("st", 17): tags += ["hst"]
                fr["pre"] = [wvm(tags), o("s_barrier")]
                if st == ("st", 17):
                    fr["pre"] += [vm(f"buffer_store_dword v{V_ONE}, v{V_ONE0}, s[{SR_WS}:{SR_WS+3}], s{S_FL} offen sc1", "fl1")]
                if st == ("st", 3):
                    fr["pre"] += [vm(f"buffer_atomic_add v{V_ONE}, v{V_ONE0}, s[{SR_HZ}:{SR_HZ+3}], 0 offen offset:128 sc1", "zpub")]
            else:
                fr["pre"] = [wvm(("cs", st))]
        stamps = {0: "p1", 144: "u1", 288: "u2", 432: "u3", 576: "u4", S0: "S0", SP_END: "SP", P2_0: "p2", P2_0 + 108: "p2b", P2_0 + 216: "p2c"}
        if self.opts.get("hdiag") == 2:
            stamps = {0: "p1", 144: "u1", 288: "u2", 432: "u3", 576: "u4", S0: "S0", P2_0: "p2", P2_0 + 108: "p2b", P2_0 + 216: "p2c"}
        if self.opts.get("fine") == 2:
            stamps = {0: "p1", S0: "S0", P2_0: "p2"}
            for k in range(9, 127, 9): stamps[P2_0 + k] = f"+{k}"
        elif self.opts.get("fine"):
            stamps = {0: "p1", 432: "u3", 576: "u4", 594: "s594", 612: "s612", 630: "s630", S0: "S0", 660: "s660", 672: "s672", 684: "s684", SP_END: "SP", 714: "s714", 726: "s726", 738: "s738", P2_0: "p2", P2_0 + 36: "a36", P2_0+72: "a72", P2_0 + 108: "p2b", P2_0 + 216: "p2c"}
        for g, name in stamps.items():
            if self.diag: M[g].setdefault("before", []).extend(self.stamp(name))
        self.tail2 = []

        def setup(sl, head):
            rbar = {st: fu[st] - DIST for st in fu if st[0] in ("st", "s2")}
            for b in rbar.values():
                if b >= 0: sl.budget[b] = 4
            def fbar(t):
                sl.put(t, [o("s_barrier")])
            busy = {"end": -1}
            def place(groups, start, step=1):
                s = max(start, busy["end"] + 1)
                for grp in groups:
                    sl.put(s, grp); busy["end"] = s; s += step
                return s
            sl.put(2, [o(f"v_mov_b32 v{V_ONE}, 1")])
            eh = sl.stream(self.rr_reads(48, 112) + self.h_epilogue(S_A, V_HACC, 48, 64), 12, 46)
            eh = sl.stream(self.rr_reads(48, 112, 2) + self.h_epilogue(S_B, 128, 48, 64), eh + 1, eh + 34)
            assert eh < 92, eh
            for mat in range(2):
                slot = (16 + mat) % 4
                ins = [o("v_lshrrev_b32 v224, 5, v0"), o("v_lshlrev_b32 v224, 9, v224"),
                       o("v_bfe_u32 v225, v0, 2, 2"), o("v_lshlrev_b32 v225, 6, v225"), o("v_add_u32 v224, v224, v225"),
                       o("v_bfe_u32 v225, v0, 4, 1"), o("v_lshlrev_b32 v225, 5, v225"), o("v_add_u32 v224, v224, v225"),
                       o("v_and_b32 v225, 3, v0"), o("v_lshlrev_b32 v225, 3, v225"), o("v_add_u32 v224, v224, v225"),
                       o(f"v_add_u32 v{V_R8+mat}, {slot*SLOT}, v224")]
                sl.stream(ins, 70 + 20*mat, 88 + 20*mat)
            dma_end = {}
            for sig in range(2, 18):
                grps = self.dma_p1(sig, sig % 4)
                if sig == 2: start = 0
                elif sig == 3: start = 9*self.opts.get('dstep', 2)
                elif self.opts.get("fb", 1):
                    t = lu[("st", sig - 4)]; fbar(t); start = t + 1
                else:
                    start = min(b for b in rbar.values() if b >= lu[("st", sig - 4)]) + 1
                dma_end[sig] = place(grps, start, self.opts.get("dstep", 2))
            self.paced_prefetch(sl, dma_end)
            self.mode_check(sl, M)
            sl.put(590, [G([o(f"s_lshl_b32 s{S_FL}, s{S_LID}, 7"), o(f"s_add_u32 s{S_FL}, s{S_FL}, {WS_FLAG}")])])
            sl.put(592, [o(f"v_mov_b32 v{V_ONE}, 1")])
            e0 = sl.stream(self.geglu(0), 145, 211)
            sl.stream(self.hstore(0) + self.geglu(1) + self.hstore(1), max(e0 + 1, 212), 287)
            for u in range(1, 3):
                sl.stream(self.geglu(2*u) + self.hstore(2*u) + self.geglu(2*u+1) + self.hstore(2*u+1), 144*(u+1) + 1, 144*(u+2) - 1)
            es = sl.stream(self.s_setup(), eh + 1, eh + 11)
            es = sl.stream(self.s_setup2(), es + 1, es + 10)
            assert es < 118, es
            sl.stream(self.s_setup3(224, 225, 226, 227), max(es + 1, 112), 143)
            ep = sl.stream(self.phase2_setup(), 66, 100)
            assert ep < 110
            t = lu[("st", 14)]; fbar(t); place(self.dma_cs(0, 0, 2, ("cs", ("C", 0))), t + 1, 2)
            t = lu[("st", 15)]; fbar(t); e = place(self.dma_cs(0, 1, 3, ("cs", ("C", 1))), t + 1, 2)
            place(self.dma_cx(("cs", ("CX", 0))), e, 2)
            t = lu[("st", 16)]; fbar(t); place(self.dma_cs(1, 0, 0, ("cs", ("S", 0))), t + 1, 2)
            t = lu[("st", 17)]; fbar(t); place(self.dma_cs(1, 1, 1, ("cs", ("S", 1)), True), t + 1, 1)
            self.main_rest(sl, M, fu, lu, stages, slot_of, ACC, tile_last, S0, SP_END, P2_0, N, fbar, place)
        L = self.paced(M, frags, setup, DIST)
        return L + self.tail2

    def mode_check(self, sl, M):
        if not self.opts.get("local", 0): return
        t = 0
        ld = f"buffer_load_dwordx2 v[222:223], off, s[{SR_HZ}:{SR_HZ+3}], s{T5} sc1"
        ld = f"buffer_load_dwordx2 v[230:231], off, s[{SR_HZ}:{SR_HZ+3}], s{S_XC} sc1"
        if self.opts.get("cfg", 0) == 0:
            ld = f"buffer_load_dword v230, off, s[{SR_HZ}:{SR_HZ+3}], s{S_XC} sc1"
            sl.put(140, [G([o(f"s_lshr_b32 s{S_XC}, s{S_LID}, 3"), o(f"s_lshl_b32 s{S_XC}, s{S_XC}, 2")])])
        else:
            sl.put(140, [G([o(f"s_lshl_b32 s{S_XC}, s{S_MT}, 3")])])
        sl.put(143, [vm(ld, "xcc")])
        sl.put(205, [wvm("xcc")])
        sl.put(206, [o(f"v_readfirstlane_b32 s{T6}, v230"), o(f"v_readfirstlane_b32 s{T7}, v231")])
        def nz(r, tmp):
            return [o(f"s_lshr_b32 s{tmp}, s{r}, 1"), o(f"s_or_b32 s{tmp}, s{tmp}, s{r}"), o(f"s_lshr_b32 s{T3}, s{tmp}, 2"), o(f"s_or_b32 s{tmp}, s{tmp}, s{T3}"),
                    o(f"s_and_b32 s{tmp}, s{tmp}, 0x11111111")]
        chk = nz(T6, T1) + nz(T7, T2) + [o(f"s_and_b32 s{T1}, s{T1}, s{T2}"), o(f"s_cmp_eq_u32 s{T1}, 0x11111111")]
        if self.opts.get("cfg", 0) == 0:
            ld = f"buffer_load_dword v230, off, s[{SR_HZ}:{SR_HZ+3}], s{S_XC} sc1"
            ext = [o(f"s_and_b32 s{T1}, s{S_LID}, 6"), o(f"s_lshl_b32 s{T1}, s{T1}, 2"), o(f"s_lshr_b32 s{T2}, s{T6}, s{T1}"),
                   o(f"s_and_b32 s{T3}, s{T2}, 15"), o(f"s_bfe_u32 s{T2}, s{T2}, 0x40004"),
                   o(f"s_min_u32 s{T1}, s{T2}, s{T3}"), o(f"s_cmp_ge_u32 s{T1}, 1")]
            blk = ext + [o("s_cbranch_scc1 L_xc_ok")] + self.spin("L_xc", [o(ld)], [o(f"v_readfirstlane_b32 s{T6}, v230"), o("s_nop 3")] + ext)
            blk += [o(f"s_cmp_eq_u32 s{T2}, s{T3}"), o(f"s_cselect_b32 s{S_MODE}, 1, 0")]
            if self.opts.get("forceglobal"): blk += [o(f"s_mov_b32 s{S_MODE}, 0")]
            M[209].setdefault("before", []).extend(blk)
            return
        blk = chk + [o("s_cbranch_scc1 L_xc_ok")] + self.spin("L_xc", [o(ld)],
              [o(f"v_readfirstlane_b32 s{T6}, v230"), o(f"v_readfirstlane_b32 s{T7}, v231"), o("s_nop 3")] + chk)
        blk += [o(f"s_and_b32 s{T1}, s{T6}, 15"), o(f"s_mul_i32 s{T1}, s{T1}, 0x11111111"),
                o(f"s_cmp_eq_u32 s{T1}, s{T6}"), o(f"s_cselect_b32 s{S_MODE}, 1, 0"),
                o(f"s_cmp_eq_u32 s{T1}, s{T7}"), o(f"s_cselect_b32 s{S_MODE}, s{S_MODE}, 0")]
        if self.opts.get("forceglobal"): blk += [o(f"s_mov_b32 s{S_MODE}, 0")]
        M[209].setdefault("before", []).extend(blk)

    def bulk(self, sl, t):
        bk = [G([o(f"s_lshl_b32 s{S_PF}, s{S_LID}, 2"), o(f"s_add_u32 s{S_PF}, s{S_PF}, s{S_W}"), o(f"s_mul_i32 s{S_PF}, s{S_PF}, 41")]),
              o(f"v_add_u32 v{V_PF}, s{S_PF}, v0"), o(f"v_lshlrev_b32 v{V_PF}, 7, v{V_PF}"),
              G([o("v_cmp_gt_u32 vcc, 41, v0"), o("v_nop"), o("v_nop"), o(f"v_cndmask_b32 v{V_PF}, v{V_ONE0}, v{V_PF}, vcc")])]
        e = sl.stream(bk, t, t + 5, spill=2)
        sl.put(e + 1, [vm(f"buffer_load_dword v{V_PF}, v{V_PF}, s[{SR_WG}:{SR_WG+3}], 0 offen", "pf")])
        sl.put(e + 2, [vm(f"buffer_load_dword v{V_PF}, v{V_PF}, s[{SR_WU}:{SR_WU+3}], 0 offen", "pf")])
        return e + 2

    def paced_prefetch(self, sl, dma_end):
        if self.opts.get("bulkat", 0) == 1:
            bk = [G([o(f"s_lshl_b32 s{S_PF}, s{S_LID}, 2"), o(f"s_add_u32 s{S_PF}, s{S_PF}, s{S_W}"), o(f"s_mul_i32 s{S_PF}, s{S_PF}, 41")]),
                  o(f"v_add_u32 v230, s{S_PF}, v0"), o(f"v_lshlrev_b32 v230, 7, v230"),
                  G([o("v_cmp_gt_u32 vcc, 41, v0"), o("v_nop"), o("v_nop"), o(f"v_cndmask_b32 v230, v{V_ONE0}, v230, vcc")])]
            e = sl.stream(bk, 0, 8, spill=2)
            assert e < 12
            s = dma_end[self.opts.get("bulkst", 3)]
            sl.put(s, [vm(f"buffer_load_dword v{V_PF}, v230, s[{SR_WG}:{SR_WG+3}], 0 offen", "pf")])
            sl.put(s + 1, [vm(f"buffer_load_dword v{V_PF}, v230, s[{SR_WU}:{SR_WU+3}], 0 offen", "pf")])
        if not self.opts.get("ppf", 1): return
        Dd, Cc, t = 228, 229, 227
        setup = [G([o(f"s_lshl_b32 s{S_PF}, s{S_LID}, 2"), o(f"s_add_u32 s{S_PF}, s{S_PF}, s{S_W}"), o(f"s_mul_i32 s{S_PF}, s{S_PF}, 41")]),
                 o(f"v_add_u32 v{Dd}, s{S_PF}, v0"), o(f"v_lshlrev_b32 v{Dd}, 7, v{Dd}"), o(f"v_mov_b32 v{t}, {OOB:#x}"),
                 G([o("v_cmp_gt_u32 vcc, 41, v0"), o("v_nop"), o("v_nop"), o(f"v_cndmask_b32 v{Dd}, v{t}, v{Dd}, vcc")]),
                 G([o(f"s_and_b32 s{S_PF}, s{S_J}, 7"), o(f"s_lshl_b32 s{S_PF}, s{S_PF}, 2"), o(f"s_add_u32 s{S_PF}, s{S_PF}, s{S_W}")]),
                 G([o(f"s_lshl_b32 s{S_C}, s{S_TAU}, 5"), o(f"s_add_u32 s{S_PF}, s{S_PF}, s{S_C}"), o(f"s_lshl_b32 s{S_PF}, s{S_PF}, 12")]),
                 o(f"v_lshlrev_b32 v{Cc}, 7, v0"), o(f"v_add_u32 v{Cc}, s{S_PF}, v{Cc}"),
                 G([o("v_cmp_gt_u32 vcc, 17, v0"), o("v_nop"), o("v_nop"), o(f"v_cndmask_b32 v{Cc}, v{t}, v{Cc}, vcc")])]
        e = sl.stream(setup, 146, 176)
        s = dma_end[self.opts.get("pfw", 9)]
        assert s > e + 6
        if self.opts.get("bulk", 1) != 2: sl.put(s, [vm(f"buffer_load_dword v{V_PF}, v{Dd}, s[{SR_WD}:{SR_WD+3}], 0 offen", "pf")])
        if self.opts.get("wdl2", 1):
            A2, t2 = 230, 226
            st2 = [G([o(f"s_and_b32 s{S_PF}, s{S_MT}, 7"), o(f"s_mul_i32 s{S_PF}, s{S_PF}, 36"), o(f"s_mul_i32 s{S_C}, s{S_W}, 9")]),
                   o(f"s_add_u32 s{S_PF}, s{S_PF}, s{S_C}"), o(f"v_add_u32 v{t2}, s{S_PF}, v0"), o(f"v_mul_u32_u24 v{t2}, 1152, v{t2}"),
                   o(f"v_mov_b32 v227, {OOB:#x}"),
                   G([o("v_cmp_gt_u32 vcc, 9, v0"), o("v_nop"), o("v_nop"), o(f"v_cndmask_b32 v{t2}, v227, v{t2}, vcc")])]
            e2 = sl.stream(st2, 474, 486)
            def wl(own, k, t):
                sl.put(t, [G([o(f"s_{'mul_i32' } s{S_PF}, s{S_J if own else S_J}, {288*1152}")] + ([] if own else [o(f"s_xor_b32 s{S_C}, s{S_J}, 1"), o(f"s_mul_i32 s{S_PF}, s{S_C}, {288*1152}")]) + [o(f"s_add_u32 s{S_PF}, s{S_PF}, s{S_CU+k}")])])
                sl.put(t + 1, [vm(f"buffer_load_dword v{V_PF}, v{t2}, s[{SR_WD}:{SR_WD+3}], s{S_PF} offen", "pf")])
            s = dma_end[16]; wl(True, 0, s); wl(True, 1, s + 2)
            s = dma_end[17]; wl(True, 2, s); wl(False, 0, s + 2)
        s = dma_end[self.opts.get("pfc", 11)]
        sl.put(s, [vm(f"buffer_load_dword v{V_PF}, v{Cc}, s[{SR_CS}:{SR_CS+3}], 0 offen", "pf")])
        sl.put(s + 1, [vm(f"buffer_load_dword v{V_PF}, v{Cc}, s[{SR_SS}:{SR_SS+3}], 0 offen", "pf")])

    def owner_addr(self):
        sQ = S_TO
        t0, t1, t2, t3 = 244, 245, 246, 247
        L = [G([o(f"s_lshl_b32 s{T4}, s{S_MT}, 2"), o(f"s_add_u32 s{T4}, s{T4}, s{S_W}")]),
             G([o(f"s_mul_i32 s{T5}, s{T4}, 18"), o(f"s_add_u32 s{T5}, s{T5}, s{sQ}"), o(f"s_lshl_b32 s{T5}, s{T5}, 11")]),
             o(f"s_lshr_b32 s{T3}, s{S_J}, 1")]
        for i, d in enumerate((2, 3, 4, 5, 6, 7, 1)):
            L += [G([o(f"s_xor_b32 s{16+i}, s{T3}, {d}"), o(f"s_mul_i32 s{16+i}, s{16+i}, {PART_BYTES}"), o(f"s_add_u32 s{16+i}, s{16+i}, s{T5}")])]
        L += [o(f"s_lshl_b32 s{T5}, s{T4}, 4"), o(f"v_and_b32 v{t0}, 15, v0"), o(f"v_add_u32 v{t0}, s{T5}, v{t0}"),
              o(f"v_sub_u32 v{t1}, 2048, v{t0}"), o(f"v_mov_b32 v{t2}, 1024"), o(f"v_mov_b32 v{t3}, 0"),
              G([o(f"v_cmp_eq_u32 vcc, 0, v{t0}"), o("v_nop"), o("v_nop"), o(f"v_cndmask_b32 v237, v{t1}, v{t2}, vcc"),
                 o(f"v_cndmask_b32 v{t1}, v{t1}, v{t3}, vcc"), o(f"v_cndmask_b32 v{t2}, v{t0}, v{t2}, vcc")]),
              o(f"v_and_b32 v{t3}, 16, v0"),
              G([o(f"v_cmp_eq_u32 vcc, 0, v{t3}"), o("v_nop"), o("v_nop"), o(f"v_cndmask_b32 v{t0}, v237, v{t0}, vcc"), o(f"v_cndmask_b32 v{t1}, v{t2}, v{t1}, vcc")]),
              o(f"s_lshl_b32 s{T5}, s{sQ}, 6"),
              o(f"v_mul_u32_u24 v{t2}, 1152, v{t0}"), o(f"v_add_u32 v{t2}, s{T5}, v{t2}"),
              o(f"v_lshrrev_b32 v{t3}, 5, v0"), o(f"v_lshlrev_b32 v238, 4, v{t3}"), o(f"v_add_u32 v238, v{t2}, v238"),
              o(f"v_lshlrev_b32 v237, 3, v{t3}"), o(f"v_add_u32 v237, v{t2}, v237"),
              G([o(f"s_lshl_b32 s{T5}, s{sQ}, 7"), o(f"s_cmp_lt_u32 s{sQ}, 9"), o(f"s_cselect_b32 s24, 0, 1")]),
              G([o(f"s_sub_u32 s{T4}, {2292 - 96}, s{T5}"), o(f"s_cmp_lt_u32 s{sQ}, 9"), o(f"s_cselect_b32 s{T5}, s{T5}, s{T4}"), o(f"s_cselect_b32 s{T4}, 1, -1")]),
              G([o(f"v_mov_b32 v{t2}, s24"), o(f"v_cmp_eq_u32 vcc, 1, v{t2}"), o("v_nop"), o("v_nop"), o(f"v_cndmask_b32 v{t0}, v{t0}, v{t1}, vcc")]),
              o(f"v_mul_u32_u24 v{t0}, {YP}, v{t0}"), o(f"v_add_u32 v{t0}, s{T5}, v{t0}"),
              o(f"v_lshlrev_b32 v{t3}, 4, v{t3}"), o(f"v_mul_lo_u32 v{t3}, v{t3}, s{T4}"), o(f"v_add_u32 v{t0}, v{t0}, v{t3}"),
              o(f"v_add_u32 v239, {WS_YH}, v{t0}")]
        return L

    def pipe_reduce(self, sl, M, fu, lu, P2_0, N):
        self.items_cfg()
        t4 = P2_0 + self.opts.get("t4", 254)
        sl.put(t4 - 3, [o("v_mov_b32 v240, 4")])
        sl.put(t4, [wvm([("pst", 0), ("pst", 1), ("pst", 2), "yst"]), o("s_barrier")])
        sl.put(t4 + 1, [vm(f"buffer_store_dword v240, v{V_ONE0}, s[{SR_WS}:{SR_WS+3}], s{S_FL} offen sc1", "fl4")])
        ep = sl.stream(self.p2q_setup(), P2_0 + 102, P2_0 + 124)
        assert ep < P2_0 + 132
        s_own, s_par = 2, 1
        lb = [G([o(f"s_bfe_u32 s{T5}, s{S_J}, 0x10001"), o(f"s_lshl_b32 s{T5}, s{T5}, 6"), o(f"s_xor_b32 s{T4}, s{T5}, 64")]),
              o(f"v_xor_b32 v{V_LB}, s{T4}, v{V_RA+s_own}"), o(f"v_xor_b32 v{V_LB+1}, s{T4}, v{V_RA+s_par}"),
              o(f"v_xor_b32 v{V_LB+2}, s{T5}, v{V_RA+s_own}"), o(f"v_xor_b32 v{V_LB+3}, s{T5}, v{V_RA+s_par}")]
        sl.stream(lb, P2_0 + 190, P2_0 + 200)
        e = sl.stream(self.owner_addr(), P2_0 + 204, P2_0 + 250)
        e = sl.stream([G([o(f"s_and_b32 s{T6}, s{S_J}, 1"), o(f"s_lshl_b32 s{T6}, s{T6}, 7"), o(f"s_lshl_b32 s{T7}, s{S_MT}, 11")]),
                       G([o(f"s_add_u32 s{T6}, s{T6}, s{T7}"), o(f"s_add_u32 s{T6}, s{T6}, {WS_FLAG}")]),
                       o("v_lshlrev_b32 v242, 8, v0"), o(f"v_mov_b32 v241, {OOB:#x}"),
                       G([o("v_cmp_gt_u32 vcc, 8, v0"), o("v_nop"), o("v_nop"), o("v_cndmask_b32 v242, v241, v242, vcc")])], e + 1, e + 8)
        for i in range(4): sl.put(e + 2 + i, [vm(f"buffer_load_dwordx2 v[{24+2*i}:{25+2*i}], v237, s[{SR_X}:{SR_X+3}], 0 offen offset:{16*i}", "ox")])
        tpoll = max(e + 7, P2_0 + self.opts.get("tpa", 284))
        ld, chk = self.group_poll("L_gA", 4, 241, 242)
        sl.put(tpoll, [vm(ld, "gpA")])
        sl.put(tpoll + 9, [wvm("gpA")])
        M[tpoll + 11].setdefault("before", []).extend(chk + [o("s_cbranch_scc1 L_gA_ok")] + self.spin("L_gA", [o(ld)], chk))
        lds = []
        for i in range(6):
            lds += [vm(f"buffer_load_dwordx4 v[{80+8*i}:{83+8*i}], v{V_L16}, s[{SR_WS}:{SR_WS+3}], s{16+i} offen sc1", "op"),
                    vm(f"buffer_load_dwordx4 v[{84+8*i}:{87+8*i}], v{V_L16}, s[{SR_WS}:{SR_WS+3}], s{16+i} offen offset:1024 sc1", "op")]
        lds += [vm(f"buffer_load_dwordx4 v[{48+4*i}:{51+4*i}], v239, s[{SR_WS}:{SR_WS+3}], 0 offen offset:{32*i} sc1", "op") for i in range(4)]
        s = tpoll + 11
        self.late_loads = []
        stp = self.opts.get("ostep", 2)
        for l in lds:
            if s < N - 1: sl.put(s, [l]); s += stp
            else: self.late_loads.append(l)
        print("owner loads: in loop until", s, "late:", len(self.late_loads), "N", N)
        t5 = N - self.opts.get("t5", 10)
        sl.put(t5 - 3, [o("v_mov_b32 v240, 5")])
        sl.put(t5, [wvm([("pst", 3), ("pst", 4)]), o("s_barrier")])
        sl.put(t5 + 1, [vm(f"buffer_store_dword v240, v{V_ONE0}, s[{SR_WS}:{SR_WS+3}], s{S_FL} offen sc1", "fl5")])
        self.RDx = dict(P=("v", 176), X=208, Y=212, OA=220, PV=221, t=[222, 223, 224, 225], rev=26, so=84)
        Ad, Ld = self.item_setup("D", self.RDx, split=True)
        self.D_ld = Ld
        eD = sl.stream(Ad, N - 17, N - 1, spill=0)
        print("D addr until", eD)

    def spin(self, label, load, cond_ok, regs_note=""):
        return [o(f"s_mov_b32 s{S_CNT}, 0"), raw(f"{label}:")] + load + [o("s_waitcnt vmcnt(0)")] + cond_ok + \
               [o(f"s_cbranch_scc1 {label}_ok"), o(f"s_add_u32 s{S_CNT}, s{S_CNT}, 1"), o(f"s_cmp_gt_u32 s{S_CNT}, 0x40000"), o(f"s_cbranch_scc1 {label}_ok"),
                o("s_sleep 1"), o(f"s_branch {label}"), raw(f"{label}_ok:")]

    def main_rest(self, sl, M, fu, lu, stages, slot_of, ACC, tile_last, S0, SP_END, P2_0, N, fbar, place):
        zP, zQ, accP, accQ = self.zP, self.zQ, self.accP, self.accQ
        DIST = self.opts.get("dist", 7)
        if self.opts.get("esig", 1):
            e = sl.stream(self.geglu_sig(6, 8), 490, 535)
            e = sl.stream(self.geglu_sig(7, 8), max(e + 1, 508), 578)
            e6 = sl.stream(self.geglu_fin(6) + self.hstore(6), max(e + 1, 579), 596)
            e7 = sl.stream(self.geglu_fin(7) + self.hstore(7), e6 + 1, 614)
            assert e7 < S0 - 2, e7
            e8 = sl.stream(self.geglu_sig(8, 8), max(e7 + 1, 616), S0 + 2)
            e8 = sl.stream(self.geglu_fin(8) + self.hstore(8), max(e8 + 1, S0 + 4), S0 + 16)
            self.e8 = e8
        else:
            e6 = sl.stream(self.geglu(6) + self.hstore(6), 577, 634)
            assert e6 < S0 - 2, e6
            e7 = sl.stream(self.geglu(7) + self.hstore(7), e6 + 1, S0 + 46)
            assert e7 < SP_END - 1, e7
        if not self.opts.get("esig", 1): sl.stream(self.geglu(8, 8) + self.hstore(8), S0 + 4, S0 + 85)
        sl.put(467, [vm(f"buffer_load_dword v230, off, s[{SR_HZ}:{SR_HZ+3}], 0 offset:128 sc1", "zpoll")])
        sl.put(574, [wvm("zpoll")])
        sl.put(575, [o(f"v_readfirstlane_b32 s{T0}, v230")])
        M[578].setdefault("before", []).extend(
            [o(f"s_cmp_ge_u32 s{T0}, 256"), o("s_cbranch_scc1 L_zp_ok")] +
            self.spin("L_zp", [o(f"buffer_load_dword v{V_PF}, off, s[{SR_HZ}:{SR_HZ+3}], 0 offset:128 sc1")],
                      [o(f"v_readfirstlane_b32 s{T0}, v{V_PF}"), o("s_nop 3"), o(f"s_cmp_ge_u32 s{T0}, 256")]))
        ins = []
        for k in range(9):
            if k < 8: ins += [o(f"s_add_u32 s{S_C}, s{S_ZB}, {k*2048}")]
            else: ins += [G([o(f"s_cmp_eq_u32 s{S_W}, 3"), o(f"s_cselect_b32 s{S_C}, 0, {OOB:#x}"), o(f"s_add_u32 s{S_C}, s{S_C}, s{S_ZB}")]),
                          o(f"s_add_u32 s{S_C}, s{S_C}, {8*2048}")]
            for ss in range(3):
                ins += [vm(f"buffer_load_dwordx4 {zP(ss,k)}, v{V_ZP+ss}, s[{SR_WS}:{SR_WS+3}], s{S_C} offen sc1", ("zp", k))]
        sl.stream(ins, 579, 640)
        for k in range(9):
            g = S0 + 6*k
            sl.put(g - 1, [wvm(("zp", k))])
        ins = []
        for k in range(8):
            ins += [o(f"s_add_u32 s{S_C}, s{S_ZB}, {k*2048}")]
            for ss in range(3):
                ins += [vm(f"buffer_load_dwordx4 {zQ(ss,k)}, v{V_ZQ+ss}, s[{SR_WS}:{SR_WS+3}], s{S_C} offen sc1", ("zq", k))]
        sl.stream(ins, S0, SP_END + 20)
        for k in range(8):
            g = SP_END + 6*k
            sl.put(g - 1, [wvm(("zq", k))])
        blk = [o(f"s_cmp_eq_u32 s{S_TAU}, 0"), o("s_cbranch_scc0 L_s_n1024"),
               o("v_mov_b32 v232, 0xbf803f80"), o("v_mov_b32 v233, v232"), o("v_mov_b32 v234, v232"), o("v_mov_b32 v235, v232"), o("s_nop 1")]
        for k in range(9):
            for ss in range(3):
                a = (32, 36, 40)[ss] if False else None
        A1024 = [120, 124, 136]
        for k in range(9):
            for ss in range(3):
                a = A1024[ss]
                blk += [mf16(f"v[{a}:{a+3}]", "v[232:235]", zP(ss, k), "0" if k == 0 else f"v[{a}:{a+3}]")]
        blk += [raw("L_s_n1024:")]
        M[SP_END].setdefault("before", []).extend(blk)
        tA, tB, tC = 236, 237, 238
        t = lu[("C", 0)]; fbar(t)
        e = place(self.dma_p2(stages[0], slot_of[stages[0]], True, 12, 13, V_PF), t + 1, 1)
        ins = [o(f"v_lshrrev_b32 v{V_PF}, 5, v0"), o(f"v_lshlrev_b32 v{V_PF}, 9, v{V_PF}")]
        for s in range(4): ins += [o(f"v_sub_u32 v{V_RA+s}, v{V_RA+s}, v{V_PF}"), o(f"v_sub_u32 v{V_RB+s}, v{V_RB+s}, v{V_PF}")]
        sl.stream(ins, e + 1, e + 14)
        t = lu[("C", 1)] + 6; fbar(t)
        assert t >= lu[("CX", 0)]
        place(self.dma_p2(stages[2], slot_of[stages[2]], False, 0, 0, 0), t + 1, 1)
        t = lu[("S", 0)]
        if self.opts.get("esig", 1):
            sl.put(t, [wvm("hst"), o("s_barrier")])
            sl.put(t + 1, [o(f"v_mov_b32 v{V_PF}, 2")])
            sl.put(t + 2, [vm(f"buffer_store_dword v{V_PF}, v{V_ONE0}, s[{SR_WS}:{SR_WS+3}], s{S_FL} offen sc1", "fl2h")])
            place(self.dma_p2(stages[1], slot_of[stages[1]], False, 0, 0, 0), t + 3, 1)
            fbar(lu[("S", 1)])
        else:
            fbar(t); place(self.dma_p2(stages[1], slot_of[stages[1]], False, 0, 0, 0), t + 1, 1)
            t = lu[("S", 1)]
            sl.put(t, [wvm("hst"), o("s_barrier")])
            sl.put(t + 1, [o(f"v_mov_b32 v{V_PF}, 2")])
            sl.put(t + 2, [vm(f"buffer_store_dword v{V_PF}, v{V_ONE0}, s[{SR_WS}:{SR_WS+3}], s{S_FL} offen sc1", "fl2h")])
        a0 = P2_0 + 3
        t0r, t1r = 240, 241
        SC = SLOT
        W3D = SPARE - SLOT - 3*12288
        N1A = SPARE + 12288
        wr = [G([o(f"s_mul_i32 s{S_C}, s{S_W}, 12288"), o(f"s_add_u32 s{S_C}, s{S_C}, {SC}")]),
              G([o(f"s_cmp_eq_u32 s{S_W}, 3"), o(f"s_cselect_b32 s{S_ST1}, {W3D}, 0"), o(f"s_add_u32 s{S_C}, s{S_C}, s{S_ST1}")]),
              o(f"v_lshrrev_b32 v{t0r}, 4, v0"), o(f"v_mul_u32_u24 v{t0r}, 768, v{t0r}"), o(f"v_and_b32 v{t1r}, 15, v0"), o(f"v_lshlrev_b32 v{t1r}, 2, v{t1r}"),
              o(f"v_add_u32 v{t0r}, v{t0r}, v{t1r}"), o(f"v_add_u32 v{t0r}, s{S_C}, v{t0r}")]
        for pq, accf in ((0, accP), (1, accQ)):
            for tt in range(2):
                for ss in range(3):
                    for r in range(4):
                        wr += [ds(f"ds_write_b32 v{t0r}, v{accf(tt,ss)+r} offset:{pq*6144 + (16*tt + r)*192 + ss*64}", "sred_w")]
        if self.opts.get("sseq"):
            class Seq:
                def __init__(s): s.L = []
                def stream(s, ins, a, b, spill=0): s.L += flat(ins); return a
                def put(s, t, ins): s.L += flat(ins if isinstance(ins, list) else [ins])
            sq = Seq(); real_sl = sl; sl = sq
        e = sl.stream(wr, a0, a0 + 30)
        wr2 = [G([o(f"s_mul_i32 s{S_C}, s{S_W}, 768"), o(f"s_add_u32 s{S_C}, s{S_C}, {N1A}")]), o(f"v_lshlrev_b32 v{t1r}, 2, v0"), o(f"v_add_u32 v{t1r}, s{S_C}, v{t1r}")]
        for ss in range(3): wr2 += [ds(f"ds_write_b32 v{t1r}, v{A1024[ss]} offset:{ss*256}", "sred_w")]
        e = sl.stream(wr2, e + 1, e + 6)
        b1 = e + 1
        sl.put(b1, [wlg("sred_w"), o("s_barrier")])
        R0, R1 = 128, 64
        R0, R1 = 112, 48
        A0, A1, YD0, YM0, YD1, YM1 = 232, 233, 234, 235, 236, 237
        ad = [G([o(f"s_lshl_b32 s{T3}, s{S_W}, 3"), o(f"s_lshl_b32 s{T4}, s{S_TAU}, 5"), o(f"s_add_u32 s{T4}, s{T4}, s{T3}")]),
              G([o(f"s_mul_i32 s{T3}, s{T3}, 192"), o(f"s_add_u32 s{T3}, s{T3}, {SC}"), o(f"s_and_b32 s{T5}, s{S_J}, 7")]),
              o(f"s_mul_i32 s{T5}, s{T5}, 144"),
              o(f"v_lshrrev_b32 v238, 3, v0"), o(f"v_and_b32 v239, 7, v0"),
              o(f"v_mul_u32_u24 v{A0}, 192, v238"), o(f"v_lshlrev_b32 v239, 4, v239"), o(f"v_add_u32 v{A0}, v{A0}, v239"), o(f"v_add_u32 v{A0}, s{T3}, v{A0}"),
              o(f"v_add_u32 v238, s{T4}, v238"),
              o(f"v_add_u32 v239, s{T5}, v239"),
              o(f"v_mul_u32_u24 v{YD0}, {YP}, v238"), o(f"v_add_u32 v{YD0}, v{YD0}, v239"),
              o(f"v_sub_u32 v{YM0}, 2048, v238"), o(f"v_mul_u32_u24 v{YM0}, {YP}, v{YM0}"), o(f"v_add_u32 v{YM0}, v{YM0}, v239"),
              G([o(f"v_cmp_eq_u32 vcc, 0, v238"), o(f"v_mov_b32 v238, {OOB:#x}"), o("v_nop"), o(f"v_cndmask_b32 v{YM0}, v{YM0}, v238, vcc")]),
              o(f"v_and_b32 v238, 7, v0"), o(f"v_lshrrev_b32 v239, 3, v0"), o(f"v_add_u32 v239, 8, v239"), o(f"v_min_u32 v239, 9, v239"),
              o(f"v_mul_u32_u24 v{A1}, 192, v238"), o(f"v_lshlrev_b32 v239, 4, v239"), o(f"v_add_u32 v{A1}, v{A1}, v239"), o(f"v_add_u32 v{A1}, s{T3}, v{A1}"),
              o(f"v_add_u32 v238, s{T4}, v238"), o(f"v_add_u32 v239, s{T5}, v239"),
              o(f"v_mul_u32_u24 v{YD1}, {YP}, v238"), o(f"v_add_u32 v{YD1}, v{YD1}, v239"),
              o(f"v_sub_u32 v{YM1}, 2048, v238"), o(f"v_mul_u32_u24 v{YM1}, {YP}, v{YM1}"), o(f"v_add_u32 v{YM1}, v{YM1}, v239"),
              G([o(f"v_cmp_eq_u32 vcc, 0, v238"), o(f"v_mov_b32 v238, {OOB:#x}"), o("v_nop"), o(f"v_cndmask_b32 v{YM1}, v{YM1}, v238, vcc")]),
              G([o(f"s_cmp_eq_u32 s{T5}, {7*144}"), o(f"s_cselect_b32 s{T5}, 16, 8")]),
              G([o(f"v_cmp_gt_u32 vcc, s{T5}, v0"), o("v_nop"), o("v_nop"), o(f"v_cndmask_b32 v{YD1}, v238, v{YD1}, vcc"), o(f"v_cndmask_b32 v{YM1}, v238, v{YM1}, vcc")]),
              o(f"s_mov_b32 s{T4}, {WS_YH}"),
              o(f"v_lshlrev_b32 v238, 2, v0"), o(f"v_add_u32 v238, {N1A}, v238"),
              o(f"v_add_u32 v243, {W3D + 3*12288}, v{A0}"), o(f"v_add_u32 v244, {W3D + 3*12288}, v{A1}")]
        e = sl.stream(ad, a0 + 2, b1)
        assert self.opts.get('sseq') or e <= b1 + 6
        def rds(R, A, tag):
            A3 = 243 if A == A0 else 244
            return [ds(f"ds_read_b128 v[{R + 16*pq + 4*ww}:{R + 16*pq + 4*ww + 3}], v{A if ww < 3 else A3} offset:{(ww*12288 if ww < 3 else 0) + pq*6144}", tag) for pq in range(2) for ww in range(4)]
        N1 = 216
        n1r = [ds(f"ds_read_b32 v{N1+4*ss+ww}, v238 offset:{ww*768 + ss*256}", "sred_n") for ss in range(3) for ww in range(4)]
        e = sl.stream(rds(R0, A0, "sr0") + rds(R1, A1, "sr1") + n1r, max(e, b1) + 1, max(e, b1) + 12)
        b2 = e + 3
        sl.put(b2, [wlg("sred_n"), o("s_barrier")])
        self.b2 = b2
        def fin(R, YD, YM):
            out = []
            for pq in range(2):
                b_ = R + 16*pq
                for k in range(4):
                    out += [o(f"v_add_f32 v{b_+k}, v{b_+k}, v{b_+4+k}"), o(f"v_add_f32 v{b_+8+k}, v{b_+8+k}, v{b_+12+k}"), o(f"v_add_f32 v{b_+k}, v{b_+k}, v{b_+8+k}")]
            for k in range(4):
                out += [o(f"v_sub_f32 v{R+4+k}, v{R+k}, v{R+16+k}"), o(f"v_add_f32 v{R+8+k}, v{R+k}, v{R+16+k}")]
            out += [vm(f"buffer_store_dwordx4 v[{R+4}:{R+7}], v{YD}, s[{SR_WS}:{SR_WS+3}], s{T4} offen sc1", "yst"),
                    vm(f"buffer_store_dwordx4 v[{R+8}:{R+11}], v{YM}, s[{SR_WS}:{SR_WS+3}], s{T4} offen sc1", "yst")]
            return out
        n1 = []
        for ss in range(3):
            b_ = N1 + 4*ss
            n1 += [o(f"v_add_f32 v{b_}, v{b_}, v{b_+1}"), o(f"v_add_f32 v{b_+2}, v{b_+2}, v{b_+3}"), o(f"v_add_f32 v{b_}, v{b_}, v{b_+2}")]
        n1 += [G([o(f"s_or_b32 s{T3}, s{S_TAU}, s{S_W}"), o(f"s_cmp_eq_u32 s{T3}, 0"), o(f"s_cselect_b32 s{T3}, 16, 0")]),
               G([o(f"v_cmp_gt_u32 vcc, s{T3}, v0"), o(f"v_mov_b32 v238, {1024*YP}"), o(f"v_mov_b32 v239, {OOB:#x}"), o(f"v_cndmask_b32 v238, v239, v238, vcc")])]
        for ss in range(3):
            n1 += [o(f"v_add_u32 v{N1+4*ss+1}, v238, v{V_YC[ss]}")]
        n1 += [vm(f"buffer_store_dword v{N1+4*ss}, v{N1+4*ss+1}, s[{SR_WS}:{SR_WS+3}], s{T4} offen sc1", "yst") for ss in range(3)]
        e = sl.stream(fin(R1, YD1, YM1) + fin(R0, YD0, YM0), b2 + 1, P2_0 + 66, spill=3)
        assert e < P2_0 + 72, e
        e = sl.stream(n1, e + 1, e + 16)
        assert e < P2_0 + 100, e
        if self.opts.get("sseq"):
            sl = real_sl
            M[P2_0].setdefault("before", []).extend([o("s_nop 7")] + sq.L)
            b2 = P2_0 - 1; self.b2 = b2
        gpar = fu[("s2", (0, "par"))]
        PF2 = 231
        sl.put(660, [G([o(f"s_xor_b32 s{T0}, s{S_LID}, 1"), o(f"s_lshl_b32 s{T1}, s{T0}, 7"), o(f"s_add_u32 s{T1}, s{T1}, {WS_FLAG}")])])
        sl.put(661, [G([o(f"s_lshl_b32 s{T0}, s{T0}, 2"), o(f"s_add_u32 s{T0}, s{T0}, s{S_W}"), o(f"s_mul_i32 s{T0}, s{T0}, {18*1024}")]), o(f"s_add_u32 s{T0}, s{T0}, {WS_HX}")])
        pl = f"buffer_load_dword v242, off, s[{SR_WS}:{SR_WS+3}], s{T1} sc1"
        def hload(k, n, t, tag):
            sl.put(t, [o(f"s_add_u32 s{T6}, s{T0}, {k*1024}")])
            sl.put(t + 1, self.dload([f"buffer_load_dwordx4 a[{AZ+4*(k+q)}:{AZ+4*(k+q)+3}], v{V_L16}, s[{SR_WS}:{SR_WS+3}], s{T6} offen offset:{q*1024}" for q in range(n)], tag, True))
        if self.opts.get("onepoll"):
            tq = P2_0 + self.opts.get("tq", 4)
            sl.put(tq, [vm(pl, "hpoll2")])
            sl.put(tq + 10, [wvm("hpoll2")])
            sl.put(tq + 11, [o(f"v_readfirstlane_b32 s{T2}, v242")])
            M[tq + 14].setdefault("before", []).extend(
                [o(f"s_cmp_ge_u32 s{T2}, 2"), o("s_cbranch_scc1 L_hp_ok")] +
                self.spin("L_hp", [o(pl)], [o(f"v_readfirstlane_b32 s{T2}, v242"), o("s_nop 3"), o(f"s_cmp_ge_u32 s{T2}, 2")]))
            for i in range(9):
                hload(2*i, 2, tq + 15 + self.opts.get("hstep", 9)*i, ("hp", i))
        else:
            h1 = self.opts.get("h1", P2_0 - 12)
            sl.put(h1, [vm(pl, "hpoll1")])
            sl.put(h1 + 12, [wvm("hpoll1")])
            sl.put(h1 + 13, [o(f"v_readfirstlane_b32 s{T2}, v242")])
            M[h1 + 16].setdefault("before", []).extend(
                [o(f"s_cmp_ge_u32 s{T2}, 1"), o("s_cbranch_scc1 L_hq_ok")] +
                self.spin("L_hq", [o(pl)], [o(f"v_readfirstlane_b32 s{T2}, v242"), o("s_nop 3"), o(f"s_cmp_ge_u32 s{T2}, 1")]))
            def hload(k, n, t, tag):
                sl.put(t, [o(f"s_add_u32 s{T6}, s{T0}, {k*1024}")])
                sl.put(t + 1, self.dload([f"buffer_load_dwordx4 a[{AZ+4*(k+q)}:{AZ+4*(k+q)+3}], v{V_L16}, s[{SR_WS}:{SR_WS+3}], s{T6} offen offset:{q*1024}" for q in range(n)], tag, True))
            for i in range(6):
                hload(2*i, 2, h1 + 17 + 9*i, ("hp", i))
            tp = P2_0 + self.opts.get("tp2", 74)
            assert tp - 13 > h1 + 17 + 9*5 + 1
            sl.put(tp - 13, [vm(pl, "hpoll2")])
            sl.put(tp - 2, [wvm("hpoll2")])
            sl.put(tp - 1, [o(f"v_readfirstlane_b32 s{T2}, v242")])
            M[tp + 2].setdefault("before", []).extend(
                [o(f"s_cmp_ge_u32 s{T2}, 2"), o("s_cbranch_scc1 L_hp_ok")] +
                self.spin("L_hp", [o(pl)], [o(f"v_readfirstlane_b32 s{T2}, v242"), o("s_nop 3"), o(f"s_cmp_ge_u32 s{T2}, 2")]))
            for i in range(3):
                hload(12 + 2*i, 2, tp + 4 + 6*i, ("hp", 6 + i))

        sl.put(gpar - 2, [wvm(("hp", 5))])
        off = 24 if self.opts.get("klate", 1) else 12
        for i in range(3):
            sl.put(gpar + off + 2*i - 2, [wvm(("hp", 6 + i))])
        for i in range(3, 9):
            st = stages[i]; slot = slot_of[st]
            prev = [j for j in range(i) if slot_of[stages[j]] == slot]
            if prev:
                t = lu[("s2", stages[prev[-1]])]; fbar(t); start = t + 1
            else:
                start = b2 + 1
            grps = self.dma_p2(st, slot, False, 250, 251, 0)
            if st[0] == 4:
                grps = [[o(f"s_and_b32 s{S_C}, s{S_W}, 1"), o(f"s_mul_i32 s{S_C}, s{S_C}, {16*1152}")]] + grps
                place(grps, start, 1)
            else:
                place(grps, start, 2)
        s4 = slot_of[(4, "both")]
        ins = [o("v_lshrrev_b32 v250, 5, v0"), o("v_lshlrev_b32 v250, 8, v250"),
               o("v_bfe_u32 v251, v0, 2, 2"), o("v_lshlrev_b32 v251, 6, v251"), o("v_add_u32 v250, v250, v251"),
               o("v_bfe_u32 v251, v0, 4, 1"), o("v_lshlrev_b32 v251, 5, v251"), o("v_add_u32 v250, v250, v251"),
               o("v_and_b32 v251, 3, v0"), o("v_lshlrev_b32 v251, 3, v251"), o("v_add_u32 v250, v250, v251"),
               o(f"v_add_u32 v{V_R8}, {s4*SLOT}, v250")]
        sl.stream(ins, P2_0 + 150, P2_0 + 175)
        self.pipe_reduce(sl, M, fu, lu, P2_0, N)
        for (u, half), tl in sorted(tile_last.items(), key=lambda x: x[1]):
            acc = ACC[u][half]
            par = half
            t = TMP + 8*par
            st = S_ST0 + par
            ins = [o(f"v_cvt_pk_bf16_f32 v{t+i}, v{acc+2*i}, v{acc+2*i+1}") for i in range(8)]
            if u == 3 and half == 1: continue
            if u < 3: ins += [o(f"s_add_u32 s{st}, s{S_QU[u]}, {half*2048}")]
            elif u == 3: ins += [o(f"s_mov_b32 s{st}, s{S_QN}")]
            else: ins += [o(f"s_mov_b32 s{st}, s{S_Q8}")]
            ins += self.dstore([f"buffer_store_dwordx4 v[{t}:{t+3}], v{V_L16}, s[{SR_WS}:{SR_WS+3}], s{st} offen",
                                f"buffer_store_dwordx4 v[{t+4}:{t+7}], v{V_L16}, s[{SR_WS}:{SR_WS+3}], s{st} offen offset:1024"], ("pst", u))
            s0 = tl + 4
            if s0 + 10 <= N: sl.stream(ins, s0, s0 + 10)
            else: self.tail2 = [o("s_nop 15")] + ins

    def item_setup(self, kind, R, srd=None, split=False):
        t0, t1, t2, t3 = R["t"]
        sQ, sH, sB, sT = T2, T3, T4, T5
        L = []
        LD = []
        SW = SR_WS if srd is None else srd
        if kind == "A":
            L += [G([o(f"s_lshl_b32 s{sT}, s{S_J}, 2"), o(f"s_add_u32 s{sT}, s{sT}, s{S_W}"), o(f"s_lshr_b32 s{sQ}, s{sT}, 3")]),
                  G([o(f"s_cmp_lt_u32 s{sQ}, 4"), o(f"s_cselect_b32 s{sH}, 0, 6"), o(f"s_add_u32 s{sQ}, s{sQ}, s{sH}")])]
        elif kind in "BC":
            lo, hi = (4, 12) if kind == "B" else (6, 14)
            L += [G([o(f"s_lshl_b32 s{sT}, s{S_J}, 1"), o(f"s_lshr_b32 s{sH}, s{S_W}, 1"), o(f"s_add_u32 s{sT}, s{sT}, s{sH}")]),
                  G([o(f"s_lshr_b32 s{sQ}, s{sT}, 3"), o(f"s_cmp_lt_u32 s{sQ}, 2"), o(f"s_cselect_b32 s{sH}, {lo}, {hi}")]),
                  o(f"s_add_u32 s{sQ}, s{sQ}, s{sH}")]
        else:
            L += [G([o(f"s_lshr_b32 s{sT}, s{S_J}, 1"), o(f"s_and_b32 s{sQ}, s{S_J}, 1"), o(f"s_add_u32 s{sQ}, s{sQ}, 8")])]
        L += [G([o(f"s_and_b32 s{sH}, s{sT}, 1"), o(f"s_bfe_u32 s{sB}, s{sT}, 0x20001"), o(f"s_lshl_b32 s{sT}, s{S_MT}, 2")]),
              o(f"s_add_u32 s{sB}, s{sB}, s{sT}"),
              G([o(f"s_mul_i32 s{sT}, s{sB}, 18"), o(f"s_add_u32 s{sT}, s{sT}, s{sQ}"), o(f"s_lshl_b32 s{sT}, s{sT}, 1")]),
              G([o(f"s_add_u32 s{sT}, s{sT}, s{sH}"), o(f"s_lshl_b32 s{sT}, s{sT}, 10")])]
        so = R["so"]
        for p in range(8): L += [o(f"s_add_u32 s{so+p}, s{sT}, {p*PART_BYTES}")]
        if kind == "A":
            L += [o(f"v_mov_b32 v{t3}, 0")]
        elif kind in "BC":
            L += [o(f"s_and_b32 s{sT}, s{S_W}, 1"), o(f"v_bfe_u32 v{t0}, v0, 4, 1"), o(f"v_mov_b32 v{t1}, {OOB:#x}"), o(f"v_mov_b32 v{t3}, 0"),
                  G([o(f"v_cmp_eq_u32 vcc, s{sT}, v{t0}"), o("v_nop"), o("v_nop"), o(f"v_cndmask_b32 v{t3}, v{t1}, v{t3}, vcc")])]
        else:
            L += [o(f"v_bfe_u32 v{t0}, v0, 3, 2"), o(f"v_mov_b32 v{t1}, {OOB:#x}"), o(f"v_mov_b32 v{t3}, 0"),
                  G([o(f"v_cmp_eq_u32 vcc, s{S_W}, v{t0}"), o("v_nop"), o("v_nop"), o(f"v_cndmask_b32 v{t3}, v{t1}, v{t3}, vcc")])]
        PV = R["PV"]
        L += [o(f"v_add_u32 v{PV}, v{t3}, v{V_L16}")]
        pk, pb = R["P"]
        ldp = [vm(f"buffer_load_dwordx4 {pk}[{pb+4*p}:{pb+4*p+3}], v{PV}, s[{SW}:{SW+3}], s{so+p} offen sc1", ("it", kind)) for p in range(8)]
        if split: LD += ldp
        else: L += ldp
        X, Y, OA = R["X"], R["Y"], R["OA"]
        L += [o(f"s_lshl_b32 s{sT}, s{sB}, 4"), o(f"v_and_b32 v{t0}, 15, v0"), o(f"v_add_u32 v{t0}, s{sT}, v{t0}"),
              o(f"v_sub_u32 v{t1}, 2048, v{t0}"), o(f"v_mov_b32 v{t2}, 1024"), o(f"v_mov_b32 v{OA}, 0"),
              G([o(f"v_cmp_eq_u32 vcc, 0, v{t0}"), o("v_nop"), o("v_nop"), o(f"v_cndmask_b32 v{X}, v{t1}, v{t2}, vcc"),
                 o(f"v_cndmask_b32 v{t1}, v{t1}, v{OA}, vcc"), o(f"v_cndmask_b32 v{t2}, v{t0}, v{t2}, vcc")]),
              o(f"v_and_b32 v{OA}, 16, v0"),
              G([o(f"v_cmp_eq_u32 vcc, 0, v{OA}"), o("v_nop"), o("v_nop"), o(f"v_cndmask_b32 v{t0}, v{X}, v{t0}, vcc"), o(f"v_cndmask_b32 v{t1}, v{t2}, v{t1}, vcc")]),
              G([o(f"s_lshl_b32 s{sT}, s{sQ}, 6"), o(f"s_lshl_b32 s{sB}, s{sH}, 5"), o(f"s_add_u32 s{sT}, s{sT}, s{sB}")]),
              o(f"v_mul_u32_u24 v{t2}, 1152, v{t0}"), o(f"v_add_u32 v{t2}, s{sT}, v{t2}"), o(f"v_add_u32 v{t2}, v{t2}, v{t3}"),
              o(f"v_lshrrev_b32 v{X}, 5, v0"), o(f"v_lshlrev_b32 v{OA}, 4, v{X}"), o(f"v_add_u32 v{OA}, v{t2}, v{OA}"),
              o(f"v_lshlrev_b32 v{X}, 3, v{X}"), o(f"v_add_u32 v{t2}, v{t2}, v{X}"),
              vm(f"buffer_load_dwordx2 v[{X}:{X+1}], v{t2}, s[{SR_X}:{SR_X+3}], 0 offen", ("it", kind)),
              vm(f"buffer_load_dwordx2 v[{X+2}:{X+3}], v{t2}, s[{SR_X}:{SR_X+3}], 0 offen offset:16", ("it", kind)),
              G([o(f"s_lshl_b32 s{sT}, s{sT}, 1"), o(f"s_cmp_lt_u32 s{sQ}, 9"), o(f"s_cselect_b32 s{R['rev']}, 0, 1")]),
              G([o(f"s_sub_u32 s{sB}, 2292, s{sT}"), o(f"s_cmp_lt_u32 s{sQ}, 9"), o(f"s_cselect_b32 s{sT}, s{sT}, s{sB}"), o(f"s_cselect_b32 s{sB}, 1, -1")]),
              G([o(f"v_cmp_eq_u32 vcc, 1, v{PV}") if False else o(f"v_mov_b32 v{t2}, s{R['rev']}"), o(f"v_cmp_eq_u32 vcc, 1, v{t2}"), o("v_nop"), o("v_nop"),
                 o(f"v_cndmask_b32 v{t0}, v{t0}, v{t1}, vcc")]),
              o(f"v_mul_u32_u24 v{t0}, {YP}, v{t0}"), o(f"v_add_u32 v{t0}, s{sT}, v{t0}"), o(f"v_add_u32 v{t0}, v{t0}, v{t3}"),
              o(f"v_lshrrev_b32 v{t1}, 5, v0"), o(f"v_lshlrev_b32 v{t1}, 4, v{t1}"), o(f"v_mul_lo_u32 v{t1}, v{t1}, s{sB}"),
              o(f"v_add_u32 v{t0}, v{t0}, v{t1}"),
              o(f"s_lshl_b32 s{sB}, s{sB}, 5"), o(f"v_add_u32 v{t1}, s{sB}, v{t0}"), o(f"v_add_u32 v{t0}, {WS_YH}, v{t0}"), o(f"v_add_u32 v{t1}, {WS_YH}, v{t1}")]
        ldy = [vm(f"buffer_load_dwordx4 v[{Y}:{Y+3}], v{t0}, s[{SW}:{SW+3}], 0 offen sc1", ("it", kind)),
               vm(f"buffer_load_dwordx4 v[{Y+4}:{Y+7}], v{t1}, s[{SW}:{SW+3}], 0 offen sc1", ("it", kind))]
        if split:
            LD += ldy
            return L, LD
        return L + ldy

    def item_finish(self, kind, R):
        X, Y, OA = R["X"], R["Y"], R["OA"]
        t0, t1, t2, t3 = R["t"]
        pk, pb = R["P"]
        L = [wvm(("it", kind)),
             o(f"s_cmp_eq_u32 s{R['rev']}, 0"), o(f"s_cbranch_scc1 L_rv{kind}"),
             o(f"v_swap_b32 v{Y}, v{Y+3}"), o(f"v_swap_b32 v{Y+1}, v{Y+2}"), o(f"v_swap_b32 v{Y+4}, v{Y+7}"), o(f"v_swap_b32 v{Y+5}, v{Y+6}"),
             raw(f"L_rv{kind}:"),
             o(f"s_mov_b32 s{T0}, 0x3f80"), o(f"s_mov_b32 s{T1}, 0x3f800000")]
        for i in range(4):
            L += [o(f"v_dot2_f32_bf16 v{Y+2*i}, v{X+i}, s{T0}, v{Y+2*i}"), o(f"v_dot2_f32_bf16 v{Y+2*i+1}, v{X+i}, s{T1}, v{Y+2*i+1}")]
        for p in range(8):
            for i in range(4):
                r = pb + 4*p + i
                if pk == "a":
                    L += [o(f"v_accvgpr_read_b32 v{t0 + (i & 1)}, a{r}")]
                    src = t0 + (i & 1)
                else: src = r
                L += [o(f"v_dot2_f32_bf16 v{Y+2*i}, v{src}, s{T0}, v{Y+2*i}"), o(f"v_dot2_f32_bf16 v{Y+2*i+1}, v{src}, s{T1}, v{Y+2*i+1}")]
        L += [o("s_nop 2")]
        for i in range(4):
            L += [o(f"v_cvt_pk_bf16_f32 v{X+i}, v{Y+2*i}, v{Y+2*i+1}")]
        L += [o("s_nop 1"), o(f"v_permlane32_swap_b32 v{X}, v{X+2}"), o(f"v_permlane32_swap_b32 v{X+1}, v{X+3}"),
              vm(f"buffer_store_dwordx4 v[{X}:{X+3}], v{OA}, s[{SR_OUT}:{SR_OUT+3}], 0 offen{self.osfx}", "out")]
        return L

    def group_poll(self, label, val, vdst, voff):
        ld = f"buffer_load_dword v{vdst}, v{voff}, s[{SR_WS}:{SR_WS+3}], s{T6} offen sc1"
        chk = [o(f"v_cmp_le_u32 vcc, {val}, v{vdst}"), o("s_nop 0"), o(f"s_and_b32 s{T7}, vcc_lo, 0xff"), o(f"s_cmp_eq_u32 s{T7}, 0xff")]
        return ld, chk

    def items_cfg(self):
        self.RA = dict(P=("v", 80), X=112, Y=116, OA=124, PV=125, t=[126, 127, 16, 17], rev=24, so=16)
        self.RB = dict(P=("a", 0), X=18, Y=22, OA=30, PV=31, t=[48, 49, 50, 51], rev=25, so=16)
        self.RC = dict(P=("v", 176), X=208, Y=212, OA=220, PV=221, t=[222, 223, 224, 225], rev=26, so=16)
        self.RD = dict(P=("v", 128), X=160, Y=164, OA=172, PV=173, t=[174, 175, 226, 227], rev=27, so=84)

    def tail(self):
        L = list(self.late_loads)
        O = 128
        ld, chk = self.group_poll("L_f5", 5, 241, 242)
        L += [vm(ld, "fp5")]
        L += self.stamp("pub")
        RD = self.RDx; Ld = self.D_ld
        L += [wvm("op"), wvm("ox"), o(f"s_mov_b32 s{T0}, 0x3f80"), o(f"s_mov_b32 s{T1}, 0x3f800000"),
              o("s_cmp_eq_u32 s24, 0"), o("s_cbranch_scc1 L_oyd")]
        for g_ in range(4):
            for k in range(4): L += [o(f"v_add_f32 v{O+4*g_+k}, v{O+4*g_+k}, v{48 + 4*(3-g_) + 3 - k}")]
        L += [o("s_branch L_oyj"), raw("L_oyd:")]
        for r in range(16): L += [o(f"v_add_f32 v{O+r}, v{O+r}, v{48+r}")]
        L += [raw("L_oyj:")]
        for i in range(8):
            L += [o(f"v_dot2_f32_bf16 v{O+2*i}, v{24+i}, s{T0}, v{O+2*i}"), o(f"v_dot2_f32_bf16 v{O+2*i+1}, v{24+i}, s{T1}, v{O+2*i+1}")]
        for p in range(6):
            for i in range(8):
                L += [o(f"v_dot2_f32_bf16 v{O+2*i}, v{80+8*p+i}, s{T0}, v{O+2*i}"), o(f"v_dot2_f32_bf16 v{O+2*i+1}, v{80+8*p+i}, s{T1}, v{O+2*i+1}")]
        L += self.stamp("early")
        L += [wvm("fp5")] + chk + [o("s_cbranch_scc1 L_f5_ok")] + self.spin("L_f5", [o(ld)], chk) + [reset()]
        L += self.stamp("pok")
        L += [vm(f"buffer_load_dwordx4 v[16:19], v{V_L16}, s[{SR_WS}:{SR_WS+3}], s22 offen sc1", "sib"),
              vm(f"buffer_load_dwordx4 v[20:23], v{V_L16}, s[{SR_WS}:{SR_WS+3}], s22 offen offset:1024 sc1", "sib")]
        L += Ld
        L += [wvm("sib")]
        for i in range(8):
            L += [o(f"v_dot2_f32_bf16 v{O+2*i}, v{16+i}, s{T0}, v{O+2*i}"), o(f"v_dot2_f32_bf16 v{O+2*i+1}, v{16+i}, s{T1}, v{O+2*i+1}")]
        L += [o("s_nop 2")]
        for i in range(8): L += [o(f"v_cvt_pk_bf16_f32 v{24+i}, v{O+2*i}, v{O+2*i+1}")]
        L += [o("s_nop 1"), o("v_permlane32_swap_b32 v24, v26"), o("v_permlane32_swap_b32 v25, v27"),
              o("v_permlane32_swap_b32 v28, v30"), o("v_permlane32_swap_b32 v29, v31"),
              vm(f"buffer_store_dwordx4 v[24:27], v238, s[{SR_OUT}:{SR_OUT+3}], 0 offen{self.osfx}", "out"),
              vm(f"buffer_store_dwordx4 v[28:31], v238, s[{SR_OUT}:{SR_OUT+3}], 0 offen offset:32{self.osfx}", "out")]
        L += self.stamp("ownfin")
        L += self.item_finish("D", RD)
        return L

    def kernel(self, name):
        L = [raw(f".globl {name}"), raw(".p2align 8"), raw(f".type {name},@function"), raw(f"{name}:")]
        L += self.prologue()
        L += self.stamp("proend")
        L += self.ln_stats()
        L += self.stamp("stats")
        L += [o("s_barrier")]
        L += [o(f"s_mov_b32 s{S_A}, s{S_J}"), o(f"s_add_u32 s{S_B}, s{S_J}, 16")]
        L += self.h_dma(S_A, 2, "wz1")
        L += [o(f"s_cmp_lt_u32 s{S_J}, 2"), o("s_cbranch_scc0 L_noz2a")]
        L += [I(i.t, "o") if i.k == "vm" else i for i in self.h_dma(S_B, 3, "wz2")]
        L += [raw("L_noz2a:")]
        hd = []
        for sig in range(2):
            for grp in self.dma_p1(sig, sig): hd.append(grp)
        if not self.opts.get('bearly'): hd.append([o(f"s_lshl_b32 s{S_PF}, s{S_LID}, 2"), o(f"s_add_u32 s{S_PF}, s{S_PF}, s{S_W}"), o(f"s_mul_i32 s{S_PF}, s{S_PF}, 41"),
                   o(f"v_add_u32 v240, s{S_PF}, v0"), o("v_lshlrev_b32 v240, 7, v240"), o("v_cmp_gt_u32 vcc, 41, v0"), o("s_nop 1"),
                   o(f"v_cndmask_b32 v240, v{V_ONE0}, v240, vcc"),
                   vm(f"buffer_load_dword v{V_PF}, v240, s[{SR_WG}:{SR_WG+3}], 0 offen", "pf"),
                   vm(f"buffer_load_dword v{V_PF}, v240, s[{SR_WU}:{SR_WU+3}], 0 offen", "pf")])
        lf = self.ln_finish()
        per = -(-len(lf) // 18)
        k = 0
        for n, grp in enumerate(hd):
            L += grp
            if n < 18: L += lf[k:k + per]; k += per
        L += lf[k:]
        L += [o(f"v_subrev_u32 v{V_XA+i}, s{S_LX}, v{V_XA+i}") for i in range(4)]
        L += [o(f"v_add_u32 v{V_XA+i}, {2*SLOT}, v{V_XA+i}") for i in range(4)]
        L += self.stamp("lnfin")
        L += self.seg_norm_h()
        L += self.stamp("normH")
        L += self.h2_block()
        L += self.tr_bases()
        L += srd(SR_HZ, 36, 256)
        L += self.main()
        L += self.stamp("p2end")
        L += self.tail()
        L += self.stamp("end")
        if self.diag:
            L += [o("s_waitcnt vmcnt(0)"),
                  o(f"s_lshl_b32 s{T0}, s{S_LID}, 2"), o(f"s_add_u32 s{T0}, s{T0}, s{S_W}"), o(f"s_lshl_b32 s{T0}, s{T0}, 8"),
                  o(f"s_add_u32 s{T0}, s{T0}, {WS_STAMP}"), o("v_lshlrev_b32 v240, 2, v0"),
                  o(f"buffer_store_dword v{V_STAMP}, v240, s[{SR_WS}:{SR_WS+3}], s{T0} offen")]
        if self.opts.get("hdiag") == 2:
            L += [o("s_waitcnt vmcnt(0)"), o(f"v_readlane_b32 s98, v{V_STAMP}, 32"), o("s_nop 3"),
                  o(f"v_subrev_u32 v240, s98, v{V_STAMP}"),
                  o("v_subrev_u32 v241, 32, v0"), o("v_lshlrev_b32 v241, 2, v241"),
                  o("v_cmp_le_u32 vcc, 32, v0"), o(f"v_mov_b32 v242, {OOB:#x}"), o("s_nop 0"), o("v_cndmask_b32 v241, v242, v241, vcc"),
                  o("v_cmp_gt_u32 vcc, 48, v0"), o("s_nop 1"), o("v_cndmask_b32 v241, v242, v241, vcc"),
                  o(f"s_cmp_eq_u32 s{S_W}, 0"), o("s_cbranch_scc0 L_end"),
                  o(f"buffer_atomic_u{'min' if self.opts.get('hmin') else 'max'} v240, v241, s[{SR_HZ}:{SR_HZ+3}], 0 offen sc1")]
        elif self.opts.get("hdiag"):
            L += [o("s_waitcnt vmcnt(0)"), o("s_memrealtime s[100:101]"), o("s_waitcnt lgkmcnt(0)"),
                  o("s_sub_u32 s97, s100, s98"), o("s_not_b32 s98, s98"),
                  o("v_mov_b32 v240, s100"), o("v_mov_b32 v241, s98"), o("v_mov_b32 v242, s97"),
                  o(f"buffer_atomic_umax v240, v{V_ONE0}, s[{SR_HZ}:{SR_HZ+3}], 0 offen sc1"),
                  o(f"buffer_atomic_umax v241, v{V_ONE0}, s[{SR_HZ}:{SR_HZ+3}], 0 offen offset:4 sc1"),
                  o(f"buffer_atomic_umax v242, v{V_ONE0}, s[{SR_HZ}:{SR_HZ+3}], 0 offen offset:8 sc1")]
            for i, r in enumerate(self.hd_regs):
                pass
        L += [raw("L_end:"), o("s_endpgm")]
        return finalize(flat(L))

NAME = "parallel_sum__spectral_fnet__geglu_ffn__prompt_kernel"
def build(diag=False, opts=None):
    hdr = open("parallel_sum__spectral_fnet__geglu_ffn__prompt.s.ref").read().split("\n")
    top = [l for l in hdr if l.startswith(";") and "@launch" not in l and "Override" not in l and "grid=ceil" not in l]
    g = Gen(diag, opts)
    lines = g.kernel(NAME)
    errs = hazard_check(lines)
    for e in errs[:30]: print("HAZARD:", e)
    txt = "\n".join(top) + "\n"
    txt += "; @launch grid=(256,1,1) block=(256,1,1) lds=163840\n"
    txt += '.amdgcn_target "amdgcn-amd-amdhsa--gfx950"\n.text\n'
    txt += "\n".join(lines) + "\n" + kernel_footer(NAME)
    return txt, g.names

if __name__ == "__main__":
    import sys, json
    opts = {}
    for a in sys.argv[2:]:
        if "=" in a:
            k, v = a.split("="); opts[k] = int(v)
    txt, names = build("diag" in sys.argv, opts)
    open(sys.argv[1], "w").write(txt)
    json.dump(names, open(sys.argv[1] + ".names", "w"))
```

```python
from fw import *
from sched import *
import math, struct

S, D, F = 2048, 576, 4608
SLOT = 36864
SPARE = 4*SLOT
PART_BYTES = S * D * 2
WS_PART = 0
WS_HX = 20 << 20
WS_ZF = 40 << 20
ZF_STRIDE = 66 * 1024
WS_YH = 42 << 20
YP = 320 * 4
WS_FLAG = 46 << 20
WS_STAMP = 48 << 20
OOB = 0x40000000
C0 = -2.0 * math.sqrt(2.0 / math.pi) * math.log2(math.e)
C1 = C0 * 0.044715
def f2u(f): return struct.unpack("<I", struct.pack("<f", f))[0]

V_L16 = 1
V_RA, V_RB = 2, 6
V_DM = 10
V_C0, V_C1 = 14, 15
GA = [[16, 32], [48, 64]]
UA = [[80, 96], [112, 128]]
HF = 144
TMP = 216
V_HACC = 232
V_XA = 248
V_R8 = 248
V_PF = 252
V_ONE0 = 253
V_D2 = 254
V_STAMP = 255
RX = 80
V_PERM = 224
V_NEGMU = 64
V_ONE = 231
V_SD = 232
V_SA = 236
V_SX = 240
V_ZP = 241
V_ZQ = 244
V_YC = [247, 250, 251]
V_LB = 232
AX = 0
AF = 144
NAF = 8
AZ = 176
SR_CS, SR_SS, SR_HZ, SR_X, SR_WG, SR_WU, SR_WD, SR_WS, SR_OUT = 4, 8, 12, 40, 44, 48, 52, 56, 60
S_W, S_MT, S_J = 64, 65, 66
S_LX, S_L9 = 67, 68
S_UB = 69
S_WD = 74
S_PB = 75
T0, T1, T2, T3, T4, T5, T6, T7 = 76, 77, 78, 79, 80, 81, 82, 83
S_N0 = 84
S_N1 = 16
S_CU = 25
S_Q0, S_Q8 = 30, 31
S_HB = 32
S_LID = 33
S_ST0, S_ST1 = 34, 35
S_CNT = 93
S_A, S_B, S_C = 94, 95, 96
S_TAU, S_ZB = 38, 39
S_PF = 97
S_XC = 0
S_QU = [30, 36, 37]
S_QN = 39
S_TO = 32
S_GA = 28
S_FL = 1
S_MODE = 2
S_D0 = 3

def srd(dst, ptr, nbytes):
    return [o(f"s_mov_b32 s{dst}, s{ptr}"), o(f"s_and_b32 s{dst+1}, s{ptr+1}, 0xffff"),
            o(f"s_mov_b32 s{dst+2}, {nbytes}"), o(f"s_mov_b32 s{dst+3}, 0x00020000")]
def mf32(acc, A, B, C): return o(f"v_mfma_f32_32x32x16_bf16 {acc}, {A}, {B}, {C}")
def mf16(acc, A, B, C): return o(f"v_mfma_f32_16x16x32_bf16 {acc}, {A}, {B}, {C}")

class DS2(I):
    pass

class Gen:
    def dload(self, texts, tag, pair=False):
        out = self.dstore(texts, tag, pair)
        if hasattr(out[0], "cost"): out[0].cost = 3 + len(texts)
        return out
    def dstore(self, texts, tag, pair=False):
        self.lab = getattr(self, "lab", 0) + 1
        n = self.lab
        if self.opts.get("forcemode") == 1 or not self.opts.get("local", 0) or (self.opts.get("cfg", 0) == 0 and not pair):
            return [vm(t + " sc1", tag) for t in texts]
        body = f"s_bitcmp1_b32 s{S_MODE}, 0\n    s_cbranch_scc1 L_dl{n}\n"
        body += "".join(f"    {t} sc1\n" for t in texts)
        body += f"    s_branch L_dj{n}\nL_dl{n}:\n"
        body += "".join(f"    {t}\n" for t in texts)
        body += f"L_dj{n}:"
        out = [I("buffer_store_multi " + body, "vm", tag)]
        out[0].t = body
        out[0].cost = 3 + 5*len(texts)
        for _ in texts[1:]:
            x = I("; (counted above)", "vm", tag); x.cost = 0; out.append(x)
        return out
    def __init__(self, diag=False, opts=None):
        self.hd_regs = []
        self.osfx = ' sc1' if (opts or {}).get('osc1') else ''
        self.diag = diag; self.opts = opts or {}; self.nst = 0; self.names = []; self.pid = 0
    def stamp(self, name):
        if not self.diag: return []
        if self.opts.get("hdiag") == 2 and name in ("kernarg", "xiss", "proend", "lnfin", "pub", "early", "pok", "ownfin"): return []
        i = self.nst; self.nst += 1; self.names.append(name)
        return [o("s_memtime s[98:99]"), o("s_memrealtime s[100:101]"), o("s_waitcnt lgkmcnt(0)"),
                o(f"v_writelane_b32 v{V_STAMP}, s98, {i}"), o(f"v_writelane_b32 v{V_STAMP}, s100, {i+32}")]

    def paced(self, M, frags, setup, dist):
        N = len(M)
        sl = Slots(N)
        for g, m in enumerate(M):
            if m["op"] == 16: sl.budget[g] = 3
        head = []
        pid = self.pid; self.pid += 1
        def put(t, ins):
            if t < 0: head.extend(ins if isinstance(ins, list) else [ins])
            else: sl.put(t, ins)
        issue = {}
        for f, fr in enumerate(frags):
            t = fr["use"] - fr.get("dist", dist)
            issue[f] = t
            put(t, fr.get("pre", []))
            put(t, [ds(r, ("af", pid, f)) for r in fr["reads"]])
        waited = -1
        n0 = M[0]["need"]
        if n0 >= 0:
            tgt = max(n0, M[1]["need"])
            head.append(wlg(("af", pid, tgt))); waited = tgt
        for g in range(N - 1):
            nx = M[g+1]["need"]
            if nx > waited:
                tgt = nx
                if g + 2 < N and M[g+2]["need"] > nx and issue[M[g+2]["need"]] <= g - 3 and M[g+1]["op"] == 32: tgt = M[g+2]["need"]
                put(g, [wlg(("af", pid, tgt))]); waited = tgt
        setup(sl, head)
        L = list(head)
        for g, m in enumerate(M):
            L += m.get("before", [])
            c = "0" if m["first"] else m.get("C", m["acc"])
            if m.get("C") and m["first"]: c = m["C"]
            L.append((mf32 if m["op"] == 32 else mf16)(m["acc"], m["A"], m["B"], c))
            L += sl.emit(g)
        if self.opts.get("verbose"):
            over = [(g, sl.used[g], sl.budget[g]) for g in range(N) if sl.used[g] > sl.budget[g]]
            print(f"paced {pid}: N={N} over budget: {len(over)} total excess {sum(u-b for _,u,b in over)} avg used {sum(sl.used)/N:.2f}")
            if self.opts.get("verbose") > 1:
                for a in range(0, N, 36):
                    ex = sum(max(0, sl.used[g]-sl.budget[g]) for g in range(a, min(a+36, N)))
                    print(a, "used", sum(sl.used[a:a+36]), "budget", sum(sl.budget[a:a+36]), "excess", ex)
        return L

    def prologue(self):
        L = []
        if self.opts.get("hdiag"): L += [o("s_memrealtime s[98:99]")]
        if self.diag: L += [o(f"v_mov_b32 v{V_STAMP}, 0")]
        L += self.stamp("start")
        L += [o("s_load_dwordx16 s[16:31], s[0:1], 0"), o("s_load_dwordx8 s[32:39], s[0:1], 64"),
              o("s_cmp_ge_u32 s2, 256"), o("s_cbranch_scc1 L_end")]
        L += [o("v_lshrrev_b32 v2, 6, v0"), o("v_and_b32 v0, 63, v0"), o("s_nop 0"),
              o(f"v_readfirstlane_b32 s{S_W}, v2"),
              ] + self.idmap() + [
              o(f"s_mul_i32 s{S_LX}, s{S_W}, {SLOT}"), o(f"s_mul_i32 s{S_L9}, s{S_W}, 9216"),
              o(f"v_lshlrev_b32 v{V_L16}, 4, v0")]
        if self.opts.get("cpf", 1):
            L += [o("s_getpc_b64 s[82:83]"), raw("L_pc:"),
                  o(f"s_lshr_b32 s{T0}, s2, 3"), o(f"s_lshl_b32 s{T0}, s{T0}, 2"), o(f"s_add_u32 s{T0}, s{T0}, s{S_W}"),
                  o(f"s_lshl_b32 s{T0}, s{T0}, 9"),
                  o("v_and_b32 v2, 3, v0"), o("v_lshlrev_b32 v2, 7, v2"), o(f"v_add_u32 v2, s{T0}, v2"),
                  o("v_cmp_gt_u32 vcc, 4, v0"), o("s_and_saveexec_b64 s[80:81], vcc"),
                  vm(f"global_load_dword v{V_PF}, v2, s[82:83]", "pf"), o("s_mov_b64 exec, s[80:81]")]
        L += [o("v_lshrrev_b32 v2, 3, v0"), o("v_and_b32 v3, 7, v0"), o("v_lshrrev_b32 v4, 1, v2"),
              o("v_xor_b32 v3, v3, v4"), o("v_lshlrev_b32 v3, 4, v3"), o("v_xor_b32 v4, 64, v3"),
              o(f"s_lshl_b32 s{T0}, s{S_MT}, 6"), o(f"s_lshl_b32 s{T1}, s{S_W}, 4"), o(f"s_add_u32 s{T0}, s{T0}, s{T1}"),
              o(f"v_add_u32 v5, s{T0}, v2"), o("v_add_u32 v6, 8, v5"),
              o("v_sub_u32 v7, 2048, v5"), o("v_sub_u32 v8, 2048, v6"),
              o("v_cmp_eq_u32 vcc, 0, v5"), o("v_mov_b32 v9, 1024"), o("s_nop 0"),
              o("v_cndmask_b32 v7, v7, v9, vcc"),
              o(f"s_movk_i32 s{T1}, 1152"),
              o(f"v_mad_u32_u24 v240, v5, s{T1}, v3"), o(f"v_mad_u32_u24 v241, v6, s{T1}, v4"),
              o(f"v_mad_u32_u24 v242, v7, s{T1}, v3"), o(f"v_mad_u32_u24 v243, v8, s{T1}, v4")]
        if self.opts.get("xpf", 1) == 2:
            L += [o(f"s_lshl_b32 s{T0}, s{S_MT}, 4"), o(f"s_add_u32 s{T0}, s{T0}, s{S_J}"), o(f"s_lshl_b32 s{T0}, s{T0}, 2"), o(f"s_add_u32 s{T0}, s{T0}, s{S_W}"),
                  o(f"s_mul_i32 s{T0}, s{T0}, 18"), o(f"v_add_u32 v9, s{T0}, v0"), o("v_lshlrev_b32 v9, 7, v9"),
                  o("v_cmp_gt_u32 vcc, 18, v0"), o(f"v_mov_b32 v8, {OOB:#x}"), o("s_nop 0"), o("v_cndmask_b32 v9, v8, v9, vcc")]
        elif self.opts.get("xpf", 1):
            nsh = 16 if self.opts.get("cfg", 0) == 1 else 4
            per = 1152 // nsh // 4
            assert per <= 64 or True
            jj = f"s{S_J}"
            L += [o(f"s_and_b32 s{T0}, s{S_J}, {nsh-1}"), o(f"s_lshl_b32 s{T0}, s{T0}, 2"), o(f"s_add_u32 s{T0}, s{T0}, s{S_W}"), o(f"s_mul_i32 s{T0}, s{T0}, {per}"),
                  o(f"v_add_u32 v9, s{T0}, v0"),
                  o(f"s_mul_i32 s{T0}, s{S_MT}, {64*1152}"),
                  o(f"s_sub_u32 s{T1}, {(2048-63)*1152 - 576*128}, s{T0}"),
                  o("v_lshlrev_b32 v8, 7, v9"), o(f"v_add_u32 v7, s{T1}, v8"), o(f"v_add_u32 v8, s{T0}, v8"),
                  o("v_cmp_gt_u32 vcc, 0x240, v9"), o("s_nop 1"), o("v_cndmask_b32 v9, v7, v8, vcc"),
                  o(f"v_cmp_gt_u32 vcc, {min(per,64)}, v0"), o(f"v_mov_b32 v8, {OOB:#x}"), o("s_nop 0"), o("v_cndmask_b32 v9, v8, v9, vcc")]
        L += [o("s_waitcnt lgkmcnt(0)")]
        L += self.stamp("kernarg")
        L += srd(SR_X, 16, S*D*2)
        if self.opts.get("xpf", 1):
            L += [vm(f"buffer_load_dword v{V_PF}, v9, s[{SR_X}:{SR_X+3}], 0 offen", "pf")]
        HEAD = L
        P = []
        P += srd(SR_WG, 28, D*F*2) + srd(SR_WU, 30, D*F*2) + srd(SR_WD, 32, F*D*2) + srd(SR_WS, 38, 256 << 20) + srd(SR_OUT, 34, S*D*2)
        P += srd(SR_CS, 18, S*S*2) + srd(SR_SS, 20, S*S*2)
        P += [o(f"s_lshl_b32 s{T0}, s{S_W}, 6"), o(f"v_add_u32 v2, s{T0}, v0"), o("v_cmp_eq_u32 vcc, 0, v2"),
              o(f"v_mov_b32 v3, {OOB:#x}"), o("v_mov_b32 v4, 0"), o(f"v_cndmask_b32 v{V_ONE0}, v3, v4, vcc")]
        P += [o(f"s_lshl_b32 s{S_LID}, s{S_MT}, 4"), o(f"s_add_u32 s{S_LID}, s{S_LID}, s{S_J}")]
        P += [o(f"s_and_b32 s{T2}, s{S_J}, 1"), o(f"s_mul_i32 s{T0}, s{S_J}, 288"), o(f"s_mul_i32 s{T1}, s{T2}, 224"),
              o(f"s_add_u32 s{T1}, s{T0}, s{T1}"),
              G([o(f"s_cmp_eq_u32 s{T2}, 0"), o(f"s_cselect_b32 s{T3}, 64, -64"), o(f"s_cselect_b32 s{T4}, 256, 0")]),
              o(f"s_add_u32 s{T4}, s{T4}, s{T0}")]
        for u in range(4):
            P += [o(f"s_mul_i32 s{T5}, s{T3}, {u}"), o(f"s_add_u32 s{T5}, s{T5}, s{T1}"),
                  o(f"s_lshl_b32 s{S_UB+u}, s{T5}, 1"),
                  o(f"s_mul_i32 s{S_N0+2*u}, s{T5}, 1152"), o(f"s_add_u32 s{S_N0+2*u+1}, s{S_N0+2*u}, {32*1152}")]
        P += [o(f"s_lshl_b32 s{S_UB+4}, s{T4}, 1"), o(f"s_mul_i32 s{S_N0+8}, s{T4}, 1152")]
        P += [o(f"s_mov_b32 s{S_A}, s{S_UB}")]
        P += [o(f"s_mul_i32 s{T5}, s{S_W}, {72*9216}")]
        for u in range(4): P += [o(f"s_add_u32 s{S_UB+u}, s{S_UB+u}, s{T5}")]
        P += [o(f"s_lshl_b32 s{T5}, s{T5}, 1"), o(f"s_add_u32 s{S_UB+4}, s{S_UB+4}, s{T5}")]
        P += [o(f"s_lshr_b32 s{T0}, s{S_J}, 1"), o(f"s_mul_i32 s{S_PB}, s{T0}, {PART_BYTES}"),
              o(f"s_lshl_b32 s{T0}, s{S_MT}, 2"), o(f"s_add_u32 s{T0}, s{T0}, s{S_W}"),
              o(f"s_mul_i32 s{T0}, s{T0}, {18*2048}"), o(f"s_add_u32 s{S_PB}, s{S_PB}, s{T0}"),
              o(f"s_lshl_b32 s{T0}, s{S_LID}, 2"), o(f"s_add_u32 s{T0}, s{T0}, s{S_W}"),
              o(f"s_mul_i32 s{S_HB}, s{T0}, {18*1024}"), o(f"s_add_u32 s{S_HB}, s{S_HB}, {WS_HX}")]
        P += [o("v_lshrrev_b32 v2, 3, v0"), o("v_and_b32 v3, 7, v0"),
              o("v_bfe_u32 v4, v0, 4, 1"), o("v_lshlrev_b32 v4, 2, v4"), o("v_xor_b32 v3, v3, v4"), o("v_lshlrev_b32 v3, 4, v3"),
              o(f"v_mul_u32_u24 v2, 9216, v2"), o(f"v_add_u32 v{V_DM}, v2, v3")]
        for t in range(1, 4): P += [o(f"v_add_u32 v{V_DM+t}, {t*(8*9216-1024)}, v{V_DM}")]
        P += [o("v_and_b32 v2, 31, v0"), o("v_bfe_u32 v3, v0, 1, 3"), o("v_lshrrev_b32 v4, 5, v0"), o("v_xor_b32 v3, v3, v4"),
              o("v_lshlrev_b32 v3, 4, v3"), o("v_lshlrev_b32 v2, 7, v2"), o("v_add_u32 v2, v2, v3"),
              o(f"v_add_u32 v{V_XA}, s{S_LX}, v2"),
              o(f"v_xor_b32 v{V_XA+1}, 32, v{V_XA}"), o(f"v_xor_b32 v{V_XA+2}, 64, v{V_XA}"), o(f"v_xor_b32 v{V_XA+3}, 96, v{V_XA}")]
        P += [o("v_and_b32 v2, 15, v0"),
              o("v_and_b32 v3, 3, v2"), o("v_bfe_u32 v4, v2, 2, 1"), o("v_bfe_u32 v5, v2, 3, 1"),
              o("v_lshlrev_b32 v4, 3, v4"), o("v_lshlrev_b32 v5, 2, v5"), o("v_or_b32 v3, v3, v4"), o("v_or_b32 v3, v3, v5"),
              o("v_lshrrev_b32 v4, 3, v3"), o("v_lshrrev_b32 v5, 5, v0"),
              o("v_and_b32 v6, 1, v3"), o("v_lshlrev_b32 v6, 4, v6"), o("v_mov_b32 v7, 0x3f80"), o("v_lshlrev_b32 v7, v6, v7"), o("v_mov_b32 v8, 0"),
              G([o("v_cmp_eq_u32 vcc, v4, v5"), o("v_nop"), o("v_nop"), o("v_cndmask_b32 v7, v8, v7, vcc")]),
              o("v_bfe_u32 v6, v3, 1, 2"), o("v_bfe_u32 v9, v0, 4, 1")]
        for d in range(4):
            P += [G([o(f"v_cmp_eq_u32 vcc, {d}, v6"), o("v_nop"), o("v_nop"), o(f"v_cndmask_b32 v{V_PERM+d}, v8, v7, vcc")])]
        P += [G([o("v_cmp_eq_u32 vcc, 1, v9"), o("v_nop"), o("v_nop")] + [o(f"v_cndmask_b32 v{V_PERM+4+d}, v8, v{V_PERM+d}, vcc") for d in range(4)] +
                [o(f"v_cndmask_b32 v{V_PERM+d}, v{V_PERM+d}, v8, vcc") for d in range(4)])]
        L = []
        L += [o("v_mov_b32 v4, 0"), o(f"s_lshl_b32 s{T0}, s{S_LID}, 7"), o(f"s_add_u32 s{T0}, s{T0}, {WS_FLAG}"),
              vm(f"buffer_store_dword v4, v{V_ONE0}, s[{SR_WS}:{SR_WS+3}], s{T0} offen sc1", "flinit")]
        L += self.h_srd(S_J)
        if self.opts.get("pf", 1):
            L += [o(f"s_and_b32 s{T0}, s{S_MT}, 7"), o(f"s_mul_i32 s{T0}, s{T0}, 36"), o(f"s_mul_i32 s{T1}, s{S_W}, 9"), o(f"s_add_u32 s{T0}, s{T0}, s{T1}"),
                  o(f"v_add_u32 v2, s{T0}, v0"), o(f"v_mov_b32 v4, {OOB:#x}"),
                  o(f"s_mov_b32 s{T1}, {(2**32+8)//9}"), o(f"v_mul_hi_u32 v5, v2, s{T1}"), o("v_mul_u32_u24 v6, 9, v5"), o("v_sub_u32 v6, v2, v6"),
                  o(f"v_add_u32 v5, s{T7}, v5"), o(f"v_mul_u32_u24 v5, 1152, v5"), o("v_lshlrev_b32 v6, 7, v6"), o("v_add_u32 v5, v5, v6"),
                  o(f"v_mul_u32_u24 v3, 9216, v2"),
                  o("v_cmp_gt_u32 vcc, 9, v0"), o("s_nop 1"), o("v_cndmask_b32 v3, v4, v3, vcc"), o("v_cndmask_b32 v5, v4, v5, vcc"),
                  vm(f"buffer_load_dword v{V_PF}, v5, s[{SR_HZ}:{SR_HZ+3}], 0 offen", "pf")]
            L += [o(f"s_cmp_lt_u32 s{S_J}, 2"), o("s_cbranch_scc0 L_nopf2"),
                  o(f"s_mov_b32 s{T0}, {7*32*1152}"),
                  o(f"v_add_u32 v6, s{T0}, v5"), o("v_cmp_gt_u32 vcc, 9, v0"), o("s_and_saveexec_b64 s[82:83], vcc"),
                  o(f"global_load_dword v{V_PF}, v6, s[24:25]"),
                  o("s_mov_b64 exec, s[82:83]"), raw("L_nopf2:")]
            for sig in range(self.opts.get("npf", 4)):
                mat, kh = (sig // 2) % 2, sig % 2
                assert sig < 4
                rs = SR_WG if mat == 0 else SR_WU
                L += [o(f"s_add_u32 s{T6}, s{S_A}, {kh*288*9216}"),
                      vm(f"buffer_load_dword v{V_PF}, v3, s[{rs}:{rs+3}], s{T6} offen", "pf")]
        if self.opts.get("tlb", 0):
            st = self.opts.get("tlb", 0)
            n = (48 << 20) >> st
            L += [o(f"v_lshlrev_b32 v2, {st}, v0"), o(f"v_mov_b32 v4, {OOB:#x}")]
            for k in range(-(-n // 64)):
                L += [o(f"s_mov_b32 s{T0}, {k*64 << st}"), vm(f"buffer_load_dword v{V_PF}, v2, s[{SR_WS}:{SR_WS+3}], s{T0} offen", "pf")]
            L += [o("v_lshlrev_b32 v2, 16, v0"), vm(f"buffer_load_dword v{V_PF}, v2, s[{SR_OUT}:{SR_OUT+3}], 0 offen", "pf")]
        if self.opts.get('bearly'):
            L += [o(f"s_lshl_b32 s{S_PF}, s{S_LID}, 2"), o(f"s_add_u32 s{S_PF}, s{S_PF}, s{S_W}"), o(f"s_mul_i32 s{S_PF}, s{S_PF}, 41"),
                   o(f"v_add_u32 v2, s{S_PF}, v0"), o("v_lshlrev_b32 v2, 7, v2"), o("v_cmp_gt_u32 vcc, 41, v0"), o("s_nop 1"),
                   o(f"v_cndmask_b32 v2, v{V_ONE0}, v2, vcc"),
                   vm(f"buffer_load_dword v{V_PF}, v2, s[{SR_WG}:{SR_WG+3}], 0 offen", "pf"),
                   vm(f"buffer_load_dword v{V_PF}, v2, s[{SR_WU}:{SR_WU+3}], 0 offen", "pf")]
        post = L
        for n, i in enumerate(P):
            if not isinstance(i, G) and i.t.startswith("v_cmp_eq_u32 vcc, 0, v2"):
                P[n:n+4] = [G(P[n:n+4])]
                break
        out = HEAD
        flatx = []
        for kap in range(9):
            xl = self.x_line(kap)
            flatx += [xl[3*r:3*r+3] for r in range(4)]
        npre = len(P); pi = 0
        first = self.opts.get("xfree", 10)
        for n, g in enumerate(flatx):
            out += g
            if n >= first:
                take = -(-(npre - pi) // (36 - n))
                for it in P[pi:pi + take]: out += (list(it) if isinstance(it, G) else [it])
                pi += take
        out += self.stamp("xiss")
        L = out + post
        return L

    def tr_bases(self):
        L = []
        L += [o("v_lshrrev_b32 v16, 5, v0"), o("v_lshlrev_b32 v16, 10, v16"),
              o("v_bfe_u32 v17, v0, 2, 2"), o("v_lshlrev_b32 v17, 7, v17"), o("v_add_u32 v16, v16, v17"),
              o("v_bfe_u32 v17, v0, 3, 1"), o("v_lshlrev_b32 v17, 6, v17"), o("v_add_u32 v16, v16, v17"),
              o("v_bfe_u32 v17, v0, 4, 1"), o("v_lshlrev_b32 v17, 5, v17"), o("v_add_u32 v16, v16, v17"),
              o("v_and_b32 v17, 3, v0"), o("v_lshlrev_b32 v17, 3, v17"), o(f"v_add_u32 v{V_RA}, v16, v17")]
        for s in range(1, 4): L += [o(f"v_add_u32 v{V_RA+s}, {s*SLOT}, v{V_RA}")]
        for s in range(4): L += [o(f"v_xor_b32 v{V_RB+s}, 64, v{V_RA+s}")]
        return L

    def idmap(self):
        cfg = self.opts.get("cfg", 0)
        if cfg == 0:
            return [o(f"s_and_b32 s{S_J}, s2, 3"), o(f"s_lshl_b32 s{S_J}, s{S_J}, 2"),
              o(f"s_bfe_u32 s{T0}, s2, 0x20003"), o(f"s_or_b32 s{S_J}, s{S_J}, s{T0}"),
              o(f"s_bfe_u32 s{S_MT}, s2, 0x10002"), o(f"s_lshl_b32 s{S_MT}, s{S_MT}, 3"),
              o(f"s_lshr_b32 s{T0}, s2, 5"), o(f"s_or_b32 s{S_MT}, s{S_MT}, s{T0}")]
        if cfg == 1:
            return [o(f"s_and_b32 s{S_MT}, s2, 7"), o(f"s_lshl_b32 s{S_MT}, s{S_MT}, 1"), o(f"s_bfe_u32 s{T0}, s2, 0x10003"),
                    o(f"s_or_b32 s{S_MT}, s{S_MT}, s{T0}"), o(f"s_lshr_b32 s{S_J}, s2, 4")]
        if cfg == 3:
            return [o(f"s_and_b32 s{S_J}, s2, 7"), o(f"s_lshl_b32 s{S_J}, s{S_J}, 1"), o(f"s_bfe_u32 s{T0}, s2, 0x10003"),
                    o(f"s_or_b32 s{S_J}, s{S_J}, s{T0}"), o(f"s_lshr_b32 s{S_MT}, s2, 4")]
        if cfg == 2:
            return [o(f"s_and_b32 s{S_J}, s2, 1"), o(f"s_lshl_b32 s{S_J}, s{S_J}, 3"),
              o(f"s_bfe_u32 s{T0}, s2, 0x30003"), o(f"s_or_b32 s{S_J}, s{S_J}, s{T0}"),
              o(f"s_bfe_u32 s{S_MT}, s2, 0x20001"), o(f"s_lshl_b32 s{S_MT}, s{S_MT}, 2"),
              o(f"s_lshr_b32 s{T0}, s2, 6"), o(f"s_or_b32 s{S_MT}, s{S_MT}, s{T0}")]

    def h_srd(self, zreg):
        return [o(f"s_cmp_lt_u32 s{zreg}, 9"),
                o(f"s_cselect_b32 s{SR_HZ}, s22, s24"), o(f"s_cselect_b32 s{SR_HZ+1}, s23, s25"), o(f"s_cselect_b32 s{T7}, 0, 9"),
                o(f"s_and_b32 s{SR_HZ+1}, s{SR_HZ+1}, 0xffff"), o(f"s_mov_b32 s{SR_HZ+2}, {D*D*2}"), o(f"s_mov_b32 s{SR_HZ+3}, 0x00020000"),
                o(f"s_sub_u32 s{T7}, s{zreg}, s{T7}"), o(f"s_lshl_b32 s{T7}, s{T7}, 5")]

    def h_dma(self, zreg, slot, tag):
        L = self.h_srd(zreg)
        L += [o(f"s_lshl_b32 s{T1}, s{S_W}, 3"), o(f"s_add_u32 s{T0}, s{T7}, s{T1}"),
             o("v_lshrrev_b32 v240, 3, v0"), o("v_and_b32 v241, 7, v0"), o("v_lshrrev_b32 v242, 1, v240"), o("v_xor_b32 v241, v241, v242"),
             o(f"s_and_b32 s{T1}, s{S_W}, 1"), o(f"s_lshl_b32 s{T1}, s{T1}, 2"), o(f"v_xor_b32 v241, s{T1}, v241"),
             o("v_lshlrev_b32 v241, 4, v241"),
             o(f"v_add_u32 v240, s{T0}, v240"), o(f"s_movk_i32 s{T1}, 1152"), o(f"v_mad_u32_u24 v240, v240, s{T1}, v241"),
             o(f"s_lshl_b32 s{T1}, s{S_W}, 10"), o(f"s_add_u32 s{T1}, s{T1}, {slot*SLOT}")]
        for kap in range(9):
            L += [o(f"s_add_u32 m0, s{T1}, {4*kap*1024 - 128*kap}"), o("s_nop 0"),
                  vm(f"buffer_load_dwordx4 v240, s[{SR_HZ}:{SR_HZ+3}], 0 offen offset:{128*kap} lds", tag)]
        return L

    def h_special(self, zreg, slot, sfx):
        return [o(f"s_cmp_eq_u32 s{zreg}, 9"), o(f"s_cbranch_scc0 L_h_nosp{sfx}"), o(f"s_cmp_eq_u32 s{S_W}, 0"), o(f"s_cbranch_scc0 L_h_nosp{sfx}"),
                o("v_mov_b32 v16, 0xbf803f80"), o("v_mov_b32 v17, v16"), o("v_mov_b32 v18, v16"), o("v_mov_b32 v19, v16"),
                o("v_lshrrev_b32 v240, 3, v0"), o("v_lshlrev_b32 v240, 12, v240"), o("v_and_b32 v241, 7, v0"), o("v_lshlrev_b32 v241, 4, v241"),
                o("v_add_u32 v240, v240, v241"), o(f"v_add_u32 v240, {slot*SLOT}, v240"), o(f"v_add_u32 v241, {slot*SLOT}, v241"),
                o("ds_write_b128 v240, v[16:19]"), o("ds_write_b128 v241, v[16:19] offset:32768"),
                o("s_waitcnt lgkmcnt(0)"), raw(f"L_h_nosp{sfx}:")]

    def x_line(self, kap):
        L = []
        for rho in range(4):
            L += [o(f"s_add_u32 m0, s{S_LX}, {(4*kap+rho)*1024 - 128*kap}"), o("s_nop 0"),
                  vm(f"buffer_load_dwordx4 v{240+rho}, s[{SR_X}:{SR_X+3}], 0 offen offset:{128*kap} lds", ("x", kap))]
        return L
    def x_dma_variants(self):
        L = []
        for kap in range(self.opts.get("xpre", 3)): L += self.x_line(kap)
        return L
    def x_dma_variants_old(self):
        if not self.opts.get("rot", 0):
            L = []
            for kap in range(9):
                for rho in range(4):
                    L += [o(f"s_add_u32 m0, s{S_LX}, {(4*kap+rho)*1024 - 128*kap}"), o("s_nop 0"),
                          vm(f"buffer_load_dwordx4 v{240+rho}, s[{SR_X}:{SR_X+3}], 0 offen offset:{128*kap} lds", ("x", kap))]
            return L
        L = [o(f"s_and_b32 s{T0}, s{S_J}, 3")]
        for v in range(1, 4): L += [o(f"s_cmp_eq_u32 s{T0}, {v}"), o(f"s_cbranch_scc1 L_xd{v}")]
        for v in range(4):
            if v: L += [raw(f"L_xd{v}:")]
            for pos in range(9):
                kap = (self.K0[v] + pos) % 9
                for rho in range(4):
                    t = f"buffer_load_dwordx4 v{240+rho}, s[{SR_X}:{SR_X+3}], 0 offen offset:{128*kap} lds"
                    L += [o(f"s_add_u32 m0, s{S_LX}, {(4*kap+rho)*1024 - 128*kap}"), o("s_nop 0"),
                          (vm(t, ("x", pos)) if v == 3 else o(t))]
            if v < 3: L += [o("s_branch L_xdj")]
        L += [raw("L_xdj:")]
        return L
    K0 = [0, 2, 4, 7]

    def ln_stats(self):
        L = []
        SA = 16
        for i in range(8): L += [o(f"v_mov_b32 v{SA+i}, 0")]
        L += [o(f"s_mov_b32 s{T5}, 0x3f803f80")]
        def reads(kap):
            return [wvm(("x", kap))] + [ds(f"ds_read_b128 v[{RX+4*ks}:{RX+4*ks+3}], v{V_XA+(ks&3)} offset:{(ks//4)*4096}", ("xr", ks)) for ks in range(4*kap, 4*kap+4)]
        L += reads(0)
        for kap in range(9):
            if kap + 1 < 9: L += reads(kap + 1)
            L += self.stats_line(kap)
        return L
    def stats_line(self, kap):
        L = []
        SA = 16
        for ks in range(4*kap, 4*kap + 4):
            L += [wlg(("xr", ks))]
            for i in range(4):
                r = RX + 4*ks + i
                L += [o(f"v_dot2_f32_bf16 v{SA+i}, v{r}, s{T5}, v{SA+i}"),
                      o(f"v_dot2_f32_bf16 v{SA+4+i}, v{r}, v{r}, v{SA+4+i}")]
        return L

    def ln_stats_v(self, v, tracked, order):
        L = []
        SA = 16
        for i in range(8): L += [o(f"v_mov_b32 v{SA+i}, 0")]
        L += [o(f"s_mov_b32 s{T5}, 0x3f803f80")]
        def reads(pos):
            kap = order[pos]
            w = [wvmf(("x", pos))]
            return w + [o(f"ds_read_b128 v[{RX+4*ks}:{RX+4*ks+3}], v{V_XA+(ks&3)} offset:{(ks//4)*4096}") for ks in range(4*kap, 4*kap+4)]
        L += reads(0)
        L += self.stamp("x0")
        for pos in range(9):
            if pos == 4: L += self.stamp("x4")
            if pos + 1 < 9: L += reads(pos + 1)
            kap = order[pos]
            for n, ks in enumerate(range(4*kap, 4*kap + 4)):
                left = (3 - n) + (4 if pos + 1 < 9 else 0)
                L += [o(f"s_waitcnt lgkmcnt({left})")]
                for i in range(4):
                    r = RX + 4*ks + i
                    L += [o(f"v_dot2_f32_bf16 v{SA+i}, v{r}, s{T5}, v{SA+i}"),
                          o(f"v_dot2_f32_bf16 v{SA+4+i}, v{r}, v{r}, v{SA+4+i}")]
        return L

    def ln_stats_old(self):
        L = []
        SA = 16
        for i in range(8): L += [o(f"v_mov_b32 v{SA+i}, 0")]
        L += [o(f"s_mov_b32 s{T5}, 0x3f803f80")]
        def reads(kap):
            return [wvm(("x", kap))] + [ds(f"ds_read_b128 v[{RX+4*ks}:{RX+4*ks+3}], v{V_XA+(ks&3)} offset:{(ks//4)*4096}", ("xr", ks)) for ks in range(4*kap, 4*kap+4)]
        L += reads(0)
        for kap in range(9):
            if kap + 1 < 9: L += reads(kap + 1)
            for ks in range(4*kap, 4*kap + 4):
                L += [wlg(("xr", ks))]
                for i in range(4):
                    r = RX + 4*ks + i
                    L += [o(f"v_dot2_f32_bf16 v{SA+i}, v{r}, s{T5}, v{SA+i}"),
                          o(f"v_dot2_f32_bf16 v{SA+4+i}, v{r}, v{r}, v{SA+4+i}")]
        return L

    def ln_finish(self):
        SA = 16
        L = [o("s_nop 2"),
             o(f"v_add_f32 v{SA}, v{SA}, v{SA+1}"), o(f"v_add_f32 v{SA+2}, v{SA+2}, v{SA+3}"),
             o(f"v_add_f32 v{SA+4}, v{SA+4}, v{SA+5}"), o(f"v_add_f32 v{SA+6}, v{SA+6}, v{SA+7}"),
             o(f"v_add_f32 v24, v{SA}, v{SA+2}"), o(f"v_add_f32 v26, v{SA+4}, v{SA+6}"),
             o("v_mov_b32 v25, v24"), o("v_mov_b32 v27, v26"), o("s_nop 1"),
             o("v_permlane32_swap_b32 v24, v25"), o("v_permlane32_swap_b32 v26, v27"), o("s_nop 1"),
             o("v_add_f32 v24, v24, v25"), o("v_add_f32 v26, v26, v27"),
             o(f"s_mov_b32 s{T5}, {f2u(1.0/576):#x}"),
             o(f"v_mul_f32 v24, s{T5}, v24"), o(f"v_mul_f32 v26, s{T5}, v26"),
             o("v_fma_f32 v26, -v24, v24, v26"), o("v_max_f32 v26, 0, v26"),
             o("v_cvt_pk_bf16_f32 v24, v24, v26"),
             o("v_and_b32 v26, 0xffff0000, v24"), o("v_lshlrev_b32 v24, 16, v24"),
             o(f"v_xor_b32 v{V_NEGMU}, 0x80000000, v24")]
        for i in range(1, 16): L += [o(f"v_mov_b32 v{V_NEGMU+i}, v{V_NEGMU}")]
        L += [o(f"v_add_f32 v26, {f2u(1e-5):#x}, v26"),
              o("v_cvt_pk_bf16_f32 v26, v26, v26"), o("v_lshlrev_b32 v26, 16, v26"),
              o("v_sqrt_f32 v26, v26"), o("s_nop 0"),
              o("v_cvt_pk_bf16_f32 v26, v26, v26"), o("v_lshlrev_b32 v26, 16, v26"),
              o("v_rcp_f32 v27, v26"), o(f"v_mul_f32 v{V_D2}, v26, v26"),
              o(f"v_mul_f32 v{V_C0}, {f2u(C0):#x}, v27"), o("v_mul_f32 v28, v27, v27"), o("v_mul_f32 v28, v28, v27"),
              o(f"v_mul_f32 v{V_C1}, {f2u(C1):#x}, v28"),
              o("v_and_b32 v28, 31, v0"), o("v_lshlrev_b32 v28, 2, v28"), o(f"s_lshl_b32 s{T0}, s{S_W}, 12"), o(f"s_add_u32 s{T0}, s{T0}, {SPARE}"),
              o(f"v_add_u32 v28, s{T0}, v28"), ds("ds_write_b32 v28, v27", "rtab")]
        return L

    def seg_norm_h(self):
        M = []; frags = []
        def UBf(i):
            if i == 0: return 16
            if i % 2 == 0: return RX + 8*(i - 2)
            return (32, 48, 16)[((i - 1)//2) % 3]
        def nextuser(i):
            for k in range(i + 1, 18):
                if UBf(k) == UBf(i): return k
            return None
        posU = {}; posH = {}
        def U(i):
            b = UBf(i)
            M.append(dict(op=32, acc=f"v[{b}:{b+15}]", first=True, C=f"v[{V_NEGMU}:{V_NEGMU+15}]", A=f"v[{V_PERM}:{V_PERM+3}]", B=f"v[{RX+8*i}:{RX+8*i+3}]", need=-1))
            M.append(dict(op=32, acc=f"v[{b}:{b+15}]", first=False, A=f"v[{V_PERM+4}:{V_PERM+7}]", B=f"v[{RX+8*i+4}:{RX+8*i+7}]", need=-1))
            posU[i] = len(M) - 2
        def H(ks):
            f = len(frags); a = AF + 4*(f % NAF)
            frags.append(dict(reads=[f"ds_read_b128 a[{a}:{a+3}], v{V_XA+(ks&3)} offset:{(ks//4)*4096}"], use=len(M)))
            M.append(dict(op=32, acc=f"v[{V_HACC}:{V_HACC+15}]", first=(ks == 0), A=f"a[{AX+4*ks}:{AX+4*ks+3}]", B=f"a[{a}:{a+3}]", need=f))
            posH[ks] = len(M) - 1
        LAG = 5
        for i in range(18):
            U(i)
            if i >= LAG: H(2*(i-LAG)); H(2*(i-LAG)+1)
        for i in range(18 - LAG, 18): H(2*i); H(2*i+1)
        last = -1
        for m in M:
            if m["need"] < 0: m["need"] = last
            else: last = m["need"]
        g0 = frags[0]["use"] - 6
        M[g0].setdefault("before", []).extend([wvm("wz1")] + self.h_special(S_A, 2, "a") + [o("s_waitcnt lgkmcnt(0)"), o("s_barrier")])
        def setup(sl, head):
            sl.put(2, [o('s_nop 4')]); sl.put(3, [o('s_nop 4')])
            for i in range(18):
                b = UBf(i)
                ins = []
                for q in range(8):
                    t = 2 + 2*(i % 4) + (q % 2)
                    ins += [o(f"v_cvt_pk_bf16_f32 v{t}, v{b+2*q}, v{b+2*q+1}"), o(f"v_accvgpr_write_b32 a{AX+8*i+q}, v{t}")]
                start = posU[i] + 1 + 3
                end = min(posH[2*i] - 1, start + 11)
                if nextuser(i) is not None: end = min(end, posU[nextuser(i)])
                e = sl.stream(ins, start, end, spill=0)
                assert e < posH[2*i] - 0, (i, e, posH[2*i])
        return self.paced(M, frags, setup, 6)

    def h_epilogue(self, zreg, acc, rr, tb):
        L = []
        sg, f0 = tb + 8, tb + 9
        L += [G([o(f"s_cmp_lt_u32 s{zreg}, 9"), o(f"s_cselect_b32 s{S_ST0}, 1.0, -1.0")]), o(f"v_mov_b32 v{sg}, s{S_ST0}"),
              G([o(f"s_cmp_eq_u32 s{zreg}, 9"), o(f"s_cselect_b32 s{S_ST0}, 0, 99")]),
              G([o(f"v_and_b32 v{f0}, 31, v0"), o(f"v_cmp_eq_u32 vcc, s{S_ST0}, v{f0}"), o(f"v_mov_b32 v{tb+10}, 1.0"), o("v_nop"),
                 o(f"v_cndmask_b32 v{sg}, v{sg}, v{tb+10}, vcc")]),
              G([o(f"s_or_b32 s{S_ST0}, s{S_MT}, s{S_W}"), o(f"s_cmp_eq_u32 s{S_ST0}, 0"), o(f"s_cselect_b32 s{S_ST0}, 32, 0")]),
              G([o(f"v_cmp_gt_u32 vcc, s{S_ST0}, v0"), o(f"v_mov_b32 v{tb+10}, 0"), o("v_nop"),
                 o(f"v_cndmask_b32 v{f0}, v{sg}, v{tb+10}, vcc")])]
        L += [o(f"v_mul_f32 v{tb+11}, v{acc+8}, v{rr+8}")]
        for r in range(8):
            L += [o(f"v_mul_f32 v{rr+8+r}, v{rr+8+r}, v{f0 if r == 0 else sg}"),
                  o(f"v_mul_f32 v{tb+r}, v{acc+r}, v{rr+r}"),
                  o(f"v_fma_f32 v{tb+r}, v{acc+8+r}, v{rr+8+r}, v{tb+r}")]
        for i in range(4):
            L += [o(f"v_cvt_pk_bf16_f32 v{tb+12+i}, v{tb+2*i}, v{tb+2*i+1}")]
        L += [G([o("v_nop"), o("v_nop"), o(f"v_permlane32_swap_b32 v{tb+12}, v{tb+14}"), o(f"v_permlane32_swap_b32 v{tb+13}, v{tb+15}")]),
              G([o(f"s_mul_i32 s{S_ST0}, s{zreg}, {ZF_STRIDE}"), o(f"s_lshl_b32 s{S_ST1}, s{S_MT}, 2"), o(f"s_add_u32 s{S_ST1}, s{S_ST1}, s{S_W}")]),
              G([o(f"s_lshl_b32 s{S_ST1}, s{S_ST1}, 10"), o(f"s_add_u32 s{S_ST1}, s{S_ST1}, s{S_ST0}"), o(f"s_add_u32 s{S_ST1}, s{S_ST1}, {WS_ZF}")]),
              vm(f"buffer_store_dwordx4 v[{tb+12}:{tb+15}], v{V_L16}, s[{SR_WS}:{SR_WS+3}], s{S_ST1} offen sc1", "zst"),
              o(f"v_mov_b32 v{tb+1}, 0"), o(f"v_mov_b32 v{tb+2}, 0"), o(f"v_mov_b32 v{tb+3}, 0"),
              o(f"v_cvt_pk_bf16_f32 v{tb}, v{tb+11}, v{tb+1}"),
              G([o("v_cmp_gt_u32 vcc, 32, v0"), o("v_nop"), o("v_nop"), o(f"v_cndmask_b32 v{tb}, v{tb+1}, v{tb}, vcc")]),
              G([o(f"s_or_b32 s{S_ST1}, s{S_MT}, s{S_W}"), o(f"s_cmp_le_u32 s{zreg}, 9"), o(f"s_cselect_b32 s{S_C}, 0, 1")]),
              G([o(f"s_or_b32 s{S_ST1}, s{S_ST1}, s{S_C}"), o(f"s_cmp_eq_u32 s{S_ST1}, 0"), o(f"s_cselect_b32 s{S_C}, 0, {OOB:#x}")]),
              o(f"v_add_u32 v{tb+4}, s{S_C}, v{V_L16}"),
              o(f"s_add_u32 s{S_ST0}, s{S_ST0}, {WS_ZF + 64*1024}"),
              vm(f"buffer_store_dwordx4 v[{tb}:{tb+3}], v{tb+4}, s[{SR_WS}:{SR_WS+3}], s{S_ST0} offen sc1", "zst"),
              G([o(f"v_mov_b32 v{tb+12}, 0"), o(f"v_mov_b32 v{tb+13}, 0"), o(f"v_mov_b32 v{tb+14}, 0"), o(f"v_mov_b32 v{tb+15}, 0")]),
              vm(f"buffer_store_dwordx4 v[{tb+12}:{tb+15}], v{tb+4}, s[{SR_WS}:{SR_WS+3}], s{S_ST0} offen offset:1024 sc1", "zst")]
        return L

    def rr_reads(self, rr, tmp, n=1):
        return [o(f"v_lshrrev_b32 v{tmp}, 5, v0"), o(f"v_lshlrev_b32 v{tmp}, 4, v{tmp}"), o(f"s_lshl_b32 s{S_C}, s{S_W}, 12"),
                o(f"s_add_u32 s{S_C}, s{S_C}, {SPARE}"), o(f"v_add_u32 v{tmp}, s{S_C}, v{tmp}")] + \
               [ds(f"ds_read_b128 v[{rr+4*q}:{rr+4*q+3}], v{tmp} offset:{32*q}", ("rr", n)) for q in range(4)] + [wlg(("rr", n))]

    def h2_block(self):
        L = [o(f"s_cmp_lt_u32 s{S_J}, 2"), o("s_cbranch_scc0 L_noz2b")]
        B = [o(f"v_add_u32 v{64+i}, {SLOT}, v{V_XA+i}") for i in range(4)]
        B += [o(f"s_waitcnt vmcnt({18 if self.opts.get('bearly') else 20})"), o("s_barrier")]
        def rd(ks):
            a_ = AF + 4*(ks % NAF)
            return o(f"ds_read_b128 a[{a_}:{a_+3}], v{64+(ks&3)} offset:{(ks//4)*4096}")
        for ks in range(6): B += [rd(ks)]
        for k in range(36):
            a_ = AF + 4*(k % NAF)
            n_out = min(5, 35 - k)
            B += [o(f"s_waitcnt lgkmcnt({n_out})"), mf32("v[128:143]", f"a[{AX+4*k}:{AX+4*k+3}]", f"a[{a_}:{a_+3}]", "0" if k == 0 else "v[128:143]")]
            if k + 6 < 36: B += [rd(k + 6)]
        B += [raw("L_noz2b:"),
              o(f"s_cmp_lt_u32 s{S_J}, 2"), o(f"s_cselect_b32 s{S_B}, s{S_B}, 0x4000")]
        return L + B

    def dma_p1(self, sig, slot, tA=226, tB=227):
        groups = []
        if sig < 16:
            u, mat, kh = sig // 4, (sig // 2) % 2, sig % 2
            rs = SR_WG if mat == 0 else SR_WU
            for grp, ts in enumerate([[0,1,2,3],[0,1,2,3],[0]]):
                g = [o(f"s_add_u32 m0, s{S_L9}, {slot*SLOT + grp*4096}"),
                     o(f"s_add_u32 s{S_D0}, s{S_UB+u}, {(kh*288 + grp*32)*9216}")]
                for t in ts:
                    groups.append(g + [vm(f"buffer_load_dwordx4 v{V_DM+t}, s[{rs}:{rs+3}], s{S_D0} offen offset:{t*1024} lds", ("st", sig))])
                    g = []
        else:
            rs = SR_WG if sig == 16 else SR_WU
            for grp, ts in enumerate([[0,1,2,3],[0,1,2,3],[0]]):
                g = []
                if sig == 16 and grp == 0:
                    groups.append([o(f"v_lshrrev_b32 v{tA}, 2, v0"), o(f"v_and_b32 v{tB}, 3, v0"), o(f"v_lshlrev_b32 v{tB}, 4, v{tB}")])
                    groups.append([o(f"v_mul_u32_u24 v{tA}, 9216, v{tA}"), o(f"v_add_u32 v{V_DM}, v{tA}, v{tB}")] +
                                  [o(f"v_add_u32 v{V_DM+t}, {t*(16*9216-1024)}, v{V_DM}") for t in range(1, 4)])
                g += [o(f"s_add_u32 m0, s{S_L9}, {slot*SLOT + grp*4096}"),
                      o(f"s_add_u32 s{S_D0}, s{S_UB+4}, {grp*64*9216}")]
                for t in ts:
                    groups.append(g + [vm(f"buffer_load_dwordx4 v{V_DM+t}, s[{rs}:{rs+3}], s{S_D0} offen offset:{t*1024} lds", ("st", sig))])
                    g = []
        return groups

    def dma_cs(self, mat, piece, slot, tag, nop=False):
        rs = SR_CS if mat == 0 else SR_SS
        groups = []
        for l in range(2):
            line = 2*piece + l
            for rho in range(4):
                groups.append([o(f"s_add_u32 m0, s{S_A}, {slot*SLOT + (4*l+rho)*1024 - 128*line}")] + ([o("s_nop 0")] if nop else []) + [
                               vm(f"buffer_load_dwordx4 v{V_SD+rho}, s[{rs}:{rs+3}], 0 offen offset:{128*line} lds", tag)])
        return groups
    def dma_cx(self, tag):
        groups = []
        for rho in range(4):
            groups.append([o(f"s_add_u32 m0, s{S_B}, {SPARE + rho*1024 - 512}"),
                           vm(f"buffer_load_dwordx4 v{V_SD+rho}, s[{SR_CS}:{SR_CS+3}], 0 offen offset:512 lds", tag)])
        return groups

    def dma_p2(self, st, slot, first128, tA, tB, tC):
        u, who = st
        groups = []
        if u < 4:
            tbl = S_N0 if who == "own" else S_N1
            if first128:
                groups.append([o(f"v_lshrrev_b32 v{tA}, 3, v0"), o(f"v_and_b32 v{tB}, 7, v0"), o(f"v_bfe_u32 v{tC}, v0, 4, 1")])
                groups.append([o(f"v_lshlrev_b32 v{tC}, 2, v{tC}"), o(f"v_xor_b32 v{tB}, v{tB}, v{tC}"), o(f"v_lshlrev_b32 v{tB}, 4, v{tB}")])
                groups.append([o(f"s_mul_i32 s{S_WD}, s{S_W}, {8*1152}")])
                groups.append([o(f"v_mul_u32_u24 v{tA}, 1152, v{tA}"), o(f"v_add_u32 v{V_DM}, v{tA}, v{tB}"), o(f"v_add_u32 v{V_DM}, s{S_WD}, v{V_DM}")])
                groups.append([o(f"s_lshl_b32 s{S_WD}, s{S_W}, 10")])
            for ip in range(9):
                groups.append([o(f"s_add_u32 m0, s{S_WD}, {slot*SLOT + ip*4096}"),
                               o(f"s_add_u32 s{S_D0}, s{tbl+ip}, s{S_CU+u}"),
                               vm(f"buffer_load_dwordx4 v{V_DM}, s[{SR_WD}:{SR_WD+3}], s{S_D0} offen lds", ("s2", st))])
        else:
            groups.append([o(f"v_lshrrev_b32 v{tA}, 2, v0"), o(f"v_and_b32 v{tB}, 3, v0"), o(f"v_lshlrev_b32 v{tB}, 4, v{tB}")])
            groups.append([o(f"v_mul_u32_u24 v{tA}, 1152, v{tA}"), o(f"v_add_u32 v{V_DM+1}, v{tA}, v{tB}")])
            for ip in range(9):
                ca, cb = 2*ip, 2*ip + 1
                ra = (S_N0 + ca) if ca < 9 else (S_N1 + ca - 9)
                rb = (S_N0 + cb) if cb < 9 else (S_N1 + cb - 9)
                groups.append([o(f"s_cmp_lt_u32 s{S_W}, 2"), o(f"s_cselect_b32 s{S_D0}, s{ra}, s{rb}"),
                               o(f"s_add_u32 s{S_D0}, s{S_D0}, s{S_CU+4}"), o(f"s_add_u32 s{S_D0}, s{S_D0}, s{S_C}"),
                               o(f"s_add_u32 m0, s{S_WD}, {slot*SLOT + ip*4096}")])
                groups.append([vm(f"buffer_load_dwordx4 v{V_DM+1}, s[{SR_WD}:{SR_WD+3}], s{S_D0} offen lds", ("s2", st))])
        return groups

    def geglu(self, c, toff=0):
        if c < 8: g, u = GA[(c//2) % 2][c % 2], UA[(c//2) % 2][c % 2]
        else: g, u = GA[0][0], UA[0][0]
        L = []
        for p in range(8):
            r0, r1 = 2*p, 2*p + 1
            b = TMP + 4*(p % 2) + toff
            xa, xb, ya, yb = b, b+1, b+2, b+3
            L += [o(f"v_mul_f32 v{xa}, v{g+r0}, v{g+r0}"), o(f"v_mul_f32 v{xb}, v{g+r1}, v{g+r1}"),
                  o(f"v_fma_f32 v{xa}, v{xa}, v{V_C1}, v{V_C0}"), o(f"v_fma_f32 v{xb}, v{xb}, v{V_C1}, v{V_C0}"),
                  o(f"v_mul_f32 v{xa}, v{g+r0}, v{xa}"), o(f"v_mul_f32 v{xb}, v{g+r1}, v{xb}"),
                  o(f"v_exp_f32 v{xa}, v{xa}"), o(f"v_exp_f32 v{xb}, v{xb}"),
                  o(f"v_mul_f32 v{ya}, v{g+r0}, v{u+r0}"), o(f"v_mul_f32 v{yb}, v{g+r1}, v{u+r1}"),
                  o(f"v_fma_f32 v{xa}, v{xa}, v{V_D2}, v{V_D2}"), o(f"v_fma_f32 v{xb}, v{xb}, v{V_D2}, v{V_D2}"),
                  o(f"v_rcp_f32 v{xa}, v{xa}"), o(f"v_rcp_f32 v{xb}, v{xb}"),
                  o(f"v_mul_f32 v{ya}, v{ya}, v{xa}"), o(f"v_mul_f32 v{yb}, v{yb}, v{xb}"),
                  o(f"v_cvt_pk_bf16_f32 v{HF + 8*c + p}, v{ya}, v{yb}")]
        return L
    def geglu_sig(self, c, toff=0):
        g = GA[(c//2) % 2][c % 2] if c < 8 else GA[0][0]
        L = []
        for p in range(8):
            r0, r1 = 2*p, 2*p + 1
            b = TMP + 2*(p % 2) + toff
            xa, xb = b, b + 1
            L += [o(f"v_mul_f32 v{xa}, v{g+r0}, v{g+r0}"), o(f"v_mul_f32 v{xb}, v{g+r1}, v{g+r1}"),
                  o(f"v_fma_f32 v{xa}, v{xa}, v{V_C1}, v{V_C0}"), o(f"v_fma_f32 v{xb}, v{xb}, v{V_C1}, v{V_C0}"),
                  o(f"v_mul_f32 v{xa}, v{g+r0}, v{xa}"), o(f"v_mul_f32 v{xb}, v{g+r1}, v{xb}"),
                  o(f"v_exp_f32 v{xa}, v{xa}"), o(f"v_exp_f32 v{xb}, v{xb}"), o("v_nop") if False else None,
                  o(f"v_fma_f32 v{xa}, v{xa}, v{V_D2}, v{V_D2}"), o(f"v_fma_f32 v{xb}, v{xb}, v{V_D2}, v{V_D2}"),
                  o(f"v_rcp_f32 v{xa}, v{xa}"), o(f"v_rcp_f32 v{xb}, v{xb}"),
                  o(f"v_mul_f32 v{g+r0}, v{g+r0}, v{xa}"), o(f"v_mul_f32 v{g+r1}, v{g+r1}, v{xb}")]
        return [i for i in L if i is not None]
    def geglu_fin(self, c, toff=0):
        if c < 8: g, u = GA[(c//2) % 2][c % 2], UA[(c//2) % 2][c % 2]
        else: g, u = GA[0][0], UA[0][0]
        L = []
        for p in range(8):
            r0, r1 = 2*p, 2*p + 1
            L += [o(f"v_mul_f32 v{g+r0}, v{g+r0}, v{u+r0}"), o(f"v_mul_f32 v{g+r1}, v{g+r1}, v{u+r1}"),
                  o(f"v_cvt_pk_bf16_f32 v{HF + 8*c + p}, v{g+r0}, v{g+r1}")]
        return L
    def hstore(self, c):
        st = S_ST0 + (c % 2)
        return [o(f"s_add_u32 s{st}, s{S_HB}, {2*c*1024}")] + self.dstore(
                [f"buffer_store_dwordx4 v[{HF+8*c}:{HF+8*c+3}], v{V_L16}, s[{SR_WS}:{SR_WS+3}], s{st} offen",
                 f"buffer_store_dwordx4 v[{HF+8*c+4}:{HF+8*c+7}], v{V_L16}, s[{SR_WS}:{SR_WS+3}], s{st} offen offset:1024"], "hst", True)

    def s_setup(self):
        a, b, c, d = V_SX, V_YC[0], V_YC[1], V_YC[2]
        L = []
        L += [G([o(f"s_lshr_b32 s{S_TAU}, s{S_J}, 3"), o(f"s_lshl_b32 s{S_A}, s{S_MT}, 1"), o(f"s_add_u32 s{S_TAU}, s{S_TAU}, s{S_A}")]),
              G([o(f"s_lshl_b32 s{S_A}, s{S_W}, 13"), o(f"s_lshl_b32 s{S_B}, s{S_W}, 12"),
                 o(f"s_lshl_b32 s{S_ZB}, s{S_W}, 14")]), o(f"s_add_u32 s{S_ZB}, s{S_ZB}, {WS_ZF}")]
        L += [o(f"v_lshrrev_b32 v{a}, 3, v0"), o(f"v_and_b32 v{b}, 7, v0"), o(f"v_lshrrev_b32 v{c}, 1, v{a}"), o(f"v_xor_b32 v{b}, v{b}, v{c}"),
              o(f"v_lshlrev_b32 v{b}, 4, v{b}"), o(f"v_xor_b32 v{c}, 64, v{b}"),
              o(f"s_lshl_b32 s{S_C}, s{S_TAU}, 5"), o(f"v_add_u32 v{a}, s{S_C}, v{a}"), o(f"v_lshlrev_b32 v{a}, 12, v{a}"),
              o(f"s_lshl_b32 s{S_C}, s{S_W}, 9"), o(f"v_add_u32 v{a}, s{S_C}, v{a}"),
              o(f"v_add_u32 v{V_SD}, v{a}, v{b}"), o(f"v_add_u32 v{V_SD+1}, v{a}, v{c}"), o(f"v_add_u32 v{V_SD+1}, 32768, v{V_SD+1}"),
              o(f"v_add_u32 v{V_SD+2}, 65536, v{V_SD}"), o(f"v_add_u32 v{V_SD+3}, 65536, v{V_SD+1}")]
        return L
    def s_setup2(self):
        a, b, c, d = V_SX, V_YC[0], V_YC[1], V_YC[2]
        L = []
        L += [o(f"v_and_b32 v{a}, 15, v0"), o(f"v_lshrrev_b32 v{b}, 4, v0"), o(f"v_bfe_u32 v{c}, v0, 1, 3"), o(f"v_xor_b32 v{c}, v{c}, v{b}"),
              o(f"v_lshlrev_b32 v{c}, 4, v{c}"), o(f"v_lshlrev_b32 v{a}, 7, v{a}"), o(f"v_add_u32 v{a}, v{a}, v{c}"),
              o(f"v_add_u32 v{V_SA}, s{S_A}, v{a}"), o(f"v_xor_b32 v{V_SA+1}, 64, v{V_SA}"),
              o(f"v_add_u32 v{V_SA+2}, {2*SLOT}, v{V_SA}"), o(f"v_add_u32 v{V_SA+3}, {2*SLOT}, v{V_SA+1}"),
              o(f"v_add_u32 v{a}, s{S_B}, v{a}"), o(f"v_add_u32 v{V_SX}, {SPARE}, v{a}")]
        return L
    def s_setup3(self, t0, t1, t2, t3):
        L = []
        L += [o(f"v_and_b32 v{t0}, 15, v0"), o(f"v_lshrrev_b32 v{t1}, 4, v0"),
              o(f"v_and_b32 v{t2}, 1, v{t1}"), o(f"v_lshlrev_b32 v{t2}, 9, v{t2}"),
              o(f"v_lshrrev_b32 v{t1}, 1, v{t1}"), o(f"v_lshlrev_b32 v{t1}, 10, v{t1}"), o(f"v_add_u32 v{t2}, v{t2}, v{t1}"),
              G([o(f"s_and_b32 s{S_C}, s{S_J}, 7"), o(f"s_mul_i32 s{S_C}, s{S_C}, 36")]),
              o(f"v_add_u32 v{t0}, s{S_C}, v{t0}")]
        for ss in range(3):
            pa, qa, yc = V_ZP + ss, V_ZQ + ss, V_YC[ss]
            L += [o(f"v_lshrrev_b32 v{t1}, 5, v{t0}"), o(f"v_mul_u32_u24 v{t1}, {ZF_STRIDE}, v{t1}"),
                  o(f"v_and_b32 v{t3}, 31, v{t0}"), o(f"v_lshlrev_b32 v{t3}, 4, v{t3}"), o(f"v_add_u32 v{t1}, v{t1}, v{t3}"),
                  o(f"v_add_u32 v{t1}, v{t1}, v{t2}"),
                  o(f"v_subrev_u32 v{t3}, s{S_C}, v{t0}"),
                  o(f"v_lshlrev_b32 v{yc}, 2, v{t0}"), o(f"v_mov_b32 v{qa}, {OOB:#x}"), o(f"v_mov_b32 v{pa}, {OOB:#x}"),
                  G([o(f"v_cmp_gt_u32 vcc, 36, v{t3}"), o("v_nop"), o("v_nop"), o(f"v_cndmask_b32 v{pa}, v{pa}, v{t1}, vcc")]),
                  o(f"v_add_u32 v{t3}, {9*ZF_STRIDE}, v{t1}"),
                  G([o(f"v_cndmask_b32 v{qa}, v{qa}, v{t3}, vcc")]),
                  G([o(f"v_cmp_eq_u32 vcc, 0x120, v{t0}"), o("v_nop"), o("v_nop"), o(f"v_cndmask_b32 v{pa}, v{pa}, v{t1}, vcc")]),
                  G([o(f"v_mov_b32 v{t3}, {OOB:#x}"), o(f"v_cmp_eq_u32 vcc, 0, v{t0}"), o("v_nop"), o("v_nop"), o(f"v_cndmask_b32 v{qa}, v{qa}, v{t3}, vcc")]),
                  G([o(f"v_cmp_eq_u32 vcc, v{t3}, v{pa}"), o("v_nop"), o("v_nop"), o(f"v_cndmask_b32 v{yc}, v{yc}, v{t3}, vcc")]),
                  o(f"v_add_u32 v{t0}, 16, v{t0}")]
        return L

    def phase2_setup(self):
        L = []
        L += [G([o(f"s_xor_b32 s{T6}, s{S_J}, 1"), o(f"s_and_b32 s{T2}, s{T6}, 1"), o(f"s_mul_i32 s{T0}, s{T6}, 288")]),
              G([o(f"s_mul_i32 s{T1}, s{T2}, 224"), o(f"s_add_u32 s{T1}, s{T0}, s{T1}")]),
              G([o(f"s_cmp_eq_u32 s{T2}, 0"), o(f"s_cselect_b32 s{T3}, 64, -64"), o(f"s_cselect_b32 s{T4}, 256, 0")]),
              o(f"s_add_u32 s{T4}, s{T4}, s{T0}")]
        for u in range(4):
            L += [G([o(f"s_mul_i32 s{T5}, s{T3}, {u}"), o(f"s_add_u32 s{T5}, s{T5}, s{T1}")]),
                  G([o(f"s_mul_i32 s{S_N1+2*u}, s{T5}, 1152"), o(f"s_add_u32 s{S_N1+2*u+1}, s{S_N1+2*u}, {32*1152}")])]
        L += [o(f"s_mul_i32 s{S_N1+8}, s{T4}, 1152")]
        L += [G([o(f"s_and_b32 s{T2}, s{S_J}, 1"), o(f"s_mul_i32 s{T0}, s{T2}, 640"), o(f"s_lshr_b32 s{T1}, s{S_J}, 2")])]
        for k in range(4):
            L += [G([o(f"s_add_u32 s{T3}, s{T1}, {(k+1) % 4 if k < 3 else 0}"), o(f"s_and_b32 s{T3}, s{T3}, 3"), o(f"s_lshl_b32 s{T3}, s{T3}, 7")]),
                  o(f"s_add_u32 s{S_CU+k}, s{T0}, s{T3}")]
        L += [G([o(f"s_cmp_eq_u32 s{T2}, 0"), o(f"s_cselect_b32 s{S_CU+4}, 0, 64")]), o(f"s_add_u32 s{S_CU+4}, s{S_CU+4}, 512")]
        return L

    def p2q_setup(self):
        L = [G([o(f"s_and_b32 s{T2}, s{S_J}, 1"), o(f"s_mul_i32 s{T3}, s{T2}, 10"), o(f"s_lshr_b32 s{T4}, s{S_J}, 2")])]
        for k, dst in enumerate(S_QU):
            L += [G([o(f"s_add_u32 s{T5}, s{T4}, {k+1}"), o(f"s_and_b32 s{T5}, s{T5}, 3"), o(f"s_lshl_b32 s{T5}, s{T5}, 1")]),
                  G([o(f"s_add_u32 s{T5}, s{T5}, s{T3}"), o(f"s_lshl_b32 s{T5}, s{T5}, 11"), o(f"s_add_u32 s{dst}, s{T5}, s{S_PB}")])]
        L += [G([o(f"s_lshl_b32 s{T5}, s{T4}, 1"), o(f"s_add_u32 s{T5}, s{T5}, s{T3}"), o(f"s_bfe_u32 s{T4}, s{S_J}, 0x10001")]),
              G([o(f"s_add_u32 s{S_TO}, s{T5}, s{T4}"), o(f"s_xor_b32 s{T4}, s{T4}, 1"), o(f"s_add_u32 s{T5}, s{T5}, s{T4}")]),
              G([o(f"s_lshl_b32 s{T5}, s{T5}, 11"), o(f"s_add_u32 s{S_QN}, s{T5}, s{S_PB}")]),
              G([o(f"s_add_u32 s{T5}, s{T2}, 8"), o(f"s_lshl_b32 s{T5}, s{T5}, 11"), o(f"s_add_u32 s{S_Q8}, s{T5}, s{S_PB}")])]
        return L

    def main(self):
        DIST = self.opts.get("dist", 7)
        M = []; frags = []
        fu = {}; lu = {}
        def addfrag(reads_fn, use, dist=None, stage=None):
            f = len(frags); a = AF + 4*(f % NAF)
            fr = dict(reads=reads_fn(a), use=use)
            if dist: fr["dist"] = dist
            frags.append(fr)
            if stage is not None and stage not in fu:
                fu[stage] = use; fr["stage_first"] = stage
            return f, a
        def tr(base, off, off2): return lambda a: [f"ds_read_b64_tr_b16 a[{a}:{a+1}], v{base} offset:{off}", f"ds_read_b64_tr_b16 a[{a+2}:{a+3}], v{base} offset:{off+off2}"]
        for u in range(4):
            for mat in range(2):
                for kh in range(2):
                    sig = 4*u + 2*mat + kh
                    for half in range(2):
                        acc = (GA if mat == 0 else UA)[u % 2][half]
                        for kk in range(18):
                            ks = kh*18 + kk; g = len(M)
                            f, a = addfrag(tr((V_RA if half == 0 else V_RB) + sig % 4, kk*2048, 512), g, stage=("st", sig))
                            M.append(dict(op=32, acc=f"v[{acc}:{acc+15}]", first=(ks == 0), A=f"a[{a}:{a+3}]", B=f"a[{AX+4*ks}:{AX+4*ks+3}]", need=f))
                            lu[("st", sig)] = g
        for mat in range(2):
            acc = (GA if mat == 0 else UA)[0][0]
            for ks in range(36):
                g = len(M)
                f, a = addfrag(tr(V_R8 + mat, ks*1024, 256), g, stage=("st", 16+mat))
                M.append(dict(op=32, acc=f"v[{acc}:{acc+15}]", first=(ks == 0), A=f"a[{a}:{a+3}]", B=f"a[{AX+4*ks}:{AX+4*ks+3}]", need=f))
                lu[("st", 16+mat)] = g
        S0 = len(M)
        def accP(tt, ss):
            i = tt*3 + ss
            return 48 + 4*i if i < 4 else 112 + 4*(i - 4)
        def accQ(tt, ss):
            i = tt*3 + ss
            return 64 + 4*i if i < 4 else 128 + 4*(i - 4)
        def zP(ss, k):
            i = k*3 + ss
            if i < 20: return f"a[{AZ+4*i}:{AZ+4*i+3}]"
            i -= 20
            r = 32 + 4*i if i < 4 else 96 + 4*(i - 4)
            return f"v[{r}:{r+3}]"
        def zQ(ss, k):
            i = k*3 + ss
            return f"a[{4*i}:{4*i+3}]"
        self.zP, self.zQ, self.accP, self.accQ = zP, zQ, accP, accQ
        for k in range(9):
            for tt in range(2):
                g = len(M)
                if k < 8:
                    line = k >> 1; piece = line >> 1; l = line & 1
                    base = V_SA + 2 + (k & 1); off = piece*SLOT + l*4096 + tt*2048
                    st = ("C", piece)
                else:
                    base = V_SX; off = tt*2048; st = ("CX", 0)
                f, a = addfrag(lambda a, base=base, off=off: [f"ds_read_b128 a[{a}:{a+3}], v{base} offset:{off}"], g, dist=8, stage=st)
                for ss in range(3):
                    ac = accP(tt, ss)
                    M.append(dict(op=16, acc=f"v[{ac}:{ac+3}]", first=(k == 0), A=f"a[{a}:{a+3}]", B=zP(ss, k), need=f))
                    lu[st] = len(M) - 1
        SP_END = len(M)
        for k in range(8):
            for tt in range(2):
                g = len(M)
                line = k >> 1; piece = line >> 1; l = line & 1
                base = V_SA + (k & 1); off = piece*SLOT + l*4096 + tt*2048
                st = ("S", piece)
                f, a = addfrag(lambda a, base=base, off=off: [f"ds_read_b128 a[{a}:{a+3}], v{base} offset:{off}"], g, dist=8, stage=st)
                for ss in range(3):
                    ac = accQ(tt, ss)
                    M.append(dict(op=16, acc=f"v[{ac}:{ac+3}]", first=(k == 0), A=f"a[{a}:{a+3}]", B=zQ(ss, k), need=f))
                    lu[st] = len(M) - 1
        P2_0 = len(M)
        stages = [(0, "own"), (1, "own"), (2, "own"), (0, "par"), (1, "par"), (2, "par"), (4, "both"), (3, "own"), (3, "par")]
        slot_order = [2, 0, 3, 2, 1, 0, 3, 2, 1]
        slot_of = {st: slot_order[i] for i, st in enumerate(stages)}
        ACC = {0: [32, 96], 1: [16, 80], 2: [48, 112], 3: [64, 128], 4: [32]}
        tile_last = {}
        def p2run(st, half, base, ks=None):
            u, who = st
            acc = ACC[u][half]
            for k in (ks or range(18)):
                g = len(M)
                f, a = addfrag(tr(base, k*2048, 1024), g, stage=("s2", st))
                M.append(dict(op=32, acc=f"v[{acc}:{acc+15}]", first=(who == "own" and k == 0), A=f"a[{a}:{a+3}]",
                              B=(f"v[{HF+4*k}:{HF+4*k+3}]" if who == "own" else f"a[{AZ+4*k}:{AZ+4*k+3}]"), need=f))
                tile_last[(u, half)] = g; lu[("s2", st)] = g
        for st in stages[:7]:
            u, who = st; slot = slot_of[st]
            if u < 4 and who == "par" and u in (0, 1) and self.opts.get("klate", 1):
                for rng in (range(12), range(12, 18)):
                    for half in range(2): p2run(st, half, (V_RA if half == 0 else V_RB) + slot, rng)
            elif u < 4:
                for half in range(2): p2run(st, half, (V_RA if half == 0 else V_RB) + slot)
            else:
                acc = ACC[4][0]
                for k in range(36):
                    g = len(M)
                    f, a = addfrag(tr(V_R8, k*1024, 512), g, stage=("s2", st))
                    M.append(dict(op=32, acc=f"v[{acc}:{acc+15}]", first=(k == 0), A=f"a[{a}:{a+3}]",
                                  B=(f"v[{HF+4*k}:{HF+4*k+3}]" if k < 18 else f"a[{AZ+4*(k-18)}:{AZ+4*(k-18)+3}]"), need=f))
                    tile_last[(4, 0)] = g; lu[("s2", st)] = g
        p2run((3, "own"), 0, V_LB); p2run((3, "par"), 0, V_LB + 1); p2run((3, "own"), 1, V_LB + 2); p2run((3, "par"), 1, V_LB + 3)
        N = len(M)
        last_use = {}
        for g, m in enumerate(M): last_use[m["need"]] = g
        for f, fr in enumerate(frags):
            d = fr.get("dist", DIST)
            t = fr["use"] - d
            if f >= NAF and t < last_use[f - NAF]: fr["dist"] = fr["use"] - last_use[f - NAF]
        for fr in frags:
            st = fr.get("stage_first")
            if st is None: continue
            if st[0] in ("st", "s2"):
                tags = [st]
                if st == ("st", 3): tags += ["zst", "flinit"]
                if st == ("st", 17): tags += ["hst"]
                fr["pre"] = [wvm(tags), o("s_barrier")]
                if st == ("st", 17):
                    fr["pre"] += [vm(f"buffer_store_dword v{V_ONE}, v{V_ONE0}, s[{SR_WS}:{SR_WS+3}], s{S_FL} offen sc1", "fl1")]
                if st == ("st", 3):
                    fr["pre"] += [vm(f"buffer_atomic_add v{V_ONE}, v{V_ONE0}, s[{SR_HZ}:{SR_HZ+3}], 0 offen offset:128 sc1", "zpub")]
            else:
                fr["pre"] = [wvm(("cs", st))]
        stamps = {0: "p1", 144: "u1", 288: "u2", 432: "u3", 576: "u4", S0: "S0", SP_END: "SP", P2_0: "p2", P2_0 + 108: "p2b", P2_0 + 216: "p2c"}
        if self.opts.get("hdiag") == 2:
            stamps = {0: "p1", 144: "u1", 288: "u2", 432: "u3", 576: "u4", S0: "S0", P2_0: "p2", P2_0 + 108: "p2b", P2_0 + 216: "p2c"}
        if self.opts.get("fine") == 2:
            stamps = {0: "p1", S0: "S0", P2_0: "p2"}
            for k in range(9, 127, 9): stamps[P2_0 + k] = f"+{k}"
        elif self.opts.get("fine"):
            stamps = {0: "p1", 432: "u3", 576: "u4", 594: "s594", 612: "s612", 630: "s630", S0: "S0", 660: "s660", 672: "s672", 684: "s684", SP_END: "SP", 714: "s714", 726: "s726", 738: "s738", P2_0: "p2", P2_0 + 36: "a36", P2_0+72: "a72", P2_0 + 108: "p2b", P2_0 + 216: "p2c"}
        for g, name in stamps.items():
            if self.diag: M[g].setdefault("before", []).extend(self.stamp(name))
        self.tail2 = []

        def setup(sl, head):
            rbar = {st: fu[st] - DIST for st in fu if st[0] in ("st", "s2")}
            for b in rbar.values():
                if b >= 0: sl.budget[b] = 4
            def fbar(t):
                sl.put(t, [o("s_barrier")])
            busy = {"end": -1}
            def place(groups, start, step=1):
                s = max(start, busy["end"] + 1)
                for grp in groups:
                    sl.put(s, grp); busy["end"] = s; s += step
                return s
            sl.put(2, [o(f"v_mov_b32 v{V_ONE}, 1")])
            eh = sl.stream(self.rr_reads(48, 112) + self.h_epilogue(S_A, V_HACC, 48, 64), 12, 46)
            eh = sl.stream(self.rr_reads(48, 112, 2) + self.h_epilogue(S_B, 128, 48, 64), eh + 1, eh + 34)
            assert eh < 92, eh
            for mat in range(2):
                slot = (16 + mat) % 4
                ins = [o("v_lshrrev_b32 v224, 5, v0"), o("v_lshlrev_b32 v224, 9, v224"),
                       o("v_bfe_u32 v225, v0, 2, 2"), o("v_lshlrev_b32 v225, 6, v225"), o("v_add_u32 v224, v224, v225"),
                       o("v_bfe_u32 v225, v0, 4, 1"), o("v_lshlrev_b32 v225, 5, v225"), o("v_add_u32 v224, v224, v225"),
                       o("v_and_b32 v225, 3, v0"), o("v_lshlrev_b32 v225, 3, v225"), o("v_add_u32 v224, v224, v225"),
                       o(f"v_add_u32 v{V_R8+mat}, {slot*SLOT}, v224")]
                sl.stream(ins, 70 + 20*mat, 88 + 20*mat)
            dma_end = {}
            for sig in range(2, 18):
                grps = self.dma_p1(sig, sig % 4)
                if sig == 2: start = 0
                elif sig == 3: start = 9*self.opts.get('dstep', 2)
                elif self.opts.get("fb", 1):
                    t = lu[("st", sig - 4)]; fbar(t); start = t + 1
                else:
                    start = min(b for b in rbar.values() if b >= lu[("st", sig - 4)]) + 1
                dma_end[sig] = place(grps, start, self.opts.get("dstep", 2))
            self.paced_prefetch(sl, dma_end)
            self.mode_check(sl, M)
            sl.put(590, [G([o(f"s_lshl_b32 s{S_FL}, s{S_LID}, 7"), o(f"s_add_u32 s{S_FL}, s{S_FL}, {WS_FLAG}")])])
            sl.put(592, [o(f"v_mov_b32 v{V_ONE}, 1")])
            e0 = sl.stream(self.geglu(0), 145, 211)
            sl.stream(self.hstore(0) + self.geglu(1) + self.hstore(1), max(e0 + 1, 212), 287)
            for u in range(1, 3):
                sl.stream(self.geglu(2*u) + self.hstore(2*u) + self.geglu(2*u+1) + self.hstore(2*u+1), 144*(u+1) + 1, 144*(u+2) - 1)
            es = sl.stream(self.s_setup(), eh + 1, eh + 11)
            es = sl.stream(self.s_setup2(), es + 1, es + 10)
            assert es < 118, es
            sl.stream(self.s_setup3(224, 225, 226, 227), max(es + 1, 112), 143)
            ep = sl.stream(self.phase2_setup(), 66, 100)
            assert ep < 110
            t = lu[("st", 14)]; fbar(t); place(self.dma_cs(0, 0, 2, ("cs", ("C", 0))), t + 1, 2)
            t = lu[("st", 15)]; fbar(t); e = place(self.dma_cs(0, 1, 3, ("cs", ("C", 1))), t + 1, 2)
            place(self.dma_cx(("cs", ("CX", 0))), e, 2)
            t = lu[("st", 16)]; fbar(t); place(self.dma_cs(1, 0, 0, ("cs", ("S", 0))), t + 1, 2)
            t = lu[("st", 17)]; fbar(t); place(self.dma_cs(1, 1, 1, ("cs", ("S", 1)), True), t + 1, 1)
            self.main_rest(sl, M, fu, lu, stages, slot_of, ACC, tile_last, S0, SP_END, P2_0, N, fbar, place)
        L = self.paced(M, frags, setup, DIST)
        return L + self.tail2

    def mode_check(self, sl, M):
        if not self.opts.get("local", 0): return
        t = 0
        ld = f"buffer_load_dwordx2 v[222:223], off, s[{SR_HZ}:{SR_HZ+3}], s{T5} sc1"
        ld = f"buffer_load_dwordx2 v[230:231], off, s[{SR_HZ}:{SR_HZ+3}], s{S_XC} sc1"
        if self.opts.get("cfg", 0) == 0:
            ld = f"buffer_load_dword v230, off, s[{SR_HZ}:{SR_HZ+3}], s{S_XC} sc1"
            sl.put(140, [G([o(f"s_lshr_b32 s{S_XC}, s{S_LID}, 3"), o(f"s_lshl_b32 s{S_XC}, s{S_XC}, 2")])])
        else:
            sl.put(140, [G([o(f"s_lshl_b32 s{S_XC}, s{S_MT}, 3")])])
        sl.put(143, [vm(ld, "xcc")])
        sl.put(205, [wvm("xcc")])
        sl.put(206, [o(f"v_readfirstlane_b32 s{T6}, v230"), o(f"v_readfirstlane_b32 s{T7}, v231")])
        def nz(r, tmp):
            return [o(f"s_lshr_b32 s{tmp}, s{r}, 1"), o(f"s_or_b32 s{tmp}, s{tmp}, s{r}"), o(f"s_lshr_b32 s{T3}, s{tmp}, 2"), o(f"s_or_b32 s{tmp}, s{tmp}, s{T3}"),
                    o(f"s_and_b32 s{tmp}, s{tmp}, 0x11111111")]
        chk = nz(T6, T1) + nz(T7, T2) + [o(f"s_and_b32 s{T1}, s{T1}, s{T2}"), o(f"s_cmp_eq_u32 s{T1}, 0x11111111")]
        if self.opts.get("cfg", 0) == 0:
            ld = f"buffer_load_dword v230, off, s[{SR_HZ}:{SR_HZ+3}], s{S_XC} sc1"
            ext = [o(f"s_and_b32 s{T1}, s{S_LID}, 6"), o(f"s_lshl_b32 s{T1}, s{T1}, 2"), o(f"s_lshr_b32 s{T2}, s{T6}, s{T1}"),
                   o(f"s_and_b32 s{T3}, s{T2}, 15"), o(f"s_bfe_u32 s{T2}, s{T2}, 0x40004"),
                   o(f"s_min_u32 s{T1}, s{T2}, s{T3}"), o(f"s_cmp_ge_u32 s{T1}, 1")]
            blk = ext + [o("s_cbranch_scc1 L_xc_ok")] + self.spin("L_xc", [o(ld)], [o(f"v_readfirstlane_b32 s{T6}, v230"), o("s_nop 3")] + ext)
            blk += [o(f"s_cmp_eq_u32 s{T2}, s{T3}"), o(f"s_cselect_b32 s{S_MODE}, 1, 0")]
            if self.opts.get("forceglobal"): blk += [o(f"s_mov_b32 s{S_MODE}, 0")]
            M[209].setdefault("before", []).extend(blk)
            return
        blk = chk + [o("s_cbranch_scc1 L_xc_ok")] + self.spin("L_xc", [o(ld)],
              [o(f"v_readfirstlane_b32 s{T6}, v230"), o(f"v_readfirstlane_b32 s{T7}, v231"), o("s_nop 3")] + chk)
        blk += [o(f"s_and_b32 s{T1}, s{T6}, 15"), o(f"s_mul_i32 s{T1}, s{T1}, 0x11111111"),
                o(f"s_cmp_eq_u32 s{T1}, s{T6}"), o(f"s_cselect_b32 s{S_MODE}, 1, 0"),
                o(f"s_cmp_eq_u32 s{T1}, s{T7}"), o(f"s_cselect_b32 s{S_MODE}, s{S_MODE}, 0")]
        if self.opts.get("forceglobal"): blk += [o(f"s_mov_b32 s{S_MODE}, 0")]
        M[209].setdefault("before", []).extend(blk)

    def bulk(self, sl, t):
        bk = [G([o(f"s_lshl_b32 s{S_PF}, s{S_LID}, 2"), o(f"s_add_u32 s{S_PF}, s{S_PF}, s{S_W}"), o(f"s_mul_i32 s{S_PF}, s{S_PF}, 41")]),
              o(f"v_add_u32 v{V_PF}, s{S_PF}, v0"), o(f"v_lshlrev_b32 v{V_PF}, 7, v{V_PF}"),
              G([o("v_cmp_gt_u32 vcc, 41, v0"), o("v_nop"), o("v_nop"), o(f"v_cndmask_b32 v{V_PF}, v{V_ONE0}, v{V_PF}, vcc")])]
        e = sl.stream(bk, t, t + 5, spill=2)
        sl.put(e + 1, [vm(f"buffer_load_dword v{V_PF}, v{V_PF}, s[{SR_WG}:{SR_WG+3}], 0 offen", "pf")])
        sl.put(e + 2, [vm(f"buffer_load_dword v{V_PF}, v{V_PF}, s[{SR_WU}:{SR_WU+3}], 0 offen", "pf")])
        return e + 2

    def paced_prefetch(self, sl, dma_end):
        if self.opts.get("bulkat", 0) == 1:
            bk = [G([o(f"s_lshl_b32 s{S_PF}, s{S_LID}, 2"), o(f"s_add_u32 s{S_PF}, s{S_PF}, s{S_W}"), o(f"s_mul_i32 s{S_PF}, s{S_PF}, 41")]),
                  o(f"v_add_u32 v230, s{S_PF}, v0"), o(f"v_lshlrev_b32 v230, 7, v230"),
                  G([o("v_cmp_gt_u32 vcc, 41, v0"), o("v_nop"), o("v_nop"), o(f"v_cndmask_b32 v230, v{V_ONE0}, v230, vcc")])]
            e = sl.stream(bk, 0, 8, spill=2)
            assert e < 12
            s = dma_end[self.opts.get("bulkst", 3)]
            sl.put(s, [vm(f"buffer_load_dword v{V_PF}, v230, s[{SR_WG}:{SR_WG+3}], 0 offen", "pf")])
            sl.put(s + 1, [vm(f"buffer_load_dword v{V_PF}, v230, s[{SR_WU}:{SR_WU+3}], 0 offen", "pf")])
        if not self.opts.get("ppf", 1): return
        Dd, Cc, t = 228, 229, 227
        if self.opts.get("lbulk"):
            first = [G([o(f"s_lshl_b32 s{S_PF}, s{S_MT}, 2"), o(f"s_add_u32 s{S_PF}, s{S_PF}, s{S_W}"), o(f"s_mul_i32 s{S_PF}, s{S_PF}, 41")]),
                     G([o(f"s_mul_i32 s{S_C}, s{S_J}, 2592"), o(f"s_add_u32 s{S_PF}, s{S_PF}, s{S_C}")])]
        else:
            first = [G([o(f"s_lshl_b32 s{S_PF}, s{S_LID}, 2"), o(f"s_add_u32 s{S_PF}, s{S_PF}, s{S_W}"), o(f"s_mul_i32 s{S_PF}, s{S_PF}, 41")])]
        setup = first + [
                 o(f"v_add_u32 v{Dd}, s{S_PF}, v0"), o(f"v_lshlrev_b32 v{Dd}, 7, v{Dd}"), o(f"v_mov_b32 v{t}, {OOB:#x}"),
                 G([o("v_cmp_gt_u32 vcc, 41, v0"), o("v_nop"), o("v_nop"), o(f"v_cndmask_b32 v{Dd}, v{t}, v{Dd}, vcc")]),
                 G([o(f"s_and_b32 s{S_PF}, s{S_J}, 7"), o(f"s_lshl_b32 s{S_PF}, s{S_PF}, 2"), o(f"s_add_u32 s{S_PF}, s{S_PF}, s{S_W}")]),
                 G([o(f"s_lshl_b32 s{S_C}, s{S_TAU}, 5"), o(f"s_add_u32 s{S_PF}, s{S_PF}, s{S_C}"), o(f"s_lshl_b32 s{S_PF}, s{S_PF}, 12")]),
                 o(f"v_lshlrev_b32 v{Cc}, 7, v0"), o(f"v_add_u32 v{Cc}, s{S_PF}, v{Cc}"),
                 G([o("v_cmp_gt_u32 vcc, 17, v0"), o("v_nop"), o("v_nop"), o(f"v_cndmask_b32 v{Cc}, v{t}, v{Cc}, vcc")])]
        e = sl.stream(setup, 146, 176)
        s = dma_end[self.opts.get("pfw", 9)]
        assert s > e + 6
        if self.opts.get("bulk", 1) != 2: sl.put(s, [vm(f"buffer_load_dword v{V_PF}, v{Dd}, s[{SR_WD}:{SR_WD+3}], 0 offen", "pf")])
        if self.opts.get("wdl2", 1):
            A2, t2 = 230, 226
            st2 = [G([o(f"s_and_b32 s{S_PF}, s{S_MT}, 7"), o(f"s_mul_i32 s{S_PF}, s{S_PF}, 36"), o(f"s_mul_i32 s{S_C}, s{S_W}, 9")]),
                   o(f"s_add_u32 s{S_PF}, s{S_PF}, s{S_C}"), o(f"v_add_u32 v{t2}, s{S_PF}, v0"), o(f"v_mul_u32_u24 v{t2}, 1152, v{t2}"),
                   o(f"v_mov_b32 v227, {OOB:#x}"),
                   G([o("v_cmp_gt_u32 vcc, 9, v0"), o("v_nop"), o("v_nop"), o(f"v_cndmask_b32 v{t2}, v227, v{t2}, vcc")])]
            e2 = sl.stream(st2, 474, 486)
            def wl(own, k, t):
                sl.put(t, [G([o(f"s_{'mul_i32' } s{S_PF}, s{S_J if own else S_J}, {288*1152}")] + ([] if own else [o(f"s_xor_b32 s{S_C}, s{S_J}, 1"), o(f"s_mul_i32 s{S_PF}, s{S_C}, {288*1152}")]) + [o(f"s_add_u32 s{S_PF}, s{S_PF}, s{S_CU+k}")])])
                sl.put(t + 1, [vm(f"buffer_load_dword v{V_PF}, v{t2}, s[{SR_WD}:{SR_WD+3}], s{S_PF} offen", "pf")])
            s = dma_end[16]; wl(True, 0, s); wl(True, 1, s + 2)
            s = dma_end[17]; wl(True, 2, s); wl(False, 0, s + 2)
        s = dma_end[self.opts.get("pfc", 11)]
        sl.put(s, [vm(f"buffer_load_dword v{V_PF}, v{Cc}, s[{SR_CS}:{SR_CS+3}], 0 offen", "pf")])
        sl.put(s + 1, [vm(f"buffer_load_dword v{V_PF}, v{Cc}, s[{SR_SS}:{SR_SS+3}], 0 offen", "pf")])

    def owner_addr(self):
        sQ = S_TO
        t0, t1, t2, t3 = 244, 245, 246, 247
        L = [G([o(f"s_lshl_b32 s{T4}, s{S_MT}, 2"), o(f"s_add_u32 s{T4}, s{T4}, s{S_W}")]),
             G([o(f"s_mul_i32 s{T5}, s{T4}, 18"), o(f"s_add_u32 s{T5}, s{T5}, s{sQ}"), o(f"s_lshl_b32 s{T5}, s{T5}, 11")]),
             o(f"s_lshr_b32 s{T3}, s{S_J}, 1")]
        for i, d in enumerate((2, 3, 4, 5, 6, 7, 1)):
            L += [G([o(f"s_xor_b32 s{16+i}, s{T3}, {d}"), o(f"s_mul_i32 s{16+i}, s{16+i}, {PART_BYTES}"), o(f"s_add_u32 s{16+i}, s{16+i}, s{T5}")])]
        L += [o(f"s_lshl_b32 s{T5}, s{T4}, 4"), o(f"v_and_b32 v{t0}, 15, v0"), o(f"v_add_u32 v{t0}, s{T5}, v{t0}"),
              o(f"v_sub_u32 v{t1}, 2048, v{t0}"), o(f"v_mov_b32 v{t2}, 1024"), o(f"v_mov_b32 v{t3}, 0"),
              G([o(f"v_cmp_eq_u32 vcc, 0, v{t0}"), o("v_nop"), o("v_nop"), o(f"v_cndmask_b32 v237, v{t1}, v{t2}, vcc"),
                 o(f"v_cndmask_b32 v{t1}, v{t1}, v{t3}, vcc"), o(f"v_cndmask_b32 v{t2}, v{t0}, v{t2}, vcc")]),
              o(f"v_and_b32 v{t3}, 16, v0"),
              G([o(f"v_cmp_eq_u32 vcc, 0, v{t3}"), o("v_nop"), o("v_nop"), o(f"v_cndmask_b32 v{t0}, v237, v{t0}, vcc"), o(f"v_cndmask_b32 v{t1}, v{t2}, v{t1}, vcc")]),
              o(f"s_lshl_b32 s{T5}, s{sQ}, 6"),
              o(f"v_mul_u32_u24 v{t2}, 1152, v{t0}"), o(f"v_add_u32 v{t2}, s{T5}, v{t2}"),
              o(f"v_lshrrev_b32 v{t3}, 5, v0"), o(f"v_lshlrev_b32 v238, 4, v{t3}"), o(f"v_add_u32 v238, v{t2}, v238"),
              o(f"v_lshlrev_b32 v237, 3, v{t3}"), o(f"v_add_u32 v237, v{t2}, v237"),
              G([o(f"s_lshl_b32 s{T5}, s{sQ}, 7"), o(f"s_cmp_lt_u32 s{sQ}, 9"), o(f"s_cselect_b32 s24, 0, 1")]),
              G([o(f"s_sub_u32 s{T4}, {2292 - 96}, s{T5}"), o(f"s_cmp_lt_u32 s{sQ}, 9"), o(f"s_cselect_b32 s{T5}, s{T5}, s{T4}"), o(f"s_cselect_b32 s{T4}, 1, -1")]),
              G([o(f"v_mov_b32 v{t2}, s24"), o(f"v_cmp_eq_u32 vcc, 1, v{t2}"), o("v_nop"), o("v_nop"), o(f"v_cndmask_b32 v{t0}, v{t0}, v{t1}, vcc")]),
              o(f"v_mul_u32_u24 v{t0}, {YP}, v{t0}"), o(f"v_add_u32 v{t0}, s{T5}, v{t0}"),
              o(f"v_lshlrev_b32 v{t3}, 4, v{t3}"), o(f"v_mul_lo_u32 v{t3}, v{t3}, s{T4}"), o(f"v_add_u32 v{t0}, v{t0}, v{t3}"),
              o(f"v_add_u32 v239, {WS_YH}, v{t0}")]
        return L

    def pipe_reduce(self, sl, M, fu, lu, P2_0, N):
        self.items_cfg()
        t4 = P2_0 + self.opts.get("t4", 254)
        sl.put(t4 - 3, [o("v_mov_b32 v240, 4")])
        sl.put(t4, [wvm([("pst", 0), ("pst", 1), ("pst", 2), "yst"]), o("s_barrier")])
        sl.put(t4 + 1, [vm(f"buffer_store_dword v240, v{V_ONE0}, s[{SR_WS}:{SR_WS+3}], s{S_FL} offen sc1", "fl4")])
        ep = sl.stream(self.p2q_setup(), P2_0 + 102, P2_0 + 124)
        assert ep < P2_0 + 132
        s_own, s_par = 2, 1
        lb = [G([o(f"s_bfe_u32 s{T5}, s{S_J}, 0x10001"), o(f"s_lshl_b32 s{T5}, s{T5}, 6"), o(f"s_xor_b32 s{T4}, s{T5}, 64")]),
              o(f"v_xor_b32 v{V_LB}, s{T4}, v{V_RA+s_own}"), o(f"v_xor_b32 v{V_LB+1}, s{T4}, v{V_RA+s_par}"),
              o(f"v_xor_b32 v{V_LB+2}, s{T5}, v{V_RA+s_own}"), o(f"v_xor_b32 v{V_LB+3}, s{T5}, v{V_RA+s_par}")]
        sl.stream(lb, P2_0 + 190, P2_0 + 200)
        e = sl.stream(self.owner_addr(), P2_0 + 204, P2_0 + 250)
        e = sl.stream([G([o(f"s_and_b32 s{T6}, s{S_J}, 1"), o(f"s_lshl_b32 s{T6}, s{T6}, 7"), o(f"s_lshl_b32 s{T7}, s{S_MT}, 11")]),
                       G([o(f"s_add_u32 s{T6}, s{T6}, s{T7}"), o(f"s_add_u32 s{T6}, s{T6}, {WS_FLAG}")]),
                       o("v_lshlrev_b32 v242, 8, v0"), o(f"v_mov_b32 v241, {OOB:#x}"),
                       G([o("v_cmp_gt_u32 vcc, 8, v0"), o("v_nop"), o("v_nop"), o("v_cndmask_b32 v242, v241, v242, vcc")])], e + 1, e + 8)
        for i in range(4): sl.put(e + 2 + i, [vm(f"buffer_load_dwordx2 v[{24+2*i}:{25+2*i}], v237, s[{SR_X}:{SR_X+3}], 0 offen offset:{16*i}", "ox")])
        tpoll = max(e + 7, P2_0 + self.opts.get("tpa", 284))
        ld, chk = self.group_poll("L_gA", 4, 241, 242)
        sl.put(tpoll, [vm(ld, "gpA")])
        sl.put(tpoll + 9, [wvm("gpA")])
        M[tpoll + 11].setdefault("before", []).extend(chk + [o("s_cbranch_scc1 L_gA_ok")] + self.spin("L_gA", [o(ld)], chk))
        lds = []
        for i in range(6):
            lds += [vm(f"buffer_load_dwordx4 v[{80+8*i}:{83+8*i}], v{V_L16}, s[{SR_WS}:{SR_WS+3}], s{16+i} offen sc1", "op"),
                    vm(f"buffer_load_dwordx4 v[{84+8*i}:{87+8*i}], v{V_L16}, s[{SR_WS}:{SR_WS+3}], s{16+i} offen offset:1024 sc1", "op")]
        lds += [vm(f"buffer_load_dwordx4 v[{48+4*i}:{51+4*i}], v239, s[{SR_WS}:{SR_WS+3}], 0 offen offset:{32*i} sc1", "op") for i in range(4)]
        s = tpoll + 11
        self.late_loads = []
        stp = self.opts.get("ostep", 2)
        for l in lds:
            if s < N - 1: sl.put(s, [l]); s += stp
            else: self.late_loads.append(l)
        print("owner loads: in loop until", s, "late:", len(self.late_loads), "N", N)
        t5 = N - self.opts.get("t5", 10)
        sl.put(t5 - 3, [o("v_mov_b32 v240, 5")])
        sl.put(t5, [wvm([("pst", 3), ("pst", 4)]), o("s_barrier")])
        sl.put(t5 + 1, [vm(f"buffer_store_dword v240, v{V_ONE0}, s[{SR_WS}:{SR_WS+3}], s{S_FL} offen sc1", "fl5")])
        self.RDx = dict(P=("v", 176), X=208, Y=212, OA=220, PV=221, t=[222, 223, 224, 225], rev=26, so=84)
        Ad, Ld = self.item_setup("D", self.RDx, split=True)
        self.D_ld = Ld
        eD = sl.stream(Ad, N - 17, N - 1, spill=0)
        print("D addr until", eD)

    def spin(self, label, load, cond_ok, regs_note=""):
        return [o(f"s_mov_b32 s{S_CNT}, 0"), raw(f"{label}:")] + load + [o("s_waitcnt vmcnt(0)")] + cond_ok + \
               [o(f"s_cbranch_scc1 {label}_ok"), o(f"s_add_u32 s{S_CNT}, s{S_CNT}, 1"), o(f"s_cmp_gt_u32 s{S_CNT}, 0x40000"), o(f"s_cbranch_scc1 {label}_ok"),
                o("s_sleep 1"), o(f"s_branch {label}"), raw(f"{label}_ok:")]

    def main_rest(self, sl, M, fu, lu, stages, slot_of, ACC, tile_last, S0, SP_END, P2_0, N, fbar, place):
        zP, zQ, accP, accQ = self.zP, self.zQ, self.accP, self.accQ
        DIST = self.opts.get("dist", 7)
        if self.opts.get("esig", 1):
            e = sl.stream(self.geglu_sig(6, 8), 490, 535)
            e = sl.stream(self.geglu_sig(7, 8), max(e + 1, 508), 578)
            e6 = sl.stream(self.geglu_fin(6) + self.hstore(6), max(e + 1, 579), 596)
            e7 = sl.stream(self.geglu_fin(7) + self.hstore(7), e6 + 1, 614)
            assert e7 < S0 - 2, e7
            e8 = sl.stream(self.geglu_sig(8, 8), max(e7 + 1, 616), S0 + 2)
            e8 = sl.stream(self.geglu_fin(8) + self.hstore(8), max(e8 + 1, S0 + 4), S0 + 16)
            self.e8 = e8
        else:
            e6 = sl.stream(self.geglu(6) + self.hstore(6), 577, 634)
            assert e6 < S0 - 2, e6
            e7 = sl.stream(self.geglu(7) + self.hstore(7), e6 + 1, S0 + 46)
            assert e7 < SP_END - 1, e7
        if not self.opts.get("esig", 1): sl.stream(self.geglu(8, 8) + self.hstore(8), S0 + 4, S0 + 85)
        sl.put(467, [vm(f"buffer_load_dword v230, off, s[{SR_HZ}:{SR_HZ+3}], 0 offset:128 sc1", "zpoll")])
        sl.put(574, [wvm("zpoll")])
        sl.put(575, [o(f"v_readfirstlane_b32 s{T0}, v230")])
        M[578].setdefault("before", []).extend(
            [o(f"s_cmp_ge_u32 s{T0}, 256"), o("s_cbranch_scc1 L_zp_ok")] +
            self.spin("L_zp", [o(f"buffer_load_dword v{V_PF}, off, s[{SR_HZ}:{SR_HZ+3}], 0 offset:128 sc1")],
                      [o(f"v_readfirstlane_b32 s{T0}, v{V_PF}"), o("s_nop 3"), o(f"s_cmp_ge_u32 s{T0}, 256")]))
        ins = []
        for k in range(9):
            if k < 8: ins += [o(f"s_add_u32 s{S_C}, s{S_ZB}, {k*2048}")]
            else: ins += [G([o(f"s_cmp_eq_u32 s{S_W}, 3"), o(f"s_cselect_b32 s{S_C}, 0, {OOB:#x}"), o(f"s_add_u32 s{S_C}, s{S_C}, s{S_ZB}")]),
                          o(f"s_add_u32 s{S_C}, s{S_C}, {8*2048}")]
            for ss in range(3):
                ins += [vm(f"buffer_load_dwordx4 {zP(ss,k)}, v{V_ZP+ss}, s[{SR_WS}:{SR_WS+3}], s{S_C} offen sc1", ("zp", k))]
        sl.stream(ins, 579, 640)
        for k in range(9):
            g = S0 + 6*k
            sl.put(g - 1, [wvm(("zp", k))])
        ins = []
        for k in range(8):
            ins += [o(f"s_add_u32 s{S_C}, s{S_ZB}, {k*2048}")]
            for ss in range(3):
                ins += [vm(f"buffer_load_dwordx4 {zQ(ss,k)}, v{V_ZQ+ss}, s[{SR_WS}:{SR_WS+3}], s{S_C} offen sc1", ("zq", k))]
        sl.stream(ins, S0, SP_END + 20)
        for k in range(8):
            g = SP_END + 6*k
            sl.put(g - 1, [wvm(("zq", k))])
        blk = [o(f"s_cmp_eq_u32 s{S_TAU}, 0"), o("s_cbranch_scc0 L_s_n1024"),
               o("v_mov_b32 v232, 0xbf803f80"), o("v_mov_b32 v233, v232"), o("v_mov_b32 v234, v232"), o("v_mov_b32 v235, v232"), o("s_nop 1")]
        for k in range(9):
            for ss in range(3):
                a = (32, 36, 40)[ss] if False else None
        A1024 = [120, 124, 136]
        for k in range(9):
            for ss in range(3):
                a = A1024[ss]
                blk += [mf16(f"v[{a}:{a+3}]", "v[232:235]", zP(ss, k), "0" if k == 0 else f"v[{a}:{a+3}]")]
        blk += [raw("L_s_n1024:")]
        M[SP_END].setdefault("before", []).extend(blk)
        tA, tB, tC = 236, 237, 238
        t = lu[("C", 0)]; fbar(t)
        e = place(self.dma_p2(stages[0], slot_of[stages[0]], True, 12, 13, V_PF), t + 1, 1)
        ins = [o(f"v_lshrrev_b32 v{V_PF}, 5, v0"), o(f"v_lshlrev_b32 v{V_PF}, 9, v{V_PF}")]
        for s in range(4): ins += [o(f"v_sub_u32 v{V_RA+s}, v{V_RA+s}, v{V_PF}"), o(f"v_sub_u32 v{V_RB+s}, v{V_RB+s}, v{V_PF}")]
        sl.stream(ins, e + 1, e + 14)
        t = lu[("C", 1)] + 6; fbar(t)
        assert t >= lu[("CX", 0)]
        place(self.dma_p2(stages[2], slot_of[stages[2]], False, 0, 0, 0), t + 1, 1)
        t = lu[("S", 0)]
        if self.opts.get("esig", 1):
            sl.put(t, [wvm("hst"), o("s_barrier")])
            sl.put(t + 1, [o(f"v_mov_b32 v{V_PF}, 2")])
            sl.put(t + 2, [vm(f"buffer_store_dword v{V_PF}, v{V_ONE0}, s[{SR_WS}:{SR_WS+3}], s{S_FL} offen sc1", "fl2h")])
            place(self.dma_p2(stages[1], slot_of[stages[1]], False, 0, 0, 0), t + 3, 1)
            fbar(lu[("S", 1)])
        else:
            fbar(t); place(self.dma_p2(stages[1], slot_of[stages[1]], False, 0, 0, 0), t + 1, 1)
            t = lu[("S", 1)]
            sl.put(t, [wvm("hst"), o("s_barrier")])
            sl.put(t + 1, [o(f"v_mov_b32 v{V_PF}, 2")])
            sl.put(t + 2, [vm(f"buffer_store_dword v{V_PF}, v{V_ONE0}, s[{SR_WS}:{SR_WS+3}], s{S_FL} offen sc1", "fl2h")])
        a0 = P2_0 + 3
        t0r, t1r = 240, 241
        SC = SLOT
        W3D = SPARE - SLOT - 3*12288
        N1A = SPARE + 12288
        wr = [G([o(f"s_mul_i32 s{S_C}, s{S_W}, 12288"), o(f"s_add_u32 s{S_C}, s{S_C}, {SC}")]),
              G([o(f"s_cmp_eq_u32 s{S_W}, 3"), o(f"s_cselect_b32 s{S_ST1}, {W3D}, 0"), o(f"s_add_u32 s{S_C}, s{S_C}, s{S_ST1}")]),
              o(f"v_lshrrev_b32 v{t0r}, 4, v0"), o(f"v_mul_u32_u24 v{t0r}, 768, v{t0r}"), o(f"v_and_b32 v{t1r}, 15, v0"), o(f"v_lshlrev_b32 v{t1r}, 2, v{t1r}"),
              o(f"v_add_u32 v{t0r}, v{t0r}, v{t1r}"), o(f"v_add_u32 v{t0r}, s{S_C}, v{t0r}")]
        for pq, accf in ((0, accP), (1, accQ)):
            for tt in range(2):
                for ss in range(3):
                    for r in range(4):
                        wr += [ds(f"ds_write_b32 v{t0r}, v{accf(tt,ss)+r} offset:{pq*6144 + (16*tt + r)*192 + ss*64}", "sred_w")]
        if self.opts.get("sseq"):
            class Seq:
                def __init__(s): s.L = []
                def stream(s, ins, a, b, spill=0): s.L += flat(ins); return a
                def put(s, t, ins): s.L += flat(ins if isinstance(ins, list) else [ins])
            sq = Seq(); real_sl = sl; sl = sq
        e = sl.stream(wr, a0, a0 + 30)
        wr2 = [G([o(f"s_mul_i32 s{S_C}, s{S_W}, 768"), o(f"s_add_u32 s{S_C}, s{S_C}, {N1A}")]), o(f"v_lshlrev_b32 v{t1r}, 2, v0"), o(f"v_add_u32 v{t1r}, s{S_C}, v{t1r}")]
        for ss in range(3): wr2 += [ds(f"ds_write_b32 v{t1r}, v{A1024[ss]} offset:{ss*256}", "sred_w")]
        e = sl.stream(wr2, e + 1, e + 6)
        b1 = e + 1
        sl.put(b1, [wlg("sred_w"), o("s_barrier")])
        R0, R1 = 128, 64
        R0, R1 = 112, 48
        A0, A1, YD0, YM0, YD1, YM1 = 232, 233, 234, 235, 236, 237
        ad = [G([o(f"s_lshl_b32 s{T3}, s{S_W}, 3"), o(f"s_lshl_b32 s{T4}, s{S_TAU}, 5"), o(f"s_add_u32 s{T4}, s{T4}, s{T3}")]),
              G([o(f"s_mul_i32 s{T3}, s{T3}, 192"), o(f"s_add_u32 s{T3}, s{T3}, {SC}"), o(f"s_and_b32 s{T5}, s{S_J}, 7")]),
              o(f"s_mul_i32 s{T5}, s{T5}, 144"),
              o(f"v_lshrrev_b32 v238, 3, v0"), o(f"v_and_b32 v239, 7, v0"),
              o(f"v_mul_u32_u24 v{A0}, 192, v238"), o(f"v_lshlrev_b32 v239, 4, v239"), o(f"v_add_u32 v{A0}, v{A0}, v239"), o(f"v_add_u32 v{A0}, s{T3}, v{A0}"),
              o(f"v_add_u32 v238, s{T4}, v238"),
              o(f"v_add_u32 v239, s{T5}, v239"),
              o(f"v_mul_u32_u24 v{YD0}, {YP}, v238"), o(f"v_add_u32 v{YD0}, v{YD0}, v239"),
              o(f"v_sub_u32 v{YM0}, 2048, v238"), o(f"v_mul_u32_u24 v{YM0}, {YP}, v{YM0}"), o(f"v_add_u32 v{YM0}, v{YM0}, v239"),
              G([o(f"v_cmp_eq_u32 vcc, 0, v238"), o(f"v_mov_b32 v238, {OOB:#x}"), o("v_nop"), o(f"v_cndmask_b32 v{YM0}, v{YM0}, v238, vcc")]),
              o(f"v_and_b32 v238, 7, v0"), o(f"v_lshrrev_b32 v239, 3, v0"), o(f"v_add_u32 v239, 8, v239"), o(f"v_min_u32 v239, 9, v239"),
              o(f"v_mul_u32_u24 v{A1}, 192, v238"), o(f"v_lshlrev_b32 v239, 4, v239"), o(f"v_add_u32 v{A1}, v{A1}, v239"), o(f"v_add_u32 v{A1}, s{T3}, v{A1}"),
              o(f"v_add_u32 v238, s{T4}, v238"), o(f"v_add_u32 v239, s{T5}, v239"),
              o(f"v_mul_u32_u24 v{YD1}, {YP}, v238"), o(f"v_add_u32 v{YD1}, v{YD1}, v239"),
              o(f"v_sub_u32 v{YM1}, 2048, v238"), o(f"v_mul_u32_u24 v{YM1}, {YP}, v{YM1}"), o(f"v_add_u32 v{YM1}, v{YM1}, v239"),
              G([o(f"v_cmp_eq_u32 vcc, 0, v238"), o(f"v_mov_b32 v238, {OOB:#x}"), o("v_nop"), o(f"v_cndmask_b32 v{YM1}, v{YM1}, v238, vcc")]),
              G([o(f"s_cmp_eq_u32 s{T5}, {7*144}"), o(f"s_cselect_b32 s{T5}, 16, 8")]),
              G([o(f"v_cmp_gt_u32 vcc, s{T5}, v0"), o("v_nop"), o("v_nop"), o(f"v_cndmask_b32 v{YD1}, v238, v{YD1}, vcc"), o(f"v_cndmask_b32 v{YM1}, v238, v{YM1}, vcc")]),
              o(f"s_mov_b32 s{T4}, {WS_YH}"),
              o(f"v_lshlrev_b32 v238, 2, v0"), o(f"v_add_u32 v238, {N1A}, v238"),
              o(f"v_add_u32 v243, {W3D + 3*12288}, v{A0}"), o(f"v_add_u32 v244, {W3D + 3*12288}, v{A1}")]
        e = sl.stream(ad, a0 + 2, b1)
        assert self.opts.get('sseq') or e <= b1 + 6
        def rds(R, A, tag):
            A3 = 243 if A == A0 else 244
            return [ds(f"ds_read_b128 v[{R + 16*pq + 4*ww}:{R + 16*pq + 4*ww + 3}], v{A if ww < 3 else A3} offset:{(ww*12288 if ww < 3 else 0) + pq*6144}", tag) for pq in range(2) for ww in range(4)]
        N1 = 216
        n1r = [ds(f"ds_read_b32 v{N1+4*ss+ww}, v238 offset:{ww*768 + ss*256}", "sred_n") for ss in range(3) for ww in range(4)]
        e = sl.stream(rds(R0, A0, "sr0") + rds(R1, A1, "sr1") + n1r, max(e, b1) + 1, max(e, b1) + 12)
        b2 = e + 3
        sl.put(b2, [wlg("sred_n"), o("s_barrier")])
        self.b2 = b2
        def fin(R, YD, YM):
            out = []
            for pq in range(2):
                b_ = R + 16*pq
                for k in range(4):
                    out += [o(f"v_add_f32 v{b_+k}, v{b_+k}, v{b_+4+k}"), o(f"v_add_f32 v{b_+8+k}, v{b_+8+k}, v{b_+12+k}"), o(f"v_add_f32 v{b_+k}, v{b_+k}, v{b_+8+k}")]
            for k in range(4):
                out += [o(f"v_sub_f32 v{R+4+k}, v{R+k}, v{R+16+k}"), o(f"v_add_f32 v{R+8+k}, v{R+k}, v{R+16+k}")]
            out += [vm(f"buffer_store_dwordx4 v[{R+4}:{R+7}], v{YD}, s[{SR_WS}:{SR_WS+3}], s{T4} offen sc1", "yst"),
                    vm(f"buffer_store_dwordx4 v[{R+8}:{R+11}], v{YM}, s[{SR_WS}:{SR_WS+3}], s{T4} offen sc1", "yst")]
            return out
        n1 = []
        for ss in range(3):
            b_ = N1 + 4*ss
            n1 += [o(f"v_add_f32 v{b_}, v{b_}, v{b_+1}"), o(f"v_add_f32 v{b_+2}, v{b_+2}, v{b_+3}"), o(f"v_add_f32 v{b_}, v{b_}, v{b_+2}")]
        n1 += [G([o(f"s_or_b32 s{T3}, s{S_TAU}, s{S_W}"), o(f"s_cmp_eq_u32 s{T3}, 0"), o(f"s_cselect_b32 s{T3}, 16, 0")]),
               G([o(f"v_cmp_gt_u32 vcc, s{T3}, v0"), o(f"v_mov_b32 v238, {1024*YP}"), o(f"v_mov_b32 v239, {OOB:#x}"), o(f"v_cndmask_b32 v238, v239, v238, vcc")])]
        for ss in range(3):
            n1 += [o(f"v_add_u32 v{N1+4*ss+1}, v238, v{V_YC[ss]}")]
        n1 += [vm(f"buffer_store_dword v{N1+4*ss}, v{N1+4*ss+1}, s[{SR_WS}:{SR_WS+3}], s{T4} offen sc1", "yst") for ss in range(3)]
        e = sl.stream(fin(R1, YD1, YM1) + fin(R0, YD0, YM0), b2 + 1, P2_0 + 66, spill=3)
        assert e < P2_0 + 72, e
        e = sl.stream(n1, e + 1, e + 16)
        assert e < P2_0 + 100, e
        if self.opts.get("sseq"):
            sl = real_sl
            M[P2_0].setdefault("before", []).extend([o("s_nop 7")] + sq.L)
            b2 = P2_0 - 1; self.b2 = b2
        gpar = fu[("s2", (0, "par"))]
        PF2 = 231
        sl.put(660, [G([o(f"s_xor_b32 s{T0}, s{S_LID}, 1"), o(f"s_lshl_b32 s{T1}, s{T0}, 7"), o(f"s_add_u32 s{T1}, s{T1}, {WS_FLAG}")])])
        sl.put(661, [G([o(f"s_lshl_b32 s{T0}, s{T0}, 2"), o(f"s_add_u32 s{T0}, s{T0}, s{S_W}"), o(f"s_mul_i32 s{T0}, s{T0}, {18*1024}")]), o(f"s_add_u32 s{T0}, s{T0}, {WS_HX}")])
        pl = f"buffer_load_dword v242, off, s[{SR_WS}:{SR_WS+3}], s{T1} sc1"
        def hload(k, n, t, tag):
            sl.put(t, [o(f"s_add_u32 s{T6}, s{T0}, {k*1024}")])
            sl.put(t + 1, self.dload([f"buffer_load_dwordx4 a[{AZ+4*(k+q)}:{AZ+4*(k+q)+3}], v{V_L16}, s[{SR_WS}:{SR_WS+3}], s{T6} offen offset:{q*1024}" for q in range(n)], tag, True))
        if self.opts.get("onepoll"):
            tq = P2_0 + self.opts.get("tq", 4)
            sl.put(tq, [vm(pl, "hpoll2")])
            sl.put(tq + 10, [wvm("hpoll2")])
            sl.put(tq + 11, [o(f"v_readfirstlane_b32 s{T2}, v242")])
            M[tq + 14].setdefault("before", []).extend(
                [o(f"s_cmp_ge_u32 s{T2}, 2"), o("s_cbranch_scc1 L_hp_ok")] +
                self.spin("L_hp", [o(pl)], [o(f"v_readfirstlane_b32 s{T2}, v242"), o("s_nop 3"), o(f"s_cmp_ge_u32 s{T2}, 2")]))
            for i in range(9):
                hload(2*i, 2, tq + 15 + self.opts.get("hstep", 9)*i, ("hp", i))
        else:
            h1 = self.opts.get("h1", P2_0 - 12)
            sl.put(h1, [vm(pl, "hpoll1")])
            sl.put(h1 + 12, [wvm("hpoll1")])
            sl.put(h1 + 13, [o(f"v_readfirstlane_b32 s{T2}, v242")])
            M[h1 + 16].setdefault("before", []).extend(
                [o(f"s_cmp_ge_u32 s{T2}, 1"), o("s_cbranch_scc1 L_hq_ok")] +
                self.spin("L_hq", [o(pl)], [o(f"v_readfirstlane_b32 s{T2}, v242"), o("s_nop 3"), o(f"s_cmp_ge_u32 s{T2}, 1")]))
            def hload(k, n, t, tag):
                sl.put(t, [o(f"s_add_u32 s{T6}, s{T0}, {k*1024}")])
                sl.put(t + 1, self.dload([f"buffer_load_dwordx4 a[{AZ+4*(k+q)}:{AZ+4*(k+q)+3}], v{V_L16}, s[{SR_WS}:{SR_WS+3}], s{T6} offen offset:{q*1024}" for q in range(n)], tag, True))
            for i in range(6):
                hload(2*i, 2, h1 + 17 + 9*i, ("hp", i))
            tp = P2_0 + self.opts.get("tp2", 74)
            assert tp - 13 > h1 + 17 + 9*5 + 1
            sl.put(tp - 13, [vm(pl, "hpoll2")])
            sl.put(tp - 2, [wvm("hpoll2")])
            sl.put(tp - 1, [o(f"v_readfirstlane_b32 s{T2}, v242")])
            M[tp + 2].setdefault("before", []).extend(
                [o(f"s_cmp_ge_u32 s{T2}, 2"), o("s_cbranch_scc1 L_hp_ok")] +
                self.spin("L_hp", [o(pl)], [o(f"v_readfirstlane_b32 s{T2}, v242"), o("s_nop 3"), o(f"s_cmp_ge_u32 s{T2}, 2")]))
            for i in range(3):
                hload(12 + 2*i, 2, tp + 4 + 6*i, ("hp", 6 + i))

        sl.put(gpar - 2, [wvm(("hp", 5))])
        off = 24 if self.opts.get("klate", 1) else 12
        for i in range(3):
            sl.put(gpar + off + 2*i - 2, [wvm(("hp", 6 + i))])
        for i in range(3, 9):
            st = stages[i]; slot = slot_of[st]
            prev = [j for j in range(i) if slot_of[stages[j]] == slot]
            if prev:
                t = lu[("s2", stages[prev[-1]])]; fbar(t); start = t + 1
            else:
                start = b2 + 1
            grps = self.dma_p2(st, slot, False, 250, 251, 0)
            if st[0] == 4:
                grps = [[o(f"s_and_b32 s{S_C}, s{S_W}, 1"), o(f"s_mul_i32 s{S_C}, s{S_C}, {16*1152}")]] + grps
                place(grps, start, 1)
            else:
                place(grps, start, 2)
        s4 = slot_of[(4, "both")]
        ins = [o("v_lshrrev_b32 v250, 5, v0"), o("v_lshlrev_b32 v250, 8, v250"),
               o("v_bfe_u32 v251, v0, 2, 2"), o("v_lshlrev_b32 v251, 6, v251"), o("v_add_u32 v250, v250, v251"),
               o("v_bfe_u32 v251, v0, 4, 1"), o("v_lshlrev_b32 v251, 5, v251"), o("v_add_u32 v250, v250, v251"),
               o("v_and_b32 v251, 3, v0"), o("v_lshlrev_b32 v251, 3, v251"), o("v_add_u32 v250, v250, v251"),
               o(f"v_add_u32 v{V_R8}, {s4*SLOT}, v250")]
        sl.stream(ins, P2_0 + 150, P2_0 + 175)
        self.pipe_reduce(sl, M, fu, lu, P2_0, N)
        for (u, half), tl in sorted(tile_last.items(), key=lambda x: x[1]):
            acc = ACC[u][half]
            par = half
            t = TMP + 8*par
            st = S_ST0 + par
            ins = [o(f"v_cvt_pk_bf16_f32 v{t+i}, v{acc+2*i}, v{acc+2*i+1}") for i in range(8)]
            if u == 3 and half == 1: continue
            if u < 3: ins += [o(f"s_add_u32 s{st}, s{S_QU[u]}, {half*2048}")]
            elif u == 3: ins += [o(f"s_mov_b32 s{st}, s{S_QN}")]
            else: ins += [o(f"s_mov_b32 s{st}, s{S_Q8}")]
            ins += self.dstore([f"buffer_store_dwordx4 v[{t}:{t+3}], v{V_L16}, s[{SR_WS}:{SR_WS+3}], s{st} offen",
                                f"buffer_store_dwordx4 v[{t+4}:{t+7}], v{V_L16}, s[{SR_WS}:{SR_WS+3}], s{st} offen offset:1024"], ("pst", u))
            s0 = tl + 4
            if s0 + 10 <= N: sl.stream(ins, s0, s0 + 10)
            else: self.tail2 = [o("s_nop 15")] + ins

    def item_setup(self, kind, R, srd=None, split=False):
        t0, t1, t2, t3 = R["t"]
        sQ, sH, sB, sT = T2, T3, T4, T5
        L = []
        LD = []
        SW = SR_WS if srd is None else srd
        if kind == "A":
            L += [G([o(f"s_lshl_b32 s{sT}, s{S_J}, 2"), o(f"s_add_u32 s{sT}, s{sT}, s{S_W}"), o(f"s_lshr_b32 s{sQ}, s{sT}, 3")]),
                  G([o(f"s_cmp_lt_u32 s{sQ}, 4"), o(f"s_cselect_b32 s{sH}, 0, 6"), o(f"s_add_u32 s{sQ}, s{sQ}, s{sH}")])]
        elif kind in "BC":
            lo, hi = (4, 12) if kind == "B" else (6, 14)
            L += [G([o(f"s_lshl_b32 s{sT}, s{S_J}, 1"), o(f"s_lshr_b32 s{sH}, s{S_W}, 1"), o(f"s_add_u32 s{sT}, s{sT}, s{sH}")]),
                  G([o(f"s_lshr_b32 s{sQ}, s{sT}, 3"), o(f"s_cmp_lt_u32 s{sQ}, 2"), o(f"s_cselect_b32 s{sH}, {lo}, {hi}")]),
                  o(f"s_add_u32 s{sQ}, s{sQ}, s{sH}")]
        else:
            L += [G([o(f"s_lshr_b32 s{sT}, s{S_J}, 1"), o(f"s_and_b32 s{sQ}, s{S_J}, 1"), o(f"s_add_u32 s{sQ}, s{sQ}, 8")])]
        L += [G([o(f"s_and_b32 s{sH}, s{sT}, 1"), o(f"s_bfe_u32 s{sB}, s{sT}, 0x20001"), o(f"s_lshl_b32 s{sT}, s{S_MT}, 2")]),
              o(f"s_add_u32 s{sB}, s{sB}, s{sT}"),
              G([o(f"s_mul_i32 s{sT}, s{sB}, 18"), o(f"s_add_u32 s{sT}, s{sT}, s{sQ}"), o(f"s_lshl_b32 s{sT}, s{sT}, 1")]),
              G([o(f"s_add_u32 s{sT}, s{sT}, s{sH}"), o(f"s_lshl_b32 s{sT}, s{sT}, 10")])]
        so = R["so"]
        for p in range(8): L += [o(f"s_add_u32 s{so+p}, s{sT}, {p*PART_BYTES}")]
        if kind == "A":
            L += [o(f"v_mov_b32 v{t3}, 0")]
        elif kind in "BC":
            L += [o(f"s_and_b32 s{sT}, s{S_W}, 1"), o(f"v_bfe_u32 v{t0}, v0, 4, 1"), o(f"v_mov_b32 v{t1}, {OOB:#x}"), o(f"v_mov_b32 v{t3}, 0"),
                  G([o(f"v_cmp_eq_u32 vcc, s{sT}, v{t0}"), o("v_nop"), o("v_nop"), o(f"v_cndmask_b32 v{t3}, v{t1}, v{t3}, vcc")])]
        else:
            L += [o(f"v_bfe_u32 v{t0}, v0, 3, 2"), o(f"v_mov_b32 v{t1}, {OOB:#x}"), o(f"v_mov_b32 v{t3}, 0"),
                  G([o(f"v_cmp_eq_u32 vcc, s{S_W}, v{t0}"), o("v_nop"), o("v_nop"), o(f"v_cndmask_b32 v{t3}, v{t1}, v{t3}, vcc")])]
        PV = R["PV"]
        L += [o(f"v_add_u32 v{PV}, v{t3}, v{V_L16}")]
        pk, pb = R["P"]
        ldp = [vm(f"buffer_load_dwordx4 {pk}[{pb+4*p}:{pb+4*p+3}], v{PV}, s[{SW}:{SW+3}], s{so+p} offen sc1", ("it", kind)) for p in range(8)]
        if split: LD += ldp
        else: L += ldp
        X, Y, OA = R["X"], R["Y"], R["OA"]
        L += [o(f"s_lshl_b32 s{sT}, s{sB}, 4"), o(f"v_and_b32 v{t0}, 15, v0"), o(f"v_add_u32 v{t0}, s{sT}, v{t0}"),
              o(f"v_sub_u32 v{t1}, 2048, v{t0}"), o(f"v_mov_b32 v{t2}, 1024"), o(f"v_mov_b32 v{OA}, 0"),
              G([o(f"v_cmp_eq_u32 vcc, 0, v{t0}"), o("v_nop"), o("v_nop"), o(f"v_cndmask_b32 v{X}, v{t1}, v{t2}, vcc"),
                 o(f"v_cndmask_b32 v{t1}, v{t1}, v{OA}, vcc"), o(f"v_cndmask_b32 v{t2}, v{t0}, v{t2}, vcc")]),
              o(f"v_and_b32 v{OA}, 16, v0"),
              G([o(f"v_cmp_eq_u32 vcc, 0, v{OA}"), o("v_nop"), o("v_nop"), o(f"v_cndmask_b32 v{t0}, v{X}, v{t0}, vcc"), o(f"v_cndmask_b32 v{t1}, v{t2}, v{t1}, vcc")]),
              G([o(f"s_lshl_b32 s{sT}, s{sQ}, 6"), o(f"s_lshl_b32 s{sB}, s{sH}, 5"), o(f"s_add_u32 s{sT}, s{sT}, s{sB}")]),
              o(f"v_mul_u32_u24 v{t2}, 1152, v{t0}"), o(f"v_add_u32 v{t2}, s{sT}, v{t2}"), o(f"v_add_u32 v{t2}, v{t2}, v{t3}"),
              o(f"v_lshrrev_b32 v{X}, 5, v0"), o(f"v_lshlrev_b32 v{OA}, 4, v{X}"), o(f"v_add_u32 v{OA}, v{t2}, v{OA}"),
              o(f"v_lshlrev_b32 v{X}, 3, v{X}"), o(f"v_add_u32 v{t2}, v{t2}, v{X}"),
              vm(f"buffer_load_dwordx2 v[{X}:{X+1}], v{t2}, s[{SR_X}:{SR_X+3}], 0 offen", ("it", kind)),
              vm(f"buffer_load_dwordx2 v[{X+2}:{X+3}], v{t2}, s[{SR_X}:{SR_X+3}], 0 offen offset:16", ("it", kind)),
              G([o(f"s_lshl_b32 s{sT}, s{sT}, 1"), o(f"s_cmp_lt_u32 s{sQ}, 9"), o(f"s_cselect_b32 s{R['rev']}, 0, 1")]),
              G([o(f"s_sub_u32 s{sB}, 2292, s{sT}"), o(f"s_cmp_lt_u32 s{sQ}, 9"), o(f"s_cselect_b32 s{sT}, s{sT}, s{sB}"), o(f"s_cselect_b32 s{sB}, 1, -1")]),
              G([o(f"v_cmp_eq_u32 vcc, 1, v{PV}") if False else o(f"v_mov_b32 v{t2}, s{R['rev']}"), o(f"v_cmp_eq_u32 vcc, 1, v{t2}"), o("v_nop"), o("v_nop"),
                 o(f"v_cndmask_b32 v{t0}, v{t0}, v{t1}, vcc")]),
              o(f"v_mul_u32_u24 v{t0}, {YP}, v{t0}"), o(f"v_add_u32 v{t0}, s{sT}, v{t0}"), o(f"v_add_u32 v{t0}, v{t0}, v{t3}"),
              o(f"v_lshrrev_b32 v{t1}, 5, v0"), o(f"v_lshlrev_b32 v{t1}, 4, v{t1}"), o(f"v_mul_lo_u32 v{t1}, v{t1}, s{sB}"),
              o(f"v_add_u32 v{t0}, v{t0}, v{t1}"),
              o(f"s_lshl_b32 s{sB}, s{sB}, 5"), o(f"v_add_u32 v{t1}, s{sB}, v{t0}"), o(f"v_add_u32 v{t0}, {WS_YH}, v{t0}"), o(f"v_add_u32 v{t1}, {WS_YH}, v{t1}")]
        ldy = [vm(f"buffer_load_dwordx4 v[{Y}:{Y+3}], v{t0}, s[{SW}:{SW+3}], 0 offen sc1", ("it", kind)),
               vm(f"buffer_load_dwordx4 v[{Y+4}:{Y+7}], v{t1}, s[{SW}:{SW+3}], 0 offen sc1", ("it", kind))]
        if split:
            LD += ldy
            return L, LD
        return L + ldy

    def item_finish(self, kind, R):
        X, Y, OA = R["X"], R["Y"], R["OA"]
        t0, t1, t2, t3 = R["t"]
        pk, pb = R["P"]
        L = [wvm(("it", kind)),
             o(f"s_cmp_eq_u32 s{R['rev']}, 0"), o(f"s_cbranch_scc1 L_rv{kind}"),
             o(f"v_swap_b32 v{Y}, v{Y+3}"), o(f"v_swap_b32 v{Y+1}, v{Y+2}"), o(f"v_swap_b32 v{Y+4}, v{Y+7}"), o(f"v_swap_b32 v{Y+5}, v{Y+6}"),
             raw(f"L_rv{kind}:"),
             o(f"s_mov_b32 s{T0}, 0x3f80"), o(f"s_mov_b32 s{T1}, 0x3f800000")]
        for i in range(4):
            L += [o(f"v_dot2_f32_bf16 v{Y+2*i}, v{X+i}, s{T0}, v{Y+2*i}"), o(f"v_dot2_f32_bf16 v{Y+2*i+1}, v{X+i}, s{T1}, v{Y+2*i+1}")]
        for p in range(8):
            for i in range(4):
                r = pb + 4*p + i
                if pk == "a":
                    L += [o(f"v_accvgpr_read_b32 v{t0 + (i & 1)}, a{r}")]
                    src = t0 + (i & 1)
                else: src = r
                L += [o(f"v_dot2_f32_bf16 v{Y+2*i}, v{src}, s{T0}, v{Y+2*i}"), o(f"v_dot2_f32_bf16 v{Y+2*i+1}, v{src}, s{T1}, v{Y+2*i+1}")]
        L += [o("s_nop 2")]
        for i in range(4):
            L += [o(f"v_cvt_pk_bf16_f32 v{X+i}, v{Y+2*i}, v{Y+2*i+1}")]
        L += [o("s_nop 1"), o(f"v_permlane32_swap_b32 v{X}, v{X+2}"), o(f"v_permlane32_swap_b32 v{X+1}, v{X+3}"),
              vm(f"buffer_store_dwordx4 v[{X}:{X+3}], v{OA}, s[{SR_OUT}:{SR_OUT+3}], 0 offen{self.osfx}", "out")]
        return L

    def group_poll(self, label, val, vdst, voff):
        ld = f"buffer_load_dword v{vdst}, v{voff}, s[{SR_WS}:{SR_WS+3}], s{T6} offen sc1"
        chk = [o(f"v_cmp_le_u32 vcc, {val}, v{vdst}"), o("s_nop 0"), o(f"s_and_b32 s{T7}, vcc_lo, 0xff"), o(f"s_cmp_eq_u32 s{T7}, 0xff")]
        return ld, chk

    def items_cfg(self):
        self.RA = dict(P=("v", 80), X=112, Y=116, OA=124, PV=125, t=[126, 127, 16, 17], rev=24, so=16)
        self.RB = dict(P=("a", 0), X=18, Y=22, OA=30, PV=31, t=[48, 49, 50, 51], rev=25, so=16)
        self.RC = dict(P=("v", 176), X=208, Y=212, OA=220, PV=221, t=[222, 223, 224, 225], rev=26, so=16)
        self.RD = dict(P=("v", 128), X=160, Y=164, OA=172, PV=173, t=[174, 175, 226, 227], rev=27, so=84)

    def tail(self):
        L = list(self.late_loads)
        O = 128
        ld, chk = self.group_poll("L_f5", 5, 241, 242)
        L += [vm(ld, "fp5")]
        L += self.stamp("pub")
        RD = self.RDx; Ld = self.D_ld
        L += [wvm("op"), wvm("ox"), o(f"s_mov_b32 s{T0}, 0x3f80"), o(f"s_mov_b32 s{T1}, 0x3f800000"),
              o("s_cmp_eq_u32 s24, 0"), o("s_cbranch_scc1 L_oyd")]
        for g_ in range(4):
            for k in range(4): L += [o(f"v_add_f32 v{O+4*g_+k}, v{O+4*g_+k}, v{48 + 4*(3-g_) + 3 - k}")]
        L += [o("s_branch L_oyj"), raw("L_oyd:")]
        for r in range(16): L += [o(f"v_add_f32 v{O+r}, v{O+r}, v{48+r}")]
        L += [raw("L_oyj:")]
        for i in range(8):
            L += [o(f"v_dot2_f32_bf16 v{O+2*i}, v{24+i}, s{T0}, v{O+2*i}"), o(f"v_dot2_f32_bf16 v{O+2*i+1}, v{24+i}, s{T1}, v{O+2*i+1}")]
        for p in range(6):
            for i in range(8):
                L += [o(f"v_dot2_f32_bf16 v{O+2*i}, v{80+8*p+i}, s{T0}, v{O+2*i}"), o(f"v_dot2_f32_bf16 v{O+2*i+1}, v{80+8*p+i}, s{T1}, v{O+2*i+1}")]
        L += self.stamp("early")
        L += [wvm("fp5")] + chk + [o("s_cbranch_scc1 L_f5_ok")] + self.spin("L_f5", [o(ld)], chk) + [reset()]
        L += self.stamp("pok")
        L += [vm(f"buffer_load_dwordx4 v[16:19], v{V_L16}, s[{SR_WS}:{SR_WS+3}], s22 offen sc1", "sib"),
              vm(f"buffer_load_dwordx4 v[20:23], v{V_L16}, s[{SR_WS}:{SR_WS+3}], s22 offen offset:1024 sc1", "sib")]
        L += Ld
        L += [wvm("sib")]
        for i in range(8):
            L += [o(f"v_dot2_f32_bf16 v{O+2*i}, v{16+i}, s{T0}, v{O+2*i}"), o(f"v_dot2_f32_bf16 v{O+2*i+1}, v{16+i}, s{T1}, v{O+2*i+1}")]
        L += [o("s_nop 2")]
        for i in range(8): L += [o(f"v_cvt_pk_bf16_f32 v{24+i}, v{O+2*i}, v{O+2*i+1}")]
        L += [o("s_nop 1"), o("v_permlane32_swap_b32 v24, v26"), o("v_permlane32_swap_b32 v25, v27"),
              o("v_permlane32_swap_b32 v28, v30"), o("v_permlane32_swap_b32 v29, v31"),
              vm(f"buffer_store_dwordx4 v[24:27], v238, s[{SR_OUT}:{SR_OUT+3}], 0 offen{self.osfx}", "out"),
              vm(f"buffer_store_dwordx4 v[28:31], v238, s[{SR_OUT}:{SR_OUT+3}], 0 offen offset:32{self.osfx}", "out")]
        L += self.stamp("ownfin")
        L += self.item_finish("D", RD)
        return L

    def kernel(self, name):
        L = [raw(f".globl {name}"), raw(".p2align 8"), raw(f".type {name},@function"), raw(f"{name}:")]
        L += self.prologue()
        L += self.stamp("proend")
        L += self.ln_stats()
        L += self.stamp("stats")
        L += [o("s_barrier")]
        L += [o(f"s_mov_b32 s{S_A}, s{S_J}"), o(f"s_add_u32 s{S_B}, s{S_J}, 16")]
        L += self.h_dma(S_A, 2, "wz1")
        L += [o(f"s_cmp_lt_u32 s{S_J}, 2"), o("s_cbranch_scc0 L_noz2a")]
        L += [I(i.t, "o") if i.k == "vm" else i for i in self.h_dma(S_B, 3, "wz2")]
        L += [raw("L_noz2a:")]
        hd = []
        for sig in range(2):
            for grp in self.dma_p1(sig, sig): hd.append(grp)
        if self.opts.get("lbulk"):
            hd.append([o(f"s_lshl_b32 s{S_PF}, s{S_MT}, 2"), o(f"s_add_u32 s{S_PF}, s{S_PF}, s{S_W}"), o(f"s_mul_i32 s{S_PF}, s{S_PF}, 45"),
                   o(f"v_add_u32 v240, s{S_PF}, v0"), o(f"s_mov_b32 s{S_PF}, {(2**32+4)//5}"), o(f"v_mul_hi_u32 v241, v240, s{S_PF}"),
                   o("v_mul_u32_u24 v242, 5, v241"), o("v_sub_u32 v242, v240, v242"), o("v_lshlrev_b32 v242, 7, v242"),
                   o("v_mul_u32_u24 v241, 9216, v241"), o("v_add_u32 v240, v241, v242"),
                   o(f"s_mul_i32 s{S_PF}, s{S_J}, 576"), o(f"s_and_b32 s{S_PF}, s{S_PF}, 0xffffff80"),
                   o("v_cmp_gt_u32 vcc, 45, v0"), o("s_nop 1"), o(f"v_cndmask_b32 v240, v{V_ONE0}, v240, vcc"),
                   vm(f"buffer_load_dword v{V_PF}, v240, s[{SR_WG}:{SR_WG+3}], s{S_PF} offen", "pf"),
                   vm(f"buffer_load_dword v{V_PF}, v240, s[{SR_WU}:{SR_WU+3}], s{S_PF} offen", "pf")])
        else:
            if not self.opts.get('bearly'): hd.append([o(f"s_lshl_b32 s{S_PF}, s{S_LID}, 2"), o(f"s_add_u32 s{S_PF}, s{S_PF}, s{S_W}"), o(f"s_mul_i32 s{S_PF}, s{S_PF}, 41"),
                       o(f"v_add_u32 v240, s{S_PF}, v0"), o("v_lshlrev_b32 v240, 7, v240"), o("v_cmp_gt_u32 vcc, 41, v0"), o("s_nop 1"),
                       o(f"v_cndmask_b32 v240, v{V_ONE0}, v240, vcc"),
                       vm(f"buffer_load_dword v{V_PF}, v240, s[{SR_WG}:{SR_WG+3}], 0 offen", "pf"),
                       vm(f"buffer_load_dword v{V_PF}, v240, s[{SR_WU}:{SR_WU+3}], 0 offen", "pf")])
        lf = self.ln_finish()
        per = -(-len(lf) // 18)
        k = 0
        for n, grp in enumerate(hd):
            L += grp
            if n < 18: L += lf[k:k + per]; k += per
        L += lf[k:]
        L += [o(f"v_subrev_u32 v{V_XA+i}, s{S_LX}, v{V_XA+i}") for i in range(4)]
        L += [o(f"v_add_u32 v{V_XA+i}, {2*SLOT}, v{V_XA+i}") for i in range(4)]
        L += self.stamp("lnfin")
        L += self.seg_norm_h()
        L += self.stamp("normH")
        L += self.h2_block()
        L += self.tr_bases()
        L += srd(SR_HZ, 36, 256)
        L += self.main()
        L += self.stamp("p2end")
        L += self.tail()
        L += self.stamp("end")
        if self.diag:
            L += [o("s_waitcnt vmcnt(0)"),
                  o(f"s_lshl_b32 s{T0}, s{S_LID}, 2"), o(f"s_add_u32 s{T0}, s{T0}, s{S_W}"), o(f"s_lshl_b32 s{T0}, s{T0}, 8"),
                  o(f"s_add_u32 s{T0}, s{T0}, {WS_STAMP}"), o("v_lshlrev_b32 v240, 2, v0"),
                  o(f"buffer_store_dword v{V_STAMP}, v240, s[{SR_WS}:{SR_WS+3}], s{T0} offen")]
        if self.opts.get("hdiag") == 2:
            L += [o("s_waitcnt vmcnt(0)"), o(f"v_readlane_b32 s98, v{V_STAMP}, 32"), o("s_nop 3"),
                  o(f"v_subrev_u32 v240, s98, v{V_STAMP}"),
                  o("v_subrev_u32 v241, 32, v0"), o("v_lshlrev_b32 v241, 2, v241"),
                  o("v_cmp_le_u32 vcc, 32, v0"), o(f"v_mov_b32 v242, {OOB:#x}"), o("s_nop 0"), o("v_cndmask_b32 v241, v242, v241, vcc"),
                  o("v_cmp_gt_u32 vcc, 48, v0"), o("s_nop 1"), o("v_cndmask_b32 v241, v242, v241, vcc"),
                  o(f"s_cmp_eq_u32 s{S_W}, 0"), o("s_cbranch_scc0 L_end"),
                  o(f"buffer_atomic_u{'min' if self.opts.get('hmin') else 'max'} v240, v241, s[{SR_HZ}:{SR_HZ+3}], 0 offen sc1")]
        elif self.opts.get("hdiag"):
            L += [o("s_waitcnt vmcnt(0)"), o("s_memrealtime s[100:101]"), o("s_waitcnt lgkmcnt(0)"),
                  o("s_sub_u32 s97, s100, s98"), o("s_not_b32 s98, s98"),
                  o("v_mov_b32 v240, s100"), o("v_mov_b32 v241, s98"), o("v_mov_b32 v242, s97"),
                  o(f"buffer_atomic_umax v240, v{V_ONE0}, s[{SR_HZ}:{SR_HZ+3}], 0 offen sc1"),
                  o(f"buffer_atomic_umax v241, v{V_ONE0}, s[{SR_HZ}:{SR_HZ+3}], 0 offen offset:4 sc1"),
                  o(f"buffer_atomic_umax v242, v{V_ONE0}, s[{SR_HZ}:{SR_HZ+3}], 0 offen offset:8 sc1")]
            for i, r in enumerate(self.hd_regs):
                pass
        L += [raw("L_end:"), o("s_endpgm")]
        return finalize(flat(L))

NAME = "parallel_sum__spectral_fnet__geglu_ffn__prompt_kernel"
def build(diag=False, opts=None):
    hdr = open("parallel_sum__spectral_fnet__geglu_ffn__prompt.s.ref").read().split("\n")
    top = [l for l in hdr if l.startswith(";") and "@launch" not in l and "Override" not in l and "grid=ceil" not in l]
    g = Gen(diag, opts)
    lines = g.kernel(NAME)
    errs = hazard_check(lines)
    for e in errs[:30]: print("HAZARD:", e)
    txt = "\n".join(top) + "\n"
    txt += "; @launch grid=(256,1,1) block=(256,1,1) lds=163840\n"
    txt += '.amdgcn_target "amdgcn-amd-amdhsa--gfx950"\n.text\n'
    txt += "\n".join(lines) + "\n" + kernel_footer(NAME)
    return txt, g.names

if __name__ == "__main__":
    import sys, json
    opts = {}
    for a in sys.argv[2:]:
        if "=" in a:
            k, v = a.split("="); opts[k] = int(v)
    txt, names = build("diag" in sys.argv, opts)
    open(sys.argv[1], "w").write(txt)
    json.dump(names, open(sys.argv[1] + ".names", "w"))
```

```python
from fw import *
from sched import *
import math, struct

S, D, F = 2048, 576, 4608
SLOT = 36864
SPARE = 4*SLOT
PART_BYTES = S * D * 2
WS_PART = 0
WS_HX = 20 << 20
WS_ZF = 40 << 20
ZF_STRIDE = 34 * 1024
ZF_TYPE = 18 * ZF_STRIDE
WS_YH = 42 << 20
YP = 320 * 4
WS_FLAG = 46 << 20
WS_STAMP = 48 << 20
OOB = 0x40000000
C0 = -2.0 * math.sqrt(2.0 / math.pi) * math.log2(math.e)
C1 = C0 * 0.044715
def f2u(f): return struct.unpack("<I", struct.pack("<f", f))[0]

V_L16 = 1
V_RA, V_RB = 2, 6
V_DM = 10
V_C0, V_C1 = 14, 15
GA = [[16, 32], [48, 64]]
UA = [[80, 96], [112, 128]]
HF = 144
TMP = 216
V_HACC = 232
V_XA = 248
V_R8 = 248
V_PF = 252
V_ONE0 = 253
V_D2 = 254
V_STAMP = 255
RX = 80
V_PERM = 224
V_NEGMU = 64
V_ONE = 231
V_SD = 232
V_SA = 236
V_SX = 240
V_SE = 228
V_ZP = 241
V_ZQ = 244
V_YC = [247, 250, 251]
V_LB = 232
AX = 0
AF = 144
NAF = 8
AZ = 176
HPB = 8
SR_CS, SR_SS, SR_HZ, SR_X, SR_WG, SR_WU, SR_WD, SR_WS, SR_OUT = 4, 8, 12, 40, 44, 48, 52, 56, 60
S_W, S_MT, S_J = 64, 65, 66
S_LX, S_L9 = 67, 68
S_UB = 69
S_WD = 74
S_PB = 75
T0, T1, T2, T3, T4, T5, T6, T7 = 76, 77, 78, 79, 80, 81, 82, 83
S_N0 = 84
S_N1 = 16
S_CU = 25
S_Q0, S_Q8 = 30, 31
S_HB = 32
S_LID = 33
S_ST0, S_ST1 = 34, 35
S_CNT = 93
S_A, S_B, S_C = 94, 95, 96
S_TAU, S_ZB = 38, 39
S_PF = 97
S_XC = 0
S_QU = [30, 36, 37]
S_QN = 39
S_TO = 32
S_GA = 28
S_FL = 1
S_MODE = 2
S_D0 = 3

def srd(dst, ptr, nbytes):
    return [o(f"s_mov_b32 s{dst}, s{ptr}"), o(f"s_and_b32 s{dst+1}, s{ptr+1}, 0xffff"),
            o(f"s_mov_b32 s{dst+2}, {nbytes}"), o(f"s_mov_b32 s{dst+3}, 0x00020000")]
def mf32(acc, A, B, C): return o(f"v_mfma_f32_32x32x16_bf16 {acc}, {A}, {B}, {C}")
def mf16(acc, A, B, C): return o(f"v_mfma_f32_16x16x32_bf16 {acc}, {A}, {B}, {C}")

class DS2(I):
    pass

class Gen:
    def dload(self, texts, tag, pair=False):
        out = self.dstore(texts, tag, pair)
        if hasattr(out[0], "cost"): out[0].cost = 3 + len(texts)
        return out
    def dstore(self, texts, tag, pair=False):
        self.lab = getattr(self, "lab", 0) + 1
        n = self.lab
        if self.opts.get("forcemode") == 1 or not self.opts.get("local", 0) or (self.opts.get("cfg", 0) == 0 and not pair):
            return [vm(t + " sc1", tag) for t in texts]
        body = f"s_bitcmp1_b32 s{S_MODE}, 0\n    s_cbranch_scc1 L_dl{n}\n"
        body += "".join(f"    {t} sc1\n" for t in texts)
        body += f"    s_branch L_dj{n}\nL_dl{n}:\n"
        body += "".join(f"    {t}\n" for t in texts)
        body += f"L_dj{n}:"
        out = [I("buffer_store_multi " + body, "vm", tag)]
        out[0].t = body
        out[0].cost = 3 + 5*len(texts)
        for _ in texts[1:]:
            x = I("; (counted above)", "vm", tag); x.cost = 0; out.append(x)
        return out
    def __init__(self, diag=False, opts=None):
        self.hd_regs = []
        self.osfx = ' sc1' if (opts or {}).get('osc1') else ''
        self.diag = diag; self.opts = opts or {}; self.nst = 0; self.names = []; self.pid = 0
    def stamp(self, name):
        if not self.diag: return []
        if self.opts.get("hdiag") == 2 and name in ("kernarg", "xiss", "proend", "lnfin", "pub", "early", "pok", "ownfin"): return []
        i = self.nst; self.nst += 1; self.names.append(name)
        return [o("s_memtime s[98:99]"), o("s_memrealtime s[100:101]"), o("s_waitcnt lgkmcnt(0)"),
                o(f"v_writelane_b32 v{V_STAMP}, s98, {i}"), o(f"v_writelane_b32 v{V_STAMP}, s100, {i+32}")]

    def paced(self, M, frags, setup, dist):
        N = len(M)
        sl = Slots(N)
        for g, m in enumerate(M):
            if m["op"] == 16: sl.budget[g] = 3
        head = []
        pid = self.pid; self.pid += 1
        def put(t, ins):
            if t < 0: head.extend(ins if isinstance(ins, list) else [ins])
            else: sl.put(t, ins)
        issue = {}
        for f, fr in enumerate(frags):
            t = fr["use"] - fr.get("dist", dist)
            issue[f] = t
            put(t, fr.get("pre", []))
            put(t, [ds(r, ("af", pid, f)) for r in fr["reads"]])
        waited = -1
        n0 = M[0]["need"]
        if n0 >= 0:
            tgt = max(n0, M[1]["need"])
            head.append(wlg(("af", pid, tgt))); waited = tgt
        for g in range(N - 1):
            nx = M[g+1]["need"]
            if nx > waited:
                tgt = nx
                if g + 2 < N and M[g+2]["need"] > nx and issue[M[g+2]["need"]] <= g - 3 and M[g+1]["op"] == 32: tgt = M[g+2]["need"]
                put(g, [wlg(("af", pid, tgt))]); waited = tgt
        setup(sl, head)
        L = list(head)
        for g, m in enumerate(M):
            L += m.get("before", [])
            c = "0" if m["first"] else m.get("C", m["acc"])
            if m.get("C") and m["first"]: c = m["C"]
            L.append((mf32 if m["op"] == 32 else mf16)(m["acc"], m["A"], m["B"], c))
            L += sl.emit(g)
        if self.opts.get("verbose"):
            over = [(g, sl.used[g], sl.budget[g]) for g in range(N) if sl.used[g] > sl.budget[g]]
            print(f"paced {pid}: N={N} over budget: {len(over)} total excess {sum(u-b for _,u,b in over)} avg used {sum(sl.used)/N:.2f}")
            if self.opts.get("verbose") > 1:
                for a in range(0, N, 36):
                    ex = sum(max(0, sl.used[g]-sl.budget[g]) for g in range(a, min(a+36, N)))
                    print(a, "used", sum(sl.used[a:a+36]), "budget", sum(sl.budget[a:a+36]), "excess", ex)
        return L

    def prologue(self):
        L = []
        if self.opts.get("hdiag"): L += [o("s_memrealtime s[98:99]")]
        if self.diag: L += [o(f"v_mov_b32 v{V_STAMP}, 0")]
        L += self.stamp("start")
        L += [o("s_load_dwordx16 s[16:31], s[0:1], 0"), o("s_load_dwordx8 s[32:39], s[0:1], 64"),
              o("s_cmp_ge_u32 s2, 256"), o("s_cbranch_scc1 L_end")]
        L += [o("v_lshrrev_b32 v2, 6, v0"), o("v_and_b32 v0, 63, v0"), o("s_nop 0"),
              o(f"v_readfirstlane_b32 s{S_W}, v2"),
              ] + self.idmap() + [
              o(f"s_mul_i32 s{S_LX}, s{S_W}, {SLOT}"), o(f"s_mul_i32 s{S_L9}, s{S_W}, 9216"),
              o(f"v_lshlrev_b32 v{V_L16}, 4, v0")]
        if self.opts.get("cpf", 1):
            L += [o("s_getpc_b64 s[82:83]"), raw("L_pc:"),
                  o(f"s_lshr_b32 s{T0}, s2, 3"), o(f"s_lshl_b32 s{T0}, s{T0}, 2"), o(f"s_add_u32 s{T0}, s{T0}, s{S_W}"),
                  o(f"s_lshl_b32 s{T0}, s{T0}, 9"),
                  o("v_and_b32 v2, 3, v0"), o("v_lshlrev_b32 v2, 7, v2"), o(f"v_add_u32 v2, s{T0}, v2"),
                  o("v_cmp_gt_u32 vcc, 4, v0"), o("s_and_saveexec_b64 s[80:81], vcc"),
                  vm(f"global_load_dword v{V_PF}, v2, s[82:83]", "pf"), o("s_mov_b64 exec, s[80:81]")]
        L += [o("v_lshrrev_b32 v2, 3, v0"), o("v_and_b32 v3, 7, v0"), o("v_lshrrev_b32 v4, 1, v2"),
              o("v_xor_b32 v3, v3, v4"), o("v_lshlrev_b32 v3, 4, v3"), o("v_xor_b32 v4, 64, v3"),
              o(f"s_lshl_b32 s{T0}, s{S_MT}, 5"), o(f"s_lshl_b32 s{T1}, s{S_W}, 3"), o(f"s_add_u32 s{T0}, s{T0}, s{T1}"),
              o(f"v_add_u32 v5, s{T0}, v2"),
              o("v_sub_u32 v6, 1024, v5"), o("v_add_u32 v7, 1024, v5"), o("v_sub_u32 v8, 2048, v5"),
              o("v_cmp_eq_u32 vcc, 0, v5"), o("v_mov_b32 v9, 512"), o("s_nop 0"),
              o("v_cndmask_b32 v7, v7, v9, vcc"), o("v_mov_b32 v9, 1536"), o("s_nop 0"), o("v_cndmask_b32 v8, v8, v9, vcc"),
              o(f"s_movk_i32 s{T1}, 1152"),
              o(f"v_mad_u32_u24 v240, v5, s{T1}, v3"), o(f"v_mad_u32_u24 v241, v6, s{T1}, v4"),
              o(f"v_mad_u32_u24 v242, v7, s{T1}, v3"), o(f"v_mad_u32_u24 v243, v8, s{T1}, v4")]
        if self.opts.get("xpf", 1) == 2:
            L += [o(f"s_lshl_b32 s{T0}, s{S_MT}, 4"), o(f"s_add_u32 s{T0}, s{T0}, s{S_J}"), o(f"s_lshl_b32 s{T0}, s{T0}, 2"), o(f"s_add_u32 s{T0}, s{T0}, s{S_W}"),
                  o(f"s_mul_i32 s{T0}, s{T0}, 18"), o(f"v_add_u32 v9, s{T0}, v0"), o("v_lshlrev_b32 v9, 7, v9"),
                  o("v_cmp_gt_u32 vcc, 18, v0"), o(f"v_mov_b32 v8, {OOB:#x}"), o("s_nop 0"), o("v_cndmask_b32 v9, v8, v9, vcc")]
        elif self.opts.get("xpf", 1):
            nsh = 16 if self.opts.get("cfg", 0) == 1 else 4
            per = 1152 // nsh // 4
            assert per <= 64 or True
            jj = f"s{S_J}"
            L += [o(f"s_and_b32 s{T0}, s{S_J}, {nsh-1}"), o(f"s_lshl_b32 s{T0}, s{T0}, 2"), o(f"s_add_u32 s{T0}, s{T0}, s{S_W}"), o(f"s_mul_i32 s{T0}, s{T0}, {per}"),
                  o(f"v_add_u32 v9, s{T0}, v0"),
                  o(f"s_mul_i32 s{T0}, s{S_MT}, {64*1152}"),
                  o(f"s_sub_u32 s{T1}, {(2048-63)*1152 - 576*128}, s{T0}"),
                  o("v_lshlrev_b32 v8, 7, v9"), o(f"v_add_u32 v7, s{T1}, v8"), o(f"v_add_u32 v8, s{T0}, v8"),
                  o("v_cmp_gt_u32 vcc, 0x240, v9"), o("s_nop 1"), o("v_cndmask_b32 v9, v7, v8, vcc"),
                  o(f"v_cmp_gt_u32 vcc, {min(per,64)}, v0"), o(f"v_mov_b32 v8, {OOB:#x}"), o("s_nop 0"), o("v_cndmask_b32 v9, v8, v9, vcc")]
        L += [o("s_waitcnt lgkmcnt(0)")]
        L += self.stamp("kernarg")
        L += srd(SR_X, 16, S*D*2)
        if self.opts.get("xpf", 1):
            L += [vm(f"buffer_load_dword v{V_PF}, v9, s[{SR_X}:{SR_X+3}], 0 offen", "pf")]
        HEAD = L
        P = []
        P += srd(SR_WG, 28, D*F*2) + srd(SR_WU, 30, D*F*2) + srd(SR_WD, 32, F*D*2) + srd(SR_WS, 38, 256 << 20) + srd(SR_OUT, 34, S*D*2)
        P += srd(SR_CS, 18, S*S*2) + srd(SR_SS, 20, S*S*2)
        P += [o(f"s_lshl_b32 s{T0}, s{S_W}, 6"), o(f"v_add_u32 v2, s{T0}, v0"), o("v_cmp_eq_u32 vcc, 0, v2"),
              o(f"v_mov_b32 v3, {OOB:#x}"), o("v_mov_b32 v4, 0"), o(f"v_cndmask_b32 v{V_ONE0}, v3, v4, vcc")]
        P += [o(f"s_lshl_b32 s{S_LID}, s{S_MT}, 4"), o(f"s_add_u32 s{S_LID}, s{S_LID}, s{S_J}")]
        P += [o(f"s_and_b32 s{T2}, s{S_J}, 1"), o(f"s_mul_i32 s{T0}, s{S_J}, 288"), o(f"s_mul_i32 s{T1}, s{T2}, 224"),
              o(f"s_add_u32 s{T1}, s{T0}, s{T1}"),
              G([o(f"s_cmp_eq_u32 s{T2}, 0"), o(f"s_cselect_b32 s{T3}, 64, -64"), o(f"s_cselect_b32 s{T4}, 256, 0")]),
              o(f"s_add_u32 s{T4}, s{T4}, s{T0}")]
        for u in range(4):
            P += [o(f"s_mul_i32 s{T5}, s{T3}, {u}"), o(f"s_add_u32 s{T5}, s{T5}, s{T1}"),
                  o(f"s_lshl_b32 s{S_UB+u}, s{T5}, 1"),
                  o(f"s_mul_i32 s{S_N0+2*u}, s{T5}, 1152"), o(f"s_add_u32 s{S_N0+2*u+1}, s{S_N0+2*u}, {32*1152}")]
        P += [o(f"s_lshl_b32 s{S_UB+4}, s{T4}, 1"), o(f"s_mul_i32 s{S_N0+8}, s{T4}, 1152")]
        P += [o(f"s_mov_b32 s{S_A}, s{S_UB}")]
        P += [o(f"s_mul_i32 s{T5}, s{S_W}, {72*9216}")]
        for u in range(4): P += [o(f"s_add_u32 s{S_UB+u}, s{S_UB+u}, s{T5}")]
        P += [o(f"s_lshl_b32 s{T5}, s{T5}, 1"), o(f"s_add_u32 s{S_UB+4}, s{S_UB+4}, s{T5}")]
        P += [o(f"s_lshr_b32 s{T0}, s{S_J}, 1"), o(f"s_mul_i32 s{S_PB}, s{T0}, {PART_BYTES}"),
              o(f"s_lshl_b32 s{T0}, s{S_MT}, 2"), o(f"s_add_u32 s{T0}, s{T0}, s{S_W}"),
              o(f"s_mul_i32 s{T0}, s{T0}, {18*2048}"), o(f"s_add_u32 s{S_PB}, s{S_PB}, s{T0}"),
              o(f"s_lshl_b32 s{T0}, s{S_LID}, 2"), o(f"s_add_u32 s{T0}, s{T0}, s{S_W}"),
              o(f"s_mul_i32 s{S_HB}, s{T0}, {18*1024}"), o(f"s_add_u32 s{S_HB}, s{S_HB}, {WS_HX}")]
        P += [o("v_lshrrev_b32 v2, 3, v0"), o("v_and_b32 v3, 7, v0"),
              o("v_bfe_u32 v4, v0, 4, 1"), o("v_lshlrev_b32 v4, 2, v4"), o("v_xor_b32 v3, v3, v4"), o("v_lshlrev_b32 v3, 4, v3"),
              o(f"v_mul_u32_u24 v2, 9216, v2"), o(f"v_add_u32 v{V_DM}, v2, v3")]
        for t in range(1, 4): P += [o(f"v_add_u32 v{V_DM+t}, {t*(8*9216-1024)}, v{V_DM}")]
        P += [o("v_and_b32 v2, 31, v0"), o("v_bfe_u32 v3, v0, 1, 3"), o("v_lshrrev_b32 v4, 5, v0"), o("v_xor_b32 v3, v3, v4"),
              o("v_lshlrev_b32 v3, 4, v3"), o("v_lshlrev_b32 v2, 7, v2"), o("v_add_u32 v2, v2, v3"),
              o(f"v_add_u32 v{V_XA}, s{S_LX}, v2"),
              o(f"v_xor_b32 v{V_XA+1}, 32, v{V_XA}"), o(f"v_xor_b32 v{V_XA+2}, 64, v{V_XA}"), o(f"v_xor_b32 v{V_XA+3}, 96, v{V_XA}")]
        P += [o("v_and_b32 v2, 15, v0"),
              o("v_and_b32 v3, 3, v2"), o("v_bfe_u32 v4, v2, 2, 1"), o("v_bfe_u32 v5, v2, 3, 1"),
              o("v_lshlrev_b32 v4, 3, v4"), o("v_lshlrev_b32 v5, 2, v5"), o("v_or_b32 v3, v3, v4"), o("v_or_b32 v3, v3, v5"),
              o("v_lshrrev_b32 v4, 3, v3"), o("v_lshrrev_b32 v5, 5, v0"),
              o("v_and_b32 v6, 1, v3"), o("v_lshlrev_b32 v6, 4, v6"), o("v_mov_b32 v7, 0x3f80"), o("v_lshlrev_b32 v7, v6, v7"), o("v_mov_b32 v8, 0"),
              G([o("v_cmp_eq_u32 vcc, v4, v5"), o("v_nop"), o("v_nop"), o("v_cndmask_b32 v7, v8, v7, vcc")]),
              o("v_bfe_u32 v6, v3, 1, 2"), o("v_bfe_u32 v9, v0, 4, 1")]
        for d in range(4):
            P += [G([o(f"v_cmp_eq_u32 vcc, {d}, v6"), o("v_nop"), o("v_nop"), o(f"v_cndmask_b32 v{V_PERM+d}, v8, v7, vcc")])]
        P += [G([o("v_cmp_eq_u32 vcc, 1, v9"), o("v_nop"), o("v_nop")] + [o(f"v_cndmask_b32 v{V_PERM+4+d}, v8, v{V_PERM+d}, vcc") for d in range(4)] +
                [o(f"v_cndmask_b32 v{V_PERM+d}, v{V_PERM+d}, v8, vcc") for d in range(4)])]
        L = []
        L += [o("v_mov_b32 v4, 0"), o(f"s_lshl_b32 s{T0}, s{S_LID}, 7"), o(f"s_add_u32 s{T0}, s{T0}, {WS_FLAG}"),
              vm(f"buffer_store_dword v4, v{V_ONE0}, s[{SR_WS}:{SR_WS+3}], s{T0} offen sc1", "flinit")]
        L += self.h_srd(S_J)
        if self.opts.get("pf", 1):
            L += [o(f"s_and_b32 s{T0}, s{S_MT}, 7"), o(f"s_mul_i32 s{T0}, s{T0}, 36"), o(f"s_mul_i32 s{T1}, s{S_W}, 9"), o(f"s_add_u32 s{T0}, s{T0}, s{T1}"),
                  o(f"v_add_u32 v2, s{T0}, v0"), o(f"v_mov_b32 v4, {OOB:#x}"),
                  o(f"s_mov_b32 s{T1}, {(2**32+8)//9}"), o(f"v_mul_hi_u32 v5, v2, s{T1}"), o("v_mul_u32_u24 v6, 9, v5"), o("v_sub_u32 v6, v2, v6"),
                  o(f"v_add_u32 v5, s{T7}, v5"), o(f"v_mul_u32_u24 v5, 1152, v5"), o("v_lshlrev_b32 v6, 7, v6"), o("v_add_u32 v5, v5, v6"),
                  o(f"v_mul_u32_u24 v3, 9216, v2"),
                  o("v_cmp_gt_u32 vcc, 9, v0"), o("s_nop 1"), o("v_cndmask_b32 v3, v4, v3, vcc"), o("v_cndmask_b32 v5, v4, v5, vcc"),
                  vm(f"buffer_load_dword v{V_PF}, v5, s[{SR_HZ}:{SR_HZ+3}], 0 offen", "pf")]
            L += [o(f"s_cmp_lt_u32 s{S_J}, 2"), o("s_cbranch_scc0 L_nopf2"),
                  o(f"s_mov_b32 s{T0}, {7*32*1152}"),
                  o(f"v_add_u32 v6, s{T0}, v5"), o("v_cmp_gt_u32 vcc, 9, v0"), o("s_and_saveexec_b64 s[82:83], vcc"),
                  o(f"global_load_dword v{V_PF}, v6, s[24:25]"),
                  o("s_mov_b64 exec, s[82:83]"), raw("L_nopf2:")]
            for sig in range(self.opts.get("npf", 4)):
                mat, kh = (sig // 2) % 2, sig % 2
                assert sig < 4
                rs = SR_WG if mat == 0 else SR_WU
                L += [o(f"s_add_u32 s{T6}, s{S_A}, {kh*288*9216}"),
                      vm(f"buffer_load_dword v{V_PF}, v3, s[{rs}:{rs+3}], s{T6} offen", "pf")]
        if self.opts.get("tlb", 0):
            st = self.opts.get("tlb", 0)
            n = (48 << 20) >> st
            L += [o(f"v_lshlrev_b32 v2, {st}, v0"), o(f"v_mov_b32 v4, {OOB:#x}")]
            for k in range(-(-n // 64)):
                L += [o(f"s_mov_b32 s{T0}, {k*64 << st}"), vm(f"buffer_load_dword v{V_PF}, v2, s[{SR_WS}:{SR_WS+3}], s{T0} offen", "pf")]
            L += [o("v_lshlrev_b32 v2, 16, v0"), vm(f"buffer_load_dword v{V_PF}, v2, s[{SR_OUT}:{SR_OUT+3}], 0 offen", "pf")]
        if self.opts.get('bearly'):
            L += [o(f"s_lshl_b32 s{S_PF}, s{S_LID}, 2"), o(f"s_add_u32 s{S_PF}, s{S_PF}, s{S_W}"), o(f"s_mul_i32 s{S_PF}, s{S_PF}, 41"),
                   o(f"v_add_u32 v2, s{S_PF}, v0"), o("v_lshlrev_b32 v2, 7, v2"), o("v_cmp_gt_u32 vcc, 41, v0"), o("s_nop 1"),
                   o(f"v_cndmask_b32 v2, v{V_ONE0}, v2, vcc"),
                   vm(f"buffer_load_dword v{V_PF}, v2, s[{SR_WG}:{SR_WG+3}], 0 offen", "pf"),
                   vm(f"buffer_load_dword v{V_PF}, v2, s[{SR_WU}:{SR_WU+3}], 0 offen", "pf")]
        post = L
        for n, i in enumerate(P):
            if not isinstance(i, G) and i.t.startswith("v_cmp_eq_u32 vcc, 0, v2"):
                P[n:n+4] = [G(P[n:n+4])]
                break
        out = HEAD
        flatx = []
        for kap in range(9):
            xl = self.x_line(kap)
            flatx += [xl[3*r:3*r+3] for r in range(4)]
        npre = len(P); pi = 0
        first = self.opts.get("xfree", 10)
        for n, g in enumerate(flatx):
            out += g
            if n >= first:
                take = -(-(npre - pi) // (36 - n))
                for it in P[pi:pi + take]: out += (list(it) if isinstance(it, G) else [it])
                pi += take
        out += self.stamp("xiss")
        L = out + post
        return L

    def tr_bases(self):
        L = []
        L += [o("v_lshrrev_b32 v16, 5, v0"), o("v_lshlrev_b32 v16, 10, v16"),
              o("v_bfe_u32 v17, v0, 2, 2"), o("v_lshlrev_b32 v17, 7, v17"), o("v_add_u32 v16, v16, v17"),
              o("v_bfe_u32 v17, v0, 3, 1"), o("v_lshlrev_b32 v17, 6, v17"), o("v_add_u32 v16, v16, v17"),
              o("v_bfe_u32 v17, v0, 4, 1"), o("v_lshlrev_b32 v17, 5, v17"), o("v_add_u32 v16, v16, v17"),
              o("v_and_b32 v17, 3, v0"), o("v_lshlrev_b32 v17, 3, v17"), o(f"v_add_u32 v{V_RA}, v16, v17")]
        for s in range(1, 4): L += [o(f"v_add_u32 v{V_RA+s}, {s*SLOT}, v{V_RA}")]
        for s in range(4): L += [o(f"v_xor_b32 v{V_RB+s}, 64, v{V_RA+s}")]
        return L

    def idmap(self):
        cfg = self.opts.get("cfg", 0)
        if cfg == 0:
            return [o(f"s_and_b32 s{S_J}, s2, 3"), o(f"s_lshl_b32 s{S_J}, s{S_J}, 2"),
              o(f"s_bfe_u32 s{T0}, s2, 0x20003"), o(f"s_or_b32 s{S_J}, s{S_J}, s{T0}"),
              o(f"s_bfe_u32 s{S_MT}, s2, 0x10002"), o(f"s_lshl_b32 s{S_MT}, s{S_MT}, 3"),
              o(f"s_lshr_b32 s{T0}, s2, 5"), o(f"s_or_b32 s{S_MT}, s{S_MT}, s{T0}")]
        if cfg == 1:
            return [o(f"s_and_b32 s{S_MT}, s2, 7"), o(f"s_lshl_b32 s{S_MT}, s{S_MT}, 1"), o(f"s_bfe_u32 s{T0}, s2, 0x10003"),
                    o(f"s_or_b32 s{S_MT}, s{S_MT}, s{T0}"), o(f"s_lshr_b32 s{S_J}, s2, 4")]
        if cfg == 3:
            return [o(f"s_and_b32 s{S_J}, s2, 7"), o(f"s_lshl_b32 s{S_J}, s{S_J}, 1"), o(f"s_bfe_u32 s{T0}, s2, 0x10003"),
                    o(f"s_or_b32 s{S_J}, s{S_J}, s{T0}"), o(f"s_lshr_b32 s{S_MT}, s2, 4")]
        if cfg == 2:
            return [o(f"s_and_b32 s{S_J}, s2, 1"), o(f"s_lshl_b32 s{S_J}, s{S_J}, 3"),
              o(f"s_bfe_u32 s{T0}, s2, 0x30003"), o(f"s_or_b32 s{S_J}, s{S_J}, s{T0}"),
              o(f"s_bfe_u32 s{S_MT}, s2, 0x20001"), o(f"s_lshl_b32 s{S_MT}, s{S_MT}, 2"),
              o(f"s_lshr_b32 s{T0}, s2, 6"), o(f"s_or_b32 s{S_MT}, s{S_MT}, s{T0}")]

    def h_srd(self, zreg):
        return [o(f"s_cmp_lt_u32 s{zreg}, 9"),
                o(f"s_cselect_b32 s{SR_HZ}, s22, s24"), o(f"s_cselect_b32 s{SR_HZ+1}, s23, s25"), o(f"s_cselect_b32 s{T7}, 0, 9"),
                o(f"s_and_b32 s{SR_HZ+1}, s{SR_HZ+1}, 0xffff"), o(f"s_mov_b32 s{SR_HZ+2}, {D*D*2}"), o(f"s_mov_b32 s{SR_HZ+3}, 0x00020000"),
                o(f"s_sub_u32 s{T7}, s{zreg}, s{T7}"), o(f"s_lshl_b32 s{T7}, s{T7}, 5")]

    def h_dma(self, zreg, slot, tag):
        L = self.h_srd(zreg)
        L += [o(f"s_lshl_b32 s{T1}, s{S_W}, 3"), o(f"s_add_u32 s{T0}, s{T7}, s{T1}"),
             o("v_lshrrev_b32 v240, 3, v0"), o("v_and_b32 v241, 7, v0"), o("v_lshrrev_b32 v242, 1, v240"), o("v_xor_b32 v241, v241, v242"),
             o(f"s_and_b32 s{T1}, s{S_W}, 1"), o(f"s_lshl_b32 s{T1}, s{T1}, 2"), o(f"v_xor_b32 v241, s{T1}, v241"),
             o("v_lshlrev_b32 v241, 4, v241"),
             o(f"v_add_u32 v240, s{T0}, v240"), o(f"s_movk_i32 s{T1}, 1152"), o(f"v_mad_u32_u24 v240, v240, s{T1}, v241"),
             o(f"s_lshl_b32 s{T1}, s{S_W}, 10"), o(f"s_add_u32 s{T1}, s{T1}, {slot*SLOT}")]
        for kap in range(9):
            L += [o(f"s_add_u32 m0, s{T1}, {4*kap*1024 - 128*kap}"), o("s_nop 0"),
                  vm(f"buffer_load_dwordx4 v240, s[{SR_HZ}:{SR_HZ+3}], 0 offen offset:{128*kap} lds", tag)]
        return L

    def h_special(self, zreg, slot, sfx):
        return [o(f"s_cmp_eq_u32 s{zreg}, 9"), o(f"s_cbranch_scc0 L_h_nosp{sfx}"), o(f"s_cmp_eq_u32 s{S_W}, 0"), o(f"s_cbranch_scc0 L_h_nosp{sfx}"),
                o("v_mov_b32 v16, 0xbf803f80"), o("v_mov_b32 v17, v16"), o("v_mov_b32 v18, v16"), o("v_mov_b32 v19, v16"),
                o("v_lshrrev_b32 v240, 3, v0"), o("v_lshlrev_b32 v240, 12, v240"), o("v_and_b32 v241, 7, v0"), o("v_lshlrev_b32 v241, 4, v241"),
                o("v_add_u32 v240, v240, v241"), o(f"v_add_u32 v240, {slot*SLOT}, v240"), o(f"v_add_u32 v241, {slot*SLOT}, v241"),
                o("ds_write_b128 v240, v[16:19]"), o("ds_write_b128 v241, v[16:19] offset:32768"),
                o("s_waitcnt lgkmcnt(0)"), raw(f"L_h_nosp{sfx}:")]

    def x_line(self, kap):
        L = []
        for rho in range(4):
            L += [o(f"s_add_u32 m0, s{S_LX}, {(4*kap+rho)*1024 - 128*kap}"), o("s_nop 0"),
                  vm(f"buffer_load_dwordx4 v{240+rho}, s[{SR_X}:{SR_X+3}], 0 offen offset:{128*kap} lds", ("x", kap))]
        return L
    def x_dma_variants(self):
        L = []
        for kap in range(self.opts.get("xpre", 3)): L += self.x_line(kap)
        return L
    def x_dma_variants_old(self):
        if not self.opts.get("rot", 0):
            L = []
            for kap in range(9):
                for rho in range(4):
                    L += [o(f"s_add_u32 m0, s{S_LX}, {(4*kap+rho)*1024 - 128*kap}"), o("s_nop 0"),
                          vm(f"buffer_load_dwordx4 v{240+rho}, s[{SR_X}:{SR_X+3}], 0 offen offset:{128*kap} lds", ("x", kap))]
            return L
        L = [o(f"s_and_b32 s{T0}, s{S_J}, 3")]
        for v in range(1, 4): L += [o(f"s_cmp_eq_u32 s{T0}, {v}"), o(f"s_cbranch_scc1 L_xd{v}")]
        for v in range(4):
            if v: L += [raw(f"L_xd{v}:")]
            for pos in range(9):
                kap = (self.K0[v] + pos) % 9
                for rho in range(4):
                    t = f"buffer_load_dwordx4 v{240+rho}, s[{SR_X}:{SR_X+3}], 0 offen offset:{128*kap} lds"
                    L += [o(f"s_add_u32 m0, s{S_LX}, {(4*kap+rho)*1024 - 128*kap}"), o("s_nop 0"),
                          (vm(t, ("x", pos)) if v == 3 else o(t))]
            if v < 3: L += [o("s_branch L_xdj")]
        L += [raw("L_xdj:")]
        return L
    K0 = [0, 2, 4, 7]

    def ln_stats(self):
        L = []
        SA = 16
        for i in range(8): L += [o(f"v_mov_b32 v{SA+i}, 0")]
        L += [o(f"s_mov_b32 s{T5}, 0x3f803f80")]
        def reads(kap):
            return [wvm(("x", kap))] + [ds(f"ds_read_b128 v[{RX+4*ks}:{RX+4*ks+3}], v{V_XA+(ks&3)} offset:{(ks//4)*4096}", ("xr", ks)) for ks in range(4*kap, 4*kap+4)]
        L += reads(0)
        for kap in range(9):
            if kap + 1 < 9: L += reads(kap + 1)
            L += self.stats_line(kap)
        return L
    def stats_line(self, kap):
        L = []
        SA = 16
        for ks in range(4*kap, 4*kap + 4):
            L += [wlg(("xr", ks))]
            for i in range(4):
                r = RX + 4*ks + i
                L += [o(f"v_dot2_f32_bf16 v{SA+i}, v{r}, s{T5}, v{SA+i}"),
                      o(f"v_dot2_f32_bf16 v{SA+4+i}, v{r}, v{r}, v{SA+4+i}")]
        return L

    def ln_stats_v(self, v, tracked, order):
        L = []
        SA = 16
        for i in range(8): L += [o(f"v_mov_b32 v{SA+i}, 0")]
        L += [o(f"s_mov_b32 s{T5}, 0x3f803f80")]
        def reads(pos):
            kap = order[pos]
            w = [wvmf(("x", pos))]
            return w + [o(f"ds_read_b128 v[{RX+4*ks}:{RX+4*ks+3}], v{V_XA+(ks&3)} offset:{(ks//4)*4096}") for ks in range(4*kap, 4*kap+4)]
        L += reads(0)
        L += self.stamp("x0")
        for pos in range(9):
            if pos == 4: L += self.stamp("x4")
            if pos + 1 < 9: L += reads(pos + 1)
            kap = order[pos]
            for n, ks in enumerate(range(4*kap, 4*kap + 4)):
                left = (3 - n) + (4 if pos + 1 < 9 else 0)
                L += [o(f"s_waitcnt lgkmcnt({left})")]
                for i in range(4):
                    r = RX + 4*ks + i
                    L += [o(f"v_dot2_f32_bf16 v{SA+i}, v{r}, s{T5}, v{SA+i}"),
                          o(f"v_dot2_f32_bf16 v{SA+4+i}, v{r}, v{r}, v{SA+4+i}")]
        return L

    def ln_stats_old(self):
        L = []
        SA = 16
        for i in range(8): L += [o(f"v_mov_b32 v{SA+i}, 0")]
        L += [o(f"s_mov_b32 s{T5}, 0x3f803f80")]
        def reads(kap):
            return [wvm(("x", kap))] + [ds(f"ds_read_b128 v[{RX+4*ks}:{RX+4*ks+3}], v{V_XA+(ks&3)} offset:{(ks//4)*4096}", ("xr", ks)) for ks in range(4*kap, 4*kap+4)]
        L += reads(0)
        for kap in range(9):
            if kap + 1 < 9: L += reads(kap + 1)
            for ks in range(4*kap, 4*kap + 4):
                L += [wlg(("xr", ks))]
                for i in range(4):
                    r = RX + 4*ks + i
                    L += [o(f"v_dot2_f32_bf16 v{SA+i}, v{r}, s{T5}, v{SA+i}"),
                          o(f"v_dot2_f32_bf16 v{SA+4+i}, v{r}, v{r}, v{SA+4+i}")]
        return L

    def ln_finish(self):
        SA = 16
        L = [o("s_nop 2"),
             o(f"v_add_f32 v{SA}, v{SA}, v{SA+1}"), o(f"v_add_f32 v{SA+2}, v{SA+2}, v{SA+3}"),
             o(f"v_add_f32 v{SA+4}, v{SA+4}, v{SA+5}"), o(f"v_add_f32 v{SA+6}, v{SA+6}, v{SA+7}"),
             o(f"v_add_f32 v24, v{SA}, v{SA+2}"), o(f"v_add_f32 v26, v{SA+4}, v{SA+6}"),
             o("v_mov_b32 v25, v24"), o("v_mov_b32 v27, v26"), o("s_nop 1"),
             o("v_permlane32_swap_b32 v24, v25"), o("v_permlane32_swap_b32 v26, v27"), o("s_nop 1"),
             o("v_add_f32 v24, v24, v25"), o("v_add_f32 v26, v26, v27"),
             o(f"s_mov_b32 s{T5}, {f2u(1.0/576):#x}"),
             o(f"v_mul_f32 v24, s{T5}, v24"), o(f"v_mul_f32 v26, s{T5}, v26"),
             o("v_fma_f32 v26, -v24, v24, v26"), o("v_max_f32 v26, 0, v26"),
             o("v_cvt_pk_bf16_f32 v24, v24, v26"),
             o("v_and_b32 v26, 0xffff0000, v24"), o("v_lshlrev_b32 v24, 16, v24"),
             o(f"v_xor_b32 v{V_NEGMU}, 0x80000000, v24")]
        for i in range(1, 16): L += [o(f"v_mov_b32 v{V_NEGMU+i}, v{V_NEGMU}")]
        L += [o(f"v_add_f32 v26, {f2u(1e-5):#x}, v26"),
              o("v_cvt_pk_bf16_f32 v26, v26, v26"), o("v_lshlrev_b32 v26, 16, v26"),
              o("v_sqrt_f32 v26, v26"), o("s_nop 0"),
              o("v_cvt_pk_bf16_f32 v26, v26, v26"), o("v_lshlrev_b32 v26, 16, v26"),
              o("v_rcp_f32 v27, v26"), o(f"v_mul_f32 v{V_D2}, v26, v26"),
              o(f"v_mul_f32 v{V_C0}, {f2u(C0):#x}, v27"), o("v_mul_f32 v28, v27, v27"), o("v_mul_f32 v28, v28, v27"),
              o(f"v_mul_f32 v{V_C1}, {f2u(C1):#x}, v28"),
              o("v_and_b32 v28, 31, v0"), o("v_lshlrev_b32 v28, 2, v28"), o(f"s_lshl_b32 s{T0}, s{S_W}, 12"), o(f"s_add_u32 s{T0}, s{T0}, {SPARE}"),
              o(f"v_add_u32 v28, s{T0}, v28"), ds("ds_write_b32 v28, v27", "rtab")]
        return L

    def seg_norm_h(self):
        M = []; frags = []
        def UBf(i):
            if i == 0: return 16
            if i % 2 == 0: return RX + 8*(i - 2)
            return (32, 48, 16)[((i - 1)//2) % 3]
        def nextuser(i):
            for k in range(i + 1, 18):
                if UBf(k) == UBf(i): return k
            return None
        posU = {}; posH = {}
        def U(i):
            b = UBf(i)
            M.append(dict(op=32, acc=f"v[{b}:{b+15}]", first=True, C=f"v[{V_NEGMU}:{V_NEGMU+15}]", A=f"v[{V_PERM}:{V_PERM+3}]", B=f"v[{RX+8*i}:{RX+8*i+3}]", need=-1))
            M.append(dict(op=32, acc=f"v[{b}:{b+15}]", first=False, A=f"v[{V_PERM+4}:{V_PERM+7}]", B=f"v[{RX+8*i+4}:{RX+8*i+7}]", need=-1))
            posU[i] = len(M) - 2
        def H(ks):
            f = len(frags); a = AF + 4*(f % NAF)
            frags.append(dict(reads=[f"ds_read_b128 a[{a}:{a+3}], v{V_XA+(ks&3)} offset:{(ks//4)*4096}"], use=len(M)))
            M.append(dict(op=32, acc=f"v[{V_HACC}:{V_HACC+15}]", first=(ks == 0), A=f"a[{AX+4*ks}:{AX+4*ks+3}]", B=f"a[{a}:{a+3}]", need=f))
            posH[ks] = len(M) - 1
        LAG = 5
        for i in range(18):
            U(i)
            if i >= LAG: H(2*(i-LAG)); H(2*(i-LAG)+1)
        for i in range(18 - LAG, 18): H(2*i); H(2*i+1)
        last = -1
        for m in M:
            if m["need"] < 0: m["need"] = last
            else: last = m["need"]
        g0 = frags[0]["use"] - 6
        M[g0].setdefault("before", []).extend([wvm("wz1")] + self.h_special(S_A, 2, "a") + [o("s_waitcnt lgkmcnt(0)"), o("s_barrier")])
        def setup(sl, head):
            sl.put(2, [o('s_nop 4')]); sl.put(3, [o('s_nop 4')])
            for i in range(18):
                b = UBf(i)
                ins = []
                for q in range(8):
                    t = 2 + 2*(i % 4) + (q % 2)
                    ins += [o(f"v_cvt_pk_bf16_f32 v{t}, v{b+2*q}, v{b+2*q+1}"), o(f"v_accvgpr_write_b32 a{AX+8*i+q}, v{t}")]
                start = posU[i] + 1 + 3
                end = min(posH[2*i] - 1, start + 11)
                if nextuser(i) is not None: end = min(end, posU[nextuser(i)])
                e = sl.stream(ins, start, end, spill=0)
                assert e < posH[2*i] - 0, (i, e, posH[2*i])
        return self.paced(M, frags, setup, 6)

    def h_epilogue(self, zreg, acc, rr, tb):
        L = []
        sg, f1, f2, f3 = tb + 8, tb + 9, tb + 10, tb + 11
        L += [G([o(f"s_cmp_lt_u32 s{zreg}, 9"), o(f"s_cselect_b32 s{S_ST0}, 1.0, -1.0")]), o(f"v_mov_b32 v{sg}, s{S_ST0}"),
              G([o(f"s_cmp_eq_u32 s{zreg}, 9"), o(f"s_cselect_b32 s{S_ST0}, 0, 99")]),
              G([o(f"v_and_b32 v{f1}, 31, v0"), o(f"v_cmp_eq_u32 vcc, s{S_ST0}, v{f1}"), o(f"v_mov_b32 v{f2}, 1.0"), o("v_nop"),
                 o(f"v_cndmask_b32 v{sg}, v{sg}, v{f2}, vcc")]),
              G([o(f"s_or_b32 s{S_ST0}, s{S_MT}, s{S_W}"), o(f"s_cmp_eq_u32 s{S_ST0}, 0"), o(f"s_cselect_b32 s{S_ST0}, 32, 0")]),
              G([o(f"v_cmp_gt_u32 vcc, s{S_ST0}, v0"), o(f"v_mov_b32 v{tb}, 0"), o(f"v_mov_b32 v{tb+1}, 1.0"),
                 o(f"v_cndmask_b32 v{f1}, v{sg}, v{tb+1}, vcc"), o(f"v_cndmask_b32 v{f2}, v{tb+1}, v{tb}, vcc"), o(f"v_cndmask_b32 v{f3}, v{sg}, v{tb}, vcc")])]
        for r in range(16): L += [o(f"v_mul_f32 v{acc+r}, v{acc+r}, v{rr+r}")]
        L += [o(f"v_add_f32 v{tb+12}, v{acc+8}, v{acc+12}"), o(f"v_sub_f32 v{tb+13}, v{acc+8}, v{acc+12}"), o(f"v_mov_b32 v{tb+14}, 0"),
              G([o(f"v_cmp_lt_f32 vcc, 0, v{sg}"), o("v_nop"), o("v_nop"),
                 o(f"v_cndmask_b32 v{tb+12}, v{tb+14}, v{tb+12}, vcc"), o(f"v_cndmask_b32 v{tb+13}, v{tb+13}, v{tb+14}, vcc")])]
        for ii in range(4):
            s1, s3 = (f1, f3) if ii == 0 else (sg, sg)
            v0, v1, v2, v3 = acc + ii, acc + 4 + ii, acc + 8 + ii, acc + 12 + ii
            if ii == 0: L += [o(f"v_mul_f32 v{v2}, v{v2}, v{f2}")]
            L += [o(f"v_fma_f32 v{v0}, v{v3}, v{s3}, v{v0}"),
                  o(f"v_fma_f32 v{v1}, v{v1}, v{s1}, v{v2}"),
                  o(f"v_add_f32 v{tb+ii}, v{v0}, v{v1}"), o(f"v_sub_f32 v{tb+4+ii}, v{v0}, v{v1}")]
        L += [o(f"v_cvt_pk_bf16_f32 v{rr}, v{tb}, v{tb+1}"), o(f"v_cvt_pk_bf16_f32 v{rr+1}, v{tb+2}, v{tb+3}"),
              o(f"v_cvt_pk_bf16_f32 v{rr+2}, v{tb+4}, v{tb+5}"), o(f"v_cvt_pk_bf16_f32 v{rr+3}, v{tb+6}, v{tb+7}"),
              G([o("v_nop"), o("v_nop"), o(f"v_permlane32_swap_b32 v{rr}, v{rr+2}"), o(f"v_permlane32_swap_b32 v{rr+1}, v{rr+3}")]),
              o(f"v_lshrrev_b32 v{rr+4}, 5, v0"), o(f"v_mul_u32_u24 v{rr+4}, {ZF_TYPE}, v{rr+4}"),
              o(f"v_and_b32 v{rr+5}, 31, v0"), o(f"v_lshlrev_b32 v{rr+5}, 4, v{rr+5}"), o(f"v_add_u32 v{rr+4}, v{rr+4}, v{rr+5}"),
              G([o(f"s_mul_i32 s{S_ST0}, s{zreg}, {ZF_STRIDE}"), o(f"s_lshl_b32 s{S_ST1}, s{S_MT}, 2"), o(f"s_add_u32 s{S_ST1}, s{S_ST1}, s{S_W}")]),
              G([o(f"s_lshl_b32 s{S_ST1}, s{S_ST1}, 9"), o(f"s_add_u32 s{S_ST1}, s{S_ST1}, s{S_ST0}"), o(f"s_add_u32 s{S_ST1}, s{S_ST1}, {WS_ZF}")]),
              vm(f"buffer_store_dwordx4 v[{rr}:{rr+3}], v{rr+4}, s[{SR_WS}:{SR_WS+3}], s{S_ST1} offen sc1", "zst"),
              o(f"v_mov_b32 v{tb+14}, v{tb+12}"),
              G([o("v_nop"), o("v_nop"), o(f"v_permlane32_swap_b32 v{tb+14}, v{tb+13}")]),
              o(f"v_mov_b32 v{rr+9}, 0"), o(f"v_mov_b32 v{rr+10}, 0"), o(f"v_mov_b32 v{rr+11}, 0"),
              o(f"v_cvt_pk_bf16_f32 v{rr+8}, v{tb+14}, v{rr+9}"),
              G([o(f"s_or_b32 s{S_ST1}, s{S_MT}, s{S_W}"), o(f"s_cmp_eq_u32 s{S_ST1}, 0"), o(f"s_cselect_b32 s{S_C}, 0, {OOB:#x}")]),
              o(f"v_add_u32 v{rr+5}, s{S_C}, v{rr+4}"),
              o(f"s_add_u32 s{S_ST0}, s{S_ST0}, {WS_ZF + 32*1024}"),
              vm(f"buffer_store_dwordx4 v[{rr+8}:{rr+11}], v{rr+5}, s[{SR_WS}:{SR_WS+3}], s{S_ST0} offen sc1", "zst"),
              G([o(f"v_mov_b32 v{rr+12}, 0"), o(f"v_mov_b32 v{rr+13}, 0"), o(f"v_mov_b32 v{rr+14}, 0"), o(f"v_mov_b32 v{rr+15}, 0")])]
        for k in (512, 1024, 1536):
            L += [vm(f"buffer_store_dwordx4 v[{rr+12}:{rr+15}], v{rr+5}, s[{SR_WS}:{SR_WS+3}], s{S_ST0} offen offset:{k} sc1", "zst")]
        return L

    def rr_reads(self, rr, tmp, n=1):
        return [o(f"v_lshrrev_b32 v{tmp}, 5, v0"), o(f"v_lshlrev_b32 v{tmp}, 4, v{tmp}"), o(f"s_lshl_b32 s{S_C}, s{S_W}, 12"),
                o(f"s_add_u32 s{S_C}, s{S_C}, {SPARE}"), o(f"v_add_u32 v{tmp}, s{S_C}, v{tmp}")] + \
               [ds(f"ds_read_b128 v[{rr+4*q}:{rr+4*q+3}], v{tmp} offset:{32*q}", ("rr", n)) for q in range(4)] + [wlg(("rr", n))]

    def h2_block(self):
        L = [o(f"s_cmp_lt_u32 s{S_J}, 2"), o("s_cbranch_scc0 L_noz2b")]
        B = [o(f"v_add_u32 v{64+i}, {SLOT}, v{V_XA+i}") for i in range(4)]
        B += [o(f"s_waitcnt vmcnt({18 if self.opts.get('bearly') else 20})"), o("s_barrier")]
        def rd(ks):
            a_ = AF + 4*(ks % NAF)
            return o(f"ds_read_b128 a[{a_}:{a_+3}], v{64+(ks&3)} offset:{(ks//4)*4096}")
        for ks in range(6): B += [rd(ks)]
        for k in range(36):
            a_ = AF + 4*(k % NAF)
            n_out = min(5, 35 - k)
            B += [o(f"s_waitcnt lgkmcnt({n_out})"), mf32("v[128:143]", f"a[{AX+4*k}:{AX+4*k+3}]", f"a[{a_}:{a_+3}]", "0" if k == 0 else "v[128:143]")]
            if k + 6 < 36: B += [rd(k + 6)]
        B += [raw("L_noz2b:"),
              o(f"s_cmp_lt_u32 s{S_J}, 2"), o(f"s_cselect_b32 s{S_B}, s{S_B}, 0x4000")]
        return L + B

    def dma_p1(self, sig, slot, tA=226, tB=227):
        groups = []
        if sig < 16:
            u, mat, kh = sig // 4, (sig // 2) % 2, sig % 2
            rs = SR_WG if mat == 0 else SR_WU
            for grp, ts in enumerate([[0,1,2,3],[0,1,2,3],[0]]):
                g = [o(f"s_add_u32 m0, s{S_L9}, {slot*SLOT + grp*4096}"),
                     o(f"s_add_u32 s{S_D0}, s{S_UB+u}, {(kh*288 + grp*32)*9216}")]
                for t in ts:
                    groups.append(g + [vm(f"buffer_load_dwordx4 v{V_DM+t}, s[{rs}:{rs+3}], s{S_D0} offen offset:{t*1024} lds", ("st", sig))])
                    g = []
        else:
            rs = SR_WG if sig == 16 else SR_WU
            for grp, ts in enumerate([[0,1,2,3],[0,1,2,3],[0]]):
                g = []
                if sig == 16 and grp == 0:
                    groups.append([o(f"v_lshrrev_b32 v{tA}, 2, v0"), o(f"v_and_b32 v{tB}, 3, v0"), o(f"v_lshlrev_b32 v{tB}, 4, v{tB}")])
                    groups.append([o(f"v_mul_u32_u24 v{tA}, 9216, v{tA}"), o(f"v_add_u32 v{V_DM}, v{tA}, v{tB}")] +
                                  [o(f"v_add_u32 v{V_DM+t}, {t*(16*9216-1024)}, v{V_DM}") for t in range(1, 4)])
                g += [o(f"s_add_u32 m0, s{S_L9}, {slot*SLOT + grp*4096}"),
                      o(f"s_add_u32 s{S_D0}, s{S_UB+4}, {grp*64*9216}")]
                for t in ts:
                    groups.append(g + [vm(f"buffer_load_dwordx4 v{V_DM+t}, s[{rs}:{rs+3}], s{S_D0} offen offset:{t*1024} lds", ("st", sig))])
                    g = []
        return groups

    def dma_cs(self, mat, slot, tag, nop=False):
        rs = SR_CS if mat == 0 else SR_SS
        groups = []
        for l in range(2):
            for rho in range(4):
                groups.append([o(f"s_add_u32 m0, s{S_A}, {slot*SLOT + (4*l+rho)*1024 - 128*l}")] + ([o("s_nop 0")] if nop else []) +
                              [vm(f"buffer_load_dwordx4 v{V_SD+rho}, s[{rs}:{rs+3}], 0 offen offset:{128*l} lds", tag)])
        return groups
    def dma_cx(self, mat, tag):
        rs = SR_CS if mat == 0 else SR_SS
        return [[o(f"s_add_u32 m0, s{S_B}, {SPARE + mat*4096}"), o("s_nop 0"),
                 vm(f"buffer_load_dwordx4 v{V_SE}, s[{rs}:{rs+3}], 0 offen lds", tag)]]

    def dma_p2(self, st, slot, first128, tA, tB, tC):
        u, who = st
        groups = []
        if u < 4:
            tbl = S_N0 if who == "own" else S_N1
            if first128:
                groups.append([o(f"v_lshrrev_b32 v{tA}, 3, v0"), o(f"v_and_b32 v{tB}, 7, v0"), o(f"v_bfe_u32 v{tC}, v0, 4, 1")])
                groups.append([o(f"v_lshlrev_b32 v{tC}, 2, v{tC}"), o(f"v_xor_b32 v{tB}, v{tB}, v{tC}"), o(f"v_lshlrev_b32 v{tB}, 4, v{tB}")])
                groups.append([o(f"s_mul_i32 s{S_WD}, s{S_W}, {8*1152}")])
                groups.append([o(f"v_mul_u32_u24 v{tA}, 1152, v{tA}"), o(f"v_add_u32 v{V_DM}, v{tA}, v{tB}"), o(f"v_add_u32 v{V_DM}, s{S_WD}, v{V_DM}")])
                groups.append([o(f"s_lshl_b32 s{S_WD}, s{S_W}, 10")])
            for ip in range(9):
                groups.append([o(f"s_add_u32 m0, s{S_WD}, {slot*SLOT + ip*4096}"),
                               o(f"s_add_u32 s{S_D0}, s{tbl+ip}, s{S_CU+u}"),
                               vm(f"buffer_load_dwordx4 v{V_DM}, s[{SR_WD}:{SR_WD+3}], s{S_D0} offen lds", ("s2", st))])
        else:
            groups.append([o(f"v_lshrrev_b32 v{tA}, 2, v0"), o(f"v_and_b32 v{tB}, 3, v0"), o(f"v_lshlrev_b32 v{tB}, 4, v{tB}")])
            groups.append([o(f"v_mul_u32_u24 v{tA}, 1152, v{tA}"), o(f"v_add_u32 v{V_DM+1}, v{tA}, v{tB}")])
            for ip in range(9):
                ca, cb = 2*ip, 2*ip + 1
                ra = (S_N0 + ca) if ca < 9 else (S_N1 + ca - 9)
                rb = (S_N0 + cb) if cb < 9 else (S_N1 + cb - 9)
                groups.append([o(f"s_cmp_lt_u32 s{S_W}, 2"), o(f"s_cselect_b32 s{S_D0}, s{ra}, s{rb}"),
                               o(f"s_add_u32 s{S_D0}, s{S_D0}, s{S_CU+4}"), o(f"s_add_u32 s{S_D0}, s{S_D0}, s{S_C}"),
                               o(f"s_add_u32 m0, s{S_WD}, {slot*SLOT + ip*4096}")])
                groups.append([vm(f"buffer_load_dwordx4 v{V_DM+1}, s[{SR_WD}:{SR_WD+3}], s{S_D0} offen lds", ("s2", st))])
        return groups

    def geglu(self, c, toff=0):
        if c < 8: g, u = GA[(c//2) % 2][c % 2], UA[(c//2) % 2][c % 2]
        else: g, u = GA[0][0], UA[0][0]
        L = []
        for p in range(8):
            r0, r1 = 2*p, 2*p + 1
            b = TMP + 4*(p % 2) + toff
            xa, xb, ya, yb = b, b+1, b+2, b+3
            L += [o(f"v_mul_f32 v{xa}, v{g+r0}, v{g+r0}"), o(f"v_mul_f32 v{xb}, v{g+r1}, v{g+r1}"),
                  o(f"v_fma_f32 v{xa}, v{xa}, v{V_C1}, v{V_C0}"), o(f"v_fma_f32 v{xb}, v{xb}, v{V_C1}, v{V_C0}"),
                  o(f"v_mul_f32 v{xa}, v{g+r0}, v{xa}"), o(f"v_mul_f32 v{xb}, v{g+r1}, v{xb}"),
                  o(f"v_exp_f32 v{xa}, v{xa}"), o(f"v_exp_f32 v{xb}, v{xb}"),
                  o(f"v_mul_f32 v{ya}, v{g+r0}, v{u+r0}"), o(f"v_mul_f32 v{yb}, v{g+r1}, v{u+r1}"),
                  o(f"v_fma_f32 v{xa}, v{xa}, v{V_D2}, v{V_D2}"), o(f"v_fma_f32 v{xb}, v{xb}, v{V_D2}, v{V_D2}"),
                  o(f"v_rcp_f32 v{xa}, v{xa}"), o(f"v_rcp_f32 v{xb}, v{xb}"),
                  o(f"v_mul_f32 v{ya}, v{ya}, v{xa}"), o(f"v_mul_f32 v{yb}, v{yb}, v{xb}"),
                  o(f"v_cvt_pk_bf16_f32 v{HF + 8*c + p}, v{ya}, v{yb}")]
        return L
    def geglu_sig(self, c, toff=0):
        g = GA[(c//2) % 2][c % 2] if c < 8 else GA[0][0]
        L = []
        for p in range(8):
            r0, r1 = 2*p, 2*p + 1
            b = TMP + 2*(p % 2) + toff
            xa, xb = b, b + 1
            L += [o(f"v_mul_f32 v{xa}, v{g+r0}, v{g+r0}"), o(f"v_mul_f32 v{xb}, v{g+r1}, v{g+r1}"),
                  o(f"v_fma_f32 v{xa}, v{xa}, v{V_C1}, v{V_C0}"), o(f"v_fma_f32 v{xb}, v{xb}, v{V_C1}, v{V_C0}"),
                  o(f"v_mul_f32 v{xa}, v{g+r0}, v{xa}"), o(f"v_mul_f32 v{xb}, v{g+r1}, v{xb}"),
                  o(f"v_exp_f32 v{xa}, v{xa}"), o(f"v_exp_f32 v{xb}, v{xb}"), o("v_nop") if False else None,
                  o(f"v_fma_f32 v{xa}, v{xa}, v{V_D2}, v{V_D2}"), o(f"v_fma_f32 v{xb}, v{xb}, v{V_D2}, v{V_D2}"),
                  o(f"v_rcp_f32 v{xa}, v{xa}"), o(f"v_rcp_f32 v{xb}, v{xb}"),
                  o(f"v_mul_f32 v{g+r0}, v{g+r0}, v{xa}"), o(f"v_mul_f32 v{g+r1}, v{g+r1}, v{xb}")]
        return [i for i in L if i is not None]
    def geglu_fin(self, c, toff=0):
        if c < 8: g, u = GA[(c//2) % 2][c % 2], UA[(c//2) % 2][c % 2]
        else: g, u = GA[0][0], UA[0][0]
        L = []
        for p in range(8):
            r0, r1 = 2*p, 2*p + 1
            L += [o(f"v_mul_f32 v{g+r0}, v{g+r0}, v{u+r0}"), o(f"v_mul_f32 v{g+r1}, v{g+r1}, v{u+r1}"),
                  o(f"v_cvt_pk_bf16_f32 v{HF + 8*c + p}, v{g+r0}, v{g+r1}")]
        return L
    def hstore(self, c):
        st = S_ST0 + (c % 2)
        return [o(f"s_add_u32 s{st}, s{S_HB}, {2*c*1024}")] + self.dstore(
                [f"buffer_store_dwordx4 v[{HF+8*c}:{HF+8*c+3}], v{V_L16}, s[{SR_WS}:{SR_WS+3}], s{st} offen",
                 f"buffer_store_dwordx4 v[{HF+8*c+4}:{HF+8*c+7}], v{V_L16}, s[{SR_WS}:{SR_WS+3}], s{st} offen offset:1024"], "hst", True)

    def s_setup(self):
        a, b, c = V_SX, V_YC[0], V_YC[1]
        L = []
        L += [G([o(f"s_lshr_b32 s{S_TAU}, s{S_J}, 3"), o(f"s_lshl_b32 s{S_A}, s{S_W}, 13"), o(f"s_lshl_b32 s{S_B}, s{S_W}, 10")]),
              G([o(f"s_mul_i32 s{S_ZB}, s{S_TAU}, {ZF_TYPE}"), o(f"s_add_u32 s{S_ZB}, s{S_ZB}, s{S_A}"), o(f"s_add_u32 s{S_ZB}, s{S_ZB}, {WS_ZF}")])]
        L += [o(f"v_lshrrev_b32 v{a}, 3, v0"), o(f"v_and_b32 v{b}, 7, v0"), o(f"v_lshrrev_b32 v{c}, 1, v{a}"), o(f"v_xor_b32 v{b}, v{b}, v{c}"),
              o(f"v_lshlrev_b32 v{b}, 4, v{b}"), o(f"v_xor_b32 v{c}, 64, v{b}"),
              G([o(f"s_lshl_b32 s{S_C}, s{S_MT}, 5"), o(f"s_add_u32 s{S_C}, s{S_C}, s{S_TAU}")]),
              o(f"v_lshlrev_b32 v{a}, 1, v{a}"), o(f"v_add_u32 v{a}, s{S_C}, v{a}"),
              o(f"s_lshl_b32 s{S_C}, s{S_W}, 8"),
              o(f"v_add_u32 v{b}, s{S_C}, v{b}"), o(f"v_add_u32 v{c}, s{S_C}, v{c}"),
              o(f"v_lshlrev_b32 v{V_SD}, 12, v{a}"), o(f"v_add_u32 v{V_SD+1}, {16*4096}, v{V_SD}"),
              o(f"v_sub_u32 v{a}, 1024, v{a}"), o(f"v_lshlrev_b32 v{V_SD+2}, 12, v{a}"), o(f"v_subrev_u32 v{V_SD+3}, {16*4096}, v{V_SD+2}"),
              o(f"v_add_u32 v{V_SD}, v{V_SD}, v{b}"), o(f"v_add_u32 v{V_SD+1}, v{V_SD+1}, v{c}"),
              o(f"v_add_u32 v{V_SD+2}, v{V_SD+2}, v{b}"), o(f"v_add_u32 v{V_SD+3}, v{V_SD+3}, v{c}")]
        return L
    def s_setup_e(self, t0, t1):
        return [G([o(f"s_cmp_eq_u32 s{S_W}, 1"), o(f"s_cselect_b32 s{S_C}, 1, 0")]),
                o(f"v_mov_b32 v{V_SE}, v{V_SD}"),
                G([o(f"v_mov_b32 v{t0}, s{S_W}"), o(f"v_cmp_eq_u32 vcc, 1, v{t0}"), o("v_nop"), o("v_nop"), o(f"v_cndmask_b32 v{V_SE}, v{V_SE}, v{V_SD+1}, vcc")]),
                G([o(f"v_cmp_eq_u32 vcc, 2, v{t0}"), o("v_nop"), o("v_nop"), o(f"v_cndmask_b32 v{V_SE}, v{V_SE}, v{V_SD+2}, vcc")]),
                G([o(f"v_cmp_eq_u32 vcc, 3, v{t0}"), o("v_nop"), o("v_nop"), o(f"v_cndmask_b32 v{V_SE}, v{V_SE}, v{V_SD+3}, vcc")]),
                G([o(f"s_lshl_b32 s{S_C}, s{S_W}, 8"), o(f"s_sub_u32 s{S_C}, 1024, s{S_C}")]), o(f"v_add_u32 v{V_SE}, s{S_C}, v{V_SE}")]
    def s_setup2(self):
        a, b, c = V_SX, V_YC[0], V_YC[1]
        L = []
        L += [o(f"v_and_b32 v{a}, 15, v0"), o(f"v_lshrrev_b32 v{b}, 4, v0"), o(f"v_bfe_u32 v{c}, v0, 1, 3"), o(f"v_xor_b32 v{c}, v{c}, v{b}"),
              o(f"v_lshlrev_b32 v{c}, 4, v{c}"), o(f"v_lshlrev_b32 v{a}, 7, v{a}"), o(f"v_add_u32 v{a}, v{a}, v{c}"),
              o(f"v_add_u32 v{V_SA}, s{S_A}, v{a}"), o(f"v_add_u32 v{V_SA}, {2*SLOT}, v{V_SA}"), o(f"v_xor_b32 v{V_SA+1}, 64, v{V_SA}"),
              G([o(f"s_cmp_eq_u32 s{S_W}, 3"), o(f"s_cselect_b32 s{S_C}, {SPARE}, 0")]),
              G([o(f"s_add_u32 s{S_PF}, s{S_A}, {2*SLOT}"), o(f"s_cmp_eq_u32 s{S_W}, 3"), o(f"s_cselect_b32 s{S_C}, s{S_C}, s{S_PF}")]),
              o(f"v_add_u32 v{V_SA+2}, s{S_C}, v{a}"),
              G([o(f"s_movk_i32 s{S_PF}, 4096"), o(f"s_cmp_eq_u32 s{S_W}, 3"), o(f"s_cselect_b32 s{S_PF}, s{S_PF}, {SLOT}")]),
              o(f"v_add_u32 v{V_SA+3}, s{S_PF}, v{V_SA+2}")]
        return L
    def s_setup3(self, t0, t1, t2, t3):
        L = []
        L += [o(f"v_and_b32 v{t0}, 15, v0"), o(f"v_lshrrev_b32 v{t1}, 4, v0"),
              o(f"v_and_b32 v{t2}, 1, v{t1}"), o(f"v_lshlrev_b32 v{t2}, 9, v{t2}"),
              o(f"v_lshrrev_b32 v{t1}, 1, v{t1}"), o(f"v_lshlrev_b32 v{t1}, 10, v{t1}"), o(f"v_add_u32 v{t2}, v{t2}, v{t1}"),
              G([o(f"s_and_b32 s{S_C}, s{S_J}, 7"), o(f"s_mul_i32 s{S_C}, s{S_C}, 36")]),
              o(f"v_add_u32 v{t0}, s{S_C}, v{t0}")]
        for ss in range(3):
            pa, qa, yc = V_ZP + ss, V_ZQ + ss, V_YC[ss]
            L += [o(f"v_lshrrev_b32 v{t1}, 5, v{t0}"), o(f"v_mul_u32_u24 v{t1}, {ZF_STRIDE}, v{t1}"),
                  o(f"v_and_b32 v{t3}, 31, v{t0}"), o(f"v_lshlrev_b32 v{t3}, 4, v{t3}"), o(f"v_add_u32 v{t1}, v{t1}, v{t3}"),
                  o(f"v_add_u32 v{t1}, v{t1}, v{t2}"),
                  o(f"v_subrev_u32 v{t3}, s{S_C}, v{t0}"),
                  o(f"v_lshlrev_b32 v{yc}, 2, v{t0}"), o(f"v_mov_b32 v{qa}, {OOB:#x}"), o(f"v_mov_b32 v{pa}, {OOB:#x}"),
                  G([o(f"v_cmp_gt_u32 vcc, 36, v{t3}"), o("v_nop"), o("v_nop"), o(f"v_cndmask_b32 v{pa}, v{pa}, v{t1}, vcc")]),
                  o(f"v_add_u32 v{t3}, {9*ZF_STRIDE}, v{t1}"),
                  G([o(f"v_cndmask_b32 v{qa}, v{qa}, v{t3}, vcc")]),
                  G([o(f"v_cmp_eq_u32 vcc, 0x120, v{t0}"), o("v_nop"), o("v_nop"), o(f"v_cndmask_b32 v{pa}, v{pa}, v{t1}, vcc")]),
                  G([o(f"v_mov_b32 v{t3}, {OOB:#x}"), o(f"v_cmp_eq_u32 vcc, 0, v{t0}"), o("v_nop"), o("v_nop"), o(f"v_cndmask_b32 v{qa}, v{qa}, v{t3}, vcc")]),
                  G([o(f"v_cmp_eq_u32 vcc, v{t3}, v{pa}"), o("v_nop"), o("v_nop"), o(f"v_cndmask_b32 v{yc}, v{yc}, v{t3}, vcc")]),
                  o(f"v_add_u32 v{t0}, 16, v{t0}")]
        return L

    def phase2_setup(self):
        L = []
        L += [G([o(f"s_xor_b32 s{T6}, s{S_J}, 1"), o(f"s_and_b32 s{T2}, s{T6}, 1"), o(f"s_mul_i32 s{T0}, s{T6}, 288")]),
              G([o(f"s_mul_i32 s{T1}, s{T2}, 224"), o(f"s_add_u32 s{T1}, s{T0}, s{T1}")]),
              G([o(f"s_cmp_eq_u32 s{T2}, 0"), o(f"s_cselect_b32 s{T3}, 64, -64"), o(f"s_cselect_b32 s{T4}, 256, 0")]),
              o(f"s_add_u32 s{T4}, s{T4}, s{T0}")]
        for u in range(4):
            L += [G([o(f"s_mul_i32 s{T5}, s{T3}, {u}"), o(f"s_add_u32 s{T5}, s{T5}, s{T1}")]),
                  G([o(f"s_mul_i32 s{S_N1+2*u}, s{T5}, 1152"), o(f"s_add_u32 s{S_N1+2*u+1}, s{S_N1+2*u}, {32*1152}")])]
        L += [o(f"s_mul_i32 s{S_N1+8}, s{T4}, 1152")]
        L += [G([o(f"s_and_b32 s{T2}, s{S_J}, 1"), o(f"s_mul_i32 s{T0}, s{T2}, 640"), o(f"s_lshr_b32 s{T1}, s{S_J}, 2")])]
        for k in range(4):
            L += [G([o(f"s_add_u32 s{T3}, s{T1}, {(k+1) % 4 if k < 3 else 0}"), o(f"s_and_b32 s{T3}, s{T3}, 3"), o(f"s_lshl_b32 s{T3}, s{T3}, 7")]),
                  o(f"s_add_u32 s{S_CU+k}, s{T0}, s{T3}")]
        L += [G([o(f"s_cmp_eq_u32 s{T2}, 0"), o(f"s_cselect_b32 s{S_CU+4}, 0, 64")]), o(f"s_add_u32 s{S_CU+4}, s{S_CU+4}, 512")]
        return L

    def p2q_setup(self):
        L = [G([o(f"s_and_b32 s{T2}, s{S_J}, 1"), o(f"s_mul_i32 s{T3}, s{T2}, 10"), o(f"s_lshr_b32 s{T4}, s{S_J}, 2")])]
        for k, dst in enumerate(S_QU):
            L += [G([o(f"s_add_u32 s{T5}, s{T4}, {k+1}"), o(f"s_and_b32 s{T5}, s{T5}, 3"), o(f"s_lshl_b32 s{T5}, s{T5}, 1")]),
                  G([o(f"s_add_u32 s{T5}, s{T5}, s{T3}"), o(f"s_lshl_b32 s{T5}, s{T5}, 11"), o(f"s_add_u32 s{dst}, s{T5}, s{S_PB}")])]
        L += [G([o(f"s_lshl_b32 s{T5}, s{T4}, 1"), o(f"s_add_u32 s{T5}, s{T5}, s{T3}"), o(f"s_bfe_u32 s{T4}, s{S_J}, 0x10001")]),
              G([o(f"s_add_u32 s{S_TO}, s{T5}, s{T4}"), o(f"s_xor_b32 s{T4}, s{T4}, 1"), o(f"s_add_u32 s{T5}, s{T5}, s{T4}")]),
              G([o(f"s_lshl_b32 s{T5}, s{T5}, 11"), o(f"s_add_u32 s{S_QN}, s{T5}, s{S_PB}")]),
              G([o(f"s_add_u32 s{T5}, s{T2}, 8"), o(f"s_lshl_b32 s{T5}, s{T5}, 11"), o(f"s_add_u32 s{S_Q8}, s{T5}, s{S_PB}")])]
        return L

    def main(self):
        DIST = self.opts.get("dist", 7)
        M = []; frags = []
        fu = {}; lu = {}
        def addfrag(reads_fn, use, dist=None, stage=None):
            f = len(frags); a = AF + 4*(f % NAF)
            fr = dict(reads=reads_fn(a), use=use)
            if dist: fr["dist"] = dist
            frags.append(fr)
            if stage is not None and stage not in fu:
                fu[stage] = use; fr["stage_first"] = stage
            return f, a
        def tr(base, off, off2): return lambda a: [f"ds_read_b64_tr_b16 a[{a}:{a+1}], v{base} offset:{off}", f"ds_read_b64_tr_b16 a[{a+2}:{a+3}], v{base} offset:{off+off2}"]
        for u in range(4):
            for mat in range(2):
                for kh in range(2):
                    sig = 4*u + 2*mat + kh
                    for half in range(2):
                        acc = (GA if mat == 0 else UA)[u % 2][half]
                        for kk in range(18):
                            ks = kh*18 + kk; g = len(M)
                            f, a = addfrag(tr((V_RA if half == 0 else V_RB) + sig % 4, kk*2048, 512), g, stage=("st", sig))
                            M.append(dict(op=32, acc=f"v[{acc}:{acc+15}]", first=(ks == 0), A=f"a[{a}:{a+3}]", B=f"a[{AX+4*ks}:{AX+4*ks+3}]", need=f))
                            lu[("st", sig)] = g
        for mat in range(2):
            acc = (GA if mat == 0 else UA)[0][0]
            for ks in range(36):
                g = len(M)
                f, a = addfrag(tr(V_R8 + mat, ks*1024, 256), g, stage=("st", 16+mat))
                M.append(dict(op=32, acc=f"v[{acc}:{acc+15}]", first=(ks == 0), A=f"a[{a}:{a+3}]", B=f"a[{AX+4*ks}:{AX+4*ks+3}]", need=f))
                lu[("st", 16+mat)] = g
        S0 = len(M)
        def accP(tt, ss):
            i = tt*3 + ss
            return 48 + 4*i if i < 4 else 112 + 4*(i - 4)
        def accQ(tt, ss):
            i = tt*3 + ss
            return 64 + 4*i if i < 4 else 128 + 4*(i - 4)
        def zP(ss, k):
            i = k*3 + ss
            return f"a[{AZ+4*i}:{AZ+4*i+3}]"
        def zQ(ss, k):
            i = k*3 + ss
            if i < 5: return f"a[{AZ+60+4*i}:{AZ+60+4*i+3}]"
            i -= 5
            if i < 4: return f"v[{32+4*i}:{32+4*i+3}]"
            i -= 4
            if i < 4: return f"v[{96+4*i}:{96+4*i+3}]"
            i -= 4
            return f"a[{4*i}:{4*i+3}]"
        self.zP, self.zQ, self.accP, self.accQ = zP, zQ, accP, accQ
        for mat, accf, zf in ((0, accP, zP), (1, accQ, zQ)):
            for k in range(5):
                for tt in range(2):
                    g = len(M)
                    if k < 4:
                        base = V_SA + (k & 1); off = mat*SLOT + (k >> 1)*4096 + tt*2048
                        st = ("C" if mat == 0 else "S", 0)
                    else:
                        base = V_SA + 2 + mat; off = tt*2048; st = ("CX" if mat == 0 else "SX", 0)
                    f, a = addfrag(lambda a, base=base, off=off: [f"ds_read_b128 a[{a}:{a+3}], v{base} offset:{off}"], g, dist=8, stage=st)
                    for ss in range(3):
                        ac = accf(tt, ss)
                        M.append(dict(op=16, acc=f"v[{ac}:{ac+3}]", first=(k == 0), A=f"a[{a}:{a+3}]", B=zf(ss, k), need=f))
                        lu[st] = len(M) - 1
            if mat == 0: SP_END = len(M)
        P2_0 = len(M)
        stages = [(0, "own"), (1, "own"), (2, "own"), (0, "par"), (1, "par"), (2, "par"), (4, "both"), (3, "own"), (3, "par")]
        slot_order = [0, 1, 2, 0, 3, 1, 2, 0, 3]
        slot_of = {st: slot_order[i] for i, st in enumerate(stages)}
        ACC = {0: [32, 96], 1: [16, 80], 2: [48, 112], 3: [64, 128], 4: [32]}
        tile_last = {}
        def p2run(st, half, base, ks=None):
            u, who = st
            acc = ACC[u][half]
            for k in (ks or range(18)):
                g = len(M)
                f, a = addfrag(tr(base, k*2048, 1024), g, stage=("s2", st))
                M.append(dict(op=32, acc=f"v[{acc}:{acc+15}]", first=(who == "own" and k == 0), A=f"a[{a}:{a+3}]",
                              B=(f"v[{HF+4*k}:{HF+4*k+3}]" if who == "own" else f"a[{HPB+4*k}:{HPB+4*k+3}]"), need=f))
                tile_last[(u, half)] = g; lu[("s2", st)] = g
        for st in stages[:7]:
            u, who = st; slot = slot_of[st]
            if u < 4 and who == "par" and u in (0, 1) and self.opts.get("klate", 1):
                for rng in (range(12), range(12, 18)):
                    for half in range(2): p2run(st, half, (V_RA if half == 0 else V_RB) + slot, rng)
            elif u < 4:
                for half in range(2): p2run(st, half, (V_RA if half == 0 else V_RB) + slot)
            else:
                acc = ACC[4][0]
                for k in range(36):
                    g = len(M)
                    f, a = addfrag(tr(V_R8, k*1024, 512), g, stage=("s2", st))
                    M.append(dict(op=32, acc=f"v[{acc}:{acc+15}]", first=(k == 0), A=f"a[{a}:{a+3}]",
                                  B=(f"v[{HF+4*k}:{HF+4*k+3}]" if k < 18 else f"a[{HPB+4*(k-18)}:{HPB+4*(k-18)+3}]"), need=f))
                    tile_last[(4, 0)] = g; lu[("s2", st)] = g
        p2run((3, "own"), 0, V_LB); p2run((3, "par"), 0, V_LB + 1); p2run((3, "own"), 1, V_LB + 2); p2run((3, "par"), 1, V_LB + 3)
        N = len(M)
        last_use = {}
        for g, m in enumerate(M): last_use[m["need"]] = g
        for f, fr in enumerate(frags):
            d = fr.get("dist", DIST)
            t = fr["use"] - d
            if f >= NAF and t < last_use[f - NAF]: fr["dist"] = fr["use"] - last_use[f - NAF]
        for fr in frags:
            st = fr.get("stage_first")
            if st is None: continue
            if st[0] in ("st", "s2"):
                tags = [st]
                if st == ("st", 3): tags += ["zst", "flinit"]
                if st == ("st", 17): tags += ["hst"]
                fr["pre"] = [wvm(tags), o("s_barrier")]
                if st == ("st", 17):
                    fr["pre"] += [vm(f"buffer_store_dword v{V_ONE}, v{V_ONE0}, s[{SR_WS}:{SR_WS+3}], s{S_FL} offen sc1", "fl1")]
                if st == ("st", 3):
                    fr["pre"] += [vm(f"buffer_atomic_add v{V_ONE}, v{V_ONE0}, s[{SR_HZ}:{SR_HZ+3}], 0 offen offset:128 sc1", "zpub")]
            elif st == ("CX", 0):
                fr["pre"] = [wvm([("cs", ("CX", 0)), ("cs", ("SX", 0))]), o("s_barrier")]
            elif st == ("SX", 0):
                fr["pre"] = []
            else:
                fr["pre"] = [wvm(("cs", st))]
        stamps = {0: "p1", 144: "u1", 288: "u2", 432: "u3", 576: "u4", S0: "S0", SP_END: "SP", P2_0: "p2", P2_0 + 108: "p2b", P2_0 + 216: "p2c"}
        if self.opts.get("hdiag") == 2:
            stamps = {0: "p1", 144: "u1", 288: "u2", 432: "u3", 576: "u4", S0: "S0", P2_0: "p2", P2_0 + 108: "p2b", P2_0 + 216: "p2c"}
        if self.opts.get("fine") == 2:
            stamps = {0: "p1", S0: "S0", P2_0: "p2"}
            for k in range(9, 127, 9): stamps[P2_0 + k] = f"+{k}"
        elif self.opts.get("fine"):
            stamps = {0: "p1", 432: "u3", 576: "u4", 594: "s594", 612: "s612", 630: "s630", S0: "S0", 660: "s660", 672: "s672", 684: "s684", SP_END: "SP", 714: "s714", 726: "s726", 738: "s738", P2_0: "p2", P2_0 + 36: "a36", P2_0+72: "a72", P2_0 + 108: "p2b", P2_0 + 216: "p2c"}
        for g, name in stamps.items():
            if self.diag: M[g].setdefault("before", []).extend(self.stamp(name))
        self.tail2 = []

        def setup(sl, head):
            rbar = {st: fu[st] - DIST for st in fu if st[0] in ("st", "s2")}
            for b in rbar.values():
                if b >= 0: sl.budget[b] = 4
            def fbar(t):
                sl.put(t, [o("s_barrier")])
            busy = {"end": -1}
            def place(groups, start, step=1):
                s = max(start, busy["end"] + 1)
                for grp in groups:
                    sl.put(s, grp); busy["end"] = s; s += step
                return s
            sl.put(2, [o(f"v_mov_b32 v{V_ONE}, 1")])
            eh = sl.stream(self.rr_reads(48, 112) + self.h_epilogue(S_A, V_HACC, 48, 64), 12, 46)
            eh = sl.stream(self.rr_reads(48, 112, 2) + self.h_epilogue(S_B, 128, 48, 64), eh + 1, eh + 34)
            assert eh < 92, eh
            for mat in range(2):
                slot = (16 + mat) % 4
                ins = [o("v_lshrrev_b32 v224, 5, v0"), o("v_lshlrev_b32 v224, 9, v224"),
                       o("v_bfe_u32 v225, v0, 2, 2"), o("v_lshlrev_b32 v225, 6, v225"), o("v_add_u32 v224, v224, v225"),
                       o("v_bfe_u32 v225, v0, 4, 1"), o("v_lshlrev_b32 v225, 5, v225"), o("v_add_u32 v224, v224, v225"),
                       o("v_and_b32 v225, 3, v0"), o("v_lshlrev_b32 v225, 3, v225"), o("v_add_u32 v224, v224, v225"),
                       o(f"v_add_u32 v{V_R8+mat}, {slot*SLOT}, v224")]
                sl.stream(ins, 70 + 20*mat, 88 + 20*mat)
            dma_end = {}
            for sig in range(2, 18):
                grps = self.dma_p1(sig, sig % 4)
                if sig == 2: start = 0
                elif sig == 3: start = 9*self.opts.get('dstep', 2)
                elif self.opts.get("fb", 1):
                    t = lu[("st", sig - 4)]; fbar(t); start = t + 1
                else:
                    start = min(b for b in rbar.values() if b >= lu[("st", sig - 4)]) + 1
                dma_end[sig] = place(grps, start, self.opts.get("dstep", 2))
            self.paced_prefetch(sl, dma_end)
            self.mode_check(sl, M)
            sl.put(590, [G([o(f"s_lshl_b32 s{S_FL}, s{S_LID}, 7"), o(f"s_add_u32 s{S_FL}, s{S_FL}, {WS_FLAG}")])])
            sl.put(592, [o(f"v_mov_b32 v{V_ONE}, 1")])
            e0 = sl.stream(self.geglu(0), 145, 211)
            sl.stream(self.hstore(0) + self.geglu(1) + self.hstore(1), max(e0 + 1, 212), 287)
            for u in range(1, 3):
                sl.stream(self.geglu(2*u) + self.hstore(2*u) + self.geglu(2*u+1) + self.hstore(2*u+1), 144*(u+1) + 1, 144*(u+2) - 1)
            es = sl.stream(self.s_setup(), eh + 1, eh + 11)
            es = sl.stream(self.s_setup2(), es + 1, es + 10)
            assert es < 118, es
            sl.stream(self.s_setup3(224, 225, 226, 227), max(es + 1, 112), 143)
            ep = sl.stream(self.phase2_setup(), 66, 100)
            assert ep < 110
            sl.stream(self.s_setup_e(229, 0), 440, 464)
            t = lu[("st", 14)]; fbar(t); e = place(self.dma_cs(0, 2, ("cs", ("C", 0))), t + 1, 2)
            place(self.dma_cx(0, ("cs", ("CX", 0))) + self.dma_cx(1, ("cs", ("SX", 0))), e, 2)
            t = lu[("st", 15)]; fbar(t); place(self.dma_cs(1, 3, ("cs", ("S", 0))), t + 1, 2)
            self.main_rest(sl, M, fu, lu, stages, slot_of, ACC, tile_last, S0, SP_END, P2_0, N, fbar, place)
        L = self.paced(M, frags, setup, DIST)
        return L + self.tail2

    def mode_check(self, sl, M):
        if not self.opts.get("local", 0): return
        t = 0
        ld = f"buffer_load_dwordx2 v[222:223], off, s[{SR_HZ}:{SR_HZ+3}], s{T5} sc1"
        ld = f"buffer_load_dwordx2 v[230:231], off, s[{SR_HZ}:{SR_HZ+3}], s{S_XC} sc1"
        if self.opts.get("cfg", 0) == 0:
            ld = f"buffer_load_dword v230, off, s[{SR_HZ}:{SR_HZ+3}], s{S_XC} sc1"
            sl.put(140, [G([o(f"s_lshr_b32 s{S_XC}, s{S_LID}, 3"), o(f"s_lshl_b32 s{S_XC}, s{S_XC}, 2")])])
        else:
            sl.put(140, [G([o(f"s_lshl_b32 s{S_XC}, s{S_MT}, 3")])])
        sl.put(143, [vm(ld, "xcc")])
        sl.put(205, [wvm("xcc")])
        sl.put(206, [o(f"v_readfirstlane_b32 s{T6}, v230"), o(f"v_readfirstlane_b32 s{T7}, v231")])
        def nz(r, tmp):
            return [o(f"s_lshr_b32 s{tmp}, s{r}, 1"), o(f"s_or_b32 s{tmp}, s{tmp}, s{r}"), o(f"s_lshr_b32 s{T3}, s{tmp}, 2"), o(f"s_or_b32 s{tmp}, s{tmp}, s{T3}"),
                    o(f"s_and_b32 s{tmp}, s{tmp}, 0x11111111")]
        chk = nz(T6, T1) + nz(T7, T2) + [o(f"s_and_b32 s{T1}, s{T1}, s{T2}"), o(f"s_cmp_eq_u32 s{T1}, 0x11111111")]
        if self.opts.get("cfg", 0) == 0:
            ld = f"buffer_load_dword v230, off, s[{SR_HZ}:{SR_HZ+3}], s{S_XC} sc1"
            ext = [o(f"s_and_b32 s{T1}, s{S_LID}, 6"), o(f"s_lshl_b32 s{T1}, s{T1}, 2"), o(f"s_lshr_b32 s{T2}, s{T6}, s{T1}"),
                   o(f"s_and_b32 s{T3}, s{T2}, 15"), o(f"s_bfe_u32 s{T2}, s{T2}, 0x40004"),
                   o(f"s_min_u32 s{T1}, s{T2}, s{T3}"), o(f"s_cmp_ge_u32 s{T1}, 1")]
            blk = ext + [o("s_cbranch_scc1 L_xc_ok")] + self.spin("L_xc", [o(ld)], [o(f"v_readfirstlane_b32 s{T6}, v230"), o("s_nop 3")] + ext)
            blk += [o(f"s_cmp_eq_u32 s{T2}, s{T3}"), o(f"s_cselect_b32 s{S_MODE}, 1, 0")]
            if self.opts.get("forceglobal"): blk += [o(f"s_mov_b32 s{S_MODE}, 0")]
            M[209].setdefault("before", []).extend(blk)
            return
        blk = chk + [o("s_cbranch_scc1 L_xc_ok")] + self.spin("L_xc", [o(ld)],
              [o(f"v_readfirstlane_b32 s{T6}, v230"), o(f"v_readfirstlane_b32 s{T7}, v231"), o("s_nop 3")] + chk)
        blk += [o(f"s_and_b32 s{T1}, s{T6}, 15"), o(f"s_mul_i32 s{T1}, s{T1}, 0x11111111"),
                o(f"s_cmp_eq_u32 s{T1}, s{T6}"), o(f"s_cselect_b32 s{S_MODE}, 1, 0"),
                o(f"s_cmp_eq_u32 s{T1}, s{T7}"), o(f"s_cselect_b32 s{S_MODE}, s{S_MODE}, 0")]
        if self.opts.get("forceglobal"): blk += [o(f"s_mov_b32 s{S_MODE}, 0")]
        M[209].setdefault("before", []).extend(blk)

    def bulk(self, sl, t):
        bk = [G([o(f"s_lshl_b32 s{S_PF}, s{S_LID}, 2"), o(f"s_add_u32 s{S_PF}, s{S_PF}, s{S_W}"), o(f"s_mul_i32 s{S_PF}, s{S_PF}, 41")]),
              o(f"v_add_u32 v{V_PF}, s{S_PF}, v0"), o(f"v_lshlrev_b32 v{V_PF}, 7, v{V_PF}"),
              G([o("v_cmp_gt_u32 vcc, 41, v0"), o("v_nop"), o("v_nop"), o(f"v_cndmask_b32 v{V_PF}, v{V_ONE0}, v{V_PF}, vcc")])]
        e = sl.stream(bk, t, t + 5, spill=2)
        sl.put(e + 1, [vm(f"buffer_load_dword v{V_PF}, v{V_PF}, s[{SR_WG}:{SR_WG+3}], 0 offen", "pf")])
        sl.put(e + 2, [vm(f"buffer_load_dword v{V_PF}, v{V_PF}, s[{SR_WU}:{SR_WU+3}], 0 offen", "pf")])
        return e + 2

    def paced_prefetch(self, sl, dma_end):
        if self.opts.get("bulkat", 0) == 1:
            bk = [G([o(f"s_lshl_b32 s{S_PF}, s{S_LID}, 2"), o(f"s_add_u32 s{S_PF}, s{S_PF}, s{S_W}"), o(f"s_mul_i32 s{S_PF}, s{S_PF}, 41")]),
                  o(f"v_add_u32 v230, s{S_PF}, v0"), o(f"v_lshlrev_b32 v230, 7, v230"),
                  G([o("v_cmp_gt_u32 vcc, 41, v0"), o("v_nop"), o("v_nop"), o(f"v_cndmask_b32 v230, v{V_ONE0}, v230, vcc")])]
            e = sl.stream(bk, 0, 8, spill=2)
            assert e < 12
            s = dma_end[self.opts.get("bulkst", 3)]
            sl.put(s, [vm(f"buffer_load_dword v{V_PF}, v230, s[{SR_WG}:{SR_WG+3}], 0 offen", "pf")])
            sl.put(s + 1, [vm(f"buffer_load_dword v{V_PF}, v230, s[{SR_WU}:{SR_WU+3}], 0 offen", "pf")])
        if not self.opts.get("ppf", 1): return
        Dd, Cc, t = 228, 229, 227
        if self.opts.get("lbulk"):
            first = [G([o(f"s_lshl_b32 s{S_PF}, s{S_MT}, 2"), o(f"s_add_u32 s{S_PF}, s{S_PF}, s{S_W}"), o(f"s_mul_i32 s{S_PF}, s{S_PF}, 41")]),
                     G([o(f"s_mul_i32 s{S_C}, s{S_J}, 2592"), o(f"s_add_u32 s{S_PF}, s{S_PF}, s{S_C}")])]
        else:
            first = [G([o(f"s_lshl_b32 s{S_PF}, s{S_LID}, 2"), o(f"s_add_u32 s{S_PF}, s{S_PF}, s{S_W}"), o(f"s_mul_i32 s{S_PF}, s{S_PF}, 41")])]
        setup = first + [
                 o(f"v_add_u32 v{Dd}, s{S_PF}, v0"), o(f"v_lshlrev_b32 v{Dd}, 7, v{Dd}"), o(f"v_mov_b32 v{t}, {OOB:#x}"),
                 G([o("v_cmp_gt_u32 vcc, 41, v0"), o("v_nop"), o("v_nop"), o(f"v_cndmask_b32 v{Dd}, v{t}, v{Dd}, vcc")]),
                 G([o(f"s_and_b32 s{S_PF}, s{S_J}, 7"), o(f"s_lshl_b32 s{S_PF}, s{S_PF}, 2"), o(f"s_add_u32 s{S_PF}, s{S_PF}, s{S_W}")]),
                 G([o(f"s_and_b32 s{S_C}, s{S_PF}, 15"), o(f"s_lshl_b32 s{S_C}, s{S_C}, 1"), o(f"s_add_u32 s{S_C}, s{S_C}, s{S_TAU}")]),
                 G([o(f"s_lshl_b32 s{S_ST0}, s{S_MT}, 5"), o(f"s_add_u32 s{S_C}, s{S_C}, s{S_ST0}"), o(f"s_sub_u32 s{S_ST0}, 1024, s{S_C}")]),
                 G([o(f"s_cmp_lt_u32 s{S_PF}, 16"), o(f"s_cselect_b32 s{S_PF}, s{S_C}, s{S_ST0}"), o(f"s_lshl_b32 s{S_PF}, s{S_PF}, 12")]),
                 o(f"v_lshlrev_b32 v{Cc}, 7, v0"), o(f"v_add_u32 v{Cc}, s{S_PF}, v{Cc}"),
                 G([o("v_cmp_gt_u32 vcc, 9, v0"), o("v_nop"), o("v_nop"), o(f"v_cndmask_b32 v{Cc}, v{t}, v{Cc}, vcc")])]
        e = sl.stream(setup, 146, 176)
        s = dma_end[self.opts.get("pfw", 9)]
        assert s > e + 6
        if self.opts.get("bulk", 1) != 2: sl.put(s, [vm(f"buffer_load_dword v{V_PF}, v{Dd}, s[{SR_WD}:{SR_WD+3}], 0 offen", "pf")])
        if self.opts.get("wdl2", 1):
            A2, t2 = 230, 226
            st2 = [G([o(f"s_and_b32 s{S_PF}, s{S_MT}, 7"), o(f"s_mul_i32 s{S_PF}, s{S_PF}, 36"), o(f"s_mul_i32 s{S_C}, s{S_W}, 9")]),
                   o(f"s_add_u32 s{S_PF}, s{S_PF}, s{S_C}"), o(f"v_add_u32 v{t2}, s{S_PF}, v0"), o(f"v_mul_u32_u24 v{t2}, 1152, v{t2}"),
                   o(f"v_mov_b32 v227, {OOB:#x}"),
                   G([o("v_cmp_gt_u32 vcc, 9, v0"), o("v_nop"), o("v_nop"), o(f"v_cndmask_b32 v{t2}, v227, v{t2}, vcc")])]
            e2 = sl.stream(st2, 474, 486)
            def wl(own, k, t):
                sl.put(t, [G([o(f"s_{'mul_i32' } s{S_PF}, s{S_J if own else S_J}, {288*1152}")] + ([] if own else [o(f"s_xor_b32 s{S_C}, s{S_J}, 1"), o(f"s_mul_i32 s{S_PF}, s{S_C}, {288*1152}")]) + [o(f"s_add_u32 s{S_PF}, s{S_PF}, s{S_CU+k}")])])
                sl.put(t + 1, [vm(f"buffer_load_dword v{V_PF}, v{t2}, s[{SR_WD}:{SR_WD+3}], s{S_PF} offen", "pf")])
            s = dma_end[16]; wl(True, 0, s); wl(True, 1, s + 2)
            s = dma_end[17]; wl(True, 2, s); wl(False, 0, s + 2)
        s = dma_end[self.opts.get("pfc", 11)]
        sl.put(s, [vm(f"buffer_load_dword v{V_PF}, v{Cc}, s[{SR_CS}:{SR_CS+3}], 0 offen", "pf")])
        sl.put(s + 1, [vm(f"buffer_load_dword v{V_PF}, v{Cc}, s[{SR_SS}:{SR_SS+3}], 0 offen", "pf")])

    def rowmir(self, sRB, sT, t0, t1, t2, t3):
        return [o(f"s_lshl_b32 s{sT}, s{sRB}, 3"), o(f"v_and_b32 v{t0}, 7, v0"), o(f"v_add_u32 v{t0}, s{sT}, v{t0}"),
                o(f"v_bfe_u32 v{t1}, v0, 3, 2"),
                o(f"v_add_u32 v{t2}, 1, v{t1}"), o(f"v_lshrrev_b32 v{t2}, 1, v{t2}"), o(f"v_lshlrev_b32 v{t2}, 10, v{t2}"),
                o(f"v_add_u32 v{t3}, v{t2}, v{t0}"), o(f"v_sub_u32 v{t2}, v{t2}, v{t0}"),
                o(f"v_and_b32 v{t1}, 1, v{t1}"),
                G([o(f"v_cmp_eq_u32 vcc, 1, v{t1}"), o("v_nop"), o("v_nop"), o(f"v_cndmask_b32 v{t3}, v{t3}, v{t2}, vcc")]),
                o(f"v_bfe_u32 v{t1}, v0, 3, 2"), o(f"v_lshlrev_b32 v{t2}, 10, v{t1}"), o(f"v_subrev_u32 v{t2}, 0x600, v{t2}"),
                G([o(f"v_cmp_le_u32 vcc, 2, v{t1}"), o("v_nop"), o("v_nop"), o(f"v_cndmask_b32 v{t2}, v{t3}, v{t2}, vcc")]),
                G([o(f"v_cmp_eq_u32 vcc, 0, v{t0}"), o("v_nop"), o("v_nop"), o(f"v_cndmask_b32 v{t0}, v{t3}, v{t2}, vcc")]),
                o(f"v_sub_u32 v{t1}, 2048, v{t0}"), o(f"v_and_b32 v{t1}, 0x7ff, v{t1}")]

    def owner_addr(self):
        sQ = S_TO
        t0, t1, t2, t3 = 244, 245, 246, 247
        L = [G([o(f"s_lshl_b32 s{T4}, s{S_MT}, 2"), o(f"s_add_u32 s{T4}, s{T4}, s{S_W}")]),
             G([o(f"s_mul_i32 s{T5}, s{T4}, 18"), o(f"s_add_u32 s{T5}, s{T5}, s{sQ}"), o(f"s_lshl_b32 s{T5}, s{T5}, 11")]),
             o(f"s_lshr_b32 s{T3}, s{S_J}, 1")]
        for i, d in enumerate((2, 3, 4, 5, 6, 7, 1)):
            L += [G([o(f"s_xor_b32 s{16+i}, s{T3}, {d}"), o(f"s_mul_i32 s{16+i}, s{16+i}, {PART_BYTES}"), o(f"s_add_u32 s{16+i}, s{16+i}, s{T5}")])]
        L += self.rowmir(T4, T5, t0, t1, t2, t3) + [
              o(f"s_lshl_b32 s{T5}, s{sQ}, 6"),
              o(f"v_mul_u32_u24 v{t2}, 1152, v{t0}"), o(f"v_add_u32 v{t2}, s{T5}, v{t2}"),
              o(f"v_lshrrev_b32 v{t3}, 5, v0"), o(f"v_lshlrev_b32 v238, 4, v{t3}"), o(f"v_add_u32 v238, v{t2}, v238"),
              o(f"v_lshlrev_b32 v237, 3, v{t3}"), o(f"v_add_u32 v237, v{t2}, v237"),
              G([o(f"s_lshl_b32 s{T5}, s{sQ}, 7"), o(f"s_cmp_lt_u32 s{sQ}, 9"), o(f"s_cselect_b32 s24, 0, 1")]),
              G([o(f"s_sub_u32 s{T4}, {2292 - 96}, s{T5}"), o(f"s_cmp_lt_u32 s{sQ}, 9"), o(f"s_cselect_b32 s{T5}, s{T5}, s{T4}"), o(f"s_cselect_b32 s{T4}, 1, -1")]),
              G([o(f"v_mov_b32 v{t2}, s24"), o(f"v_cmp_eq_u32 vcc, 1, v{t2}"), o("v_nop"), o("v_nop"), o(f"v_cndmask_b32 v{t0}, v{t0}, v{t1}, vcc")]),
              o(f"v_mul_u32_u24 v{t0}, {YP}, v{t0}"), o(f"v_add_u32 v{t0}, s{T5}, v{t0}"),
              o(f"v_lshlrev_b32 v{t3}, 4, v{t3}"), o(f"v_mul_lo_u32 v{t3}, v{t3}, s{T4}"), o(f"v_add_u32 v{t0}, v{t0}, v{t3}"),
              o(f"v_add_u32 v239, {WS_YH}, v{t0}")]
        return L

    def pipe_reduce(self, sl, M, fu, lu, P2_0, N):
        self.items_cfg()
        t4 = P2_0 + self.opts.get("t4", 254)
        sl.put(t4 - 3, [o("v_mov_b32 v240, 4")])
        sl.put(t4, [wvm([("pst", 0), ("pst", 1), ("pst", 2), "yst"]), o("s_barrier")])
        sl.put(t4 + 1, [vm(f"buffer_store_dword v240, v{V_ONE0}, s[{SR_WS}:{SR_WS+3}], s{S_FL} offen sc1", "fl4")])
        ep = sl.stream(self.p2q_setup(), P2_0 + 102, P2_0 + 124)
        assert ep < P2_0 + 132
        s_own, s_par = 0, 3
        lb = [G([o(f"s_bfe_u32 s{T5}, s{S_J}, 0x10001"), o(f"s_lshl_b32 s{T5}, s{T5}, 6"), o(f"s_xor_b32 s{T4}, s{T5}, 64")]),
              o(f"v_xor_b32 v{V_LB}, s{T4}, v{V_RA+s_own}"), o(f"v_xor_b32 v{V_LB+1}, s{T4}, v{V_RA+s_par}"),
              o(f"v_xor_b32 v{V_LB+2}, s{T5}, v{V_RA+s_own}"), o(f"v_xor_b32 v{V_LB+3}, s{T5}, v{V_RA+s_par}")]
        sl.stream(lb, P2_0 + 190, P2_0 + 200)
        e = sl.stream(self.owner_addr(), P2_0 + 204, P2_0 + 250)
        e = sl.stream([G([o(f"s_and_b32 s{T6}, s{S_J}, 1"), o(f"s_lshl_b32 s{T6}, s{T6}, 7"), o(f"s_lshl_b32 s{T7}, s{S_MT}, 11")]),
                       G([o(f"s_add_u32 s{T6}, s{T6}, s{T7}"), o(f"s_add_u32 s{T6}, s{T6}, {WS_FLAG}")]),
                       o("v_lshlrev_b32 v242, 8, v0"), o(f"v_mov_b32 v241, {OOB:#x}"),
                       G([o("v_cmp_gt_u32 vcc, 8, v0"), o("v_nop"), o("v_nop"), o("v_cndmask_b32 v242, v241, v242, vcc")])], e + 1, e + 8)
        for i in range(4): sl.put(e + 2 + i, [vm(f"buffer_load_dwordx2 v[{24+2*i}:{25+2*i}], v237, s[{SR_X}:{SR_X+3}], 0 offen offset:{16*i}", "ox")])
        tpoll = max(e + 7, P2_0 + self.opts.get("tpa", 284))
        ld, chk = self.group_poll("L_gA", 4, 241, 242)
        sl.put(tpoll, [vm(ld, "gpA")])
        sl.put(tpoll + 9, [wvm("gpA")])
        M[tpoll + 11].setdefault("before", []).extend(chk + [o("s_cbranch_scc1 L_gA_ok")] + self.spin("L_gA", [o(ld)], chk))
        lds = []
        for i in range(6):
            lds += [vm(f"buffer_load_dwordx4 v[{80+8*i}:{83+8*i}], v{V_L16}, s[{SR_WS}:{SR_WS+3}], s{16+i} offen sc1", "op"),
                    vm(f"buffer_load_dwordx4 v[{84+8*i}:{87+8*i}], v{V_L16}, s[{SR_WS}:{SR_WS+3}], s{16+i} offen offset:1024 sc1", "op")]
        lds += [vm(f"buffer_load_dwordx4 v[{48+4*i}:{51+4*i}], v239, s[{SR_WS}:{SR_WS+3}], 0 offen offset:{32*i} sc1", "op") for i in range(4)]
        s = tpoll + 11
        self.late_loads = []
        stp = self.opts.get("ostep", 2)
        for l in lds:
            if s < N - 1: sl.put(s, [l]); s += stp
            else: self.late_loads.append(l)
        print("owner loads: in loop until", s, "late:", len(self.late_loads), "N", N)
        t5 = N - self.opts.get("t5", 10)
        sl.put(t5 - 3, [o("v_mov_b32 v240, 5")])
        sl.put(t5, [wvm([("pst", 3), ("pst", 4)]), o("s_barrier")])
        sl.put(t5 + 1, [vm(f"buffer_store_dword v240, v{V_ONE0}, s[{SR_WS}:{SR_WS+3}], s{S_FL} offen sc1", "fl5")])
        self.RDx = dict(P=("v", 176), X=208, Y=212, OA=220, PV=221, t=[222, 223, 224, 225], rev=26, so=84)
        Ad, Ld = self.item_setup("D", self.RDx, split=True)
        self.D_ld = Ld
        eD = sl.stream(Ad, N - 17, N - 1, spill=0)
        print("D addr until", eD)

    def spin(self, label, load, cond_ok, regs_note=""):
        return [o(f"s_mov_b32 s{S_CNT}, 0"), raw(f"{label}:")] + load + [o("s_waitcnt vmcnt(0)")] + cond_ok + \
               [o(f"s_cbranch_scc1 {label}_ok"), o(f"s_add_u32 s{S_CNT}, s{S_CNT}, 1"), o(f"s_cmp_gt_u32 s{S_CNT}, 0x40000"), o(f"s_cbranch_scc1 {label}_ok"),
                o("s_sleep 1"), o(f"s_branch {label}"), raw(f"{label}_ok:")]

    def main_rest(self, sl, M, fu, lu, stages, slot_of, ACC, tile_last, S0, SP_END, P2_0, N, fbar, place):
        zP, zQ, accP, accQ = self.zP, self.zQ, self.accP, self.accQ
        DIST = self.opts.get("dist", 7)
        if self.opts.get("esig", 1):
            e = sl.stream(self.geglu_sig(6, 8), 490, 535)
            e = sl.stream(self.geglu_sig(7, 8), max(e + 1, 508), 578)
            e6 = sl.stream(self.geglu_fin(6) + self.hstore(6), max(e + 1, 579), 596)
            e7 = sl.stream(self.geglu_fin(7) + self.hstore(7), e6 + 1, 614)
            assert e7 < S0 - 2, e7
            e8 = sl.stream(self.geglu_sig(8, 8), max(e7 + 1, 616), S0 + 2)
            e8 = sl.stream(self.geglu_fin(8) + self.hstore(8), max(e8 + 1, S0 + 4), S0 + 16)
            self.e8 = e8
        else:
            e6 = sl.stream(self.geglu(6) + self.hstore(6), 577, 634)
            assert e6 < S0 - 2, e6
            e7 = sl.stream(self.geglu(7) + self.hstore(7), e6 + 1, S0 + 46)
            assert e7 < SP_END - 1, e7
        if not self.opts.get("esig", 1): sl.stream(self.geglu(8, 8) + self.hstore(8), S0 + 4, S0 + 85)
        sl.put(467, [vm(f"buffer_load_dword v230, off, s[{SR_HZ}:{SR_HZ+3}], 0 offset:128 sc1", "zpoll")])
        sl.put(574, [wvm("zpoll")])
        sl.put(575, [o(f"v_readfirstlane_b32 s{T0}, v230")])
        M[578].setdefault("before", []).extend(
            [o(f"s_cmp_ge_u32 s{T0}, 256"), o("s_cbranch_scc1 L_zp_ok")] +
            self.spin("L_zp", [o(f"buffer_load_dword v{V_PF}, off, s[{SR_HZ}:{SR_HZ+3}], 0 offset:128 sc1")],
                      [o(f"v_readfirstlane_b32 s{T0}, v{V_PF}"), o("s_nop 3"), o(f"s_cmp_ge_u32 s{T0}, 256")]))
        def zl(zf, va, k, tagn):
            ins = []
            if k < 4: ins += [o(f"s_add_u32 s{S_C}, s{S_ZB}, {k*2048}")]
            else: ins += [G([o(f"s_cmp_eq_u32 s{S_W}, 3"), o(f"s_cselect_b32 s{S_C}, 0, {OOB:#x}"), o(f"s_add_u32 s{S_C}, s{S_C}, s{S_ZB}")]),
                          o(f"s_add_u32 s{S_C}, s{S_C}, {4*2048}")]
            return ins, [vm(f"buffer_load_dwordx4 {zf(ss,k)}, v{va+ss}, s[{SR_WS}:{SR_WS+3}], s{S_C} offen sc1", (tagn, k)) for ss in range(3)]
        ins = []
        for k in range(5):
            a_, l_ = zl(zP, V_ZP, k, "zp"); ins += a_ + l_
        for k in range(4):
            a_, l_ = zl(zQ, V_ZQ, k, "zq"); ins += a_ + l_
        sl.stream(ins, 579, 644)
        a_, l_ = zl(zQ, V_ZQ, 4, "zq")
        sl.stream(a_ + l_, S0, S0 + 8)
        for k in range(5):
            sl.put(S0 + 6*k - 1, [wvm(("zp", k))])
            sl.put(SP_END + 6*k - 1, [wvm(("zq", k))])
        A5P = [120, 124, 136]; A5Q = [140, 224, 228]
        blk = [o(f"s_or_b32 s{T3}, s{S_MT}, s{S_TAU}"), o(f"s_cmp_eq_u32 s{T3}, 0"), o("s_cbranch_scc0 L_s_n512"),
               o("v_mov_b32 v232, 0x3f80"), o("v_mov_b32 v233, 0xbf80"), o("v_mov_b32 v234, v232"), o("v_mov_b32 v235, v233"),
               o("v_mov_b32 v236, 0xbf800000"), o("v_mov_b32 v237, 0x3f800000"), o("v_mov_b32 v238, v236"), o("v_mov_b32 v239, v237"), o("s_nop 1")]
        for k in range(5):
            for ss in range(3):
                a = A5P[ss]
                blk += [mf16(f"v[{a}:{a+3}]", "v[232:235]", zP(ss, k), "0" if k == 0 else f"v[{a}:{a+3}]")]
                a = A5Q[ss]
                blk += [mf16(f"v[{a}:{a+3}]", "v[236:239]", zQ(ss, k), "0" if k == 0 else f"v[{a}:{a+3}]")]
        blk += [o("s_nop 7"), raw("L_s_n512:")]
        M[P2_0].setdefault("before", []).extend(blk)
        self.A5P, self.A5Q = A5P, A5Q
        t = lu[("st", 16)]; fbar(t)
        e = place(self.dma_p2(stages[0], slot_of[stages[0]], True, 12, 13, V_PF), t + 1, 1)
        t = lu[("st", 17)]; fbar(t)
        e = place(self.dma_p2(stages[1], slot_of[stages[1]], False, 0, 0, 0), t + 1, 1)
        ins = [o(f"v_lshrrev_b32 v{V_PF}, 5, v0"), o(f"v_lshlrev_b32 v{V_PF}, 9, v{V_PF}")]
        for s in range(4): ins += [o(f"v_sub_u32 v{V_RA+s}, v{V_RA+s}, v{V_PF}"), o(f"v_sub_u32 v{V_RB+s}, v{V_RB+s}, v{V_PF}")]
        eb = sl.stream(ins, S0 + 2, S0 + 16)
        t = lu[("CX", 0)]
        sl.put(t, [wvm("hst"), o("s_barrier")])
        sl.put(t + 1, [o(f"v_mov_b32 v{V_PF}, 2")])
        sl.put(t + 2, [vm(f"buffer_store_dword v{V_PF}, v{V_ONE0}, s[{SR_WS}:{SR_WS+3}], s{S_FL} offen sc1", "fl2h")])
        assert eb < t, (eb, t)
        assert self.e8 < t, (self.e8, t)
        place(self.dma_p2(stages[2], slot_of[stages[2]], False, 0, 0, 0), t + 3, 1)
        fbar(lu[("SX", 0)])
        a0 = P2_0 + 3
        t0r, t1r = 240, 241
        SC = 3*SLOT
        N1A = SPARE + 12288
        A5P, A5Q = self.A5P, self.A5Q
        wr = [G([o(f"s_mul_i32 s{S_C}, s{S_W}, 12288"), o(f"s_add_u32 s{S_C}, s{S_C}, {SC}")]),
              o(f"v_lshrrev_b32 v{t0r}, 4, v0"), o(f"v_mul_u32_u24 v{t0r}, 768, v{t0r}"), o(f"v_and_b32 v{t1r}, 15, v0"), o(f"v_lshlrev_b32 v{t1r}, 2, v{t1r}"),
              o(f"v_add_u32 v{t0r}, v{t0r}, v{t1r}"), o(f"v_add_u32 v{t0r}, s{S_C}, v{t0r}")]
        if self.opts.get("w2", 1):
            WB = {(0, 0): t0r, (0, 1): 243, (1, 0): 244, (1, 1): 246}
            wr += [o(f"v_add_u32 v243, {16*192}, v{t0r}"), o(f"v_add_u32 v244, 6144, v{t0r}"), o(f"v_add_u32 v246, {6144 + 16*192}, v{t0r}")]
            for pq, accf in ((0, accP), (1, accQ)):
                for tt in range(2):
                    for ss in range(3):
                        for r in (0, 2):
                            wr += [ds(f"ds_write2_b32 v{WB[(pq, tt)]}, v{accf(tt,ss)+r}, v{accf(tt,ss)+r+1} offset0:{r*48 + ss*16} offset1:{(r+1)*48 + ss*16}", "sred_w")]
            if self.opts.get('nowr'): wr = wr[:10] + wr[-1:]
            e = sl.stream(wr, a0, a0 + self.opts.get("wwin", 22))
        else:
            for pq, accf in ((0, accP), (1, accQ)):
                for tt in range(2):
                    for ss in range(3):
                        for r in range(4):
                            wr += [ds(f"ds_write_b32 v{t0r}, v{accf(tt,ss)+r} offset:{pq*6144 + (16*tt + r)*192 + ss*64}", "sred_w")]
            e = sl.stream(wr, a0, a0 + 30)
        wr2 = [G([o(f"s_mul_i32 s{S_C}, s{S_W}, 384"), o(f"s_add_u32 s{S_C}, s{S_C}, {N1A}")]), o(f"v_add_u32 v{t1r}, s{S_C}, v{t1r}"), o(f"v_mov_b32 v245, 0x30000"),
               G([o("v_cmp_gt_u32 vcc, 16, v0"), o("v_nop"), o("v_nop"), o(f"v_cndmask_b32 v{t1r}, v245, v{t1r}, vcc")])]
        for ss in range(3):
            wr2 += [ds(f"ds_write_b32 v{t1r}, v{A5P[ss]} offset:{ss*64}", "sred_w"), ds(f"ds_write_b32 v{t1r}, v{A5Q[ss]} offset:{(3+ss)*64}", "sred_w")]
        e = sl.stream(wr2, e + 1, e + 8)
        b1 = e + 1
        sl.put(b1, [wlg("sred_w"), o("s_barrier")])
        R0, R1 = 112, 48
        A0, A1, YD0, YM0, YD1, YM1 = 232, 233, 234, 235, 236, 237
        def rowcalc(dst):
            return [o(f"v_mul_lo_u32 v238, v238, s{T7}"), o(f"v_add_u32 v238, s{T4}, v238")]
        def ymir(YD, YM):
            return [o(f"v_mul_u32_u24 v{YD}, {YP}, v238"), o(f"v_add_u32 v{YD}, v{YD}, v239"),
                    o(f"v_sub_u32 v{YM}, 2048, v238"), o(f"v_mul_u32_u24 v{YM}, {YP}, v{YM}"), o(f"v_add_u32 v{YM}, v{YM}, v239"),
                    o(f"v_and_b32 v238, 0x3ff, v238"),
                    G([o(f"v_cmp_eq_u32 vcc, 0, v238"), o(f"v_mov_b32 v238, {OOB:#x}"), o("v_nop"), o(f"v_cndmask_b32 v{YM}, v{YM}, v238, vcc")])]
        ad = [G([o(f"s_lshl_b32 s{T3}, s{S_MT}, 5"), o(f"s_add_u32 s{T3}, s{T3}, s{S_TAU}"), o(f"s_and_b32 s{T4}, s{S_W}, 1")]),
              G([o(f"s_lshl_b32 s{T4}, s{T4}, 4"), o(f"s_add_u32 s{T4}, s{T4}, s{T3}"), o(f"s_sub_u32 s{T3}, 1024, s{T4}")]),
              G([o(f"s_cmp_lt_u32 s{S_W}, 2"), o(f"s_cselect_b32 s{T4}, s{T4}, s{T3}"), o(f"s_cselect_b32 s{T7}, 2, -2")]),
              G([o(f"s_lshl_b32 s{T3}, s{S_W}, 3"), o(f"s_mul_i32 s{T3}, s{T3}, 192"), o(f"s_add_u32 s{T3}, s{T3}, {SC}")]),
              G([o(f"s_and_b32 s{T5}, s{S_J}, 7"), o(f"s_mul_i32 s{T5}, s{T5}, 144")]),
              o(f"v_lshrrev_b32 v238, 3, v0"), o(f"v_and_b32 v239, 7, v0"),
              o(f"v_mul_u32_u24 v{A0}, 192, v238"), o(f"v_lshlrev_b32 v239, 4, v239"), o(f"v_add_u32 v{A0}, v{A0}, v239"), o(f"v_add_u32 v{A0}, s{T3}, v{A0}")] + \
             rowcalc(0) + [o(f"v_add_u32 v239, s{T5}, v239")] + ymir(YD0, YM0) + \
             [o(f"v_and_b32 v238, 7, v0"), o(f"v_lshrrev_b32 v239, 3, v0"), o(f"v_add_u32 v239, 8, v239"), o(f"v_min_u32 v239, 9, v239"),
              o(f"v_mul_u32_u24 v{A1}, 192, v238"), o(f"v_lshlrev_b32 v239, 4, v239"), o(f"v_add_u32 v{A1}, v{A1}, v239"), o(f"v_add_u32 v{A1}, s{T3}, v{A1}")] + \
             rowcalc(1) + [o(f"v_add_u32 v239, s{T5}, v239")] + ymir(YD1, YM1) + \
             [G([o(f"s_cmp_eq_u32 s{T5}, {7*144}"), o(f"s_cselect_b32 s{T5}, 16, 8")]), o(f"v_mov_b32 v238, {OOB:#x}"),
              G([o(f"v_cmp_gt_u32 vcc, s{T5}, v0"), o("v_nop"), o("v_nop"), o(f"v_cndmask_b32 v{YD1}, v238, v{YD1}, vcc"), o(f"v_cndmask_b32 v{YM1}, v238, v{YM1}, vcc")]),
              o(f"s_mov_b32 s{T4}, {WS_YH}")]
        e = sl.stream(ad, a0 + 2, b1)
        assert e <= b1 + 6
        def rds(R, A, tag):
            return [ds(f"ds_read_b128 v[{R + 16*pq + 4*ww}:{R + 16*pq + 4*ww + 3}], v{A} offset:{ww*12288 + pq*6144}", tag) for pq in range(2) for ww in range(4)]
        e = sl.stream(rds(R0, A0, "sr0") + rds(R1, A1, "sr1"), max(e, b1) + 1, max(e, b1) + 10)
        b2 = e + 3
        sl.put(b2, [wlg("sr1"), o("s_barrier")])
        self.b2 = b2
        def fin(R, YD, YM):
            out = []
            for pq in range(2):
                b_ = R + 16*pq
                for k in range(4):
                    out += [o(f"v_add_f32 v{b_+k}, v{b_+k}, v{b_+4+k}"), o(f"v_add_f32 v{b_+8+k}, v{b_+8+k}, v{b_+12+k}"), o(f"v_add_f32 v{b_+k}, v{b_+k}, v{b_+8+k}")]
            for k in range(4):
                out += [o(f"v_sub_f32 v{R+4+k}, v{R+k}, v{R+16+k}"), o(f"v_add_f32 v{R+8+k}, v{R+k}, v{R+16+k}")]
            out += [vm(f"buffer_store_dwordx4 v[{R+4}:{R+7}], v{YD}, s[{SR_WS}:{SR_WS+3}], s{T4} offen sc1", "yst"),
                    vm(f"buffer_store_dwordx4 v[{R+8}:{R+11}], v{YM}, s[{SR_WS}:{SR_WS+3}], s{T4} offen sc1", "yst")]
            return out
        ff = fin(R1, YD1, YM1) + fin(R0, YD0, YM0)
        if self.opts.get('nofin'): ff = [vm(f'buffer_store_dword v{V_PF}, v{V_ONE0}, s[{SR_OUT}:{SR_OUT+3}], 0 offen offset:4000', 'yst')]
        e = sl.stream(ff, b2 + 1, P2_0 + 66, spill=3)
        assert e < P2_0 + 72, e
        n1 = [o(f"v_and_b32 v238, 15, v0"), o(f"v_lshlrev_b32 v238, 2, v238"), o(f"v_add_u32 v238, {N1A}, v238")]
        for ss in range(3):
            for ww in range(4):
                n1 += [ds(f"ds_read_b32 v{64+4*ss+ww}, v238 offset:{ww*384 + ss*64}", "sred_n"), ds(f"ds_read_b32 v{128+4*ss+ww}, v238 offset:{ww*384 + (3+ss)*64}", "sred_n")]
        n1 += [wlg("sred_n")]
        for ss in range(3):
            for b_ in (64 + 4*ss, 128 + 4*ss):
                n1 += [o(f"v_add_f32 v{b_}, v{b_}, v{b_+1}"), o(f"v_add_f32 v{b_+2}, v{b_+2}, v{b_+3}"), o(f"v_add_f32 v{b_}, v{b_}, v{b_+2}")]
            n1 += [o(f"v_sub_f32 v{64+4*ss+1}, v{64+4*ss}, v{128+4*ss}"), o(f"v_add_f32 v{64+4*ss+2}, v{64+4*ss}, v{128+4*ss}")]
        n1 += [G([o(f"s_or_b32 s{T3}, s{S_TAU}, s{S_W}"), o(f"s_or_b32 s{T3}, s{T3}, s{S_MT}"), o(f"s_cmp_eq_u32 s{T3}, 0"), o(f"s_cselect_b32 s{T3}, 16, 0")]),
               G([o(f"v_cmp_gt_u32 vcc, s{T3}, v0"), o(f"v_mov_b32 v238, 0"), o(f"v_mov_b32 v239, {OOB:#x}"), o(f"v_cndmask_b32 v238, v239, v238, vcc")])]
        for ss in range(3):
            n1 += [o(f"v_add_u32 v{128+4*ss+1}, v238, v{V_YC[ss]}")]
        n1 += [o(f"s_mov_b32 s{T3}, {WS_YH + 512*YP}"), o(f"s_mov_b32 s{T5}, {WS_YH + 1536*YP}")]
        for ss in range(3):
            n1 += [vm(f"buffer_store_dword v{64+4*ss+1}, v{128+4*ss+1}, s[{SR_WS}:{SR_WS+3}], s{T3} offen sc1", "yst"),
                   vm(f"buffer_store_dword v{64+4*ss+2}, v{128+4*ss+1}, s[{SR_WS}:{SR_WS+3}], s{T5} offen sc1", "yst")]
        blk = [o(f"s_or_b32 s{T3}, s{S_TAU}, s{S_MT}"), o(f"s_cmp_eq_u32 s{T3}, 0"), o("s_cbranch_scc0 L_no512b")]
        for i in flat(n1):
            if i.k == "wlg": blk.append(o("s_waitcnt lgkmcnt(0)"))
            elif i.k in ("ds", "vm"): blk.append(I(i.t, "o"))
            else: blk.append(i)
        blk += [raw("L_no512b:")]
        M[max(e + 2, P2_0 + 70)].setdefault("before", []).extend(blk)
        gpar = fu[("s2", (0, "par"))]
        PF2 = 231
        sl.put(660, [G([o(f"s_xor_b32 s{T0}, s{S_LID}, 1"), o(f"s_lshl_b32 s{T1}, s{T0}, 7"), o(f"s_add_u32 s{T1}, s{T1}, {WS_FLAG}")])])
        sl.put(661, [G([o(f"s_lshl_b32 s{T0}, s{T0}, 2"), o(f"s_add_u32 s{T0}, s{T0}, s{S_W}"), o(f"s_mul_i32 s{T0}, s{T0}, {18*1024}")]), o(f"s_add_u32 s{T0}, s{T0}, {WS_HX}")])
        pl = f"buffer_load_dword v242, off, s[{SR_WS}:{SR_WS+3}], s{T1} sc1"
        def hload(k, n, t, tag):
            if self.opts.get("nohp"):
                sl.put(t + 1, [vm(f"buffer_load_dword v{V_PF}, v{V_ONE0}, s[{SR_WS}:{SR_WS+3}], 0 offen", tag)]); return
            sl.put(t, [o(f"s_add_u32 s{T6}, s{T0}, {k*1024}")])
            sl.put(t + 1, self.dload([f"buffer_load_dwordx4 a[{HPB+4*(k+q)}:{HPB+4*(k+q)+3}], v{V_L16}, s[{SR_WS}:{SR_WS+3}], s{T6} offen offset:{q*1024}" for q in range(n)], tag, True))
        if self.opts.get("onepoll") == 2:
            sl.put(640, [vm(pl, "hpoll1")]) if False else None
            sl.put(S0 + 14, [vm(pl, "hpoll1")])
            sl.put(S0 + 18, [wvm("hpoll1")]) if False else None
            tcheck = S0 + 22
            sl.put(tcheck - 2, [wvm("hpoll1")])
            sl.put(tcheck - 1, [o(f"v_readfirstlane_b32 s{T2}, v242")])
            M[tcheck + 2].setdefault("before", []).extend(
                [o(f"s_cmp_ge_u32 s{T2}, 1"), o("s_cbranch_scc1 L_hq_ok")] +
                self.spin("L_hq", [o(pl)], [o(f"v_readfirstlane_b32 s{T2}, v242"), o("s_nop 3"), o(f"s_cmp_ge_u32 s{T2}, 1")]))
            st_ = self.opts.get("hstep1", 10)
            for i in range(6): hload(2*i, 2, tcheck + 3 + st_*i, ("hp", i))
            tq = P2_0 + self.opts.get("tq", 40)
            assert tq > tcheck + 3 + st_*5 + 2
            sl.put(tq, [vm(pl, "hpoll2")])
            sl.put(tq + 10, [wvm("hpoll2")])
            sl.put(tq + 11, [o(f"v_readfirstlane_b32 s{T2}, v242")])
            M[tq + 14].setdefault("before", []).extend(
                [o(f"s_cmp_ge_u32 s{T2}, 2"), o("s_cbranch_scc1 L_hp_ok")] +
                self.spin("L_hp", [o(pl)], [o(f"v_readfirstlane_b32 s{T2}, v242"), o("s_nop 3"), o(f"s_cmp_ge_u32 s{T2}, 2")]))
            for i in range(3): hload(12 + 2*i, 2, tq + 15 + 10*i, ("hp", 6 + i))
        elif self.opts.get("onepoll"):
            tq = P2_0 + self.opts.get("tq", 4)
            sl.put(tq, [vm(pl, "hpoll2")])
            sl.put(tq + 10, [wvm("hpoll2")])
            sl.put(tq + 11, [o(f"v_readfirstlane_b32 s{T2}, v242")])
            M[tq + 14].setdefault("before", []).extend(
                [o(f"s_cmp_ge_u32 s{T2}, 2"), o("s_cbranch_scc1 L_hp_ok")] +
                self.spin("L_hp", [o(pl)], [o(f"v_readfirstlane_b32 s{T2}, v242"), o("s_nop 3"), o(f"s_cmp_ge_u32 s{T2}, 2")]))
            for i in range(9):
                hload(2*i, 2, tq + 15 + self.opts.get("hstep", 9)*i, ("hp", i))
        else:
            h1 = self.opts.get("h1", P2_0 - 12)
            sl.put(h1, [vm(pl, "hpoll1")])
            sl.put(h1 + 12, [wvm("hpoll1")])
            sl.put(h1 + 13, [o(f"v_readfirstlane_b32 s{T2}, v242")])
            M[h1 + 16].setdefault("before", []).extend(
                [o(f"s_cmp_ge_u32 s{T2}, 1"), o("s_cbranch_scc1 L_hq_ok")] +
                self.spin("L_hq", [o(pl)], [o(f"v_readfirstlane_b32 s{T2}, v242"), o("s_nop 3"), o(f"s_cmp_ge_u32 s{T2}, 1")]))
            def hload(k, n, t, tag):
                sl.put(t, [o(f"s_add_u32 s{T6}, s{T0}, {k*1024}")])
                sl.put(t + 1, self.dload([f"buffer_load_dwordx4 a[{HPB+4*(k+q)}:{HPB+4*(k+q)+3}], v{V_L16}, s[{SR_WS}:{SR_WS+3}], s{T6} offen offset:{q*1024}" for q in range(n)], tag, True))
            for i in range(6):
                hload(2*i, 2, h1 + 17 + 9*i, ("hp", i))
            tp = P2_0 + self.opts.get("tp2", 74)
            assert tp - 13 > h1 + 17 + 9*5 + 1
            sl.put(tp - 13, [vm(pl, "hpoll2")])
            sl.put(tp - 2, [wvm("hpoll2")])
            sl.put(tp - 1, [o(f"v_readfirstlane_b32 s{T2}, v242")])
            M[tp + 2].setdefault("before", []).extend(
                [o(f"s_cmp_ge_u32 s{T2}, 2"), o("s_cbranch_scc1 L_hp_ok")] +
                self.spin("L_hp", [o(pl)], [o(f"v_readfirstlane_b32 s{T2}, v242"), o("s_nop 3"), o(f"s_cmp_ge_u32 s{T2}, 2")]))
            for i in range(3):
                hload(12 + 2*i, 2, tp + 4 + 6*i, ("hp", 6 + i))

        sl.put(gpar - 2, [wvm(("hp", 5))])
        off = 24 if self.opts.get("klate", 1) else 12
        for i in range(3):
            sl.put(gpar + off + 2*i - 2, [wvm(("hp", 6 + i))])
        for i in range(3, 9):
            st = stages[i]; slot = slot_of[st]
            prev = [j for j in range(i) if slot_of[stages[j]] == slot]
            if prev:
                t = lu[("s2", stages[prev[-1]])]; fbar(t); start = t + 1
            else:
                start = b2 + 1
            grps = self.dma_p2(st, slot, False, 250, 251, 0)
            if st[0] == 4:
                grps = [[o(f"s_and_b32 s{S_C}, s{S_W}, 1"), o(f"s_mul_i32 s{S_C}, s{S_C}, {16*1152}")]] + grps
                place(grps, start, 1)
            else:
                place(grps, start, 2)
        s4 = slot_of[(4, "both")]
        ins = [o("v_lshrrev_b32 v250, 5, v0"), o("v_lshlrev_b32 v250, 8, v250"),
               o("v_bfe_u32 v251, v0, 2, 2"), o("v_lshlrev_b32 v251, 6, v251"), o("v_add_u32 v250, v250, v251"),
               o("v_bfe_u32 v251, v0, 4, 1"), o("v_lshlrev_b32 v251, 5, v251"), o("v_add_u32 v250, v250, v251"),
               o("v_and_b32 v251, 3, v0"), o("v_lshlrev_b32 v251, 3, v251"), o("v_add_u32 v250, v250, v251"),
               o(f"v_add_u32 v{V_R8}, {s4*SLOT}, v250")]
        sl.stream(ins, P2_0 + 150, P2_0 + 175)
        self.pipe_reduce(sl, M, fu, lu, P2_0, N)
        for (u, half), tl in sorted(tile_last.items(), key=lambda x: x[1]):
            acc = ACC[u][half]
            par = half
            t = TMP + 8*par
            st = S_ST0 + par
            ins = [o(f"v_cvt_pk_bf16_f32 v{t+i}, v{acc+2*i}, v{acc+2*i+1}") for i in range(8)]
            if u == 3 and half == 1: continue
            if u < 3: ins += [o(f"s_add_u32 s{st}, s{S_QU[u]}, {half*2048}")]
            elif u == 3: ins += [o(f"s_mov_b32 s{st}, s{S_QN}")]
            else: ins += [o(f"s_mov_b32 s{st}, s{S_Q8}")]
            ins += self.dstore([f"buffer_store_dwordx4 v[{t}:{t+3}], v{V_L16}, s[{SR_WS}:{SR_WS+3}], s{st} offen",
                                f"buffer_store_dwordx4 v[{t+4}:{t+7}], v{V_L16}, s[{SR_WS}:{SR_WS+3}], s{st} offen offset:1024"], ("pst", u))
            s0 = tl + 4
            if s0 + 10 <= N: sl.stream(ins, s0, s0 + 10)
            else: self.tail2 = [o("s_nop 15")] + ins

    def item_setup(self, kind, R, srd=None, split=False):
        t0, t1, t2, t3 = R["t"]
        sQ, sH, sB, sT = T2, T3, T4, T5
        L = []
        LD = []
        SW = SR_WS if srd is None else srd
        if kind == "A":
            L += [G([o(f"s_lshl_b32 s{sT}, s{S_J}, 2"), o(f"s_add_u32 s{sT}, s{sT}, s{S_W}"), o(f"s_lshr_b32 s{sQ}, s{sT}, 3")]),
                  G([o(f"s_cmp_lt_u32 s{sQ}, 4"), o(f"s_cselect_b32 s{sH}, 0, 6"), o(f"s_add_u32 s{sQ}, s{sQ}, s{sH}")])]
        elif kind in "BC":
            lo, hi = (4, 12) if kind == "B" else (6, 14)
            L += [G([o(f"s_lshl_b32 s{sT}, s{S_J}, 1"), o(f"s_lshr_b32 s{sH}, s{S_W}, 1"), o(f"s_add_u32 s{sT}, s{sT}, s{sH}")]),
                  G([o(f"s_lshr_b32 s{sQ}, s{sT}, 3"), o(f"s_cmp_lt_u32 s{sQ}, 2"), o(f"s_cselect_b32 s{sH}, {lo}, {hi}")]),
                  o(f"s_add_u32 s{sQ}, s{sQ}, s{sH}")]
        else:
            L += [G([o(f"s_lshr_b32 s{sT}, s{S_J}, 1"), o(f"s_and_b32 s{sQ}, s{S_J}, 1"), o(f"s_add_u32 s{sQ}, s{sQ}, 8")])]
        L += [G([o(f"s_and_b32 s{sH}, s{sT}, 1"), o(f"s_bfe_u32 s{sB}, s{sT}, 0x20001"), o(f"s_lshl_b32 s{sT}, s{S_MT}, 2")]),
              o(f"s_add_u32 s{sB}, s{sB}, s{sT}"),
              G([o(f"s_mul_i32 s{sT}, s{sB}, 18"), o(f"s_add_u32 s{sT}, s{sT}, s{sQ}"), o(f"s_lshl_b32 s{sT}, s{sT}, 1")]),
              G([o(f"s_add_u32 s{sT}, s{sT}, s{sH}"), o(f"s_lshl_b32 s{sT}, s{sT}, 10")])]
        so = R["so"]
        for p in range(8): L += [o(f"s_add_u32 s{so+p}, s{sT}, {p*PART_BYTES}")]
        if kind == "A":
            L += [o(f"v_mov_b32 v{t3}, 0")]
        elif kind in "BC":
            L += [o(f"s_and_b32 s{sT}, s{S_W}, 1"), o(f"v_bfe_u32 v{t0}, v0, 4, 1"), o(f"v_mov_b32 v{t1}, {OOB:#x}"), o(f"v_mov_b32 v{t3}, 0"),
                  G([o(f"v_cmp_eq_u32 vcc, s{sT}, v{t0}"), o("v_nop"), o("v_nop"), o(f"v_cndmask_b32 v{t3}, v{t1}, v{t3}, vcc")])]
        else:
            L += [o(f"v_bfe_u32 v{t0}, v0, 3, 2"), o(f"v_mov_b32 v{t1}, {OOB:#x}"), o(f"v_mov_b32 v{t3}, 0"),
                  G([o(f"v_cmp_eq_u32 vcc, s{S_W}, v{t0}"), o("v_nop"), o("v_nop"), o(f"v_cndmask_b32 v{t3}, v{t1}, v{t3}, vcc")])]
        PV = R["PV"]
        L += [o(f"v_add_u32 v{PV}, v{t3}, v{V_L16}")]
        pk, pb = R["P"]
        ldp = [vm(f"buffer_load_dwordx4 {pk}[{pb+4*p}:{pb+4*p+3}], v{PV}, s[{SW}:{SW+3}], s{so+p} offen sc1", ("it", kind)) for p in range(8)]
        if split: LD += ldp
        else: L += ldp
        X, Y, OA = R["X"], R["Y"], R["OA"]
        L += self.rowmir(sB, sT, t0, t1, t2, OA) + [
              G([o(f"s_lshl_b32 s{sT}, s{sQ}, 6"), o(f"s_lshl_b32 s{sB}, s{sH}, 5"), o(f"s_add_u32 s{sT}, s{sT}, s{sB}")]),
              o(f"v_mul_u32_u24 v{t2}, 1152, v{t0}"), o(f"v_add_u32 v{t2}, s{sT}, v{t2}"), o(f"v_add_u32 v{t2}, v{t2}, v{t3}"),
              o(f"v_lshrrev_b32 v{X}, 5, v0"), o(f"v_lshlrev_b32 v{OA}, 4, v{X}"), o(f"v_add_u32 v{OA}, v{t2}, v{OA}"),
              o(f"v_lshlrev_b32 v{X}, 3, v{X}"), o(f"v_add_u32 v{t2}, v{t2}, v{X}"),
              vm(f"buffer_load_dwordx2 v[{X}:{X+1}], v{t2}, s[{SR_X}:{SR_X+3}], 0 offen", ("it", kind)),
              vm(f"buffer_load_dwordx2 v[{X+2}:{X+3}], v{t2}, s[{SR_X}:{SR_X+3}], 0 offen offset:16", ("it", kind)),
              G([o(f"s_lshl_b32 s{sT}, s{sT}, 1"), o(f"s_cmp_lt_u32 s{sQ}, 9"), o(f"s_cselect_b32 s{R['rev']}, 0, 1")]),
              G([o(f"s_sub_u32 s{sB}, 2292, s{sT}"), o(f"s_cmp_lt_u32 s{sQ}, 9"), o(f"s_cselect_b32 s{sT}, s{sT}, s{sB}"), o(f"s_cselect_b32 s{sB}, 1, -1")]),
              G([o(f"v_cmp_eq_u32 vcc, 1, v{PV}") if False else o(f"v_mov_b32 v{t2}, s{R['rev']}"), o(f"v_cmp_eq_u32 vcc, 1, v{t2}"), o("v_nop"), o("v_nop"),
                 o(f"v_cndmask_b32 v{t0}, v{t0}, v{t1}, vcc")]),
              o(f"v_mul_u32_u24 v{t0}, {YP}, v{t0}"), o(f"v_add_u32 v{t0}, s{sT}, v{t0}"), o(f"v_add_u32 v{t0}, v{t0}, v{t3}"),
              o(f"v_lshrrev_b32 v{t1}, 5, v0"), o(f"v_lshlrev_b32 v{t1}, 4, v{t1}"), o(f"v_mul_lo_u32 v{t1}, v{t1}, s{sB}"),
              o(f"v_add_u32 v{t0}, v{t0}, v{t1}"),
              o(f"s_lshl_b32 s{sB}, s{sB}, 5"), o(f"v_add_u32 v{t1}, s{sB}, v{t0}"), o(f"v_add_u32 v{t0}, {WS_YH}, v{t0}"), o(f"v_add_u32 v{t1}, {WS_YH}, v{t1}")]
        ldy = [vm(f"buffer_load_dwordx4 v[{Y}:{Y+3}], v{t0}, s[{SW}:{SW+3}], 0 offen sc1", ("it", kind)),
               vm(f"buffer_load_dwordx4 v[{Y+4}:{Y+7}], v{t1}, s[{SW}:{SW+3}], 0 offen sc1", ("it", kind))]
        if split:
            LD += ldy
            return L, LD
        return L + ldy

    def item_finish(self, kind, R):
        X, Y, OA = R["X"], R["Y"], R["OA"]
        t0, t1, t2, t3 = R["t"]
        pk, pb = R["P"]
        L = [wvm(("it", kind)),
             o(f"s_cmp_eq_u32 s{R['rev']}, 0"), o(f"s_cbranch_scc1 L_rv{kind}"),
             o(f"v_swap_b32 v{Y}, v{Y+3}"), o(f"v_swap_b32 v{Y+1}, v{Y+2}"), o(f"v_swap_b32 v{Y+4}, v{Y+7}"), o(f"v_swap_b32 v{Y+5}, v{Y+6}"),
             raw(f"L_rv{kind}:"),
             o(f"s_mov_b32 s{T0}, 0x3f80"), o(f"s_mov_b32 s{T1}, 0x3f800000")]
        for i in range(4):
            L += [o(f"v_dot2_f32_bf16 v{Y+2*i}, v{X+i}, s{T0}, v{Y+2*i}"), o(f"v_dot2_f32_bf16 v{Y+2*i+1}, v{X+i}, s{T1}, v{Y+2*i+1}")]
        for p in range(8):
            for i in range(4):
                r = pb + 4*p + i
                if pk == "a":
                    L += [o(f"v_accvgpr_read_b32 v{t0 + (i & 1)}, a{r}")]
                    src = t0 + (i & 1)
                else: src = r
                L += [o(f"v_dot2_f32_bf16 v{Y+2*i}, v{src}, s{T0}, v{Y+2*i}"), o(f"v_dot2_f32_bf16 v{Y+2*i+1}, v{src}, s{T1}, v{Y+2*i+1}")]
        L += [o("s_nop 2")]
        for i in range(4):
            L += [o(f"v_cvt_pk_bf16_f32 v{X+i}, v{Y+2*i}, v{Y+2*i+1}")]
        L += [o("s_nop 1"), o(f"v_permlane32_swap_b32 v{X}, v{X+2}"), o(f"v_permlane32_swap_b32 v{X+1}, v{X+3}"),
              vm(f"buffer_store_dwordx4 v[{X}:{X+3}], v{OA}, s[{SR_OUT}:{SR_OUT+3}], 0 offen{self.osfx}", "out")]
        return L

    def group_poll(self, label, val, vdst, voff):
        ld = f"buffer_load_dword v{vdst}, v{voff}, s[{SR_WS}:{SR_WS+3}], s{T6} offen sc1"
        chk = [o(f"v_cmp_le_u32 vcc, {val}, v{vdst}"), o("s_nop 0"), o(f"s_and_b32 s{T7}, vcc_lo, 0xff"), o(f"s_cmp_eq_u32 s{T7}, 0xff")]
        return ld, chk

    def items_cfg(self):
        self.RA = dict(P=("v", 80), X=112, Y=116, OA=124, PV=125, t=[126, 127, 16, 17], rev=24, so=16)
        self.RB = dict(P=("a", 0), X=18, Y=22, OA=30, PV=31, t=[48, 49, 50, 51], rev=25, so=16)
        self.RC = dict(P=("v", 176), X=208, Y=212, OA=220, PV=221, t=[222, 223, 224, 225], rev=26, so=16)
        self.RD = dict(P=("v", 128), X=160, Y=164, OA=172, PV=173, t=[174, 175, 226, 227], rev=27, so=84)

    def tail(self):
        L = list(self.late_loads)
        O = 128
        ld, chk = self.group_poll("L_f5", 5, 241, 242)
        L += [vm(ld, "fp5")]
        L += self.stamp("pub")
        RD = self.RDx; Ld = self.D_ld
        L += [wvm("op"), wvm("ox"), o(f"s_mov_b32 s{T0}, 0x3f80"), o(f"s_mov_b32 s{T1}, 0x3f800000"),
              o("s_cmp_eq_u32 s24, 0"), o("s_cbranch_scc1 L_oyd")]
        for g_ in range(4):
            for k in range(4): L += [o(f"v_add_f32 v{O+4*g_+k}, v{O+4*g_+k}, v{48 + 4*(3-g_) + 3 - k}")]
        L += [o("s_branch L_oyj"), raw("L_oyd:")]
        for r in range(16): L += [o(f"v_add_f32 v{O+r}, v{O+r}, v{48+r}")]
        L += [raw("L_oyj:")]
        for i in range(8):
            L += [o(f"v_dot2_f32_bf16 v{O+2*i}, v{24+i}, s{T0}, v{O+2*i}"), o(f"v_dot2_f32_bf16 v{O+2*i+1}, v{24+i}, s{T1}, v{O+2*i+1}")]
        for p in range(6):
            for i in range(8):
                L += [o(f"v_dot2_f32_bf16 v{O+2*i}, v{80+8*p+i}, s{T0}, v{O+2*i}"), o(f"v_dot2_f32_bf16 v{O+2*i+1}, v{80+8*p+i}, s{T1}, v{O+2*i+1}")]
        L += self.stamp("early")
        L += [wvm("fp5")] + chk + [o("s_cbranch_scc1 L_f5_ok")] + self.spin("L_f5", [o(ld)], chk) + [reset()]
        L += self.stamp("pok")
        L += [vm(f"buffer_load_dwordx4 v[16:19], v{V_L16}, s[{SR_WS}:{SR_WS+3}], s22 offen sc1", "sib"),
              vm(f"buffer_load_dwordx4 v[20:23], v{V_L16}, s[{SR_WS}:{SR_WS+3}], s22 offen offset:1024 sc1", "sib")]
        L += Ld
        L += [wvm("sib")]
        for i in range(8):
            L += [o(f"v_dot2_f32_bf16 v{O+2*i}, v{16+i}, s{T0}, v{O+2*i}"), o(f"v_dot2_f32_bf16 v{O+2*i+1}, v{16+i}, s{T1}, v{O+2*i+1}")]
        L += [o("s_nop 2")]
        for i in range(8): L += [o(f"v_cvt_pk_bf16_f32 v{24+i}, v{O+2*i}, v{O+2*i+1}")]
        L += [o("s_nop 1"), o("v_permlane32_swap_b32 v24, v26"), o("v_permlane32_swap_b32 v25, v27"),
              o("v_permlane32_swap_b32 v28, v30"), o("v_permlane32_swap_b32 v29, v31"),
              vm(f"buffer_store_dwordx4 v[24:27], v238, s[{SR_OUT}:{SR_OUT+3}], 0 offen{self.osfx}", "out"),
              vm(f"buffer_store_dwordx4 v[28:31], v238, s[{SR_OUT}:{SR_OUT+3}], 0 offen offset:32{self.osfx}", "out")]
        L += self.stamp("ownfin")
        L += self.item_finish("D", RD)
        return L

    def kernel(self, name):
        L = [raw(f".globl {name}"), raw(".p2align 8"), raw(f".type {name},@function"), raw(f"{name}:")]
        L += self.prologue()
        L += self.stamp("proend")
        L += self.ln_stats()
        L += self.stamp("stats")
        L += [o("s_barrier")]
        L += [o(f"s_mov_b32 s{S_A}, s{S_J}"), o(f"s_add_u32 s{S_B}, s{S_J}, 16")]
        L += self.h_dma(S_A, 2, "wz1")
        L += [o(f"s_cmp_lt_u32 s{S_J}, 2"), o("s_cbranch_scc0 L_noz2a")]
        L += [I(i.t, "o") if i.k == "vm" else i for i in self.h_dma(S_B, 3, "wz2")]
        L += [raw("L_noz2a:")]
        hd = []
        for sig in range(2):
            for grp in self.dma_p1(sig, sig): hd.append(grp)
        if self.opts.get("lbulk"):
            hd.append([o(f"s_lshl_b32 s{S_PF}, s{S_MT}, 2"), o(f"s_add_u32 s{S_PF}, s{S_PF}, s{S_W}"), o(f"s_mul_i32 s{S_PF}, s{S_PF}, 45"),
                   o(f"v_add_u32 v240, s{S_PF}, v0"), o(f"s_mov_b32 s{S_PF}, {(2**32+4)//5}"), o(f"v_mul_hi_u32 v241, v240, s{S_PF}"),
                   o("v_mul_u32_u24 v242, 5, v241"), o("v_sub_u32 v242, v240, v242"), o("v_lshlrev_b32 v242, 7, v242"),
                   o("v_mul_u32_u24 v241, 9216, v241"), o("v_add_u32 v240, v241, v242"),
                   o(f"s_mul_i32 s{S_PF}, s{S_J}, 576"), o(f"s_and_b32 s{S_PF}, s{S_PF}, 0xffffff80"),
                   o("v_cmp_gt_u32 vcc, 45, v0"), o("s_nop 1"), o(f"v_cndmask_b32 v240, v{V_ONE0}, v240, vcc"),
                   vm(f"buffer_load_dword v{V_PF}, v240, s[{SR_WG}:{SR_WG+3}], s{S_PF} offen", "pf"),
                   vm(f"buffer_load_dword v{V_PF}, v240, s[{SR_WU}:{SR_WU+3}], s{S_PF} offen", "pf")])
        else:
            if not self.opts.get('bearly'): hd.append([o(f"s_lshl_b32 s{S_PF}, s{S_LID}, 2"), o(f"s_add_u32 s{S_PF}, s{S_PF}, s{S_W}"), o(f"s_mul_i32 s{S_PF}, s{S_PF}, 41"),
                       o(f"v_add_u32 v240, s{S_PF}, v0"), o("v_lshlrev_b32 v240, 7, v240"), o("v_cmp_gt_u32 vcc, 41, v0"), o("s_nop 1"),
                       o(f"v_cndmask_b32 v240, v{V_ONE0}, v240, vcc"),
                       vm(f"buffer_load_dword v{V_PF}, v240, s[{SR_WG}:{SR_WG+3}], 0 offen", "pf"),
                       vm(f"buffer_load_dword v{V_PF}, v240, s[{SR_WU}:{SR_WU+3}], 0 offen", "pf")])
        lf = self.ln_finish()
        per = -(-len(lf) // 18)
        k = 0
        for n, grp in enumerate(hd):
            L += grp
            if n < 18: L += lf[k:k + per]; k += per
        L += lf[k:]
        L += [o(f"v_subrev_u32 v{V_XA+i}, s{S_LX}, v{V_XA+i}") for i in range(4)]
        L += [o(f"v_add_u32 v{V_XA+i}, {2*SLOT}, v{V_XA+i}") for i in range(4)]
        L += self.stamp("lnfin")
        L += self.seg_norm_h()
        L += self.stamp("normH")
        L += self.h2_block()
        L += self.tr_bases()
        L += srd(SR_HZ, 36, 256)
        L += self.main()
        L += self.stamp("p2end")
        L += self.tail()
        L += self.stamp("end")
        if self.diag:
            L += [o("s_waitcnt vmcnt(0)"),
                  o(f"s_lshl_b32 s{T0}, s{S_LID}, 2"), o(f"s_add_u32 s{T0}, s{T0}, s{S_W}"), o(f"s_lshl_b32 s{T0}, s{T0}, 8"),
                  o(f"s_add_u32 s{T0}, s{T0}, {WS_STAMP}"), o("v_lshlrev_b32 v240, 2, v0"),
                  o(f"buffer_store_dword v{V_STAMP}, v240, s[{SR_WS}:{SR_WS+3}], s{T0} offen")]
        if self.opts.get("hdiag") == 2:
            L += [o("s_waitcnt vmcnt(0)"), o(f"v_readlane_b32 s98, v{V_STAMP}, 32"), o("s_nop 3"),
                  o(f"v_subrev_u32 v240, s98, v{V_STAMP}"),
                  o("v_subrev_u32 v241, 32, v0"), o("v_lshlrev_b32 v241, 2, v241"),
                  o("v_cmp_le_u32 vcc, 32, v0"), o(f"v_mov_b32 v242, {OOB:#x}"), o("s_nop 0"), o("v_cndmask_b32 v241, v242, v241, vcc"),
                  o("v_cmp_gt_u32 vcc, 48, v0"), o("s_nop 1"), o("v_cndmask_b32 v241, v242, v241, vcc"),
                  o(f"s_cmp_eq_u32 s{S_W}, 0"), o("s_cbranch_scc0 L_end"),
                  o(f"buffer_atomic_u{'min' if self.opts.get('hmin') else 'max'} v240, v241, s[{SR_HZ}:{SR_HZ+3}], 0 offen sc1")]
        elif self.opts.get("hdiag"):
            L += [o("s_waitcnt vmcnt(0)"), o("s_memrealtime s[100:101]"), o("s_waitcnt lgkmcnt(0)"),
                  o("s_sub_u32 s97, s100, s98"), o("s_not_b32 s98, s98"),
                  o("v_mov_b32 v240, s100"), o("v_mov_b32 v241, s98"), o("v_mov_b32 v242, s97"),
                  o(f"buffer_atomic_umax v240, v{V_ONE0}, s[{SR_HZ}:{SR_HZ+3}], 0 offen sc1"),
                  o(f"buffer_atomic_umax v241, v{V_ONE0}, s[{SR_HZ}:{SR_HZ+3}], 0 offen offset:4 sc1"),
                  o(f"buffer_atomic_umax v242, v{V_ONE0}, s[{SR_HZ}:{SR_HZ+3}], 0 offen offset:8 sc1")]
            for i, r in enumerate(self.hd_regs):
                pass
        L += [raw("L_end:"), o("s_endpgm")]
        return finalize(flat(L))

NAME = "parallel_sum__spectral_fnet__geglu_ffn__prompt_kernel"
def build(diag=False, opts=None):
    hdr = open("parallel_sum__spectral_fnet__geglu_ffn__prompt.s.ref").read().split("\n")
    top = [l for l in hdr if l.startswith(";") and "@launch" not in l and "Override" not in l and "grid=ceil" not in l]
    g = Gen(diag, opts)
    lines = g.kernel(NAME)
    errs = hazard_check(lines)
    for e in errs[:30]: print("HAZARD:", e)
    txt = "\n".join(top) + "\n"
    txt += "; @launch grid=(256,1,1) block=(256,1,1) lds=163840\n"
    txt += '.amdgcn_target "amdgcn-amd-amdhsa--gfx950"\n.text\n'
    txt += "\n".join(lines) + "\n" + kernel_footer(NAME)
    return txt, g.names

if __name__ == "__main__":
    import sys, json
    opts = {}
    for a in sys.argv[2:]:
        if "=" in a:
            k, v = a.split("="); opts[k] = int(v)
    txt, names = build("diag" in sys.argv, opts)
    open(sys.argv[1], "w").write(txt)
    json.dump(names, open(sys.argv[1] + ".names", "w"))
```

```python
from fw import *
from sched import *
import math, struct

S, D, F = 2048, 576, 4608
SLOT = 36864
SPARE = 4*SLOT
PART_BYTES = S * D * 2
WS_PART = 0
WS_HX = 20 << 20
WS_ZF = 40 << 20
ZF_STRIDE = 34 * 1024
ZF_TYPE = 18 * ZF_STRIDE
WS_YH = 42 << 20
YP = 320 * 4
WS_FLAG = 46 << 20
WS_STAMP = 48 << 20
OOB = 0x40000000
C0 = -2.0 * math.sqrt(2.0 / math.pi) * math.log2(math.e)
C1 = C0 * 0.044715
def f2u(f): return struct.unpack("<I", struct.pack("<f", f))[0]

V_L16 = 1
V_RA, V_RB = 2, 6
V_DM = 10
V_C0, V_C1 = 14, 15
GA = [[16, 32], [48, 64]]
UA = [[80, 96], [112, 128]]
HF = 144
TMP = 216
V_HACC = 232
V_XA = 248
V_R8 = 248
V_PF = 252
V_ONE0 = 253
V_D2 = 254
V_STAMP = 255
RX = 80
V_PERM = 224
V_NEGMU = 64
V_ONE = 231
V_SD = 232
V_SA = 236
V_SX = 240
V_SE = 228
V_ZP = 241
V_ZQ = 244
V_YC = [247, 250, 251]
V_LB = 232
AX = 0
AF = 144
NAF = 8
AZ = 176
HPB = 8
SR_CS, SR_SS, SR_HZ, SR_X, SR_WG, SR_WU, SR_WD, SR_WS, SR_OUT = 4, 8, 12, 40, 44, 48, 52, 56, 60
S_W, S_MT, S_J = 64, 65, 66
S_LX, S_L9 = 67, 68
S_UB = 69
S_WD = 74
S_PB = 75
T0, T1, T2, T3, T4, T5, T6, T7 = 76, 77, 78, 79, 80, 81, 82, 83
S_N0 = 84
S_N1 = 16
S_CU = 25
S_Q0, S_Q8 = 30, 31
S_HB = 32
S_LID = 33
S_ST0, S_ST1 = 34, 35
S_CNT = 93
S_A, S_B, S_C = 94, 95, 96
S_TAU, S_ZB = 38, 39
S_PF = 97
S_XC = 0
S_QU = [30, 36, 37]
S_QN = 39
S_TO = 32
S_GA = 28
S_FL = 1
S_MODE = 2
S_D0 = 3

def srd(dst, ptr, nbytes):
    return [o(f"s_mov_b32 s{dst}, s{ptr}"), o(f"s_and_b32 s{dst+1}, s{ptr+1}, 0xffff"),
            o(f"s_mov_b32 s{dst+2}, {nbytes}"), o(f"s_mov_b32 s{dst+3}, 0x00020000")]
def mf32(acc, A, B, C): return o(f"v_mfma_f32_32x32x16_bf16 {acc}, {A}, {B}, {C}")
def mf16(acc, A, B, C): return o(f"v_mfma_f32_16x16x32_bf16 {acc}, {A}, {B}, {C}")

class DS2(I):
    pass

class Gen:
    def dload(self, texts, tag, pair=False):
        out = self.dstore(texts, tag, pair)
        if hasattr(out[0], "cost"): out[0].cost = 3 + len(texts)
        return out
    def dstore(self, texts, tag, pair=False):
        self.lab = getattr(self, "lab", 0) + 1
        n = self.lab
        if self.opts.get("forcemode") == 1 or not self.opts.get("local", 0) or (self.opts.get("cfg", 0) == 0 and not pair):
            return [vm(t + ("" if (self.opts.get("hpplain") and "load" in t) else " sc1"), tag) for t in texts]
        body = f"s_bitcmp1_b32 s{S_MODE}, 0\n    s_cbranch_scc1 L_dl{n}\n"
        body += "".join(f"    {t} sc1\n" for t in texts)
        body += f"    s_branch L_dj{n}\nL_dl{n}:\n"
        body += "".join(f"    {t}\n" for t in texts)
        body += f"L_dj{n}:"
        out = [I("buffer_store_multi " + body, "vm", tag)]
        out[0].t = body
        out[0].cost = 3 + 5*len(texts)
        for _ in texts[1:]:
            x = I("; (counted above)", "vm", tag); x.cost = 0; out.append(x)
        return out
    def __init__(self, diag=False, opts=None):
        self.hd_regs = []
        self.osfx = ' sc1' if (opts or {}).get('osc1') else ''
        self.diag = diag; self.opts = opts or {}; self.nst = 0; self.names = []; self.pid = 0
    def stamp(self, name):
        if not self.diag: return []
        if self.opts.get("hdiag") == 2 and name in ("kernarg", "xiss", "proend", "lnfin", "pub", "early", "pok", "ownfin"): return []
        i = self.nst; self.nst += 1; self.names.append(name)
        return [o("s_memtime s[98:99]"), o("s_memrealtime s[100:101]"), o("s_waitcnt lgkmcnt(0)"),
                o(f"v_writelane_b32 v{V_STAMP}, s98, {i}"), o(f"v_writelane_b32 v{V_STAMP}, s100, {i+32}")]

    def paced(self, M, frags, setup, dist):
        N = len(M)
        sl = Slots(N)
        for g, m in enumerate(M):
            if m["op"] == 16: sl.budget[g] = 3
        head = []
        pid = self.pid; self.pid += 1
        def put(t, ins):
            if t < 0: head.extend(ins if isinstance(ins, list) else [ins])
            else: sl.put(t, ins)
        issue = {}
        for f, fr in enumerate(frags):
            t = fr["use"] - fr.get("dist", dist)
            issue[f] = t
            put(t, fr.get("pre", []))
            put(t, [ds(r, ("af", pid, f)) for r in fr["reads"]])
        waited = -1
        n0 = M[0]["need"]
        if n0 >= 0:
            tgt = max(n0, M[1]["need"])
            head.append(wlg(("af", pid, tgt))); waited = tgt
        for g in range(N - 1):
            nx = M[g+1]["need"]
            if nx > waited:
                tgt = nx
                if g + 2 < N and M[g+2]["need"] > nx and issue[M[g+2]["need"]] <= g - 3 and M[g+1]["op"] == 32: tgt = M[g+2]["need"]
                put(g, [wlg(("af", pid, tgt))]); waited = tgt
        setup(sl, head)
        L = list(head)
        for g, m in enumerate(M):
            L += m.get("before", [])
            c = "0" if m["first"] else m.get("C", m["acc"])
            if m.get("C") and m["first"]: c = m["C"]
            L.append((mf32 if m["op"] == 32 else mf16)(m["acc"], m["A"], m["B"], c))
            L += sl.emit(g)
        if self.opts.get("verbose"):
            over = [(g, sl.used[g], sl.budget[g]) for g in range(N) if sl.used[g] > sl.budget[g]]
            print(f"paced {pid}: N={N} over budget: {len(over)} total excess {sum(u-b for _,u,b in over)} avg used {sum(sl.used)/N:.2f}")
            if self.opts.get("verbose") > 1:
                for a in range(0, N, 36):
                    ex = sum(max(0, sl.used[g]-sl.budget[g]) for g in range(a, min(a+36, N)))
                    print(a, "used", sum(sl.used[a:a+36]), "budget", sum(sl.budget[a:a+36]), "excess", ex)
        return L

    def prologue(self):
        L = []
        if self.opts.get("hdiag"): L += [o("s_memrealtime s[98:99]")]
        if self.diag: L += [o(f"v_mov_b32 v{V_STAMP}, 0")]
        L += self.stamp("start")
        L += [o("s_load_dwordx16 s[16:31], s[0:1], 0"), o("s_load_dwordx8 s[32:39], s[0:1], 64"),
              o("s_cmp_ge_u32 s2, 256"), o("s_cbranch_scc1 L_end")]
        L += [o("v_lshrrev_b32 v2, 6, v0"), o("v_and_b32 v0, 63, v0"), o("s_nop 0"),
              o(f"v_readfirstlane_b32 s{S_W}, v2"),
              ] + self.idmap() + [
              o(f"s_mul_i32 s{S_LX}, s{S_W}, {SLOT}"), o(f"s_mul_i32 s{S_L9}, s{S_W}, 9216"),
              o(f"v_lshlrev_b32 v{V_L16}, 4, v0")]
        if self.opts.get("cpf", 1):
            L += [o("s_getpc_b64 s[82:83]"), raw("L_pc:"),
                  o(f"s_lshr_b32 s{T0}, s2, 3"), o(f"s_lshl_b32 s{T0}, s{T0}, 2"), o(f"s_add_u32 s{T0}, s{T0}, s{S_W}"),
                  o(f"s_lshl_b32 s{T0}, s{T0}, 9"),
                  o("v_and_b32 v2, 3, v0"), o("v_lshlrev_b32 v2, 7, v2"), o(f"v_add_u32 v2, s{T0}, v2"),
                  o("v_cmp_gt_u32 vcc, 4, v0"), o("s_and_saveexec_b64 s[80:81], vcc"),
                  vm(f"global_load_dword v{V_PF}, v2, s[82:83]", "pf"), o("s_mov_b64 exec, s[80:81]")]
        L += [o("v_lshrrev_b32 v2, 3, v0"), o("v_and_b32 v3, 7, v0"), o("v_lshrrev_b32 v4, 1, v2"),
              o("v_xor_b32 v3, v3, v4"), o("v_lshlrev_b32 v3, 4, v3"), o("v_xor_b32 v4, 64, v3"),
              o(f"s_lshl_b32 s{T0}, s{S_MT}, 5"), o(f"s_lshl_b32 s{T1}, s{S_W}, 3"), o(f"s_add_u32 s{T0}, s{T0}, s{T1}"),
              o(f"v_add_u32 v5, s{T0}, v2"),
              o("v_sub_u32 v6, 1024, v5"), o("v_add_u32 v7, 1024, v5"), o("v_sub_u32 v8, 2048, v5"),
              o("v_cmp_eq_u32 vcc, 0, v5"), o("v_mov_b32 v9, 512"), o("s_nop 0"),
              o("v_cndmask_b32 v7, v7, v9, vcc"), o("v_mov_b32 v9, 1536"), o("s_nop 0"), o("v_cndmask_b32 v8, v8, v9, vcc"),
              o(f"s_movk_i32 s{T1}, 1152"),
              o(f"v_mad_u32_u24 v240, v5, s{T1}, v3"), o(f"v_mad_u32_u24 v241, v6, s{T1}, v4"),
              o(f"v_mad_u32_u24 v242, v7, s{T1}, v3"), o(f"v_mad_u32_u24 v243, v8, s{T1}, v4")]
        if self.opts.get("xpf", 1) == 2:
            L += [o(f"s_lshl_b32 s{T0}, s{S_MT}, 4"), o(f"s_add_u32 s{T0}, s{T0}, s{S_J}"), o(f"s_lshl_b32 s{T0}, s{T0}, 2"), o(f"s_add_u32 s{T0}, s{T0}, s{S_W}"),
                  o(f"s_mul_i32 s{T0}, s{T0}, 18"), o(f"v_add_u32 v9, s{T0}, v0"), o("v_lshlrev_b32 v9, 7, v9"),
                  o("v_cmp_gt_u32 vcc, 18, v0"), o(f"v_mov_b32 v8, {OOB:#x}"), o("s_nop 0"), o("v_cndmask_b32 v9, v8, v9, vcc")]
        elif self.opts.get("xpf", 1):
            nsh = 16 if self.opts.get("cfg", 0) == 1 else 4
            per = 1152 // nsh // 4
            assert per <= 64 or True
            jj = f"s{S_J}"
            L += [o(f"s_and_b32 s{T0}, s{S_J}, {nsh-1}"), o(f"s_lshl_b32 s{T0}, s{T0}, 2"), o(f"s_add_u32 s{T0}, s{T0}, s{S_W}"), o(f"s_mul_i32 s{T0}, s{T0}, {per}"),
                  o(f"v_add_u32 v9, s{T0}, v0"),
                  o(f"s_mul_i32 s{T0}, s{S_MT}, {64*1152}"),
                  o(f"s_sub_u32 s{T1}, {(2048-63)*1152 - 576*128}, s{T0}"),
                  o("v_lshlrev_b32 v8, 7, v9"), o(f"v_add_u32 v7, s{T1}, v8"), o(f"v_add_u32 v8, s{T0}, v8"),
                  o("v_cmp_gt_u32 vcc, 0x240, v9"), o("s_nop 1"), o("v_cndmask_b32 v9, v7, v8, vcc"),
                  o(f"v_cmp_gt_u32 vcc, {min(per,64)}, v0"), o(f"v_mov_b32 v8, {OOB:#x}"), o("s_nop 0"), o("v_cndmask_b32 v9, v8, v9, vcc")]
        L += [o("s_waitcnt lgkmcnt(0)")]
        L += self.stamp("kernarg")
        L += srd(SR_X, 16, S*D*2)
        if self.opts.get("xpf", 1):
            L += [vm(f"buffer_load_dword v{V_PF}, v9, s[{SR_X}:{SR_X+3}], 0 offen", "pf")]
        HEAD = L
        P = []
        P += srd(SR_WG, 28, D*F*2) + srd(SR_WU, 30, D*F*2) + srd(SR_WD, 32, F*D*2) + srd(SR_WS, 38, 256 << 20) + srd(SR_OUT, 34, S*D*2)
        P += srd(SR_CS, 18, S*S*2) + srd(SR_SS, 20, S*S*2)
        P += [o(f"s_lshl_b32 s{T0}, s{S_W}, 6"), o(f"v_add_u32 v2, s{T0}, v0"), o("v_cmp_eq_u32 vcc, 0, v2"),
              o(f"v_mov_b32 v3, {OOB:#x}"), o("v_mov_b32 v4, 0"), o(f"v_cndmask_b32 v{V_ONE0}, v3, v4, vcc")]
        P += [o(f"s_lshl_b32 s{S_LID}, s{S_MT}, 4"), o(f"s_add_u32 s{S_LID}, s{S_LID}, s{S_J}")]
        P += [o(f"s_and_b32 s{T2}, s{S_J}, 1"), o(f"s_mul_i32 s{T0}, s{S_J}, 288"), o(f"s_mul_i32 s{T1}, s{T2}, 224"),
              o(f"s_add_u32 s{T1}, s{T0}, s{T1}"),
              G([o(f"s_cmp_eq_u32 s{T2}, 0"), o(f"s_cselect_b32 s{T3}, 64, -64"), o(f"s_cselect_b32 s{T4}, 256, 0")]),
              o(f"s_add_u32 s{T4}, s{T4}, s{T0}")]
        for u in range(4):
            P += [o(f"s_mul_i32 s{T5}, s{T3}, {u}"), o(f"s_add_u32 s{T5}, s{T5}, s{T1}"),
                  o(f"s_lshl_b32 s{S_UB+u}, s{T5}, 1"),
                  o(f"s_mul_i32 s{S_N0+2*u}, s{T5}, 1152"), o(f"s_add_u32 s{S_N0+2*u+1}, s{S_N0+2*u}, {32*1152}")]
        P += [o(f"s_lshl_b32 s{S_UB+4}, s{T4}, 1"), o(f"s_mul_i32 s{S_N0+8}, s{T4}, 1152")]
        P += [o(f"s_mov_b32 s{S_A}, s{S_UB}")]
        P += [o(f"s_mul_i32 s{T5}, s{S_W}, {72*9216}")]
        for u in range(4): P += [o(f"s_add_u32 s{S_UB+u}, s{S_UB+u}, s{T5}")]
        P += [o(f"s_lshl_b32 s{T5}, s{T5}, 1"), o(f"s_add_u32 s{S_UB+4}, s{S_UB+4}, s{T5}")]
        P += [o(f"s_lshr_b32 s{T0}, s{S_J}, 1"), o(f"s_mul_i32 s{S_PB}, s{T0}, {PART_BYTES}"),
              o(f"s_lshl_b32 s{T0}, s{S_MT}, 2"), o(f"s_add_u32 s{T0}, s{T0}, s{S_W}"),
              o(f"s_mul_i32 s{T0}, s{T0}, {18*2048}"), o(f"s_add_u32 s{S_PB}, s{S_PB}, s{T0}"),
              o(f"s_lshl_b32 s{T0}, s{S_LID}, 2"), o(f"s_add_u32 s{T0}, s{T0}, s{S_W}"),
              o(f"s_mul_i32 s{S_HB}, s{T0}, {18*1024}"), o(f"s_add_u32 s{S_HB}, s{S_HB}, {WS_HX}")]
        P += [o("v_lshrrev_b32 v2, 3, v0"), o("v_and_b32 v3, 7, v0"),
              o("v_bfe_u32 v4, v0, 4, 1"), o("v_lshlrev_b32 v4, 2, v4"), o("v_xor_b32 v3, v3, v4"), o("v_lshlrev_b32 v3, 4, v3"),
              o(f"v_mul_u32_u24 v2, 9216, v2"), o(f"v_add_u32 v{V_DM}, v2, v3")]
        for t in range(1, 4): P += [o(f"v_add_u32 v{V_DM+t}, {t*(8*9216-1024)}, v{V_DM}")]
        P += [o("v_and_b32 v2, 31, v0"), o("v_bfe_u32 v3, v0, 1, 3"), o("v_lshrrev_b32 v4, 5, v0"), o("v_xor_b32 v3, v3, v4"),
              o("v_lshlrev_b32 v3, 4, v3"), o("v_lshlrev_b32 v2, 7, v2"), o("v_add_u32 v2, v2, v3"),
              o(f"v_add_u32 v{V_XA}, s{S_LX}, v2"),
              o(f"v_xor_b32 v{V_XA+1}, 32, v{V_XA}"), o(f"v_xor_b32 v{V_XA+2}, 64, v{V_XA}"), o(f"v_xor_b32 v{V_XA+3}, 96, v{V_XA}")]
        P += [o("v_and_b32 v2, 15, v0"),
              o("v_and_b32 v3, 3, v2"), o("v_bfe_u32 v4, v2, 2, 1"), o("v_bfe_u32 v5, v2, 3, 1"),
              o("v_lshlrev_b32 v4, 3, v4"), o("v_lshlrev_b32 v5, 2, v5"), o("v_or_b32 v3, v3, v4"), o("v_or_b32 v3, v3, v5"),
              o("v_lshrrev_b32 v4, 3, v3"), o("v_lshrrev_b32 v5, 5, v0"),
              o("v_and_b32 v6, 1, v3"), o("v_lshlrev_b32 v6, 4, v6"), o("v_mov_b32 v7, 0x3f80"), o("v_lshlrev_b32 v7, v6, v7"), o("v_mov_b32 v8, 0"),
              G([o("v_cmp_eq_u32 vcc, v4, v5"), o("v_nop"), o("v_nop"), o("v_cndmask_b32 v7, v8, v7, vcc")]),
              o("v_bfe_u32 v6, v3, 1, 2"), o("v_bfe_u32 v9, v0, 4, 1")]
        for d in range(4):
            P += [G([o(f"v_cmp_eq_u32 vcc, {d}, v6"), o("v_nop"), o("v_nop"), o(f"v_cndmask_b32 v{V_PERM+d}, v8, v7, vcc")])]
        P += [G([o("v_cmp_eq_u32 vcc, 1, v9"), o("v_nop"), o("v_nop")] + [o(f"v_cndmask_b32 v{V_PERM+4+d}, v8, v{V_PERM+d}, vcc") for d in range(4)] +
                [o(f"v_cndmask_b32 v{V_PERM+d}, v{V_PERM+d}, v8, vcc") for d in range(4)])]
        L = []
        L += [o("v_mov_b32 v4, 0"), o(f"s_lshl_b32 s{T0}, s{S_LID}, 7"), o(f"s_add_u32 s{T0}, s{T0}, {WS_FLAG}"),
              vm(f"buffer_store_dword v4, v{V_ONE0}, s[{SR_WS}:{SR_WS+3}], s{T0} offen sc1", "flinit")]
        L += self.h_srd(S_J)
        if self.opts.get("pf", 1):
            L += [o(f"s_and_b32 s{T0}, s{S_MT}, 7"), o(f"s_mul_i32 s{T0}, s{T0}, 36"), o(f"s_mul_i32 s{T1}, s{S_W}, 9"), o(f"s_add_u32 s{T0}, s{T0}, s{T1}"),
                  o(f"v_add_u32 v2, s{T0}, v0"), o(f"v_mov_b32 v4, {OOB:#x}"),
                  o(f"s_mov_b32 s{T1}, {(2**32+8)//9}"), o(f"v_mul_hi_u32 v5, v2, s{T1}"), o("v_mul_u32_u24 v6, 9, v5"), o("v_sub_u32 v6, v2, v6"),
                  o(f"v_add_u32 v5, s{T7}, v5"), o(f"v_mul_u32_u24 v5, 1152, v5"), o("v_lshlrev_b32 v6, 7, v6"), o("v_add_u32 v5, v5, v6"),
                  o(f"v_mul_u32_u24 v3, 9216, v2"),
                  o("v_cmp_gt_u32 vcc, 9, v0"), o("s_nop 1"), o("v_cndmask_b32 v3, v4, v3, vcc"), o("v_cndmask_b32 v5, v4, v5, vcc"),
                  vm(f"buffer_load_dword v{V_PF}, v5, s[{SR_HZ}:{SR_HZ+3}], 0 offen", "pf")]
            L += [o(f"s_cmp_lt_u32 s{S_J}, 2"), o("s_cbranch_scc0 L_nopf2"),
                  o(f"s_mov_b32 s{T0}, {7*32*1152}"),
                  o(f"v_add_u32 v6, s{T0}, v5"), o("v_cmp_gt_u32 vcc, 9, v0"), o("s_and_saveexec_b64 s[82:83], vcc"),
                  o(f"global_load_dword v{V_PF}, v6, s[24:25]"),
                  o("s_mov_b64 exec, s[82:83]"), raw("L_nopf2:")]
            for sig in range(self.opts.get("npf", 4)):
                mat, kh = (sig // 2) % 2, sig % 2
                assert sig < 4
                rs = SR_WG if mat == 0 else SR_WU
                L += [o(f"s_add_u32 s{T6}, s{S_A}, {kh*288*9216}"),
                      vm(f"buffer_load_dword v{V_PF}, v3, s[{rs}:{rs+3}], s{T6} offen", "pf")]
        if self.opts.get("tlb", 0):
            st = self.opts.get("tlb", 0)
            n = (48 << 20) >> st
            L += [o(f"v_lshlrev_b32 v2, {st}, v0"), o(f"v_mov_b32 v4, {OOB:#x}")]
            for k in range(-(-n // 64)):
                L += [o(f"s_mov_b32 s{T0}, {k*64 << st}"), vm(f"buffer_load_dword v{V_PF}, v2, s[{SR_WS}:{SR_WS+3}], s{T0} offen", "pf")]
            L += [o("v_lshlrev_b32 v2, 16, v0"), vm(f"buffer_load_dword v{V_PF}, v2, s[{SR_OUT}:{SR_OUT+3}], 0 offen", "pf")]
        if self.opts.get('bearly'):
            L += [o(f"s_lshl_b32 s{S_PF}, s{S_LID}, 2"), o(f"s_add_u32 s{S_PF}, s{S_PF}, s{S_W}"), o(f"s_mul_i32 s{S_PF}, s{S_PF}, 41"),
                   o(f"v_add_u32 v2, s{S_PF}, v0"), o("v_lshlrev_b32 v2, 7, v2"), o("v_cmp_gt_u32 vcc, 41, v0"), o("s_nop 1"),
                   o(f"v_cndmask_b32 v2, v{V_ONE0}, v2, vcc"),
                   vm(f"buffer_load_dword v{V_PF}, v2, s[{SR_WG}:{SR_WG+3}], 0 offen", "pf"),
                   vm(f"buffer_load_dword v{V_PF}, v2, s[{SR_WU}:{SR_WU+3}], 0 offen", "pf")]
        post = L
        for n, i in enumerate(P):
            if not isinstance(i, G) and i.t.startswith("v_cmp_eq_u32 vcc, 0, v2"):
                P[n:n+4] = [G(P[n:n+4])]
                break
        out = HEAD
        flatx = []
        if self.opts.get("drot"):
            out += [o(f"s_and_b32 s100, s{S_J}, 3"), o(f"s_mul_i32 s100, s100, {self.opts.get('rotm', 9)}"), o("s_lshr_b32 s100, s100, 2")]
            out += [o("s_mov_b32 s99, s100")]
            for p in range(9):
                pre_ = [o("s_lshl_b32 s100, s99, 7"), o("s_lshl_b32 s101, s99, 12"), o(f"s_add_u32 s101, s101, s{S_LX}"),
                        o("s_add_u32 s99, s99, 1"), o("s_cmp_eq_u32 s99, 9"), o("s_cselect_b32 s99, 0, s99")]
                for rho in range(4):
                    g = (pre_ if rho == 0 else []) + [o(f"s_add_u32 m0, s101, {rho*1024}"), o("s_nop 0"),
                         vm(f"buffer_load_dwordx4 v{240+rho}, s[{SR_X}:{SR_X+3}], s100 offen lds", ("x", 8 if p == 8 else ("p", p)))]
                    flatx.append(g)
        for kap in range(9):
            if self.opts.get("drot"): break
            xl = self.x_line(kap)
            flatx += [xl[3*r:3*r+3] for r in range(4)]
        npre = len(P); pi = 0
        first = self.opts.get("xfree", 10)
        for n, g in enumerate(flatx):
            out += g
            if n >= first:
                take = -(-(npre - pi) // (36 - n))
                for it in P[pi:pi + take]: out += (list(it) if isinstance(it, G) else [it])
                pi += take
        out += self.stamp("xiss")
        L = out + post
        return L

    def tr_bases(self):
        L = []
        L += [o("v_lshrrev_b32 v16, 5, v0"), o("v_lshlrev_b32 v16, 10, v16"),
              o("v_bfe_u32 v17, v0, 2, 2"), o("v_lshlrev_b32 v17, 7, v17"), o("v_add_u32 v16, v16, v17"),
              o("v_bfe_u32 v17, v0, 3, 1"), o("v_lshlrev_b32 v17, 6, v17"), o("v_add_u32 v16, v16, v17"),
              o("v_bfe_u32 v17, v0, 4, 1"), o("v_lshlrev_b32 v17, 5, v17"), o("v_add_u32 v16, v16, v17"),
              o("v_and_b32 v17, 3, v0"), o("v_lshlrev_b32 v17, 3, v17"), o(f"v_add_u32 v{V_RA}, v16, v17")]
        for s in range(1, 4): L += [o(f"v_add_u32 v{V_RA+s}, {s*SLOT}, v{V_RA}")]
        for s in range(4): L += [o(f"v_xor_b32 v{V_RB+s}, 64, v{V_RA+s}")]
        return L

    def idmap(self):
        cfg = self.opts.get("cfg", 0)
        if cfg == 0:
            return [o(f"s_and_b32 s{S_J}, s2, 3"), o(f"s_lshl_b32 s{S_J}, s{S_J}, 2"),
              o(f"s_bfe_u32 s{T0}, s2, 0x20003"), o(f"s_or_b32 s{S_J}, s{S_J}, s{T0}"),
              o(f"s_bfe_u32 s{S_MT}, s2, 0x10002"), o(f"s_lshl_b32 s{S_MT}, s{S_MT}, 3"),
              o(f"s_lshr_b32 s{T0}, s2, 5"), o(f"s_or_b32 s{S_MT}, s{S_MT}, s{T0}")]
        if cfg == 1:
            return [o(f"s_and_b32 s{S_MT}, s2, 7"), o(f"s_lshl_b32 s{S_MT}, s{S_MT}, 1"), o(f"s_bfe_u32 s{T0}, s2, 0x10003"),
                    o(f"s_or_b32 s{S_MT}, s{S_MT}, s{T0}"), o(f"s_lshr_b32 s{S_J}, s2, 4")]
        if cfg == 3:
            return [o(f"s_and_b32 s{S_J}, s2, 7"), o(f"s_lshl_b32 s{S_J}, s{S_J}, 1"), o(f"s_bfe_u32 s{T0}, s2, 0x10003"),
                    o(f"s_or_b32 s{S_J}, s{S_J}, s{T0}"), o(f"s_lshr_b32 s{S_MT}, s2, 4")]
        if cfg == 2:
            return [o(f"s_and_b32 s{S_J}, s2, 1"), o(f"s_lshl_b32 s{S_J}, s{S_J}, 3"),
              o(f"s_bfe_u32 s{T0}, s2, 0x30003"), o(f"s_or_b32 s{S_J}, s{S_J}, s{T0}"),
              o(f"s_bfe_u32 s{S_MT}, s2, 0x20001"), o(f"s_lshl_b32 s{S_MT}, s{S_MT}, 2"),
              o(f"s_lshr_b32 s{T0}, s2, 6"), o(f"s_or_b32 s{S_MT}, s{S_MT}, s{T0}")]

    def h_srd(self, zreg):
        return [o(f"s_cmp_lt_u32 s{zreg}, 9"),
                o(f"s_cselect_b32 s{SR_HZ}, s22, s24"), o(f"s_cselect_b32 s{SR_HZ+1}, s23, s25"), o(f"s_cselect_b32 s{T7}, 0, 9"),
                o(f"s_and_b32 s{SR_HZ+1}, s{SR_HZ+1}, 0xffff"), o(f"s_mov_b32 s{SR_HZ+2}, {D*D*2}"), o(f"s_mov_b32 s{SR_HZ+3}, 0x00020000"),
                o(f"s_sub_u32 s{T7}, s{zreg}, s{T7}"), o(f"s_lshl_b32 s{T7}, s{T7}, 5")]

    def h_dma(self, zreg, slot, tag):
        L = self.h_srd(zreg)
        L += [o(f"s_lshl_b32 s{T1}, s{S_W}, 3"), o(f"s_add_u32 s{T0}, s{T7}, s{T1}"),
             o("v_lshrrev_b32 v240, 3, v0"), o("v_and_b32 v241, 7, v0"), o("v_lshrrev_b32 v242, 1, v240"), o("v_xor_b32 v241, v241, v242"),
             o(f"s_and_b32 s{T1}, s{S_W}, 1"), o(f"s_lshl_b32 s{T1}, s{T1}, 2"), o(f"v_xor_b32 v241, s{T1}, v241"),
             o("v_lshlrev_b32 v241, 4, v241"),
             o(f"v_add_u32 v240, s{T0}, v240"), o(f"s_movk_i32 s{T1}, 1152"), o(f"v_mad_u32_u24 v240, v240, s{T1}, v241"),
             o(f"s_lshl_b32 s{T1}, s{S_W}, 10"), o(f"s_add_u32 s{T1}, s{T1}, {slot*SLOT}")]
        for kap in range(9):
            L += [o(f"s_add_u32 m0, s{T1}, {4*kap*1024 - 128*kap}"), o("s_nop 0"),
                  vm(f"buffer_load_dwordx4 v240, s[{SR_HZ}:{SR_HZ+3}], 0 offen offset:{128*kap} lds", tag)]
        return L

    def h_special(self, zreg, slot, sfx):
        return [o(f"s_cmp_eq_u32 s{zreg}, 9"), o(f"s_cbranch_scc0 L_h_nosp{sfx}"), o(f"s_cmp_eq_u32 s{S_W}, 0"), o(f"s_cbranch_scc0 L_h_nosp{sfx}"),
                o("v_mov_b32 v16, 0xbf803f80"), o("v_mov_b32 v17, v16"), o("v_mov_b32 v18, v16"), o("v_mov_b32 v19, v16"),
                o("v_lshrrev_b32 v240, 3, v0"), o("v_lshlrev_b32 v240, 12, v240"), o("v_and_b32 v241, 7, v0"), o("v_lshlrev_b32 v241, 4, v241"),
                o("v_add_u32 v240, v240, v241"), o(f"v_add_u32 v240, {slot*SLOT}, v240"), o(f"v_add_u32 v241, {slot*SLOT}, v241"),
                o("ds_write_b128 v240, v[16:19]"), o("ds_write_b128 v241, v[16:19] offset:32768"),
                o("s_waitcnt lgkmcnt(0)"), raw(f"L_h_nosp{sfx}:")]

    def x_line(self, kap):
        L = []
        for rho in range(4):
            L += [o(f"s_add_u32 m0, s{S_LX}, {(4*kap+rho)*1024 - 128*kap}"), o("s_nop 0"),
                  vm(f"buffer_load_dwordx4 v{240+rho}, s[{SR_X}:{SR_X+3}], 0 offen offset:{128*kap} lds", ("x", kap))]
        return L
    def x_dma_variants(self):
        L = []
        for kap in range(self.opts.get("xpre", 3)): L += self.x_line(kap)
        return L
    def x_dma_variants_old(self):
        if not self.opts.get("rot", 0):
            L = []
            for kap in range(9):
                for rho in range(4):
                    L += [o(f"s_add_u32 m0, s{S_LX}, {(4*kap+rho)*1024 - 128*kap}"), o("s_nop 0"),
                          vm(f"buffer_load_dwordx4 v{240+rho}, s[{SR_X}:{SR_X+3}], 0 offen offset:{128*kap} lds", ("x", kap))]
            return L
        L = [o(f"s_and_b32 s{T0}, s{S_J}, 3")]
        for v in range(1, 4): L += [o(f"s_cmp_eq_u32 s{T0}, {v}"), o(f"s_cbranch_scc1 L_xd{v}")]
        for v in range(4):
            if v: L += [raw(f"L_xd{v}:")]
            for pos in range(9):
                kap = (self.K0[v] + pos) % 9
                for rho in range(4):
                    t = f"buffer_load_dwordx4 v{240+rho}, s[{SR_X}:{SR_X+3}], 0 offen offset:{128*kap} lds"
                    L += [o(f"s_add_u32 m0, s{S_LX}, {(4*kap+rho)*1024 - 128*kap}"), o("s_nop 0"),
                          (vm(t, ("x", pos)) if v == 3 else o(t))]
            if v < 3: L += [o("s_branch L_xdj")]
        L += [raw("L_xdj:")]
        return L
    K0 = [0, 2, 4, 7]

    def ln_stats(self):
        L = []
        SA = 16
        for i in range(8): L += [o(f"v_mov_b32 v{SA+i}, 0")]
        L += [o(f"s_mov_b32 s{T5}, 0x3f803f80")]
        def reads(kap):
            return [wvm(("x", kap))] + [ds(f"ds_read_b128 v[{RX+4*ks}:{RX+4*ks+3}], v{V_XA+(ks&3)} offset:{(ks//4)*4096}", ("xr", ks)) for ks in range(4*kap, 4*kap+4)]
        if self.opts.get("drot"):
            L += [wvm(("x", 8))]
            def rd2(kap): return [ds(f"ds_read_b128 v[{RX+4*ks}:{RX+4*ks+3}], v{V_XA+(ks&3)} offset:{(ks//4)*4096}", ("xr", ks)) for ks in range(4*kap, 4*kap+4)]
            L += rd2(0) + rd2(1)
            for kap in range(9):
                if kap + 2 < 9: L += rd2(kap + 2)
                L += self.stats_line(kap)
            return L
        L += reads(0)
        for kap in range(9):
            if kap + 1 < 9: L += reads(kap + 1)
            L += self.stats_line(kap)
        return L
    def stats_line(self, kap):
        L = []
        SA = 16
        for ks in range(4*kap, 4*kap + 4):
            L += [wlg(("xr", ks))]
            for i in range(4):
                r = RX + 4*ks + i
                L += [o(f"v_dot2_f32_bf16 v{SA+i}, v{r}, s{T5}, v{SA+i}"),
                      o(f"v_dot2_f32_bf16 v{SA+4+i}, v{r}, v{r}, v{SA+4+i}")]
        return L

    def ln_stats_v(self, v, tracked, order):
        L = []
        SA = 16
        for i in range(8): L += [o(f"v_mov_b32 v{SA+i}, 0")]
        L += [o(f"s_mov_b32 s{T5}, 0x3f803f80")]
        def reads(pos):
            kap = order[pos]
            w = [wvmf(("x", pos))]
            return w + [o(f"ds_read_b128 v[{RX+4*ks}:{RX+4*ks+3}], v{V_XA+(ks&3)} offset:{(ks//4)*4096}") for ks in range(4*kap, 4*kap+4)]
        L += reads(0)
        L += self.stamp("x0")
        for pos in range(9):
            if pos == 4: L += self.stamp("x4")
            if pos + 1 < 9: L += reads(pos + 1)
            kap = order[pos]
            for n, ks in enumerate(range(4*kap, 4*kap + 4)):
                left = (3 - n) + (4 if pos + 1 < 9 else 0)
                L += [o(f"s_waitcnt lgkmcnt({left})")]
                for i in range(4):
                    r = RX + 4*ks + i
                    L += [o(f"v_dot2_f32_bf16 v{SA+i}, v{r}, s{T5}, v{SA+i}"),
                          o(f"v_dot2_f32_bf16 v{SA+4+i}, v{r}, v{r}, v{SA+4+i}")]
        return L

    def ln_stats_old(self):
        L = []
        SA = 16
        for i in range(8): L += [o(f"v_mov_b32 v{SA+i}, 0")]
        L += [o(f"s_mov_b32 s{T5}, 0x3f803f80")]
        def reads(kap):
            return [wvm(("x", kap))] + [ds(f"ds_read_b128 v[{RX+4*ks}:{RX+4*ks+3}], v{V_XA+(ks&3)} offset:{(ks//4)*4096}", ("xr", ks)) for ks in range(4*kap, 4*kap+4)]
        L += reads(0)
        for kap in range(9):
            if kap + 1 < 9: L += reads(kap + 1)
            for ks in range(4*kap, 4*kap + 4):
                L += [wlg(("xr", ks))]
                for i in range(4):
                    r = RX + 4*ks + i
                    L += [o(f"v_dot2_f32_bf16 v{SA+i}, v{r}, s{T5}, v{SA+i}"),
                          o(f"v_dot2_f32_bf16 v{SA+4+i}, v{r}, v{r}, v{SA+4+i}")]
        return L

    def ln_finish(self):
        SA = 16
        L = [o("s_nop 2"),
             o(f"v_add_f32 v{SA}, v{SA}, v{SA+1}"), o(f"v_add_f32 v{SA+2}, v{SA+2}, v{SA+3}"),
             o(f"v_add_f32 v{SA+4}, v{SA+4}, v{SA+5}"), o(f"v_add_f32 v{SA+6}, v{SA+6}, v{SA+7}"),
             o(f"v_add_f32 v24, v{SA}, v{SA+2}"), o(f"v_add_f32 v26, v{SA+4}, v{SA+6}"),
             o("v_mov_b32 v25, v24"), o("v_mov_b32 v27, v26"), o("s_nop 1"),
             o("v_permlane32_swap_b32 v24, v25"), o("v_permlane32_swap_b32 v26, v27"), o("s_nop 1"),
             o("v_add_f32 v24, v24, v25"), o("v_add_f32 v26, v26, v27"),
             o(f"s_mov_b32 s{T5}, {f2u(1.0/576):#x}"),
             o(f"v_mul_f32 v24, s{T5}, v24"), o(f"v_mul_f32 v26, s{T5}, v26"),
             o("v_fma_f32 v26, -v24, v24, v26"), o("v_max_f32 v26, 0, v26"),
             o("v_cvt_pk_bf16_f32 v24, v24, v26"),
             o("v_and_b32 v26, 0xffff0000, v24"), o("v_lshlrev_b32 v24, 16, v24"),
             o(f"v_xor_b32 v{V_NEGMU}, 0x80000000, v24")]
        for i in range(1, 16): L += [o(f"v_mov_b32 v{V_NEGMU+i}, v{V_NEGMU}")]
        L += [o(f"v_add_f32 v26, {f2u(1e-5):#x}, v26"),
              o("v_cvt_pk_bf16_f32 v26, v26, v26"), o("v_lshlrev_b32 v26, 16, v26"),
              o("v_sqrt_f32 v26, v26"), o("s_nop 0"),
              o("v_cvt_pk_bf16_f32 v26, v26, v26"), o("v_lshlrev_b32 v26, 16, v26"),
              o("v_rcp_f32 v27, v26"), o(f"v_mul_f32 v{V_D2}, v26, v26"),
              o(f"v_mul_f32 v{V_C0}, {f2u(C0):#x}, v27"), o("v_mul_f32 v28, v27, v27"), o("v_mul_f32 v28, v28, v27"),
              o(f"v_mul_f32 v{V_C1}, {f2u(C1):#x}, v28"),
              o("v_and_b32 v28, 31, v0"), o("v_lshlrev_b32 v28, 2, v28"), o(f"s_lshl_b32 s{T0}, s{S_W}, 12"), o(f"s_add_u32 s{T0}, s{T0}, {SPARE}"),
              o(f"v_add_u32 v28, s{T0}, v28"), ds("ds_write_b32 v28, v27", "rtab")]
        return L

    def seg_norm_h(self):
        M = []; frags = []
        def UBf(i):
            if i == 0: return 16
            if i % 2 == 0: return RX + 8*(i - 2)
            return (32, 48, 16)[((i - 1)//2) % 3]
        def nextuser(i):
            for k in range(i + 1, 18):
                if UBf(k) == UBf(i): return k
            return None
        posU = {}; posH = {}
        def U(i):
            b = UBf(i)
            M.append(dict(op=32, acc=f"v[{b}:{b+15}]", first=True, C=f"v[{V_NEGMU}:{V_NEGMU+15}]", A=f"v[{V_PERM}:{V_PERM+3}]", B=f"v[{RX+8*i}:{RX+8*i+3}]", need=-1))
            M.append(dict(op=32, acc=f"v[{b}:{b+15}]", first=False, A=f"v[{V_PERM+4}:{V_PERM+7}]", B=f"v[{RX+8*i+4}:{RX+8*i+7}]", need=-1))
            posU[i] = len(M) - 2
        def H(ks):
            f = len(frags); a = AF + 4*(f % NAF)
            frags.append(dict(reads=[f"ds_read_b128 a[{a}:{a+3}], v{V_XA+(ks&3)} offset:{(ks//4)*4096}"], use=len(M)))
            M.append(dict(op=32, acc=f"v[{V_HACC}:{V_HACC+15}]", first=(ks == 0), A=f"a[{AX+4*ks}:{AX+4*ks+3}]", B=f"a[{a}:{a+3}]", need=f))
            posH[ks] = len(M) - 1
        LAG = 5
        for i in range(18):
            U(i)
            if i >= LAG: H(2*(i-LAG)); H(2*(i-LAG)+1)
        for i in range(18 - LAG, 18): H(2*i); H(2*i+1)
        last = -1
        for m in M:
            if m["need"] < 0: m["need"] = last
            else: last = m["need"]
        g0 = frags[0]["use"] - 6
        M[g0].setdefault("before", []).extend([wvm("wz1")] + self.h_special(S_A, 2, "a") + [o("s_waitcnt lgkmcnt(0)"), o("s_barrier")])
        def setup(sl, head):
            sl.put(2, [o('s_nop 4')]); sl.put(3, [o('s_nop 4')])
            for i in range(18):
                b = UBf(i)
                ins = []
                for q in range(8):
                    t = 2 + 2*(i % 4) + (q % 2)
                    ins += [o(f"v_cvt_pk_bf16_f32 v{t}, v{b+2*q}, v{b+2*q+1}"), o(f"v_accvgpr_write_b32 a{AX+8*i+q}, v{t}")]
                start = posU[i] + 1 + 3
                end = min(posH[2*i] - 1, start + 11)
                if nextuser(i) is not None: end = min(end, posU[nextuser(i)])
                e = sl.stream(ins, start, end, spill=0)
                assert e < posH[2*i] - 0, (i, e, posH[2*i])
        return self.paced(M, frags, setup, 6)

    def h_epilogue(self, zreg, acc, rr, tb):
        L = []
        sg, f1, f2, f3 = tb + 8, tb + 9, tb + 10, tb + 11
        L += [G([o(f"s_cmp_lt_u32 s{zreg}, 9"), o(f"s_cselect_b32 s{S_ST0}, 1.0, -1.0")]), o(f"v_mov_b32 v{sg}, s{S_ST0}"),
              G([o(f"s_cmp_eq_u32 s{zreg}, 9"), o(f"s_cselect_b32 s{S_ST0}, 0, 99")]),
              G([o(f"v_and_b32 v{f1}, 31, v0"), o(f"v_cmp_eq_u32 vcc, s{S_ST0}, v{f1}"), o(f"v_mov_b32 v{f2}, 1.0"), o("v_nop"),
                 o(f"v_cndmask_b32 v{sg}, v{sg}, v{f2}, vcc")]),
              G([o(f"s_or_b32 s{S_ST0}, s{S_MT}, s{S_W}"), o(f"s_cmp_eq_u32 s{S_ST0}, 0"), o(f"s_cselect_b32 s{S_ST0}, 32, 0")]),
              G([o(f"v_cmp_gt_u32 vcc, s{S_ST0}, v0"), o(f"v_mov_b32 v{tb}, 0"), o(f"v_mov_b32 v{tb+1}, 1.0"),
                 o(f"v_cndmask_b32 v{f1}, v{sg}, v{tb+1}, vcc"), o(f"v_cndmask_b32 v{f2}, v{tb+1}, v{tb}, vcc"), o(f"v_cndmask_b32 v{f3}, v{sg}, v{tb}, vcc")])]
        for r in range(16): L += [o(f"v_mul_f32 v{acc+r}, v{acc+r}, v{rr+r}")]
        L += [o(f"v_add_f32 v{tb+12}, v{acc+8}, v{acc+12}"), o(f"v_sub_f32 v{tb+13}, v{acc+8}, v{acc+12}"), o(f"v_mov_b32 v{tb+14}, 0"),
              G([o(f"v_cmp_lt_f32 vcc, 0, v{sg}"), o("v_nop"), o("v_nop"),
                 o(f"v_cndmask_b32 v{tb+12}, v{tb+14}, v{tb+12}, vcc"), o(f"v_cndmask_b32 v{tb+13}, v{tb+13}, v{tb+14}, vcc")])]
        for ii in range(4):
            s1, s3 = (f1, f3) if ii == 0 else (sg, sg)
            v0, v1, v2, v3 = acc + ii, acc + 4 + ii, acc + 8 + ii, acc + 12 + ii
            if ii == 0: L += [o(f"v_mul_f32 v{v2}, v{v2}, v{f2}")]
            L += [o(f"v_fma_f32 v{v0}, v{v3}, v{s3}, v{v0}"),
                  o(f"v_fma_f32 v{v1}, v{v1}, v{s1}, v{v2}"),
                  o(f"v_add_f32 v{tb+ii}, v{v0}, v{v1}"), o(f"v_sub_f32 v{tb+4+ii}, v{v0}, v{v1}")]
        L += [o(f"v_cvt_pk_bf16_f32 v{rr}, v{tb}, v{tb+1}"), o(f"v_cvt_pk_bf16_f32 v{rr+1}, v{tb+2}, v{tb+3}"),
              o(f"v_cvt_pk_bf16_f32 v{rr+2}, v{tb+4}, v{tb+5}"), o(f"v_cvt_pk_bf16_f32 v{rr+3}, v{tb+6}, v{tb+7}"),
              G([o("v_nop"), o("v_nop"), o(f"v_permlane32_swap_b32 v{rr}, v{rr+2}"), o(f"v_permlane32_swap_b32 v{rr+1}, v{rr+3}")]),
              o(f"v_lshrrev_b32 v{rr+4}, 5, v0"), o(f"v_mul_u32_u24 v{rr+4}, {ZF_TYPE}, v{rr+4}"),
              o(f"v_and_b32 v{rr+5}, 31, v0"), o(f"v_lshlrev_b32 v{rr+5}, 4, v{rr+5}"), o(f"v_add_u32 v{rr+4}, v{rr+4}, v{rr+5}"),
              G([o(f"s_mul_i32 s{S_ST0}, s{zreg}, {ZF_STRIDE}"), o(f"s_lshl_b32 s{S_ST1}, s{S_MT}, 2"), o(f"s_add_u32 s{S_ST1}, s{S_ST1}, s{S_W}")]),
              G([o(f"s_lshl_b32 s{S_ST1}, s{S_ST1}, 9"), o(f"s_add_u32 s{S_ST1}, s{S_ST1}, s{S_ST0}"), o(f"s_add_u32 s{S_ST1}, s{S_ST1}, {WS_ZF}")]),
              vm(f"buffer_store_dwordx4 v[{rr}:{rr+3}], v{rr+4}, s[{SR_WS}:{SR_WS+3}], s{S_ST1} offen sc1", "zst"),
              o(f"v_mov_b32 v{tb+14}, v{tb+12}"),
              G([o("v_nop"), o("v_nop"), o(f"v_permlane32_swap_b32 v{tb+14}, v{tb+13}")]),
              o(f"v_mov_b32 v{rr+9}, 0"), o(f"v_mov_b32 v{rr+10}, 0"), o(f"v_mov_b32 v{rr+11}, 0"),
              o(f"v_cvt_pk_bf16_f32 v{rr+8}, v{tb+14}, v{rr+9}"),
              G([o(f"s_or_b32 s{S_ST1}, s{S_MT}, s{S_W}"), o(f"s_cmp_eq_u32 s{S_ST1}, 0"), o(f"s_cselect_b32 s{S_C}, 0, {OOB:#x}")]),
              o(f"v_add_u32 v{rr+5}, s{S_C}, v{rr+4}"),
              o(f"s_add_u32 s{S_ST0}, s{S_ST0}, {WS_ZF + 32*1024}"),
              vm(f"buffer_store_dwordx4 v[{rr+8}:{rr+11}], v{rr+5}, s[{SR_WS}:{SR_WS+3}], s{S_ST0} offen sc1", "zst"),
              G([o(f"v_mov_b32 v{rr+12}, 0"), o(f"v_mov_b32 v{rr+13}, 0"), o(f"v_mov_b32 v{rr+14}, 0"), o(f"v_mov_b32 v{rr+15}, 0")])]
        for k in (512, 1024, 1536):
            L += [vm(f"buffer_store_dwordx4 v[{rr+12}:{rr+15}], v{rr+5}, s[{SR_WS}:{SR_WS+3}], s{S_ST0} offen offset:{k} sc1", "zst")]
        return L

    def rr_reads(self, rr, tmp, n=1):
        return [o(f"v_lshrrev_b32 v{tmp}, 5, v0"), o(f"v_lshlrev_b32 v{tmp}, 4, v{tmp}"), o(f"s_lshl_b32 s{S_C}, s{S_W}, 12"),
                o(f"s_add_u32 s{S_C}, s{S_C}, {SPARE}"), o(f"v_add_u32 v{tmp}, s{S_C}, v{tmp}")] + \
               [ds(f"ds_read_b128 v[{rr+4*q}:{rr+4*q+3}], v{tmp} offset:{32*q}", ("rr", n)) for q in range(4)] + [wlg(("rr", n))]

    def h2_block(self):
        L = [o(f"s_cmp_lt_u32 s{S_J}, 2"), o("s_cbranch_scc0 L_noz2b")]
        B = [o(f"v_add_u32 v{64+i}, {SLOT}, v{V_XA+i}") for i in range(4)]
        B += [o(f"s_waitcnt vmcnt({18 if self.opts.get('bearly') else 20})"), o("s_barrier")]
        def rd(ks):
            a_ = AF + 4*(ks % NAF)
            return o(f"ds_read_b128 a[{a_}:{a_+3}], v{64+(ks&3)} offset:{(ks//4)*4096}")
        for ks in range(6): B += [rd(ks)]
        for k in range(36):
            a_ = AF + 4*(k % NAF)
            n_out = min(5, 35 - k)
            B += [o(f"s_waitcnt lgkmcnt({n_out})"), mf32("v[128:143]", f"a[{AX+4*k}:{AX+4*k+3}]", f"a[{a_}:{a_+3}]", "0" if k == 0 else "v[128:143]")]
            if k + 6 < 36: B += [rd(k + 6)]
        B += [raw("L_noz2b:"),
              o(f"s_cmp_lt_u32 s{S_J}, 2"), o(f"s_cselect_b32 s{S_B}, s{S_B}, 0x4000")]
        return L + B

    def dma_p1(self, sig, slot, tA=226, tB=227):
        groups = []
        if sig < 16:
            u, mat, kh = sig // 4, (sig // 2) % 2, sig % 2
            rs = SR_WG if mat == 0 else SR_WU
            for grp, ts in enumerate([[0,1,2,3],[0,1,2,3],[0]]):
                g = [o(f"s_add_u32 m0, s{S_L9}, {slot*SLOT + grp*4096}"),
                     o(f"s_add_u32 s{S_D0}, s{S_UB+u}, {(kh*288 + grp*32)*9216}")]
                for t in ts:
                    groups.append(g + [vm(f"buffer_load_dwordx4 v{V_DM+t}, s[{rs}:{rs+3}], s{S_D0} offen offset:{t*1024} lds", ("st", sig))])
                    g = []
        else:
            rs = SR_WG if sig == 16 else SR_WU
            for grp, ts in enumerate([[0,1,2,3],[0,1,2,3],[0]]):
                g = []
                if sig == 16 and grp == 0:
                    groups.append([o(f"v_lshrrev_b32 v{tA}, 2, v0"), o(f"v_and_b32 v{tB}, 3, v0"), o(f"v_lshlrev_b32 v{tB}, 4, v{tB}")])
                    groups.append([o(f"v_mul_u32_u24 v{tA}, 9216, v{tA}"), o(f"v_add_u32 v{V_DM}, v{tA}, v{tB}")] +
                                  [o(f"v_add_u32 v{V_DM+t}, {t*(16*9216-1024)}, v{V_DM}") for t in range(1, 4)])
                g += [o(f"s_add_u32 m0, s{S_L9}, {slot*SLOT + grp*4096}"),
                      o(f"s_add_u32 s{S_D0}, s{S_UB+4}, {grp*64*9216}")]
                for t in ts:
                    groups.append(g + [vm(f"buffer_load_dwordx4 v{V_DM+t}, s[{rs}:{rs+3}], s{S_D0} offen offset:{t*1024} lds", ("st", sig))])
                    g = []
        return groups

    def dma_cs(self, mat, slot, tag, nop=False):
        rs = SR_CS if mat == 0 else SR_SS
        groups = []
        for l in range(2):
            for rho in range(4):
                groups.append([o(f"s_add_u32 m0, s{S_A}, {slot*SLOT + (4*l+rho)*1024 - 128*l}")] + ([o("s_nop 0")] if nop else []) +
                              [vm(f"buffer_load_dwordx4 v{V_SD+rho}, s[{rs}:{rs+3}], 0 offen offset:{128*l} lds", tag)])
        return groups
    def dma_cx(self, mat, tag):
        rs = SR_CS if mat == 0 else SR_SS
        return [[o(f"s_add_u32 m0, s{S_B}, {SPARE + mat*4096}"), o("s_nop 0"),
                 vm(f"buffer_load_dwordx4 v{V_SE}, s[{rs}:{rs+3}], 0 offen lds", tag)]]

    def dma_p2(self, st, slot, first128, tA, tB, tC):
        u, who = st
        groups = []
        if u < 4:
            tbl = S_N0 if who == "own" else S_N1
            if first128:
                groups.append([o(f"v_lshrrev_b32 v{tA}, 3, v0"), o(f"v_and_b32 v{tB}, 7, v0"), o(f"v_bfe_u32 v{tC}, v0, 4, 1")])
                groups.append([o(f"v_lshlrev_b32 v{tC}, 2, v{tC}"), o(f"v_xor_b32 v{tB}, v{tB}, v{tC}"), o(f"v_lshlrev_b32 v{tB}, 4, v{tB}")])
                groups.append([o(f"s_mul_i32 s{S_WD}, s{S_W}, {8*1152}")])
                groups.append([o(f"v_mul_u32_u24 v{tA}, 1152, v{tA}"), o(f"v_add_u32 v{V_DM}, v{tA}, v{tB}"), o(f"v_add_u32 v{V_DM}, s{S_WD}, v{V_DM}")])
                groups.append([o(f"s_lshl_b32 s{S_WD}, s{S_W}, 10")])
            for ip in range(9):
                groups.append([o(f"s_add_u32 m0, s{S_WD}, {slot*SLOT + ip*4096}"),
                               o(f"s_add_u32 s{S_D0}, s{tbl+ip}, s{S_CU+u}"),
                               vm(f"buffer_load_dwordx4 v{V_DM}, s[{SR_WD}:{SR_WD+3}], s{S_D0} offen lds", ("s2", st))])
        else:
            groups.append([o(f"v_lshrrev_b32 v{tA}, 2, v0"), o(f"v_and_b32 v{tB}, 3, v0"), o(f"v_lshlrev_b32 v{tB}, 4, v{tB}")])
            groups.append([o(f"v_mul_u32_u24 v{tA}, 1152, v{tA}"), o(f"v_add_u32 v{V_DM+1}, v{tA}, v{tB}")])
            for ip in range(9):
                ca, cb = 2*ip, 2*ip + 1
                ra = (S_N0 + ca) if ca < 9 else (S_N1 + ca - 9)
                rb = (S_N0 + cb) if cb < 9 else (S_N1 + cb - 9)
                groups.append([o(f"s_cmp_lt_u32 s{S_W}, 2"), o(f"s_cselect_b32 s{S_D0}, s{ra}, s{rb}"),
                               o(f"s_add_u32 s{S_D0}, s{S_D0}, s{S_CU+4}"), o(f"s_add_u32 s{S_D0}, s{S_D0}, s{S_C}"),
                               o(f"s_add_u32 m0, s{S_WD}, {slot*SLOT + ip*4096}")])
                groups.append([vm(f"buffer_load_dwordx4 v{V_DM+1}, s[{SR_WD}:{SR_WD+3}], s{S_D0} offen lds", ("s2", st))])
        return groups

    def geglu(self, c, toff=0):
        if c < 8: g, u = GA[(c//2) % 2][c % 2], UA[(c//2) % 2][c % 2]
        else: g, u = GA[0][0], UA[0][0]
        L = []
        for p in range(8):
            r0, r1 = 2*p, 2*p + 1
            b = TMP + 4*(p % 2) + toff
            xa, xb, ya, yb = b, b+1, b+2, b+3
            L += [o(f"v_mul_f32 v{xa}, v{g+r0}, v{g+r0}"), o(f"v_mul_f32 v{xb}, v{g+r1}, v{g+r1}"),
                  o(f"v_fma_f32 v{xa}, v{xa}, v{V_C1}, v{V_C0}"), o(f"v_fma_f32 v{xb}, v{xb}, v{V_C1}, v{V_C0}"),
                  o(f"v_mul_f32 v{xa}, v{g+r0}, v{xa}"), o(f"v_mul_f32 v{xb}, v{g+r1}, v{xb}"),
                  o(f"v_exp_f32 v{xa}, v{xa}"), o(f"v_exp_f32 v{xb}, v{xb}"),
                  o(f"v_mul_f32 v{ya}, v{g+r0}, v{u+r0}"), o(f"v_mul_f32 v{yb}, v{g+r1}, v{u+r1}"),
                  o(f"v_fma_f32 v{xa}, v{xa}, v{V_D2}, v{V_D2}"), o(f"v_fma_f32 v{xb}, v{xb}, v{V_D2}, v{V_D2}"),
                  o(f"v_rcp_f32 v{xa}, v{xa}"), o(f"v_rcp_f32 v{xb}, v{xb}"),
                  o(f"v_mul_f32 v{ya}, v{ya}, v{xa}"), o(f"v_mul_f32 v{yb}, v{yb}, v{xb}"),
                  o(f"v_cvt_pk_bf16_f32 v{HF + 8*c + p}, v{ya}, v{yb}")]
        return L
    def geglu_sig(self, c, toff=0):
        g = GA[(c//2) % 2][c % 2] if c < 8 else GA[0][0]
        L = []
        for p in range(8):
            r0, r1 = 2*p, 2*p + 1
            b = TMP + 2*(p % 2) + toff
            xa, xb = b, b + 1
            L += [o(f"v_mul_f32 v{xa}, v{g+r0}, v{g+r0}"), o(f"v_mul_f32 v{xb}, v{g+r1}, v{g+r1}"),
                  o(f"v_fma_f32 v{xa}, v{xa}, v{V_C1}, v{V_C0}"), o(f"v_fma_f32 v{xb}, v{xb}, v{V_C1}, v{V_C0}"),
                  o(f"v_mul_f32 v{xa}, v{g+r0}, v{xa}"), o(f"v_mul_f32 v{xb}, v{g+r1}, v{xb}"),
                  o(f"v_exp_f32 v{xa}, v{xa}"), o(f"v_exp_f32 v{xb}, v{xb}"), o("v_nop") if False else None,
                  o(f"v_fma_f32 v{xa}, v{xa}, v{V_D2}, v{V_D2}"), o(f"v_fma_f32 v{xb}, v{xb}, v{V_D2}, v{V_D2}"),
                  o(f"v_rcp_f32 v{xa}, v{xa}"), o(f"v_rcp_f32 v{xb}, v{xb}"),
                  o(f"v_mul_f32 v{g+r0}, v{g+r0}, v{xa}"), o(f"v_mul_f32 v{g+r1}, v{g+r1}, v{xb}")]
        return [i for i in L if i is not None]
    def geglu_fin(self, c, toff=0):
        if c < 8: g, u = GA[(c//2) % 2][c % 2], UA[(c//2) % 2][c % 2]
        else: g, u = GA[0][0], UA[0][0]
        L = []
        for p in range(8):
            r0, r1 = 2*p, 2*p + 1
            L += [o(f"v_mul_f32 v{g+r0}, v{g+r0}, v{u+r0}"), o(f"v_mul_f32 v{g+r1}, v{g+r1}, v{u+r1}"),
                  o(f"v_cvt_pk_bf16_f32 v{HF + 8*c + p}, v{g+r0}, v{g+r1}")]
        return L
    def hstore(self, c):
        st = S_ST0 + (c % 2)
        return [o(f"s_add_u32 s{st}, s{S_HB}, {2*c*1024}")] + self.dstore(
                [f"buffer_store_dwordx4 v[{HF+8*c}:{HF+8*c+3}], v{V_L16}, s[{SR_WS}:{SR_WS+3}], s{st} offen",
                 f"buffer_store_dwordx4 v[{HF+8*c+4}:{HF+8*c+7}], v{V_L16}, s[{SR_WS}:{SR_WS+3}], s{st} offen offset:1024"], "hst", True)

    def s_setup(self):
        a, b, c = V_SX, V_YC[0], V_YC[1]
        L = []
        L += [G([o(f"s_lshr_b32 s{S_TAU}, s{S_J}, 3"), o(f"s_lshl_b32 s{S_A}, s{S_W}, 13"), o(f"s_lshl_b32 s{S_B}, s{S_W}, 10")]),
              G([o(f"s_mul_i32 s{S_ZB}, s{S_TAU}, {ZF_TYPE}"), o(f"s_add_u32 s{S_ZB}, s{S_ZB}, s{S_A}"), o(f"s_add_u32 s{S_ZB}, s{S_ZB}, {WS_ZF}")])]
        L += [o(f"v_lshrrev_b32 v{a}, 3, v0"), o(f"v_and_b32 v{b}, 7, v0"), o(f"v_lshrrev_b32 v{c}, 1, v{a}"), o(f"v_xor_b32 v{b}, v{b}, v{c}"),
              o(f"v_lshlrev_b32 v{b}, 4, v{b}"), o(f"v_xor_b32 v{c}, 64, v{b}"),
              G([o(f"s_lshl_b32 s{S_C}, s{S_MT}, 5"), o(f"s_add_u32 s{S_C}, s{S_C}, s{S_TAU}")]),
              o(f"v_lshlrev_b32 v{a}, 1, v{a}"), o(f"v_add_u32 v{a}, s{S_C}, v{a}"),
              o(f"s_lshl_b32 s{S_C}, s{S_W}, 8"),
              o(f"v_add_u32 v{b}, s{S_C}, v{b}"), o(f"v_add_u32 v{c}, s{S_C}, v{c}"),
              o(f"v_lshlrev_b32 v{V_SD}, 12, v{a}"), o(f"v_add_u32 v{V_SD+1}, {16*4096}, v{V_SD}"),
              o(f"v_sub_u32 v{a}, 1024, v{a}"), o(f"v_lshlrev_b32 v{V_SD+2}, 12, v{a}"), o(f"v_subrev_u32 v{V_SD+3}, {16*4096}, v{V_SD+2}"),
              o(f"v_add_u32 v{V_SD}, v{V_SD}, v{b}"), o(f"v_add_u32 v{V_SD+1}, v{V_SD+1}, v{c}"),
              o(f"v_add_u32 v{V_SD+2}, v{V_SD+2}, v{b}"), o(f"v_add_u32 v{V_SD+3}, v{V_SD+3}, v{c}")]
        return L
    def s_setup_e(self, t0, t1):
        return [G([o(f"s_cmp_eq_u32 s{S_W}, 1"), o(f"s_cselect_b32 s{S_C}, 1, 0")]),
                o(f"v_mov_b32 v{V_SE}, v{V_SD}"),
                G([o(f"v_mov_b32 v{t0}, s{S_W}"), o(f"v_cmp_eq_u32 vcc, 1, v{t0}"), o("v_nop"), o("v_nop"), o(f"v_cndmask_b32 v{V_SE}, v{V_SE}, v{V_SD+1}, vcc")]),
                G([o(f"v_cmp_eq_u32 vcc, 2, v{t0}"), o("v_nop"), o("v_nop"), o(f"v_cndmask_b32 v{V_SE}, v{V_SE}, v{V_SD+2}, vcc")]),
                G([o(f"v_cmp_eq_u32 vcc, 3, v{t0}"), o("v_nop"), o("v_nop"), o(f"v_cndmask_b32 v{V_SE}, v{V_SE}, v{V_SD+3}, vcc")]),
                G([o(f"s_lshl_b32 s{S_C}, s{S_W}, 8"), o(f"s_sub_u32 s{S_C}, 1024, s{S_C}")]), o(f"v_add_u32 v{V_SE}, s{S_C}, v{V_SE}")]
    def s_setup2(self):
        a, b, c = V_SX, V_YC[0], V_YC[1]
        L = []
        L += [o(f"v_and_b32 v{a}, 15, v0"), o(f"v_lshrrev_b32 v{b}, 4, v0"), o(f"v_bfe_u32 v{c}, v0, 1, 3"), o(f"v_xor_b32 v{c}, v{c}, v{b}"),
              o(f"v_lshlrev_b32 v{c}, 4, v{c}"), o(f"v_lshlrev_b32 v{a}, 7, v{a}"), o(f"v_add_u32 v{a}, v{a}, v{c}"),
              o(f"v_add_u32 v{V_SA}, s{S_A}, v{a}"), o(f"v_add_u32 v{V_SA}, {2*SLOT}, v{V_SA}"), o(f"v_xor_b32 v{V_SA+1}, 64, v{V_SA}"),
              G([o(f"s_cmp_eq_u32 s{S_W}, 3"), o(f"s_cselect_b32 s{S_C}, {SPARE}, 0")]),
              G([o(f"s_add_u32 s{S_PF}, s{S_A}, {2*SLOT}"), o(f"s_cmp_eq_u32 s{S_W}, 3"), o(f"s_cselect_b32 s{S_C}, s{S_C}, s{S_PF}")]),
              o(f"v_add_u32 v{V_SA+2}, s{S_C}, v{a}"),
              G([o(f"s_movk_i32 s{S_PF}, 4096"), o(f"s_cmp_eq_u32 s{S_W}, 3"), o(f"s_cselect_b32 s{S_PF}, s{S_PF}, {SLOT}")]),
              o(f"v_add_u32 v{V_SA+3}, s{S_PF}, v{V_SA+2}")]
        return L
    def s_setup3(self, t0, t1, t2, t3):
        L = []
        L += [o(f"v_and_b32 v{t0}, 15, v0"), o(f"v_lshrrev_b32 v{t1}, 4, v0"),
              o(f"v_and_b32 v{t2}, 1, v{t1}"), o(f"v_lshlrev_b32 v{t2}, 9, v{t2}"),
              o(f"v_lshrrev_b32 v{t1}, 1, v{t1}"), o(f"v_lshlrev_b32 v{t1}, 10, v{t1}"), o(f"v_add_u32 v{t2}, v{t2}, v{t1}"),
              G([o(f"s_and_b32 s{S_C}, s{S_J}, 7"), o(f"s_mul_i32 s{S_C}, s{S_C}, 36")]),
              o(f"v_add_u32 v{t0}, s{S_C}, v{t0}")]
        for ss in range(3):
            pa, qa, yc = V_ZP + ss, V_ZQ + ss, V_YC[ss]
            L += [o(f"v_lshrrev_b32 v{t1}, 5, v{t0}"), o(f"v_mul_u32_u24 v{t1}, {ZF_STRIDE}, v{t1}"),
                  o(f"v_and_b32 v{t3}, 31, v{t0}"), o(f"v_lshlrev_b32 v{t3}, 4, v{t3}"), o(f"v_add_u32 v{t1}, v{t1}, v{t3}"),
                  o(f"v_add_u32 v{t1}, v{t1}, v{t2}"),
                  o(f"v_subrev_u32 v{t3}, s{S_C}, v{t0}"),
                  o(f"v_lshlrev_b32 v{yc}, 2, v{t0}"), o(f"v_mov_b32 v{qa}, {OOB:#x}"), o(f"v_mov_b32 v{pa}, {OOB:#x}"),
                  G([o(f"v_cmp_gt_u32 vcc, 36, v{t3}"), o("v_nop"), o("v_nop"), o(f"v_cndmask_b32 v{pa}, v{pa}, v{t1}, vcc")]),
                  o(f"v_add_u32 v{t3}, {9*ZF_STRIDE}, v{t1}"),
                  G([o(f"v_cndmask_b32 v{qa}, v{qa}, v{t3}, vcc")]),
                  G([o(f"v_cmp_eq_u32 vcc, 0x120, v{t0}"), o("v_nop"), o("v_nop"), o(f"v_cndmask_b32 v{pa}, v{pa}, v{t1}, vcc")]),
                  G([o(f"v_mov_b32 v{t3}, {OOB:#x}"), o(f"v_cmp_eq_u32 vcc, 0, v{t0}"), o("v_nop"), o("v_nop"), o(f"v_cndmask_b32 v{qa}, v{qa}, v{t3}, vcc")]),
                  G([o(f"v_cmp_eq_u32 vcc, v{t3}, v{pa}"), o("v_nop"), o("v_nop"), o(f"v_cndmask_b32 v{yc}, v{yc}, v{t3}, vcc")]),
                  o(f"v_add_u32 v{t0}, 16, v{t0}")]
        return L

    def phase2_setup(self):
        L = []
        L += [G([o(f"s_xor_b32 s{T6}, s{S_J}, 1"), o(f"s_and_b32 s{T2}, s{T6}, 1"), o(f"s_mul_i32 s{T0}, s{T6}, 288")]),
              G([o(f"s_mul_i32 s{T1}, s{T2}, 224"), o(f"s_add_u32 s{T1}, s{T0}, s{T1}")]),
              G([o(f"s_cmp_eq_u32 s{T2}, 0"), o(f"s_cselect_b32 s{T3}, 64, -64"), o(f"s_cselect_b32 s{T4}, 256, 0")]),
              o(f"s_add_u32 s{T4}, s{T4}, s{T0}")]
        for u in range(4):
            L += [G([o(f"s_mul_i32 s{T5}, s{T3}, {u}"), o(f"s_add_u32 s{T5}, s{T5}, s{T1}")]),
                  G([o(f"s_mul_i32 s{S_N1+2*u}, s{T5}, 1152"), o(f"s_add_u32 s{S_N1+2*u+1}, s{S_N1+2*u}, {32*1152}")])]
        L += [o(f"s_mul_i32 s{S_N1+8}, s{T4}, 1152")]
        L += [G([o(f"s_and_b32 s{T2}, s{S_J}, 1"), o(f"s_mul_i32 s{T0}, s{T2}, 640"), o(f"s_lshr_b32 s{T1}, s{S_J}, 2")])]
        for k in range(4):
            L += [G([o(f"s_add_u32 s{T3}, s{T1}, {(k+1) % 4 if k < 3 else 0}"), o(f"s_and_b32 s{T3}, s{T3}, 3"), o(f"s_lshl_b32 s{T3}, s{T3}, 7")]),
                  o(f"s_add_u32 s{S_CU+k}, s{T0}, s{T3}")]
        L += [G([o(f"s_cmp_eq_u32 s{T2}, 0"), o(f"s_cselect_b32 s{S_CU+4}, 0, 64")]), o(f"s_add_u32 s{S_CU+4}, s{S_CU+4}, 512")]
        return L

    def p2q_setup(self):
        L = [G([o(f"s_and_b32 s{T2}, s{S_J}, 1"), o(f"s_mul_i32 s{T3}, s{T2}, 10"), o(f"s_lshr_b32 s{T4}, s{S_J}, 2")])]
        for k, dst in enumerate(S_QU):
            L += [G([o(f"s_add_u32 s{T5}, s{T4}, {k+1}"), o(f"s_and_b32 s{T5}, s{T5}, 3"), o(f"s_lshl_b32 s{T5}, s{T5}, 1")]),
                  G([o(f"s_add_u32 s{T5}, s{T5}, s{T3}"), o(f"s_lshl_b32 s{T5}, s{T5}, 11"), o(f"s_add_u32 s{dst}, s{T5}, s{S_PB}")])]
        L += [G([o(f"s_lshl_b32 s{T5}, s{T4}, 1"), o(f"s_add_u32 s{T5}, s{T5}, s{T3}"), o(f"s_bfe_u32 s{T4}, s{S_J}, 0x10001")]),
              G([o(f"s_add_u32 s{S_TO}, s{T5}, s{T4}"), o(f"s_xor_b32 s{T4}, s{T4}, 1"), o(f"s_add_u32 s{T5}, s{T5}, s{T4}")]),
              G([o(f"s_lshl_b32 s{T5}, s{T5}, 11"), o(f"s_add_u32 s{S_QN}, s{T5}, s{S_PB}")]),
              G([o(f"s_add_u32 s{T5}, s{T2}, 8"), o(f"s_lshl_b32 s{T5}, s{T5}, 11"), o(f"s_add_u32 s{S_Q8}, s{T5}, s{S_PB}")])]
        return L

    def main(self):
        DIST = self.opts.get("dist", 7)
        M = []; frags = []
        fu = {}; lu = {}
        def addfrag(reads_fn, use, dist=None, stage=None):
            f = len(frags); a = AF + 4*(f % NAF)
            fr = dict(reads=reads_fn(a), use=use)
            if dist: fr["dist"] = dist
            frags.append(fr)
            if stage is not None and stage not in fu:
                fu[stage] = use; fr["stage_first"] = stage
            return f, a
        def tr(base, off, off2): return lambda a: [f"ds_read_b64_tr_b16 a[{a}:{a+1}], v{base} offset:{off}", f"ds_read_b64_tr_b16 a[{a+2}:{a+3}], v{base} offset:{off+off2}"]
        for u in range(4):
            for mat in range(2):
                for kh in range(2):
                    sig = 4*u + 2*mat + kh
                    for half in range(2):
                        acc = (GA if mat == 0 else UA)[u % 2][half]
                        for kk in range(18):
                            ks = kh*18 + kk; g = len(M)
                            f, a = addfrag(tr((V_RA if half == 0 else V_RB) + sig % 4, kk*2048, 512), g, stage=("st", sig))
                            M.append(dict(op=32, acc=f"v[{acc}:{acc+15}]", first=(ks == 0), A=f"a[{a}:{a+3}]", B=f"a[{AX+4*ks}:{AX+4*ks+3}]", need=f))
                            lu[("st", sig)] = g
        for mat in range(2):
            acc = (GA if mat == 0 else UA)[0][0]
            for ks in range(36):
                g = len(M)
                f, a = addfrag(tr(V_R8 + mat, ks*1024, 256), g, stage=("st", 16+mat))
                M.append(dict(op=32, acc=f"v[{acc}:{acc+15}]", first=(ks == 0), A=f"a[{a}:{a+3}]", B=f"a[{AX+4*ks}:{AX+4*ks+3}]", need=f))
                lu[("st", 16+mat)] = g
        S0 = len(M)
        def accP(tt, ss):
            i = tt*3 + ss
            return 48 + 4*i if i < 4 else 112 + 4*(i - 4)
        def accQ(tt, ss):
            i = tt*3 + ss
            return 64 + 4*i if i < 4 else 128 + 4*(i - 4)
        def zP(ss, k):
            i = k*3 + ss
            return f"a[{AZ+4*i}:{AZ+4*i+3}]"
        def zQ(ss, k):
            i = k*3 + ss
            if i < 5: return f"a[{AZ+60+4*i}:{AZ+60+4*i+3}]"
            i -= 5
            if i < 4: return f"v[{32+4*i}:{32+4*i+3}]"
            i -= 4
            if i < 4: return f"v[{96+4*i}:{96+4*i+3}]"
            i -= 4
            return f"a[{4*i}:{4*i+3}]"
        self.zP, self.zQ, self.accP, self.accQ = zP, zQ, accP, accQ
        for mat, accf, zf in ((0, accP, zP), (1, accQ, zQ)):
            for k in range(5):
                for tt in range(2):
                    g = len(M)
                    if k < 4:
                        base = V_SA + (k & 1); off = mat*SLOT + (k >> 1)*4096 + tt*2048
                        st = ("C" if mat == 0 else "S", 0)
                    else:
                        base = V_SA + 2 + mat; off = tt*2048; st = ("CX" if mat == 0 else "SX", 0)
                    f, a = addfrag(lambda a, base=base, off=off: [f"ds_read_b128 a[{a}:{a+3}], v{base} offset:{off}"], g, dist=8, stage=st)
                    for ss in range(3):
                        ac = accf(tt, ss)
                        M.append(dict(op=16, acc=f"v[{ac}:{ac+3}]", first=(k == 0), A=f"a[{a}:{a+3}]", B=zf(ss, k), need=f))
                        lu[st] = len(M) - 1
            if mat == 0: SP_END = len(M)
        P2_0 = len(M)
        stages = [(0, "own"), (1, "own"), (2, "own"), (0, "par"), (1, "par"), (2, "par"), (4, "both"), (3, "own"), (3, "par")]
        slot_order = [0, 1, 2, 0, 3, 1, 2, 0, 3]
        slot_of = {st: slot_order[i] for i, st in enumerate(stages)}
        ACC = {0: [32, 96], 1: [16, 80], 2: [48, 112], 3: [64, 128], 4: [32]}
        tile_last = {}
        def p2run(st, half, base, ks=None):
            u, who = st
            acc = ACC[u][half]
            for k in (ks or range(18)):
                g = len(M)
                f, a = addfrag(tr(base, k*2048, 1024), g, stage=("s2", st))
                M.append(dict(op=32, acc=f"v[{acc}:{acc+15}]", first=(who == "own" and k == 0), A=f"a[{a}:{a+3}]",
                              B=(f"v[{HF+4*k}:{HF+4*k+3}]" if who == "own" else f"a[{HPB+4*k}:{HPB+4*k+3}]"), need=f))
                tile_last[(u, half)] = g; lu[("s2", st)] = g
        for st in stages[:7]:
            u, who = st; slot = slot_of[st]
            if u < 4 and who == "par" and u in (0, 1) and self.opts.get("klate", 1):
                for rng in (range(12), range(12, 18)):
                    for half in range(2): p2run(st, half, (V_RA if half == 0 else V_RB) + slot, rng)
            elif u < 4:
                for half in range(2): p2run(st, half, (V_RA if half == 0 else V_RB) + slot)
            else:
                acc = ACC[4][0]
                for k in range(36):
                    g = len(M)
                    f, a = addfrag(tr(V_R8, k*1024, 512), g, stage=("s2", st))
                    M.append(dict(op=32, acc=f"v[{acc}:{acc+15}]", first=(k == 0), A=f"a[{a}:{a+3}]",
                                  B=(f"v[{HF+4*k}:{HF+4*k+3}]" if k < 18 else f"a[{HPB+4*(k-18)}:{HPB+4*(k-18)+3}]"), need=f))
                    tile_last[(4, 0)] = g; lu[("s2", st)] = g
        p2run((3, "own"), 0, V_LB); p2run((3, "par"), 0, V_LB + 1); p2run((3, "own"), 1, V_LB + 2); p2run((3, "par"), 1, V_LB + 3)
        N = len(M)
        last_use = {}
        for g, m in enumerate(M): last_use[m["need"]] = g
        for f, fr in enumerate(frags):
            d = fr.get("dist", DIST)
            t = fr["use"] - d
            if f >= NAF and t < last_use[f - NAF]: fr["dist"] = fr["use"] - last_use[f - NAF]
        for fr in frags:
            st = fr.get("stage_first")
            if st is None: continue
            if st[0] in ("st", "s2"):
                tags = [st]
                if st == ("st", 3): tags += ["zst", "flinit"]
                if st == ("st", 17): tags += ["hst"]
                fr["pre"] = [wvm(tags), o("s_barrier")]
                if st == ("st", 17):
                    fr["pre"] += [vm(f"buffer_store_dword v{V_ONE}, v{V_ONE0}, s[{SR_WS}:{SR_WS+3}], s{S_FL} offen sc1", "fl1")]
                if st == ("st", 3):
                    fr["pre"] += [vm(f"buffer_atomic_add v{V_ONE}, v{V_ONE0}, s[{SR_HZ}:{SR_HZ+3}], 0 offen offset:128 sc1", "zpub")]
            elif st == ("CX", 0):
                fr["pre"] = [wvm([("cs", ("CX", 0)), ("cs", ("SX", 0))]), o("s_barrier")]
            elif st == ("SX", 0):
                fr["pre"] = []
            else:
                fr["pre"] = [wvm(("cs", st))]
        stamps = {0: "p1", 144: "u1", 288: "u2", 432: "u3", 576: "u4", S0: "S0", SP_END: "SP", P2_0: "p2", P2_0 + 108: "p2b", P2_0 + 216: "p2c"}
        if self.opts.get("hdiag") == 2:
            stamps = {0: "p1", 144: "u1", 288: "u2", 432: "u3", 576: "u4", S0: "S0", P2_0: "p2", P2_0 + 108: "p2b", P2_0 + 216: "p2c"}
        if self.opts.get("fine") == 2:
            stamps = {0: "p1", S0: "S0", P2_0: "p2"}
            for k in range(9, 127, 9): stamps[P2_0 + k] = f"+{k}"
        elif self.opts.get("fine"):
            stamps = {0: "p1", 432: "u3", 576: "u4", 594: "s594", 612: "s612", 630: "s630", S0: "S0", 660: "s660", 672: "s672", 684: "s684", SP_END: "SP", 714: "s714", 726: "s726", 738: "s738", P2_0: "p2", P2_0 + 36: "a36", P2_0+72: "a72", P2_0 + 108: "p2b", P2_0 + 216: "p2c"}
        for g, name in stamps.items():
            if self.diag: M[g].setdefault("before", []).extend(self.stamp(name))
        self.tail2 = []

        def setup(sl, head):
            rbar = {st: fu[st] - DIST for st in fu if st[0] in ("st", "s2")}
            for b in rbar.values():
                if b >= 0: sl.budget[b] = 4
            def fbar(t):
                sl.put(t, [o("s_barrier")])
            busy = {"end": -1}
            def place(groups, start, step=1):
                s = max(start, busy["end"] + 1)
                for grp in groups:
                    sl.put(s, grp); busy["end"] = s; s += step
                return s
            sl.put(2, [o(f"v_mov_b32 v{V_ONE}, 1")])
            eh = sl.stream(self.rr_reads(48, 112) + self.h_epilogue(S_A, V_HACC, 48, 64), 12, 46)
            eh = sl.stream(self.rr_reads(48, 112, 2) + self.h_epilogue(S_B, 128, 48, 64), eh + 1, eh + 34)
            assert eh < 92, eh
            for mat in range(2):
                slot = (16 + mat) % 4
                ins = [o("v_lshrrev_b32 v224, 5, v0"), o("v_lshlrev_b32 v224, 9, v224"),
                       o("v_bfe_u32 v225, v0, 2, 2"), o("v_lshlrev_b32 v225, 6, v225"), o("v_add_u32 v224, v224, v225"),
                       o("v_bfe_u32 v225, v0, 4, 1"), o("v_lshlrev_b32 v225, 5, v225"), o("v_add_u32 v224, v224, v225"),
                       o("v_and_b32 v225, 3, v0"), o("v_lshlrev_b32 v225, 3, v225"), o("v_add_u32 v224, v224, v225"),
                       o(f"v_add_u32 v{V_R8+mat}, {slot*SLOT}, v224")]
                sl.stream(ins, 70 + 20*mat, 88 + 20*mat)
            dma_end = {}
            for sig in range(2, 18):
                grps = self.dma_p1(sig, sig % 4)
                if sig == 2: start = 0
                elif sig == 3: start = 9*self.opts.get('dstep', 2)
                elif self.opts.get("fb", 1):
                    t = lu[("st", sig - 4)]; fbar(t); start = t + 1
                else:
                    start = min(b for b in rbar.values() if b >= lu[("st", sig - 4)]) + 1
                dma_end[sig] = place(grps, start, self.opts.get("dstep", 2))
            self.paced_prefetch(sl, dma_end)
            self.mode_check(sl, M)
            sl.put(590, [G([o(f"s_lshl_b32 s{S_FL}, s{S_LID}, 7"), o(f"s_add_u32 s{S_FL}, s{S_FL}, {WS_FLAG}")])])
            sl.put(592, [o(f"v_mov_b32 v{V_ONE}, 1")])
            e0 = sl.stream(self.geglu(0), 145, 211)
            sl.stream(self.hstore(0) + self.geglu(1) + self.hstore(1), max(e0 + 1, 212), 287)
            for u in range(1, 3):
                sl.stream(self.geglu(2*u) + self.hstore(2*u) + self.geglu(2*u+1) + self.hstore(2*u+1), 144*(u+1) + 1, 144*(u+2) - 1)
            es = sl.stream(self.s_setup(), eh + 1, eh + 11)
            es = sl.stream(self.s_setup2(), es + 1, es + 10)
            assert es < 118, es
            sl.stream(self.s_setup3(224, 225, 226, 227), max(es + 1, 112), 143)
            ep = sl.stream(self.phase2_setup(), 66, 100)
            assert ep < 110
            sl.stream(self.s_setup_e(229, 0), 440, 464)
            t = lu[("st", 14)]; fbar(t); e = place(self.dma_cs(0, 2, ("cs", ("C", 0))), t + 1, 2)
            place(self.dma_cx(0, ("cs", ("CX", 0))) + self.dma_cx(1, ("cs", ("SX", 0))), e, 2)
            t = lu[("st", 15)]; fbar(t); place(self.dma_cs(1, 3, ("cs", ("S", 0))), t + 1, 2)
            self.main_rest(sl, M, fu, lu, stages, slot_of, ACC, tile_last, S0, SP_END, P2_0, N, fbar, place)
        L = self.paced(M, frags, setup, DIST)
        return L + self.tail2

    def mode_check(self, sl, M):
        if not self.opts.get("local", 0): return
        t = 0
        ld = f"buffer_load_dwordx2 v[222:223], off, s[{SR_HZ}:{SR_HZ+3}], s{T5} sc1"
        ld = f"buffer_load_dwordx2 v[230:231], off, s[{SR_HZ}:{SR_HZ+3}], s{S_XC} sc1"
        if self.opts.get("cfg", 0) == 0:
            ld = f"buffer_load_dword v230, off, s[{SR_HZ}:{SR_HZ+3}], s{S_XC} sc1"
            sl.put(140, [G([o(f"s_lshr_b32 s{S_XC}, s{S_LID}, 3"), o(f"s_lshl_b32 s{S_XC}, s{S_XC}, 2")])])
        else:
            sl.put(140, [G([o(f"s_lshl_b32 s{S_XC}, s{S_MT}, 3")])])
        sl.put(143, [vm(ld, "xcc")])
        sl.put(205, [wvm("xcc")])
        sl.put(206, [o(f"v_readfirstlane_b32 s{T6}, v230"), o(f"v_readfirstlane_b32 s{T7}, v231")])
        def nz(r, tmp):
            return [o(f"s_lshr_b32 s{tmp}, s{r}, 1"), o(f"s_or_b32 s{tmp}, s{tmp}, s{r}"), o(f"s_lshr_b32 s{T3}, s{tmp}, 2"), o(f"s_or_b32 s{tmp}, s{tmp}, s{T3}"),
                    o(f"s_and_b32 s{tmp}, s{tmp}, 0x11111111")]
        chk = nz(T6, T1) + nz(T7, T2) + [o(f"s_and_b32 s{T1}, s{T1}, s{T2}"), o(f"s_cmp_eq_u32 s{T1}, 0x11111111")]
        if self.opts.get("cfg", 0) == 0:
            ld = f"buffer_load_dword v230, off, s[{SR_HZ}:{SR_HZ+3}], s{S_XC} sc1"
            ext = [o(f"s_and_b32 s{T1}, s{S_LID}, 6"), o(f"s_lshl_b32 s{T1}, s{T1}, 2"), o(f"s_lshr_b32 s{T2}, s{T6}, s{T1}"),
                   o(f"s_and_b32 s{T3}, s{T2}, 15"), o(f"s_bfe_u32 s{T2}, s{T2}, 0x40004"),
                   o(f"s_min_u32 s{T1}, s{T2}, s{T3}"), o(f"s_cmp_ge_u32 s{T1}, 1")]
            blk = ext + [o("s_cbranch_scc1 L_xc_ok")] + self.spin("L_xc", [o(ld)], [o(f"v_readfirstlane_b32 s{T6}, v230"), o("s_nop 3")] + ext)
            blk += [o(f"s_cmp_eq_u32 s{T2}, s{T3}"), o(f"s_cselect_b32 s{S_MODE}, 1, 0")]
            if self.opts.get("forceglobal"): blk += [o(f"s_mov_b32 s{S_MODE}, 0")]
            M[209].setdefault("before", []).extend(blk)
            return
        blk = chk + [o("s_cbranch_scc1 L_xc_ok")] + self.spin("L_xc", [o(ld)],
              [o(f"v_readfirstlane_b32 s{T6}, v230"), o(f"v_readfirstlane_b32 s{T7}, v231"), o("s_nop 3")] + chk)
        blk += [o(f"s_and_b32 s{T1}, s{T6}, 15"), o(f"s_mul_i32 s{T1}, s{T1}, 0x11111111"),
                o(f"s_cmp_eq_u32 s{T1}, s{T6}"), o(f"s_cselect_b32 s{S_MODE}, 1, 0"),
                o(f"s_cmp_eq_u32 s{T1}, s{T7}"), o(f"s_cselect_b32 s{S_MODE}, s{S_MODE}, 0")]
        if self.opts.get("forceglobal"): blk += [o(f"s_mov_b32 s{S_MODE}, 0")]
        M[209].setdefault("before", []).extend(blk)

    def bulk(self, sl, t):
        bk = [G([o(f"s_lshl_b32 s{S_PF}, s{S_LID}, 2"), o(f"s_add_u32 s{S_PF}, s{S_PF}, s{S_W}"), o(f"s_mul_i32 s{S_PF}, s{S_PF}, 41")]),
              o(f"v_add_u32 v{V_PF}, s{S_PF}, v0"), o(f"v_lshlrev_b32 v{V_PF}, 7, v{V_PF}"),
              G([o("v_cmp_gt_u32 vcc, 41, v0"), o("v_nop"), o("v_nop"), o(f"v_cndmask_b32 v{V_PF}, v{V_ONE0}, v{V_PF}, vcc")])]
        e = sl.stream(bk, t, t + 5, spill=2)
        sl.put(e + 1, [vm(f"buffer_load_dword v{V_PF}, v{V_PF}, s[{SR_WG}:{SR_WG+3}], 0 offen", "pf")])
        sl.put(e + 2, [vm(f"buffer_load_dword v{V_PF}, v{V_PF}, s[{SR_WU}:{SR_WU+3}], 0 offen", "pf")])
        return e + 2

    def paced_prefetch(self, sl, dma_end):
        if self.opts.get("bulkat", 0) == 1:
            bk = [G([o(f"s_lshl_b32 s{S_PF}, s{S_LID}, 2"), o(f"s_add_u32 s{S_PF}, s{S_PF}, s{S_W}"), o(f"s_mul_i32 s{S_PF}, s{S_PF}, 41")]),
                  o(f"v_add_u32 v230, s{S_PF}, v0"), o(f"v_lshlrev_b32 v230, 7, v230"),
                  G([o("v_cmp_gt_u32 vcc, 41, v0"), o("v_nop"), o("v_nop"), o(f"v_cndmask_b32 v230, v{V_ONE0}, v230, vcc")])]
            e = sl.stream(bk, 0, 8, spill=2)
            assert e < 12
            s = dma_end[self.opts.get("bulkst", 3)]
            sl.put(s, [vm(f"buffer_load_dword v{V_PF}, v230, s[{SR_WG}:{SR_WG+3}], 0 offen", "pf")])
            sl.put(s + 1, [vm(f"buffer_load_dword v{V_PF}, v230, s[{SR_WU}:{SR_WU+3}], 0 offen", "pf")])
        if not self.opts.get("ppf", 1): return
        Dd, Cc, t = 228, 229, 227
        if self.opts.get("lbulk"):
            first = [G([o(f"s_lshl_b32 s{S_PF}, s{S_MT}, 2"), o(f"s_add_u32 s{S_PF}, s{S_PF}, s{S_W}"), o(f"s_mul_i32 s{S_PF}, s{S_PF}, 41")]),
                     G([o(f"s_mul_i32 s{S_C}, s{S_J}, 2592"), o(f"s_add_u32 s{S_PF}, s{S_PF}, s{S_C}")])]
        else:
            first = [G([o(f"s_lshl_b32 s{S_PF}, s{S_LID}, 2"), o(f"s_add_u32 s{S_PF}, s{S_PF}, s{S_W}"), o(f"s_mul_i32 s{S_PF}, s{S_PF}, 41")])]
        setup = first + [
                 o(f"v_add_u32 v{Dd}, s{S_PF}, v0"), o(f"v_lshlrev_b32 v{Dd}, 7, v{Dd}"), o(f"v_mov_b32 v{t}, {OOB:#x}"),
                 G([o("v_cmp_gt_u32 vcc, 41, v0"), o("v_nop"), o("v_nop"), o(f"v_cndmask_b32 v{Dd}, v{t}, v{Dd}, vcc")]),
                 G([o(f"s_and_b32 s{S_PF}, s{S_J}, 7"), o(f"s_lshl_b32 s{S_PF}, s{S_PF}, 2"), o(f"s_add_u32 s{S_PF}, s{S_PF}, s{S_W}")]),
                 G([o(f"s_and_b32 s{S_C}, s{S_PF}, 15"), o(f"s_lshl_b32 s{S_C}, s{S_C}, 1"), o(f"s_add_u32 s{S_C}, s{S_C}, s{S_TAU}")]),
                 G([o(f"s_lshl_b32 s{S_ST0}, s{S_MT}, 5"), o(f"s_add_u32 s{S_C}, s{S_C}, s{S_ST0}"), o(f"s_sub_u32 s{S_ST0}, 1024, s{S_C}")]),
                 G([o(f"s_cmp_lt_u32 s{S_PF}, 16"), o(f"s_cselect_b32 s{S_PF}, s{S_C}, s{S_ST0}"), o(f"s_lshl_b32 s{S_PF}, s{S_PF}, 12")]),
                 o(f"v_lshlrev_b32 v{Cc}, 7, v0"), o(f"v_add_u32 v{Cc}, s{S_PF}, v{Cc}"),
                 G([o("v_cmp_gt_u32 vcc, 9, v0"), o("v_nop"), o("v_nop"), o(f"v_cndmask_b32 v{Cc}, v{t}, v{Cc}, vcc")])]
        e = sl.stream(setup, 146, 176)
        s = dma_end[self.opts.get("pfw", 9)]
        assert s > e + 6
        if self.opts.get("bulk", 1) != 2: sl.put(s, [vm(f"buffer_load_dword v{V_PF}, v{Dd}, s[{SR_WD}:{SR_WD+3}], 0 offen", "pf")])
        if self.opts.get("wdl2", 1):
            A2, t2 = 230, 226
            st2 = [G([o(f"s_and_b32 s{S_PF}, s{S_MT}, 7"), o(f"s_mul_i32 s{S_PF}, s{S_PF}, 36"), o(f"s_mul_i32 s{S_C}, s{S_W}, 9")]),
                   o(f"s_add_u32 s{S_PF}, s{S_PF}, s{S_C}"), o(f"v_add_u32 v{t2}, s{S_PF}, v0"), o(f"v_mul_u32_u24 v{t2}, 1152, v{t2}"),
                   o(f"v_mov_b32 v227, {OOB:#x}"),
                   G([o("v_cmp_gt_u32 vcc, 9, v0"), o("v_nop"), o("v_nop"), o(f"v_cndmask_b32 v{t2}, v227, v{t2}, vcc")])]
            e2 = sl.stream(st2, 474, 486)
            def wl(own, k, t):
                sl.put(t, [G([o(f"s_{'mul_i32' } s{S_PF}, s{S_J if own else S_J}, {288*1152}")] + ([] if own else [o(f"s_xor_b32 s{S_C}, s{S_J}, 1"), o(f"s_mul_i32 s{S_PF}, s{S_C}, {288*1152}")]) + [o(f"s_add_u32 s{S_PF}, s{S_PF}, s{S_CU+k}")])])
                sl.put(t + 1, [vm(f"buffer_load_dword v{V_PF}, v{t2}, s[{SR_WD}:{SR_WD+3}], s{S_PF} offen", "pf")])
            s = dma_end[16]; wl(True, 0, s); wl(True, 1, s + 2)
            s = dma_end[17]; wl(True, 2, s); wl(False, 0, s + 2)
        s = dma_end[self.opts.get("pfc", 11)]
        sl.put(s, [vm(f"buffer_load_dword v{V_PF}, v{Cc}, s[{SR_CS}:{SR_CS+3}], 0 offen", "pf")])
        sl.put(s + 1, [vm(f"buffer_load_dword v{V_PF}, v{Cc}, s[{SR_SS}:{SR_SS+3}], 0 offen", "pf")])

    def rowmir(self, sRB, sT, t0, t1, t2, t3):
        return [o(f"s_lshl_b32 s{sT}, s{sRB}, 3"), o(f"v_and_b32 v{t0}, 7, v0"), o(f"v_add_u32 v{t0}, s{sT}, v{t0}"),
                o(f"v_bfe_u32 v{t1}, v0, 3, 2"),
                o(f"v_add_u32 v{t2}, 1, v{t1}"), o(f"v_lshrrev_b32 v{t2}, 1, v{t2}"), o(f"v_lshlrev_b32 v{t2}, 10, v{t2}"),
                o(f"v_add_u32 v{t3}, v{t2}, v{t0}"), o(f"v_sub_u32 v{t2}, v{t2}, v{t0}"),
                o(f"v_and_b32 v{t1}, 1, v{t1}"),
                G([o(f"v_cmp_eq_u32 vcc, 1, v{t1}"), o("v_nop"), o("v_nop"), o(f"v_cndmask_b32 v{t3}, v{t3}, v{t2}, vcc")]),
                o(f"v_bfe_u32 v{t1}, v0, 3, 2"), o(f"v_lshlrev_b32 v{t2}, 10, v{t1}"), o(f"v_subrev_u32 v{t2}, 0x600, v{t2}"),
                G([o(f"v_cmp_le_u32 vcc, 2, v{t1}"), o("v_nop"), o("v_nop"), o(f"v_cndmask_b32 v{t2}, v{t3}, v{t2}, vcc")]),
                G([o(f"v_cmp_eq_u32 vcc, 0, v{t0}"), o("v_nop"), o("v_nop"), o(f"v_cndmask_b32 v{t0}, v{t3}, v{t2}, vcc")]),
                o(f"v_sub_u32 v{t1}, 2048, v{t0}"), o(f"v_and_b32 v{t1}, 0x7ff, v{t1}")]

    def owner_addr(self):
        sQ = S_TO
        t0, t1, t2, t3 = 244, 245, 246, 247
        L = [G([o(f"s_lshl_b32 s{T4}, s{S_MT}, 2"), o(f"s_add_u32 s{T4}, s{T4}, s{S_W}")]),
             G([o(f"s_mul_i32 s{T5}, s{T4}, 18"), o(f"s_add_u32 s{T5}, s{T5}, s{sQ}"), o(f"s_lshl_b32 s{T5}, s{T5}, 11")]),
             o(f"s_lshr_b32 s{T3}, s{S_J}, 1")]
        i = 0
        for dd in (3, 2, 1):
            for b_ in range(2):
                L += [G([o(f"s_lshr_b32 s{16+i}, s{T3}, 1"), o(f"s_add_u32 s{16+i}, s{16+i}, {dd}"), o(f"s_and_b32 s{16+i}, s{16+i}, 3")]),
                      G([o(f"s_lshl_b32 s{16+i}, s{16+i}, 1"), o(f"s_add_u32 s{16+i}, s{16+i}, {b_}"), o(f"s_mul_i32 s{16+i}, s{16+i}, {PART_BYTES}")]),
                      o(f"s_add_u32 s{16+i}, s{16+i}, s{T5}")]
                i += 1
        L += [G([o(f"s_xor_b32 s22, s{T3}, 1"), o(f"s_mul_i32 s22, s22, {PART_BYTES}"), o(f"s_add_u32 s22, s22, s{T5}")])]
        L += self.rowmir(T4, T5, t0, t1, t2, t3) + [
              o(f"s_lshl_b32 s{T5}, s{sQ}, 6"),
              o(f"v_mul_u32_u24 v{t2}, 1152, v{t0}"), o(f"v_add_u32 v{t2}, s{T5}, v{t2}"),
              o(f"v_lshrrev_b32 v{t3}, 5, v0"), o(f"v_lshlrev_b32 v238, 4, v{t3}"), o(f"v_add_u32 v238, v{t2}, v238"),
              o(f"v_lshlrev_b32 v237, 3, v{t3}"), o(f"v_add_u32 v237, v{t2}, v237"),
              G([o(f"s_lshl_b32 s{T5}, s{sQ}, 7"), o(f"s_cmp_lt_u32 s{sQ}, 9"), o(f"s_cselect_b32 s24, 0, 1")]),
              G([o(f"s_sub_u32 s{T4}, {2292 - 96}, s{T5}"), o(f"s_cmp_lt_u32 s{sQ}, 9"), o(f"s_cselect_b32 s{T5}, s{T5}, s{T4}"), o(f"s_cselect_b32 s{T4}, 1, -1")]),
              G([o(f"v_mov_b32 v{t2}, s24"), o(f"v_cmp_eq_u32 vcc, 1, v{t2}"), o("v_nop"), o("v_nop"), o(f"v_cndmask_b32 v{t0}, v{t0}, v{t1}, vcc")]),
              o(f"v_mul_u32_u24 v{t0}, {YP}, v{t0}"), o(f"v_add_u32 v{t0}, s{T5}, v{t0}"),
              o(f"v_lshlrev_b32 v{t3}, 4, v{t3}"), o(f"v_mul_lo_u32 v{t3}, v{t3}, s{T4}"), o(f"v_add_u32 v{t0}, v{t0}, v{t3}"),
              o(f"v_add_u32 v239, {WS_YH}, v{t0}")]
        return L

    def pipe_reduce(self, sl, M, fu, lu, P2_0, N):
        self.items_cfg()
        t4 = P2_0 + self.opts.get("t4", 254)
        sl.put(t4 - 3, [o("v_mov_b32 v240, 4")])
        sl.put(t4, [wvm([("pst", 0), ("pst", 1), ("pst", 2), "yst"]), o("s_barrier")])
        sl.put(t4 + 1, [vm(f"buffer_store_dword v240, v{V_ONE0}, s[{SR_WS}:{SR_WS+3}], s{S_FL} offen sc1", "fl4")])
        ep = sl.stream(self.p2q_setup(), P2_0 + 102, P2_0 + 124)
        assert ep < P2_0 + 132
        s_own, s_par = 0, 3
        lb = [G([o(f"s_bfe_u32 s{T5}, s{S_J}, 0x10001"), o(f"s_lshl_b32 s{T5}, s{T5}, 6"), o(f"s_xor_b32 s{T4}, s{T5}, 64")]),
              o(f"v_xor_b32 v{V_LB}, s{T4}, v{V_RA+s_own}"), o(f"v_xor_b32 v{V_LB+1}, s{T4}, v{V_RA+s_par}"),
              o(f"v_xor_b32 v{V_LB+2}, s{T5}, v{V_RA+s_own}"), o(f"v_xor_b32 v{V_LB+3}, s{T5}, v{V_RA+s_par}")]
        sl.stream(lb, P2_0 + 190, P2_0 + 200)
        e = sl.stream(self.owner_addr(), P2_0 + 204, P2_0 + 250)
        e = sl.stream([G([o(f"s_and_b32 s{T6}, s{S_J}, 1"), o(f"s_lshl_b32 s{T6}, s{T6}, 7"), o(f"s_lshl_b32 s{T7}, s{S_MT}, 11")]),
                       G([o(f"s_add_u32 s{T6}, s{T6}, s{T7}"), o(f"s_add_u32 s{T6}, s{T6}, {WS_FLAG}")]),
                       o("v_lshlrev_b32 v242, 8, v0"), o(f"v_mov_b32 v241, {OOB:#x}"),
                       G([o("v_cmp_gt_u32 vcc, 8, v0"), o("v_nop"), o("v_nop"), o("v_cndmask_b32 v242, v241, v242, vcc")])], e + 1, e + 8)
        for i in range(4): sl.put(e + 2 + i, [vm(f"buffer_load_dwordx2 v[{24+2*i}:{25+2*i}], v237, s[{SR_X}:{SR_X+3}], 0 offen offset:{16*i}", "ox")])
        def ploads(i0, i1):
            out = []
            for i in range(i0, i1):
                out += [vm(f"buffer_load_dwordx4 v[{80+8*i}:{83+8*i}], v{V_L16}, s[{SR_WS}:{SR_WS+3}], s{16+i} offen sc1", "op"),
                        vm(f"buffer_load_dwordx4 v[{84+8*i}:{87+8*i}], v{V_L16}, s[{SR_WS}:{SR_WS+3}], s{16+i} offen offset:1024 sc1", "op")]
            return out
        yl = [vm(f"buffer_load_dwordx4 v[{48+4*i}:{51+4*i}], v239, s[{SR_WS}:{SR_WS+3}], 0 offen offset:{32*i} sc1", "op") for i in range(4)]
        self.late_loads = []
        if self.opts.get("split3", 1):
            t3 = P2_0 + self.opts.get("t3", 212)
            sl.put(t3 - 3, [o("v_mov_b32 v240, 3")])
            sl.put(t3, [wvm([("pst", 0), ("pst", 1), "yst"]), o("s_barrier")])
            sl.put(t3 + 1, [vm(f"buffer_store_dword v240, v{V_ONE0}, s[{SR_WS}:{SR_WS+3}], s{S_FL} offen sc1", "fl3")])
            tp3 = max(e + 7, P2_0 + self.opts.get("tp3", 258))
            ld, chk = self.group_poll("L_g3", 3, 241, 242)
            sl.put(tp3, [vm(ld, "gp3")])
            sl.put(tp3 + 9, [wvm("gp3")])
            M[tp3 + 11].setdefault("before", []).extend(chk + [o("s_cbranch_scc1 L_g3_ok")] + self.spin("L_g3", [o(ld)], chk))
            s = tp3 + 11
            for l in ploads(0, 4) + yl:
                sl.put(s, [l]); s += 2
            lds = ploads(4, 6)
            tpoll = max(s, P2_0 + self.opts.get("tpa", 300))
        else:
            lds = ploads(0, 6) + yl
            tpoll = max(e + 7, P2_0 + self.opts.get("tpa", 284))
        ld, chk = self.group_poll("L_gA", 4, 241, 242)
        sl.put(tpoll, [vm(ld, "gpA")])
        sl.put(tpoll + 9, [wvm("gpA")])
        M[tpoll + 11].setdefault("before", []).extend(chk + [o("s_cbranch_scc1 L_gA_ok")] + self.spin("L_gA", [o(ld)], chk))
        s = tpoll + 11
        stp = self.opts.get("ostep", 2)
        for l in lds:
            if s < N - 1: sl.put(s, [l]); s += stp
            else: self.late_loads.append(l)
        print("owner loads: in loop until", s, "late:", len(self.late_loads), "N", N)
        t5 = N - self.opts.get("t5", 10)
        sl.put(t5 - 3, [o("v_mov_b32 v240, 5")])
        sl.put(t5, [wvm([("pst", 3), ("pst", 4)]), o("s_barrier")])
        sl.put(t5 + 1, [vm(f"buffer_store_dword v240, v{V_ONE0}, s[{SR_WS}:{SR_WS+3}], s{S_FL} offen sc1", "fl5")])
        self.RDx = dict(P=("v", 176), X=208, Y=212, OA=220, PV=221, t=[222, 223, 224, 225], rev=26, so=84)
        Ad, Ld = self.item_setup("D", self.RDx, split=True)
        self.D_ld = Ld
        eD = sl.stream(Ad, N - 17, N - 1, spill=0)
        print("D addr until", eD)

    def spin(self, label, load, cond_ok, regs_note=""):
        return [o(f"s_mov_b32 s{S_CNT}, 0"), raw(f"{label}:")] + load + [o("s_waitcnt vmcnt(0)")] + cond_ok + \
               [o(f"s_cbranch_scc1 {label}_ok"), o(f"s_add_u32 s{S_CNT}, s{S_CNT}, 1"), o(f"s_cmp_gt_u32 s{S_CNT}, 0x40000"), o(f"s_cbranch_scc1 {label}_ok"),
                o("s_sleep 1"), o(f"s_branch {label}"), raw(f"{label}_ok:")]

    def main_rest(self, sl, M, fu, lu, stages, slot_of, ACC, tile_last, S0, SP_END, P2_0, N, fbar, place):
        zP, zQ, accP, accQ = self.zP, self.zQ, self.accP, self.accQ
        DIST = self.opts.get("dist", 7)
        if self.opts.get("esig", 1):
            e = sl.stream(self.geglu_sig(6, 8), 490, 535)
            e = sl.stream(self.geglu_sig(7, 8), max(e + 1, 508), 578)
            e6 = sl.stream(self.geglu_fin(6) + self.hstore(6), max(e + 1, 579), 596)
            e7 = sl.stream(self.geglu_fin(7) + self.hstore(7), e6 + 1, 614)
            assert e7 < S0 - 2, e7
            e8 = sl.stream(self.geglu_sig(8, 8), max(e7 + 1, 616), S0 + 2)
            e8 = sl.stream(self.geglu_fin(8) + self.hstore(8), max(e8 + 1, S0 + 4), S0 + 16)
            self.e8 = e8
        else:
            e6 = sl.stream(self.geglu(6) + self.hstore(6), 577, 634)
            assert e6 < S0 - 2, e6
            e7 = sl.stream(self.geglu(7) + self.hstore(7), e6 + 1, S0 + 46)
            assert e7 < SP_END - 1, e7
        if not self.opts.get("esig", 1): sl.stream(self.geglu(8, 8) + self.hstore(8), S0 + 4, S0 + 85)
        sl.put(467, [vm(f"buffer_load_dword v230, off, s[{SR_HZ}:{SR_HZ+3}], 0 offset:128 sc1", "zpoll")])
        sl.put(574, [wvm("zpoll")])
        sl.put(575, [o(f"v_readfirstlane_b32 s{T0}, v230")])
        M[578].setdefault("before", []).extend(
            [o(f"s_cmp_ge_u32 s{T0}, 256"), o("s_cbranch_scc1 L_zp_ok")] +
            self.spin("L_zp", [o(f"buffer_load_dword v{V_PF}, off, s[{SR_HZ}:{SR_HZ+3}], 0 offset:128 sc1")],
                      [o(f"v_readfirstlane_b32 s{T0}, v{V_PF}"), o("s_nop 3"), o(f"s_cmp_ge_u32 s{T0}, 256")]))
        def zl(zf, va, k, tagn):
            ins = []
            if k < 4: ins += [o(f"s_add_u32 s{S_C}, s{S_ZB}, {k*2048}")]
            else: ins += [G([o(f"s_cmp_eq_u32 s{S_W}, 3"), o(f"s_cselect_b32 s{S_C}, 0, {OOB:#x}"), o(f"s_add_u32 s{S_C}, s{S_C}, s{S_ZB}")]),
                          o(f"s_add_u32 s{S_C}, s{S_C}, {4*2048}")]
            return ins, [vm(f"buffer_load_dwordx4 {zf(ss,k)}, v{va+ss}, s[{SR_WS}:{SR_WS+3}], s{S_C} offen sc1", (tagn, k)) for ss in range(3)]
        ins = []
        for k in range(5):
            a_, l_ = zl(zP, V_ZP, k, "zp"); ins += a_ + l_
        for k in range(4):
            a_, l_ = zl(zQ, V_ZQ, k, "zq"); ins += a_ + l_
        sl.stream(ins, 579, 644)
        a_, l_ = zl(zQ, V_ZQ, 4, "zq")
        sl.stream(a_ + l_, S0, S0 + 8)
        for k in range(5):
            sl.put(S0 + 6*k - 1, [wvm(("zp", k))])
            sl.put(SP_END + 6*k - 1, [wvm(("zq", k))])
        A5P = [120, 124, 136]; A5Q = [140, 224, 228]
        blk = [o(f"s_or_b32 s{T3}, s{S_MT}, s{S_TAU}"), o(f"s_cmp_eq_u32 s{T3}, 0"), o("s_cbranch_scc0 L_s_n512"),
               o("v_mov_b32 v232, 0x3f80"), o("v_mov_b32 v233, 0xbf80"), o("v_mov_b32 v234, v232"), o("v_mov_b32 v235, v233"),
               o("v_mov_b32 v236, 0xbf800000"), o("v_mov_b32 v237, 0x3f800000"), o("v_mov_b32 v238, v236"), o("v_mov_b32 v239, v237"), o("s_nop 1")]
        for k in range(5):
            for ss in range(3):
                a = A5P[ss]
                blk += [mf16(f"v[{a}:{a+3}]", "v[232:235]", zP(ss, k), "0" if k == 0 else f"v[{a}:{a+3}]")]
                a = A5Q[ss]
                blk += [mf16(f"v[{a}:{a+3}]", "v[236:239]", zQ(ss, k), "0" if k == 0 else f"v[{a}:{a+3}]")]
        blk += [o("s_nop 7"), raw("L_s_n512:")]
        M[P2_0].setdefault("before", []).extend(blk)
        self.A5P, self.A5Q = A5P, A5Q
        t = lu[("st", 16)]; fbar(t)
        e = place(self.dma_p2(stages[0], slot_of[stages[0]], True, 12, 13, V_PF), t + 1, 1)
        t = lu[("st", 17)]; fbar(t)
        e = place(self.dma_p2(stages[1], slot_of[stages[1]], False, 0, 0, 0), t + 1, 1)
        ins = [o(f"v_lshrrev_b32 v{V_PF}, 5, v0"), o(f"v_lshlrev_b32 v{V_PF}, 9, v{V_PF}")]
        for s in range(4): ins += [o(f"v_sub_u32 v{V_RA+s}, v{V_RA+s}, v{V_PF}"), o(f"v_sub_u32 v{V_RB+s}, v{V_RB+s}, v{V_PF}")]
        eb = sl.stream(ins, S0 + 2, S0 + 16)
        t = lu[("CX", 0)]
        sl.put(t, [wvm("hst"), o("s_barrier")])
        sl.put(t + 1, [o(f"v_mov_b32 v{V_PF}, 2")])
        sl.put(t + 2, [vm(f"buffer_store_dword v{V_PF}, v{V_ONE0}, s[{SR_WS}:{SR_WS+3}], s{S_FL} offen sc1", "fl2h")])
        assert eb < t, (eb, t)
        assert self.e8 < t, (self.e8, t)
        place(self.dma_p2(stages[2], slot_of[stages[2]], False, 0, 0, 0), t + 3, 1)
        fbar(lu[("SX", 0)])
        a0 = P2_0 + 3
        t0r, t1r = 240, 241
        SC = 3*SLOT
        N1A = SPARE + 12288
        A5P, A5Q = self.A5P, self.A5Q
        wr = [G([o(f"s_mul_i32 s{S_C}, s{S_W}, 12288"), o(f"s_add_u32 s{S_C}, s{S_C}, {SC}")]),
              o(f"v_lshrrev_b32 v{t0r}, 4, v0"), o(f"v_mul_u32_u24 v{t0r}, 768, v{t0r}"), o(f"v_and_b32 v{t1r}, 15, v0"), o(f"v_lshlrev_b32 v{t1r}, 2, v{t1r}"),
              o(f"v_add_u32 v{t0r}, v{t0r}, v{t1r}"), o(f"v_add_u32 v{t0r}, s{S_C}, v{t0r}")]
        if self.opts.get("w2", 1):
            WB = {(0, 0): t0r, (0, 1): 243, (1, 0): 244, (1, 1): 246}
            wr += [o(f"v_add_u32 v243, {16*192}, v{t0r}"), o(f"v_add_u32 v244, 6144, v{t0r}"), o(f"v_add_u32 v246, {6144 + 16*192}, v{t0r}")]
            for pq, accf in ((0, accP), (1, accQ)):
                for tt in range(2):
                    for ss in range(3):
                        for r in (0, 2):
                            wr += [ds(f"ds_write2_b32 v{WB[(pq, tt)]}, v{accf(tt,ss)+r}, v{accf(tt,ss)+r+1} offset0:{r*48 + ss*16} offset1:{(r+1)*48 + ss*16}", "sred_w")]
            if self.opts.get('nowr'): wr = wr[:10] + wr[-1:]
            e = sl.stream(wr, a0, a0 + self.opts.get("wwin", 22))
        else:
            for pq, accf in ((0, accP), (1, accQ)):
                for tt in range(2):
                    for ss in range(3):
                        for r in range(4):
                            wr += [ds(f"ds_write_b32 v{t0r}, v{accf(tt,ss)+r} offset:{pq*6144 + (16*tt + r)*192 + ss*64}", "sred_w")]
            e = sl.stream(wr, a0, a0 + 30)
        wr2 = [G([o(f"s_mul_i32 s{S_C}, s{S_W}, 384"), o(f"s_add_u32 s{S_C}, s{S_C}, {N1A}")]), o(f"v_add_u32 v{t1r}, s{S_C}, v{t1r}"), o(f"v_mov_b32 v245, 0x30000"),
               G([o("v_cmp_gt_u32 vcc, 16, v0"), o("v_nop"), o("v_nop"), o(f"v_cndmask_b32 v{t1r}, v245, v{t1r}, vcc")])]
        for ss in range(3):
            wr2 += [ds(f"ds_write_b32 v{t1r}, v{A5P[ss]} offset:{ss*64}", "sred_w"), ds(f"ds_write_b32 v{t1r}, v{A5Q[ss]} offset:{(3+ss)*64}", "sred_w")]
        e = sl.stream(wr2, e + 1, e + 8)
        b1 = e + 1
        sl.put(b1, [wlg("sred_w"), o("s_barrier")])
        R0, R1 = 112, 48
        A0, A1, YD0, YM0, YD1, YM1 = 232, 233, 234, 235, 236, 237
        def rowcalc(dst):
            return [o(f"v_mul_lo_u32 v238, v238, s{T7}"), o(f"v_add_u32 v238, s{T4}, v238")]
        def ymir(YD, YM):
            return [o(f"v_mul_u32_u24 v{YD}, {YP}, v238"), o(f"v_add_u32 v{YD}, v{YD}, v239"),
                    o(f"v_sub_u32 v{YM}, 2048, v238"), o(f"v_mul_u32_u24 v{YM}, {YP}, v{YM}"), o(f"v_add_u32 v{YM}, v{YM}, v239"),
                    o(f"v_and_b32 v238, 0x3ff, v238"),
                    G([o(f"v_cmp_eq_u32 vcc, 0, v238"), o(f"v_mov_b32 v238, {OOB:#x}"), o("v_nop"), o(f"v_cndmask_b32 v{YM}, v{YM}, v238, vcc")])]
        ad = [G([o(f"s_lshl_b32 s{T3}, s{S_MT}, 5"), o(f"s_add_u32 s{T3}, s{T3}, s{S_TAU}"), o(f"s_and_b32 s{T4}, s{S_W}, 1")]),
              G([o(f"s_lshl_b32 s{T4}, s{T4}, 4"), o(f"s_add_u32 s{T4}, s{T4}, s{T3}"), o(f"s_sub_u32 s{T3}, 1024, s{T4}")]),
              G([o(f"s_cmp_lt_u32 s{S_W}, 2"), o(f"s_cselect_b32 s{T4}, s{T4}, s{T3}"), o(f"s_cselect_b32 s{T7}, 2, -2")]),
              G([o(f"s_lshl_b32 s{T3}, s{S_W}, 3"), o(f"s_mul_i32 s{T3}, s{T3}, 192"), o(f"s_add_u32 s{T3}, s{T3}, {SC}")]),
              G([o(f"s_and_b32 s{T5}, s{S_J}, 7"), o(f"s_mul_i32 s{T5}, s{T5}, 144")]),
              o(f"v_lshrrev_b32 v238, 3, v0"), o(f"v_and_b32 v239, 7, v0"),
              o(f"v_mul_u32_u24 v{A0}, 192, v238"), o(f"v_lshlrev_b32 v239, 4, v239"), o(f"v_add_u32 v{A0}, v{A0}, v239"), o(f"v_add_u32 v{A0}, s{T3}, v{A0}")] + \
             rowcalc(0) + [o(f"v_add_u32 v239, s{T5}, v239")] + ymir(YD0, YM0) + \
             [o(f"v_and_b32 v238, 7, v0"), o(f"v_lshrrev_b32 v239, 3, v0"), o(f"v_add_u32 v239, 8, v239"), o(f"v_min_u32 v239, 9, v239"),
              o(f"v_mul_u32_u24 v{A1}, 192, v238"), o(f"v_lshlrev_b32 v239, 4, v239"), o(f"v_add_u32 v{A1}, v{A1}, v239"), o(f"v_add_u32 v{A1}, s{T3}, v{A1}")] + \
             rowcalc(1) + [o(f"v_add_u32 v239, s{T5}, v239")] + ymir(YD1, YM1) + \
             [G([o(f"s_cmp_eq_u32 s{T5}, {7*144}"), o(f"s_cselect_b32 s{T5}, 16, 8")]), o(f"v_mov_b32 v238, {OOB:#x}"),
              G([o(f"v_cmp_gt_u32 vcc, s{T5}, v0"), o("v_nop"), o("v_nop"), o(f"v_cndmask_b32 v{YD1}, v238, v{YD1}, vcc"), o(f"v_cndmask_b32 v{YM1}, v238, v{YM1}, vcc")]),
              o(f"s_mov_b32 s{T4}, {WS_YH}")]
        e = sl.stream(ad, a0 + 2, b1)
        assert e <= b1 + 6
        def rds(R, A, tag):
            return [ds(f"ds_read_b128 v[{R + 16*pq + 4*ww}:{R + 16*pq + 4*ww + 3}], v{A} offset:{ww*12288 + pq*6144}", tag) for pq in range(2) for ww in range(4)]
        e = sl.stream(rds(R0, A0, "sr0") + rds(R1, A1, "sr1"), max(e, b1) + 1, max(e, b1) + 10)
        b2 = e + 3
        sl.put(b2, [wlg("sr1"), o("s_barrier")])
        self.b2 = b2
        def fin(R, YD, YM):
            out = []
            for pq in range(2):
                b_ = R + 16*pq
                for k in range(4):
                    out += [o(f"v_add_f32 v{b_+k}, v{b_+k}, v{b_+4+k}"), o(f"v_add_f32 v{b_+8+k}, v{b_+8+k}, v{b_+12+k}"), o(f"v_add_f32 v{b_+k}, v{b_+k}, v{b_+8+k}")]
            for k in range(4):
                out += [o(f"v_sub_f32 v{R+4+k}, v{R+k}, v{R+16+k}"), o(f"v_add_f32 v{R+8+k}, v{R+k}, v{R+16+k}")]
            out += [vm(f"buffer_store_dwordx4 v[{R+4}:{R+7}], v{YD}, s[{SR_WS}:{SR_WS+3}], s{T4} offen sc1", "yst"),
                    vm(f"buffer_store_dwordx4 v[{R+8}:{R+11}], v{YM}, s[{SR_WS}:{SR_WS+3}], s{T4} offen sc1", "yst")]
            return out
        ff = fin(R1, YD1, YM1) + fin(R0, YD0, YM0)
        if self.opts.get('nofin'): ff = [vm(f'buffer_store_dword v{V_PF}, v{V_ONE0}, s[{SR_OUT}:{SR_OUT+3}], 0 offen offset:4000', 'yst')]
        e = sl.stream(ff, b2 + 1, P2_0 + 66, spill=3)
        assert e < P2_0 + 72, e
        n1 = [o(f"v_and_b32 v238, 15, v0"), o(f"v_lshlrev_b32 v238, 2, v238"), o(f"v_add_u32 v238, {N1A}, v238")]
        for ss in range(3):
            for ww in range(4):
                n1 += [ds(f"ds_read_b32 v{64+4*ss+ww}, v238 offset:{ww*384 + ss*64}", "sred_n"), ds(f"ds_read_b32 v{128+4*ss+ww}, v238 offset:{ww*384 + (3+ss)*64}", "sred_n")]
        n1 += [wlg("sred_n")]
        for ss in range(3):
            for b_ in (64 + 4*ss, 128 + 4*ss):
                n1 += [o(f"v_add_f32 v{b_}, v{b_}, v{b_+1}"), o(f"v_add_f32 v{b_+2}, v{b_+2}, v{b_+3}"), o(f"v_add_f32 v{b_}, v{b_}, v{b_+2}")]
            n1 += [o(f"v_sub_f32 v{64+4*ss+1}, v{64+4*ss}, v{128+4*ss}"), o(f"v_add_f32 v{64+4*ss+2}, v{64+4*ss}, v{128+4*ss}")]
        n1 += [G([o(f"s_or_b32 s{T3}, s{S_TAU}, s{S_W}"), o(f"s_or_b32 s{T3}, s{T3}, s{S_MT}"), o(f"s_cmp_eq_u32 s{T3}, 0"), o(f"s_cselect_b32 s{T3}, 16, 0")]),
               G([o(f"v_cmp_gt_u32 vcc, s{T3}, v0"), o(f"v_mov_b32 v238, 0"), o(f"v_mov_b32 v239, {OOB:#x}"), o(f"v_cndmask_b32 v238, v239, v238, vcc")])]
        for ss in range(3):
            n1 += [o(f"v_add_u32 v{128+4*ss+1}, v238, v{V_YC[ss]}")]
        n1 += [o(f"s_mov_b32 s{T3}, {WS_YH + 512*YP}"), o(f"s_mov_b32 s{T5}, {WS_YH + 1536*YP}")]
        for ss in range(3):
            n1 += [vm(f"buffer_store_dword v{64+4*ss+1}, v{128+4*ss+1}, s[{SR_WS}:{SR_WS+3}], s{T3} offen sc1", "yst"),
                   vm(f"buffer_store_dword v{64+4*ss+2}, v{128+4*ss+1}, s[{SR_WS}:{SR_WS+3}], s{T5} offen sc1", "yst")]
        blk = [o(f"s_or_b32 s{T3}, s{S_TAU}, s{S_MT}"), o(f"s_cmp_eq_u32 s{T3}, 0"), o("s_cbranch_scc0 L_no512b")]
        for i in flat(n1):
            if i.k == "wlg": blk.append(o("s_waitcnt lgkmcnt(0)"))
            elif i.k in ("ds", "vm"): blk.append(I(i.t, "o"))
            else: blk.append(i)
        blk += [raw("L_no512b:")]
        M[max(e + 2, P2_0 + 70)].setdefault("before", []).extend(blk)
        gpar = fu[("s2", (0, "par"))]
        PF2 = 231
        sl.put(660, [G([o(f"s_xor_b32 s{T0}, s{S_LID}, 1"), o(f"s_lshl_b32 s{T1}, s{T0}, 7"), o(f"s_add_u32 s{T1}, s{T1}, {WS_FLAG}")])])
        sl.put(661, [G([o(f"s_lshl_b32 s{T0}, s{T0}, 2"), o(f"s_add_u32 s{T0}, s{T0}, s{S_W}"), o(f"s_mul_i32 s{T0}, s{T0}, {18*1024}")]), o(f"s_add_u32 s{T0}, s{T0}, {WS_HX}")])
        pl = f"buffer_load_dword v242, off, s[{SR_WS}:{SR_WS+3}], s{T1} sc1"
        def hload(k, n, t, tag):
            if self.opts.get("nohp"):
                sl.put(t + 1, [vm(f"buffer_load_dword v{V_PF}, v{V_ONE0}, s[{SR_WS}:{SR_WS+3}], 0 offen", tag)]); return
            sl.put(t, [o(f"s_add_u32 s{T6}, s{T0}, {k*1024}")])
            sl.put(t + 1, self.dload([f"buffer_load_dwordx4 a[{HPB+4*(k+q)}:{HPB+4*(k+q)+3}], v{V_L16}, s[{SR_WS}:{SR_WS+3}], s{T6} offen offset:{q*1024}" for q in range(n)], tag, True))
        if self.opts.get("onepoll") == 2:
            sl.put(640, [vm(pl, "hpoll1")]) if False else None
            sl.put(S0 + 14, [vm(pl, "hpoll1")])
            sl.put(S0 + 18, [wvm("hpoll1")]) if False else None
            tcheck = S0 + 22
            sl.put(tcheck - 2, [wvm("hpoll1")])
            sl.put(tcheck - 1, [o(f"v_readfirstlane_b32 s{T2}, v242")])
            M[tcheck + 2].setdefault("before", []).extend(
                [o(f"s_cmp_ge_u32 s{T2}, 1"), o("s_cbranch_scc1 L_hq_ok")] +
                self.spin("L_hq", [o(pl)], [o(f"v_readfirstlane_b32 s{T2}, v242"), o("s_nop 3"), o(f"s_cmp_ge_u32 s{T2}, 1")]))
            st_ = self.opts.get("hstep1", 10)
            for i in range(6): hload(2*i, 2, tcheck + 3 + st_*i, ("hp", i))
            tq = P2_0 + self.opts.get("tq", 40)
            assert tq > tcheck + 3 + st_*5 + 2
            sl.put(tq, [vm(pl, "hpoll2")])
            sl.put(tq + 10, [wvm("hpoll2")])
            sl.put(tq + 11, [o(f"v_readfirstlane_b32 s{T2}, v242")])
            M[tq + 14].setdefault("before", []).extend(
                [o(f"s_cmp_ge_u32 s{T2}, 2"), o("s_cbranch_scc1 L_hp_ok")] +
                self.spin("L_hp", [o(pl)], [o(f"v_readfirstlane_b32 s{T2}, v242"), o("s_nop 3"), o(f"s_cmp_ge_u32 s{T2}, 2")]))
            for i in range(3): hload(12 + 2*i, 2, tq + 15 + 10*i, ("hp", 6 + i))
        elif self.opts.get("onepoll"):
            tq = P2_0 + self.opts.get("tq", 4)
            sl.put(tq, [vm(pl, "hpoll2")])
            sl.put(tq + 10, [wvm("hpoll2")])
            sl.put(tq + 11, [o(f"v_readfirstlane_b32 s{T2}, v242")])
            M[tq + 14].setdefault("before", []).extend(
                [o(f"s_cmp_ge_u32 s{T2}, 2"), o("s_cbranch_scc1 L_hp_ok")] +
                self.spin("L_hp", [o(pl)], [o(f"v_readfirstlane_b32 s{T2}, v242"), o("s_nop 3"), o(f"s_cmp_ge_u32 s{T2}, 2")]))
            for i in range(9):
                hload(2*i, 2, tq + 15 + self.opts.get("hstep", 9)*i, ("hp", i))
        else:
            h1 = self.opts.get("h1", P2_0 - 12)
            sl.put(h1, [vm(pl, "hpoll1")])
            sl.put(h1 + 12, [wvm("hpoll1")])
            sl.put(h1 + 13, [o(f"v_readfirstlane_b32 s{T2}, v242")])
            M[h1 + 16].setdefault("before", []).extend(
                [o(f"s_cmp_ge_u32 s{T2}, 1"), o("s_cbranch_scc1 L_hq_ok")] +
                self.spin("L_hq", [o(pl)], [o(f"v_readfirstlane_b32 s{T2}, v242"), o("s_nop 3"), o(f"s_cmp_ge_u32 s{T2}, 1")]))
            def hload(k, n, t, tag):
                sl.put(t, [o(f"s_add_u32 s{T6}, s{T0}, {k*1024}")])
                sl.put(t + 1, self.dload([f"buffer_load_dwordx4 a[{HPB+4*(k+q)}:{HPB+4*(k+q)+3}], v{V_L16}, s[{SR_WS}:{SR_WS+3}], s{T6} offen offset:{q*1024}" for q in range(n)], tag, True))
            for i in range(6):
                hload(2*i, 2, h1 + 17 + 9*i, ("hp", i))
            tp = P2_0 + self.opts.get("tp2", 74)
            assert tp - 13 > h1 + 17 + 9*5 + 1
            sl.put(tp - 13, [vm(pl, "hpoll2")])
            sl.put(tp - 2, [wvm("hpoll2")])
            sl.put(tp - 1, [o(f"v_readfirstlane_b32 s{T2}, v242")])
            M[tp + 2].setdefault("before", []).extend(
                [o(f"s_cmp_ge_u32 s{T2}, 2"), o("s_cbranch_scc1 L_hp_ok")] +
                self.spin("L_hp", [o(pl)], [o(f"v_readfirstlane_b32 s{T2}, v242"), o("s_nop 3"), o(f"s_cmp_ge_u32 s{T2}, 2")]))
            for i in range(3):
                hload(12 + 2*i, 2, tp + 4 + 6*i, ("hp", 6 + i))

        sl.put(gpar - 2, [wvm(("hp", 5))])
        off = 24 if self.opts.get("klate", 1) else 12
        for i in range(3):
            sl.put(gpar + off + 2*i - 2, [wvm(("hp", 6 + i))])
        for i in range(3, 9):
            st = stages[i]; slot = slot_of[st]
            prev = [j for j in range(i) if slot_of[stages[j]] == slot]
            if prev:
                t = lu[("s2", stages[prev[-1]])]; fbar(t); start = t + 1
            else:
                start = b2 + 1
            grps = self.dma_p2(st, slot, False, 250, 251, 0)
            if st[0] == 4:
                grps = [[o(f"s_and_b32 s{S_C}, s{S_W}, 1"), o(f"s_mul_i32 s{S_C}, s{S_C}, {16*1152}")]] + grps
                place(grps, start, 1)
            else:
                place(grps, start, 2)
        s4 = slot_of[(4, "both")]
        ins = [o("v_lshrrev_b32 v250, 5, v0"), o("v_lshlrev_b32 v250, 8, v250"),
               o("v_bfe_u32 v251, v0, 2, 2"), o("v_lshlrev_b32 v251, 6, v251"), o("v_add_u32 v250, v250, v251"),
               o("v_bfe_u32 v251, v0, 4, 1"), o("v_lshlrev_b32 v251, 5, v251"), o("v_add_u32 v250, v250, v251"),
               o("v_and_b32 v251, 3, v0"), o("v_lshlrev_b32 v251, 3, v251"), o("v_add_u32 v250, v250, v251"),
               o(f"v_add_u32 v{V_R8}, {s4*SLOT}, v250")]
        sl.stream(ins, P2_0 + 150, P2_0 + 175)
        self.pipe_reduce(sl, M, fu, lu, P2_0, N)
        for (u, half), tl in sorted(tile_last.items(), key=lambda x: x[1]):
            acc = ACC[u][half]
            par = half
            t = TMP + 8*par
            st = S_ST0 + par
            ins = [o(f"v_cvt_pk_bf16_f32 v{t+i}, v{acc+2*i}, v{acc+2*i+1}") for i in range(8)]
            if u == 3 and half == 1: continue
            if u < 3: ins += [o(f"s_add_u32 s{st}, s{S_QU[u]}, {half*2048}")]
            elif u == 3: ins += [o(f"s_mov_b32 s{st}, s{S_QN}")]
            else: ins += [o(f"s_mov_b32 s{st}, s{S_Q8}")]
            ins += self.dstore([f"buffer_store_dwordx4 v[{t}:{t+3}], v{V_L16}, s[{SR_WS}:{SR_WS+3}], s{st} offen",
                                f"buffer_store_dwordx4 v[{t+4}:{t+7}], v{V_L16}, s[{SR_WS}:{SR_WS+3}], s{st} offen offset:1024"], ("pst", u))
            s0 = tl + 4
            if s0 + 10 <= N: sl.stream(ins, s0, s0 + 10)
            else: self.tail2 = [o("s_nop 15")] + ins

    def item_setup(self, kind, R, srd=None, split=False):
        t0, t1, t2, t3 = R["t"]
        sQ, sH, sB, sT = T2, T3, T4, T5
        L = []
        LD = []
        SW = SR_WS if srd is None else srd
        if kind == "A":
            L += [G([o(f"s_lshl_b32 s{sT}, s{S_J}, 2"), o(f"s_add_u32 s{sT}, s{sT}, s{S_W}"), o(f"s_lshr_b32 s{sQ}, s{sT}, 3")]),
                  G([o(f"s_cmp_lt_u32 s{sQ}, 4"), o(f"s_cselect_b32 s{sH}, 0, 6"), o(f"s_add_u32 s{sQ}, s{sQ}, s{sH}")])]
        elif kind in "BC":
            lo, hi = (4, 12) if kind == "B" else (6, 14)
            L += [G([o(f"s_lshl_b32 s{sT}, s{S_J}, 1"), o(f"s_lshr_b32 s{sH}, s{S_W}, 1"), o(f"s_add_u32 s{sT}, s{sT}, s{sH}")]),
                  G([o(f"s_lshr_b32 s{sQ}, s{sT}, 3"), o(f"s_cmp_lt_u32 s{sQ}, 2"), o(f"s_cselect_b32 s{sH}, {lo}, {hi}")]),
                  o(f"s_add_u32 s{sQ}, s{sQ}, s{sH}")]
        else:
            L += [G([o(f"s_lshr_b32 s{sT}, s{S_J}, 1"), o(f"s_and_b32 s{sQ}, s{S_J}, 1"), o(f"s_add_u32 s{sQ}, s{sQ}, 8")])]
        L += [G([o(f"s_and_b32 s{sH}, s{sT}, 1"), o(f"s_bfe_u32 s{sB}, s{sT}, 0x20001"), o(f"s_lshl_b32 s{sT}, s{S_MT}, 2")]),
              o(f"s_add_u32 s{sB}, s{sB}, s{sT}"),
              G([o(f"s_mul_i32 s{sT}, s{sB}, 18"), o(f"s_add_u32 s{sT}, s{sT}, s{sQ}"), o(f"s_lshl_b32 s{sT}, s{sT}, 1")]),
              G([o(f"s_add_u32 s{sT}, s{sT}, s{sH}"), o(f"s_lshl_b32 s{sT}, s{sT}, 10")])]
        so = R["so"]
        for p in range(8): L += [o(f"s_add_u32 s{so+p}, s{sT}, {p*PART_BYTES}")]
        if kind == "A":
            L += [o(f"v_mov_b32 v{t3}, 0")]
        elif kind in "BC":
            L += [o(f"s_and_b32 s{sT}, s{S_W}, 1"), o(f"v_bfe_u32 v{t0}, v0, 4, 1"), o(f"v_mov_b32 v{t1}, {OOB:#x}"), o(f"v_mov_b32 v{t3}, 0"),
                  G([o(f"v_cmp_eq_u32 vcc, s{sT}, v{t0}"), o("v_nop"), o("v_nop"), o(f"v_cndmask_b32 v{t3}, v{t1}, v{t3}, vcc")])]
        else:
            L += [o(f"v_bfe_u32 v{t0}, v0, 3, 2"), o(f"v_mov_b32 v{t1}, {OOB:#x}"), o(f"v_mov_b32 v{t3}, 0"),
                  G([o(f"v_cmp_eq_u32 vcc, s{S_W}, v{t0}"), o("v_nop"), o("v_nop"), o(f"v_cndmask_b32 v{t3}, v{t1}, v{t3}, vcc")])]
        PV = R["PV"]
        L += [o(f"v_add_u32 v{PV}, v{t3}, v{V_L16}")]
        pk, pb = R["P"]
        ldp = [vm(f"buffer_load_dwordx4 {pk}[{pb+4*p}:{pb+4*p+3}], v{PV}, s[{SW}:{SW+3}], s{so+p} offen sc1", ("it", kind)) for p in range(8)]
        if split: LD += ldp
        else: L += ldp
        X, Y, OA = R["X"], R["Y"], R["OA"]
        L += self.rowmir(sB, sT, t0, t1, t2, OA) + [
              G([o(f"s_lshl_b32 s{sT}, s{sQ}, 6"), o(f"s_lshl_b32 s{sB}, s{sH}, 5"), o(f"s_add_u32 s{sT}, s{sT}, s{sB}")]),
              o(f"v_mul_u32_u24 v{t2}, 1152, v{t0}"), o(f"v_add_u32 v{t2}, s{sT}, v{t2}"), o(f"v_add_u32 v{t2}, v{t2}, v{t3}"),
              o(f"v_lshrrev_b32 v{X}, 5, v0"), o(f"v_lshlrev_b32 v{OA}, 4, v{X}"), o(f"v_add_u32 v{OA}, v{t2}, v{OA}"),
              o(f"v_lshlrev_b32 v{X}, 3, v{X}"), o(f"v_add_u32 v{t2}, v{t2}, v{X}"),
              vm(f"buffer_load_dwordx2 v[{X}:{X+1}], v{t2}, s[{SR_X}:{SR_X+3}], 0 offen", ("it", kind)),
              vm(f"buffer_load_dwordx2 v[{X+2}:{X+3}], v{t2}, s[{SR_X}:{SR_X+3}], 0 offen offset:16", ("it", kind)),
              G([o(f"s_lshl_b32 s{sT}, s{sT}, 1"), o(f"s_cmp_lt_u32 s{sQ}, 9"), o(f"s_cselect_b32 s{R['rev']}, 0, 1")]),
              G([o(f"s_sub_u32 s{sB}, 2292, s{sT}"), o(f"s_cmp_lt_u32 s{sQ}, 9"), o(f"s_cselect_b32 s{sT}, s{sT}, s{sB}"), o(f"s_cselect_b32 s{sB}, 1, -1")]),
              G([o(f"v_cmp_eq_u32 vcc, 1, v{PV}") if False else o(f"v_mov_b32 v{t2}, s{R['rev']}"), o(f"v_cmp_eq_u32 vcc, 1, v{t2}"), o("v_nop"), o("v_nop"),
                 o(f"v_cndmask_b32 v{t0}, v{t0}, v{t1}, vcc")]),
              o(f"v_mul_u32_u24 v{t0}, {YP}, v{t0}"), o(f"v_add_u32 v{t0}, s{sT}, v{t0}"), o(f"v_add_u32 v{t0}, v{t0}, v{t3}"),
              o(f"v_lshrrev_b32 v{t1}, 5, v0"), o(f"v_lshlrev_b32 v{t1}, 4, v{t1}"), o(f"v_mul_lo_u32 v{t1}, v{t1}, s{sB}"),
              o(f"v_add_u32 v{t0}, v{t0}, v{t1}"),
              o(f"s_lshl_b32 s{sB}, s{sB}, 5"), o(f"v_add_u32 v{t1}, s{sB}, v{t0}"), o(f"v_add_u32 v{t0}, {WS_YH}, v{t0}"), o(f"v_add_u32 v{t1}, {WS_YH}, v{t1}")]
        ldy = [vm(f"buffer_load_dwordx4 v[{Y}:{Y+3}], v{t0}, s[{SW}:{SW+3}], 0 offen sc1", ("it", kind)),
               vm(f"buffer_load_dwordx4 v[{Y+4}:{Y+7}], v{t1}, s[{SW}:{SW+3}], 0 offen sc1", ("it", kind))]
        if split:
            LD += ldy
            return L, LD
        return L + ldy

    def item_finish(self, kind, R):
        X, Y, OA = R["X"], R["Y"], R["OA"]
        t0, t1, t2, t3 = R["t"]
        pk, pb = R["P"]
        L = [wvm(("it", kind)),
             o(f"s_cmp_eq_u32 s{R['rev']}, 0"), o(f"s_cbranch_scc1 L_rv{kind}"),
             o(f"v_swap_b32 v{Y}, v{Y+3}"), o(f"v_swap_b32 v{Y+1}, v{Y+2}"), o(f"v_swap_b32 v{Y+4}, v{Y+7}"), o(f"v_swap_b32 v{Y+5}, v{Y+6}"),
             raw(f"L_rv{kind}:"),
             o(f"s_mov_b32 s{T0}, 0x3f80"), o(f"s_mov_b32 s{T1}, 0x3f800000")]
        for i in range(4):
            L += [o(f"v_dot2_f32_bf16 v{Y+2*i}, v{X+i}, s{T0}, v{Y+2*i}"), o(f"v_dot2_f32_bf16 v{Y+2*i+1}, v{X+i}, s{T1}, v{Y+2*i+1}")]
        for p in range(8):
            for i in range(4):
                r = pb + 4*p + i
                if pk == "a":
                    L += [o(f"v_accvgpr_read_b32 v{t0 + (i & 1)}, a{r}")]
                    src = t0 + (i & 1)
                else: src = r
                L += [o(f"v_dot2_f32_bf16 v{Y+2*i}, v{src}, s{T0}, v{Y+2*i}"), o(f"v_dot2_f32_bf16 v{Y+2*i+1}, v{src}, s{T1}, v{Y+2*i+1}")]
        L += [o("s_nop 2")]
        for i in range(4):
            L += [o(f"v_cvt_pk_bf16_f32 v{X+i}, v{Y+2*i}, v{Y+2*i+1}")]
        L += [o("s_nop 1"), o(f"v_permlane32_swap_b32 v{X}, v{X+2}"), o(f"v_permlane32_swap_b32 v{X+1}, v{X+3}"),
              vm(f"buffer_store_dwordx4 v[{X}:{X+3}], v{OA}, s[{SR_OUT}:{SR_OUT+3}], 0 offen{self.osfx}", "out")]
        return L

    def group_poll(self, label, val, vdst, voff):
        ld = f"buffer_load_dword v{vdst}, v{voff}, s[{SR_WS}:{SR_WS+3}], s{T6} offen sc1"
        chk = [o(f"v_cmp_le_u32 vcc, {val}, v{vdst}"), o("s_nop 0"), o(f"s_and_b32 s{T7}, vcc_lo, 0xff"), o(f"s_cmp_eq_u32 s{T7}, 0xff")]
        return ld, chk

    def items_cfg(self):
        self.RA = dict(P=("v", 80), X=112, Y=116, OA=124, PV=125, t=[126, 127, 16, 17], rev=24, so=16)
        self.RB = dict(P=("a", 0), X=18, Y=22, OA=30, PV=31, t=[48, 49, 50, 51], rev=25, so=16)
        self.RC = dict(P=("v", 176), X=208, Y=212, OA=220, PV=221, t=[222, 223, 224, 225], rev=26, so=16)
        self.RD = dict(P=("v", 128), X=160, Y=164, OA=172, PV=173, t=[174, 175, 226, 227], rev=27, so=84)

    def tail(self):
        L = list(self.late_loads)
        O = 128
        ld, chk = self.group_poll("L_f5", 5, 241, 242)
        L += [vm(ld, "fp5")]
        L += self.stamp("pub")
        RD = self.RDx; Ld = self.D_ld
        L += [wvm("op"), wvm("ox"), o(f"s_mov_b32 s{T0}, 0x3f80"), o(f"s_mov_b32 s{T1}, 0x3f800000"),
              o("s_cmp_eq_u32 s24, 0"), o("s_cbranch_scc1 L_oyd")]
        for g_ in range(4):
            for k in range(4): L += [o(f"v_add_f32 v{O+4*g_+k}, v{O+4*g_+k}, v{48 + 4*(3-g_) + 3 - k}")]
        L += [o("s_branch L_oyj"), raw("L_oyd:")]
        for r in range(16): L += [o(f"v_add_f32 v{O+r}, v{O+r}, v{48+r}")]
        L += [raw("L_oyj:")]
        for i in range(8):
            L += [o(f"v_dot2_f32_bf16 v{O+2*i}, v{24+i}, s{T0}, v{O+2*i}"), o(f"v_dot2_f32_bf16 v{O+2*i+1}, v{24+i}, s{T1}, v{O+2*i+1}")]
        for p in range(6):
            for i in range(8):
                L += [o(f"v_dot2_f32_bf16 v{O+2*i}, v{80+8*p+i}, s{T0}, v{O+2*i}"), o(f"v_dot2_f32_bf16 v{O+2*i+1}, v{80+8*p+i}, s{T1}, v{O+2*i+1}")]
        L += self.stamp("early")
        L += [wvm("fp5")] + chk + [o("s_cbranch_scc1 L_f5_ok")] + self.spin("L_f5", [o(ld)], chk) + [reset()]
        L += self.stamp("pok")
        L += [vm(f"buffer_load_dwordx4 v[16:19], v{V_L16}, s[{SR_WS}:{SR_WS+3}], s22 offen sc1", "sib"),
              vm(f"buffer_load_dwordx4 v[20:23], v{V_L16}, s[{SR_WS}:{SR_WS+3}], s22 offen offset:1024 sc1", "sib")]
        L += Ld
        L += [wvm("sib")]
        for i in range(8):
            L += [o(f"v_dot2_f32_bf16 v{O+2*i}, v{16+i}, s{T0}, v{O+2*i}"), o(f"v_dot2_f32_bf16 v{O+2*i+1}, v{16+i}, s{T1}, v{O+2*i+1}")]
        L += [o("s_nop 2")]
        for i in range(8): L += [o(f"v_cvt_pk_bf16_f32 v{24+i}, v{O+2*i}, v{O+2*i+1}")]
        L += [o("s_nop 1"), o("v_permlane32_swap_b32 v24, v26"), o("v_permlane32_swap_b32 v25, v27"),
              o("v_permlane32_swap_b32 v28, v30"), o("v_permlane32_swap_b32 v29, v31"),
              vm(f"buffer_store_dwordx4 v[24:27], v238, s[{SR_OUT}:{SR_OUT+3}], 0 offen{self.osfx}", "out"),
              vm(f"buffer_store_dwordx4 v[28:31], v238, s[{SR_OUT}:{SR_OUT+3}], 0 offen offset:32{self.osfx}", "out")]
        L += self.stamp("ownfin")
        L += self.item_finish("D", RD)
        return L

    def kernel(self, name):
        L = [raw(f".globl {name}"), raw(".p2align 8"), raw(f".type {name},@function"), raw(f"{name}:")]
        L += self.prologue()
        L += self.stamp("proend")
        L += self.ln_stats()
        L += self.stamp("stats")
        L += [o("s_barrier")]
        L += [o(f"s_mov_b32 s{S_A}, s{S_J}"), o(f"s_add_u32 s{S_B}, s{S_J}, 16")]
        L += self.h_dma(S_A, 2, "wz1")
        L += [o(f"s_cmp_lt_u32 s{S_J}, 2"), o("s_cbranch_scc0 L_noz2a")]
        L += [I(i.t, "o") if i.k == "vm" else i for i in self.h_dma(S_B, 3, "wz2")]
        L += [raw("L_noz2a:")]
        hd = []
        for sig in range(2):
            for grp in self.dma_p1(sig, sig): hd.append(grp)
        if self.opts.get("lbulk"):
            hd.append([o(f"s_lshl_b32 s{S_PF}, s{S_MT}, 2"), o(f"s_add_u32 s{S_PF}, s{S_PF}, s{S_W}"), o(f"s_mul_i32 s{S_PF}, s{S_PF}, 45"),
                   o(f"v_add_u32 v240, s{S_PF}, v0"), o(f"s_mov_b32 s{S_PF}, {(2**32+4)//5}"), o(f"v_mul_hi_u32 v241, v240, s{S_PF}"),
                   o("v_mul_u32_u24 v242, 5, v241"), o("v_sub_u32 v242, v240, v242"), o("v_lshlrev_b32 v242, 7, v242"),
                   o("v_mul_u32_u24 v241, 9216, v241"), o("v_add_u32 v240, v241, v242"),
                   o(f"s_mul_i32 s{S_PF}, s{S_J}, 576"), o(f"s_and_b32 s{S_PF}, s{S_PF}, 0xffffff80"),
                   o("v_cmp_gt_u32 vcc, 45, v0"), o("s_nop 1"), o(f"v_cndmask_b32 v240, v{V_ONE0}, v240, vcc"),
                   vm(f"buffer_load_dword v{V_PF}, v240, s[{SR_WG}:{SR_WG+3}], s{S_PF} offen", "pf"),
                   vm(f"buffer_load_dword v{V_PF}, v240, s[{SR_WU}:{SR_WU+3}], s{S_PF} offen", "pf")])
        else:
            if not self.opts.get('bearly'): hd.append([o(f"s_lshl_b32 s{S_PF}, s{S_LID}, 2"), o(f"s_add_u32 s{S_PF}, s{S_PF}, s{S_W}"), o(f"s_mul_i32 s{S_PF}, s{S_PF}, 41"),
                       o(f"v_add_u32 v240, s{S_PF}, v0"), o("v_lshlrev_b32 v240, 7, v240"), o("v_cmp_gt_u32 vcc, 41, v0"), o("s_nop 1"),
                       o(f"v_cndmask_b32 v240, v{V_ONE0}, v240, vcc"),
                       vm(f"buffer_load_dword v{V_PF}, v240, s[{SR_WG}:{SR_WG+3}], 0 offen", "pf"),
                       vm(f"buffer_load_dword v{V_PF}, v240, s[{SR_WU}:{SR_WU+3}], 0 offen", "pf")])
        lf = self.ln_finish()
        per = -(-len(lf) // 18)
        k = 0
        for n, grp in enumerate(hd):
            L += grp
            if n < 18: L += lf[k:k + per]; k += per
        L += lf[k:]
        L += [o(f"v_subrev_u32 v{V_XA+i}, s{S_LX}, v{V_XA+i}") for i in range(4)]
        L += [o(f"v_add_u32 v{V_XA+i}, {2*SLOT}, v{V_XA+i}") for i in range(4)]
        L += self.stamp("lnfin")
        L += self.seg_norm_h()
        L += self.stamp("normH")
        L += self.h2_block()
        L += self.tr_bases()
        L += srd(SR_HZ, 36, 256)
        L += self.main()
        L += self.stamp("p2end")
        L += self.tail()
        L += self.stamp("end")
        if self.diag:
            L += [o("s_waitcnt vmcnt(0)"),
                  o(f"s_lshl_b32 s{T0}, s{S_LID}, 2"), o(f"s_add_u32 s{T0}, s{T0}, s{S_W}"), o(f"s_lshl_b32 s{T0}, s{T0}, 8"),
                  o(f"s_add_u32 s{T0}, s{T0}, {WS_STAMP}"), o("v_lshlrev_b32 v240, 2, v0"),
                  o(f"buffer_store_dword v{V_STAMP}, v240, s[{SR_WS}:{SR_WS+3}], s{T0} offen")]
        if self.opts.get("hdiag") == 2:
            L += [o("s_waitcnt vmcnt(0)"), o(f"v_readlane_b32 s98, v{V_STAMP}, 32"), o("s_nop 3"),
                  o(f"v_subrev_u32 v240, s98, v{V_STAMP}"),
                  o("v_subrev_u32 v241, 32, v0"), o("v_lshlrev_b32 v241, 2, v241"),
                  o("v_cmp_le_u32 vcc, 32, v0"), o(f"v_mov_b32 v242, {OOB:#x}"), o("s_nop 0"), o("v_cndmask_b32 v241, v242, v241, vcc"),
                  o("v_cmp_gt_u32 vcc, 48, v0"), o("s_nop 1"), o("v_cndmask_b32 v241, v242, v241, vcc"),
                  o(f"s_cmp_eq_u32 s{S_W}, 0"), o("s_cbranch_scc0 L_end"),
                  o(f"buffer_atomic_u{'min' if self.opts.get('hmin') else 'max'} v240, v241, s[{SR_HZ}:{SR_HZ+3}], 0 offen sc1")]
        elif self.opts.get("hdiag"):
            L += [o("s_waitcnt vmcnt(0)"), o("s_memrealtime s[100:101]"), o("s_waitcnt lgkmcnt(0)"),
                  o("s_sub_u32 s97, s100, s98"), o("s_not_b32 s98, s98"),
                  o("v_mov_b32 v240, s100"), o("v_mov_b32 v241, s98"), o("v_mov_b32 v242, s97"),
                  o(f"buffer_atomic_umax v240, v{V_ONE0}, s[{SR_HZ}:{SR_HZ+3}], 0 offen sc1"),
                  o(f"buffer_atomic_umax v241, v{V_ONE0}, s[{SR_HZ}:{SR_HZ+3}], 0 offen offset:4 sc1"),
                  o(f"buffer_atomic_umax v242, v{V_ONE0}, s[{SR_HZ}:{SR_HZ+3}], 0 offen offset:8 sc1")]
            for i, r in enumerate(self.hd_regs):
                pass
        L += [raw("L_end:"), o("s_endpgm")]
        return finalize(flat(L))

NAME = "parallel_sum__spectral_fnet__geglu_ffn__prompt_kernel"
def build(diag=False, opts=None):
    hdr = open("parallel_sum__spectral_fnet__geglu_ffn__prompt.s.ref").read().split("\n")
    top = [l for l in hdr if l.startswith(";") and "@launch" not in l and "Override" not in l and "grid=ceil" not in l]
    g = Gen(diag, opts)
    lines = g.kernel(NAME)
    errs = hazard_check(lines)
    for e in errs[:30]: print("HAZARD:", e)
    txt = "\n".join(top) + "\n"
    txt += "; @launch grid=(256,1,1) block=(256,1,1) lds=163840\n"
    txt += '.amdgcn_target "amdgcn-amd-amdhsa--gfx950"\n.text\n'
    txt += "\n".join(lines) + "\n" + kernel_footer(NAME)
    return txt, g.names

if __name__ == "__main__":
    import sys, json
    opts = {}
    for a in sys.argv[2:]:
        if "=" in a:
            k, v = a.split("="); opts[k] = int(v)
    txt, names = build("diag" in sys.argv, opts)
    open(sys.argv[1], "w").write(txt)
    json.dump(names, open(sys.argv[1] + ".names", "w"))
```

```python
from fw import *
from sched import *
import math, struct

S, D, F = 2048, 576, 4608
SLOT = 36864
SPARE = 4*SLOT
PART_BYTES = S * D * 2
WS_PART = 0
WS_HX = 20 << 20
WS_ZF = 40 << 20
ZF_STRIDE = 34 * 1024
ZF_TYPE = 18 * ZF_STRIDE
WS_YH = 42 << 20
YP = 320 * 4
WS_FLAG = 46 << 20
WS_STAMP = 48 << 20
OOB = 0x40000000
C0 = -2.0 * math.sqrt(2.0 / math.pi) * math.log2(math.e)
C1 = C0 * 0.044715
def f2u(f): return struct.unpack("<I", struct.pack("<f", f))[0]

V_L16 = 1
V_RA, V_RB = 2, 6
V_DM = 10
V_C0, V_C1 = 14, 15
GA = [[16, 32], [48, 64]]
UA = [[80, 96], [112, 128]]
HF = 144
TMP = 216
V_HACC = 232
V_XA = 248
V_R8 = 248
V_PF = 252
V_ONE0 = 253
V_D2 = 254
V_STAMP = 255
RX = 80
V_PERM = 224
V_NEGMU = 64
V_ONE = 231
V_SD = 232
V_SA = 236
V_SX = 240
V_SE = 228
V_ZP = 241
V_ZQ = 244
V_YC = [247, 250, 251]
V_LB = 232
AX = 0
AF = 144
NAF = 8
AZ = 176
HPB = 8
SR_CS, SR_SS, SR_HZ, SR_X, SR_WG, SR_WU, SR_WD, SR_WS, SR_OUT = 4, 8, 12, 40, 44, 48, 52, 56, 60
S_W, S_MT, S_J = 64, 65, 66
S_LX, S_L9 = 67, 68
S_UB = 69
S_WD = 74
S_PB = 75
T0, T1, T2, T3, T4, T5, T6, T7 = 76, 77, 78, 79, 80, 81, 82, 83
S_N0 = 84
S_N1 = 16
S_CU = 25
S_Q0, S_Q8 = 30, 31
S_HB = 32
S_LID = 33
S_ST0, S_ST1 = 34, 35
S_CNT = 93
S_A, S_B, S_C = 94, 95, 96
S_TAU, S_ZB = 38, 39
S_PF = 97
S_XC = 0
S_QU = [30, 36, 37]
S_QN = 39
S_TO = 32
S_GA = 28
S_FL = 1
S_MODE = 2
S_D0 = 3

def srd(dst, ptr, nbytes):
    return [o(f"s_mov_b32 s{dst}, s{ptr}"), o(f"s_and_b32 s{dst+1}, s{ptr+1}, 0xffff"),
            o(f"s_mov_b32 s{dst+2}, {nbytes}"), o(f"s_mov_b32 s{dst+3}, 0x00020000")]
def mf32(acc, A, B, C): return o(f"v_mfma_f32_32x32x16_bf16 {acc}, {A}, {B}, {C}")
def mf16(acc, A, B, C): return o(f"v_mfma_f32_16x16x32_bf16 {acc}, {A}, {B}, {C}")

class DS2(I):
    pass

class Gen:
    def dload(self, texts, tag, pair=False):
        out = self.dstore(texts, tag, pair)
        if hasattr(out[0], "cost"): out[0].cost = 3 + len(texts)
        return out
    def dstore(self, texts, tag, pair=False):
        self.lab = getattr(self, "lab", 0) + 1
        n = self.lab
        if self.opts.get("forcemode") == 1 or not self.opts.get("local", 0) or (self.opts.get("cfg", 0) == 0 and not pair):
            return [vm(t + ("" if (self.opts.get("hpplain") and "load" in t) else " sc1"), tag) for t in texts]
        body = f"s_bitcmp1_b32 s{S_MODE}, 0\n    s_cbranch_scc1 L_dl{n}\n"
        body += "".join(f"    {t} sc1\n" for t in texts)
        body += f"    s_branch L_dj{n}\nL_dl{n}:\n"
        body += "".join(f"    {t}\n" for t in texts)
        body += f"L_dj{n}:"
        out = [I("buffer_store_multi " + body, "vm", tag)]
        out[0].t = body
        out[0].cost = 3 + 5*len(texts)
        for _ in texts[1:]:
            x = I("; (counted above)", "vm", tag); x.cost = 0; out.append(x)
        return out
    def __init__(self, diag=False, opts=None):
        self.hd_regs = []
        self.osfx = ' sc1' if (opts or {}).get('osc1') else ''
        self.diag = diag; self.opts = opts or {}; self.nst = 0; self.names = []; self.pid = 0
    def stamp(self, name):
        if not self.diag: return []
        if self.opts.get("hdiag") == 2 and name in ("kernarg", "xiss", "proend", "lnfin", "pub", "early", "pok", "ownfin"): return []
        i = self.nst; self.nst += 1; self.names.append(name)
        return [o("s_memtime s[98:99]"), o("s_memrealtime s[100:101]"), o("s_waitcnt lgkmcnt(0)"),
                o(f"v_writelane_b32 v{V_STAMP}, s98, {i}"), o(f"v_writelane_b32 v{V_STAMP}, s100, {i+32}")]

    def paced(self, M, frags, setup, dist):
        N = len(M)
        sl = Slots(N)
        for g, m in enumerate(M):
            if m["op"] == 16: sl.budget[g] = 3
        head = []
        pid = self.pid; self.pid += 1
        def put(t, ins):
            if t < 0: head.extend(ins if isinstance(ins, list) else [ins])
            else: sl.put(t, ins)
        issue = {}
        for f, fr in enumerate(frags):
            t = fr["use"] - fr.get("dist", dist)
            issue[f] = t
            put(t, fr.get("pre", []))
            put(t, [ds(r, ("af", pid, f)) for r in fr["reads"]])
        waited = -1
        n0 = M[0]["need"]
        if n0 >= 0:
            tgt = max(n0, M[1]["need"])
            head.append(wlg(("af", pid, tgt))); waited = tgt
        for g in range(N - 1):
            nx = M[g+1]["need"]
            if nx > waited:
                tgt = nx
                if g + 2 < N and M[g+2]["need"] > nx and issue[M[g+2]["need"]] <= g - 3 and M[g+1]["op"] == 32: tgt = M[g+2]["need"]
                put(g, [wlg(("af", pid, tgt))]); waited = tgt
        setup(sl, head)
        L = list(head)
        for g, m in enumerate(M):
            L += m.get("before", [])
            c = "0" if m["first"] else m.get("C", m["acc"])
            if m.get("C") and m["first"]: c = m["C"]
            L.append((mf32 if m["op"] == 32 else mf16)(m["acc"], m["A"], m["B"], c))
            L += sl.emit(g)
        if self.opts.get("verbose"):
            over = [(g, sl.used[g], sl.budget[g]) for g in range(N) if sl.used[g] > sl.budget[g]]
            print(f"paced {pid}: N={N} over budget: {len(over)} total excess {sum(u-b for _,u,b in over)} avg used {sum(sl.used)/N:.2f}")
            if self.opts.get("verbose") > 1:
                for a in range(0, N, 36):
                    ex = sum(max(0, sl.used[g]-sl.budget[g]) for g in range(a, min(a+36, N)))
                    print(a, "used", sum(sl.used[a:a+36]), "budget", sum(sl.budget[a:a+36]), "excess", ex)
        return L

    def prologue(self):
        L = []
        if self.opts.get("hdiag"): L += [o("s_memrealtime s[98:99]")]
        if self.diag: L += [o(f"v_mov_b32 v{V_STAMP}, 0")]
        L += self.stamp("start")
        L += [o("s_load_dwordx16 s[16:31], s[0:1], 0"), o("s_load_dwordx8 s[32:39], s[0:1], 64"),
              o("s_cmp_ge_u32 s2, 256"), o("s_cbranch_scc1 L_end")]
        L += [o("v_lshrrev_b32 v2, 6, v0"), o("v_and_b32 v0, 63, v0"), o("s_nop 0"),
              o(f"v_readfirstlane_b32 s{S_W}, v2"),
              ] + self.idmap() + [
              o(f"s_mul_i32 s{S_LX}, s{S_W}, {SLOT}"), o(f"s_mul_i32 s{S_L9}, s{S_W}, 9216"),
              o(f"v_lshlrev_b32 v{V_L16}, 4, v0")]
        if self.opts.get("cpf", 1):
            L += [o("s_getpc_b64 s[82:83]"), raw("L_pc:"),
                  o(f"s_lshr_b32 s{T0}, s2, 3"), o(f"s_lshl_b32 s{T0}, s{T0}, 2"), o(f"s_add_u32 s{T0}, s{T0}, s{S_W}"),
                  o(f"s_lshl_b32 s{T0}, s{T0}, 9"),
                  o("v_and_b32 v2, 3, v0"), o("v_lshlrev_b32 v2, 7, v2"), o(f"v_add_u32 v2, s{T0}, v2"),
                  o("v_cmp_gt_u32 vcc, 4, v0"), o("s_and_saveexec_b64 s[80:81], vcc"),
                  vm(f"global_load_dword v{V_PF}, v2, s[82:83]", "pf"), o("s_mov_b64 exec, s[80:81]")]
        L += [o("v_lshrrev_b32 v2, 3, v0"), o("v_and_b32 v3, 7, v0"), o("v_lshrrev_b32 v4, 1, v2"),
              o("v_xor_b32 v3, v3, v4"), o("v_lshlrev_b32 v3, 4, v3"), o("v_xor_b32 v4, 64, v3"),
              o(f"s_lshl_b32 s{T0}, s{S_MT}, 5"), o(f"s_lshl_b32 s{T1}, s{S_W}, 3"), o(f"s_add_u32 s{T0}, s{T0}, s{T1}"),
              o(f"v_add_u32 v5, s{T0}, v2"),
              o("v_sub_u32 v6, 1024, v5"), o("v_add_u32 v7, 1024, v5"), o("v_sub_u32 v8, 2048, v5"),
              o("v_cmp_eq_u32 vcc, 0, v5"), o("v_mov_b32 v9, 512"), o("s_nop 0"),
              o("v_cndmask_b32 v7, v7, v9, vcc"), o("v_mov_b32 v9, 1536"), o("s_nop 0"), o("v_cndmask_b32 v8, v8, v9, vcc"),
              o(f"s_movk_i32 s{T1}, 1152"),
              o(f"v_mad_u32_u24 v240, v5, s{T1}, v3"), o(f"v_mad_u32_u24 v241, v6, s{T1}, v4"),
              o(f"v_mad_u32_u24 v242, v7, s{T1}, v3"), o(f"v_mad_u32_u24 v243, v8, s{T1}, v4")]
        if self.opts.get("xpf", 1) == 2:
            L += [o(f"s_lshl_b32 s{T0}, s{S_MT}, 4"), o(f"s_add_u32 s{T0}, s{T0}, s{S_J}"), o(f"s_lshl_b32 s{T0}, s{T0}, 2"), o(f"s_add_u32 s{T0}, s{T0}, s{S_W}"),
                  o(f"s_mul_i32 s{T0}, s{T0}, 18"), o(f"v_add_u32 v9, s{T0}, v0"), o("v_lshlrev_b32 v9, 7, v9"),
                  o("v_cmp_gt_u32 vcc, 18, v0"), o(f"v_mov_b32 v8, {OOB:#x}"), o("s_nop 0"), o("v_cndmask_b32 v9, v8, v9, vcc")]
        elif self.opts.get("xpf", 1):
            nsh = 16 if self.opts.get("cfg", 0) == 1 else 4
            per = 1152 // nsh // 4
            assert per <= 64 or True
            jj = f"s{S_J}"
            L += [o(f"s_and_b32 s{T0}, s{S_J}, {nsh-1}"), o(f"s_lshl_b32 s{T0}, s{T0}, 2"), o(f"s_add_u32 s{T0}, s{T0}, s{S_W}"), o(f"s_mul_i32 s{T0}, s{T0}, {per}"),
                  o(f"v_add_u32 v9, s{T0}, v0"),
                  o(f"s_mul_i32 s{T0}, s{S_MT}, {64*1152}"),
                  o(f"s_sub_u32 s{T1}, {(2048-63)*1152 - 576*128}, s{T0}"),
                  o("v_lshlrev_b32 v8, 7, v9"), o(f"v_add_u32 v7, s{T1}, v8"), o(f"v_add_u32 v8, s{T0}, v8"),
                  o("v_cmp_gt_u32 vcc, 0x240, v9"), o("s_nop 1"), o("v_cndmask_b32 v9, v7, v8, vcc"),
                  o(f"v_cmp_gt_u32 vcc, {min(per,64)}, v0"), o(f"v_mov_b32 v8, {OOB:#x}"), o("s_nop 0"), o("v_cndmask_b32 v9, v8, v9, vcc")]
        L += [o("s_waitcnt lgkmcnt(0)")]
        L += self.stamp("kernarg")
        L += srd(SR_X, 16, S*D*2)
        if self.opts.get("xpf", 1):
            L += [vm(f"buffer_load_dword v{V_PF}, v9, s[{SR_X}:{SR_X+3}], 0 offen", "pf")]
        HEAD = L
        P = []
        P += srd(SR_WG, 28, D*F*2) + srd(SR_WU, 30, D*F*2) + srd(SR_WD, 32, F*D*2) + srd(SR_WS, 38, 256 << 20) + srd(SR_OUT, 34, S*D*2)
        P += srd(SR_CS, 18, S*S*2) + srd(SR_SS, 20, S*S*2)
        P += [o(f"s_lshl_b32 s{T0}, s{S_W}, 6"), o(f"v_add_u32 v2, s{T0}, v0"), o("v_cmp_eq_u32 vcc, 0, v2"),
              o(f"v_mov_b32 v3, {OOB:#x}"), o("v_mov_b32 v4, 0"), o(f"v_cndmask_b32 v{V_ONE0}, v3, v4, vcc")]
        P += [o(f"s_lshl_b32 s{S_LID}, s{S_MT}, 4"), o(f"s_add_u32 s{S_LID}, s{S_LID}, s{S_J}")]
        P += [o(f"s_and_b32 s{T2}, s{S_J}, 1"), o(f"s_mul_i32 s{T0}, s{S_J}, 288"), o(f"s_mul_i32 s{T1}, s{T2}, 224"),
              o(f"s_add_u32 s{T1}, s{T0}, s{T1}"),
              G([o(f"s_cmp_eq_u32 s{T2}, 0"), o(f"s_cselect_b32 s{T3}, 64, -64"), o(f"s_cselect_b32 s{T4}, 256, 0")]),
              o(f"s_add_u32 s{T4}, s{T4}, s{T0}")]
        for u in range(4):
            P += [o(f"s_mul_i32 s{T5}, s{T3}, {u}"), o(f"s_add_u32 s{T5}, s{T5}, s{T1}"),
                  o(f"s_lshl_b32 s{S_UB+u}, s{T5}, 1"),
                  o(f"s_mul_i32 s{S_N0+2*u}, s{T5}, 1152"), o(f"s_add_u32 s{S_N0+2*u+1}, s{S_N0+2*u}, {32*1152}")]
        P += [o(f"s_lshl_b32 s{S_UB+4}, s{T4}, 1"), o(f"s_mul_i32 s{S_N0+8}, s{T4}, 1152")]
        P += [o(f"s_mov_b32 s{S_A}, s{S_UB}")]
        P += [o(f"s_mul_i32 s{T5}, s{S_W}, {72*9216}")]
        for u in range(4): P += [o(f"s_add_u32 s{S_UB+u}, s{S_UB+u}, s{T5}")]
        P += [o(f"s_lshl_b32 s{T5}, s{T5}, 1"), o(f"s_add_u32 s{S_UB+4}, s{S_UB+4}, s{T5}")]
        P += [o(f"s_lshr_b32 s{T0}, s{S_J}, 1"), o(f"s_mul_i32 s{S_PB}, s{T0}, {PART_BYTES}"),
              o(f"s_lshl_b32 s{T0}, s{S_MT}, 2"), o(f"s_add_u32 s{T0}, s{T0}, s{S_W}"),
              o(f"s_mul_i32 s{T0}, s{T0}, {18*2048}"), o(f"s_add_u32 s{S_PB}, s{S_PB}, s{T0}"),
              o(f"s_lshl_b32 s{T0}, s{S_LID}, 2"), o(f"s_add_u32 s{T0}, s{T0}, s{S_W}"),
              o(f"s_mul_i32 s{S_HB}, s{T0}, {18*1024}"), o(f"s_add_u32 s{S_HB}, s{S_HB}, {WS_HX}")]
        P += [o("v_lshrrev_b32 v2, 3, v0"), o("v_and_b32 v3, 7, v0"),
              o("v_bfe_u32 v4, v0, 4, 1"), o("v_lshlrev_b32 v4, 2, v4"), o("v_xor_b32 v3, v3, v4"), o("v_lshlrev_b32 v3, 4, v3"),
              o(f"v_mul_u32_u24 v2, 9216, v2"), o(f"v_add_u32 v{V_DM}, v2, v3")]
        for t in range(1, 4): P += [o(f"v_add_u32 v{V_DM+t}, {t*(8*9216-1024)}, v{V_DM}")]
        P += [o("v_and_b32 v2, 31, v0"), o("v_bfe_u32 v3, v0, 1, 3"), o("v_lshrrev_b32 v4, 5, v0"), o("v_xor_b32 v3, v3, v4"),
              o("v_lshlrev_b32 v3, 4, v3"), o("v_lshlrev_b32 v2, 7, v2"), o("v_add_u32 v2, v2, v3"),
              o(f"v_add_u32 v{V_XA}, s{S_LX}, v2"),
              o(f"v_xor_b32 v{V_XA+1}, 32, v{V_XA}"), o(f"v_xor_b32 v{V_XA+2}, 64, v{V_XA}"), o(f"v_xor_b32 v{V_XA+3}, 96, v{V_XA}")]
        P += [o("v_and_b32 v2, 15, v0"),
              o("v_and_b32 v3, 3, v2"), o("v_bfe_u32 v4, v2, 2, 1"), o("v_bfe_u32 v5, v2, 3, 1"),
              o("v_lshlrev_b32 v4, 3, v4"), o("v_lshlrev_b32 v5, 2, v5"), o("v_or_b32 v3, v3, v4"), o("v_or_b32 v3, v3, v5"),
              o("v_lshrrev_b32 v4, 3, v3"), o("v_lshrrev_b32 v5, 5, v0"),
              o("v_and_b32 v6, 1, v3"), o("v_lshlrev_b32 v6, 4, v6"), o("v_mov_b32 v7, 0x3f80"), o("v_lshlrev_b32 v7, v6, v7"), o("v_mov_b32 v8, 0"),
              G([o("v_cmp_eq_u32 vcc, v4, v5"), o("v_nop"), o("v_nop"), o("v_cndmask_b32 v7, v8, v7, vcc")]),
              o("v_bfe_u32 v6, v3, 1, 2"), o("v_bfe_u32 v9, v0, 4, 1")]
        for d in range(4):
            P += [G([o(f"v_cmp_eq_u32 vcc, {d}, v6"), o("v_nop"), o("v_nop"), o(f"v_cndmask_b32 v{V_PERM+d}, v8, v7, vcc")])]
        P += [G([o("v_cmp_eq_u32 vcc, 1, v9"), o("v_nop"), o("v_nop")] + [o(f"v_cndmask_b32 v{V_PERM+4+d}, v8, v{V_PERM+d}, vcc") for d in range(4)] +
                [o(f"v_cndmask_b32 v{V_PERM+d}, v{V_PERM+d}, v8, vcc") for d in range(4)])]
        L = []
        L += [o("v_mov_b32 v4, 0"), o(f"s_lshl_b32 s{T0}, s{S_LID}, 7"), o(f"s_add_u32 s{T0}, s{T0}, {WS_FLAG}"),
              vm(f"buffer_store_dword v4, v{V_ONE0}, s[{SR_WS}:{SR_WS+3}], s{T0} offen sc1", "flinit")]
        L += self.h_srd(S_J)
        if self.opts.get("pf", 1):
            L += [o(f"s_and_b32 s{T0}, s{S_MT}, 7"), o(f"s_mul_i32 s{T0}, s{T0}, 36"), o(f"s_mul_i32 s{T1}, s{S_W}, 9"), o(f"s_add_u32 s{T0}, s{T0}, s{T1}"),
                  o(f"v_add_u32 v2, s{T0}, v0"), o(f"v_mov_b32 v4, {OOB:#x}"),
                  o(f"s_mov_b32 s{T1}, {(2**32+8)//9}"), o(f"v_mul_hi_u32 v5, v2, s{T1}"), o("v_mul_u32_u24 v6, 9, v5"), o("v_sub_u32 v6, v2, v6"),
                  o(f"v_add_u32 v5, s{T7}, v5"), o(f"v_mul_u32_u24 v5, 1152, v5"), o("v_lshlrev_b32 v6, 7, v6"), o("v_add_u32 v5, v5, v6"),
                  o(f"v_mul_u32_u24 v3, 9216, v2"),
                  o("v_cmp_gt_u32 vcc, 9, v0"), o("s_nop 1"), o("v_cndmask_b32 v3, v4, v3, vcc"), o("v_cndmask_b32 v5, v4, v5, vcc"),
                  vm(f"buffer_load_dword v{V_PF}, v5, s[{SR_HZ}:{SR_HZ+3}], 0 offen", "pf")]
            L += [o(f"s_cmp_lt_u32 s{S_J}, 2"), o("s_cbranch_scc0 L_nopf2"),
                  o(f"s_mov_b32 s{T0}, {7*32*1152}"),
                  o(f"v_add_u32 v6, s{T0}, v5"), o("v_cmp_gt_u32 vcc, 9, v0"), o("s_and_saveexec_b64 s[82:83], vcc"),
                  o(f"global_load_dword v{V_PF}, v6, s[24:25]"),
                  o("s_mov_b64 exec, s[82:83]"), raw("L_nopf2:")]
            for sig in range(self.opts.get("npf", 4)):
                mat, kh = (sig // 2) % 2, sig % 2
                assert sig < 4
                rs = SR_WG if mat == 0 else SR_WU
                L += [o(f"s_add_u32 s{T6}, s{S_A}, {kh*288*9216}"),
                      vm(f"buffer_load_dword v{V_PF}, v3, s[{rs}:{rs+3}], s{T6} offen", "pf")]
        if self.opts.get("tlb", 0):
            st = self.opts.get("tlb", 0)
            n = (48 << 20) >> st
            L += [o(f"v_lshlrev_b32 v2, {st}, v0"), o(f"v_mov_b32 v4, {OOB:#x}")]
            for k in range(-(-n // 64)):
                L += [o(f"s_mov_b32 s{T0}, {k*64 << st}"), vm(f"buffer_load_dword v{V_PF}, v2, s[{SR_WS}:{SR_WS+3}], s{T0} offen", "pf")]
            L += [o("v_lshlrev_b32 v2, 16, v0"), vm(f"buffer_load_dword v{V_PF}, v2, s[{SR_OUT}:{SR_OUT+3}], 0 offen", "pf")]
        if self.opts.get('bearly'):
            L += [o(f"s_lshl_b32 s{S_PF}, s{S_LID}, 2"), o(f"s_add_u32 s{S_PF}, s{S_PF}, s{S_W}"), o(f"s_mul_i32 s{S_PF}, s{S_PF}, 41"),
                   o(f"v_add_u32 v2, s{S_PF}, v0"), o("v_lshlrev_b32 v2, 7, v2"), o("v_cmp_gt_u32 vcc, 41, v0"), o("s_nop 1"),
                   o(f"v_cndmask_b32 v2, v{V_ONE0}, v2, vcc"),
                   vm(f"buffer_load_dword v{V_PF}, v2, s[{SR_WG}:{SR_WG+3}], 0 offen", "pf"),
                   vm(f"buffer_load_dword v{V_PF}, v2, s[{SR_WU}:{SR_WU+3}], 0 offen", "pf")]
        post = L
        for n, i in enumerate(P):
            if not isinstance(i, G) and i.t.startswith("v_cmp_eq_u32 vcc, 0, v2"):
                P[n:n+4] = [G(P[n:n+4])]
                break
        out = HEAD
        flatx = []
        if self.opts.get("drot"):
            out += [o(f"s_and_b32 s100, s{S_J}, 3"), o(f"s_mul_i32 s100, s100, {self.opts.get('rotm', 9)}"), o("s_lshr_b32 s100, s100, 2")]
            out += [o("s_mov_b32 s99, s100")]
            for p in range(9):
                pre_ = [o("s_lshl_b32 s100, s99, 7"), o("s_lshl_b32 s101, s99, 12"), o(f"s_add_u32 s101, s101, s{S_LX}"),
                        o("s_add_u32 s99, s99, 1"), o("s_cmp_eq_u32 s99, 9"), o("s_cselect_b32 s99, 0, s99")]
                for rho in range(4):
                    g = (pre_ if rho == 0 else []) + [o(f"s_add_u32 m0, s101, {rho*1024}"), o("s_nop 0"),
                         vm(f"buffer_load_dwordx4 v{240+rho}, s[{SR_X}:{SR_X+3}], s100 offen lds", ("x", 8 if p == 8 else ("p", p)))]
                    flatx.append(g)
        for kap in range(9):
            if self.opts.get("drot"): break
            xl = self.x_line(kap)
            flatx += [xl[3*r:3*r+3] for r in range(4)]
        npre = len(P); pi = 0
        first = self.opts.get("xfree", 10)
        for n, g in enumerate(flatx):
            out += g
            if n >= first:
                take = -(-(npre - pi) // (36 - n))
                for it in P[pi:pi + take]: out += (list(it) if isinstance(it, G) else [it])
                pi += take
        out += self.stamp("xiss")
        L = out + post
        return L

    def tr_bases(self):
        L = []
        L += [o("v_lshrrev_b32 v16, 5, v0"), o("v_lshlrev_b32 v16, 10, v16"),
              o("v_bfe_u32 v17, v0, 2, 2"), o("v_lshlrev_b32 v17, 7, v17"), o("v_add_u32 v16, v16, v17"),
              o("v_bfe_u32 v17, v0, 3, 1"), o("v_lshlrev_b32 v17, 6, v17"), o("v_add_u32 v16, v16, v17"),
              o("v_bfe_u32 v17, v0, 4, 1"), o("v_lshlrev_b32 v17, 5, v17"), o("v_add_u32 v16, v16, v17"),
              o("v_and_b32 v17, 3, v0"), o("v_lshlrev_b32 v17, 3, v17"), o(f"v_add_u32 v{V_RA}, v16, v17")]
        for s in range(1, 4): L += [o(f"v_add_u32 v{V_RA+s}, {s*SLOT}, v{V_RA}")]
        for s in range(4): L += [o(f"v_xor_b32 v{V_RB+s}, 64, v{V_RA+s}")]
        return L

    def idmap(self):
        cfg = self.opts.get("cfg", 0)
        if cfg == 0:
            return [o(f"s_and_b32 s{S_J}, s2, 3"), o(f"s_lshl_b32 s{S_J}, s{S_J}, 2"),
              o(f"s_bfe_u32 s{T0}, s2, 0x20003"), o(f"s_or_b32 s{S_J}, s{S_J}, s{T0}"),
              o(f"s_bfe_u32 s{S_MT}, s2, 0x10002"), o(f"s_lshl_b32 s{S_MT}, s{S_MT}, 3"),
              o(f"s_lshr_b32 s{T0}, s2, 5"), o(f"s_or_b32 s{S_MT}, s{S_MT}, s{T0}")]
        if cfg == 1:
            return [o(f"s_and_b32 s{S_MT}, s2, 7"), o(f"s_lshl_b32 s{S_MT}, s{S_MT}, 1"), o(f"s_bfe_u32 s{T0}, s2, 0x10003"),
                    o(f"s_or_b32 s{S_MT}, s{S_MT}, s{T0}"), o(f"s_lshr_b32 s{S_J}, s2, 4")]
        if cfg == 3:
            return [o(f"s_and_b32 s{S_J}, s2, 7"), o(f"s_lshl_b32 s{S_J}, s{S_J}, 1"), o(f"s_bfe_u32 s{T0}, s2, 0x10003"),
                    o(f"s_or_b32 s{S_J}, s{S_J}, s{T0}"), o(f"s_lshr_b32 s{S_MT}, s2, 4")]
        if cfg == 2:
            return [o(f"s_and_b32 s{S_J}, s2, 1"), o(f"s_lshl_b32 s{S_J}, s{S_J}, 3"),
              o(f"s_bfe_u32 s{T0}, s2, 0x30003"), o(f"s_or_b32 s{S_J}, s{S_J}, s{T0}"),
              o(f"s_bfe_u32 s{S_MT}, s2, 0x20001"), o(f"s_lshl_b32 s{S_MT}, s{S_MT}, 2"),
              o(f"s_lshr_b32 s{T0}, s2, 6"), o(f"s_or_b32 s{S_MT}, s{S_MT}, s{T0}")]

    def h_srd(self, zreg):
        return [o(f"s_cmp_lt_u32 s{zreg}, 9"),
                o(f"s_cselect_b32 s{SR_HZ}, s22, s24"), o(f"s_cselect_b32 s{SR_HZ+1}, s23, s25"), o(f"s_cselect_b32 s{T7}, 0, 9"),
                o(f"s_and_b32 s{SR_HZ+1}, s{SR_HZ+1}, 0xffff"), o(f"s_mov_b32 s{SR_HZ+2}, {D*D*2}"), o(f"s_mov_b32 s{SR_HZ+3}, 0x00020000"),
                o(f"s_sub_u32 s{T7}, s{zreg}, s{T7}"), o(f"s_lshl_b32 s{T7}, s{T7}, 5")]

    def h_dma(self, zreg, slot, tag):
        L = self.h_srd(zreg)
        L += [o(f"s_lshl_b32 s{T1}, s{S_W}, 3"), o(f"s_add_u32 s{T0}, s{T7}, s{T1}"),
             o("v_lshrrev_b32 v240, 3, v0"), o("v_and_b32 v241, 7, v0"), o("v_lshrrev_b32 v242, 1, v240"), o("v_xor_b32 v241, v241, v242"),
             o(f"s_and_b32 s{T1}, s{S_W}, 1"), o(f"s_lshl_b32 s{T1}, s{T1}, 2"), o(f"v_xor_b32 v241, s{T1}, v241"),
             o("v_lshlrev_b32 v241, 4, v241"),
             o(f"v_add_u32 v240, s{T0}, v240"), o(f"s_movk_i32 s{T1}, 1152"), o(f"v_mad_u32_u24 v240, v240, s{T1}, v241"),
             o(f"s_lshl_b32 s{T1}, s{S_W}, 10"), o(f"s_add_u32 s{T1}, s{T1}, {slot*SLOT}")]
        for kap in range(9):
            L += [o(f"s_add_u32 m0, s{T1}, {4*kap*1024 - 128*kap}"), o("s_nop 0"),
                  vm(f"buffer_load_dwordx4 v240, s[{SR_HZ}:{SR_HZ+3}], 0 offen offset:{128*kap} lds", tag)]
        return L

    def h_special(self, zreg, slot, sfx):
        return [o(f"s_cmp_eq_u32 s{zreg}, 9"), o(f"s_cbranch_scc0 L_h_nosp{sfx}"), o(f"s_cmp_eq_u32 s{S_W}, 0"), o(f"s_cbranch_scc0 L_h_nosp{sfx}"),
                o("v_mov_b32 v16, 0xbf803f80"), o("v_mov_b32 v17, v16"), o("v_mov_b32 v18, v16"), o("v_mov_b32 v19, v16"),
                o("v_lshrrev_b32 v240, 3, v0"), o("v_lshlrev_b32 v240, 12, v240"), o("v_and_b32 v241, 7, v0"), o("v_lshlrev_b32 v241, 4, v241"),
                o("v_add_u32 v240, v240, v241"), o(f"v_add_u32 v240, {slot*SLOT}, v240"), o(f"v_add_u32 v241, {slot*SLOT}, v241"),
                o("ds_write_b128 v240, v[16:19]"), o("ds_write_b128 v241, v[16:19] offset:32768"),
                o("s_waitcnt lgkmcnt(0)"), raw(f"L_h_nosp{sfx}:")]

    def x_line(self, kap):
        L = []
        for rho in range(4):
            L += [o(f"s_add_u32 m0, s{S_LX}, {(4*kap+rho)*1024 - 128*kap}"), o("s_nop 0"),
                  vm(f"buffer_load_dwordx4 v{240+rho}, s[{SR_X}:{SR_X+3}], 0 offen offset:{128*kap} lds", ("x", kap))]
        return L
    def x_dma_variants(self):
        L = []
        for kap in range(self.opts.get("xpre", 3)): L += self.x_line(kap)
        return L
    def x_dma_variants_old(self):
        if not self.opts.get("rot", 0):
            L = []
            for kap in range(9):
                for rho in range(4):
                    L += [o(f"s_add_u32 m0, s{S_LX}, {(4*kap+rho)*1024 - 128*kap}"), o("s_nop 0"),
                          vm(f"buffer_load_dwordx4 v{240+rho}, s[{SR_X}:{SR_X+3}], 0 offen offset:{128*kap} lds", ("x", kap))]
            return L
        L = [o(f"s_and_b32 s{T0}, s{S_J}, 3")]
        for v in range(1, 4): L += [o(f"s_cmp_eq_u32 s{T0}, {v}"), o(f"s_cbranch_scc1 L_xd{v}")]
        for v in range(4):
            if v: L += [raw(f"L_xd{v}:")]
            for pos in range(9):
                kap = (self.K0[v] + pos) % 9
                for rho in range(4):
                    t = f"buffer_load_dwordx4 v{240+rho}, s[{SR_X}:{SR_X+3}], 0 offen offset:{128*kap} lds"
                    L += [o(f"s_add_u32 m0, s{S_LX}, {(4*kap+rho)*1024 - 128*kap}"), o("s_nop 0"),
                          (vm(t, ("x", pos)) if v == 3 else o(t))]
            if v < 3: L += [o("s_branch L_xdj")]
        L += [raw("L_xdj:")]
        return L
    K0 = [0, 2, 4, 7]

    def ln_stats(self):
        L = []
        SA = 16
        for i in range(8): L += [o(f"v_mov_b32 v{SA+i}, 0")]
        L += [o(f"s_mov_b32 s{T5}, 0x3f803f80")]
        def reads(kap):
            return [wvm(("x", kap))] + [ds(f"ds_read_b128 v[{RX+4*ks}:{RX+4*ks+3}], v{V_XA+(ks&3)} offset:{(ks//4)*4096}", ("xr", ks)) for ks in range(4*kap, 4*kap+4)]
        if self.opts.get("drot"):
            L += [wvm(("x", 8))]
            def rd2(kap): return [ds(f"ds_read_b128 v[{RX+4*ks}:{RX+4*ks+3}], v{V_XA+(ks&3)} offset:{(ks//4)*4096}", ("xr", ks)) for ks in range(4*kap, 4*kap+4)]
            L += rd2(0) + rd2(1)
            if self.opts.get("msum", 1):
                L += [o("v_mov_b32 v48, 0x3f803f80"), o("v_mov_b32 v49, v48"), o("v_mov_b32 v50, v48"), o("v_mov_b32 v51, v48")]
            first = True
            for kap in range(9):
                if kap + 2 < 9: L += rd2(kap + 2)
                if not self.opts.get("msum", 1):
                    L += self.stats_line(kap); continue
                for n, ks in enumerate(range(4*kap, 4*kap + 4)):
                    L += [wlg(("xr", ks))]
                    usem = (n % 2 == 0) or self.opts.get("msum") == 2
                    if usem:
                        L += [mf32("v[32:47]", "v[48:51]", f"v[{RX+4*ks}:{RX+4*ks+3}]", "0" if first else "v[32:47]")]
                        first = False
                    for i in range(4):
                        r = RX + 4*ks + i
                        if not usem: L += [o(f"v_dot2_f32_bf16 v{SA+i}, v{r}, s{T5}, v{SA+i}")]
                        L += [o(f"v_dot2_f32_bf16 v{SA+4+i}, v{r}, v{r}, v{SA+4+i}")]
            return L
        L += reads(0)
        for kap in range(9):
            if kap + 1 < 9: L += reads(kap + 1)
            L += self.stats_line(kap)
        return L
    def stats_line(self, kap):
        L = []
        SA = 16
        for ks in range(4*kap, 4*kap + 4):
            L += [wlg(("xr", ks))]
            for i in range(4):
                r = RX + 4*ks + i
                if self.opts.get("dotc"):
                    L += [o(f"v_dot2c_f32_bf16 v{SA+i}, s{T5}, v{r}"), o(f"v_dot2c_f32_bf16 v{SA+4+i}, v{r}, v{r}")]
                else:
                    L += [o(f"v_dot2_f32_bf16 v{SA+i}, v{r}, s{T5}, v{SA+i}"),
                          o(f"v_dot2_f32_bf16 v{SA+4+i}, v{r}, v{r}, v{SA+4+i}")]
        return L

    def ln_stats_v(self, v, tracked, order):
        L = []
        SA = 16
        for i in range(8): L += [o(f"v_mov_b32 v{SA+i}, 0")]
        L += [o(f"s_mov_b32 s{T5}, 0x3f803f80")]
        def reads(pos):
            kap = order[pos]
            w = [wvmf(("x", pos))]
            return w + [o(f"ds_read_b128 v[{RX+4*ks}:{RX+4*ks+3}], v{V_XA+(ks&3)} offset:{(ks//4)*4096}") for ks in range(4*kap, 4*kap+4)]
        L += reads(0)
        L += self.stamp("x0")
        for pos in range(9):
            if pos == 4: L += self.stamp("x4")
            if pos + 1 < 9: L += reads(pos + 1)
            kap = order[pos]
            for n, ks in enumerate(range(4*kap, 4*kap + 4)):
                left = (3 - n) + (4 if pos + 1 < 9 else 0)
                L += [o(f"s_waitcnt lgkmcnt({left})")]
                for i in range(4):
                    r = RX + 4*ks + i
                    L += [o(f"v_dot2_f32_bf16 v{SA+i}, v{r}, s{T5}, v{SA+i}"),
                          o(f"v_dot2_f32_bf16 v{SA+4+i}, v{r}, v{r}, v{SA+4+i}")]
        return L

    def ln_stats_old(self):
        L = []
        SA = 16
        for i in range(8): L += [o(f"v_mov_b32 v{SA+i}, 0")]
        L += [o(f"s_mov_b32 s{T5}, 0x3f803f80")]
        def reads(kap):
            return [wvm(("x", kap))] + [ds(f"ds_read_b128 v[{RX+4*ks}:{RX+4*ks+3}], v{V_XA+(ks&3)} offset:{(ks//4)*4096}", ("xr", ks)) for ks in range(4*kap, 4*kap+4)]
        L += reads(0)
        for kap in range(9):
            if kap + 1 < 9: L += reads(kap + 1)
            for ks in range(4*kap, 4*kap + 4):
                L += [wlg(("xr", ks))]
                for i in range(4):
                    r = RX + 4*ks + i
                    L += [o(f"v_dot2_f32_bf16 v{SA+i}, v{r}, s{T5}, v{SA+i}"),
                          o(f"v_dot2_f32_bf16 v{SA+4+i}, v{r}, v{r}, v{SA+4+i}")]
        return L

    def ln_finish(self):
        SA = 16
        L = [o("s_nop 2"),
             o(f"v_add_f32 v{SA}, v{SA}, v{SA+1}"), o(f"v_add_f32 v{SA+2}, v{SA+2}, v{SA+3}"),
             o(f"v_add_f32 v{SA+4}, v{SA+4}, v{SA+5}"), o(f"v_add_f32 v{SA+6}, v{SA+6}, v{SA+7}"),
             o(f"v_add_f32 v24, v{SA}, v{SA+2}"), o(f"v_add_f32 v26, v{SA+4}, v{SA+6}"),
             o("v_mov_b32 v25, v24"), o("v_mov_b32 v27, v26"), o("s_nop 1"),
             o("v_permlane32_swap_b32 v24, v25"), o("v_permlane32_swap_b32 v26, v27"), o("s_nop 1"),
             o("v_add_f32 v24, v24, v25"), o("v_add_f32 v26, v26, v27")] + ([o("v_add_f32 v24, v24, v32")] if (self.opts.get("drot") and self.opts.get("msum", 1)) else []) + [
             o(f"s_mov_b32 s{T5}, {f2u(1.0/576):#x}"),
             o(f"v_mul_f32 v24, s{T5}, v24"), o(f"v_mul_f32 v26, s{T5}, v26"),
             o("v_fma_f32 v26, -v24, v24, v26"), o("v_max_f32 v26, 0, v26"),
             o("v_cvt_pk_bf16_f32 v24, v24, v26"),
             o("v_and_b32 v26, 0xffff0000, v24"), o("v_lshlrev_b32 v24, 16, v24"),
             o(f"v_xor_b32 v{V_NEGMU}, 0x80000000, v24")]
        for i in range(1, 16): L += [o(f"v_mov_b32 v{V_NEGMU+i}, v{V_NEGMU}")]
        L += [o(f"v_add_f32 v26, {f2u(1e-5):#x}, v26"),
              o("v_cvt_pk_bf16_f32 v26, v26, v26"), o("v_lshlrev_b32 v26, 16, v26"),
              o("v_sqrt_f32 v26, v26"), o("s_nop 0"),
              o("v_cvt_pk_bf16_f32 v26, v26, v26"), o("v_lshlrev_b32 v26, 16, v26"),
              o("v_rcp_f32 v27, v26"), o(f"v_mul_f32 v{V_D2}, v26, v26"),
              o(f"v_mul_f32 v{V_C0}, {f2u(C0):#x}, v27"), o("v_mul_f32 v28, v27, v27"), o("v_mul_f32 v28, v28, v27"),
              o(f"v_mul_f32 v{V_C1}, {f2u(C1):#x}, v28"),
              o("v_and_b32 v28, 31, v0"), o("v_lshlrev_b32 v28, 2, v28"), o(f"s_lshl_b32 s{T0}, s{S_W}, 12"), o(f"s_add_u32 s{T0}, s{T0}, {SPARE}"),
              o(f"v_add_u32 v28, s{T0}, v28"), ds("ds_write_b32 v28, v27", "rtab")]
        return L

    def seg_norm_h(self):
        M = []; frags = []
        def UBf(i):
            if i == 0: return 16
            if i % 2 == 0: return RX + 8*(i - 2)
            return (32, 48, 16)[((i - 1)//2) % 3]
        def nextuser(i):
            for k in range(i + 1, 18):
                if UBf(k) == UBf(i): return k
            return None
        posU = {}; posH = {}
        def U(i):
            b = UBf(i)
            M.append(dict(op=32, acc=f"v[{b}:{b+15}]", first=True, C=f"v[{V_NEGMU}:{V_NEGMU+15}]", A=f"v[{V_PERM}:{V_PERM+3}]", B=f"v[{RX+8*i}:{RX+8*i+3}]", need=-1))
            M.append(dict(op=32, acc=f"v[{b}:{b+15}]", first=False, A=f"v[{V_PERM+4}:{V_PERM+7}]", B=f"v[{RX+8*i+4}:{RX+8*i+7}]", need=-1))
            posU[i] = len(M) - 2
        def H(ks):
            f = len(frags); a = AF + 4*(f % NAF)
            frags.append(dict(reads=[f"ds_read_b128 a[{a}:{a+3}], v{V_XA+(ks&3)} offset:{(ks//4)*4096}"], use=len(M)))
            M.append(dict(op=32, acc=f"v[{V_HACC}:{V_HACC+15}]", first=(ks == 0), A=f"a[{AX+4*ks}:{AX+4*ks+3}]", B=f"a[{a}:{a+3}]", need=f))
            posH[ks] = len(M) - 1
        LAG = 5
        for i in range(18):
            U(i)
            if i >= LAG: H(2*(i-LAG)); H(2*(i-LAG)+1)
        for i in range(18 - LAG, 18): H(2*i); H(2*i+1)
        last = -1
        for m in M:
            if m["need"] < 0: m["need"] = last
            else: last = m["need"]
        g0 = frags[0]["use"] - 6
        M[g0].setdefault("before", []).extend([wvm("wz1")] + self.h_special(S_A, 2, "a") + [o("s_waitcnt lgkmcnt(0)"), o("s_barrier")])
        def setup(sl, head):
            sl.put(2, [o('s_nop 4')]); sl.put(3, [o('s_nop 4')])
            for i in range(18):
                b = UBf(i)
                ins = []
                for q in range(8):
                    t = 2 + 2*(i % 4) + (q % 2)
                    ins += [o(f"v_cvt_pk_bf16_f32 v{t}, v{b+2*q}, v{b+2*q+1}"), o(f"v_accvgpr_write_b32 a{AX+8*i+q}, v{t}")]
                start = posU[i] + 1 + 3
                end = min(posH[2*i] - 1, start + 11)
                if nextuser(i) is not None: end = min(end, posU[nextuser(i)])
                e = sl.stream(ins, start, end, spill=0)
                assert e < posH[2*i] - 0, (i, e, posH[2*i])
        return self.paced(M, frags, setup, 6)

    def h_epilogue(self, zreg, acc, rr, tb):
        L = []
        sg, f1, f2, f3 = tb + 8, tb + 9, tb + 10, tb + 11
        L += [G([o(f"s_cmp_lt_u32 s{zreg}, 9"), o(f"s_cselect_b32 s{S_ST0}, 1.0, -1.0")]), o(f"v_mov_b32 v{sg}, s{S_ST0}"),
              G([o(f"s_cmp_eq_u32 s{zreg}, 9"), o(f"s_cselect_b32 s{S_ST0}, 0, 99")]),
              G([o(f"v_and_b32 v{f1}, 31, v0"), o(f"v_cmp_eq_u32 vcc, s{S_ST0}, v{f1}"), o(f"v_mov_b32 v{f2}, 1.0"), o("v_nop"),
                 o(f"v_cndmask_b32 v{sg}, v{sg}, v{f2}, vcc")]),
              G([o(f"s_or_b32 s{S_ST0}, s{S_MT}, s{S_W}"), o(f"s_cmp_eq_u32 s{S_ST0}, 0"), o(f"s_cselect_b32 s{S_ST0}, 32, 0")]),
              G([o(f"v_cmp_gt_u32 vcc, s{S_ST0}, v0"), o(f"v_mov_b32 v{tb}, 0"), o(f"v_mov_b32 v{tb+1}, 1.0"),
                 o(f"v_cndmask_b32 v{f1}, v{sg}, v{tb+1}, vcc"), o(f"v_cndmask_b32 v{f2}, v{tb+1}, v{tb}, vcc"), o(f"v_cndmask_b32 v{f3}, v{sg}, v{tb}, vcc")])]
        for r in range(16): L += [o(f"v_mul_f32 v{acc+r}, v{acc+r}, v{rr+r}")]
        L += [o(f"v_add_f32 v{tb+12}, v{acc+8}, v{acc+12}"), o(f"v_sub_f32 v{tb+13}, v{acc+8}, v{acc+12}"), o(f"v_mov_b32 v{tb+14}, 0"),
              G([o(f"v_cmp_lt_f32 vcc, 0, v{sg}"), o("v_nop"), o("v_nop"),
                 o(f"v_cndmask_b32 v{tb+12}, v{tb+14}, v{tb+12}, vcc"), o(f"v_cndmask_b32 v{tb+13}, v{tb+13}, v{tb+14}, vcc")])]
        for ii in range(4):
            s1, s3 = (f1, f3) if ii == 0 else (sg, sg)
            v0, v1, v2, v3 = acc + ii, acc + 4 + ii, acc + 8 + ii, acc + 12 + ii
            if ii == 0: L += [o(f"v_mul_f32 v{v2}, v{v2}, v{f2}")]
            L += [o(f"v_fma_f32 v{v0}, v{v3}, v{s3}, v{v0}"),
                  o(f"v_fma_f32 v{v1}, v{v1}, v{s1}, v{v2}"),
                  o(f"v_add_f32 v{tb+ii}, v{v0}, v{v1}"), o(f"v_sub_f32 v{tb+4+ii}, v{v0}, v{v1}")]
        L += [o(f"v_cvt_pk_bf16_f32 v{rr}, v{tb}, v{tb+1}"), o(f"v_cvt_pk_bf16_f32 v{rr+1}, v{tb+2}, v{tb+3}"),
              o(f"v_cvt_pk_bf16_f32 v{rr+2}, v{tb+4}, v{tb+5}"), o(f"v_cvt_pk_bf16_f32 v{rr+3}, v{tb+6}, v{tb+7}"),
              G([o("v_nop"), o("v_nop"), o(f"v_permlane32_swap_b32 v{rr}, v{rr+2}"), o(f"v_permlane32_swap_b32 v{rr+1}, v{rr+3}")]),
              o(f"v_lshrrev_b32 v{rr+4}, 5, v0"), o(f"v_mul_u32_u24 v{rr+4}, {ZF_TYPE}, v{rr+4}"),
              o(f"v_and_b32 v{rr+5}, 31, v0"), o(f"v_lshlrev_b32 v{rr+5}, 4, v{rr+5}"), o(f"v_add_u32 v{rr+4}, v{rr+4}, v{rr+5}"),
              G([o(f"s_mul_i32 s{S_ST0}, s{zreg}, {ZF_STRIDE}"), o(f"s_lshl_b32 s{S_ST1}, s{S_MT}, 2"), o(f"s_add_u32 s{S_ST1}, s{S_ST1}, s{S_W}")]),
              G([o(f"s_lshl_b32 s{S_ST1}, s{S_ST1}, 9"), o(f"s_add_u32 s{S_ST1}, s{S_ST1}, s{S_ST0}"), o(f"s_add_u32 s{S_ST1}, s{S_ST1}, {WS_ZF}")]),
              vm(f"buffer_store_dwordx4 v[{rr}:{rr+3}], v{rr+4}, s[{SR_WS}:{SR_WS+3}], s{S_ST1} offen sc1", "zst"),
              o(f"v_mov_b32 v{tb+14}, v{tb+12}"),
              G([o("v_nop"), o("v_nop"), o(f"v_permlane32_swap_b32 v{tb+14}, v{tb+13}")]),
              o(f"v_mov_b32 v{rr+9}, 0"), o(f"v_mov_b32 v{rr+10}, 0"), o(f"v_mov_b32 v{rr+11}, 0"),
              o(f"v_cvt_pk_bf16_f32 v{rr+8}, v{tb+14}, v{rr+9}"),
              G([o(f"s_or_b32 s{S_ST1}, s{S_MT}, s{S_W}"), o(f"s_cmp_eq_u32 s{S_ST1}, 0"), o(f"s_cselect_b32 s{S_C}, 0, {OOB:#x}")]),
              o(f"v_add_u32 v{rr+5}, s{S_C}, v{rr+4}"),
              o(f"s_add_u32 s{S_ST0}, s{S_ST0}, {WS_ZF + 32*1024}"),
              vm(f"buffer_store_dwordx4 v[{rr+8}:{rr+11}], v{rr+5}, s[{SR_WS}:{SR_WS+3}], s{S_ST0} offen sc1", "zst"),
              G([o(f"v_mov_b32 v{rr+12}, 0"), o(f"v_mov_b32 v{rr+13}, 0"), o(f"v_mov_b32 v{rr+14}, 0"), o(f"v_mov_b32 v{rr+15}, 0")])]
        for k in (512, 1024, 1536):
            L += [vm(f"buffer_store_dwordx4 v[{rr+12}:{rr+15}], v{rr+5}, s[{SR_WS}:{SR_WS+3}], s{S_ST0} offen offset:{k} sc1", "zst")]
        return L

    def rr_reads(self, rr, tmp, n=1):
        return [o(f"v_lshrrev_b32 v{tmp}, 5, v0"), o(f"v_lshlrev_b32 v{tmp}, 4, v{tmp}"), o(f"s_lshl_b32 s{S_C}, s{S_W}, 12"),
                o(f"s_add_u32 s{S_C}, s{S_C}, {SPARE}"), o(f"v_add_u32 v{tmp}, s{S_C}, v{tmp}")] + \
               [ds(f"ds_read_b128 v[{rr+4*q}:{rr+4*q+3}], v{tmp} offset:{32*q}", ("rr", n)) for q in range(4)] + [wlg(("rr", n))]

    def h2_block(self):
        L = [o(f"s_cmp_lt_u32 s{S_J}, 2"), o("s_cbranch_scc0 L_noz2b")]
        B = [o(f"v_add_u32 v{64+i}, {SLOT}, v{V_XA+i}") for i in range(4)]
        B += [o(f"s_waitcnt vmcnt({18 if self.opts.get('bearly') else 20})"), o("s_barrier")]
        def rd(ks):
            a_ = AF + 4*(ks % NAF)
            return o(f"ds_read_b128 a[{a_}:{a_+3}], v{64+(ks&3)} offset:{(ks//4)*4096}")
        for ks in range(6): B += [rd(ks)]
        for k in range(36):
            a_ = AF + 4*(k % NAF)
            n_out = min(5, 35 - k)
            B += [o(f"s_waitcnt lgkmcnt({n_out})"), mf32("v[128:143]", f"a[{AX+4*k}:{AX+4*k+3}]", f"a[{a_}:{a_+3}]", "0" if k == 0 else "v[128:143]")]
            if k + 6 < 36: B += [rd(k + 6)]
        B += [raw("L_noz2b:"),
              o(f"s_cmp_lt_u32 s{S_J}, 2"), o(f"s_cselect_b32 s{S_B}, s{S_B}, 0x4000")]
        return L + B

    def dma_p1(self, sig, slot, tA=226, tB=227):
        groups = []
        if sig < 16:
            u, mat, kh = sig // 4, (sig // 2) % 2, sig % 2
            rs = SR_WG if mat == 0 else SR_WU
            for grp, ts in enumerate([[0,1,2,3],[0,1,2,3],[0]]):
                g = [o(f"s_add_u32 m0, s{S_L9}, {slot*SLOT + grp*4096}"),
                     o(f"s_add_u32 s{S_D0}, s{S_UB+u}, {(kh*288 + grp*32)*9216}")]
                for t in ts:
                    groups.append(g + [vm(f"buffer_load_dwordx4 v{V_DM+t}, s[{rs}:{rs+3}], s{S_D0} offen offset:{t*1024} lds", ("st", sig))])
                    g = []
        else:
            rs = SR_WG if sig == 16 else SR_WU
            for grp, ts in enumerate([[0,1,2,3],[0,1,2,3],[0]]):
                g = []
                if sig == 16 and grp == 0:
                    groups.append([o(f"v_lshrrev_b32 v{tA}, 2, v0"), o(f"v_and_b32 v{tB}, 3, v0"), o(f"v_lshlrev_b32 v{tB}, 4, v{tB}")])
                    groups.append([o(f"v_mul_u32_u24 v{tA}, 9216, v{tA}"), o(f"v_add_u32 v{V_DM}, v{tA}, v{tB}")] +
                                  [o(f"v_add_u32 v{V_DM+t}, {t*(16*9216-1024)}, v{V_DM}") for t in range(1, 4)])
                g += [o(f"s_add_u32 m0, s{S_L9}, {slot*SLOT + grp*4096}"),
                      o(f"s_add_u32 s{S_D0}, s{S_UB+4}, {grp*64*9216}")]
                for t in ts:
                    groups.append(g + [vm(f"buffer_load_dwordx4 v{V_DM+t}, s[{rs}:{rs+3}], s{S_D0} offen offset:{t*1024} lds", ("st", sig))])
                    g = []
        return groups

    def dma_cs(self, mat, slot, tag, nop=False):
        rs = SR_CS if mat == 0 else SR_SS
        groups = []
        for l in range(2):
            for rho in range(4):
                groups.append([o(f"s_add_u32 m0, s{S_A}, {slot*SLOT + (4*l+rho)*1024 - 128*l}")] + ([o("s_nop 0")] if nop else []) +
                              [vm(f"buffer_load_dwordx4 v{V_SD+rho}, s[{rs}:{rs+3}], 0 offen offset:{128*l} lds", tag)])
        return groups
    def dma_cx(self, mat, tag):
        rs = SR_CS if mat == 0 else SR_SS
        return [[o(f"s_add_u32 m0, s{S_B}, {SPARE + mat*4096}"), o("s_nop 0"),
                 vm(f"buffer_load_dwordx4 v{V_SE}, s[{rs}:{rs+3}], 0 offen lds", tag)]]

    def dma_p2(self, st, slot, first128, tA, tB, tC):
        u, who = st
        groups = []
        if u < 4:
            tbl = S_N0 if who == "own" else S_N1
            if first128:
                groups.append([o(f"v_lshrrev_b32 v{tA}, 3, v0"), o(f"v_and_b32 v{tB}, 7, v0"), o(f"v_bfe_u32 v{tC}, v0, 4, 1")])
                groups.append([o(f"v_lshlrev_b32 v{tC}, 2, v{tC}"), o(f"v_xor_b32 v{tB}, v{tB}, v{tC}"), o(f"v_lshlrev_b32 v{tB}, 4, v{tB}")])
                groups.append([o(f"s_mul_i32 s{S_WD}, s{S_W}, {8*1152}")])
                groups.append([o(f"v_mul_u32_u24 v{tA}, 1152, v{tA}"), o(f"v_add_u32 v{V_DM}, v{tA}, v{tB}"), o(f"v_add_u32 v{V_DM}, s{S_WD}, v{V_DM}")])
                groups.append([o(f"s_lshl_b32 s{S_WD}, s{S_W}, 10")])
            for ip in range(9):
                groups.append([o(f"s_add_u32 m0, s{S_WD}, {slot*SLOT + ip*4096}"),
                               o(f"s_add_u32 s{S_D0}, s{tbl+ip}, s{S_CU+u}"),
                               vm(f"buffer_load_dwordx4 v{V_DM}, s[{SR_WD}:{SR_WD+3}], s{S_D0} offen lds", ("s2", st))])
        else:
            groups.append([o(f"v_lshrrev_b32 v{tA}, 2, v0"), o(f"v_and_b32 v{tB}, 3, v0"), o(f"v_lshlrev_b32 v{tB}, 4, v{tB}")])
            groups.append([o(f"v_mul_u32_u24 v{tA}, 1152, v{tA}"), o(f"v_add_u32 v{V_DM+1}, v{tA}, v{tB}")])
            for ip in range(9):
                ca, cb = 2*ip, 2*ip + 1
                ra = (S_N0 + ca) if ca < 9 else (S_N1 + ca - 9)
                rb = (S_N0 + cb) if cb < 9 else (S_N1 + cb - 9)
                groups.append([o(f"s_cmp_lt_u32 s{S_W}, 2"), o(f"s_cselect_b32 s{S_D0}, s{ra}, s{rb}"),
                               o(f"s_add_u32 s{S_D0}, s{S_D0}, s{S_CU+4}"), o(f"s_add_u32 s{S_D0}, s{S_D0}, s{S_C}"),
                               o(f"s_add_u32 m0, s{S_WD}, {slot*SLOT + ip*4096}")])
                groups.append([vm(f"buffer_load_dwordx4 v{V_DM+1}, s[{SR_WD}:{SR_WD+3}], s{S_D0} offen lds", ("s2", st))])
        return groups

    def geglu(self, c, toff=0):
        if c < 8: g, u = GA[(c//2) % 2][c % 2], UA[(c//2) % 2][c % 2]
        else: g, u = GA[0][0], UA[0][0]
        L = []
        for p in range(8):
            r0, r1 = 2*p, 2*p + 1
            b = TMP + 4*(p % 2) + toff
            xa, xb, ya, yb = b, b+1, b+2, b+3
            L += [o(f"v_mul_f32 v{xa}, v{g+r0}, v{g+r0}"), o(f"v_mul_f32 v{xb}, v{g+r1}, v{g+r1}"),
                  o(f"v_fma_f32 v{xa}, v{xa}, v{V_C1}, v{V_C0}"), o(f"v_fma_f32 v{xb}, v{xb}, v{V_C1}, v{V_C0}"),
                  o(f"v_mul_f32 v{xa}, v{g+r0}, v{xa}"), o(f"v_mul_f32 v{xb}, v{g+r1}, v{xb}"),
                  o(f"v_exp_f32 v{xa}, v{xa}"), o(f"v_exp_f32 v{xb}, v{xb}"),
                  o(f"v_mul_f32 v{ya}, v{g+r0}, v{u+r0}"), o(f"v_mul_f32 v{yb}, v{g+r1}, v{u+r1}"),
                  o(f"v_fma_f32 v{xa}, v{xa}, v{V_D2}, v{V_D2}"), o(f"v_fma_f32 v{xb}, v{xb}, v{V_D2}, v{V_D2}"),
                  o(f"v_rcp_f32 v{xa}, v{xa}"), o(f"v_rcp_f32 v{xb}, v{xb}"),
                  o(f"v_mul_f32 v{ya}, v{ya}, v{xa}"), o(f"v_mul_f32 v{yb}, v{yb}, v{xb}"),
                  o(f"v_cvt_pk_bf16_f32 v{HF + 8*c + p}, v{ya}, v{yb}")]
        return L
    def geglu_sig(self, c, toff=0):
        g = GA[(c//2) % 2][c % 2] if c < 8 else GA[0][0]
        L = []
        for p in range(8):
            r0, r1 = 2*p, 2*p + 1
            b = TMP + 2*(p % 2) + toff
            xa, xb = b, b + 1
            L += [o(f"v_mul_f32 v{xa}, v{g+r0}, v{g+r0}"), o(f"v_mul_f32 v{xb}, v{g+r1}, v{g+r1}"),
                  o(f"v_fma_f32 v{xa}, v{xa}, v{V_C1}, v{V_C0}"), o(f"v_fma_f32 v{xb}, v{xb}, v{V_C1}, v{V_C0}"),
                  o(f"v_mul_f32 v{xa}, v{g+r0}, v{xa}"), o(f"v_mul_f32 v{xb}, v{g+r1}, v{xb}"),
                  o(f"v_exp_f32 v{xa}, v{xa}"), o(f"v_exp_f32 v{xb}, v{xb}"), o("v_nop") if False else None,
                  o(f"v_fma_f32 v{xa}, v{xa}, v{V_D2}, v{V_D2}"), o(f"v_fma_f32 v{xb}, v{xb}, v{V_D2}, v{V_D2}"),
                  o(f"v_rcp_f32 v{xa}, v{xa}"), o(f"v_rcp_f32 v{xb}, v{xb}"),
                  o(f"v_mul_f32 v{g+r0}, v{g+r0}, v{xa}"), o(f"v_mul_f32 v{g+r1}, v{g+r1}, v{xb}")]
        return [i for i in L if i is not None]
    def geglu_fin(self, c, toff=0):
        if c < 8: g, u = GA[(c//2) % 2][c % 2], UA[(c//2) % 2][c % 2]
        else: g, u = GA[0][0], UA[0][0]
        L = []
        for p in range(8):
            r0, r1 = 2*p, 2*p + 1
            L += [o(f"v_mul_f32 v{g+r0}, v{g+r0}, v{u+r0}"), o(f"v_mul_f32 v{g+r1}, v{g+r1}, v{u+r1}"),
                  o(f"v_cvt_pk_bf16_f32 v{HF + 8*c + p}, v{g+r0}, v{g+r1}")]
        return L
    def hstore(self, c):
        st = S_ST0 + (c % 2)
        return [o(f"s_add_u32 s{st}, s{S_HB}, {2*c*1024}")] + self.dstore(
                [f"buffer_store_dwordx4 v[{HF+8*c}:{HF+8*c+3}], v{V_L16}, s[{SR_WS}:{SR_WS+3}], s{st} offen",
                 f"buffer_store_dwordx4 v[{HF+8*c+4}:{HF+8*c+7}], v{V_L16}, s[{SR_WS}:{SR_WS+3}], s{st} offen offset:1024"], "hst", True)

    def s_setup(self):
        a, b, c = V_SX, V_YC[0], V_YC[1]
        L = []
        L += [G([o(f"s_lshr_b32 s{S_TAU}, s{S_J}, 3"), o(f"s_lshl_b32 s{S_A}, s{S_W}, 13"), o(f"s_lshl_b32 s{S_B}, s{S_W}, 10")]),
              G([o(f"s_mul_i32 s{S_ZB}, s{S_TAU}, {ZF_TYPE}"), o(f"s_add_u32 s{S_ZB}, s{S_ZB}, s{S_A}"), o(f"s_add_u32 s{S_ZB}, s{S_ZB}, {WS_ZF}")])]
        L += [o(f"v_lshrrev_b32 v{a}, 3, v0"), o(f"v_and_b32 v{b}, 7, v0"), o(f"v_lshrrev_b32 v{c}, 1, v{a}"), o(f"v_xor_b32 v{b}, v{b}, v{c}"),
              o(f"v_lshlrev_b32 v{b}, 4, v{b}"), o(f"v_xor_b32 v{c}, 64, v{b}"),
              G([o(f"s_lshl_b32 s{S_C}, s{S_MT}, 5"), o(f"s_add_u32 s{S_C}, s{S_C}, s{S_TAU}")]),
              o(f"v_lshlrev_b32 v{a}, 1, v{a}"), o(f"v_add_u32 v{a}, s{S_C}, v{a}"),
              o(f"s_lshl_b32 s{S_C}, s{S_W}, 8"),
              o(f"v_add_u32 v{b}, s{S_C}, v{b}"), o(f"v_add_u32 v{c}, s{S_C}, v{c}"),
              o(f"v_lshlrev_b32 v{V_SD}, 12, v{a}"), o(f"v_add_u32 v{V_SD+1}, {16*4096}, v{V_SD}"),
              o(f"v_sub_u32 v{a}, 1024, v{a}"), o(f"v_lshlrev_b32 v{V_SD+2}, 12, v{a}"), o(f"v_subrev_u32 v{V_SD+3}, {16*4096}, v{V_SD+2}"),
              o(f"v_add_u32 v{V_SD}, v{V_SD}, v{b}"), o(f"v_add_u32 v{V_SD+1}, v{V_SD+1}, v{c}"),
              o(f"v_add_u32 v{V_SD+2}, v{V_SD+2}, v{b}"), o(f"v_add_u32 v{V_SD+3}, v{V_SD+3}, v{c}")]
        return L
    def s_setup_e(self, t0, t1):
        return [G([o(f"s_cmp_eq_u32 s{S_W}, 1"), o(f"s_cselect_b32 s{S_C}, 1, 0")]),
                o(f"v_mov_b32 v{V_SE}, v{V_SD}"),
                G([o(f"v_mov_b32 v{t0}, s{S_W}"), o(f"v_cmp_eq_u32 vcc, 1, v{t0}"), o("v_nop"), o("v_nop"), o(f"v_cndmask_b32 v{V_SE}, v{V_SE}, v{V_SD+1}, vcc")]),
                G([o(f"v_cmp_eq_u32 vcc, 2, v{t0}"), o("v_nop"), o("v_nop"), o(f"v_cndmask_b32 v{V_SE}, v{V_SE}, v{V_SD+2}, vcc")]),
                G([o(f"v_cmp_eq_u32 vcc, 3, v{t0}"), o("v_nop"), o("v_nop"), o(f"v_cndmask_b32 v{V_SE}, v{V_SE}, v{V_SD+3}, vcc")]),
                G([o(f"s_lshl_b32 s{S_C}, s{S_W}, 8"), o(f"s_sub_u32 s{S_C}, 1024, s{S_C}")]), o(f"v_add_u32 v{V_SE}, s{S_C}, v{V_SE}")]
    def s_setup2(self):
        a, b, c = V_SX, V_YC[0], V_YC[1]
        L = []
        L += [o(f"v_and_b32 v{a}, 15, v0"), o(f"v_lshrrev_b32 v{b}, 4, v0"), o(f"v_bfe_u32 v{c}, v0, 1, 3"), o(f"v_xor_b32 v{c}, v{c}, v{b}"),
              o(f"v_lshlrev_b32 v{c}, 4, v{c}"), o(f"v_lshlrev_b32 v{a}, 7, v{a}"), o(f"v_add_u32 v{a}, v{a}, v{c}"),
              o(f"v_add_u32 v{V_SA}, s{S_A}, v{a}"), o(f"v_add_u32 v{V_SA}, {2*SLOT}, v{V_SA}"), o(f"v_xor_b32 v{V_SA+1}, 64, v{V_SA}"),
              G([o(f"s_cmp_eq_u32 s{S_W}, 3"), o(f"s_cselect_b32 s{S_C}, {SPARE}, 0")]),
              G([o(f"s_add_u32 s{S_PF}, s{S_A}, {2*SLOT}"), o(f"s_cmp_eq_u32 s{S_W}, 3"), o(f"s_cselect_b32 s{S_C}, s{S_C}, s{S_PF}")]),
              o(f"v_add_u32 v{V_SA+2}, s{S_C}, v{a}"),
              G([o(f"s_movk_i32 s{S_PF}, 4096"), o(f"s_cmp_eq_u32 s{S_W}, 3"), o(f"s_cselect_b32 s{S_PF}, s{S_PF}, {SLOT}")]),
              o(f"v_add_u32 v{V_SA+3}, s{S_PF}, v{V_SA+2}")]
        return L
    def s_setup3(self, t0, t1, t2, t3):
        L = []
        L += [o(f"v_and_b32 v{t0}, 15, v0"), o(f"v_lshrrev_b32 v{t1}, 4, v0"),
              o(f"v_and_b32 v{t2}, 1, v{t1}"), o(f"v_lshlrev_b32 v{t2}, 9, v{t2}"),
              o(f"v_lshrrev_b32 v{t1}, 1, v{t1}"), o(f"v_lshlrev_b32 v{t1}, 10, v{t1}"), o(f"v_add_u32 v{t2}, v{t2}, v{t1}"),
              G([o(f"s_and_b32 s{S_C}, s{S_J}, 7"), o(f"s_mul_i32 s{S_C}, s{S_C}, 36")]),
              o(f"v_add_u32 v{t0}, s{S_C}, v{t0}")]
        for ss in range(3):
            pa, qa, yc = V_ZP + ss, V_ZQ + ss, V_YC[ss]
            L += [o(f"v_lshrrev_b32 v{t1}, 5, v{t0}"), o(f"v_mul_u32_u24 v{t1}, {ZF_STRIDE}, v{t1}"),
                  o(f"v_and_b32 v{t3}, 31, v{t0}"), o(f"v_lshlrev_b32 v{t3}, 4, v{t3}"), o(f"v_add_u32 v{t1}, v{t1}, v{t3}"),
                  o(f"v_add_u32 v{t1}, v{t1}, v{t2}"),
                  o(f"v_subrev_u32 v{t3}, s{S_C}, v{t0}"),
                  o(f"v_lshlrev_b32 v{yc}, 2, v{t0}"), o(f"v_mov_b32 v{qa}, {OOB:#x}"), o(f"v_mov_b32 v{pa}, {OOB:#x}"),
                  G([o(f"v_cmp_gt_u32 vcc, 36, v{t3}"), o("v_nop"), o("v_nop"), o(f"v_cndmask_b32 v{pa}, v{pa}, v{t1}, vcc")]),
                  o(f"v_add_u32 v{t3}, {9*ZF_STRIDE}, v{t1}"),
                  G([o(f"v_cndmask_b32 v{qa}, v{qa}, v{t3}, vcc")]),
                  G([o(f"v_cmp_eq_u32 vcc, 0x120, v{t0}"), o("v_nop"), o("v_nop"), o(f"v_cndmask_b32 v{pa}, v{pa}, v{t1}, vcc")]),
                  G([o(f"v_mov_b32 v{t3}, {OOB:#x}"), o(f"v_cmp_eq_u32 vcc, 0, v{t0}"), o("v_nop"), o("v_nop"), o(f"v_cndmask_b32 v{qa}, v{qa}, v{t3}, vcc")]),
                  G([o(f"v_cmp_eq_u32 vcc, v{t3}, v{pa}"), o("v_nop"), o("v_nop"), o(f"v_cndmask_b32 v{yc}, v{yc}, v{t3}, vcc")]),
                  o(f"v_add_u32 v{t0}, 16, v{t0}")]
        return L

    def phase2_setup(self):
        L = []
        L += [G([o(f"s_xor_b32 s{T6}, s{S_J}, 1"), o(f"s_and_b32 s{T2}, s{T6}, 1"), o(f"s_mul_i32 s{T0}, s{T6}, 288")]),
              G([o(f"s_mul_i32 s{T1}, s{T2}, 224"), o(f"s_add_u32 s{T1}, s{T0}, s{T1}")]),
              G([o(f"s_cmp_eq_u32 s{T2}, 0"), o(f"s_cselect_b32 s{T3}, 64, -64"), o(f"s_cselect_b32 s{T4}, 256, 0")]),
              o(f"s_add_u32 s{T4}, s{T4}, s{T0}")]
        for u in range(4):
            L += [G([o(f"s_mul_i32 s{T5}, s{T3}, {u}"), o(f"s_add_u32 s{T5}, s{T5}, s{T1}")]),
                  G([o(f"s_mul_i32 s{S_N1+2*u}, s{T5}, 1152"), o(f"s_add_u32 s{S_N1+2*u+1}, s{S_N1+2*u}, {32*1152}")])]
        L += [o(f"s_mul_i32 s{S_N1+8}, s{T4}, 1152")]
        L += [G([o(f"s_and_b32 s{T2}, s{S_J}, 1"), o(f"s_mul_i32 s{T0}, s{T2}, 640"), o(f"s_lshr_b32 s{T1}, s{S_J}, 2")])]
        for k in range(4):
            L += [G([o(f"s_add_u32 s{T3}, s{T1}, {(k+1) % 4 if k < 3 else 0}"), o(f"s_and_b32 s{T3}, s{T3}, 3"), o(f"s_lshl_b32 s{T3}, s{T3}, 7")]),
                  o(f"s_add_u32 s{S_CU+k}, s{T0}, s{T3}")]
        L += [G([o(f"s_cmp_eq_u32 s{T2}, 0"), o(f"s_cselect_b32 s{S_CU+4}, 0, 64")]), o(f"s_add_u32 s{S_CU+4}, s{S_CU+4}, 512")]
        return L

    def p2q_setup(self):
        L = [G([o(f"s_and_b32 s{T2}, s{S_J}, 1"), o(f"s_mul_i32 s{T3}, s{T2}, 10"), o(f"s_lshr_b32 s{T4}, s{S_J}, 2")])]
        for k, dst in enumerate(S_QU):
            L += [G([o(f"s_add_u32 s{T5}, s{T4}, {k+1}"), o(f"s_and_b32 s{T5}, s{T5}, 3"), o(f"s_lshl_b32 s{T5}, s{T5}, 1")]),
                  G([o(f"s_add_u32 s{T5}, s{T5}, s{T3}"), o(f"s_lshl_b32 s{T5}, s{T5}, 11"), o(f"s_add_u32 s{dst}, s{T5}, s{S_PB}")])]
        L += [G([o(f"s_lshl_b32 s{T5}, s{T4}, 1"), o(f"s_add_u32 s{T5}, s{T5}, s{T3}"), o(f"s_bfe_u32 s{T4}, s{S_J}, 0x10001")]),
              G([o(f"s_add_u32 s{S_TO}, s{T5}, s{T4}"), o(f"s_xor_b32 s{T4}, s{T4}, 1"), o(f"s_add_u32 s{T5}, s{T5}, s{T4}")]),
              G([o(f"s_lshl_b32 s{T5}, s{T5}, 11"), o(f"s_add_u32 s{S_QN}, s{T5}, s{S_PB}")]),
              G([o(f"s_add_u32 s{T5}, s{T2}, 8"), o(f"s_lshl_b32 s{T5}, s{T5}, 11"), o(f"s_add_u32 s{S_Q8}, s{T5}, s{S_PB}")])]
        return L

    def main(self):
        DIST = self.opts.get("dist", 7)
        M = []; frags = []
        fu = {}; lu = {}
        def addfrag(reads_fn, use, dist=None, stage=None):
            f = len(frags); a = AF + 4*(f % NAF)
            fr = dict(reads=reads_fn(a), use=use)
            if dist: fr["dist"] = dist
            frags.append(fr)
            if stage is not None and stage not in fu:
                fu[stage] = use; fr["stage_first"] = stage
            return f, a
        def tr(base, off, off2): return lambda a: [f"ds_read_b64_tr_b16 a[{a}:{a+1}], v{base} offset:{off}", f"ds_read_b64_tr_b16 a[{a+2}:{a+3}], v{base} offset:{off+off2}"]
        for u in range(4):
            for mat in range(2):
                for kh in range(2):
                    sig = 4*u + 2*mat + kh
                    for half in range(2):
                        acc = (GA if mat == 0 else UA)[u % 2][half]
                        for kk in range(18):
                            ks = kh*18 + kk; g = len(M)
                            f, a = addfrag(tr((V_RA if half == 0 else V_RB) + sig % 4, kk*2048, 512), g, stage=("st", sig))
                            M.append(dict(op=32, acc=f"v[{acc}:{acc+15}]", first=(ks == 0), A=f"a[{a}:{a+3}]", B=f"a[{AX+4*ks}:{AX+4*ks+3}]", need=f))
                            lu[("st", sig)] = g
        for mat in range(2):
            acc = (GA if mat == 0 else UA)[0][0]
            for ks in range(36):
                g = len(M)
                f, a = addfrag(tr(V_R8 + mat, ks*1024, 256), g, stage=("st", 16+mat))
                M.append(dict(op=32, acc=f"v[{acc}:{acc+15}]", first=(ks == 0), A=f"a[{a}:{a+3}]", B=f"a[{AX+4*ks}:{AX+4*ks+3}]", need=f))
                lu[("st", 16+mat)] = g
        S0 = len(M)
        def accP(tt, ss):
            i = tt*3 + ss
            return 48 + 4*i if i < 4 else 112 + 4*(i - 4)
        def accQ(tt, ss):
            i = tt*3 + ss
            return 64 + 4*i if i < 4 else 128 + 4*(i - 4)
        def zP(ss, k):
            i = k*3 + ss
            return f"a[{AZ+4*i}:{AZ+4*i+3}]"
        def zQ(ss, k):
            i = k*3 + ss
            if i < 5: return f"a[{AZ+60+4*i}:{AZ+60+4*i+3}]"
            i -= 5
            if i < 4: return f"v[{32+4*i}:{32+4*i+3}]"
            i -= 4
            if i < 4: return f"v[{96+4*i}:{96+4*i+3}]"
            i -= 4
            return f"a[{4*i}:{4*i+3}]"
        self.zP, self.zQ, self.accP, self.accQ = zP, zQ, accP, accQ
        for mat, accf, zf in ((0, accP, zP), (1, accQ, zQ)):
            for k in range(5):
                for tt in range(2):
                    g = len(M)
                    if k < 4:
                        base = V_SA + (k & 1); off = mat*SLOT + (k >> 1)*4096 + tt*2048
                        st = ("C" if mat == 0 else "S", 0)
                    else:
                        base = V_SA + 2 + mat; off = tt*2048; st = ("CX" if mat == 0 else "SX", 0)
                    f, a = addfrag(lambda a, base=base, off=off: [f"ds_read_b128 a[{a}:{a+3}], v{base} offset:{off}"], g, dist=8, stage=st)
                    for ss in range(3):
                        ac = accf(tt, ss)
                        M.append(dict(op=16, acc=f"v[{ac}:{ac+3}]", first=(k == 0), A=f"a[{a}:{a+3}]", B=zf(ss, k), need=f))
                        lu[st] = len(M) - 1
            if mat == 0: SP_END = len(M)
        P2_0 = len(M)
        stages = [(0, "own"), (1, "own"), (2, "own"), (0, "par"), (1, "par"), (2, "par"), (4, "both"), (3, "own"), (3, "par")]
        slot_order = [0, 1, 2, 0, 3, 1, 2, 0, 3]
        slot_of = {st: slot_order[i] for i, st in enumerate(stages)}
        ACC = {0: [32, 96], 1: [16, 80], 2: [48, 112], 3: [64, 128], 4: [32]}
        tile_last = {}
        def p2run(st, half, base, ks=None):
            u, who = st
            acc = ACC[u][half]
            for k in (ks or range(18)):
                g = len(M)
                f, a = addfrag(tr(base, k*2048, 1024), g, stage=("s2", st))
                M.append(dict(op=32, acc=f"v[{acc}:{acc+15}]", first=(who == "own" and k == 0), A=f"a[{a}:{a+3}]",
                              B=(f"v[{HF+4*k}:{HF+4*k+3}]" if who == "own" else f"a[{HPB+4*k}:{HPB+4*k+3}]"), need=f))
                tile_last[(u, half)] = g; lu[("s2", st)] = g
        for st in stages[:7]:
            u, who = st; slot = slot_of[st]
            if u < 4 and who == "par" and u in (0, 1) and self.opts.get("klate", 1):
                for rng in (range(12), range(12, 18)):
                    for half in range(2): p2run(st, half, (V_RA if half == 0 else V_RB) + slot, rng)
            elif u < 4:
                for half in range(2): p2run(st, half, (V_RA if half == 0 else V_RB) + slot)
            else:
                acc = ACC[4][0]
                for k in range(36):
                    g = len(M)
                    f, a = addfrag(tr(V_R8, k*1024, 512), g, stage=("s2", st))
                    M.append(dict(op=32, acc=f"v[{acc}:{acc+15}]", first=(k == 0), A=f"a[{a}:{a+3}]",
                                  B=(f"v[{HF+4*k}:{HF+4*k+3}]" if k < 18 else f"a[{HPB+4*(k-18)}:{HPB+4*(k-18)+3}]"), need=f))
                    tile_last[(4, 0)] = g; lu[("s2", st)] = g
        p2run((3, "own"), 0, V_LB); p2run((3, "par"), 0, V_LB + 1); p2run((3, "own"), 1, V_LB + 2); p2run((3, "par"), 1, V_LB + 3)
        N = len(M)
        last_use = {}
        for g, m in enumerate(M): last_use[m["need"]] = g
        for f, fr in enumerate(frags):
            d = fr.get("dist", DIST)
            t = fr["use"] - d
            if f >= NAF and t < last_use[f - NAF]: fr["dist"] = fr["use"] - last_use[f - NAF]
        for fr in frags:
            st = fr.get("stage_first")
            if st is None: continue
            if st[0] in ("st", "s2"):
                tags = [st]
                if st == ("st", 3): tags += ["zst", "flinit"]
                if st == ("st", 17): tags += ["hst"]
                fr["pre"] = [wvm(tags), o("s_barrier")]
                if st == ("st", 17):
                    fr["pre"] += [vm(f"buffer_store_dword v{V_ONE}, v{V_ONE0}, s[{SR_WS}:{SR_WS+3}], s{S_FL} offen sc1", "fl1")]
                if st == ("st", 3):
                    fr["pre"] += [vm(f"buffer_atomic_add v{V_ONE}, v{V_ONE0}, s[{SR_HZ}:{SR_HZ+3}], 0 offen offset:128 sc1", "zpub")]
            elif st == ("CX", 0):
                fr["pre"] = [wvm([("cs", ("CX", 0)), ("cs", ("SX", 0))]), o("s_barrier")]
            elif st == ("SX", 0):
                fr["pre"] = []
            else:
                fr["pre"] = [wvm(("cs", st))]
        stamps = {0: "p1", 144: "u1", 288: "u2", 432: "u3", 576: "u4", S0: "S0", SP_END: "SP", P2_0: "p2", P2_0 + 108: "p2b", P2_0 + 216: "p2c"}
        if self.opts.get("hdiag") == 2:
            stamps = {0: "p1", 144: "u1", 288: "u2", 432: "u3", 576: "u4", S0: "S0", P2_0: "p2", P2_0 + 108: "p2b", P2_0 + 216: "p2c"}
        if self.opts.get("fine") == 2:
            stamps = {0: "p1", S0: "S0", P2_0: "p2"}
            for k in range(9, 127, 9): stamps[P2_0 + k] = f"+{k}"
        elif self.opts.get("fine"):
            stamps = {0: "p1", 432: "u3", 576: "u4", 594: "s594", 612: "s612", 630: "s630", S0: "S0", 660: "s660", 672: "s672", 684: "s684", SP_END: "SP", 714: "s714", 726: "s726", 738: "s738", P2_0: "p2", P2_0 + 36: "a36", P2_0+72: "a72", P2_0 + 108: "p2b", P2_0 + 216: "p2c"}
        for g, name in stamps.items():
            if self.diag: M[g].setdefault("before", []).extend(self.stamp(name))
        self.tail2 = []

        def setup(sl, head):
            rbar = {st: fu[st] - DIST for st in fu if st[0] in ("st", "s2")}
            for b in rbar.values():
                if b >= 0: sl.budget[b] = 4
            def fbar(t):
                sl.put(t, [o("s_barrier")])
            busy = {"end": -1}
            def place(groups, start, step=1):
                s = max(start, busy["end"] + 1)
                for grp in groups:
                    sl.put(s, grp); busy["end"] = s; s += step
                return s
            sl.put(2, [o(f"v_mov_b32 v{V_ONE}, 1")])
            eh = sl.stream(self.rr_reads(48, 112) + self.h_epilogue(S_A, V_HACC, 48, 64), 12, 46)
            eh = sl.stream(self.rr_reads(48, 112, 2) + self.h_epilogue(S_B, 128, 48, 64), eh + 1, eh + 34)
            assert eh < 92, eh
            for mat in range(2):
                slot = (16 + mat) % 4
                ins = [o("v_lshrrev_b32 v224, 5, v0"), o("v_lshlrev_b32 v224, 9, v224"),
                       o("v_bfe_u32 v225, v0, 2, 2"), o("v_lshlrev_b32 v225, 6, v225"), o("v_add_u32 v224, v224, v225"),
                       o("v_bfe_u32 v225, v0, 4, 1"), o("v_lshlrev_b32 v225, 5, v225"), o("v_add_u32 v224, v224, v225"),
                       o("v_and_b32 v225, 3, v0"), o("v_lshlrev_b32 v225, 3, v225"), o("v_add_u32 v224, v224, v225"),
                       o(f"v_add_u32 v{V_R8+mat}, {slot*SLOT}, v224")]
                sl.stream(ins, 70 + 20*mat, 88 + 20*mat)
            dma_end = {}
            for sig in range(2, 18):
                grps = self.dma_p1(sig, sig % 4)
                if sig == 2: start = 0
                elif sig == 3: start = 9*self.opts.get('dstep', 2)
                elif self.opts.get("fb", 1):
                    t = lu[("st", sig - 4)]; fbar(t); start = t + 1
                else:
                    start = min(b for b in rbar.values() if b >= lu[("st", sig - 4)]) + 1
                dma_end[sig] = place(grps, start, self.opts.get("dstep", 2))
            self.paced_prefetch(sl, dma_end)
            self.mode_check(sl, M)
            sl.put(590, [G([o(f"s_lshl_b32 s{S_FL}, s{S_LID}, 7"), o(f"s_add_u32 s{S_FL}, s{S_FL}, {WS_FLAG}")])])
            sl.put(592, [o(f"v_mov_b32 v{V_ONE}, 1")])
            e0 = sl.stream(self.geglu(0), 145, 211)
            sl.stream(self.hstore(0) + self.geglu(1) + self.hstore(1), max(e0 + 1, 212), 287)
            for u in range(1, 3):
                sl.stream(self.geglu(2*u) + self.hstore(2*u) + self.geglu(2*u+1) + self.hstore(2*u+1), 144*(u+1) + 1, 144*(u+2) - 1)
            es = sl.stream(self.s_setup(), eh + 1, eh + 11)
            es = sl.stream(self.s_setup2(), es + 1, es + 10)
            assert es < 118, es
            sl.stream(self.s_setup3(224, 225, 226, 227), max(es + 1, 112), 143)
            ep = sl.stream(self.phase2_setup(), 66, 100)
            assert ep < 110
            sl.stream(self.s_setup_e(229, 0), 440, 464)
            t = lu[("st", 14)]; fbar(t); e = place(self.dma_cs(0, 2, ("cs", ("C", 0))), t + 1, 2)
            place(self.dma_cx(0, ("cs", ("CX", 0))) + self.dma_cx(1, ("cs", ("SX", 0))), e, 2)
            t = lu[("st", 15)]; fbar(t); place(self.dma_cs(1, 3, ("cs", ("S", 0))), t + 1, 2)
            self.main_rest(sl, M, fu, lu, stages, slot_of, ACC, tile_last, S0, SP_END, P2_0, N, fbar, place)
        L = self.paced(M, frags, setup, DIST)
        return L + self.tail2

    def mode_check(self, sl, M):
        if not self.opts.get("local", 0): return
        t = 0
        ld = f"buffer_load_dwordx2 v[222:223], off, s[{SR_HZ}:{SR_HZ+3}], s{T5} sc1"
        ld = f"buffer_load_dwordx2 v[230:231], off, s[{SR_HZ}:{SR_HZ+3}], s{S_XC} sc1"
        if self.opts.get("cfg", 0) == 0:
            ld = f"buffer_load_dword v230, off, s[{SR_HZ}:{SR_HZ+3}], s{S_XC} sc1"
            sl.put(140, [G([o(f"s_lshr_b32 s{S_XC}, s{S_LID}, 3"), o(f"s_lshl_b32 s{S_XC}, s{S_XC}, 2")])])
        else:
            sl.put(140, [G([o(f"s_lshl_b32 s{S_XC}, s{S_MT}, 3")])])
        sl.put(143, [vm(ld, "xcc")])
        sl.put(205, [wvm("xcc")])
        sl.put(206, [o(f"v_readfirstlane_b32 s{T6}, v230"), o(f"v_readfirstlane_b32 s{T7}, v231")])
        def nz(r, tmp):
            return [o(f"s_lshr_b32 s{tmp}, s{r}, 1"), o(f"s_or_b32 s{tmp}, s{tmp}, s{r}"), o(f"s_lshr_b32 s{T3}, s{tmp}, 2"), o(f"s_or_b32 s{tmp}, s{tmp}, s{T3}"),
                    o(f"s_and_b32 s{tmp}, s{tmp}, 0x11111111")]
        chk = nz(T6, T1) + nz(T7, T2) + [o(f"s_and_b32 s{T1}, s{T1}, s{T2}"), o(f"s_cmp_eq_u32 s{T1}, 0x11111111")]
        if self.opts.get("cfg", 0) == 0:
            ld = f"buffer_load_dword v230, off, s[{SR_HZ}:{SR_HZ+3}], s{S_XC} sc1"
            ext = [o(f"s_and_b32 s{T1}, s{S_LID}, 6"), o(f"s_lshl_b32 s{T1}, s{T1}, 2"), o(f"s_lshr_b32 s{T2}, s{T6}, s{T1}"),
                   o(f"s_and_b32 s{T3}, s{T2}, 15"), o(f"s_bfe_u32 s{T2}, s{T2}, 0x40004"),
                   o(f"s_min_u32 s{T1}, s{T2}, s{T3}"), o(f"s_cmp_ge_u32 s{T1}, 1")]
            blk = ext + [o("s_cbranch_scc1 L_xc_ok")] + self.spin("L_xc", [o(ld)], [o(f"v_readfirstlane_b32 s{T6}, v230"), o("s_nop 3")] + ext)
            blk += [o(f"s_cmp_eq_u32 s{T2}, s{T3}"), o(f"s_cselect_b32 s{S_MODE}, 1, 0")]
            if self.opts.get("forceglobal"): blk += [o(f"s_mov_b32 s{S_MODE}, 0")]
            M[209].setdefault("before", []).extend(blk)
            return
        blk = chk + [o("s_cbranch_scc1 L_xc_ok")] + self.spin("L_xc", [o(ld)],
              [o(f"v_readfirstlane_b32 s{T6}, v230"), o(f"v_readfirstlane_b32 s{T7}, v231"), o("s_nop 3")] + chk)
        blk += [o(f"s_and_b32 s{T1}, s{T6}, 15"), o(f"s_mul_i32 s{T1}, s{T1}, 0x11111111"),
                o(f"s_cmp_eq_u32 s{T1}, s{T6}"), o(f"s_cselect_b32 s{S_MODE}, 1, 0"),
                o(f"s_cmp_eq_u32 s{T1}, s{T7}"), o(f"s_cselect_b32 s{S_MODE}, s{S_MODE}, 0")]
        if self.opts.get("forceglobal"): blk += [o(f"s_mov_b32 s{S_MODE}, 0")]
        M[209].setdefault("before", []).extend(blk)

    def bulk(self, sl, t):
        bk = [G([o(f"s_lshl_b32 s{S_PF}, s{S_LID}, 2"), o(f"s_add_u32 s{S_PF}, s{S_PF}, s{S_W}"), o(f"s_mul_i32 s{S_PF}, s{S_PF}, 41")]),
              o(f"v_add_u32 v{V_PF}, s{S_PF}, v0"), o(f"v_lshlrev_b32 v{V_PF}, 7, v{V_PF}"),
              G([o("v_cmp_gt_u32 vcc, 41, v0"), o("v_nop"), o("v_nop"), o(f"v_cndmask_b32 v{V_PF}, v{V_ONE0}, v{V_PF}, vcc")])]
        e = sl.stream(bk, t, t + 5, spill=2)
        sl.put(e + 1, [vm(f"buffer_load_dword v{V_PF}, v{V_PF}, s[{SR_WG}:{SR_WG+3}], 0 offen", "pf")])
        sl.put(e + 2, [vm(f"buffer_load_dword v{V_PF}, v{V_PF}, s[{SR_WU}:{SR_WU+3}], 0 offen", "pf")])
        return e + 2

    def paced_prefetch(self, sl, dma_end):
        if self.opts.get("bulkat", 0) == 1:
            bk = [G([o(f"s_lshl_b32 s{S_PF}, s{S_LID}, 2"), o(f"s_add_u32 s{S_PF}, s{S_PF}, s{S_W}"), o(f"s_mul_i32 s{S_PF}, s{S_PF}, 41")]),
                  o(f"v_add_u32 v230, s{S_PF}, v0"), o(f"v_lshlrev_b32 v230, 7, v230"),
                  G([o("v_cmp_gt_u32 vcc, 41, v0"), o("v_nop"), o("v_nop"), o(f"v_cndmask_b32 v230, v{V_ONE0}, v230, vcc")])]
            e = sl.stream(bk, 0, 8, spill=2)
            assert e < 12
            s = dma_end[self.opts.get("bulkst", 3)]
            sl.put(s, [vm(f"buffer_load_dword v{V_PF}, v230, s[{SR_WG}:{SR_WG+3}], 0 offen", "pf")])
            sl.put(s + 1, [vm(f"buffer_load_dword v{V_PF}, v230, s[{SR_WU}:{SR_WU+3}], 0 offen", "pf")])
        if not self.opts.get("ppf", 1): return
        Dd, Cc, t = 228, 229, 227
        if self.opts.get("lbulk"):
            first = [G([o(f"s_lshl_b32 s{S_PF}, s{S_MT}, 2"), o(f"s_add_u32 s{S_PF}, s{S_PF}, s{S_W}"), o(f"s_mul_i32 s{S_PF}, s{S_PF}, 41")]),
                     G([o(f"s_mul_i32 s{S_C}, s{S_J}, 2592"), o(f"s_add_u32 s{S_PF}, s{S_PF}, s{S_C}")])]
        else:
            first = [G([o(f"s_lshl_b32 s{S_PF}, s{S_LID}, 2"), o(f"s_add_u32 s{S_PF}, s{S_PF}, s{S_W}"), o(f"s_mul_i32 s{S_PF}, s{S_PF}, 41")])]
        setup = first + [
                 o(f"v_add_u32 v{Dd}, s{S_PF}, v0"), o(f"v_lshlrev_b32 v{Dd}, 7, v{Dd}"), o(f"v_mov_b32 v{t}, {OOB:#x}"),
                 G([o("v_cmp_gt_u32 vcc, 41, v0"), o("v_nop"), o("v_nop"), o(f"v_cndmask_b32 v{Dd}, v{t}, v{Dd}, vcc")]),
                 G([o(f"s_and_b32 s{S_PF}, s{S_J}, 7"), o(f"s_lshl_b32 s{S_PF}, s{S_PF}, 2"), o(f"s_add_u32 s{S_PF}, s{S_PF}, s{S_W}")]),
                 G([o(f"s_and_b32 s{S_C}, s{S_PF}, 15"), o(f"s_lshl_b32 s{S_C}, s{S_C}, 1"), o(f"s_add_u32 s{S_C}, s{S_C}, s{S_TAU}")]),
                 G([o(f"s_lshl_b32 s{S_ST0}, s{S_MT}, 5"), o(f"s_add_u32 s{S_C}, s{S_C}, s{S_ST0}"), o(f"s_sub_u32 s{S_ST0}, 1024, s{S_C}")]),
                 G([o(f"s_cmp_lt_u32 s{S_PF}, 16"), o(f"s_cselect_b32 s{S_PF}, s{S_C}, s{S_ST0}"), o(f"s_lshl_b32 s{S_PF}, s{S_PF}, 12")]),
                 o(f"v_lshlrev_b32 v{Cc}, 7, v0"), o(f"v_add_u32 v{Cc}, s{S_PF}, v{Cc}"),
                 G([o("v_cmp_gt_u32 vcc, 9, v0"), o("v_nop"), o("v_nop"), o(f"v_cndmask_b32 v{Cc}, v{t}, v{Cc}, vcc")])]
        e = sl.stream(setup, 146, 176)
        s = dma_end[self.opts.get("pfw", 9)]
        assert s > e + 6
        if self.opts.get("bulk", 1) != 2: sl.put(s, [vm(f"buffer_load_dword v{V_PF}, v{Dd}, s[{SR_WD}:{SR_WD+3}], 0 offen", "pf")])
        if self.opts.get("wdl2", 1):
            A2, t2 = 230, 226
            st2 = [G([o(f"s_and_b32 s{S_PF}, s{S_MT}, 7"), o(f"s_mul_i32 s{S_PF}, s{S_PF}, 36"), o(f"s_mul_i32 s{S_C}, s{S_W}, 9")]),
                   o(f"s_add_u32 s{S_PF}, s{S_PF}, s{S_C}"), o(f"v_add_u32 v{t2}, s{S_PF}, v0"), o(f"v_mul_u32_u24 v{t2}, 1152, v{t2}"),
                   o(f"v_mov_b32 v227, {OOB:#x}"),
                   G([o("v_cmp_gt_u32 vcc, 9, v0"), o("v_nop"), o("v_nop"), o(f"v_cndmask_b32 v{t2}, v227, v{t2}, vcc")])]
            e2 = sl.stream(st2, 474, 486)
            def wl(own, k, t):
                sl.put(t, [G([o(f"s_{'mul_i32' } s{S_PF}, s{S_J if own else S_J}, {288*1152}")] + ([] if own else [o(f"s_xor_b32 s{S_C}, s{S_J}, 1"), o(f"s_mul_i32 s{S_PF}, s{S_C}, {288*1152}")]) + [o(f"s_add_u32 s{S_PF}, s{S_PF}, s{S_CU+k}")])])
                sl.put(t + 1, [vm(f"buffer_load_dword v{V_PF}, v{t2}, s[{SR_WD}:{SR_WD+3}], s{S_PF} offen", "pf")])
            s = dma_end[16]; wl(True, 0, s); wl(True, 1, s + 2)
            s = dma_end[17]; wl(True, 2, s); wl(False, 0, s + 2)
        s = dma_end[self.opts.get("pfc", 11)]
        sl.put(s, [vm(f"buffer_load_dword v{V_PF}, v{Cc}, s[{SR_CS}:{SR_CS+3}], 0 offen", "pf")])
        sl.put(s + 1, [vm(f"buffer_load_dword v{V_PF}, v{Cc}, s[{SR_SS}:{SR_SS+3}], 0 offen", "pf")])

    def rowmir(self, sRB, sT, t0, t1, t2, t3):
        return [o(f"s_lshl_b32 s{sT}, s{sRB}, 3"), o(f"v_and_b32 v{t0}, 7, v0"), o(f"v_add_u32 v{t0}, s{sT}, v{t0}"),
                o(f"v_bfe_u32 v{t1}, v0, 3, 2"),
                o(f"v_add_u32 v{t2}, 1, v{t1}"), o(f"v_lshrrev_b32 v{t2}, 1, v{t2}"), o(f"v_lshlrev_b32 v{t2}, 10, v{t2}"),
                o(f"v_add_u32 v{t3}, v{t2}, v{t0}"), o(f"v_sub_u32 v{t2}, v{t2}, v{t0}"),
                o(f"v_and_b32 v{t1}, 1, v{t1}"),
                G([o(f"v_cmp_eq_u32 vcc, 1, v{t1}"), o("v_nop"), o("v_nop"), o(f"v_cndmask_b32 v{t3}, v{t3}, v{t2}, vcc")]),
                o(f"v_bfe_u32 v{t1}, v0, 3, 2"), o(f"v_lshlrev_b32 v{t2}, 10, v{t1}"), o(f"v_subrev_u32 v{t2}, 0x600, v{t2}"),
                G([o(f"v_cmp_le_u32 vcc, 2, v{t1}"), o("v_nop"), o("v_nop"), o(f"v_cndmask_b32 v{t2}, v{t3}, v{t2}, vcc")]),
                G([o(f"v_cmp_eq_u32 vcc, 0, v{t0}"), o("v_nop"), o("v_nop"), o(f"v_cndmask_b32 v{t0}, v{t3}, v{t2}, vcc")]),
                o(f"v_sub_u32 v{t1}, 2048, v{t0}"), o(f"v_and_b32 v{t1}, 0x7ff, v{t1}")]

    def owner_addr(self):
        sQ = S_TO
        t0, t1, t2, t3 = 244, 245, 246, 247
        L = [G([o(f"s_lshl_b32 s{T4}, s{S_MT}, 2"), o(f"s_add_u32 s{T4}, s{T4}, s{S_W}")]),
             G([o(f"s_mul_i32 s{T5}, s{T4}, 18"), o(f"s_add_u32 s{T5}, s{T5}, s{sQ}"), o(f"s_lshl_b32 s{T5}, s{T5}, 11")]),
             o(f"s_lshr_b32 s{T3}, s{S_J}, 1")]
        i = 0
        for dd in (3, 2, 1):
            for b_ in range(2):
                L += [G([o(f"s_lshr_b32 s{16+i}, s{T3}, 1"), o(f"s_add_u32 s{16+i}, s{16+i}, {dd}"), o(f"s_and_b32 s{16+i}, s{16+i}, 3")]),
                      G([o(f"s_lshl_b32 s{16+i}, s{16+i}, 1"), o(f"s_add_u32 s{16+i}, s{16+i}, {b_}"), o(f"s_mul_i32 s{16+i}, s{16+i}, {PART_BYTES}")]),
                      o(f"s_add_u32 s{16+i}, s{16+i}, s{T5}")]
                i += 1
        L += [G([o(f"s_xor_b32 s22, s{T3}, 1"), o(f"s_mul_i32 s22, s22, {PART_BYTES}"), o(f"s_add_u32 s22, s22, s{T5}")])]
        L += self.rowmir(T4, T5, t0, t1, t2, t3) + [
              o(f"s_lshl_b32 s{T5}, s{sQ}, 6"),
              o(f"v_mul_u32_u24 v{t2}, 1152, v{t0}"), o(f"v_add_u32 v{t2}, s{T5}, v{t2}"),
              o(f"v_lshrrev_b32 v{t3}, 5, v0"), o(f"v_lshlrev_b32 v238, 4, v{t3}"), o(f"v_add_u32 v238, v{t2}, v238"),
              o(f"v_lshlrev_b32 v237, 3, v{t3}"), o(f"v_add_u32 v237, v{t2}, v237"),
              G([o(f"s_lshl_b32 s{T5}, s{sQ}, 7"), o(f"s_cmp_lt_u32 s{sQ}, 9"), o(f"s_cselect_b32 s24, 0, 1")]),
              G([o(f"s_sub_u32 s{T4}, {2292 - 96}, s{T5}"), o(f"s_cmp_lt_u32 s{sQ}, 9"), o(f"s_cselect_b32 s{T5}, s{T5}, s{T4}"), o(f"s_cselect_b32 s{T4}, 1, -1")]),
              G([o(f"v_mov_b32 v{t2}, s24"), o(f"v_cmp_eq_u32 vcc, 1, v{t2}"), o("v_nop"), o("v_nop"), o(f"v_cndmask_b32 v{t0}, v{t0}, v{t1}, vcc")]),
              o(f"v_mul_u32_u24 v{t0}, {YP}, v{t0}"), o(f"v_add_u32 v{t0}, s{T5}, v{t0}"),
              o(f"v_lshlrev_b32 v{t3}, 4, v{t3}"), o(f"v_mul_lo_u32 v{t3}, v{t3}, s{T4}"), o(f"v_add_u32 v{t0}, v{t0}, v{t3}"),
              o(f"v_add_u32 v239, {WS_YH}, v{t0}")]
        return L

    def pipe_reduce(self, sl, M, fu, lu, P2_0, N):
        self.items_cfg()
        t4 = P2_0 + self.opts.get("t4", 254)
        sl.put(t4 - 3, [o("v_mov_b32 v240, 4")])
        sl.put(t4, [wvm([("pst", 0), ("pst", 1), ("pst", 2), "yst"]), o("s_barrier")])
        sl.put(t4 + 1, [vm(f"buffer_store_dword v240, v{V_ONE0}, s[{SR_WS}:{SR_WS+3}], s{S_FL} offen sc1", "fl4")])
        ep = sl.stream(self.p2q_setup(), P2_0 + 102, P2_0 + 124)
        assert ep < P2_0 + 132
        s_own, s_par = 0, 3
        lb = [G([o(f"s_bfe_u32 s{T5}, s{S_J}, 0x10001"), o(f"s_lshl_b32 s{T5}, s{T5}, 6"), o(f"s_xor_b32 s{T4}, s{T5}, 64")]),
              o(f"v_xor_b32 v{V_LB}, s{T4}, v{V_RA+s_own}"), o(f"v_xor_b32 v{V_LB+1}, s{T4}, v{V_RA+s_par}"),
              o(f"v_xor_b32 v{V_LB+2}, s{T5}, v{V_RA+s_own}"), o(f"v_xor_b32 v{V_LB+3}, s{T5}, v{V_RA+s_par}")]
        sl.stream(lb, P2_0 + 190, P2_0 + 200)
        e = sl.stream(self.owner_addr(), P2_0 + 204, P2_0 + 250)
        e = sl.stream([G([o(f"s_and_b32 s{T6}, s{S_J}, 1"), o(f"s_lshl_b32 s{T6}, s{T6}, 7"), o(f"s_lshl_b32 s{T7}, s{S_MT}, 11")]),
                       G([o(f"s_add_u32 s{T6}, s{T6}, s{T7}"), o(f"s_add_u32 s{T6}, s{T6}, {WS_FLAG}")]),
                       o("v_lshlrev_b32 v242, 8, v0"), o(f"v_mov_b32 v241, {OOB:#x}"),
                       G([o("v_cmp_gt_u32 vcc, 8, v0"), o("v_nop"), o("v_nop"), o("v_cndmask_b32 v242, v241, v242, vcc")])], e + 1, e + 8)
        for i in range(4): sl.put(e + 2 + i, [vm(f"buffer_load_dwordx2 v[{24+2*i}:{25+2*i}], v237, s[{SR_X}:{SR_X+3}], 0 offen offset:{16*i}", "ox")])
        def ploads(i0, i1):
            out = []
            for i in range(i0, i1):
                out += [vm(f"buffer_load_dwordx4 v[{80+8*i}:{83+8*i}], v{V_L16}, s[{SR_WS}:{SR_WS+3}], s{16+i} offen sc1", "op"),
                        vm(f"buffer_load_dwordx4 v[{84+8*i}:{87+8*i}], v{V_L16}, s[{SR_WS}:{SR_WS+3}], s{16+i} offen offset:1024 sc1", "op")]
            return out
        yl = [vm(f"buffer_load_dwordx4 v[{48+4*i}:{51+4*i}], v239, s[{SR_WS}:{SR_WS+3}], 0 offen offset:{32*i} sc1", "op") for i in range(4)]
        self.late_loads = []
        if self.opts.get("split3", 1):
            t3 = P2_0 + self.opts.get("t3", 212)
            sl.put(t3 - 3, [o("v_mov_b32 v240, 3")])
            sl.put(t3, [wvm([("pst", 0), ("pst", 1), "yst"]), o("s_barrier")])
            sl.put(t3 + 1, [vm(f"buffer_store_dword v240, v{V_ONE0}, s[{SR_WS}:{SR_WS+3}], s{S_FL} offen sc1", "fl3")])
            tp3 = max(e + 7, P2_0 + self.opts.get("tp3", 258))
            ld, chk = self.group_poll("L_g3", 3, 241, 242)
            sl.put(tp3, [vm(ld, "gp3")])
            sl.put(tp3 + 9, [wvm("gp3")])
            M[tp3 + 11].setdefault("before", []).extend(chk + [o("s_cbranch_scc1 L_g3_ok")] + self.spin("L_g3", [o(ld)], chk))
            s = tp3 + 11
            for l in ploads(0, 4) + yl:
                sl.put(s, [l]); s += 2
            lds = ploads(4, 6)
            tpoll = max(s, P2_0 + self.opts.get("tpa", 300))
        else:
            lds = ploads(0, 6) + yl
            tpoll = max(e + 7, P2_0 + self.opts.get("tpa", 284))
        ld, chk = self.group_poll("L_gA", 4, 241, 242)
        sl.put(tpoll, [vm(ld, "gpA")])
        sl.put(tpoll + 9, [wvm("gpA")])
        M[tpoll + 11].setdefault("before", []).extend(chk + [o("s_cbranch_scc1 L_gA_ok")] + self.spin("L_gA", [o(ld)], chk))
        s = tpoll + 11
        stp = self.opts.get("ostep", 2)
        for l in lds:
            if s < N - 1: sl.put(s, [l]); s += stp
            else: self.late_loads.append(l)
        print("owner loads: in loop until", s, "late:", len(self.late_loads), "N", N)
        t5 = N - self.opts.get("t5", 10)
        sl.put(t5 - 3, [o("v_mov_b32 v240, 5")])
        sl.put(t5, [wvm([("pst", 3), ("pst", 4)]), o("s_barrier")])
        sl.put(t5 + 1, [vm(f"buffer_store_dword v240, v{V_ONE0}, s[{SR_WS}:{SR_WS+3}], s{S_FL} offen sc1", "fl5")])
        self.RDx = dict(P=("v", 176), X=208, Y=212, OA=220, PV=221, t=[222, 223, 224, 225], rev=26, so=84)
        Ad, Ld = self.item_setup("D", self.RDx, split=True)
        self.D_ld = Ld
        eD = sl.stream(Ad, N - 17, N - 1, spill=0)
        print("D addr until", eD)

    def spin(self, label, load, cond_ok, regs_note=""):
        return [o(f"s_mov_b32 s{S_CNT}, 0"), raw(f"{label}:")] + load + [o("s_waitcnt vmcnt(0)")] + cond_ok + \
               [o(f"s_cbranch_scc1 {label}_ok"), o(f"s_add_u32 s{S_CNT}, s{S_CNT}, 1"), o(f"s_cmp_gt_u32 s{S_CNT}, 0x40000"), o(f"s_cbranch_scc1 {label}_ok"),
                o("s_sleep 1"), o(f"s_branch {label}"), raw(f"{label}_ok:")]

    def main_rest(self, sl, M, fu, lu, stages, slot_of, ACC, tile_last, S0, SP_END, P2_0, N, fbar, place):
        zP, zQ, accP, accQ = self.zP, self.zQ, self.accP, self.accQ
        DIST = self.opts.get("dist", 7)
        if self.opts.get("esig", 1) == 2:
            e = sl.stream(self.geglu_sig(7, 8), 508, 576)
            e6 = sl.stream(self.geglu(6) + self.hstore(6), 577, 618)
            e7 = sl.stream(self.geglu_fin(7) + self.hstore(7), max(e6 + 1, e + 1, 580), max(e6 + 1, 580) + 8)
            assert e7 < S0 - 2, e7
            e8 = sl.stream(self.geglu_sig(8, 8), 616, S0 + 2)
            e8 = sl.stream(self.geglu_fin(8) + self.hstore(8), max(e8 + 1, S0 + 4), S0 + 16)
            self.e8 = e8
        elif self.opts.get("esig", 1):
            e = sl.stream(self.geglu_sig(6, 8), 490, 535)
            e = sl.stream(self.geglu_sig(7, 8), max(e + 1, 508), 578)
            e6 = sl.stream(self.geglu_fin(6) + self.hstore(6), max(e + 1, 579), 596)
            e7 = sl.stream(self.geglu_fin(7) + self.hstore(7), e6 + 1, 614)
            assert e7 < S0 - 2, e7
            e8 = sl.stream(self.geglu_sig(8, 8), max(e7 + 1, 616), S0 + 2)
            e8 = sl.stream(self.geglu_fin(8) + self.hstore(8), max(e8 + 1, S0 + 4), S0 + 16)
            self.e8 = e8
        else:
            e6 = sl.stream(self.geglu(6) + self.hstore(6), 577, 634)
            assert e6 < S0 - 2, e6
            e7 = sl.stream(self.geglu(7) + self.hstore(7), e6 + 1, S0 + 46)
            assert e7 < SP_END - 1, e7
        if not self.opts.get("esig", 1): sl.stream(self.geglu(8, 8) + self.hstore(8), S0 + 4, S0 + 85)
        sl.put(467, [vm(f"buffer_load_dword v230, off, s[{SR_HZ}:{SR_HZ+3}], 0 offset:128 sc1", "zpoll")])
        sl.put(574, [wvm("zpoll")])
        sl.put(575, [o(f"v_readfirstlane_b32 s{T0}, v230")])
        M[578].setdefault("before", []).extend(
            [o(f"s_cmp_ge_u32 s{T0}, 256"), o("s_cbranch_scc1 L_zp_ok")] +
            self.spin("L_zp", [o(f"buffer_load_dword v{V_PF}, off, s[{SR_HZ}:{SR_HZ+3}], 0 offset:128 sc1")],
                      [o(f"v_readfirstlane_b32 s{T0}, v{V_PF}"), o("s_nop 3"), o(f"s_cmp_ge_u32 s{T0}, 256")]))
        def zl(zf, va, k, tagn):
            ins = []
            if k < 4: ins += [o(f"s_add_u32 s{S_C}, s{S_ZB}, {k*2048}")]
            else: ins += [G([o(f"s_cmp_eq_u32 s{S_W}, 3"), o(f"s_cselect_b32 s{S_C}, 0, {OOB:#x}"), o(f"s_add_u32 s{S_C}, s{S_C}, s{S_ZB}")]),
                          o(f"s_add_u32 s{S_C}, s{S_C}, {4*2048}")]
            return ins, [vm(f"buffer_load_dwordx4 {zf(ss,k)}, v{va+ss}, s[{SR_WS}:{SR_WS+3}], s{S_C} offen sc1", (tagn, k)) for ss in range(3)]
        ins = []
        for k in range(5):
            a_, l_ = zl(zP, V_ZP, k, "zp"); ins += a_ + l_
        for k in range(4):
            a_, l_ = zl(zQ, V_ZQ, k, "zq"); ins += a_ + l_
        sl.stream(ins, 579, 644)
        a_, l_ = zl(zQ, V_ZQ, 4, "zq")
        sl.stream(a_ + l_, S0, S0 + 8)
        for k in range(5):
            sl.put(S0 + 6*k - 1, [wvm(("zp", k))])
            sl.put(SP_END + 6*k - 1, [wvm(("zq", k))])
        A5P = [120, 124, 136]; A5Q = [140, 224, 228]
        blk = [o(f"s_or_b32 s{T3}, s{S_MT}, s{S_TAU}"), o(f"s_cmp_eq_u32 s{T3}, 0"), o("s_cbranch_scc0 L_s_n512"),
               o("v_mov_b32 v232, 0x3f80"), o("v_mov_b32 v233, 0xbf80"), o("v_mov_b32 v234, v232"), o("v_mov_b32 v235, v233"),
               o("v_mov_b32 v236, 0xbf800000"), o("v_mov_b32 v237, 0x3f800000"), o("v_mov_b32 v238, v236"), o("v_mov_b32 v239, v237"), o("s_nop 1")]
        for k in range(5):
            for ss in range(3):
                a = A5P[ss]
                blk += [mf16(f"v[{a}:{a+3}]", "v[232:235]", zP(ss, k), "0" if k == 0 else f"v[{a}:{a+3}]")]
                a = A5Q[ss]
                blk += [mf16(f"v[{a}:{a+3}]", "v[236:239]", zQ(ss, k), "0" if k == 0 else f"v[{a}:{a+3}]")]
        blk += [o("s_nop 7"), raw("L_s_n512:")]
        M[P2_0].setdefault("before", []).extend(blk)
        self.A5P, self.A5Q = A5P, A5Q
        t = lu[("st", 16)]; fbar(t)
        e = place(self.dma_p2(stages[0], slot_of[stages[0]], True, 12, 13, V_PF), t + 1, 1)
        t = lu[("st", 17)]; fbar(t)
        e = place(self.dma_p2(stages[1], slot_of[stages[1]], False, 0, 0, 0), t + 1, 1)
        ins = [o(f"v_lshrrev_b32 v{V_PF}, 5, v0"), o(f"v_lshlrev_b32 v{V_PF}, 9, v{V_PF}")]
        for s in range(4): ins += [o(f"v_sub_u32 v{V_RA+s}, v{V_RA+s}, v{V_PF}"), o(f"v_sub_u32 v{V_RB+s}, v{V_RB+s}, v{V_PF}")]
        eb = sl.stream(ins, S0 + 2, S0 + 16)
        t = lu[("CX", 0)]
        sl.put(t, [wvm("hst"), o("s_barrier")])
        sl.put(t + 1, [o(f"v_mov_b32 v{V_PF}, 2")])
        sl.put(t + 2, [vm(f"buffer_store_dword v{V_PF}, v{V_ONE0}, s[{SR_WS}:{SR_WS+3}], s{S_FL} offen sc1", "fl2h")])
        assert eb < t, (eb, t)
        assert self.e8 < t, (self.e8, t)
        place(self.dma_p2(stages[2], slot_of[stages[2]], False, 0, 0, 0), t + 3, 1)
        fbar(lu[("SX", 0)])
        a0 = P2_0 + 3
        t0r, t1r = 240, 241
        SC = 3*SLOT
        N1A = SPARE + 12288
        A5P, A5Q = self.A5P, self.A5Q
        wr = [G([o(f"s_mul_i32 s{S_C}, s{S_W}, 12288"), o(f"s_add_u32 s{S_C}, s{S_C}, {SC}")]),
              o(f"v_lshrrev_b32 v{t0r}, 4, v0"), o(f"v_mul_u32_u24 v{t0r}, 768, v{t0r}"), o(f"v_and_b32 v{t1r}, 15, v0"), o(f"v_lshlrev_b32 v{t1r}, 2, v{t1r}"),
              o(f"v_add_u32 v{t0r}, v{t0r}, v{t1r}"), o(f"v_add_u32 v{t0r}, s{S_C}, v{t0r}")]
        if self.opts.get("w2", 1):
            WB = {(0, 0): t0r, (0, 1): 243, (1, 0): 244, (1, 1): 246}
            wr += [o(f"v_add_u32 v243, {16*192}, v{t0r}"), o(f"v_add_u32 v244, 6144, v{t0r}"), o(f"v_add_u32 v246, {6144 + 16*192}, v{t0r}")]
            for pq, accf in ((0, accP), (1, accQ)):
                for tt in range(2):
                    for ss in range(3):
                        for r in (0, 2):
                            wr += [ds(f"ds_write2_b32 v{WB[(pq, tt)]}, v{accf(tt,ss)+r}, v{accf(tt,ss)+r+1} offset0:{r*48 + ss*16} offset1:{(r+1)*48 + ss*16}", "sred_w")]
            if self.opts.get('nowr'): wr = wr[:10] + wr[-1:]
            e = sl.stream(wr, a0, a0 + self.opts.get("wwin", 22))
        else:
            for pq, accf in ((0, accP), (1, accQ)):
                for tt in range(2):
                    for ss in range(3):
                        for r in range(4):
                            wr += [ds(f"ds_write_b32 v{t0r}, v{accf(tt,ss)+r} offset:{pq*6144 + (16*tt + r)*192 + ss*64}", "sred_w")]
            e = sl.stream(wr, a0, a0 + 30)
        wr2 = [G([o(f"s_mul_i32 s{S_C}, s{S_W}, 384"), o(f"s_add_u32 s{S_C}, s{S_C}, {N1A}")]), o(f"v_add_u32 v{t1r}, s{S_C}, v{t1r}"), o(f"v_mov_b32 v245, 0x30000"),
               G([o("v_cmp_gt_u32 vcc, 16, v0"), o("v_nop"), o("v_nop"), o(f"v_cndmask_b32 v{t1r}, v245, v{t1r}, vcc")])]
        for ss in range(3):
            wr2 += [ds(f"ds_write_b32 v{t1r}, v{A5P[ss]} offset:{ss*64}", "sred_w"), ds(f"ds_write_b32 v{t1r}, v{A5Q[ss]} offset:{(3+ss)*64}", "sred_w")]
        e = sl.stream(wr2, e + 1, e + 8)
        b1 = e + 1
        sl.put(b1, [wlg("sred_w"), o("s_barrier")])
        R0, R1 = 112, 48
        A0, A1, YD0, YM0, YD1, YM1 = 232, 233, 234, 235, 236, 237
        def rowcalc(dst):
            return [o(f"v_mul_lo_u32 v238, v238, s{T7}"), o(f"v_add_u32 v238, s{T4}, v238")]
        def ymir(YD, YM):
            return [o(f"v_mul_u32_u24 v{YD}, {YP}, v238"), o(f"v_add_u32 v{YD}, v{YD}, v239"),
                    o(f"v_sub_u32 v{YM}, 2048, v238"), o(f"v_mul_u32_u24 v{YM}, {YP}, v{YM}"), o(f"v_add_u32 v{YM}, v{YM}, v239"),
                    o(f"v_and_b32 v238, 0x3ff, v238"),
                    G([o(f"v_cmp_eq_u32 vcc, 0, v238"), o(f"v_mov_b32 v238, {OOB:#x}"), o("v_nop"), o(f"v_cndmask_b32 v{YM}, v{YM}, v238, vcc")])]
        ad = [G([o(f"s_lshl_b32 s{T3}, s{S_MT}, 5"), o(f"s_add_u32 s{T3}, s{T3}, s{S_TAU}"), o(f"s_and_b32 s{T4}, s{S_W}, 1")]),
              G([o(f"s_lshl_b32 s{T4}, s{T4}, 4"), o(f"s_add_u32 s{T4}, s{T4}, s{T3}"), o(f"s_sub_u32 s{T3}, 1024, s{T4}")]),
              G([o(f"s_cmp_lt_u32 s{S_W}, 2"), o(f"s_cselect_b32 s{T4}, s{T4}, s{T3}"), o(f"s_cselect_b32 s{T7}, 2, -2")]),
              G([o(f"s_lshl_b32 s{T3}, s{S_W}, 3"), o(f"s_mul_i32 s{T3}, s{T3}, 192"), o(f"s_add_u32 s{T3}, s{T3}, {SC}")]),
              G([o(f"s_and_b32 s{T5}, s{S_J}, 7"), o(f"s_mul_i32 s{T5}, s{T5}, 144")]),
              o(f"v_lshrrev_b32 v238, 3, v0"), o(f"v_and_b32 v239, 7, v0"),
              o(f"v_mul_u32_u24 v{A0}, 192, v238"), o(f"v_lshlrev_b32 v239, 4, v239"), o(f"v_add_u32 v{A0}, v{A0}, v239"), o(f"v_add_u32 v{A0}, s{T3}, v{A0}")] + \
             rowcalc(0) + [o(f"v_add_u32 v239, s{T5}, v239")] + ymir(YD0, YM0) + \
             [o(f"v_and_b32 v238, 7, v0"), o(f"v_lshrrev_b32 v239, 3, v0"), o(f"v_add_u32 v239, 8, v239"), o(f"v_min_u32 v239, 9, v239"),
              o(f"v_mul_u32_u24 v{A1}, 192, v238"), o(f"v_lshlrev_b32 v239, 4, v239"), o(f"v_add_u32 v{A1}, v{A1}, v239"), o(f"v_add_u32 v{A1}, s{T3}, v{A1}")] + \
             rowcalc(1) + [o(f"v_add_u32 v239, s{T5}, v239")] + ymir(YD1, YM1) + \
             [G([o(f"s_cmp_eq_u32 s{T5}, {7*144}"), o(f"s_cselect_b32 s{T5}, 16, 8")]), o(f"v_mov_b32 v238, {OOB:#x}"),
              G([o(f"v_cmp_gt_u32 vcc, s{T5}, v0"), o("v_nop"), o("v_nop"), o(f"v_cndmask_b32 v{YD1}, v238, v{YD1}, vcc"), o(f"v_cndmask_b32 v{YM1}, v238, v{YM1}, vcc")]),
              o(f"s_mov_b32 s{T4}, {WS_YH}")]
        e = sl.stream(ad, a0 + 2, b1)
        assert e <= b1 + 6
        def rds(R, A, tag):
            return [ds(f"ds_read_b128 v[{R + 16*pq + 4*ww}:{R + 16*pq + 4*ww + 3}], v{A} offset:{ww*12288 + pq*6144}", tag) for pq in range(2) for ww in range(4)]
        e = sl.stream(rds(R0, A0, "sr0") + rds(R1, A1, "sr1"), max(e, b1) + 1, max(e, b1) + 10)
        b2 = e + 3
        sl.put(b2, [wlg("sr1"), o("s_barrier")])
        self.b2 = b2
        def fin(R, YD, YM):
            out = []
            for pq in range(2):
                b_ = R + 16*pq
                for k in range(4):
                    out += [o(f"v_add_f32 v{b_+k}, v{b_+k}, v{b_+4+k}"), o(f"v_add_f32 v{b_+8+k}, v{b_+8+k}, v{b_+12+k}"), o(f"v_add_f32 v{b_+k}, v{b_+k}, v{b_+8+k}")]
            for k in range(4):
                out += [o(f"v_sub_f32 v{R+4+k}, v{R+k}, v{R+16+k}"), o(f"v_add_f32 v{R+8+k}, v{R+k}, v{R+16+k}")]
            out += [vm(f"buffer_store_dwordx4 v[{R+4}:{R+7}], v{YD}, s[{SR_WS}:{SR_WS+3}], s{T4} offen sc1", "yst"),
                    vm(f"buffer_store_dwordx4 v[{R+8}:{R+11}], v{YM}, s[{SR_WS}:{SR_WS+3}], s{T4} offen sc1", "yst")]
            return out
        ff = fin(R1, YD1, YM1) + fin(R0, YD0, YM0)
        if self.opts.get('nofin'): ff = [vm(f'buffer_store_dword v{V_PF}, v{V_ONE0}, s[{SR_OUT}:{SR_OUT+3}], 0 offen offset:4000', 'yst')]
        e = sl.stream(ff, b2 + 1, P2_0 + 66, spill=3)
        assert e < P2_0 + 72, e
        n1 = [o(f"v_and_b32 v238, 15, v0"), o(f"v_lshlrev_b32 v238, 2, v238"), o(f"v_add_u32 v238, {N1A}, v238")]
        for ss in range(3):
            for ww in range(4):
                n1 += [ds(f"ds_read_b32 v{64+4*ss+ww}, v238 offset:{ww*384 + ss*64}", "sred_n"), ds(f"ds_read_b32 v{128+4*ss+ww}, v238 offset:{ww*384 + (3+ss)*64}", "sred_n")]
        n1 += [wlg("sred_n")]
        for ss in range(3):
            for b_ in (64 + 4*ss, 128 + 4*ss):
                n1 += [o(f"v_add_f32 v{b_}, v{b_}, v{b_+1}"), o(f"v_add_f32 v{b_+2}, v{b_+2}, v{b_+3}"), o(f"v_add_f32 v{b_}, v{b_}, v{b_+2}")]
            n1 += [o(f"v_sub_f32 v{64+4*ss+1}, v{64+4*ss}, v{128+4*ss}"), o(f"v_add_f32 v{64+4*ss+2}, v{64+4*ss}, v{128+4*ss}")]
        n1 += [G([o(f"s_or_b32 s{T3}, s{S_TAU}, s{S_W}"), o(f"s_or_b32 s{T3}, s{T3}, s{S_MT}"), o(f"s_cmp_eq_u32 s{T3}, 0"), o(f"s_cselect_b32 s{T3}, 16, 0")]),
               G([o(f"v_cmp_gt_u32 vcc, s{T3}, v0"), o(f"v_mov_b32 v238, 0"), o(f"v_mov_b32 v239, {OOB:#x}"), o(f"v_cndmask_b32 v238, v239, v238, vcc")])]
        for ss in range(3):
            n1 += [o(f"v_add_u32 v{128+4*ss+1}, v238, v{V_YC[ss]}")]
        n1 += [o(f"s_mov_b32 s{T3}, {WS_YH + 512*YP}"), o(f"s_mov_b32 s{T5}, {WS_YH + 1536*YP}")]
        for ss in range(3):
            n1 += [vm(f"buffer_store_dword v{64+4*ss+1}, v{128+4*ss+1}, s[{SR_WS}:{SR_WS+3}], s{T3} offen sc1", "yst"),
                   vm(f"buffer_store_dword v{64+4*ss+2}, v{128+4*ss+1}, s[{SR_WS}:{SR_WS+3}], s{T5} offen sc1", "yst")]
        blk = [o(f"s_or_b32 s{T3}, s{S_TAU}, s{S_MT}"), o(f"s_cmp_eq_u32 s{T3}, 0"), o("s_cbranch_scc0 L_no512b")]
        for i in flat(n1):
            if i.k == "wlg": blk.append(o("s_waitcnt lgkmcnt(0)"))
            elif i.k in ("ds", "vm"): blk.append(I(i.t, "o"))
            else: blk.append(i)
        blk += [raw("L_no512b:")]
        M[max(e + 2, P2_0 + 70)].setdefault("before", []).extend(blk)
        gpar = fu[("s2", (0, "par"))]
        PF2 = 231
        sl.put(660, [G([o(f"s_xor_b32 s{T0}, s{S_LID}, 1"), o(f"s_lshl_b32 s{T1}, s{T0}, 7"), o(f"s_add_u32 s{T1}, s{T1}, {WS_FLAG}")])])
        sl.put(661, [G([o(f"s_lshl_b32 s{T0}, s{T0}, 2"), o(f"s_add_u32 s{T0}, s{T0}, s{S_W}"), o(f"s_mul_i32 s{T0}, s{T0}, {18*1024}")]), o(f"s_add_u32 s{T0}, s{T0}, {WS_HX}")])
        pl = f"buffer_load_dword v242, off, s[{SR_WS}:{SR_WS+3}], s{T1} sc1"
        def hload(k, n, t, tag):
            if self.opts.get("nohp"):
                sl.put(t + 1, [vm(f"buffer_load_dword v{V_PF}, v{V_ONE0}, s[{SR_WS}:{SR_WS+3}], 0 offen", tag)]); return
            sl.put(t, [o(f"s_add_u32 s{T6}, s{T0}, {k*1024}")])
            sl.put(t + 1, self.dload([f"buffer_load_dwordx4 a[{HPB+4*(k+q)}:{HPB+4*(k+q)+3}], v{V_L16}, s[{SR_WS}:{SR_WS+3}], s{T6} offen offset:{q*1024}" for q in range(n)], tag, True))
        if self.opts.get("onepoll") == 2:
            sl.put(640, [vm(pl, "hpoll1")]) if False else None
            sl.put(S0 + 14, [vm(pl, "hpoll1")])
            sl.put(S0 + 18, [wvm("hpoll1")]) if False else None
            tcheck = S0 + 22
            sl.put(tcheck - 2, [wvm("hpoll1")])
            sl.put(tcheck - 1, [o(f"v_readfirstlane_b32 s{T2}, v242")])
            M[tcheck + 2].setdefault("before", []).extend(
                [o(f"s_cmp_ge_u32 s{T2}, 1"), o("s_cbranch_scc1 L_hq_ok")] +
                self.spin("L_hq", [o(pl)], [o(f"v_readfirstlane_b32 s{T2}, v242"), o("s_nop 3"), o(f"s_cmp_ge_u32 s{T2}, 1")]))
            st_ = self.opts.get("hstep1", 10)
            for i in range(6): hload(2*i, 2, tcheck + 3 + st_*i, ("hp", i))
            tq = P2_0 + self.opts.get("tq", 40)
            assert tq > tcheck + 3 + st_*5 + 2
            sl.put(tq, [vm(pl, "hpoll2")])
            sl.put(tq + 10, [wvm("hpoll2")])
            sl.put(tq + 11, [o(f"v_readfirstlane_b32 s{T2}, v242")])
            M[tq + 14].setdefault("before", []).extend(
                [o(f"s_cmp_ge_u32 s{T2}, 2"), o("s_cbranch_scc1 L_hp_ok")] +
                self.spin("L_hp", [o(pl)], [o(f"v_readfirstlane_b32 s{T2}, v242"), o("s_nop 3"), o(f"s_cmp_ge_u32 s{T2}, 2")]))
            for i in range(3): hload(12 + 2*i, 2, tq + 15 + 10*i, ("hp", 6 + i))
        elif self.opts.get("onepoll"):
            tq = P2_0 + self.opts.get("tq", 4)
            sl.put(tq, [vm(pl, "hpoll2")])
            sl.put(tq + 10, [wvm("hpoll2")])
            sl.put(tq + 11, [o(f"v_readfirstlane_b32 s{T2}, v242")])
            M[tq + 14].setdefault("before", []).extend(
                [o(f"s_cmp_ge_u32 s{T2}, 2"), o("s_cbranch_scc1 L_hp_ok")] +
                self.spin("L_hp", [o(pl)], [o(f"v_readfirstlane_b32 s{T2}, v242"), o("s_nop 3"), o(f"s_cmp_ge_u32 s{T2}, 2")]))
            for i in range(9):
                hload(2*i, 2, tq + 15 + self.opts.get("hstep", 9)*i, ("hp", i))
        else:
            h1 = self.opts.get("h1", P2_0 - 12)
            sl.put(h1, [vm(pl, "hpoll1")])
            sl.put(h1 + 12, [wvm("hpoll1")])
            sl.put(h1 + 13, [o(f"v_readfirstlane_b32 s{T2}, v242")])
            M[h1 + 16].setdefault("before", []).extend(
                [o(f"s_cmp_ge_u32 s{T2}, 1"), o("s_cbranch_scc1 L_hq_ok")] +
                self.spin("L_hq", [o(pl)], [o(f"v_readfirstlane_b32 s{T2}, v242"), o("s_nop 3"), o(f"s_cmp_ge_u32 s{T2}, 1")]))
            def hload(k, n, t, tag):
                sl.put(t, [o(f"s_add_u32 s{T6}, s{T0}, {k*1024}")])
                sl.put(t + 1, self.dload([f"buffer_load_dwordx4 a[{HPB+4*(k+q)}:{HPB+4*(k+q)+3}], v{V_L16}, s[{SR_WS}:{SR_WS+3}], s{T6} offen offset:{q*1024}" for q in range(n)], tag, True))
            for i in range(6):
                hload(2*i, 2, h1 + 17 + 9*i, ("hp", i))
            tp = P2_0 + self.opts.get("tp2", 74)
            assert tp - 13 > h1 + 17 + 9*5 + 1
            sl.put(tp - 13, [vm(pl, "hpoll2")])
            sl.put(tp - 2, [wvm("hpoll2")])
            sl.put(tp - 1, [o(f"v_readfirstlane_b32 s{T2}, v242")])
            M[tp + 2].setdefault("before", []).extend(
                [o(f"s_cmp_ge_u32 s{T2}, 2"), o("s_cbranch_scc1 L_hp_ok")] +
                self.spin("L_hp", [o(pl)], [o(f"v_readfirstlane_b32 s{T2}, v242"), o("s_nop 3"), o(f"s_cmp_ge_u32 s{T2}, 2")]))
            for i in range(3):
                hload(12 + 2*i, 2, tp + 4 + 6*i, ("hp", 6 + i))

        sl.put(gpar - 2, [wvm(("hp", 5))])
        off = 24 if self.opts.get("klate", 1) else 12
        for i in range(3):
            sl.put(gpar + off + 2*i - 2, [wvm(("hp", 6 + i))])
        for i in range(3, 9):
            st = stages[i]; slot = slot_of[st]
            prev = [j for j in range(i) if slot_of[stages[j]] == slot]
            if prev:
                t = lu[("s2", stages[prev[-1]])]; fbar(t); start = t + 1
            else:
                start = b2 + 1
            grps = self.dma_p2(st, slot, False, 250, 251, 0)
            if st[0] == 4:
                grps = [[o(f"s_and_b32 s{S_C}, s{S_W}, 1"), o(f"s_mul_i32 s{S_C}, s{S_C}, {16*1152}")]] + grps
                place(grps, start, 1)
            else:
                place(grps, start, 2)
        s4 = slot_of[(4, "both")]
        ins = [o("v_lshrrev_b32 v250, 5, v0"), o("v_lshlrev_b32 v250, 8, v250"),
               o("v_bfe_u32 v251, v0, 2, 2"), o("v_lshlrev_b32 v251, 6, v251"), o("v_add_u32 v250, v250, v251"),
               o("v_bfe_u32 v251, v0, 4, 1"), o("v_lshlrev_b32 v251, 5, v251"), o("v_add_u32 v250, v250, v251"),
               o("v_and_b32 v251, 3, v0"), o("v_lshlrev_b32 v251, 3, v251"), o("v_add_u32 v250, v250, v251"),
               o(f"v_add_u32 v{V_R8}, {s4*SLOT}, v250")]
        sl.stream(ins, P2_0 + 150, P2_0 + 175)
        self.pipe_reduce(sl, M, fu, lu, P2_0, N)
        for (u, half), tl in sorted(tile_last.items(), key=lambda x: x[1]):
            acc = ACC[u][half]
            par = half
            t = TMP + 8*par
            st = S_ST0 + par
            ins = [o(f"v_cvt_pk_bf16_f32 v{t+i}, v{acc+2*i}, v{acc+2*i+1}") for i in range(8)]
            if u == 3 and half == 1: continue
            if u < 3: ins += [o(f"s_add_u32 s{st}, s{S_QU[u]}, {half*2048}")]
            elif u == 3: ins += [o(f"s_mov_b32 s{st}, s{S_QN}")]
            else: ins += [o(f"s_mov_b32 s{st}, s{S_Q8}")]
            ins += self.dstore([f"buffer_store_dwordx4 v[{t}:{t+3}], v{V_L16}, s[{SR_WS}:{SR_WS+3}], s{st} offen",
                                f"buffer_store_dwordx4 v[{t+4}:{t+7}], v{V_L16}, s[{SR_WS}:{SR_WS+3}], s{st} offen offset:1024"], ("pst", u))
            s0 = tl + 4
            if s0 + 10 <= N: sl.stream(ins, s0, s0 + 10)
            else: self.tail2 = [o("s_nop 15")] + ins

    def item_setup(self, kind, R, srd=None, split=False):
        t0, t1, t2, t3 = R["t"]
        sQ, sH, sB, sT = T2, T3, T4, T5
        L = []
        LD = []
        SW = SR_WS if srd is None else srd
        if kind == "A":
            L += [G([o(f"s_lshl_b32 s{sT}, s{S_J}, 2"), o(f"s_add_u32 s{sT}, s{sT}, s{S_W}"), o(f"s_lshr_b32 s{sQ}, s{sT}, 3")]),
                  G([o(f"s_cmp_lt_u32 s{sQ}, 4"), o(f"s_cselect_b32 s{sH}, 0, 6"), o(f"s_add_u32 s{sQ}, s{sQ}, s{sH}")])]
        elif kind in "BC":
            lo, hi = (4, 12) if kind == "B" else (6, 14)
            L += [G([o(f"s_lshl_b32 s{sT}, s{S_J}, 1"), o(f"s_lshr_b32 s{sH}, s{S_W}, 1"), o(f"s_add_u32 s{sT}, s{sT}, s{sH}")]),
                  G([o(f"s_lshr_b32 s{sQ}, s{sT}, 3"), o(f"s_cmp_lt_u32 s{sQ}, 2"), o(f"s_cselect_b32 s{sH}, {lo}, {hi}")]),
                  o(f"s_add_u32 s{sQ}, s{sQ}, s{sH}")]
        else:
            L += [G([o(f"s_lshr_b32 s{sT}, s{S_J}, 1"), o(f"s_and_b32 s{sQ}, s{S_J}, 1"), o(f"s_add_u32 s{sQ}, s{sQ}, 8")])]
        L += [G([o(f"s_and_b32 s{sH}, s{sT}, 1"), o(f"s_bfe_u32 s{sB}, s{sT}, 0x20001"), o(f"s_lshl_b32 s{sT}, s{S_MT}, 2")]),
              o(f"s_add_u32 s{sB}, s{sB}, s{sT}"),
              G([o(f"s_mul_i32 s{sT}, s{sB}, 18"), o(f"s_add_u32 s{sT}, s{sT}, s{sQ}"), o(f"s_lshl_b32 s{sT}, s{sT}, 1")]),
              G([o(f"s_add_u32 s{sT}, s{sT}, s{sH}"), o(f"s_lshl_b32 s{sT}, s{sT}, 10")])]
        so = R["so"]
        for p in range(8): L += [o(f"s_add_u32 s{so+p}, s{sT}, {p*PART_BYTES}")]
        if kind == "A":
            L += [o(f"v_mov_b32 v{t3}, 0")]
        elif kind in "BC":
            L += [o(f"s_and_b32 s{sT}, s{S_W}, 1"), o(f"v_bfe_u32 v{t0}, v0, 4, 1"), o(f"v_mov_b32 v{t1}, {OOB:#x}"), o(f"v_mov_b32 v{t3}, 0"),
                  G([o(f"v_cmp_eq_u32 vcc, s{sT}, v{t0}"), o("v_nop"), o("v_nop"), o(f"v_cndmask_b32 v{t3}, v{t1}, v{t3}, vcc")])]
        else:
            L += [o(f"v_bfe_u32 v{t0}, v0, 3, 2"), o(f"v_mov_b32 v{t1}, {OOB:#x}"), o(f"v_mov_b32 v{t3}, 0"),
                  G([o(f"v_cmp_eq_u32 vcc, s{S_W}, v{t0}"), o("v_nop"), o("v_nop"), o(f"v_cndmask_b32 v{t3}, v{t1}, v{t3}, vcc")])]
        PV = R["PV"]
        L += [o(f"v_add_u32 v{PV}, v{t3}, v{V_L16}")]
        pk, pb = R["P"]
        ldp = [vm(f"buffer_load_dwordx4 {pk}[{pb+4*p}:{pb+4*p+3}], v{PV}, s[{SW}:{SW+3}], s{so+p} offen sc1", ("it", kind)) for p in range(8)]
        if split: LD += ldp
        else: L += ldp
        X, Y, OA = R["X"], R["Y"], R["OA"]
        L += self.rowmir(sB, sT, t0, t1, t2, OA) + [
              G([o(f"s_lshl_b32 s{sT}, s{sQ}, 6"), o(f"s_lshl_b32 s{sB}, s{sH}, 5"), o(f"s_add_u32 s{sT}, s{sT}, s{sB}")]),
              o(f"v_mul_u32_u24 v{t2}, 1152, v{t0}"), o(f"v_add_u32 v{t2}, s{sT}, v{t2}"), o(f"v_add_u32 v{t2}, v{t2}, v{t3}"),
              o(f"v_lshrrev_b32 v{X}, 5, v0"), o(f"v_lshlrev_b32 v{OA}, 4, v{X}"), o(f"v_add_u32 v{OA}, v{t2}, v{OA}"),
              o(f"v_lshlrev_b32 v{X}, 3, v{X}"), o(f"v_add_u32 v{t2}, v{t2}, v{X}"),
              vm(f"buffer_load_dwordx2 v[{X}:{X+1}], v{t2}, s[{SR_X}:{SR_X+3}], 0 offen", ("it", kind)),
              vm(f"buffer_load_dwordx2 v[{X+2}:{X+3}], v{t2}, s[{SR_X}:{SR_X+3}], 0 offen offset:16", ("it", kind)),
              G([o(f"s_lshl_b32 s{sT}, s{sT}, 1"), o(f"s_cmp_lt_u32 s{sQ}, 9"), o(f"s_cselect_b32 s{R['rev']}, 0, 1")]),
              G([o(f"s_sub_u32 s{sB}, 2292, s{sT}"), o(f"s_cmp_lt_u32 s{sQ}, 9"), o(f"s_cselect_b32 s{sT}, s{sT}, s{sB}"), o(f"s_cselect_b32 s{sB}, 1, -1")]),
              G([o(f"v_cmp_eq_u32 vcc, 1, v{PV}") if False else o(f"v_mov_b32 v{t2}, s{R['rev']}"), o(f"v_cmp_eq_u32 vcc, 1, v{t2}"), o("v_nop"), o("v_nop"),
                 o(f"v_cndmask_b32 v{t0}, v{t0}, v{t1}, vcc")]),
              o(f"v_mul_u32_u24 v{t0}, {YP}, v{t0}"), o(f"v_add_u32 v{t0}, s{sT}, v{t0}"), o(f"v_add_u32 v{t0}, v{t0}, v{t3}"),
              o(f"v_lshrrev_b32 v{t1}, 5, v0"), o(f"v_lshlrev_b32 v{t1}, 4, v{t1}"), o(f"v_mul_lo_u32 v{t1}, v{t1}, s{sB}"),
              o(f"v_add_u32 v{t0}, v{t0}, v{t1}"),
              o(f"s_lshl_b32 s{sB}, s{sB}, 5"), o(f"v_add_u32 v{t1}, s{sB}, v{t0}"), o(f"v_add_u32 v{t0}, {WS_YH}, v{t0}"), o(f"v_add_u32 v{t1}, {WS_YH}, v{t1}")]
        ldy = [vm(f"buffer_load_dwordx4 v[{Y}:{Y+3}], v{t0}, s[{SW}:{SW+3}], 0 offen sc1", ("it", kind)),
               vm(f"buffer_load_dwordx4 v[{Y+4}:{Y+7}], v{t1}, s[{SW}:{SW+3}], 0 offen sc1", ("it", kind))]
        if split:
            LD += ldy
            return L, LD
        return L + ldy

    def item_finish(self, kind, R):
        X, Y, OA = R["X"], R["Y"], R["OA"]
        t0, t1, t2, t3 = R["t"]
        pk, pb = R["P"]
        L = [wvm(("it", kind)),
             o(f"s_cmp_eq_u32 s{R['rev']}, 0"), o(f"s_cbranch_scc1 L_rv{kind}"),
             o(f"v_swap_b32 v{Y}, v{Y+3}"), o(f"v_swap_b32 v{Y+1}, v{Y+2}"), o(f"v_swap_b32 v{Y+4}, v{Y+7}"), o(f"v_swap_b32 v{Y+5}, v{Y+6}"),
             raw(f"L_rv{kind}:"),
             o(f"s_mov_b32 s{T0}, 0x3f80"), o(f"s_mov_b32 s{T1}, 0x3f800000")]
        for i in range(4):
            L += [o(f"v_dot2_f32_bf16 v{Y+2*i}, v{X+i}, s{T0}, v{Y+2*i}"), o(f"v_dot2_f32_bf16 v{Y+2*i+1}, v{X+i}, s{T1}, v{Y+2*i+1}")]
        for p in range(8):
            for i in range(4):
                r = pb + 4*p + i
                if pk == "a":
                    L += [o(f"v_accvgpr_read_b32 v{t0 + (i & 1)}, a{r}")]
                    src = t0 + (i & 1)
                else: src = r
                L += [o(f"v_dot2_f32_bf16 v{Y+2*i}, v{src}, s{T0}, v{Y+2*i}"), o(f"v_dot2_f32_bf16 v{Y+2*i+1}, v{src}, s{T1}, v{Y+2*i+1}")]
        L += [o("s_nop 2")]
        for i in range(4):
            L += [o(f"v_cvt_pk_bf16_f32 v{X+i}, v{Y+2*i}, v{Y+2*i+1}")]
        L += [o("s_nop 1"), o(f"v_permlane32_swap_b32 v{X}, v{X+2}"), o(f"v_permlane32_swap_b32 v{X+1}, v{X+3}"),
              vm(f"buffer_store_dwordx4 v[{X}:{X+3}], v{OA}, s[{SR_OUT}:{SR_OUT+3}], 0 offen{self.osfx}", "out")]
        return L

    def group_poll(self, label, val, vdst, voff):
        ld = f"buffer_load_dword v{vdst}, v{voff}, s[{SR_WS}:{SR_WS+3}], s{T6} offen sc1"
        chk = [o(f"v_cmp_le_u32 vcc, {val}, v{vdst}"), o("s_nop 0"), o(f"s_and_b32 s{T7}, vcc_lo, 0xff"), o(f"s_cmp_eq_u32 s{T7}, 0xff")]
        return ld, chk

    def items_cfg(self):
        self.RA = dict(P=("v", 80), X=112, Y=116, OA=124, PV=125, t=[126, 127, 16, 17], rev=24, so=16)
        self.RB = dict(P=("a", 0), X=18, Y=22, OA=30, PV=31, t=[48, 49, 50, 51], rev=25, so=16)
        self.RC = dict(P=("v", 176), X=208, Y=212, OA=220, PV=221, t=[222, 223, 224, 225], rev=26, so=16)
        self.RD = dict(P=("v", 128), X=160, Y=164, OA=172, PV=173, t=[174, 175, 226, 227], rev=27, so=84)

    def tail(self):
        L = list(self.late_loads)
        O = 128
        ld, chk = self.group_poll("L_f5", 5, 241, 242)
        L += [vm(ld, "fp5")]
        L += self.stamp("pub")
        RD = self.RDx; Ld = self.D_ld
        L += [wvm("op"), wvm("ox"), o(f"s_mov_b32 s{T0}, 0x3f80"), o(f"s_mov_b32 s{T1}, 0x3f800000"),
              o("s_cmp_eq_u32 s24, 0"), o("s_cbranch_scc1 L_oyd")]
        for g_ in range(4):
            for k in range(4): L += [o(f"v_add_f32 v{O+4*g_+k}, v{O+4*g_+k}, v{48 + 4*(3-g_) + 3 - k}")]
        L += [o("s_branch L_oyj"), raw("L_oyd:")]
        for r in range(16): L += [o(f"v_add_f32 v{O+r}, v{O+r}, v{48+r}")]
        L += [raw("L_oyj:")]
        for i in range(8):
            L += [o(f"v_dot2_f32_bf16 v{O+2*i}, v{24+i}, s{T0}, v{O+2*i}"), o(f"v_dot2_f32_bf16 v{O+2*i+1}, v{24+i}, s{T1}, v{O+2*i+1}")]
        for p in range(6):
            for i in range(8):
                L += [o(f"v_dot2_f32_bf16 v{O+2*i}, v{80+8*p+i}, s{T0}, v{O+2*i}"), o(f"v_dot2_f32_bf16 v{O+2*i+1}, v{80+8*p+i}, s{T1}, v{O+2*i+1}")]
        L += self.stamp("early")
        L += [wvm("fp5")] + chk + [o("s_cbranch_scc1 L_f5_ok")] + self.spin("L_f5", [o(ld)], chk) + [reset()]
        L += self.stamp("pok")
        L += [vm(f"buffer_load_dwordx4 v[16:19], v{V_L16}, s[{SR_WS}:{SR_WS+3}], s22 offen sc1", "sib"),
              vm(f"buffer_load_dwordx4 v[20:23], v{V_L16}, s[{SR_WS}:{SR_WS+3}], s22 offen offset:1024 sc1", "sib")]
        L += Ld
        L += [wvm("sib")]
        for i in range(8):
            L += [o(f"v_dot2_f32_bf16 v{O+2*i}, v{16+i}, s{T0}, v{O+2*i}"), o(f"v_dot2_f32_bf16 v{O+2*i+1}, v{16+i}, s{T1}, v{O+2*i+1}")]
        L += [o("s_nop 2")]
        for i in range(8): L += [o(f"v_cvt_pk_bf16_f32 v{24+i}, v{O+2*i}, v{O+2*i+1}")]
        L += [o("s_nop 1"), o("v_permlane32_swap_b32 v24, v26"), o("v_permlane32_swap_b32 v25, v27"),
              o("v_permlane32_swap_b32 v28, v30"), o("v_permlane32_swap_b32 v29, v31"),
              vm(f"buffer_store_dwordx4 v[24:27], v238, s[{SR_OUT}:{SR_OUT+3}], 0 offen{self.osfx}", "out"),
              vm(f"buffer_store_dwordx4 v[28:31], v238, s[{SR_OUT}:{SR_OUT+3}], 0 offen offset:32{self.osfx}", "out")]
        L += self.stamp("ownfin")
        L += self.item_finish("D", RD)
        return L

    def kernel(self, name):
        L = [raw(f".globl {name}"), raw(".p2align 8"), raw(f".type {name},@function"), raw(f"{name}:")]
        L += self.prologue()
        L += self.stamp("proend")
        L += self.ln_stats()
        L += self.stamp("stats")
        L += [o("s_barrier")]
        L += [o(f"s_mov_b32 s{S_A}, s{S_J}"), o(f"s_add_u32 s{S_B}, s{S_J}, 16")]
        L += self.h_dma(S_A, 2, "wz1")
        L += [o(f"s_cmp_lt_u32 s{S_J}, 2"), o("s_cbranch_scc0 L_noz2a")]
        L += [I(i.t, "o") if i.k == "vm" else i for i in self.h_dma(S_B, 3, "wz2")]
        L += [raw("L_noz2a:")]
        hd = []
        for sig in range(2):
            for grp in self.dma_p1(sig, sig): hd.append(grp)
        if self.opts.get("lbulk"):
            hd.append([o(f"s_lshl_b32 s{S_PF}, s{S_MT}, 2"), o(f"s_add_u32 s{S_PF}, s{S_PF}, s{S_W}"), o(f"s_mul_i32 s{S_PF}, s{S_PF}, 45"),
                   o(f"v_add_u32 v240, s{S_PF}, v0"), o(f"s_mov_b32 s{S_PF}, {(2**32+4)//5}"), o(f"v_mul_hi_u32 v241, v240, s{S_PF}"),
                   o("v_mul_u32_u24 v242, 5, v241"), o("v_sub_u32 v242, v240, v242"), o("v_lshlrev_b32 v242, 7, v242"),
                   o("v_mul_u32_u24 v241, 9216, v241"), o("v_add_u32 v240, v241, v242"),
                   o(f"s_mul_i32 s{S_PF}, s{S_J}, 576"), o(f"s_and_b32 s{S_PF}, s{S_PF}, 0xffffff80"),
                   o("v_cmp_gt_u32 vcc, 45, v0"), o("s_nop 1"), o(f"v_cndmask_b32 v240, v{V_ONE0}, v240, vcc"),
                   vm(f"buffer_load_dword v{V_PF}, v240, s[{SR_WG}:{SR_WG+3}], s{S_PF} offen", "pf"),
                   vm(f"buffer_load_dword v{V_PF}, v240, s[{SR_WU}:{SR_WU+3}], s{S_PF} offen", "pf")])
        else:
            if not self.opts.get('bearly'): hd.append([o(f"s_lshl_b32 s{S_PF}, s{S_LID}, 2"), o(f"s_add_u32 s{S_PF}, s{S_PF}, s{S_W}"), o(f"s_mul_i32 s{S_PF}, s{S_PF}, 41"),
                       o(f"v_add_u32 v240, s{S_PF}, v0"), o("v_lshlrev_b32 v240, 7, v240"), o("v_cmp_gt_u32 vcc, 41, v0"), o("s_nop 1"),
                       o(f"v_cndmask_b32 v240, v{V_ONE0}, v240, vcc"),
                       vm(f"buffer_load_dword v{V_PF}, v240, s[{SR_WG}:{SR_WG+3}], 0 offen", "pf"),
                       vm(f"buffer_load_dword v{V_PF}, v240, s[{SR_WU}:{SR_WU+3}], 0 offen", "pf")])
        lf = self.ln_finish()
        per = -(-len(lf) // 18)
        k = 0
        for n, grp in enumerate(hd):
            L += grp
            if n < 18: L += lf[k:k + per]; k += per
        L += lf[k:]
        L += [o(f"v_subrev_u32 v{V_XA+i}, s{S_LX}, v{V_XA+i}") for i in range(4)]
        L += [o(f"v_add_u32 v{V_XA+i}, {2*SLOT}, v{V_XA+i}") for i in range(4)]
        L += self.stamp("lnfin")
        L += self.seg_norm_h()
        L += self.stamp("normH")
        L += self.h2_block()
        L += self.tr_bases()
        L += srd(SR_HZ, 36, 256)
        L += self.main()
        L += self.stamp("p2end")
        L += self.tail()
        L += self.stamp("end")
        if self.diag:
            L += [o("s_waitcnt vmcnt(0)"),
                  o(f"s_lshl_b32 s{T0}, s{S_LID}, 2"), o(f"s_add_u32 s{T0}, s{T0}, s{S_W}"), o(f"s_lshl_b32 s{T0}, s{T0}, 8"),
                  o(f"s_add_u32 s{T0}, s{T0}, {WS_STAMP}"), o("v_lshlrev_b32 v240, 2, v0"),
                  o(f"buffer_store_dword v{V_STAMP}, v240, s[{SR_WS}:{SR_WS+3}], s{T0} offen")]
        if self.opts.get("hdiag") == 2:
            L += [o("s_waitcnt vmcnt(0)"), o(f"v_readlane_b32 s98, v{V_STAMP}, 32"), o("s_nop 3"),
                  o(f"v_subrev_u32 v240, s98, v{V_STAMP}"),
                  o("v_subrev_u32 v241, 32, v0"), o("v_lshlrev_b32 v241, 2, v241"),
                  o("v_cmp_le_u32 vcc, 32, v0"), o(f"v_mov_b32 v242, {OOB:#x}"), o("s_nop 0"), o("v_cndmask_b32 v241, v242, v241, vcc"),
                  o("v_cmp_gt_u32 vcc, 48, v0"), o("s_nop 1"), o("v_cndmask_b32 v241, v242, v241, vcc"),
                  o(f"s_cmp_eq_u32 s{S_W}, 0"), o("s_cbranch_scc0 L_end"),
                  o(f"buffer_atomic_u{'min' if self.opts.get('hmin') else 'max'} v240, v241, s[{SR_HZ}:{SR_HZ+3}], 0 offen sc1")]
        elif self.opts.get("hdiag"):
            L += [o("s_waitcnt vmcnt(0)"), o("s_memrealtime s[100:101]"), o("s_waitcnt lgkmcnt(0)"),
                  o("s_sub_u32 s97, s100, s98"), o("s_not_b32 s98, s98"),
                  o("v_mov_b32 v240, s100"), o("v_mov_b32 v241, s98"), o("v_mov_b32 v242, s97"),
                  o(f"buffer_atomic_umax v240, v{V_ONE0}, s[{SR_HZ}:{SR_HZ+3}], 0 offen sc1"),
                  o(f"buffer_atomic_umax v241, v{V_ONE0}, s[{SR_HZ}:{SR_HZ+3}], 0 offen offset:4 sc1"),
                  o(f"buffer_atomic_umax v242, v{V_ONE0}, s[{SR_HZ}:{SR_HZ+3}], 0 offen offset:8 sc1")]
            for i, r in enumerate(self.hd_regs):
                pass
        L += [raw("L_end:"), o("s_endpgm")]
        return finalize(flat(L))

NAME = "parallel_sum__spectral_fnet__geglu_ffn__prompt_kernel"
def build(diag=False, opts=None):
    hdr = open("parallel_sum__spectral_fnet__geglu_ffn__prompt.s.ref").read().split("\n")
    top = [l for l in hdr if l.startswith(";") and "@launch" not in l and "Override" not in l and "grid=ceil" not in l]
    g = Gen(diag, opts)
    lines = g.kernel(NAME)
    errs = hazard_check(lines)
    for e in errs[:30]: print("HAZARD:", e)
    txt = "\n".join(top) + "\n"
    txt += "; @launch grid=(256,1,1) block=(256,1,1) lds=163840\n"
    txt += '.amdgcn_target "amdgcn-amd-amdhsa--gfx950"\n.text\n'
    txt += "\n".join(lines) + "\n" + kernel_footer(NAME)
    return txt, g.names

if __name__ == "__main__":
    import sys, json
    opts = {}
    for a in sys.argv[2:]:
        if "=" in a:
            k, v = a.split("="); opts[k] = int(v)
    txt, names = build("diag" in sys.argv, opts)
    open(sys.argv[1], "w").write(txt)
    json.dump(names, open(sys.argv[1] + ".names", "w"))
```

```python
from fw import *
from sched import *
import math, struct

S, D, F = 2048, 576, 4608
SLOT = 36864
SPARE = 4*SLOT
PART_BYTES = S * D * 2
WS_PART = 0
WS_HX = 20 << 20
WS_ZF = 40 << 20
ZF_STRIDE = 34 * 1024
ZF_TYPE = 18 * ZF_STRIDE
WS_YH = 42 << 20
YP = 320 * 4
WS_FLAG = 46 << 20
WS_STAMP = 48 << 20
OOB = 0x40000000
C0 = -2.0 * math.sqrt(2.0 / math.pi) * math.log2(math.e)
C1 = C0 * 0.044715
def f2u(f): return struct.unpack("<I", struct.pack("<f", f))[0]

V_L16 = 1
V_RA, V_RB = 2, 6
V_DM = 10
V_C0, V_C1 = 14, 15
GA = [[16, 32], [48, 64]]
UA = [[80, 96], [112, 128]]
HF = 144
TMP = 216
V_HACC = 232
V_XA = 248
V_R8 = 248
V_PF = 252
V_ONE0 = 253
V_D2 = 254
V_STAMP = 255
RX = 80
V_PERM = 224
V_NEGMU = 64
V_ONE = 231
V_SD = 232
V_SA = 236
V_SX = 240
V_SE = 228
V_ZP = 241
V_ZQ = 244
V_YC = [247, 250, 251]
V_LB = 232
AX = 0
AF = 144
NAF = 8
AZ = 176
HPB = 8
SR_CS, SR_SS, SR_HZ, SR_X, SR_WG, SR_WU, SR_WD, SR_WS, SR_OUT = 4, 8, 12, 40, 44, 48, 52, 56, 60
S_W, S_MT, S_J = 64, 65, 66
S_LX, S_L9 = 67, 68
S_UB = 69
S_WD = 74
S_PB = 75
T0, T1, T2, T3, T4, T5, T6, T7 = 76, 77, 78, 79, 80, 81, 82, 83
S_N0 = 84
S_N1 = 16
S_CU = 25
S_Q0, S_Q8 = 30, 31
S_HB = 32
S_LID = 33
S_ST0, S_ST1 = 34, 35
S_CNT = 93
S_A, S_B, S_C = 94, 95, 96
S_TAU, S_ZB = 38, 39
S_PF = 97
S_XC = 0
S_QU = [30, 36, 37]
S_QN = 39
S_TO = 32
S_PM = 29
S_GA = 28
S_FL = 1
S_MODE = 2
S_D0 = 3

def srd(dst, ptr, nbytes):
    return [o(f"s_mov_b32 s{dst}, s{ptr}"), o(f"s_and_b32 s{dst+1}, s{ptr+1}, 0xffff"),
            o(f"s_mov_b32 s{dst+2}, {nbytes}"), o(f"s_mov_b32 s{dst+3}, 0x00020000")]
def mf32(acc, A, B, C): return o(f"v_mfma_f32_32x32x16_bf16 {acc}, {A}, {B}, {C}")
def mf16(acc, A, B, C): return o(f"v_mfma_f32_16x16x32_bf16 {acc}, {A}, {B}, {C}")

class DS2(I):
    pass

class Gen:
    def dload(self, texts, tag, pair=False):
        out = self.dstore(texts, tag, pair)
        if hasattr(out[0], "cost"): out[0].cost = 3 + len(texts)
        return out
    def dstore(self, texts, tag, pair=False):
        self.lab = getattr(self, "lab", 0) + 1
        n = self.lab
        if self.opts.get("forcemode") == 1 or not self.opts.get("local", 0) or (self.opts.get("cfg", 0) == 0 and not pair):
            return [vm(t + ("" if (self.opts.get("hpplain") and "load" in t) else " sc1"), tag) for t in texts]
        body = f"s_bitcmp1_b32 s{S_MODE}, 0\n    s_cbranch_scc1 L_dl{n}\n"
        body += "".join(f"    {t} sc1\n" for t in texts)
        body += f"    s_branch L_dj{n}\nL_dl{n}:\n"
        body += "".join(f"    {t}\n" for t in texts)
        body += f"L_dj{n}:"
        out = [I("buffer_store_multi " + body, "vm", tag)]
        out[0].t = body
        out[0].cost = 3 + 5*len(texts)
        for _ in texts[1:]:
            x = I("; (counted above)", "vm", tag); x.cost = 0; out.append(x)
        return out
    def __init__(self, diag=False, opts=None):
        self.hd_regs = []
        self.osfx = ' sc1' if (opts or {}).get('osc1') else ''
        self.diag = diag; self.opts = opts or {}; self.nst = 0; self.names = []; self.pid = 0
    def stamp(self, name):
        if not self.diag: return []
        if self.opts.get("hdiag") == 2 and name in ("kernarg", "xiss", "proend", "lnfin", "pub", "early", "pok", "ownfin"): return []
        i = self.nst; self.nst += 1; self.names.append(name)
        return [o("s_memtime s[98:99]"), o("s_memrealtime s[100:101]"), o("s_waitcnt lgkmcnt(0)"),
                o(f"v_writelane_b32 v{V_STAMP}, s98, {i}"), o(f"v_writelane_b32 v{V_STAMP}, s100, {i+32}")]

    def paced(self, M, frags, setup, dist):
        N = len(M)
        sl = Slots(N)
        for g, m in enumerate(M):
            if m["op"] == 16: sl.budget[g] = 3
        head = []
        pid = self.pid; self.pid += 1
        def put(t, ins):
            if t < 0: head.extend(ins if isinstance(ins, list) else [ins])
            else: sl.put(t, ins)
        issue = {}
        for f, fr in enumerate(frags):
            t = fr["use"] - fr.get("dist", dist)
            issue[f] = t
            put(t, fr.get("pre", []))
            put(t, [ds(r, ("af", pid, f)) for r in fr["reads"]])
        waited = -1
        n0 = M[0]["need"]
        if n0 >= 0:
            tgt = max(n0, M[1]["need"])
            head.append(wlg(("af", pid, tgt))); waited = tgt
        for g in range(N - 1):
            nx = M[g+1]["need"]
            if nx > waited:
                tgt = nx
                if g + 2 < N and M[g+2]["need"] > nx and issue[M[g+2]["need"]] <= g - 3 and M[g+1]["op"] == 32: tgt = M[g+2]["need"]
                put(g, [wlg(("af", pid, tgt))]); waited = tgt
        setup(sl, head)
        L = list(head)
        for g, m in enumerate(M):
            L += m.get("before", [])
            c = "0" if m["first"] else m.get("C", m["acc"])
            if m.get("C") and m["first"]: c = m["C"]
            L.append((mf32 if m["op"] == 32 else mf16)(m["acc"], m["A"], m["B"], c))
            L += sl.emit(g)
        if self.opts.get("verbose"):
            over = [(g, sl.used[g], sl.budget[g]) for g in range(N) if sl.used[g] > sl.budget[g]]
            print(f"paced {pid}: N={N} over budget: {len(over)} total excess {sum(u-b for _,u,b in over)} avg used {sum(sl.used)/N:.2f}")
            if self.opts.get("verbose") > 1:
                for a in range(0, N, 36):
                    ex = sum(max(0, sl.used[g]-sl.budget[g]) for g in range(a, min(a+36, N)))
                    print(a, "used", sum(sl.used[a:a+36]), "budget", sum(sl.budget[a:a+36]), "excess", ex)
        return L

    def prologue(self):
        L = []
        if self.opts.get("hdiag"): L += [o("s_memrealtime s[98:99]")]
        if self.diag: L += [o(f"v_mov_b32 v{V_STAMP}, 0")]
        L += self.stamp("start")
        L += [o("s_load_dwordx16 s[16:31], s[0:1], 0"), o("s_load_dwordx8 s[32:39], s[0:1], 64"),
              o("s_cmp_ge_u32 s2, 256"), o("s_cbranch_scc1 L_end")]
        L += [o("v_lshrrev_b32 v2, 6, v0"), o("v_and_b32 v0, 63, v0"), o("s_nop 0"),
              o(f"v_readfirstlane_b32 s{S_W}, v2"),
              ] + self.idmap() + [
              o(f"s_mul_i32 s{S_LX}, s{S_W}, {SLOT}"), o(f"s_mul_i32 s{S_L9}, s{S_W}, 9216"),
              o(f"v_lshlrev_b32 v{V_L16}, 4, v0")]
        if self.opts.get("cpf", 1):
            L += [o("s_getpc_b64 s[82:83]"), raw("L_pc:"),
                  o(f"s_lshr_b32 s{T0}, s2, 3"), o(f"s_lshl_b32 s{T0}, s{T0}, 2"), o(f"s_add_u32 s{T0}, s{T0}, s{S_W}"),
                  o(f"s_lshl_b32 s{T0}, s{T0}, 9"),
                  o("v_and_b32 v2, 3, v0"), o("v_lshlrev_b32 v2, 7, v2"), o(f"v_add_u32 v2, s{T0}, v2"),
                  o("v_cmp_gt_u32 vcc, 4, v0"), o("s_and_saveexec_b64 s[80:81], vcc"),
                  vm(f"global_load_dword v{V_PF}, v2, s[82:83]", "pf"), o("s_mov_b64 exec, s[80:81]")]
        L += [o("v_lshrrev_b32 v2, 3, v0"), o("v_and_b32 v3, 7, v0"), o("v_lshrrev_b32 v4, 1, v2"),
              o("v_xor_b32 v3, v3, v4"), o("v_lshlrev_b32 v3, 4, v3"), o("v_xor_b32 v4, 64, v3"),
              o(f"s_lshl_b32 s{T0}, s{S_MT}, 5"), o(f"s_lshl_b32 s{T1}, s{S_W}, 3"), o(f"s_add_u32 s{T0}, s{T0}, s{T1}"),
              o(f"v_add_u32 v5, s{T0}, v2"),
              o("v_sub_u32 v6, 1024, v5"), o("v_add_u32 v7, 1024, v5"), o("v_sub_u32 v8, 2048, v5"),
              o("v_cmp_eq_u32 vcc, 0, v5"), o("v_mov_b32 v9, 512"), o("s_nop 0"),
              o("v_cndmask_b32 v7, v7, v9, vcc"), o("v_mov_b32 v9, 1536"), o("s_nop 0"), o("v_cndmask_b32 v8, v8, v9, vcc"),
              o(f"s_movk_i32 s{T1}, 1152"),
              o(f"v_mad_u32_u24 v240, v5, s{T1}, v3"), o(f"v_mad_u32_u24 v241, v6, s{T1}, v4"),
              o(f"v_mad_u32_u24 v242, v7, s{T1}, v3"), o(f"v_mad_u32_u24 v243, v8, s{T1}, v4")]
        if self.opts.get("xpf", 1) == 2:
            L += [o(f"s_lshl_b32 s{T0}, s{S_MT}, 4"), o(f"s_add_u32 s{T0}, s{T0}, s{S_J}"), o(f"s_lshl_b32 s{T0}, s{T0}, 2"), o(f"s_add_u32 s{T0}, s{T0}, s{S_W}"),
                  o(f"s_mul_i32 s{T0}, s{T0}, 18"), o(f"v_add_u32 v9, s{T0}, v0"), o("v_lshlrev_b32 v9, 7, v9"),
                  o("v_cmp_gt_u32 vcc, 18, v0"), o(f"v_mov_b32 v8, {OOB:#x}"), o("s_nop 0"), o("v_cndmask_b32 v9, v8, v9, vcc")]
        elif self.opts.get("xpf", 1):
            nsh = 16 if self.opts.get("cfg", 0) == 1 else 4
            per = 1152 // nsh // 4
            assert per <= 64 or True
            jj = f"s{S_J}"
            L += [o(f"s_and_b32 s{T0}, s{S_J}, {nsh-1}"), o(f"s_lshl_b32 s{T0}, s{T0}, 2"), o(f"s_add_u32 s{T0}, s{T0}, s{S_W}"), o(f"s_mul_i32 s{T0}, s{T0}, {per}"),
                  o(f"v_add_u32 v9, s{T0}, v0"),
                  o(f"s_mul_i32 s{T0}, s{S_MT}, {64*1152}"),
                  o(f"s_sub_u32 s{T1}, {(2048-63)*1152 - 576*128}, s{T0}"),
                  o("v_lshlrev_b32 v8, 7, v9"), o(f"v_add_u32 v7, s{T1}, v8"), o(f"v_add_u32 v8, s{T0}, v8"),
                  o("v_cmp_gt_u32 vcc, 0x240, v9"), o("s_nop 1"), o("v_cndmask_b32 v9, v7, v8, vcc"),
                  o(f"v_cmp_gt_u32 vcc, {min(per,64)}, v0"), o(f"v_mov_b32 v8, {OOB:#x}"), o("s_nop 0"), o("v_cndmask_b32 v9, v8, v9, vcc")]
        L += [o("s_waitcnt lgkmcnt(0)")]
        L += self.stamp("kernarg")
        L += srd(SR_X, 16, S*D*2)
        if self.opts.get("xpf", 1):
            L += [vm(f"buffer_load_dword v{V_PF}, v9, s[{SR_X}:{SR_X+3}], 0 offen", "pf")]
        HEAD = L
        P = []
        P += srd(SR_WG, 28, D*F*2) + srd(SR_WU, 30, D*F*2) + srd(SR_WD, 32, F*D*2) + srd(SR_WS, 38, 256 << 20) + srd(SR_OUT, 34, S*D*2)
        P += srd(SR_CS, 18, S*S*2) + srd(SR_SS, 20, S*S*2)
        P += [o(f"s_lshl_b32 s{T0}, s{S_W}, 6"), o(f"v_add_u32 v2, s{T0}, v0"), o("v_cmp_eq_u32 vcc, 0, v2"),
              o(f"v_mov_b32 v3, {OOB:#x}"), o("v_mov_b32 v4, 0"), o(f"v_cndmask_b32 v{V_ONE0}, v3, v4, vcc")]
        P += [o(f"s_lshl_b32 s{S_LID}, s{S_MT}, 4"), o(f"s_add_u32 s{S_LID}, s{S_LID}, s{S_J}")]
        P += [o(f"s_and_b32 s{T2}, s{S_J}, 1"), o(f"s_mul_i32 s{T0}, s{S_J}, 288"), o(f"s_mul_i32 s{T1}, s{T2}, 224"),
              o(f"s_add_u32 s{T1}, s{T0}, s{T1}"),
              G([o(f"s_cmp_eq_u32 s{T2}, 0"), o(f"s_cselect_b32 s{T3}, 64, -64"), o(f"s_cselect_b32 s{T4}, 256, 0")]),
              o(f"s_add_u32 s{T4}, s{T4}, s{T0}")]
        for u in range(4):
            P += [o(f"s_mul_i32 s{T5}, s{T3}, {u}"), o(f"s_add_u32 s{T5}, s{T5}, s{T1}"),
                  o(f"s_lshl_b32 s{S_UB+u}, s{T5}, 1"),
                  o(f"s_mul_i32 s{S_N0+2*u}, s{T5}, 1152"), o(f"s_add_u32 s{S_N0+2*u+1}, s{S_N0+2*u}, {32*1152}")]
        P += [o(f"s_lshl_b32 s{S_UB+4}, s{T4}, 1"), o(f"s_mul_i32 s{S_N0+8}, s{T4}, 1152")]
        P += [o(f"s_mov_b32 s{S_A}, s{S_UB}")]
        P += [o(f"s_mul_i32 s{T5}, s{S_W}, {72*9216}")]
        for u in range(4): P += [o(f"s_add_u32 s{S_UB+u}, s{S_UB+u}, s{T5}")]
        P += [o(f"s_lshl_b32 s{T5}, s{T5}, 1"), o(f"s_add_u32 s{S_UB+4}, s{S_UB+4}, s{T5}")]
        P += [o(f"s_lshr_b32 s{T0}, s{S_J}, 1"), o(f"s_mul_i32 s{S_PB}, s{T0}, {PART_BYTES}"),
              o(f"s_lshl_b32 s{T0}, s{S_MT}, 2"), o(f"s_add_u32 s{T0}, s{T0}, s{S_W}"),
              o(f"s_mul_i32 s{T0}, s{T0}, {18*2048}"), o(f"s_add_u32 s{S_PB}, s{S_PB}, s{T0}"),
              o(f"s_lshl_b32 s{T0}, s{S_LID}, 2"), o(f"s_add_u32 s{T0}, s{T0}, s{S_W}"),
              o(f"s_mul_i32 s{S_HB}, s{T0}, {18*1024}"), o(f"s_add_u32 s{S_HB}, s{S_HB}, {WS_HX}")]
        P += [o("v_lshrrev_b32 v2, 3, v0"), o("v_and_b32 v3, 7, v0"),
              o("v_bfe_u32 v4, v0, 4, 1"), o("v_lshlrev_b32 v4, 2, v4"), o("v_xor_b32 v3, v3, v4"), o("v_lshlrev_b32 v3, 4, v3"),
              o(f"v_mul_u32_u24 v2, 9216, v2"), o(f"v_add_u32 v{V_DM}, v2, v3")]
        for t in range(1, 4): P += [o(f"v_add_u32 v{V_DM+t}, {t*(8*9216-1024)}, v{V_DM}")]
        P += [o("v_and_b32 v2, 31, v0"), o("v_bfe_u32 v3, v0, 1, 3"), o("v_lshrrev_b32 v4, 5, v0"), o("v_xor_b32 v3, v3, v4"),
              o("v_lshlrev_b32 v3, 4, v3"), o("v_lshlrev_b32 v2, 7, v2"), o("v_add_u32 v2, v2, v3"),
              o(f"v_add_u32 v{V_XA}, s{S_LX}, v2"),
              o(f"v_xor_b32 v{V_XA+1}, 32, v{V_XA}"), o(f"v_xor_b32 v{V_XA+2}, 64, v{V_XA}"), o(f"v_xor_b32 v{V_XA+3}, 96, v{V_XA}")]
        P += [o("v_and_b32 v2, 15, v0"),
              o("v_and_b32 v3, 3, v2"), o("v_bfe_u32 v4, v2, 2, 1"), o("v_bfe_u32 v5, v2, 3, 1"),
              o("v_lshlrev_b32 v4, 3, v4"), o("v_lshlrev_b32 v5, 2, v5"), o("v_or_b32 v3, v3, v4"), o("v_or_b32 v3, v3, v5"),
              o("v_lshrrev_b32 v4, 3, v3"), o("v_lshrrev_b32 v5, 5, v0"),
              o("v_and_b32 v6, 1, v3"), o("v_lshlrev_b32 v6, 4, v6"), o("v_mov_b32 v7, 0x3f80"), o("v_lshlrev_b32 v7, v6, v7"), o("v_mov_b32 v8, 0"),
              G([o("v_cmp_eq_u32 vcc, v4, v5"), o("v_nop"), o("v_nop"), o("v_cndmask_b32 v7, v8, v7, vcc")]),
              o("v_bfe_u32 v6, v3, 1, 2"), o("v_bfe_u32 v9, v0, 4, 1")]
        for d in range(4):
            P += [G([o(f"v_cmp_eq_u32 vcc, {d}, v6"), o("v_nop"), o("v_nop"), o(f"v_cndmask_b32 v{V_PERM+d}, v8, v7, vcc")])]
        P += [G([o("v_cmp_eq_u32 vcc, 1, v9"), o("v_nop"), o("v_nop")] + [o(f"v_cndmask_b32 v{V_PERM+4+d}, v8, v{V_PERM+d}, vcc") for d in range(4)] +
                [o(f"v_cndmask_b32 v{V_PERM+d}, v{V_PERM+d}, v8, vcc") for d in range(4)])]
        L = []
        L += [o("v_mov_b32 v4, 0"), o(f"s_lshl_b32 s{T0}, s{S_LID}, 7"), o(f"s_add_u32 s{T0}, s{T0}, {WS_FLAG}"),
              vm(f"buffer_store_dword v4, v{V_ONE0}, s[{SR_WS}:{SR_WS+3}], s{T0} offen sc1", "flinit")]
        L += self.h_srd(S_J)
        if self.opts.get("pf", 1):
            L += [o(f"s_and_b32 s{T0}, s{S_MT}, 7"), o(f"s_mul_i32 s{T0}, s{T0}, 36"), o(f"s_mul_i32 s{T1}, s{S_W}, 9"), o(f"s_add_u32 s{T0}, s{T0}, s{T1}"),
                  o(f"v_add_u32 v2, s{T0}, v0"), o(f"v_mov_b32 v4, {OOB:#x}"),
                  o(f"s_mov_b32 s{T1}, {(2**32+8)//9}"), o(f"v_mul_hi_u32 v5, v2, s{T1}"), o("v_mul_u32_u24 v6, 9, v5"), o("v_sub_u32 v6, v2, v6"),
                  o(f"v_add_u32 v5, s{T7}, v5"), o(f"v_mul_u32_u24 v5, 1152, v5"), o("v_lshlrev_b32 v6, 7, v6"), o("v_add_u32 v5, v5, v6"),
                  o(f"v_mul_u32_u24 v3, 9216, v2"),
                  o("v_cmp_gt_u32 vcc, 9, v0"), o("s_nop 1"), o("v_cndmask_b32 v3, v4, v3, vcc"), o("v_cndmask_b32 v5, v4, v5, vcc"),
                  vm(f"buffer_load_dword v{V_PF}, v5, s[{SR_HZ}:{SR_HZ+3}], 0 offen", "pf")]
            L += [o(f"s_cmp_lt_u32 s{S_J}, 2"), o("s_cbranch_scc0 L_nopf2"),
                  o(f"s_mov_b32 s{T0}, {7*32*1152}"),
                  o(f"v_add_u32 v6, s{T0}, v5"), o("v_cmp_gt_u32 vcc, 9, v0"), o("s_and_saveexec_b64 s[82:83], vcc"),
                  o(f"global_load_dword v{V_PF}, v6, s[24:25]"),
                  o("s_mov_b64 exec, s[82:83]"), raw("L_nopf2:")]
            for sig in range(self.opts.get("npf", 4)):
                mat, kh = (sig // 2) % 2, sig % 2
                assert sig < 4
                rs = SR_WG if mat == 0 else SR_WU
                L += [o(f"s_add_u32 s{T6}, s{S_A}, {kh*288*9216}"),
                      vm(f"buffer_load_dword v{V_PF}, v3, s[{rs}:{rs+3}], s{T6} offen", "pf")]
        if self.opts.get("tlb", 0):
            st = self.opts.get("tlb", 0)
            n = (48 << 20) >> st
            L += [o(f"v_lshlrev_b32 v2, {st}, v0"), o(f"v_mov_b32 v4, {OOB:#x}")]
            for k in range(-(-n // 64)):
                L += [o(f"s_mov_b32 s{T0}, {k*64 << st}"), vm(f"buffer_load_dword v{V_PF}, v2, s[{SR_WS}:{SR_WS+3}], s{T0} offen", "pf")]
            L += [o("v_lshlrev_b32 v2, 16, v0"), vm(f"buffer_load_dword v{V_PF}, v2, s[{SR_OUT}:{SR_OUT+3}], 0 offen", "pf")]
        if self.opts.get('bearly'):
            L += [o(f"s_lshl_b32 s{S_PF}, s{S_LID}, 2"), o(f"s_add_u32 s{S_PF}, s{S_PF}, s{S_W}"), o(f"s_mul_i32 s{S_PF}, s{S_PF}, 41"),
                   o(f"v_add_u32 v2, s{S_PF}, v0"), o("v_lshlrev_b32 v2, 7, v2"), o("v_cmp_gt_u32 vcc, 41, v0"), o("s_nop 1"),
                   o(f"v_cndmask_b32 v2, v{V_ONE0}, v2, vcc"),
                   vm(f"buffer_load_dword v{V_PF}, v2, s[{SR_WG}:{SR_WG+3}], 0 offen", "pf"),
                   vm(f"buffer_load_dword v{V_PF}, v2, s[{SR_WU}:{SR_WU+3}], 0 offen", "pf")]
        post = L
        for n, i in enumerate(P):
            if not isinstance(i, G) and i.t.startswith("v_cmp_eq_u32 vcc, 0, v2"):
                P[n:n+4] = [G(P[n:n+4])]
                break
        out = HEAD
        flatx = []
        if self.opts.get("drot"):
            out += [o(f"s_and_b32 s100, s{S_J}, 3"), o(f"s_mul_i32 s100, s100, {self.opts.get('rotm', 9)}"), o("s_lshr_b32 s100, s100, 2")]
            out += [o("s_mov_b32 s99, s100")]
            for p in range(9):
                pre_ = [o("s_lshl_b32 s100, s99, 7"), o("s_lshl_b32 s101, s99, 12"), o(f"s_add_u32 s101, s101, s{S_LX}"),
                        o("s_add_u32 s99, s99, 1"), o("s_cmp_eq_u32 s99, 9"), o("s_cselect_b32 s99, 0, s99")]
                for rho in range(4):
                    g = (pre_ if rho == 0 else []) + [o(f"s_add_u32 m0, s101, {rho*1024}"), o("s_nop 0"),
                         vm(f"buffer_load_dwordx4 v{240+rho}, s[{SR_X}:{SR_X+3}], s100 offen lds", ("x", 8 if p == 8 else ("p", p)))]
                    flatx.append(g)
        for kap in range(9):
            if self.opts.get("drot"): break
            xl = self.x_line(kap)
            flatx += [xl[3*r:3*r+3] for r in range(4)]
        npre = len(P); pi = 0
        first = self.opts.get("xfree", 10)
        for n, g in enumerate(flatx):
            out += g
            if n >= first:
                take = -(-(npre - pi) // (36 - n))
                for it in P[pi:pi + take]: out += (list(it) if isinstance(it, G) else [it])
                pi += take
        out += self.stamp("xiss")
        L = out + post
        return L

    def tr_bases(self):
        L = []
        L += [o("v_lshrrev_b32 v16, 5, v0"), o("v_lshlrev_b32 v16, 10, v16"),
              o("v_bfe_u32 v17, v0, 2, 2"), o("v_lshlrev_b32 v17, 7, v17"), o("v_add_u32 v16, v16, v17"),
              o("v_bfe_u32 v17, v0, 3, 1"), o("v_lshlrev_b32 v17, 6, v17"), o("v_add_u32 v16, v16, v17"),
              o("v_bfe_u32 v17, v0, 4, 1"), o("v_lshlrev_b32 v17, 5, v17"), o("v_add_u32 v16, v16, v17"),
              o("v_and_b32 v17, 3, v0"), o("v_lshlrev_b32 v17, 3, v17"), o(f"v_add_u32 v{V_RA}, v16, v17")]
        for s in range(1, 4): L += [o(f"v_add_u32 v{V_RA+s}, {s*SLOT}, v{V_RA}")]
        for s in range(4): L += [o(f"v_xor_b32 v{V_RB+s}, 64, v{V_RA+s}")]
        return L

    def idmap(self):
        cfg = self.opts.get("cfg", 0)
        if cfg == 0:
            return [o(f"s_and_b32 s{S_J}, s2, 3"), o(f"s_lshl_b32 s{S_J}, s{S_J}, 2"),
              o(f"s_bfe_u32 s{T0}, s2, 0x20003"), o(f"s_or_b32 s{S_J}, s{S_J}, s{T0}"),
              o(f"s_bfe_u32 s{S_MT}, s2, 0x10002"), o(f"s_lshl_b32 s{S_MT}, s{S_MT}, 3"),
              o(f"s_lshr_b32 s{T0}, s2, 5"), o(f"s_or_b32 s{S_MT}, s{S_MT}, s{T0}")]
        if cfg == 1:
            return [o(f"s_and_b32 s{S_MT}, s2, 7"), o(f"s_lshl_b32 s{S_MT}, s{S_MT}, 1"), o(f"s_bfe_u32 s{T0}, s2, 0x10003"),
                    o(f"s_or_b32 s{S_MT}, s{S_MT}, s{T0}"), o(f"s_lshr_b32 s{S_J}, s2, 4")]
        if cfg == 3:
            return [o(f"s_and_b32 s{S_J}, s2, 7"), o(f"s_lshl_b32 s{S_J}, s{S_J}, 1"), o(f"s_bfe_u32 s{T0}, s2, 0x10003"),
                    o(f"s_or_b32 s{S_J}, s{S_J}, s{T0}"), o(f"s_lshr_b32 s{S_MT}, s2, 4")]
        if cfg == 2:
            return [o(f"s_and_b32 s{S_J}, s2, 1"), o(f"s_lshl_b32 s{S_J}, s{S_J}, 3"),
              o(f"s_bfe_u32 s{T0}, s2, 0x30003"), o(f"s_or_b32 s{S_J}, s{S_J}, s{T0}"),
              o(f"s_bfe_u32 s{S_MT}, s2, 0x20001"), o(f"s_lshl_b32 s{S_MT}, s{S_MT}, 2"),
              o(f"s_lshr_b32 s{T0}, s2, 6"), o(f"s_or_b32 s{S_MT}, s{S_MT}, s{T0}")]

    def h_srd(self, zreg):
        return [o(f"s_cmp_lt_u32 s{zreg}, 9"),
                o(f"s_cselect_b32 s{SR_HZ}, s22, s24"), o(f"s_cselect_b32 s{SR_HZ+1}, s23, s25"), o(f"s_cselect_b32 s{T7}, 0, 9"),
                o(f"s_and_b32 s{SR_HZ+1}, s{SR_HZ+1}, 0xffff"), o(f"s_mov_b32 s{SR_HZ+2}, {D*D*2}"), o(f"s_mov_b32 s{SR_HZ+3}, 0x00020000"),
                o(f"s_sub_u32 s{T7}, s{zreg}, s{T7}"), o(f"s_lshl_b32 s{T7}, s{T7}, 5")]

    def h_dma(self, zreg, slot, tag):
        L = self.h_srd(zreg)
        L += [o(f"s_lshl_b32 s{T1}, s{S_W}, 3"), o(f"s_add_u32 s{T0}, s{T7}, s{T1}"),
             o("v_lshrrev_b32 v240, 3, v0"), o("v_and_b32 v241, 7, v0"), o("v_lshrrev_b32 v242, 1, v240"), o("v_xor_b32 v241, v241, v242"),
             o(f"s_and_b32 s{T1}, s{S_W}, 1"), o(f"s_lshl_b32 s{T1}, s{T1}, 2"), o(f"v_xor_b32 v241, s{T1}, v241"),
             o("v_lshlrev_b32 v241, 4, v241"),
             o(f"v_add_u32 v240, s{T0}, v240"), o(f"s_movk_i32 s{T1}, 1152"), o(f"v_mad_u32_u24 v240, v240, s{T1}, v241"),
             o(f"s_lshl_b32 s{T1}, s{S_W}, 10"), o(f"s_add_u32 s{T1}, s{T1}, {slot*SLOT}")]
        for kap in range(9):
            L += [o(f"s_add_u32 m0, s{T1}, {4*kap*1024 - 128*kap}"), o("s_nop 0"),
                  vm(f"buffer_load_dwordx4 v240, s[{SR_HZ}:{SR_HZ+3}], 0 offen offset:{128*kap} lds", tag)]
        return L

    def h_special(self, zreg, slot, sfx):
        return [o(f"s_cmp_eq_u32 s{zreg}, 9"), o(f"s_cbranch_scc0 L_h_nosp{sfx}"), o(f"s_cmp_eq_u32 s{S_W}, 0"), o(f"s_cbranch_scc0 L_h_nosp{sfx}"),
                o("v_mov_b32 v232, 0xbf803f80"), o("v_mov_b32 v233, v232"), o("v_mov_b32 v234, v232"), o("v_mov_b32 v235, v232"),
                o("v_lshrrev_b32 v240, 3, v0"), o("v_lshlrev_b32 v240, 12, v240"), o("v_and_b32 v241, 7, v0"), o("v_lshlrev_b32 v241, 4, v241"),
                o("v_add_u32 v240, v240, v241"), o(f"v_add_u32 v240, {slot*SLOT}, v240"), o(f"v_add_u32 v241, {slot*SLOT}, v241"),
                o("ds_write_b128 v240, v[232:235]"), o("ds_write_b128 v241, v[232:235] offset:32768"),
                o("s_waitcnt lgkmcnt(0)"), raw(f"L_h_nosp{sfx}:")]

    def x_line(self, kap):
        L = []
        for rho in range(4):
            L += [o(f"s_add_u32 m0, s{S_LX}, {(4*kap+rho)*1024 - 128*kap}"), o("s_nop 0"),
                  vm(f"buffer_load_dwordx4 v{240+rho}, s[{SR_X}:{SR_X+3}], 0 offen offset:{128*kap} lds", ("x", kap))]
        return L
    def x_dma_variants(self):
        L = []
        for kap in range(self.opts.get("xpre", 3)): L += self.x_line(kap)
        return L
    def x_dma_variants_old(self):
        if not self.opts.get("rot", 0):
            L = []
            for kap in range(9):
                for rho in range(4):
                    L += [o(f"s_add_u32 m0, s{S_LX}, {(4*kap+rho)*1024 - 128*kap}"), o("s_nop 0"),
                          vm(f"buffer_load_dwordx4 v{240+rho}, s[{SR_X}:{SR_X+3}], 0 offen offset:{128*kap} lds", ("x", kap))]
            return L
        L = [o(f"s_and_b32 s{T0}, s{S_J}, 3")]
        for v in range(1, 4): L += [o(f"s_cmp_eq_u32 s{T0}, {v}"), o(f"s_cbranch_scc1 L_xd{v}")]
        for v in range(4):
            if v: L += [raw(f"L_xd{v}:")]
            for pos in range(9):
                kap = (self.K0[v] + pos) % 9
                for rho in range(4):
                    t = f"buffer_load_dwordx4 v{240+rho}, s[{SR_X}:{SR_X+3}], 0 offen offset:{128*kap} lds"
                    L += [o(f"s_add_u32 m0, s{S_LX}, {(4*kap+rho)*1024 - 128*kap}"), o("s_nop 0"),
                          (vm(t, ("x", pos)) if v == 3 else o(t))]
            if v < 3: L += [o("s_branch L_xdj")]
        L += [raw("L_xdj:")]
        return L
    K0 = [0, 2, 4, 7]

    def ln_stats(self):
        L = []
        SA = 16
        for i in range(8): L += [o(f"v_mov_b32 v{SA+i}, 0")]
        L += [o(f"s_mov_b32 s{T5}, 0x3f803f80")]
        def reads(kap):
            return [wvm(("x", kap))] + [ds(f"ds_read_b128 v[{RX+4*ks}:{RX+4*ks+3}], v{V_XA+(ks&3)} offset:{(ks//4)*4096}", ("xr", ks)) for ks in range(4*kap, 4*kap+4)]
        if self.opts.get("drot"):
            L += [wvm(("x", 8))]
            def rd2(kap): return [ds(f"ds_read_b128 v[{RX+4*ks}:{RX+4*ks+3}], v{V_XA+(ks&3)} offset:{(ks//4)*4096}", ("xr", ks)) for ks in range(4*kap, 4*kap+4)]
            L += rd2(0) + rd2(1)
            if self.opts.get("msum", 1):
                L += [o("v_mov_b32 v48, 0x3f803f80"), o("v_mov_b32 v49, v48"), o("v_mov_b32 v50, v48"), o("v_mov_b32 v51, v48")]
            first = True
            for kap in range(9):
                if kap + 2 < 9: L += rd2(kap + 2)
                if not self.opts.get("msum", 1):
                    L += self.stats_line(kap); continue
                for n, ks in enumerate(range(4*kap, 4*kap + 4)):
                    L += [wlg(("xr", ks))]
                    usem = (n % 2 == 0) or self.opts.get("msum") == 2
                    if usem:
                        L += [mf32("v[32:47]", "v[48:51]", f"v[{RX+4*ks}:{RX+4*ks+3}]", "0" if first else "v[32:47]")]
                        first = False
                    for i in range(4):
                        r = RX + 4*ks + i
                        if not usem: L += [o(f"v_dot2_f32_bf16 v{SA+i}, v{r}, s{T5}, v{SA+i}")]
                        L += [o(f"v_dot2_f32_bf16 v{SA+4+i}, v{r}, v{r}, v{SA+4+i}")]
            return L
        L += reads(0)
        for kap in range(9):
            if kap + 1 < 9: L += reads(kap + 1)
            L += self.stats_line(kap)
        return L
    def stats_line(self, kap):
        L = []
        SA = 16
        for ks in range(4*kap, 4*kap + 4):
            L += [wlg(("xr", ks))]
            for i in range(4):
                r = RX + 4*ks + i
                if self.opts.get("dotc"):
                    L += [o(f"v_dot2c_f32_bf16 v{SA+i}, s{T5}, v{r}"), o(f"v_dot2c_f32_bf16 v{SA+4+i}, v{r}, v{r}")]
                else:
                    L += [o(f"v_dot2_f32_bf16 v{SA+i}, v{r}, s{T5}, v{SA+i}"),
                          o(f"v_dot2_f32_bf16 v{SA+4+i}, v{r}, v{r}, v{SA+4+i}")]
        return L

    def ln_stats_v(self, v, tracked, order):
        L = []
        SA = 16
        for i in range(8): L += [o(f"v_mov_b32 v{SA+i}, 0")]
        L += [o(f"s_mov_b32 s{T5}, 0x3f803f80")]
        def reads(pos):
            kap = order[pos]
            w = [wvmf(("x", pos))]
            return w + [o(f"ds_read_b128 v[{RX+4*ks}:{RX+4*ks+3}], v{V_XA+(ks&3)} offset:{(ks//4)*4096}") for ks in range(4*kap, 4*kap+4)]
        L += reads(0)
        L += self.stamp("x0")
        for pos in range(9):
            if pos == 4: L += self.stamp("x4")
            if pos + 1 < 9: L += reads(pos + 1)
            kap = order[pos]
            for n, ks in enumerate(range(4*kap, 4*kap + 4)):
                left = (3 - n) + (4 if pos + 1 < 9 else 0)
                L += [o(f"s_waitcnt lgkmcnt({left})")]
                for i in range(4):
                    r = RX + 4*ks + i
                    L += [o(f"v_dot2_f32_bf16 v{SA+i}, v{r}, s{T5}, v{SA+i}"),
                          o(f"v_dot2_f32_bf16 v{SA+4+i}, v{r}, v{r}, v{SA+4+i}")]
        return L

    def ln_stats_old(self):
        L = []
        SA = 16
        for i in range(8): L += [o(f"v_mov_b32 v{SA+i}, 0")]
        L += [o(f"s_mov_b32 s{T5}, 0x3f803f80")]
        def reads(kap):
            return [wvm(("x", kap))] + [ds(f"ds_read_b128 v[{RX+4*ks}:{RX+4*ks+3}], v{V_XA+(ks&3)} offset:{(ks//4)*4096}", ("xr", ks)) for ks in range(4*kap, 4*kap+4)]
        L += reads(0)
        for kap in range(9):
            if kap + 1 < 9: L += reads(kap + 1)
            for ks in range(4*kap, 4*kap + 4):
                L += [wlg(("xr", ks))]
                for i in range(4):
                    r = RX + 4*ks + i
                    L += [o(f"v_dot2_f32_bf16 v{SA+i}, v{r}, s{T5}, v{SA+i}"),
                          o(f"v_dot2_f32_bf16 v{SA+4+i}, v{r}, v{r}, v{SA+4+i}")]
        return L

    def ln_finish(self):
        SA = 16
        L = [o("s_nop 2"),
             o(f"v_add_f32 v{SA}, v{SA}, v{SA+1}"), o(f"v_add_f32 v{SA+2}, v{SA+2}, v{SA+3}"),
             o(f"v_add_f32 v{SA+4}, v{SA+4}, v{SA+5}"), o(f"v_add_f32 v{SA+6}, v{SA+6}, v{SA+7}"),
             o(f"v_add_f32 v24, v{SA}, v{SA+2}"), o(f"v_add_f32 v26, v{SA+4}, v{SA+6}"),
             o("v_mov_b32 v25, v24"), o("v_mov_b32 v27, v26"), o("s_nop 1"),
             o("v_permlane32_swap_b32 v24, v25"), o("v_permlane32_swap_b32 v26, v27"), o("s_nop 1"),
             o("v_add_f32 v24, v24, v25"), o("v_add_f32 v26, v26, v27")] + ([o("v_add_f32 v24, v24, v32")] if (self.opts.get("drot") and self.opts.get("msum", 1)) else []) + [
             o(f"s_mov_b32 s{T5}, {f2u(1.0/576):#x}"),
             o(f"v_mul_f32 v24, s{T5}, v24"), o(f"v_mul_f32 v26, s{T5}, v26"),
             o("v_fma_f32 v26, -v24, v24, v26"), o("v_max_f32 v26, 0, v26"),
             o("v_cvt_pk_bf16_f32 v24, v24, v26"),
             o("v_and_b32 v26, 0xffff0000, v24"), o("v_lshlrev_b32 v24, 16, v24"),
             o(f"v_xor_b32 v{V_NEGMU}, 0x80000000, v24")]
        for i in range(1, 16): L += [o(f"v_mov_b32 v{V_NEGMU+i}, v{V_NEGMU}")]
        L += [o(f"v_add_f32 v26, {f2u(1e-5):#x}, v26"),
              o("v_cvt_pk_bf16_f32 v26, v26, v26"), o("v_lshlrev_b32 v26, 16, v26"),
              o("v_sqrt_f32 v26, v26"), o("s_nop 0"),
              o("v_cvt_pk_bf16_f32 v26, v26, v26"), o("v_lshlrev_b32 v26, 16, v26"),
              o("v_rcp_f32 v27, v26"), o(f"v_mul_f32 v{V_D2}, v26, v26"),
              o(f"v_mul_f32 v{V_C0}, {f2u(C0):#x}, v27"), o("v_mul_f32 v28, v27, v27"), o("v_mul_f32 v28, v28, v27"),
              o(f"v_mul_f32 v{V_C1}, {f2u(C1):#x}, v28"),
              o("v_and_b32 v28, 31, v0"), o("v_lshlrev_b32 v28, 2, v28"), o(f"s_lshl_b32 s{T0}, s{S_W}, 12"), o(f"s_add_u32 s{T0}, s{T0}, {SPARE}"),
              o(f"v_add_u32 v28, s{T0}, v28"), ds("ds_write_b32 v28, v27", "rtab")]
        return L

    def seg_norm_h(self):
        M = []; frags = []
        def UBf(i):
            if i == 0: return 16
            if i % 2 == 0: return RX + 8*(i - 2)
            return (32, 48, 16)[((i - 1)//2) % 3]
        def nextuser(i):
            for k in range(i + 1, 18):
                if UBf(k) == UBf(i): return k
            return None
        posU = {}; posH = {}
        def U(i):
            b = UBf(i)
            M.append(dict(op=32, acc=f"v[{b}:{b+15}]", first=True, C=f"v[{V_NEGMU}:{V_NEGMU+15}]", A=f"v[{V_PERM}:{V_PERM+3}]", B=f"v[{RX+8*i}:{RX+8*i+3}]", need=-1))
            M.append(dict(op=32, acc=f"v[{b}:{b+15}]", first=False, A=f"v[{V_PERM+4}:{V_PERM+7}]", B=f"v[{RX+8*i+4}:{RX+8*i+7}]", need=-1))
            posU[i] = len(M) - 2
        def H(ks):
            f = len(frags); a = AF + 4*(f % NAF)
            frags.append(dict(reads=[f"ds_read_b128 a[{a}:{a+3}], v{V_XA+(ks&3)} offset:{(ks//4)*4096}"], use=len(M)))
            M.append(dict(op=32, acc=f"v[{V_HACC}:{V_HACC+15}]", first=(ks == 0), A=f"a[{AX+4*ks}:{AX+4*ks+3}]", B=f"a[{a}:{a+3}]", need=f))
            posH[ks] = len(M) - 1
        LAG = 5
        for i in range(18):
            U(i)
            if i >= LAG: H(2*(i-LAG)); H(2*(i-LAG)+1)
        for i in range(18 - LAG, 18): H(2*i); H(2*i+1)
        last = -1
        for m in M:
            if m["need"] < 0: m["need"] = last
            else: last = m["need"]
        g0 = frags[0]["use"] - 6
        M[g0].setdefault("before", []).extend([wvm("wz1")] + self.h_special(S_A, 2, "a") + [o("s_waitcnt lgkmcnt(0)"), o("s_barrier")])
        def setup(sl, head):
            sl.put(2, [o('s_nop 4')]); sl.put(3, [o('s_nop 4')])
            for i in range(18):
                b = UBf(i)
                ins = []
                for q in range(8):
                    t = 2 + 2*(i % 4) + (q % 2)
                    ins += [o(f"v_cvt_pk_bf16_f32 v{t}, v{b+2*q}, v{b+2*q+1}"), o(f"v_accvgpr_write_b32 a{AX+8*i+q}, v{t}")]
                start = posU[i] + 1 + 3
                end = min(posH[2*i] - 1, start + 11)
                if nextuser(i) is not None: end = min(end, posU[nextuser(i)])
                e = sl.stream(ins, start, end, spill=0)
                assert e < posH[2*i] - 0, (i, e, posH[2*i])
        return self.paced(M, frags, setup, 6)

    def h_epilogue(self, zreg, acc, rr, tb):
        L = []
        sg, f1, f2, f3 = tb + 8, tb + 9, tb + 10, tb + 11
        L += [G([o(f"s_cmp_lt_u32 s{zreg}, 9"), o(f"s_cselect_b32 s{S_ST0}, 1.0, -1.0")]), o(f"v_mov_b32 v{sg}, s{S_ST0}"),
              G([o(f"s_cmp_eq_u32 s{zreg}, 9"), o(f"s_cselect_b32 s{S_ST0}, 0, 99")]),
              G([o(f"v_and_b32 v{f1}, 31, v0"), o(f"v_cmp_eq_u32 vcc, s{S_ST0}, v{f1}"), o(f"v_mov_b32 v{f2}, 1.0"), o("v_nop"),
                 o(f"v_cndmask_b32 v{sg}, v{sg}, v{f2}, vcc")]),
              G([o(f"s_or_b32 s{S_ST0}, s{S_MT}, s{S_W}"), o(f"s_cmp_eq_u32 s{S_ST0}, 0"), o(f"s_cselect_b32 s{S_ST0}, 32, 0")]),
              G([o(f"v_cmp_gt_u32 vcc, s{S_ST0}, v0"), o(f"v_mov_b32 v{tb}, 0"), o(f"v_mov_b32 v{tb+1}, 1.0"),
                 o(f"v_cndmask_b32 v{f1}, v{sg}, v{tb+1}, vcc"), o(f"v_cndmask_b32 v{f2}, v{tb+1}, v{tb}, vcc"), o(f"v_cndmask_b32 v{f3}, v{sg}, v{tb}, vcc")])]
        for r in range(16): L += [o(f"v_mul_f32 v{acc+r}, v{acc+r}, v{rr+r}")]
        L += [o(f"v_add_f32 v{tb+12}, v{acc+8}, v{acc+12}"), o(f"v_sub_f32 v{tb+13}, v{acc+8}, v{acc+12}"), o(f"v_mov_b32 v{tb+14}, 0"),
              G([o(f"v_cmp_lt_f32 vcc, 0, v{sg}"), o("v_nop"), o("v_nop"),
                 o(f"v_cndmask_b32 v{tb+12}, v{tb+14}, v{tb+12}, vcc"), o(f"v_cndmask_b32 v{tb+13}, v{tb+13}, v{tb+14}, vcc")])]
        for ii in range(4):
            s1, s3 = (f1, f3) if ii == 0 else (sg, sg)
            v0, v1, v2, v3 = acc + ii, acc + 4 + ii, acc + 8 + ii, acc + 12 + ii
            if ii == 0: L += [o(f"v_mul_f32 v{v2}, v{v2}, v{f2}")]
            L += [o(f"v_fma_f32 v{v0}, v{v3}, v{s3}, v{v0}"),
                  o(f"v_fma_f32 v{v1}, v{v1}, v{s1}, v{v2}"),
                  o(f"v_add_f32 v{tb+ii}, v{v0}, v{v1}"), o(f"v_sub_f32 v{tb+4+ii}, v{v0}, v{v1}")]
        L += [o(f"v_cvt_pk_bf16_f32 v{rr}, v{tb}, v{tb+1}"), o(f"v_cvt_pk_bf16_f32 v{rr+1}, v{tb+2}, v{tb+3}"),
              o(f"v_cvt_pk_bf16_f32 v{rr+2}, v{tb+4}, v{tb+5}"), o(f"v_cvt_pk_bf16_f32 v{rr+3}, v{tb+6}, v{tb+7}"),
              G([o("v_nop"), o("v_nop"), o(f"v_permlane32_swap_b32 v{rr}, v{rr+2}"), o(f"v_permlane32_swap_b32 v{rr+1}, v{rr+3}")]),
              o(f"v_lshrrev_b32 v{rr+4}, 5, v0"), o(f"v_mul_u32_u24 v{rr+4}, {ZF_TYPE}, v{rr+4}"),
              o(f"v_and_b32 v{rr+5}, 31, v0"), o(f"v_lshlrev_b32 v{rr+5}, 4, v{rr+5}"), o(f"v_add_u32 v{rr+4}, v{rr+4}, v{rr+5}"),
              G([o(f"s_mul_i32 s{S_ST0}, s{zreg}, {ZF_STRIDE}"), o(f"s_lshl_b32 s{S_ST1}, s{S_MT}, 2"), o(f"s_add_u32 s{S_ST1}, s{S_ST1}, s{S_W}")]),
              G([o(f"s_lshl_b32 s{S_ST1}, s{S_ST1}, 9"), o(f"s_add_u32 s{S_ST1}, s{S_ST1}, s{S_ST0}"), o(f"s_add_u32 s{S_ST1}, s{S_ST1}, {WS_ZF}")]),
              vm(f"buffer_store_dwordx4 v[{rr}:{rr+3}], v{rr+4}, s[{SR_WS}:{SR_WS+3}], s{S_ST1} offen sc1", "zst"),
              o(f"v_mov_b32 v{tb+14}, v{tb+12}"),
              G([o("v_nop"), o("v_nop"), o(f"v_permlane32_swap_b32 v{tb+14}, v{tb+13}")]),
              o(f"v_mov_b32 v{rr+9}, 0"), o(f"v_mov_b32 v{rr+10}, 0"), o(f"v_mov_b32 v{rr+11}, 0"),
              o(f"v_cvt_pk_bf16_f32 v{rr+8}, v{tb+14}, v{rr+9}"),
              G([o(f"s_or_b32 s{S_ST1}, s{S_MT}, s{S_W}"), o(f"s_cmp_eq_u32 s{S_ST1}, 0"), o(f"s_cselect_b32 s{S_C}, 0, {OOB:#x}")]),
              o(f"v_add_u32 v{rr+5}, s{S_C}, v{rr+4}"),
              o(f"s_add_u32 s{S_ST0}, s{S_ST0}, {WS_ZF + 32*1024}"),
              vm(f"buffer_store_dwordx4 v[{rr+8}:{rr+11}], v{rr+5}, s[{SR_WS}:{SR_WS+3}], s{S_ST0} offen sc1", "zst"),
              G([o(f"v_mov_b32 v{rr+12}, 0"), o(f"v_mov_b32 v{rr+13}, 0"), o(f"v_mov_b32 v{rr+14}, 0"), o(f"v_mov_b32 v{rr+15}, 0")])]
        for k in (512, 1024, 1536):
            L += [vm(f"buffer_store_dwordx4 v[{rr+12}:{rr+15}], v{rr+5}, s[{SR_WS}:{SR_WS+3}], s{S_ST0} offen offset:{k} sc1", "zst")]
        return L

    def rr_reads(self, rr, tmp, n=1):
        return [o(f"v_lshrrev_b32 v{tmp}, 5, v0"), o(f"v_lshlrev_b32 v{tmp}, 4, v{tmp}"), o(f"s_lshl_b32 s{S_C}, s{S_W}, 12"),
                o(f"s_add_u32 s{S_C}, s{S_C}, {SPARE}"), o(f"v_add_u32 v{tmp}, s{S_C}, v{tmp}")] + \
               [ds(f"ds_read_b128 v[{rr+4*q}:{rr+4*q+3}], v{tmp} offset:{32*q}", ("rr", n)) for q in range(4)] + [wlg(("rr", n))]

    def h2_block(self):
        L = [o(f"s_cmp_lt_u32 s{S_J}, 2"), o("s_cbranch_scc0 L_noz2b")]
        B = [o(f"v_add_u32 v{64+i}, {SLOT}, v{V_XA+i}") for i in range(4)]
        B += [o(f"s_waitcnt vmcnt({18 if self.opts.get('bearly') else 20})"), o("s_barrier")]
        def rd(ks):
            a_ = AF + 4*(ks % NAF)
            return o(f"ds_read_b128 a[{a_}:{a_+3}], v{64+(ks&3)} offset:{(ks//4)*4096}")
        for ks in range(6): B += [rd(ks)]
        for k in range(36):
            a_ = AF + 4*(k % NAF)
            n_out = min(5, 35 - k)
            B += [o(f"s_waitcnt lgkmcnt({n_out})"), mf32("v[128:143]", f"a[{AX+4*k}:{AX+4*k+3}]", f"a[{a_}:{a_+3}]", "0" if k == 0 else "v[128:143]")]
            if k + 6 < 36: B += [rd(k + 6)]
        B += [raw("L_noz2b:"),
              o(f"s_cmp_lt_u32 s{S_J}, 2"), o(f"s_cselect_b32 s{S_B}, s{S_B}, 0x4000")]
        return L + B

    def dma_p1(self, sig, slot, tA=226, tB=227):
        groups = []
        if sig < 16:
            u, mat, kh = sig // 4, (sig // 2) % 2, sig % 2
            rs = SR_WG if mat == 0 else SR_WU
            for grp, ts in enumerate([[0,1,2,3],[0,1,2,3],[0]]):
                g = [o(f"s_add_u32 m0, s{S_L9}, {slot*SLOT + grp*4096}"),
                     o(f"s_add_u32 s{S_D0}, s{S_UB+u}, {(kh*288 + grp*32)*9216}")]
                for t in ts:
                    groups.append(g + [vm(f"buffer_load_dwordx4 v{V_DM+t}, s[{rs}:{rs+3}], s{S_D0} offen offset:{t*1024} lds", ("st", sig))])
                    g = []
        else:
            rs = SR_WG if sig == 16 else SR_WU
            for grp, ts in enumerate([[0,1,2,3],[0,1,2,3],[0]]):
                g = []
                if sig == 16 and grp == 0:
                    groups.append([o(f"v_lshrrev_b32 v{tA}, 2, v0"), o(f"v_and_b32 v{tB}, 3, v0"), o(f"v_lshlrev_b32 v{tB}, 4, v{tB}")])
                    groups.append([o(f"v_mul_u32_u24 v{tA}, 9216, v{tA}"), o(f"v_add_u32 v{V_DM}, v{tA}, v{tB}")] +
                                  [o(f"v_add_u32 v{V_DM+t}, {t*(16*9216-1024)}, v{V_DM}") for t in range(1, 4)])
                g += [o(f"s_add_u32 m0, s{S_L9}, {slot*SLOT + grp*4096}"),
                      o(f"s_add_u32 s{S_D0}, s{S_UB+4}, {grp*64*9216}")]
                for t in ts:
                    groups.append(g + [vm(f"buffer_load_dwordx4 v{V_DM+t}, s[{rs}:{rs+3}], s{S_D0} offen offset:{t*1024} lds", ("st", sig))])
                    g = []
        return groups

    def dma_cs(self, mat, slot, tag, nop=False):
        rs = SR_CS if mat == 0 else SR_SS
        groups = []
        for l in range(2):
            for rho in range(4):
                groups.append([o(f"s_add_u32 m0, s{S_A}, {slot*SLOT + (4*l+rho)*1024 - 128*l}")] + ([o("s_nop 0")] if nop else []) +
                              [vm(f"buffer_load_dwordx4 v{V_SD+rho}, s[{rs}:{rs+3}], 0 offen offset:{128*l} lds", tag)])
        return groups
    def dma_cx(self, mat, tag):
        rs = SR_CS if mat == 0 else SR_SS
        return [[o(f"s_add_u32 m0, s{S_B}, {SPARE + mat*4096}"), o("s_nop 0"),
                 vm(f"buffer_load_dwordx4 v{V_SE}, s[{rs}:{rs+3}], 0 offen lds", tag)]]

    def dma_p2(self, st, slot, first128, tA, tB, tC):
        u, who = st
        groups = []
        if u < 4:
            tbl = S_N0 if who == "own" else S_N1
            if first128:
                groups.append([o(f"v_lshrrev_b32 v{tA}, 3, v0"), o(f"v_and_b32 v{tB}, 7, v0"), o(f"v_bfe_u32 v{tC}, v0, 4, 1")])
                groups.append([o(f"v_lshlrev_b32 v{tC}, 2, v{tC}"), o(f"v_xor_b32 v{tB}, v{tB}, v{tC}"), o(f"v_lshlrev_b32 v{tB}, 4, v{tB}")])
                groups.append([o(f"s_mul_i32 s{S_WD}, s{S_W}, {8*1152}")])
                groups.append([o(f"v_mul_u32_u24 v{tA}, 1152, v{tA}"), o(f"v_add_u32 v{V_DM}, v{tA}, v{tB}"), o(f"v_add_u32 v{V_DM}, s{S_WD}, v{V_DM}")])
                groups.append([o(f"s_lshl_b32 s{S_WD}, s{S_W}, 10")])
            for ip in range(9):
                groups.append([o(f"s_add_u32 m0, s{S_WD}, {slot*SLOT + ip*4096}"),
                               o(f"s_add_u32 s{S_D0}, s{tbl+ip}, s{S_CU+u}"),
                               vm(f"buffer_load_dwordx4 v{V_DM}, s[{SR_WD}:{SR_WD+3}], s{S_D0} offen lds", ("s2", st))])
        else:
            groups.append([o(f"v_lshrrev_b32 v{tA}, 2, v0"), o(f"v_and_b32 v{tB}, 3, v0"), o(f"v_lshlrev_b32 v{tB}, 4, v{tB}")])
            groups.append([o(f"v_mul_u32_u24 v{tA}, 1152, v{tA}"), o(f"v_add_u32 v{V_DM+1}, v{tA}, v{tB}")])
            for ip in range(9):
                ca, cb = 2*ip, 2*ip + 1
                ra = (S_N0 + ca) if ca < 9 else (S_N1 + ca - 9)
                rb = (S_N0 + cb) if cb < 9 else (S_N1 + cb - 9)
                groups.append([o(f"s_cmp_lt_u32 s{S_W}, 2"), o(f"s_cselect_b32 s{S_D0}, s{ra}, s{rb}"),
                               o(f"s_add_u32 s{S_D0}, s{S_D0}, s{S_CU+4}"), o(f"s_add_u32 s{S_D0}, s{S_D0}, s{S_C}"),
                               o(f"s_add_u32 m0, s{S_WD}, {slot*SLOT + ip*4096}")])
                groups.append([vm(f"buffer_load_dwordx4 v{V_DM+1}, s[{SR_WD}:{SR_WD+3}], s{S_D0} offen lds", ("s2", st))])
        return groups

    def geglu(self, c, toff=0):
        if c < 8: g, u = GA[(c//2) % 2][c % 2], UA[(c//2) % 2][c % 2]
        else: g, u = GA[0][0], UA[0][0]
        L = []
        for p in range(8):
            r0, r1 = 2*p, 2*p + 1
            b = TMP + 4*(p % 2) + toff
            xa, xb, ya, yb = b, b+1, b+2, b+3
            L += [o(f"v_mul_f32 v{xa}, v{g+r0}, v{g+r0}"), o(f"v_mul_f32 v{xb}, v{g+r1}, v{g+r1}"),
                  o(f"v_fma_f32 v{xa}, v{xa}, v{V_C1}, v{V_C0}"), o(f"v_fma_f32 v{xb}, v{xb}, v{V_C1}, v{V_C0}"),
                  o(f"v_mul_f32 v{xa}, v{g+r0}, v{xa}"), o(f"v_mul_f32 v{xb}, v{g+r1}, v{xb}"),
                  o(f"v_exp_f32 v{xa}, v{xa}"), o(f"v_exp_f32 v{xb}, v{xb}"),
                  o(f"v_mul_f32 v{ya}, v{g+r0}, v{u+r0}"), o(f"v_mul_f32 v{yb}, v{g+r1}, v{u+r1}"),
                  o(f"v_fma_f32 v{xa}, v{xa}, v{V_D2}, v{V_D2}"), o(f"v_fma_f32 v{xb}, v{xb}, v{V_D2}, v{V_D2}"),
                  o(f"v_rcp_f32 v{xa}, v{xa}"), o(f"v_rcp_f32 v{xb}, v{xb}"),
                  o(f"v_mul_f32 v{ya}, v{ya}, v{xa}"), o(f"v_mul_f32 v{yb}, v{yb}, v{xb}"),
                  o(f"v_cvt_pk_bf16_f32 v{HF + 8*c + p}, v{ya}, v{yb}")]
        return L
    def geglu_sig(self, c, toff=0):
        g = GA[(c//2) % 2][c % 2] if c < 8 else GA[0][0]
        L = []
        for p in range(8):
            r0, r1 = 2*p, 2*p + 1
            b = TMP + 2*(p % 2) + toff
            xa, xb = b, b + 1
            L += [o(f"v_mul_f32 v{xa}, v{g+r0}, v{g+r0}"), o(f"v_mul_f32 v{xb}, v{g+r1}, v{g+r1}"),
                  o(f"v_fma_f32 v{xa}, v{xa}, v{V_C1}, v{V_C0}"), o(f"v_fma_f32 v{xb}, v{xb}, v{V_C1}, v{V_C0}"),
                  o(f"v_mul_f32 v{xa}, v{g+r0}, v{xa}"), o(f"v_mul_f32 v{xb}, v{g+r1}, v{xb}"),
                  o(f"v_exp_f32 v{xa}, v{xa}"), o(f"v_exp_f32 v{xb}, v{xb}"), o("v_nop") if False else None,
                  o(f"v_fma_f32 v{xa}, v{xa}, v{V_D2}, v{V_D2}"), o(f"v_fma_f32 v{xb}, v{xb}, v{V_D2}, v{V_D2}"),
                  o(f"v_rcp_f32 v{xa}, v{xa}"), o(f"v_rcp_f32 v{xb}, v{xb}"),
                  o(f"v_mul_f32 v{g+r0}, v{g+r0}, v{xa}"), o(f"v_mul_f32 v{g+r1}, v{g+r1}, v{xb}")]
        return [i for i in L if i is not None]
    def geglu_fin(self, c, toff=0):
        if c < 8: g, u = GA[(c//2) % 2][c % 2], UA[(c//2) % 2][c % 2]
        else: g, u = GA[0][0], UA[0][0]
        L = []
        for p in range(8):
            r0, r1 = 2*p, 2*p + 1
            L += [o(f"v_mul_f32 v{g+r0}, v{g+r0}, v{u+r0}"), o(f"v_mul_f32 v{g+r1}, v{g+r1}, v{u+r1}"),
                  o(f"v_cvt_pk_bf16_f32 v{HF + 8*c + p}, v{g+r0}, v{g+r1}")]
        return L
    def hstore(self, c):
        st = S_ST0 + (c % 2)
        return [o(f"s_add_u32 s{st}, s{S_HB}, {2*c*1024}")] + self.dstore(
                [f"buffer_store_dwordx4 v[{HF+8*c}:{HF+8*c+3}], v{V_L16}, s[{SR_WS}:{SR_WS+3}], s{st} offen",
                 f"buffer_store_dwordx4 v[{HF+8*c+4}:{HF+8*c+7}], v{V_L16}, s[{SR_WS}:{SR_WS+3}], s{st} offen offset:1024"], "hst", True)

    def s_setup(self):
        a, b, c = V_SX, V_YC[0], V_YC[1]
        L = []
        L += [G([o(f"s_lshr_b32 s{S_TAU}, s{S_J}, 3"), o(f"s_lshl_b32 s{S_A}, s{S_W}, 13"), o(f"s_lshl_b32 s{S_B}, s{S_W}, 10")]),
              G([o(f"s_mul_i32 s{S_ZB}, s{S_TAU}, {ZF_TYPE}"), o(f"s_add_u32 s{S_ZB}, s{S_ZB}, s{S_A}"), o(f"s_add_u32 s{S_ZB}, s{S_ZB}, {WS_ZF}")])]
        L += [o(f"v_lshrrev_b32 v{a}, 3, v0"), o(f"v_and_b32 v{b}, 7, v0"), o(f"v_lshrrev_b32 v{c}, 1, v{a}"), o(f"v_xor_b32 v{b}, v{b}, v{c}"),
              o(f"v_lshlrev_b32 v{b}, 4, v{b}"), o(f"v_xor_b32 v{c}, 64, v{b}"),
              G([o(f"s_lshl_b32 s{S_C}, s{S_MT}, 5"), o(f"s_add_u32 s{S_C}, s{S_C}, s{S_TAU}")]),
              o(f"v_lshlrev_b32 v{a}, 1, v{a}"), o(f"v_add_u32 v{a}, s{S_C}, v{a}"),
              o(f"s_lshl_b32 s{S_C}, s{S_W}, 8"),
              o(f"v_add_u32 v{b}, s{S_C}, v{b}"), o(f"v_add_u32 v{c}, s{S_C}, v{c}"),
              o(f"v_lshlrev_b32 v{V_SD}, 12, v{a}"), o(f"v_add_u32 v{V_SD+1}, {16*4096}, v{V_SD}"),
              o(f"v_sub_u32 v{a}, 1024, v{a}"), o(f"v_lshlrev_b32 v{V_SD+2}, 12, v{a}"), o(f"v_subrev_u32 v{V_SD+3}, {16*4096}, v{V_SD+2}"),
              o(f"v_add_u32 v{V_SD}, v{V_SD}, v{b}"), o(f"v_add_u32 v{V_SD+1}, v{V_SD+1}, v{c}"),
              o(f"v_add_u32 v{V_SD+2}, v{V_SD+2}, v{b}"), o(f"v_add_u32 v{V_SD+3}, v{V_SD+3}, v{c}")]
        return L
    def s_setup_e(self, t0, t1):
        return [G([o(f"s_cmp_eq_u32 s{S_W}, 1"), o(f"s_cselect_b32 s{S_C}, 1, 0")]),
                o(f"v_mov_b32 v{V_SE}, v{V_SD}"),
                G([o(f"v_mov_b32 v{t0}, s{S_W}"), o(f"v_cmp_eq_u32 vcc, 1, v{t0}"), o("v_nop"), o("v_nop"), o(f"v_cndmask_b32 v{V_SE}, v{V_SE}, v{V_SD+1}, vcc")]),
                G([o(f"v_cmp_eq_u32 vcc, 2, v{t0}"), o("v_nop"), o("v_nop"), o(f"v_cndmask_b32 v{V_SE}, v{V_SE}, v{V_SD+2}, vcc")]),
                G([o(f"v_cmp_eq_u32 vcc, 3, v{t0}"), o("v_nop"), o("v_nop"), o(f"v_cndmask_b32 v{V_SE}, v{V_SE}, v{V_SD+3}, vcc")]),
                G([o(f"s_lshl_b32 s{S_C}, s{S_W}, 8"), o(f"s_sub_u32 s{S_C}, 1024, s{S_C}")]), o(f"v_add_u32 v{V_SE}, s{S_C}, v{V_SE}")]
    def s_setup2(self):
        a, b, c = V_SX, V_YC[0], V_YC[1]
        L = []
        L += [o(f"v_and_b32 v{a}, 15, v0"), o(f"v_lshrrev_b32 v{b}, 4, v0"), o(f"v_bfe_u32 v{c}, v0, 1, 3"), o(f"v_xor_b32 v{c}, v{c}, v{b}"),
              o(f"v_lshlrev_b32 v{c}, 4, v{c}"), o(f"v_lshlrev_b32 v{a}, 7, v{a}"), o(f"v_add_u32 v{a}, v{a}, v{c}"),
              o(f"v_add_u32 v{V_SA}, s{S_A}, v{a}"), o(f"v_add_u32 v{V_SA}, {2*SLOT}, v{V_SA}"), o(f"v_xor_b32 v{V_SA+1}, 64, v{V_SA}"),
              G([o(f"s_cmp_eq_u32 s{S_W}, 3"), o(f"s_cselect_b32 s{S_C}, {SPARE}, 0")]),
              G([o(f"s_add_u32 s{S_PF}, s{S_A}, {2*SLOT}"), o(f"s_cmp_eq_u32 s{S_W}, 3"), o(f"s_cselect_b32 s{S_C}, s{S_C}, s{S_PF}")]),
              o(f"v_add_u32 v{V_SA+2}, s{S_C}, v{a}"),
              G([o(f"s_movk_i32 s{S_PF}, 4096"), o(f"s_cmp_eq_u32 s{S_W}, 3"), o(f"s_cselect_b32 s{S_PF}, s{S_PF}, {SLOT}")]),
              o(f"v_add_u32 v{V_SA+3}, s{S_PF}, v{V_SA+2}")]
        return L
    def s_setup3(self, t0, t1, t2, t3):
        L = []
        L += [o(f"v_and_b32 v{t0}, 15, v0"), o(f"v_lshrrev_b32 v{t1}, 4, v0"),
              o(f"v_and_b32 v{t2}, 1, v{t1}"), o(f"v_lshlrev_b32 v{t2}, 9, v{t2}"),
              o(f"v_lshrrev_b32 v{t1}, 1, v{t1}"), o(f"v_lshlrev_b32 v{t1}, 10, v{t1}"), o(f"v_add_u32 v{t2}, v{t2}, v{t1}"),
              G([o(f"s_and_b32 s{S_C}, s{S_J}, 7"), o(f"s_mul_i32 s{S_C}, s{S_C}, 36")]),
              o(f"v_add_u32 v{t0}, s{S_C}, v{t0}")]
        for ss in range(3):
            pa, qa, yc = V_ZP + ss, V_ZQ + ss, V_YC[ss]
            L += [o(f"v_lshrrev_b32 v{t1}, 5, v{t0}"), o(f"v_mul_u32_u24 v{t1}, {ZF_STRIDE}, v{t1}"),
                  o(f"v_and_b32 v{t3}, 31, v{t0}"), o(f"v_lshlrev_b32 v{t3}, 4, v{t3}"), o(f"v_add_u32 v{t1}, v{t1}, v{t3}"),
                  o(f"v_add_u32 v{t1}, v{t1}, v{t2}"),
                  o(f"v_subrev_u32 v{t3}, s{S_C}, v{t0}"),
                  o(f"v_lshlrev_b32 v{yc}, 2, v{t0}"), o(f"v_mov_b32 v{qa}, {OOB:#x}"), o(f"v_mov_b32 v{pa}, {OOB:#x}"),
                  G([o(f"v_cmp_gt_u32 vcc, 36, v{t3}"), o("v_nop"), o("v_nop"), o(f"v_cndmask_b32 v{pa}, v{pa}, v{t1}, vcc")]),
                  o(f"v_add_u32 v{t3}, {9*ZF_STRIDE}, v{t1}"),
                  G([o(f"v_cndmask_b32 v{qa}, v{qa}, v{t3}, vcc")]),
                  G([o(f"v_cmp_eq_u32 vcc, 0x120, v{t0}"), o("v_nop"), o("v_nop"), o(f"v_cndmask_b32 v{pa}, v{pa}, v{t1}, vcc")]),
                  G([o(f"v_mov_b32 v{t3}, {OOB:#x}"), o(f"v_cmp_eq_u32 vcc, 0, v{t0}"), o("v_nop"), o("v_nop"), o(f"v_cndmask_b32 v{qa}, v{qa}, v{t3}, vcc")]),
                  G([o(f"v_cmp_eq_u32 vcc, v{t3}, v{pa}"), o("v_nop"), o("v_nop"), o(f"v_cndmask_b32 v{yc}, v{yc}, v{t3}, vcc")]),
                  o(f"v_add_u32 v{t0}, 16, v{t0}")]
        return L

    def phase2_setup(self):
        L = []
        L += [G([o(f"s_xor_b32 s{T6}, s{S_J}, 1"), o(f"s_and_b32 s{T2}, s{T6}, 1"), o(f"s_mul_i32 s{T0}, s{T6}, 288")]),
              G([o(f"s_mul_i32 s{T1}, s{T2}, 224"), o(f"s_add_u32 s{T1}, s{T0}, s{T1}")]),
              G([o(f"s_cmp_eq_u32 s{T2}, 0"), o(f"s_cselect_b32 s{T3}, 64, -64"), o(f"s_cselect_b32 s{T4}, 256, 0")]),
              o(f"s_add_u32 s{T4}, s{T4}, s{T0}")]
        for u in range(4):
            L += [G([o(f"s_mul_i32 s{T5}, s{T3}, {u}"), o(f"s_add_u32 s{T5}, s{T5}, s{T1}")]),
                  G([o(f"s_mul_i32 s{S_N1+2*u}, s{T5}, 1152"), o(f"s_add_u32 s{S_N1+2*u+1}, s{S_N1+2*u}, {32*1152}")])]
        L += [o(f"s_mul_i32 s{S_N1+8}, s{T4}, 1152")]
        L += [G([o(f"s_and_b32 s{T2}, s{S_J}, 1"), o(f"s_mul_i32 s{T0}, s{T2}, 640"), o(f"s_lshr_b32 s{T1}, s{S_J}, 2")])]
        for k in range(4):
            L += [G([o(f"s_add_u32 s{T3}, s{T1}, {(k+1) % 4 if k < 3 else 0}"), o(f"s_and_b32 s{T3}, s{T3}, 3"), o(f"s_lshl_b32 s{T3}, s{T3}, 7")]),
                  o(f"s_add_u32 s{S_CU+k}, s{T0}, s{T3}")]
        L += [G([o(f"s_cmp_eq_u32 s{T2}, 0"), o(f"s_cselect_b32 s{S_CU+4}, 0, 64")]), o(f"s_add_u32 s{S_CU+4}, s{S_CU+4}, 512")]
        return L

    def p2q_setup(self):
        L = [G([o(f"s_and_b32 s{T2}, s{S_J}, 1"), o(f"s_mul_i32 s{T3}, s{T2}, 10"), o(f"s_lshr_b32 s{T4}, s{S_J}, 2")])]
        for k, dst in enumerate(S_QU):
            L += [G([o(f"s_add_u32 s{T5}, s{T4}, {k+1}"), o(f"s_and_b32 s{T5}, s{T5}, 3"), o(f"s_lshl_b32 s{T5}, s{T5}, 1")]),
                  G([o(f"s_add_u32 s{T5}, s{T5}, s{T3}"), o(f"s_lshl_b32 s{T5}, s{T5}, 11"), o(f"s_add_u32 s{dst}, s{T5}, s{S_PB}")])]
        L += [G([o(f"s_lshl_b32 s{T5}, s{T4}, 1"), o(f"s_add_u32 s{T5}, s{T5}, s{T3}"), o(f"s_bfe_u32 s{T4}, s{S_J}, 0x10001")]),
              G([o(f"s_add_u32 s{S_TO}, s{T5}, s{T4}"), o(f"s_xor_b32 s{T4}, s{T4}, 1"), o(f"s_add_u32 s{T5}, s{T5}, s{T4}")]),
              G([o(f"s_lshl_b32 s{T5}, s{T5}, 11"), o(f"s_add_u32 s{S_QN}, s{T5}, s{S_PB}")]),
              G([o(f"s_add_u32 s{T5}, s{T2}, 8"), o(f"s_lshl_b32 s{T5}, s{T5}, 11"), o(f"s_add_u32 s{S_Q8}, s{T5}, s{S_PB}")])]
        return L

    def main(self):
        DIST = self.opts.get("dist", 7)
        M = []; frags = []
        fu = {}; lu = {}
        def addfrag(reads_fn, use, dist=None, stage=None):
            f = len(frags); a = AF + 4*(f % NAF)
            fr = dict(reads=reads_fn(a), use=use)
            if dist: fr["dist"] = dist
            frags.append(fr)
            if stage is not None and stage not in fu:
                fu[stage] = use; fr["stage_first"] = stage
            return f, a
        def tr(base, off, off2): return lambda a: [f"ds_read_b64_tr_b16 a[{a}:{a+1}], v{base} offset:{off}", f"ds_read_b64_tr_b16 a[{a+2}:{a+3}], v{base} offset:{off+off2}"]
        for u in range(4):
            for mat in range(2):
                for kh in range(2):
                    sig = 4*u + 2*mat + kh
                    for half in range(2):
                        acc = (GA if mat == 0 else UA)[u % 2][half]
                        for kk in range(18):
                            ks = kh*18 + kk; g = len(M)
                            f, a = addfrag(tr((V_RA if half == 0 else V_RB) + sig % 4, kk*2048, 512), g, stage=("st", sig))
                            M.append(dict(op=32, acc=f"v[{acc}:{acc+15}]", first=(ks == 0), A=f"a[{a}:{a+3}]", B=f"a[{AX+4*ks}:{AX+4*ks+3}]", need=f))
                            lu[("st", sig)] = g
        for mat in range(2):
            acc = (GA if mat == 0 else UA)[0][0]
            for ks in range(36):
                g = len(M)
                f, a = addfrag(tr(V_R8 + mat, ks*1024, 256), g, stage=("st", 16+mat))
                M.append(dict(op=32, acc=f"v[{acc}:{acc+15}]", first=(ks == 0), A=f"a[{a}:{a+3}]", B=f"a[{AX+4*ks}:{AX+4*ks+3}]", need=f))
                lu[("st", 16+mat)] = g
        S0 = len(M)
        def accP(tt, ss):
            i = tt*3 + ss
            return 48 + 4*i if i < 4 else 112 + 4*(i - 4)
        def accQ(tt, ss):
            i = tt*3 + ss
            return 64 + 4*i if i < 4 else 128 + 4*(i - 4)
        def zP(ss, k):
            i = k*3 + ss
            return f"a[{AZ+4*i}:{AZ+4*i+3}]"
        def zQ(ss, k):
            i = k*3 + ss
            if i < 5: return f"a[{AZ+60+4*i}:{AZ+60+4*i+3}]"
            i -= 5
            if i < 4: return f"v[{32+4*i}:{32+4*i+3}]"
            i -= 4
            if i < 4: return f"v[{96+4*i}:{96+4*i+3}]"
            i -= 4
            return f"a[{4*i}:{4*i+3}]"
        self.zP, self.zQ, self.accP, self.accQ = zP, zQ, accP, accQ
        for mat, accf, zf in ((0, accP, zP), (1, accQ, zQ)):
            for k in range(5):
                for tt in range(2):
                    g = len(M)
                    if k < 4:
                        base = V_SA + (k & 1); off = mat*SLOT + (k >> 1)*4096 + tt*2048
                        st = ("C" if mat == 0 else "S", 0)
                    else:
                        base = V_SA + 2 + mat; off = tt*2048; st = ("CX" if mat == 0 else "SX", 0)
                    f, a = addfrag(lambda a, base=base, off=off: [f"ds_read_b128 a[{a}:{a+3}], v{base} offset:{off}"], g, dist=8, stage=st)
                    for ss in range(3):
                        ac = accf(tt, ss)
                        M.append(dict(op=16, acc=f"v[{ac}:{ac+3}]", first=(k == 0), A=f"a[{a}:{a+3}]", B=zf(ss, k), need=f))
                        lu[st] = len(M) - 1
            if mat == 0: SP_END = len(M)
        P2_0 = len(M)
        stages = [(0, "own"), (1, "own"), (2, "own"), (0, "par"), (1, "par"), (2, "par"), (4, "both"), (3, "own"), (3, "par")]
        slot_order = [0, 1, 2, 0, 3, 1, 2, 0, 3]
        slot_of = {st: slot_order[i] for i, st in enumerate(stages)}
        ACC = {0: [32, 96], 1: [16, 80], 2: [48, 112], 3: [64, 128], 4: [32]}
        tile_last = {}
        def p2run(st, half, base, ks=None):
            u, who = st
            acc = ACC[u][half]
            for k in (ks or range(18)):
                g = len(M)
                f, a = addfrag(tr(base, k*2048, 1024), g, stage=("s2", st))
                M.append(dict(op=32, acc=f"v[{acc}:{acc+15}]", first=(who == "own" and k == 0), A=f"a[{a}:{a+3}]",
                              B=(f"v[{HF+4*k}:{HF+4*k+3}]" if who == "own" else f"a[{HPB+4*k}:{HPB+4*k+3}]"), need=f))
                tile_last[(u, half)] = g; lu[("s2", st)] = g
        for st in stages[:7]:
            u, who = st; slot = slot_of[st]
            if u < 4 and who == "par" and u in (0, 1) and self.opts.get("klate", 1):
                for rng in (range(12), range(12, 18)):
                    for half in range(2): p2run(st, half, (V_RA if half == 0 else V_RB) + slot, rng)
            elif u < 4:
                for half in range(2): p2run(st, half, (V_RA if half == 0 else V_RB) + slot)
            else:
                acc = ACC[4][0]
                for k in range(36):
                    g = len(M)
                    f, a = addfrag(tr(V_R8, k*1024, 512), g, stage=("s2", st))
                    M.append(dict(op=32, acc=f"v[{acc}:{acc+15}]", first=(k == 0), A=f"a[{a}:{a+3}]",
                                  B=(f"v[{HF+4*k}:{HF+4*k+3}]" if k < 18 else f"a[{HPB+4*(k-18)}:{HPB+4*(k-18)+3}]"), need=f))
                    tile_last[(4, 0)] = g; lu[("s2", st)] = g
        p2run((3, "own"), 0, V_LB); p2run((3, "par"), 0, V_LB + 1); p2run((3, "own"), 1, V_LB + 2); p2run((3, "par"), 1, V_LB + 3)
        N = len(M)
        last_use = {}
        for g, m in enumerate(M): last_use[m["need"]] = g
        for f, fr in enumerate(frags):
            d = fr.get("dist", DIST)
            t = fr["use"] - d
            if f >= NAF and t < last_use[f - NAF]: fr["dist"] = fr["use"] - last_use[f - NAF]
        for fr in frags:
            st = fr.get("stage_first")
            if st is None: continue
            if st[0] in ("st", "s2"):
                tags = [st]
                if st == ("st", 3): tags += ["zst", "flinit"]
                if st == ("st", 17): tags += ["hst"]
                fr["pre"] = [wvm(tags), o("s_barrier")]
                if st == ("st", 17):
                    fr["pre"] += [vm(f"buffer_store_dword v{V_ONE}, v{V_ONE0}, s[{SR_WS}:{SR_WS+3}], s{S_FL} offen sc1", "fl1")]
                if st == ("st", 3):
                    fr["pre"] += [vm(f"buffer_atomic_add v{V_ONE}, v{V_ONE0}, s[{SR_HZ}:{SR_HZ+3}], 0 offen offset:128 sc1", "zpub")]
            elif st == ("CX", 0):
                fr["pre"] = [wvm([("cs", ("CX", 0)), ("cs", ("SX", 0))]), o("s_barrier")]
            elif st == ("SX", 0):
                fr["pre"] = []
            else:
                fr["pre"] = [wvm(("cs", st))]
        stamps = {0: "p1", 144: "u1", 288: "u2", 432: "u3", 576: "u4", S0: "S0", SP_END: "SP", P2_0: "p2", P2_0 + 108: "p2b", P2_0 + 216: "p2c"}
        if self.opts.get("hdiag") == 2:
            stamps = {0: "p1", 144: "u1", 288: "u2", 432: "u3", 576: "u4", S0: "S0", P2_0: "p2", P2_0 + 108: "p2b", P2_0 + 216: "p2c"}
        if self.opts.get("fine") == 2:
            stamps = {0: "p1", S0: "S0", P2_0: "p2"}
            for k in range(9, 127, 9): stamps[P2_0 + k] = f"+{k}"
        elif self.opts.get("fine"):
            stamps = {0: "p1", 432: "u3", 576: "u4", 594: "s594", 612: "s612", 630: "s630", S0: "S0", 660: "s660", 672: "s672", 684: "s684", SP_END: "SP", 714: "s714", 726: "s726", 738: "s738", P2_0: "p2", P2_0 + 36: "a36", P2_0+72: "a72", P2_0 + 108: "p2b", P2_0 + 216: "p2c"}
        for g, name in stamps.items():
            if self.diag: M[g].setdefault("before", []).extend(self.stamp(name))
        self.tail2 = []
        if self.opts.get("jit"):
            j = self.opts["jit"]
            pts = {1: [(0, 7, 3), (300, 5, 1)], 2: [(P2_0 + 6, 3, 1), (600, 7, 6)], 3: [(P2_0 + 150, 7, 2), (P2_0 + 240, 3, 0), (100, 15, 9)]}[j]
            for n, (g, mask, val) in enumerate(pts):
                M[g].setdefault("before", []).extend(self.jitter(n, mask, val, 6))

        def setup(sl, head):
            rbar = {st: fu[st] - DIST for st in fu if st[0] in ("st", "s2")}
            for b in rbar.values():
                if b >= 0: sl.budget[b] = 4
            def fbar(t):
                sl.put(t, [o("s_barrier")])
            busy = {"end": -1}
            def place(groups, start, step=1):
                s = max(start, busy["end"] + 1)
                for grp in groups:
                    sl.put(s, grp); busy["end"] = s; s += step
                return s
            sl.put(2, [o(f"v_mov_b32 v{V_ONE}, 1")])
            eh = sl.stream(self.rr_reads(48, 112) + self.h_epilogue(S_A, V_HACC, 48, 64), 12, 46)
            eh = sl.stream(self.rr_reads(48, 112, 2) + self.h_epilogue(S_B, 128, 48, 64), eh + 1, eh + 34)
            assert eh < 92, eh
            for mat in range(2):
                slot = (16 + mat) % 4
                ins = [o("v_lshrrev_b32 v224, 5, v0"), o("v_lshlrev_b32 v224, 9, v224"),
                       o("v_bfe_u32 v225, v0, 2, 2"), o("v_lshlrev_b32 v225, 6, v225"), o("v_add_u32 v224, v224, v225"),
                       o("v_bfe_u32 v225, v0, 4, 1"), o("v_lshlrev_b32 v225, 5, v225"), o("v_add_u32 v224, v224, v225"),
                       o("v_and_b32 v225, 3, v0"), o("v_lshlrev_b32 v225, 3, v225"), o("v_add_u32 v224, v224, v225"),
                       o(f"v_add_u32 v{V_R8+mat}, {slot*SLOT}, v224")]
                sl.stream(ins, 70 + 20*mat, 88 + 20*mat)
            dma_end = {}
            for sig in range(2, 18):
                grps = self.dma_p1(sig, sig % 4)
                if sig == 2: start = 0
                elif sig == 3: start = 9*self.opts.get('dstep', 2)
                elif self.opts.get("fb", 1):
                    t = lu[("st", sig - 4)]; fbar(t); start = t + 1
                else:
                    start = min(b for b in rbar.values() if b >= lu[("st", sig - 4)]) + 1
                dma_end[sig] = place(grps, start, self.opts.get("dstep", 2))
            self.paced_prefetch(sl, dma_end)
            self.mode_check(sl, M)
            sl.put(590, [G([o(f"s_lshl_b32 s{S_FL}, s{S_LID}, 7"), o(f"s_add_u32 s{S_FL}, s{S_FL}, {WS_FLAG}")])])
            sl.put(592, [o(f"v_mov_b32 v{V_ONE}, 1")])
            e0 = sl.stream(self.geglu(0), 145, 211)
            sl.stream(self.hstore(0) + self.geglu(1) + self.hstore(1), max(e0 + 1, 212), 287)
            for u in range(1, 3):
                sl.stream(self.geglu(2*u) + self.hstore(2*u) + self.geglu(2*u+1) + self.hstore(2*u+1), 144*(u+1) + 1, 144*(u+2) - 1)
            es = sl.stream(self.s_setup(), eh + 1, eh + 11)
            es = sl.stream(self.s_setup2(), es + 1, es + 10)
            assert es < 118, es
            sl.stream(self.s_setup3(224, 225, 226, 227), max(es + 1, 112), 143)
            ep = sl.stream(self.phase2_setup(), 66, 100)
            assert ep < 110
            sl.stream(self.s_setup_e(229, 0), 440, 464)
            t = lu[("st", 14)]; fbar(t); e = place(self.dma_cs(0, 2, ("cs", ("C", 0))), t + 1, 2)
            place(self.dma_cx(0, ("cs", ("CX", 0))) + self.dma_cx(1, ("cs", ("SX", 0))), e, 2)
            t = lu[("st", 15)]; fbar(t); place(self.dma_cs(1, 3, ("cs", ("S", 0))), t + 1, 2)
            self.main_rest(sl, M, fu, lu, stages, slot_of, ACC, tile_last, S0, SP_END, P2_0, N, fbar, place)
        L = self.paced(M, frags, setup, DIST)
        return L + self.tail2

    def mode_check(self, sl, M):
        if not self.opts.get("local", 0): return
        t = 0
        ld = f"buffer_load_dwordx2 v[222:223], off, s[{SR_HZ}:{SR_HZ+3}], s{T5} sc1"
        ld = f"buffer_load_dwordx2 v[230:231], off, s[{SR_HZ}:{SR_HZ+3}], s{S_XC} sc1"
        if self.opts.get("cfg", 0) == 0:
            ld = f"buffer_load_dword v230, off, s[{SR_HZ}:{SR_HZ+3}], s{S_XC} sc1"
            sl.put(140, [G([o(f"s_lshr_b32 s{S_XC}, s{S_LID}, 3"), o(f"s_lshl_b32 s{S_XC}, s{S_XC}, 2")])])
        else:
            sl.put(140, [G([o(f"s_lshl_b32 s{S_XC}, s{S_MT}, 3")])])
        sl.put(143, [vm(ld, "xcc")])
        sl.put(205, [wvm("xcc")])
        sl.put(206, [o(f"v_readfirstlane_b32 s{T6}, v230"), o(f"v_readfirstlane_b32 s{T7}, v231")])
        def nz(r, tmp):
            return [o(f"s_lshr_b32 s{tmp}, s{r}, 1"), o(f"s_or_b32 s{tmp}, s{tmp}, s{r}"), o(f"s_lshr_b32 s{T3}, s{tmp}, 2"), o(f"s_or_b32 s{tmp}, s{tmp}, s{T3}"),
                    o(f"s_and_b32 s{tmp}, s{tmp}, 0x11111111")]
        chk = nz(T6, T1) + nz(T7, T2) + [o(f"s_and_b32 s{T1}, s{T1}, s{T2}"), o(f"s_cmp_eq_u32 s{T1}, 0x11111111")]
        if self.opts.get("cfg", 0) == 0:
            ld = f"buffer_load_dword v230, off, s[{SR_HZ}:{SR_HZ+3}], s{S_XC} sc1"
            ext = [o(f"s_and_b32 s{T1}, s{S_LID}, 6"), o(f"s_lshl_b32 s{T1}, s{T1}, 2"), o(f"s_lshr_b32 s{T2}, s{T6}, s{T1}"),
                   o(f"s_and_b32 s{T3}, s{T2}, 15"), o(f"s_bfe_u32 s{T2}, s{T2}, 0x40004"),
                   o(f"s_min_u32 s{T1}, s{T2}, s{T3}"), o(f"s_cmp_ge_u32 s{T1}, 1")]
            blk = ext + [o("s_cbranch_scc1 L_xc_ok")] + self.spin("L_xc", [o(ld)], [o(f"v_readfirstlane_b32 s{T6}, v230"), o("s_nop 3")] + ext)
            blk += [o(f"s_cmp_eq_u32 s{T2}, s{T3}"), o(f"s_cselect_b32 s{S_MODE}, 1, 0")]
            if self.opts.get("forceglobal"): blk += [o(f"s_mov_b32 s{S_MODE}, 0")]
            M[209].setdefault("before", []).extend(blk)
            return
        blk = chk + [o("s_cbranch_scc1 L_xc_ok")] + self.spin("L_xc", [o(ld)],
              [o(f"v_readfirstlane_b32 s{T6}, v230"), o(f"v_readfirstlane_b32 s{T7}, v231"), o("s_nop 3")] + chk)
        blk += [o(f"s_and_b32 s{T1}, s{T6}, 15"), o(f"s_mul_i32 s{T1}, s{T1}, 0x11111111"),
                o(f"s_cmp_eq_u32 s{T1}, s{T6}"), o(f"s_cselect_b32 s{S_MODE}, 1, 0"),
                o(f"s_cmp_eq_u32 s{T1}, s{T7}"), o(f"s_cselect_b32 s{S_MODE}, s{S_MODE}, 0")]
        if self.opts.get("forceglobal"): blk += [o(f"s_mov_b32 s{S_MODE}, 0")]
        M[209].setdefault("before", []).extend(blk)

    def bulk(self, sl, t):
        bk = [G([o(f"s_lshl_b32 s{S_PF}, s{S_LID}, 2"), o(f"s_add_u32 s{S_PF}, s{S_PF}, s{S_W}"), o(f"s_mul_i32 s{S_PF}, s{S_PF}, 41")]),
              o(f"v_add_u32 v{V_PF}, s{S_PF}, v0"), o(f"v_lshlrev_b32 v{V_PF}, 7, v{V_PF}"),
              G([o("v_cmp_gt_u32 vcc, 41, v0"), o("v_nop"), o("v_nop"), o(f"v_cndmask_b32 v{V_PF}, v{V_ONE0}, v{V_PF}, vcc")])]
        e = sl.stream(bk, t, t + 5, spill=2)
        sl.put(e + 1, [vm(f"buffer_load_dword v{V_PF}, v{V_PF}, s[{SR_WG}:{SR_WG+3}], 0 offen", "pf")])
        sl.put(e + 2, [vm(f"buffer_load_dword v{V_PF}, v{V_PF}, s[{SR_WU}:{SR_WU+3}], 0 offen", "pf")])
        return e + 2

    def paced_prefetch(self, sl, dma_end):
        if self.opts.get("bulkat", 0) == 1:
            bk = [G([o(f"s_lshl_b32 s{S_PF}, s{S_LID}, 2"), o(f"s_add_u32 s{S_PF}, s{S_PF}, s{S_W}"), o(f"s_mul_i32 s{S_PF}, s{S_PF}, 41")]),
                  o(f"v_add_u32 v230, s{S_PF}, v0"), o(f"v_lshlrev_b32 v230, 7, v230"),
                  G([o("v_cmp_gt_u32 vcc, 41, v0"), o("v_nop"), o("v_nop"), o(f"v_cndmask_b32 v230, v{V_ONE0}, v230, vcc")])]
            e = sl.stream(bk, 0, 8, spill=2)
            assert e < 12
            s = dma_end[self.opts.get("bulkst", 3)]
            sl.put(s, [vm(f"buffer_load_dword v{V_PF}, v230, s[{SR_WG}:{SR_WG+3}], 0 offen", "pf")])
            sl.put(s + 1, [vm(f"buffer_load_dword v{V_PF}, v230, s[{SR_WU}:{SR_WU+3}], 0 offen", "pf")])
        if not self.opts.get("ppf", 1): return
        Dd, Cc, t = 228, 229, 227
        if self.opts.get("lbulk"):
            first = [G([o(f"s_lshl_b32 s{S_PF}, s{S_MT}, 2"), o(f"s_add_u32 s{S_PF}, s{S_PF}, s{S_W}"), o(f"s_mul_i32 s{S_PF}, s{S_PF}, 41")]),
                     G([o(f"s_mul_i32 s{S_C}, s{S_J}, 2592"), o(f"s_add_u32 s{S_PF}, s{S_PF}, s{S_C}")])]
        else:
            first = [G([o(f"s_lshl_b32 s{S_PF}, s{S_LID}, 2"), o(f"s_add_u32 s{S_PF}, s{S_PF}, s{S_W}"), o(f"s_mul_i32 s{S_PF}, s{S_PF}, 41")])]
        setup = first + [
                 o(f"v_add_u32 v{Dd}, s{S_PF}, v0"), o(f"v_lshlrev_b32 v{Dd}, 7, v{Dd}"), o(f"v_mov_b32 v{t}, {OOB:#x}"),
                 G([o("v_cmp_gt_u32 vcc, 41, v0"), o("v_nop"), o("v_nop"), o(f"v_cndmask_b32 v{Dd}, v{t}, v{Dd}, vcc")]),
                 G([o(f"s_and_b32 s{S_PF}, s{S_J}, 7"), o(f"s_lshl_b32 s{S_PF}, s{S_PF}, 2"), o(f"s_add_u32 s{S_PF}, s{S_PF}, s{S_W}")]),
                 G([o(f"s_and_b32 s{S_C}, s{S_PF}, 15"), o(f"s_lshl_b32 s{S_C}, s{S_C}, 1"), o(f"s_add_u32 s{S_C}, s{S_C}, s{S_TAU}")]),
                 G([o(f"s_lshl_b32 s{S_ST0}, s{S_MT}, 5"), o(f"s_add_u32 s{S_C}, s{S_C}, s{S_ST0}"), o(f"s_sub_u32 s{S_ST0}, 1024, s{S_C}")]),
                 G([o(f"s_cmp_lt_u32 s{S_PF}, 16"), o(f"s_cselect_b32 s{S_PF}, s{S_C}, s{S_ST0}"), o(f"s_lshl_b32 s{S_PF}, s{S_PF}, 12")]),
                 o(f"v_lshlrev_b32 v{Cc}, 7, v0"), o(f"v_add_u32 v{Cc}, s{S_PF}, v{Cc}"),
                 G([o("v_cmp_gt_u32 vcc, 9, v0"), o("v_nop"), o("v_nop"), o(f"v_cndmask_b32 v{Cc}, v{t}, v{Cc}, vcc")])]
        e = sl.stream(setup, 146, 176)
        s = dma_end[self.opts.get("pfw", 9)]
        assert s > e + 6
        if self.opts.get("bulk", 1) != 2: sl.put(s, [vm(f"buffer_load_dword v{V_PF}, v{Dd}, s[{SR_WD}:{SR_WD+3}], 0 offen", "pf")])
        if self.opts.get("wdl2", 1):
            A2, t2 = 230, 226
            st2 = [G([o(f"s_and_b32 s{S_PF}, s{S_MT}, 7"), o(f"s_mul_i32 s{S_PF}, s{S_PF}, 36"), o(f"s_mul_i32 s{S_C}, s{S_W}, 9")]),
                   o(f"s_add_u32 s{S_PF}, s{S_PF}, s{S_C}"), o(f"v_add_u32 v{t2}, s{S_PF}, v0"), o(f"v_mul_u32_u24 v{t2}, 1152, v{t2}"),
                   o(f"v_mov_b32 v227, {OOB:#x}"),
                   G([o("v_cmp_gt_u32 vcc, 9, v0"), o("v_nop"), o("v_nop"), o(f"v_cndmask_b32 v{t2}, v227, v{t2}, vcc")])]
            e2 = sl.stream(st2, 474, 486)
            def wl(own, k, t):
                sl.put(t, [G([o(f"s_{'mul_i32' } s{S_PF}, s{S_J if own else S_J}, {288*1152}")] + ([] if own else [o(f"s_xor_b32 s{S_C}, s{S_J}, 1"), o(f"s_mul_i32 s{S_PF}, s{S_C}, {288*1152}")]) + [o(f"s_add_u32 s{S_PF}, s{S_PF}, s{S_CU+k}")])])
                sl.put(t + 1, [vm(f"buffer_load_dword v{V_PF}, v{t2}, s[{SR_WD}:{SR_WD+3}], s{S_PF} offen", "pf")])
            s = dma_end[16]; wl(True, 0, s); wl(True, 1, s + 2)
            s = dma_end[17]; wl(True, 2, s); wl(False, 0, s + 2)
        s = dma_end[self.opts.get("pfc", 11)]
        sl.put(s, [vm(f"buffer_load_dword v{V_PF}, v{Cc}, s[{SR_CS}:{SR_CS+3}], 0 offen", "pf")])
        sl.put(s + 1, [vm(f"buffer_load_dword v{V_PF}, v{Cc}, s[{SR_SS}:{SR_SS+3}], 0 offen", "pf")])

    def rowmir(self, sRB, sT, t0, t1, t2, t3):
        return [o(f"s_lshl_b32 s{sT}, s{sRB}, 3"), o(f"v_and_b32 v{t0}, 7, v0"), o(f"v_add_u32 v{t0}, s{sT}, v{t0}"),
                o(f"v_bfe_u32 v{t1}, v0, 3, 2"),
                o(f"v_add_u32 v{t2}, 1, v{t1}"), o(f"v_lshrrev_b32 v{t2}, 1, v{t2}"), o(f"v_lshlrev_b32 v{t2}, 10, v{t2}"),
                o(f"v_add_u32 v{t3}, v{t2}, v{t0}"), o(f"v_sub_u32 v{t2}, v{t2}, v{t0}"),
                o(f"v_and_b32 v{t1}, 1, v{t1}"),
                G([o(f"v_cmp_eq_u32 vcc, 1, v{t1}"), o("v_nop"), o("v_nop"), o(f"v_cndmask_b32 v{t3}, v{t3}, v{t2}, vcc")]),
                o(f"v_bfe_u32 v{t1}, v0, 3, 2"), o(f"v_lshlrev_b32 v{t2}, 10, v{t1}"), o(f"v_subrev_u32 v{t2}, 0x600, v{t2}"),
                G([o(f"v_cmp_le_u32 vcc, 2, v{t1}"), o("v_nop"), o("v_nop"), o(f"v_cndmask_b32 v{t2}, v{t3}, v{t2}, vcc")]),
                G([o(f"v_cmp_eq_u32 vcc, 0, v{t0}"), o("v_nop"), o("v_nop"), o(f"v_cndmask_b32 v{t0}, v{t3}, v{t2}, vcc")]),
                o(f"v_sub_u32 v{t1}, 2048, v{t0}"), o(f"v_and_b32 v{t1}, 0x7ff, v{t1}")]

    def owner_addr(self):
        sQ = S_TO
        t0, t1, t2, t3 = 244, 245, 246, 247
        L = [G([o(f"s_lshl_b32 s{T4}, s{S_MT}, 2"), o(f"s_add_u32 s{T4}, s{T4}, s{S_W}")]),
             G([o(f"s_mul_i32 s{T5}, s{T4}, 18"), o(f"s_add_u32 s{T5}, s{T5}, s{sQ}"), o(f"s_lshl_b32 s{T5}, s{T5}, 11")]),
             o(f"s_lshr_b32 s{T3}, s{S_J}, 1")]
        i = 0
        for dd in (3, 2, 1):
            for b_ in range(2):
                L += [G([o(f"s_lshr_b32 s{16+i}, s{T3}, 1"), o(f"s_add_u32 s{16+i}, s{16+i}, {dd}"), o(f"s_and_b32 s{16+i}, s{16+i}, 3")]),
                      G([o(f"s_lshl_b32 s{16+i}, s{16+i}, 1"), o(f"s_add_u32 s{16+i}, s{16+i}, {b_}"), o(f"s_mul_i32 s{16+i}, s{16+i}, {PART_BYTES}")]),
                      o(f"s_add_u32 s{16+i}, s{16+i}, s{T5}")]
                i += 1
        L += [G([o(f"s_xor_b32 s22, s{T3}, 1"), o(f"s_mul_i32 s22, s22, {PART_BYTES}"), o(f"s_add_u32 s22, s22, s{T5}")])]
        L += self.rowmir(T4, T5, t0, t1, t2, t3) + [
              o(f"s_lshl_b32 s{T5}, s{sQ}, 6"),
              o(f"v_mul_u32_u24 v{t2}, 1152, v{t0}"), o(f"v_add_u32 v{t2}, s{T5}, v{t2}"),
              o(f"v_lshrrev_b32 v{t3}, 5, v0"), o(f"v_lshlrev_b32 v238, 4, v{t3}"), o(f"v_add_u32 v238, v{t2}, v238"),
              o(f"v_lshlrev_b32 v237, 3, v{t3}"), o(f"v_add_u32 v237, v{t2}, v237"),
              G([o(f"s_lshl_b32 s{T5}, s{sQ}, 7"), o(f"s_cmp_lt_u32 s{sQ}, 9"), o(f"s_cselect_b32 s24, 0, 1")]),
              G([o(f"s_sub_u32 s{T4}, {2292 - 96}, s{T5}"), o(f"s_cmp_lt_u32 s{sQ}, 9"), o(f"s_cselect_b32 s{T5}, s{T5}, s{T4}"), o(f"s_cselect_b32 s{T4}, 1, -1")]),
              G([o(f"v_mov_b32 v{t2}, s24"), o(f"v_cmp_eq_u32 vcc, 1, v{t2}"), o("v_nop"), o("v_nop"), o(f"v_cndmask_b32 v{t0}, v{t0}, v{t1}, vcc")]),
              o(f"v_mul_u32_u24 v{t0}, {YP}, v{t0}"), o(f"v_add_u32 v{t0}, s{T5}, v{t0}"),
              o(f"v_lshlrev_b32 v{t3}, 4, v{t3}"), o(f"v_mul_lo_u32 v{t3}, v{t3}, s{T4}"), o(f"v_add_u32 v{t0}, v{t0}, v{t3}"),
              o(f"v_add_u32 v239, {WS_YH}, v{t0}")]
        return L

    def pipe_reduce(self, sl, M, fu, lu, P2_0, N):
        self.items_cfg()
        t4 = P2_0 + self.opts.get("t4", 254)
        sl.put(t4 - 3, [o("v_mov_b32 v240, 4")])
        sl.put(t4, [wvm([("pst", 0), ("pst", 1), ("pst", 2), "yst"]), o("s_barrier")])
        sl.put(t4 + 1, [vm(f"buffer_store_dword v240, v{V_ONE0}, s[{SR_WS}:{SR_WS+3}], s{S_FL} offen sc1", "fl4")])
        ep = sl.stream(self.p2q_setup(), P2_0 + 102, P2_0 + 124)
        assert ep < P2_0 + 132
        s_own, s_par = 0, 3
        lb = [G([o(f"s_bfe_u32 s{T5}, s{S_J}, 0x10001"), o(f"s_lshl_b32 s{T5}, s{T5}, 6"), o(f"s_xor_b32 s{T4}, s{T5}, 64")]),
              o(f"v_xor_b32 v{V_LB}, s{T4}, v{V_RA+s_own}"), o(f"v_xor_b32 v{V_LB+1}, s{T4}, v{V_RA+s_par}"),
              o(f"v_xor_b32 v{V_LB+2}, s{T5}, v{V_RA+s_own}"), o(f"v_xor_b32 v{V_LB+3}, s{T5}, v{V_RA+s_par}")]
        sl.stream(lb, P2_0 + 190, P2_0 + 200)
        e = sl.stream(self.owner_addr(), P2_0 + 204, P2_0 + 250)
        e = sl.stream([G([o(f"s_lshl_b32 s{T6}, s{S_MT}, 11"), o(f"s_add_u32 s{T6}, s{T6}, {WS_FLAG}")]),
                       G([o(f"s_and_b32 s{S_PM}, s{S_J}, 1"), o(f"s_lshl_b32 s{S_PM}, 0x5555, s{S_PM}")]),
                       o("v_lshlrev_b32 v242, 7, v0"), o(f"v_mov_b32 v241, {OOB:#x}"),
                       G([o("v_cmp_gt_u32 vcc, 16, v0"), o("v_nop"), o("v_nop"), o("v_cndmask_b32 v242, v241, v242, vcc")])], e + 1, e + 8)
        for i in range(4): sl.put(e + 2 + i, [vm(f"buffer_load_dwordx2 v[{24+2*i}:{25+2*i}], v237, s[{SR_X}:{SR_X+3}], 0 offen offset:{16*i}", "ox")])
        def ploads(i0, i1):
            out = []
            for i in range(i0, i1):
                out += [vm(f"buffer_load_dwordx4 v[{80+8*i}:{83+8*i}], v{V_L16}, s[{SR_WS}:{SR_WS+3}], s{16+i} offen sc1", "op"),
                        vm(f"buffer_load_dwordx4 v[{84+8*i}:{87+8*i}], v{V_L16}, s[{SR_WS}:{SR_WS+3}], s{16+i} offen offset:1024 sc1", "op")]
            return out
        yl = [vm(f"buffer_load_dwordx4 v[{48+4*i}:{51+4*i}], v239, s[{SR_WS}:{SR_WS+3}], 0 offen offset:{32*i} sc1", "op") for i in range(4)]
        self.late_loads = []
        if self.opts.get("split3", 1):
            t3 = P2_0 + self.opts.get("t3", 212)
            sl.put(t3 - 3, [o("v_mov_b32 v240, 3")])
            sl.put(t3, [wvm([("pst", 0), ("pst", 1), "yst"]), o("s_barrier")])
            sl.put(t3 + 1, [vm(f"buffer_store_dword v240, v{V_ONE0}, s[{SR_WS}:{SR_WS+3}], s{S_FL} offen sc1", "fl3")])
            tp3 = max(e + 7, P2_0 + self.opts.get("tp3", 258))
            ld, chk = self.group_poll("L_g3", 3, 241, 242)
            sl.put(tp3, [vm(ld, "gp3")])
            sl.put(tp3 + 9, [wvm("gp3")])
            M[tp3 + 11].setdefault("before", []).extend(chk + [o("s_cbranch_scc1 L_g3_ok")] + self.spin("L_g3", [o(ld)], chk))
            s = tp3 + 11
            for l in ploads(0, 4) + yl:
                sl.put(s, [l]); s += 2
            lds = ploads(4, 6)
            tpoll = max(s, P2_0 + self.opts.get("tpa", 300))
        else:
            lds = ploads(0, 6) + yl
            tpoll = max(e + 7, P2_0 + self.opts.get("tpa", 284))
        ld, chk = self.group_poll("L_gA", 4, 241, 242)
        sl.put(tpoll, [vm(ld, "gpA")])
        sl.put(tpoll + 9, [wvm("gpA")])
        M[tpoll + 11].setdefault("before", []).extend(chk + [o("s_cbranch_scc1 L_gA_ok")] + self.spin("L_gA", [o(ld)], chk))
        s = tpoll + 11
        stp = self.opts.get("ostep", 2)
        for l in lds:
            if s < N - 1: sl.put(s, [l]); s += stp
            else: self.late_loads.append(l)
        print("owner loads: in loop until", s, "late:", len(self.late_loads), "N", N)
        t5 = N - self.opts.get("t5", 10)
        sl.put(t5 - 3, [o("v_mov_b32 v240, 5")])
        sl.put(t5, [wvm([("pst", 3), ("pst", 4)]), o("s_barrier")])
        sl.put(t5 + 1, [vm(f"buffer_store_dword v240, v{V_ONE0}, s[{SR_WS}:{SR_WS+3}], s{S_FL} offen sc1", "fl5")])
        self.RDx = dict(P=("v", 176), X=208, Y=212, OA=220, PV=221, t=[222, 223, 224, 225], rev=26, so=84)
        Ad, Ld = self.item_setup("D", self.RDx, split=True)
        self.D_ld = Ld
        eD = sl.stream(Ad, N - 17, N - 1, spill=0)
        print("D addr until", eD)

    def jitter(self, n, mask, val, iters):
        return [o(f"s_and_b32 s97, s{S_LID}, {mask}"), o(f"s_cmp_eq_u32 s97, {val}"), o(f"s_cbranch_scc0 L_jit{n}"),
                o(f"s_mov_b32 s97, {iters}"), raw(f"L_jl{n}:"), o("s_sleep 64"), o("s_sub_u32 s97, s97, 1"), o("s_cmp_lg_u32 s97, 0"),
                o(f"s_cbranch_scc1 L_jl{n}"), raw(f"L_jit{n}:")]

    def spin(self, label, load, cond_ok, regs_note=""):
        return [o(f"s_mov_b32 s{S_CNT}, 0"), raw(f"{label}:")] + load + [o("s_waitcnt vmcnt(0)")] + cond_ok + \
               [o(f"s_cbranch_scc1 {label}_ok"), o(f"s_add_u32 s{S_CNT}, s{S_CNT}, 1"), o(f"s_cmp_gt_u32 s{S_CNT}, 0x40000"), o(f"s_cbranch_scc1 {label}_ok"),
                o("s_sleep 1"), o(f"s_branch {label}"), raw(f"{label}_ok:")]

    def main_rest(self, sl, M, fu, lu, stages, slot_of, ACC, tile_last, S0, SP_END, P2_0, N, fbar, place):
        zP, zQ, accP, accQ = self.zP, self.zQ, self.accP, self.accQ
        DIST = self.opts.get("dist", 7)
        if self.opts.get("esig", 1) == 2:
            e = sl.stream(self.geglu_sig(7, 8), 508, 576)
            e6 = sl.stream(self.geglu(6) + self.hstore(6), 577, 618)
            e7 = sl.stream(self.geglu_fin(7) + self.hstore(7), max(e6 + 1, e + 1, 580), max(e6 + 1, 580) + 8)
            assert e7 < S0 - 2, e7
            e8 = sl.stream(self.geglu_sig(8, 8), 616, S0 + 2)
            e8 = sl.stream(self.geglu_fin(8) + self.hstore(8), max(e8 + 1, S0 + 4), S0 + 16)
            self.e8 = e8
        elif self.opts.get("esig", 1):
            e = sl.stream(self.geglu_sig(6, 8), 490, 535)
            e = sl.stream(self.geglu_sig(7, 8), max(e + 1, 508), 578)
            e6 = sl.stream(self.geglu_fin(6) + self.hstore(6), max(e + 1, 579), 596)
            e7 = sl.stream(self.geglu_fin(7) + self.hstore(7), e6 + 1, 614)
            assert e7 < S0 - 2, e7
            e8 = sl.stream(self.geglu_sig(8, 8), max(e7 + 1, 616), S0 + 2)
            e8 = sl.stream(self.geglu_fin(8) + self.hstore(8), max(e8 + 1, S0 + 4), S0 + 16)
            self.e8 = e8
        else:
            e6 = sl.stream(self.geglu(6) + self.hstore(6), 577, 634)
            assert e6 < S0 - 2, e6
            e7 = sl.stream(self.geglu(7) + self.hstore(7), e6 + 1, S0 + 46)
            assert e7 < SP_END - 1, e7
        if not self.opts.get("esig", 1): sl.stream(self.geglu(8, 8) + self.hstore(8), S0 + 4, S0 + 85)
        sl.put(467, [vm(f"buffer_load_dword v230, off, s[{SR_HZ}:{SR_HZ+3}], 0 offset:128 sc1", "zpoll")])
        sl.put(574, [wvm("zpoll")])
        sl.put(575, [o(f"v_readfirstlane_b32 s{T0}, v230")])
        M[578].setdefault("before", []).extend(
            [o(f"s_cmp_ge_u32 s{T0}, 256"), o("s_cbranch_scc1 L_zp_ok")] +
            self.spin("L_zp", [o(f"buffer_load_dword v{V_PF}, off, s[{SR_HZ}:{SR_HZ+3}], 0 offset:128 sc1")],
                      [o(f"v_readfirstlane_b32 s{T0}, v{V_PF}"), o("s_nop 3"), o(f"s_cmp_ge_u32 s{T0}, 256")]))
        def zl(zf, va, k, tagn):
            ins = []
            if k < 4: ins += [o(f"s_add_u32 s{S_C}, s{S_ZB}, {k*2048}")]
            else: ins += [G([o(f"s_cmp_eq_u32 s{S_W}, 3"), o(f"s_cselect_b32 s{S_C}, 0, {OOB:#x}"), o(f"s_add_u32 s{S_C}, s{S_C}, s{S_ZB}")]),
                          o(f"s_add_u32 s{S_C}, s{S_C}, {4*2048}")]
            return ins, [vm(f"buffer_load_dwordx4 {zf(ss,k)}, v{va+ss}, s[{SR_WS}:{SR_WS+3}], s{S_C} offen sc1", (tagn, k)) for ss in range(3)]
        ins = []
        for k in range(5):
            a_, l_ = zl(zP, V_ZP, k, "zp"); ins += a_ + l_
        for k in range(4):
            a_, l_ = zl(zQ, V_ZQ, k, "zq"); ins += a_ + l_
        sl.stream(ins, 579, 644)
        a_, l_ = zl(zQ, V_ZQ, 4, "zq")
        sl.stream(a_ + l_, S0, S0 + 8)
        for k in range(5):
            sl.put(S0 + 6*k - 1, [wvm(("zp", k))])
            sl.put(SP_END + 6*k - 1, [wvm(("zq", k))])
        A5P = [120, 124, 136]; A5Q = [140, 224, 228]
        blk = [o(f"s_or_b32 s{T3}, s{S_MT}, s{S_TAU}"), o(f"s_cmp_eq_u32 s{T3}, 0"), o("s_cbranch_scc0 L_s_n512"),
               o("v_mov_b32 v232, 0x3f80"), o("v_mov_b32 v233, 0xbf80"), o("v_mov_b32 v234, v232"), o("v_mov_b32 v235, v233"),
               o("v_mov_b32 v236, 0xbf800000"), o("v_mov_b32 v237, 0x3f800000"), o("v_mov_b32 v238, v236"), o("v_mov_b32 v239, v237"), o("s_nop 1")]
        for k in range(5):
            for ss in range(3):
                a = A5P[ss]
                blk += [mf16(f"v[{a}:{a+3}]", "v[232:235]", zP(ss, k), "0" if k == 0 else f"v[{a}:{a+3}]")]
                a = A5Q[ss]
                blk += [mf16(f"v[{a}:{a+3}]", "v[236:239]", zQ(ss, k), "0" if k == 0 else f"v[{a}:{a+3}]")]
        blk += [o("s_nop 7"), raw("L_s_n512:")]
        M[P2_0].setdefault("before", []).extend(blk)
        self.A5P, self.A5Q = A5P, A5Q
        t = lu[("st", 16)]; fbar(t)
        e = place(self.dma_p2(stages[0], slot_of[stages[0]], True, 12, 13, V_PF), t + 1, 1)
        t = lu[("st", 17)]; fbar(t)
        e = place(self.dma_p2(stages[1], slot_of[stages[1]], False, 0, 0, 0), t + 1, 1)
        ins = [o(f"v_lshrrev_b32 v{V_PF}, 5, v0"), o(f"v_lshlrev_b32 v{V_PF}, 9, v{V_PF}")]
        for s in range(4): ins += [o(f"v_sub_u32 v{V_RA+s}, v{V_RA+s}, v{V_PF}"), o(f"v_sub_u32 v{V_RB+s}, v{V_RB+s}, v{V_PF}")]
        eb = sl.stream(ins, S0 + 2, S0 + 16)
        t = lu[("CX", 0)]
        sl.put(t, [wvm("hst"), o("s_barrier")])
        sl.put(t + 1, [o(f"v_mov_b32 v{V_PF}, 2")])
        sl.put(t + 2, [vm(f"buffer_store_dword v{V_PF}, v{V_ONE0}, s[{SR_WS}:{SR_WS+3}], s{S_FL} offen sc1", "fl2h")])
        assert eb < t, (eb, t)
        assert self.e8 < t, (self.e8, t)
        place(self.dma_p2(stages[2], slot_of[stages[2]], False, 0, 0, 0), t + 3, 1)
        fbar(lu[("SX", 0)])
        a0 = P2_0 + 3
        t0r, t1r = 240, 241
        SC = 3*SLOT
        N1A = SPARE + 12288
        A5P, A5Q = self.A5P, self.A5Q
        wr = [G([o(f"s_mul_i32 s{S_C}, s{S_W}, 12288"), o(f"s_add_u32 s{S_C}, s{S_C}, {SC}")]),
              o(f"v_lshrrev_b32 v{t0r}, 4, v0"), o(f"v_mul_u32_u24 v{t0r}, 768, v{t0r}"), o(f"v_and_b32 v{t1r}, 15, v0"), o(f"v_lshlrev_b32 v{t1r}, 2, v{t1r}"),
              o(f"v_add_u32 v{t0r}, v{t0r}, v{t1r}"), o(f"v_add_u32 v{t0r}, s{S_C}, v{t0r}")]
        if self.opts.get("w2", 1):
            WB = {(0, 0): t0r, (0, 1): 243, (1, 0): 244, (1, 1): 246}
            wr += [o(f"v_add_u32 v243, {16*192}, v{t0r}"), o(f"v_add_u32 v244, 6144, v{t0r}"), o(f"v_add_u32 v246, {6144 + 16*192}, v{t0r}")]
            for pq, accf in ((0, accP), (1, accQ)):
                for tt in range(2):
                    for ss in range(3):
                        for r in (0, 2):
                            wr += [ds(f"ds_write2_b32 v{WB[(pq, tt)]}, v{accf(tt,ss)+r}, v{accf(tt,ss)+r+1} offset0:{r*48 + ss*16} offset1:{(r+1)*48 + ss*16}", "sred_w")]
            if self.opts.get('nowr'): wr = wr[:10] + wr[-1:]
            e = sl.stream(wr, a0, a0 + self.opts.get("wwin", 22))
        else:
            for pq, accf in ((0, accP), (1, accQ)):
                for tt in range(2):
                    for ss in range(3):
                        for r in range(4):
                            wr += [ds(f"ds_write_b32 v{t0r}, v{accf(tt,ss)+r} offset:{pq*6144 + (16*tt + r)*192 + ss*64}", "sred_w")]
            e = sl.stream(wr, a0, a0 + 30)
        wr2 = [G([o(f"s_mul_i32 s{S_C}, s{S_W}, 384"), o(f"s_add_u32 s{S_C}, s{S_C}, {N1A}")]), o(f"v_add_u32 v{t1r}, s{S_C}, v{t1r}"), o(f"v_mov_b32 v245, 0x30000"),
               G([o("v_cmp_gt_u32 vcc, 16, v0"), o("v_nop"), o("v_nop"), o(f"v_cndmask_b32 v{t1r}, v245, v{t1r}, vcc")])]
        for ss in range(3):
            wr2 += [ds(f"ds_write_b32 v{t1r}, v{A5P[ss]} offset:{ss*64}", "sred_w"), ds(f"ds_write_b32 v{t1r}, v{A5Q[ss]} offset:{(3+ss)*64}", "sred_w")]
        e = sl.stream(wr2, e + 1, e + 8)
        b1 = e + 1
        sl.put(b1, [wlg("sred_w"), o("s_barrier")])
        R0, R1 = 112, 48
        A0, A1, YD0, YM0, YD1, YM1 = 232, 233, 234, 235, 236, 237
        def rowcalc(dst):
            return [o(f"v_mul_lo_u32 v238, v238, s{T7}"), o(f"v_add_u32 v238, s{T4}, v238")]
        def ymir(YD, YM):
            return [o(f"v_mul_u32_u24 v{YD}, {YP}, v238"), o(f"v_add_u32 v{YD}, v{YD}, v239"),
                    o(f"v_sub_u32 v{YM}, 2048, v238"), o(f"v_mul_u32_u24 v{YM}, {YP}, v{YM}"), o(f"v_add_u32 v{YM}, v{YM}, v239"),
                    o(f"v_and_b32 v238, 0x3ff, v238"),
                    G([o(f"v_cmp_eq_u32 vcc, 0, v238"), o(f"v_mov_b32 v238, {OOB:#x}"), o("v_nop"), o(f"v_cndmask_b32 v{YM}, v{YM}, v238, vcc")])]
        ad = [G([o(f"s_lshl_b32 s{T3}, s{S_MT}, 5"), o(f"s_add_u32 s{T3}, s{T3}, s{S_TAU}"), o(f"s_and_b32 s{T4}, s{S_W}, 1")]),
              G([o(f"s_lshl_b32 s{T4}, s{T4}, 4"), o(f"s_add_u32 s{T4}, s{T4}, s{T3}"), o(f"s_sub_u32 s{T3}, 1024, s{T4}")]),
              G([o(f"s_cmp_lt_u32 s{S_W}, 2"), o(f"s_cselect_b32 s{T4}, s{T4}, s{T3}"), o(f"s_cselect_b32 s{T7}, 2, -2")]),
              G([o(f"s_lshl_b32 s{T3}, s{S_W}, 3"), o(f"s_mul_i32 s{T3}, s{T3}, 192"), o(f"s_add_u32 s{T3}, s{T3}, {SC}")]),
              G([o(f"s_and_b32 s{T5}, s{S_J}, 7"), o(f"s_mul_i32 s{T5}, s{T5}, 144")]),
              o(f"v_lshrrev_b32 v238, 3, v0"), o(f"v_and_b32 v239, 7, v0"),
              o(f"v_mul_u32_u24 v{A0}, 192, v238"), o(f"v_lshlrev_b32 v239, 4, v239"), o(f"v_add_u32 v{A0}, v{A0}, v239"), o(f"v_add_u32 v{A0}, s{T3}, v{A0}")] + \
             rowcalc(0) + [o(f"v_add_u32 v239, s{T5}, v239")] + ymir(YD0, YM0) + \
             [o(f"v_and_b32 v238, 7, v0"), o(f"v_lshrrev_b32 v239, 3, v0"), o(f"v_add_u32 v239, 8, v239"), o(f"v_min_u32 v239, 9, v239"),
              o(f"v_mul_u32_u24 v{A1}, 192, v238"), o(f"v_lshlrev_b32 v239, 4, v239"), o(f"v_add_u32 v{A1}, v{A1}, v239"), o(f"v_add_u32 v{A1}, s{T3}, v{A1}")] + \
             rowcalc(1) + [o(f"v_add_u32 v239, s{T5}, v239")] + ymir(YD1, YM1) + \
             [G([o(f"s_cmp_eq_u32 s{T5}, {7*144}"), o(f"s_cselect_b32 s{T5}, 16, 8")]), o(f"v_mov_b32 v238, {OOB:#x}"),
              G([o(f"v_cmp_gt_u32 vcc, s{T5}, v0"), o("v_nop"), o("v_nop"), o(f"v_cndmask_b32 v{YD1}, v238, v{YD1}, vcc"), o(f"v_cndmask_b32 v{YM1}, v238, v{YM1}, vcc")]),
              o(f"s_mov_b32 s{T4}, {WS_YH}")]
        e = sl.stream(ad, a0 + 2, b1)
        assert e <= b1 + 6
        def rds(R, A, tag):
            return [ds(f"ds_read_b128 v[{R + 16*pq + 4*ww}:{R + 16*pq + 4*ww + 3}], v{A} offset:{ww*12288 + pq*6144}", tag) for pq in range(2) for ww in range(4)]
        e = sl.stream(rds(R0, A0, "sr0") + rds(R1, A1, "sr1"), max(e, b1) + 1, max(e, b1) + 10)
        b2 = e + 3
        sl.put(b2, [wlg("sr1"), o("s_barrier")])
        self.b2 = b2
        def fin(R, YD, YM):
            out = []
            for pq in range(2):
                b_ = R + 16*pq
                for k in range(4):
                    out += [o(f"v_add_f32 v{b_+k}, v{b_+k}, v{b_+4+k}"), o(f"v_add_f32 v{b_+8+k}, v{b_+8+k}, v{b_+12+k}"), o(f"v_add_f32 v{b_+k}, v{b_+k}, v{b_+8+k}")]
            for k in range(4):
                out += [o(f"v_sub_f32 v{R+4+k}, v{R+k}, v{R+16+k}"), o(f"v_add_f32 v{R+8+k}, v{R+k}, v{R+16+k}")]
            out += [vm(f"buffer_store_dwordx4 v[{R+4}:{R+7}], v{YD}, s[{SR_WS}:{SR_WS+3}], s{T4} offen sc1", "yst"),
                    vm(f"buffer_store_dwordx4 v[{R+8}:{R+11}], v{YM}, s[{SR_WS}:{SR_WS+3}], s{T4} offen sc1", "yst")]
            return out
        ff = fin(R1, YD1, YM1) + fin(R0, YD0, YM0)
        if self.opts.get('nofin'): ff = [vm(f'buffer_store_dword v{V_PF}, v{V_ONE0}, s[{SR_OUT}:{SR_OUT+3}], 0 offen offset:4000', 'yst')]
        e = sl.stream(ff, b2 + 1, P2_0 + 66, spill=3)
        assert e < P2_0 + 72, e
        n1 = [o(f"v_and_b32 v238, 15, v0"), o(f"v_lshlrev_b32 v238, 2, v238"), o(f"v_add_u32 v238, {N1A}, v238")]
        for ss in range(3):
            for ww in range(4):
                n1 += [ds(f"ds_read_b32 v{64+4*ss+ww}, v238 offset:{ww*384 + ss*64}", "sred_n"), ds(f"ds_read_b32 v{128+4*ss+ww}, v238 offset:{ww*384 + (3+ss)*64}", "sred_n")]
        n1 += [wlg("sred_n")]
        for ss in range(3):
            for b_ in (64 + 4*ss, 128 + 4*ss):
                n1 += [o(f"v_add_f32 v{b_}, v{b_}, v{b_+1}"), o(f"v_add_f32 v{b_+2}, v{b_+2}, v{b_+3}"), o(f"v_add_f32 v{b_}, v{b_}, v{b_+2}")]
            n1 += [o(f"v_sub_f32 v{64+4*ss+1}, v{64+4*ss}, v{128+4*ss}"), o(f"v_add_f32 v{64+4*ss+2}, v{64+4*ss}, v{128+4*ss}")]
        n1 += [G([o(f"s_or_b32 s{T3}, s{S_TAU}, s{S_W}"), o(f"s_or_b32 s{T3}, s{T3}, s{S_MT}"), o(f"s_cmp_eq_u32 s{T3}, 0"), o(f"s_cselect_b32 s{T3}, 16, 0")]),
               G([o(f"v_cmp_gt_u32 vcc, s{T3}, v0"), o(f"v_mov_b32 v238, 0"), o(f"v_mov_b32 v239, {OOB:#x}"), o(f"v_cndmask_b32 v238, v239, v238, vcc")])]
        for ss in range(3):
            n1 += [o(f"v_add_u32 v{128+4*ss+1}, v238, v{V_YC[ss]}")]
        n1 += [o(f"s_mov_b32 s{T3}, {WS_YH + 512*YP}"), o(f"s_mov_b32 s{T5}, {WS_YH + 1536*YP}")]
        for ss in range(3):
            n1 += [vm(f"buffer_store_dword v{64+4*ss+1}, v{128+4*ss+1}, s[{SR_WS}:{SR_WS+3}], s{T3} offen sc1", "yst"),
                   vm(f"buffer_store_dword v{64+4*ss+2}, v{128+4*ss+1}, s[{SR_WS}:{SR_WS+3}], s{T5} offen sc1", "yst")]
        blk = [o(f"s_or_b32 s{T3}, s{S_TAU}, s{S_MT}"), o(f"s_cmp_eq_u32 s{T3}, 0"), o("s_cbranch_scc0 L_no512b")]
        for i in flat(n1):
            if i.k == "wlg": blk.append(o("s_waitcnt lgkmcnt(0)"))
            elif i.k in ("ds", "vm"): blk.append(I(i.t, "o"))
            else: blk.append(i)
        blk += [raw("L_no512b:")]
        M[max(e + 2, P2_0 + 70)].setdefault("before", []).extend(blk)
        gpar = fu[("s2", (0, "par"))]
        PF2 = 231
        sl.put(660, [G([o(f"s_xor_b32 s{T0}, s{S_LID}, 1"), o(f"s_lshl_b32 s{T1}, s{T0}, 7"), o(f"s_add_u32 s{T1}, s{T1}, {WS_FLAG}")])])
        sl.put(661, [G([o(f"s_lshl_b32 s{T0}, s{T0}, 2"), o(f"s_add_u32 s{T0}, s{T0}, s{S_W}"), o(f"s_mul_i32 s{T0}, s{T0}, {18*1024}")]), o(f"s_add_u32 s{T0}, s{T0}, {WS_HX}")])
        pl = f"buffer_load_dword v242, off, s[{SR_WS}:{SR_WS+3}], s{T1} sc1"
        def hload(k, n, t, tag):
            if self.opts.get("nohp"):
                sl.put(t + 1, [vm(f"buffer_load_dword v{V_PF}, v{V_ONE0}, s[{SR_WS}:{SR_WS+3}], 0 offen", tag)]); return
            sl.put(t, [o(f"s_add_u32 s{T6}, s{T0}, {k*1024}")])
            sl.put(t + 1, self.dload([f"buffer_load_dwordx4 a[{HPB+4*(k+q)}:{HPB+4*(k+q)+3}], v{V_L16}, s[{SR_WS}:{SR_WS+3}], s{T6} offen offset:{q*1024}" for q in range(n)], tag, True))
        if self.opts.get("onepoll") == 2:
            sl.put(640, [vm(pl, "hpoll1")]) if False else None
            sl.put(S0 + 14, [vm(pl, "hpoll1")])
            sl.put(S0 + 18, [wvm("hpoll1")]) if False else None
            tcheck = S0 + 22
            sl.put(tcheck - 2, [wvm("hpoll1")])
            sl.put(tcheck - 1, [o(f"v_readfirstlane_b32 s{T2}, v242")])
            M[tcheck + 2].setdefault("before", []).extend(
                [o(f"s_cmp_ge_u32 s{T2}, 1"), o("s_cbranch_scc1 L_hq_ok")] +
                self.spin("L_hq", [o(pl)], [o(f"v_readfirstlane_b32 s{T2}, v242"), o("s_nop 3"), o(f"s_cmp_ge_u32 s{T2}, 1")]))
            st_ = self.opts.get("hstep1", 10)
            for i in range(6): hload(2*i, 2, tcheck + 3 + st_*i, ("hp", i))
            tq = P2_0 + self.opts.get("tq", 40)
            assert tq > tcheck + 3 + st_*5 + 2
            sl.put(tq, [vm(pl, "hpoll2")])
            sl.put(tq + 10, [wvm("hpoll2")])
            sl.put(tq + 11, [o(f"v_readfirstlane_b32 s{T2}, v242")])
            M[tq + 14].setdefault("before", []).extend(
                [o(f"s_cmp_ge_u32 s{T2}, 2"), o("s_cbranch_scc1 L_hp_ok")] +
                self.spin("L_hp", [o(pl)], [o(f"v_readfirstlane_b32 s{T2}, v242"), o("s_nop 3"), o(f"s_cmp_ge_u32 s{T2}, 2")]))
            for i in range(3): hload(12 + 2*i, 2, tq + 15 + 10*i, ("hp", 6 + i))
        elif self.opts.get("onepoll"):
            tq = P2_0 + self.opts.get("tq", 4)
            sl.put(tq, [vm(pl, "hpoll2")])
            sl.put(tq + 10, [wvm("hpoll2")])
            sl.put(tq + 11, [o(f"v_readfirstlane_b32 s{T2}, v242")])
            M[tq + 14].setdefault("before", []).extend(
                [o(f"s_cmp_ge_u32 s{T2}, 2"), o("s_cbranch_scc1 L_hp_ok")] +
                self.spin("L_hp", [o(pl)], [o(f"v_readfirstlane_b32 s{T2}, v242"), o("s_nop 3"), o(f"s_cmp_ge_u32 s{T2}, 2")]))
            for i in range(9):
                hload(2*i, 2, tq + 15 + self.opts.get("hstep", 9)*i, ("hp", i))
        else:
            h1 = self.opts.get("h1", P2_0 - 12)
            sl.put(h1, [vm(pl, "hpoll1")])
            sl.put(h1 + 12, [wvm("hpoll1")])
            sl.put(h1 + 13, [o(f"v_readfirstlane_b32 s{T2}, v242")])
            M[h1 + 16].setdefault("before", []).extend(
                [o(f"s_cmp_ge_u32 s{T2}, 1"), o("s_cbranch_scc1 L_hq_ok")] +
                self.spin("L_hq", [o(pl)], [o(f"v_readfirstlane_b32 s{T2}, v242"), o("s_nop 3"), o(f"s_cmp_ge_u32 s{T2}, 1")]))
            def hload(k, n, t, tag):
                sl.put(t, [o(f"s_add_u32 s{T6}, s{T0}, {k*1024}")])
                sl.put(t + 1, self.dload([f"buffer_load_dwordx4 a[{HPB+4*(k+q)}:{HPB+4*(k+q)+3}], v{V_L16}, s[{SR_WS}:{SR_WS+3}], s{T6} offen offset:{q*1024}" for q in range(n)], tag, True))
            for i in range(6):
                hload(2*i, 2, h1 + 17 + 9*i, ("hp", i))
            tp = P2_0 + self.opts.get("tp2", 74)
            assert tp - 13 > h1 + 17 + 9*5 + 1
            sl.put(tp - 13, [vm(pl, "hpoll2")])
            sl.put(tp - 2, [wvm("hpoll2")])
            sl.put(tp - 1, [o(f"v_readfirstlane_b32 s{T2}, v242")])
            M[tp + 2].setdefault("before", []).extend(
                [o(f"s_cmp_ge_u32 s{T2}, 2"), o("s_cbranch_scc1 L_hp_ok")] +
                self.spin("L_hp", [o(pl)], [o(f"v_readfirstlane_b32 s{T2}, v242"), o("s_nop 3"), o(f"s_cmp_ge_u32 s{T2}, 2")]))
            for i in range(3):
                hload(12 + 2*i, 2, tp + 4 + 6*i, ("hp", 6 + i))

        sl.put(gpar - 2, [wvm(("hp", 5))])
        off = 24 if self.opts.get("klate", 1) else 12
        for i in range(3):
            sl.put(gpar + off + 2*i - 2, [wvm(("hp", 6 + i))])
        for i in range(3, 9):
            st = stages[i]; slot = slot_of[st]
            prev = [j for j in range(i) if slot_of[stages[j]] == slot]
            if prev:
                t = lu[("s2", stages[prev[-1]])]; fbar(t); start = t + 1
            else:
                start = b2 + 1
            grps = self.dma_p2(st, slot, False, 250, 251, 0)
            if st[0] == 4:
                grps = [[o(f"s_and_b32 s{S_C}, s{S_W}, 1"), o(f"s_mul_i32 s{S_C}, s{S_C}, {16*1152}")]] + grps
                place(grps, start, 1)
            else:
                place(grps, start, 2)
        s4 = slot_of[(4, "both")]
        ins = [o("v_lshrrev_b32 v250, 5, v0"), o("v_lshlrev_b32 v250, 8, v250"),
               o("v_bfe_u32 v251, v0, 2, 2"), o("v_lshlrev_b32 v251, 6, v251"), o("v_add_u32 v250, v250, v251"),
               o("v_bfe_u32 v251, v0, 4, 1"), o("v_lshlrev_b32 v251, 5, v251"), o("v_add_u32 v250, v250, v251"),
               o("v_and_b32 v251, 3, v0"), o("v_lshlrev_b32 v251, 3, v251"), o("v_add_u32 v250, v250, v251"),
               o(f"v_add_u32 v{V_R8}, {s4*SLOT}, v250")]
        sl.stream(ins, P2_0 + 150, P2_0 + 175)
        self.pipe_reduce(sl, M, fu, lu, P2_0, N)
        for (u, half), tl in sorted(tile_last.items(), key=lambda x: x[1]):
            acc = ACC[u][half]
            par = half
            t = TMP + 8*par
            st = S_ST0 + par
            ins = [o(f"v_cvt_pk_bf16_f32 v{t+i}, v{acc+2*i}, v{acc+2*i+1}") for i in range(8)]
            if u == 3 and half == 1: continue
            if u < 3: ins += [o(f"s_add_u32 s{st}, s{S_QU[u]}, {half*2048}")]
            elif u == 3: ins += [o(f"s_mov_b32 s{st}, s{S_QN}")]
            else: ins += [o(f"s_mov_b32 s{st}, s{S_Q8}")]
            ins += self.dstore([f"buffer_store_dwordx4 v[{t}:{t+3}], v{V_L16}, s[{SR_WS}:{SR_WS+3}], s{st} offen",
                                f"buffer_store_dwordx4 v[{t+4}:{t+7}], v{V_L16}, s[{SR_WS}:{SR_WS+3}], s{st} offen offset:1024"], ("pst", u))
            s0 = tl + 4
            if s0 + 10 <= N: sl.stream(ins, s0, s0 + 10)
            else: self.tail2 = [o("s_nop 15")] + ins

    def item_setup(self, kind, R, srd=None, split=False):
        t0, t1, t2, t3 = R["t"]
        sQ, sH, sB, sT = T2, T3, T4, T5
        L = []
        LD = []
        SW = SR_WS if srd is None else srd
        if kind == "A":
            L += [G([o(f"s_lshl_b32 s{sT}, s{S_J}, 2"), o(f"s_add_u32 s{sT}, s{sT}, s{S_W}"), o(f"s_lshr_b32 s{sQ}, s{sT}, 3")]),
                  G([o(f"s_cmp_lt_u32 s{sQ}, 4"), o(f"s_cselect_b32 s{sH}, 0, 6"), o(f"s_add_u32 s{sQ}, s{sQ}, s{sH}")])]
        elif kind in "BC":
            lo, hi = (4, 12) if kind == "B" else (6, 14)
            L += [G([o(f"s_lshl_b32 s{sT}, s{S_J}, 1"), o(f"s_lshr_b32 s{sH}, s{S_W}, 1"), o(f"s_add_u32 s{sT}, s{sT}, s{sH}")]),
                  G([o(f"s_lshr_b32 s{sQ}, s{sT}, 3"), o(f"s_cmp_lt_u32 s{sQ}, 2"), o(f"s_cselect_b32 s{sH}, {lo}, {hi}")]),
                  o(f"s_add_u32 s{sQ}, s{sQ}, s{sH}")]
        else:
            L += [G([o(f"s_lshr_b32 s{sT}, s{S_J}, 1"), o(f"s_and_b32 s{sQ}, s{S_J}, 1"), o(f"s_add_u32 s{sQ}, s{sQ}, 8")])]
        L += [G([o(f"s_and_b32 s{sH}, s{sT}, 1"), o(f"s_bfe_u32 s{sB}, s{sT}, 0x20001"), o(f"s_lshl_b32 s{sT}, s{S_MT}, 2")]),
              o(f"s_add_u32 s{sB}, s{sB}, s{sT}"),
              G([o(f"s_mul_i32 s{sT}, s{sB}, 18"), o(f"s_add_u32 s{sT}, s{sT}, s{sQ}"), o(f"s_lshl_b32 s{sT}, s{sT}, 1")]),
              G([o(f"s_add_u32 s{sT}, s{sT}, s{sH}"), o(f"s_lshl_b32 s{sT}, s{sT}, 10")])]
        so = R["so"]
        for p in range(8): L += [o(f"s_add_u32 s{so+p}, s{sT}, {p*PART_BYTES}")]
        if kind == "A":
            L += [o(f"v_mov_b32 v{t3}, 0")]
        elif kind in "BC":
            L += [o(f"s_and_b32 s{sT}, s{S_W}, 1"), o(f"v_bfe_u32 v{t0}, v0, 4, 1"), o(f"v_mov_b32 v{t1}, {OOB:#x}"), o(f"v_mov_b32 v{t3}, 0"),
                  G([o(f"v_cmp_eq_u32 vcc, s{sT}, v{t0}"), o("v_nop"), o("v_nop"), o(f"v_cndmask_b32 v{t3}, v{t1}, v{t3}, vcc")])]
        else:
            L += [o(f"v_bfe_u32 v{t0}, v0, 3, 2"), o(f"v_mov_b32 v{t1}, {OOB:#x}"), o(f"v_mov_b32 v{t3}, 0"),
                  G([o(f"v_cmp_eq_u32 vcc, s{S_W}, v{t0}"), o("v_nop"), o("v_nop"), o(f"v_cndmask_b32 v{t3}, v{t1}, v{t3}, vcc")])]
        PV = R["PV"]
        L += [o(f"v_add_u32 v{PV}, v{t3}, v{V_L16}")]
        pk, pb = R["P"]
        ldp = [vm(f"buffer_load_dwordx4 {pk}[{pb+4*p}:{pb+4*p+3}], v{PV}, s[{SW}:{SW+3}], s{so+p} offen sc1", ("it", kind)) for p in range(8)]
        if split: LD += ldp
        else: L += ldp
        X, Y, OA = R["X"], R["Y"], R["OA"]
        L += self.rowmir(sB, sT, t0, t1, t2, OA) + [
              G([o(f"s_lshl_b32 s{sT}, s{sQ}, 6"), o(f"s_lshl_b32 s{sB}, s{sH}, 5"), o(f"s_add_u32 s{sT}, s{sT}, s{sB}")]),
              o(f"v_mul_u32_u24 v{t2}, 1152, v{t0}"), o(f"v_add_u32 v{t2}, s{sT}, v{t2}"), o(f"v_add_u32 v{t2}, v{t2}, v{t3}"),
              o(f"v_lshrrev_b32 v{X}, 5, v0"), o(f"v_lshlrev_b32 v{OA}, 4, v{X}"), o(f"v_add_u32 v{OA}, v{t2}, v{OA}"),
              o(f"v_lshlrev_b32 v{X}, 3, v{X}"), o(f"v_add_u32 v{t2}, v{t2}, v{X}"),
              vm(f"buffer_load_dwordx2 v[{X}:{X+1}], v{t2}, s[{SR_X}:{SR_X+3}], 0 offen", ("it", kind)),
              vm(f"buffer_load_dwordx2 v[{X+2}:{X+3}], v{t2}, s[{SR_X}:{SR_X+3}], 0 offen offset:16", ("it", kind)),
              G([o(f"s_lshl_b32 s{sT}, s{sT}, 1"), o(f"s_cmp_lt_u32 s{sQ}, 9"), o(f"s_cselect_b32 s{R['rev']}, 0, 1")]),
              G([o(f"s_sub_u32 s{sB}, 2292, s{sT}"), o(f"s_cmp_lt_u32 s{sQ}, 9"), o(f"s_cselect_b32 s{sT}, s{sT}, s{sB}"), o(f"s_cselect_b32 s{sB}, 1, -1")]),
              G([o(f"v_cmp_eq_u32 vcc, 1, v{PV}") if False else o(f"v_mov_b32 v{t2}, s{R['rev']}"), o(f"v_cmp_eq_u32 vcc, 1, v{t2}"), o("v_nop"), o("v_nop"),
                 o(f"v_cndmask_b32 v{t0}, v{t0}, v{t1}, vcc")]),
              o(f"v_mul_u32_u24 v{t0}, {YP}, v{t0}"), o(f"v_add_u32 v{t0}, s{sT}, v{t0}"), o(f"v_add_u32 v{t0}, v{t0}, v{t3}"),
              o(f"v_lshrrev_b32 v{t1}, 5, v0"), o(f"v_lshlrev_b32 v{t1}, 4, v{t1}"), o(f"v_mul_lo_u32 v{t1}, v{t1}, s{sB}"),
              o(f"v_add_u32 v{t0}, v{t0}, v{t1}"),
              o(f"s_lshl_b32 s{sB}, s{sB}, 5"), o(f"v_add_u32 v{t1}, s{sB}, v{t0}"), o(f"v_add_u32 v{t0}, {WS_YH}, v{t0}"), o(f"v_add_u32 v{t1}, {WS_YH}, v{t1}")]
        ldy = [vm(f"buffer_load_dwordx4 v[{Y}:{Y+3}], v{t0}, s[{SW}:{SW+3}], 0 offen sc1", ("it", kind)),
               vm(f"buffer_load_dwordx4 v[{Y+4}:{Y+7}], v{t1}, s[{SW}:{SW+3}], 0 offen sc1", ("it", kind))]
        if split:
            LD += ldy
            return L, LD
        return L + ldy

    def item_finish(self, kind, R):
        X, Y, OA = R["X"], R["Y"], R["OA"]
        t0, t1, t2, t3 = R["t"]
        pk, pb = R["P"]
        L = [wvm(("it", kind)),
             o(f"s_cmp_eq_u32 s{R['rev']}, 0"), o(f"s_cbranch_scc1 L_rv{kind}"),
             o(f"v_swap_b32 v{Y}, v{Y+3}"), o(f"v_swap_b32 v{Y+1}, v{Y+2}"), o(f"v_swap_b32 v{Y+4}, v{Y+7}"), o(f"v_swap_b32 v{Y+5}, v{Y+6}"),
             raw(f"L_rv{kind}:"),
             o(f"s_mov_b32 s{T0}, 0x3f80"), o(f"s_mov_b32 s{T1}, 0x3f800000")]
        for i in range(4):
            L += [o(f"v_dot2_f32_bf16 v{Y+2*i}, v{X+i}, s{T0}, v{Y+2*i}"), o(f"v_dot2_f32_bf16 v{Y+2*i+1}, v{X+i}, s{T1}, v{Y+2*i+1}")]
        for p in range(8):
            for i in range(4):
                r = pb + 4*p + i
                if pk == "a":
                    L += [o(f"v_accvgpr_read_b32 v{t0 + (i & 1)}, a{r}")]
                    src = t0 + (i & 1)
                else: src = r
                L += [o(f"v_dot2_f32_bf16 v{Y+2*i}, v{src}, s{T0}, v{Y+2*i}"), o(f"v_dot2_f32_bf16 v{Y+2*i+1}, v{src}, s{T1}, v{Y+2*i+1}")]
        L += [o("s_nop 2")]
        for i in range(4):
            L += [o(f"v_cvt_pk_bf16_f32 v{X+i}, v{Y+2*i}, v{Y+2*i+1}")]
        L += [o("s_nop 1"), o(f"v_permlane32_swap_b32 v{X}, v{X+2}"), o(f"v_permlane32_swap_b32 v{X+1}, v{X+3}"),
              vm(f"buffer_store_dwordx4 v[{X}:{X+3}], v{OA}, s[{SR_OUT}:{SR_OUT+3}], 0 offen{self.osfx}", "out")]
        return L

    def group_poll(self, label, val, vdst, voff, parity=False):
        ld = f"buffer_load_dword v{vdst}, v{voff}, s[{SR_WS}:{SR_WS+3}], s{T6} offen sc1"
        if parity:
            chk = [o(f"v_cmp_le_u32 vcc, {val}, v{vdst}"), o("s_nop 0"), o(f"s_and_b32 s{T7}, vcc_lo, s{S_PM}"), o(f"s_cmp_eq_u32 s{T7}, s{S_PM}")]
        else:
            chk = [o(f"v_cmp_le_u32 vcc, {val}, v{vdst}"), o("s_nop 0"), o(f"s_and_b32 s{T7}, vcc_lo, 0xffff"), o(f"s_cmp_eq_u32 s{T7}, 0xffff")]
        return ld, chk

    def items_cfg(self):
        self.RA = dict(P=("v", 80), X=112, Y=116, OA=124, PV=125, t=[126, 127, 16, 17], rev=24, so=16)
        self.RB = dict(P=("a", 0), X=18, Y=22, OA=30, PV=31, t=[48, 49, 50, 51], rev=25, so=16)
        self.RC = dict(P=("v", 176), X=208, Y=212, OA=220, PV=221, t=[222, 223, 224, 225], rev=26, so=16)
        self.RD = dict(P=("v", 128), X=160, Y=164, OA=172, PV=173, t=[174, 175, 226, 227], rev=27, so=84)

    def tail(self):
        L = list(self.late_loads)
        O = 128
        ld, chk = self.group_poll("L_f5", 5, 241, 242, parity=True)
        L += [vm(ld, "fp5")]
        L += self.stamp("pub")
        RD = self.RDx; Ld = self.D_ld
        L += [o("s_nop 7"), o("s_nop 3"), wvm("op"), wvm("ox"), o(f"s_mov_b32 s{T0}, 0x3f80"), o(f"s_mov_b32 s{T1}, 0x3f800000"),
              o("s_cmp_eq_u32 s24, 0"), o("s_cbranch_scc1 L_oyd")]
        for g_ in range(4):
            for k in range(4): L += [o(f"v_add_f32 v{O+4*g_+k}, v{O+4*g_+k}, v{48 + 4*(3-g_) + 3 - k}")]
        L += [o("s_branch L_oyj"), raw("L_oyd:")]
        for r in range(16): L += [o(f"v_add_f32 v{O+r}, v{O+r}, v{48+r}")]
        L += [raw("L_oyj:")]
        for i in range(8):
            L += [o(f"v_dot2_f32_bf16 v{O+2*i}, v{24+i}, s{T0}, v{O+2*i}"), o(f"v_dot2_f32_bf16 v{O+2*i+1}, v{24+i}, s{T1}, v{O+2*i+1}")]
        for p in range(6):
            for i in range(8):
                L += [o(f"v_dot2_f32_bf16 v{O+2*i}, v{80+8*p+i}, s{T0}, v{O+2*i}"), o(f"v_dot2_f32_bf16 v{O+2*i+1}, v{80+8*p+i}, s{T1}, v{O+2*i+1}")]
        L += self.stamp("early")
        L += [wvm("fp5")] + chk + [o("s_cbranch_scc1 L_f5_ok")] + self.spin("L_f5", [o(ld)], chk) + [reset()]
        L += self.stamp("pok")
        L += [vm(f"buffer_load_dwordx4 v[16:19], v{V_L16}, s[{SR_WS}:{SR_WS+3}], s22 offen sc1", "sib"),
              vm(f"buffer_load_dwordx4 v[20:23], v{V_L16}, s[{SR_WS}:{SR_WS+3}], s22 offen offset:1024 sc1", "sib")]
        L += Ld
        L += [wvm("sib")]
        for i in range(8):
            L += [o(f"v_dot2_f32_bf16 v{O+2*i}, v{16+i}, s{T0}, v{O+2*i}"), o(f"v_dot2_f32_bf16 v{O+2*i+1}, v{16+i}, s{T1}, v{O+2*i+1}")]
        L += [o("s_nop 2")]
        for i in range(8): L += [o(f"v_cvt_pk_bf16_f32 v{24+i}, v{O+2*i}, v{O+2*i+1}")]
        L += [o("s_nop 1"), o("v_permlane32_swap_b32 v24, v26"), o("v_permlane32_swap_b32 v25, v27"),
              o("v_permlane32_swap_b32 v28, v30"), o("v_permlane32_swap_b32 v29, v31"),
              vm(f"buffer_store_dwordx4 v[24:27], v238, s[{SR_OUT}:{SR_OUT+3}], 0 offen{self.osfx}", "out"),
              vm(f"buffer_store_dwordx4 v[28:31], v238, s[{SR_OUT}:{SR_OUT+3}], 0 offen offset:32{self.osfx}", "out")]
        L += self.stamp("ownfin")
        L += self.item_finish("D", RD)
        return L

    def kernel(self, name):
        L = [raw(f".globl {name}"), raw(".p2align 8"), raw(f".type {name},@function"), raw(f"{name}:")]
        L += self.prologue()
        L += self.stamp("proend")
        L += self.ln_stats()
        L += self.stamp("stats")
        L += [o("s_barrier")]
        L += [o(f"s_mov_b32 s{S_A}, s{S_J}"), o(f"s_add_u32 s{S_B}, s{S_J}, 16")]
        L += self.h_dma(S_A, 2, "wz1")
        L += [o(f"s_cmp_lt_u32 s{S_J}, 2"), o("s_cbranch_scc0 L_noz2a")]
        L += [I(i.t, "o") if i.k == "vm" else i for i in self.h_dma(S_B, 3, "wz2")]
        L += [raw("L_noz2a:")]
        hd = []
        for sig in range(2):
            for grp in self.dma_p1(sig, sig): hd.append(grp)
        if self.opts.get("lbulk"):
            hd.append([o(f"s_lshl_b32 s{S_PF}, s{S_MT}, 2"), o(f"s_add_u32 s{S_PF}, s{S_PF}, s{S_W}"), o(f"s_mul_i32 s{S_PF}, s{S_PF}, 45"),
                   o(f"v_add_u32 v240, s{S_PF}, v0"), o(f"s_mov_b32 s{S_PF}, {(2**32+4)//5}"), o(f"v_mul_hi_u32 v241, v240, s{S_PF}"),
                   o("v_mul_u32_u24 v242, 5, v241"), o("v_sub_u32 v242, v240, v242"), o("v_lshlrev_b32 v242, 7, v242"),
                   o("v_mul_u32_u24 v241, 9216, v241"), o("v_add_u32 v240, v241, v242"),
                   o(f"s_mul_i32 s{S_PF}, s{S_J}, 576"), o(f"s_and_b32 s{S_PF}, s{S_PF}, 0xffffff80"),
                   o("v_cmp_gt_u32 vcc, 45, v0"), o("s_nop 1"), o(f"v_cndmask_b32 v240, v{V_ONE0}, v240, vcc"),
                   vm(f"buffer_load_dword v{V_PF}, v240, s[{SR_WG}:{SR_WG+3}], s{S_PF} offen", "pf"),
                   vm(f"buffer_load_dword v{V_PF}, v240, s[{SR_WU}:{SR_WU+3}], s{S_PF} offen", "pf")])
        else:
            if not self.opts.get('bearly'): hd.append([o(f"s_lshl_b32 s{S_PF}, s{S_LID}, 2"), o(f"s_add_u32 s{S_PF}, s{S_PF}, s{S_W}"), o(f"s_mul_i32 s{S_PF}, s{S_PF}, 41"),
                       o(f"v_add_u32 v240, s{S_PF}, v0"), o("v_lshlrev_b32 v240, 7, v240"), o("v_cmp_gt_u32 vcc, 41, v0"), o("s_nop 1"),
                       o(f"v_cndmask_b32 v240, v{V_ONE0}, v240, vcc"),
                       vm(f"buffer_load_dword v{V_PF}, v240, s[{SR_WG}:{SR_WG+3}], 0 offen", "pf"),
                       vm(f"buffer_load_dword v{V_PF}, v240, s[{SR_WU}:{SR_WU+3}], 0 offen", "pf")])
        lf = self.ln_finish()
        per = -(-len(lf) // 18)
        k = 0
        for n, grp in enumerate(hd):
            L += grp
            if n < 18: L += lf[k:k + per]; k += per
        L += lf[k:]
        L += [o(f"v_subrev_u32 v{V_XA+i}, s{S_LX}, v{V_XA+i}") for i in range(4)]
        L += [o(f"v_add_u32 v{V_XA+i}, {2*SLOT}, v{V_XA+i}") for i in range(4)]
        L += self.stamp("lnfin")
        L += self.seg_norm_h()
        L += self.stamp("normH")
        L += self.h2_block()
        L += self.tr_bases()
        L += srd(SR_HZ, 36, 256)
        L += self.main()
        L += self.stamp("p2end")
        L += self.tail()
        L += self.stamp("end")
        if self.diag:
            L += [o("s_waitcnt vmcnt(0)"),
                  o(f"s_lshl_b32 s{T0}, s{S_LID}, 2"), o(f"s_add_u32 s{T0}, s{T0}, s{S_W}"), o(f"s_lshl_b32 s{T0}, s{T0}, 8"),
                  o(f"s_add_u32 s{T0}, s{T0}, {WS_STAMP}"), o("v_lshlrev_b32 v240, 2, v0"),
                  o(f"buffer_store_dword v{V_STAMP}, v240, s[{SR_WS}:{SR_WS+3}], s{T0} offen")]
        if self.opts.get("hdiag") == 2:
            L += [o("s_waitcnt vmcnt(0)"), o(f"v_readlane_b32 s98, v{V_STAMP}, 32"), o("s_nop 3"),
                  o(f"v_subrev_u32 v240, s98, v{V_STAMP}"),
                  o("v_subrev_u32 v241, 32, v0"), o("v_lshlrev_b32 v241, 2, v241"),
                  o("v_cmp_le_u32 vcc, 32, v0"), o(f"v_mov_b32 v242, {OOB:#x}"), o("s_nop 0"), o("v_cndmask_b32 v241, v242, v241, vcc"),
                  o("v_cmp_gt_u32 vcc, 48, v0"), o("s_nop 1"), o("v_cndmask_b32 v241, v242, v241, vcc"),
                  o(f"s_cmp_eq_u32 s{S_W}, 0"), o("s_cbranch_scc0 L_end"),
                  o(f"buffer_atomic_u{'min' if self.opts.get('hmin') else 'max'} v240, v241, s[{SR_HZ}:{SR_HZ+3}], 0 offen sc1")]
        elif self.opts.get("hdiag"):
            L += [o("s_waitcnt vmcnt(0)"), o("s_memrealtime s[100:101]"), o("s_waitcnt lgkmcnt(0)"),
                  o("s_sub_u32 s97, s100, s98"), o("s_not_b32 s98, s98"),
                  o("v_mov_b32 v240, s100"), o("v_mov_b32 v241, s98"), o("v_mov_b32 v242, s97"),
                  o(f"buffer_atomic_umax v240, v{V_ONE0}, s[{SR_HZ}:{SR_HZ+3}], 0 offen sc1"),
                  o(f"buffer_atomic_umax v241, v{V_ONE0}, s[{SR_HZ}:{SR_HZ+3}], 0 offen offset:4 sc1"),
                  o(f"buffer_atomic_umax v242, v{V_ONE0}, s[{SR_HZ}:{SR_HZ+3}], 0 offen offset:8 sc1")]
            for i, r in enumerate(self.hd_regs):
                pass
        L += [raw("L_end:"), o("s_endpgm")]
        return finalize(flat(L))

NAME = "parallel_sum__spectral_fnet__geglu_ffn__prompt_kernel"
def build(diag=False, opts=None):
    hdr = open("parallel_sum__spectral_fnet__geglu_ffn__prompt.s.ref").read().split("\n")
    top = [l for l in hdr if l.startswith(";") and "@launch" not in l and "Override" not in l and "grid=ceil" not in l]
    g = Gen(diag, opts)
    lines = g.kernel(NAME)
    errs = hazard_check(lines)
    for e in errs[:30]: print("HAZARD:", e)
    txt = "\n".join(top) + "\n"
    txt += "; @launch grid=(256,1,1) block=(256,1,1) lds=163840\n"
    txt += '.amdgcn_target "amdgcn-amd-amdhsa--gfx950"\n.text\n'
    txt += "\n".join(lines) + "\n" + kernel_footer(NAME)
    return txt, g.names

if __name__ == "__main__":
    import sys, json
    opts = {}
    for a in sys.argv[2:]:
        if "=" in a:
            k, v = a.split("="); opts[k] = int(v)
    txt, names = build("diag" in sys.argv, opts)
    open(sys.argv[1], "w").write(txt)
    json.dump(names, open(sys.argv[1] + ".names", "w"))
```

```python
from fw import *
from sched import *
import math, struct

S, D, F = 2048, 576, 4608
SLOT = 36864
SPARE = 4*SLOT
PART_BYTES = S * D * 2
WS_PART = 0
WS_HX = 20 << 20
WS_ZF = 40 << 20
ZF_STRIDE = 34 * 1024
ZF_TYPE = 18 * ZF_STRIDE
WS_YH = 42 << 20
YP = 320 * 4
WS_FLAG = 46 << 20
WS_STAMP = 48 << 20
OOB = 0x40000000
C0 = -2.0 * math.sqrt(2.0 / math.pi) * math.log2(math.e)
C1 = C0 * 0.044715
def f2u(f): return struct.unpack("<I", struct.pack("<f", f))[0]

V_L16 = 1
V_RA, V_RB = 2, 6
V_DM = 10
V_C0, V_C1 = 14, 15
GA = [[16, 32], [48, 64]]
UA = [[80, 96], [112, 128]]
HF = 144
TMP = 216
V_HACC = 232
V_XA = 248
V_R8 = 248
V_PF = 252
V_ONE0 = 253
V_D2 = 254
V_STAMP = 255
RX = 80
V_PERM = 224
V_NEGMU = 64
V_ONE = 231
V_SD = 232
V_SA = 236
V_SX = 240
V_SE = 228
V_ZP = 241
V_ZQ = 244
V_YC = [247, 250, 251]
V_LB = 232
AX = 0
AF = 144
NAF = 8
AZ = 176
HPB = 8
SR_CS, SR_SS, SR_HZ, SR_X, SR_WG, SR_WU, SR_WD, SR_WS, SR_OUT = 4, 8, 12, 40, 44, 48, 52, 56, 60
S_W, S_MT, S_J = 64, 65, 66
S_LX, S_L9 = 67, 68
S_UB = 69
S_WD = 74
S_PB = 75
T0, T1, T2, T3, T4, T5, T6, T7 = 76, 77, 78, 79, 80, 81, 82, 83
S_N0 = 84
S_N1 = 16
S_CU = 25
S_Q0, S_Q8 = 30, 31
S_HB = 32
S_LID = 33
S_ST0, S_ST1 = 34, 35
S_CNT = 93
S_A, S_B, S_C = 94, 95, 96
S_TAU, S_ZB = 38, 39
S_PF = 97
S_XC = 0
S_QU = [30, 36, 37]
S_QN = 39
S_TO = 32
S_PM = 29
S_GA = 28
S_FL = 1
S_MODE = 2
S_D0 = 3

def srd(dst, ptr, nbytes):
    return [o(f"s_mov_b32 s{dst}, s{ptr}"), o(f"s_and_b32 s{dst+1}, s{ptr+1}, 0xffff"),
            o(f"s_mov_b32 s{dst+2}, {nbytes}"), o(f"s_mov_b32 s{dst+3}, 0x00020000")]
def mf32(acc, A, B, C): return o(f"v_mfma_f32_32x32x16_bf16 {acc}, {A}, {B}, {C}")
def mf16(acc, A, B, C): return o(f"v_mfma_f32_16x16x32_bf16 {acc}, {A}, {B}, {C}")

class DS2(I):
    pass

class Gen:
    def dload(self, texts, tag, pair=False):
        out = self.dstore(texts, tag, pair)
        if hasattr(out[0], "cost"): out[0].cost = 3 + len(texts)
        return out
    def dstore(self, texts, tag, pair=False):
        self.lab = getattr(self, "lab", 0) + 1
        n = self.lab
        if self.opts.get("forcemode") == 1 or not self.opts.get("local", 0) or (self.opts.get("cfg", 0) == 0 and not pair):
            return [vm(t + ("" if (self.opts.get("hpplain") and "load" in t) else " sc1"), tag) for t in texts]
        body = f"s_bitcmp1_b32 s{S_MODE}, 0\n    s_cbranch_scc1 L_dl{n}\n"
        body += "".join(f"    {t} sc1\n" for t in texts)
        body += f"    s_branch L_dj{n}\nL_dl{n}:\n"
        body += "".join(f"    {t}\n" for t in texts)
        body += f"L_dj{n}:"
        out = [I("buffer_store_multi " + body, "vm", tag)]
        out[0].t = body
        out[0].cost = 3 + 5*len(texts)
        for _ in texts[1:]:
            x = I("; (counted above)", "vm", tag); x.cost = 0; out.append(x)
        return out
    def __init__(self, diag=False, opts=None):
        self.hd_regs = []
        self.osfx = ' sc1' if (opts or {}).get('osc1') else ''
        self.diag = diag; self.opts = opts or {}; self.nst = 0; self.names = []; self.pid = 0
    def stamp(self, name):
        if not self.diag: return []
        if self.opts.get("hdiag") == 2 and name in ("kernarg", "xiss", "proend", "lnfin", "pub", "early", "pok", "ownfin"): return []
        i = self.nst; self.nst += 1; self.names.append(name)
        return [o("s_memtime s[98:99]"), o("s_memrealtime s[100:101]"), o("s_waitcnt lgkmcnt(0)"),
                o(f"v_writelane_b32 v{V_STAMP}, s98, {i}"), o(f"v_writelane_b32 v{V_STAMP}, s100, {i+32}")]

    def paced(self, M, frags, setup, dist):
        N = len(M)
        sl = Slots(N)
        for g, m in enumerate(M):
            if m["op"] == 16: sl.budget[g] = 3
        head = []
        pid = self.pid; self.pid += 1
        def put(t, ins):
            if t < 0: head.extend(ins if isinstance(ins, list) else [ins])
            else: sl.put(t, ins)
        issue = {}
        for f, fr in enumerate(frags):
            t = fr["use"] - fr.get("dist", dist)
            issue[f] = t
            put(t, fr.get("pre", []))
            put(t, [ds(r, ("af", pid, f)) for r in fr["reads"]])
        waited = -1
        n0 = M[0]["need"]
        if n0 >= 0:
            tgt = max(n0, M[1]["need"])
            head.append(wlg(("af", pid, tgt))); waited = tgt
        for g in range(N - 1):
            nx = M[g+1]["need"]
            if nx > waited:
                tgt = nx
                if g + 2 < N and M[g+2]["need"] > nx and issue[M[g+2]["need"]] <= g - 3 and M[g+1]["op"] == 32: tgt = M[g+2]["need"]
                put(g, [wlg(("af", pid, tgt))]); waited = tgt
        setup(sl, head)
        L = list(head)
        for g, m in enumerate(M):
            L += m.get("before", [])
            c = "0" if m["first"] else m.get("C", m["acc"])
            if m.get("C") and m["first"]: c = m["C"]
            L.append((mf32 if m["op"] == 32 else mf16)(m["acc"], m["A"], m["B"], c))
            L += sl.emit(g)
        if self.opts.get("verbose"):
            over = [(g, sl.used[g], sl.budget[g]) for g in range(N) if sl.used[g] > sl.budget[g]]
            print(f"paced {pid}: N={N} over budget: {len(over)} total excess {sum(u-b for _,u,b in over)} avg used {sum(sl.used)/N:.2f}")
            if self.opts.get("verbose") > 1:
                for a in range(0, N, 36):
                    ex = sum(max(0, sl.used[g]-sl.budget[g]) for g in range(a, min(a+36, N)))
                    print(a, "used", sum(sl.used[a:a+36]), "budget", sum(sl.budget[a:a+36]), "excess", ex)
        return L

    def prologue(self):
        L = []
        if self.opts.get("hdiag"): L += [o("s_memrealtime s[98:99]")]
        if self.diag: L += [o(f"v_mov_b32 v{V_STAMP}, 0")]
        L += self.stamp("start")
        L += [o("s_load_dwordx16 s[16:31], s[0:1], 0"), o("s_load_dwordx8 s[32:39], s[0:1], 64"),
              o("s_cmp_ge_u32 s2, 256"), o("s_cbranch_scc1 L_end")]
        L += [o("v_lshrrev_b32 v2, 6, v0"), o("v_and_b32 v0, 63, v0"), o("s_nop 0"),
              o(f"v_readfirstlane_b32 s{S_W}, v2"),
              ] + self.idmap() + [
              o(f"s_mul_i32 s{S_LX}, s{S_W}, {SLOT}"), o(f"s_mul_i32 s{S_L9}, s{S_W}, 9216"),
              o(f"v_lshlrev_b32 v{V_L16}, 4, v0")]
        if self.opts.get("cpf", 1):
            L += [o("s_getpc_b64 s[82:83]"), raw("L_pc:"),
                  o(f"s_lshr_b32 s{T0}, s2, 3"), o(f"s_lshl_b32 s{T0}, s{T0}, 2"), o(f"s_add_u32 s{T0}, s{T0}, s{S_W}"),
                  o(f"s_lshl_b32 s{T0}, s{T0}, 9"),
                  o("v_and_b32 v2, 3, v0"), o("v_lshlrev_b32 v2, 7, v2"), o(f"v_add_u32 v2, s{T0}, v2"),
                  o("v_cmp_gt_u32 vcc, 4, v0"), o("s_and_saveexec_b64 s[80:81], vcc"),
                  vm(f"global_load_dword v{V_PF}, v2, s[82:83]", "pf"), o("s_mov_b64 exec, s[80:81]")]
        L += [o("v_lshrrev_b32 v2, 3, v0"), o("v_and_b32 v3, 7, v0"), o("v_lshrrev_b32 v4, 1, v2"),
              o("v_xor_b32 v3, v3, v4"), o("v_lshlrev_b32 v3, 4, v3"), o("v_xor_b32 v4, 64, v3"),
              o(f"s_lshl_b32 s{T0}, s{S_MT}, 5"), o(f"s_lshl_b32 s{T1}, s{S_W}, 3"), o(f"s_add_u32 s{T0}, s{T0}, s{T1}"),
              o(f"v_add_u32 v5, s{T0}, v2"),
              o("v_sub_u32 v6, 1024, v5"), o("v_add_u32 v7, 1024, v5"), o("v_sub_u32 v8, 2048, v5"),
              o("v_cmp_eq_u32 vcc, 0, v5"), o("v_mov_b32 v9, 512"), o("s_nop 0"),
              o("v_cndmask_b32 v7, v7, v9, vcc"), o("v_mov_b32 v9, 1536"), o("s_nop 0"), o("v_cndmask_b32 v8, v8, v9, vcc"),
              o(f"s_movk_i32 s{T1}, 1152"),
              o(f"v_mad_u32_u24 v240, v5, s{T1}, v3"), o(f"v_mad_u32_u24 v241, v6, s{T1}, v4"),
              o(f"v_mad_u32_u24 v242, v7, s{T1}, v3"), o(f"v_mad_u32_u24 v243, v8, s{T1}, v4")]
        if self.opts.get("xpf", 1) == 2:
            L += [o(f"s_lshl_b32 s{T0}, s{S_MT}, 4"), o(f"s_add_u32 s{T0}, s{T0}, s{S_J}"), o(f"s_lshl_b32 s{T0}, s{T0}, 2"), o(f"s_add_u32 s{T0}, s{T0}, s{S_W}"),
                  o(f"s_mul_i32 s{T0}, s{T0}, 18"), o(f"v_add_u32 v9, s{T0}, v0"), o("v_lshlrev_b32 v9, 7, v9"),
                  o("v_cmp_gt_u32 vcc, 18, v0"), o(f"v_mov_b32 v8, {OOB:#x}"), o("s_nop 0"), o("v_cndmask_b32 v9, v8, v9, vcc")]
        elif self.opts.get("xpf", 1):
            nsh = 16 if self.opts.get("cfg", 0) == 1 else 4
            per = 1152 // nsh // 4
            assert per <= 64 or True
            jj = f"s{S_J}"
            L += [o(f"s_and_b32 s{T0}, s{S_J}, {nsh-1}"), o(f"s_lshl_b32 s{T0}, s{T0}, 2"), o(f"s_add_u32 s{T0}, s{T0}, s{S_W}"), o(f"s_mul_i32 s{T0}, s{T0}, {per}"),
                  o(f"v_add_u32 v9, s{T0}, v0"),
                  o(f"s_mul_i32 s{T0}, s{S_MT}, {64*1152}"),
                  o(f"s_sub_u32 s{T1}, {(2048-63)*1152 - 576*128}, s{T0}"),
                  o("v_lshlrev_b32 v8, 7, v9"), o(f"v_add_u32 v7, s{T1}, v8"), o(f"v_add_u32 v8, s{T0}, v8"),
                  o("v_cmp_gt_u32 vcc, 0x240, v9"), o("s_nop 1"), o("v_cndmask_b32 v9, v7, v8, vcc"),
                  o(f"v_cmp_gt_u32 vcc, {min(per,64)}, v0"), o(f"v_mov_b32 v8, {OOB:#x}"), o("s_nop 0"), o("v_cndmask_b32 v9, v8, v9, vcc")]
        L += [o("s_waitcnt lgkmcnt(0)")]
        L += self.stamp("kernarg")
        L += srd(SR_X, 16, S*D*2)
        if self.opts.get("xpf", 1):
            L += [vm(f"buffer_load_dword v{V_PF}, v9, s[{SR_X}:{SR_X+3}], 0 offen", "pf")]
        HEAD = L
        P = []
        P += srd(SR_WG, 28, D*F*2) + srd(SR_WU, 30, D*F*2) + srd(SR_WD, 32, F*D*2) + srd(SR_WS, 38, 256 << 20) + srd(SR_OUT, 34, S*D*2)
        P += srd(SR_CS, 18, S*S*2) + srd(SR_SS, 20, S*S*2)
        P += [o(f"s_lshl_b32 s{T0}, s{S_W}, 6"), o(f"v_add_u32 v2, s{T0}, v0"), o("v_cmp_eq_u32 vcc, 0, v2"),
              o(f"v_mov_b32 v3, {OOB:#x}"), o("v_mov_b32 v4, 0"), o(f"v_cndmask_b32 v{V_ONE0}, v3, v4, vcc")]
        P += [o(f"s_lshl_b32 s{S_LID}, s{S_MT}, 4"), o(f"s_add_u32 s{S_LID}, s{S_LID}, s{S_J}")]
        P += [o(f"s_and_b32 s{T2}, s{S_J}, 1"), o(f"s_mul_i32 s{T0}, s{S_J}, 288"), o(f"s_mul_i32 s{T1}, s{T2}, 224"),
              o(f"s_add_u32 s{T1}, s{T0}, s{T1}"),
              G([o(f"s_cmp_eq_u32 s{T2}, 0"), o(f"s_cselect_b32 s{T3}, 64, -64"), o(f"s_cselect_b32 s{T4}, 256, 0")]),
              o(f"s_add_u32 s{T4}, s{T4}, s{T0}")]
        for u in range(4):
            P += [o(f"s_mul_i32 s{T5}, s{T3}, {u}"), o(f"s_add_u32 s{T5}, s{T5}, s{T1}"),
                  o(f"s_lshl_b32 s{S_UB+u}, s{T5}, 1"),
                  o(f"s_mul_i32 s{S_N0+2*u}, s{T5}, 1152"), o(f"s_add_u32 s{S_N0+2*u+1}, s{S_N0+2*u}, {32*1152}")]
        P += [o(f"s_lshl_b32 s{S_UB+4}, s{T4}, 1"), o(f"s_mul_i32 s{S_N0+8}, s{T4}, 1152")]
        P += [o(f"s_mov_b32 s{S_A}, s{S_UB}")]
        P += [o(f"s_mul_i32 s{T5}, s{S_W}, {72*9216}")]
        for u in range(4): P += [o(f"s_add_u32 s{S_UB+u}, s{S_UB+u}, s{T5}")]
        P += [o(f"s_lshl_b32 s{T5}, s{T5}, 1"), o(f"s_add_u32 s{S_UB+4}, s{S_UB+4}, s{T5}")]
        P += [o(f"s_lshr_b32 s{T0}, s{S_J}, 1"), o(f"s_mul_i32 s{S_PB}, s{T0}, {PART_BYTES}"),
              o(f"s_lshl_b32 s{T0}, s{S_MT}, 2"), o(f"s_add_u32 s{T0}, s{T0}, s{S_W}"),
              o(f"s_mul_i32 s{T0}, s{T0}, {18*2048}"), o(f"s_add_u32 s{S_PB}, s{S_PB}, s{T0}"),
              o(f"s_lshl_b32 s{T0}, s{S_LID}, 2"), o(f"s_add_u32 s{T0}, s{T0}, s{S_W}"),
              o(f"s_mul_i32 s{S_HB}, s{T0}, {18*1024}"), o(f"s_add_u32 s{S_HB}, s{S_HB}, {WS_HX}")]
        P += [o("v_lshrrev_b32 v2, 3, v0"), o("v_and_b32 v3, 7, v0"),
              o("v_bfe_u32 v4, v0, 4, 1"), o("v_lshlrev_b32 v4, 2, v4"), o("v_xor_b32 v3, v3, v4"), o("v_lshlrev_b32 v3, 4, v3"),
              o(f"v_mul_u32_u24 v2, 9216, v2"), o(f"v_add_u32 v{V_DM}, v2, v3")]
        for t in range(1, 4): P += [o(f"v_add_u32 v{V_DM+t}, {t*(8*9216-1024)}, v{V_DM}")]
        P += [o("v_and_b32 v2, 31, v0"), o("v_bfe_u32 v3, v0, 1, 3"), o("v_lshrrev_b32 v4, 5, v0"), o("v_xor_b32 v3, v3, v4"),
              o("v_lshlrev_b32 v3, 4, v3"), o("v_lshlrev_b32 v2, 7, v2"), o("v_add_u32 v2, v2, v3"),
              o(f"v_add_u32 v{V_XA}, s{S_LX}, v2"),
              o(f"v_xor_b32 v{V_XA+1}, 32, v{V_XA}"), o(f"v_xor_b32 v{V_XA+2}, 64, v{V_XA}"), o(f"v_xor_b32 v{V_XA+3}, 96, v{V_XA}")]
        P += [o("v_and_b32 v2, 15, v0"),
              o("v_and_b32 v3, 3, v2"), o("v_bfe_u32 v4, v2, 2, 1"), o("v_bfe_u32 v5, v2, 3, 1"),
              o("v_lshlrev_b32 v4, 3, v4"), o("v_lshlrev_b32 v5, 2, v5"), o("v_or_b32 v3, v3, v4"), o("v_or_b32 v3, v3, v5"),
              o("v_lshrrev_b32 v4, 3, v3"), o("v_lshrrev_b32 v5, 5, v0"),
              o("v_and_b32 v6, 1, v3"), o("v_lshlrev_b32 v6, 4, v6"), o("v_mov_b32 v7, 0x3f80"), o("v_lshlrev_b32 v7, v6, v7"), o("v_mov_b32 v8, 0"),
              G([o("v_cmp_eq_u32 vcc, v4, v5"), o("v_nop"), o("v_nop"), o("v_cndmask_b32 v7, v8, v7, vcc")]),
              o("v_bfe_u32 v6, v3, 1, 2"), o("v_bfe_u32 v9, v0, 4, 1")]
        for d in range(4):
            P += [G([o(f"v_cmp_eq_u32 vcc, {d}, v6"), o("v_nop"), o("v_nop"), o(f"v_cndmask_b32 v{V_PERM+d}, v8, v7, vcc")])]
        P += [G([o("v_cmp_eq_u32 vcc, 1, v9"), o("v_nop"), o("v_nop")] + [o(f"v_cndmask_b32 v{V_PERM+4+d}, v8, v{V_PERM+d}, vcc") for d in range(4)] +
                [o(f"v_cndmask_b32 v{V_PERM+d}, v{V_PERM+d}, v8, vcc") for d in range(4)])]
        L = []
        L += [o("v_mov_b32 v4, 0"), o(f"s_lshl_b32 s{T0}, s{S_LID}, 7"), o(f"s_add_u32 s{T0}, s{T0}, {WS_FLAG}"),
              vm(f"buffer_store_dword v4, v{V_ONE0}, s[{SR_WS}:{SR_WS+3}], s{T0} offen sc1", "flinit")]
        L += self.h_srd(S_J)
        if self.opts.get("pf", 1):
            L += [o(f"s_and_b32 s{T0}, s{S_MT}, 7"), o(f"s_mul_i32 s{T0}, s{T0}, 36"), o(f"s_mul_i32 s{T1}, s{S_W}, 9"), o(f"s_add_u32 s{T0}, s{T0}, s{T1}"),
                  o(f"v_add_u32 v2, s{T0}, v0"), o(f"v_mov_b32 v4, {OOB:#x}"),
                  o(f"s_mov_b32 s{T1}, {(2**32+8)//9}"), o(f"v_mul_hi_u32 v5, v2, s{T1}"), o("v_mul_u32_u24 v6, 9, v5"), o("v_sub_u32 v6, v2, v6"),
                  o(f"v_add_u32 v5, s{T7}, v5"), o(f"v_mul_u32_u24 v5, 1152, v5"), o("v_lshlrev_b32 v6, 7, v6"), o("v_add_u32 v5, v5, v6"),
                  o(f"v_mul_u32_u24 v3, 9216, v2"),
                  o("v_cmp_gt_u32 vcc, 9, v0"), o("s_nop 1"), o("v_cndmask_b32 v3, v4, v3, vcc"), o("v_cndmask_b32 v5, v4, v5, vcc"),
                  vm(f"buffer_load_dword v{V_PF}, v5, s[{SR_HZ}:{SR_HZ+3}], 0 offen", "pf")]
            L += [o(f"s_cmp_lt_u32 s{S_J}, 2"), o("s_cbranch_scc0 L_nopf2"),
                  o(f"s_mov_b32 s{T0}, {7*32*1152}"),
                  o(f"v_add_u32 v6, s{T0}, v5"), o("v_cmp_gt_u32 vcc, 9, v0"), o("s_and_saveexec_b64 s[82:83], vcc"),
                  o(f"global_load_dword v{V_PF}, v6, s[24:25]"),
                  o("s_mov_b64 exec, s[82:83]"), raw("L_nopf2:")]
            for sig in range(self.opts.get("npf", 4)):
                mat, kh = (sig // 2) % 2, sig % 2
                assert sig < 4
                rs = SR_WG if mat == 0 else SR_WU
                L += [o(f"s_add_u32 s{T6}, s{S_A}, {kh*288*9216}"),
                      vm(f"buffer_load_dword v{V_PF}, v3, s[{rs}:{rs+3}], s{T6} offen", "pf")]
        if self.opts.get("tlb", 0):
            st = self.opts.get("tlb", 0)
            n = (48 << 20) >> st
            L += [o(f"v_lshlrev_b32 v2, {st}, v0"), o(f"v_mov_b32 v4, {OOB:#x}")]
            for k in range(-(-n // 64)):
                L += [o(f"s_mov_b32 s{T0}, {k*64 << st}"), vm(f"buffer_load_dword v{V_PF}, v2, s[{SR_WS}:{SR_WS+3}], s{T0} offen", "pf")]
            L += [o("v_lshlrev_b32 v2, 16, v0"), vm(f"buffer_load_dword v{V_PF}, v2, s[{SR_OUT}:{SR_OUT+3}], 0 offen", "pf")]
        if self.opts.get('bearly'):
            L += [o(f"s_lshl_b32 s{S_PF}, s{S_LID}, 2"), o(f"s_add_u32 s{S_PF}, s{S_PF}, s{S_W}"), o(f"s_mul_i32 s{S_PF}, s{S_PF}, 41"),
                   o(f"v_add_u32 v2, s{S_PF}, v0"), o("v_lshlrev_b32 v2, 7, v2"), o("v_cmp_gt_u32 vcc, 41, v0"), o("s_nop 1"),
                   o(f"v_cndmask_b32 v2, v{V_ONE0}, v2, vcc"),
                   vm(f"buffer_load_dword v{V_PF}, v2, s[{SR_WG}:{SR_WG+3}], 0 offen", "pf"),
                   vm(f"buffer_load_dword v{V_PF}, v2, s[{SR_WU}:{SR_WU+3}], 0 offen", "pf")]
        post = L
        for n, i in enumerate(P):
            if not isinstance(i, G) and i.t.startswith("v_cmp_eq_u32 vcc, 0, v2"):
                P[n:n+4] = [G(P[n:n+4])]
                break
        out = HEAD
        flatx = []
        if self.opts.get("drot"):
            out += [o(f"s_and_b32 s100, s{S_J}, 3"), o(f"s_mul_i32 s100, s100, {self.opts.get('rotm', 9)}"), o("s_lshr_b32 s100, s100, 2")]
            out += [o("s_mov_b32 s99, s100")]
            for p in range(9):
                pre_ = [o("s_lshl_b32 s100, s99, 7"), o("s_lshl_b32 s101, s99, 12"), o(f"s_add_u32 s101, s101, s{S_LX}"),
                        o("s_add_u32 s99, s99, 1"), o("s_cmp_eq_u32 s99, 9"), o("s_cselect_b32 s99, 0, s99")]
                for rho in range(4):
                    g = (pre_ if rho == 0 else []) + [o(f"s_add_u32 m0, s101, {rho*1024}"), o("s_nop 0"),
                         vm(f"buffer_load_dwordx4 v{240+rho}, s[{SR_X}:{SR_X+3}], s100 offen lds", ("x", 8 if p == 8 else ("p", p)))]
                    flatx.append(g)
        for kap in range(9):
            if self.opts.get("drot"): break
            xl = self.x_line(kap)
            flatx += [xl[3*r:3*r+3] for r in range(4)]
        npre = len(P); pi = 0
        first = self.opts.get("xfree", 10)
        for n, g in enumerate(flatx):
            out += g
            if n >= first:
                take = -(-(npre - pi) // (36 - n))
                for it in P[pi:pi + take]: out += (list(it) if isinstance(it, G) else [it])
                pi += take
        out += self.stamp("xiss")
        L = out + post
        return L

    def tr_bases(self):
        L = []
        L += [o("v_lshrrev_b32 v16, 5, v0"), o("v_lshlrev_b32 v16, 10, v16"),
              o("v_bfe_u32 v17, v0, 2, 2"), o("v_lshlrev_b32 v17, 7, v17"), o("v_add_u32 v16, v16, v17"),
              o("v_bfe_u32 v17, v0, 3, 1"), o("v_lshlrev_b32 v17, 6, v17"), o("v_add_u32 v16, v16, v17"),
              o("v_bfe_u32 v17, v0, 4, 1"), o("v_lshlrev_b32 v17, 5, v17"), o("v_add_u32 v16, v16, v17"),
              o("v_and_b32 v17, 3, v0"), o("v_lshlrev_b32 v17, 3, v17"), o(f"v_add_u32 v{V_RA}, v16, v17")]
        for s in range(1, 4): L += [o(f"v_add_u32 v{V_RA+s}, {s*SLOT}, v{V_RA}")]
        for s in range(4): L += [o(f"v_xor_b32 v{V_RB+s}, 64, v{V_RA+s}")]
        return L

    def idmap(self):
        cfg = self.opts.get("cfg", 0)
        if cfg == 0:
            return [o(f"s_and_b32 s{S_J}, s2, 3"), o(f"s_lshl_b32 s{S_J}, s{S_J}, 2"),
              o(f"s_bfe_u32 s{T0}, s2, 0x20003"), o(f"s_or_b32 s{S_J}, s{S_J}, s{T0}"),
              o(f"s_bfe_u32 s{S_MT}, s2, 0x10002"), o(f"s_lshl_b32 s{S_MT}, s{S_MT}, 3"),
              o(f"s_lshr_b32 s{T0}, s2, 5"), o(f"s_or_b32 s{S_MT}, s{S_MT}, s{T0}")]
        if cfg == 1:
            return [o(f"s_and_b32 s{S_MT}, s2, 7"), o(f"s_lshl_b32 s{S_MT}, s{S_MT}, 1"), o(f"s_bfe_u32 s{T0}, s2, 0x10003"),
                    o(f"s_or_b32 s{S_MT}, s{S_MT}, s{T0}"), o(f"s_lshr_b32 s{S_J}, s2, 4")]
        if cfg == 3:
            return [o(f"s_and_b32 s{S_J}, s2, 7"), o(f"s_lshl_b32 s{S_J}, s{S_J}, 1"), o(f"s_bfe_u32 s{T0}, s2, 0x10003"),
                    o(f"s_or_b32 s{S_J}, s{S_J}, s{T0}"), o(f"s_lshr_b32 s{S_MT}, s2, 4")]
        if cfg == 2:
            return [o(f"s_and_b32 s{S_J}, s2, 1"), o(f"s_lshl_b32 s{S_J}, s{S_J}, 3"),
              o(f"s_bfe_u32 s{T0}, s2, 0x30003"), o(f"s_or_b32 s{S_J}, s{S_J}, s{T0}"),
              o(f"s_bfe_u32 s{S_MT}, s2, 0x20001"), o(f"s_lshl_b32 s{S_MT}, s{S_MT}, 2"),
              o(f"s_lshr_b32 s{T0}, s2, 6"), o(f"s_or_b32 s{S_MT}, s{S_MT}, s{T0}")]

    def h_srd(self, zreg):
        return [o(f"s_cmp_lt_u32 s{zreg}, 9"),
                o(f"s_cselect_b32 s{SR_HZ}, s22, s24"), o(f"s_cselect_b32 s{SR_HZ+1}, s23, s25"), o(f"s_cselect_b32 s{T7}, 0, 9"),
                o(f"s_and_b32 s{SR_HZ+1}, s{SR_HZ+1}, 0xffff"), o(f"s_mov_b32 s{SR_HZ+2}, {D*D*2}"), o(f"s_mov_b32 s{SR_HZ+3}, 0x00020000"),
                o(f"s_sub_u32 s{T7}, s{zreg}, s{T7}"), o(f"s_lshl_b32 s{T7}, s{T7}, 5")]

    def h_dma(self, zreg, slot, tag):
        L = self.h_srd(zreg)
        L += [o(f"s_lshl_b32 s{T1}, s{S_W}, 3"), o(f"s_add_u32 s{T0}, s{T7}, s{T1}"),
             o("v_lshrrev_b32 v240, 3, v0"), o("v_and_b32 v241, 7, v0"), o("v_lshrrev_b32 v242, 1, v240"), o("v_xor_b32 v241, v241, v242"),
             o(f"s_and_b32 s{T1}, s{S_W}, 1"), o(f"s_lshl_b32 s{T1}, s{T1}, 2"), o(f"v_xor_b32 v241, s{T1}, v241"),
             o("v_lshlrev_b32 v241, 4, v241"),
             o(f"v_add_u32 v240, s{T0}, v240"), o(f"s_movk_i32 s{T1}, 1152"), o(f"v_mad_u32_u24 v240, v240, s{T1}, v241"),
             o(f"s_lshl_b32 s{T1}, s{S_W}, 10"), o(f"s_add_u32 s{T1}, s{T1}, {slot*SLOT}")]
        for kap in range(9):
            L += [o(f"s_add_u32 m0, s{T1}, {4*kap*1024 - 128*kap}"), o("s_nop 0"),
                  vm(f"buffer_load_dwordx4 v240, s[{SR_HZ}:{SR_HZ+3}], 0 offen offset:{128*kap} lds", tag)]
        return L

    def h_special(self, zreg, slot, sfx):
        return [o(f"s_cmp_eq_u32 s{zreg}, 9"), o(f"s_cbranch_scc0 L_h_nosp{sfx}"), o(f"s_cmp_eq_u32 s{S_W}, 0"), o(f"s_cbranch_scc0 L_h_nosp{sfx}"),
                o("v_mov_b32 v232, 0xbf803f80"), o("v_mov_b32 v233, v232"), o("v_mov_b32 v234, v232"), o("v_mov_b32 v235, v232"),
                o("v_lshrrev_b32 v240, 3, v0"), o("v_lshlrev_b32 v240, 12, v240"), o("v_and_b32 v241, 7, v0"), o("v_lshlrev_b32 v241, 4, v241"),
                o("v_add_u32 v240, v240, v241"), o(f"v_add_u32 v240, {slot*SLOT}, v240"), o(f"v_add_u32 v241, {slot*SLOT}, v241"),
                o("ds_write_b128 v240, v[232:235]"), o("ds_write_b128 v241, v[232:235] offset:32768"),
                o("s_waitcnt lgkmcnt(0)"), raw(f"L_h_nosp{sfx}:")]

    def x_line(self, kap):
        L = []
        for rho in range(4):
            L += [o(f"s_add_u32 m0, s{S_LX}, {(4*kap+rho)*1024 - 128*kap}"), o("s_nop 0"),
                  vm(f"buffer_load_dwordx4 v{240+rho}, s[{SR_X}:{SR_X+3}], 0 offen offset:{128*kap} lds", ("x", kap))]
        return L
    def x_dma_variants(self):
        L = []
        for kap in range(self.opts.get("xpre", 3)): L += self.x_line(kap)
        return L
    def x_dma_variants_old(self):
        if not self.opts.get("rot", 0):
            L = []
            for kap in range(9):
                for rho in range(4):
                    L += [o(f"s_add_u32 m0, s{S_LX}, {(4*kap+rho)*1024 - 128*kap}"), o("s_nop 0"),
                          vm(f"buffer_load_dwordx4 v{240+rho}, s[{SR_X}:{SR_X+3}], 0 offen offset:{128*kap} lds", ("x", kap))]
            return L
        L = [o(f"s_and_b32 s{T0}, s{S_J}, 3")]
        for v in range(1, 4): L += [o(f"s_cmp_eq_u32 s{T0}, {v}"), o(f"s_cbranch_scc1 L_xd{v}")]
        for v in range(4):
            if v: L += [raw(f"L_xd{v}:")]
            for pos in range(9):
                kap = (self.K0[v] + pos) % 9
                for rho in range(4):
                    t = f"buffer_load_dwordx4 v{240+rho}, s[{SR_X}:{SR_X+3}], 0 offen offset:{128*kap} lds"
                    L += [o(f"s_add_u32 m0, s{S_LX}, {(4*kap+rho)*1024 - 128*kap}"), o("s_nop 0"),
                          (vm(t, ("x", pos)) if v == 3 else o(t))]
            if v < 3: L += [o("s_branch L_xdj")]
        L += [raw("L_xdj:")]
        return L
    K0 = [0, 2, 4, 7]

    def ln_stats(self):
        L = []
        SA = 16
        for i in range(8): L += [o(f"v_mov_b32 v{SA+i}, 0")]
        L += [o(f"s_mov_b32 s{T5}, 0x3f803f80")]
        def reads(kap):
            return [wvm(("x", kap))] + [ds(f"ds_read_b128 v[{RX+4*ks}:{RX+4*ks+3}], v{V_XA+(ks&3)} offset:{(ks//4)*4096}", ("xr", ks)) for ks in range(4*kap, 4*kap+4)]
        if self.opts.get("drot"):
            L += [wvm(("x", 8))]
            def rd2(kap): return [ds(f"ds_read_b128 v[{RX+4*ks}:{RX+4*ks+3}], v{V_XA+(ks&3)} offset:{(ks//4)*4096}", ("xr", ks)) for ks in range(4*kap, 4*kap+4)]
            L += rd2(0) + rd2(1)
            if self.opts.get("msum", 1):
                L += [o("v_mov_b32 v48, 0x3f803f80"), o("v_mov_b32 v49, v48"), o("v_mov_b32 v50, v48"), o("v_mov_b32 v51, v48")]
            first = True
            for kap in range(9):
                if kap + 2 < 9: L += rd2(kap + 2)
                if not self.opts.get("msum", 1):
                    L += self.stats_line(kap); continue
                for n, ks in enumerate(range(4*kap, 4*kap + 4)):
                    L += [wlg(("xr", ks))]
                    usem = (n % 2 == 0) or self.opts.get("msum") == 2
                    if usem:
                        L += [mf32("v[32:47]", "v[48:51]", f"v[{RX+4*ks}:{RX+4*ks+3}]", "0" if first else "v[32:47]")]
                        first = False
                    for i in range(4):
                        r = RX + 4*ks + i
                        if not usem: L += [o(f"v_dot2_f32_bf16 v{SA+i}, v{r}, s{T5}, v{SA+i}")]
                        L += [o(f"v_dot2_f32_bf16 v{SA+4+i}, v{r}, v{r}, v{SA+4+i}")]
            return L
        L += reads(0)
        for kap in range(9):
            if kap + 1 < 9: L += reads(kap + 1)
            L += self.stats_line(kap)
        return L
    def stats_line(self, kap):
        L = []
        SA = 16
        for ks in range(4*kap, 4*kap + 4):
            L += [wlg(("xr", ks))]
            for i in range(4):
                r = RX + 4*ks + i
                if self.opts.get("dotc"):
                    L += [o(f"v_dot2c_f32_bf16 v{SA+i}, s{T5}, v{r}"), o(f"v_dot2c_f32_bf16 v{SA+4+i}, v{r}, v{r}")]
                else:
                    L += [o(f"v_dot2_f32_bf16 v{SA+i}, v{r}, s{T5}, v{SA+i}"),
                          o(f"v_dot2_f32_bf16 v{SA+4+i}, v{r}, v{r}, v{SA+4+i}")]
        return L

    def ln_stats_v(self, v, tracked, order):
        L = []
        SA = 16
        for i in range(8): L += [o(f"v_mov_b32 v{SA+i}, 0")]
        L += [o(f"s_mov_b32 s{T5}, 0x3f803f80")]
        def reads(pos):
            kap = order[pos]
            w = [wvmf(("x", pos))]
            return w + [o(f"ds_read_b128 v[{RX+4*ks}:{RX+4*ks+3}], v{V_XA+(ks&3)} offset:{(ks//4)*4096}") for ks in range(4*kap, 4*kap+4)]
        L += reads(0)
        L += self.stamp("x0")
        for pos in range(9):
            if pos == 4: L += self.stamp("x4")
            if pos + 1 < 9: L += reads(pos + 1)
            kap = order[pos]
            for n, ks in enumerate(range(4*kap, 4*kap + 4)):
                left = (3 - n) + (4 if pos + 1 < 9 else 0)
                L += [o(f"s_waitcnt lgkmcnt({left})")]
                for i in range(4):
                    r = RX + 4*ks + i
                    L += [o(f"v_dot2_f32_bf16 v{SA+i}, v{r}, s{T5}, v{SA+i}"),
                          o(f"v_dot2_f32_bf16 v{SA+4+i}, v{r}, v{r}, v{SA+4+i}")]
        return L

    def ln_stats_old(self):
        L = []
        SA = 16
        for i in range(8): L += [o(f"v_mov_b32 v{SA+i}, 0")]
        L += [o(f"s_mov_b32 s{T5}, 0x3f803f80")]
        def reads(kap):
            return [wvm(("x", kap))] + [ds(f"ds_read_b128 v[{RX+4*ks}:{RX+4*ks+3}], v{V_XA+(ks&3)} offset:{(ks//4)*4096}", ("xr", ks)) for ks in range(4*kap, 4*kap+4)]
        L += reads(0)
        for kap in range(9):
            if kap + 1 < 9: L += reads(kap + 1)
            for ks in range(4*kap, 4*kap + 4):
                L += [wlg(("xr", ks))]
                for i in range(4):
                    r = RX + 4*ks + i
                    L += [o(f"v_dot2_f32_bf16 v{SA+i}, v{r}, s{T5}, v{SA+i}"),
                          o(f"v_dot2_f32_bf16 v{SA+4+i}, v{r}, v{r}, v{SA+4+i}")]
        return L

    def ln_finish(self):
        SA = 16
        L = [o("s_nop 2"),
             o(f"v_add_f32 v{SA}, v{SA}, v{SA+1}"), o(f"v_add_f32 v{SA+2}, v{SA+2}, v{SA+3}"),
             o(f"v_add_f32 v{SA+4}, v{SA+4}, v{SA+5}"), o(f"v_add_f32 v{SA+6}, v{SA+6}, v{SA+7}"),
             o(f"v_add_f32 v24, v{SA}, v{SA+2}"), o(f"v_add_f32 v26, v{SA+4}, v{SA+6}"),
             o("v_mov_b32 v25, v24"), o("v_mov_b32 v27, v26"), o("s_nop 1"),
             o("v_permlane32_swap_b32 v24, v25"), o("v_permlane32_swap_b32 v26, v27"), o("s_nop 1"),
             o("v_add_f32 v24, v24, v25"), o("v_add_f32 v26, v26, v27")] + ([o("v_add_f32 v24, v24, v32")] if (self.opts.get("drot") and self.opts.get("msum", 1)) else []) + [
             o(f"s_mov_b32 s{T5}, {f2u(1.0/576):#x}"),
             o(f"v_mul_f32 v24, s{T5}, v24"), o(f"v_mul_f32 v26, s{T5}, v26"),
             o("v_fma_f32 v26, -v24, v24, v26"), o("v_max_f32 v26, 0, v26"),
             o("v_cvt_pk_bf16_f32 v24, v24, v26"),
             o("v_and_b32 v26, 0xffff0000, v24"), o("v_lshlrev_b32 v24, 16, v24"),
             o(f"v_xor_b32 v{V_NEGMU}, 0x80000000, v24")]
        for i in range(1, 16): L += [o(f"v_mov_b32 v{V_NEGMU+i}, v{V_NEGMU}")]
        L += [o(f"v_add_f32 v26, {f2u(1e-5):#x}, v26"),
              o("v_cvt_pk_bf16_f32 v26, v26, v26"), o("v_lshlrev_b32 v26, 16, v26"),
              o("v_sqrt_f32 v26, v26"), o("s_nop 0"),
              o("v_cvt_pk_bf16_f32 v26, v26, v26"), o("v_lshlrev_b32 v26, 16, v26"),
              o("v_rcp_f32 v27, v26"), o(f"v_mul_f32 v{V_D2}, v26, v26"),
              o(f"v_mul_f32 v{V_C0}, {f2u(C0):#x}, v27"), o("v_mul_f32 v28, v27, v27"), o("v_mul_f32 v28, v28, v27"),
              o(f"v_mul_f32 v{V_C1}, {f2u(C1):#x}, v28"),
              o("v_and_b32 v28, 31, v0"), o("v_lshlrev_b32 v28, 2, v28"), o(f"s_lshl_b32 s{T0}, s{S_W}, 12"), o(f"s_add_u32 s{T0}, s{T0}, {SPARE}"),
              o(f"v_add_u32 v28, s{T0}, v28"), ds("ds_write_b32 v28, v27", "rtab")]
        return L

    def seg_norm_h(self):
        M = []; frags = []
        def UBf(i):
            if i == 0: return 16
            if i % 2 == 0: return RX + 8*(i - 2)
            return (32, 48, 16)[((i - 1)//2) % 3]
        def nextuser(i):
            for k in range(i + 1, 18):
                if UBf(k) == UBf(i): return k
            return None
        posU = {}; posH = {}
        def U(i):
            b = UBf(i)
            M.append(dict(op=32, acc=f"v[{b}:{b+15}]", first=True, C=f"v[{V_NEGMU}:{V_NEGMU+15}]", A=f"v[{V_PERM}:{V_PERM+3}]", B=f"v[{RX+8*i}:{RX+8*i+3}]", need=-1))
            M.append(dict(op=32, acc=f"v[{b}:{b+15}]", first=False, A=f"v[{V_PERM+4}:{V_PERM+7}]", B=f"v[{RX+8*i+4}:{RX+8*i+7}]", need=-1))
            posU[i] = len(M) - 2
        def H(ks):
            f = len(frags); a = AF + 4*(f % NAF)
            frags.append(dict(reads=[f"ds_read_b128 a[{a}:{a+3}], v{V_XA+(ks&3)} offset:{(ks//4)*4096}"], use=len(M)))
            M.append(dict(op=32, acc=f"v[{V_HACC}:{V_HACC+15}]", first=(ks == 0), A=f"a[{AX+4*ks}:{AX+4*ks+3}]", B=f"a[{a}:{a+3}]", need=f))
            posH[ks] = len(M) - 1
        LAG = 5
        for i in range(18):
            U(i)
            if i >= LAG: H(2*(i-LAG)); H(2*(i-LAG)+1)
        for i in range(18 - LAG, 18): H(2*i); H(2*i+1)
        last = -1
        for m in M:
            if m["need"] < 0: m["need"] = last
            else: last = m["need"]
        g0 = frags[0]["use"] - 6
        M[g0].setdefault("before", []).extend([wvm("wz1")] + self.h_special(S_A, 2, "a") + [o("s_waitcnt lgkmcnt(0)"), o("s_barrier")])
        def setup(sl, head):
            sl.put(2, [o('s_nop 4')]); sl.put(3, [o('s_nop 4')])
            for i in range(18):
                b = UBf(i)
                ins = []
                for q in range(8):
                    t = 2 + 2*(i % 4) + (q % 2)
                    ins += [o(f"v_cvt_pk_bf16_f32 v{t}, v{b+2*q}, v{b+2*q+1}"), o(f"v_accvgpr_write_b32 a{AX+8*i+q}, v{t}")]
                start = posU[i] + 1 + 3
                end = min(posH[2*i] - 1, start + 11)
                if nextuser(i) is not None: end = min(end, posU[nextuser(i)])
                e = sl.stream(ins, start, end, spill=0)
                assert e < posH[2*i] - 0, (i, e, posH[2*i])
        return self.paced(M, frags, setup, 6)

    def h_epilogue(self, zreg, acc, rr, tb):
        L = []
        sg, f1, f2, f3 = tb + 8, tb + 9, tb + 10, tb + 11
        L += [G([o(f"s_cmp_lt_u32 s{zreg}, 9"), o(f"s_cselect_b32 s{S_ST0}, 1.0, -1.0")]), o(f"v_mov_b32 v{sg}, s{S_ST0}"),
              G([o(f"s_cmp_eq_u32 s{zreg}, 9"), o(f"s_cselect_b32 s{S_ST0}, 0, 99")]),
              G([o(f"v_and_b32 v{f1}, 31, v0"), o(f"v_cmp_eq_u32 vcc, s{S_ST0}, v{f1}"), o(f"v_mov_b32 v{f2}, 1.0"), o("v_nop"),
                 o(f"v_cndmask_b32 v{sg}, v{sg}, v{f2}, vcc")]),
              G([o(f"s_or_b32 s{S_ST0}, s{S_MT}, s{S_W}"), o(f"s_cmp_eq_u32 s{S_ST0}, 0"), o(f"s_cselect_b32 s{S_ST0}, 32, 0")]),
              G([o(f"v_cmp_gt_u32 vcc, s{S_ST0}, v0"), o(f"v_mov_b32 v{tb}, 0"), o(f"v_mov_b32 v{tb+1}, 1.0"),
                 o(f"v_cndmask_b32 v{f1}, v{sg}, v{tb+1}, vcc"), o(f"v_cndmask_b32 v{f2}, v{tb+1}, v{tb}, vcc"), o(f"v_cndmask_b32 v{f3}, v{sg}, v{tb}, vcc")])]
        for r in range(16): L += [o(f"v_mul_f32 v{acc+r}, v{acc+r}, v{rr+r}")]
        L += [o(f"v_add_f32 v{tb+12}, v{acc+8}, v{acc+12}"), o(f"v_sub_f32 v{tb+13}, v{acc+8}, v{acc+12}"), o(f"v_mov_b32 v{tb+14}, 0"),
              G([o(f"v_cmp_lt_f32 vcc, 0, v{sg}"), o("v_nop"), o("v_nop"),
                 o(f"v_cndmask_b32 v{tb+12}, v{tb+14}, v{tb+12}, vcc"), o(f"v_cndmask_b32 v{tb+13}, v{tb+13}, v{tb+14}, vcc")])]
        for ii in range(4):
            s1, s3 = (f1, f3) if ii == 0 else (sg, sg)
            v0, v1, v2, v3 = acc + ii, acc + 4 + ii, acc + 8 + ii, acc + 12 + ii
            if ii == 0: L += [o(f"v_mul_f32 v{v2}, v{v2}, v{f2}")]
            L += [o(f"v_fma_f32 v{v0}, v{v3}, v{s3}, v{v0}"),
                  o(f"v_fma_f32 v{v1}, v{v1}, v{s1}, v{v2}"),
                  o(f"v_add_f32 v{tb+ii}, v{v0}, v{v1}"), o(f"v_sub_f32 v{tb+4+ii}, v{v0}, v{v1}")]
        L += [o(f"v_cvt_pk_bf16_f32 v{rr}, v{tb}, v{tb+1}"), o(f"v_cvt_pk_bf16_f32 v{rr+1}, v{tb+2}, v{tb+3}"),
              o(f"v_cvt_pk_bf16_f32 v{rr+2}, v{tb+4}, v{tb+5}"), o(f"v_cvt_pk_bf16_f32 v{rr+3}, v{tb+6}, v{tb+7}"),
              G([o("v_nop"), o("v_nop"), o(f"v_permlane32_swap_b32 v{rr}, v{rr+2}"), o(f"v_permlane32_swap_b32 v{rr+1}, v{rr+3}")]),
              o(f"v_lshrrev_b32 v{rr+4}, 5, v0"), o(f"v_mul_u32_u24 v{rr+4}, {ZF_TYPE}, v{rr+4}"),
              o(f"v_and_b32 v{rr+5}, 31, v0"), o(f"v_lshlrev_b32 v{rr+5}, 4, v{rr+5}"), o(f"v_add_u32 v{rr+4}, v{rr+4}, v{rr+5}"),
              G([o(f"s_mul_i32 s{S_ST0}, s{zreg}, {ZF_STRIDE}"), o(f"s_lshl_b32 s{S_ST1}, s{S_MT}, 2"), o(f"s_add_u32 s{S_ST1}, s{S_ST1}, s{S_W}")]),
              G([o(f"s_lshl_b32 s{S_ST1}, s{S_ST1}, 9"), o(f"s_add_u32 s{S_ST1}, s{S_ST1}, s{S_ST0}"), o(f"s_add_u32 s{S_ST1}, s{S_ST1}, {WS_ZF}")]),
              vm(f"buffer_store_dwordx4 v[{rr}:{rr+3}], v{rr+4}, s[{SR_WS}:{SR_WS+3}], s{S_ST1} offen sc1", "zst"),
              o(f"v_mov_b32 v{tb+14}, v{tb+12}"),
              G([o("v_nop"), o("v_nop"), o(f"v_permlane32_swap_b32 v{tb+14}, v{tb+13}")]),
              o(f"v_mov_b32 v{rr+9}, 0"), o(f"v_mov_b32 v{rr+10}, 0"), o(f"v_mov_b32 v{rr+11}, 0"),
              o(f"v_cvt_pk_bf16_f32 v{rr+8}, v{tb+14}, v{rr+9}"),
              G([o(f"s_or_b32 s{S_ST1}, s{S_MT}, s{S_W}"), o(f"s_cmp_eq_u32 s{S_ST1}, 0"), o(f"s_cselect_b32 s{S_C}, 0, {OOB:#x}")]),
              o(f"v_add_u32 v{rr+5}, s{S_C}, v{rr+4}"),
              o(f"s_add_u32 s{S_ST0}, s{S_ST0}, {WS_ZF + 32*1024}"),
              vm(f"buffer_store_dwordx4 v[{rr+8}:{rr+11}], v{rr+5}, s[{SR_WS}:{SR_WS+3}], s{S_ST0} offen sc1", "zst"),
              G([o(f"v_mov_b32 v{rr+12}, 0"), o(f"v_mov_b32 v{rr+13}, 0"), o(f"v_mov_b32 v{rr+14}, 0"), o(f"v_mov_b32 v{rr+15}, 0")])]
        for k in (512, 1024, 1536):
            L += [vm(f"buffer_store_dwordx4 v[{rr+12}:{rr+15}], v{rr+5}, s[{SR_WS}:{SR_WS+3}], s{S_ST0} offen offset:{k} sc1", "zst")]
        return L

    def rr_reads(self, rr, tmp, n=1):
        return [o(f"v_lshrrev_b32 v{tmp}, 5, v0"), o(f"v_lshlrev_b32 v{tmp}, 4, v{tmp}"), o(f"s_lshl_b32 s{S_C}, s{S_W}, 12"),
                o(f"s_add_u32 s{S_C}, s{S_C}, {SPARE}"), o(f"v_add_u32 v{tmp}, s{S_C}, v{tmp}")] + \
               [ds(f"ds_read_b128 v[{rr+4*q}:{rr+4*q+3}], v{tmp} offset:{32*q}", ("rr", n)) for q in range(4)] + [wlg(("rr", n))]

    def h2_block(self):
        L = [o(f"s_cmp_lt_u32 s{S_J}, 2"), o("s_cbranch_scc0 L_noz2b")]
        B = [o(f"v_add_u32 v{64+i}, {SLOT}, v{V_XA+i}") for i in range(4)]
        B += [o(f"s_waitcnt vmcnt({18 if self.opts.get('bearly') else 20})"), o("s_barrier")]
        def rd(ks):
            a_ = AF + 4*(ks % NAF)
            return o(f"ds_read_b128 a[{a_}:{a_+3}], v{64+(ks&3)} offset:{(ks//4)*4096}")
        for ks in range(6): B += [rd(ks)]
        for k in range(36):
            a_ = AF + 4*(k % NAF)
            n_out = min(5, 35 - k)
            B += [o(f"s_waitcnt lgkmcnt({n_out})"), mf32("v[128:143]", f"a[{AX+4*k}:{AX+4*k+3}]", f"a[{a_}:{a_+3}]", "0" if k == 0 else "v[128:143]")]
            if k + 6 < 36: B += [rd(k + 6)]
        B += [raw("L_noz2b:"),
              o(f"s_cmp_lt_u32 s{S_J}, 2"), o(f"s_cselect_b32 s{S_B}, s{S_B}, 0x4000")]
        return L + B

    def dma_p1(self, sig, slot, tA=226, tB=227):
        groups = []
        if sig < 16:
            u, mat, kh = sig // 4, (sig // 2) % 2, sig % 2
            rs = SR_WG if mat == 0 else SR_WU
            for grp, ts in enumerate([[0,1,2,3],[0,1,2,3],[0]]):
                g = [o(f"s_add_u32 m0, s{S_L9}, {slot*SLOT + grp*4096}"),
                     o(f"s_add_u32 s{S_D0}, s{S_UB+u}, {(kh*288 + grp*32)*9216}")]
                for t in ts:
                    groups.append(g + [vm(f"buffer_load_dwordx4 v{V_DM+t}, s[{rs}:{rs+3}], s{S_D0} offen offset:{t*1024} lds", ("st", sig))])
                    g = []
        else:
            rs = SR_WG if sig == 16 else SR_WU
            for grp, ts in enumerate([[0,1,2,3],[0,1,2,3],[0]]):
                g = []
                if sig == 16 and grp == 0:
                    groups.append([o(f"v_lshrrev_b32 v{tA}, 2, v0"), o(f"v_and_b32 v{tB}, 3, v0"), o(f"v_lshlrev_b32 v{tB}, 4, v{tB}")])
                    groups.append([o(f"v_mul_u32_u24 v{tA}, 9216, v{tA}"), o(f"v_add_u32 v{V_DM}, v{tA}, v{tB}")] +
                                  [o(f"v_add_u32 v{V_DM+t}, {t*(16*9216-1024)}, v{V_DM}") for t in range(1, 4)])
                g += [o(f"s_add_u32 m0, s{S_L9}, {slot*SLOT + grp*4096}"),
                      o(f"s_add_u32 s{S_D0}, s{S_UB+4}, {grp*64*9216}")]
                for t in ts:
                    groups.append(g + [vm(f"buffer_load_dwordx4 v{V_DM+t}, s[{rs}:{rs+3}], s{S_D0} offen offset:{t*1024} lds", ("st", sig))])
                    g = []
        return groups

    def dma_cs(self, mat, slot, tag, nop=False):
        rs = SR_CS if mat == 0 else SR_SS
        groups = []
        for l in range(2):
            for rho in range(4):
                groups.append([o(f"s_add_u32 m0, s{S_A}, {slot*SLOT + (4*l+rho)*1024 - 128*l}")] + ([o("s_nop 0")] if nop else []) +
                              [vm(f"buffer_load_dwordx4 v{V_SD+rho}, s[{rs}:{rs+3}], 0 offen offset:{128*l} lds", tag)])
        return groups
    def dma_cx(self, mat, tag):
        rs = SR_CS if mat == 0 else SR_SS
        return [[o(f"s_add_u32 m0, s{S_B}, {SPARE + mat*4096}"), o("s_nop 0"),
                 vm(f"buffer_load_dwordx4 v{V_SE}, s[{rs}:{rs+3}], 0 offen lds", tag)]]

    def dma_p2(self, st, slot, first128, tA, tB, tC):
        u, who = st
        groups = []
        if u < 4:
            tbl = S_N0 if who == "own" else S_N1
            if first128:
                groups.append([o(f"v_lshrrev_b32 v{tA}, 3, v0"), o(f"v_and_b32 v{tB}, 7, v0"), o(f"v_bfe_u32 v{tC}, v0, 4, 1")])
                groups.append([o(f"v_lshlrev_b32 v{tC}, 2, v{tC}"), o(f"v_xor_b32 v{tB}, v{tB}, v{tC}"), o(f"v_lshlrev_b32 v{tB}, 4, v{tB}")])
                groups.append([o(f"s_mul_i32 s{S_WD}, s{S_W}, {8*1152}")])
                groups.append([o(f"v_mul_u32_u24 v{tA}, 1152, v{tA}"), o(f"v_add_u32 v{V_DM}, v{tA}, v{tB}"), o(f"v_add_u32 v{V_DM}, s{S_WD}, v{V_DM}")])
                groups.append([o(f"s_lshl_b32 s{S_WD}, s{S_W}, 10")])
            for ip in range(9):
                groups.append([o(f"s_add_u32 m0, s{S_WD}, {slot*SLOT + ip*4096}"),
                               o(f"s_add_u32 s{S_D0}, s{tbl+ip}, s{S_CU+u}"),
                               vm(f"buffer_load_dwordx4 v{V_DM}, s[{SR_WD}:{SR_WD+3}], s{S_D0} offen lds", ("s2", st))])
        else:
            groups.append([o(f"v_lshrrev_b32 v{tA}, 2, v0"), o(f"v_and_b32 v{tB}, 3, v0"), o(f"v_lshlrev_b32 v{tB}, 4, v{tB}")])
            groups.append([o(f"v_mul_u32_u24 v{tA}, 1152, v{tA}"), o(f"v_add_u32 v{V_DM+1}, v{tA}, v{tB}")])
            for ip in range(9):
                ca, cb = 2*ip, 2*ip + 1
                ra = (S_N0 + ca) if ca < 9 else (S_N1 + ca - 9)
                rb = (S_N0 + cb) if cb < 9 else (S_N1 + cb - 9)
                groups.append([o(f"s_cmp_lt_u32 s{S_W}, 2"), o(f"s_cselect_b32 s{S_D0}, s{ra}, s{rb}"),
                               o(f"s_add_u32 s{S_D0}, s{S_D0}, s{S_CU+4}"), o(f"s_add_u32 s{S_D0}, s{S_D0}, s{S_C}"),
                               o(f"s_add_u32 m0, s{S_WD}, {slot*SLOT + ip*4096}")])
                groups.append([vm(f"buffer_load_dwordx4 v{V_DM+1}, s[{SR_WD}:{SR_WD+3}], s{S_D0} offen lds", ("s2", st))])
        return groups

    def geglu(self, c, toff=0):
        if c < 8: g, u = GA[(c//2) % 2][c % 2], UA[(c//2) % 2][c % 2]
        else: g, u = GA[0][0], UA[0][0]
        L = []
        for p in range(8):
            r0, r1 = 2*p, 2*p + 1
            b = TMP + 4*(p % 2) + toff
            xa, xb, ya, yb = b, b+1, b+2, b+3
            L += [o(f"v_mul_f32 v{xa}, v{g+r0}, v{g+r0}"), o(f"v_mul_f32 v{xb}, v{g+r1}, v{g+r1}"),
                  o(f"v_fma_f32 v{xa}, v{xa}, v{V_C1}, v{V_C0}"), o(f"v_fma_f32 v{xb}, v{xb}, v{V_C1}, v{V_C0}"),
                  o(f"v_mul_f32 v{xa}, v{g+r0}, v{xa}"), o(f"v_mul_f32 v{xb}, v{g+r1}, v{xb}"),
                  o(f"v_exp_f32 v{xa}, v{xa}"), o(f"v_exp_f32 v{xb}, v{xb}"),
                  o(f"v_mul_f32 v{ya}, v{g+r0}, v{u+r0}"), o(f"v_mul_f32 v{yb}, v{g+r1}, v{u+r1}"),
                  o(f"v_fma_f32 v{xa}, v{xa}, v{V_D2}, v{V_D2}"), o(f"v_fma_f32 v{xb}, v{xb}, v{V_D2}, v{V_D2}"),
                  o(f"v_rcp_f32 v{xa}, v{xa}"), o(f"v_rcp_f32 v{xb}, v{xb}"),
                  o(f"v_mul_f32 v{ya}, v{ya}, v{xa}"), o(f"v_mul_f32 v{yb}, v{yb}, v{xb}"),
                  o(f"v_cvt_pk_bf16_f32 v{HF + 8*c + p}, v{ya}, v{yb}")]
        return L
    def geglu_sig(self, c, toff=0):
        g = GA[(c//2) % 2][c % 2] if c < 8 else GA[0][0]
        L = []
        for p in range(8):
            r0, r1 = 2*p, 2*p + 1
            b = TMP + 2*(p % 2) + toff
            xa, xb = b, b + 1
            L += [o(f"v_mul_f32 v{xa}, v{g+r0}, v{g+r0}"), o(f"v_mul_f32 v{xb}, v{g+r1}, v{g+r1}"),
                  o(f"v_fma_f32 v{xa}, v{xa}, v{V_C1}, v{V_C0}"), o(f"v_fma_f32 v{xb}, v{xb}, v{V_C1}, v{V_C0}"),
                  o(f"v_mul_f32 v{xa}, v{g+r0}, v{xa}"), o(f"v_mul_f32 v{xb}, v{g+r1}, v{xb}"),
                  o(f"v_exp_f32 v{xa}, v{xa}"), o(f"v_exp_f32 v{xb}, v{xb}"), o("v_nop") if False else None,
                  o(f"v_fma_f32 v{xa}, v{xa}, v{V_D2}, v{V_D2}"), o(f"v_fma_f32 v{xb}, v{xb}, v{V_D2}, v{V_D2}"),
                  o(f"v_rcp_f32 v{xa}, v{xa}"), o(f"v_rcp_f32 v{xb}, v{xb}"),
                  o(f"v_mul_f32 v{g+r0}, v{g+r0}, v{xa}"), o(f"v_mul_f32 v{g+r1}, v{g+r1}, v{xb}")]
        return [i for i in L if i is not None]
    def geglu_fin(self, c, toff=0):
        if c < 8: g, u = GA[(c//2) % 2][c % 2], UA[(c//2) % 2][c % 2]
        else: g, u = GA[0][0], UA[0][0]
        L = []
        for p in range(8):
            r0, r1 = 2*p, 2*p + 1
            L += [o(f"v_mul_f32 v{g+r0}, v{g+r0}, v{u+r0}"), o(f"v_mul_f32 v{g+r1}, v{g+r1}, v{u+r1}"),
                  o(f"v_cvt_pk_bf16_f32 v{HF + 8*c + p}, v{g+r0}, v{g+r1}")]
        return L
    def hstore(self, c):
        st = S_ST0 + (c % 2)
        return [o(f"s_add_u32 s{st}, s{S_HB}, {2*c*1024}")] + self.dstore(
                [f"buffer_store_dwordx4 v[{HF+8*c}:{HF+8*c+3}], v{V_L16}, s[{SR_WS}:{SR_WS+3}], s{st} offen",
                 f"buffer_store_dwordx4 v[{HF+8*c+4}:{HF+8*c+7}], v{V_L16}, s[{SR_WS}:{SR_WS+3}], s{st} offen offset:1024"], "hst", True)

    def s_setup(self):
        a, b, c = V_SX, V_YC[0], V_YC[1]
        L = []
        L += [G([o(f"s_lshr_b32 s{S_TAU}, s{S_J}, 3"), o(f"s_lshl_b32 s{S_A}, s{S_W}, 13"), o(f"s_lshl_b32 s{S_B}, s{S_W}, 10")]),
              G([o(f"s_mul_i32 s{S_ZB}, s{S_TAU}, {ZF_TYPE}"), o(f"s_add_u32 s{S_ZB}, s{S_ZB}, s{S_A}"), o(f"s_add_u32 s{S_ZB}, s{S_ZB}, {WS_ZF}")])]
        L += [o(f"v_lshrrev_b32 v{a}, 3, v0"), o(f"v_and_b32 v{b}, 7, v0"), o(f"v_lshrrev_b32 v{c}, 1, v{a}"), o(f"v_xor_b32 v{b}, v{b}, v{c}"),
              o(f"v_lshlrev_b32 v{b}, 4, v{b}"), o(f"v_xor_b32 v{c}, 64, v{b}"),
              G([o(f"s_lshl_b32 s{S_C}, s{S_MT}, 5"), o(f"s_add_u32 s{S_C}, s{S_C}, s{S_TAU}")]),
              o(f"v_lshlrev_b32 v{a}, 1, v{a}"), o(f"v_add_u32 v{a}, s{S_C}, v{a}"),
              o(f"s_lshl_b32 s{S_C}, s{S_W}, 8"),
              o(f"v_add_u32 v{b}, s{S_C}, v{b}"), o(f"v_add_u32 v{c}, s{S_C}, v{c}"),
              o(f"v_lshlrev_b32 v{V_SD}, 12, v{a}"), o(f"v_add_u32 v{V_SD+1}, {16*4096}, v{V_SD}"),
              o(f"v_sub_u32 v{a}, 1024, v{a}"), o(f"v_lshlrev_b32 v{V_SD+2}, 12, v{a}"), o(f"v_subrev_u32 v{V_SD+3}, {16*4096}, v{V_SD+2}"),
              o(f"v_add_u32 v{V_SD}, v{V_SD}, v{b}"), o(f"v_add_u32 v{V_SD+1}, v{V_SD+1}, v{c}"),
              o(f"v_add_u32 v{V_SD+2}, v{V_SD+2}, v{b}"), o(f"v_add_u32 v{V_SD+3}, v{V_SD+3}, v{c}")]
        return L
    def s_setup_e(self, t0, t1):
        return [G([o(f"s_cmp_eq_u32 s{S_W}, 1"), o(f"s_cselect_b32 s{S_C}, 1, 0")]),
                o(f"v_mov_b32 v{V_SE}, v{V_SD}"),
                G([o(f"v_mov_b32 v{t0}, s{S_W}"), o(f"v_cmp_eq_u32 vcc, 1, v{t0}"), o("v_nop"), o("v_nop"), o(f"v_cndmask_b32 v{V_SE}, v{V_SE}, v{V_SD+1}, vcc")]),
                G([o(f"v_cmp_eq_u32 vcc, 2, v{t0}"), o("v_nop"), o("v_nop"), o(f"v_cndmask_b32 v{V_SE}, v{V_SE}, v{V_SD+2}, vcc")]),
                G([o(f"v_cmp_eq_u32 vcc, 3, v{t0}"), o("v_nop"), o("v_nop"), o(f"v_cndmask_b32 v{V_SE}, v{V_SE}, v{V_SD+3}, vcc")]),
                G([o(f"s_lshl_b32 s{S_C}, s{S_W}, 8"), o(f"s_sub_u32 s{S_C}, 1024, s{S_C}")]), o(f"v_add_u32 v{V_SE}, s{S_C}, v{V_SE}")]
    def s_setup2(self):
        a, b, c = V_SX, V_YC[0], V_YC[1]
        L = []
        L += [o(f"v_and_b32 v{a}, 15, v0"), o(f"v_lshrrev_b32 v{b}, 4, v0"), o(f"v_bfe_u32 v{c}, v0, 1, 3"), o(f"v_xor_b32 v{c}, v{c}, v{b}"),
              o(f"v_lshlrev_b32 v{c}, 4, v{c}"), o(f"v_lshlrev_b32 v{a}, 7, v{a}"), o(f"v_add_u32 v{a}, v{a}, v{c}"),
              o(f"v_add_u32 v{V_SA}, s{S_A}, v{a}"), o(f"v_add_u32 v{V_SA}, {2*SLOT}, v{V_SA}"), o(f"v_xor_b32 v{V_SA+1}, 64, v{V_SA}"),
              G([o(f"s_cmp_eq_u32 s{S_W}, 3"), o(f"s_cselect_b32 s{S_C}, {SPARE}, 0")]),
              G([o(f"s_add_u32 s{S_PF}, s{S_A}, {2*SLOT}"), o(f"s_cmp_eq_u32 s{S_W}, 3"), o(f"s_cselect_b32 s{S_C}, s{S_C}, s{S_PF}")]),
              o(f"v_add_u32 v{V_SA+2}, s{S_C}, v{a}"),
              G([o(f"s_movk_i32 s{S_PF}, 4096"), o(f"s_cmp_eq_u32 s{S_W}, 3"), o(f"s_cselect_b32 s{S_PF}, s{S_PF}, {SLOT}")]),
              o(f"v_add_u32 v{V_SA+3}, s{S_PF}, v{V_SA+2}")]
        return L
    def s_setup3(self, t0, t1, t2, t3):
        L = []
        L += [o(f"v_and_b32 v{t0}, 15, v0"), o(f"v_lshrrev_b32 v{t1}, 4, v0"),
              o(f"v_and_b32 v{t2}, 1, v{t1}"), o(f"v_lshlrev_b32 v{t2}, 9, v{t2}"),
              o(f"v_lshrrev_b32 v{t1}, 1, v{t1}"), o(f"v_lshlrev_b32 v{t1}, 10, v{t1}"), o(f"v_add_u32 v{t2}, v{t2}, v{t1}"),
              G([o(f"s_and_b32 s{S_C}, s{S_J}, 7"), o(f"s_mul_i32 s{S_C}, s{S_C}, 36")]),
              o(f"v_add_u32 v{t0}, s{S_C}, v{t0}")]
        for ss in range(3):
            pa, qa, yc = V_ZP + ss, V_ZQ + ss, V_YC[ss]
            L += [o(f"v_lshrrev_b32 v{t1}, 5, v{t0}"), o(f"v_mul_u32_u24 v{t1}, {ZF_STRIDE}, v{t1}"),
                  o(f"v_and_b32 v{t3}, 31, v{t0}"), o(f"v_lshlrev_b32 v{t3}, 4, v{t3}"), o(f"v_add_u32 v{t1}, v{t1}, v{t3}"),
                  o(f"v_add_u32 v{t1}, v{t1}, v{t2}"),
                  o(f"v_subrev_u32 v{t3}, s{S_C}, v{t0}"),
                  o(f"v_lshlrev_b32 v{yc}, 2, v{t0}"), o(f"v_mov_b32 v{qa}, {OOB:#x}"), o(f"v_mov_b32 v{pa}, {OOB:#x}"),
                  G([o(f"v_cmp_gt_u32 vcc, 36, v{t3}"), o("v_nop"), o("v_nop"), o(f"v_cndmask_b32 v{pa}, v{pa}, v{t1}, vcc")]),
                  o(f"v_add_u32 v{t3}, {9*ZF_STRIDE}, v{t1}"),
                  G([o(f"v_cndmask_b32 v{qa}, v{qa}, v{t3}, vcc")]),
                  G([o(f"v_cmp_eq_u32 vcc, 0x120, v{t0}"), o("v_nop"), o("v_nop"), o(f"v_cndmask_b32 v{pa}, v{pa}, v{t1}, vcc")]),
                  G([o(f"v_mov_b32 v{t3}, {OOB:#x}"), o(f"v_cmp_eq_u32 vcc, 0, v{t0}"), o("v_nop"), o("v_nop"), o(f"v_cndmask_b32 v{qa}, v{qa}, v{t3}, vcc")]),
                  G([o(f"v_cmp_eq_u32 vcc, v{t3}, v{pa}"), o("v_nop"), o("v_nop"), o(f"v_cndmask_b32 v{yc}, v{yc}, v{t3}, vcc")]),
                  o(f"v_add_u32 v{t0}, 16, v{t0}")]
        return L

    def phase2_setup(self):
        L = []
        L += [G([o(f"s_xor_b32 s{T6}, s{S_J}, 1"), o(f"s_and_b32 s{T2}, s{T6}, 1"), o(f"s_mul_i32 s{T0}, s{T6}, 288")]),
              G([o(f"s_mul_i32 s{T1}, s{T2}, 224"), o(f"s_add_u32 s{T1}, s{T0}, s{T1}")]),
              G([o(f"s_cmp_eq_u32 s{T2}, 0"), o(f"s_cselect_b32 s{T3}, 64, -64"), o(f"s_cselect_b32 s{T4}, 256, 0")]),
              o(f"s_add_u32 s{T4}, s{T4}, s{T0}")]
        for u in range(4):
            L += [G([o(f"s_mul_i32 s{T5}, s{T3}, {u}"), o(f"s_add_u32 s{T5}, s{T5}, s{T1}")]),
                  G([o(f"s_mul_i32 s{S_N1+2*u}, s{T5}, 1152"), o(f"s_add_u32 s{S_N1+2*u+1}, s{S_N1+2*u}, {32*1152}")])]
        L += [o(f"s_mul_i32 s{S_N1+8}, s{T4}, 1152")]
        L += [G([o(f"s_and_b32 s{T2}, s{S_J}, 1"), o(f"s_mul_i32 s{T0}, s{T2}, 640"), o(f"s_lshr_b32 s{T1}, s{S_J}, 2")])]
        for k in range(4):
            L += [G([o(f"s_add_u32 s{T3}, s{T1}, {(k+1) % 4 if k < 3 else 0}"), o(f"s_and_b32 s{T3}, s{T3}, 3"), o(f"s_lshl_b32 s{T3}, s{T3}, 7")]),
                  o(f"s_add_u32 s{S_CU+k}, s{T0}, s{T3}")]
        L += [G([o(f"s_cmp_eq_u32 s{T2}, 0"), o(f"s_cselect_b32 s{S_CU+4}, 0, 64")]), o(f"s_add_u32 s{S_CU+4}, s{S_CU+4}, 512")]
        return L

    def p2q_setup(self):
        L = [G([o(f"s_and_b32 s{T2}, s{S_J}, 1"), o(f"s_mul_i32 s{T3}, s{T2}, 10"), o(f"s_lshr_b32 s{T4}, s{S_J}, 2")])]
        for k, dst in enumerate(S_QU):
            L += [G([o(f"s_add_u32 s{T5}, s{T4}, {k+1}"), o(f"s_and_b32 s{T5}, s{T5}, 3"), o(f"s_lshl_b32 s{T5}, s{T5}, 1")]),
                  G([o(f"s_add_u32 s{T5}, s{T5}, s{T3}"), o(f"s_lshl_b32 s{T5}, s{T5}, 11"), o(f"s_add_u32 s{dst}, s{T5}, s{S_PB}")])]
        L += [G([o(f"s_lshl_b32 s{T5}, s{T4}, 1"), o(f"s_add_u32 s{T5}, s{T5}, s{T3}"), o(f"s_bfe_u32 s{T4}, s{S_J}, 0x10001")]),
              G([o(f"s_add_u32 s{S_TO}, s{T5}, s{T4}"), o(f"s_xor_b32 s{T4}, s{T4}, 1"), o(f"s_add_u32 s{T5}, s{T5}, s{T4}")]),
              G([o(f"s_lshl_b32 s{T5}, s{T5}, 11"), o(f"s_add_u32 s{S_QN}, s{T5}, s{S_PB}")]),
              G([o(f"s_add_u32 s{T5}, s{T2}, 8"), o(f"s_lshl_b32 s{T5}, s{T5}, 11"), o(f"s_add_u32 s{S_Q8}, s{T5}, s{S_PB}")])]
        return L

    def main(self):
        DIST = self.opts.get("dist", 7)
        M = []; frags = []
        fu = {}; lu = {}
        def addfrag(reads_fn, use, dist=None, stage=None):
            f = len(frags); a = AF + 4*(f % NAF)
            fr = dict(reads=reads_fn(a), use=use)
            if dist: fr["dist"] = dist
            frags.append(fr)
            if stage is not None and stage not in fu:
                fu[stage] = use; fr["stage_first"] = stage
            return f, a
        def tr(base, off, off2): return lambda a: [f"ds_read_b64_tr_b16 a[{a}:{a+1}], v{base} offset:{off}", f"ds_read_b64_tr_b16 a[{a+2}:{a+3}], v{base} offset:{off+off2}"]
        for u in range(4):
            for mat in range(2):
                for kh in range(2):
                    sig = 4*u + 2*mat + kh
                    for half in range(2):
                        acc = (GA if mat == 0 else UA)[u % 2][half]
                        for kk in range(18):
                            ks = kh*18 + kk; g = len(M)
                            f, a = addfrag(tr((V_RA if half == 0 else V_RB) + sig % 4, kk*2048, 512), g, stage=("st", sig))
                            M.append(dict(op=32, acc=f"v[{acc}:{acc+15}]", first=(ks == 0), A=f"a[{a}:{a+3}]", B=f"a[{AX+4*ks}:{AX+4*ks+3}]", need=f))
                            lu[("st", sig)] = g
        for mat in range(2):
            acc = (GA if mat == 0 else UA)[0][0]
            for ks in range(36):
                g = len(M)
                f, a = addfrag(tr(V_R8 + mat, ks*1024, 256), g, stage=("st", 16+mat))
                M.append(dict(op=32, acc=f"v[{acc}:{acc+15}]", first=(ks == 0), A=f"a[{a}:{a+3}]", B=f"a[{AX+4*ks}:{AX+4*ks+3}]", need=f))
                lu[("st", 16+mat)] = g
        S0 = len(M)
        def accP(tt, ss):
            i = tt*3 + ss
            return 48 + 4*i if i < 4 else 112 + 4*(i - 4)
        def accQ(tt, ss):
            i = tt*3 + ss
            return 64 + 4*i if i < 4 else 128 + 4*(i - 4)
        def zP(ss, k):
            i = k*3 + ss
            return f"a[{AZ+4*i}:{AZ+4*i+3}]"
        def zQ(ss, k):
            i = k*3 + ss
            if i < 5: return f"a[{AZ+60+4*i}:{AZ+60+4*i+3}]"
            i -= 5
            if i < 4: return f"v[{32+4*i}:{32+4*i+3}]"
            i -= 4
            if i < 4: return f"v[{96+4*i}:{96+4*i+3}]"
            i -= 4
            return f"a[{4*i}:{4*i+3}]"
        self.zP, self.zQ, self.accP, self.accQ = zP, zQ, accP, accQ
        for mat, accf, zf in ((0, accP, zP), (1, accQ, zQ)):
            for k in range(5):
                for tt in range(2):
                    g = len(M)
                    if k < 4:
                        base = V_SA + (k & 1); off = mat*SLOT + (k >> 1)*4096 + tt*2048
                        st = ("C" if mat == 0 else "S", 0)
                    else:
                        base = V_SA + 2 + mat; off = tt*2048; st = ("CX" if mat == 0 else "SX", 0)
                    f, a = addfrag(lambda a, base=base, off=off: [f"ds_read_b128 a[{a}:{a+3}], v{base} offset:{off}"], g, dist=8, stage=st)
                    for ss in range(3):
                        ac = accf(tt, ss)
                        M.append(dict(op=16, acc=f"v[{ac}:{ac+3}]", first=(k == 0), A=f"a[{a}:{a+3}]", B=zf(ss, k), need=f))
                        lu[st] = len(M) - 1
            if mat == 0: SP_END = len(M)
        P2_0 = len(M)
        stages = [(0, "own"), (1, "own"), (2, "own"), (0, "par"), (1, "par"), (2, "par"), (4, "both"), (3, "own"), (3, "par")]
        slot_order = [0, 1, 2, 0, 3, 1, 2, 0, 3]
        slot_of = {st: slot_order[i] for i, st in enumerate(stages)}
        ACC = {0: [32, 96], 1: [16, 80], 2: [48, 112], 3: [64, 128], 4: [32]}
        tile_last = {}
        def p2run(st, half, base, ks=None):
            u, who = st
            acc = ACC[u][half]
            for k in (ks or range(18)):
                g = len(M)
                f, a = addfrag(tr(base, k*2048, 1024), g, stage=("s2", st))
                M.append(dict(op=32, acc=f"v[{acc}:{acc+15}]", first=(who == "own" and k == 0), A=f"a[{a}:{a+3}]",
                              B=(f"v[{HF+4*k}:{HF+4*k+3}]" if who == "own" else f"a[{HPB+4*k}:{HPB+4*k+3}]"), need=f))
                tile_last[(u, half)] = g; lu[("s2", st)] = g
        for st in stages[:7]:
            u, who = st; slot = slot_of[st]
            if u < 4 and who == "par" and u in (0, 1) and self.opts.get("klate", 1):
                for rng in (range(12), range(12, 18)):
                    for half in range(2): p2run(st, half, (V_RA if half == 0 else V_RB) + slot, rng)
            elif u < 4:
                for half in range(2): p2run(st, half, (V_RA if half == 0 else V_RB) + slot)
            else:
                acc = ACC[4][0]
                for k in range(36):
                    g = len(M)
                    f, a = addfrag(tr(V_R8, k*1024, 512), g, stage=("s2", st))
                    M.append(dict(op=32, acc=f"v[{acc}:{acc+15}]", first=(k == 0), A=f"a[{a}:{a+3}]",
                                  B=(f"v[{HF+4*k}:{HF+4*k+3}]" if k < 18 else f"a[{HPB+4*(k-18)}:{HPB+4*(k-18)+3}]"), need=f))
                    tile_last[(4, 0)] = g; lu[("s2", st)] = g
        p2run((3, "own"), 0, V_LB); p2run((3, "par"), 0, V_LB + 1); p2run((3, "own"), 1, V_LB + 2); p2run((3, "par"), 1, V_LB + 3)
        N = len(M)
        last_use = {}
        for g, m in enumerate(M): last_use[m["need"]] = g
        for f, fr in enumerate(frags):
            d = fr.get("dist", DIST)
            t = fr["use"] - d
            if f >= NAF and t < last_use[f - NAF]: fr["dist"] = fr["use"] - last_use[f - NAF]
        for fr in frags:
            st = fr.get("stage_first")
            if st is None: continue
            if st[0] in ("st", "s2"):
                tags = [st]
                if st == ("st", 3): tags += ["zst", "flinit"]
                if st == ("st", 17) and self.opts.get("onepoll") != 1: tags += ["hst"]
                fr["pre"] = [wvm(tags), o("s_barrier")]
                if st == ("st", 17) and self.opts.get("onepoll") != 1:
                    fr["pre"] += [vm(f"buffer_store_dword v{V_ONE}, v{V_ONE0}, s[{SR_WS}:{SR_WS+3}], s{S_FL} offen sc1", "fl1")]
                if st == ("st", 3):
                    fr["pre"] += [vm(f"buffer_atomic_add v{V_ONE}, v{V_ONE0}, s[{SR_HZ}:{SR_HZ+3}], 0 offen offset:128 sc1", "zpub")]
            elif st == ("CX", 0):
                fr["pre"] = [wvm([("cs", ("CX", 0)), ("cs", ("SX", 0))]), o("s_barrier")]
            elif st == ("SX", 0):
                fr["pre"] = []
            else:
                fr["pre"] = [wvm(("cs", st))]
        stamps = {0: "p1", 144: "u1", 288: "u2", 432: "u3", 576: "u4", S0: "S0", SP_END: "SP", P2_0: "p2", P2_0 + 108: "p2b", P2_0 + 216: "p2c"}
        if self.opts.get("hdiag") == 2:
            stamps = {0: "p1", 144: "u1", 288: "u2", 432: "u3", 576: "u4", S0: "S0", P2_0: "p2", P2_0 + 108: "p2b", P2_0 + 216: "p2c"}
        if self.opts.get("fine") == 2:
            stamps = {0: "p1", S0: "S0", P2_0: "p2"}
            for k in range(9, 127, 9): stamps[P2_0 + k] = f"+{k}"
        elif self.opts.get("fine"):
            stamps = {0: "p1", 432: "u3", 576: "u4", 594: "s594", 612: "s612", 630: "s630", S0: "S0", 660: "s660", 672: "s672", 684: "s684", SP_END: "SP", 714: "s714", 726: "s726", 738: "s738", P2_0: "p2", P2_0 + 36: "a36", P2_0+72: "a72", P2_0 + 108: "p2b", P2_0 + 216: "p2c"}
        for g, name in stamps.items():
            if self.diag: M[g].setdefault("before", []).extend(self.stamp(name))
        self.tail2 = []
        if self.opts.get("jit"):
            j = self.opts["jit"]
            pts = {1: [(0, 7, 3), (300, 5, 1)], 2: [(P2_0 + 6, 3, 1), (600, 7, 6)], 3: [(P2_0 + 150, 7, 2), (P2_0 + 240, 3, 0), (100, 15, 9)]}[j]
            for n, (g, mask, val) in enumerate(pts):
                M[g].setdefault("before", []).extend(self.jitter(n, mask, val, 6))

        def setup(sl, head):
            rbar = {st: fu[st] - DIST for st in fu if st[0] in ("st", "s2")}
            for b in rbar.values():
                if b >= 0: sl.budget[b] = 4
            def fbar(t):
                sl.put(t, [o("s_barrier")])
            busy = {"end": -1}
            def place(groups, start, step=1):
                s = max(start, busy["end"] + 1)
                for grp in groups:
                    sl.put(s, grp); busy["end"] = s; s += step
                return s
            sl.put(2, [o(f"v_mov_b32 v{V_ONE}, 1")])
            eh = sl.stream(self.rr_reads(48, 112) + self.h_epilogue(S_A, V_HACC, 48, 64), 12, 46)
            eh = sl.stream(self.rr_reads(48, 112, 2) + self.h_epilogue(S_B, 128, 48, 64), eh + 1, eh + 34)
            assert eh < 92, eh
            for mat in range(2):
                slot = (16 + mat) % 4
                ins = [o("v_lshrrev_b32 v224, 5, v0"), o("v_lshlrev_b32 v224, 9, v224"),
                       o("v_bfe_u32 v225, v0, 2, 2"), o("v_lshlrev_b32 v225, 6, v225"), o("v_add_u32 v224, v224, v225"),
                       o("v_bfe_u32 v225, v0, 4, 1"), o("v_lshlrev_b32 v225, 5, v225"), o("v_add_u32 v224, v224, v225"),
                       o("v_and_b32 v225, 3, v0"), o("v_lshlrev_b32 v225, 3, v225"), o("v_add_u32 v224, v224, v225"),
                       o(f"v_add_u32 v{V_R8+mat}, {slot*SLOT}, v224")]
                sl.stream(ins, 70 + 20*mat, 88 + 20*mat)
            dma_end = {}
            for sig in range(2, 18):
                grps = self.dma_p1(sig, sig % 4)
                if sig == 2: start = 0
                elif sig == 3: start = 9*self.opts.get('dstep', 2)
                elif self.opts.get("fb", 1):
                    t = lu[("st", sig - 4)]; fbar(t); start = t + 1
                else:
                    start = min(b for b in rbar.values() if b >= lu[("st", sig - 4)]) + 1
                dma_end[sig] = place(grps, start, self.opts.get("dstep", 2))
            self.paced_prefetch(sl, dma_end)
            self.mode_check(sl, M)
            sl.put(590, [G([o(f"s_lshl_b32 s{S_FL}, s{S_LID}, 7"), o(f"s_add_u32 s{S_FL}, s{S_FL}, {WS_FLAG}")])])
            sl.put(592, [o(f"v_mov_b32 v{V_ONE}, 1")])
            e0 = sl.stream(self.geglu(0), 145, 211)
            sl.stream(self.hstore(0) + self.geglu(1) + self.hstore(1), max(e0 + 1, 212), 287)
            for u in range(1, 3):
                sl.stream(self.geglu(2*u) + self.hstore(2*u) + self.geglu(2*u+1) + self.hstore(2*u+1), 144*(u+1) + 1, 144*(u+2) - 1)
            es = sl.stream(self.s_setup(), eh + 1, eh + 11)
            es = sl.stream(self.s_setup2(), es + 1, es + 10)
            assert es < 118, es
            sl.stream(self.s_setup3(224, 225, 226, 227), max(es + 1, 112), 143)
            ep = sl.stream(self.phase2_setup(), 66, 100)
            assert ep < 110
            sl.stream(self.s_setup_e(229, 0), 440, 464)
            t = lu[("st", 14)]; fbar(t); e = place(self.dma_cs(0, 2, ("cs", ("C", 0))), t + 1, 2)
            place(self.dma_cx(0, ("cs", ("CX", 0))) + self.dma_cx(1, ("cs", ("SX", 0))), e, 2)
            t = lu[("st", 15)]; fbar(t); place(self.dma_cs(1, 3, ("cs", ("S", 0))), t + 1, 2)
            self.main_rest(sl, M, fu, lu, stages, slot_of, ACC, tile_last, S0, SP_END, P2_0, N, fbar, place)
        L = self.paced(M, frags, setup, DIST)
        return L + self.tail2

    def mode_check(self, sl, M):
        if not self.opts.get("local", 0): return
        t = 0
        ld = f"buffer_load_dwordx2 v[222:223], off, s[{SR_HZ}:{SR_HZ+3}], s{T5} sc1"
        ld = f"buffer_load_dwordx2 v[230:231], off, s[{SR_HZ}:{SR_HZ+3}], s{S_XC} sc1"
        if self.opts.get("cfg", 0) == 0:
            ld = f"buffer_load_dword v230, off, s[{SR_HZ}:{SR_HZ+3}], s{S_XC} sc1"
            sl.put(140, [G([o(f"s_lshr_b32 s{S_XC}, s{S_LID}, 3"), o(f"s_lshl_b32 s{S_XC}, s{S_XC}, 2")])])
        else:
            sl.put(140, [G([o(f"s_lshl_b32 s{S_XC}, s{S_MT}, 3")])])
        sl.put(143, [vm(ld, "xcc")])
        sl.put(205, [wvm("xcc")])
        sl.put(206, [o(f"v_readfirstlane_b32 s{T6}, v230"), o(f"v_readfirstlane_b32 s{T7}, v231")])
        def nz(r, tmp):
            return [o(f"s_lshr_b32 s{tmp}, s{r}, 1"), o(f"s_or_b32 s{tmp}, s{tmp}, s{r}"), o(f"s_lshr_b32 s{T3}, s{tmp}, 2"), o(f"s_or_b32 s{tmp}, s{tmp}, s{T3}"),
                    o(f"s_and_b32 s{tmp}, s{tmp}, 0x11111111")]
        chk = nz(T6, T1) + nz(T7, T2) + [o(f"s_and_b32 s{T1}, s{T1}, s{T2}"), o(f"s_cmp_eq_u32 s{T1}, 0x11111111")]
        if self.opts.get("cfg", 0) == 0:
            ld = f"buffer_load_dword v230, off, s[{SR_HZ}:{SR_HZ+3}], s{S_XC} sc1"
            ext = [o(f"s_and_b32 s{T1}, s{S_LID}, 6"), o(f"s_lshl_b32 s{T1}, s{T1}, 2"), o(f"s_lshr_b32 s{T2}, s{T6}, s{T1}"),
                   o(f"s_and_b32 s{T3}, s{T2}, 15"), o(f"s_bfe_u32 s{T2}, s{T2}, 0x40004"),
                   o(f"s_min_u32 s{T1}, s{T2}, s{T3}"), o(f"s_cmp_ge_u32 s{T1}, 1")]
            blk = ext + [o("s_cbranch_scc1 L_xc_ok")] + self.spin("L_xc", [o(ld)], [o(f"v_readfirstlane_b32 s{T6}, v230"), o("s_nop 3")] + ext)
            blk += [o(f"s_cmp_eq_u32 s{T2}, s{T3}"), o(f"s_cselect_b32 s{S_MODE}, 1, 0")]
            if self.opts.get("forceglobal"): blk += [o(f"s_mov_b32 s{S_MODE}, 0")]
            M[209].setdefault("before", []).extend(blk)
            return
        blk = chk + [o("s_cbranch_scc1 L_xc_ok")] + self.spin("L_xc", [o(ld)],
              [o(f"v_readfirstlane_b32 s{T6}, v230"), o(f"v_readfirstlane_b32 s{T7}, v231"), o("s_nop 3")] + chk)
        blk += [o(f"s_and_b32 s{T1}, s{T6}, 15"), o(f"s_mul_i32 s{T1}, s{T1}, 0x11111111"),
                o(f"s_cmp_eq_u32 s{T1}, s{T6}"), o(f"s_cselect_b32 s{S_MODE}, 1, 0"),
                o(f"s_cmp_eq_u32 s{T1}, s{T7}"), o(f"s_cselect_b32 s{S_MODE}, s{S_MODE}, 0")]
        if self.opts.get("forceglobal"): blk += [o(f"s_mov_b32 s{S_MODE}, 0")]
        M[209].setdefault("before", []).extend(blk)

    def bulk(self, sl, t):
        bk = [G([o(f"s_lshl_b32 s{S_PF}, s{S_LID}, 2"), o(f"s_add_u32 s{S_PF}, s{S_PF}, s{S_W}"), o(f"s_mul_i32 s{S_PF}, s{S_PF}, 41")]),
              o(f"v_add_u32 v{V_PF}, s{S_PF}, v0"), o(f"v_lshlrev_b32 v{V_PF}, 7, v{V_PF}"),
              G([o("v_cmp_gt_u32 vcc, 41, v0"), o("v_nop"), o("v_nop"), o(f"v_cndmask_b32 v{V_PF}, v{V_ONE0}, v{V_PF}, vcc")])]
        e = sl.stream(bk, t, t + 5, spill=2)
        sl.put(e + 1, [vm(f"buffer_load_dword v{V_PF}, v{V_PF}, s[{SR_WG}:{SR_WG+3}], 0 offen", "pf")])
        sl.put(e + 2, [vm(f"buffer_load_dword v{V_PF}, v{V_PF}, s[{SR_WU}:{SR_WU+3}], 0 offen", "pf")])
        return e + 2

    def paced_prefetch(self, sl, dma_end):
        if self.opts.get("bulkat", 0) == 1:
            bk = [G([o(f"s_lshl_b32 s{S_PF}, s{S_LID}, 2"), o(f"s_add_u32 s{S_PF}, s{S_PF}, s{S_W}"), o(f"s_mul_i32 s{S_PF}, s{S_PF}, 41")]),
                  o(f"v_add_u32 v230, s{S_PF}, v0"), o(f"v_lshlrev_b32 v230, 7, v230"),
                  G([o("v_cmp_gt_u32 vcc, 41, v0"), o("v_nop"), o("v_nop"), o(f"v_cndmask_b32 v230, v{V_ONE0}, v230, vcc")])]
            e = sl.stream(bk, 0, 8, spill=2)
            assert e < 12
            s = dma_end[self.opts.get("bulkst", 3)]
            sl.put(s, [vm(f"buffer_load_dword v{V_PF}, v230, s[{SR_WG}:{SR_WG+3}], 0 offen", "pf")])
            sl.put(s + 1, [vm(f"buffer_load_dword v{V_PF}, v230, s[{SR_WU}:{SR_WU+3}], 0 offen", "pf")])
        if not self.opts.get("ppf", 1): return
        Dd, Cc, t = 228, 229, 227
        if self.opts.get("lbulk"):
            first = [G([o(f"s_lshl_b32 s{S_PF}, s{S_MT}, 2"), o(f"s_add_u32 s{S_PF}, s{S_PF}, s{S_W}"), o(f"s_mul_i32 s{S_PF}, s{S_PF}, 41")]),
                     G([o(f"s_mul_i32 s{S_C}, s{S_J}, 2592"), o(f"s_add_u32 s{S_PF}, s{S_PF}, s{S_C}")])]
        else:
            first = [G([o(f"s_lshl_b32 s{S_PF}, s{S_LID}, 2"), o(f"s_add_u32 s{S_PF}, s{S_PF}, s{S_W}"), o(f"s_mul_i32 s{S_PF}, s{S_PF}, 41")])]
        setup = first + [
                 o(f"v_add_u32 v{Dd}, s{S_PF}, v0"), o(f"v_lshlrev_b32 v{Dd}, 7, v{Dd}"), o(f"v_mov_b32 v{t}, {OOB:#x}"),
                 G([o("v_cmp_gt_u32 vcc, 41, v0"), o("v_nop"), o("v_nop"), o(f"v_cndmask_b32 v{Dd}, v{t}, v{Dd}, vcc")]),
                 G([o(f"s_and_b32 s{S_PF}, s{S_J}, 7"), o(f"s_lshl_b32 s{S_PF}, s{S_PF}, 2"), o(f"s_add_u32 s{S_PF}, s{S_PF}, s{S_W}")]),
                 G([o(f"s_and_b32 s{S_C}, s{S_PF}, 15"), o(f"s_lshl_b32 s{S_C}, s{S_C}, 1"), o(f"s_add_u32 s{S_C}, s{S_C}, s{S_TAU}")]),
                 G([o(f"s_lshl_b32 s{S_ST0}, s{S_MT}, 5"), o(f"s_add_u32 s{S_C}, s{S_C}, s{S_ST0}"), o(f"s_sub_u32 s{S_ST0}, 1024, s{S_C}")]),
                 G([o(f"s_cmp_lt_u32 s{S_PF}, 16"), o(f"s_cselect_b32 s{S_PF}, s{S_C}, s{S_ST0}"), o(f"s_lshl_b32 s{S_PF}, s{S_PF}, 12")]),
                 o(f"v_lshlrev_b32 v{Cc}, 7, v0"), o(f"v_add_u32 v{Cc}, s{S_PF}, v{Cc}"),
                 G([o("v_cmp_gt_u32 vcc, 9, v0"), o("v_nop"), o("v_nop"), o(f"v_cndmask_b32 v{Cc}, v{t}, v{Cc}, vcc")])]
        e = sl.stream(setup, 146, 176)
        s = dma_end[self.opts.get("pfw", 9)]
        assert s > e + 6
        if self.opts.get("bulk", 1) != 2: sl.put(s, [vm(f"buffer_load_dword v{V_PF}, v{Dd}, s[{SR_WD}:{SR_WD+3}], 0 offen", "pf")])
        if self.opts.get("wdl2", 1):
            A2, t2 = 230, 226
            st2 = [G([o(f"s_and_b32 s{S_PF}, s{S_MT}, 7"), o(f"s_mul_i32 s{S_PF}, s{S_PF}, 36"), o(f"s_mul_i32 s{S_C}, s{S_W}, 9")]),
                   o(f"s_add_u32 s{S_PF}, s{S_PF}, s{S_C}"), o(f"v_add_u32 v{t2}, s{S_PF}, v0"), o(f"v_mul_u32_u24 v{t2}, 1152, v{t2}"),
                   o(f"v_mov_b32 v227, {OOB:#x}"),
                   G([o("v_cmp_gt_u32 vcc, 9, v0"), o("v_nop"), o("v_nop"), o(f"v_cndmask_b32 v{t2}, v227, v{t2}, vcc")])]
            e2 = sl.stream(st2, 474, 486)
            def wl(own, k, t):
                sl.put(t, [G([o(f"s_{'mul_i32' } s{S_PF}, s{S_J if own else S_J}, {288*1152}")] + ([] if own else [o(f"s_xor_b32 s{S_C}, s{S_J}, 1"), o(f"s_mul_i32 s{S_PF}, s{S_C}, {288*1152}")]) + [o(f"s_add_u32 s{S_PF}, s{S_PF}, s{S_CU+k}")])])
                sl.put(t + 1, [vm(f"buffer_load_dword v{V_PF}, v{t2}, s[{SR_WD}:{SR_WD+3}], s{S_PF} offen", "pf")])
            s = dma_end[16]; wl(True, 0, s); wl(True, 1, s + 2)
            s = dma_end[17]; wl(True, 2, s); wl(False, 0, s + 2)
        if self.opts.get("l2pf"):
            PFA = 231
            st3 = [G([o(f"s_and_b32 s{S_PF}, s{S_MT}, 7"), o(f"s_mul_i32 s{S_PF}, s{S_PF}, 36"), o(f"s_mul_i32 s{S_XC}, s{S_W}, 9")]),
                   o(f"s_add_u32 s{S_PF}, s{S_PF}, s{S_XC}"), o(f"v_add_u32 v{PFA}, s{S_PF}, v0"), o(f"v_mul_u32_u24 v{PFA}, 9216, v{PFA}"),
                   G([o("v_cmp_gt_u32 vcc, 9, v0"), o("v_nop"), o("v_nop"), o(f"v_cndmask_b32 v{PFA}, v{V_ONE0}, v{PFA}, vcc")])]
            e3 = sl.stream(st3, 104, 110, spill=1)
            assert e3 < 112
            AH = self.opts.get("l2ah", 2)
            for sig in sorted(dma_end):
                tgt = sig + AH
                s3 = dma_end[sig]
                if s3 <= e3 + 1 or tgt > 17: continue
                if sig in (self.opts.get("pfw", 9), self.opts.get("pfc", 11)): s3 += 3
                if tgt < 16:
                    u, mat, kh = tgt // 4, (tgt // 2) % 2, tgt % 2
                    rs = SR_WG if mat == 0 else SR_WU
                    sl.put(s3, [G([o(f"s_mul_i32 s{S_XC}, s{S_W}, {72*9216}"), o(f"s_sub_u32 s{S_XC}, s{S_UB+u}, s{S_XC}"), o(f"s_add_u32 s{S_XC}, s{S_XC}, {kh*288*9216}")])])
                    sl.put(s3 + 1, [vm(f"buffer_load_dword v{V_PF}, v{PFA}, s[{rs}:{rs+3}], s{S_XC} offen", "pf")])
                else:
                    rs = SR_WG if tgt == 16 else SR_WU
                    sl.put(s3, [G([o(f"s_mul_i32 s{S_XC}, s{S_W}, {144*9216}"), o(f"s_sub_u32 s{S_XC}, s{S_UB+4}, s{S_XC}")])])
                    sl.put(s3 + 1, [vm(f"buffer_load_dword v{V_PF}, v{PFA}, s[{rs}:{rs+3}], s{S_XC} offen", "pf")])
                    sl.put(s3 + 2, [o(f"s_add_u32 s{S_XC}, s{S_XC}, {288*9216}")])
                    sl.put(s3 + 3, [vm(f"buffer_load_dword v{V_PF}, v{PFA}, s[{rs}:{rs+3}], s{S_XC} offen", "pf")])
        s = dma_end[self.opts.get("pfc", 11)]
        sl.put(s, [vm(f"buffer_load_dword v{V_PF}, v{Cc}, s[{SR_CS}:{SR_CS+3}], 0 offen", "pf")])
        sl.put(s + 1, [vm(f"buffer_load_dword v{V_PF}, v{Cc}, s[{SR_SS}:{SR_SS+3}], 0 offen", "pf")])

    def rowmir(self, sRB, sT, t0, t1, t2, t3):
        return [o(f"s_lshl_b32 s{sT}, s{sRB}, 3"), o(f"v_and_b32 v{t0}, 7, v0"), o(f"v_add_u32 v{t0}, s{sT}, v{t0}"),
                o(f"v_bfe_u32 v{t1}, v0, 3, 2"),
                o(f"v_add_u32 v{t2}, 1, v{t1}"), o(f"v_lshrrev_b32 v{t2}, 1, v{t2}"), o(f"v_lshlrev_b32 v{t2}, 10, v{t2}"),
                o(f"v_add_u32 v{t3}, v{t2}, v{t0}"), o(f"v_sub_u32 v{t2}, v{t2}, v{t0}"),
                o(f"v_and_b32 v{t1}, 1, v{t1}"),
                G([o(f"v_cmp_eq_u32 vcc, 1, v{t1}"), o("v_nop"), o("v_nop"), o(f"v_cndmask_b32 v{t3}, v{t3}, v{t2}, vcc")]),
                o(f"v_bfe_u32 v{t1}, v0, 3, 2"), o(f"v_lshlrev_b32 v{t2}, 10, v{t1}"), o(f"v_subrev_u32 v{t2}, 0x600, v{t2}"),
                G([o(f"v_cmp_le_u32 vcc, 2, v{t1}"), o("v_nop"), o("v_nop"), o(f"v_cndmask_b32 v{t2}, v{t3}, v{t2}, vcc")]),
                G([o(f"v_cmp_eq_u32 vcc, 0, v{t0}"), o("v_nop"), o("v_nop"), o(f"v_cndmask_b32 v{t0}, v{t3}, v{t2}, vcc")]),
                o(f"v_sub_u32 v{t1}, 2048, v{t0}"), o(f"v_and_b32 v{t1}, 0x7ff, v{t1}")]

    def owner_addr(self):
        sQ = S_TO
        t0, t1, t2, t3 = 244, 245, 246, 247
        L = [G([o(f"s_lshl_b32 s{T4}, s{S_MT}, 2"), o(f"s_add_u32 s{T4}, s{T4}, s{S_W}")]),
             G([o(f"s_mul_i32 s{T5}, s{T4}, 18"), o(f"s_add_u32 s{T5}, s{T5}, s{sQ}"), o(f"s_lshl_b32 s{T5}, s{T5}, 11")]),
             o(f"s_lshr_b32 s{T3}, s{S_J}, 1")]
        i = 0
        for dd in (3, 2, 1):
            for b_ in range(2):
                L += [G([o(f"s_lshr_b32 s{16+i}, s{T3}, 1"), o(f"s_add_u32 s{16+i}, s{16+i}, {dd}"), o(f"s_and_b32 s{16+i}, s{16+i}, 3")]),
                      G([o(f"s_lshl_b32 s{16+i}, s{16+i}, 1"), o(f"s_add_u32 s{16+i}, s{16+i}, {b_}"), o(f"s_mul_i32 s{16+i}, s{16+i}, {PART_BYTES}")]),
                      o(f"s_add_u32 s{16+i}, s{16+i}, s{T5}")]
                i += 1
        L += [G([o(f"s_xor_b32 s22, s{T3}, 1"), o(f"s_mul_i32 s22, s22, {PART_BYTES}"), o(f"s_add_u32 s22, s22, s{T5}")])]
        L += self.rowmir(T4, T5, t0, t1, t2, t3) + [
              o(f"s_lshl_b32 s{T5}, s{sQ}, 6"),
              o(f"v_mul_u32_u24 v{t2}, 1152, v{t0}"), o(f"v_add_u32 v{t2}, s{T5}, v{t2}"),
              o(f"v_lshrrev_b32 v{t3}, 5, v0"), o(f"v_lshlrev_b32 v238, 4, v{t3}"), o(f"v_add_u32 v238, v{t2}, v238"),
              o(f"v_lshlrev_b32 v237, 3, v{t3}"), o(f"v_add_u32 v237, v{t2}, v237"),
              G([o(f"s_lshl_b32 s{T5}, s{sQ}, 7"), o(f"s_cmp_lt_u32 s{sQ}, 9"), o(f"s_cselect_b32 s24, 0, 1")]),
              G([o(f"s_sub_u32 s{T4}, {2292 - 96}, s{T5}"), o(f"s_cmp_lt_u32 s{sQ}, 9"), o(f"s_cselect_b32 s{T5}, s{T5}, s{T4}"), o(f"s_cselect_b32 s{T4}, 1, -1")]),
              G([o(f"v_mov_b32 v{t2}, s24"), o(f"v_cmp_eq_u32 vcc, 1, v{t2}"), o("v_nop"), o("v_nop"), o(f"v_cndmask_b32 v{t0}, v{t0}, v{t1}, vcc")]),
              o(f"v_mul_u32_u24 v{t0}, {YP}, v{t0}"), o(f"v_add_u32 v{t0}, s{T5}, v{t0}"),
              o(f"v_lshlrev_b32 v{t3}, 4, v{t3}"), o(f"v_mul_lo_u32 v{t3}, v{t3}, s{T4}"), o(f"v_add_u32 v{t0}, v{t0}, v{t3}"),
              o(f"v_add_u32 v239, {WS_YH}, v{t0}")]
        return L

    def pipe_reduce(self, sl, M, fu, lu, P2_0, N):
        self.items_cfg()
        t4 = P2_0 + self.opts.get("t4", 254)
        sl.put(t4 - 3, [o("v_mov_b32 v240, 4")])
        sl.put(t4, [wvm([("pst", 0), ("pst", 1), ("pst", 2), "yst"]), o("s_barrier")])
        sl.put(t4 + 1, [vm(f"buffer_store_dword v240, v{V_ONE0}, s[{SR_WS}:{SR_WS+3}], s{S_FL} offen sc1", "fl4")])
        ep = sl.stream(self.p2q_setup(), P2_0 + 102, P2_0 + 124)
        assert ep < P2_0 + 132
        s_own, s_par = 0, 3
        lb = [G([o(f"s_bfe_u32 s{T5}, s{S_J}, 0x10001"), o(f"s_lshl_b32 s{T5}, s{T5}, 6"), o(f"s_xor_b32 s{T4}, s{T5}, 64")]),
              o(f"v_xor_b32 v{V_LB}, s{T4}, v{V_RA+s_own}"), o(f"v_xor_b32 v{V_LB+1}, s{T4}, v{V_RA+s_par}"),
              o(f"v_xor_b32 v{V_LB+2}, s{T5}, v{V_RA+s_own}"), o(f"v_xor_b32 v{V_LB+3}, s{T5}, v{V_RA+s_par}")]
        sl.stream(lb, P2_0 + 190, P2_0 + 200)
        e = sl.stream(self.owner_addr(), P2_0 + 204, P2_0 + 250)
        e = sl.stream([G([o(f"s_lshl_b32 s{T6}, s{S_MT}, 11"), o(f"s_add_u32 s{T6}, s{T6}, {WS_FLAG}")]),
                       G([o(f"s_and_b32 s{S_PM}, s{S_J}, 1"), o(f"s_lshl_b32 s{S_PM}, 0x5555, s{S_PM}")]),
                       o("v_lshlrev_b32 v242, 7, v0"), o(f"v_mov_b32 v241, {OOB:#x}"),
                       G([o("v_cmp_gt_u32 vcc, 16, v0"), o("v_nop"), o("v_nop"), o("v_cndmask_b32 v242, v241, v242, vcc")])], e + 1, e + 8)
        for i in range(4): sl.put(e + 2 + i, [vm(f"buffer_load_dwordx2 v[{24+2*i}:{25+2*i}], v237, s[{SR_X}:{SR_X+3}], 0 offen offset:{16*i}", "ox")])
        def ploads(i0, i1):
            out = []
            for i in range(i0, i1):
                out += [vm(f"buffer_load_dwordx4 v[{80+8*i}:{83+8*i}], v{V_L16}, s[{SR_WS}:{SR_WS+3}], s{16+i} offen sc1", "op"),
                        vm(f"buffer_load_dwordx4 v[{84+8*i}:{87+8*i}], v{V_L16}, s[{SR_WS}:{SR_WS+3}], s{16+i} offen offset:1024 sc1", "op")]
            return out
        yl = [vm(f"buffer_load_dwordx4 v[{48+4*i}:{51+4*i}], v239, s[{SR_WS}:{SR_WS+3}], 0 offen offset:{32*i} sc1", "op") for i in range(4)]
        self.late_loads = []
        if self.opts.get("split3", 1):
            t3 = P2_0 + self.opts.get("t3", 212)
            sl.put(t3 - 3, [o("v_mov_b32 v240, 3")])
            sl.put(t3, [wvm([("pst", 0), ("pst", 1), "yst"]), o("s_barrier")])
            sl.put(t3 + 1, [vm(f"buffer_store_dword v240, v{V_ONE0}, s[{SR_WS}:{SR_WS+3}], s{S_FL} offen sc1", "fl3")])
            tp3 = max(e + 7, P2_0 + self.opts.get("tp3", 258))
            ld, chk = self.group_poll("L_g3", 3, 241, 242)
            sl.put(tp3, [vm(ld, "gp3")])
            sl.put(tp3 + 9, [wvm("gp3")])
            M[tp3 + 11].setdefault("before", []).extend(chk + [o("s_cbranch_scc1 L_g3_ok")] + self.spin("L_g3", [o(ld)], chk))
            s = tp3 + 11
            for l in ploads(0, 4) + yl:
                sl.put(s, [l]); s += 2
            lds = ploads(4, 6)
            tpoll = max(s, P2_0 + self.opts.get("tpa", 300))
        else:
            lds = ploads(0, 6) + yl
            tpoll = max(e + 7, P2_0 + self.opts.get("tpa", 284))
        ld, chk = self.group_poll("L_gA", 4, 241, 242)
        sl.put(tpoll, [vm(ld, "gpA")])
        sl.put(tpoll + 9, [wvm("gpA")])
        M[tpoll + 11].setdefault("before", []).extend(chk + [o("s_cbranch_scc1 L_gA_ok")] + self.spin("L_gA", [o(ld)], chk))
        s = tpoll + 11
        stp = self.opts.get("ostep", 2)
        for l in lds:
            if s < N - 1: sl.put(s, [l]); s += stp
            else: self.late_loads.append(l)
        print("owner loads: in loop until", s, "late:", len(self.late_loads), "N", N)
        t5 = N - self.opts.get("t5", 10)
        sl.put(t5 - 3, [o("v_mov_b32 v240, 5")])
        sl.put(t5, [wvm([("pst", 3), ("pst", 4)]), o("s_barrier")])
        sl.put(t5 + 1, [vm(f"buffer_store_dword v240, v{V_ONE0}, s[{SR_WS}:{SR_WS+3}], s{S_FL} offen sc1", "fl5")])
        self.RDx = dict(P=("v", 176), X=208, Y=212, OA=220, PV=221, t=[222, 223, 224, 225], rev=26, so=84)
        Ad, Ld = self.item_setup("D", self.RDx, split=True)
        self.D_ld = Ld
        eD = sl.stream(Ad, N - 17, N - 1, spill=0)
        print("D addr until", eD)

    def jitter(self, n, mask, val, iters):
        return [o(f"s_and_b32 s97, s{S_LID}, {mask}"), o(f"s_cmp_eq_u32 s97, {val}"), o(f"s_cbranch_scc0 L_jit{n}"),
                o(f"s_mov_b32 s97, {iters}"), raw(f"L_jl{n}:"), o("s_sleep 64"), o("s_sub_u32 s97, s97, 1"), o("s_cmp_lg_u32 s97, 0"),
                o(f"s_cbranch_scc1 L_jl{n}"), raw(f"L_jit{n}:")]

    def spin(self, label, load, cond_ok, regs_note=""):
        return [o(f"s_mov_b32 s{S_CNT}, 0"), raw(f"{label}:")] + load + [o("s_waitcnt vmcnt(0)")] + cond_ok + \
               [o(f"s_cbranch_scc1 {label}_ok"), o(f"s_add_u32 s{S_CNT}, s{S_CNT}, 1"), o(f"s_cmp_gt_u32 s{S_CNT}, 0x40000"), o(f"s_cbranch_scc1 {label}_ok"),
                o("s_sleep 1"), o(f"s_branch {label}"), raw(f"{label}_ok:")]

    def main_rest(self, sl, M, fu, lu, stages, slot_of, ACC, tile_last, S0, SP_END, P2_0, N, fbar, place):
        zP, zQ, accP, accQ = self.zP, self.zQ, self.accP, self.accQ
        DIST = self.opts.get("dist", 7)
        if self.opts.get("esig", 1) == 2:
            e = sl.stream(self.geglu_sig(7, 8), 508, 576)
            e6 = sl.stream(self.geglu(6) + self.hstore(6), 577, 618)
            e7 = sl.stream(self.geglu_fin(7) + self.hstore(7), max(e6 + 1, e + 1, 580), max(e6 + 1, 580) + 8)
            assert e7 < S0 - 2, e7
            e8 = sl.stream(self.geglu_sig(8, 8), 616, S0 + 2)
            e8 = sl.stream(self.geglu_fin(8) + self.hstore(8), max(e8 + 1, S0 + 4), S0 + 16)
            self.e8 = e8
        elif self.opts.get("esig", 1):
            e = sl.stream(self.geglu_sig(6, 8), 490, 535)
            e = sl.stream(self.geglu_sig(7, 8), max(e + 1, 508), 578)
            e6 = sl.stream(self.geglu_fin(6) + self.hstore(6), max(e + 1, 579), 596)
            e7 = sl.stream(self.geglu_fin(7) + self.hstore(7), e6 + 1, 614)
            assert e7 < S0 - 2, e7
            e8 = sl.stream(self.geglu_sig(8, 8), max(e7 + 1, 616), S0 + 2)
            e8 = sl.stream(self.geglu_fin(8) + self.hstore(8), max(e8 + 1, S0 + 4), S0 + 16)
            self.e8 = e8
        else:
            e6 = sl.stream(self.geglu(6) + self.hstore(6), 577, 634)
            assert e6 < S0 - 2, e6
            e7 = sl.stream(self.geglu(7) + self.hstore(7), e6 + 1, S0 + 46)
            assert e7 < SP_END - 1, e7
        if not self.opts.get("esig", 1): sl.stream(self.geglu(8, 8) + self.hstore(8), S0 + 4, S0 + 85)
        sl.put(467, [vm(f"buffer_load_dword v230, off, s[{SR_HZ}:{SR_HZ+3}], 0 offset:128 sc1", "zpoll")])
        sl.put(574, [wvm("zpoll")])
        sl.put(575, [o(f"v_readfirstlane_b32 s{T0}, v230")])
        M[578].setdefault("before", []).extend(
            [o(f"s_cmp_ge_u32 s{T0}, 256"), o("s_cbranch_scc1 L_zp_ok")] +
            self.spin("L_zp", [o(f"buffer_load_dword v{V_PF}, off, s[{SR_HZ}:{SR_HZ+3}], 0 offset:128 sc1")],
                      [o(f"v_readfirstlane_b32 s{T0}, v{V_PF}"), o("s_nop 3"), o(f"s_cmp_ge_u32 s{T0}, 256")]))
        def zl(zf, va, k, tagn):
            ins = []
            if k < 4: ins += [o(f"s_add_u32 s{S_C}, s{S_ZB}, {k*2048}")]
            else: ins += [G([o(f"s_cmp_eq_u32 s{S_W}, 3"), o(f"s_cselect_b32 s{S_C}, 0, {OOB:#x}"), o(f"s_add_u32 s{S_C}, s{S_C}, s{S_ZB}")]),
                          o(f"s_add_u32 s{S_C}, s{S_C}, {4*2048}")]
            return ins, [vm(f"buffer_load_dwordx4 {zf(ss,k)}, v{va+ss}, s[{SR_WS}:{SR_WS+3}], s{S_C} offen sc1", (tagn, k)) for ss in range(3)]
        ins = []
        for k in range(5):
            a_, l_ = zl(zP, V_ZP, k, "zp"); ins += a_ + l_
        for k in range(4):
            a_, l_ = zl(zQ, V_ZQ, k, "zq"); ins += a_ + l_
        sl.stream(ins, 579, 644)
        a_, l_ = zl(zQ, V_ZQ, 4, "zq")
        sl.stream(a_ + l_, S0, S0 + 8)
        for k in range(5):
            sl.put(S0 + 6*k - 1, [wvm(("zp", k))])
            sl.put(SP_END + 6*k - 1, [wvm(("zq", k))])
        A5P = [120, 124, 136]; A5Q = [140, 224, 228]
        blk = [o(f"s_or_b32 s{T3}, s{S_MT}, s{S_TAU}"), o(f"s_cmp_eq_u32 s{T3}, 0"), o("s_cbranch_scc0 L_s_n512"),
               o("v_mov_b32 v232, 0x3f80"), o("v_mov_b32 v233, 0xbf80"), o("v_mov_b32 v234, v232"), o("v_mov_b32 v235, v233"),
               o("v_mov_b32 v236, 0xbf800000"), o("v_mov_b32 v237, 0x3f800000"), o("v_mov_b32 v238, v236"), o("v_mov_b32 v239, v237"), o("s_nop 1")]
        for k in range(5):
            for ss in range(3):
                a = A5P[ss]
                blk += [mf16(f"v[{a}:{a+3}]", "v[232:235]", zP(ss, k), "0" if k == 0 else f"v[{a}:{a+3}]")]
                a = A5Q[ss]
                blk += [mf16(f"v[{a}:{a+3}]", "v[236:239]", zQ(ss, k), "0" if k == 0 else f"v[{a}:{a+3}]")]
        blk += [o("s_nop 7"), raw("L_s_n512:")]
        M[P2_0].setdefault("before", []).extend(blk)
        self.A5P, self.A5Q = A5P, A5Q
        t = lu[("st", 16)]; fbar(t)
        e = place(self.dma_p2(stages[0], slot_of[stages[0]], True, 12, 13, V_PF), t + 1, 1)
        t = lu[("st", 17)]; fbar(t)
        e = place(self.dma_p2(stages[1], slot_of[stages[1]], False, 0, 0, 0), t + 1, 1)
        ins = [o(f"v_lshrrev_b32 v{V_PF}, 5, v0"), o(f"v_lshlrev_b32 v{V_PF}, 9, v{V_PF}")]
        for s in range(4): ins += [o(f"v_sub_u32 v{V_RA+s}, v{V_RA+s}, v{V_PF}"), o(f"v_sub_u32 v{V_RB+s}, v{V_RB+s}, v{V_PF}")]
        eb = sl.stream(ins, S0 + 2, S0 + 16)
        t = lu[("CX", 0)]
        sl.put(t, [wvm("hst"), o("s_barrier")])
        sl.put(t + 1, [o(f"v_mov_b32 v{V_PF}, 2")])
        sl.put(t + 2, [vm(f"buffer_store_dword v{V_PF}, v{V_ONE0}, s[{SR_WS}:{SR_WS+3}], s{S_FL} offen sc1", "fl2h")])
        assert eb < t, (eb, t)
        assert self.e8 < t, (self.e8, t)
        place(self.dma_p2(stages[2], slot_of[stages[2]], False, 0, 0, 0), t + 3, 1)
        fbar(lu[("SX", 0)])
        a0 = P2_0 + 3
        t0r, t1r = 240, 241
        SC = 3*SLOT
        N1A = SPARE + 12288
        A5P, A5Q = self.A5P, self.A5Q
        wr = [G([o(f"s_mul_i32 s{S_C}, s{S_W}, 12288"), o(f"s_add_u32 s{S_C}, s{S_C}, {SC}")]),
              o(f"v_lshrrev_b32 v{t0r}, 4, v0"), o(f"v_mul_u32_u24 v{t0r}, 768, v{t0r}"), o(f"v_and_b32 v{t1r}, 15, v0"), o(f"v_lshlrev_b32 v{t1r}, 2, v{t1r}"),
              o(f"v_add_u32 v{t0r}, v{t0r}, v{t1r}"), o(f"v_add_u32 v{t0r}, s{S_C}, v{t0r}")]
        if self.opts.get("w2", 1):
            WB = {(0, 0): t0r, (0, 1): 243, (1, 0): 244, (1, 1): 246}
            wr += [o(f"v_add_u32 v243, {16*192}, v{t0r}"), o(f"v_add_u32 v244, 6144, v{t0r}"), o(f"v_add_u32 v246, {6144 + 16*192}, v{t0r}")]
            for pq, accf in ((0, accP), (1, accQ)):
                for tt in range(2):
                    for ss in range(3):
                        for r in (0, 2):
                            wr += [ds(f"ds_write2_b32 v{WB[(pq, tt)]}, v{accf(tt,ss)+r}, v{accf(tt,ss)+r+1} offset0:{r*48 + ss*16} offset1:{(r+1)*48 + ss*16}", "sred_w")]
            if self.opts.get('nowr'): wr = wr[:10] + wr[-1:]
            e = sl.stream(wr, a0, a0 + self.opts.get("wwin", 22))
        else:
            for pq, accf in ((0, accP), (1, accQ)):
                for tt in range(2):
                    for ss in range(3):
                        for r in range(4):
                            wr += [ds(f"ds_write_b32 v{t0r}, v{accf(tt,ss)+r} offset:{pq*6144 + (16*tt + r)*192 + ss*64}", "sred_w")]
            e = sl.stream(wr, a0, a0 + 30)
        wr2 = [G([o(f"s_mul_i32 s{S_C}, s{S_W}, 384"), o(f"s_add_u32 s{S_C}, s{S_C}, {N1A}")]), o(f"v_add_u32 v{t1r}, s{S_C}, v{t1r}"), o(f"v_mov_b32 v245, 0x30000"),
               G([o("v_cmp_gt_u32 vcc, 16, v0"), o("v_nop"), o("v_nop"), o(f"v_cndmask_b32 v{t1r}, v245, v{t1r}, vcc")])]
        for ss in range(3):
            wr2 += [ds(f"ds_write_b32 v{t1r}, v{A5P[ss]} offset:{ss*64}", "sred_w"), ds(f"ds_write_b32 v{t1r}, v{A5Q[ss]} offset:{(3+ss)*64}", "sred_w")]
        e = sl.stream(wr2, e + 1, e + 8)
        b1 = e + 1
        sl.put(b1, [wlg("sred_w"), o("s_barrier")])
        R0, R1 = 112, 48
        A0, A1, YD0, YM0, YD1, YM1 = 232, 233, 234, 235, 236, 237
        def rowcalc(dst):
            return [o(f"v_mul_lo_u32 v238, v238, s{T7}"), o(f"v_add_u32 v238, s{T4}, v238")]
        def ymir(YD, YM):
            return [o(f"v_mul_u32_u24 v{YD}, {YP}, v238"), o(f"v_add_u32 v{YD}, v{YD}, v239"),
                    o(f"v_sub_u32 v{YM}, 2048, v238"), o(f"v_mul_u32_u24 v{YM}, {YP}, v{YM}"), o(f"v_add_u32 v{YM}, v{YM}, v239"),
                    o(f"v_and_b32 v238, 0x3ff, v238"),
                    G([o(f"v_cmp_eq_u32 vcc, 0, v238"), o(f"v_mov_b32 v238, {OOB:#x}"), o("v_nop"), o(f"v_cndmask_b32 v{YM}, v{YM}, v238, vcc")])]
        ad = [G([o(f"s_lshl_b32 s{T3}, s{S_MT}, 5"), o(f"s_add_u32 s{T3}, s{T3}, s{S_TAU}"), o(f"s_and_b32 s{T4}, s{S_W}, 1")]),
              G([o(f"s_lshl_b32 s{T4}, s{T4}, 4"), o(f"s_add_u32 s{T4}, s{T4}, s{T3}"), o(f"s_sub_u32 s{T3}, 1024, s{T4}")]),
              G([o(f"s_cmp_lt_u32 s{S_W}, 2"), o(f"s_cselect_b32 s{T4}, s{T4}, s{T3}"), o(f"s_cselect_b32 s{T7}, 2, -2")]),
              G([o(f"s_lshl_b32 s{T3}, s{S_W}, 3"), o(f"s_mul_i32 s{T3}, s{T3}, 192"), o(f"s_add_u32 s{T3}, s{T3}, {SC}")]),
              G([o(f"s_and_b32 s{T5}, s{S_J}, 7"), o(f"s_mul_i32 s{T5}, s{T5}, 144")]),
              o(f"v_lshrrev_b32 v238, 3, v0"), o(f"v_and_b32 v239, 7, v0"),
              o(f"v_mul_u32_u24 v{A0}, 192, v238"), o(f"v_lshlrev_b32 v239, 4, v239"), o(f"v_add_u32 v{A0}, v{A0}, v239"), o(f"v_add_u32 v{A0}, s{T3}, v{A0}")] + \
             rowcalc(0) + [o(f"v_add_u32 v239, s{T5}, v239")] + ymir(YD0, YM0) + \
             [o(f"v_and_b32 v238, 7, v0"), o(f"v_lshrrev_b32 v239, 3, v0"), o(f"v_add_u32 v239, 8, v239"), o(f"v_min_u32 v239, 9, v239"),
              o(f"v_mul_u32_u24 v{A1}, 192, v238"), o(f"v_lshlrev_b32 v239, 4, v239"), o(f"v_add_u32 v{A1}, v{A1}, v239"), o(f"v_add_u32 v{A1}, s{T3}, v{A1}")] + \
             rowcalc(1) + [o(f"v_add_u32 v239, s{T5}, v239")] + ymir(YD1, YM1) + \
             [G([o(f"s_cmp_eq_u32 s{T5}, {7*144}"), o(f"s_cselect_b32 s{T5}, 16, 8")]), o(f"v_mov_b32 v238, {OOB:#x}"),
              G([o(f"v_cmp_gt_u32 vcc, s{T5}, v0"), o("v_nop"), o("v_nop"), o(f"v_cndmask_b32 v{YD1}, v238, v{YD1}, vcc"), o(f"v_cndmask_b32 v{YM1}, v238, v{YM1}, vcc")]),
              o(f"s_mov_b32 s{T4}, {WS_YH}")]
        e = sl.stream(ad, a0 + 2, b1)
        assert e <= b1 + 6
        def rds(R, A, tag):
            return [ds(f"ds_read_b128 v[{R + 16*pq + 4*ww}:{R + 16*pq + 4*ww + 3}], v{A} offset:{ww*12288 + pq*6144}", tag) for pq in range(2) for ww in range(4)]
        e = sl.stream(rds(R0, A0, "sr0") + rds(R1, A1, "sr1"), max(e, b1) + 1, max(e, b1) + 10)
        b2 = e + 3
        sl.put(b2, [wlg("sr1"), o("s_barrier")])
        self.b2 = b2
        def fin(R, YD, YM):
            out = []
            for pq in range(2):
                b_ = R + 16*pq
                for k in range(4):
                    out += [o(f"v_add_f32 v{b_+k}, v{b_+k}, v{b_+4+k}"), o(f"v_add_f32 v{b_+8+k}, v{b_+8+k}, v{b_+12+k}"), o(f"v_add_f32 v{b_+k}, v{b_+k}, v{b_+8+k}")]
            for k in range(4):
                out += [o(f"v_sub_f32 v{R+4+k}, v{R+k}, v{R+16+k}"), o(f"v_add_f32 v{R+8+k}, v{R+k}, v{R+16+k}")]
            out += [vm(f"buffer_store_dwordx4 v[{R+4}:{R+7}], v{YD}, s[{SR_WS}:{SR_WS+3}], s{T4} offen sc1", "yst"),
                    vm(f"buffer_store_dwordx4 v[{R+8}:{R+11}], v{YM}, s[{SR_WS}:{SR_WS+3}], s{T4} offen sc1", "yst")]
            return out
        ff = fin(R1, YD1, YM1) + fin(R0, YD0, YM0)
        if self.opts.get('nofin'): ff = [vm(f'buffer_store_dword v{V_PF}, v{V_ONE0}, s[{SR_OUT}:{SR_OUT+3}], 0 offen offset:4000', 'yst')]
        e = sl.stream(ff, b2 + 1, P2_0 + 66, spill=3)
        assert e < P2_0 + 72, e
        n1 = [o(f"v_and_b32 v238, 15, v0"), o(f"v_lshlrev_b32 v238, 2, v238"), o(f"v_add_u32 v238, {N1A}, v238")]
        for ss in range(3):
            for ww in range(4):
                n1 += [ds(f"ds_read_b32 v{64+4*ss+ww}, v238 offset:{ww*384 + ss*64}", "sred_n"), ds(f"ds_read_b32 v{128+4*ss+ww}, v238 offset:{ww*384 + (3+ss)*64}", "sred_n")]
        n1 += [wlg("sred_n")]
        for ss in range(3):
            for b_ in (64 + 4*ss, 128 + 4*ss):
                n1 += [o(f"v_add_f32 v{b_}, v{b_}, v{b_+1}"), o(f"v_add_f32 v{b_+2}, v{b_+2}, v{b_+3}"), o(f"v_add_f32 v{b_}, v{b_}, v{b_+2}")]
            n1 += [o(f"v_sub_f32 v{64+4*ss+1}, v{64+4*ss}, v{128+4*ss}"), o(f"v_add_f32 v{64+4*ss+2}, v{64+4*ss}, v{128+4*ss}")]
        n1 += [G([o(f"s_or_b32 s{T3}, s{S_TAU}, s{S_W}"), o(f"s_or_b32 s{T3}, s{T3}, s{S_MT}"), o(f"s_cmp_eq_u32 s{T3}, 0"), o(f"s_cselect_b32 s{T3}, 16, 0")]),
               G([o(f"v_cmp_gt_u32 vcc, s{T3}, v0"), o(f"v_mov_b32 v238, 0"), o(f"v_mov_b32 v239, {OOB:#x}"), o(f"v_cndmask_b32 v238, v239, v238, vcc")])]
        for ss in range(3):
            n1 += [o(f"v_add_u32 v{128+4*ss+1}, v238, v{V_YC[ss]}")]
        n1 += [o(f"s_mov_b32 s{T3}, {WS_YH + 512*YP}"), o(f"s_mov_b32 s{T5}, {WS_YH + 1536*YP}")]
        for ss in range(3):
            n1 += [vm(f"buffer_store_dword v{64+4*ss+1}, v{128+4*ss+1}, s[{SR_WS}:{SR_WS+3}], s{T3} offen sc1", "yst"),
                   vm(f"buffer_store_dword v{64+4*ss+2}, v{128+4*ss+1}, s[{SR_WS}:{SR_WS+3}], s{T5} offen sc1", "yst")]
        blk = [o(f"s_or_b32 s{T3}, s{S_TAU}, s{S_MT}"), o(f"s_cmp_eq_u32 s{T3}, 0"), o("s_cbranch_scc0 L_no512b")]
        for i in flat(n1):
            if i.k == "wlg": blk.append(o("s_waitcnt lgkmcnt(0)"))
            elif i.k in ("ds", "vm"): blk.append(I(i.t, "o"))
            else: blk.append(i)
        blk += [raw("L_no512b:")]
        M[max(e + 2, P2_0 + 70)].setdefault("before", []).extend(blk)
        gpar = fu[("s2", (0, "par"))]
        PF2 = 231
        sl.put(660, [G([o(f"s_xor_b32 s{T0}, s{S_LID}, 1"), o(f"s_lshl_b32 s{T1}, s{T0}, 7"), o(f"s_add_u32 s{T1}, s{T1}, {WS_FLAG}")])])
        sl.put(661, [G([o(f"s_lshl_b32 s{T0}, s{T0}, 2"), o(f"s_add_u32 s{T0}, s{T0}, s{S_W}"), o(f"s_mul_i32 s{T0}, s{T0}, {18*1024}")]), o(f"s_add_u32 s{T0}, s{T0}, {WS_HX}")])
        pl = f"buffer_load_dword v242, off, s[{SR_WS}:{SR_WS+3}], s{T1} sc1"
        def hload(k, n, t, tag):
            if self.opts.get("nohp"):
                sl.put(t + 1, [vm(f"buffer_load_dword v{V_PF}, v{V_ONE0}, s[{SR_WS}:{SR_WS+3}], 0 offen", tag)]); return
            sl.put(t, [o(f"s_add_u32 s{T6}, s{T0}, {k*1024}")])
            sl.put(t + 1, self.dload([f"buffer_load_dwordx4 a[{HPB+4*(k+q)}:{HPB+4*(k+q)+3}], v{V_L16}, s[{SR_WS}:{SR_WS+3}], s{T6} offen offset:{q*1024}" for q in range(n)], tag, True))
        if self.opts.get("onepoll") == 2:
            sl.put(640, [vm(pl, "hpoll1")]) if False else None
            sl.put(S0 + 14, [vm(pl, "hpoll1")])
            sl.put(S0 + 18, [wvm("hpoll1")]) if False else None
            tcheck = S0 + 22
            sl.put(tcheck - 2, [wvm("hpoll1")])
            sl.put(tcheck - 1, [o(f"v_readfirstlane_b32 s{T2}, v242")])
            M[tcheck + 2].setdefault("before", []).extend(
                [o(f"s_cmp_ge_u32 s{T2}, 1"), o("s_cbranch_scc1 L_hq_ok")] +
                self.spin("L_hq", [o(pl)], [o(f"v_readfirstlane_b32 s{T2}, v242"), o("s_nop 3"), o(f"s_cmp_ge_u32 s{T2}, 1")]))
            st_ = self.opts.get("hstep1", 10)
            for i in range(6): hload(2*i, 2, tcheck + 3 + st_*i, ("hp", i))
            tq = P2_0 + self.opts.get("tq", 40)
            assert tq > tcheck + 3 + st_*5 + 2
            sl.put(tq, [vm(pl, "hpoll2")])
            sl.put(tq + 10, [wvm("hpoll2")])
            sl.put(tq + 11, [o(f"v_readfirstlane_b32 s{T2}, v242")])
            M[tq + 14].setdefault("before", []).extend(
                [o(f"s_cmp_ge_u32 s{T2}, 2"), o("s_cbranch_scc1 L_hp_ok")] +
                self.spin("L_hp", [o(pl)], [o(f"v_readfirstlane_b32 s{T2}, v242"), o("s_nop 3"), o(f"s_cmp_ge_u32 s{T2}, 2")]))
            for i in range(3): hload(12 + 2*i, 2, tq + 15 + 10*i, ("hp", 6 + i))
        elif self.opts.get("onepoll"):
            tq = P2_0 + self.opts.get("tq", 4)
            sl.put(tq, [vm(pl, "hpoll2")])
            sl.put(tq + 10, [wvm("hpoll2")])
            sl.put(tq + 11, [o(f"v_readfirstlane_b32 s{T2}, v242")])
            M[tq + 14].setdefault("before", []).extend(
                [o(f"s_cmp_ge_u32 s{T2}, 2"), o("s_cbranch_scc1 L_hp_ok")] +
                self.spin("L_hp", [o(pl)], [o(f"v_readfirstlane_b32 s{T2}, v242"), o("s_nop 3"), o(f"s_cmp_ge_u32 s{T2}, 2")]))
            for i in range(9):
                hload(2*i, 2, tq + 15 + self.opts.get("hstep", 9)*i, ("hp", i))
        else:
            h1 = self.opts.get("h1", P2_0 - 12)
            sl.put(h1, [vm(pl, "hpoll1")])
            sl.put(h1 + 12, [wvm("hpoll1")])
            sl.put(h1 + 13, [o(f"v_readfirstlane_b32 s{T2}, v242")])
            M[h1 + 16].setdefault("before", []).extend(
                [o(f"s_cmp_ge_u32 s{T2}, 1"), o("s_cbranch_scc1 L_hq_ok")] +
                self.spin("L_hq", [o(pl)], [o(f"v_readfirstlane_b32 s{T2}, v242"), o("s_nop 3"), o(f"s_cmp_ge_u32 s{T2}, 1")]))
            def hload(k, n, t, tag):
                sl.put(t, [o(f"s_add_u32 s{T6}, s{T0}, {k*1024}")])
                sl.put(t + 1, self.dload([f"buffer_load_dwordx4 a[{HPB+4*(k+q)}:{HPB+4*(k+q)+3}], v{V_L16}, s[{SR_WS}:{SR_WS+3}], s{T6} offen offset:{q*1024}" for q in range(n)], tag, True))
            for i in range(6):
                hload(2*i, 2, h1 + 17 + 9*i, ("hp", i))
            tp = P2_0 + self.opts.get("tp2", 74)
            assert tp - 13 > h1 + 17 + 9*5 + 1
            sl.put(tp - 13, [vm(pl, "hpoll2")])
            sl.put(tp - 2, [wvm("hpoll2")])
            sl.put(tp - 1, [o(f"v_readfirstlane_b32 s{T2}, v242")])
            M[tp + 2].setdefault("before", []).extend(
                [o(f"s_cmp_ge_u32 s{T2}, 2"), o("s_cbranch_scc1 L_hp_ok")] +
                self.spin("L_hp", [o(pl)], [o(f"v_readfirstlane_b32 s{T2}, v242"), o("s_nop 3"), o(f"s_cmp_ge_u32 s{T2}, 2")]))
            for i in range(3):
                hload(12 + 2*i, 2, tp + 4 + 6*i, ("hp", 6 + i))

        sl.put(gpar - 2, [wvm(("hp", 5))])
        off = 24 if self.opts.get("klate", 1) else 12
        for i in range(3):
            sl.put(gpar + off + 2*i - 2, [wvm(("hp", 6 + i))])
        for i in range(3, 9):
            st = stages[i]; slot = slot_of[st]
            prev = [j for j in range(i) if slot_of[stages[j]] == slot]
            if prev:
                t = lu[("s2", stages[prev[-1]])]; fbar(t); start = t + 1
            else:
                start = b2 + 1
            grps = self.dma_p2(st, slot, False, 250, 251, 0)
            if st[0] == 4:
                grps = [[o(f"s_and_b32 s{S_C}, s{S_W}, 1"), o(f"s_mul_i32 s{S_C}, s{S_C}, {16*1152}")]] + grps
                place(grps, start, 1)
            else:
                place(grps, start, 2)
        s4 = slot_of[(4, "both")]
        ins = [o("v_lshrrev_b32 v250, 5, v0"), o("v_lshlrev_b32 v250, 8, v250"),
               o("v_bfe_u32 v251, v0, 2, 2"), o("v_lshlrev_b32 v251, 6, v251"), o("v_add_u32 v250, v250, v251"),
               o("v_bfe_u32 v251, v0, 4, 1"), o("v_lshlrev_b32 v251, 5, v251"), o("v_add_u32 v250, v250, v251"),
               o("v_and_b32 v251, 3, v0"), o("v_lshlrev_b32 v251, 3, v251"), o("v_add_u32 v250, v250, v251"),
               o(f"v_add_u32 v{V_R8}, {s4*SLOT}, v250")]
        sl.stream(ins, P2_0 + 150, P2_0 + 175)
        self.pipe_reduce(sl, M, fu, lu, P2_0, N)
        for (u, half), tl in sorted(tile_last.items(), key=lambda x: x[1]):
            acc = ACC[u][half]
            par = half
            t = TMP + 8*par
            st = S_ST0 + par
            ins = [o(f"v_cvt_pk_bf16_f32 v{t+i}, v{acc+2*i}, v{acc+2*i+1}") for i in range(8)]
            if u == 3 and half == 1: continue
            if u < 3: ins += [o(f"s_add_u32 s{st}, s{S_QU[u]}, {half*2048}")]
            elif u == 3: ins += [o(f"s_mov_b32 s{st}, s{S_QN}")]
            else: ins += [o(f"s_mov_b32 s{st}, s{S_Q8}")]
            ins += self.dstore([f"buffer_store_dwordx4 v[{t}:{t+3}], v{V_L16}, s[{SR_WS}:{SR_WS+3}], s{st} offen",
                                f"buffer_store_dwordx4 v[{t+4}:{t+7}], v{V_L16}, s[{SR_WS}:{SR_WS+3}], s{st} offen offset:1024"], ("pst", u))
            s0 = tl + 4
            if s0 + 10 <= N: sl.stream(ins, s0, s0 + 10)
            else: self.tail2 = [o("s_nop 15")] + ins

    def item_setup(self, kind, R, srd=None, split=False):
        t0, t1, t2, t3 = R["t"]
        sQ, sH, sB, sT = T2, T3, T4, T5
        L = []
        LD = []
        SW = SR_WS if srd is None else srd
        if kind == "A":
            L += [G([o(f"s_lshl_b32 s{sT}, s{S_J}, 2"), o(f"s_add_u32 s{sT}, s{sT}, s{S_W}"), o(f"s_lshr_b32 s{sQ}, s{sT}, 3")]),
                  G([o(f"s_cmp_lt_u32 s{sQ}, 4"), o(f"s_cselect_b32 s{sH}, 0, 6"), o(f"s_add_u32 s{sQ}, s{sQ}, s{sH}")])]
        elif kind in "BC":
            lo, hi = (4, 12) if kind == "B" else (6, 14)
            L += [G([o(f"s_lshl_b32 s{sT}, s{S_J}, 1"), o(f"s_lshr_b32 s{sH}, s{S_W}, 1"), o(f"s_add_u32 s{sT}, s{sT}, s{sH}")]),
                  G([o(f"s_lshr_b32 s{sQ}, s{sT}, 3"), o(f"s_cmp_lt_u32 s{sQ}, 2"), o(f"s_cselect_b32 s{sH}, {lo}, {hi}")]),
                  o(f"s_add_u32 s{sQ}, s{sQ}, s{sH}")]
        else:
            L += [G([o(f"s_lshr_b32 s{sT}, s{S_J}, 1"), o(f"s_and_b32 s{sQ}, s{S_J}, 1"), o(f"s_add_u32 s{sQ}, s{sQ}, 8")])]
        L += [G([o(f"s_and_b32 s{sH}, s{sT}, 1"), o(f"s_bfe_u32 s{sB}, s{sT}, 0x20001"), o(f"s_lshl_b32 s{sT}, s{S_MT}, 2")]),
              o(f"s_add_u32 s{sB}, s{sB}, s{sT}"),
              G([o(f"s_mul_i32 s{sT}, s{sB}, 18"), o(f"s_add_u32 s{sT}, s{sT}, s{sQ}"), o(f"s_lshl_b32 s{sT}, s{sT}, 1")]),
              G([o(f"s_add_u32 s{sT}, s{sT}, s{sH}"), o(f"s_lshl_b32 s{sT}, s{sT}, 10")])]
        so = R["so"]
        for p in range(8): L += [o(f"s_add_u32 s{so+p}, s{sT}, {p*PART_BYTES}")]
        if kind == "A":
            L += [o(f"v_mov_b32 v{t3}, 0")]
        elif kind in "BC":
            L += [o(f"s_and_b32 s{sT}, s{S_W}, 1"), o(f"v_bfe_u32 v{t0}, v0, 4, 1"), o(f"v_mov_b32 v{t1}, {OOB:#x}"), o(f"v_mov_b32 v{t3}, 0"),
                  G([o(f"v_cmp_eq_u32 vcc, s{sT}, v{t0}"), o("v_nop"), o("v_nop"), o(f"v_cndmask_b32 v{t3}, v{t1}, v{t3}, vcc")])]
        else:
            L += [o(f"v_bfe_u32 v{t0}, v0, 3, 2"), o(f"v_mov_b32 v{t1}, {OOB:#x}"), o(f"v_mov_b32 v{t3}, 0"),
                  G([o(f"v_cmp_eq_u32 vcc, s{S_W}, v{t0}"), o("v_nop"), o("v_nop"), o(f"v_cndmask_b32 v{t3}, v{t1}, v{t3}, vcc")])]
        PV = R["PV"]
        L += [o(f"v_add_u32 v{PV}, v{t3}, v{V_L16}")]
        pk, pb = R["P"]
        ldp = [vm(f"buffer_load_dwordx4 {pk}[{pb+4*p}:{pb+4*p+3}], v{PV}, s[{SW}:{SW+3}], s{so+p} offen sc1", ("it", kind)) for p in range(8)]
        if split: LD += ldp
        else: L += ldp
        X, Y, OA = R["X"], R["Y"], R["OA"]
        L += self.rowmir(sB, sT, t0, t1, t2, OA) + [
              G([o(f"s_lshl_b32 s{sT}, s{sQ}, 6"), o(f"s_lshl_b32 s{sB}, s{sH}, 5"), o(f"s_add_u32 s{sT}, s{sT}, s{sB}")]),
              o(f"v_mul_u32_u24 v{t2}, 1152, v{t0}"), o(f"v_add_u32 v{t2}, s{sT}, v{t2}"), o(f"v_add_u32 v{t2}, v{t2}, v{t3}"),
              o(f"v_lshrrev_b32 v{X}, 5, v0"), o(f"v_lshlrev_b32 v{OA}, 4, v{X}"), o(f"v_add_u32 v{OA}, v{t2}, v{OA}"),
              o(f"v_lshlrev_b32 v{X}, 3, v{X}"), o(f"v_add_u32 v{t2}, v{t2}, v{X}"),
              vm(f"buffer_load_dwordx2 v[{X}:{X+1}], v{t2}, s[{SR_X}:{SR_X+3}], 0 offen", ("it", kind)),
              vm(f"buffer_load_dwordx2 v[{X+2}:{X+3}], v{t2}, s[{SR_X}:{SR_X+3}], 0 offen offset:16", ("it", kind)),
              G([o(f"s_lshl_b32 s{sT}, s{sT}, 1"), o(f"s_cmp_lt_u32 s{sQ}, 9"), o(f"s_cselect_b32 s{R['rev']}, 0, 1")]),
              G([o(f"s_sub_u32 s{sB}, 2292, s{sT}"), o(f"s_cmp_lt_u32 s{sQ}, 9"), o(f"s_cselect_b32 s{sT}, s{sT}, s{sB}"), o(f"s_cselect_b32 s{sB}, 1, -1")]),
              G([o(f"v_cmp_eq_u32 vcc, 1, v{PV}") if False else o(f"v_mov_b32 v{t2}, s{R['rev']}"), o(f"v_cmp_eq_u32 vcc, 1, v{t2}"), o("v_nop"), o("v_nop"),
                 o(f"v_cndmask_b32 v{t0}, v{t0}, v{t1}, vcc")]),
              o(f"v_mul_u32_u24 v{t0}, {YP}, v{t0}"), o(f"v_add_u32 v{t0}, s{sT}, v{t0}"), o(f"v_add_u32 v{t0}, v{t0}, v{t3}"),
              o(f"v_lshrrev_b32 v{t1}, 5, v0"), o(f"v_lshlrev_b32 v{t1}, 4, v{t1}"), o(f"v_mul_lo_u32 v{t1}, v{t1}, s{sB}"),
              o(f"v_add_u32 v{t0}, v{t0}, v{t1}"),
              o(f"s_lshl_b32 s{sB}, s{sB}, 5"), o(f"v_add_u32 v{t1}, s{sB}, v{t0}"), o(f"v_add_u32 v{t0}, {WS_YH}, v{t0}"), o(f"v_add_u32 v{t1}, {WS_YH}, v{t1}")]
        ldy = [vm(f"buffer_load_dwordx4 v[{Y}:{Y+3}], v{t0}, s[{SW}:{SW+3}], 0 offen sc1", ("it", kind)),
               vm(f"buffer_load_dwordx4 v[{Y+4}:{Y+7}], v{t1}, s[{SW}:{SW+3}], 0 offen sc1", ("it", kind))]
        if split:
            LD += ldy
            return L, LD
        return L + ldy

    def item_finish(self, kind, R):
        X, Y, OA = R["X"], R["Y"], R["OA"]
        t0, t1, t2, t3 = R["t"]
        pk, pb = R["P"]
        L = [wvm(("it", kind)),
             o(f"s_cmp_eq_u32 s{R['rev']}, 0"), o(f"s_cbranch_scc1 L_rv{kind}"),
             o(f"v_swap_b32 v{Y}, v{Y+3}"), o(f"v_swap_b32 v{Y+1}, v{Y+2}"), o(f"v_swap_b32 v{Y+4}, v{Y+7}"), o(f"v_swap_b32 v{Y+5}, v{Y+6}"),
             raw(f"L_rv{kind}:"),
             o(f"s_mov_b32 s{T0}, 0x3f80"), o(f"s_mov_b32 s{T1}, 0x3f800000")]
        for i in range(4):
            L += [o(f"v_dot2_f32_bf16 v{Y+2*i}, v{X+i}, s{T0}, v{Y+2*i}"), o(f"v_dot2_f32_bf16 v{Y+2*i+1}, v{X+i}, s{T1}, v{Y+2*i+1}")]
        for p in range(8):
            for i in range(4):
                r = pb + 4*p + i
                if pk == "a":
                    L += [o(f"v_accvgpr_read_b32 v{t0 + (i & 1)}, a{r}")]
                    src = t0 + (i & 1)
                else: src = r
                L += [o(f"v_dot2_f32_bf16 v{Y+2*i}, v{src}, s{T0}, v{Y+2*i}"), o(f"v_dot2_f32_bf16 v{Y+2*i+1}, v{src}, s{T1}, v{Y+2*i+1}")]
        L += [o("s_nop 2")]
        for i in range(4):
            L += [o(f"v_cvt_pk_bf16_f32 v{X+i}, v{Y+2*i}, v{Y+2*i+1}")]
        L += [o("s_nop 1"), o(f"v_permlane32_swap_b32 v{X}, v{X+2}"), o(f"v_permlane32_swap_b32 v{X+1}, v{X+3}"),
              vm(f"buffer_store_dwordx4 v[{X}:{X+3}], v{OA}, s[{SR_OUT}:{SR_OUT+3}], 0 offen{self.osfx}", "out")]
        return L

    def group_poll(self, label, val, vdst, voff, parity=False):
        ld = f"buffer_load_dword v{vdst}, v{voff}, s[{SR_WS}:{SR_WS+3}], s{T6} offen sc1"
        if parity:
            chk = [o(f"v_cmp_le_u32 vcc, {val}, v{vdst}"), o("s_nop 0"), o(f"s_and_b32 s{T7}, vcc_lo, s{S_PM}"), o(f"s_cmp_eq_u32 s{T7}, s{S_PM}")]
        else:
            chk = [o(f"v_cmp_le_u32 vcc, {val}, v{vdst}"), o("s_nop 0"), o(f"s_and_b32 s{T7}, vcc_lo, 0xffff"), o(f"s_cmp_eq_u32 s{T7}, 0xffff")]
        return ld, chk

    def items_cfg(self):
        self.RA = dict(P=("v", 80), X=112, Y=116, OA=124, PV=125, t=[126, 127, 16, 17], rev=24, so=16)
        self.RB = dict(P=("a", 0), X=18, Y=22, OA=30, PV=31, t=[48, 49, 50, 51], rev=25, so=16)
        self.RC = dict(P=("v", 176), X=208, Y=212, OA=220, PV=221, t=[222, 223, 224, 225], rev=26, so=16)
        self.RD = dict(P=("v", 128), X=160, Y=164, OA=172, PV=173, t=[174, 175, 226, 227], rev=27, so=84)

    def tail(self):
        L = list(self.late_loads)
        O = 128
        ld, chk = self.group_poll("L_f5", 5, 241, 242, parity=True)
        L += [vm(ld, "fp5")]
        L += self.stamp("pub")
        RD = self.RDx; Ld = self.D_ld
        L += [o("s_nop 7"), o("s_nop 3"), wvm("op"), wvm("ox"), o(f"s_mov_b32 s{T0}, 0x3f80"), o(f"s_mov_b32 s{T1}, 0x3f800000"),
              o("s_cmp_eq_u32 s24, 0"), o("s_cbranch_scc1 L_oyd")]
        for g_ in range(4):
            for k in range(4): L += [o(f"v_add_f32 v{O+4*g_+k}, v{O+4*g_+k}, v{48 + 4*(3-g_) + 3 - k}")]
        L += [o("s_branch L_oyj"), raw("L_oyd:")]
        for r in range(16): L += [o(f"v_add_f32 v{O+r}, v{O+r}, v{48+r}")]
        L += [raw("L_oyj:")]
        for i in range(8):
            L += [o(f"v_dot2_f32_bf16 v{O+2*i}, v{24+i}, s{T0}, v{O+2*i}"), o(f"v_dot2_f32_bf16 v{O+2*i+1}, v{24+i}, s{T1}, v{O+2*i+1}")]
        for p in range(6):
            for i in range(8):
                L += [o(f"v_dot2_f32_bf16 v{O+2*i}, v{80+8*p+i}, s{T0}, v{O+2*i}"), o(f"v_dot2_f32_bf16 v{O+2*i+1}, v{80+8*p+i}, s{T1}, v{O+2*i+1}")]
        L += self.stamp("early")
        L += [wvm("fp5")] + chk + [o("s_cbranch_scc1 L_f5_ok")] + self.spin("L_f5", [o(ld)], chk) + [reset()]
        L += self.stamp("pok")
        L += [vm(f"buffer_load_dwordx4 v[16:19], v{V_L16}, s[{SR_WS}:{SR_WS+3}], s22 offen sc1", "sib"),
              vm(f"buffer_load_dwordx4 v[20:23], v{V_L16}, s[{SR_WS}:{SR_WS+3}], s22 offen offset:1024 sc1", "sib")]
        L += Ld
        L += [wvm("sib")]
        for i in range(8):
            L += [o(f"v_dot2_f32_bf16 v{O+2*i}, v{16+i}, s{T0}, v{O+2*i}"), o(f"v_dot2_f32_bf16 v{O+2*i+1}, v{16+i}, s{T1}, v{O+2*i+1}")]
        L += [o("s_nop 2")]
        for i in range(8): L += [o(f"v_cvt_pk_bf16_f32 v{24+i}, v{O+2*i}, v{O+2*i+1}")]
        L += [o("s_nop 1"), o("v_permlane32_swap_b32 v24, v26"), o("v_permlane32_swap_b32 v25, v27"),
              o("v_permlane32_swap_b32 v28, v30"), o("v_permlane32_swap_b32 v29, v31"),
              vm(f"buffer_store_dwordx4 v[24:27], v238, s[{SR_OUT}:{SR_OUT+3}], 0 offen{self.osfx}", "out"),
              vm(f"buffer_store_dwordx4 v[28:31], v238, s[{SR_OUT}:{SR_OUT+3}], 0 offen offset:32{self.osfx}", "out")]
        L += self.stamp("ownfin")
        L += self.item_finish("D", RD)
        return L

    def kernel(self, name):
        L = [raw(f".globl {name}"), raw(".p2align 8"), raw(f".type {name},@function"), raw(f"{name}:")]
        L += self.prologue()
        L += self.stamp("proend")
        L += self.ln_stats()
        L += self.stamp("stats")
        L += [o("s_barrier")]
        L += [o(f"s_mov_b32 s{S_A}, s{S_J}"), o(f"s_add_u32 s{S_B}, s{S_J}, 16")]
        L += self.h_dma(S_A, 2, "wz1")
        L += [o(f"s_cmp_lt_u32 s{S_J}, 2"), o("s_cbranch_scc0 L_noz2a")]
        L += [I(i.t, "o") if i.k == "vm" else i for i in self.h_dma(S_B, 3, "wz2")]
        L += [raw("L_noz2a:")]
        hd = []
        for sig in range(2):
            for grp in self.dma_p1(sig, sig): hd.append(grp)
        if self.opts.get("lbulk"):
            hd.append([o(f"s_lshl_b32 s{S_PF}, s{S_MT}, 2"), o(f"s_add_u32 s{S_PF}, s{S_PF}, s{S_W}"), o(f"s_mul_i32 s{S_PF}, s{S_PF}, 45"),
                   o(f"v_add_u32 v240, s{S_PF}, v0"), o(f"s_mov_b32 s{S_PF}, {(2**32+4)//5}"), o(f"v_mul_hi_u32 v241, v240, s{S_PF}"),
                   o("v_mul_u32_u24 v242, 5, v241"), o("v_sub_u32 v242, v240, v242"), o("v_lshlrev_b32 v242, 7, v242"),
                   o("v_mul_u32_u24 v241, 9216, v241"), o("v_add_u32 v240, v241, v242"),
                   o(f"s_mul_i32 s{S_PF}, s{S_J}, 576"), o(f"s_and_b32 s{S_PF}, s{S_PF}, 0xffffff80"),
                   o("v_cmp_gt_u32 vcc, 45, v0"), o("s_nop 1"), o(f"v_cndmask_b32 v240, v{V_ONE0}, v240, vcc"),
                   vm(f"buffer_load_dword v{V_PF}, v240, s[{SR_WG}:{SR_WG+3}], s{S_PF} offen", "pf"),
                   vm(f"buffer_load_dword v{V_PF}, v240, s[{SR_WU}:{SR_WU+3}], s{S_PF} offen", "pf")])
        else:
            if not self.opts.get('bearly'): hd.append([o(f"s_lshl_b32 s{S_PF}, s{S_LID}, 2"), o(f"s_add_u32 s{S_PF}, s{S_PF}, s{S_W}"), o(f"s_mul_i32 s{S_PF}, s{S_PF}, 41"),
                       o(f"v_add_u32 v240, s{S_PF}, v0"), o("v_lshlrev_b32 v240, 7, v240"), o("v_cmp_gt_u32 vcc, 41, v0"), o("s_nop 1"),
                       o(f"v_cndmask_b32 v240, v{V_ONE0}, v240, vcc"),
                       vm(f"buffer_load_dword v{V_PF}, v240, s[{SR_WG}:{SR_WG+3}], 0 offen", "pf"),
                       vm(f"buffer_load_dword v{V_PF}, v240, s[{SR_WU}:{SR_WU+3}], 0 offen", "pf")])
        lf = self.ln_finish()
        per = -(-len(lf) // 18)
        k = 0
        for n, grp in enumerate(hd):
            L += grp
            if n < 18: L += lf[k:k + per]; k += per
        L += lf[k:]
        L += [o(f"v_subrev_u32 v{V_XA+i}, s{S_LX}, v{V_XA+i}") for i in range(4)]
        L += [o(f"v_add_u32 v{V_XA+i}, {2*SLOT}, v{V_XA+i}") for i in range(4)]
        L += self.stamp("lnfin")
        L += self.seg_norm_h()
        L += self.stamp("normH")
        L += self.h2_block()
        L += self.tr_bases()
        L += srd(SR_HZ, 36, 256)
        L += self.main()
        L += self.stamp("p2end")
        L += self.tail()
        L += self.stamp("end")
        if self.diag:
            L += [o("s_waitcnt vmcnt(0)"),
                  o(f"s_lshl_b32 s{T0}, s{S_LID}, 2"), o(f"s_add_u32 s{T0}, s{T0}, s{S_W}"), o(f"s_lshl_b32 s{T0}, s{T0}, 8"),
                  o(f"s_add_u32 s{T0}, s{T0}, {WS_STAMP}"), o("v_lshlrev_b32 v240, 2, v0"),
                  o(f"buffer_store_dword v{V_STAMP}, v240, s[{SR_WS}:{SR_WS+3}], s{T0} offen")]
        if self.opts.get("hdiag") == 2:
            L += [o("s_waitcnt vmcnt(0)"), o(f"v_readlane_b32 s98, v{V_STAMP}, 32"), o("s_nop 3"),
                  o(f"v_subrev_u32 v240, s98, v{V_STAMP}"),
                  o("v_subrev_u32 v241, 32, v0"), o("v_lshlrev_b32 v241, 2, v241"),
                  o("v_cmp_le_u32 vcc, 32, v0"), o(f"v_mov_b32 v242, {OOB:#x}"), o("s_nop 0"), o("v_cndmask_b32 v241, v242, v241, vcc"),
                  o("v_cmp_gt_u32 vcc, 48, v0"), o("s_nop 1"), o("v_cndmask_b32 v241, v242, v241, vcc"),
                  o(f"s_cmp_eq_u32 s{S_W}, 0"), o("s_cbranch_scc0 L_end"),
                  o(f"buffer_atomic_u{'min' if self.opts.get('hmin') else 'max'} v240, v241, s[{SR_HZ}:{SR_HZ+3}], 0 offen sc1")]
        elif self.opts.get("hdiag"):
            L += [o("s_waitcnt vmcnt(0)"), o("s_memrealtime s[100:101]"), o("s_waitcnt lgkmcnt(0)"),
                  o("s_sub_u32 s97, s100, s98"), o("s_not_b32 s98, s98"),
                  o("v_mov_b32 v240, s100"), o("v_mov_b32 v241, s98"), o("v_mov_b32 v242, s97"),
                  o(f"buffer_atomic_umax v240, v{V_ONE0}, s[{SR_HZ}:{SR_HZ+3}], 0 offen sc1"),
                  o(f"buffer_atomic_umax v241, v{V_ONE0}, s[{SR_HZ}:{SR_HZ+3}], 0 offen offset:4 sc1"),
                  o(f"buffer_atomic_umax v242, v{V_ONE0}, s[{SR_HZ}:{SR_HZ+3}], 0 offen offset:8 sc1")]
            for i, r in enumerate(self.hd_regs):
                pass
        L += [raw("L_end:"), o("s_endpgm")]
        return finalize(flat(L))

NAME = "parallel_sum__spectral_fnet__geglu_ffn__prompt_kernel"
def build(diag=False, opts=None):
    hdr = open("parallel_sum__spectral_fnet__geglu_ffn__prompt.s.ref").read().split("\n")
    top = [l for l in hdr if l.startswith(";") and "@launch" not in l and "Override" not in l and "grid=ceil" not in l]
    g = Gen(diag, opts)
    lines = g.kernel(NAME)
    errs = hazard_check(lines)
    for e in errs[:30]: print("HAZARD:", e)
    txt = "\n".join(top) + "\n"
    txt += "; @launch grid=(256,1,1) block=(256,1,1) lds=163840\n"
    txt += '.amdgcn_target "amdgcn-amd-amdhsa--gfx950"\n.text\n'
    txt += "\n".join(lines) + "\n" + kernel_footer(NAME)
    return txt, g.names

if __name__ == "__main__":
    import sys, json
    opts = {}
    for a in sys.argv[2:]:
        if "=" in a:
            k, v = a.split("="); opts[k] = int(v)
    txt, names = build("diag" in sys.argv, opts)
    open(sys.argv[1], "w").write(txt)
    json.dump(names, open(sys.argv[1] + ".names", "w"))
```

```python
from fw import *
from sched import *
import math, struct

S, D, F = 2048, 576, 4608
SLOT = 36864
SPARE = 4*SLOT
PART_BYTES = S * D * 2
WS_PART = 0
WS_HX = 20 << 20
WS_ZF = 40 << 20
ZF_STRIDE = 34 * 1024
ZF_TYPE = 18 * ZF_STRIDE
WS_YH = 42 << 20
YP = 320 * 4
WS_FLAG = 46 << 20
WS_STAMP = 48 << 20
OOB = 0x40000000
C0 = -2.0 * math.sqrt(2.0 / math.pi) * math.log2(math.e)
C1 = C0 * 0.044715
def f2u(f): return struct.unpack("<I", struct.pack("<f", f))[0]

V_L16 = 1
V_RA, V_RB = 2, 6
V_DM = 10
V_C0, V_C1 = 14, 15
GA = [[16, 32], [48, 64]]
UA = [[80, 96], [112, 128]]
HF = 144
TMP = 216
V_HACC = 232
V_XA = 248
V_R8 = 248
V_PF = 252
V_ONE0 = 253
V_D2 = 254
V_STAMP = 255
RX = 80
V_PERM = 224
V_NEGMU = 64
V_ONE = 231
V_SD = 232
V_SA = 236
V_SX = 240
V_SE = 228
V_ZP = 241
V_ZQ = 244
V_YC = [247, 250, 251]
V_LB = 232
AX = 0
AF = 144
NAF = 8
AZ = 176
HPB = 8
SR_CS, SR_SS, SR_HZ, SR_X, SR_WG, SR_WU, SR_WD, SR_WS, SR_OUT = 4, 8, 12, 40, 44, 48, 52, 56, 60
S_W, S_MT, S_J = 64, 65, 66
S_LX, S_L9 = 67, 68
S_UB = 69
S_WD = 74
S_PB = 75
T0, T1, T2, T3, T4, T5, T6, T7 = 76, 77, 78, 79, 80, 81, 82, 83
S_N0 = 84
S_N1 = 16
S_CU = 25
S_Q0, S_Q8 = 30, 31
S_HB = 32
S_LID = 33
S_ST0, S_ST1 = 34, 35
S_CNT = 93
S_A, S_B, S_C = 94, 95, 96
S_TAU, S_ZB = 38, 39
S_PF = 97
S_XC = 0
S_QU = [30, 36, 37]
S_QN = 39
S_TO = 32
S_PM = 29
S_GA = 28
S_FL = 1
S_MODE = 2
S_D0 = 3

def srd(dst, ptr, nbytes):
    return [o(f"s_mov_b32 s{dst}, s{ptr}"), o(f"s_and_b32 s{dst+1}, s{ptr+1}, 0xffff"),
            o(f"s_mov_b32 s{dst+2}, {nbytes}"), o(f"s_mov_b32 s{dst+3}, 0x00020000")]
def mf32(acc, A, B, C): return o(f"v_mfma_f32_32x32x16_bf16 {acc}, {A}, {B}, {C}")
def mf16(acc, A, B, C): return o(f"v_mfma_f32_16x16x32_bf16 {acc}, {A}, {B}, {C}")

class DS2(I):
    pass

class Gen:
    def dload(self, texts, tag, pair=False):
        out = self.dstore(texts, tag, pair)
        if hasattr(out[0], "cost"): out[0].cost = 3 + len(texts)
        return out
    def dstore(self, texts, tag, pair=False):
        self.lab = getattr(self, "lab", 0) + 1
        n = self.lab
        if self.opts.get("forcemode") == 1 or not self.opts.get("local", 0) or (self.opts.get("cfg", 0) == 0 and not pair):
            return [vm(t + ("" if (self.opts.get("hpplain") and "load" in t) else " sc1"), tag) for t in texts]
        body = f"s_bitcmp1_b32 s{S_MODE}, 0\n    s_cbranch_scc1 L_dl{n}\n"
        body += "".join(f"    {t} sc1\n" for t in texts)
        body += f"    s_branch L_dj{n}\nL_dl{n}:\n"
        lsfx = " nt" if (self.opts.get("lnt") and "store" in texts[0]) else ""
        body += "".join(f"    {t}{lsfx}\n" for t in texts)
        body += f"L_dj{n}:"
        out = [I("buffer_store_multi " + body, "vm", tag)]
        out[0].t = body
        out[0].cost = 3 + 5*len(texts)
        for _ in texts[1:]:
            x = I("; (counted above)", "vm", tag); x.cost = 0; out.append(x)
        return out
    def __init__(self, diag=False, opts=None):
        self.hd_regs = []
        self.osfx = ' sc1' if (opts or {}).get('osc1') else ''
        self.diag = diag; self.opts = opts or {}; self.nst = 0; self.names = []; self.pid = 0
    def stamp(self, name):
        if not self.diag: return []
        if self.opts.get("hdiag") == 2 and name in ("kernarg", "xiss", "proend", "lnfin", "pub", "early", "pok", "ownfin"): return []
        i = self.nst; self.nst += 1; self.names.append(name)
        return [o("s_memtime s[98:99]"), o("s_memrealtime s[100:101]"), o("s_waitcnt lgkmcnt(0)"),
                o(f"v_writelane_b32 v{V_STAMP}, s98, {i}"), o(f"v_writelane_b32 v{V_STAMP}, s100, {i+32}")]

    def paced(self, M, frags, setup, dist):
        N = len(M)
        sl = Slots(N)
        for g, m in enumerate(M):
            if m["op"] == 16: sl.budget[g] = 3
        head = []
        pid = self.pid; self.pid += 1
        def put(t, ins):
            if t < 0: head.extend(ins if isinstance(ins, list) else [ins])
            else: sl.put(t, ins)
        issue = {}
        for f, fr in enumerate(frags):
            t = fr["use"] - fr.get("dist", dist)
            issue[f] = t
            put(t, fr.get("pre", []))
            put(t, [ds(r, ("af", pid, f)) for r in fr["reads"]])
        waited = -1
        n0 = M[0]["need"]
        if n0 >= 0:
            tgt = max(n0, M[1]["need"])
            head.append(wlg(("af", pid, tgt))); waited = tgt
        for g in range(N - 1):
            nx = M[g+1]["need"]
            if nx > waited:
                tgt = nx
                if g + 2 < N and M[g+2]["need"] > nx and issue[M[g+2]["need"]] <= g - 3 and M[g+1]["op"] == 32: tgt = M[g+2]["need"]
                put(g, [wlg(("af", pid, tgt))]); waited = tgt
        setup(sl, head)
        L = list(head)
        for g, m in enumerate(M):
            L += m.get("before", [])
            c = "0" if m["first"] else m.get("C", m["acc"])
            if m.get("C") and m["first"]: c = m["C"]
            L.append((mf32 if m["op"] == 32 else mf16)(m["acc"], m["A"], m["B"], c))
            L += sl.emit(g)
        if self.opts.get("verbose"):
            over = [(g, sl.used[g], sl.budget[g]) for g in range(N) if sl.used[g] > sl.budget[g]]
            print(f"paced {pid}: N={N} over budget: {len(over)} total excess {sum(u-b for _,u,b in over)} avg used {sum(sl.used)/N:.2f}")
            if self.opts.get("verbose") > 1:
                for a in range(0, N, 36):
                    ex = sum(max(0, sl.used[g]-sl.budget[g]) for g in range(a, min(a+36, N)))
                    print(a, "used", sum(sl.used[a:a+36]), "budget", sum(sl.budget[a:a+36]), "excess", ex)
        return L

    def prologue(self):
        L = []
        if self.opts.get("hdiag"): L += [o("s_memrealtime s[98:99]")]
        if self.diag: L += [o(f"v_mov_b32 v{V_STAMP}, 0")]
        L += self.stamp("start")
        L += [o("s_load_dwordx16 s[16:31], s[0:1], 0"), o("s_load_dwordx8 s[32:39], s[0:1], 64"),
              o("s_cmp_ge_u32 s2, 256"), o("s_cbranch_scc1 L_end")]
        L += [o("v_lshrrev_b32 v2, 6, v0"), o("v_and_b32 v0, 63, v0"), o("s_nop 0"),
              o(f"v_readfirstlane_b32 s{S_W}, v2"),
              ] + self.idmap() + [
              o(f"s_mul_i32 s{S_LX}, s{S_W}, {SLOT}"), o(f"s_mul_i32 s{S_L9}, s{S_W}, 9216"),
              o(f"v_lshlrev_b32 v{V_L16}, 4, v0")]
        if self.opts.get("cpf", 1):
            L += [o("s_getpc_b64 s[82:83]"), raw("L_pc:"),
                  o(f"s_lshr_b32 s{T0}, s2, 3"), o(f"s_lshl_b32 s{T0}, s{T0}, 2"), o(f"s_add_u32 s{T0}, s{T0}, s{S_W}"),
                  o(f"s_lshl_b32 s{T0}, s{T0}, 9"),
                  o("v_and_b32 v2, 3, v0"), o("v_lshlrev_b32 v2, 7, v2"), o(f"v_add_u32 v2, s{T0}, v2"),
                  o("v_cmp_gt_u32 vcc, 4, v0"), o("s_and_saveexec_b64 s[80:81], vcc"),
                  vm(f"global_load_dword v{V_PF}, v2, s[82:83]", "pf"), o("s_mov_b64 exec, s[80:81]")]
        L += [o("v_lshrrev_b32 v2, 3, v0"), o("v_and_b32 v3, 7, v0"), o("v_lshrrev_b32 v4, 1, v2"),
              o("v_xor_b32 v3, v3, v4"), o("v_lshlrev_b32 v3, 4, v3"), o("v_xor_b32 v4, 64, v3"),
              o(f"s_lshl_b32 s{T0}, s{S_MT}, 5"), o(f"s_lshl_b32 s{T1}, s{S_W}, 3"), o(f"s_add_u32 s{T0}, s{T0}, s{T1}"),
              o(f"v_add_u32 v5, s{T0}, v2"),
              o("v_sub_u32 v6, 1024, v5"), o("v_add_u32 v7, 1024, v5"), o("v_sub_u32 v8, 2048, v5"),
              o("v_cmp_eq_u32 vcc, 0, v5"), o("v_mov_b32 v9, 512"), o("s_nop 0"),
              o("v_cndmask_b32 v7, v7, v9, vcc"), o("v_mov_b32 v9, 1536"), o("s_nop 0"), o("v_cndmask_b32 v8, v8, v9, vcc"),
              o(f"s_movk_i32 s{T1}, 1152"),
              o(f"v_mad_u32_u24 v240, v5, s{T1}, v3"), o(f"v_mad_u32_u24 v241, v6, s{T1}, v4"),
              o(f"v_mad_u32_u24 v242, v7, s{T1}, v3"), o(f"v_mad_u32_u24 v243, v8, s{T1}, v4")]
        if self.opts.get("xpf", 1) == 2:
            L += [o(f"s_lshl_b32 s{T0}, s{S_MT}, 4"), o(f"s_add_u32 s{T0}, s{T0}, s{S_J}"), o(f"s_lshl_b32 s{T0}, s{T0}, 2"), o(f"s_add_u32 s{T0}, s{T0}, s{S_W}"),
                  o(f"s_mul_i32 s{T0}, s{T0}, 18"), o(f"v_add_u32 v9, s{T0}, v0"), o("v_lshlrev_b32 v9, 7, v9"),
                  o("v_cmp_gt_u32 vcc, 18, v0"), o(f"v_mov_b32 v8, {OOB:#x}"), o("s_nop 0"), o("v_cndmask_b32 v9, v8, v9, vcc")]
        elif self.opts.get("xpf", 1):
            nsh = 16 if self.opts.get("cfg", 0) == 1 else 4
            per = 1152 // nsh // 4
            assert per <= 64 or True
            jj = f"s{S_J}"
            L += [o(f"s_and_b32 s{T0}, s{S_J}, {nsh-1}"), o(f"s_lshl_b32 s{T0}, s{T0}, 2"), o(f"s_add_u32 s{T0}, s{T0}, s{S_W}"), o(f"s_mul_i32 s{T0}, s{T0}, {per}"),
                  o(f"v_add_u32 v9, s{T0}, v0"),
                  o(f"s_mul_i32 s{T0}, s{S_MT}, {64*1152}"),
                  o(f"s_sub_u32 s{T1}, {(2048-63)*1152 - 576*128}, s{T0}"),
                  o("v_lshlrev_b32 v8, 7, v9"), o(f"v_add_u32 v7, s{T1}, v8"), o(f"v_add_u32 v8, s{T0}, v8"),
                  o("v_cmp_gt_u32 vcc, 0x240, v9"), o("s_nop 1"), o("v_cndmask_b32 v9, v7, v8, vcc"),
                  o(f"v_cmp_gt_u32 vcc, {min(per,64)}, v0"), o(f"v_mov_b32 v8, {OOB:#x}"), o("s_nop 0"), o("v_cndmask_b32 v9, v8, v9, vcc")]
        L += [o("s_waitcnt lgkmcnt(0)")]
        L += self.stamp("kernarg")
        L += srd(SR_X, 16, S*D*2)
        if self.opts.get("xpf", 1):
            L += [vm(f"buffer_load_dword v{V_PF}, v9, s[{SR_X}:{SR_X+3}], 0 offen", "pf")]
        HEAD = L
        P = []
        P += srd(SR_WG, 28, D*F*2) + srd(SR_WU, 30, D*F*2) + srd(SR_WD, 32, F*D*2) + srd(SR_WS, 38, 256 << 20) + srd(SR_OUT, 34, S*D*2)
        P += srd(SR_CS, 18, S*S*2) + srd(SR_SS, 20, S*S*2)
        P += [o(f"s_lshl_b32 s{T0}, s{S_W}, 6"), o(f"v_add_u32 v2, s{T0}, v0"), o("v_cmp_eq_u32 vcc, 0, v2"),
              o(f"v_mov_b32 v3, {OOB:#x}"), o("v_mov_b32 v4, 0"), o(f"v_cndmask_b32 v{V_ONE0}, v3, v4, vcc")]
        P += [o(f"s_lshl_b32 s{S_LID}, s{S_MT}, 4"), o(f"s_add_u32 s{S_LID}, s{S_LID}, s{S_J}")]
        P += [o(f"s_and_b32 s{T2}, s{S_J}, 1"), o(f"s_mul_i32 s{T0}, s{S_J}, 288"), o(f"s_mul_i32 s{T1}, s{T2}, 224"),
              o(f"s_add_u32 s{T1}, s{T0}, s{T1}"),
              G([o(f"s_cmp_eq_u32 s{T2}, 0"), o(f"s_cselect_b32 s{T3}, 64, -64"), o(f"s_cselect_b32 s{T4}, 256, 0")]),
              o(f"s_add_u32 s{T4}, s{T4}, s{T0}")]
        for u in range(4):
            P += [o(f"s_mul_i32 s{T5}, s{T3}, {u}"), o(f"s_add_u32 s{T5}, s{T5}, s{T1}"),
                  o(f"s_lshl_b32 s{S_UB+u}, s{T5}, 1"),
                  o(f"s_mul_i32 s{S_N0+2*u}, s{T5}, 1152"), o(f"s_add_u32 s{S_N0+2*u+1}, s{S_N0+2*u}, {32*1152}")]
        P += [o(f"s_lshl_b32 s{S_UB+4}, s{T4}, 1"), o(f"s_mul_i32 s{S_N0+8}, s{T4}, 1152")]
        P += [o(f"s_mov_b32 s{S_A}, s{S_UB}")]
        P += [o(f"s_mul_i32 s{T5}, s{S_W}, {72*9216}")]
        for u in range(4): P += [o(f"s_add_u32 s{S_UB+u}, s{S_UB+u}, s{T5}")]
        P += [o(f"s_lshl_b32 s{T5}, s{T5}, 1"), o(f"s_add_u32 s{S_UB+4}, s{S_UB+4}, s{T5}")]
        P += [o(f"s_lshr_b32 s{T0}, s{S_J}, 1"), o(f"s_mul_i32 s{S_PB}, s{T0}, {PART_BYTES}"),
              o(f"s_lshl_b32 s{T0}, s{S_MT}, 2"), o(f"s_add_u32 s{T0}, s{T0}, s{S_W}"),
              o(f"s_mul_i32 s{T0}, s{T0}, {18*2048}"), o(f"s_add_u32 s{S_PB}, s{S_PB}, s{T0}"),
              o(f"s_lshl_b32 s{T0}, s{S_LID}, 2"), o(f"s_add_u32 s{T0}, s{T0}, s{S_W}"),
              o(f"s_mul_i32 s{S_HB}, s{T0}, {18*1024}"), o(f"s_add_u32 s{S_HB}, s{S_HB}, {WS_HX}")]
        P += [o("v_lshrrev_b32 v2, 3, v0"), o("v_and_b32 v3, 7, v0"),
              o("v_bfe_u32 v4, v0, 4, 1"), o("v_lshlrev_b32 v4, 2, v4"), o("v_xor_b32 v3, v3, v4"), o("v_lshlrev_b32 v3, 4, v3"),
              o(f"v_mul_u32_u24 v2, 9216, v2"), o(f"v_add_u32 v{V_DM}, v2, v3")]
        for t in range(1, 4): P += [o(f"v_add_u32 v{V_DM+t}, {t*(8*9216-1024)}, v{V_DM}")]
        P += [o("v_and_b32 v2, 31, v0"), o("v_bfe_u32 v3, v0, 1, 3"), o("v_lshrrev_b32 v4, 5, v0"), o("v_xor_b32 v3, v3, v4"),
              o("v_lshlrev_b32 v3, 4, v3"), o("v_lshlrev_b32 v2, 7, v2"), o("v_add_u32 v2, v2, v3"),
              o(f"v_add_u32 v{V_XA}, s{S_LX}, v2"),
              o(f"v_xor_b32 v{V_XA+1}, 32, v{V_XA}"), o(f"v_xor_b32 v{V_XA+2}, 64, v{V_XA}"), o(f"v_xor_b32 v{V_XA+3}, 96, v{V_XA}")]
        P += [o("v_and_b32 v2, 15, v0"),
              o("v_and_b32 v3, 3, v2"), o("v_bfe_u32 v4, v2, 2, 1"), o("v_bfe_u32 v5, v2, 3, 1"),
              o("v_lshlrev_b32 v4, 3, v4"), o("v_lshlrev_b32 v5, 2, v5"), o("v_or_b32 v3, v3, v4"), o("v_or_b32 v3, v3, v5"),
              o("v_lshrrev_b32 v4, 3, v3"), o("v_lshrrev_b32 v5, 5, v0"),
              o("v_and_b32 v6, 1, v3"), o("v_lshlrev_b32 v6, 4, v6"), o("v_mov_b32 v7, 0x3f80"), o("v_lshlrev_b32 v7, v6, v7"), o("v_mov_b32 v8, 0"),
              G([o("v_cmp_eq_u32 vcc, v4, v5"), o("v_nop"), o("v_nop"), o("v_cndmask_b32 v7, v8, v7, vcc")]),
              o("v_bfe_u32 v6, v3, 1, 2"), o("v_bfe_u32 v9, v0, 4, 1")]
        for d in range(4):
            P += [G([o(f"v_cmp_eq_u32 vcc, {d}, v6"), o("v_nop"), o("v_nop"), o(f"v_cndmask_b32 v{V_PERM+d}, v8, v7, vcc")])]
        P += [G([o("v_cmp_eq_u32 vcc, 1, v9"), o("v_nop"), o("v_nop")] + [o(f"v_cndmask_b32 v{V_PERM+4+d}, v8, v{V_PERM+d}, vcc") for d in range(4)] +
                [o(f"v_cndmask_b32 v{V_PERM+d}, v{V_PERM+d}, v8, vcc") for d in range(4)])]
        L = []
        L += [o("v_mov_b32 v4, 0"), o(f"s_lshl_b32 s{T0}, s{S_LID}, 7"), o(f"s_add_u32 s{T0}, s{T0}, {WS_FLAG}"),
              vm(f"buffer_store_dword v4, v{V_ONE0}, s[{SR_WS}:{SR_WS+3}], s{T0} offen sc1", "flinit")]
        if self.opts.get("local", 0):
            L += [o(f"s_getreg_b32 s{T0}, hwreg(HW_REG_XCC_ID, 0, 4)"), o(f"s_add_u32 s{T0}, s{T0}, 1"),
                  o(f"s_and_b32 s{T1}, s{S_LID}, 7"), o(f"s_lshl_b32 s{T1}, s{T1}, 2"), o(f"s_lshl_b32 s{T0}, s{T0}, s{T1}"),
                  o(f"s_lshr_b32 s{T1}, s{S_LID}, 3"), o(f"s_lshl_b32 s{T1}, s{T1}, 2")]
            L += srd(SR_HZ, 36, 256)
            L += [o(f"v_mov_b32 v2, s{T0}"), vm(f"buffer_atomic_or v2, v{V_ONE0}, s[{SR_HZ}:{SR_HZ+3}], s{T1} offen sc1", "xccpub")]
        L += self.h_srd(S_J)
        if self.opts.get("pf", 1):
            L += [o(f"s_and_b32 s{T0}, s{S_MT}, 7"), o(f"s_mul_i32 s{T0}, s{T0}, 36"), o(f"s_mul_i32 s{T1}, s{S_W}, 9"), o(f"s_add_u32 s{T0}, s{T0}, s{T1}"),
                  o(f"v_add_u32 v2, s{T0}, v0"), o(f"v_mov_b32 v4, {OOB:#x}"),
                  o(f"s_mov_b32 s{T1}, {(2**32+8)//9}"), o(f"v_mul_hi_u32 v5, v2, s{T1}"), o("v_mul_u32_u24 v6, 9, v5"), o("v_sub_u32 v6, v2, v6"),
                  o(f"v_add_u32 v5, s{T7}, v5"), o(f"v_mul_u32_u24 v5, 1152, v5"), o("v_lshlrev_b32 v6, 7, v6"), o("v_add_u32 v5, v5, v6"),
                  o(f"v_mul_u32_u24 v3, 9216, v2"),
                  o("v_cmp_gt_u32 vcc, 9, v0"), o("s_nop 1"), o("v_cndmask_b32 v3, v4, v3, vcc"), o("v_cndmask_b32 v5, v4, v5, vcc"),
                  vm(f"buffer_load_dword v{V_PF}, v5, s[{SR_HZ}:{SR_HZ+3}], 0 offen", "pf")]
            L += [o(f"s_cmp_lt_u32 s{S_J}, 2"), o("s_cbranch_scc0 L_nopf2"),
                  o(f"s_mov_b32 s{T0}, {7*32*1152}"),
                  o(f"v_add_u32 v6, s{T0}, v5"), o("v_cmp_gt_u32 vcc, 9, v0"), o("s_and_saveexec_b64 s[82:83], vcc"),
                  o(f"global_load_dword v{V_PF}, v6, s[24:25]"),
                  o("s_mov_b64 exec, s[82:83]"), raw("L_nopf2:")]
            for sig in range(self.opts.get("npf", 4)):
                mat, kh = (sig // 2) % 2, sig % 2
                assert sig < 4
                rs = SR_WG if mat == 0 else SR_WU
                L += [o(f"s_add_u32 s{T6}, s{S_A}, {kh*288*9216}"),
                      vm(f"buffer_load_dword v{V_PF}, v3, s[{rs}:{rs+3}], s{T6} offen", "pf")]
        if self.opts.get("tlb", 0):
            st = self.opts.get("tlb", 0)
            n = (48 << 20) >> st
            L += [o(f"v_lshlrev_b32 v2, {st}, v0"), o(f"v_mov_b32 v4, {OOB:#x}")]
            for k in range(-(-n // 64)):
                L += [o(f"s_mov_b32 s{T0}, {k*64 << st}"), vm(f"buffer_load_dword v{V_PF}, v2, s[{SR_WS}:{SR_WS+3}], s{T0} offen", "pf")]
            L += [o("v_lshlrev_b32 v2, 16, v0"), vm(f"buffer_load_dword v{V_PF}, v2, s[{SR_OUT}:{SR_OUT+3}], 0 offen", "pf")]
        if self.opts.get('bearly'):
            L += [o(f"s_lshl_b32 s{S_PF}, s{S_LID}, 2"), o(f"s_add_u32 s{S_PF}, s{S_PF}, s{S_W}"), o(f"s_mul_i32 s{S_PF}, s{S_PF}, 41"),
                   o(f"v_add_u32 v2, s{S_PF}, v0"), o("v_lshlrev_b32 v2, 7, v2"), o("v_cmp_gt_u32 vcc, 41, v0"), o("s_nop 1"),
                   o(f"v_cndmask_b32 v2, v{V_ONE0}, v2, vcc"),
                   vm(f"buffer_load_dword v{V_PF}, v2, s[{SR_WG}:{SR_WG+3}], 0 offen", "pf"),
                   vm(f"buffer_load_dword v{V_PF}, v2, s[{SR_WU}:{SR_WU+3}], 0 offen", "pf")]
        post = L
        for n, i in enumerate(P):
            if not isinstance(i, G) and i.t.startswith("v_cmp_eq_u32 vcc, 0, v2"):
                P[n:n+4] = [G(P[n:n+4])]
                break
        out = HEAD
        flatx = []
        if self.opts.get("drot"):
            out += [o(f"s_and_b32 s100, s{S_J}, 3"), o(f"s_mul_i32 s100, s100, {self.opts.get('rotm', 9)}"), o("s_lshr_b32 s100, s100, 2")]
            out += [o("s_mov_b32 s99, s100")]
            for p in range(9):
                pre_ = [o("s_lshl_b32 s100, s99, 7"), o("s_lshl_b32 s101, s99, 12"), o(f"s_add_u32 s101, s101, s{S_LX}"),
                        o("s_add_u32 s99, s99, 1"), o("s_cmp_eq_u32 s99, 9"), o("s_cselect_b32 s99, 0, s99")]
                for rho in range(4):
                    g = (pre_ if rho == 0 else []) + [o(f"s_add_u32 m0, s101, {rho*1024}"), o("s_nop 0"),
                         vm(f"buffer_load_dwordx4 v{240+rho}, s[{SR_X}:{SR_X+3}], s100 offen lds", ("x", 8 if p == 8 else ("p", p)))]
                    flatx.append(g)
        for kap in range(9):
            if self.opts.get("drot"): break
            xl = self.x_line(kap)
            flatx += [xl[3*r:3*r+3] for r in range(4)]
        npre = len(P); pi = 0
        first = self.opts.get("xfree", 10)
        for n, g in enumerate(flatx):
            out += g
            if n >= first:
                take = -(-(npre - pi) // (36 - n))
                for it in P[pi:pi + take]: out += (list(it) if isinstance(it, G) else [it])
                pi += take
        out += self.stamp("xiss")
        L = out + post
        return L

    def tr_bases(self):
        L = []
        L += [o("v_lshrrev_b32 v16, 5, v0"), o("v_lshlrev_b32 v16, 10, v16"),
              o("v_bfe_u32 v17, v0, 2, 2"), o("v_lshlrev_b32 v17, 7, v17"), o("v_add_u32 v16, v16, v17"),
              o("v_bfe_u32 v17, v0, 3, 1"), o("v_lshlrev_b32 v17, 6, v17"), o("v_add_u32 v16, v16, v17"),
              o("v_bfe_u32 v17, v0, 4, 1"), o("v_lshlrev_b32 v17, 5, v17"), o("v_add_u32 v16, v16, v17"),
              o("v_and_b32 v17, 3, v0"), o("v_lshlrev_b32 v17, 3, v17"), o(f"v_add_u32 v{V_RA}, v16, v17")]
        for s in range(1, 4): L += [o(f"v_add_u32 v{V_RA+s}, {s*SLOT}, v{V_RA}")]
        for s in range(4): L += [o(f"v_xor_b32 v{V_RB+s}, 64, v{V_RA+s}")]
        return L

    def idmap(self):
        cfg = self.opts.get("cfg", 0)
        if cfg == 0:
            return [o(f"s_and_b32 s{S_J}, s2, 3"), o(f"s_lshl_b32 s{S_J}, s{S_J}, 2"),
              o(f"s_bfe_u32 s{T0}, s2, 0x20003"), o(f"s_or_b32 s{S_J}, s{S_J}, s{T0}"),
              o(f"s_bfe_u32 s{S_MT}, s2, 0x10002"), o(f"s_lshl_b32 s{S_MT}, s{S_MT}, 3"),
              o(f"s_lshr_b32 s{T0}, s2, 5"), o(f"s_or_b32 s{S_MT}, s{S_MT}, s{T0}")]
        if cfg == 1:
            return [o(f"s_and_b32 s{S_MT}, s2, 7"), o(f"s_lshl_b32 s{S_MT}, s{S_MT}, 1"), o(f"s_bfe_u32 s{T0}, s2, 0x10003"),
                    o(f"s_or_b32 s{S_MT}, s{S_MT}, s{T0}"), o(f"s_lshr_b32 s{S_J}, s2, 4")]
        if cfg == 3:
            return [o(f"s_and_b32 s{S_J}, s2, 7"), o(f"s_lshl_b32 s{S_J}, s{S_J}, 1"), o(f"s_bfe_u32 s{T0}, s2, 0x10003"),
                    o(f"s_or_b32 s{S_J}, s{S_J}, s{T0}"), o(f"s_lshr_b32 s{S_MT}, s2, 4")]
        if cfg == 2:
            return [o(f"s_and_b32 s{S_J}, s2, 1"), o(f"s_lshl_b32 s{S_J}, s{S_J}, 3"),
              o(f"s_bfe_u32 s{T0}, s2, 0x30003"), o(f"s_or_b32 s{S_J}, s{S_J}, s{T0}"),
              o(f"s_bfe_u32 s{S_MT}, s2, 0x20001"), o(f"s_lshl_b32 s{S_MT}, s{S_MT}, 2"),
              o(f"s_lshr_b32 s{T0}, s2, 6"), o(f"s_or_b32 s{S_MT}, s{S_MT}, s{T0}")]

    def h_srd(self, zreg):
        return [o(f"s_cmp_lt_u32 s{zreg}, 9"),
                o(f"s_cselect_b32 s{SR_HZ}, s22, s24"), o(f"s_cselect_b32 s{SR_HZ+1}, s23, s25"), o(f"s_cselect_b32 s{T7}, 0, 9"),
                o(f"s_and_b32 s{SR_HZ+1}, s{SR_HZ+1}, 0xffff"), o(f"s_mov_b32 s{SR_HZ+2}, {D*D*2}"), o(f"s_mov_b32 s{SR_HZ+3}, 0x00020000"),
                o(f"s_sub_u32 s{T7}, s{zreg}, s{T7}"), o(f"s_lshl_b32 s{T7}, s{T7}, 5")]

    def h_dma(self, zreg, slot, tag):
        L = self.h_srd(zreg)
        L += [o(f"s_lshl_b32 s{T1}, s{S_W}, 3"), o(f"s_add_u32 s{T0}, s{T7}, s{T1}"),
             o("v_lshrrev_b32 v240, 3, v0"), o("v_and_b32 v241, 7, v0"), o("v_lshrrev_b32 v242, 1, v240"), o("v_xor_b32 v241, v241, v242"),
             o(f"s_and_b32 s{T1}, s{S_W}, 1"), o(f"s_lshl_b32 s{T1}, s{T1}, 2"), o(f"v_xor_b32 v241, s{T1}, v241"),
             o("v_lshlrev_b32 v241, 4, v241"),
             o(f"v_add_u32 v240, s{T0}, v240"), o(f"s_movk_i32 s{T1}, 1152"), o(f"v_mad_u32_u24 v240, v240, s{T1}, v241"),
             o(f"s_lshl_b32 s{T1}, s{S_W}, 10"), o(f"s_add_u32 s{T1}, s{T1}, {slot*SLOT}")]
        for kap in range(9):
            L += [o(f"s_add_u32 m0, s{T1}, {4*kap*1024 - 128*kap}"), o("s_nop 0"),
                  vm(f"buffer_load_dwordx4 v240, s[{SR_HZ}:{SR_HZ+3}], 0 offen offset:{128*kap} lds", tag)]
        return L

    def h_special(self, zreg, slot, sfx):
        return [o(f"s_cmp_eq_u32 s{zreg}, 9"), o(f"s_cbranch_scc0 L_h_nosp{sfx}"), o(f"s_cmp_eq_u32 s{S_W}, 0"), o(f"s_cbranch_scc0 L_h_nosp{sfx}"),
                o("v_mov_b32 v232, 0xbf803f80"), o("v_mov_b32 v233, v232"), o("v_mov_b32 v234, v232"), o("v_mov_b32 v235, v232"),
                o("v_lshrrev_b32 v240, 3, v0"), o("v_lshlrev_b32 v240, 12, v240"), o("v_and_b32 v241, 7, v0"), o("v_lshlrev_b32 v241, 4, v241"),
                o("v_add_u32 v240, v240, v241"), o(f"v_add_u32 v240, {slot*SLOT}, v240"), o(f"v_add_u32 v241, {slot*SLOT}, v241"),
                o("ds_write_b128 v240, v[232:235]"), o("ds_write_b128 v241, v[232:235] offset:32768"),
                o("s_waitcnt lgkmcnt(0)"), raw(f"L_h_nosp{sfx}:")]

    def x_line(self, kap):
        L = []
        for rho in range(4):
            L += [o(f"s_add_u32 m0, s{S_LX}, {(4*kap+rho)*1024 - 128*kap}"), o("s_nop 0"),
                  vm(f"buffer_load_dwordx4 v{240+rho}, s[{SR_X}:{SR_X+3}], 0 offen offset:{128*kap} lds", ("x", kap))]
        return L
    def x_dma_variants(self):
        L = []
        for kap in range(self.opts.get("xpre", 3)): L += self.x_line(kap)
        return L
    def x_dma_variants_old(self):
        if not self.opts.get("rot", 0):
            L = []
            for kap in range(9):
                for rho in range(4):
                    L += [o(f"s_add_u32 m0, s{S_LX}, {(4*kap+rho)*1024 - 128*kap}"), o("s_nop 0"),
                          vm(f"buffer_load_dwordx4 v{240+rho}, s[{SR_X}:{SR_X+3}], 0 offen offset:{128*kap} lds", ("x", kap))]
            return L
        L = [o(f"s_and_b32 s{T0}, s{S_J}, 3")]
        for v in range(1, 4): L += [o(f"s_cmp_eq_u32 s{T0}, {v}"), o(f"s_cbranch_scc1 L_xd{v}")]
        for v in range(4):
            if v: L += [raw(f"L_xd{v}:")]
            for pos in range(9):
                kap = (self.K0[v] + pos) % 9
                for rho in range(4):
                    t = f"buffer_load_dwordx4 v{240+rho}, s[{SR_X}:{SR_X+3}], 0 offen offset:{128*kap} lds"
                    L += [o(f"s_add_u32 m0, s{S_LX}, {(4*kap+rho)*1024 - 128*kap}"), o("s_nop 0"),
                          (vm(t, ("x", pos)) if v == 3 else o(t))]
            if v < 3: L += [o("s_branch L_xdj")]
        L += [raw("L_xdj:")]
        return L
    K0 = [0, 2, 4, 7]

    def ln_stats(self):
        L = []
        SA = 16
        for i in range(8): L += [o(f"v_mov_b32 v{SA+i}, 0")]
        L += [o(f"s_mov_b32 s{T5}, 0x3f803f80")]
        def reads(kap):
            return [wvm(("x", kap))] + [ds(f"ds_read_b128 v[{RX+4*ks}:{RX+4*ks+3}], v{V_XA+(ks&3)} offset:{(ks//4)*4096}", ("xr", ks)) for ks in range(4*kap, 4*kap+4)]
        if self.opts.get("drot"):
            L += [wvm(("x", 8))]
            def rd2(kap): return [ds(f"ds_read_b128 v[{RX+4*ks}:{RX+4*ks+3}], v{V_XA+(ks&3)} offset:{(ks//4)*4096}", ("xr", ks)) for ks in range(4*kap, 4*kap+4)]
            L += rd2(0) + rd2(1)
            if self.opts.get("msum", 1):
                L += [o("v_mov_b32 v48, 0x3f803f80"), o("v_mov_b32 v49, v48"), o("v_mov_b32 v50, v48"), o("v_mov_b32 v51, v48")]
            first = True
            for kap in range(9):
                if kap + 2 < 9: L += rd2(kap + 2)
                if not self.opts.get("msum", 1):
                    L += self.stats_line(kap); continue
                for n, ks in enumerate(range(4*kap, 4*kap + 4)):
                    L += [wlg(("xr", ks))]
                    usem = (n % 2 == 0) or self.opts.get("msum") == 2
                    if usem:
                        L += [mf32("v[32:47]", "v[48:51]", f"v[{RX+4*ks}:{RX+4*ks+3}]", "0" if first else "v[32:47]")]
                        first = False
                    for i in range(4):
                        r = RX + 4*ks + i
                        if not usem: L += [o(f"v_dot2_f32_bf16 v{SA+i}, v{r}, s{T5}, v{SA+i}")]
                        L += [o(f"v_dot2_f32_bf16 v{SA+4+i}, v{r}, v{r}, v{SA+4+i}")]
            return L
        L += reads(0)
        for kap in range(9):
            if kap + 1 < 9: L += reads(kap + 1)
            L += self.stats_line(kap)
        return L
    def stats_line(self, kap):
        L = []
        SA = 16
        for ks in range(4*kap, 4*kap + 4):
            L += [wlg(("xr", ks))]
            for i in range(4):
                r = RX + 4*ks + i
                if self.opts.get("dotc"):
                    L += [o(f"v_dot2c_f32_bf16 v{SA+i}, s{T5}, v{r}"), o(f"v_dot2c_f32_bf16 v{SA+4+i}, v{r}, v{r}")]
                else:
                    L += [o(f"v_dot2_f32_bf16 v{SA+i}, v{r}, s{T5}, v{SA+i}"),
                          o(f"v_dot2_f32_bf16 v{SA+4+i}, v{r}, v{r}, v{SA+4+i}")]
        return L

    def ln_stats_v(self, v, tracked, order):
        L = []
        SA = 16
        for i in range(8): L += [o(f"v_mov_b32 v{SA+i}, 0")]
        L += [o(f"s_mov_b32 s{T5}, 0x3f803f80")]
        def reads(pos):
            kap = order[pos]
            w = [wvmf(("x", pos))]
            return w + [o(f"ds_read_b128 v[{RX+4*ks}:{RX+4*ks+3}], v{V_XA+(ks&3)} offset:{(ks//4)*4096}") for ks in range(4*kap, 4*kap+4)]
        L += reads(0)
        L += self.stamp("x0")
        for pos in range(9):
            if pos == 4: L += self.stamp("x4")
            if pos + 1 < 9: L += reads(pos + 1)
            kap = order[pos]
            for n, ks in enumerate(range(4*kap, 4*kap + 4)):
                left = (3 - n) + (4 if pos + 1 < 9 else 0)
                L += [o(f"s_waitcnt lgkmcnt({left})")]
                for i in range(4):
                    r = RX + 4*ks + i
                    L += [o(f"v_dot2_f32_bf16 v{SA+i}, v{r}, s{T5}, v{SA+i}"),
                          o(f"v_dot2_f32_bf16 v{SA+4+i}, v{r}, v{r}, v{SA+4+i}")]
        return L

    def ln_stats_old(self):
        L = []
        SA = 16
        for i in range(8): L += [o(f"v_mov_b32 v{SA+i}, 0")]
        L += [o(f"s_mov_b32 s{T5}, 0x3f803f80")]
        def reads(kap):
            return [wvm(("x", kap))] + [ds(f"ds_read_b128 v[{RX+4*ks}:{RX+4*ks+3}], v{V_XA+(ks&3)} offset:{(ks//4)*4096}", ("xr", ks)) for ks in range(4*kap, 4*kap+4)]
        L += reads(0)
        for kap in range(9):
            if kap + 1 < 9: L += reads(kap + 1)
            for ks in range(4*kap, 4*kap + 4):
                L += [wlg(("xr", ks))]
                for i in range(4):
                    r = RX + 4*ks + i
                    L += [o(f"v_dot2_f32_bf16 v{SA+i}, v{r}, s{T5}, v{SA+i}"),
                          o(f"v_dot2_f32_bf16 v{SA+4+i}, v{r}, v{r}, v{SA+4+i}")]
        return L

    def ln_finish(self):
        SA = 16
        L = [o("s_nop 2"),
             o(f"v_add_f32 v{SA}, v{SA}, v{SA+1}"), o(f"v_add_f32 v{SA+2}, v{SA+2}, v{SA+3}"),
             o(f"v_add_f32 v{SA+4}, v{SA+4}, v{SA+5}"), o(f"v_add_f32 v{SA+6}, v{SA+6}, v{SA+7}"),
             o(f"v_add_f32 v24, v{SA}, v{SA+2}"), o(f"v_add_f32 v26, v{SA+4}, v{SA+6}"),
             o("v_mov_b32 v25, v24"), o("v_mov_b32 v27, v26"), o("s_nop 1"),
             o("v_permlane32_swap_b32 v24, v25"), o("v_permlane32_swap_b32 v26, v27"), o("s_nop 1"),
             o("v_add_f32 v24, v24, v25"), o("v_add_f32 v26, v26, v27")] + ([o("v_add_f32 v24, v24, v32")] if (self.opts.get("drot") and self.opts.get("msum", 1)) else []) + [
             o(f"s_mov_b32 s{T5}, {f2u(1.0/576):#x}"),
             o(f"v_mul_f32 v24, s{T5}, v24"), o(f"v_mul_f32 v26, s{T5}, v26"),
             o("v_fma_f32 v26, -v24, v24, v26"), o("v_max_f32 v26, 0, v26"),
             o("v_cvt_pk_bf16_f32 v24, v24, v26"),
             o("v_and_b32 v26, 0xffff0000, v24"), o("v_lshlrev_b32 v24, 16, v24"),
             o(f"v_xor_b32 v{V_NEGMU}, 0x80000000, v24")]
        for i in range(1, 16): L += [o(f"v_mov_b32 v{V_NEGMU+i}, v{V_NEGMU}")]
        L += [o(f"v_add_f32 v26, {f2u(1e-5):#x}, v26"),
              o("v_cvt_pk_bf16_f32 v26, v26, v26"), o("v_lshlrev_b32 v26, 16, v26"),
              o("v_sqrt_f32 v26, v26"), o("s_nop 0"),
              o("v_cvt_pk_bf16_f32 v26, v26, v26"), o("v_lshlrev_b32 v26, 16, v26"),
              o("v_rcp_f32 v27, v26"), o(f"v_mul_f32 v{V_D2}, v26, v26"),
              o(f"v_mul_f32 v{V_C0}, {f2u(C0):#x}, v27"), o("v_mul_f32 v28, v27, v27"), o("v_mul_f32 v28, v28, v27"),
              o(f"v_mul_f32 v{V_C1}, {f2u(C1):#x}, v28"),
              o("v_and_b32 v28, 31, v0"), o("v_lshlrev_b32 v28, 2, v28"), o(f"s_lshl_b32 s{T0}, s{S_W}, 12"), o(f"s_add_u32 s{T0}, s{T0}, {SPARE}"),
              o(f"v_add_u32 v28, s{T0}, v28"), ds("ds_write_b32 v28, v27", "rtab")]
        return L

    def seg_norm_h(self):
        M = []; frags = []
        def UBf(i):
            if i == 0: return 16
            if i % 2 == 0: return RX + 8*(i - 2)
            return (32, 48, 16)[((i - 1)//2) % 3]
        def nextuser(i):
            for k in range(i + 1, 18):
                if UBf(k) == UBf(i): return k
            return None
        posU = {}; posH = {}
        def U(i):
            b = UBf(i)
            M.append(dict(op=32, acc=f"v[{b}:{b+15}]", first=True, C=f"v[{V_NEGMU}:{V_NEGMU+15}]", A=f"v[{V_PERM}:{V_PERM+3}]", B=f"v[{RX+8*i}:{RX+8*i+3}]", need=-1))
            M.append(dict(op=32, acc=f"v[{b}:{b+15}]", first=False, A=f"v[{V_PERM+4}:{V_PERM+7}]", B=f"v[{RX+8*i+4}:{RX+8*i+7}]", need=-1))
            posU[i] = len(M) - 2
        def H(ks):
            f = len(frags); a = AF + 4*(f % NAF)
            frags.append(dict(reads=[f"ds_read_b128 a[{a}:{a+3}], v{V_XA+(ks&3)} offset:{(ks//4)*4096}"], use=len(M)))
            M.append(dict(op=32, acc=f"v[{V_HACC}:{V_HACC+15}]", first=(ks == 0), A=f"a[{AX+4*ks}:{AX+4*ks+3}]", B=f"a[{a}:{a+3}]", need=f))
            posH[ks] = len(M) - 1
        LAG = 5
        for i in range(18):
            U(i)
            if i >= LAG: H(2*(i-LAG)); H(2*(i-LAG)+1)
        for i in range(18 - LAG, 18): H(2*i); H(2*i+1)
        last = -1
        for m in M:
            if m["need"] < 0: m["need"] = last
            else: last = m["need"]
        g0 = frags[0]["use"] - 6
        M[g0].setdefault("before", []).extend([wvm("wz1")] + self.h_special(S_A, 2, "a") + [o("s_waitcnt lgkmcnt(0)"), o("s_barrier")])
        def setup(sl, head):
            sl.put(2, [o('s_nop 4')]); sl.put(3, [o('s_nop 4')])
            for i in range(18):
                b = UBf(i)
                ins = []
                for q in range(8):
                    t = 2 + 2*(i % 4) + (q % 2)
                    ins += [o(f"v_cvt_pk_bf16_f32 v{t}, v{b+2*q}, v{b+2*q+1}"), o(f"v_accvgpr_write_b32 a{AX+8*i+q}, v{t}")]
                start = posU[i] + 1 + 3
                end = min(posH[2*i] - 1, start + 11)
                if nextuser(i) is not None: end = min(end, posU[nextuser(i)])
                e = sl.stream(ins, start, end, spill=0)
                assert e < posH[2*i] - 0, (i, e, posH[2*i])
        return self.paced(M, frags, setup, 6)

    def h_epilogue(self, zreg, acc, rr, tb):
        L = []
        sg, f1, f2, f3 = tb + 8, tb + 9, tb + 10, tb + 11
        L += [G([o(f"s_cmp_lt_u32 s{zreg}, 9"), o(f"s_cselect_b32 s{S_ST0}, 1.0, -1.0")]), o(f"v_mov_b32 v{sg}, s{S_ST0}"),
              G([o(f"s_cmp_eq_u32 s{zreg}, 9"), o(f"s_cselect_b32 s{S_ST0}, 0, 99")]),
              G([o(f"v_and_b32 v{f1}, 31, v0"), o(f"v_cmp_eq_u32 vcc, s{S_ST0}, v{f1}"), o(f"v_mov_b32 v{f2}, 1.0"), o("v_nop"),
                 o(f"v_cndmask_b32 v{sg}, v{sg}, v{f2}, vcc")]),
              G([o(f"s_or_b32 s{S_ST0}, s{S_MT}, s{S_W}"), o(f"s_cmp_eq_u32 s{S_ST0}, 0"), o(f"s_cselect_b32 s{S_ST0}, 32, 0")]),
              G([o(f"v_cmp_gt_u32 vcc, s{S_ST0}, v0"), o(f"v_mov_b32 v{tb}, 0"), o(f"v_mov_b32 v{tb+1}, 1.0"),
                 o(f"v_cndmask_b32 v{f1}, v{sg}, v{tb+1}, vcc"), o(f"v_cndmask_b32 v{f2}, v{tb+1}, v{tb}, vcc"), o(f"v_cndmask_b32 v{f3}, v{sg}, v{tb}, vcc")])]
        for r in range(16): L += [o(f"v_mul_f32 v{acc+r}, v{acc+r}, v{rr+r}")]
        L += [o(f"v_add_f32 v{tb+12}, v{acc+8}, v{acc+12}"), o(f"v_sub_f32 v{tb+13}, v{acc+8}, v{acc+12}"), o(f"v_mov_b32 v{tb+14}, 0"),
              G([o(f"v_cmp_lt_f32 vcc, 0, v{sg}"), o("v_nop"), o("v_nop"),
                 o(f"v_cndmask_b32 v{tb+12}, v{tb+14}, v{tb+12}, vcc"), o(f"v_cndmask_b32 v{tb+13}, v{tb+13}, v{tb+14}, vcc")])]
        for ii in range(4):
            s1, s3 = (f1, f3) if ii == 0 else (sg, sg)
            v0, v1, v2, v3 = acc + ii, acc + 4 + ii, acc + 8 + ii, acc + 12 + ii
            if ii == 0: L += [o(f"v_mul_f32 v{v2}, v{v2}, v{f2}")]
            L += [o(f"v_fma_f32 v{v0}, v{v3}, v{s3}, v{v0}"),
                  o(f"v_fma_f32 v{v1}, v{v1}, v{s1}, v{v2}"),
                  o(f"v_add_f32 v{tb+ii}, v{v0}, v{v1}"), o(f"v_sub_f32 v{tb+4+ii}, v{v0}, v{v1}")]
        L += [o(f"v_cvt_pk_bf16_f32 v{rr}, v{tb}, v{tb+1}"), o(f"v_cvt_pk_bf16_f32 v{rr+1}, v{tb+2}, v{tb+3}"),
              o(f"v_cvt_pk_bf16_f32 v{rr+2}, v{tb+4}, v{tb+5}"), o(f"v_cvt_pk_bf16_f32 v{rr+3}, v{tb+6}, v{tb+7}"),
              G([o("v_nop"), o("v_nop"), o(f"v_permlane32_swap_b32 v{rr}, v{rr+2}"), o(f"v_permlane32_swap_b32 v{rr+1}, v{rr+3}")]),
              o(f"v_lshrrev_b32 v{rr+4}, 5, v0"), o(f"v_mul_u32_u24 v{rr+4}, {ZF_TYPE}, v{rr+4}"),
              o(f"v_and_b32 v{rr+5}, 31, v0"), o(f"v_lshlrev_b32 v{rr+5}, 4, v{rr+5}"), o(f"v_add_u32 v{rr+4}, v{rr+4}, v{rr+5}"),
              G([o(f"s_mul_i32 s{S_ST0}, s{zreg}, {ZF_STRIDE}"), o(f"s_lshl_b32 s{S_ST1}, s{S_MT}, 2"), o(f"s_add_u32 s{S_ST1}, s{S_ST1}, s{S_W}")]),
              G([o(f"s_lshl_b32 s{S_ST1}, s{S_ST1}, 9"), o(f"s_add_u32 s{S_ST1}, s{S_ST1}, s{S_ST0}"), o(f"s_add_u32 s{S_ST1}, s{S_ST1}, {WS_ZF}")]),
              vm(f"buffer_store_dwordx4 v[{rr}:{rr+3}], v{rr+4}, s[{SR_WS}:{SR_WS+3}], s{S_ST1} offen sc1", "zst"),
              o(f"v_mov_b32 v{tb+14}, v{tb+12}"),
              G([o("v_nop"), o("v_nop"), o(f"v_permlane32_swap_b32 v{tb+14}, v{tb+13}")]),
              o(f"v_mov_b32 v{rr+9}, 0"), o(f"v_mov_b32 v{rr+10}, 0"), o(f"v_mov_b32 v{rr+11}, 0"),
              o(f"v_cvt_pk_bf16_f32 v{rr+8}, v{tb+14}, v{rr+9}"),
              G([o(f"s_or_b32 s{S_ST1}, s{S_MT}, s{S_W}"), o(f"s_cmp_eq_u32 s{S_ST1}, 0"), o(f"s_cselect_b32 s{S_C}, 0, {OOB:#x}")]),
              o(f"v_add_u32 v{rr+5}, s{S_C}, v{rr+4}"),
              o(f"s_add_u32 s{S_ST0}, s{S_ST0}, {WS_ZF + 32*1024}"),
              vm(f"buffer_store_dwordx4 v[{rr+8}:{rr+11}], v{rr+5}, s[{SR_WS}:{SR_WS+3}], s{S_ST0} offen sc1", "zst"),
              G([o(f"v_mov_b32 v{rr+12}, 0"), o(f"v_mov_b32 v{rr+13}, 0"), o(f"v_mov_b32 v{rr+14}, 0"), o(f"v_mov_b32 v{rr+15}, 0")])]
        for k in (512, 1024, 1536):
            L += [vm(f"buffer_store_dwordx4 v[{rr+12}:{rr+15}], v{rr+5}, s[{SR_WS}:{SR_WS+3}], s{S_ST0} offen offset:{k} sc1", "zst")]
        return L

    def rr_reads(self, rr, tmp, n=1):
        return [o(f"v_lshrrev_b32 v{tmp}, 5, v0"), o(f"v_lshlrev_b32 v{tmp}, 4, v{tmp}"), o(f"s_lshl_b32 s{S_C}, s{S_W}, 12"),
                o(f"s_add_u32 s{S_C}, s{S_C}, {SPARE}"), o(f"v_add_u32 v{tmp}, s{S_C}, v{tmp}")] + \
               [ds(f"ds_read_b128 v[{rr+4*q}:{rr+4*q+3}], v{tmp} offset:{32*q}", ("rr", n)) for q in range(4)] + [wlg(("rr", n))]

    def h2_block(self):
        L = [o(f"s_cmp_lt_u32 s{S_J}, 2"), o("s_cbranch_scc0 L_noz2b")]
        B = [o(f"v_add_u32 v{64+i}, {SLOT}, v{V_XA+i}") for i in range(4)]
        B += [o(f"s_waitcnt vmcnt({18 if self.opts.get('bearly') else 20})"), o("s_barrier")]
        def rd(ks):
            a_ = AF + 4*(ks % NAF)
            return o(f"ds_read_b128 a[{a_}:{a_+3}], v{64+(ks&3)} offset:{(ks//4)*4096}")
        for ks in range(6): B += [rd(ks)]
        for k in range(36):
            a_ = AF + 4*(k % NAF)
            n_out = min(5, 35 - k)
            B += [o(f"s_waitcnt lgkmcnt({n_out})"), mf32("v[128:143]", f"a[{AX+4*k}:{AX+4*k+3}]", f"a[{a_}:{a_+3}]", "0" if k == 0 else "v[128:143]")]
            if k + 6 < 36: B += [rd(k + 6)]
        B += [raw("L_noz2b:"),
              o(f"s_cmp_lt_u32 s{S_J}, 2"), o(f"s_cselect_b32 s{S_B}, s{S_B}, 0x4000")]
        return L + B

    def dma_p1(self, sig, slot, tA=226, tB=227):
        groups = []
        if sig < 16:
            u, mat, kh = sig // 4, (sig // 2) % 2, sig % 2
            rs = SR_WG if mat == 0 else SR_WU
            for grp, ts in enumerate([[0,1,2,3],[0,1,2,3],[0]]):
                g = [o(f"s_add_u32 m0, s{S_L9}, {slot*SLOT + grp*4096}"),
                     o(f"s_add_u32 s{S_D0}, s{S_UB+u}, {(kh*288 + grp*32)*9216}")]
                for t in ts:
                    groups.append(g + [vm(f"buffer_load_dwordx4 v{V_DM+t}, s[{rs}:{rs+3}], s{S_D0} offen offset:{t*1024} lds", ("st", sig))])
                    g = []
        else:
            rs = SR_WG if sig == 16 else SR_WU
            for grp, ts in enumerate([[0,1,2,3],[0,1,2,3],[0]]):
                g = []
                if sig == 16 and grp == 0:
                    groups.append([o(f"v_lshrrev_b32 v{tA}, 2, v0"), o(f"v_and_b32 v{tB}, 3, v0"), o(f"v_lshlrev_b32 v{tB}, 4, v{tB}")])
                    groups.append([o(f"v_mul_u32_u24 v{tA}, 9216, v{tA}"), o(f"v_add_u32 v{V_DM}, v{tA}, v{tB}")] +
                                  [o(f"v_add_u32 v{V_DM+t}, {t*(16*9216-1024)}, v{V_DM}") for t in range(1, 4)])
                g += [o(f"s_add_u32 m0, s{S_L9}, {slot*SLOT + grp*4096}"),
                      o(f"s_add_u32 s{S_D0}, s{S_UB+4}, {grp*64*9216}")]
                for t in ts:
                    groups.append(g + [vm(f"buffer_load_dwordx4 v{V_DM+t}, s[{rs}:{rs+3}], s{S_D0} offen offset:{t*1024} lds", ("st", sig))])
                    g = []
        return groups

    def dma_cs(self, mat, slot, tag, nop=False):
        rs = SR_CS if mat == 0 else SR_SS
        groups = []
        for l in range(2):
            for rho in range(4):
                groups.append([o(f"s_add_u32 m0, s{S_A}, {slot*SLOT + (4*l+rho)*1024 - 128*l}")] + ([o("s_nop 0")] if nop else []) +
                              [vm(f"buffer_load_dwordx4 v{V_SD+rho}, s[{rs}:{rs+3}], 0 offen offset:{128*l} lds", tag)])
        return groups
    def dma_cx(self, mat, tag):
        rs = SR_CS if mat == 0 else SR_SS
        return [[o(f"s_add_u32 m0, s{S_B}, {SPARE + mat*4096}"), o("s_nop 0"),
                 vm(f"buffer_load_dwordx4 v{V_SE}, s[{rs}:{rs+3}], 0 offen lds", tag)]]

    def dma_p2(self, st, slot, first128, tA, tB, tC):
        u, who = st
        groups = []
        if u < 4:
            tbl = S_N0 if who == "own" else S_N1
            if first128:
                groups.append([o(f"v_lshrrev_b32 v{tA}, 3, v0"), o(f"v_and_b32 v{tB}, 7, v0"), o(f"v_bfe_u32 v{tC}, v0, 4, 1")])
                groups.append([o(f"v_lshlrev_b32 v{tC}, 2, v{tC}"), o(f"v_xor_b32 v{tB}, v{tB}, v{tC}"), o(f"v_lshlrev_b32 v{tB}, 4, v{tB}")])
                groups.append([o(f"s_mul_i32 s{S_WD}, s{S_W}, {8*1152}")])
                groups.append([o(f"v_mul_u32_u24 v{tA}, 1152, v{tA}"), o(f"v_add_u32 v{V_DM}, v{tA}, v{tB}"), o(f"v_add_u32 v{V_DM}, s{S_WD}, v{V_DM}")])
                groups.append([o(f"s_lshl_b32 s{S_WD}, s{S_W}, 10")])
            for ip in range(9):
                groups.append([o(f"s_add_u32 m0, s{S_WD}, {slot*SLOT + ip*4096}"),
                               o(f"s_add_u32 s{S_D0}, s{tbl+ip}, s{S_CU+u}"),
                               vm(f"buffer_load_dwordx4 v{V_DM}, s[{SR_WD}:{SR_WD+3}], s{S_D0} offen lds", ("s2", st))])
        else:
            groups.append([o(f"v_lshrrev_b32 v{tA}, 2, v0"), o(f"v_and_b32 v{tB}, 3, v0"), o(f"v_lshlrev_b32 v{tB}, 4, v{tB}")])
            groups.append([o(f"v_mul_u32_u24 v{tA}, 1152, v{tA}"), o(f"v_add_u32 v{V_DM+1}, v{tA}, v{tB}")])
            for ip in range(9):
                ca, cb = 2*ip, 2*ip + 1
                ra = (S_N0 + ca) if ca < 9 else (S_N1 + ca - 9)
                rb = (S_N0 + cb) if cb < 9 else (S_N1 + cb - 9)
                groups.append([o(f"s_cmp_lt_u32 s{S_W}, 2"), o(f"s_cselect_b32 s{S_D0}, s{ra}, s{rb}"),
                               o(f"s_add_u32 s{S_D0}, s{S_D0}, s{S_CU+4}"), o(f"s_add_u32 s{S_D0}, s{S_D0}, s{S_C}"),
                               o(f"s_add_u32 m0, s{S_WD}, {slot*SLOT + ip*4096}")])
                groups.append([vm(f"buffer_load_dwordx4 v{V_DM+1}, s[{SR_WD}:{SR_WD+3}], s{S_D0} offen lds", ("s2", st))])
        return groups

    def geglu(self, c, toff=0):
        if c < 8: g, u = GA[(c//2) % 2][c % 2], UA[(c//2) % 2][c % 2]
        else: g, u = GA[0][0], UA[0][0]
        L = []
        for p in range(8):
            r0, r1 = 2*p, 2*p + 1
            b = TMP + 4*(p % 2) + toff
            xa, xb, ya, yb = b, b+1, b+2, b+3
            L += [o(f"v_mul_f32 v{xa}, v{g+r0}, v{g+r0}"), o(f"v_mul_f32 v{xb}, v{g+r1}, v{g+r1}"),
                  o(f"v_fma_f32 v{xa}, v{xa}, v{V_C1}, v{V_C0}"), o(f"v_fma_f32 v{xb}, v{xb}, v{V_C1}, v{V_C0}"),
                  o(f"v_mul_f32 v{xa}, v{g+r0}, v{xa}"), o(f"v_mul_f32 v{xb}, v{g+r1}, v{xb}"),
                  o(f"v_exp_f32 v{xa}, v{xa}"), o(f"v_exp_f32 v{xb}, v{xb}"),
                  o(f"v_mul_f32 v{ya}, v{g+r0}, v{u+r0}"), o(f"v_mul_f32 v{yb}, v{g+r1}, v{u+r1}"),
                  o(f"v_fma_f32 v{xa}, v{xa}, v{V_D2}, v{V_D2}"), o(f"v_fma_f32 v{xb}, v{xb}, v{V_D2}, v{V_D2}"),
                  o(f"v_rcp_f32 v{xa}, v{xa}"), o(f"v_rcp_f32 v{xb}, v{xb}"),
                  o(f"v_mul_f32 v{ya}, v{ya}, v{xa}"), o(f"v_mul_f32 v{yb}, v{yb}, v{xb}"),
                  o(f"v_cvt_pk_bf16_f32 v{HF + 8*c + p}, v{ya}, v{yb}")]
        return L
    def geglu_sig(self, c, toff=0):
        g = GA[(c//2) % 2][c % 2] if c < 8 else GA[0][0]
        L = []
        for p in range(8):
            r0, r1 = 2*p, 2*p + 1
            b = TMP + 2*(p % 2) + toff
            xa, xb = b, b + 1
            L += [o(f"v_mul_f32 v{xa}, v{g+r0}, v{g+r0}"), o(f"v_mul_f32 v{xb}, v{g+r1}, v{g+r1}"),
                  o(f"v_fma_f32 v{xa}, v{xa}, v{V_C1}, v{V_C0}"), o(f"v_fma_f32 v{xb}, v{xb}, v{V_C1}, v{V_C0}"),
                  o(f"v_mul_f32 v{xa}, v{g+r0}, v{xa}"), o(f"v_mul_f32 v{xb}, v{g+r1}, v{xb}"),
                  o(f"v_exp_f32 v{xa}, v{xa}"), o(f"v_exp_f32 v{xb}, v{xb}"), o("v_nop") if False else None,
                  o(f"v_fma_f32 v{xa}, v{xa}, v{V_D2}, v{V_D2}"), o(f"v_fma_f32 v{xb}, v{xb}, v{V_D2}, v{V_D2}"),
                  o(f"v_rcp_f32 v{xa}, v{xa}"), o(f"v_rcp_f32 v{xb}, v{xb}"),
                  o(f"v_mul_f32 v{g+r0}, v{g+r0}, v{xa}"), o(f"v_mul_f32 v{g+r1}, v{g+r1}, v{xb}")]
        return [i for i in L if i is not None]
    def geglu_fin(self, c, toff=0):
        if c < 8: g, u = GA[(c//2) % 2][c % 2], UA[(c//2) % 2][c % 2]
        else: g, u = GA[0][0], UA[0][0]
        L = []
        for p in range(8):
            r0, r1 = 2*p, 2*p + 1
            L += [o(f"v_mul_f32 v{g+r0}, v{g+r0}, v{u+r0}"), o(f"v_mul_f32 v{g+r1}, v{g+r1}, v{u+r1}"),
                  o(f"v_cvt_pk_bf16_f32 v{HF + 8*c + p}, v{g+r0}, v{g+r1}")]
        return L
    def hstore(self, c):
        st = S_ST0 + (c % 2)
        return [o(f"s_add_u32 s{st}, s{S_HB}, {2*c*1024}")] + self.dstore(
                [f"buffer_store_dwordx4 v[{HF+8*c}:{HF+8*c+3}], v{V_L16}, s[{SR_WS}:{SR_WS+3}], s{st} offen",
                 f"buffer_store_dwordx4 v[{HF+8*c+4}:{HF+8*c+7}], v{V_L16}, s[{SR_WS}:{SR_WS+3}], s{st} offen offset:1024"], "hst", True)

    def s_setup(self):
        a, b, c = V_SX, V_YC[0], V_YC[1]
        L = []
        L += [G([o(f"s_lshr_b32 s{S_TAU}, s{S_J}, 3"), o(f"s_lshl_b32 s{S_A}, s{S_W}, 13"), o(f"s_lshl_b32 s{S_B}, s{S_W}, 10")]),
              G([o(f"s_mul_i32 s{S_ZB}, s{S_TAU}, {ZF_TYPE}"), o(f"s_add_u32 s{S_ZB}, s{S_ZB}, s{S_A}"), o(f"s_add_u32 s{S_ZB}, s{S_ZB}, {WS_ZF}")])]
        L += [o(f"v_lshrrev_b32 v{a}, 3, v0"), o(f"v_and_b32 v{b}, 7, v0"), o(f"v_lshrrev_b32 v{c}, 1, v{a}"), o(f"v_xor_b32 v{b}, v{b}, v{c}"),
              o(f"v_lshlrev_b32 v{b}, 4, v{b}"), o(f"v_xor_b32 v{c}, 64, v{b}"),
              G([o(f"s_lshl_b32 s{S_C}, s{S_MT}, 5"), o(f"s_add_u32 s{S_C}, s{S_C}, s{S_TAU}")]),
              o(f"v_lshlrev_b32 v{a}, 1, v{a}"), o(f"v_add_u32 v{a}, s{S_C}, v{a}"),
              o(f"s_lshl_b32 s{S_C}, s{S_W}, 8"),
              o(f"v_add_u32 v{b}, s{S_C}, v{b}"), o(f"v_add_u32 v{c}, s{S_C}, v{c}"),
              o(f"v_lshlrev_b32 v{V_SD}, 12, v{a}"), o(f"v_add_u32 v{V_SD+1}, {16*4096}, v{V_SD}"),
              o(f"v_sub_u32 v{a}, 1024, v{a}"), o(f"v_lshlrev_b32 v{V_SD+2}, 12, v{a}"), o(f"v_subrev_u32 v{V_SD+3}, {16*4096}, v{V_SD+2}"),
              o(f"v_add_u32 v{V_SD}, v{V_SD}, v{b}"), o(f"v_add_u32 v{V_SD+1}, v{V_SD+1}, v{c}"),
              o(f"v_add_u32 v{V_SD+2}, v{V_SD+2}, v{b}"), o(f"v_add_u32 v{V_SD+3}, v{V_SD+3}, v{c}")]
        return L
    def s_setup_e(self, t0, t1):
        return [G([o(f"s_cmp_eq_u32 s{S_W}, 1"), o(f"s_cselect_b32 s{S_C}, 1, 0")]),
                o(f"v_mov_b32 v{V_SE}, v{V_SD}"),
                G([o(f"v_mov_b32 v{t0}, s{S_W}"), o(f"v_cmp_eq_u32 vcc, 1, v{t0}"), o("v_nop"), o("v_nop"), o(f"v_cndmask_b32 v{V_SE}, v{V_SE}, v{V_SD+1}, vcc")]),
                G([o(f"v_cmp_eq_u32 vcc, 2, v{t0}"), o("v_nop"), o("v_nop"), o(f"v_cndmask_b32 v{V_SE}, v{V_SE}, v{V_SD+2}, vcc")]),
                G([o(f"v_cmp_eq_u32 vcc, 3, v{t0}"), o("v_nop"), o("v_nop"), o(f"v_cndmask_b32 v{V_SE}, v{V_SE}, v{V_SD+3}, vcc")]),
                G([o(f"s_lshl_b32 s{S_C}, s{S_W}, 8"), o(f"s_sub_u32 s{S_C}, 1024, s{S_C}")]), o(f"v_add_u32 v{V_SE}, s{S_C}, v{V_SE}")]
    def s_setup2(self):
        a, b, c = V_SX, V_YC[0], V_YC[1]
        L = []
        L += [o(f"v_and_b32 v{a}, 15, v0"), o(f"v_lshrrev_b32 v{b}, 4, v0"), o(f"v_bfe_u32 v{c}, v0, 1, 3"), o(f"v_xor_b32 v{c}, v{c}, v{b}"),
              o(f"v_lshlrev_b32 v{c}, 4, v{c}"), o(f"v_lshlrev_b32 v{a}, 7, v{a}"), o(f"v_add_u32 v{a}, v{a}, v{c}"),
              o(f"v_add_u32 v{V_SA}, s{S_A}, v{a}"), o(f"v_add_u32 v{V_SA}, {2*SLOT}, v{V_SA}"), o(f"v_xor_b32 v{V_SA+1}, 64, v{V_SA}"),
              G([o(f"s_cmp_eq_u32 s{S_W}, 3"), o(f"s_cselect_b32 s{S_C}, {SPARE}, 0")]),
              G([o(f"s_add_u32 s{S_PF}, s{S_A}, {2*SLOT}"), o(f"s_cmp_eq_u32 s{S_W}, 3"), o(f"s_cselect_b32 s{S_C}, s{S_C}, s{S_PF}")]),
              o(f"v_add_u32 v{V_SA+2}, s{S_C}, v{a}"),
              G([o(f"s_movk_i32 s{S_PF}, 4096"), o(f"s_cmp_eq_u32 s{S_W}, 3"), o(f"s_cselect_b32 s{S_PF}, s{S_PF}, {SLOT}")]),
              o(f"v_add_u32 v{V_SA+3}, s{S_PF}, v{V_SA+2}")]
        return L
    def s_setup3(self, t0, t1, t2, t3):
        L = []
        L += [o(f"v_and_b32 v{t0}, 15, v0"), o(f"v_lshrrev_b32 v{t1}, 4, v0"),
              o(f"v_and_b32 v{t2}, 1, v{t1}"), o(f"v_lshlrev_b32 v{t2}, 9, v{t2}"),
              o(f"v_lshrrev_b32 v{t1}, 1, v{t1}"), o(f"v_lshlrev_b32 v{t1}, 10, v{t1}"), o(f"v_add_u32 v{t2}, v{t2}, v{t1}"),
              G([o(f"s_and_b32 s{S_C}, s{S_J}, 7"), o(f"s_mul_i32 s{S_C}, s{S_C}, 36")]),
              o(f"v_add_u32 v{t0}, s{S_C}, v{t0}")]
        for ss in range(3):
            pa, qa, yc = V_ZP + ss, V_ZQ + ss, V_YC[ss]
            L += [o(f"v_lshrrev_b32 v{t1}, 5, v{t0}"), o(f"v_mul_u32_u24 v{t1}, {ZF_STRIDE}, v{t1}"),
                  o(f"v_and_b32 v{t3}, 31, v{t0}"), o(f"v_lshlrev_b32 v{t3}, 4, v{t3}"), o(f"v_add_u32 v{t1}, v{t1}, v{t3}"),
                  o(f"v_add_u32 v{t1}, v{t1}, v{t2}"),
                  o(f"v_subrev_u32 v{t3}, s{S_C}, v{t0}"),
                  o(f"v_lshlrev_b32 v{yc}, 2, v{t0}"), o(f"v_mov_b32 v{qa}, {OOB:#x}"), o(f"v_mov_b32 v{pa}, {OOB:#x}"),
                  G([o(f"v_cmp_gt_u32 vcc, 36, v{t3}"), o("v_nop"), o("v_nop"), o(f"v_cndmask_b32 v{pa}, v{pa}, v{t1}, vcc")]),
                  o(f"v_add_u32 v{t3}, {9*ZF_STRIDE}, v{t1}"),
                  G([o(f"v_cndmask_b32 v{qa}, v{qa}, v{t3}, vcc")]),
                  G([o(f"v_cmp_eq_u32 vcc, 0x120, v{t0}"), o("v_nop"), o("v_nop"), o(f"v_cndmask_b32 v{pa}, v{pa}, v{t1}, vcc")]),
                  G([o(f"v_mov_b32 v{t3}, {OOB:#x}"), o(f"v_cmp_eq_u32 vcc, 0, v{t0}"), o("v_nop"), o("v_nop"), o(f"v_cndmask_b32 v{qa}, v{qa}, v{t3}, vcc")]),
                  G([o(f"v_cmp_eq_u32 vcc, v{t3}, v{pa}"), o("v_nop"), o("v_nop"), o(f"v_cndmask_b32 v{yc}, v{yc}, v{t3}, vcc")]),
                  o(f"v_add_u32 v{t0}, 16, v{t0}")]
        return L

    def phase2_setup(self):
        L = []
        L += [G([o(f"s_xor_b32 s{T6}, s{S_J}, 1"), o(f"s_and_b32 s{T2}, s{T6}, 1"), o(f"s_mul_i32 s{T0}, s{T6}, 288")]),
              G([o(f"s_mul_i32 s{T1}, s{T2}, 224"), o(f"s_add_u32 s{T1}, s{T0}, s{T1}")]),
              G([o(f"s_cmp_eq_u32 s{T2}, 0"), o(f"s_cselect_b32 s{T3}, 64, -64"), o(f"s_cselect_b32 s{T4}, 256, 0")]),
              o(f"s_add_u32 s{T4}, s{T4}, s{T0}")]
        for u in range(4):
            L += [G([o(f"s_mul_i32 s{T5}, s{T3}, {u}"), o(f"s_add_u32 s{T5}, s{T5}, s{T1}")]),
                  G([o(f"s_mul_i32 s{S_N1+2*u}, s{T5}, 1152"), o(f"s_add_u32 s{S_N1+2*u+1}, s{S_N1+2*u}, {32*1152}")])]
        L += [o(f"s_mul_i32 s{S_N1+8}, s{T4}, 1152")]
        L += [G([o(f"s_and_b32 s{T2}, s{S_J}, 1"), o(f"s_mul_i32 s{T0}, s{T2}, 640"), o(f"s_lshr_b32 s{T1}, s{S_J}, 2")])]
        for k in range(4):
            L += [G([o(f"s_add_u32 s{T3}, s{T1}, {(k+1) % 4 if k < 3 else 0}"), o(f"s_and_b32 s{T3}, s{T3}, 3"), o(f"s_lshl_b32 s{T3}, s{T3}, 7")]),
                  o(f"s_add_u32 s{S_CU+k}, s{T0}, s{T3}")]
        L += [G([o(f"s_cmp_eq_u32 s{T2}, 0"), o(f"s_cselect_b32 s{S_CU+4}, 0, 64")]), o(f"s_add_u32 s{S_CU+4}, s{S_CU+4}, 512")]
        return L

    def p2q_setup(self):
        L = [G([o(f"s_and_b32 s{T2}, s{S_J}, 1"), o(f"s_mul_i32 s{T3}, s{T2}, 10"), o(f"s_lshr_b32 s{T4}, s{S_J}, 2")])]
        for k, dst in enumerate(S_QU):
            L += [G([o(f"s_add_u32 s{T5}, s{T4}, {k+1}"), o(f"s_and_b32 s{T5}, s{T5}, 3"), o(f"s_lshl_b32 s{T5}, s{T5}, 1")]),
                  G([o(f"s_add_u32 s{T5}, s{T5}, s{T3}"), o(f"s_lshl_b32 s{T5}, s{T5}, 11"), o(f"s_add_u32 s{dst}, s{T5}, s{S_PB}")])]
        L += [G([o(f"s_lshl_b32 s{T5}, s{T4}, 1"), o(f"s_add_u32 s{T5}, s{T5}, s{T3}"), o(f"s_bfe_u32 s{T4}, s{S_J}, 0x10001")]),
              G([o(f"s_add_u32 s{S_TO}, s{T5}, s{T4}"), o(f"s_xor_b32 s{T4}, s{T4}, 1"), o(f"s_add_u32 s{T5}, s{T5}, s{T4}")]),
              G([o(f"s_lshl_b32 s{T5}, s{T5}, 11"), o(f"s_add_u32 s{S_QN}, s{T5}, s{S_PB}")]),
              G([o(f"s_add_u32 s{T5}, s{T2}, 8"), o(f"s_lshl_b32 s{T5}, s{T5}, 11"), o(f"s_add_u32 s{S_Q8}, s{T5}, s{S_PB}")])]
        return L

    def main(self):
        DIST = self.opts.get("dist", 7)
        M = []; frags = []
        fu = {}; lu = {}
        def addfrag(reads_fn, use, dist=None, stage=None):
            f = len(frags); a = AF + 4*(f % NAF)
            fr = dict(reads=reads_fn(a), use=use)
            if dist: fr["dist"] = dist
            frags.append(fr)
            if stage is not None and stage not in fu:
                fu[stage] = use; fr["stage_first"] = stage
            return f, a
        def tr(base, off, off2): return lambda a: [f"ds_read_b64_tr_b16 a[{a}:{a+1}], v{base} offset:{off}", f"ds_read_b64_tr_b16 a[{a+2}:{a+3}], v{base} offset:{off+off2}"]
        for u in range(4):
            for mat in range(2):
                for kh in range(2):
                    sig = 4*u + 2*mat + kh
                    for half in range(2):
                        acc = (GA if mat == 0 else UA)[u % 2][half]
                        for kk in range(18):
                            ks = kh*18 + kk; g = len(M)
                            f, a = addfrag(tr((V_RA if half == 0 else V_RB) + sig % 4, kk*2048, 512), g, stage=("st", sig))
                            M.append(dict(op=32, acc=f"v[{acc}:{acc+15}]", first=(ks == 0), A=f"a[{a}:{a+3}]", B=f"a[{AX+4*ks}:{AX+4*ks+3}]", need=f))
                            lu[("st", sig)] = g
        for mat in range(2):
            acc = (GA if mat == 0 else UA)[0][0]
            for ks in range(36):
                g = len(M)
                f, a = addfrag(tr(V_R8 + mat, ks*1024, 256), g, stage=("st", 16+mat))
                M.append(dict(op=32, acc=f"v[{acc}:{acc+15}]", first=(ks == 0), A=f"a[{a}:{a+3}]", B=f"a[{AX+4*ks}:{AX+4*ks+3}]", need=f))
                lu[("st", 16+mat)] = g
        S0 = len(M)
        def accP(tt, ss):
            i = tt*3 + ss
            return 48 + 4*i if i < 4 else 112 + 4*(i - 4)
        def accQ(tt, ss):
            i = tt*3 + ss
            return 64 + 4*i if i < 4 else 128 + 4*(i - 4)
        def zP(ss, k):
            i = k*3 + ss
            return f"a[{AZ+4*i}:{AZ+4*i+3}]"
        def zQ(ss, k):
            i = k*3 + ss
            if i < 5: return f"a[{AZ+60+4*i}:{AZ+60+4*i+3}]"
            i -= 5
            if i < 4: return f"v[{32+4*i}:{32+4*i+3}]"
            i -= 4
            if i < 4: return f"v[{96+4*i}:{96+4*i+3}]"
            i -= 4
            return f"a[{4*i}:{4*i+3}]"
        self.zP, self.zQ, self.accP, self.accQ = zP, zQ, accP, accQ
        for mat, accf, zf in ((0, accP, zP), (1, accQ, zQ)):
            for k in range(5):
                for tt in range(2):
                    g = len(M)
                    if k < 4:
                        base = V_SA + (k & 1); off = mat*SLOT + (k >> 1)*4096 + tt*2048
                        st = ("C" if mat == 0 else "S", 0)
                    else:
                        base = V_SA + 2 + mat; off = tt*2048; st = ("CX" if mat == 0 else "SX", 0)
                    f, a = addfrag(lambda a, base=base, off=off: [f"ds_read_b128 a[{a}:{a+3}], v{base} offset:{off}"], g, dist=8, stage=st)
                    for ss in range(3):
                        ac = accf(tt, ss)
                        M.append(dict(op=16, acc=f"v[{ac}:{ac+3}]", first=(k == 0), A=f"a[{a}:{a+3}]", B=zf(ss, k), need=f))
                        lu[st] = len(M) - 1
            if mat == 0: SP_END = len(M)
        P2_0 = len(M)
        stages = [(0, "own"), (1, "own"), (2, "own"), (0, "par"), (1, "par"), (2, "par"), (4, "both"), (3, "own"), (3, "par")]
        slot_order = [0, 1, 2, 0, 3, 1, 2, 0, 3]
        slot_of = {st: slot_order[i] for i, st in enumerate(stages)}
        ACC = {0: [32, 96], 1: [16, 80], 2: [48, 112], 3: [64, 128], 4: [32]}
        tile_last = {}
        def p2run(st, half, base, ks=None):
            u, who = st
            acc = ACC[u][half]
            for k in (ks or range(18)):
                g = len(M)
                f, a = addfrag(tr(base, k*2048, 1024), g, stage=("s2", st))
                M.append(dict(op=32, acc=f"v[{acc}:{acc+15}]", first=(who == "own" and k == 0), A=f"a[{a}:{a+3}]",
                              B=(f"v[{HF+4*k}:{HF+4*k+3}]" if who == "own" else f"a[{HPB+4*k}:{HPB+4*k+3}]"), need=f))
                tile_last[(u, half)] = g; lu[("s2", st)] = g
        for st in stages[:7]:
            u, who = st; slot = slot_of[st]
            if u < 4 and who == "par" and u in (0, 1) and self.opts.get("klate", 1):
                for rng in (range(12), range(12, 18)):
                    for half in range(2): p2run(st, half, (V_RA if half == 0 else V_RB) + slot, rng)
            elif u < 4:
                for half in range(2): p2run(st, half, (V_RA if half == 0 else V_RB) + slot)
            else:
                acc = ACC[4][0]
                for k in range(36):
                    g = len(M)
                    f, a = addfrag(tr(V_R8, k*1024, 512), g, stage=("s2", st))
                    M.append(dict(op=32, acc=f"v[{acc}:{acc+15}]", first=(k == 0), A=f"a[{a}:{a+3}]",
                                  B=(f"v[{HF+4*k}:{HF+4*k+3}]" if k < 18 else f"a[{HPB+4*(k-18)}:{HPB+4*(k-18)+3}]"), need=f))
                    tile_last[(4, 0)] = g; lu[("s2", st)] = g
        p2run((3, "own"), 0, V_LB); p2run((3, "par"), 0, V_LB + 1); p2run((3, "own"), 1, V_LB + 2); p2run((3, "par"), 1, V_LB + 3)
        N = len(M)
        last_use = {}
        for g, m in enumerate(M): last_use[m["need"]] = g
        for f, fr in enumerate(frags):
            d = fr.get("dist", DIST)
            t = fr["use"] - d
            if f >= NAF and t < last_use[f - NAF]: fr["dist"] = fr["use"] - last_use[f - NAF]
        for fr in frags:
            st = fr.get("stage_first")
            if st is None: continue
            if st[0] in ("st", "s2"):
                tags = [st]
                if st == ("st", 3): tags += ["zst", "flinit"]
                if st == ("st", 17) and self.opts.get("onepoll") != 1: tags += ["hst"]
                fr["pre"] = [wvm(tags), o("s_barrier")]
                if st == ("st", 17) and self.opts.get("onepoll") != 1:
                    fr["pre"] += [vm(f"buffer_store_dword v{V_ONE}, v{V_ONE0}, s[{SR_WS}:{SR_WS+3}], s{S_FL} offen sc1", "fl1")]
                if st == ("st", 3):
                    fr["pre"] += [vm(f"buffer_atomic_add v{V_ONE}, v{V_ONE0}, s[{SR_HZ}:{SR_HZ+3}], 0 offen offset:128 sc1", "zpub")]
            elif st == ("CX", 0):
                fr["pre"] = [wvm([("cs", ("CX", 0)), ("cs", ("SX", 0))]), o("s_barrier")]
            elif st == ("SX", 0):
                fr["pre"] = []
            else:
                fr["pre"] = [wvm(("cs", st))]
        stamps = {0: "p1", 144: "u1", 288: "u2", 432: "u3", 576: "u4", S0: "S0", SP_END: "SP", P2_0: "p2", P2_0 + 108: "p2b", P2_0 + 216: "p2c"}
        if self.opts.get("hdiag") == 2:
            stamps = {0: "p1", 144: "u1", 288: "u2", 432: "u3", 576: "u4", S0: "S0", P2_0: "p2", P2_0 + 108: "p2b", P2_0 + 216: "p2c"}
        if self.opts.get("fine") == 2:
            stamps = {0: "p1", S0: "S0", P2_0: "p2"}
            for k in range(9, 127, 9): stamps[P2_0 + k] = f"+{k}"
        elif self.opts.get("fine"):
            stamps = {0: "p1", 432: "u3", 576: "u4", 594: "s594", 612: "s612", 630: "s630", S0: "S0", 660: "s660", 672: "s672", 684: "s684", SP_END: "SP", 714: "s714", 726: "s726", 738: "s738", P2_0: "p2", P2_0 + 36: "a36", P2_0+72: "a72", P2_0 + 108: "p2b", P2_0 + 216: "p2c"}
        for g, name in stamps.items():
            if self.diag: M[g].setdefault("before", []).extend(self.stamp(name))
        self.tail2 = []
        if self.opts.get("jit"):
            j = self.opts["jit"]
            pts = {1: [(0, 7, 3), (300, 5, 1)], 2: [(P2_0 + 6, 3, 1), (600, 7, 6)], 3: [(P2_0 + 150, 7, 2), (P2_0 + 240, 3, 0), (100, 15, 9)]}[j]
            for n, (g, mask, val) in enumerate(pts):
                M[g].setdefault("before", []).extend(self.jitter(n, mask, val, 6))

        def setup(sl, head):
            rbar = {st: fu[st] - DIST for st in fu if st[0] in ("st", "s2")}
            for b in rbar.values():
                if b >= 0: sl.budget[b] = 4
            def fbar(t):
                sl.put(t, [o("s_barrier")])
            busy = {"end": -1}
            def place(groups, start, step=1):
                s = max(start, busy["end"] + 1)
                for grp in groups:
                    sl.put(s, grp); busy["end"] = s; s += step
                return s
            sl.put(2, [o(f"v_mov_b32 v{V_ONE}, 1")])
            eh = sl.stream(self.rr_reads(48, 112) + self.h_epilogue(S_A, V_HACC, 48, 64), 12, 46)
            eh = sl.stream(self.rr_reads(48, 112, 2) + self.h_epilogue(S_B, 128, 48, 64), eh + 1, eh + 34)
            assert eh < 92, eh
            for mat in range(2):
                slot = (16 + mat) % 4
                ins = [o("v_lshrrev_b32 v224, 5, v0"), o("v_lshlrev_b32 v224, 9, v224"),
                       o("v_bfe_u32 v225, v0, 2, 2"), o("v_lshlrev_b32 v225, 6, v225"), o("v_add_u32 v224, v224, v225"),
                       o("v_bfe_u32 v225, v0, 4, 1"), o("v_lshlrev_b32 v225, 5, v225"), o("v_add_u32 v224, v224, v225"),
                       o("v_and_b32 v225, 3, v0"), o("v_lshlrev_b32 v225, 3, v225"), o("v_add_u32 v224, v224, v225"),
                       o(f"v_add_u32 v{V_R8+mat}, {slot*SLOT}, v224")]
                sl.stream(ins, 70 + 20*mat, 88 + 20*mat)
            dma_end = {}
            for sig in range(2, 18):
                grps = self.dma_p1(sig, sig % 4)
                if sig == 2: start = 0
                elif sig == 3: start = 9*self.opts.get('dstep', 2)
                elif self.opts.get("fb", 1):
                    t = lu[("st", sig - 4)]; fbar(t); start = t + 1
                else:
                    start = min(b for b in rbar.values() if b >= lu[("st", sig - 4)]) + 1
                dma_end[sig] = place(grps, start, self.opts.get("dstep", 2))
            self.paced_prefetch(sl, dma_end)
            self.mode_check(sl, M)
            sl.put(590, [G([o(f"s_lshl_b32 s{S_FL}, s{S_LID}, 7"), o(f"s_add_u32 s{S_FL}, s{S_FL}, {WS_FLAG}")])])
            sl.put(592, [o(f"v_mov_b32 v{V_ONE}, 1")])
            e0 = sl.stream(self.geglu(0), 145, 211)
            sl.stream(self.hstore(0) + self.geglu(1) + self.hstore(1), max(e0 + 1, 212), 287)
            for u in range(1, 3):
                sl.stream(self.geglu(2*u) + self.hstore(2*u) + self.geglu(2*u+1) + self.hstore(2*u+1), 144*(u+1) + 1, 144*(u+2) - 1)
            es = sl.stream(self.s_setup(), eh + 1, eh + 11)
            es = sl.stream(self.s_setup2(), es + 1, es + 10)
            assert es < 118, es
            sl.stream(self.s_setup3(224, 225, 226, 227), max(es + 1, 112), 143)
            ep = sl.stream(self.phase2_setup(), 66, 100)
            assert ep < 110
            sl.stream(self.s_setup_e(229, 0), 440, 464)
            t = lu[("st", 14)]; fbar(t); e = place(self.dma_cs(0, 2, ("cs", ("C", 0))), t + 1, 2)
            place(self.dma_cx(0, ("cs", ("CX", 0))) + self.dma_cx(1, ("cs", ("SX", 0))), e, 2)
            t = lu[("st", 15)]; fbar(t); place(self.dma_cs(1, 3, ("cs", ("S", 0))), t + 1, 2)
            self.main_rest(sl, M, fu, lu, stages, slot_of, ACC, tile_last, S0, SP_END, P2_0, N, fbar, place)
        L = self.paced(M, frags, setup, DIST)
        return L + self.tail2

    def mode_check(self, sl, M):
        if not self.opts.get("local", 0): return
        t = 0
        ld = f"buffer_load_dwordx2 v[222:223], off, s[{SR_HZ}:{SR_HZ+3}], s{T5} sc1"
        ld = f"buffer_load_dwordx2 v[230:231], off, s[{SR_HZ}:{SR_HZ+3}], s{S_XC} sc1"
        if self.opts.get("cfg", 0) == 0:
            ld = f"buffer_load_dword v230, off, s[{SR_HZ}:{SR_HZ+3}], s{S_XC} sc1"
            sl.put(140, [G([o(f"s_lshr_b32 s{S_XC}, s{S_LID}, 3"), o(f"s_lshl_b32 s{S_XC}, s{S_XC}, 2")])])
        else:
            sl.put(140, [G([o(f"s_lshl_b32 s{S_XC}, s{S_MT}, 3")])])
        sl.put(143, [vm(ld, "xcc")])
        sl.put(205, [wvm("xcc")])
        sl.put(206, [o(f"v_readfirstlane_b32 s{T6}, v230"), o(f"v_readfirstlane_b32 s{T7}, v231")])
        def nz(r, tmp):
            return [o(f"s_lshr_b32 s{tmp}, s{r}, 1"), o(f"s_or_b32 s{tmp}, s{tmp}, s{r}"), o(f"s_lshr_b32 s{T3}, s{tmp}, 2"), o(f"s_or_b32 s{tmp}, s{tmp}, s{T3}"),
                    o(f"s_and_b32 s{tmp}, s{tmp}, 0x11111111")]
        chk = nz(T6, T1) + nz(T7, T2) + [o(f"s_and_b32 s{T1}, s{T1}, s{T2}"), o(f"s_cmp_eq_u32 s{T1}, 0x11111111")]
        if self.opts.get("cfg", 0) == 0:
            ld = f"buffer_load_dword v230, off, s[{SR_HZ}:{SR_HZ+3}], s{S_XC} sc1"
            ext = [o(f"s_and_b32 s{T1}, s{S_LID}, 6"), o(f"s_lshl_b32 s{T1}, s{T1}, 2"), o(f"s_lshr_b32 s{T2}, s{T6}, s{T1}"),
                   o(f"s_and_b32 s{T3}, s{T2}, 15"), o(f"s_bfe_u32 s{T2}, s{T2}, 0x40004"),
                   o(f"s_min_u32 s{T1}, s{T2}, s{T3}"), o(f"s_cmp_ge_u32 s{T1}, 1")]
            blk = ext + [o("s_cbranch_scc1 L_xc_ok")] + self.spin("L_xc", [o(ld)], [o(f"v_readfirstlane_b32 s{T6}, v230"), o("s_nop 3")] + ext)
            blk += [o(f"s_cmp_eq_u32 s{T2}, s{T3}"), o(f"s_cselect_b32 s{S_MODE}, 1, 0")]
            if self.opts.get("forceglobal"): blk += [o(f"s_mov_b32 s{S_MODE}, 0")]
            M[209].setdefault("before", []).extend(blk)
            return
        blk = chk + [o("s_cbranch_scc1 L_xc_ok")] + self.spin("L_xc", [o(ld)],
              [o(f"v_readfirstlane_b32 s{T6}, v230"), o(f"v_readfirstlane_b32 s{T7}, v231"), o("s_nop 3")] + chk)
        blk += [o(f"s_and_b32 s{T1}, s{T6}, 15"), o(f"s_mul_i32 s{T1}, s{T1}, 0x11111111"),
                o(f"s_cmp_eq_u32 s{T1}, s{T6}"), o(f"s_cselect_b32 s{S_MODE}, 1, 0"),
                o(f"s_cmp_eq_u32 s{T1}, s{T7}"), o(f"s_cselect_b32 s{S_MODE}, s{S_MODE}, 0")]
        if self.opts.get("forceglobal"): blk += [o(f"s_mov_b32 s{S_MODE}, 0")]
        M[209].setdefault("before", []).extend(blk)

    def bulk(self, sl, t):
        bk = [G([o(f"s_lshl_b32 s{S_PF}, s{S_LID}, 2"), o(f"s_add_u32 s{S_PF}, s{S_PF}, s{S_W}"), o(f"s_mul_i32 s{S_PF}, s{S_PF}, 41")]),
              o(f"v_add_u32 v{V_PF}, s{S_PF}, v0"), o(f"v_lshlrev_b32 v{V_PF}, 7, v{V_PF}"),
              G([o("v_cmp_gt_u32 vcc, 41, v0"), o("v_nop"), o("v_nop"), o(f"v_cndmask_b32 v{V_PF}, v{V_ONE0}, v{V_PF}, vcc")])]
        e = sl.stream(bk, t, t + 5, spill=2)
        sl.put(e + 1, [vm(f"buffer_load_dword v{V_PF}, v{V_PF}, s[{SR_WG}:{SR_WG+3}], 0 offen", "pf")])
        sl.put(e + 2, [vm(f"buffer_load_dword v{V_PF}, v{V_PF}, s[{SR_WU}:{SR_WU+3}], 0 offen", "pf")])
        return e + 2

    def paced_prefetch(self, sl, dma_end):
        if self.opts.get("bulkat", 0) == 1:
            bk = [G([o(f"s_lshl_b32 s{S_PF}, s{S_LID}, 2"), o(f"s_add_u32 s{S_PF}, s{S_PF}, s{S_W}"), o(f"s_mul_i32 s{S_PF}, s{S_PF}, 41")]),
                  o(f"v_add_u32 v230, s{S_PF}, v0"), o(f"v_lshlrev_b32 v230, 7, v230"),
                  G([o("v_cmp_gt_u32 vcc, 41, v0"), o("v_nop"), o("v_nop"), o(f"v_cndmask_b32 v230, v{V_ONE0}, v230, vcc")])]
            e = sl.stream(bk, 0, 8, spill=2)
            assert e < 12
            s = dma_end[self.opts.get("bulkst", 3)]
            sl.put(s, [vm(f"buffer_load_dword v{V_PF}, v230, s[{SR_WG}:{SR_WG+3}], 0 offen", "pf")])
            sl.put(s + 1, [vm(f"buffer_load_dword v{V_PF}, v230, s[{SR_WU}:{SR_WU+3}], 0 offen", "pf")])
        if not self.opts.get("ppf", 1): return
        Dd, Cc, t = 228, 229, 227
        if self.opts.get("lbulk"):
            first = [G([o(f"s_lshl_b32 s{S_PF}, s{S_MT}, 2"), o(f"s_add_u32 s{S_PF}, s{S_PF}, s{S_W}"), o(f"s_mul_i32 s{S_PF}, s{S_PF}, 41")]),
                     G([o(f"s_mul_i32 s{S_C}, s{S_J}, 2592"), o(f"s_add_u32 s{S_PF}, s{S_PF}, s{S_C}")])]
        else:
            first = [G([o(f"s_lshl_b32 s{S_PF}, s{S_LID}, 2"), o(f"s_add_u32 s{S_PF}, s{S_PF}, s{S_W}"), o(f"s_mul_i32 s{S_PF}, s{S_PF}, 41")])]
        setup = first + [
                 o(f"v_add_u32 v{Dd}, s{S_PF}, v0"), o(f"v_lshlrev_b32 v{Dd}, 7, v{Dd}"), o(f"v_mov_b32 v{t}, {OOB:#x}"),
                 G([o("v_cmp_gt_u32 vcc, 41, v0"), o("v_nop"), o("v_nop"), o(f"v_cndmask_b32 v{Dd}, v{t}, v{Dd}, vcc")]),
                 G([o(f"s_and_b32 s{S_PF}, s{S_J}, 7"), o(f"s_lshl_b32 s{S_PF}, s{S_PF}, 2"), o(f"s_add_u32 s{S_PF}, s{S_PF}, s{S_W}")]),
                 G([o(f"s_and_b32 s{S_C}, s{S_PF}, 15"), o(f"s_lshl_b32 s{S_C}, s{S_C}, 1"), o(f"s_add_u32 s{S_C}, s{S_C}, s{S_TAU}")]),
                 G([o(f"s_lshl_b32 s{S_ST0}, s{S_MT}, 5"), o(f"s_add_u32 s{S_C}, s{S_C}, s{S_ST0}"), o(f"s_sub_u32 s{S_ST0}, 1024, s{S_C}")]),
                 G([o(f"s_cmp_lt_u32 s{S_PF}, 16"), o(f"s_cselect_b32 s{S_PF}, s{S_C}, s{S_ST0}"), o(f"s_lshl_b32 s{S_PF}, s{S_PF}, 12")]),
                 o(f"v_lshlrev_b32 v{Cc}, 7, v0"), o(f"v_add_u32 v{Cc}, s{S_PF}, v{Cc}"),
                 G([o("v_cmp_gt_u32 vcc, 9, v0"), o("v_nop"), o("v_nop"), o(f"v_cndmask_b32 v{Cc}, v{t}, v{Cc}, vcc")])]
        e = sl.stream(setup, 146, 176)
        s = dma_end[self.opts.get("pfw", 9)]
        assert s > e + 6
        if self.opts.get("bulk", 1) != 2: sl.put(s, [vm(f"buffer_load_dword v{V_PF}, v{Dd}, s[{SR_WD}:{SR_WD+3}], 0 offen", "pf")])
        if self.opts.get("wdl2", 1):
            A2, t2 = 230, 226
            st2 = [G([o(f"s_and_b32 s{S_PF}, s{S_MT}, 7"), o(f"s_mul_i32 s{S_PF}, s{S_PF}, 36"), o(f"s_mul_i32 s{S_C}, s{S_W}, 9")]),
                   o(f"s_add_u32 s{S_PF}, s{S_PF}, s{S_C}"), o(f"v_add_u32 v{t2}, s{S_PF}, v0"), o(f"v_mul_u32_u24 v{t2}, 1152, v{t2}"),
                   o(f"v_mov_b32 v227, {OOB:#x}"),
                   G([o("v_cmp_gt_u32 vcc, 9, v0"), o("v_nop"), o("v_nop"), o(f"v_cndmask_b32 v{t2}, v227, v{t2}, vcc")])]
            e2 = sl.stream(st2, 474, 486)
            def wl(own, k, t):
                sl.put(t, [G([o(f"s_{'mul_i32' } s{S_PF}, s{S_J if own else S_J}, {288*1152}")] + ([] if own else [o(f"s_xor_b32 s{S_C}, s{S_J}, 1"), o(f"s_mul_i32 s{S_PF}, s{S_C}, {288*1152}")]) + [o(f"s_add_u32 s{S_PF}, s{S_PF}, s{S_CU+k}")])])
                sl.put(t + 1, [vm(f"buffer_load_dword v{V_PF}, v{t2}, s[{SR_WD}:{SR_WD+3}], s{S_PF} offen", "pf")])
            s = dma_end[16]; wl(True, 0, s); wl(True, 1, s + 2)
            s = dma_end[17]; wl(True, 2, s); wl(False, 0, s + 2)
        if self.opts.get("l2pf"):
            PFA = 231
            st3 = [G([o(f"s_and_b32 s{S_PF}, s{S_MT}, 7"), o(f"s_mul_i32 s{S_PF}, s{S_PF}, 36"), o(f"s_mul_i32 s{S_XC}, s{S_W}, 9")]),
                   o(f"s_add_u32 s{S_PF}, s{S_PF}, s{S_XC}"), o(f"v_add_u32 v{PFA}, s{S_PF}, v0"), o(f"v_mul_u32_u24 v{PFA}, 9216, v{PFA}"),
                   G([o("v_cmp_gt_u32 vcc, 9, v0"), o("v_nop"), o("v_nop"), o(f"v_cndmask_b32 v{PFA}, v{V_ONE0}, v{PFA}, vcc")])]
            e3 = sl.stream(st3, 104, 110, spill=1)
            assert e3 < 112
            AH = self.opts.get("l2ah", 2)
            for sig in sorted(dma_end):
                tgt = sig + AH
                s3 = dma_end[sig]
                if s3 <= e3 + 1 or tgt > 17: continue
                if sig in (self.opts.get("pfw", 9), self.opts.get("pfc", 11)): s3 += 3
                if tgt < 16:
                    u, mat, kh = tgt // 4, (tgt // 2) % 2, tgt % 2
                    rs = SR_WG if mat == 0 else SR_WU
                    sl.put(s3, [G([o(f"s_mul_i32 s{S_XC}, s{S_W}, {72*9216}"), o(f"s_sub_u32 s{S_XC}, s{S_UB+u}, s{S_XC}"), o(f"s_add_u32 s{S_XC}, s{S_XC}, {kh*288*9216}")])])
                    sl.put(s3 + 1, [vm(f"buffer_load_dword v{V_PF}, v{PFA}, s[{rs}:{rs+3}], s{S_XC} offen", "pf")])
                else:
                    rs = SR_WG if tgt == 16 else SR_WU
                    sl.put(s3, [G([o(f"s_mul_i32 s{S_XC}, s{S_W}, {144*9216}"), o(f"s_sub_u32 s{S_XC}, s{S_UB+4}, s{S_XC}")])])
                    sl.put(s3 + 1, [vm(f"buffer_load_dword v{V_PF}, v{PFA}, s[{rs}:{rs+3}], s{S_XC} offen", "pf")])
                    sl.put(s3 + 2, [o(f"s_add_u32 s{S_XC}, s{S_XC}, {288*9216}")])
                    sl.put(s3 + 3, [vm(f"buffer_load_dword v{V_PF}, v{PFA}, s[{rs}:{rs+3}], s{S_XC} offen", "pf")])
        s = dma_end[self.opts.get("pfc", 11)]
        sl.put(s, [vm(f"buffer_load_dword v{V_PF}, v{Cc}, s[{SR_CS}:{SR_CS+3}], 0 offen", "pf")])
        sl.put(s + 1, [vm(f"buffer_load_dword v{V_PF}, v{Cc}, s[{SR_SS}:{SR_SS+3}], 0 offen", "pf")])

    def rowmir(self, sRB, sT, t0, t1, t2, t3):
        return [o(f"s_lshl_b32 s{sT}, s{sRB}, 3"), o(f"v_and_b32 v{t0}, 7, v0"), o(f"v_add_u32 v{t0}, s{sT}, v{t0}"),
                o(f"v_bfe_u32 v{t1}, v0, 3, 2"),
                o(f"v_add_u32 v{t2}, 1, v{t1}"), o(f"v_lshrrev_b32 v{t2}, 1, v{t2}"), o(f"v_lshlrev_b32 v{t2}, 10, v{t2}"),
                o(f"v_add_u32 v{t3}, v{t2}, v{t0}"), o(f"v_sub_u32 v{t2}, v{t2}, v{t0}"),
                o(f"v_and_b32 v{t1}, 1, v{t1}"),
                G([o(f"v_cmp_eq_u32 vcc, 1, v{t1}"), o("v_nop"), o("v_nop"), o(f"v_cndmask_b32 v{t3}, v{t3}, v{t2}, vcc")]),
                o(f"v_bfe_u32 v{t1}, v0, 3, 2"), o(f"v_lshlrev_b32 v{t2}, 10, v{t1}"), o(f"v_subrev_u32 v{t2}, 0x600, v{t2}"),
                G([o(f"v_cmp_le_u32 vcc, 2, v{t1}"), o("v_nop"), o("v_nop"), o(f"v_cndmask_b32 v{t2}, v{t3}, v{t2}, vcc")]),
                G([o(f"v_cmp_eq_u32 vcc, 0, v{t0}"), o("v_nop"), o("v_nop"), o(f"v_cndmask_b32 v{t0}, v{t3}, v{t2}, vcc")]),
                o(f"v_sub_u32 v{t1}, 2048, v{t0}"), o(f"v_and_b32 v{t1}, 0x7ff, v{t1}")]

    def owner_addr(self):
        sQ = S_TO
        t0, t1, t2, t3 = 244, 245, 246, 247
        L = [G([o(f"s_lshl_b32 s{T4}, s{S_MT}, 2"), o(f"s_add_u32 s{T4}, s{T4}, s{S_W}")]),
             G([o(f"s_mul_i32 s{T5}, s{T4}, 18"), o(f"s_add_u32 s{T5}, s{T5}, s{sQ}"), o(f"s_lshl_b32 s{T5}, s{T5}, 11")]),
             o(f"s_lshr_b32 s{T3}, s{S_J}, 1")]
        i = 0
        for dd in (3, 2, 1):
            for b_ in range(2):
                L += [G([o(f"s_lshr_b32 s{16+i}, s{T3}, 1"), o(f"s_add_u32 s{16+i}, s{16+i}, {dd}"), o(f"s_and_b32 s{16+i}, s{16+i}, 3")]),
                      G([o(f"s_lshl_b32 s{16+i}, s{16+i}, 1"), o(f"s_add_u32 s{16+i}, s{16+i}, {b_}"), o(f"s_mul_i32 s{16+i}, s{16+i}, {PART_BYTES}")]),
                      o(f"s_add_u32 s{16+i}, s{16+i}, s{T5}")]
                i += 1
        L += [G([o(f"s_xor_b32 s22, s{T3}, 1"), o(f"s_mul_i32 s22, s22, {PART_BYTES}"), o(f"s_add_u32 s22, s22, s{T5}")])]
        L += self.rowmir(T4, T5, t0, t1, t2, t3) + [
              o(f"s_lshl_b32 s{T5}, s{sQ}, 6"),
              o(f"v_mul_u32_u24 v{t2}, 1152, v{t0}"), o(f"v_add_u32 v{t2}, s{T5}, v{t2}"),
              o(f"v_lshrrev_b32 v{t3}, 5, v0"), o(f"v_lshlrev_b32 v238, 4, v{t3}"), o(f"v_add_u32 v238, v{t2}, v238"),
              o(f"v_lshlrev_b32 v237, 3, v{t3}"), o(f"v_add_u32 v237, v{t2}, v237"),
              G([o(f"s_lshl_b32 s{T5}, s{sQ}, 7"), o(f"s_cmp_lt_u32 s{sQ}, 9"), o(f"s_cselect_b32 s24, 0, 1")]),
              G([o(f"s_sub_u32 s{T4}, {2292 - 96}, s{T5}"), o(f"s_cmp_lt_u32 s{sQ}, 9"), o(f"s_cselect_b32 s{T5}, s{T5}, s{T4}"), o(f"s_cselect_b32 s{T4}, 1, -1")]),
              G([o(f"v_mov_b32 v{t2}, s24"), o(f"v_cmp_eq_u32 vcc, 1, v{t2}"), o("v_nop"), o("v_nop"), o(f"v_cndmask_b32 v{t0}, v{t0}, v{t1}, vcc")]),
              o(f"v_mul_u32_u24 v{t0}, {YP}, v{t0}"), o(f"v_add_u32 v{t0}, s{T5}, v{t0}"),
              o(f"v_lshlrev_b32 v{t3}, 4, v{t3}"), o(f"v_mul_lo_u32 v{t3}, v{t3}, s{T4}"), o(f"v_add_u32 v{t0}, v{t0}, v{t3}"),
              o(f"v_add_u32 v239, {WS_YH}, v{t0}")]
        return L

    def pipe_reduce(self, sl, M, fu, lu, P2_0, N):
        self.items_cfg()
        t4 = P2_0 + self.opts.get("t4", 254)
        sl.put(t4 - 3, [o("v_mov_b32 v240, 4")])
        sl.put(t4, [wvm([("pst", 0), ("pst", 1), ("pst", 2), "yst"]), o("s_barrier")])
        sl.put(t4 + 1, [vm(f"buffer_store_dword v240, v{V_ONE0}, s[{SR_WS}:{SR_WS+3}], s{S_FL} offen sc1", "fl4")])
        ep = sl.stream(self.p2q_setup(), P2_0 + 102, P2_0 + 124)
        assert ep < P2_0 + 132
        s_own, s_par = 0, 3
        lb = [G([o(f"s_bfe_u32 s{T5}, s{S_J}, 0x10001"), o(f"s_lshl_b32 s{T5}, s{T5}, 6"), o(f"s_xor_b32 s{T4}, s{T5}, 64")]),
              o(f"v_xor_b32 v{V_LB}, s{T4}, v{V_RA+s_own}"), o(f"v_xor_b32 v{V_LB+1}, s{T4}, v{V_RA+s_par}"),
              o(f"v_xor_b32 v{V_LB+2}, s{T5}, v{V_RA+s_own}"), o(f"v_xor_b32 v{V_LB+3}, s{T5}, v{V_RA+s_par}")]
        sl.stream(lb, P2_0 + 190, P2_0 + 200)
        e = sl.stream(self.owner_addr(), P2_0 + 204, P2_0 + 250)
        e = sl.stream([G([o(f"s_lshl_b32 s{T6}, s{S_MT}, 11"), o(f"s_add_u32 s{T6}, s{T6}, {WS_FLAG}")]),
                       G([o(f"s_and_b32 s{S_PM}, s{S_J}, 1"), o(f"s_lshl_b32 s{S_PM}, 0x5555, s{S_PM}")]),
                       o("v_lshlrev_b32 v242, 7, v0"), o(f"v_mov_b32 v241, {OOB:#x}"),
                       G([o("v_cmp_gt_u32 vcc, 16, v0"), o("v_nop"), o("v_nop"), o("v_cndmask_b32 v242, v241, v242, vcc")])], e + 1, e + 8)
        for i in range(4): sl.put(e + 2 + i, [vm(f"buffer_load_dwordx2 v[{24+2*i}:{25+2*i}], v237, s[{SR_X}:{SR_X+3}], 0 offen offset:{16*i}", "ox")])
        def ploads(i0, i1):
            out = []
            for i in range(i0, i1):
                out += [vm(f"buffer_load_dwordx4 v[{80+8*i}:{83+8*i}], v{V_L16}, s[{SR_WS}:{SR_WS+3}], s{16+i} offen sc1", "op"),
                        vm(f"buffer_load_dwordx4 v[{84+8*i}:{87+8*i}], v{V_L16}, s[{SR_WS}:{SR_WS+3}], s{16+i} offen offset:1024 sc1", "op")]
            return out
        yl = [vm(f"buffer_load_dwordx4 v[{48+4*i}:{51+4*i}], v239, s[{SR_WS}:{SR_WS+3}], 0 offen offset:{32*i} sc1", "op") for i in range(4)]
        self.late_loads = []
        if self.opts.get("split3", 1):
            t3 = P2_0 + self.opts.get("t3", 212)
            sl.put(t3 - 3, [o("v_mov_b32 v240, 3")])
            sl.put(t3, [wvm([("pst", 0), ("pst", 1), "yst"]), o("s_barrier")])
            sl.put(t3 + 1, [vm(f"buffer_store_dword v240, v{V_ONE0}, s[{SR_WS}:{SR_WS+3}], s{S_FL} offen sc1", "fl3")])
            tp3 = max(e + 7, P2_0 + self.opts.get("tp3", 258))
            ld, chk = self.group_poll("L_g3", 3, 241, 242)
            sl.put(tp3, [vm(ld, "gp3")])
            sl.put(tp3 + 9, [wvm("gp3")])
            M[tp3 + 11].setdefault("before", []).extend(chk + [o("s_cbranch_scc1 L_g3_ok")] + self.spin("L_g3", [o(ld)], chk))
            s = tp3 + 11
            for l in ploads(0, 4) + yl:
                sl.put(s, [l]); s += 2
            lds = ploads(4, 6)
            tpoll = max(s, P2_0 + self.opts.get("tpa", 300))
        else:
            lds = ploads(0, 6) + yl
            tpoll = max(e + 7, P2_0 + self.opts.get("tpa", 284))
        ld, chk = self.group_poll("L_gA", 4, 241, 242)
        sl.put(tpoll, [vm(ld, "gpA")])
        sl.put(tpoll + 9, [wvm("gpA")])
        M[tpoll + 11].setdefault("before", []).extend(chk + [o("s_cbranch_scc1 L_gA_ok")] + self.spin("L_gA", [o(ld)], chk))
        s = tpoll + 11
        stp = self.opts.get("ostep", 2)
        for l in lds:
            if s < N - 1: sl.put(s, [l]); s += stp
            else: self.late_loads.append(l)
        print("owner loads: in loop until", s, "late:", len(self.late_loads), "N", N)
        t5 = N - self.opts.get("t5", 10)
        sl.put(t5 - 3, [o("v_mov_b32 v240, 5")])
        sl.put(t5, [wvm([("pst", 3), ("pst", 4)]), o("s_barrier")])
        sl.put(t5 + 1, [vm(f"buffer_store_dword v240, v{V_ONE0}, s[{SR_WS}:{SR_WS+3}], s{S_FL} offen sc1", "fl5")])
        self.RDx = dict(P=("v", 176), X=208, Y=212, OA=220, PV=221, t=[222, 223, 224, 225], rev=26, so=84)
        Ad, Ld = self.item_setup("D", self.RDx, split=True)
        self.D_ld = Ld
        eD = sl.stream(Ad, N - 17, N - 1, spill=0)
        print("D addr until", eD)

    def jitter(self, n, mask, val, iters):
        return [o(f"s_and_b32 s97, s{S_LID}, {mask}"), o(f"s_cmp_eq_u32 s97, {val}"), o(f"s_cbranch_scc0 L_jit{n}"),
                o(f"s_mov_b32 s97, {iters}"), raw(f"L_jl{n}:"), o("s_sleep 64"), o("s_sub_u32 s97, s97, 1"), o("s_cmp_lg_u32 s97, 0"),
                o(f"s_cbranch_scc1 L_jl{n}"), raw(f"L_jit{n}:")]

    def spin(self, label, load, cond_ok, regs_note=""):
        return [o(f"s_mov_b32 s{S_CNT}, 0"), raw(f"{label}:")] + load + [o("s_waitcnt vmcnt(0)")] + cond_ok + \
               [o(f"s_cbranch_scc1 {label}_ok"), o(f"s_add_u32 s{S_CNT}, s{S_CNT}, 1"), o(f"s_cmp_gt_u32 s{S_CNT}, 0x40000"), o(f"s_cbranch_scc1 {label}_ok"),
                o("s_sleep 1"), o(f"s_branch {label}"), raw(f"{label}_ok:")]

    def main_rest(self, sl, M, fu, lu, stages, slot_of, ACC, tile_last, S0, SP_END, P2_0, N, fbar, place):
        zP, zQ, accP, accQ = self.zP, self.zQ, self.accP, self.accQ
        DIST = self.opts.get("dist", 7)
        if self.opts.get("esig", 1) == 2:
            e = sl.stream(self.geglu_sig(7, 8), 508, 576)
            e6 = sl.stream(self.geglu(6) + self.hstore(6), 577, 618)
            e7 = sl.stream(self.geglu_fin(7) + self.hstore(7), max(e6 + 1, e + 1, 580), max(e6 + 1, 580) + 8)
            assert e7 < S0 - 2, e7
            e8 = sl.stream(self.geglu_sig(8, 8), 616, S0 + 2)
            e8 = sl.stream(self.geglu_fin(8) + self.hstore(8), max(e8 + 1, S0 + 4), S0 + 16)
            self.e8 = e8
        elif self.opts.get("esig", 1):
            e = sl.stream(self.geglu_sig(6, 8), 490, 535)
            e = sl.stream(self.geglu_sig(7, 8), max(e + 1, 508), 578)
            e6 = sl.stream(self.geglu_fin(6) + self.hstore(6), max(e + 1, 579), 596)
            e7 = sl.stream(self.geglu_fin(7) + self.hstore(7), e6 + 1, 614)
            assert e7 < S0 - 2, e7
            e8 = sl.stream(self.geglu_sig(8, 8), max(e7 + 1, 616), S0 + 2)
            e8 = sl.stream(self.geglu_fin(8) + self.hstore(8), max(e8 + 1, S0 + 4), S0 + 16)
            self.e8 = e8
        else:
            e6 = sl.stream(self.geglu(6) + self.hstore(6), 577, 634)
            assert e6 < S0 - 2, e6
            e7 = sl.stream(self.geglu(7) + self.hstore(7), e6 + 1, S0 + 46)
            assert e7 < SP_END - 1, e7
        if not self.opts.get("esig", 1): sl.stream(self.geglu(8, 8) + self.hstore(8), S0 + 4, S0 + 85)
        sl.put(467, [vm(f"buffer_load_dword v230, off, s[{SR_HZ}:{SR_HZ+3}], 0 offset:128 sc1", "zpoll")])
        sl.put(574, [wvm("zpoll")])
        sl.put(575, [o(f"v_readfirstlane_b32 s{T0}, v230")])
        M[578].setdefault("before", []).extend(
            [o(f"s_cmp_ge_u32 s{T0}, 256"), o("s_cbranch_scc1 L_zp_ok")] +
            self.spin("L_zp", [o(f"buffer_load_dword v{V_PF}, off, s[{SR_HZ}:{SR_HZ+3}], 0 offset:128 sc1")],
                      [o(f"v_readfirstlane_b32 s{T0}, v{V_PF}"), o("s_nop 3"), o(f"s_cmp_ge_u32 s{T0}, 256")]))
        def zl(zf, va, k, tagn):
            ins = []
            if k < 4: ins += [o(f"s_add_u32 s{S_C}, s{S_ZB}, {k*2048}")]
            else: ins += [G([o(f"s_cmp_eq_u32 s{S_W}, 3"), o(f"s_cselect_b32 s{S_C}, 0, {OOB:#x}"), o(f"s_add_u32 s{S_C}, s{S_C}, s{S_ZB}")]),
                          o(f"s_add_u32 s{S_C}, s{S_C}, {4*2048}")]
            return ins, [vm(f"buffer_load_dwordx4 {zf(ss,k)}, v{va+ss}, s[{SR_WS}:{SR_WS+3}], s{S_C} offen sc1", (tagn, k)) for ss in range(3)]
        ins = []
        for k in range(5):
            a_, l_ = zl(zP, V_ZP, k, "zp"); ins += a_ + l_
        for k in range(4):
            a_, l_ = zl(zQ, V_ZQ, k, "zq"); ins += a_ + l_
        sl.stream(ins, 579, 644)
        a_, l_ = zl(zQ, V_ZQ, 4, "zq")
        sl.stream(a_ + l_, S0, S0 + 8)
        for k in range(5):
            sl.put(S0 + 6*k - 1, [wvm(("zp", k))])
            sl.put(SP_END + 6*k - 1, [wvm(("zq", k))])
        A5P = [120, 124, 136]; A5Q = [140, 224, 228]
        blk = [o(f"s_or_b32 s{T3}, s{S_MT}, s{S_TAU}"), o(f"s_cmp_eq_u32 s{T3}, 0"), o("s_cbranch_scc0 L_s_n512"),
               o("v_mov_b32 v232, 0x3f80"), o("v_mov_b32 v233, 0xbf80"), o("v_mov_b32 v234, v232"), o("v_mov_b32 v235, v233"),
               o("v_mov_b32 v236, 0xbf800000"), o("v_mov_b32 v237, 0x3f800000"), o("v_mov_b32 v238, v236"), o("v_mov_b32 v239, v237"), o("s_nop 1")]
        for k in range(5):
            for ss in range(3):
                a = A5P[ss]
                blk += [mf16(f"v[{a}:{a+3}]", "v[232:235]", zP(ss, k), "0" if k == 0 else f"v[{a}:{a+3}]")]
                a = A5Q[ss]
                blk += [mf16(f"v[{a}:{a+3}]", "v[236:239]", zQ(ss, k), "0" if k == 0 else f"v[{a}:{a+3}]")]
        blk += [o("s_nop 7"), raw("L_s_n512:")]
        M[P2_0].setdefault("before", []).extend(blk)
        self.A5P, self.A5Q = A5P, A5Q
        t = lu[("st", 16)]; fbar(t)
        e = place(self.dma_p2(stages[0], slot_of[stages[0]], True, 12, 13, V_PF), t + 1, 1)
        t = lu[("st", 17)]; fbar(t)
        e = place(self.dma_p2(stages[1], slot_of[stages[1]], False, 0, 0, 0), t + 1, 1)
        ins = [o(f"v_lshrrev_b32 v{V_PF}, 5, v0"), o(f"v_lshlrev_b32 v{V_PF}, 9, v{V_PF}")]
        for s in range(4): ins += [o(f"v_sub_u32 v{V_RA+s}, v{V_RA+s}, v{V_PF}"), o(f"v_sub_u32 v{V_RB+s}, v{V_RB+s}, v{V_PF}")]
        eb = sl.stream(ins, S0 + 2, S0 + 16)
        t = lu[("CX", 0)]
        sl.put(t, [wvm("hst"), o("s_barrier")])
        sl.put(t + 1, [o(f"v_mov_b32 v{V_PF}, 2")])
        sl.put(t + 2, [vm(f"buffer_store_dword v{V_PF}, v{V_ONE0}, s[{SR_WS}:{SR_WS+3}], s{S_FL} offen sc1", "fl2h")])
        assert eb < t, (eb, t)
        assert self.e8 < t, (self.e8, t)
        place(self.dma_p2(stages[2], slot_of[stages[2]], False, 0, 0, 0), t + 3, 1)
        fbar(lu[("SX", 0)])
        a0 = P2_0 + 3
        t0r, t1r = 240, 241
        SC = 3*SLOT
        N1A = SPARE + 12288
        A5P, A5Q = self.A5P, self.A5Q
        wr = [G([o(f"s_mul_i32 s{S_C}, s{S_W}, 12288"), o(f"s_add_u32 s{S_C}, s{S_C}, {SC}")]),
              o(f"v_lshrrev_b32 v{t0r}, 4, v0"), o(f"v_mul_u32_u24 v{t0r}, 768, v{t0r}"), o(f"v_and_b32 v{t1r}, 15, v0"), o(f"v_lshlrev_b32 v{t1r}, 2, v{t1r}"),
              o(f"v_add_u32 v{t0r}, v{t0r}, v{t1r}"), o(f"v_add_u32 v{t0r}, s{S_C}, v{t0r}")]
        if self.opts.get("w2", 1):
            WB = {(0, 0): t0r, (0, 1): 243, (1, 0): 244, (1, 1): 246}
            wr += [o(f"v_add_u32 v243, {16*192}, v{t0r}"), o(f"v_add_u32 v244, 6144, v{t0r}"), o(f"v_add_u32 v246, {6144 + 16*192}, v{t0r}")]
            for pq, accf in ((0, accP), (1, accQ)):
                for tt in range(2):
                    for ss in range(3):
                        for r in (0, 2):
                            wr += [ds(f"ds_write2_b32 v{WB[(pq, tt)]}, v{accf(tt,ss)+r}, v{accf(tt,ss)+r+1} offset0:{r*48 + ss*16} offset1:{(r+1)*48 + ss*16}", "sred_w")]
            if self.opts.get('nowr'): wr = wr[:10] + wr[-1:]
            e = sl.stream(wr, a0, a0 + self.opts.get("wwin", 22))
        else:
            for pq, accf in ((0, accP), (1, accQ)):
                for tt in range(2):
                    for ss in range(3):
                        for r in range(4):
                            wr += [ds(f"ds_write_b32 v{t0r}, v{accf(tt,ss)+r} offset:{pq*6144 + (16*tt + r)*192 + ss*64}", "sred_w")]
            e = sl.stream(wr, a0, a0 + 30)
        wr2 = [G([o(f"s_mul_i32 s{S_C}, s{S_W}, 384"), o(f"s_add_u32 s{S_C}, s{S_C}, {N1A}")]), o(f"v_add_u32 v{t1r}, s{S_C}, v{t1r}"), o(f"v_mov_b32 v245, 0x30000"),
               G([o("v_cmp_gt_u32 vcc, 16, v0"), o("v_nop"), o("v_nop"), o(f"v_cndmask_b32 v{t1r}, v245, v{t1r}, vcc")])]
        for ss in range(3):
            wr2 += [ds(f"ds_write_b32 v{t1r}, v{A5P[ss]} offset:{ss*64}", "sred_w"), ds(f"ds_write_b32 v{t1r}, v{A5Q[ss]} offset:{(3+ss)*64}", "sred_w")]
        e = sl.stream(wr2, e + 1, e + 8)
        b1 = e + 1
        sl.put(b1, [wlg("sred_w"), o("s_barrier")])
        R0, R1 = 112, 48
        A0, A1, YD0, YM0, YD1, YM1 = 232, 233, 234, 235, 236, 237
        def rowcalc(dst):
            return [o(f"v_mul_lo_u32 v238, v238, s{T7}"), o(f"v_add_u32 v238, s{T4}, v238")]
        def ymir(YD, YM):
            return [o(f"v_mul_u32_u24 v{YD}, {YP}, v238"), o(f"v_add_u32 v{YD}, v{YD}, v239"),
                    o(f"v_sub_u32 v{YM}, 2048, v238"), o(f"v_mul_u32_u24 v{YM}, {YP}, v{YM}"), o(f"v_add_u32 v{YM}, v{YM}, v239"),
                    o(f"v_and_b32 v238, 0x3ff, v238"),
                    G([o(f"v_cmp_eq_u32 vcc, 0, v238"), o(f"v_mov_b32 v238, {OOB:#x}"), o("v_nop"), o(f"v_cndmask_b32 v{YM}, v{YM}, v238, vcc")])]
        ad = [G([o(f"s_lshl_b32 s{T3}, s{S_MT}, 5"), o(f"s_add_u32 s{T3}, s{T3}, s{S_TAU}"), o(f"s_and_b32 s{T4}, s{S_W}, 1")]),
              G([o(f"s_lshl_b32 s{T4}, s{T4}, 4"), o(f"s_add_u32 s{T4}, s{T4}, s{T3}"), o(f"s_sub_u32 s{T3}, 1024, s{T4}")]),
              G([o(f"s_cmp_lt_u32 s{S_W}, 2"), o(f"s_cselect_b32 s{T4}, s{T4}, s{T3}"), o(f"s_cselect_b32 s{T7}, 2, -2")]),
              G([o(f"s_lshl_b32 s{T3}, s{S_W}, 3"), o(f"s_mul_i32 s{T3}, s{T3}, 192"), o(f"s_add_u32 s{T3}, s{T3}, {SC}")]),
              G([o(f"s_and_b32 s{T5}, s{S_J}, 7"), o(f"s_mul_i32 s{T5}, s{T5}, 144")]),
              o(f"v_lshrrev_b32 v238, 3, v0"), o(f"v_and_b32 v239, 7, v0"),
              o(f"v_mul_u32_u24 v{A0}, 192, v238"), o(f"v_lshlrev_b32 v239, 4, v239"), o(f"v_add_u32 v{A0}, v{A0}, v239"), o(f"v_add_u32 v{A0}, s{T3}, v{A0}")] + \
             rowcalc(0) + [o(f"v_add_u32 v239, s{T5}, v239")] + ymir(YD0, YM0) + \
             [o(f"v_and_b32 v238, 7, v0"), o(f"v_lshrrev_b32 v239, 3, v0"), o(f"v_add_u32 v239, 8, v239"), o(f"v_min_u32 v239, 9, v239"),
              o(f"v_mul_u32_u24 v{A1}, 192, v238"), o(f"v_lshlrev_b32 v239, 4, v239"), o(f"v_add_u32 v{A1}, v{A1}, v239"), o(f"v_add_u32 v{A1}, s{T3}, v{A1}")] + \
             rowcalc(1) + [o(f"v_add_u32 v239, s{T5}, v239")] + ymir(YD1, YM1) + \
             [G([o(f"s_cmp_eq_u32 s{T5}, {7*144}"), o(f"s_cselect_b32 s{T5}, 16, 8")]), o(f"v_mov_b32 v238, {OOB:#x}"),
              G([o(f"v_cmp_gt_u32 vcc, s{T5}, v0"), o("v_nop"), o("v_nop"), o(f"v_cndmask_b32 v{YD1}, v238, v{YD1}, vcc"), o(f"v_cndmask_b32 v{YM1}, v238, v{YM1}, vcc")]),
              o(f"s_mov_b32 s{T4}, {WS_YH}")]
        e = sl.stream(ad, a0 + 2, b1)
        assert e <= b1 + 6
        def rds(R, A, tag):
            return [ds(f"ds_read_b128 v[{R + 16*pq + 4*ww}:{R + 16*pq + 4*ww + 3}], v{A} offset:{ww*12288 + pq*6144}", tag) for pq in range(2) for ww in range(4)]
        e = sl.stream(rds(R0, A0, "sr0") + rds(R1, A1, "sr1"), max(e, b1) + 1, max(e, b1) + 10)
        b2 = e + 3
        sl.put(b2, [wlg("sr1"), o("s_barrier")])
        self.b2 = b2
        def fin(R, YD, YM):
            out = []
            for pq in range(2):
                b_ = R + 16*pq
                for k in range(4):
                    out += [o(f"v_add_f32 v{b_+k}, v{b_+k}, v{b_+4+k}"), o(f"v_add_f32 v{b_+8+k}, v{b_+8+k}, v{b_+12+k}"), o(f"v_add_f32 v{b_+k}, v{b_+k}, v{b_+8+k}")]
            for k in range(4):
                out += [o(f"v_sub_f32 v{R+4+k}, v{R+k}, v{R+16+k}"), o(f"v_add_f32 v{R+8+k}, v{R+k}, v{R+16+k}")]
            out += [vm(f"buffer_store_dwordx4 v[{R+4}:{R+7}], v{YD}, s[{SR_WS}:{SR_WS+3}], s{T4} offen sc1", "yst"),
                    vm(f"buffer_store_dwordx4 v[{R+8}:{R+11}], v{YM}, s[{SR_WS}:{SR_WS+3}], s{T4} offen sc1", "yst")]
            return out
        ff = fin(R1, YD1, YM1) + fin(R0, YD0, YM0)
        if self.opts.get('nofin'): ff = [vm(f'buffer_store_dword v{V_PF}, v{V_ONE0}, s[{SR_OUT}:{SR_OUT+3}], 0 offen offset:4000', 'yst')]
        e = sl.stream(ff, b2 + 1, P2_0 + 66, spill=3)
        assert e < P2_0 + 72, e
        n1 = [o(f"v_and_b32 v238, 15, v0"), o(f"v_lshlrev_b32 v238, 2, v238"), o(f"v_add_u32 v238, {N1A}, v238")]
        for ss in range(3):
            for ww in range(4):
                n1 += [ds(f"ds_read_b32 v{64+4*ss+ww}, v238 offset:{ww*384 + ss*64}", "sred_n"), ds(f"ds_read_b32 v{128+4*ss+ww}, v238 offset:{ww*384 + (3+ss)*64}", "sred_n")]
        n1 += [wlg("sred_n")]
        for ss in range(3):
            for b_ in (64 + 4*ss, 128 + 4*ss):
                n1 += [o(f"v_add_f32 v{b_}, v{b_}, v{b_+1}"), o(f"v_add_f32 v{b_+2}, v{b_+2}, v{b_+3}"), o(f"v_add_f32 v{b_}, v{b_}, v{b_+2}")]
            n1 += [o(f"v_sub_f32 v{64+4*ss+1}, v{64+4*ss}, v{128+4*ss}"), o(f"v_add_f32 v{64+4*ss+2}, v{64+4*ss}, v{128+4*ss}")]
        n1 += [G([o(f"s_or_b32 s{T3}, s{S_TAU}, s{S_W}"), o(f"s_or_b32 s{T3}, s{T3}, s{S_MT}"), o(f"s_cmp_eq_u32 s{T3}, 0"), o(f"s_cselect_b32 s{T3}, 16, 0")]),
               G([o(f"v_cmp_gt_u32 vcc, s{T3}, v0"), o(f"v_mov_b32 v238, 0"), o(f"v_mov_b32 v239, {OOB:#x}"), o(f"v_cndmask_b32 v238, v239, v238, vcc")])]
        for ss in range(3):
            n1 += [o(f"v_add_u32 v{128+4*ss+1}, v238, v{V_YC[ss]}")]
        n1 += [o(f"s_mov_b32 s{T3}, {WS_YH + 512*YP}"), o(f"s_mov_b32 s{T5}, {WS_YH + 1536*YP}")]
        for ss in range(3):
            n1 += [vm(f"buffer_store_dword v{64+4*ss+1}, v{128+4*ss+1}, s[{SR_WS}:{SR_WS+3}], s{T3} offen sc1", "yst"),
                   vm(f"buffer_store_dword v{64+4*ss+2}, v{128+4*ss+1}, s[{SR_WS}:{SR_WS+3}], s{T5} offen sc1", "yst")]
        blk = [o(f"s_or_b32 s{T3}, s{S_TAU}, s{S_MT}"), o(f"s_cmp_eq_u32 s{T3}, 0"), o("s_cbranch_scc0 L_no512b")]
        for i in flat(n1):
            if i.k == "wlg": blk.append(o("s_waitcnt lgkmcnt(0)"))
            elif i.k in ("ds", "vm"): blk.append(I(i.t, "o"))
            else: blk.append(i)
        blk += [raw("L_no512b:")]
        M[max(e + 2, P2_0 + 70)].setdefault("before", []).extend(blk)
        gpar = fu[("s2", (0, "par"))]
        PF2 = 231
        sl.put(660, [G([o(f"s_xor_b32 s{T0}, s{S_LID}, 1"), o(f"s_lshl_b32 s{T1}, s{T0}, 7"), o(f"s_add_u32 s{T1}, s{T1}, {WS_FLAG}")])])
        sl.put(661, [G([o(f"s_lshl_b32 s{T0}, s{T0}, 2"), o(f"s_add_u32 s{T0}, s{T0}, s{S_W}"), o(f"s_mul_i32 s{T0}, s{T0}, {18*1024}")]), o(f"s_add_u32 s{T0}, s{T0}, {WS_HX}")])
        pl = f"buffer_load_dword v242, off, s[{SR_WS}:{SR_WS+3}], s{T1} sc1"
        def hload(k, n, t, tag):
            if self.opts.get("nohp"):
                sl.put(t + 1, [vm(f"buffer_load_dword v{V_PF}, v{V_ONE0}, s[{SR_WS}:{SR_WS+3}], 0 offen", tag)]); return
            sl.put(t, [o(f"s_add_u32 s{T6}, s{T0}, {k*1024}")])
            sl.put(t + 1, self.dload([f"buffer_load_dwordx4 a[{HPB+4*(k+q)}:{HPB+4*(k+q)+3}], v{V_L16}, s[{SR_WS}:{SR_WS+3}], s{T6} offen offset:{q*1024}" for q in range(n)], tag, True))
        if self.opts.get("onepoll") == 2:
            sl.put(640, [vm(pl, "hpoll1")]) if False else None
            sl.put(S0 + 14, [vm(pl, "hpoll1")])
            sl.put(S0 + 18, [wvm("hpoll1")]) if False else None
            tcheck = S0 + 22
            sl.put(tcheck - 2, [wvm("hpoll1")])
            sl.put(tcheck - 1, [o(f"v_readfirstlane_b32 s{T2}, v242")])
            M[tcheck + 2].setdefault("before", []).extend(
                [o(f"s_cmp_ge_u32 s{T2}, 1"), o("s_cbranch_scc1 L_hq_ok")] +
                self.spin("L_hq", [o(pl)], [o(f"v_readfirstlane_b32 s{T2}, v242"), o("s_nop 3"), o(f"s_cmp_ge_u32 s{T2}, 1")]))
            st_ = self.opts.get("hstep1", 10)
            for i in range(6): hload(2*i, 2, tcheck + 3 + st_*i, ("hp", i))
            tq = P2_0 + self.opts.get("tq", 40)
            assert tq > tcheck + 3 + st_*5 + 2
            sl.put(tq, [vm(pl, "hpoll2")])
            sl.put(tq + 10, [wvm("hpoll2")])
            sl.put(tq + 11, [o(f"v_readfirstlane_b32 s{T2}, v242")])
            M[tq + 14].setdefault("before", []).extend(
                [o(f"s_cmp_ge_u32 s{T2}, 2"), o("s_cbranch_scc1 L_hp_ok")] +
                self.spin("L_hp", [o(pl)], [o(f"v_readfirstlane_b32 s{T2}, v242"), o("s_nop 3"), o(f"s_cmp_ge_u32 s{T2}, 2")]))
            for i in range(3): hload(12 + 2*i, 2, tq + 15 + 10*i, ("hp", 6 + i))
        elif self.opts.get("onepoll"):
            tq = P2_0 + self.opts.get("tq", 4)
            sl.put(tq, [vm(pl, "hpoll2")])
            sl.put(tq + 10, [wvm("hpoll2")])
            sl.put(tq + 11, [o(f"v_readfirstlane_b32 s{T2}, v242")])
            M[tq + 14].setdefault("before", []).extend(
                [o(f"s_cmp_ge_u32 s{T2}, 2"), o("s_cbranch_scc1 L_hp_ok")] +
                self.spin("L_hp", [o(pl)], [o(f"v_readfirstlane_b32 s{T2}, v242"), o("s_nop 3"), o(f"s_cmp_ge_u32 s{T2}, 2")]))
            for i in range(9):
                hload(2*i, 2, tq + 15 + self.opts.get("hstep", 9)*i, ("hp", i))
        else:
            h1 = self.opts.get("h1", P2_0 - 12)
            sl.put(h1, [vm(pl, "hpoll1")])
            sl.put(h1 + 12, [wvm("hpoll1")])
            sl.put(h1 + 13, [o(f"v_readfirstlane_b32 s{T2}, v242")])
            M[h1 + 16].setdefault("before", []).extend(
                [o(f"s_cmp_ge_u32 s{T2}, 1"), o("s_cbranch_scc1 L_hq_ok")] +
                self.spin("L_hq", [o(pl)], [o(f"v_readfirstlane_b32 s{T2}, v242"), o("s_nop 3"), o(f"s_cmp_ge_u32 s{T2}, 1")]))
            def hload(k, n, t, tag):
                sl.put(t, [o(f"s_add_u32 s{T6}, s{T0}, {k*1024}")])
                sl.put(t + 1, self.dload([f"buffer_load_dwordx4 a[{HPB+4*(k+q)}:{HPB+4*(k+q)+3}], v{V_L16}, s[{SR_WS}:{SR_WS+3}], s{T6} offen offset:{q*1024}" for q in range(n)], tag, True))
            for i in range(6):
                hload(2*i, 2, h1 + 17 + 9*i, ("hp", i))
            tp = P2_0 + self.opts.get("tp2", 74)
            assert tp - 13 > h1 + 17 + 9*5 + 1
            sl.put(tp - 13, [vm(pl, "hpoll2")])
            sl.put(tp - 2, [wvm("hpoll2")])
            sl.put(tp - 1, [o(f"v_readfirstlane_b32 s{T2}, v242")])
            M[tp + 2].setdefault("before", []).extend(
                [o(f"s_cmp_ge_u32 s{T2}, 2"), o("s_cbranch_scc1 L_hp_ok")] +
                self.spin("L_hp", [o(pl)], [o(f"v_readfirstlane_b32 s{T2}, v242"), o("s_nop 3"), o(f"s_cmp_ge_u32 s{T2}, 2")]))
            for i in range(3):
                hload(12 + 2*i, 2, tp + 4 + 6*i, ("hp", 6 + i))

        sl.put(gpar - 2, [wvm(("hp", 5))])
        off = 24 if self.opts.get("klate", 1) else 12
        for i in range(3):
            sl.put(gpar + off + 2*i - 2, [wvm(("hp", 6 + i))])
        for i in range(3, 9):
            st = stages[i]; slot = slot_of[st]
            prev = [j for j in range(i) if slot_of[stages[j]] == slot]
            if prev:
                t = lu[("s2", stages[prev[-1]])]; fbar(t); start = t + 1
            else:
                start = b2 + 1
            grps = self.dma_p2(st, slot, False, 250, 251, 0)
            if st[0] == 4:
                grps = [[o(f"s_and_b32 s{S_C}, s{S_W}, 1"), o(f"s_mul_i32 s{S_C}, s{S_C}, {16*1152}")]] + grps
                place(grps, start, 1)
            else:
                place(grps, start, 2)
        s4 = slot_of[(4, "both")]
        ins = [o("v_lshrrev_b32 v250, 5, v0"), o("v_lshlrev_b32 v250, 8, v250"),
               o("v_bfe_u32 v251, v0, 2, 2"), o("v_lshlrev_b32 v251, 6, v251"), o("v_add_u32 v250, v250, v251"),
               o("v_bfe_u32 v251, v0, 4, 1"), o("v_lshlrev_b32 v251, 5, v251"), o("v_add_u32 v250, v250, v251"),
               o("v_and_b32 v251, 3, v0"), o("v_lshlrev_b32 v251, 3, v251"), o("v_add_u32 v250, v250, v251"),
               o(f"v_add_u32 v{V_R8}, {s4*SLOT}, v250")]
        sl.stream(ins, P2_0 + 150, P2_0 + 175)
        self.pipe_reduce(sl, M, fu, lu, P2_0, N)
        for (u, half), tl in sorted(tile_last.items(), key=lambda x: x[1]):
            acc = ACC[u][half]
            par = half
            t = TMP + 8*par
            st = S_ST0 + par
            ins = [o(f"v_cvt_pk_bf16_f32 v{t+i}, v{acc+2*i}, v{acc+2*i+1}") for i in range(8)]
            if u == 3 and half == 1: continue
            if u < 3: ins += [o(f"s_add_u32 s{st}, s{S_QU[u]}, {half*2048}")]
            elif u == 3: ins += [o(f"s_mov_b32 s{st}, s{S_QN}")]
            else: ins += [o(f"s_mov_b32 s{st}, s{S_Q8}")]
            ins += self.dstore([f"buffer_store_dwordx4 v[{t}:{t+3}], v{V_L16}, s[{SR_WS}:{SR_WS+3}], s{st} offen",
                                f"buffer_store_dwordx4 v[{t+4}:{t+7}], v{V_L16}, s[{SR_WS}:{SR_WS+3}], s{st} offen offset:1024"], ("pst", u))
            s0 = tl + 4
            if s0 + 10 <= N: sl.stream(ins, s0, s0 + 10)
            else: self.tail2 = [o("s_nop 15")] + ins

    def item_setup(self, kind, R, srd=None, split=False):
        t0, t1, t2, t3 = R["t"]
        sQ, sH, sB, sT = T2, T3, T4, T5
        L = []
        LD = []
        SW = SR_WS if srd is None else srd
        if kind == "A":
            L += [G([o(f"s_lshl_b32 s{sT}, s{S_J}, 2"), o(f"s_add_u32 s{sT}, s{sT}, s{S_W}"), o(f"s_lshr_b32 s{sQ}, s{sT}, 3")]),
                  G([o(f"s_cmp_lt_u32 s{sQ}, 4"), o(f"s_cselect_b32 s{sH}, 0, 6"), o(f"s_add_u32 s{sQ}, s{sQ}, s{sH}")])]
        elif kind in "BC":
            lo, hi = (4, 12) if kind == "B" else (6, 14)
            L += [G([o(f"s_lshl_b32 s{sT}, s{S_J}, 1"), o(f"s_lshr_b32 s{sH}, s{S_W}, 1"), o(f"s_add_u32 s{sT}, s{sT}, s{sH}")]),
                  G([o(f"s_lshr_b32 s{sQ}, s{sT}, 3"), o(f"s_cmp_lt_u32 s{sQ}, 2"), o(f"s_cselect_b32 s{sH}, {lo}, {hi}")]),
                  o(f"s_add_u32 s{sQ}, s{sQ}, s{sH}")]
        else:
            L += [G([o(f"s_lshr_b32 s{sT}, s{S_J}, 1"), o(f"s_and_b32 s{sQ}, s{S_J}, 1"), o(f"s_add_u32 s{sQ}, s{sQ}, 8")])]
        L += [G([o(f"s_and_b32 s{sH}, s{sT}, 1"), o(f"s_bfe_u32 s{sB}, s{sT}, 0x20001"), o(f"s_lshl_b32 s{sT}, s{S_MT}, 2")]),
              o(f"s_add_u32 s{sB}, s{sB}, s{sT}"),
              G([o(f"s_mul_i32 s{sT}, s{sB}, 18"), o(f"s_add_u32 s{sT}, s{sT}, s{sQ}"), o(f"s_lshl_b32 s{sT}, s{sT}, 1")]),
              G([o(f"s_add_u32 s{sT}, s{sT}, s{sH}"), o(f"s_lshl_b32 s{sT}, s{sT}, 10")])]
        so = R["so"]
        for p in range(8): L += [o(f"s_add_u32 s{so+p}, s{sT}, {p*PART_BYTES}")]
        if kind == "A":
            L += [o(f"v_mov_b32 v{t3}, 0")]
        elif kind in "BC":
            L += [o(f"s_and_b32 s{sT}, s{S_W}, 1"), o(f"v_bfe_u32 v{t0}, v0, 4, 1"), o(f"v_mov_b32 v{t1}, {OOB:#x}"), o(f"v_mov_b32 v{t3}, 0"),
                  G([o(f"v_cmp_eq_u32 vcc, s{sT}, v{t0}"), o("v_nop"), o("v_nop"), o(f"v_cndmask_b32 v{t3}, v{t1}, v{t3}, vcc")])]
        else:
            L += [o(f"v_bfe_u32 v{t0}, v0, 3, 2"), o(f"v_mov_b32 v{t1}, {OOB:#x}"), o(f"v_mov_b32 v{t3}, 0"),
                  G([o(f"v_cmp_eq_u32 vcc, s{S_W}, v{t0}"), o("v_nop"), o("v_nop"), o(f"v_cndmask_b32 v{t3}, v{t1}, v{t3}, vcc")])]
        PV = R["PV"]
        L += [o(f"v_add_u32 v{PV}, v{t3}, v{V_L16}")]
        pk, pb = R["P"]
        ldp = [vm(f"buffer_load_dwordx4 {pk}[{pb+4*p}:{pb+4*p+3}], v{PV}, s[{SW}:{SW+3}], s{so+p} offen sc1", ("it", kind)) for p in range(8)]
        if split: LD += ldp
        else: L += ldp
        X, Y, OA = R["X"], R["Y"], R["OA"]
        L += self.rowmir(sB, sT, t0, t1, t2, OA) + [
              G([o(f"s_lshl_b32 s{sT}, s{sQ}, 6"), o(f"s_lshl_b32 s{sB}, s{sH}, 5"), o(f"s_add_u32 s{sT}, s{sT}, s{sB}")]),
              o(f"v_mul_u32_u24 v{t2}, 1152, v{t0}"), o(f"v_add_u32 v{t2}, s{sT}, v{t2}"), o(f"v_add_u32 v{t2}, v{t2}, v{t3}"),
              o(f"v_lshrrev_b32 v{X}, 5, v0"), o(f"v_lshlrev_b32 v{OA}, 4, v{X}"), o(f"v_add_u32 v{OA}, v{t2}, v{OA}"),
              o(f"v_lshlrev_b32 v{X}, 3, v{X}"), o(f"v_add_u32 v{t2}, v{t2}, v{X}"),
              vm(f"buffer_load_dwordx2 v[{X}:{X+1}], v{t2}, s[{SR_X}:{SR_X+3}], 0 offen", ("it", kind)),
              vm(f"buffer_load_dwordx2 v[{X+2}:{X+3}], v{t2}, s[{SR_X}:{SR_X+3}], 0 offen offset:16", ("it", kind)),
              G([o(f"s_lshl_b32 s{sT}, s{sT}, 1"), o(f"s_cmp_lt_u32 s{sQ}, 9"), o(f"s_cselect_b32 s{R['rev']}, 0, 1")]),
              G([o(f"s_sub_u32 s{sB}, 2292, s{sT}"), o(f"s_cmp_lt_u32 s{sQ}, 9"), o(f"s_cselect_b32 s{sT}, s{sT}, s{sB}"), o(f"s_cselect_b32 s{sB}, 1, -1")]),
              G([o(f"v_cmp_eq_u32 vcc, 1, v{PV}") if False else o(f"v_mov_b32 v{t2}, s{R['rev']}"), o(f"v_cmp_eq_u32 vcc, 1, v{t2}"), o("v_nop"), o("v_nop"),
                 o(f"v_cndmask_b32 v{t0}, v{t0}, v{t1}, vcc")]),
              o(f"v_mul_u32_u24 v{t0}, {YP}, v{t0}"), o(f"v_add_u32 v{t0}, s{sT}, v{t0}"), o(f"v_add_u32 v{t0}, v{t0}, v{t3}"),
              o(f"v_lshrrev_b32 v{t1}, 5, v0"), o(f"v_lshlrev_b32 v{t1}, 4, v{t1}"), o(f"v_mul_lo_u32 v{t1}, v{t1}, s{sB}"),
              o(f"v_add_u32 v{t0}, v{t0}, v{t1}"),
              o(f"s_lshl_b32 s{sB}, s{sB}, 5"), o(f"v_add_u32 v{t1}, s{sB}, v{t0}"), o(f"v_add_u32 v{t0}, {WS_YH}, v{t0}"), o(f"v_add_u32 v{t1}, {WS_YH}, v{t1}")]
        ldy = [vm(f"buffer_load_dwordx4 v[{Y}:{Y+3}], v{t0}, s[{SW}:{SW+3}], 0 offen sc1", ("it", kind)),
               vm(f"buffer_load_dwordx4 v[{Y+4}:{Y+7}], v{t1}, s[{SW}:{SW+3}], 0 offen sc1", ("it", kind))]
        if split:
            LD += ldy
            return L, LD
        return L + ldy

    def item_finish(self, kind, R):
        X, Y, OA = R["X"], R["Y"], R["OA"]
        t0, t1, t2, t3 = R["t"]
        pk, pb = R["P"]
        L = [wvm(("it", kind)),
             o(f"s_cmp_eq_u32 s{R['rev']}, 0"), o(f"s_cbranch_scc1 L_rv{kind}"),
             o(f"v_swap_b32 v{Y}, v{Y+3}"), o(f"v_swap_b32 v{Y+1}, v{Y+2}"), o(f"v_swap_b32 v{Y+4}, v{Y+7}"), o(f"v_swap_b32 v{Y+5}, v{Y+6}"),
             raw(f"L_rv{kind}:"),
             o(f"s_mov_b32 s{T0}, 0x3f80"), o(f"s_mov_b32 s{T1}, 0x3f800000")]
        for i in range(4):
            L += [o(f"v_dot2_f32_bf16 v{Y+2*i}, v{X+i}, s{T0}, v{Y+2*i}"), o(f"v_dot2_f32_bf16 v{Y+2*i+1}, v{X+i}, s{T1}, v{Y+2*i+1}")]
        for p in range(8):
            for i in range(4):
                r = pb + 4*p + i
                if pk == "a":
                    L += [o(f"v_accvgpr_read_b32 v{t0 + (i & 1)}, a{r}")]
                    src = t0 + (i & 1)
                else: src = r
                L += [o(f"v_dot2_f32_bf16 v{Y+2*i}, v{src}, s{T0}, v{Y+2*i}"), o(f"v_dot2_f32_bf16 v{Y+2*i+1}, v{src}, s{T1}, v{Y+2*i+1}")]
        L += [o("s_nop 2")]
        for i in range(4):
            L += [o(f"v_cvt_pk_bf16_f32 v{X+i}, v{Y+2*i}, v{Y+2*i+1}")]
        L += [o("s_nop 1"), o(f"v_permlane32_swap_b32 v{X}, v{X+2}"), o(f"v_permlane32_swap_b32 v{X+1}, v{X+3}"),
              vm(f"buffer_store_dwordx4 v[{X}:{X+3}], v{OA}, s[{SR_OUT}:{SR_OUT+3}], 0 offen{self.osfx}", "out")]
        return L

    def group_poll(self, label, val, vdst, voff, parity=False):
        ld = f"buffer_load_dword v{vdst}, v{voff}, s[{SR_WS}:{SR_WS+3}], s{T6} offen sc1"
        if parity:
            chk = [o(f"v_cmp_le_u32 vcc, {val}, v{vdst}"), o("s_nop 0"), o(f"s_and_b32 s{T7}, vcc_lo, s{S_PM}"), o(f"s_cmp_eq_u32 s{T7}, s{S_PM}")]
        else:
            chk = [o(f"v_cmp_le_u32 vcc, {val}, v{vdst}"), o("s_nop 0"), o(f"s_and_b32 s{T7}, vcc_lo, 0xffff"), o(f"s_cmp_eq_u32 s{T7}, 0xffff")]
        return ld, chk

    def items_cfg(self):
        self.RA = dict(P=("v", 80), X=112, Y=116, OA=124, PV=125, t=[126, 127, 16, 17], rev=24, so=16)
        self.RB = dict(P=("a", 0), X=18, Y=22, OA=30, PV=31, t=[48, 49, 50, 51], rev=25, so=16)
        self.RC = dict(P=("v", 176), X=208, Y=212, OA=220, PV=221, t=[222, 223, 224, 225], rev=26, so=16)
        self.RD = dict(P=("v", 128), X=160, Y=164, OA=172, PV=173, t=[174, 175, 226, 227], rev=27, so=84)

    def tail(self):
        L = list(self.late_loads)
        O = 128
        ld, chk = self.group_poll("L_f5", 5, 241, 242, parity=True)
        L += [vm(ld, "fp5")]
        L += self.stamp("pub")
        RD = self.RDx; Ld = self.D_ld
        L += [o("s_nop 7"), o("s_nop 3"), wvm("op"), wvm("ox"), o(f"s_mov_b32 s{T0}, 0x3f80"), o(f"s_mov_b32 s{T1}, 0x3f800000"),
              o("s_cmp_eq_u32 s24, 0"), o("s_cbranch_scc1 L_oyd")]
        for g_ in range(4):
            for k in range(4): L += [o(f"v_add_f32 v{O+4*g_+k}, v{O+4*g_+k}, v{48 + 4*(3-g_) + 3 - k}")]
        L += [o("s_branch L_oyj"), raw("L_oyd:")]
        for r in range(16): L += [o(f"v_add_f32 v{O+r}, v{O+r}, v{48+r}")]
        L += [raw("L_oyj:")]
        for i in range(8):
            L += [o(f"v_dot2_f32_bf16 v{O+2*i}, v{24+i}, s{T0}, v{O+2*i}"), o(f"v_dot2_f32_bf16 v{O+2*i+1}, v{24+i}, s{T1}, v{O+2*i+1}")]
        for p in range(6):
            for i in range(8):
                L += [o(f"v_dot2_f32_bf16 v{O+2*i}, v{80+8*p+i}, s{T0}, v{O+2*i}"), o(f"v_dot2_f32_bf16 v{O+2*i+1}, v{80+8*p+i}, s{T1}, v{O+2*i+1}")]
        L += self.stamp("early")
        L += [wvm("fp5")] + chk + [o("s_cbranch_scc1 L_f5_ok")] + self.spin("L_f5", [o(ld)], chk) + [reset()]
        L += self.stamp("pok")
        L += [vm(f"buffer_load_dwordx4 v[16:19], v{V_L16}, s[{SR_WS}:{SR_WS+3}], s22 offen sc1", "sib"),
              vm(f"buffer_load_dwordx4 v[20:23], v{V_L16}, s[{SR_WS}:{SR_WS+3}], s22 offen offset:1024 sc1", "sib")]
        L += Ld
        L += [wvm("sib")]
        for i in range(8):
            L += [o(f"v_dot2_f32_bf16 v{O+2*i}, v{16+i}, s{T0}, v{O+2*i}"), o(f"v_dot2_f32_bf16 v{O+2*i+1}, v{16+i}, s{T1}, v{O+2*i+1}")]
        L += [o("s_nop 2")]
        for i in range(8): L += [o(f"v_cvt_pk_bf16_f32 v{24+i}, v{O+2*i}, v{O+2*i+1}")]
        L += [o("s_nop 1"), o("v_permlane32_swap_b32 v24, v26"), o("v_permlane32_swap_b32 v25, v27"),
              o("v_permlane32_swap_b32 v28, v30"), o("v_permlane32_swap_b32 v29, v31"),
              vm(f"buffer_store_dwordx4 v[24:27], v238, s[{SR_OUT}:{SR_OUT+3}], 0 offen{self.osfx}", "out"),
              vm(f"buffer_store_dwordx4 v[28:31], v238, s[{SR_OUT}:{SR_OUT+3}], 0 offen offset:32{self.osfx}", "out")]
        L += self.stamp("ownfin")
        L += self.item_finish("D", RD)
        return L

    def kernel(self, name):
        L = [raw(f".globl {name}"), raw(".p2align 8"), raw(f".type {name},@function"), raw(f"{name}:")]
        L += self.prologue()
        L += self.stamp("proend")
        L += self.ln_stats()
        L += self.stamp("stats")
        L += [o("s_barrier")]
        L += [o(f"s_mov_b32 s{S_A}, s{S_J}"), o(f"s_add_u32 s{S_B}, s{S_J}, 16")]
        L += self.h_dma(S_A, 2, "wz1")
        L += [o(f"s_cmp_lt_u32 s{S_J}, 2"), o("s_cbranch_scc0 L_noz2a")]
        L += [I(i.t, "o") if i.k == "vm" else i for i in self.h_dma(S_B, 3, "wz2")]
        L += [raw("L_noz2a:")]
        hd = []
        for sig in range(2):
            for grp in self.dma_p1(sig, sig): hd.append(grp)
        if self.opts.get("lbulk"):
            hd.append([o(f"s_lshl_b32 s{S_PF}, s{S_MT}, 2"), o(f"s_add_u32 s{S_PF}, s{S_PF}, s{S_W}"), o(f"s_mul_i32 s{S_PF}, s{S_PF}, 45"),
                   o(f"v_add_u32 v240, s{S_PF}, v0"), o(f"s_mov_b32 s{S_PF}, {(2**32+4)//5}"), o(f"v_mul_hi_u32 v241, v240, s{S_PF}"),
                   o("v_mul_u32_u24 v242, 5, v241"), o("v_sub_u32 v242, v240, v242"), o("v_lshlrev_b32 v242, 7, v242"),
                   o("v_mul_u32_u24 v241, 9216, v241"), o("v_add_u32 v240, v241, v242"),
                   o(f"s_mul_i32 s{S_PF}, s{S_J}, 576"), o(f"s_and_b32 s{S_PF}, s{S_PF}, 0xffffff80"),
                   o("v_cmp_gt_u32 vcc, 45, v0"), o("s_nop 1"), o(f"v_cndmask_b32 v240, v{V_ONE0}, v240, vcc"),
                   vm(f"buffer_load_dword v{V_PF}, v240, s[{SR_WG}:{SR_WG+3}], s{S_PF} offen", "pf"),
                   vm(f"buffer_load_dword v{V_PF}, v240, s[{SR_WU}:{SR_WU+3}], s{S_PF} offen", "pf")])
        else:
            if not self.opts.get('bearly'): hd.append([o(f"s_lshl_b32 s{S_PF}, s{S_LID}, 2"), o(f"s_add_u32 s{S_PF}, s{S_PF}, s{S_W}"), o(f"s_mul_i32 s{S_PF}, s{S_PF}, 41"),
                       o(f"v_add_u32 v240, s{S_PF}, v0"), o("v_lshlrev_b32 v240, 7, v240"), o("v_cmp_gt_u32 vcc, 41, v0"), o("s_nop 1"),
                       o(f"v_cndmask_b32 v240, v{V_ONE0}, v240, vcc"),
                       vm(f"buffer_load_dword v{V_PF}, v240, s[{SR_WG}:{SR_WG+3}], 0 offen", "pf"),
                       vm(f"buffer_load_dword v{V_PF}, v240, s[{SR_WU}:{SR_WU+3}], 0 offen", "pf")])
        lf = self.ln_finish()
        per = -(-len(lf) // 18)
        k = 0
        for n, grp in enumerate(hd):
            L += grp
            if n < 18: L += lf[k:k + per]; k += per
        L += lf[k:]
        L += [o(f"v_subrev_u32 v{V_XA+i}, s{S_LX}, v{V_XA+i}") for i in range(4)]
        L += [o(f"v_add_u32 v{V_XA+i}, {2*SLOT}, v{V_XA+i}") for i in range(4)]
        L += self.stamp("lnfin")
        L += self.seg_norm_h()
        L += self.stamp("normH")
        L += self.h2_block()
        L += self.tr_bases()
        L += srd(SR_HZ, 36, 256)
        L += self.main()
        L += self.stamp("p2end")
        L += self.tail()
        L += self.stamp("end")
        if self.diag:
            L += [o("s_waitcnt vmcnt(0)"),
                  o(f"s_lshl_b32 s{T0}, s{S_LID}, 2"), o(f"s_add_u32 s{T0}, s{T0}, s{S_W}"), o(f"s_lshl_b32 s{T0}, s{T0}, 8"),
                  o(f"s_add_u32 s{T0}, s{T0}, {WS_STAMP}"), o("v_lshlrev_b32 v240, 2, v0"),
                  o(f"buffer_store_dword v{V_STAMP}, v240, s[{SR_WS}:{SR_WS+3}], s{T0} offen")]
        if self.opts.get("hdiag") == 2:
            L += [o("s_waitcnt vmcnt(0)"), o(f"v_readlane_b32 s98, v{V_STAMP}, 32"), o("s_nop 3"),
                  o(f"v_subrev_u32 v240, s98, v{V_STAMP}"),
                  o("v_subrev_u32 v241, 32, v0"), o("v_lshlrev_b32 v241, 2, v241"),
                  o("v_cmp_le_u32 vcc, 32, v0"), o(f"v_mov_b32 v242, {OOB:#x}"), o("s_nop 0"), o("v_cndmask_b32 v241, v242, v241, vcc"),
                  o("v_cmp_gt_u32 vcc, 48, v0"), o("s_nop 1"), o("v_cndmask_b32 v241, v242, v241, vcc"),
                  o(f"s_cmp_eq_u32 s{S_W}, 0"), o("s_cbranch_scc0 L_end"),
                  o(f"buffer_atomic_u{'min' if self.opts.get('hmin') else 'max'} v240, v241, s[{SR_HZ}:{SR_HZ+3}], 0 offen sc1")]
        elif self.opts.get("hdiag"):
            L += [o("s_waitcnt vmcnt(0)"), o("s_memrealtime s[100:101]"), o("s_waitcnt lgkmcnt(0)"),
                  o("s_sub_u32 s97, s100, s98"), o("s_not_b32 s98, s98"),
                  o("v_mov_b32 v240, s100"), o("v_mov_b32 v241, s98"), o("v_mov_b32 v242, s97"),
                  o(f"buffer_atomic_umax v240, v{V_ONE0}, s[{SR_HZ}:{SR_HZ+3}], 0 offen sc1"),
                  o(f"buffer_atomic_umax v241, v{V_ONE0}, s[{SR_HZ}:{SR_HZ+3}], 0 offen offset:4 sc1"),
                  o(f"buffer_atomic_umax v242, v{V_ONE0}, s[{SR_HZ}:{SR_HZ+3}], 0 offen offset:8 sc1")]
            for i, r in enumerate(self.hd_regs):
                pass
        L += [raw("L_end:"), o("s_endpgm")]
        return finalize(flat(L))

NAME = "parallel_sum__spectral_fnet__geglu_ffn__prompt_kernel"
def build(diag=False, opts=None):
    hdr = open("parallel_sum__spectral_fnet__geglu_ffn__prompt.s.ref").read().split("\n")
    top = [l for l in hdr if l.startswith(";") and "@launch" not in l and "Override" not in l and "grid=ceil" not in l]
    g = Gen(diag, opts)
    lines = g.kernel(NAME)
    errs = hazard_check(lines)
    for e in errs[:30]: print("HAZARD:", e)
    txt = "\n".join(top) + "\n"
    txt += "; @launch grid=(256,1,1) block=(256,1,1) lds=163840\n"
    txt += '.amdgcn_target "amdgcn-amd-amdhsa--gfx950"\n.text\n'
    txt += "\n".join(lines) + "\n" + kernel_footer(NAME)
    return txt, g.names

if __name__ == "__main__":
    import sys, json
    opts = {}
    for a in sys.argv[2:]:
        if "=" in a:
            k, v = a.split("="); opts[k] = int(v)
    txt, names = build("diag" in sys.argv, opts)
    open(sys.argv[1], "w").write(txt)
    json.dump(names, open(sys.argv[1] + ".names", "w"))
```

```python
from fw import *
from sched import *
import math, struct

S, D, F = 2048, 576, 4608
SLOT = 36864
SPARE = 4*SLOT
PART_BYTES = S * D * 2
WS_PART = 0
WS_HX = 20 << 20
WS_ZF = 40 << 20
ZF_STRIDE = 34 * 1024
ZF_TYPE = 18 * ZF_STRIDE
WS_YH = 42 << 20
YP = 320 * 4
WS_FLAG = 46 << 20
WS_STAMP = 48 << 20
OOB = 0x40000000
C0 = -2.0 * math.sqrt(2.0 / math.pi) * math.log2(math.e)
C1 = C0 * 0.044715
def f2u(f): return struct.unpack("<I", struct.pack("<f", f))[0]

V_L16 = 1
V_RA, V_RB = 2, 6
V_DM = 10
V_C0, V_C1 = 14, 15
GA = [[16, 32], [48, 64]]
UA = [[80, 96], [112, 128]]
HF = 144
TMP = 216
V_HACC = 232
V_XA = 248
V_R8 = 248
V_PF = 252
V_ONE0 = 253
V_D2 = 254
V_STAMP = 255
RX = 80
V_PERM = 224
V_NEGMU = 64
V_ONE = 231
V_SD = 232
V_SA = 236
V_SX = 240
V_SE = 228
V_ZP = 241
V_ZQ = 244
V_YC = [247, 250, 251]
V_LB = 232
AX = 0
AF = 144
NAF = 8
AZ = 176
HPB = 8
SR_CS, SR_SS, SR_HZ, SR_X, SR_WG, SR_WU, SR_WD, SR_WS, SR_OUT = 4, 8, 12, 40, 44, 48, 52, 56, 60
S_W, S_MT, S_J = 64, 65, 66
S_LX, S_L9 = 67, 68
S_UB = 69
S_WD = 74
S_PB = 75
T0, T1, T2, T3, T4, T5, T6, T7 = 76, 77, 78, 79, 80, 81, 82, 83
S_N0 = 84
S_N1 = 16
S_CU = 25
S_Q0, S_Q8 = 30, 31
S_HB = 32
S_LID = 33
S_ST0, S_ST1 = 34, 35
S_CNT = 93
S_A, S_B, S_C = 94, 95, 96
S_TAU, S_ZB = 38, 39
S_PF = 97
S_XC = 0
S_QU = [30, 36, 37]
S_QN = 39
S_TO = 32
S_PM = 29
S_GA = 28
S_FL = 1
S_MODE = 2
S_D0 = 3

def srd(dst, ptr, nbytes):
    return [o(f"s_mov_b32 s{dst}, s{ptr}"), o(f"s_and_b32 s{dst+1}, s{ptr+1}, 0xffff"),
            o(f"s_mov_b32 s{dst+2}, {nbytes}"), o(f"s_mov_b32 s{dst+3}, 0x00020000")]
def mf32(acc, A, B, C): return o(f"v_mfma_f32_32x32x16_bf16 {acc}, {A}, {B}, {C}")
def mf16(acc, A, B, C): return o(f"v_mfma_f32_16x16x32_bf16 {acc}, {A}, {B}, {C}")

class DS2(I):
    pass

class Gen:
    def dload(self, texts, tag, pair=False):
        out = self.dstore(texts, tag, pair)
        if hasattr(out[0], "cost"): out[0].cost = 3 + len(texts)
        return out
    def dstore(self, texts, tag, pair=False):
        self.lab = getattr(self, "lab", 0) + 1
        n = self.lab
        if self.opts.get("forcemode") == 1 or not self.opts.get("local", 0) or (self.opts.get("cfg", 0) == 0 and not pair):
            return [vm(t + ("" if (self.opts.get("hpplain") and "load" in t) else " sc1"), tag) for t in texts]
        body = f"s_bitcmp1_b32 s{S_MODE}, 0\n    s_cbranch_scc1 L_dl{n}\n"
        body += "".join(f"    {t} sc1\n" for t in texts)
        body += f"    s_branch L_dj{n}\nL_dl{n}:\n"
        lsfx = " nt" if (self.opts.get("lnt") and "store" in texts[0]) else ""
        body += "".join(f"    {t}{lsfx}\n" for t in texts)
        body += f"L_dj{n}:"
        out = [I("buffer_store_multi " + body, "vm", tag)]
        out[0].t = body
        out[0].cost = 3 + 5*len(texts)
        for _ in texts[1:]:
            x = I("; (counted above)", "vm", tag); x.cost = 0; out.append(x)
        return out
    def __init__(self, diag=False, opts=None):
        self.hd_regs = []
        self.osfx = ' sc1' if (opts or {}).get('osc1') else ''
        self.diag = diag; self.opts = opts or {}; self.nst = 0; self.names = []; self.pid = 0
    def stamp(self, name):
        if not self.diag: return []
        if self.opts.get("hdiag") == 2 and name in ("kernarg", "xiss", "proend", "lnfin", "pub", "early", "pok", "ownfin"): return []
        i = self.nst; self.nst += 1; self.names.append(name)
        return [o("s_memtime s[98:99]"), o("s_memrealtime s[100:101]"), o("s_waitcnt lgkmcnt(0)"),
                o(f"v_writelane_b32 v{V_STAMP}, s98, {i}"), o(f"v_writelane_b32 v{V_STAMP}, s100, {i+32}")]

    def paced(self, M, frags, setup, dist):
        N = len(M)
        sl = Slots(N)
        for g, m in enumerate(M):
            if m["op"] == 16: sl.budget[g] = 3
        head = []
        pid = self.pid; self.pid += 1
        def put(t, ins):
            if t < 0: head.extend(ins if isinstance(ins, list) else [ins])
            else: sl.put(t, ins)
        issue = {}
        for f, fr in enumerate(frags):
            t = fr["use"] - fr.get("dist", dist)
            issue[f] = t
            put(t, fr.get("pre", []))
            put(t, [ds(r, ("af", pid, f)) for r in fr["reads"]])
        waited = -1
        n0 = M[0]["need"]
        if n0 >= 0:
            tgt = max(n0, M[1]["need"])
            head.append(wlg(("af", pid, tgt))); waited = tgt
        for g in range(N - 1):
            nx = M[g+1]["need"]
            if nx > waited:
                tgt = nx
                if g + 2 < N and M[g+2]["need"] > nx and issue[M[g+2]["need"]] <= g - 3 and M[g+1]["op"] == 32: tgt = M[g+2]["need"]
                put(g, [wlg(("af", pid, tgt))]); waited = tgt
        setup(sl, head)
        L = list(head)
        for g, m in enumerate(M):
            L += m.get("before", [])
            c = "0" if m["first"] else m.get("C", m["acc"])
            if m.get("C") and m["first"]: c = m["C"]
            L.append((mf32 if m["op"] == 32 else mf16)(m["acc"], m["A"], m["B"], c))
            L += sl.emit(g)
        if self.opts.get("verbose"):
            over = [(g, sl.used[g], sl.budget[g]) for g in range(N) if sl.used[g] > sl.budget[g]]
            print(f"paced {pid}: N={N} over budget: {len(over)} total excess {sum(u-b for _,u,b in over)} avg used {sum(sl.used)/N:.2f}")
            if self.opts.get("verbose") > 1:
                for a in range(0, N, 36):
                    ex = sum(max(0, sl.used[g]-sl.budget[g]) for g in range(a, min(a+36, N)))
                    print(a, "used", sum(sl.used[a:a+36]), "budget", sum(sl.budget[a:a+36]), "excess", ex)
        return L

    def prologue(self):
        L = []
        if self.opts.get("hdiag"): L += [o("s_memrealtime s[98:99]")]
        if self.diag: L += [o(f"v_mov_b32 v{V_STAMP}, 0")]
        L += self.stamp("start")
        L += [o("s_load_dwordx16 s[16:31], s[0:1], 0"), o("s_load_dwordx8 s[32:39], s[0:1], 64"),
              o("s_cmp_ge_u32 s2, 256"), o("s_cbranch_scc1 L_end")]
        L += [o("v_lshrrev_b32 v2, 6, v0"), o("v_and_b32 v0, 63, v0"), o("s_nop 0"),
              o(f"v_readfirstlane_b32 s{S_W}, v2"),
              ] + self.idmap() + [
              o(f"s_mul_i32 s{S_LX}, s{S_W}, {SLOT}"), o(f"s_mul_i32 s{S_L9}, s{S_W}, 9216"),
              o(f"v_lshlrev_b32 v{V_L16}, 4, v0")]
        if self.opts.get("cpf", 1):
            L += [o("s_getpc_b64 s[82:83]"), raw("L_pc:"),
                  o(f"s_lshr_b32 s{T0}, s2, 3"), o(f"s_lshl_b32 s{T0}, s{T0}, 2"), o(f"s_add_u32 s{T0}, s{T0}, s{S_W}"),
                  o(f"s_lshl_b32 s{T0}, s{T0}, 9"),
                  o("v_and_b32 v2, 3, v0"), o("v_lshlrev_b32 v2, 7, v2"), o(f"v_add_u32 v2, s{T0}, v2"),
                  o("v_cmp_gt_u32 vcc, L_end-L_pc, v3") if False else o("v_mov_b32 v4, L_end-L_pc"),
                  o("v_cmp_gt_u32 vcc, 4, v0"), o("v_cmp_gt_u32 s[80:81], v4, v2"), o("s_nop 1"), o("s_and_b64 vcc, vcc, s[80:81]"),
                  o("s_and_saveexec_b64 s[80:81], vcc"), o("s_cbranch_execz L_nocpf"),
                  vm(f"global_load_dword v{V_PF}, v2, s[82:83]", "pf"), raw("L_nocpf:"), o("s_mov_b64 exec, s[80:81]")]
        L += [o("v_lshrrev_b32 v2, 3, v0"), o("v_and_b32 v3, 7, v0"), o("v_lshrrev_b32 v4, 1, v2"),
              o("v_xor_b32 v3, v3, v4"), o("v_lshlrev_b32 v3, 4, v3"), o("v_xor_b32 v4, 64, v3"),
              o(f"s_lshl_b32 s{T0}, s{S_MT}, 5"), o(f"s_lshl_b32 s{T1}, s{S_W}, 3"), o(f"s_add_u32 s{T0}, s{T0}, s{T1}"),
              o(f"v_add_u32 v5, s{T0}, v2"),
              o("v_sub_u32 v6, 1024, v5"), o("v_add_u32 v7, 1024, v5"), o("v_sub_u32 v8, 2048, v5"),
              o("v_cmp_eq_u32 vcc, 0, v5"), o("v_mov_b32 v9, 512"), o("s_nop 0"),
              o("v_cndmask_b32 v7, v7, v9, vcc"), o("v_mov_b32 v9, 1536"), o("s_nop 0"), o("v_cndmask_b32 v8, v8, v9, vcc"),
              o(f"s_movk_i32 s{T1}, 1152"),
              o(f"v_mad_u32_u24 v240, v5, s{T1}, v3"), o(f"v_mad_u32_u24 v241, v6, s{T1}, v4"),
              o(f"v_mad_u32_u24 v242, v7, s{T1}, v3"), o(f"v_mad_u32_u24 v243, v8, s{T1}, v4")]
        if self.opts.get("xpf", 1) == 2:
            L += [o(f"s_lshl_b32 s{T0}, s{S_MT}, 4"), o(f"s_add_u32 s{T0}, s{T0}, s{S_J}"), o(f"s_lshl_b32 s{T0}, s{T0}, 2"), o(f"s_add_u32 s{T0}, s{T0}, s{S_W}"),
                  o(f"s_mul_i32 s{T0}, s{T0}, 18"), o(f"v_add_u32 v9, s{T0}, v0"), o("v_lshlrev_b32 v9, 7, v9"),
                  o("v_cmp_gt_u32 vcc, 18, v0"), o(f"v_mov_b32 v8, {OOB:#x}"), o("s_nop 0"), o("v_cndmask_b32 v9, v8, v9, vcc")]
        elif self.opts.get("xpf", 1):
            nsh = 16 if self.opts.get("cfg", 0) == 1 else 4
            per = 1152 // nsh // 4
            assert per <= 64 or True
            jj = f"s{S_J}"
            L += [o(f"s_and_b32 s{T0}, s{S_J}, {nsh-1}"), o(f"s_lshl_b32 s{T0}, s{T0}, 2"), o(f"s_add_u32 s{T0}, s{T0}, s{S_W}"), o(f"s_mul_i32 s{T0}, s{T0}, {per}"),
                  o(f"v_add_u32 v9, s{T0}, v0"),
                  o(f"s_mul_i32 s{T0}, s{S_MT}, {64*1152}"),
                  o(f"s_sub_u32 s{T1}, {(2048-63)*1152 - 576*128}, s{T0}"),
                  o("v_lshlrev_b32 v8, 7, v9"), o(f"v_add_u32 v7, s{T1}, v8"), o(f"v_add_u32 v8, s{T0}, v8"),
                  o("v_cmp_gt_u32 vcc, 0x240, v9"), o("s_nop 1"), o("v_cndmask_b32 v9, v7, v8, vcc"),
                  o(f"v_cmp_gt_u32 vcc, {min(per,64)}, v0"), o(f"v_mov_b32 v8, {OOB:#x}"), o("s_nop 0"), o("v_cndmask_b32 v9, v8, v9, vcc")]
        L += [o("s_waitcnt lgkmcnt(0)")]
        L += self.stamp("kernarg")
        L += srd(SR_X, 16, S*D*2)
        if self.opts.get("xpf", 1):
            L += [vm(f"buffer_load_dword v{V_PF}, v9, s[{SR_X}:{SR_X+3}], 0 offen", "pf")]
        HEAD = L
        P = []
        P += srd(SR_WG, 28, D*F*2) + srd(SR_WU, 30, D*F*2) + srd(SR_WD, 32, F*D*2) + srd(SR_WS, 38, 256 << 20) + srd(SR_OUT, 34, S*D*2)
        P += srd(SR_CS, 18, S*S*2) + srd(SR_SS, 20, S*S*2)
        P += [o(f"s_lshl_b32 s{T0}, s{S_W}, 6"), o(f"v_add_u32 v2, s{T0}, v0"), o("v_cmp_eq_u32 vcc, 0, v2"),
              o(f"v_mov_b32 v3, {OOB:#x}"), o("v_mov_b32 v4, 0"), o(f"v_cndmask_b32 v{V_ONE0}, v3, v4, vcc")]
        P += [o(f"s_lshl_b32 s{S_LID}, s{S_MT}, 4"), o(f"s_add_u32 s{S_LID}, s{S_LID}, s{S_J}")]
        P += [o(f"s_and_b32 s{T2}, s{S_J}, 1"), o(f"s_mul_i32 s{T0}, s{S_J}, 288"), o(f"s_mul_i32 s{T1}, s{T2}, 224"),
              o(f"s_add_u32 s{T1}, s{T0}, s{T1}"),
              G([o(f"s_cmp_eq_u32 s{T2}, 0"), o(f"s_cselect_b32 s{T3}, 64, -64"), o(f"s_cselect_b32 s{T4}, 256, 0")]),
              o(f"s_add_u32 s{T4}, s{T4}, s{T0}")]
        for u in range(4):
            P += [o(f"s_mul_i32 s{T5}, s{T3}, {u}"), o(f"s_add_u32 s{T5}, s{T5}, s{T1}"),
                  o(f"s_lshl_b32 s{S_UB+u}, s{T5}, 1"),
                  o(f"s_mul_i32 s{S_N0+2*u}, s{T5}, 1152"), o(f"s_add_u32 s{S_N0+2*u+1}, s{S_N0+2*u}, {32*1152}")]
        P += [o(f"s_lshl_b32 s{S_UB+4}, s{T4}, 1"), o(f"s_mul_i32 s{S_N0+8}, s{T4}, 1152")]
        P += [o(f"s_mov_b32 s{S_A}, s{S_UB}")]
        P += [o(f"s_mul_i32 s{T5}, s{S_W}, {72*9216}")]
        for u in range(4): P += [o(f"s_add_u32 s{S_UB+u}, s{S_UB+u}, s{T5}")]
        P += [o(f"s_lshl_b32 s{T5}, s{T5}, 1"), o(f"s_add_u32 s{S_UB+4}, s{S_UB+4}, s{T5}")]
        P += [o(f"s_lshr_b32 s{T0}, s{S_J}, 1"), o(f"s_mul_i32 s{S_PB}, s{T0}, {PART_BYTES}"),
              o(f"s_lshl_b32 s{T0}, s{S_MT}, 2"), o(f"s_add_u32 s{T0}, s{T0}, s{S_W}"),
              o(f"s_mul_i32 s{T0}, s{T0}, {18*2048}"), o(f"s_add_u32 s{S_PB}, s{S_PB}, s{T0}"),
              o(f"s_lshl_b32 s{T0}, s{S_LID}, 2"), o(f"s_add_u32 s{T0}, s{T0}, s{S_W}"),
              o(f"s_mul_i32 s{S_HB}, s{T0}, {18*1024}"), o(f"s_add_u32 s{S_HB}, s{S_HB}, {WS_HX}")]
        P += [o("v_lshrrev_b32 v2, 3, v0"), o("v_and_b32 v3, 7, v0"),
              o("v_bfe_u32 v4, v0, 4, 1"), o("v_lshlrev_b32 v4, 2, v4"), o("v_xor_b32 v3, v3, v4"), o("v_lshlrev_b32 v3, 4, v3"),
              o(f"v_mul_u32_u24 v2, 9216, v2"), o(f"v_add_u32 v{V_DM}, v2, v3")]
        for t in range(1, 4): P += [o(f"v_add_u32 v{V_DM+t}, {t*(8*9216-1024)}, v{V_DM}")]
        P += [o("v_and_b32 v2, 31, v0"), o("v_bfe_u32 v3, v0, 1, 3"), o("v_lshrrev_b32 v4, 5, v0"), o("v_xor_b32 v3, v3, v4"),
              o("v_lshlrev_b32 v3, 4, v3"), o("v_lshlrev_b32 v2, 7, v2"), o("v_add_u32 v2, v2, v3"),
              o(f"v_add_u32 v{V_XA}, s{S_LX}, v2"),
              o(f"v_xor_b32 v{V_XA+1}, 32, v{V_XA}"), o(f"v_xor_b32 v{V_XA+2}, 64, v{V_XA}"), o(f"v_xor_b32 v{V_XA+3}, 96, v{V_XA}")]
        P += [o("v_and_b32 v2, 15, v0"),
              o("v_and_b32 v3, 3, v2"), o("v_bfe_u32 v4, v2, 2, 1"), o("v_bfe_u32 v5, v2, 3, 1"),
              o("v_lshlrev_b32 v4, 3, v4"), o("v_lshlrev_b32 v5, 2, v5"), o("v_or_b32 v3, v3, v4"), o("v_or_b32 v3, v3, v5"),
              o("v_lshrrev_b32 v4, 3, v3"), o("v_lshrrev_b32 v5, 5, v0"),
              o("v_and_b32 v6, 1, v3"), o("v_lshlrev_b32 v6, 4, v6"), o("v_mov_b32 v7, 0x3f80"), o("v_lshlrev_b32 v7, v6, v7"), o("v_mov_b32 v8, 0"),
              G([o("v_cmp_eq_u32 vcc, v4, v5"), o("v_nop"), o("v_nop"), o("v_cndmask_b32 v7, v8, v7, vcc")]),
              o("v_bfe_u32 v6, v3, 1, 2"), o("v_bfe_u32 v9, v0, 4, 1")]
        for d in range(4):
            P += [G([o(f"v_cmp_eq_u32 vcc, {d}, v6"), o("v_nop"), o("v_nop"), o(f"v_cndmask_b32 v{V_PERM+d}, v8, v7, vcc")])]
        P += [G([o("v_cmp_eq_u32 vcc, 1, v9"), o("v_nop"), o("v_nop")] + [o(f"v_cndmask_b32 v{V_PERM+4+d}, v8, v{V_PERM+d}, vcc") for d in range(4)] +
                [o(f"v_cndmask_b32 v{V_PERM+d}, v{V_PERM+d}, v8, vcc") for d in range(4)])]
        L = []
        L += [o("v_mov_b32 v4, 0"), o(f"s_lshl_b32 s{T0}, s{S_LID}, 7"), o(f"s_add_u32 s{T0}, s{T0}, {WS_FLAG}"),
              vm(f"buffer_store_dword v4, v{V_ONE0}, s[{SR_WS}:{SR_WS+3}], s{T0} offen sc1", "flinit")]
        if self.opts.get("local", 0):
            L += [o(f"s_getreg_b32 s{T0}, hwreg(HW_REG_XCC_ID, 0, 4)"), o(f"s_add_u32 s{T0}, s{T0}, 1"),
                  o(f"s_and_b32 s{T1}, s{S_LID}, 7"), o(f"s_lshl_b32 s{T1}, s{T1}, 2"), o(f"s_lshl_b32 s{T0}, s{T0}, s{T1}"),
                  o(f"s_lshr_b32 s{T1}, s{S_LID}, 3"), o(f"s_lshl_b32 s{T1}, s{T1}, 2")]
            L += srd(SR_HZ, 36, 256)
            L += [o(f"v_mov_b32 v2, s{T0}"), vm(f"buffer_atomic_or v2, v{V_ONE0}, s[{SR_HZ}:{SR_HZ+3}], s{T1} offen sc1", "xccpub")]
        L += self.h_srd(S_J)
        if self.opts.get("pf", 1):
            L += [o(f"s_and_b32 s{T0}, s{S_MT}, 7"), o(f"s_mul_i32 s{T0}, s{T0}, 36"), o(f"s_mul_i32 s{T1}, s{S_W}, 9"), o(f"s_add_u32 s{T0}, s{T0}, s{T1}"),
                  o(f"v_add_u32 v2, s{T0}, v0"), o(f"v_mov_b32 v4, {OOB:#x}"),
                  o(f"s_mov_b32 s{T1}, {(2**32+8)//9}"), o(f"v_mul_hi_u32 v5, v2, s{T1}"), o("v_mul_u32_u24 v6, 9, v5"), o("v_sub_u32 v6, v2, v6"),
                  o(f"v_add_u32 v5, s{T7}, v5"), o(f"v_mul_u32_u24 v5, 1152, v5"), o("v_lshlrev_b32 v6, 7, v6"), o("v_add_u32 v5, v5, v6"),
                  o(f"v_mul_u32_u24 v3, 9216, v2"),
                  o("v_cmp_gt_u32 vcc, 9, v0"), o("s_nop 1"), o("v_cndmask_b32 v3, v4, v3, vcc"), o("v_cndmask_b32 v5, v4, v5, vcc"),
                  vm(f"buffer_load_dword v{V_PF}, v5, s[{SR_HZ}:{SR_HZ+3}], 0 offen", "pf")]
            L += [o(f"s_cmp_lt_u32 s{S_J}, 2"), o("s_cbranch_scc0 L_nopf2"),
                  o(f"s_mov_b32 s{T0}, {7*32*1152}"),
                  o(f"v_add_u32 v6, s{T0}, v5"), o("v_cmp_gt_u32 vcc, 9, v0"), o("s_and_saveexec_b64 s[82:83], vcc"),
                  o(f"global_load_dword v{V_PF}, v6, s[24:25]"),
                  o("s_mov_b64 exec, s[82:83]"), raw("L_nopf2:")]
            for sig in range(self.opts.get("npf", 4)):
                mat, kh = (sig // 2) % 2, sig % 2
                assert sig < 4
                rs = SR_WG if mat == 0 else SR_WU
                L += [o(f"s_add_u32 s{T6}, s{S_A}, {kh*288*9216}"),
                      vm(f"buffer_load_dword v{V_PF}, v3, s[{rs}:{rs+3}], s{T6} offen", "pf")]
        if self.opts.get("tlb", 0):
            st = self.opts.get("tlb", 0)
            n = (48 << 20) >> st
            L += [o(f"v_lshlrev_b32 v2, {st}, v0"), o(f"v_mov_b32 v4, {OOB:#x}")]
            for k in range(-(-n // 64)):
                L += [o(f"s_mov_b32 s{T0}, {k*64 << st}"), vm(f"buffer_load_dword v{V_PF}, v2, s[{SR_WS}:{SR_WS+3}], s{T0} offen", "pf")]
            L += [o("v_lshlrev_b32 v2, 16, v0"), vm(f"buffer_load_dword v{V_PF}, v2, s[{SR_OUT}:{SR_OUT+3}], 0 offen", "pf")]
        if self.opts.get('bearly'):
            L += [o(f"s_lshl_b32 s{S_PF}, s{S_LID}, 2"), o(f"s_add_u32 s{S_PF}, s{S_PF}, s{S_W}"), o(f"s_mul_i32 s{S_PF}, s{S_PF}, 41"),
                   o(f"v_add_u32 v2, s{S_PF}, v0"), o("v_lshlrev_b32 v2, 7, v2"), o("v_cmp_gt_u32 vcc, 41, v0"), o("s_nop 1"),
                   o(f"v_cndmask_b32 v2, v{V_ONE0}, v2, vcc"),
                   vm(f"buffer_load_dword v{V_PF}, v2, s[{SR_WG}:{SR_WG+3}], 0 offen", "pf"),
                   vm(f"buffer_load_dword v{V_PF}, v2, s[{SR_WU}:{SR_WU+3}], 0 offen", "pf")]
        post = L
        for n, i in enumerate(P):
            if not isinstance(i, G) and i.t.startswith("v_cmp_eq_u32 vcc, 0, v2"):
                P[n:n+4] = [G(P[n:n+4])]
                break
        out = HEAD
        flatx = []
        if self.opts.get("drot"):
            out += [o(f"s_and_b32 s100, s{S_J}, 3"), o(f"s_mul_i32 s100, s100, {self.opts.get('rotm', 9)}"), o("s_lshr_b32 s100, s100, 2")]
            out += [o("s_mov_b32 s99, s100")]
            for p in range(9):
                pre_ = [o("s_lshl_b32 s100, s99, 7"), o("s_lshl_b32 s101, s99, 12"), o(f"s_add_u32 s101, s101, s{S_LX}"),
                        o("s_add_u32 s99, s99, 1"), o("s_cmp_eq_u32 s99, 9"), o("s_cselect_b32 s99, 0, s99")]
                for rho in range(4):
                    g = (pre_ if rho == 0 else []) + [o(f"s_add_u32 m0, s101, {rho*1024}"), o("s_nop 0"),
                         vm(f"buffer_load_dwordx4 v{240+rho}, s[{SR_X}:{SR_X+3}], s100 offen lds", ("x", 8 if p == 8 else ("p", p)))]
                    flatx.append(g)
        for kap in range(9):
            if self.opts.get("drot"): break
            xl = self.x_line(kap)
            flatx += [xl[3*r:3*r+3] for r in range(4)]
        npre = len(P); pi = 0
        first = self.opts.get("xfree", 10)
        for n, g in enumerate(flatx):
            out += g
            if n >= first:
                take = -(-(npre - pi) // (36 - n))
                for it in P[pi:pi + take]: out += (list(it) if isinstance(it, G) else [it])
                pi += take
        out += self.stamp("xiss")
        L = out + post
        return L

    def tr_bases(self):
        L = []
        L += [o("v_lshrrev_b32 v16, 5, v0"), o("v_lshlrev_b32 v16, 10, v16"),
              o("v_bfe_u32 v17, v0, 2, 2"), o("v_lshlrev_b32 v17, 7, v17"), o("v_add_u32 v16, v16, v17"),
              o("v_bfe_u32 v17, v0, 3, 1"), o("v_lshlrev_b32 v17, 6, v17"), o("v_add_u32 v16, v16, v17"),
              o("v_bfe_u32 v17, v0, 4, 1"), o("v_lshlrev_b32 v17, 5, v17"), o("v_add_u32 v16, v16, v17"),
              o("v_and_b32 v17, 3, v0"), o("v_lshlrev_b32 v17, 3, v17"), o(f"v_add_u32 v{V_RA}, v16, v17")]
        for s in range(1, 4): L += [o(f"v_add_u32 v{V_RA+s}, {s*SLOT}, v{V_RA}")]
        for s in range(4): L += [o(f"v_xor_b32 v{V_RB+s}, 64, v{V_RA+s}")]
        return L

    def idmap(self):
        cfg = self.opts.get("cfg", 0)
        if cfg == 0:
            return [o(f"s_and_b32 s{S_J}, s2, 3"), o(f"s_lshl_b32 s{S_J}, s{S_J}, 2"),
              o(f"s_bfe_u32 s{T0}, s2, 0x20003"), o(f"s_or_b32 s{S_J}, s{S_J}, s{T0}"),
              o(f"s_bfe_u32 s{S_MT}, s2, 0x10002"), o(f"s_lshl_b32 s{S_MT}, s{S_MT}, 3"),
              o(f"s_lshr_b32 s{T0}, s2, 5"), o(f"s_or_b32 s{S_MT}, s{S_MT}, s{T0}")]
        if cfg == 1:
            return [o(f"s_and_b32 s{S_MT}, s2, 7"), o(f"s_lshl_b32 s{S_MT}, s{S_MT}, 1"), o(f"s_bfe_u32 s{T0}, s2, 0x10003"),
                    o(f"s_or_b32 s{S_MT}, s{S_MT}, s{T0}"), o(f"s_lshr_b32 s{S_J}, s2, 4")]
        if cfg == 3:
            return [o(f"s_and_b32 s{S_J}, s2, 7"), o(f"s_lshl_b32 s{S_J}, s{S_J}, 1"), o(f"s_bfe_u32 s{T0}, s2, 0x10003"),
                    o(f"s_or_b32 s{S_J}, s{S_J}, s{T0}"), o(f"s_lshr_b32 s{S_MT}, s2, 4")]
        if cfg == 2:
            return [o(f"s_and_b32 s{S_J}, s2, 1"), o(f"s_lshl_b32 s{S_J}, s{S_J}, 3"),
              o(f"s_bfe_u32 s{T0}, s2, 0x30003"), o(f"s_or_b32 s{S_J}, s{S_J}, s{T0}"),
              o(f"s_bfe_u32 s{S_MT}, s2, 0x20001"), o(f"s_lshl_b32 s{S_MT}, s{S_MT}, 2"),
              o(f"s_lshr_b32 s{T0}, s2, 6"), o(f"s_or_b32 s{S_MT}, s{S_MT}, s{T0}")]

    def h_srd(self, zreg):
        return [o(f"s_cmp_lt_u32 s{zreg}, 9"),
                o(f"s_cselect_b32 s{SR_HZ}, s22, s24"), o(f"s_cselect_b32 s{SR_HZ+1}, s23, s25"), o(f"s_cselect_b32 s{T7}, 0, 9"),
                o(f"s_and_b32 s{SR_HZ+1}, s{SR_HZ+1}, 0xffff"), o(f"s_mov_b32 s{SR_HZ+2}, {D*D*2}"), o(f"s_mov_b32 s{SR_HZ+3}, 0x00020000"),
                o(f"s_sub_u32 s{T7}, s{zreg}, s{T7}"), o(f"s_lshl_b32 s{T7}, s{T7}, 5")]

    def h_dma(self, zreg, slot, tag):
        L = self.h_srd(zreg)
        L += [o(f"s_lshl_b32 s{T1}, s{S_W}, 3"), o(f"s_add_u32 s{T0}, s{T7}, s{T1}"),
             o("v_lshrrev_b32 v240, 3, v0"), o("v_and_b32 v241, 7, v0"), o("v_lshrrev_b32 v242, 1, v240"), o("v_xor_b32 v241, v241, v242"),
             o(f"s_and_b32 s{T1}, s{S_W}, 1"), o(f"s_lshl_b32 s{T1}, s{T1}, 2"), o(f"v_xor_b32 v241, s{T1}, v241"),
             o("v_lshlrev_b32 v241, 4, v241"),
             o(f"v_add_u32 v240, s{T0}, v240"), o(f"s_movk_i32 s{T1}, 1152"), o(f"v_mad_u32_u24 v240, v240, s{T1}, v241"),
             o(f"s_lshl_b32 s{T1}, s{S_W}, 10"), o(f"s_add_u32 s{T1}, s{T1}, {slot*SLOT}")]
        for kap in range(9):
            L += [o(f"s_add_u32 m0, s{T1}, {4*kap*1024 - 128*kap}"), o("s_nop 0"),
                  vm(f"buffer_load_dwordx4 v240, s[{SR_HZ}:{SR_HZ+3}], 0 offen offset:{128*kap} lds", tag)]
        return L

    def h_special(self, zreg, slot, sfx):
        return [o(f"s_cmp_eq_u32 s{zreg}, 9"), o(f"s_cbranch_scc0 L_h_nosp{sfx}"), o(f"s_cmp_eq_u32 s{S_W}, 0"), o(f"s_cbranch_scc0 L_h_nosp{sfx}"),
                o("v_mov_b32 v232, 0xbf803f80"), o("v_mov_b32 v233, v232"), o("v_mov_b32 v234, v232"), o("v_mov_b32 v235, v232"),
                o("v_lshrrev_b32 v240, 3, v0"), o("v_lshlrev_b32 v240, 12, v240"), o("v_and_b32 v241, 7, v0"), o("v_lshlrev_b32 v241, 4, v241"),
                o("v_add_u32 v240, v240, v241"), o(f"v_add_u32 v240, {slot*SLOT}, v240"), o(f"v_add_u32 v241, {slot*SLOT}, v241"),
                o("ds_write_b128 v240, v[232:235]"), o("ds_write_b128 v241, v[232:235] offset:32768"),
                o("s_waitcnt lgkmcnt(0)"), raw(f"L_h_nosp{sfx}:")]

    def x_line(self, kap):
        L = []
        for rho in range(4):
            L += [o(f"s_add_u32 m0, s{S_LX}, {(4*kap+rho)*1024 - 128*kap}"), o("s_nop 0"),
                  vm(f"buffer_load_dwordx4 v{240+rho}, s[{SR_X}:{SR_X+3}], 0 offen offset:{128*kap} lds", ("x", kap))]
        return L
    def x_dma_variants(self):
        L = []
        for kap in range(self.opts.get("xpre", 3)): L += self.x_line(kap)
        return L
    def x_dma_variants_old(self):
        if not self.opts.get("rot", 0):
            L = []
            for kap in range(9):
                for rho in range(4):
                    L += [o(f"s_add_u32 m0, s{S_LX}, {(4*kap+rho)*1024 - 128*kap}"), o("s_nop 0"),
                          vm(f"buffer_load_dwordx4 v{240+rho}, s[{SR_X}:{SR_X+3}], 0 offen offset:{128*kap} lds", ("x", kap))]
            return L
        L = [o(f"s_and_b32 s{T0}, s{S_J}, 3")]
        for v in range(1, 4): L += [o(f"s_cmp_eq_u32 s{T0}, {v}"), o(f"s_cbranch_scc1 L_xd{v}")]
        for v in range(4):
            if v: L += [raw(f"L_xd{v}:")]
            for pos in range(9):
                kap = (self.K0[v] + pos) % 9
                for rho in range(4):
                    t = f"buffer_load_dwordx4 v{240+rho}, s[{SR_X}:{SR_X+3}], 0 offen offset:{128*kap} lds"
                    L += [o(f"s_add_u32 m0, s{S_LX}, {(4*kap+rho)*1024 - 128*kap}"), o("s_nop 0"),
                          (vm(t, ("x", pos)) if v == 3 else o(t))]
            if v < 3: L += [o("s_branch L_xdj")]
        L += [raw("L_xdj:")]
        return L
    K0 = [0, 2, 4, 7]

    def ln_stats(self):
        L = []
        SA = 16
        for i in range(8): L += [o(f"v_mov_b32 v{SA+i}, 0")]
        L += [o(f"s_mov_b32 s{T5}, 0x3f803f80")]
        def reads(kap):
            return [wvm(("x", kap))] + [ds(f"ds_read_b128 v[{RX+4*ks}:{RX+4*ks+3}], v{V_XA+(ks&3)} offset:{(ks//4)*4096}", ("xr", ks)) for ks in range(4*kap, 4*kap+4)]
        if self.opts.get("drot"):
            L += [wvm(("x", 8))]
            def rd2(kap): return [ds(f"ds_read_b128 v[{RX+4*ks}:{RX+4*ks+3}], v{V_XA+(ks&3)} offset:{(ks//4)*4096}", ("xr", ks)) for ks in range(4*kap, 4*kap+4)]
            L += rd2(0) + rd2(1)
            if self.opts.get("msum", 1):
                L += [o("v_mov_b32 v48, 0x3f803f80"), o("v_mov_b32 v49, v48"), o("v_mov_b32 v50, v48"), o("v_mov_b32 v51, v48")]
            first = True
            for kap in range(9):
                if kap + 2 < 9: L += rd2(kap + 2)
                if not self.opts.get("msum", 1):
                    L += self.stats_line(kap); continue
                for n, ks in enumerate(range(4*kap, 4*kap + 4)):
                    L += [wlg(("xr", ks))]
                    usem = (n % 2 == 0) or self.opts.get("msum") == 2
                    if usem:
                        L += [mf32("v[32:47]", "v[48:51]", f"v[{RX+4*ks}:{RX+4*ks+3}]", "0" if first else "v[32:47]")]
                        first = False
                    for i in range(4):
                        r = RX + 4*ks + i
                        if not usem: L += [o(f"v_dot2_f32_bf16 v{SA+i}, v{r}, s{T5}, v{SA+i}")]
                        L += [o(f"v_dot2_f32_bf16 v{SA+4+i}, v{r}, v{r}, v{SA+4+i}")]
            return L
        L += reads(0)
        for kap in range(9):
            if kap + 1 < 9: L += reads(kap + 1)
            L += self.stats_line(kap)
        return L
    def stats_line(self, kap):
        L = []
        SA = 16
        for ks in range(4*kap, 4*kap + 4):
            L += [wlg(("xr", ks))]
            for i in range(4):
                r = RX + 4*ks + i
                if self.opts.get("dotc"):
                    L += [o(f"v_dot2c_f32_bf16 v{SA+i}, s{T5}, v{r}"), o(f"v_dot2c_f32_bf16 v{SA+4+i}, v{r}, v{r}")]
                else:
                    L += [o(f"v_dot2_f32_bf16 v{SA+i}, v{r}, s{T5}, v{SA+i}"),
                          o(f"v_dot2_f32_bf16 v{SA+4+i}, v{r}, v{r}, v{SA+4+i}")]
        return L

    def ln_stats_v(self, v, tracked, order):
        L = []
        SA = 16
        for i in range(8): L += [o(f"v_mov_b32 v{SA+i}, 0")]
        L += [o(f"s_mov_b32 s{T5}, 0x3f803f80")]
        def reads(pos):
            kap = order[pos]
            w = [wvmf(("x", pos))]
            return w + [o(f"ds_read_b128 v[{RX+4*ks}:{RX+4*ks+3}], v{V_XA+(ks&3)} offset:{(ks//4)*4096}") for ks in range(4*kap, 4*kap+4)]
        L += reads(0)
        L += self.stamp("x0")
        for pos in range(9):
            if pos == 4: L += self.stamp("x4")
            if pos + 1 < 9: L += reads(pos + 1)
            kap = order[pos]
            for n, ks in enumerate(range(4*kap, 4*kap + 4)):
                left = (3 - n) + (4 if pos + 1 < 9 else 0)
                L += [o(f"s_waitcnt lgkmcnt({left})")]
                for i in range(4):
                    r = RX + 4*ks + i
                    L += [o(f"v_dot2_f32_bf16 v{SA+i}, v{r}, s{T5}, v{SA+i}"),
                          o(f"v_dot2_f32_bf16 v{SA+4+i}, v{r}, v{r}, v{SA+4+i}")]
        return L

    def ln_stats_old(self):
        L = []
        SA = 16
        for i in range(8): L += [o(f"v_mov_b32 v{SA+i}, 0")]
        L += [o(f"s_mov_b32 s{T5}, 0x3f803f80")]
        def reads(kap):
            return [wvm(("x", kap))] + [ds(f"ds_read_b128 v[{RX+4*ks}:{RX+4*ks+3}], v{V_XA+(ks&3)} offset:{(ks//4)*4096}", ("xr", ks)) for ks in range(4*kap, 4*kap+4)]
        L += reads(0)
        for kap in range(9):
            if kap + 1 < 9: L += reads(kap + 1)
            for ks in range(4*kap, 4*kap + 4):
                L += [wlg(("xr", ks))]
                for i in range(4):
                    r = RX + 4*ks + i
                    L += [o(f"v_dot2_f32_bf16 v{SA+i}, v{r}, s{T5}, v{SA+i}"),
                          o(f"v_dot2_f32_bf16 v{SA+4+i}, v{r}, v{r}, v{SA+4+i}")]
        return L

    def ln_finish(self):
        SA = 16
        L = [o("s_nop 2"),
             o(f"v_add_f32 v{SA}, v{SA}, v{SA+1}"), o(f"v_add_f32 v{SA+2}, v{SA+2}, v{SA+3}"),
             o(f"v_add_f32 v{SA+4}, v{SA+4}, v{SA+5}"), o(f"v_add_f32 v{SA+6}, v{SA+6}, v{SA+7}"),
             o(f"v_add_f32 v24, v{SA}, v{SA+2}"), o(f"v_add_f32 v26, v{SA+4}, v{SA+6}"),
             o("v_mov_b32 v25, v24"), o("v_mov_b32 v27, v26"), o("s_nop 1"),
             o("v_permlane32_swap_b32 v24, v25"), o("v_permlane32_swap_b32 v26, v27"), o("s_nop 1"),
             o("v_add_f32 v24, v24, v25"), o("v_add_f32 v26, v26, v27")] + ([o("v_add_f32 v24, v24, v32")] if (self.opts.get("drot") and self.opts.get("msum", 1)) else []) + [
             o(f"s_mov_b32 s{T5}, {f2u(1.0/576):#x}"),
             o(f"v_mul_f32 v24, s{T5}, v24"), o(f"v_mul_f32 v26, s{T5}, v26"),
             o("v_fma_f32 v26, -v24, v24, v26"), o("v_max_f32 v26, 0, v26"),
             o("v_cvt_pk_bf16_f32 v24, v24, v26"),
             o("v_and_b32 v26, 0xffff0000, v24"), o("v_lshlrev_b32 v24, 16, v24"),
             o(f"v_xor_b32 v{V_NEGMU}, 0x80000000, v24")]
        for i in range(1, 16): L += [o(f"v_mov_b32 v{V_NEGMU+i}, v{V_NEGMU}")]
        L += [o(f"v_add_f32 v26, {f2u(1e-5):#x}, v26"),
              o("v_cvt_pk_bf16_f32 v26, v26, v26"), o("v_lshlrev_b32 v26, 16, v26"),
              o("v_sqrt_f32 v26, v26"), o("s_nop 0"),
              o("v_cvt_pk_bf16_f32 v26, v26, v26"), o("v_lshlrev_b32 v26, 16, v26"),
              o("v_rcp_f32 v27, v26"), o(f"v_mul_f32 v{V_D2}, v26, v26"),
              o(f"v_mul_f32 v{V_C0}, {f2u(C0):#x}, v27"), o("v_mul_f32 v28, v27, v27"), o("v_mul_f32 v28, v28, v27"),
              o(f"v_mul_f32 v{V_C1}, {f2u(C1):#x}, v28"),
              o("v_and_b32 v28, 31, v0"), o("v_lshlrev_b32 v28, 2, v28"), o(f"s_lshl_b32 s{T0}, s{S_W}, 12"), o(f"s_add_u32 s{T0}, s{T0}, {SPARE}"),
              o(f"v_add_u32 v28, s{T0}, v28"), ds("ds_write_b32 v28, v27", "rtab")]
        return L

    def seg_norm_h(self):
        M = []; frags = []
        def UBf(i):
            if i == 0: return 16
            if i % 2 == 0: return RX + 8*(i - 2)
            return (32, 48, 16)[((i - 1)//2) % 3]
        def nextuser(i):
            for k in range(i + 1, 18):
                if UBf(k) == UBf(i): return k
            return None
        posU = {}; posH = {}
        def U(i):
            b = UBf(i)
            M.append(dict(op=32, acc=f"v[{b}:{b+15}]", first=True, C=f"v[{V_NEGMU}:{V_NEGMU+15}]", A=f"v[{V_PERM}:{V_PERM+3}]", B=f"v[{RX+8*i}:{RX+8*i+3}]", need=-1))
            M.append(dict(op=32, acc=f"v[{b}:{b+15}]", first=False, A=f"v[{V_PERM+4}:{V_PERM+7}]", B=f"v[{RX+8*i+4}:{RX+8*i+7}]", need=-1))
            posU[i] = len(M) - 2
        def H(ks):
            f = len(frags); a = AF + 4*(f % NAF)
            frags.append(dict(reads=[f"ds_read_b128 a[{a}:{a+3}], v{V_XA+(ks&3)} offset:{(ks//4)*4096}"], use=len(M)))
            M.append(dict(op=32, acc=f"v[{V_HACC}:{V_HACC+15}]", first=(ks == 0), A=f"a[{AX+4*ks}:{AX+4*ks+3}]", B=f"a[{a}:{a+3}]", need=f))
            posH[ks] = len(M) - 1
        LAG = 5
        for i in range(18):
            U(i)
            if i >= LAG: H(2*(i-LAG)); H(2*(i-LAG)+1)
        for i in range(18 - LAG, 18): H(2*i); H(2*i+1)
        last = -1
        for m in M:
            if m["need"] < 0: m["need"] = last
            else: last = m["need"]
        g0 = frags[0]["use"] - 6
        M[g0].setdefault("before", []).extend([wvm("wz1")] + self.h_special(S_A, 2, "a") + [o("s_waitcnt lgkmcnt(0)"), o("s_barrier")])
        def setup(sl, head):
            sl.put(2, [o('s_nop 4')]); sl.put(3, [o('s_nop 4')])
            for i in range(18):
                b = UBf(i)
                ins = []
                for q in range(8):
                    t = 2 + 2*(i % 4) + (q % 2)
                    ins += [o(f"v_cvt_pk_bf16_f32 v{t}, v{b+2*q}, v{b+2*q+1}"), o(f"v_accvgpr_write_b32 a{AX+8*i+q}, v{t}")]
                start = posU[i] + 1 + 3
                end = min(posH[2*i] - 1, start + 11)
                if nextuser(i) is not None: end = min(end, posU[nextuser(i)])
                e = sl.stream(ins, start, end, spill=0)
                assert e < posH[2*i] - 0, (i, e, posH[2*i])
        return self.paced(M, frags, setup, 6)

    def h_epilogue(self, zreg, acc, rr, tb):
        L = []
        sg, f1, f2, f3 = tb + 8, tb + 9, tb + 10, tb + 11
        L += [G([o(f"s_cmp_lt_u32 s{zreg}, 9"), o(f"s_cselect_b32 s{S_ST0}, 1.0, -1.0")]), o(f"v_mov_b32 v{sg}, s{S_ST0}"),
              G([o(f"s_cmp_eq_u32 s{zreg}, 9"), o(f"s_cselect_b32 s{S_ST0}, 0, 99")]),
              G([o(f"v_and_b32 v{f1}, 31, v0"), o(f"v_cmp_eq_u32 vcc, s{S_ST0}, v{f1}"), o(f"v_mov_b32 v{f2}, 1.0"), o("v_nop"),
                 o(f"v_cndmask_b32 v{sg}, v{sg}, v{f2}, vcc")]),
              G([o(f"s_or_b32 s{S_ST0}, s{S_MT}, s{S_W}"), o(f"s_cmp_eq_u32 s{S_ST0}, 0"), o(f"s_cselect_b32 s{S_ST0}, 32, 0")]),
              G([o(f"v_cmp_gt_u32 vcc, s{S_ST0}, v0"), o(f"v_mov_b32 v{tb}, 0"), o(f"v_mov_b32 v{tb+1}, 1.0"),
                 o(f"v_cndmask_b32 v{f1}, v{sg}, v{tb+1}, vcc"), o(f"v_cndmask_b32 v{f2}, v{tb+1}, v{tb}, vcc"), o(f"v_cndmask_b32 v{f3}, v{sg}, v{tb}, vcc")])]
        for r in range(16): L += [o(f"v_mul_f32 v{acc+r}, v{acc+r}, v{rr+r}")]
        L += [o(f"v_add_f32 v{tb+12}, v{acc+8}, v{acc+12}"), o(f"v_sub_f32 v{tb+13}, v{acc+8}, v{acc+12}"), o(f"v_mov_b32 v{tb+14}, 0"),
              G([o(f"v_cmp_lt_f32 vcc, 0, v{sg}"), o("v_nop"), o("v_nop"),
                 o(f"v_cndmask_b32 v{tb+12}, v{tb+14}, v{tb+12}, vcc"), o(f"v_cndmask_b32 v{tb+13}, v{tb+13}, v{tb+14}, vcc")])]
        for ii in range(4):
            s1, s3 = (f1, f3) if ii == 0 else (sg, sg)
            v0, v1, v2, v3 = acc + ii, acc + 4 + ii, acc + 8 + ii, acc + 12 + ii
            if ii == 0: L += [o(f"v_mul_f32 v{v2}, v{v2}, v{f2}")]
            L += [o(f"v_fma_f32 v{v0}, v{v3}, v{s3}, v{v0}"),
                  o(f"v_fma_f32 v{v1}, v{v1}, v{s1}, v{v2}"),
                  o(f"v_add_f32 v{tb+ii}, v{v0}, v{v1}"), o(f"v_sub_f32 v{tb+4+ii}, v{v0}, v{v1}")]
        L += [o(f"v_cvt_pk_bf16_f32 v{rr}, v{tb}, v{tb+1}"), o(f"v_cvt_pk_bf16_f32 v{rr+1}, v{tb+2}, v{tb+3}"),
              o(f"v_cvt_pk_bf16_f32 v{rr+2}, v{tb+4}, v{tb+5}"), o(f"v_cvt_pk_bf16_f32 v{rr+3}, v{tb+6}, v{tb+7}"),
              G([o("v_nop"), o("v_nop"), o(f"v_permlane32_swap_b32 v{rr}, v{rr+2}"), o(f"v_permlane32_swap_b32 v{rr+1}, v{rr+3}")]),
              o(f"v_lshrrev_b32 v{rr+4}, 5, v0"), o(f"v_mul_u32_u24 v{rr+4}, {ZF_TYPE}, v{rr+4}"),
              o(f"v_and_b32 v{rr+5}, 31, v0"), o(f"v_lshlrev_b32 v{rr+5}, 4, v{rr+5}"), o(f"v_add_u32 v{rr+4}, v{rr+4}, v{rr+5}"),
              G([o(f"s_mul_i32 s{S_ST0}, s{zreg}, {ZF_STRIDE}"), o(f"s_lshl_b32 s{S_ST1}, s{S_MT}, 2"), o(f"s_add_u32 s{S_ST1}, s{S_ST1}, s{S_W}")]),
              G([o(f"s_lshl_b32 s{S_ST1}, s{S_ST1}, 9"), o(f"s_add_u32 s{S_ST1}, s{S_ST1}, s{S_ST0}"), o(f"s_add_u32 s{S_ST1}, s{S_ST1}, {WS_ZF}")]),
              vm(f"buffer_store_dwordx4 v[{rr}:{rr+3}], v{rr+4}, s[{SR_WS}:{SR_WS+3}], s{S_ST1} offen sc1", "zst"),
              o(f"v_mov_b32 v{tb+14}, v{tb+12}"),
              G([o("v_nop"), o("v_nop"), o(f"v_permlane32_swap_b32 v{tb+14}, v{tb+13}")]),
              o(f"v_mov_b32 v{rr+9}, 0"), o(f"v_mov_b32 v{rr+10}, 0"), o(f"v_mov_b32 v{rr+11}, 0"),
              o(f"v_cvt_pk_bf16_f32 v{rr+8}, v{tb+14}, v{rr+9}"),
              G([o(f"s_or_b32 s{S_ST1}, s{S_MT}, s{S_W}"), o(f"s_cmp_eq_u32 s{S_ST1}, 0"), o(f"s_cselect_b32 s{S_C}, 0, {OOB:#x}")]),
              o(f"v_add_u32 v{rr+5}, s{S_C}, v{rr+4}"),
              o(f"s_add_u32 s{S_ST0}, s{S_ST0}, {WS_ZF + 32*1024}"),
              vm(f"buffer_store_dwordx4 v[{rr+8}:{rr+11}], v{rr+5}, s[{SR_WS}:{SR_WS+3}], s{S_ST0} offen sc1", "zst"),
              G([o(f"v_mov_b32 v{rr+12}, 0"), o(f"v_mov_b32 v{rr+13}, 0"), o(f"v_mov_b32 v{rr+14}, 0"), o(f"v_mov_b32 v{rr+15}, 0")])]
        for k in (512, 1024, 1536):
            L += [vm(f"buffer_store_dwordx4 v[{rr+12}:{rr+15}], v{rr+5}, s[{SR_WS}:{SR_WS+3}], s{S_ST0} offen offset:{k} sc1", "zst")]
        return L

    def rr_reads(self, rr, tmp, n=1):
        return [o(f"v_lshrrev_b32 v{tmp}, 5, v0"), o(f"v_lshlrev_b32 v{tmp}, 4, v{tmp}"), o(f"s_lshl_b32 s{S_C}, s{S_W}, 12"),
                o(f"s_add_u32 s{S_C}, s{S_C}, {SPARE}"), o(f"v_add_u32 v{tmp}, s{S_C}, v{tmp}")] + \
               [ds(f"ds_read_b128 v[{rr+4*q}:{rr+4*q+3}], v{tmp} offset:{32*q}", ("rr", n)) for q in range(4)] + [wlg(("rr", n))]

    def h2_block(self):
        L = [o(f"s_cmp_lt_u32 s{S_J}, 2"), o("s_cbranch_scc0 L_noz2b")]
        B = [o(f"v_add_u32 v{64+i}, {SLOT}, v{V_XA+i}") for i in range(4)]
        B += [o(f"s_waitcnt vmcnt({18 if self.opts.get('bearly') else 20})"), o("s_barrier")]
        def rd(ks):
            a_ = AF + 4*(ks % NAF)
            return o(f"ds_read_b128 a[{a_}:{a_+3}], v{64+(ks&3)} offset:{(ks//4)*4096}")
        for ks in range(6): B += [rd(ks)]
        for k in range(36):
            a_ = AF + 4*(k % NAF)
            n_out = min(5, 35 - k)
            B += [o(f"s_waitcnt lgkmcnt({n_out})"), mf32("v[128:143]", f"a[{AX+4*k}:{AX+4*k+3}]", f"a[{a_}:{a_+3}]", "0" if k == 0 else "v[128:143]")]
            if k + 6 < 36: B += [rd(k + 6)]
        B += [raw("L_noz2b:"),
              o(f"s_cmp_lt_u32 s{S_J}, 2"), o(f"s_cselect_b32 s{S_B}, s{S_B}, 0x4000")]
        return L + B

    def dma_p1(self, sig, slot, tA=226, tB=227):
        groups = []
        if sig < 16:
            u, mat, kh = sig // 4, (sig // 2) % 2, sig % 2
            rs = SR_WG if mat == 0 else SR_WU
            for grp, ts in enumerate([[0,1,2,3],[0,1,2,3],[0]]):
                g = [o(f"s_add_u32 m0, s{S_L9}, {slot*SLOT + grp*4096}"),
                     o(f"s_add_u32 s{S_D0}, s{S_UB+u}, {(kh*288 + grp*32)*9216}")]
                for t in ts:
                    groups.append(g + [vm(f"buffer_load_dwordx4 v{V_DM+t}, s[{rs}:{rs+3}], s{S_D0} offen offset:{t*1024} lds", ("st", sig))])
                    g = []
        else:
            rs = SR_WG if sig == 16 else SR_WU
            for grp, ts in enumerate([[0,1,2,3],[0,1,2,3],[0]]):
                g = []
                if sig == 16 and grp == 0:
                    groups.append([o(f"v_lshrrev_b32 v{tA}, 2, v0"), o(f"v_and_b32 v{tB}, 3, v0"), o(f"v_lshlrev_b32 v{tB}, 4, v{tB}")])
                    groups.append([o(f"v_mul_u32_u24 v{tA}, 9216, v{tA}"), o(f"v_add_u32 v{V_DM}, v{tA}, v{tB}")] +
                                  [o(f"v_add_u32 v{V_DM+t}, {t*(16*9216-1024)}, v{V_DM}") for t in range(1, 4)])
                g += [o(f"s_add_u32 m0, s{S_L9}, {slot*SLOT + grp*4096}"),
                      o(f"s_add_u32 s{S_D0}, s{S_UB+4}, {grp*64*9216}")]
                for t in ts:
                    groups.append(g + [vm(f"buffer_load_dwordx4 v{V_DM+t}, s[{rs}:{rs+3}], s{S_D0} offen offset:{t*1024} lds", ("st", sig))])
                    g = []
        return groups

    def dma_cs(self, mat, slot, tag, nop=False):
        rs = SR_CS if mat == 0 else SR_SS
        groups = []
        for l in range(2):
            for rho in range(4):
                groups.append([o(f"s_add_u32 m0, s{S_A}, {slot*SLOT + (4*l+rho)*1024 - 128*l}")] + ([o("s_nop 0")] if nop else []) +
                              [vm(f"buffer_load_dwordx4 v{V_SD+rho}, s[{rs}:{rs+3}], 0 offen offset:{128*l} lds", tag)])
        return groups
    def dma_cx(self, mat, tag):
        rs = SR_CS if mat == 0 else SR_SS
        return [[o(f"s_add_u32 m0, s{S_B}, {SPARE + mat*4096}"), o("s_nop 0"),
                 vm(f"buffer_load_dwordx4 v{V_SE}, s[{rs}:{rs+3}], 0 offen lds", tag)]]

    def dma_p2(self, st, slot, first128, tA, tB, tC):
        u, who = st
        groups = []
        if u < 4:
            tbl = S_N0 if who == "own" else S_N1
            if first128:
                groups.append([o(f"v_lshrrev_b32 v{tA}, 3, v0"), o(f"v_and_b32 v{tB}, 7, v0"), o(f"v_bfe_u32 v{tC}, v0, 4, 1")])
                groups.append([o(f"v_lshlrev_b32 v{tC}, 2, v{tC}"), o(f"v_xor_b32 v{tB}, v{tB}, v{tC}"), o(f"v_lshlrev_b32 v{tB}, 4, v{tB}")])
                groups.append([o(f"s_mul_i32 s{S_WD}, s{S_W}, {8*1152}")])
                groups.append([o(f"v_mul_u32_u24 v{tA}, 1152, v{tA}"), o(f"v_add_u32 v{V_DM}, v{tA}, v{tB}"), o(f"v_add_u32 v{V_DM}, s{S_WD}, v{V_DM}")])
                groups.append([o(f"s_lshl_b32 s{S_WD}, s{S_W}, 10")])
            for ip in range(9):
                groups.append([o(f"s_add_u32 m0, s{S_WD}, {slot*SLOT + ip*4096}"),
                               o(f"s_add_u32 s{S_D0}, s{tbl+ip}, s{S_CU+u}"),
                               vm(f"buffer_load_dwordx4 v{V_DM}, s[{SR_WD}:{SR_WD+3}], s{S_D0} offen lds", ("s2", st))])
        else:
            groups.append([o(f"v_lshrrev_b32 v{tA}, 2, v0"), o(f"v_and_b32 v{tB}, 3, v0"), o(f"v_lshlrev_b32 v{tB}, 4, v{tB}")])
            groups.append([o(f"v_mul_u32_u24 v{tA}, 1152, v{tA}"), o(f"v_add_u32 v{V_DM+1}, v{tA}, v{tB}")])
            for ip in range(9):
                ca, cb = 2*ip, 2*ip + 1
                ra = (S_N0 + ca) if ca < 9 else (S_N1 + ca - 9)
                rb = (S_N0 + cb) if cb < 9 else (S_N1 + cb - 9)
                groups.append([o(f"s_cmp_lt_u32 s{S_W}, 2"), o(f"s_cselect_b32 s{S_D0}, s{ra}, s{rb}"),
                               o(f"s_add_u32 s{S_D0}, s{S_D0}, s{S_CU+4}"), o(f"s_add_u32 s{S_D0}, s{S_D0}, s{S_C}"),
                               o(f"s_add_u32 m0, s{S_WD}, {slot*SLOT + ip*4096}")])
                groups.append([vm(f"buffer_load_dwordx4 v{V_DM+1}, s[{SR_WD}:{SR_WD+3}], s{S_D0} offen lds", ("s2", st))])
        return groups

    def geglu(self, c, toff=0):
        if c < 8: g, u = GA[(c//2) % 2][c % 2], UA[(c//2) % 2][c % 2]
        else: g, u = GA[0][0], UA[0][0]
        L = []
        for p in range(8):
            r0, r1 = 2*p, 2*p + 1
            b = TMP + 4*(p % 2) + toff
            xa, xb, ya, yb = b, b+1, b+2, b+3
            L += [o(f"v_mul_f32 v{xa}, v{g+r0}, v{g+r0}"), o(f"v_mul_f32 v{xb}, v{g+r1}, v{g+r1}"),
                  o(f"v_fma_f32 v{xa}, v{xa}, v{V_C1}, v{V_C0}"), o(f"v_fma_f32 v{xb}, v{xb}, v{V_C1}, v{V_C0}"),
                  o(f"v_mul_f32 v{xa}, v{g+r0}, v{xa}"), o(f"v_mul_f32 v{xb}, v{g+r1}, v{xb}"),
                  o(f"v_exp_f32 v{xa}, v{xa}"), o(f"v_exp_f32 v{xb}, v{xb}"),
                  o(f"v_mul_f32 v{ya}, v{g+r0}, v{u+r0}"), o(f"v_mul_f32 v{yb}, v{g+r1}, v{u+r1}"),
                  o(f"v_fma_f32 v{xa}, v{xa}, v{V_D2}, v{V_D2}"), o(f"v_fma_f32 v{xb}, v{xb}, v{V_D2}, v{V_D2}"),
                  o(f"v_rcp_f32 v{xa}, v{xa}"), o(f"v_rcp_f32 v{xb}, v{xb}"),
                  o(f"v_mul_f32 v{ya}, v{ya}, v{xa}"), o(f"v_mul_f32 v{yb}, v{yb}, v{xb}"),
                  o(f"v_cvt_pk_bf16_f32 v{HF + 8*c + p}, v{ya}, v{yb}")]
        return L
    def geglu_sig(self, c, toff=0):
        g = GA[(c//2) % 2][c % 2] if c < 8 else GA[0][0]
        L = []
        for p in range(8):
            r0, r1 = 2*p, 2*p + 1
            b = TMP + 2*(p % 2) + toff
            xa, xb = b, b + 1
            L += [o(f"v_mul_f32 v{xa}, v{g+r0}, v{g+r0}"), o(f"v_mul_f32 v{xb}, v{g+r1}, v{g+r1}"),
                  o(f"v_fma_f32 v{xa}, v{xa}, v{V_C1}, v{V_C0}"), o(f"v_fma_f32 v{xb}, v{xb}, v{V_C1}, v{V_C0}"),
                  o(f"v_mul_f32 v{xa}, v{g+r0}, v{xa}"), o(f"v_mul_f32 v{xb}, v{g+r1}, v{xb}"),
                  o(f"v_exp_f32 v{xa}, v{xa}"), o(f"v_exp_f32 v{xb}, v{xb}"), o("v_nop") if False else None,
                  o(f"v_fma_f32 v{xa}, v{xa}, v{V_D2}, v{V_D2}"), o(f"v_fma_f32 v{xb}, v{xb}, v{V_D2}, v{V_D2}"),
                  o(f"v_rcp_f32 v{xa}, v{xa}"), o(f"v_rcp_f32 v{xb}, v{xb}"),
                  o(f"v_mul_f32 v{g+r0}, v{g+r0}, v{xa}"), o(f"v_mul_f32 v{g+r1}, v{g+r1}, v{xb}")]
        return [i for i in L if i is not None]
    def geglu_fin(self, c, toff=0):
        if c < 8: g, u = GA[(c//2) % 2][c % 2], UA[(c//2) % 2][c % 2]
        else: g, u = GA[0][0], UA[0][0]
        L = []
        for p in range(8):
            r0, r1 = 2*p, 2*p + 1
            L += [o(f"v_mul_f32 v{g+r0}, v{g+r0}, v{u+r0}"), o(f"v_mul_f32 v{g+r1}, v{g+r1}, v{u+r1}"),
                  o(f"v_cvt_pk_bf16_f32 v{HF + 8*c + p}, v{g+r0}, v{g+r1}")]
        return L
    def hstore(self, c):
        st = S_ST0 + (c % 2)
        return [o(f"s_add_u32 s{st}, s{S_HB}, {2*c*1024}")] + self.dstore(
                [f"buffer_store_dwordx4 v[{HF+8*c}:{HF+8*c+3}], v{V_L16}, s[{SR_WS}:{SR_WS+3}], s{st} offen",
                 f"buffer_store_dwordx4 v[{HF+8*c+4}:{HF+8*c+7}], v{V_L16}, s[{SR_WS}:{SR_WS+3}], s{st} offen offset:1024"], "hst", True)

    def s_setup(self):
        a, b, c = V_SX, V_YC[0], V_YC[1]
        L = []
        L += [G([o(f"s_lshr_b32 s{S_TAU}, s{S_J}, 3"), o(f"s_lshl_b32 s{S_A}, s{S_W}, 13"), o(f"s_lshl_b32 s{S_B}, s{S_W}, 10")]),
              G([o(f"s_mul_i32 s{S_ZB}, s{S_TAU}, {ZF_TYPE}"), o(f"s_add_u32 s{S_ZB}, s{S_ZB}, s{S_A}"), o(f"s_add_u32 s{S_ZB}, s{S_ZB}, {WS_ZF}")])]
        L += [o(f"v_lshrrev_b32 v{a}, 3, v0"), o(f"v_and_b32 v{b}, 7, v0"), o(f"v_lshrrev_b32 v{c}, 1, v{a}"), o(f"v_xor_b32 v{b}, v{b}, v{c}"),
              o(f"v_lshlrev_b32 v{b}, 4, v{b}"), o(f"v_xor_b32 v{c}, 64, v{b}"),
              G([o(f"s_lshl_b32 s{S_C}, s{S_MT}, 5"), o(f"s_add_u32 s{S_C}, s{S_C}, s{S_TAU}")]),
              o(f"v_lshlrev_b32 v{a}, 1, v{a}"), o(f"v_add_u32 v{a}, s{S_C}, v{a}"),
              o(f"s_lshl_b32 s{S_C}, s{S_W}, 8"),
              o(f"v_add_u32 v{b}, s{S_C}, v{b}"), o(f"v_add_u32 v{c}, s{S_C}, v{c}"),
              o(f"v_lshlrev_b32 v{V_SD}, 12, v{a}"), o(f"v_add_u32 v{V_SD+1}, {16*4096}, v{V_SD}"),
              o(f"v_sub_u32 v{a}, 1024, v{a}"), o(f"v_lshlrev_b32 v{V_SD+2}, 12, v{a}"), o(f"v_subrev_u32 v{V_SD+3}, {16*4096}, v{V_SD+2}"),
              o(f"v_add_u32 v{V_SD}, v{V_SD}, v{b}"), o(f"v_add_u32 v{V_SD+1}, v{V_SD+1}, v{c}"),
              o(f"v_add_u32 v{V_SD+2}, v{V_SD+2}, v{b}"), o(f"v_add_u32 v{V_SD+3}, v{V_SD+3}, v{c}")]
        return L
    def s_setup_e(self, t0, t1):
        return [G([o(f"s_cmp_eq_u32 s{S_W}, 1"), o(f"s_cselect_b32 s{S_C}, 1, 0")]),
                o(f"v_mov_b32 v{V_SE}, v{V_SD}"),
                G([o(f"v_mov_b32 v{t0}, s{S_W}"), o(f"v_cmp_eq_u32 vcc, 1, v{t0}"), o("v_nop"), o("v_nop"), o(f"v_cndmask_b32 v{V_SE}, v{V_SE}, v{V_SD+1}, vcc")]),
                G([o(f"v_cmp_eq_u32 vcc, 2, v{t0}"), o("v_nop"), o("v_nop"), o(f"v_cndmask_b32 v{V_SE}, v{V_SE}, v{V_SD+2}, vcc")]),
                G([o(f"v_cmp_eq_u32 vcc, 3, v{t0}"), o("v_nop"), o("v_nop"), o(f"v_cndmask_b32 v{V_SE}, v{V_SE}, v{V_SD+3}, vcc")]),
                G([o(f"s_lshl_b32 s{S_C}, s{S_W}, 8"), o(f"s_sub_u32 s{S_C}, 1024, s{S_C}")]), o(f"v_add_u32 v{V_SE}, s{S_C}, v{V_SE}")]
    def s_setup2(self):
        a, b, c = V_SX, V_YC[0], V_YC[1]
        L = []
        L += [o(f"v_and_b32 v{a}, 15, v0"), o(f"v_lshrrev_b32 v{b}, 4, v0"), o(f"v_bfe_u32 v{c}, v0, 1, 3"), o(f"v_xor_b32 v{c}, v{c}, v{b}"),
              o(f"v_lshlrev_b32 v{c}, 4, v{c}"), o(f"v_lshlrev_b32 v{a}, 7, v{a}"), o(f"v_add_u32 v{a}, v{a}, v{c}"),
              o(f"v_add_u32 v{V_SA}, s{S_A}, v{a}"), o(f"v_add_u32 v{V_SA}, {2*SLOT}, v{V_SA}"), o(f"v_xor_b32 v{V_SA+1}, 64, v{V_SA}"),
              G([o(f"s_cmp_eq_u32 s{S_W}, 3"), o(f"s_cselect_b32 s{S_C}, {SPARE}, 0")]),
              G([o(f"s_add_u32 s{S_PF}, s{S_A}, {2*SLOT}"), o(f"s_cmp_eq_u32 s{S_W}, 3"), o(f"s_cselect_b32 s{S_C}, s{S_C}, s{S_PF}")]),
              o(f"v_add_u32 v{V_SA+2}, s{S_C}, v{a}"),
              G([o(f"s_movk_i32 s{S_PF}, 4096"), o(f"s_cmp_eq_u32 s{S_W}, 3"), o(f"s_cselect_b32 s{S_PF}, s{S_PF}, {SLOT}")]),
              o(f"v_add_u32 v{V_SA+3}, s{S_PF}, v{V_SA+2}")]
        return L
    def s_setup3(self, t0, t1, t2, t3):
        L = []
        L += [o(f"v_and_b32 v{t0}, 15, v0"), o(f"v_lshrrev_b32 v{t1}, 4, v0"),
              o(f"v_and_b32 v{t2}, 1, v{t1}"), o(f"v_lshlrev_b32 v{t2}, 9, v{t2}"),
              o(f"v_lshrrev_b32 v{t1}, 1, v{t1}"), o(f"v_lshlrev_b32 v{t1}, 10, v{t1}"), o(f"v_add_u32 v{t2}, v{t2}, v{t1}"),
              G([o(f"s_and_b32 s{S_C}, s{S_J}, 7"), o(f"s_mul_i32 s{S_C}, s{S_C}, 36")]),
              o(f"v_add_u32 v{t0}, s{S_C}, v{t0}")]
        for ss in range(3):
            pa, qa, yc = V_ZP + ss, V_ZQ + ss, V_YC[ss]
            L += [o(f"v_lshrrev_b32 v{t1}, 5, v{t0}"), o(f"v_mul_u32_u24 v{t1}, {ZF_STRIDE}, v{t1}"),
                  o(f"v_and_b32 v{t3}, 31, v{t0}"), o(f"v_lshlrev_b32 v{t3}, 4, v{t3}"), o(f"v_add_u32 v{t1}, v{t1}, v{t3}"),
                  o(f"v_add_u32 v{t1}, v{t1}, v{t2}"),
                  o(f"v_subrev_u32 v{t3}, s{S_C}, v{t0}"),
                  o(f"v_lshlrev_b32 v{yc}, 2, v{t0}"), o(f"v_mov_b32 v{qa}, {OOB:#x}"), o(f"v_mov_b32 v{pa}, {OOB:#x}"),
                  G([o(f"v_cmp_gt_u32 vcc, 36, v{t3}"), o("v_nop"), o("v_nop"), o(f"v_cndmask_b32 v{pa}, v{pa}, v{t1}, vcc")]),
                  o(f"v_add_u32 v{t3}, {9*ZF_STRIDE}, v{t1}"),
                  G([o(f"v_cndmask_b32 v{qa}, v{qa}, v{t3}, vcc")]),
                  G([o(f"v_cmp_eq_u32 vcc, 0x120, v{t0}"), o("v_nop"), o("v_nop"), o(f"v_cndmask_b32 v{pa}, v{pa}, v{t1}, vcc")]),
                  G([o(f"v_mov_b32 v{t3}, {OOB:#x}"), o(f"v_cmp_eq_u32 vcc, 0, v{t0}"), o("v_nop"), o("v_nop"), o(f"v_cndmask_b32 v{qa}, v{qa}, v{t3}, vcc")]),
                  G([o(f"v_cmp_eq_u32 vcc, v{t3}, v{pa}"), o("v_nop"), o("v_nop"), o(f"v_cndmask_b32 v{yc}, v{yc}, v{t3}, vcc")]),
                  o(f"v_add_u32 v{t0}, 16, v{t0}")]
        return L

    def phase2_setup(self):
        L = []
        L += [G([o(f"s_xor_b32 s{T6}, s{S_J}, 1"), o(f"s_and_b32 s{T2}, s{T6}, 1"), o(f"s_mul_i32 s{T0}, s{T6}, 288")]),
              G([o(f"s_mul_i32 s{T1}, s{T2}, 224"), o(f"s_add_u32 s{T1}, s{T0}, s{T1}")]),
              G([o(f"s_cmp_eq_u32 s{T2}, 0"), o(f"s_cselect_b32 s{T3}, 64, -64"), o(f"s_cselect_b32 s{T4}, 256, 0")]),
              o(f"s_add_u32 s{T4}, s{T4}, s{T0}")]
        for u in range(4):
            L += [G([o(f"s_mul_i32 s{T5}, s{T3}, {u}"), o(f"s_add_u32 s{T5}, s{T5}, s{T1}")]),
                  G([o(f"s_mul_i32 s{S_N1+2*u}, s{T5}, 1152"), o(f"s_add_u32 s{S_N1+2*u+1}, s{S_N1+2*u}, {32*1152}")])]
        L += [o(f"s_mul_i32 s{S_N1+8}, s{T4}, 1152")]
        L += [G([o(f"s_and_b32 s{T2}, s{S_J}, 1"), o(f"s_mul_i32 s{T0}, s{T2}, 640"), o(f"s_lshr_b32 s{T1}, s{S_J}, 2")])]
        for k in range(4):
            L += [G([o(f"s_add_u32 s{T3}, s{T1}, {(k+1) % 4 if k < 3 else 0}"), o(f"s_and_b32 s{T3}, s{T3}, 3"), o(f"s_lshl_b32 s{T3}, s{T3}, 7")]),
                  o(f"s_add_u32 s{S_CU+k}, s{T0}, s{T3}")]
        L += [G([o(f"s_cmp_eq_u32 s{T2}, 0"), o(f"s_cselect_b32 s{S_CU+4}, 0, 64")]), o(f"s_add_u32 s{S_CU+4}, s{S_CU+4}, 512")]
        return L

    def p2q_setup(self):
        L = [G([o(f"s_and_b32 s{T2}, s{S_J}, 1"), o(f"s_mul_i32 s{T3}, s{T2}, 10"), o(f"s_lshr_b32 s{T4}, s{S_J}, 2")])]
        for k, dst in enumerate(S_QU):
            L += [G([o(f"s_add_u32 s{T5}, s{T4}, {k+1}"), o(f"s_and_b32 s{T5}, s{T5}, 3"), o(f"s_lshl_b32 s{T5}, s{T5}, 1")]),
                  G([o(f"s_add_u32 s{T5}, s{T5}, s{T3}"), o(f"s_lshl_b32 s{T5}, s{T5}, 11"), o(f"s_add_u32 s{dst}, s{T5}, s{S_PB}")])]
        L += [G([o(f"s_lshl_b32 s{T5}, s{T4}, 1"), o(f"s_add_u32 s{T5}, s{T5}, s{T3}"), o(f"s_bfe_u32 s{T4}, s{S_J}, 0x10001")]),
              G([o(f"s_add_u32 s{S_TO}, s{T5}, s{T4}"), o(f"s_xor_b32 s{T4}, s{T4}, 1"), o(f"s_add_u32 s{T5}, s{T5}, s{T4}")]),
              G([o(f"s_lshl_b32 s{T5}, s{T5}, 11"), o(f"s_add_u32 s{S_QN}, s{T5}, s{S_PB}")]),
              G([o(f"s_add_u32 s{T5}, s{T2}, 8"), o(f"s_lshl_b32 s{T5}, s{T5}, 11"), o(f"s_add_u32 s{S_Q8}, s{T5}, s{S_PB}")])]
        return L

    def main(self):
        DIST = self.opts.get("dist", 7)
        M = []; frags = []
        fu = {}; lu = {}
        def addfrag(reads_fn, use, dist=None, stage=None):
            f = len(frags); a = AF + 4*(f % NAF)
            fr = dict(reads=reads_fn(a), use=use)
            if dist: fr["dist"] = dist
            frags.append(fr)
            if stage is not None and stage not in fu:
                fu[stage] = use; fr["stage_first"] = stage
            return f, a
        def tr(base, off, off2): return lambda a: [f"ds_read_b64_tr_b16 a[{a}:{a+1}], v{base} offset:{off}", f"ds_read_b64_tr_b16 a[{a+2}:{a+3}], v{base} offset:{off+off2}"]
        for u in range(4):
            for mat in range(2):
                for kh in range(2):
                    sig = 4*u + 2*mat + kh
                    for half in range(2):
                        acc = (GA if mat == 0 else UA)[u % 2][half]
                        for kk in range(18):
                            ks = kh*18 + kk; g = len(M)
                            f, a = addfrag(tr((V_RA if half == 0 else V_RB) + sig % 4, kk*2048, 512), g, stage=("st", sig))
                            M.append(dict(op=32, acc=f"v[{acc}:{acc+15}]", first=(ks == 0), A=f"a[{a}:{a+3}]", B=f"a[{AX+4*ks}:{AX+4*ks+3}]", need=f))
                            lu[("st", sig)] = g
        for mat in range(2):
            acc = (GA if mat == 0 else UA)[0][0]
            for ks in range(36):
                g = len(M)
                f, a = addfrag(tr(V_R8 + mat, ks*1024, 256), g, stage=("st", 16+mat))
                M.append(dict(op=32, acc=f"v[{acc}:{acc+15}]", first=(ks == 0), A=f"a[{a}:{a+3}]", B=f"a[{AX+4*ks}:{AX+4*ks+3}]", need=f))
                lu[("st", 16+mat)] = g
        S0 = len(M)
        def accP(tt, ss):
            i = tt*3 + ss
            return 48 + 4*i if i < 4 else 112 + 4*(i - 4)
        def accQ(tt, ss):
            i = tt*3 + ss
            return 64 + 4*i if i < 4 else 128 + 4*(i - 4)
        def zP(ss, k):
            i = k*3 + ss
            return f"a[{AZ+4*i}:{AZ+4*i+3}]"
        def zQ(ss, k):
            i = k*3 + ss
            if i < 5: return f"a[{AZ+60+4*i}:{AZ+60+4*i+3}]"
            i -= 5
            if i < 4: return f"v[{32+4*i}:{32+4*i+3}]"
            i -= 4
            if i < 4: return f"v[{96+4*i}:{96+4*i+3}]"
            i -= 4
            return f"a[{4*i}:{4*i+3}]"
        self.zP, self.zQ, self.accP, self.accQ = zP, zQ, accP, accQ
        for mat, accf, zf in ((0, accP, zP), (1, accQ, zQ)):
            for k in range(5):
                for tt in range(2):
                    g = len(M)
                    if k < 4:
                        base = V_SA + (k & 1); off = mat*SLOT + (k >> 1)*4096 + tt*2048
                        st = ("C" if mat == 0 else "S", 0)
                    else:
                        base = V_SA + 2 + mat; off = tt*2048; st = ("CX" if mat == 0 else "SX", 0)
                    f, a = addfrag(lambda a, base=base, off=off: [f"ds_read_b128 a[{a}:{a+3}], v{base} offset:{off}"], g, dist=8, stage=st)
                    for ss in range(3):
                        ac = accf(tt, ss)
                        M.append(dict(op=16, acc=f"v[{ac}:{ac+3}]", first=(k == 0), A=f"a[{a}:{a+3}]", B=zf(ss, k), need=f))
                        lu[st] = len(M) - 1
            if mat == 0: SP_END = len(M)
        P2_0 = len(M)
        stages = [(0, "own"), (1, "own"), (2, "own"), (0, "par"), (1, "par"), (2, "par"), (4, "both"), (3, "own"), (3, "par")]
        slot_order = [0, 1, 2, 0, 3, 1, 2, 0, 3]
        slot_of = {st: slot_order[i] for i, st in enumerate(stages)}
        ACC = {0: [32, 96], 1: [16, 80], 2: [48, 112], 3: [64, 128], 4: [32]}
        tile_last = {}
        def p2run(st, half, base, ks=None):
            u, who = st
            acc = ACC[u][half]
            for k in (ks or range(18)):
                g = len(M)
                f, a = addfrag(tr(base, k*2048, 1024), g, stage=("s2", st))
                M.append(dict(op=32, acc=f"v[{acc}:{acc+15}]", first=(who == "own" and k == 0), A=f"a[{a}:{a+3}]",
                              B=(f"v[{HF+4*k}:{HF+4*k+3}]" if who == "own" else f"a[{HPB+4*k}:{HPB+4*k+3}]"), need=f))
                tile_last[(u, half)] = g; lu[("s2", st)] = g
        for st in stages[:7]:
            u, who = st; slot = slot_of[st]
            if u < 4 and who == "par" and u in (0, 1) and self.opts.get("klate", 1):
                for rng in (range(12), range(12, 18)):
                    for half in range(2): p2run(st, half, (V_RA if half == 0 else V_RB) + slot, rng)
            elif u < 4:
                for half in range(2): p2run(st, half, (V_RA if half == 0 else V_RB) + slot)
            else:
                acc = ACC[4][0]
                for k in range(36):
                    g = len(M)
                    f, a = addfrag(tr(V_R8, k*1024, 512), g, stage=("s2", st))
                    M.append(dict(op=32, acc=f"v[{acc}:{acc+15}]", first=(k == 0), A=f"a[{a}:{a+3}]",
                                  B=(f"v[{HF+4*k}:{HF+4*k+3}]" if k < 18 else f"a[{HPB+4*(k-18)}:{HPB+4*(k-18)+3}]"), need=f))
                    tile_last[(4, 0)] = g; lu[("s2", st)] = g
        p2run((3, "own"), 0, V_LB); p2run((3, "par"), 0, V_LB + 1); p2run((3, "own"), 1, V_LB + 2); p2run((3, "par"), 1, V_LB + 3)
        N = len(M)
        last_use = {}
        for g, m in enumerate(M): last_use[m["need"]] = g
        for f, fr in enumerate(frags):
            d = fr.get("dist", DIST)
            t = fr["use"] - d
            if f >= NAF and t < last_use[f - NAF]: fr["dist"] = fr["use"] - last_use[f - NAF]
        for fr in frags:
            st = fr.get("stage_first")
            if st is None: continue
            if st[0] in ("st", "s2"):
                tags = [st]
                if st == ("st", 3): tags += ["zst", "flinit"]
                if st == ("st", 17) and self.opts.get("onepoll") != 1: tags += ["hst"]
                fr["pre"] = [wvm(tags), o("s_barrier")]
                if st == ("st", 17) and self.opts.get("onepoll") != 1:
                    fr["pre"] += [vm(f"buffer_store_dword v{V_ONE}, v{V_ONE0}, s[{SR_WS}:{SR_WS+3}], s{S_FL} offen sc1", "fl1")]
                if st == ("st", 3):
                    fr["pre"] += [vm(f"buffer_atomic_add v{V_ONE}, v{V_ONE0}, s[{SR_HZ}:{SR_HZ+3}], 0 offen offset:128 sc1", "zpub")]
            elif st == ("CX", 0):
                fr["pre"] = [wvm([("cs", ("CX", 0)), ("cs", ("SX", 0))]), o("s_barrier")]
            elif st == ("SX", 0):
                fr["pre"] = []
            else:
                fr["pre"] = [wvm(("cs", st))]
        stamps = {0: "p1", 144: "u1", 288: "u2", 432: "u3", 576: "u4", S0: "S0", SP_END: "SP", P2_0: "p2", P2_0 + 108: "p2b", P2_0 + 216: "p2c"}
        if self.opts.get("hdiag") == 2:
            stamps = {0: "p1", 144: "u1", 288: "u2", 432: "u3", 576: "u4", S0: "S0", P2_0: "p2", P2_0 + 108: "p2b", P2_0 + 216: "p2c"}
        if self.opts.get("fine") == 2:
            stamps = {0: "p1", S0: "S0", P2_0: "p2"}
            for k in range(9, 127, 9): stamps[P2_0 + k] = f"+{k}"
        elif self.opts.get("fine"):
            stamps = {0: "p1", 432: "u3", 576: "u4", 594: "s594", 612: "s612", 630: "s630", S0: "S0", 660: "s660", 672: "s672", 684: "s684", SP_END: "SP", 714: "s714", 726: "s726", 738: "s738", P2_0: "p2", P2_0 + 36: "a36", P2_0+72: "a72", P2_0 + 108: "p2b", P2_0 + 216: "p2c"}
        for g, name in stamps.items():
            if self.diag: M[g].setdefault("before", []).extend(self.stamp(name))
        self.tail2 = []
        if self.opts.get("jit"):
            j = self.opts["jit"]
            pts = {1: [(0, 7, 3), (300, 5, 1)], 2: [(P2_0 + 6, 3, 1), (600, 7, 6)], 3: [(P2_0 + 150, 7, 2), (P2_0 + 240, 3, 0), (100, 15, 9)]}[j]
            for n, (g, mask, val) in enumerate(pts):
                M[g].setdefault("before", []).extend(self.jitter(n, mask, val, 6))

        def setup(sl, head):
            rbar = {st: fu[st] - DIST for st in fu if st[0] in ("st", "s2")}
            for b in rbar.values():
                if b >= 0: sl.budget[b] = 4
            def fbar(t):
                sl.put(t, [o("s_barrier")])
            busy = {"end": -1}
            def place(groups, start, step=1):
                s = max(start, busy["end"] + 1)
                for grp in groups:
                    sl.put(s, grp); busy["end"] = s; s += step
                return s
            sl.put(2, [o(f"v_mov_b32 v{V_ONE}, 1")])
            eh = sl.stream(self.rr_reads(48, 112) + self.h_epilogue(S_A, V_HACC, 48, 64), 12, 46)
            eh = sl.stream(self.rr_reads(48, 112, 2) + self.h_epilogue(S_B, 128, 48, 64), eh + 1, eh + 34)
            assert eh < 92, eh
            for mat in range(2):
                slot = (16 + mat) % 4
                ins = [o("v_lshrrev_b32 v224, 5, v0"), o("v_lshlrev_b32 v224, 9, v224"),
                       o("v_bfe_u32 v225, v0, 2, 2"), o("v_lshlrev_b32 v225, 6, v225"), o("v_add_u32 v224, v224, v225"),
                       o("v_bfe_u32 v225, v0, 4, 1"), o("v_lshlrev_b32 v225, 5, v225"), o("v_add_u32 v224, v224, v225"),
                       o("v_and_b32 v225, 3, v0"), o("v_lshlrev_b32 v225, 3, v225"), o("v_add_u32 v224, v224, v225"),
                       o(f"v_add_u32 v{V_R8+mat}, {slot*SLOT}, v224")]
                sl.stream(ins, 70 + 20*mat, 88 + 20*mat)
            dma_end = {}
            for sig in range(2, 18):
                grps = self.dma_p1(sig, sig % 4)
                if sig == 2: start = 0
                elif sig == 3: start = 9*self.opts.get('dstep', 2)
                elif self.opts.get("fb", 1):
                    t = lu[("st", sig - 4)]; fbar(t); start = t + 1
                else:
                    start = min(b for b in rbar.values() if b >= lu[("st", sig - 4)]) + 1
                dma_end[sig] = place(grps, start, self.opts.get("dstep", 2))
            self.paced_prefetch(sl, dma_end)
            self.mode_check(sl, M)
            sl.put(590, [G([o(f"s_lshl_b32 s{S_FL}, s{S_LID}, 7"), o(f"s_add_u32 s{S_FL}, s{S_FL}, {WS_FLAG}")])])
            sl.put(592, [o(f"v_mov_b32 v{V_ONE}, 1")])
            e0 = sl.stream(self.geglu(0), 145, 211)
            sl.stream(self.hstore(0) + self.geglu(1) + self.hstore(1), max(e0 + 1, 212), 287)
            for u in range(1, 3):
                sl.stream(self.geglu(2*u) + self.hstore(2*u) + self.geglu(2*u+1) + self.hstore(2*u+1), 144*(u+1) + 1, 144*(u+2) - 1)
            es = sl.stream(self.s_setup(), eh + 1, eh + 11)
            es = sl.stream(self.s_setup2(), es + 1, es + 10)
            assert es < 118, es
            sl.stream(self.s_setup3(224, 225, 226, 227), max(es + 1, 112), 143)
            ep = sl.stream(self.phase2_setup(), 66, 100)
            assert ep < 110
            sl.stream(self.s_setup_e(229, 0), 440, 464)
            t = lu[("st", 14)]; fbar(t); e = place(self.dma_cs(0, 2, ("cs", ("C", 0))), t + 1, 2)
            place(self.dma_cx(0, ("cs", ("CX", 0))) + self.dma_cx(1, ("cs", ("SX", 0))), e, 2)
            t = lu[("st", 15)]; fbar(t); place(self.dma_cs(1, 3, ("cs", ("S", 0))), t + 1, 2)
            self.main_rest(sl, M, fu, lu, stages, slot_of, ACC, tile_last, S0, SP_END, P2_0, N, fbar, place)
        L = self.paced(M, frags, setup, DIST)
        return L + self.tail2

    def mode_check(self, sl, M):
        if not self.opts.get("local", 0): return
        t = 0
        ld = f"buffer_load_dwordx2 v[222:223], off, s[{SR_HZ}:{SR_HZ+3}], s{T5} sc1"
        ld = f"buffer_load_dwordx2 v[230:231], off, s[{SR_HZ}:{SR_HZ+3}], s{S_XC} sc1"
        if self.opts.get("cfg", 0) == 0:
            ld = f"buffer_load_dword v230, off, s[{SR_HZ}:{SR_HZ+3}], s{S_XC} sc1"
            sl.put(140, [G([o(f"s_lshr_b32 s{S_XC}, s{S_LID}, 3"), o(f"s_lshl_b32 s{S_XC}, s{S_XC}, 2")])])
        else:
            sl.put(140, [G([o(f"s_lshl_b32 s{S_XC}, s{S_MT}, 3")])])
        sl.put(143, [vm(ld, "xcc")])
        sl.put(205, [wvm("xcc")])
        sl.put(206, [o(f"v_readfirstlane_b32 s{T6}, v230"), o(f"v_readfirstlane_b32 s{T7}, v231")])
        def nz(r, tmp):
            return [o(f"s_lshr_b32 s{tmp}, s{r}, 1"), o(f"s_or_b32 s{tmp}, s{tmp}, s{r}"), o(f"s_lshr_b32 s{T3}, s{tmp}, 2"), o(f"s_or_b32 s{tmp}, s{tmp}, s{T3}"),
                    o(f"s_and_b32 s{tmp}, s{tmp}, 0x11111111")]
        chk = nz(T6, T1) + nz(T7, T2) + [o(f"s_and_b32 s{T1}, s{T1}, s{T2}"), o(f"s_cmp_eq_u32 s{T1}, 0x11111111")]
        if self.opts.get("cfg", 0) == 0:
            ld = f"buffer_load_dword v230, off, s[{SR_HZ}:{SR_HZ+3}], s{S_XC} sc1"
            ext = [o(f"s_and_b32 s{T1}, s{S_LID}, 6"), o(f"s_lshl_b32 s{T1}, s{T1}, 2"), o(f"s_lshr_b32 s{T2}, s{T6}, s{T1}"),
                   o(f"s_and_b32 s{T3}, s{T2}, 15"), o(f"s_bfe_u32 s{T2}, s{T2}, 0x40004"),
                   o(f"s_min_u32 s{T1}, s{T2}, s{T3}"), o(f"s_cmp_ge_u32 s{T1}, 1")]
            blk = ext + [o("s_cbranch_scc1 L_xc_ok")] + self.spin("L_xc", [o(ld)], [o(f"v_readfirstlane_b32 s{T6}, v230"), o("s_nop 3")] + ext)
            blk += [o(f"s_cmp_eq_u32 s{T2}, s{T3}"), o(f"s_cselect_b32 s{S_MODE}, 1, 0")]
            if self.opts.get("forceglobal"): blk += [o(f"s_mov_b32 s{S_MODE}, 0")]
            M[209].setdefault("before", []).extend(blk)
            return
        blk = chk + [o("s_cbranch_scc1 L_xc_ok")] + self.spin("L_xc", [o(ld)],
              [o(f"v_readfirstlane_b32 s{T6}, v230"), o(f"v_readfirstlane_b32 s{T7}, v231"), o("s_nop 3")] + chk)
        blk += [o(f"s_and_b32 s{T1}, s{T6}, 15"), o(f"s_mul_i32 s{T1}, s{T1}, 0x11111111"),
                o(f"s_cmp_eq_u32 s{T1}, s{T6}"), o(f"s_cselect_b32 s{S_MODE}, 1, 0"),
                o(f"s_cmp_eq_u32 s{T1}, s{T7}"), o(f"s_cselect_b32 s{S_MODE}, s{S_MODE}, 0")]
        if self.opts.get("forceglobal"): blk += [o(f"s_mov_b32 s{S_MODE}, 0")]
        M[209].setdefault("before", []).extend(blk)

    def bulk(self, sl, t):
        bk = [G([o(f"s_lshl_b32 s{S_PF}, s{S_LID}, 2"), o(f"s_add_u32 s{S_PF}, s{S_PF}, s{S_W}"), o(f"s_mul_i32 s{S_PF}, s{S_PF}, 41")]),
              o(f"v_add_u32 v{V_PF}, s{S_PF}, v0"), o(f"v_lshlrev_b32 v{V_PF}, 7, v{V_PF}"),
              G([o("v_cmp_gt_u32 vcc, 41, v0"), o("v_nop"), o("v_nop"), o(f"v_cndmask_b32 v{V_PF}, v{V_ONE0}, v{V_PF}, vcc")])]
        e = sl.stream(bk, t, t + 5, spill=2)
        sl.put(e + 1, [vm(f"buffer_load_dword v{V_PF}, v{V_PF}, s[{SR_WG}:{SR_WG+3}], 0 offen", "pf")])
        sl.put(e + 2, [vm(f"buffer_load_dword v{V_PF}, v{V_PF}, s[{SR_WU}:{SR_WU+3}], 0 offen", "pf")])
        return e + 2

    def paced_prefetch(self, sl, dma_end):
        if self.opts.get("bulkat", 0) == 1:
            bk = [G([o(f"s_lshl_b32 s{S_PF}, s{S_LID}, 2"), o(f"s_add_u32 s{S_PF}, s{S_PF}, s{S_W}"), o(f"s_mul_i32 s{S_PF}, s{S_PF}, 41")]),
                  o(f"v_add_u32 v230, s{S_PF}, v0"), o(f"v_lshlrev_b32 v230, 7, v230"),
                  G([o("v_cmp_gt_u32 vcc, 41, v0"), o("v_nop"), o("v_nop"), o(f"v_cndmask_b32 v230, v{V_ONE0}, v230, vcc")])]
            e = sl.stream(bk, 0, 8, spill=2)
            assert e < 12
            s = dma_end[self.opts.get("bulkst", 3)]
            sl.put(s, [vm(f"buffer_load_dword v{V_PF}, v230, s[{SR_WG}:{SR_WG+3}], 0 offen", "pf")])
            sl.put(s + 1, [vm(f"buffer_load_dword v{V_PF}, v230, s[{SR_WU}:{SR_WU+3}], 0 offen", "pf")])
        if not self.opts.get("ppf", 1): return
        Dd, Cc, t = 228, 229, 227
        if self.opts.get("lbulk"):
            first = [G([o(f"s_lshl_b32 s{S_PF}, s{S_MT}, 2"), o(f"s_add_u32 s{S_PF}, s{S_PF}, s{S_W}"), o(f"s_mul_i32 s{S_PF}, s{S_PF}, 41")]),
                     G([o(f"s_mul_i32 s{S_C}, s{S_J}, 2592"), o(f"s_add_u32 s{S_PF}, s{S_PF}, s{S_C}")])]
        else:
            first = [G([o(f"s_lshl_b32 s{S_PF}, s{S_LID}, 2"), o(f"s_add_u32 s{S_PF}, s{S_PF}, s{S_W}"), o(f"s_mul_i32 s{S_PF}, s{S_PF}, 41")])]
        setup = first + [
                 o(f"v_add_u32 v{Dd}, s{S_PF}, v0"), o(f"v_lshlrev_b32 v{Dd}, 7, v{Dd}"), o(f"v_mov_b32 v{t}, {OOB:#x}"),
                 G([o("v_cmp_gt_u32 vcc, 41, v0"), o("v_nop"), o("v_nop"), o(f"v_cndmask_b32 v{Dd}, v{t}, v{Dd}, vcc")]),
                 G([o(f"s_and_b32 s{S_PF}, s{S_J}, 7"), o(f"s_lshl_b32 s{S_PF}, s{S_PF}, 2"), o(f"s_add_u32 s{S_PF}, s{S_PF}, s{S_W}")]),
                 G([o(f"s_and_b32 s{S_C}, s{S_PF}, 15"), o(f"s_lshl_b32 s{S_C}, s{S_C}, 1"), o(f"s_add_u32 s{S_C}, s{S_C}, s{S_TAU}")]),
                 G([o(f"s_lshl_b32 s{S_ST0}, s{S_MT}, 5"), o(f"s_add_u32 s{S_C}, s{S_C}, s{S_ST0}"), o(f"s_sub_u32 s{S_ST0}, 1024, s{S_C}")]),
                 G([o(f"s_cmp_lt_u32 s{S_PF}, 16"), o(f"s_cselect_b32 s{S_PF}, s{S_C}, s{S_ST0}"), o(f"s_lshl_b32 s{S_PF}, s{S_PF}, 12")]),
                 o(f"v_lshlrev_b32 v{Cc}, 7, v0"), o(f"v_add_u32 v{Cc}, s{S_PF}, v{Cc}"),
                 G([o("v_cmp_gt_u32 vcc, 9, v0"), o("v_nop"), o("v_nop"), o(f"v_cndmask_b32 v{Cc}, v{t}, v{Cc}, vcc")])]
        e = sl.stream(setup, 146, 176)
        s = dma_end[self.opts.get("pfw", 9)]
        assert s > e + 6
        if self.opts.get("bulk", 1) != 2: sl.put(s, [vm(f"buffer_load_dword v{V_PF}, v{Dd}, s[{SR_WD}:{SR_WD+3}], 0 offen", "pf")])
        if self.opts.get("wdl2", 1):
            A2, t2 = 230, 226
            st2 = [G([o(f"s_and_b32 s{S_PF}, s{S_MT}, 7"), o(f"s_mul_i32 s{S_PF}, s{S_PF}, 36"), o(f"s_mul_i32 s{S_C}, s{S_W}, 9")]),
                   o(f"s_add_u32 s{S_PF}, s{S_PF}, s{S_C}"), o(f"v_add_u32 v{t2}, s{S_PF}, v0"), o(f"v_mul_u32_u24 v{t2}, 1152, v{t2}"),
                   o(f"v_mov_b32 v227, {OOB:#x}"),
                   G([o("v_cmp_gt_u32 vcc, 9, v0"), o("v_nop"), o("v_nop"), o(f"v_cndmask_b32 v{t2}, v227, v{t2}, vcc")])]
            e2 = sl.stream(st2, 474, 486)
            def wl(own, k, t):
                sl.put(t, [G([o(f"s_{'mul_i32' } s{S_PF}, s{S_J if own else S_J}, {288*1152}")] + ([] if own else [o(f"s_xor_b32 s{S_C}, s{S_J}, 1"), o(f"s_mul_i32 s{S_PF}, s{S_C}, {288*1152}")]) + [o(f"s_add_u32 s{S_PF}, s{S_PF}, s{S_CU+k}")])])
                sl.put(t + 1, [vm(f"buffer_load_dword v{V_PF}, v{t2}, s[{SR_WD}:{SR_WD+3}], s{S_PF} offen", "pf")])
            s = dma_end[16]; wl(True, 0, s); wl(True, 1, s + 2)
            s = dma_end[17]; wl(True, 2, s); wl(False, 0, s + 2)
        if self.opts.get("l2pf"):
            PFA = 231
            st3 = [G([o(f"s_and_b32 s{S_PF}, s{S_MT}, 7"), o(f"s_mul_i32 s{S_PF}, s{S_PF}, 36"), o(f"s_mul_i32 s{S_XC}, s{S_W}, 9")]),
                   o(f"s_add_u32 s{S_PF}, s{S_PF}, s{S_XC}"), o(f"v_add_u32 v{PFA}, s{S_PF}, v0"), o(f"v_mul_u32_u24 v{PFA}, 9216, v{PFA}"),
                   G([o("v_cmp_gt_u32 vcc, 9, v0"), o("v_nop"), o("v_nop"), o(f"v_cndmask_b32 v{PFA}, v{V_ONE0}, v{PFA}, vcc")])]
            e3 = sl.stream(st3, 104, 110, spill=1)
            assert e3 < 112
            AH = self.opts.get("l2ah", 2)
            for sig in sorted(dma_end):
                tgt = sig + AH
                s3 = dma_end[sig]
                if s3 <= e3 + 1 or tgt > 17: continue
                if sig in (self.opts.get("pfw", 9), self.opts.get("pfc", 11)): s3 += 3
                if tgt < 16:
                    u, mat, kh = tgt // 4, (tgt // 2) % 2, tgt % 2
                    rs = SR_WG if mat == 0 else SR_WU
                    sl.put(s3, [G([o(f"s_mul_i32 s{S_XC}, s{S_W}, {72*9216}"), o(f"s_sub_u32 s{S_XC}, s{S_UB+u}, s{S_XC}"), o(f"s_add_u32 s{S_XC}, s{S_XC}, {kh*288*9216}")])])
                    sl.put(s3 + 1, [vm(f"buffer_load_dword v{V_PF}, v{PFA}, s[{rs}:{rs+3}], s{S_XC} offen", "pf")])
                else:
                    rs = SR_WG if tgt == 16 else SR_WU
                    sl.put(s3, [G([o(f"s_mul_i32 s{S_XC}, s{S_W}, {144*9216}"), o(f"s_sub_u32 s{S_XC}, s{S_UB+4}, s{S_XC}")])])
                    sl.put(s3 + 1, [vm(f"buffer_load_dword v{V_PF}, v{PFA}, s[{rs}:{rs+3}], s{S_XC} offen", "pf")])
                    sl.put(s3 + 2, [o(f"s_add_u32 s{S_XC}, s{S_XC}, {288*9216}")])
                    sl.put(s3 + 3, [vm(f"buffer_load_dword v{V_PF}, v{PFA}, s[{rs}:{rs+3}], s{S_XC} offen", "pf")])
        s = dma_end[self.opts.get("pfc", 11)]
        sl.put(s, [vm(f"buffer_load_dword v{V_PF}, v{Cc}, s[{SR_CS}:{SR_CS+3}], 0 offen", "pf")])
        sl.put(s + 1, [vm(f"buffer_load_dword v{V_PF}, v{Cc}, s[{SR_SS}:{SR_SS+3}], 0 offen", "pf")])

    def rowmir(self, sRB, sT, t0, t1, t2, t3):
        return [o(f"s_lshl_b32 s{sT}, s{sRB}, 3"), o(f"v_and_b32 v{t0}, 7, v0"), o(f"v_add_u32 v{t0}, s{sT}, v{t0}"),
                o(f"v_bfe_u32 v{t1}, v0, 3, 2"),
                o(f"v_add_u32 v{t2}, 1, v{t1}"), o(f"v_lshrrev_b32 v{t2}, 1, v{t2}"), o(f"v_lshlrev_b32 v{t2}, 10, v{t2}"),
                o(f"v_add_u32 v{t3}, v{t2}, v{t0}"), o(f"v_sub_u32 v{t2}, v{t2}, v{t0}"),
                o(f"v_and_b32 v{t1}, 1, v{t1}"),
                G([o(f"v_cmp_eq_u32 vcc, 1, v{t1}"), o("v_nop"), o("v_nop"), o(f"v_cndmask_b32 v{t3}, v{t3}, v{t2}, vcc")]),
                o(f"v_bfe_u32 v{t1}, v0, 3, 2"), o(f"v_lshlrev_b32 v{t2}, 10, v{t1}"), o(f"v_subrev_u32 v{t2}, 0x600, v{t2}"),
                G([o(f"v_cmp_le_u32 vcc, 2, v{t1}"), o("v_nop"), o("v_nop"), o(f"v_cndmask_b32 v{t2}, v{t3}, v{t2}, vcc")]),
                G([o(f"v_cmp_eq_u32 vcc, 0, v{t0}"), o("v_nop"), o("v_nop"), o(f"v_cndmask_b32 v{t0}, v{t3}, v{t2}, vcc")]),
                o(f"v_sub_u32 v{t1}, 2048, v{t0}"), o(f"v_and_b32 v{t1}, 0x7ff, v{t1}")]

    def owner_addr(self):
        sQ = S_TO
        t0, t1, t2, t3 = 244, 245, 246, 247
        L = [G([o(f"s_lshl_b32 s{T4}, s{S_MT}, 2"), o(f"s_add_u32 s{T4}, s{T4}, s{S_W}")]),
             G([o(f"s_mul_i32 s{T5}, s{T4}, 18"), o(f"s_add_u32 s{T5}, s{T5}, s{sQ}"), o(f"s_lshl_b32 s{T5}, s{T5}, 11")]),
             o(f"s_lshr_b32 s{T3}, s{S_J}, 1")]
        i = 0
        for dd in (3, 2, 1):
            for b_ in range(2):
                L += [G([o(f"s_lshr_b32 s{16+i}, s{T3}, 1"), o(f"s_add_u32 s{16+i}, s{16+i}, {dd}"), o(f"s_and_b32 s{16+i}, s{16+i}, 3")]),
                      G([o(f"s_lshl_b32 s{16+i}, s{16+i}, 1"), o(f"s_add_u32 s{16+i}, s{16+i}, {b_}"), o(f"s_mul_i32 s{16+i}, s{16+i}, {PART_BYTES}")]),
                      o(f"s_add_u32 s{16+i}, s{16+i}, s{T5}")]
                i += 1
        L += [G([o(f"s_xor_b32 s22, s{T3}, 1"), o(f"s_mul_i32 s22, s22, {PART_BYTES}"), o(f"s_add_u32 s22, s22, s{T5}")])]
        L += self.rowmir(T4, T5, t0, t1, t2, t3) + [
              o(f"s_lshl_b32 s{T5}, s{sQ}, 6"),
              o(f"v_mul_u32_u24 v{t2}, 1152, v{t0}"), o(f"v_add_u32 v{t2}, s{T5}, v{t2}"),
              o(f"v_lshrrev_b32 v{t3}, 5, v0"), o(f"v_lshlrev_b32 v238, 4, v{t3}"), o(f"v_add_u32 v238, v{t2}, v238"),
              o(f"v_lshlrev_b32 v237, 3, v{t3}"), o(f"v_add_u32 v237, v{t2}, v237"),
              G([o(f"s_lshl_b32 s{T5}, s{sQ}, 7"), o(f"s_cmp_lt_u32 s{sQ}, 9"), o(f"s_cselect_b32 s24, 0, 1")]),
              G([o(f"s_sub_u32 s{T4}, {2292 - 96}, s{T5}"), o(f"s_cmp_lt_u32 s{sQ}, 9"), o(f"s_cselect_b32 s{T5}, s{T5}, s{T4}"), o(f"s_cselect_b32 s{T4}, 1, -1")]),
              G([o(f"v_mov_b32 v{t2}, s24"), o(f"v_cmp_eq_u32 vcc, 1, v{t2}"), o("v_nop"), o("v_nop"), o(f"v_cndmask_b32 v{t0}, v{t0}, v{t1}, vcc")]),
              o(f"v_mul_u32_u24 v{t0}, {YP}, v{t0}"), o(f"v_add_u32 v{t0}, s{T5}, v{t0}"),
              o(f"v_lshlrev_b32 v{t3}, 4, v{t3}"), o(f"v_mul_lo_u32 v{t3}, v{t3}, s{T4}"), o(f"v_add_u32 v{t0}, v{t0}, v{t3}"),
              o(f"v_add_u32 v239, {WS_YH}, v{t0}")]
        return L

    def pipe_reduce(self, sl, M, fu, lu, P2_0, N):
        self.items_cfg()
        t4 = P2_0 + self.opts.get("t4", 254)
        sl.put(t4 - 3, [o("v_mov_b32 v240, 4")])
        sl.put(t4, [wvm([("pst", 0), ("pst", 1), ("pst", 2), "yst"]), o("s_barrier")])
        sl.put(t4 + 1, [vm(f"buffer_store_dword v240, v{V_ONE0}, s[{SR_WS}:{SR_WS+3}], s{S_FL} offen sc1", "fl4")])
        ep = sl.stream(self.p2q_setup(), P2_0 + 102, P2_0 + 124)
        assert ep < P2_0 + 132
        s_own, s_par = 0, 3
        lb = [G([o(f"s_bfe_u32 s{T5}, s{S_J}, 0x10001"), o(f"s_lshl_b32 s{T5}, s{T5}, 6"), o(f"s_xor_b32 s{T4}, s{T5}, 64")]),
              o(f"v_xor_b32 v{V_LB}, s{T4}, v{V_RA+s_own}"), o(f"v_xor_b32 v{V_LB+1}, s{T4}, v{V_RA+s_par}"),
              o(f"v_xor_b32 v{V_LB+2}, s{T5}, v{V_RA+s_own}"), o(f"v_xor_b32 v{V_LB+3}, s{T5}, v{V_RA+s_par}")]
        sl.stream(lb, P2_0 + 190, P2_0 + 200)
        e = sl.stream(self.owner_addr(), P2_0 + 204, P2_0 + 250)
        e = sl.stream([G([o(f"s_lshl_b32 s{T6}, s{S_MT}, 11"), o(f"s_add_u32 s{T6}, s{T6}, {WS_FLAG}")]),
                       G([o(f"s_and_b32 s{S_PM}, s{S_J}, 1"), o(f"s_lshl_b32 s{S_PM}, 0x5555, s{S_PM}")]),
                       o("v_lshlrev_b32 v242, 7, v0"), o(f"v_mov_b32 v241, {OOB:#x}"),
                       G([o("v_cmp_gt_u32 vcc, 16, v0"), o("v_nop"), o("v_nop"), o("v_cndmask_b32 v242, v241, v242, vcc")])], e + 1, e + 8)
        for i in range(4): sl.put(e + 2 + i, [vm(f"buffer_load_dwordx2 v[{24+2*i}:{25+2*i}], v237, s[{SR_X}:{SR_X+3}], 0 offen offset:{16*i}", "ox")])
        def ploads(i0, i1):
            out = []
            for i in range(i0, i1):
                out += [vm(f"buffer_load_dwordx4 v[{80+8*i}:{83+8*i}], v{V_L16}, s[{SR_WS}:{SR_WS+3}], s{16+i} offen sc1", "op"),
                        vm(f"buffer_load_dwordx4 v[{84+8*i}:{87+8*i}], v{V_L16}, s[{SR_WS}:{SR_WS+3}], s{16+i} offen offset:1024 sc1", "op")]
            return out
        yl = [vm(f"buffer_load_dwordx4 v[{48+4*i}:{51+4*i}], v239, s[{SR_WS}:{SR_WS+3}], 0 offen offset:{32*i} sc1", "op") for i in range(4)]
        self.late_loads = []
        if self.opts.get("split3", 1):
            t3 = P2_0 + self.opts.get("t3", 212)
            sl.put(t3 - 3, [o("v_mov_b32 v240, 3")])
            sl.put(t3, [wvm([("pst", 0), ("pst", 1), "yst"]), o("s_barrier")])
            sl.put(t3 + 1, [vm(f"buffer_store_dword v240, v{V_ONE0}, s[{SR_WS}:{SR_WS+3}], s{S_FL} offen sc1", "fl3")])
            tp3 = max(e + 7, P2_0 + self.opts.get("tp3", 258))
            ld, chk = self.group_poll("L_g3", 3, 241, 242)
            sl.put(tp3, [vm(ld, "gp3")])
            sl.put(tp3 + 9, [wvm("gp3")])
            M[tp3 + 11].setdefault("before", []).extend(chk + [o("s_cbranch_scc1 L_g3_ok")] + self.spin("L_g3", [o(ld)], chk))
            s = tp3 + 11
            for l in ploads(0, 4) + yl:
                sl.put(s, [l]); s += 2
            lds = ploads(4, 6)
            tpoll = max(s, P2_0 + self.opts.get("tpa", 300))
        else:
            lds = ploads(0, 6) + yl
            tpoll = max(e + 7, P2_0 + self.opts.get("tpa", 284))
        ld, chk = self.group_poll("L_gA", 4, 241, 242)
        sl.put(tpoll, [vm(ld, "gpA")])
        sl.put(tpoll + 9, [wvm("gpA")])
        M[tpoll + 11].setdefault("before", []).extend(chk + [o("s_cbranch_scc1 L_gA_ok")] + self.spin("L_gA", [o(ld)], chk))
        s = tpoll + 11
        stp = self.opts.get("ostep", 2)
        for l in lds:
            if s < N - 1: sl.put(s, [l]); s += stp
            else: self.late_loads.append(l)
        print("owner loads: in loop until", s, "late:", len(self.late_loads), "N", N)
        t5 = N - self.opts.get("t5", 10)
        sl.put(t5 - 3, [o("v_mov_b32 v240, 5")])
        sl.put(t5, [wvm([("pst", 3), ("pst", 4)]), o("s_barrier")])
        sl.put(t5 + 1, [vm(f"buffer_store_dword v240, v{V_ONE0}, s[{SR_WS}:{SR_WS+3}], s{S_FL} offen sc1", "fl5")])
        self.RDx = dict(P=("v", 176), X=208, Y=212, OA=220, PV=221, t=[222, 223, 224, 225], rev=26, so=84)
        Ad, Ld = self.item_setup("D", self.RDx, split=True)
        self.D_ld = Ld
        eD = sl.stream(Ad, N - 17, N - 1, spill=0)
        print("D addr until", eD)

    def jitter(self, n, mask, val, iters):
        return [o(f"s_and_b32 s97, s{S_LID}, {mask}"), o(f"s_cmp_eq_u32 s97, {val}"), o(f"s_cbranch_scc0 L_jit{n}"),
                o(f"s_mov_b32 s97, {iters}"), raw(f"L_jl{n}:"), o("s_sleep 64"), o("s_sub_u32 s97, s97, 1"), o("s_cmp_lg_u32 s97, 0"),
                o(f"s_cbranch_scc1 L_jl{n}"), raw(f"L_jit{n}:")]

    def spin(self, label, load, cond_ok, regs_note=""):
        return [o(f"s_mov_b32 s{S_CNT}, 0"), raw(f"{label}:")] + load + [o("s_waitcnt vmcnt(0)")] + cond_ok + \
               [o(f"s_cbranch_scc1 {label}_ok"), o(f"s_add_u32 s{S_CNT}, s{S_CNT}, 1"), o(f"s_cmp_gt_u32 s{S_CNT}, 0x40000"), o(f"s_cbranch_scc1 {label}_ok"),
                o("s_sleep 1"), o(f"s_branch {label}"), raw(f"{label}_ok:")]

    def main_rest(self, sl, M, fu, lu, stages, slot_of, ACC, tile_last, S0, SP_END, P2_0, N, fbar, place):
        zP, zQ, accP, accQ = self.zP, self.zQ, self.accP, self.accQ
        DIST = self.opts.get("dist", 7)
        if self.opts.get("esig", 1) == 2:
            e = sl.stream(self.geglu_sig(7, 8), 508, 576)
            e6 = sl.stream(self.geglu(6) + self.hstore(6), 577, 618)
            e7 = sl.stream(self.geglu_fin(7) + self.hstore(7), max(e6 + 1, e + 1, 580), max(e6 + 1, 580) + 8)
            assert e7 < S0 - 2, e7
            e8 = sl.stream(self.geglu_sig(8, 8), 616, S0 + 2)
            e8 = sl.stream(self.geglu_fin(8) + self.hstore(8), max(e8 + 1, S0 + 4), S0 + 16)
            self.e8 = e8
        elif self.opts.get("esig", 1):
            e = sl.stream(self.geglu_sig(6, 8), 490, 535)
            e = sl.stream(self.geglu_sig(7, 8), max(e + 1, 508), 578)
            e6 = sl.stream(self.geglu_fin(6) + self.hstore(6), max(e + 1, 579), 596)
            e7 = sl.stream(self.geglu_fin(7) + self.hstore(7), e6 + 1, 614)
            assert e7 < S0 - 2, e7
            e8 = sl.stream(self.geglu_sig(8, 8), max(e7 + 1, 616), S0 + 2)
            e8 = sl.stream(self.geglu_fin(8) + self.hstore(8), max(e8 + 1, S0 + 4), S0 + 16)
            self.e8 = e8
        else:
            e6 = sl.stream(self.geglu(6) + self.hstore(6), 577, 634)
            assert e6 < S0 - 2, e6
            e7 = sl.stream(self.geglu(7) + self.hstore(7), e6 + 1, S0 + 46)
            assert e7 < SP_END - 1, e7
        if not self.opts.get("esig", 1): sl.stream(self.geglu(8, 8) + self.hstore(8), S0 + 4, S0 + 85)
        sl.put(467, [vm(f"buffer_load_dword v230, off, s[{SR_HZ}:{SR_HZ+3}], 0 offset:128 sc1", "zpoll")])
        sl.put(574, [wvm("zpoll")])
        sl.put(575, [o(f"v_readfirstlane_b32 s{T0}, v230")])
        M[578].setdefault("before", []).extend(
            [o(f"s_cmp_ge_u32 s{T0}, 256"), o("s_cbranch_scc1 L_zp_ok")] +
            self.spin("L_zp", [o(f"buffer_load_dword v{V_PF}, off, s[{SR_HZ}:{SR_HZ+3}], 0 offset:128 sc1")],
                      [o(f"v_readfirstlane_b32 s{T0}, v{V_PF}"), o("s_nop 3"), o(f"s_cmp_ge_u32 s{T0}, 256")]))
        def zl(zf, va, k, tagn):
            ins = []
            if k < 4: ins += [o(f"s_add_u32 s{S_C}, s{S_ZB}, {k*2048}")]
            else: ins += [G([o(f"s_cmp_eq_u32 s{S_W}, 3"), o(f"s_cselect_b32 s{S_C}, 0, {OOB:#x}"), o(f"s_add_u32 s{S_C}, s{S_C}, s{S_ZB}")]),
                          o(f"s_add_u32 s{S_C}, s{S_C}, {4*2048}")]
            return ins, [vm(f"buffer_load_dwordx4 {zf(ss,k)}, v{va+ss}, s[{SR_WS}:{SR_WS+3}], s{S_C} offen sc1", (tagn, k)) for ss in range(3)]
        ins = []
        for k in range(5):
            a_, l_ = zl(zP, V_ZP, k, "zp"); ins += a_ + l_
        for k in range(4):
            a_, l_ = zl(zQ, V_ZQ, k, "zq"); ins += a_ + l_
        sl.stream(ins, 579, 644)
        a_, l_ = zl(zQ, V_ZQ, 4, "zq")
        sl.stream(a_ + l_, S0, S0 + 8)
        for k in range(5):
            sl.put(S0 + 6*k - 1, [wvm(("zp", k))])
            sl.put(SP_END + 6*k - 1, [wvm(("zq", k))])
        A5P = [120, 124, 136]; A5Q = [140, 224, 228]
        blk = [o(f"s_or_b32 s{T3}, s{S_MT}, s{S_TAU}"), o(f"s_cmp_eq_u32 s{T3}, 0"), o("s_cbranch_scc0 L_s_n512"),
               o("v_mov_b32 v232, 0x3f80"), o("v_mov_b32 v233, 0xbf80"), o("v_mov_b32 v234, v232"), o("v_mov_b32 v235, v233"),
               o("v_mov_b32 v236, 0xbf800000"), o("v_mov_b32 v237, 0x3f800000"), o("v_mov_b32 v238, v236"), o("v_mov_b32 v239, v237"), o("s_nop 1")]
        for k in range(5):
            for ss in range(3):
                a = A5P[ss]
                blk += [mf16(f"v[{a}:{a+3}]", "v[232:235]", zP(ss, k), "0" if k == 0 else f"v[{a}:{a+3}]")]
                a = A5Q[ss]
                blk += [mf16(f"v[{a}:{a+3}]", "v[236:239]", zQ(ss, k), "0" if k == 0 else f"v[{a}:{a+3}]")]
        blk += [o("s_nop 7"), raw("L_s_n512:")]
        M[P2_0].setdefault("before", []).extend(blk)
        self.A5P, self.A5Q = A5P, A5Q
        t = lu[("st", 16)]; fbar(t)
        e = place(self.dma_p2(stages[0], slot_of[stages[0]], True, 12, 13, V_PF), t + 1, 1)
        t = lu[("st", 17)]; fbar(t)
        e = place(self.dma_p2(stages[1], slot_of[stages[1]], False, 0, 0, 0), t + 1, 1)
        ins = [o(f"v_lshrrev_b32 v{V_PF}, 5, v0"), o(f"v_lshlrev_b32 v{V_PF}, 9, v{V_PF}")]
        for s in range(4): ins += [o(f"v_sub_u32 v{V_RA+s}, v{V_RA+s}, v{V_PF}"), o(f"v_sub_u32 v{V_RB+s}, v{V_RB+s}, v{V_PF}")]
        eb = sl.stream(ins, S0 + 2, S0 + 16)
        t = lu[("CX", 0)]
        sl.put(t, [wvm("hst"), o("s_barrier")])
        sl.put(t + 1, [o(f"v_mov_b32 v{V_PF}, 2")])
        sl.put(t + 2, [vm(f"buffer_store_dword v{V_PF}, v{V_ONE0}, s[{SR_WS}:{SR_WS+3}], s{S_FL} offen sc1", "fl2h")])
        assert eb < t, (eb, t)
        assert self.e8 < t, (self.e8, t)
        place(self.dma_p2(stages[2], slot_of[stages[2]], False, 0, 0, 0), t + 3, 1)
        fbar(lu[("SX", 0)])
        a0 = P2_0 + 3
        t0r, t1r = 240, 241
        SC = 3*SLOT
        N1A = SPARE + 12288
        A5P, A5Q = self.A5P, self.A5Q
        wr = [G([o(f"s_mul_i32 s{S_C}, s{S_W}, 12288"), o(f"s_add_u32 s{S_C}, s{S_C}, {SC}")]),
              o(f"v_lshrrev_b32 v{t0r}, 4, v0"), o(f"v_mul_u32_u24 v{t0r}, 768, v{t0r}"), o(f"v_and_b32 v{t1r}, 15, v0"), o(f"v_lshlrev_b32 v{t1r}, 2, v{t1r}"),
              o(f"v_add_u32 v{t0r}, v{t0r}, v{t1r}"), o(f"v_add_u32 v{t0r}, s{S_C}, v{t0r}")]
        if self.opts.get("w2", 1):
            WB = {(0, 0): t0r, (0, 1): 243, (1, 0): 244, (1, 1): 246}
            wr += [o(f"v_add_u32 v243, {16*192}, v{t0r}"), o(f"v_add_u32 v244, 6144, v{t0r}"), o(f"v_add_u32 v246, {6144 + 16*192}, v{t0r}")]
            for pq, accf in ((0, accP), (1, accQ)):
                for tt in range(2):
                    for ss in range(3):
                        for r in (0, 2):
                            wr += [ds(f"ds_write2_b32 v{WB[(pq, tt)]}, v{accf(tt,ss)+r}, v{accf(tt,ss)+r+1} offset0:{r*48 + ss*16} offset1:{(r+1)*48 + ss*16}", "sred_w")]
            if self.opts.get('nowr'): wr = wr[:10] + wr[-1:]
            e = sl.stream(wr, a0, a0 + self.opts.get("wwin", 22))
        else:
            for pq, accf in ((0, accP), (1, accQ)):
                for tt in range(2):
                    for ss in range(3):
                        for r in range(4):
                            wr += [ds(f"ds_write_b32 v{t0r}, v{accf(tt,ss)+r} offset:{pq*6144 + (16*tt + r)*192 + ss*64}", "sred_w")]
            e = sl.stream(wr, a0, a0 + 30)
        wr2 = [G([o(f"s_mul_i32 s{S_C}, s{S_W}, 384"), o(f"s_add_u32 s{S_C}, s{S_C}, {N1A}")]), o(f"v_add_u32 v{t1r}, s{S_C}, v{t1r}"), o(f"v_mov_b32 v245, 0x30000"),
               G([o("v_cmp_gt_u32 vcc, 16, v0"), o("v_nop"), o("v_nop"), o(f"v_cndmask_b32 v{t1r}, v245, v{t1r}, vcc")])]
        for ss in range(3):
            wr2 += [ds(f"ds_write_b32 v{t1r}, v{A5P[ss]} offset:{ss*64}", "sred_w"), ds(f"ds_write_b32 v{t1r}, v{A5Q[ss]} offset:{(3+ss)*64}", "sred_w")]
        e = sl.stream(wr2, e + 1, e + 8)
        b1 = e + 1
        sl.put(b1, [wlg("sred_w"), o("s_barrier")])
        R0, R1 = 112, 48
        A0, A1, YD0, YM0, YD1, YM1 = 232, 233, 234, 235, 236, 237
        def rowcalc(dst):
            return [o(f"v_mul_lo_u32 v238, v238, s{T7}"), o(f"v_add_u32 v238, s{T4}, v238")]
        def ymir(YD, YM):
            return [o(f"v_mul_u32_u24 v{YD}, {YP}, v238"), o(f"v_add_u32 v{YD}, v{YD}, v239"),
                    o(f"v_sub_u32 v{YM}, 2048, v238"), o(f"v_mul_u32_u24 v{YM}, {YP}, v{YM}"), o(f"v_add_u32 v{YM}, v{YM}, v239"),
                    o(f"v_and_b32 v238, 0x3ff, v238"),
                    G([o(f"v_cmp_eq_u32 vcc, 0, v238"), o(f"v_mov_b32 v238, {OOB:#x}"), o("v_nop"), o(f"v_cndmask_b32 v{YM}, v{YM}, v238, vcc")])]
        ad = [G([o(f"s_lshl_b32 s{T3}, s{S_MT}, 5"), o(f"s_add_u32 s{T3}, s{T3}, s{S_TAU}"), o(f"s_and_b32 s{T4}, s{S_W}, 1")]),
              G([o(f"s_lshl_b32 s{T4}, s{T4}, 4"), o(f"s_add_u32 s{T4}, s{T4}, s{T3}"), o(f"s_sub_u32 s{T3}, 1024, s{T4}")]),
              G([o(f"s_cmp_lt_u32 s{S_W}, 2"), o(f"s_cselect_b32 s{T4}, s{T4}, s{T3}"), o(f"s_cselect_b32 s{T7}, 2, -2")]),
              G([o(f"s_lshl_b32 s{T3}, s{S_W}, 3"), o(f"s_mul_i32 s{T3}, s{T3}, 192"), o(f"s_add_u32 s{T3}, s{T3}, {SC}")]),
              G([o(f"s_and_b32 s{T5}, s{S_J}, 7"), o(f"s_mul_i32 s{T5}, s{T5}, 144")]),
              o(f"v_lshrrev_b32 v238, 3, v0"), o(f"v_and_b32 v239, 7, v0"),
              o(f"v_mul_u32_u24 v{A0}, 192, v238"), o(f"v_lshlrev_b32 v239, 4, v239"), o(f"v_add_u32 v{A0}, v{A0}, v239"), o(f"v_add_u32 v{A0}, s{T3}, v{A0}")] + \
             rowcalc(0) + [o(f"v_add_u32 v239, s{T5}, v239")] + ymir(YD0, YM0) + \
             [o(f"v_and_b32 v238, 7, v0"), o(f"v_lshrrev_b32 v239, 3, v0"), o(f"v_add_u32 v239, 8, v239"), o(f"v_min_u32 v239, 9, v239"),
              o(f"v_mul_u32_u24 v{A1}, 192, v238"), o(f"v_lshlrev_b32 v239, 4, v239"), o(f"v_add_u32 v{A1}, v{A1}, v239"), o(f"v_add_u32 v{A1}, s{T3}, v{A1}")] + \
             rowcalc(1) + [o(f"v_add_u32 v239, s{T5}, v239")] + ymir(YD1, YM1) + \
             [G([o(f"s_cmp_eq_u32 s{T5}, {7*144}"), o(f"s_cselect_b32 s{T5}, 16, 8")]), o(f"v_mov_b32 v238, {OOB:#x}"),
              G([o(f"v_cmp_gt_u32 vcc, s{T5}, v0"), o("v_nop"), o("v_nop"), o(f"v_cndmask_b32 v{YD1}, v238, v{YD1}, vcc"), o(f"v_cndmask_b32 v{YM1}, v238, v{YM1}, vcc")]),
              o(f"s_mov_b32 s{T4}, {WS_YH}")]
        e = sl.stream(ad, a0 + 2, b1)
        assert e <= b1 + 6
        def rds(R, A, tag):
            return [ds(f"ds_read_b128 v[{R + 16*pq + 4*ww}:{R + 16*pq + 4*ww + 3}], v{A} offset:{ww*12288 + pq*6144}", tag) for pq in range(2) for ww in range(4)]
        e = sl.stream(rds(R0, A0, "sr0") + rds(R1, A1, "sr1"), max(e, b1) + 1, max(e, b1) + 10)
        b2 = e + 3
        sl.put(b2, [wlg("sr1"), o("s_barrier")])
        self.b2 = b2
        def fin(R, YD, YM):
            out = []
            for pq in range(2):
                b_ = R + 16*pq
                for k in range(4):
                    out += [o(f"v_add_f32 v{b_+k}, v{b_+k}, v{b_+4+k}"), o(f"v_add_f32 v{b_+8+k}, v{b_+8+k}, v{b_+12+k}"), o(f"v_add_f32 v{b_+k}, v{b_+k}, v{b_+8+k}")]
            for k in range(4):
                out += [o(f"v_sub_f32 v{R+4+k}, v{R+k}, v{R+16+k}"), o(f"v_add_f32 v{R+8+k}, v{R+k}, v{R+16+k}")]
            out += [vm(f"buffer_store_dwordx4 v[{R+4}:{R+7}], v{YD}, s[{SR_WS}:{SR_WS+3}], s{T4} offen sc1", "yst"),
                    vm(f"buffer_store_dwordx4 v[{R+8}:{R+11}], v{YM}, s[{SR_WS}:{SR_WS+3}], s{T4} offen sc1", "yst")]
            return out
        ff = fin(R1, YD1, YM1) + fin(R0, YD0, YM0)
        if self.opts.get('nofin'): ff = [vm(f'buffer_store_dword v{V_PF}, v{V_ONE0}, s[{SR_OUT}:{SR_OUT+3}], 0 offen offset:4000', 'yst')]
        e = sl.stream(ff, b2 + 1, P2_0 + 66, spill=3)
        assert e < P2_0 + 72, e
        n1 = [o(f"v_and_b32 v238, 15, v0"), o(f"v_lshlrev_b32 v238, 2, v238"), o(f"v_add_u32 v238, {N1A}, v238")]
        for ss in range(3):
            for ww in range(4):
                n1 += [ds(f"ds_read_b32 v{64+4*ss+ww}, v238 offset:{ww*384 + ss*64}", "sred_n"), ds(f"ds_read_b32 v{128+4*ss+ww}, v238 offset:{ww*384 + (3+ss)*64}", "sred_n")]
        n1 += [wlg("sred_n")]
        for ss in range(3):
            for b_ in (64 + 4*ss, 128 + 4*ss):
                n1 += [o(f"v_add_f32 v{b_}, v{b_}, v{b_+1}"), o(f"v_add_f32 v{b_+2}, v{b_+2}, v{b_+3}"), o(f"v_add_f32 v{b_}, v{b_}, v{b_+2}")]
            n1 += [o(f"v_sub_f32 v{64+4*ss+1}, v{64+4*ss}, v{128+4*ss}"), o(f"v_add_f32 v{64+4*ss+2}, v{64+4*ss}, v{128+4*ss}")]
        n1 += [G([o(f"s_or_b32 s{T3}, s{S_TAU}, s{S_W}"), o(f"s_or_b32 s{T3}, s{T3}, s{S_MT}"), o(f"s_cmp_eq_u32 s{T3}, 0"), o(f"s_cselect_b32 s{T3}, 16, 0")]),
               G([o(f"v_cmp_gt_u32 vcc, s{T3}, v0"), o(f"v_mov_b32 v238, 0"), o(f"v_mov_b32 v239, {OOB:#x}"), o(f"v_cndmask_b32 v238, v239, v238, vcc")])]
        for ss in range(3):
            n1 += [o(f"v_add_u32 v{128+4*ss+1}, v238, v{V_YC[ss]}")]
        n1 += [o(f"s_mov_b32 s{T3}, {WS_YH + 512*YP}"), o(f"s_mov_b32 s{T5}, {WS_YH + 1536*YP}")]
        for ss in range(3):
            n1 += [vm(f"buffer_store_dword v{64+4*ss+1}, v{128+4*ss+1}, s[{SR_WS}:{SR_WS+3}], s{T3} offen sc1", "yst"),
                   vm(f"buffer_store_dword v{64+4*ss+2}, v{128+4*ss+1}, s[{SR_WS}:{SR_WS+3}], s{T5} offen sc1", "yst")]
        blk = [o(f"s_or_b32 s{T3}, s{S_TAU}, s{S_MT}"), o(f"s_cmp_eq_u32 s{T3}, 0"), o("s_cbranch_scc0 L_no512b")]
        for i in flat(n1):
            if i.k == "wlg": blk.append(o("s_waitcnt lgkmcnt(0)"))
            elif i.k in ("ds", "vm"): blk.append(I(i.t, "o"))
            else: blk.append(i)
        blk += [raw("L_no512b:")]
        M[max(e + 2, P2_0 + 70)].setdefault("before", []).extend(blk)
        gpar = fu[("s2", (0, "par"))]
        PF2 = 231
        sl.put(660, [G([o(f"s_xor_b32 s{T0}, s{S_LID}, 1"), o(f"s_lshl_b32 s{T1}, s{T0}, 7"), o(f"s_add_u32 s{T1}, s{T1}, {WS_FLAG}")])])
        sl.put(661, [G([o(f"s_lshl_b32 s{T0}, s{T0}, 2"), o(f"s_add_u32 s{T0}, s{T0}, s{S_W}"), o(f"s_mul_i32 s{T0}, s{T0}, {18*1024}")]), o(f"s_add_u32 s{T0}, s{T0}, {WS_HX}")])
        pl = f"buffer_load_dword v242, off, s[{SR_WS}:{SR_WS+3}], s{T1} sc1"
        def hload(k, n, t, tag):
            if self.opts.get("nohp"):
                sl.put(t + 1, [vm(f"buffer_load_dword v{V_PF}, v{V_ONE0}, s[{SR_WS}:{SR_WS+3}], 0 offen", tag)]); return
            sl.put(t, [o(f"s_add_u32 s{T6}, s{T0}, {k*1024}")])
            sl.put(t + 1, self.dload([f"buffer_load_dwordx4 a[{HPB+4*(k+q)}:{HPB+4*(k+q)+3}], v{V_L16}, s[{SR_WS}:{SR_WS+3}], s{T6} offen offset:{q*1024}" for q in range(n)], tag, True))
        if self.opts.get("onepoll") == 2:
            sl.put(640, [vm(pl, "hpoll1")]) if False else None
            sl.put(S0 + 14, [vm(pl, "hpoll1")])
            sl.put(S0 + 18, [wvm("hpoll1")]) if False else None
            tcheck = S0 + 22
            sl.put(tcheck - 2, [wvm("hpoll1")])
            sl.put(tcheck - 1, [o(f"v_readfirstlane_b32 s{T2}, v242")])
            M[tcheck + 2].setdefault("before", []).extend(
                [o(f"s_cmp_ge_u32 s{T2}, 1"), o("s_cbranch_scc1 L_hq_ok")] +
                self.spin("L_hq", [o(pl)], [o(f"v_readfirstlane_b32 s{T2}, v242"), o("s_nop 3"), o(f"s_cmp_ge_u32 s{T2}, 1")]))
            st_ = self.opts.get("hstep1", 10)
            for i in range(6): hload(2*i, 2, tcheck + 3 + st_*i, ("hp", i))
            tq = P2_0 + self.opts.get("tq", 40)
            assert tq > tcheck + 3 + st_*5 + 2
            sl.put(tq, [vm(pl, "hpoll2")])
            sl.put(tq + 10, [wvm("hpoll2")])
            sl.put(tq + 11, [o(f"v_readfirstlane_b32 s{T2}, v242")])
            M[tq + 14].setdefault("before", []).extend(
                [o(f"s_cmp_ge_u32 s{T2}, 2"), o("s_cbranch_scc1 L_hp_ok")] +
                self.spin("L_hp", [o(pl)], [o(f"v_readfirstlane_b32 s{T2}, v242"), o("s_nop 3"), o(f"s_cmp_ge_u32 s{T2}, 2")]))
            for i in range(3): hload(12 + 2*i, 2, tq + 15 + 10*i, ("hp", 6 + i))
        elif self.opts.get("onepoll"):
            tq = P2_0 + self.opts.get("tq", 4)
            sl.put(tq, [vm(pl, "hpoll2")])
            sl.put(tq + 10, [wvm("hpoll2")])
            sl.put(tq + 11, [o(f"v_readfirstlane_b32 s{T2}, v242")])
            M[tq + 14].setdefault("before", []).extend(
                [o(f"s_cmp_ge_u32 s{T2}, 2"), o("s_cbranch_scc1 L_hp_ok")] +
                self.spin("L_hp", [o(pl)], [o(f"v_readfirstlane_b32 s{T2}, v242"), o("s_nop 3"), o(f"s_cmp_ge_u32 s{T2}, 2")]))
            for i in range(9):
                hload(2*i, 2, tq + 15 + self.opts.get("hstep", 9)*i, ("hp", i))
        else:
            h1 = self.opts.get("h1", P2_0 - 12)
            sl.put(h1, [vm(pl, "hpoll1")])
            sl.put(h1 + 12, [wvm("hpoll1")])
            sl.put(h1 + 13, [o(f"v_readfirstlane_b32 s{T2}, v242")])
            M[h1 + 16].setdefault("before", []).extend(
                [o(f"s_cmp_ge_u32 s{T2}, 1"), o("s_cbranch_scc1 L_hq_ok")] +
                self.spin("L_hq", [o(pl)], [o(f"v_readfirstlane_b32 s{T2}, v242"), o("s_nop 3"), o(f"s_cmp_ge_u32 s{T2}, 1")]))
            def hload(k, n, t, tag):
                sl.put(t, [o(f"s_add_u32 s{T6}, s{T0}, {k*1024}")])
                sl.put(t + 1, self.dload([f"buffer_load_dwordx4 a[{HPB+4*(k+q)}:{HPB+4*(k+q)+3}], v{V_L16}, s[{SR_WS}:{SR_WS+3}], s{T6} offen offset:{q*1024}" for q in range(n)], tag, True))
            for i in range(6):
                hload(2*i, 2, h1 + 17 + 9*i, ("hp", i))
            tp = P2_0 + self.opts.get("tp2", 74)
            assert tp - 13 > h1 + 17 + 9*5 + 1
            sl.put(tp - 13, [vm(pl, "hpoll2")])
            sl.put(tp - 2, [wvm("hpoll2")])
            sl.put(tp - 1, [o(f"v_readfirstlane_b32 s{T2}, v242")])
            M[tp + 2].setdefault("before", []).extend(
                [o(f"s_cmp_ge_u32 s{T2}, 2"), o("s_cbranch_scc1 L_hp_ok")] +
                self.spin("L_hp", [o(pl)], [o(f"v_readfirstlane_b32 s{T2}, v242"), o("s_nop 3"), o(f"s_cmp_ge_u32 s{T2}, 2")]))
            for i in range(3):
                hload(12 + 2*i, 2, tp + 4 + 6*i, ("hp", 6 + i))

        sl.put(gpar - 2, [wvm(("hp", 5))])
        off = 24 if self.opts.get("klate", 1) else 12
        for i in range(3):
            sl.put(gpar + off + 2*i - 2, [wvm(("hp", 6 + i))])
        for i in range(3, 9):
            st = stages[i]; slot = slot_of[st]
            prev = [j for j in range(i) if slot_of[stages[j]] == slot]
            if prev:
                t = lu[("s2", stages[prev[-1]])]; fbar(t); start = t + 1
            else:
                start = b2 + 1
            grps = self.dma_p2(st, slot, False, 250, 251, 0)
            if st[0] == 4:
                grps = [[o(f"s_and_b32 s{S_C}, s{S_W}, 1"), o(f"s_mul_i32 s{S_C}, s{S_C}, {16*1152}")]] + grps
                place(grps, start, 1)
            else:
                place(grps, start, 2)
        s4 = slot_of[(4, "both")]
        ins = [o("v_lshrrev_b32 v250, 5, v0"), o("v_lshlrev_b32 v250, 8, v250"),
               o("v_bfe_u32 v251, v0, 2, 2"), o("v_lshlrev_b32 v251, 6, v251"), o("v_add_u32 v250, v250, v251"),
               o("v_bfe_u32 v251, v0, 4, 1"), o("v_lshlrev_b32 v251, 5, v251"), o("v_add_u32 v250, v250, v251"),
               o("v_and_b32 v251, 3, v0"), o("v_lshlrev_b32 v251, 3, v251"), o("v_add_u32 v250, v250, v251"),
               o(f"v_add_u32 v{V_R8}, {s4*SLOT}, v250")]
        sl.stream(ins, P2_0 + 150, P2_0 + 175)
        self.pipe_reduce(sl, M, fu, lu, P2_0, N)
        for (u, half), tl in sorted(tile_last.items(), key=lambda x: x[1]):
            acc = ACC[u][half]
            par = half
            t = TMP + 8*par
            st = S_ST0 + par
            ins = [o(f"v_cvt_pk_bf16_f32 v{t+i}, v{acc+2*i}, v{acc+2*i+1}") for i in range(8)]
            if u == 3 and half == 1: continue
            if u < 3: ins += [o(f"s_add_u32 s{st}, s{S_QU[u]}, {half*2048}")]
            elif u == 3: ins += [o(f"s_mov_b32 s{st}, s{S_QN}")]
            else: ins += [o(f"s_mov_b32 s{st}, s{S_Q8}")]
            ins += self.dstore([f"buffer_store_dwordx4 v[{t}:{t+3}], v{V_L16}, s[{SR_WS}:{SR_WS+3}], s{st} offen",
                                f"buffer_store_dwordx4 v[{t+4}:{t+7}], v{V_L16}, s[{SR_WS}:{SR_WS+3}], s{st} offen offset:1024"], ("pst", u))
            s0 = tl + 4
            if s0 + 10 <= N: sl.stream(ins, s0, s0 + 10)
            else: self.tail2 = [o("s_nop 15")] + ins

    def item_setup(self, kind, R, srd=None, split=False):
        t0, t1, t2, t3 = R["t"]
        sQ, sH, sB, sT = T2, T3, T4, T5
        L = []
        LD = []
        SW = SR_WS if srd is None else srd
        if kind == "A":
            L += [G([o(f"s_lshl_b32 s{sT}, s{S_J}, 2"), o(f"s_add_u32 s{sT}, s{sT}, s{S_W}"), o(f"s_lshr_b32 s{sQ}, s{sT}, 3")]),
                  G([o(f"s_cmp_lt_u32 s{sQ}, 4"), o(f"s_cselect_b32 s{sH}, 0, 6"), o(f"s_add_u32 s{sQ}, s{sQ}, s{sH}")])]
        elif kind in "BC":
            lo, hi = (4, 12) if kind == "B" else (6, 14)
            L += [G([o(f"s_lshl_b32 s{sT}, s{S_J}, 1"), o(f"s_lshr_b32 s{sH}, s{S_W}, 1"), o(f"s_add_u32 s{sT}, s{sT}, s{sH}")]),
                  G([o(f"s_lshr_b32 s{sQ}, s{sT}, 3"), o(f"s_cmp_lt_u32 s{sQ}, 2"), o(f"s_cselect_b32 s{sH}, {lo}, {hi}")]),
                  o(f"s_add_u32 s{sQ}, s{sQ}, s{sH}")]
        else:
            L += [G([o(f"s_lshr_b32 s{sT}, s{S_J}, 1"), o(f"s_and_b32 s{sQ}, s{S_J}, 1"), o(f"s_add_u32 s{sQ}, s{sQ}, 8")])]
        L += [G([o(f"s_and_b32 s{sH}, s{sT}, 1"), o(f"s_bfe_u32 s{sB}, s{sT}, 0x20001"), o(f"s_lshl_b32 s{sT}, s{S_MT}, 2")]),
              o(f"s_add_u32 s{sB}, s{sB}, s{sT}"),
              G([o(f"s_mul_i32 s{sT}, s{sB}, 18"), o(f"s_add_u32 s{sT}, s{sT}, s{sQ}"), o(f"s_lshl_b32 s{sT}, s{sT}, 1")]),
              G([o(f"s_add_u32 s{sT}, s{sT}, s{sH}"), o(f"s_lshl_b32 s{sT}, s{sT}, 10")])]
        so = R["so"]
        for p in range(8): L += [o(f"s_add_u32 s{so+p}, s{sT}, {p*PART_BYTES}")]
        if kind == "A":
            L += [o(f"v_mov_b32 v{t3}, 0")]
        elif kind in "BC":
            L += [o(f"s_and_b32 s{sT}, s{S_W}, 1"), o(f"v_bfe_u32 v{t0}, v0, 4, 1"), o(f"v_mov_b32 v{t1}, {OOB:#x}"), o(f"v_mov_b32 v{t3}, 0"),
                  G([o(f"v_cmp_eq_u32 vcc, s{sT}, v{t0}"), o("v_nop"), o("v_nop"), o(f"v_cndmask_b32 v{t3}, v{t1}, v{t3}, vcc")])]
        else:
            L += [o(f"v_bfe_u32 v{t0}, v0, 3, 2"), o(f"v_mov_b32 v{t1}, {OOB:#x}"), o(f"v_mov_b32 v{t3}, 0"),
                  G([o(f"v_cmp_eq_u32 vcc, s{S_W}, v{t0}"), o("v_nop"), o("v_nop"), o(f"v_cndmask_b32 v{t3}, v{t1}, v{t3}, vcc")])]
        PV = R["PV"]
        L += [o(f"v_add_u32 v{PV}, v{t3}, v{V_L16}")]
        pk, pb = R["P"]
        ldp = [vm(f"buffer_load_dwordx4 {pk}[{pb+4*p}:{pb+4*p+3}], v{PV}, s[{SW}:{SW+3}], s{so+p} offen sc1", ("it", kind)) for p in range(8)]
        if split: LD += ldp
        else: L += ldp
        X, Y, OA = R["X"], R["Y"], R["OA"]
        L += self.rowmir(sB, sT, t0, t1, t2, OA) + [
              G([o(f"s_lshl_b32 s{sT}, s{sQ}, 6"), o(f"s_lshl_b32 s{sB}, s{sH}, 5"), o(f"s_add_u32 s{sT}, s{sT}, s{sB}")]),
              o(f"v_mul_u32_u24 v{t2}, 1152, v{t0}"), o(f"v_add_u32 v{t2}, s{sT}, v{t2}"), o(f"v_add_u32 v{t2}, v{t2}, v{t3}"),
              o(f"v_lshrrev_b32 v{X}, 5, v0"), o(f"v_lshlrev_b32 v{OA}, 4, v{X}"), o(f"v_add_u32 v{OA}, v{t2}, v{OA}"),
              o(f"v_lshlrev_b32 v{X}, 3, v{X}"), o(f"v_add_u32 v{t2}, v{t2}, v{X}"),
              vm(f"buffer_load_dwordx2 v[{X}:{X+1}], v{t2}, s[{SR_X}:{SR_X+3}], 0 offen", ("it", kind)),
              vm(f"buffer_load_dwordx2 v[{X+2}:{X+3}], v{t2}, s[{SR_X}:{SR_X+3}], 0 offen offset:16", ("it", kind)),
              G([o(f"s_lshl_b32 s{sT}, s{sT}, 1"), o(f"s_cmp_lt_u32 s{sQ}, 9"), o(f"s_cselect_b32 s{R['rev']}, 0, 1")]),
              G([o(f"s_sub_u32 s{sB}, 2292, s{sT}"), o(f"s_cmp_lt_u32 s{sQ}, 9"), o(f"s_cselect_b32 s{sT}, s{sT}, s{sB}"), o(f"s_cselect_b32 s{sB}, 1, -1")]),
              G([o(f"v_cmp_eq_u32 vcc, 1, v{PV}") if False else o(f"v_mov_b32 v{t2}, s{R['rev']}"), o(f"v_cmp_eq_u32 vcc, 1, v{t2}"), o("v_nop"), o("v_nop"),
                 o(f"v_cndmask_b32 v{t0}, v{t0}, v{t1}, vcc")]),
              o(f"v_mul_u32_u24 v{t0}, {YP}, v{t0}"), o(f"v_add_u32 v{t0}, s{sT}, v{t0}"), o(f"v_add_u32 v{t0}, v{t0}, v{t3}"),
              o(f"v_lshrrev_b32 v{t1}, 5, v0"), o(f"v_lshlrev_b32 v{t1}, 4, v{t1}"), o(f"v_mul_lo_u32 v{t1}, v{t1}, s{sB}"),
              o(f"v_add_u32 v{t0}, v{t0}, v{t1}"),
              o(f"s_lshl_b32 s{sB}, s{sB}, 5"), o(f"v_add_u32 v{t1}, s{sB}, v{t0}"), o(f"v_add_u32 v{t0}, {WS_YH}, v{t0}"), o(f"v_add_u32 v{t1}, {WS_YH}, v{t1}")]
        ldy = [vm(f"buffer_load_dwordx4 v[{Y}:{Y+3}], v{t0}, s[{SW}:{SW+3}], 0 offen sc1", ("it", kind)),
               vm(f"buffer_load_dwordx4 v[{Y+4}:{Y+7}], v{t1}, s[{SW}:{SW+3}], 0 offen sc1", ("it", kind))]
        if split:
            LD += ldy
            return L, LD
        return L + ldy

    def item_finish(self, kind, R):
        X, Y, OA = R["X"], R["Y"], R["OA"]
        t0, t1, t2, t3 = R["t"]
        pk, pb = R["P"]
        L = [wvm(("it", kind)),
             o(f"s_cmp_eq_u32 s{R['rev']}, 0"), o(f"s_cbranch_scc1 L_rv{kind}"),
             o(f"v_swap_b32 v{Y}, v{Y+3}"), o(f"v_swap_b32 v{Y+1}, v{Y+2}"), o(f"v_swap_b32 v{Y+4}, v{Y+7}"), o(f"v_swap_b32 v{Y+5}, v{Y+6}"),
             raw(f"L_rv{kind}:"),
             o(f"s_mov_b32 s{T0}, 0x3f80"), o(f"s_mov_b32 s{T1}, 0x3f800000")]
        for i in range(4):
            L += [o(f"v_dot2_f32_bf16 v{Y+2*i}, v{X+i}, s{T0}, v{Y+2*i}"), o(f"v_dot2_f32_bf16 v{Y+2*i+1}, v{X+i}, s{T1}, v{Y+2*i+1}")]
        for p in range(8):
            for i in range(4):
                r = pb + 4*p + i
                if pk == "a":
                    L += [o(f"v_accvgpr_read_b32 v{t0 + (i & 1)}, a{r}")]
                    src = t0 + (i & 1)
                else: src = r
                L += [o(f"v_dot2_f32_bf16 v{Y+2*i}, v{src}, s{T0}, v{Y+2*i}"), o(f"v_dot2_f32_bf16 v{Y+2*i+1}, v{src}, s{T1}, v{Y+2*i+1}")]
        L += [o("s_nop 2")]
        for i in range(4):
            L += [o(f"v_cvt_pk_bf16_f32 v{X+i}, v{Y+2*i}, v{Y+2*i+1}")]
        L += [o("s_nop 1"), o(f"v_permlane32_swap_b32 v{X}, v{X+2}"), o(f"v_permlane32_swap_b32 v{X+1}, v{X+3}"),
              vm(f"buffer_store_dwordx4 v[{X}:{X+3}], v{OA}, s[{SR_OUT}:{SR_OUT+3}], 0 offen{self.osfx}", "out")]
        return L

    def group_poll(self, label, val, vdst, voff, parity=False):
        ld = f"buffer_load_dword v{vdst}, v{voff}, s[{SR_WS}:{SR_WS+3}], s{T6} offen sc1"
        if parity:
            chk = [o(f"v_cmp_le_u32 vcc, {val}, v{vdst}"), o("s_nop 0"), o(f"s_and_b32 s{T7}, vcc_lo, s{S_PM}"), o(f"s_cmp_eq_u32 s{T7}, s{S_PM}")]
        else:
            chk = [o(f"v_cmp_le_u32 vcc, {val}, v{vdst}"), o("s_nop 0"), o(f"s_and_b32 s{T7}, vcc_lo, 0xffff"), o(f"s_cmp_eq_u32 s{T7}, 0xffff")]
        return ld, chk

    def items_cfg(self):
        self.RA = dict(P=("v", 80), X=112, Y=116, OA=124, PV=125, t=[126, 127, 16, 17], rev=24, so=16)
        self.RB = dict(P=("a", 0), X=18, Y=22, OA=30, PV=31, t=[48, 49, 50, 51], rev=25, so=16)
        self.RC = dict(P=("v", 176), X=208, Y=212, OA=220, PV=221, t=[222, 223, 224, 225], rev=26, so=16)
        self.RD = dict(P=("v", 128), X=160, Y=164, OA=172, PV=173, t=[174, 175, 226, 227], rev=27, so=84)

    def tail(self):
        L = list(self.late_loads)
        O = 128
        ld, chk = self.group_poll("L_f5", 5, 241, 242, parity=True)
        L += [vm(ld, "fp5")]
        L += self.stamp("pub")
        RD = self.RDx; Ld = self.D_ld
        L += [o("s_nop 7"), o("s_nop 3"), wvm("op"), wvm("ox"), o(f"s_mov_b32 s{T0}, 0x3f80"), o(f"s_mov_b32 s{T1}, 0x3f800000"),
              o("s_cmp_eq_u32 s24, 0"), o("s_cbranch_scc1 L_oyd")]
        for g_ in range(4):
            for k in range(4): L += [o(f"v_add_f32 v{O+4*g_+k}, v{O+4*g_+k}, v{48 + 4*(3-g_) + 3 - k}")]
        L += [o("s_branch L_oyj"), raw("L_oyd:")]
        for r in range(16): L += [o(f"v_add_f32 v{O+r}, v{O+r}, v{48+r}")]
        L += [raw("L_oyj:")]
        for i in range(8):
            L += [o(f"v_dot2_f32_bf16 v{O+2*i}, v{24+i}, s{T0}, v{O+2*i}"), o(f"v_dot2_f32_bf16 v{O+2*i+1}, v{24+i}, s{T1}, v{O+2*i+1}")]
        for p in range(6):
            for i in range(8):
                L += [o(f"v_dot2_f32_bf16 v{O+2*i}, v{80+8*p+i}, s{T0}, v{O+2*i}"), o(f"v_dot2_f32_bf16 v{O+2*i+1}, v{80+8*p+i}, s{T1}, v{O+2*i+1}")]
        L += self.stamp("early")
        L += [wvm("fp5")] + chk + [o("s_cbranch_scc1 L_f5_ok")] + self.spin("L_f5", [o(ld)], chk) + [reset()]
        L += self.stamp("pok")
        L += [vm(f"buffer_load_dwordx4 v[16:19], v{V_L16}, s[{SR_WS}:{SR_WS+3}], s22 offen sc1", "sib"),
              vm(f"buffer_load_dwordx4 v[20:23], v{V_L16}, s[{SR_WS}:{SR_WS+3}], s22 offen offset:1024 sc1", "sib")]
        L += Ld
        L += [wvm("sib")]
        for i in range(8):
            L += [o(f"v_dot2_f32_bf16 v{O+2*i}, v{16+i}, s{T0}, v{O+2*i}"), o(f"v_dot2_f32_bf16 v{O+2*i+1}, v{16+i}, s{T1}, v{O+2*i+1}")]
        L += [o("s_nop 2")]
        for i in range(8): L += [o(f"v_cvt_pk_bf16_f32 v{24+i}, v{O+2*i}, v{O+2*i+1}")]
        L += [o("s_nop 1"), o("v_permlane32_swap_b32 v24, v26"), o("v_permlane32_swap_b32 v25, v27"),
              o("v_permlane32_swap_b32 v28, v30"), o("v_permlane32_swap_b32 v29, v31"),
              vm(f"buffer_store_dwordx4 v[24:27], v238, s[{SR_OUT}:{SR_OUT+3}], 0 offen{self.osfx}", "out"),
              vm(f"buffer_store_dwordx4 v[28:31], v238, s[{SR_OUT}:{SR_OUT+3}], 0 offen offset:32{self.osfx}", "out")]
        L += self.stamp("ownfin")
        L += self.item_finish("D", RD)
        return L

    def kernel(self, name):
        L = [raw(f".globl {name}"), raw(".p2align 8"), raw(f".type {name},@function"), raw(f"{name}:")]
        L += self.prologue()
        L += self.stamp("proend")
        L += self.ln_stats()
        L += self.stamp("stats")
        L += [o("s_barrier")]
        L += [o(f"s_mov_b32 s{S_A}, s{S_J}"), o(f"s_add_u32 s{S_B}, s{S_J}, 16")]
        L += self.h_dma(S_A, 2, "wz1")
        L += [o(f"s_cmp_lt_u32 s{S_J}, 2"), o("s_cbranch_scc0 L_noz2a")]
        L += [I(i.t, "o") if i.k == "vm" else i for i in self.h_dma(S_B, 3, "wz2")]
        L += [raw("L_noz2a:")]
        hd = []
        for sig in range(2):
            for grp in self.dma_p1(sig, sig): hd.append(grp)
        if self.opts.get("lbulk"):
            hd.append([o(f"s_lshl_b32 s{S_PF}, s{S_MT}, 2"), o(f"s_add_u32 s{S_PF}, s{S_PF}, s{S_W}"), o(f"s_mul_i32 s{S_PF}, s{S_PF}, 45"),
                   o(f"v_add_u32 v240, s{S_PF}, v0"), o(f"s_mov_b32 s{S_PF}, {(2**32+4)//5}"), o(f"v_mul_hi_u32 v241, v240, s{S_PF}"),
                   o("v_mul_u32_u24 v242, 5, v241"), o("v_sub_u32 v242, v240, v242"), o("v_lshlrev_b32 v242, 7, v242"),
                   o("v_mul_u32_u24 v241, 9216, v241"), o("v_add_u32 v240, v241, v242"),
                   o(f"s_mul_i32 s{S_PF}, s{S_J}, 576"), o(f"s_and_b32 s{S_PF}, s{S_PF}, 0xffffff80"),
                   o("v_cmp_gt_u32 vcc, 45, v0"), o("s_nop 1"), o(f"v_cndmask_b32 v240, v{V_ONE0}, v240, vcc"),
                   vm(f"buffer_load_dword v{V_PF}, v240, s[{SR_WG}:{SR_WG+3}], s{S_PF} offen", "pf"),
                   vm(f"buffer_load_dword v{V_PF}, v240, s[{SR_WU}:{SR_WU+3}], s{S_PF} offen", "pf")])
        else:
            if not self.opts.get('bearly'): hd.append([o(f"s_lshl_b32 s{S_PF}, s{S_LID}, 2"), o(f"s_add_u32 s{S_PF}, s{S_PF}, s{S_W}"), o(f"s_mul_i32 s{S_PF}, s{S_PF}, 41"),
                       o(f"v_add_u32 v240, s{S_PF}, v0"), o("v_lshlrev_b32 v240, 7, v240"), o("v_cmp_gt_u32 vcc, 41, v0"), o("s_nop 1"),
                       o(f"v_cndmask_b32 v240, v{V_ONE0}, v240, vcc"),
                       vm(f"buffer_load_dword v{V_PF}, v240, s[{SR_WG}:{SR_WG+3}], 0 offen", "pf"),
                       vm(f"buffer_load_dword v{V_PF}, v240, s[{SR_WU}:{SR_WU+3}], 0 offen", "pf")])
        lf = self.ln_finish()
        per = -(-len(lf) // 18)
        k = 0
        for n, grp in enumerate(hd):
            L += grp
            if n < 18: L += lf[k:k + per]; k += per
        L += lf[k:]
        L += [o(f"v_subrev_u32 v{V_XA+i}, s{S_LX}, v{V_XA+i}") for i in range(4)]
        L += [o(f"v_add_u32 v{V_XA+i}, {2*SLOT}, v{V_XA+i}") for i in range(4)]
        L += self.stamp("lnfin")
        L += self.seg_norm_h()
        L += self.stamp("normH")
        L += self.h2_block()
        L += self.tr_bases()
        L += srd(SR_HZ, 36, 256)
        L += self.main()
        L += self.stamp("p2end")
        L += self.tail()
        L += self.stamp("end")
        if self.diag:
            L += [o("s_waitcnt vmcnt(0)"),
                  o(f"s_lshl_b32 s{T0}, s{S_LID}, 2"), o(f"s_add_u32 s{T0}, s{T0}, s{S_W}"), o(f"s_lshl_b32 s{T0}, s{T0}, 8"),
                  o(f"s_add_u32 s{T0}, s{T0}, {WS_STAMP}"), o("v_lshlrev_b32 v240, 2, v0"),
                  o(f"buffer_store_dword v{V_STAMP}, v240, s[{SR_WS}:{SR_WS+3}], s{T0} offen")]
        if self.opts.get("hdiag") == 2:
            L += [o("s_waitcnt vmcnt(0)"), o(f"v_readlane_b32 s98, v{V_STAMP}, 32"), o("s_nop 3"),
                  o(f"v_subrev_u32 v240, s98, v{V_STAMP}"),
                  o("v_subrev_u32 v241, 32, v0"), o("v_lshlrev_b32 v241, 2, v241"),
                  o("v_cmp_le_u32 vcc, 32, v0"), o(f"v_mov_b32 v242, {OOB:#x}"), o("s_nop 0"), o("v_cndmask_b32 v241, v242, v241, vcc"),
                  o("v_cmp_gt_u32 vcc, 48, v0"), o("s_nop 1"), o("v_cndmask_b32 v241, v242, v241, vcc"),
                  o(f"s_cmp_eq_u32 s{S_W}, 0"), o("s_cbranch_scc0 L_end"),
                  o(f"buffer_atomic_u{'min' if self.opts.get('hmin') else 'max'} v240, v241, s[{SR_HZ}:{SR_HZ+3}], 0 offen sc1")]
        elif self.opts.get("hdiag"):
            L += [o("s_waitcnt vmcnt(0)"), o("s_memrealtime s[100:101]"), o("s_waitcnt lgkmcnt(0)"),
                  o("s_sub_u32 s97, s100, s98"), o("s_not_b32 s98, s98"),
                  o("v_mov_b32 v240, s100"), o("v_mov_b32 v241, s98"), o("v_mov_b32 v242, s97"),
                  o(f"buffer_atomic_umax v240, v{V_ONE0}, s[{SR_HZ}:{SR_HZ+3}], 0 offen sc1"),
                  o(f"buffer_atomic_umax v241, v{V_ONE0}, s[{SR_HZ}:{SR_HZ+3}], 0 offen offset:4 sc1"),
                  o(f"buffer_atomic_umax v242, v{V_ONE0}, s[{SR_HZ}:{SR_HZ+3}], 0 offen offset:8 sc1")]
            for i, r in enumerate(self.hd_regs):
                pass
        L += [raw("L_end:"), o("s_endpgm")]
        return finalize(flat(L))

NAME = "parallel_sum__spectral_fnet__geglu_ffn__prompt_kernel"
def build(diag=False, opts=None):
    hdr = open("parallel_sum__spectral_fnet__geglu_ffn__prompt.s.ref").read().split("\n")
    top = [l for l in hdr if l.startswith(";") and "@launch" not in l and "Override" not in l and "grid=ceil" not in l]
    g = Gen(diag, opts)
    lines = g.kernel(NAME)
    errs = hazard_check(lines)
    for e in errs[:30]: print("HAZARD:", e)
    txt = "\n".join(top) + "\n"
    txt += "; @launch grid=(256,1,1) block=(256,1,1) lds=163840\n"
    txt += """; Generated by a hand-written scheduler script (slot-paced MFMA stream, waits resolved automatically).
; One persistent workgroup per CU: (M-tile of 128 rows, F-slice of 288 columns).
;   prologue : x tile -> LDS (DMA) -> fragments, layer-norm statistics, centred bf16 x via MFMA unpack
;   H        : hidden-dim DFT of the tile (cos/sin columns), radix-2 fold over the sequence index, published as z
;   P1       : gate/up GEMM (x stationary in AGPRs, weights streamed through a 4-slot LDS ring, transposed reads) + GeGLU
;   S        : sequence-dim DFT (folded, K=512) of a 32x36 output tile, published as Y
;   P2       : down GEMM over own + partner h, rotated tile order; each workgroup owns one output tile and sums the
;              partials of the other producers plus Y and the residual
; Hand-offs: write-through stores, one flag line per workgroup in d_ws (cleared at start), one arrival counter in d_debug.
"""
    txt += '.amdgcn_target "amdgcn-amd-amdhsa--gfx950"\n.text\n'
    txt += "\n".join(lines) + "\n" + kernel_footer(NAME)
    return txt, g.names

if __name__ == "__main__":
    import sys, json
    opts = {}
    for a in sys.argv[2:]:
        if "=" in a:
            k, v = a.split("="); opts[k] = int(v)
    txt, names = build("diag" in sys.argv, opts)
    open(sys.argv[1], "w").write(txt)
    json.dump(names, open(sys.argv[1] + ".names", "w"))
```
